```python
import torch

def _softmax(x, axis=-1):
    return torch.softmax(x, dim=axis)
def _gelu(x):
    return torch.nn.functional.gelu(x, approximate="tanh")
def _silu(x):
    return torch.nn.functional.silu(x)
def _sigmoid(x):
    return torch.sigmoid(x)
def _layernorm(x, axis=-1, eps=1e-5):
    m = x.mean(dim=axis, keepdim=True)
    v = x.var(dim=axis, keepdim=True, unbiased=False)
    return (x - m) / torch.sqrt(v + eps)
def _scatter_add(tgt, idx, src, axis=0):
    return tgt.clone().index_add_(axis, idx, src)
def _segment_sum(src, seg, n):
    out = torch.zeros((n,) + src.shape[1:], dtype=src.dtype)
    return out.index_add_(0, seg, src)
def _pad(x, pw):
    flat = tuple(v for pair in reversed(pw) for v in pair)
    return torch.nn.functional.pad(x, flat)

kernel_name = 'standalone__mha_block_cached__near_ridge'

def setup_inputs():

    _w = (lambda a: (lambda t: t.to(torch.bfloat16) if t.is_floating_point() else t)(torch.as_tensor(a)))
    B, Sq, D = 32, 160, 640
    H, Sk, Dh = 32, 512, 128
    return {
        "x": _w((lambda *s: torch.randn(*s, dtype=torch.bfloat16) * 0.8)(B, Sq, D)),
        "k_cache": _w((lambda *s: torch.randn(*s, dtype=torch.bfloat16) * 0.8)(B, H, Sk, Dh)),
        "v_cache": _w((lambda *s: torch.randn(*s, dtype=torch.bfloat16) * 0.05)(B, H, Sk, Dh)),
        "wq": _w((lambda *s: torch.randn(*s, dtype=torch.bfloat16) * 0.8)(D, H * Dh) * (D ** -0.5)),
        "wo": _w((lambda *s: torch.randn(*s, dtype=torch.bfloat16) * 0.05)(H * Dh, D) * ((H * Dh) ** -0.5)),
    }

def reference(x, k_cache, v_cache, wq, wo):
    B, Sq, D = x.shape
    H, Dh = 32, 128
    q = (lambda x, *d: x.permute(*d))((x @ wq).reshape(B, Sq, H, Dh), 0, 2, 1, 3)
    scores = torch.einsum("bhqd,bhkd->bhqk", q, k_cache) * (Dh ** -0.5)
    p = _softmax(scores, axis=-1)
    o = torch.einsum("bhqk,bhkd->bhqd", p, v_cache)
    return (lambda x, *d: x.permute(*d))(o, 0, 2, 1, 3).reshape(B, Sq, H * Dh) @ wo
```

```python
import re

def R(base, n=1, f='v'):
    return f"{f}{base}" if n == 1 else f"{f}[{base}:{base+n-1}]"
def regs(base, n=1, f='v'):
    return {(f, base + i) for i in range(n)}

class I:
    __slots__ = ('text', 'kind', 'wr', 'rd', 'srcc', 'tag', 'nost')
    def __init__(self, text, kind, wr=(), rd=(), srcc=(), tag=None):
        self.text = text; self.kind = kind
        self.wr = set(wr); self.rd = set(rd); self.srcc = set(srcc); self.tag = tag
    def states(self):
        if self.kind == 'label' or self.kind == 'comment': return 0
        if self.kind == 'nop': return int(self.text.split()[1]) + 1
        return 1

def mfma(d, a, b, c, df='v', af='v', bf='v', cf='v'):
    cs = '0' if c is None else R(c, 4, cf)
    rd = regs(a, 4, af) | regs(b, 4, bf)
    sc = set() if c is None else regs(c, 4, cf)
    return I(f"v_mfma_f32_16x16x32_bf16 {R(d,4,df)}, {R(a,4,af)}, {R(b,4,bf)}, {cs}", 'mfma', wr=regs(d, 4, df), rd=rd | sc, srcc=sc)

_opnd = re.compile(r'^(-?)(v|s|a)(\d+)$|^(-?)(v|s|a)\[(\d+):(\d+)\]$')
def parse_regs(o):
    o = o.strip()
    if o in ('vcc',): return {('s', 'vcc')}
    if o == 'm0': return {('s', 'm0')}
    if o == 'exec': return {('s', 'exec')}
    m = _opnd.match(o)
    if not m: return set()
    if m.group(2): return {(m.group(2), int(m.group(3)))}
    return {(m.group(5), i) for i in range(int(m.group(6)), int(m.group(7)) + 1)}

TRANS = ('v_exp_f32', 'v_rcp_f32', 'v_log_f32', 'v_rsq_f32', 'v_sqrt_f32')
def V(text):
    op, rest = text.split(None, 1)
    ops = [x.strip() for x in rest.split(',')]
    kind = 'trans' if op in TRANS else 'valu'
    if op.startswith('v_permlane'):
        r = parse_regs(ops[0]) | parse_regs(ops[1])
        return I(text, 'permlane', wr=r, rd=r)
    if op.startswith('v_readfirstlane') or op.startswith('v_readlane'):
        return I(text, 'readlane', wr=parse_regs(ops[0]), rd=parse_regs(ops[1]))
    wr = parse_regs(ops[0]); rd = set()
    for o in ops[1:]: rd |= parse_regs(o.split()[0])
    if op.startswith('v_fmac') : rd |= wr
    if op.startswith('v_cndmask') and len(ops) == 3: rd |= {('s', 'vcc')}
    return I(text, kind, wr=wr, rd=rd)

def S(text):
    op = text.split()[0]
    rest = text.split(None, 1)[1] if ' ' in text else ''
    ops = [x.strip() for x in rest.split(',')] if rest else []
    if op.startswith('s_cmp'):
        wr = set(); rd = set().union(*[parse_regs(o) for o in ops]) if ops else set()
    else:
        wr = parse_regs(ops[0]) if ops else set()
        rd = set().union(*[parse_regs(o) for o in ops[1:]]) if len(ops) > 1 else set()
    return I(text, 'salu', wr=wr, rd=rd)

def ds_read(n, dst, addr, off, tr=False):
    op = {(2, True): 'ds_read_b64_tr_b16', (2, False): 'ds_read_b64', (4, False): 'ds_read_b128', (1, False): 'ds_read_b32'}[(n, tr)]
    assert 0 <= off < 65536
    o = f" offset:{off}" if off else ""
    return I(f"{op} {R(dst,n)}, v{addr}{o}", 'dsr', wr=regs(dst, n), rd=regs(addr))
def ds_write(n, addr, src, off, f='v'):
    op = {1: 'ds_write_b32', 2: 'ds_write_b64', 4: 'ds_write_b128'}[n]
    assert 0 <= off < 65536
    o = f" offset:{off}" if off else ""
    return I(f"{op} v{addr}, {R(src,n,f)}{o}", 'dsw', rd=regs(addr) | regs(src, n, f))
def dma(voff, srd, soff, imm=0, pol='', tag=None):
    assert 0 <= imm < 4096
    o = f" offset:{imm}" if imm else ""
    p = f" {pol}" if pol else ""
    so = soff if isinstance(soff, str) else str(soff)
    return I(f"buffer_load_dwordx4 v{voff}, {R(srd,4,'s')}, {so} offen{o}{p} lds", 'dma',
             rd=regs(voff) | regs(srd, 4, 's') | parse_regs(so) | {('s', 'm0')}, tag=tag)
def bload(n, dst, voff, srd, soff, imm=0, pol='', tag=None, f='v'):
    op = {1: 'buffer_load_dword', 2: 'buffer_load_dwordx2', 4: 'buffer_load_dwordx4'}[n]
    assert 0 <= imm < 4096
    o = f" offset:{imm}" if imm else ""
    p = f" {pol}" if pol else ""
    so = soff if isinstance(soff, str) else str(soff)
    return I(f"{op} {R(dst,n,f)}, v{voff}, {R(srd,4,'s')}, {so} offen{o}{p}", 'vload', wr=regs(dst, n, f),
             rd=regs(voff) | regs(srd, 4, 's') | parse_regs(so), tag=tag)
def bstore(n, src, voff, srd, soff, imm=0, pol='', tag=None):
    op = {1: 'buffer_store_dword', 2: 'buffer_store_dwordx2', 4: 'buffer_store_dwordx4'}[n]
    assert 0 <= imm < 4096
    o = f" offset:{imm}" if imm else ""
    p = f" {pol}" if pol else ""
    so = soff if isinstance(soff, str) else str(soff)
    i = I(f"{op} {R(src,n)}, v{voff}, {R(srd,4,'s')}, {so} offen{o}{p}", 'vstore',
          rd=regs(src, n) | regs(voff) | regs(srd, 4, 's') | parse_regs(so), tag=tag)
    i.srcc = regs(src, n) if n >= 3 else set()
    return i
def label(n): return I(f"{n}:", 'label')
def comment(t): return I(f"; {t}", 'comment')
def nop(n): return I(f"s_nop {n}", 'nop')
def barrier(): return I("s_barrier", 'barrier')
def wait(vm=None, lgkm=None):
    t = "s_waitcnt"
    if vm is not None: t += f" vmcnt({vm})"
    if lgkm is not None: t += f" lgkmcnt({lgkm})"
    i = I(t, 'wait'); i.tag = (vm, lgkm); return i
def branch(op, target): return I(f"{op} {target}", 'branch')
def raw(t, kind='other'): return I(t, kind)

VALUISH = ('valu', 'trans', 'permlane', 'readlane')
MEMRD = ('dsr', 'dsw', 'dma', 'vload', 'vstore')

def need_states(p, c):
    n = 0
    pv = {r for r in p.wr if r[0] in 'va'}
    ps = {r for r in p.wr if r[0] == 's'}
    if p.kind in VALUISH:
        if c.kind == 'mfma' and pv & c.rd: n = max(n, 2)
        if c.kind == 'permlane' and pv & c.rd: n = max(n, 2)
        if c.kind == 'readlane' and pv & c.rd: n = max(n, 1)
        if p.kind == 'trans' and c.kind in VALUISH + MEMRD and c.kind != 'trans' and pv & c.rd: n = max(n, 1)
        if ps:
            if c.kind in VALUISH + ('mfma',) and ps & c.rd: n = max(n, 2)
            if c.kind in ('dma', 'vload', 'vstore') and ps & c.rd: n = max(n, 5)
            if c.kind == 'salu' and ps & c.rd: n = max(n, 1)
    if p.kind == 'mfma':
        if c.kind in VALUISH and pv & (c.rd | c.wr): n = max(n, 8)
        if c.kind in MEMRD and pv & (c.rd | c.wr): n = max(n, 8)
        if c.kind == 'mfma':
            if pv & (c.rd - c.srcc): n = max(n, 8)
            if pv & c.srcc and pv != c.srcc: n = max(n, 6)
        if c.kind in VALUISH and p.srcc & c.wr: n = max(n, 3)
    if p.kind == 'salu' and ('s', 'm0') in p.wr and c.kind == 'dma': n = max(n, 1)
    if p.kind == 'vstore' and p.srcc and (p.srcc & c.wr):
        n = max(n, 2 if c.kind in VALUISH + ('mfma',) else 1)
    return n

def fix_hazards(code, pre=()):
    out = list(pre); npre = len(out)
    for c in code:
        if c.kind not in ('label', 'comment'):
            dist = 0; need = 0
            for p in reversed(out):
                if dist >= 9: break
                need = max(need, need_states(p, c) - dist)
                dist += p.states()
            if need > 0: out.append(nop(need - 1))
        out.append(c)
    return out[npre:]

def add_lgkm_waits(code, pending=None):
    q = list(pending or [])
    out = []
    for c in code:
        if c.kind == 'wait' and c.tag[1] is not None:
            n = c.tag[1]
            if len(q) > n: q = q[len(q) - n:] if n else []
        touched = c.rd | c.wr
        idx = -1
        for i, w in enumerate(q):
            if w & touched: idx = i
        if idx >= 0:
            n = min(len(q) - 1 - idx, 15)
            out.append(wait(lgkm=n))
            q = q[len(q) - n:] if n else []
        out.append(c)
        if c.kind == 'dsr': q.append(set(c.wr))
        elif c.kind == 'dsw': q.append(set())
    return out, q

def emit(code):
    return "\n".join(("" if c.kind in ('label',) else "    ") + c.text for c in code) + "\n"
```

```python
import sys, math
from ir import *

SLOT = 16384
NSLOT = 10
W_SLOT0 = 4
XBUF = [114688, 135168]
LDS_BYTES = 163840
O_BYTES = 32 * 128 * 10 * 1024
WOT_OFF = O_BYTES
WOT_BYTES = 128 * 40 * 1024
WS_BYTES = O_BYTES + WOT_BYTES
QSCALE = math.log2(math.e) / math.sqrt(128.0)
THR = 16384.0
import struct
def f2u(x): return "0x%08x" % struct.unpack('<I', struct.pack('<f', x))[0]

sK, sV, sW, sX, sWS, sWO = 8, 12, 16, 20, 24, 28
sWave, sRound, sB, sG = 32, 33, 34, 35
sKVbase, sWbase, sXbase, sLdsKV, sLdsX = 36, 37, 38, 39, 40
sT0, sT1 = 41, 42
sKpos, sVpos, sD, sCnt, sXd, sLoop = 43, 44, 45, 49, 50, 51
sRet = 46
sOst = 48
sWObase, sLdsWO = 52, 53
sT2, sT3 = 54, 55

class Cfg:
    LA = 4
    kv_pol = 'nt'
    touch = True

def item_slot(n): return (n % NSLOT) * SLOT
def kidx(t): return 0 if t == 0 else 2 * t - 1
def vidx(t): return 2 * t + 2

class Wave:
    def __init__(self, nq):
        self.nq = nq
        n = nq
        p = 0
        self.O = p; p += 32 * n
        self.Q = p; p += 16 * n
        self.NM = p; p += 4 * n
        self.S = p; p += 8 * n
        self.P = p; p += 8 * n
        self.L = p; p += n
        self.LT = p; p += n
        self.T = p; p += 4
        self.aN = p; p += 2
        self.aT = p; p += 4
        p = (p + 3) & ~3
        self.F = p; self.NF = 8; p += 32
        self.dummy = p; p += 1
        self.tmp = p; p += 3
        if nq == 2:
            self.vK = p; self.vV = p + 1; self.vW = p + 2; self.vX = p + 3; self.vWO = p + 4; p += 5
        else:
            self.vK = self.F; self.vV = self.F + 1
        assert p <= 256, p
        self.end = p
        setsz = 32 + 4 * n
        if nq == 3:
            self.set = [self.Q, self.S]
        else:
            q = (p + 3) & ~3
            self.set = [self.Q, q]
            assert q + setsz <= 256
        self.tag = f"w{nq}"
        self.fpos = 0
    def o(self, T, j): return self.O + (T * self.nq + j) * 4
    def q(self, s, j): return self.Q + (s * self.nq + j) * 4
    def nm(self, j): return self.NM + 4 * j
    def s(self, kb, j): return self.S + (kb * self.nq + j) * 4
    def p(self, par, j): return self.P + (par * self.nq + j) * 4
    def fa(self, st, T): return self.set[st] + 4 * T
    def fb(self, st, j): return self.set[st] + 32 + 4 * j

def spread(base, fillers):
    ins = [[] for _ in range(len(base) + 1)]
    for groups, lo, hi in fillers:
        n = len(groups)
        if n == 0: continue
        hi = min(hi, len(base)); lo = min(lo, hi)
        span = hi - lo
        for k, gI in enumerate(groups):
            pos = lo + (k * span) // n + 1 if span > 0 else lo
            ins[min(pos, len(base))].extend(gI)
    out = list(ins[0])
    for i, b in enumerate(base):
        out.append(b); out.extend(ins[i + 1])
    return out

def frag_K(w, s, kb, first_c):
    def reads(f): return [ds_read(4, f, w.aN + (s & 1), kb * 4096 + (s >> 1) * 2048)]
    def mf(f):
        out = []
        for j in range(w.nq):
            c = w.s(kb, j) if s > 0 else (None if first_c == 'zero' else w.nm(j))
            out.append(mfma(w.s(kb, j), f, w.q(s, j), c))
        return out
    return dict(reads=reads, mf=mf, pre=[])
def frags_QK(w, first_c='negm', pre=()):
    fr = [frag_K(w, s, kb, first_c) for s in range(4) for kb in range(2)]
    fr[0]['pre'] = list(pre)
    return fr
def frag_V(w, db, par, zero):
    def reads(f): return [ds_read(2, f + 2 * hh, w.aT + (db & 3), hh * 4096 + (db >> 2) * 2048, tr=True) for hh in range(2)]
    def mf(f): return [mfma(w.o(db, j), f, w.p(par, j), None if zero else w.o(db, j)) for j in range(w.nq)]
    return dict(reads=reads, mf=mf, pre=[])
def frags_PV(w, par, zero=False, pre=()):
    fr = [frag_V(w, db, par, zero) for db in range(8)]
    fr[0]['pre'] = list(pre)
    return fr

def stream(w, frags, preloaded, nxt, fillers=(), marks=None):
    LA = Cfg.LA
    allf = list(frags) + list(nxt[:LA])
    head = []
    def issue(i):
        f = allf[i]
        return list(f['pre']) + f['reads'](w.F + 4 * ((w.fpos + i) % w.NF))
    for i in range(preloaded, min(LA, len(allf))): head += issue(i)
    base = []; extra = []
    for i, f in enumerate(frags):
        m = f['mf'](w.F + 4 * ((w.fpos + i) % w.NF))
        base += m
        post = []
        if i + LA < len(allf) and i + LA >= preloaded: post += issue(i + LA)
        if post: extra.append(([post], len(base) - 1, len(base)))
    body = spread(base, list(extra) + list(fillers))
    w.fpos = (w.fpos + len(frags)) % w.NF
    return head + body

def softmax_groups(w, par):
    G = []
    k = 0
    for kb in range(2):
        for j in range(w.nq):
            for h in range(2):
                t0 = w.T + 2 * (k & 1); t1 = t0 + 1; k += 1
                sr = w.s(kb, j) + 2 * h
                G.append([V(f"v_exp_f32 v{t0}, v{sr}")])
                G.append([V(f"v_exp_f32 v{t1}, v{sr+1}")])
                lt = w.LT + j
                if kb == 0 and h == 0:
                    G.append(('late', [V(f"v_add_f32 v{lt}, v{t0}, v{t1}"), V(f"v_cvt_pk_bf16_f32 v{w.p(par,j)+2*kb+h}, v{t0}, v{t1}")]))
                else:
                    G.append(('late', [V(f"v_add_f32 v{lt}, v{lt}, v{t0}"), V(f"v_cvt_pk_bf16_f32 v{w.p(par,j)+2*kb+h}, v{t0}, v{t1}"),
                                       V(f"v_add_f32 v{lt}, v{lt}, v{t1}")]))
    out = []; pend = None
    for gI in G:
        if isinstance(gI, tuple):
            pend = gI[1]
        else:
            out.append(gI)
            if pend is not None:
                out.append(pend); pend = None
    if pend is not None: out.append(pend)
    return out

class Ctx:
    def __init__(self): self.stubs = []; self.n = 0
CTX = Ctx()

def check_and_accum(w, par, first=False, check=True):
    out = []
    if check:
        if w.nq == 3:
            out.append(V(f"v_max3_f32 v{w.tmp}, v{w.LT}, v{w.LT+1}, v{w.LT+2}"))
        else:
            out.append(V(f"v_max_f32 v{w.tmp}, v{w.LT}, v{w.LT+1}"))
        out.append(I(f"v_cmp_nge_f32 vcc, {f2u(THR)}, v{w.tmp}", 'valu', wr={('s', 'vcc')}, rd=regs(w.tmp)))
        k = CTX.n; CTX.n += 1
        out.append(branch("s_cbranch_vccnz", f"L_stub{k}"))
        out.append(label(f"L_back{k}"))
        CTX.stubs.append((k, w.tag, par))
    for j in range(w.nq):
        if first: out.append(V(f"v_mov_b32 v{w.L+j}, v{w.LT+j}"))
        else: out.append(V(f"v_add_f32 v{w.L+j}, v{w.L+j}, v{w.LT+j}"))
    return out

def xlane(op, r, t):
    return [V(f"v_mov_b32 v{t}, v{r}"), V(f"v_permlane32_swap_b32 v{r}, v{t}"), V(f"{op} v{r}, v{r}, v{t}"),
            V(f"v_mov_b32 v{t}, v{r}"), V(f"v_permlane16_swap_b32 v{r}, v{t}"), V(f"{op} v{r}, v{r}, v{t}")]

def tile_max(w, j, dst):
    a, b = w.s(0, j), w.s(1, j)
    return [V(f"v_max3_f32 v{dst}, v{a}, v{a+1}, v{a+2}"), V(f"v_max3_f32 v{dst}, v{dst}, v{a+3}, v{b}"),
            V(f"v_max3_f32 v{dst}, v{dst}, v{b+1}, v{b+2}"), V(f"v_max_f32 v{dst}, v{dst}, v{b+3}")]

def first_max(w):
    out = []
    for j in range(w.nq): out += tile_max(w, j, w.LT + j)
    seqs = [xlane("v_max_f32", w.LT + j, w.T + j) for j in range(w.nq)]
    for k in range(6):
        for sq in seqs: out.append(sq[k])
    for j in range(w.nq):
        for r in range(4): out.append(V(f"v_sub_f32 v{w.nm(j)+r}, 0, v{w.LT+j}"))
        for kb in range(2):
            for r in range(4): out.append(V(f"v_sub_f32 v{w.s(kb,j)+r}, v{w.s(kb,j)+r}, v{w.LT+j}"))
    return out

def rare_routine(w, par):
    out = [label(f"L_rare_{w.tag}_{par}"), nop(15)]
    for j in range(w.nq):
        d = w.LT + j; f = w.T + 1
        out += tile_max(w, j, d)
        out += xlane("v_max_f32", d, w.T)
        out.append(V(f"v_max_f32 v{d}, 0, v{d}"))
        out.append(V(f"v_sub_f32 v{f}, 0, v{d}"))
        out.append(V(f"v_exp_f32 v{f}, v{f}"))
        for r in range(4): out.append(V(f"v_sub_f32 v{w.nm(j)+r}, v{w.nm(j)+r}, v{d}"))
        for kb in range(2):
            for r in range(4): out.append(V(f"v_sub_f32 v{w.s(kb,j)+r}, v{w.s(kb,j)+r}, v{d}"))
        out.append(V(f"v_mul_f32 v{w.L+j}, v{w.L+j}, v{f}"))
        for T in range(8):
            for r in range(4): out.append(V(f"v_mul_f32 v{w.o(T,j)+r}, v{w.o(T,j)+r}, v{f}"))
    for gI in softmax_groups(w, par): out += gI
    out.append(nop(3))
    out.append(raw(f"s_setpc_b64 s[{sRet}:{sRet+1}]", 'branch'))
    return fix_hazards(out)

def q_reads(w, st, sl):
    G = []
    for j in range(w.nq): G.append([ds_read(4, w.fb(st, j), w.aN + sl, j * 2048)])
    for T in range(8):
        for hh in range(2):
            G.append([ds_read(2, w.fa(st, T) + 2 * hh, w.aT + (T & 3), hh * 4096 + (T >> 2) * 2048, tr=True)])
    return G
def q_mfmas(w, st, zero):
    return [mfma(w.o(T, j), w.fa(st, T), w.fb(st, j), None if zero else w.o(T, j)) for T in range(8) for j in range(w.nq)]

def q_pack(w):
    out = [S(f"s_mov_b32 s{sT0}, {f2u(QSCALE)}")]
    for s in range(4):
        for j in range(w.nq):
            for half in range(2):
                a = w.o(2 * s + half, j)
                for r in range(4): out.append(V(f"v_mul_f32 v{a+r}, s{sT0}, v{a+r}"))
                out.append(V(f"v_cvt_pk_bf16_f32 v{w.q(s,j)+2*half}, v{a}, v{a+1}"))
                out.append(V(f"v_cvt_pk_bf16_f32 v{w.q(s,j)+2*half+1}, v{a+2}, v{a+3}"))
    for op in ("v_permlane32_swap_b32", "v_permlane16_swap_b32"):
        for s in range(4):
            for j in range(w.nq):
                q = w.q(s, j)
                out.append(V(f"{op} v{q}, v{q+2}")); out.append(V(f"{op} v{q+1}, v{q+3}"))
    return out

def epilogue(w):
    out = []
    seqs = [xlane("v_add_f32", w.L + j, w.T + j) for j in range(w.nq)]
    for k in range(6):
        for sq in seqs: out.append(sq[k])
    for j in range(w.nq): out.append(V(f"v_rcp_f32 v{w.L+j}, v{w.L+j}"))
    out += [V(f"v_mbcnt_lo_u32_b32 v{w.tmp}, -1, 0"), V(f"v_mbcnt_hi_u32_b32 v{w.tmp}, -1, v{w.tmp}"), V(f"v_lshlrev_b32 v{w.tmp}, 4, v{w.tmp}")]
    for s in range(4):
        out.append(S(f"s_add_u32 s{sT0}, s{sOst}, {s*10240}"))
        for j in range(w.nq):
            d = w.q(s, j)
            for half in range(2):
                a = w.o(2 * s + half, j)
                for r in range(4): out.append(V(f"v_mul_f32 v{a+r}, v{a+r}, v{w.L+j}"))
                out.append(V(f"v_cvt_pk_bf16_f32 v{d+2*half}, v{a}, v{a+1}"))
                out.append(V(f"v_cvt_pk_bf16_f32 v{d+2*half+1}, v{a+2}, v{a+3}"))
            out.append(bstore(4, d, w.tmp, sWS, f"s{sT0}", j * 1024, tag=('ost',)))
    return out

def dma_kv(w, kind, t, nxt_round, tag):
    srd = sK if kind == 'K' else sV
    voff = w.vK if kind == 'K' else w.vV
    n = kidx(t) if kind == 'K' else vidx(t)
    lds = item_slot(n)
    goff = t * 8192 + (262144 if nxt_round else 0)
    G = []
    for a in range(2):
        g = [S(f"s_add_u32 s{sT0}, s{sKVbase}, {goff + a*4096}")]
        for seg in range(2):
            g2 = [S(f"s_add_u32 m0, s{sLdsKV}, {lds + a*4096 + seg*2048 - seg*128}"),
                  dma(voff, srd, f"s{sT0}", seg * 128, Cfg.kv_pol, tag=tag)]
            G.append(g + g2); g = []
    return G
def dma_w(w, s, nxt_round, tag):
    lds = (W_SLOT0 + s % 3) * SLOT
    goff = s * 32 * 8192 + (512 if nxt_round else 0)
    G = []
    for hh in range(2):
        g = [S(f"s_add_u32 s{sT0}, s{sWbase}, {goff + hh*32768}")]
        for seg in range(2):
            g2 = [S(f"s_add_u32 m0, s{sLdsKV}, {lds + hh*4096 + seg*2048 - seg*128}"),
                  dma(w.vW, sW, f"s{sT0}", seg * 128, tag=tag)]
            G.append(g + g2); g = []
    return G
def dma_x(w, u, tag):
    G = []
    for i in range(5):
        G.append([S(f"s_add_u32 s{sT0}, s{sXbase}, {i*20480 + u*128}"),
                  S(f"s_add_u32 m0, s{sLdsX}, {XBUF[u&1] + i*2048}"),
                  dma(w.vX, sX, f"s{sT0}", 0, tag=tag)])
    return G
def dma_wo(w, tag):
    G = []
    for seg in range(5):
        G.append([S(f"s_add_u32 m0, s{sLdsWO}, {XBUF[0] + seg*2048 - seg*128}"),
                  dma(w.vWO, sWO, f"s{sWObase}", seg * 128, tag=tag)])
    return G

def loader_schedule():
    sch = {i: [] for i in range(37)}
    for s in range(3, 20): sch[s - 2].append(('W', s, False))
    for u in range(2, 10): sch[2 * u - 2].append(('X', u, False))
    names = {}
    for t in range(16):
        names[kidx(t)] = ('K', t); names[vidx(t)] = ('V', t)
    first = {6: 18, 7: 18, 4: 19, 5: 20, 8: 20, 9: 20}
    for n in (6, 7, 4, 5, 8, 9): sch[first[n]].append(names[n] + (False,))
    for n in range(10, 33):
        if n not in names: continue
        k, t = names[n - 10]
        last = (20 + t) if k == 'K' else min(22 + t, 36)
        sch[last + 1].append(names[n] + (False,))
    sch[33] += [('K', 1, True), ('K', 2, True)]
    sch[34] += [('W', 0, True), ('W', 1, True)]
    sch[35] += [('W', 2, True)]
    sch[36] += [('X', 0, True), ('X', 1, True)]
    return sch
def first_use(kind, i):
    if kind == 'W': return i
    if kind == 'X': return 2 * i
    if kind == 'K': return 20 if i == 0 else 19 + i
    if kind == 'V': return 21 + i

def lane_setup(w):
    t = w.F + 8
    lane, i16, g, a, b, c = t, t + 1, t + 2, t + 3, t + 4, t + 5
    o = [V(f"v_mbcnt_lo_u32_b32 v{lane}, -1, 0"), V(f"v_mbcnt_hi_u32_b32 v{lane}, -1, v{lane}"),
         V(f"v_and_b32 v{i16}, 15, v{lane}"), V(f"v_lshrrev_b32 v{g}, 4, v{lane}")]
    o += [V(f"v_lshrrev_b32 v{a}, 1, v{i16}"), V(f"v_xor_b32 v{a}, v{a}, v{g}"), V(f"v_lshlrev_b32 v{a}, 4, v{a}"),
          V(f"v_lshl_add_u32 v{w.aN}, v{i16}, 7, v{a}"), V(f"v_xor_b32 v{w.aN+1}, 64, v{w.aN}")]
    o += [V(f"v_lshrrev_b32 v{a}, 2, v{lane}"),
          V(f"v_and_b32 v{b}, 6, v{a}"),
          V(f"v_bfe_u32 v{c}, v{lane}, 1, 1"), V(f"v_xor_b32 v{b}, v{b}, v{c}"), V(f"v_lshlrev_b32 v{b}, 4, v{b}"),
          V(f"v_lshl_add_u32 v{b}, v{a}, 7, v{b}"),
          V(f"v_and_b32 v{c}, 1, v{lane}"), V(f"v_lshl_add_u32 v{w.aT}, v{c}, 3, v{b}")]
    for dq in range(1, 4): o.append(V(f"v_xor_b32 v{w.aT+dq}, {dq<<5}, v{w.aT}"))
    return o
def voff_setup(w, which):
    t = w.F + 8
    lane, r8, p, a, b, row = t, t + 1, t + 2, t + 3, t + 4, t + 5
    o = [S(f"s_and_b32 s{sT1}, s{sWave}, 1"), S(f"s_lshl_b32 s{sT2}, s{sT1}, 3"), S(f"s_lshl_b32 s{sT3}, s{sT1}, 2"),
         V(f"v_mbcnt_lo_u32_b32 v{lane}, -1, 0"), V(f"v_mbcnt_hi_u32_b32 v{lane}, -1, v{lane}"),
         V(f"v_lshrrev_b32 v{r8}, 3, v{lane}"), V(f"v_and_b32 v{p}, 7, v{lane}"),
         V(f"v_add_u32 v{row}, s{sT2}, v{r8}"),
         V(f"v_lshrrev_b32 v{a}, 1, v{r8}"), V(f"v_or_b32 v{a}, s{sT3}, v{a}"), V(f"v_xor_b32 v{a}, v{a}, v{p}"), V(f"v_lshlrev_b32 v{a}, 4, v{a}"),
         V(f"v_and_b32 v{b}, 6, v{r8}"), V(f"v_xor_b32 v{b}, v{b}, v{p}"), V(f"v_lshlrev_b32 v{b}, 4, v{b}")]
    o += [V(f"v_lshl_add_u32 v{w.vK}, v{row}, 8, v{a}"), V(f"v_lshl_add_u32 v{w.vV}, v{row}, 8, v{b}")]
    if which == 'all':
        o += [V(f"v_mul_u32_u24 v{p}, 1280, v{row}"), V(f"v_add_u32 v{w.vX}, v{p}, v{a}"), V(f"v_add_u32 v{w.vWO}, v{p}, v{b}")]
        o += [V(f"v_and_b32 v{p}, 4, v{r8}"), V(f"v_add_u32 v{p}, v{p}, v{r8}"), S(f"s_lshl_b32 s{sT2}, s{sT1}, 4"), V(f"v_add_u32 v{p}, s{sT2}, v{p}"),
              V(f"v_lshl_add_u32 v{w.vW}, v{p}, 13, v{b}")]
    return o

def add_addr(regs_, delta):
    if delta == 0: return []
    if isinstance(delta, str): return [V(f"v_add_u32 v{r}, {delta}, v{r}") for r in regs_]
    return [V(f"v_add_u32 v{r}, {delta & 0xffffffff:#x}, v{r}") for r in regs_]

def finish(code, pending=None, pre=()):
    c, q = add_lgkm_waits(code, pending)
    return fix_hazards(c, pre), q

def wo_tail(w):
    out = []
    if w.nq == 3: out.append(S(f"s_mul_i32 s{sT1}, s{sWave}, 3"))
    else: out += [S(f"s_lshl_b32 s{sT1}, s{sWave}, 1"), S(f"s_add_u32 s{sT1}, s{sT1}, 4")]
    out += lane_setup(w)
    out += [V(f"v_mbcnt_lo_u32_b32 v{w.tmp}, -1, 0"), V(f"v_mbcnt_hi_u32_b32 v{w.tmp}, -1, v{w.tmp}"), V(f"v_lshlrev_b32 v{w.tmp}, 4, v{w.tmp}")]
    for j in range(w.nq):
        out += [S(f"s_add_u32 s{sT2}, s{sT1}, {j}"), S(f"s_and_b32 s{sT3}, s{sT2}, 3"), S(f"s_lshl_b32 s{sT3}, s{sT3}, 5"),
                V(f"v_xor_b32 v{w.T+j}, s{sT3}, v{w.aT}"),
                S(f"s_lshr_b32 s{sT2}, s{sT2}, 2"), S(f"s_lshl_b32 s{sT2}, s{sT2}, 11"), S(f"s_add_u32 s{sT2}, s{sT2}, {XBUF[0]}"),
                V(f"v_add_u32 v{w.T+j}, s{sT2}, v{w.T+j}"),
                ds_read(2, w.q(0, j), w.T + j, 0, tr=True), ds_read(2, w.q(0, j) + 2, w.T + j, 10240, tr=True)]
    out += [S(f"s_mul_i32 s{sT2}, s2, 20"), S(f"s_add_u32 s{sT2}, s{sT2}, s{sT1}"), S(f"s_lshl_b32 s{sT2}, s{sT2}, 10"),
            S(f"s_add_u32 s{sT2}, s{sT2}, {WOT_OFF}")]
    for j in range(w.nq):
        out.append(bstore(4, w.q(0, j), w.tmp, sWS, f"s{sT2}", j * 1024))
    return out

def touches(w, first):
    out = []
    t = w.tmp + 1
    out += [V(f"v_mbcnt_lo_u32_b32 v{t}, -1, 0"), V(f"v_mbcnt_hi_u32_b32 v{t}, -1, v{t}"),
            V(f"v_lshrrev_b32 v{t+1}, 2, v{t}"), V(f"v_and_b32 v{t}, 3, v{t}"), V(f"v_lshlrev_b32 v{t}, 7, v{t}"),
            V(f"v_lshl_add_u32 v{t}, v{t+1}, 13, v{t}")]
    out += [S(f"s_and_b32 s{sT0}, s{sB}, 3"), S(f"s_lshl_b32 s{sT0}, s{sT0}, 2"), S(f"s_add_u32 s{sT0}, s{sT0}, s{sWave}"),
            S(f"s_mul_i32 s{sT0}, s{sT0}, {40*8192}"), S(f"s_lshl_b32 s{sT1}, s{sG}, 10"), S(f"s_add_u32 s{sT0}, s{sT0}, s{sT1}")]
    if not first: out.append(S(f"s_add_u32 s{sT0}, s{sT0}, 512"))
    for i in range(3):
        out.append(bload(1, w.dummy, t, sW, f"s{sT0}"))
        if i < 2: out.append(S(f"s_add_u32 s{sT0}, s{sT0}, {(16 if i == 0 else 8)*8192}"))
    out += [V(f"v_mbcnt_lo_u32_b32 v{t}, -1, 0"), V(f"v_mbcnt_hi_u32_b32 v{t}, -1, v{t}"), V(f"v_lshlrev_b32 v{t}, 7, v{t}"),
            S(f"s_mul_i32 s{sT0}, s{sB}, 204800"), S(f"s_mul_i32 s{sT1}, s{sG}, 25600"), S(f"s_add_u32 s{sT0}, s{sT0}, s{sT1}"),
            S(f"s_mul_i32 s{sT1}, s{sWave}, 5760"), S(f"s_add_u32 s{sT0}, s{sT0}, s{sT1}"),
            bload(1, w.dummy, t, sX, f"s{sT0}")]
    return out

def flat(G): return [i for g in G for i in g]

def gen_w3():
    w = Wave(3); nm = 24
    aN = [w.aN, w.aN + 1]; aT = [w.aT + i for i in range(4)]
    C = [label("L_w3")]
    C += lane_setup(w)
    C += [S(f"s_lshr_b32 s{sT0}, s{sWave}, 1"), S(f"s_and_b32 s{sT0}, s{sT0}, 1"), S(f"s_lshl_b32 s{sT0}, s{sT0}, 13"),
          S(f"s_and_b32 s{sT1}, s{sWave}, 1"), S(f"s_mul_i32 s{sT1}, s{sT1}, 6144"),
          S(f"s_sub_u32 s{sXd}, s{sT0}, s{sT1}"),
          S(f"s_mov_b32 s{sLdsWO}, s{sXd}"),
          S(f"s_add_u32 s{sT0}, s{sT0}, {W_SLOT0*SLOT}"), S(f"s_add_u32 s{sT1}, s{sT1}, {XBUF[0]}")]
    C += add_addr(aT, f"s{sT0}") + add_addr(aN, f"s{sT1}")
    if Cfg.touch: C += touches(w, True)
    C += voff_setup(w, 'kv')
    C += flat(dma_kv(w, 'K', 1, False, None)) + flat(dma_kv(w, 'K', 2, False, None))
    C, _ = finish(C)
    out = C
    C = [label("L_w3_round"), barrier()]
    C += voff_setup(w, 'kv')
    C += flat(q_reads(w, 0, 0))
    C += flat(dma_kv(w, 'K', 0, False, None)) + flat(dma_kv(w, 'V', 0, False, None))
    C += add_addr(aT, SLOT)
    C += [wait(lgkm=0), barrier()]
    C += spread(q_mfmas(w, 0, True), [(q_reads(w, 1, 1), 0, 17)])
    C += [S(f"s_mov_b32 s{sCnt}, 1"), S(f"s_mov_b32 s{sXd}, 20480"), S(f"s_mov_b32 s{sLoop}, 9")]
    C, q = finish(C); out += C
    def wadv():
        return [S(f"s_add_u32 s{sCnt}, s{sCnt}, 1"), S(f"s_cmp_eq_u32 s{sCnt}, 3"), S(f"s_cselect_b32 s{sD}, {(-2*SLOT) & 0xffffffff:#x}, s68"),
                S(f"s_cselect_b32 s{sCnt}, 0, s{sCnt}")] + add_addr(aT, f"s{sD}")
    B = [label("L_w3_q")]
    B += wadv() + add_addr(aN, f"s{sXd}") + [S(f"s_sub_u32 s{sXd}, 0, s{sXd}")]
    B += [wait(lgkm=0), barrier()]
    B += spread(q_mfmas(w, 1, False), [(q_reads(w, 0, 0), 0, 17)])
    B += wadv()
    B += [wait(lgkm=0), barrier()]
    B += spread(q_mfmas(w, 0, False), [(q_reads(w, 1, 1), 0, 17)])
    B += [S(f"s_sub_u32 s{sLoop}, s{sLoop}, 1"), S(f"s_cmp_lg_u32 s{sLoop}, 0"), branch("s_cbranch_scc1", "L_w3_q")]
    Bc, q2 = finish(B, q, pre=out[-12:]); Bc2, _ = finish(B, q2, pre=Bc[-12:])
    assert emit(Bc) == emit(Bc2)
    out += Bc
    curT = (W_SLOT0 + 1) * SLOT; curN = XBUF[1]
    C = [wait(vm=0, lgkm=0), barrier()]
    C += add_addr(aN, f"s{sLdsWO}") + add_addr(aN, item_slot(kidx(0)) - curN) + add_addr(aT, item_slot(vidx(0)) - curT)
    C += q_mfmas(w, 1, False)
    k0 = frags_QK(w, 'zero')
    k1 = frags_QK(w, 'negm', pre=add_addr(aN, item_slot(kidx(1)) - item_slot(kidx(0))))
    w.fpos = 0
    C += stream(w, [], 0, k0)
    C += q_pack(w)
    C += stream(w, k0, Cfg.LA, k1)
    C += first_max(w)
    C += [barrier()]
    C += flat(softmax_groups(w, 0)) + check_and_accum(w, 0, first=True, check=False)
    v0 = frags_PV(w, 0, zero=True)
    C += stream(w, k1, Cfg.LA, v0)
    if Cfg.touch:
        C += [S(f"s_cmp_lg_u32 s{sRound}, 0"), branch("s_cbranch_scc1", "L_w3_notouch")] + touches(w, False) + [label("L_w3_notouch")]
    C += [barrier()]
    k2 = frags_QK(w, 'negm', pre=add_addr(aN, item_slot(kidx(2)) - item_slot(kidx(1))))
    C += stream(w, v0, Cfg.LA, k2, fillers=[(softmax_groups(w, 1), 0, nm)])
    C += check_and_accum(w, 1)
    C += [S(f"s_mov_b32 s{sKpos}, {item_slot(kidx(2))}"), S(f"s_mov_b32 s{sVpos}, {item_slot(vidx(0))}"), S(f"s_mov_b32 s{sLoop}, 7")]
    def adv(pos, rr):
        return [S(f"s_cmp_ge_u32 s{pos}, {LDS_BYTES - 2*SLOT}"), S(f"s_cselect_b32 s{sD}, {(2*SLOT - LDS_BYTES) & 0xffffffff:#x}, s69"),
                S(f"s_add_u32 s{pos}, s{pos}, s{sD}")] + add_addr(rr, f"s{sD}")
    def pv(par): return frags_PV(w, par, pre=adv(sVpos, aT))
    def qk(): return frags_QK(w, 'negm', pre=adv(sKpos, aN))
    C += stream(w, k2, Cfg.LA, pv(1))
    C, q = finish(C, q2, pre=out[-12:]); out += C
    B = [label("L_w3_a"), barrier()]
    B += stream(w, pv(1), Cfg.LA, qk(), fillers=[(softmax_groups(w, 0), 0, nm)])
    B += check_and_accum(w, 0)
    B += stream(w, qk(), Cfg.LA, pv(0))
    B += [S(f"s_sub_u32 s{sLoop}, s{sLoop}, 1"), S(f"s_cmp_eq_u32 s{sLoop}, 0"), branch("s_cbranch_scc1", "L_w3_a_exit")]
    nhalf = len(B)
    B += [barrier()]
    B += stream(w, pv(0), Cfg.LA, qk(), fillers=[(softmax_groups(w, 1), 0, nm)])
    B += check_and_accum(w, 1)
    B += stream(w, qk(), Cfg.LA, pv(1))
    B += [branch("s_branch", "L_w3_a")]
    Bc, q2 = finish(B, q, pre=out[-12:]); Bc2, _ = finish(B, q2, pre=Bc[-12:])
    assert emit(Bc) == emit(Bc2)
    Hc, qh = finish(B[:nhalf], q, pre=out[-12:])
    out += Bc
    C = [label("L_w3_a_exit"), barrier()]
    C += stream(w, pv(0), Cfg.LA, pv(1), fillers=[(softmax_groups(w, 1), 0, nm)])
    C += check_and_accum(w, 1)
    C += stream(w, pv(1), Cfg.LA, [])
    C += epilogue(w)
    curT = item_slot(vidx(15)); curN = item_slot(kidx(15))
    C += add_addr(aT, W_SLOT0 * SLOT - curT) + add_addr(aN, XBUF[0] - curN) + [V(f"v_subrev_u32 v{r}, s{sLdsWO}, v{r}") for r in aN]
    C += round_advance()
    C += [branch("s_cbranch_scc1", "L_w3_round")]
    C += [barrier()] + wo_tail(w) + [raw("s_endpgm")]
    C, q = finish(C, qh, pre=Hc[-12:]); out += C
    out += rare_routine(w, 0) + rare_routine(w, 1)
    return out

def round_advance():
    return [S(f"s_add_u32 s{sKVbase}, s{sKVbase}, 262144"), S(f"s_add_u32 s{sWbase}, s{sWbase}, 512"),
            S(f"s_add_u32 s{sOst}, s{sOst}, {8*10240}"), S(f"s_add_u32 s{sRound}, s{sRound}, 1"), S(f"s_cmp_lt_u32 s{sRound}, 2")]

def gen_w2():
    w = Wave(2); nm = 16
    aN = [w.aN, w.aN + 1]; aT = [w.aT + i for i in range(4)]
    sch = loader_schedule()
    def items(idx):
        G = []
        for kind, i, nx in sch[idx]:
            tag = (kind, i, nx)
            if kind in 'KV': G += dma_kv(w, kind, i, nx, tag)
            elif kind == 'W': G += dma_w(w, i, nx, tag)
            elif kind == 'X':
                if nx and i == 0:
                    g = [S(f"s_cmp_lg_u32 s{sRound}, 0"), branch("s_cbranch_scc1", "L_w2_wo")] + flat(dma_x(w, i, tag)) + [label("L_w2_wo_back")]
                    G.append(g)
                else: G += dma_x(w, i, tag)
        return G
    pro = [label("L_w2")]
    pro += lane_setup(w)
    pro += [S(f"s_lshr_b32 s{sT0}, s{sWave}, 1"), S(f"s_and_b32 s{sT0}, s{sT0}, 1"), S(f"s_lshl_b32 s{sT0}, s{sT0}, 13"),
            S(f"s_and_b32 s{sT1}, s{sWave}, 1"), S(f"s_lshl_b32 s{sT1}, s{sT1}, 12"), S(f"s_add_u32 s{sT1}, s{sT1}, {6*2048}"),
            S(f"s_sub_u32 s{sXd}, s{sT0}, s{sT1}"),
            S(f"s_add_u32 s{sT0}, s{sT0}, {W_SLOT0*SLOT}"), S(f"s_add_u32 s{sT1}, s{sT1}, {XBUF[0]}")]
    pro += add_addr(aT, f"s{sT0}") + add_addr(aN, f"s{sT1}")
    pro += voff_setup(w, 'all')
    pro += flat(dma_w(w, 0, False, ('W', 0, True))) + flat(dma_x(w, 0, ('X', 0, True))) + flat(dma_w(w, 1, False, ('W', 1, True))) \
        + flat(dma_w(w, 2, False, ('W', 2, True))) + flat(dma_x(w, 1, ('X', 1, True)))
    C = [label("L_w2_round")]
    def bar(idx, lgkm=None):
        b = wait(vm=63, lgkm=lgkm); b.tag = (('need', idx), lgkm)
        return [b, barrier()]
    curT = W_SLOT0 * SLOT; curN = XBUF[0]
    for s in range(20):
        newT = (W_SLOT0 + s % 3) * SLOT; newN = XBUF[(s >> 1) & 1]
        C += add_addr(aT, newT - curT) + add_addr(aN, newN - curN); curT, curN = newT, newN
        C += bar(s, lgkm=0)
        if s == 0: C += flat(q_reads(w, 0, 0)) + flat(items(0))
        else: C += spread(q_mfmas(w, (s - 1) & 1, s == 1), [(q_reads(w, s & 1, s & 1), 0, 11), (items(s), 0, nm)])
    C += bar(20, lgkm=0)
    C += add_addr(aN, f"s{sXd}") + add_addr(aN, item_slot(kidx(0)) - curN) + add_addr(aT, item_slot(vidx(0)) - curT)
    C += spread(q_mfmas(w, 1, False), [(items(20), 0, nm)])
    def qk(t, fc='negm'): return frags_QK(w, fc, pre=add_addr(aN, item_slot(kidx(t)) - item_slot(kidx(t - 1))) if t else [])
    def pv(t): return frags_PV(w, t & 1, zero=(t == 0), pre=add_addr(aT, item_slot(vidx(t)) - item_slot(vidx(t - 1))) if t else [])
    w.fpos = 0
    C += stream(w, [], 0, qk(0, 'zero'))
    C += q_pack(w)
    C += stream(w, qk(0, 'zero'), Cfg.LA, qk(1))
    C += first_max(w)
    C += flat(softmax_groups(w, 0)) + check_and_accum(w, 0, first=True, check=False)
    for t in range(15):
        C += bar(21 + t)
        if 21 + t == 33:
            C += [S(f"s_cmp_lg_u32 s{sRound}, 0"), S(f"s_cselect_b32 s{sK+2}, 0, s{sK+2}"), S(f"s_cselect_b32 s{sW+2}, 0, s{sW+2}"),
                  S(f"s_cselect_b32 s{sX+2}, 0, s{sX+2}")]
        C += stream(w, qk(t + 1), Cfg.LA, pv(t), fillers=[(items(21 + t), 0, nm)])
        C += stream(w, pv(t), Cfg.LA, qk(t + 2) if t < 14 else [], fillers=[(softmax_groups(w, (t + 1) & 1), 2, nm)])
        C += check_and_accum(w, (t + 1) & 1)
    C += bar(36)
    C += stream(w, pv(15), 0, [], fillers=[(items(36), 0, nm)])
    C += epilogue(w)
    curT = item_slot(vidx(15)); curN = item_slot(kidx(15))
    C += add_addr(aT, W_SLOT0 * SLOT - curT) + add_addr(aN, XBUF[0] - curN) + [V(f"v_subrev_u32 v{r}, s{sXd}, v{r}") for r in aN]
    C += round_advance()
    C += [branch("s_cbranch_scc1", "L_w2_round")]
    def vm_ops(code): return [c for c in code if c.kind in ('dma', 'vload', 'vstore')]
    def resolve(prefix):
        res = {}
        q = [(c.tag[0], c.tag[1], 0) if c.tag and c.tag[0] != 'ost' and c.tag[2] else None for c in vm_ops(prefix)]
        for c in C:
            if c.kind in ('dma', 'vload', 'vstore'):
                q.append((c.tag[0], c.tag[1], 1 if c.tag[2] else 0) if c.tag[0] != 'ost' else None)
            elif c.kind == 'wait' and isinstance(c.tag[0], tuple):
                idx = c.tag[0][1]
                last = -1
                for k, it in enumerate(q):
                    if it is not None and it[2] == 0 and first_use(it[0], it[1]) <= idx: last = k
                res[idx] = min(63, len(q) - 1 - last)
        return res
    r1 = resolve(pro); r2 = resolve(C)
    for c in C:
        if c.kind == 'wait' and isinstance(c.tag[0], tuple):
            idx = c.tag[0][1]; n = min(r1[idx], r2[idx]); lg = c.tag[1]
            c.text = f"s_waitcnt vmcnt({n})" + (f" lgkmcnt({lg})" if lg is not None else ""); c.tag = (n, lg)
    C += [wait(vm=0), barrier()] + wo_tail(w) + [raw("s_endpgm")]
    C += [label("L_w2_wo")] + flat(dma_wo(w, None)) + [branch("s_branch", "L_w2_wo_back")]
    pro, _ = finish(pro)
    C, q = finish(C, [], pre=pro[-12:])
    return pro + C + rare_routine(w, 0) + rare_routine(w, 1)

def srd(base, ptr, nbytes):
    return [S(f"s_mov_b32 s{base}, s{ptr}"), S(f"s_mov_b32 s{base+1}, s{ptr+1}"), S(f"s_mov_b32 s{base+2}, {nbytes}"), S(f"s_mov_b32 s{base+3}, 0x20000")]

def gen_k1(name):
    C = [raw(f".globl {name}\n.p2align 8\n.type {name},@function\n{name}:", 'label')]
    C += [S("s_cmp_lt_u32 s2, 256"), branch("s_cbranch_scc1", "L_k1_go"), raw("s_endpgm"), label("L_k1_go")]
    C += [raw("s_load_dwordx8 s[56:63], s[0:1], 0"), raw("s_load_dwordx2 s[64:65], s[0:1], 32"), raw("s_load_dwordx2 s[66:67], s[0:1], 56")]
    C += [V("v_lshrrev_b32 v1, 6, v0"), V(f"v_readfirstlane_b32 s{sWave}, v1")]
    C += [S(f"s_and_b32 s{sB}, s2, 7"), S(f"s_lshl_b32 s{sB}, s{sB}, 2"), S(f"s_lshr_b32 s{sT0}, s2, 3"), S(f"s_and_b32 s{sT1}, s{sT0}, 3"),
          S(f"s_add_u32 s{sB}, s{sB}, s{sT1}"), S(f"s_lshr_b32 s{sG}, s{sT0}, 2"), S(f"s_mov_b32 s{sRound}, 0")]
    C += [S(f"s_lshr_b32 s{sT0}, s{sWave}, 1"), S(f"s_and_b32 s{sT0}, s{sT0}, 1"), S(f"s_and_b32 s{sT1}, s{sWave}, 1"),
          S(f"s_lshl_b32 s{sT2}, s{sG}, 2"), S(f"s_add_u32 s{sT2}, s{sT2}, s{sT0}"),
          S(f"s_lshl_b32 s{sWbase}, s{sT2}, 8"),
          S(f"s_lshl_b32 s{sT3}, s{sB}, 5"), S(f"s_add_u32 s{sT3}, s{sT3}, s{sT2}"), S(f"s_lshl_b32 s{sKVbase}, s{sT3}, 17"),
          S(f"s_mul_i32 s{sOst}, s{sT3}, 40960"),
          S(f"s_lshl_b32 s{sLdsKV}, s{sT0}, 13"), S(f"s_lshl_b32 s{sT2}, s{sT1}, 10"), S(f"s_add_u32 s{sLdsKV}, s{sLdsKV}, s{sT2}"),
          S(f"s_mul_i32 s{sLdsX}, s{sT0}, 10240"), S(f"s_add_u32 s{sLdsX}, s{sLdsX}, s{sT2}"), S(f"s_mov_b32 s{sLdsWO}, s{sLdsX}"),
          S(f"s_mul_i32 s{sXbase}, s{sB}, 204800"), S(f"s_mul_i32 s{sT2}, s{sT0}, 102400"), S(f"s_add_u32 s{sXbase}, s{sXbase}, s{sT2}"),
          S(f"s_lshr_b32 s{sT2}, s2, 1"), S(f"s_mul_i32 s{sWObase}, s{sT2}, 40960"), S(f"s_mul_i32 s{sT2}, s{sT0}, 20480"), S(f"s_add_u32 s{sWObase}, s{sWObase}, s{sT2}"),
          S(f"s_and_b32 s{sT2}, s2, 1"), S(f"s_mul_i32 s{sT2}, s{sT2}, 640"), S(f"s_add_u32 s{sWObase}, s{sWObase}, s{sT2}")]
    C += [S(f"s_mov_b32 s68, {SLOT}"), S(f"s_mov_b32 s69, {2*SLOT}")]
    C += [raw("s_waitcnt lgkmcnt(0)")]
    C += srd(sX, 56, 6553600) + srd(sK, 58, 134217728) + srd(sV, 60, 134217728) + srd(sW, 62, 5242880) + srd(sWO, 64, 5242880) + srd(sWS, 66, WS_BYTES)
    C += [S(f"s_cmp_ge_u32 s{sWave}, 4"), branch("s_cbranch_scc1", "L_k1_w2"),
          S(f"s_mul_i32 s{sT2}, s{sT1}, 3072"), S(f"s_add_u32 s{sOst}, s{sOst}, s{sT2}"), branch("s_branch", "L_w3"),
          label("L_k1_w2"), S(f"s_lshl_b32 s{sT2}, s{sT1}, 11"), S(f"s_add_u32 s{sT2}, s{sT2}, 6144"), S(f"s_add_u32 s{sOst}, s{sOst}, s{sT2}"),
          branch("s_branch", "L_w2")]
    C = fix_hazards(C)
    C += gen_w3() + gen_w2()
    for k, tag, par in CTX.stubs:
        C += [label(f"L_stub{k}"), raw(f"s_call_b64 s[{sRet}:{sRet+1}], L_rare_{tag}_{par}", 'branch'), branch("s_branch", f"L_back{k}")]
    return C

def gen_k2(name):
    DEPTH = 4
    vB, vA = 0, 10
    FR = 16
    tmp = FR + 60 * DEPTH
    def fB(st, jj): return FR + 60 * st + 4 * jj
    def fA(st, nn): return FR + 60 * st + 40 + 4 * nn
    def acc(jj, nn): return (jj * 5 + nn) * 4
    sOUT, sWS2 = 8, 12
    sSB, sSA = 20, 21
    C = [raw(f".globl {name}\n.p2align 8\n.type {name},@function\n{name}:", 'label')]
    C += [S("s_cmp_lt_u32 s2, 256"), branch("s_cbranch_scc1", "L_k2_go"), raw("s_endpgm"), label("L_k2_go")]
    C += [raw("s_load_dwordx2 s[4:5], s[0:1], 40"), raw("s_load_dwordx2 s[6:7], s[0:1], 56")]
    C += [V("v_lshrrev_b32 v16, 6, v0"), V("v_readfirstlane_b32 s16, v16"), V("v_and_b32 v15, 63, v0"), V("v_lshlrev_b32 v15, 4, v15")]
    C += [S("s_and_b32 s17, s2, 7"), S("s_lshl_b32 s17, s17, 2"), S("s_lshr_b32 s18, s2, 3"), S("s_and_b32 s19, s18, 3"),
          S("s_add_u32 s17, s17, s19"), S("s_lshr_b32 s18, s18, 2")]
    C += [S("s_and_b32 s22, s16, 1"), S("s_lshr_b32 s23, s16, 1")]
    C += [S("s_cmp_lg_u32 s23, 0")]
    for x in range(5): C.append(S(f"s_cselect_b32 s{40+x}, {4-x}, {x}"))
    C += [S("s_mul_i32 s24, s22, 5"), S("s_sub_u32 s25, 5, s24")]
    for x in range(5):
        C += [S(f"s_add_u32 s{30+x}, s{40+x}, s24"), S(f"s_add_u32 s{35+x}, s{40+x}, s25")]
    for jj in range(10): C += [S(f"s_lshl_b32 s26, s{30+jj}, 10"), V(f"v_add_u32 v{vB+jj}, s26, v15")]
    for nn in range(5): C += [S(f"s_lshl_b32 s26, s{40+nn}, 10"), V(f"v_add_u32 v{vA+nn}, s26, v15")]
    C += [S("s_lshl_b32 s26, s17, 7"), S("s_lshl_b32 s27, s16, 5"), S("s_add_u32 s26, s26, s27"), S(f"s_mul_i32 s{sSB}, s26, 10240"),
          S("s_mul_i32 s27, s27, 40960"), S("s_mul_i32 s26, s18, 5120"), S(f"s_add_u32 s{sSA}, s27, s26"), S(f"s_add_u32 s{sSA}, s{sSA}, {WOT_OFF}")]
    C += [raw("s_waitcnt lgkmcnt(0)")]
    C += srd(sOUT, 4, 6553600) + srd(sWS2, 6, WS_BYTES)
    def loads(st):
        G = [[bload(4, fA(st, nn), vA + nn, sWS2, f"s{sSA}")] for nn in range(5)]
        G += [[bload(4, fB(st, jj), vB + jj, sWS2, f"s{sSB}")] for jj in range(10)]
        G[-1] = G[-1] + [S(f"s_add_u32 s{sSA}, s{sSA}, 40960"), S(f"s_add_u32 s{sSB}, s{sSB}, 10240")]
        return G
    def mms(st, zero):
        return [mfma(acc(jj, nn), fA(st, nn), fB(st, jj), None if zero else acc(jj, nn), df='a', cf='a') for jj in range(10) for nn in range(5)]
    for st in range(DEPTH - 1): C += flat(loads(st))
    def step(ks, zero=False, load=True, vm=None):
        st = ks % DEPTH
        c = [wait(vm=15 * (DEPTH - 2) if vm is None else vm)]
        c += spread(mms(st, zero), [(loads((ks - 1) % DEPTH), 0, 45)] if load else [])
        return c
    C += step(0, zero=True)
    C += [S("s_mov_b32 s28, 7")]
    C = fix_hazards(C)
    B = [label("L_k2_loop")]
    for u in range(DEPTH): B += step(1 + u)
    B += [S("s_sub_u32 s28, s28, 1"), S("s_cmp_lg_u32 s28, 0"), branch("s_cbranch_scc1", "L_k2_loop")]
    C += fix_hazards(B, pre=C[-12:])
    E = step(29, load=False, vm=30) + step(30, load=False, vm=15) + step(31, load=False, vm=0)
    lw = 16; lr = 17
    E += [S("s_mul_i32 s26, s16, 25600"), V(f"v_add_u32 v{lw}, s26, v15"), S("s_xor_b32 s27, s16, 1"), S("s_mul_i32 s26, s27, 25600"), V(f"v_add_u32 v{lr}, s26, v15")]
    E += [nop(7)]
    for i in range(25): E.append(ds_write(4, lw, acc(5, 0) + 4 * i, i * 1024, f='a'))
    E += [wait(lgkm=0), barrier()]
    RB = 32
    for i in range(25): E.append(ds_read(4, RB + 4 * i, lr, i * 1024))
    for i in range(25):
        for r in range(4):
            E.append(V(f"v_accvgpr_read_b32 v{RB+100+r}, a{4*i+r}"))
        for r in range(4):
            E.append(V(f"v_add_f32 v{RB+4*i+r}, v{RB+4*i+r}, v{RB+100+r}"))
    E += [wait(lgkm=0), barrier()]
    E += [S("s_xor_b32 s27, s16, 2"), S("s_mul_i32 s26, s27, 25600"), V(f"v_add_u32 v{lr}, s26, v15")]
    for i in range(12, 25): E.append(ds_write(4, lw, RB + 4 * i, (24 - i) * 1024))
    E += [wait(lgkm=0), barrier()]
    R2 = RB + 104
    for i in range(13): E.append(ds_read(4, R2 + 4 * i, lr, i * 1024))
    E += [V("v_lshrrev_b32 v18, 4, v15"), V("v_and_b32 v19, 15, v18"), V("v_lshrrev_b32 v18, 4, v18"),
          V("v_mul_u32_u24 v19, 1280, v19"), V("v_lshl_add_u32 v19, v18, 3, v19"),
          S("s_mul_i32 s26, s17, 204800"), S("s_mul_i32 s27, s18, 160"), S("s_add_u32 s26, s26, s27")]
    for i in range(13):
        jj, nn = divmod(i, 5)
        a = RB + 4 * i; b = R2 + 4 * i
        for r in range(4): E.append(V(f"v_add_f32 v{a+r}, v{a+r}, v{b+r}"))
        E += [V(f"v_cvt_pk_bf16_f32 v{a}, v{a}, v{a+1}"), V(f"v_cvt_pk_bf16_f32 v{a+1}, v{a+2}, v{a+3}"),
              S(f"s_mul_i32 s27, s{30+jj}, 20480"), S(f"s_lshl_b32 s29, s{40+nn}, 5"), S("s_add_u32 s27, s27, s29"), S("s_add_u32 s27, s27, s26"),
              bstore(2, a, 19, sOUT, "s27")]
    E += [raw("s_endpgm")]
    E, _ = finish(E, [], pre=C[-12:])
    return C + E

def kd(name, vgpr, accum, sgpr=96):
    return f""".section .rodata,"a"
.p2align 6
.amdhsa_kernel {name}
  .amdhsa_next_free_vgpr {vgpr}
  .amdhsa_next_free_sgpr {sgpr}
  .amdhsa_accum_offset {accum}
  .amdhsa_group_segment_fixed_size 0
  .amdhsa_kernarg_size 64
  .amdhsa_user_sgpr_count 2
  .amdhsa_user_sgpr_kernarg_segment_ptr 1
  .amdhsa_system_sgpr_workgroup_id_x 1
.end_amdhsa_kernel
"""

HDR = open('standalone__mha_block_cached__near_ridge.s.ref').read().split('; Override launch')[0]
def main(path):
    k1, k2 = "mha_attn_kernel", "mha_oproj_kernel"
    s = HDR
    s += f"; @launch kernel={k1} grid=(256,1,1) block=(512,1,1) lds={LDS_BYTES}\n"
    s += f"; @launch kernel={k2} grid=(256,1,1) block=(256,1,1) lds=102400\n"
    s += '.amdgcn_target "amdgcn-amd-amdhsa--gfx950"\n.text\n'
    s += emit(gen_k1(k1)) + emit(gen_k2(k2))
    s += kd(k1, 256, 256) + kd(k2, 456, 256)
    open(path, 'w').write(s)
if __name__ == '__main__':
    main(sys.argv[1] if len(sys.argv) > 1 else 'mha.s')
```

```python
import sys, math
from ir import *

SLOT = 16384
NSLOT = 10
W_SLOT0 = 4
XBUF = [114688, 135168]
LDS_BYTES = 163840
O_BYTES = 32 * 128 * 10 * 1024
WOT_OFF = O_BYTES
WOT_BYTES = 128 * 40 * 1024
WS_BYTES = O_BYTES + WOT_BYTES
QSCALE = math.log2(math.e) / math.sqrt(128.0)
THR = 16384.0
import struct
def f2u(x): return "0x%08x" % struct.unpack('<I', struct.pack('<f', x))[0]

sK, sV, sW, sX, sWS, sWO = 8, 12, 16, 20, 24, 28
sWave, sRound, sB, sG = 32, 33, 34, 35
sKVbase, sWbase, sXbase, sLdsKV, sLdsX = 36, 37, 38, 39, 40
sT0, sT1 = 41, 42
sKpos, sVpos, sD, sCnt, sXd, sLoop = 43, 44, 45, 49, 50, 51
sRet = 46
sOst = 48
sWObase, sLdsWO = 52, 53
sT2, sT3 = 54, 55
sQS = 73

DBG_OFF = 64 << 20
sStamp = 70
def stamp(w, k, real=False):
    if not Cfg.stamps: return []
    if Cfg.stamps == 2 and k not in (0, 75, 76, 77): return []
    if Cfg.stamps == 3 and k not in (0, 1, 7, 39, 41, 43, 45, 73, 75, 76, 77): return []
    return [raw(f"{'s_memrealtime' if real else 's_memtime'} s[{sStamp}:{sStamp+1}]"), wait(lgkm=0), V(f"v_mov_b32 v{w.tmp+1}, s{sStamp}"), V(f"v_mov_b32 v{w.tmp+2}, 0"),
            S(f"s_lshl_b32 s{sStamp+1}, s{sRound}, 9"), S(f"s_add_u32 s{sStamp+1}, s{sStamp+1}, s{sStamp+2}"),
            bstore(1, w.tmp + 1, w.tmp + 2, sWS, f"s{sStamp+1}", 4 * k, tag=('ost',))]

class Cfg:
    stamps = False
    LA = 4
    kv_pol = 'nt'
    touch = True
    qcut = 8
    prio = 2
    startbar = True
    no_sm = False
    no_dma = False
    no_exp = False
    no_chk = False
    no_ds = False
    no_adv = False
    k2_noadv = False
    k2_span = 45
    k2_nomfma = False

def item_slot(n): return (n % NSLOT) * SLOT
def kidx(t): return 0 if t == 0 else 2 * t - 1
def vidx(t): return 2 * t + 2

class Wave:
    def __init__(self, nq):
        self.nq = nq
        n = nq
        p = 0
        self.O = p; p += 32 * n
        self.Q = p; p += 16 * n
        self.NM = p; p += 4 * n
        self.S = p; p += 8 * n
        self.P = p; p += 8 * n
        self.L = p; p += n
        self.LT = p; p += n
        self.T = p; p += 4
        self.aN = p; p += 2
        self.aT = p; p += 4
        p = (p + 3) & ~3
        self.F = p; self.NF = 8; p += 32
        self.dummy = p; p += 1
        self.tmp = p; p += 3
        if nq == 2:
            self.vK = p; self.vV = p + 1; self.vW = p + 2; self.vX = p + 3; self.vWO = p + 4; p += 5
        else:
            self.vK = self.F; self.vV = self.F + 1
        assert p <= 256, p
        self.end = p
        setsz = 32 + 4 * n
        if nq == 3:
            self.set = [self.Q, self.S]
        else:
            q = (p + 3) & ~3
            self.set = [self.Q, q]
            assert q + setsz <= 256
        self.tag = f"w{nq}"
        self.fpos = 0
    def o(self, T, j): return self.O + (T * self.nq + j) * 4
    def q(self, s, j): return self.Q + (s * self.nq + j) * 4
    def nm(self, j): return self.NM + 4 * j
    def s(self, kb, j): return self.S + (kb * self.nq + j) * 4
    def p(self, par, j): return self.P + (par * self.nq + j) * 4
    def fa(self, st, T): return self.set[st] + 4 * T
    def fb(self, st, j): return self.set[st] + 32 + 4 * j

def spread(base, fillers):
    ins = [[] for _ in range(len(base) + 1)]
    for groups, lo, hi in fillers:
        n = len(groups)
        if n == 0: continue
        hi = min(hi, len(base)); lo = min(lo, hi)
        span = hi - lo
        for k, gI in enumerate(groups):
            pos = lo + (k * span) // n + 1 if span > 0 else lo
            ins[min(pos, len(base))].extend(gI)
    out = list(ins[0])
    for i, b in enumerate(base):
        out.append(b); out.extend(ins[i + 1])
    return out

def frag_K(w, s, kb, first_c):
    def reads(f): return [ds_read(4, f, w.aN + (s & 1), kb * 4096 + (s >> 1) * 2048)]
    def mf(f):
        out = []
        for j in range(w.nq):
            c = w.s(kb, j) if s > 0 else (None if first_c == 'zero' else w.nm(j))
            out.append(mfma(w.s(kb, j), f, w.q(s, j), c))
        return out
    return dict(reads=reads, mf=mf, pre=[])
def frags_QK(w, first_c='negm', pre=()):
    fr = [frag_K(w, s, kb, first_c) for s in range(4) for kb in range(2)]
    fr[0]['pre'] = list(pre)
    return fr
def frag_V(w, db, par, zero):
    def reads(f): return [ds_read(2, f + 2 * hh, w.aT + (db & 3), hh * 4096 + (db >> 2) * 2048, tr=True) for hh in range(2)]
    def mf(f): return [mfma(w.o(db, j), f, w.p(par, j), None if zero else w.o(db, j)) for j in range(w.nq)]
    return dict(reads=reads, mf=mf, pre=[])
def frags_PV(w, par, zero=False, pre=()):
    fr = [frag_V(w, db, par, zero) for db in range(8)]
    fr[0]['pre'] = list(pre)
    return fr

def stream(w, frags, preloaded, nxt, fillers=(), lead=()):
    LA = Cfg.LA
    allf = list(frags) + list(nxt[:LA])
    head = []
    def issue(i):
        f = allf[i]
        return ([] if Cfg.no_adv else list(f['pre'])) + ([] if Cfg.no_ds else f['reads'](w.F + 4 * ((w.fpos + i) % w.NF)))
    for i in range(preloaded, min(LA, len(allf))): head += issue(i)
    base = list(lead); extra = []
    for i, f in enumerate(frags):
        m = f['mf'](w.F + 4 * ((w.fpos + i) % w.NF))
        base += m
        post = []
        if i + LA < len(allf) and i + LA >= preloaded: post += issue(i + LA)
        if post: extra.append(([post], len(base) - 1, len(base)))
    body = spread(base, list(extra) + list(fillers))
    w.fpos = (w.fpos + len(frags)) % w.NF
    return head + body

def softmax_groups(w, par):
    G = []
    k = 0
    for kb in range(2):
        for j in range(w.nq):
            for h in range(2):
                t0 = w.T + 2 * (k & 1); t1 = t0 + 1; k += 1
                sr = w.s(kb, j) + 2 * h
                G.append([V(f"v_exp_f32 v{t0}, v{sr}")])
                G.append([V(f"v_exp_f32 v{t1}, v{sr+1}")])
                lt = w.LT + j
                if kb == 0 and h == 0:
                    G.append(('late', [V(f"v_add_f32 v{lt}, v{t0}, v{t1}"), V(f"v_cvt_pk_bf16_f32 v{w.p(par,j)+2*kb+h}, v{t0}, v{t1}")]))
                else:
                    G.append(('late', [V(f"v_add_f32 v{lt}, v{lt}, v{t0}"), V(f"v_cvt_pk_bf16_f32 v{w.p(par,j)+2*kb+h}, v{t0}, v{t1}"),
                                       V(f"v_add_f32 v{lt}, v{lt}, v{t1}")]))
    if Cfg.no_sm: return [[V(f"v_mov_b32 v{w.LT+j}, 1.0")] for j in range(w.nq)]
    if Cfg.no_exp:
        for gI in G:
            if not isinstance(gI, tuple): gI[0] = V(gI[0].text.replace('v_exp_f32', 'v_mov_b32'))
    out = []; pend = None
    for gI in G:
        if isinstance(gI, tuple):
            pend = gI[1]
        else:
            out.append(gI)
            if pend is not None:
                out.append(pend); pend = None
    if pend is not None: out.append(pend)
    return out

class Ctx:
    def __init__(self): self.stubs = []; self.n = 0
CTX = Ctx()

def check_and_accum(w, par, first=False, check=True):
    out = []
    if Cfg.no_chk: return out
    if check:
        if w.nq == 3:
            out.append(V(f"v_max3_f32 v{w.tmp}, v{w.LT}, v{w.LT+1}, v{w.LT+2}"))
        else:
            out.append(V(f"v_max_f32 v{w.tmp}, v{w.LT}, v{w.LT+1}"))
        out.append(I(f"v_cmp_nge_f32 vcc, {f2u(THR)}, v{w.tmp}", 'valu', wr={('s', 'vcc')}, rd=regs(w.tmp)))
        k = CTX.n; CTX.n += 1
        out.append(branch("s_cbranch_vccnz", f"L_stub{k}"))
        out.append(label(f"L_back{k}"))
        CTX.stubs.append((k, w.tag, par))
    for j in range(w.nq):
        if first: out.append(V(f"v_mov_b32 v{w.L+j}, v{w.LT+j}"))
        else: out.append(V(f"v_add_f32 v{w.L+j}, v{w.L+j}, v{w.LT+j}"))
    return out

def xlane(op, r, t):
    return [V(f"v_mov_b32 v{t}, v{r}"), V(f"v_permlane32_swap_b32 v{r}, v{t}"), V(f"{op} v{r}, v{r}, v{t}"),
            V(f"v_mov_b32 v{t}, v{r}"), V(f"v_permlane16_swap_b32 v{r}, v{t}"), V(f"{op} v{r}, v{r}, v{t}")]

def tile_max(w, j, dst):
    a, b = w.s(0, j), w.s(1, j)
    return [V(f"v_max3_f32 v{dst}, v{a}, v{a+1}, v{a+2}"), V(f"v_max3_f32 v{dst}, v{dst}, v{a+3}, v{b}"),
            V(f"v_max3_f32 v{dst}, v{dst}, v{b+1}, v{b+2}"), V(f"v_max_f32 v{dst}, v{dst}, v{b+3}")]

def first_max(w):
    out = []
    for j in range(w.nq): out += tile_max(w, j, w.LT + j)
    seqs = [xlane("v_max_f32", w.LT + j, w.T + j) for j in range(w.nq)]
    for k in range(6):
        for sq in seqs: out.append(sq[k])
    for j in range(w.nq):
        for r in range(4): out.append(V(f"v_sub_f32 v{w.nm(j)+r}, 0, v{w.LT+j}"))
        for kb in range(2):
            for r in range(4): out.append(V(f"v_sub_f32 v{w.s(kb,j)+r}, v{w.s(kb,j)+r}, v{w.LT+j}"))
    return out

def rare_routine(w, par):
    out = [label(f"L_rare_{w.tag}_{par}"), nop(15)]
    for j in range(w.nq):
        d = w.LT + j; f = w.T + 1
        out += tile_max(w, j, d)
        out += xlane("v_max_f32", d, w.T)
        out.append(V(f"v_max_f32 v{d}, 0, v{d}"))
        out.append(V(f"v_sub_f32 v{f}, 0, v{d}"))
        out.append(V(f"v_exp_f32 v{f}, v{f}"))
        for r in range(4): out.append(V(f"v_sub_f32 v{w.nm(j)+r}, v{w.nm(j)+r}, v{d}"))
        for kb in range(2):
            for r in range(4): out.append(V(f"v_sub_f32 v{w.s(kb,j)+r}, v{w.s(kb,j)+r}, v{d}"))
        out.append(V(f"v_mul_f32 v{w.L+j}, v{w.L+j}, v{f}"))
        for T in range(8):
            for r in range(4): out.append(V(f"v_mul_f32 v{w.o(T,j)+r}, v{w.o(T,j)+r}, v{f}"))
    for gI in softmax_groups(w, par): out += gI
    out.append(nop(3))
    out.append(raw(f"s_setpc_b64 s[{sRet}:{sRet+1}]", 'branch'))
    return fix_hazards(out)

def q_reads(w, st, sl):
    G = []
    for j in range(w.nq): G.append([ds_read(4, w.fb(st, j), w.aN + sl, j * 2048)])
    for T in range(8):
        for hh in range(2):
            G.append([ds_read(2, w.fa(st, T) + 2 * hh, w.aT + (T & 3), hh * 4096 + (T >> 2) * 2048, tr=True)])
    return G
def q_mfmas(w, st, zero):
    return [mfma(w.o(T, j), w.fa(st, T), w.fb(st, j), None if zero else w.o(T, j)) for T in range(8) for j in range(w.nq)]

def q_pack_groups(w, s):
    G = []
    for j in range(w.nq):
        for half in range(2):
            a = w.o(2 * s + half, j)
            for r in range(4): G.append([V(f"v_mul_f32 v{a+r}, s{sQS}, v{a+r}")])
            G.append([V(f"v_cvt_pk_bf16_f32 v{w.q(s,j)+2*half}, v{a}, v{a+1}")])
            G.append([V(f"v_cvt_pk_bf16_f32 v{w.q(s,j)+2*half+1}, v{a+2}, v{a+3}")])
    for op in ("v_permlane32_swap_b32", "v_permlane16_swap_b32"):
        for j in range(w.nq):
            q = w.q(s, j)
            G.append([V(f"{op} v{q}, v{q+2}")]); G.append([V(f"{op} v{q+1}, v{q+3}")])
    return G
def q_pack_fillers(w):
    n = w.nq
    rng = [(2 * n + 2, 5 * n), (5 * n, 8 * n), (8 * n, 11 * n), (11 * n, 14 * n - 1)]
    return [(q_pack_groups(w, s), rng[s][0], rng[s][1]) for s in range(4)]

def l_reduce(w):
    out = []
    seqs = [xlane("v_add_f32", w.L + j, w.T + j) for j in range(w.nq)]
    for k in range(6):
        for sq in seqs: out.append(sq[k])
    for j in range(w.nq): out.append(V(f"v_rcp_f32 v{w.L+j}, v{w.L+j}"))
    out += [V(f"v_mbcnt_lo_u32_b32 v{w.tmp}, -1, 0"), V(f"v_mbcnt_hi_u32_b32 v{w.tmp}, -1, v{w.tmp}"), V(f"v_lshlrev_b32 v{w.tmp}, 4, v{w.tmp}")]
    return out
def epi_groups(w, s):
    G = []
    for j in range(w.nq):
        d = w.q(s, j)
        for half in range(2):
            a = w.o(2 * s + half, j)
            for r in range(4): G.append([V(f"v_mul_f32 v{a+r}, v{a+r}, v{w.L+j}")])
            G.append([V(f"v_cvt_pk_bf16_f32 v{d+2*half}, v{a}, v{a+1}")])
            G.append([V(f"v_cvt_pk_bf16_f32 v{d+2*half+1}, v{a+2}, v{a+3}")])
        G.append([S(f"s_add_u32 s{sT1}, s{sOst}, {s*10240}"), bstore(4, d, w.tmp, sWS, f"s{sT1}", j * 1024, tag=('ost',))])
    return G
def epi_fillers(w):
    n = w.nq
    rng = [(2 * n + 2, 4 * n + 2), (4 * n + 2, 6 * n + 2), (6 * n + 2, 8 * n), (8 * n, 8 * n)]
    return [([[i] for i in l_reduce(w)], 0, 2 * n + 1)] + [(epi_groups(w, s), rng[s][0], rng[s][1]) for s in range(4)]

def dma_kv(w, kind, t, nxt_round, tag):
    srd = sK if kind == 'K' else sV
    voff = w.vK if kind == 'K' else w.vV
    n = kidx(t) if kind == 'K' else vidx(t)
    lds = item_slot(n)
    goff = t * 8192 + (262144 if nxt_round else 0)
    G = []
    for a in range(2):
        g = [S(f"s_add_u32 s{sT0}, s{sKVbase}, {goff + a*4096}")]
        for seg in range(2):
            g2 = [S(f"s_add_u32 m0, s{sLdsKV}, {lds + a*4096 + seg*2048 - seg*128}"),
                  dma(voff, srd, f"s{sT0}", seg * 128, Cfg.kv_pol, tag=tag)]
            G.append(g + g2); g = []
    return G
def dma_w(w, s, nxt_round, tag):
    lds = (W_SLOT0 + s % 3) * SLOT
    goff = s * 32 * 8192 + (512 if nxt_round else 0)
    G = []
    for hh in range(2):
        g = [S(f"s_add_u32 s{sT0}, s{sWbase}, {goff + hh*32768}")]
        for seg in range(2):
            g2 = [S(f"s_add_u32 m0, s{sLdsKV}, {lds + hh*4096 + seg*2048 - seg*128}"),
                  dma(w.vW, sW, f"s{sT0}", seg * 128, tag=tag)]
            G.append(g + g2); g = []
    return G
def dma_x(w, u, tag):
    G = []
    for i in range(5):
        G.append([S(f"s_add_u32 s{sT0}, s{sXbase}, {i*20480 + u*128}"),
                  S(f"s_add_u32 m0, s{sLdsX}, {XBUF[u&1] + i*2048}"),
                  dma(w.vX, sX, f"s{sT0}", 0, tag=tag)])
    return G
def dma_wo(w, tag):
    G = []
    for seg in range(5):
        G.append([S(f"s_add_u32 m0, s{sLdsWO}, {XBUF[0] + seg*2048 - seg*128}"),
                  dma(w.vWO, sWO, f"s{sWObase}", seg * 128, tag=tag)])
    return G

def loader_schedule():
    sch = {i: [] for i in range(37)}
    for s in range(3, 20): sch[s - 2].append(('W', s, False))
    for u in range(2, 10): sch[2 * u - 2].append(('X', u, False))
    names = {}
    for t in range(16):
        names[kidx(t)] = ('K', t); names[vidx(t)] = ('V', t)
    first = {6: 18, 7: 18, 4: 19, 5: 20, 8: 20, 9: 20}
    for n in (6, 7, 4, 5, 8, 9): sch[first[n]].append(names[n] + (False,))
    for n in range(10, 33):
        if n not in names: continue
        k, t = names[n - 10]
        last = (20 + t) if k == 'K' else min(22 + t, 36)
        sch[last + 1].append(names[n] + (False,))
    sch[33] += [('K', 1, True), ('K', 2, True)]
    sch[34] += [('W', 0, True), ('W', 1, True)]
    sch[35] += [('W', 2, True)]
    sch[36] += [('X', 0, True), ('X', 1, True)]
    return sch
def first_use(kind, i):
    if kind == 'W': return i
    if kind == 'X': return 2 * i
    if kind == 'K': return 20 if i == 0 else 19 + i
    if kind == 'V': return 21 + i

def lane_setup(w):
    t = w.F + 8
    lane, i16, g, a, b, c = t, t + 1, t + 2, t + 3, t + 4, t + 5
    o = [V(f"v_mbcnt_lo_u32_b32 v{lane}, -1, 0"), V(f"v_mbcnt_hi_u32_b32 v{lane}, -1, v{lane}"),
         V(f"v_and_b32 v{i16}, 15, v{lane}"), V(f"v_lshrrev_b32 v{g}, 4, v{lane}")]
    o += [V(f"v_lshrrev_b32 v{a}, 1, v{i16}"), V(f"v_xor_b32 v{a}, v{a}, v{g}"), V(f"v_lshlrev_b32 v{a}, 4, v{a}"),
          V(f"v_lshl_add_u32 v{w.aN}, v{i16}, 7, v{a}"), V(f"v_xor_b32 v{w.aN+1}, 64, v{w.aN}")]
    o += [V(f"v_lshrrev_b32 v{a}, 2, v{lane}"),
          V(f"v_and_b32 v{b}, 6, v{a}"),
          V(f"v_bfe_u32 v{c}, v{lane}, 1, 1"), V(f"v_xor_b32 v{b}, v{b}, v{c}"), V(f"v_lshlrev_b32 v{b}, 4, v{b}"),
          V(f"v_lshl_add_u32 v{b}, v{a}, 7, v{b}"),
          V(f"v_and_b32 v{c}, 1, v{lane}"), V(f"v_lshl_add_u32 v{w.aT}, v{c}, 3, v{b}")]
    for dq in range(1, 4): o.append(V(f"v_xor_b32 v{w.aT+dq}, {dq<<5}, v{w.aT}"))
    return o
def voff_setup(w, which):
    t = w.F + 8
    lane, r8, p, a, b, row = t, t + 1, t + 2, t + 3, t + 4, t + 5
    o = [S(f"s_and_b32 s{sT1}, s{sWave}, 1"), S(f"s_lshl_b32 s{sT2}, s{sT1}, 3"), S(f"s_lshl_b32 s{sT3}, s{sT1}, 2"),
         V(f"v_mbcnt_lo_u32_b32 v{lane}, -1, 0"), V(f"v_mbcnt_hi_u32_b32 v{lane}, -1, v{lane}"),
         V(f"v_lshrrev_b32 v{r8}, 3, v{lane}"), V(f"v_and_b32 v{p}, 7, v{lane}"),
         V(f"v_add_u32 v{row}, s{sT2}, v{r8}"),
         V(f"v_lshrrev_b32 v{a}, 1, v{r8}"), V(f"v_or_b32 v{a}, s{sT3}, v{a}"), V(f"v_xor_b32 v{a}, v{a}, v{p}"), V(f"v_lshlrev_b32 v{a}, 4, v{a}"),
         V(f"v_and_b32 v{b}, 6, v{r8}"), V(f"v_xor_b32 v{b}, v{b}, v{p}"), V(f"v_lshlrev_b32 v{b}, 4, v{b}")]
    o += [V(f"v_lshl_add_u32 v{w.vK}, v{row}, 8, v{a}"), V(f"v_lshl_add_u32 v{w.vV}, v{row}, 8, v{b}")]
    if which == 'all':
        o += [V(f"v_mul_u32_u24 v{p}, 1280, v{row}"), V(f"v_add_u32 v{w.vX}, v{p}, v{a}"), V(f"v_add_u32 v{w.vWO}, v{p}, v{b}")]
        o += [V(f"v_and_b32 v{p}, 4, v{r8}"), V(f"v_add_u32 v{p}, v{p}, v{r8}"), S(f"s_lshl_b32 s{sT2}, s{sT1}, 4"), V(f"v_add_u32 v{p}, s{sT2}, v{p}"),
              V(f"v_lshl_add_u32 v{w.vW}, v{p}, 13, v{b}")]
    return o

def add_addr(regs_, delta):
    if delta == 0: return []
    if isinstance(delta, str): return [V(f"v_add_u32 v{r}, {delta}, v{r}") for r in regs_]
    return [V(f"v_add_u32 v{r}, {delta & 0xffffffff:#x}, v{r}") for r in regs_]

def finish(code, pending=None, pre=()):
    c, q = add_lgkm_waits(code, pending)
    return fix_hazards(c, pre), q

def wo_tail(w):
    out = []
    if w.nq == 3: out.append(S(f"s_mul_i32 s{sT1}, s{sWave}, 3"))
    else: out += [S(f"s_lshl_b32 s{sT1}, s{sWave}, 1"), S(f"s_add_u32 s{sT1}, s{sT1}, 4")]
    out += lane_setup(w)
    out += [V(f"v_mbcnt_lo_u32_b32 v{w.tmp}, -1, 0"), V(f"v_mbcnt_hi_u32_b32 v{w.tmp}, -1, v{w.tmp}"), V(f"v_lshlrev_b32 v{w.tmp}, 4, v{w.tmp}")]
    for j in range(w.nq):
        out += [S(f"s_add_u32 s{sT2}, s{sT1}, {j}"), S(f"s_and_b32 s{sT3}, s{sT2}, 3"), S(f"s_lshl_b32 s{sT3}, s{sT3}, 5"),
                V(f"v_xor_b32 v{w.T+j}, s{sT3}, v{w.aT}"),
                S(f"s_lshr_b32 s{sT2}, s{sT2}, 2"), S(f"s_lshl_b32 s{sT2}, s{sT2}, 11"), S(f"s_add_u32 s{sT2}, s{sT2}, {XBUF[0]}"),
                V(f"v_add_u32 v{w.T+j}, s{sT2}, v{w.T+j}"),
                ds_read(2, w.q(0, j), w.T + j, 0, tr=True), ds_read(2, w.q(0, j) + 2, w.T + j, 10240, tr=True)]
    out += [S(f"s_mul_i32 s{sT2}, s2, 20"), S(f"s_add_u32 s{sT2}, s{sT2}, s{sT1}"), S(f"s_lshl_b32 s{sT2}, s{sT2}, 10"),
            S(f"s_add_u32 s{sT2}, s{sT2}, {WOT_OFF}")]
    for j in range(w.nq):
        out.append(bstore(4, w.q(0, j), w.tmp, sWS, f"s{sT2}", j * 1024))
    return out

def touches(w, first):
    out = []
    t = w.tmp + 1
    out += [V(f"v_mbcnt_lo_u32_b32 v{t}, -1, 0"), V(f"v_mbcnt_hi_u32_b32 v{t}, -1, v{t}"),
            V(f"v_lshrrev_b32 v{t+1}, 2, v{t}"), V(f"v_and_b32 v{t}, 3, v{t}"), V(f"v_lshlrev_b32 v{t}, 7, v{t}"),
            V(f"v_lshl_add_u32 v{t}, v{t+1}, 13, v{t}")]
    out += [S(f"s_and_b32 s{sT0}, s{sB}, 3"), S(f"s_lshl_b32 s{sT0}, s{sT0}, 2"), S(f"s_add_u32 s{sT0}, s{sT0}, s{sWave}"),
            S(f"s_mul_i32 s{sT0}, s{sT0}, {40*8192}"), S(f"s_lshl_b32 s{sT1}, s{sG}, 10"), S(f"s_add_u32 s{sT0}, s{sT0}, s{sT1}")]
    if not first: out.append(S(f"s_add_u32 s{sT0}, s{sT0}, 512"))
    for i in range(3):
        out.append(bload(1, w.dummy, t, sW, f"s{sT0}"))
        if i < 2: out.append(S(f"s_add_u32 s{sT0}, s{sT0}, {(16 if i == 0 else 8)*8192}"))
    out += [V(f"v_mbcnt_lo_u32_b32 v{t}, -1, 0"), V(f"v_mbcnt_hi_u32_b32 v{t}, -1, v{t}"), V(f"v_lshlrev_b32 v{t}, 7, v{t}"),
            S(f"s_mul_i32 s{sT0}, s{sB}, 204800"), S(f"s_mul_i32 s{sT1}, s{sG}, 25600"), S(f"s_add_u32 s{sT0}, s{sT0}, s{sT1}"),
            S(f"s_mul_i32 s{sT1}, s{sWave}, 5760"), S(f"s_add_u32 s{sT0}, s{sT0}, s{sT1}"),
            bload(1, w.dummy, t, sX, f"s{sT0}")]
    return out

def flat(G): return [i for g in G for i in g]

def gen_w3():
    w = Wave(3); nm = 24
    aN = [w.aN, w.aN + 1]; aT = [w.aT + i for i in range(4)]
    C = [label("L_w3")]
    C += lane_setup(w)
    C += [S(f"s_lshr_b32 s{sT0}, s{sWave}, 1"), S(f"s_and_b32 s{sT0}, s{sT0}, 1"), S(f"s_lshl_b32 s{sT0}, s{sT0}, 13"),
          S(f"s_and_b32 s{sT1}, s{sWave}, 1"), S(f"s_mul_i32 s{sT1}, s{sT1}, 6144"),
          S(f"s_sub_u32 s{sXd}, s{sT0}, s{sT1}"),
          S(f"s_mov_b32 s{sLdsWO}, s{sXd}"),
          S(f"s_add_u32 s{sT0}, s{sT0}, {W_SLOT0*SLOT}"), S(f"s_add_u32 s{sT1}, s{sT1}, {XBUF[0]}")]
    C += add_addr(aT, f"s{sT0}") + add_addr(aN, f"s{sT1}")
    if Cfg.startbar: C += [barrier()]
    if Cfg.touch: C += touches(w, True)
    C += voff_setup(w, 'kv')
    C += flat(dma_kv(w, 'K', 1, False, None)) + flat(dma_kv(w, 'K', 2, False, None))
    C, _ = finish(C)
    out = C
    def one(L): return [[i] for i in L]
    def wadv():
        return [S(f"s_add_u32 s{sCnt}, s{sCnt}, 1"), S(f"s_cmp_eq_u32 s{sCnt}, 3"), S(f"s_cselect_b32 s{sD}, {(-2*SLOT) & 0xffffffff:#x}, s68"),
                S(f"s_cselect_b32 s{sCnt}, 0, s{sCnt}")] + add_addr(aT, f"s{sD}")
    def xadv(): return add_addr(aN, f"s{sXd}") + [S(f"s_sub_u32 s{sXd}, 0, s{sXd}")]
    def qstage(s, zero=False, extra=()):
        p = s & 1
        adv_ = wadv() + (xadv() if p == 1 else []) + list(extra)
        L = [barrier()] + spread(q_mfmas(w, 1 - p, zero), [(q_reads(w, p, p), 0, 16), (one(adv_), 17, 22)]) + [wait(lgkm=0)]
        k = [i for i, c in enumerate(L) if c.kind == 'mfma'][Cfg.qcut]
        return L[:k], L[k:]
    C = [label("L_w3_round")] + stamp(w, 0) + [barrier()] + stamp(w, 1)
    C += flat(q_reads(w, 0, 0))
    C += voff_setup(w, 'kv')
    C += flat(dma_kv(w, 'K', 0, False, None)) + flat(dma_kv(w, 'V', 0, False, None))
    C += add_addr(aT, SLOT)
    C += [S(f"s_mov_b32 s{sCnt}, 1"), S(f"s_mov_b32 s{sXd}, 20480"), S(f"s_mov_b32 s{sLoop}, 8")]
    C += [wait(lgkm=0)]
    h1, t1 = qstage(1, zero=True); he, te = qstage(2); ho, to = qstage(3)
    C += h1 + t1 + he
    C, q = finish(C); out += C
    B = [label("L_w3_q")] + te + ho + to + he
    B += [S(f"s_sub_u32 s{sLoop}, s{sLoop}, 1"), S(f"s_cmp_lg_u32 s{sLoop}, 0"), branch("s_cbranch_scc1", "L_w3_q")]
    Bc, q2 = finish(B, q, pre=out[-12:]); Bc2, _ = finish(B, q2, pre=Bc[-12:])
    assert emit(Bc) == emit(Bc2)
    out += Bc
    curT = (W_SLOT0 + 2) * SLOT; curN = XBUF[0]
    h19, t19 = qstage(19, extra=add_addr(aN, f"s{sLdsWO}") + add_addr(aN, item_slot(kidx(0)) - curN) + add_addr(aT, item_slot(vidx(0)) - curT))
    C = te + h19 + t19
    C += stamp(w, 40) + [wait(vm=0), barrier()] + stamp(w, 41)
    k0 = frags_QK(w, 'zero')
    k1 = frags_QK(w, 'negm', pre=add_addr(aN, item_slot(kidx(1)) - item_slot(kidx(0))))
    w.fpos = 0
    C += stream(w, k0, 0, k1, lead=q_mfmas(w, 1, False), fillers=q_pack_fillers(w))
    C += first_max(w)
    C += stamp(w, 42) + [barrier()] + stamp(w, 43)
    C += flat(softmax_groups(w, 0)) + check_and_accum(w, 0, first=True, check=False)
    v0 = frags_PV(w, 0, zero=True)
    if Cfg.touch:
        C += [S(f"s_cmp_lg_u32 s{sRound}, 0"), branch("s_cbranch_scc1", "L_w3_notouch")] + touches(w, False) + [label("L_w3_notouch")]
    C += [S(f"s_mov_b32 s{sKpos}, {item_slot(kidx(1))}"), S(f"s_mov_b32 s{sVpos}, {item_slot(vidx(0))}"), S(f"s_mov_b32 s{sLoop}, 7")]
    C += stream(w, k1, Cfg.LA, v0)
    C += stamp(w, 44) + [barrier()] + stamp(w, 45)
    def adv(pos, rr):
        return [S(f"s_cmp_ge_u32 s{pos}, {LDS_BYTES - 2*SLOT}"), S(f"s_cselect_b32 s{sD}, {(2*SLOT - LDS_BYTES) & 0xffffffff:#x}, s69"),
                S(f"s_add_u32 s{pos}, s{pos}, s{sD}")] + add_addr(rr, f"s{sD}")
    def pv(par): return frags_PV(w, par, pre=adv(sVpos, aT))
    def qk(): return frags_QK(w, 'negm', pre=adv(sKpos, aN))
    C += stream(w, v0, Cfg.LA, qk(), fillers=[(softmax_groups(w, 1), 0, nm)])
    C += check_and_accum(w, 1)
    C, q = finish(C, q2, pre=out[-12:]); out += C
    B = [label("L_w3_a")]
    for par in (1, 0):
        B += stream(w, qk(), Cfg.LA, pv(par))
        B += [barrier()]
        B += stream(w, pv(par), Cfg.LA, qk(), fillers=[(softmax_groups(w, 1 - par), 0, nm)])
        B += check_and_accum(w, 1 - par)
    B += [S(f"s_sub_u32 s{sLoop}, s{sLoop}, 1"), S(f"s_cmp_lg_u32 s{sLoop}, 0"), branch("s_cbranch_scc1", "L_w3_a")]
    Bc, q2 = finish(B, q, pre=out[-12:]); Bc2, _ = finish(B, q2, pre=Bc[-12:])
    assert emit(Bc) == emit(Bc2)
    out += Bc
    C = stamp(w, 74)
    C += stream(w, pv(1), 0, [], fillers=epi_fillers(w))
    C += stamp(w, 75) + stamp(w, 77, True)
    curT = item_slot(vidx(15)); curN = item_slot(kidx(16))
    C += add_addr(aT, W_SLOT0 * SLOT - curT) + add_addr(aN, XBUF[0] - curN) + [V(f"v_subrev_u32 v{r}, s{sLdsWO}, v{r}") for r in aN]
    C += round_advance()
    C += [branch("s_cbranch_scc1", "L_w3_round")]
    C += [barrier()] + wo_tail(w) + [raw("s_endpgm")]
    C, q = finish(C, q2, pre=out[-12:]); out += C
    out += rare_routine(w, 0) + rare_routine(w, 1)
    return out

def round_advance():
    return [S(f"s_add_u32 s{sKVbase}, s{sKVbase}, 262144"), S(f"s_add_u32 s{sWbase}, s{sWbase}, 512"),
            S(f"s_add_u32 s{sOst}, s{sOst}, {8*10240}"), S(f"s_add_u32 s{sRound}, s{sRound}, 1"), S(f"s_cmp_lt_u32 s{sRound}, 2")]

def gen_w2():
    w = Wave(2); nm = 16
    aN = [w.aN, w.aN + 1]; aT = [w.aT + i for i in range(4)]
    sch = loader_schedule()
    def items(idx):
        G = []
        for kind, i, nx in sch[idx]:
            tag = (kind, i, nx)
            if Cfg.no_dma and not (kind == 'X' and nx and i == 0): continue
            if kind in 'KV': G += dma_kv(w, kind, i, nx, tag)
            elif kind == 'W': G += dma_w(w, i, nx, tag)
            elif kind == 'X':
                if nx and i == 0:
                    g = [S(f"s_cmp_lg_u32 s{sRound}, 0"), branch("s_cbranch_scc1", "L_w2_wo")] + flat(dma_x(w, i, tag)) + [label("L_w2_wo_back")]
                    G.append(g)
                else: G += dma_x(w, i, tag)
        return G
    pro = [label("L_w2")]
    if Cfg.prio == 1: pro += [raw("s_setprio 1")]
    addr0 = [S(f"s_lshr_b32 s{sT0}, s{sWave}, 1"), S(f"s_and_b32 s{sT0}, s{sT0}, 1"), S(f"s_lshl_b32 s{sT0}, s{sT0}, 13"),
            S(f"s_and_b32 s{sT1}, s{sWave}, 1"), S(f"s_lshl_b32 s{sT1}, s{sT1}, 12"), S(f"s_add_u32 s{sT1}, s{sT1}, {6*2048}"),
            S(f"s_sub_u32 s{sXd}, s{sT0}, s{sT1}"),
            S(f"s_add_u32 s{sT0}, s{sT0}, {W_SLOT0*SLOT}"), S(f"s_add_u32 s{sT1}, s{sT1}, {XBUF[0]}")]
    addr0 += add_addr(aT, f"s{sT0}") + add_addr(aN, f"s{sT1}")
    pro += voff_setup(w, 'all')
    pro += flat(dma_w(w, 0, False, ('W', 0, True))) + flat(dma_x(w, 0, ('X', 0, True))) + flat(dma_w(w, 1, False, ('W', 1, True))) \
        + flat(dma_w(w, 2, False, ('W', 2, True))) + flat(dma_x(w, 1, ('X', 1, True)))
    if Cfg.startbar: pro += [barrier()]
    pro += lane_setup(w) + addr0
    C = [label("L_w2_round")] + stamp(w, 76, True)
    def bar(idx, lgkm=None):
        b = wait(vm=63, lgkm=lgkm); b.tag = (('need', idx), lgkm)
        return stamp(w, 2 * idx) + [b, barrier()] + stamp(w, 2 * idx + 1)
    def one(L): return [[i] for i in L]
    prio = lambda p: [raw(f"s_setprio {p}")] if Cfg.prio == 2 else []
    curT = W_SLOT0 * SLOT; curN = XBUF[0]
    C += prio(1)
    for s in range(20):
        if s < 19:
            newT = (W_SLOT0 + (s + 1) % 3) * SLOT; newN = XBUF[((s + 1) >> 1) & 1]
            adv_ = add_addr(aT, newT - curT) + add_addr(aN, newN - curN); curT, curN = newT, newN
        else:
            adv_ = add_addr(aN, f"s{sXd}") + add_addr(aN, item_slot(kidx(0)) - curN) + add_addr(aT, item_slot(vidx(0)) - curT)
        C += bar(s, lgkm=0)
        if s == 0: C += flat(q_reads(w, 0, 0)) + flat(items(0)) + adv_
        else: C += spread(q_mfmas(w, (s - 1) & 1, s == 1), [(q_reads(w, s & 1, s & 1), 0, 10), (items(s), 0, nm - 2), (one(adv_), 11, 15)])
    C += bar(20, lgkm=0)
    def qk(t, fc='negm'): return frags_QK(w, fc, pre=add_addr(aN, item_slot(kidx(t)) - item_slot(kidx(t - 1))) if t else [])
    def pv(t): return frags_PV(w, t & 1, zero=(t == 0), pre=add_addr(aT, item_slot(vidx(t)) - item_slot(vidx(t - 1))) if t else [])
    w.fpos = 0
    C += stream(w, qk(0, 'zero'), 0, qk(1), lead=q_mfmas(w, 1, False), fillers=[(items(20), 0, 2 * nm)] + q_pack_fillers(w))
    C += first_max(w)
    C += flat(softmax_groups(w, 0)) + check_and_accum(w, 0, first=True, check=False)
    for t in range(15):
        C += prio(0)
        C += bar(21 + t)
        if 21 + t == 33:
            C += [S(f"s_cmp_lg_u32 s{sRound}, 0"), S(f"s_cselect_b32 s{sK+2}, 0, s{sK+2}"), S(f"s_cselect_b32 s{sW+2}, 0, s{sW+2}"),
                  S(f"s_cselect_b32 s{sX+2}, 0, s{sX+2}")]
        C += stream(w, qk(t + 1), Cfg.LA, pv(t), fillers=[(items(21 + t), 0, nm)])
        C += prio(1)
        C += stream(w, pv(t), Cfg.LA, qk(t + 2) if t < 14 else [], fillers=[(softmax_groups(w, (t + 1) & 1), 2, nm)])
        C += check_and_accum(w, (t + 1) & 1)
    C += prio(0)
    C += bar(36)
    C += flat(items(36))
    C += stamp(w, 74)
    C += stream(w, pv(15), 0, [], fillers=epi_fillers(w))
    C += stamp(w, 75) + stamp(w, 77, True)
    curT = item_slot(vidx(15)); curN = item_slot(kidx(15))
    C += add_addr(aT, W_SLOT0 * SLOT - curT) + add_addr(aN, XBUF[0] - curN) + [V(f"v_subrev_u32 v{r}, s{sXd}, v{r}") for r in aN]
    C += round_advance()
    C += [branch("s_cbranch_scc1", "L_w2_round")]
    def vm_ops(code): return [c for c in code if c.kind in ('dma', 'vload', 'vstore')]
    def resolve(prefix):
        res = {}
        q = [(c.tag[0], c.tag[1], 0) if c.tag and c.tag[0] != 'ost' and c.tag[2] else None for c in vm_ops(prefix)]
        for c in C:
            if c.kind in ('dma', 'vload', 'vstore'):
                q.append((c.tag[0], c.tag[1], 1 if c.tag[2] else 0) if c.tag[0] != 'ost' else None)
            elif c.kind == 'wait' and isinstance(c.tag[0], tuple):
                idx = c.tag[0][1]
                last = -1
                for k, it in enumerate(q):
                    if it is not None and it[2] == 0 and first_use(it[0], it[1]) <= idx: last = k
                res[idx] = min(63, len(q) - 1 - last)
        return res
    r1 = resolve(pro); r2 = resolve(C)
    for c in C:
        if c.kind == 'wait' and isinstance(c.tag[0], tuple):
            idx = c.tag[0][1]; n = min(r1[idx], r2[idx]); lg = c.tag[1]
            c.text = f"s_waitcnt vmcnt({n})" + (f" lgkmcnt({lg})" if lg is not None else ""); c.tag = (n, lg)
    C += [wait(vm=0), barrier()] + wo_tail(w) + [raw("s_endpgm")]
    C += [label("L_w2_wo")] + flat(dma_wo(w, None)) + [branch("s_branch", "L_w2_wo_back")]
    pro, _ = finish(pro)
    C, q = finish(C, [], pre=pro[-12:])
    return pro + C + rare_routine(w, 0) + rare_routine(w, 1)

def srd(base, ptr, nbytes):
    return [S(f"s_mov_b32 s{base}, s{ptr}"), S(f"s_mov_b32 s{base+1}, s{ptr+1}"), S(f"s_mov_b32 s{base+2}, {nbytes}"), S(f"s_mov_b32 s{base+3}, 0x20000")]

def gen_k1(name):
    C = [raw(f".globl {name}\n.p2align 8\n.type {name},@function\n{name}:", 'label')]
    C += [S("s_cmp_lt_u32 s2, 256"), branch("s_cbranch_scc1", "L_k1_go"), raw("s_endpgm"), label("L_k1_go")]
    C += [raw("s_load_dwordx8 s[56:63], s[0:1], 0"), raw("s_load_dwordx2 s[64:65], s[0:1], 32"), raw("s_load_dwordx2 s[66:67], s[0:1], 56")]
    C += [V("v_lshrrev_b32 v1, 6, v0"), V(f"v_readfirstlane_b32 s{sWave}, v1")]
    C += [S(f"s_and_b32 s{sB}, s2, 7"), S(f"s_lshl_b32 s{sB}, s{sB}, 2"), S(f"s_lshr_b32 s{sT0}, s2, 3"), S(f"s_and_b32 s{sT1}, s{sT0}, 3"),
          S(f"s_add_u32 s{sB}, s{sB}, s{sT1}"), S(f"s_lshr_b32 s{sG}, s{sT0}, 2"), S(f"s_mov_b32 s{sRound}, 0")]
    C += [S(f"s_lshr_b32 s{sT0}, s{sWave}, 1"), S(f"s_and_b32 s{sT0}, s{sT0}, 1"), S(f"s_and_b32 s{sT1}, s{sWave}, 1"),
          S(f"s_lshl_b32 s{sT2}, s{sG}, 2"), S(f"s_add_u32 s{sT2}, s{sT2}, s{sT0}"),
          S(f"s_lshl_b32 s{sWbase}, s{sT2}, 8"),
          S(f"s_lshl_b32 s{sT3}, s{sB}, 5"), S(f"s_add_u32 s{sT3}, s{sT3}, s{sT2}"), S(f"s_lshl_b32 s{sKVbase}, s{sT3}, 17"),
          S(f"s_mul_i32 s{sOst}, s{sT3}, 40960"),
          S(f"s_lshl_b32 s{sLdsKV}, s{sT0}, 13"), S(f"s_lshl_b32 s{sT2}, s{sT1}, 10"), S(f"s_add_u32 s{sLdsKV}, s{sLdsKV}, s{sT2}"),
          S(f"s_mul_i32 s{sLdsX}, s{sT0}, 10240"), S(f"s_add_u32 s{sLdsX}, s{sLdsX}, s{sT2}"), S(f"s_mov_b32 s{sLdsWO}, s{sLdsX}"),
          S(f"s_mul_i32 s{sXbase}, s{sB}, 204800"), S(f"s_mul_i32 s{sT2}, s{sT0}, 102400"), S(f"s_add_u32 s{sXbase}, s{sXbase}, s{sT2}"),
          S(f"s_lshr_b32 s{sT2}, s2, 1"), S(f"s_mul_i32 s{sWObase}, s{sT2}, 40960"), S(f"s_mul_i32 s{sT2}, s{sT0}, 20480"), S(f"s_add_u32 s{sWObase}, s{sWObase}, s{sT2}"),
          S(f"s_and_b32 s{sT2}, s2, 1"), S(f"s_mul_i32 s{sT2}, s{sT2}, 640"), S(f"s_add_u32 s{sWObase}, s{sWObase}, s{sT2}")]
    C += [S(f"s_mov_b32 s{sQS}, {f2u(QSCALE)}")]
    C += [S(f"s_mov_b32 s68, {SLOT}"), S(f"s_mov_b32 s69, {2*SLOT}")]
    C += [raw("s_waitcnt lgkmcnt(0)")]
    C += srd(sX, 56, 6553600) + srd(sK, 58, 134217728) + srd(sV, 60, 134217728) + srd(sW, 62, 5242880) + srd(sWO, 64, 5242880) + srd(sWS, 66, (128 << 20) if Cfg.stamps else WS_BYTES)
    if Cfg.stamps:
        C += [S(f"s_lshl_b32 s{sStamp+2}, s2, 3"), S(f"s_add_u32 s{sStamp+2}, s{sStamp+2}, s{sWave}"), S(f"s_lshl_b32 s{sStamp+2}, s{sStamp+2}, 10"),
              S(f"s_add_u32 s{sStamp+2}, s{sStamp+2}, {DBG_OFF}")]
    C += [S(f"s_cmp_ge_u32 s{sWave}, 4"), branch("s_cbranch_scc1", "L_k1_w2"),
          S(f"s_mul_i32 s{sT2}, s{sT1}, 3072"), S(f"s_add_u32 s{sOst}, s{sOst}, s{sT2}"), branch("s_branch", "L_w3"),
          label("L_k1_w2"), S(f"s_lshl_b32 s{sT2}, s{sT1}, 11"), S(f"s_add_u32 s{sT2}, s{sT2}, 6144"), S(f"s_add_u32 s{sOst}, s{sOst}, s{sT2}"),
          branch("s_branch", "L_w2")]
    C = fix_hazards(C)
    C += gen_w3() + gen_w2()
    for k, tag, par in CTX.stubs:
        C += [label(f"L_stub{k}"), raw(f"s_call_b64 s[{sRet}:{sRet+1}], L_rare_{tag}_{par}", 'branch'), branch("s_branch", f"L_back{k}")]
    return C

def gen_k2(name):
    DEPTH = 4
    vB, vA = 0, 10
    FR = 16
    tmp = FR + 60 * DEPTH
    def fB(st, jj): return FR + 60 * st + 4 * jj
    def fA(st, nn): return FR + 60 * st + 40 + 4 * nn
    def acc(jj, nn): return (jj * 5 + nn) * 4
    sOUT, sWS2 = 8, 12
    sSB, sSA = 20, 21
    C = [raw(f".globl {name}\n.p2align 8\n.type {name},@function\n{name}:", 'label')]
    C += [S("s_cmp_lt_u32 s2, 256"), branch("s_cbranch_scc1", "L_k2_go"), raw("s_endpgm"), label("L_k2_go")]
    C += [raw("s_load_dwordx2 s[4:5], s[0:1], 40"), raw("s_load_dwordx2 s[6:7], s[0:1], 56")]
    C += [V("v_lshrrev_b32 v16, 6, v0"), V("v_readfirstlane_b32 s16, v16"), V("v_and_b32 v15, 63, v0"), V("v_lshlrev_b32 v15, 4, v15")]
    C += [S("s_and_b32 s17, s2, 7"), S("s_lshl_b32 s17, s17, 2"), S("s_lshr_b32 s18, s2, 3"), S("s_and_b32 s19, s18, 3"),
          S("s_add_u32 s17, s17, s19"), S("s_lshr_b32 s18, s18, 2")]
    C += [S("s_and_b32 s22, s16, 1"), S("s_lshr_b32 s23, s16, 1")]
    C += [S("s_cmp_lg_u32 s23, 0")]
    for x in range(5): C.append(S(f"s_cselect_b32 s{40+x}, {4-x}, {x}"))
    C += [S("s_mul_i32 s24, s22, 5"), S("s_sub_u32 s25, 5, s24")]
    for x in range(5):
        C += [S(f"s_add_u32 s{30+x}, s{40+x}, s24"), S(f"s_add_u32 s{35+x}, s{40+x}, s25")]
    for jj in range(10): C += [S(f"s_lshl_b32 s26, s{30+jj}, 10"), V(f"v_add_u32 v{vB+jj}, s26, v15")]
    for nn in range(5): C += [S(f"s_lshl_b32 s26, s{40+nn}, 10"), V(f"v_add_u32 v{vA+nn}, s26, v15")]
    C += [S("s_lshl_b32 s26, s17, 7"), S("s_lshl_b32 s27, s16, 5"), S("s_add_u32 s26, s26, s27"), S(f"s_mul_i32 s{sSB}, s26, 10240"),
          S("s_mul_i32 s27, s27, 40960"), S("s_mul_i32 s26, s18, 5120"), S(f"s_add_u32 s{sSA}, s27, s26"), S(f"s_add_u32 s{sSA}, s{sSA}, {WOT_OFF}")]
    C += [raw("s_waitcnt lgkmcnt(0)")]
    C += srd(sOUT, 4, 6553600) + srd(sWS2, 6, (128 << 20) if Cfg.stamps else WS_BYTES)
    def loads(st):
        G = [[bload(4, fA(st, nn), vA + nn, sWS2, f"s{sSA}")] for nn in range(5)]
        G += [[bload(4, fB(st, jj), vB + jj, sWS2, f"s{sSB}")] for jj in range(10)]
        if Cfg.k2_noadv: G[-1] = G[-1] + [S(f"s_xor_b32 s{sSA}, s{sSA}, 65536"), S(f"s_xor_b32 s{sSB}, s{sSB}, 65536")]
        else: G[-1] = G[-1] + [S(f"s_add_u32 s{sSA}, s{sSA}, 40960"), S(f"s_add_u32 s{sSB}, s{sSB}, 10240")]
        return G
    def mms(st, zero):
        return [mfma(acc(jj, nn), fA(st, nn), fB(st, jj), None if zero else acc(jj, nn), df='a', cf='a') for jj in range(10) for nn in range(5)]
    def st2(k): return [raw(f"s_memtime s[{60+2*k}:{61+2*k}]"), wait(lgkm=0)] if Cfg.stamps else []
    C += st2(0)
    for st in range(DEPTH - 1): C += flat(loads(st))
    def step(ks, zero=False, load=True, vm=None):
        st = ks % DEPTH
        c = [wait(vm=15 * (DEPTH - 2) if vm is None else vm)]
        mm = mms(st, zero)
        if Cfg.k2_nomfma and load and not zero: mm = mm[:15]
        c += spread(mm, [(loads((ks - 1) % DEPTH), 0, Cfg.k2_span)] if load else [])
        return c
    C += step(0, zero=True)
    C += st2(1)
    C += [S("s_mov_b32 s28, 7")]
    C = fix_hazards(C)
    B = [label("L_k2_loop")]
    for u in range(DEPTH): B += step(1 + u)
    B += [S("s_sub_u32 s28, s28, 1"), S("s_cmp_lg_u32 s28, 0"), branch("s_cbranch_scc1", "L_k2_loop")]
    C += fix_hazards(B, pre=C[-12:])
    E = st2(2) + step(29, load=False, vm=30) + step(30, load=False, vm=15) + step(31, load=False, vm=0) + st2(3)
    lw = 16; lr = 17
    E += [S("s_mul_i32 s26, s16, 25600"), V(f"v_add_u32 v{lw}, s26, v15"), S("s_xor_b32 s27, s16, 1"), S("s_mul_i32 s26, s27, 25600"), V(f"v_add_u32 v{lr}, s26, v15")]
    E += [nop(7)]
    for i in range(25): E.append(ds_write(4, lw, acc(5, 0) + 4 * i, i * 1024, f='a'))
    E += [wait(lgkm=0), barrier()]
    RB = 32
    for i in range(25): E.append(ds_read(4, RB + 4 * i, lr, i * 1024))
    for i in range(25):
        for r in range(4):
            E.append(V(f"v_accvgpr_read_b32 v{RB+100+r}, a{4*i+r}"))
        for r in range(4):
            E.append(V(f"v_add_f32 v{RB+4*i+r}, v{RB+4*i+r}, v{RB+100+r}"))
    E += [wait(lgkm=0), barrier()]
    E += [S("s_xor_b32 s27, s16, 2"), S("s_mul_i32 s26, s27, 25600"), V(f"v_add_u32 v{lr}, s26, v15")]
    for i in range(12, 25): E.append(ds_write(4, lw, RB + 4 * i, (24 - i) * 1024))
    E += [wait(lgkm=0), barrier()]
    R2 = RB + 104
    for i in range(13): E.append(ds_read(4, R2 + 4 * i, lr, i * 1024))
    E += [V("v_lshrrev_b32 v18, 4, v15"), V("v_and_b32 v19, 15, v18"), V("v_lshrrev_b32 v18, 4, v18"),
          V("v_mul_u32_u24 v19, 1280, v19"), V("v_lshl_add_u32 v19, v18, 3, v19"),
          S("s_mul_i32 s26, s17, 204800"), S("s_mul_i32 s27, s18, 160"), S("s_add_u32 s26, s26, s27")]
    for i in range(13):
        jj, nn = divmod(i, 5)
        a = RB + 4 * i; b = R2 + 4 * i
        for r in range(4): E.append(V(f"v_add_f32 v{a+r}, v{a+r}, v{b+r}"))
        E += [V(f"v_cvt_pk_bf16_f32 v{a}, v{a}, v{a+1}"), V(f"v_cvt_pk_bf16_f32 v{a+1}, v{a+2}, v{a+3}"),
              S(f"s_mul_i32 s27, s{30+jj}, 20480"), S(f"s_lshl_b32 s29, s{40+nn}, 5"), S("s_add_u32 s27, s27, s29"), S("s_add_u32 s27, s27, s26"),
              bstore(2, a, 19, sOUT, "s27")]
    if Cfg.stamps:
        E += st2(4) + [wait(vm=0)] + st2(5)
        E += [S("s_lshl_b32 s26, s2, 2"), S("s_add_u32 s26, s26, s16"), S("s_lshl_b32 s26, s26, 5"), S(f"s_add_u32 s26, s26, {DBG_OFF + (4<<20)}"), V("v_mov_b32 v21, 0")]
        for k in range(6): E += [V(f"v_mov_b32 v20, s{60+2*k}"), bstore(1, 20, 21, sWS2, "s26", 4 * k)]
    E += [raw("s_endpgm")]
    E, _ = finish(E, [], pre=C[-12:])
    return C + E

def kd(name, vgpr, accum, sgpr=96):
    return f""".section .rodata,"a"
.p2align 6
.amdhsa_kernel {name}
  .amdhsa_next_free_vgpr {vgpr}
  .amdhsa_next_free_sgpr {sgpr}
  .amdhsa_accum_offset {accum}
  .amdhsa_group_segment_fixed_size 0
  .amdhsa_kernarg_size 64
  .amdhsa_user_sgpr_count 2
  .amdhsa_user_sgpr_kernarg_segment_ptr 1
  .amdhsa_system_sgpr_workgroup_id_x 1
.end_amdhsa_kernel
"""

HDR = open('standalone__mha_block_cached__near_ridge.s.ref').read().split('; Override launch')[0]
def main(path):
    k1, k2 = "mha_attn_kernel", "mha_oproj_kernel"
    s = HDR
    s += f"; @launch kernel={k1} grid=(256,1,1) block=(512,1,1) lds={LDS_BYTES}\n"
    s += f"; @launch kernel={k2} grid=(256,1,1) block=(256,1,1) lds=102400\n"
    s += '.amdgcn_target "amdgcn-amd-amdhsa--gfx950"\n.text\n'
    s += emit(gen_k1(k1)) + emit(gen_k2(k2))
    s += kd(k1, 256, 256) + kd(k2, 456, 256)
    open(path, 'w').write(s)
if __name__ == '__main__':
    for a in sys.argv[2:]:
        k, v = a.split('='); setattr(Cfg, k, eval(v))
    main(sys.argv[1] if len(sys.argv) > 1 else 'mha.s')
```

```python
import sys, math
from ir import *

SLOT = 16384
NSLOT = 10
W_SLOT0 = 4
XBUF = [114688, 135168]
LDS_BYTES = 163840
O_BYTES = 32 * 128 * 10 * 1024
WOT_OFF = O_BYTES
WOT_BYTES = 128 * 40 * 1024
WS_BYTES = O_BYTES + WOT_BYTES
QSCALE = math.log2(math.e) / math.sqrt(128.0)
THR = 16384.0
import struct
def f2u(x): return "0x%08x" % struct.unpack('<I', struct.pack('<f', x))[0]

sK, sV, sW, sX, sWS, sWO = 8, 12, 16, 20, 24, 28
sWave, sRound, sB, sG = 32, 33, 34, 35
sKVbase, sWbase, sXbase, sLdsKV, sLdsX = 36, 37, 38, 39, 40
sT0, sT1 = 41, 42
sKpos, sVpos, sD, sCnt, sXd, sLoop = 43, 44, 45, 49, 50, 51
sRet = 46
sOst = 48
sWObase, sLdsWO = 52, 53
sT2, sT3 = 54, 55
sQS = 73

DBG_OFF = 64 << 20
sStamp = 70
DSL = {1: 0, 7: 1, 41: 2, 45: 3, 73: 4, 75: 5}
def stamp(w, k, real=False):
    if Cfg.dbgst:
        if w.nq != 2 or k not in DSL or real: return []
        i = DSL[k]
        return [raw(f"s_memtime s[{sStamp}:{sStamp+1}]"), wait(lgkm=0), S(f"s_cmp_eq_u32 s{sRound}, 0"),
                S(f"s_cselect_b32 s{78+i}, s{sStamp}, s{78+i}"), S(f"s_mov_b32 s{84+i}, s{sStamp}")]
    if not Cfg.stamps: return []
    if Cfg.stamps == 2 and k not in (0, 75, 76, 77): return []
    if Cfg.stamps == 3 and k not in (0, 1, 7, 39, 41, 43, 45, 73, 75, 76, 77): return []
    return [raw(f"{'s_memrealtime' if real else 's_memtime'} s[{sStamp}:{sStamp+1}]"), wait(lgkm=0), V(f"v_mov_b32 v{w.tmp+1}, s{sStamp}"), V(f"v_mov_b32 v{w.tmp+2}, 0"),
            S(f"s_lshl_b32 s{sStamp+1}, s{sRound}, 9"), S(f"s_add_u32 s{sStamp+1}, s{sStamp+1}, s{sStamp+2}"),
            bstore(1, w.tmp + 1, w.tmp + 2, sWS, f"s{sStamp+1}", 4 * k, tag=('ost',))]

class Cfg:
    stamps = False
    dbgst = False
    LA = 4
    kv_pol = 'nt'
    touch = True
    qcut = 8
    prio = 2
    startbar = True
    no_sm = False
    no_dma = False
    no_exp = False
    no_chk = False
    no_ds = False
    no_adv = False
    k2_noadv = False
    k2_span = 45
    k2_nomfma = False

def item_slot(n): return (n % NSLOT) * SLOT
def kidx(t): return 0 if t == 0 else 2 * t - 1
def vidx(t): return 2 * t + 2

class Wave:
    def __init__(self, nq):
        self.nq = nq
        n = nq
        p = 0
        self.O = p; p += 32 * n
        self.Q = p; p += 16 * n
        self.NM = p; p += 4 * n
        self.S = p; p += 8 * n
        self.P = p; p += 8 * n
        self.L = p; p += n
        self.LT = p; p += n
        self.T = p; p += 4
        self.aN = p; p += 2
        self.aT = p; p += 4
        p = (p + 3) & ~3
        self.F = p; self.NF = 8; p += 32
        self.dummy = p; p += 1
        self.tmp = p; p += 3
        if nq == 2:
            self.vK = p; self.vV = p + 1; self.vW = p + 2; self.vX = p + 3; self.vWO = p + 4; p += 5
        else:
            self.vK = self.F; self.vV = self.F + 1
        assert p <= 256, p
        self.end = p
        setsz = 32 + 4 * n
        if nq == 3:
            self.set = [self.Q, self.S]
        else:
            q = (p + 3) & ~3
            self.set = [self.Q, q]
            assert q + setsz <= 256
        self.tag = f"w{nq}"
        self.fpos = 0
    def o(self, T, j): return self.O + (T * self.nq + j) * 4
    def q(self, s, j): return self.Q + (s * self.nq + j) * 4
    def nm(self, j): return self.NM + 4 * j
    def s(self, kb, j): return self.S + (kb * self.nq + j) * 4
    def p(self, par, j): return self.P + (par * self.nq + j) * 4
    def fa(self, st, T): return self.set[st] + 4 * T
    def fb(self, st, j): return self.set[st] + 32 + 4 * j

def spread(base, fillers):
    ins = [[] for _ in range(len(base) + 1)]
    for groups, lo, hi in fillers:
        n = len(groups)
        if n == 0: continue
        hi = min(hi, len(base)); lo = min(lo, hi)
        span = hi - lo
        for k, gI in enumerate(groups):
            pos = lo + (k * span) // n + 1 if span > 0 else lo
            ins[min(pos, len(base))].extend(gI)
    out = list(ins[0])
    for i, b in enumerate(base):
        out.append(b); out.extend(ins[i + 1])
    return out

def frag_K(w, s, kb, first_c):
    def reads(f): return [ds_read(4, f, w.aN + (s & 1), kb * 4096 + (s >> 1) * 2048)]
    def mf(f):
        out = []
        for j in range(w.nq):
            c = w.s(kb, j) if s > 0 else (None if first_c == 'zero' else w.nm(j))
            out.append(mfma(w.s(kb, j), f, w.q(s, j), c))
        return out
    return dict(reads=reads, mf=mf, pre=[])
def frags_QK(w, first_c='negm', pre=()):
    fr = [frag_K(w, s, kb, first_c) for s in range(4) for kb in range(2)]
    fr[0]['pre'] = list(pre)
    return fr
def frag_V(w, db, par, zero):
    def reads(f): return [ds_read(2, f + 2 * hh, w.aT + (db & 3), hh * 4096 + (db >> 2) * 2048, tr=True) for hh in range(2)]
    def mf(f): return [mfma(w.o(db, j), f, w.p(par, j), None if zero else w.o(db, j)) for j in range(w.nq)]
    return dict(reads=reads, mf=mf, pre=[])
def frags_PV(w, par, zero=False, pre=()):
    fr = [frag_V(w, db, par, zero) for db in range(8)]
    fr[0]['pre'] = list(pre)
    return fr

def stream(w, frags, preloaded, nxt, fillers=(), lead=()):
    LA = Cfg.LA
    allf = list(frags) + list(nxt[:LA])
    head = []
    def issue(i):
        f = allf[i]
        return ([] if Cfg.no_adv else list(f['pre'])) + ([] if Cfg.no_ds else f['reads'](w.F + 4 * ((w.fpos + i) % w.NF)))
    for i in range(preloaded, min(LA, len(allf))): head += issue(i)
    base = list(lead); extra = []
    for i, f in enumerate(frags):
        m = f['mf'](w.F + 4 * ((w.fpos + i) % w.NF))
        base += m
        post = []
        if i + LA < len(allf) and i + LA >= preloaded: post += issue(i + LA)
        if post: extra.append(([post], len(base) - 1, len(base)))
    body = spread(base, list(extra) + list(fillers))
    w.fpos = (w.fpos + len(frags)) % w.NF
    return head + body

def softmax_groups(w, par):
    G = []
    k = 0
    for kb in range(2):
        for j in range(w.nq):
            for h in range(2):
                t0 = w.T + 2 * (k & 1); t1 = t0 + 1; k += 1
                sr = w.s(kb, j) + 2 * h
                G.append([V(f"v_exp_f32 v{t0}, v{sr}")])
                G.append([V(f"v_exp_f32 v{t1}, v{sr+1}")])
                lt = w.LT + j
                if kb == 0 and h == 0:
                    G.append(('late', [V(f"v_add_f32 v{lt}, v{t0}, v{t1}"), V(f"v_cvt_pk_bf16_f32 v{w.p(par,j)+2*kb+h}, v{t0}, v{t1}")]))
                else:
                    G.append(('late', [V(f"v_add_f32 v{lt}, v{lt}, v{t0}"), V(f"v_cvt_pk_bf16_f32 v{w.p(par,j)+2*kb+h}, v{t0}, v{t1}"),
                                       V(f"v_add_f32 v{lt}, v{lt}, v{t1}")]))
    if Cfg.no_sm: return [[V(f"v_mov_b32 v{w.LT+j}, 1.0")] for j in range(w.nq)]
    if Cfg.no_exp:
        for gI in G:
            if not isinstance(gI, tuple): gI[0] = V(gI[0].text.replace('v_exp_f32', 'v_mov_b32'))
    out = []; pend = None
    for gI in G:
        if isinstance(gI, tuple):
            pend = gI[1]
        else:
            out.append(gI)
            if pend is not None:
                out.append(pend); pend = None
    if pend is not None: out.append(pend)
    return out

class Ctx:
    def __init__(self): self.stubs = []; self.n = 0
CTX = Ctx()

def check_and_accum(w, par, first=False, check=True):
    out = []
    if Cfg.no_chk: return out
    if check:
        if w.nq == 3:
            out.append(V(f"v_max3_f32 v{w.tmp}, v{w.LT}, v{w.LT+1}, v{w.LT+2}"))
        else:
            out.append(V(f"v_max_f32 v{w.tmp}, v{w.LT}, v{w.LT+1}"))
        out.append(I(f"v_cmp_nge_f32 vcc, {f2u(THR)}, v{w.tmp}", 'valu', wr={('s', 'vcc')}, rd=regs(w.tmp)))
        k = CTX.n; CTX.n += 1
        out.append(branch("s_cbranch_vccnz", f"L_stub{k}"))
        out.append(label(f"L_back{k}"))
        CTX.stubs.append((k, w.tag, par))
    for j in range(w.nq):
        if first: out.append(V(f"v_mov_b32 v{w.L+j}, v{w.LT+j}"))
        else: out.append(V(f"v_add_f32 v{w.L+j}, v{w.L+j}, v{w.LT+j}"))
    return out

def xlane(op, r, t):
    return [V(f"v_mov_b32 v{t}, v{r}"), V(f"v_permlane32_swap_b32 v{r}, v{t}"), V(f"{op} v{r}, v{r}, v{t}"),
            V(f"v_mov_b32 v{t}, v{r}"), V(f"v_permlane16_swap_b32 v{r}, v{t}"), V(f"{op} v{r}, v{r}, v{t}")]

def tile_max(w, j, dst):
    a, b = w.s(0, j), w.s(1, j)
    return [V(f"v_max3_f32 v{dst}, v{a}, v{a+1}, v{a+2}"), V(f"v_max3_f32 v{dst}, v{dst}, v{a+3}, v{b}"),
            V(f"v_max3_f32 v{dst}, v{dst}, v{b+1}, v{b+2}"), V(f"v_max_f32 v{dst}, v{dst}, v{b+3}")]

def first_max(w):
    out = []
    for j in range(w.nq): out += tile_max(w, j, w.LT + j)
    seqs = [xlane("v_max_f32", w.LT + j, w.T + j) for j in range(w.nq)]
    for k in range(6):
        for sq in seqs: out.append(sq[k])
    for j in range(w.nq):
        for r in range(4): out.append(V(f"v_sub_f32 v{w.nm(j)+r}, 0, v{w.LT+j}"))
        for kb in range(2):
            for r in range(4): out.append(V(f"v_sub_f32 v{w.s(kb,j)+r}, v{w.s(kb,j)+r}, v{w.LT+j}"))
    return out

def rare_routine(w, par):
    out = [label(f"L_rare_{w.tag}_{par}"), nop(15)]
    for j in range(w.nq):
        d = w.LT + j; f = w.T + 1
        out += tile_max(w, j, d)
        out += xlane("v_max_f32", d, w.T)
        out.append(V(f"v_max_f32 v{d}, 0, v{d}"))
        out.append(V(f"v_sub_f32 v{f}, 0, v{d}"))
        out.append(V(f"v_exp_f32 v{f}, v{f}"))
        for r in range(4): out.append(V(f"v_sub_f32 v{w.nm(j)+r}, v{w.nm(j)+r}, v{d}"))
        for kb in range(2):
            for r in range(4): out.append(V(f"v_sub_f32 v{w.s(kb,j)+r}, v{w.s(kb,j)+r}, v{d}"))
        out.append(V(f"v_mul_f32 v{w.L+j}, v{w.L+j}, v{f}"))
        for T in range(8):
            for r in range(4): out.append(V(f"v_mul_f32 v{w.o(T,j)+r}, v{w.o(T,j)+r}, v{f}"))
    for gI in softmax_groups(w, par): out += gI
    out.append(nop(3))
    out.append(raw(f"s_setpc_b64 s[{sRet}:{sRet+1}]", 'branch'))
    return fix_hazards(out)

def q_reads(w, st, sl):
    G = []
    for j in range(w.nq): G.append([ds_read(4, w.fb(st, j), w.aN + sl, j * 2048)])
    for T in range(8):
        for hh in range(2):
            G.append([ds_read(2, w.fa(st, T) + 2 * hh, w.aT + (T & 3), hh * 4096 + (T >> 2) * 2048, tr=True)])
    return G
def q_mfmas(w, st, zero):
    return [mfma(w.o(T, j), w.fa(st, T), w.fb(st, j), None if zero else w.o(T, j)) for T in range(8) for j in range(w.nq)]

def q_pack_groups(w, s):
    G = []
    for j in range(w.nq):
        for half in range(2):
            a = w.o(2 * s + half, j)
            for r in range(4): G.append([V(f"v_mul_f32 v{a+r}, s{sQS}, v{a+r}")])
            G.append([V(f"v_cvt_pk_bf16_f32 v{w.q(s,j)+2*half}, v{a}, v{a+1}")])
            G.append([V(f"v_cvt_pk_bf16_f32 v{w.q(s,j)+2*half+1}, v{a+2}, v{a+3}")])
    for op in ("v_permlane32_swap_b32", "v_permlane16_swap_b32"):
        for j in range(w.nq):
            q = w.q(s, j)
            G.append([V(f"{op} v{q}, v{q+2}")]); G.append([V(f"{op} v{q+1}, v{q+3}")])
    return G
def q_pack_fillers(w):
    n = w.nq
    rng = [(2 * n + 2, 5 * n), (5 * n, 8 * n), (8 * n, 11 * n), (11 * n, 14 * n - 1)]
    return [(q_pack_groups(w, s), rng[s][0], rng[s][1]) for s in range(4)]

def l_reduce(w):
    out = []
    seqs = [xlane("v_add_f32", w.L + j, w.T + j) for j in range(w.nq)]
    for k in range(6):
        for sq in seqs: out.append(sq[k])
    for j in range(w.nq): out.append(V(f"v_rcp_f32 v{w.L+j}, v{w.L+j}"))
    out += [V(f"v_mbcnt_lo_u32_b32 v{w.tmp}, -1, 0"), V(f"v_mbcnt_hi_u32_b32 v{w.tmp}, -1, v{w.tmp}"), V(f"v_lshlrev_b32 v{w.tmp}, 4, v{w.tmp}")]
    return out
def epi_groups(w, s):
    G = []
    for j in range(w.nq):
        d = w.q(s, j)
        for half in range(2):
            a = w.o(2 * s + half, j)
            for r in range(4): G.append([V(f"v_mul_f32 v{a+r}, v{a+r}, v{w.L+j}")])
            G.append([V(f"v_cvt_pk_bf16_f32 v{d+2*half}, v{a}, v{a+1}")])
            G.append([V(f"v_cvt_pk_bf16_f32 v{d+2*half+1}, v{a+2}, v{a+3}")])
        G.append([S(f"s_add_u32 s{sT1}, s{sOst}, {s*10240}"), bstore(4, d, w.tmp, sWS, f"s{sT1}", j * 1024, tag=('ost',))])
    return G
def epi_fillers(w):
    n = w.nq
    rng = [(2 * n + 2, 4 * n + 2), (4 * n + 2, 6 * n + 2), (6 * n + 2, 8 * n), (8 * n, 8 * n)]
    return [([[i] for i in l_reduce(w)], 0, 2 * n + 1)] + [(epi_groups(w, s), rng[s][0], rng[s][1]) for s in range(4)]

def dma_kv(w, kind, t, nxt_round, tag):
    srd = sK if kind == 'K' else sV
    voff = w.vK if kind == 'K' else w.vV
    n = kidx(t) if kind == 'K' else vidx(t)
    lds = item_slot(n)
    goff = t * 8192 + (262144 if nxt_round else 0)
    G = []
    for a in range(2):
        g = [S(f"s_add_u32 s{sT0}, s{sKVbase}, {goff + a*4096}")]
        for seg in range(2):
            g2 = [S(f"s_add_u32 m0, s{sLdsKV}, {lds + a*4096 + seg*2048 - seg*128}"),
                  dma(voff, srd, f"s{sT0}", seg * 128, Cfg.kv_pol, tag=tag)]
            G.append(g + g2); g = []
    return G
def dma_w(w, s, nxt_round, tag):
    lds = (W_SLOT0 + s % 3) * SLOT
    goff = s * 32 * 8192 + (512 if nxt_round else 0)
    G = []
    for hh in range(2):
        g = [S(f"s_add_u32 s{sT0}, s{sWbase}, {goff + hh*32768}")]
        for seg in range(2):
            g2 = [S(f"s_add_u32 m0, s{sLdsKV}, {lds + hh*4096 + seg*2048 - seg*128}"),
                  dma(w.vW, sW, f"s{sT0}", seg * 128, tag=tag)]
            G.append(g + g2); g = []
    return G
def dma_x(w, u, tag):
    G = []
    for i in range(5):
        G.append([S(f"s_add_u32 s{sT0}, s{sXbase}, {i*20480 + u*128}"),
                  S(f"s_add_u32 m0, s{sLdsX}, {XBUF[u&1] + i*2048}"),
                  dma(w.vX, sX, f"s{sT0}", 0, tag=tag)])
    return G
def dma_wo(w, tag):
    G = []
    for seg in range(5):
        G.append([S(f"s_add_u32 m0, s{sLdsWO}, {XBUF[0] + seg*2048 - seg*128}"),
                  dma(w.vWO, sWO, f"s{sWObase}", seg * 128, tag=tag)])
    return G

def loader_schedule():
    sch = {i: [] for i in range(37)}
    for s in range(3, 20): sch[s - 2].append(('W', s, False))
    for u in range(2, 10): sch[2 * u - 2].append(('X', u, False))
    names = {}
    for t in range(16):
        names[kidx(t)] = ('K', t); names[vidx(t)] = ('V', t)
    first = {6: 18, 7: 18, 4: 19, 5: 20, 8: 20, 9: 20}
    for n in (6, 7, 4, 5, 8, 9): sch[first[n]].append(names[n] + (False,))
    for n in range(10, 33):
        if n not in names: continue
        k, t = names[n - 10]
        last = (20 + t) if k == 'K' else min(22 + t, 36)
        sch[last + 1].append(names[n] + (False,))
    sch[33] += [('K', 1, True), ('K', 2, True)]
    sch[34] += [('W', 0, True), ('W', 1, True)]
    sch[35] += [('W', 2, True)]
    sch[36] += [('X', 0, True), ('X', 1, True)]
    return sch
def first_use(kind, i):
    if kind == 'W': return i
    if kind == 'X': return 2 * i
    if kind == 'K': return 20 if i == 0 else 19 + i
    if kind == 'V': return 21 + i

def lane_setup(w):
    t = w.F + 8
    lane, i16, g, a, b, c = t, t + 1, t + 2, t + 3, t + 4, t + 5
    o = [V(f"v_mbcnt_lo_u32_b32 v{lane}, -1, 0"), V(f"v_mbcnt_hi_u32_b32 v{lane}, -1, v{lane}"),
         V(f"v_and_b32 v{i16}, 15, v{lane}"), V(f"v_lshrrev_b32 v{g}, 4, v{lane}")]
    o += [V(f"v_lshrrev_b32 v{a}, 1, v{i16}"), V(f"v_xor_b32 v{a}, v{a}, v{g}"), V(f"v_lshlrev_b32 v{a}, 4, v{a}"),
          V(f"v_lshl_add_u32 v{w.aN}, v{i16}, 7, v{a}"), V(f"v_xor_b32 v{w.aN+1}, 64, v{w.aN}")]
    o += [V(f"v_lshrrev_b32 v{a}, 2, v{lane}"),
          V(f"v_and_b32 v{b}, 6, v{a}"),
          V(f"v_bfe_u32 v{c}, v{lane}, 1, 1"), V(f"v_xor_b32 v{b}, v{b}, v{c}"), V(f"v_lshlrev_b32 v{b}, 4, v{b}"),
          V(f"v_lshl_add_u32 v{b}, v{a}, 7, v{b}"),
          V(f"v_and_b32 v{c}, 1, v{lane}"), V(f"v_lshl_add_u32 v{w.aT}, v{c}, 3, v{b}")]
    for dq in range(1, 4): o.append(V(f"v_xor_b32 v{w.aT+dq}, {dq<<5}, v{w.aT}"))
    return o
def voff_setup(w, which):
    t = w.F + 8
    lane, r8, p, a, b, row = t, t + 1, t + 2, t + 3, t + 4, t + 5
    o = [S(f"s_and_b32 s{sT1}, s{sWave}, 1"), S(f"s_lshl_b32 s{sT2}, s{sT1}, 3"), S(f"s_lshl_b32 s{sT3}, s{sT1}, 2"),
         V(f"v_mbcnt_lo_u32_b32 v{lane}, -1, 0"), V(f"v_mbcnt_hi_u32_b32 v{lane}, -1, v{lane}"),
         V(f"v_lshrrev_b32 v{r8}, 3, v{lane}"), V(f"v_and_b32 v{p}, 7, v{lane}"),
         V(f"v_add_u32 v{row}, s{sT2}, v{r8}"),
         V(f"v_lshrrev_b32 v{a}, 1, v{r8}"), V(f"v_or_b32 v{a}, s{sT3}, v{a}"), V(f"v_xor_b32 v{a}, v{a}, v{p}"), V(f"v_lshlrev_b32 v{a}, 4, v{a}"),
         V(f"v_and_b32 v{b}, 6, v{r8}"), V(f"v_xor_b32 v{b}, v{b}, v{p}"), V(f"v_lshlrev_b32 v{b}, 4, v{b}")]
    o += [V(f"v_lshl_add_u32 v{w.vK}, v{row}, 8, v{a}"), V(f"v_lshl_add_u32 v{w.vV}, v{row}, 8, v{b}")]
    if which == 'all':
        o += [V(f"v_mul_u32_u24 v{p}, 1280, v{row}"), V(f"v_add_u32 v{w.vX}, v{p}, v{a}"), V(f"v_add_u32 v{w.vWO}, v{p}, v{b}")]
        o += [V(f"v_and_b32 v{p}, 4, v{r8}"), V(f"v_add_u32 v{p}, v{p}, v{r8}"), S(f"s_lshl_b32 s{sT2}, s{sT1}, 4"), V(f"v_add_u32 v{p}, s{sT2}, v{p}"),
              V(f"v_lshl_add_u32 v{w.vW}, v{p}, 13, v{b}")]
    return o

def add_addr(regs_, delta):
    if delta == 0: return []
    if isinstance(delta, str): return [V(f"v_add_u32 v{r}, {delta}, v{r}") for r in regs_]
    return [V(f"v_add_u32 v{r}, {delta & 0xffffffff:#x}, v{r}") for r in regs_]

def finish(code, pending=None, pre=()):
    c, q = add_lgkm_waits(code, pending)
    return fix_hazards(c, pre), q

def wo_tail(w):
    out = []
    if w.nq == 3: out.append(S(f"s_mul_i32 s{sT1}, s{sWave}, 3"))
    else: out += [S(f"s_lshl_b32 s{sT1}, s{sWave}, 1"), S(f"s_add_u32 s{sT1}, s{sT1}, 4")]
    out += lane_setup(w)
    out += [V(f"v_mbcnt_lo_u32_b32 v{w.tmp}, -1, 0"), V(f"v_mbcnt_hi_u32_b32 v{w.tmp}, -1, v{w.tmp}"), V(f"v_lshlrev_b32 v{w.tmp}, 4, v{w.tmp}")]
    for j in range(w.nq):
        out += [S(f"s_add_u32 s{sT2}, s{sT1}, {j}"), S(f"s_and_b32 s{sT3}, s{sT2}, 3"), S(f"s_lshl_b32 s{sT3}, s{sT3}, 5"),
                V(f"v_xor_b32 v{w.T+j}, s{sT3}, v{w.aT}"),
                S(f"s_lshr_b32 s{sT2}, s{sT2}, 2"), S(f"s_lshl_b32 s{sT2}, s{sT2}, 11"), S(f"s_add_u32 s{sT2}, s{sT2}, {XBUF[0]}"),
                V(f"v_add_u32 v{w.T+j}, s{sT2}, v{w.T+j}"),
                ds_read(2, w.q(0, j), w.T + j, 0, tr=True), ds_read(2, w.q(0, j) + 2, w.T + j, 10240, tr=True)]
    out += [S(f"s_mul_i32 s{sT2}, s2, 20"), S(f"s_add_u32 s{sT2}, s{sT2}, s{sT1}"), S(f"s_lshl_b32 s{sT2}, s{sT2}, 10"),
            S(f"s_add_u32 s{sT2}, s{sT2}, {WOT_OFF}")]
    for j in range(w.nq):
        out.append(bstore(4, w.q(0, j), w.tmp, sWS, f"s{sT2}", j * 1024))
    return out

def touches(w, first):
    out = []
    t = w.tmp + 1
    out += [V(f"v_mbcnt_lo_u32_b32 v{t}, -1, 0"), V(f"v_mbcnt_hi_u32_b32 v{t}, -1, v{t}"),
            V(f"v_lshrrev_b32 v{t+1}, 2, v{t}"), V(f"v_and_b32 v{t}, 3, v{t}"), V(f"v_lshlrev_b32 v{t}, 7, v{t}"),
            V(f"v_lshl_add_u32 v{t}, v{t+1}, 13, v{t}")]
    out += [S(f"s_and_b32 s{sT0}, s{sB}, 3"), S(f"s_lshl_b32 s{sT0}, s{sT0}, 2"), S(f"s_add_u32 s{sT0}, s{sT0}, s{sWave}"),
            S(f"s_mul_i32 s{sT0}, s{sT0}, {40*8192}"), S(f"s_lshl_b32 s{sT1}, s{sG}, 10"), S(f"s_add_u32 s{sT0}, s{sT0}, s{sT1}")]
    if not first: out.append(S(f"s_add_u32 s{sT0}, s{sT0}, 512"))
    for i in range(3):
        out.append(bload(1, w.dummy, t, sW, f"s{sT0}"))
        if i < 2: out.append(S(f"s_add_u32 s{sT0}, s{sT0}, {(16 if i == 0 else 8)*8192}"))
    out += [V(f"v_mbcnt_lo_u32_b32 v{t}, -1, 0"), V(f"v_mbcnt_hi_u32_b32 v{t}, -1, v{t}"), V(f"v_lshlrev_b32 v{t}, 7, v{t}"),
            S(f"s_mul_i32 s{sT0}, s{sB}, 204800"), S(f"s_mul_i32 s{sT1}, s{sG}, 25600"), S(f"s_add_u32 s{sT0}, s{sT0}, s{sT1}"),
            S(f"s_mul_i32 s{sT1}, s{sWave}, 5760"), S(f"s_add_u32 s{sT0}, s{sT0}, s{sT1}"),
            bload(1, w.dummy, t, sX, f"s{sT0}")]
    return out

def flat(G): return [i for g in G for i in g]

def gen_w3():
    w = Wave(3); nm = 24
    aN = [w.aN, w.aN + 1]; aT = [w.aT + i for i in range(4)]
    C = [label("L_w3")]
    C += lane_setup(w)
    C += [S(f"s_lshr_b32 s{sT0}, s{sWave}, 1"), S(f"s_and_b32 s{sT0}, s{sT0}, 1"), S(f"s_lshl_b32 s{sT0}, s{sT0}, 13"),
          S(f"s_and_b32 s{sT1}, s{sWave}, 1"), S(f"s_mul_i32 s{sT1}, s{sT1}, 6144"),
          S(f"s_sub_u32 s{sXd}, s{sT0}, s{sT1}"),
          S(f"s_mov_b32 s{sLdsWO}, s{sXd}"),
          S(f"s_add_u32 s{sT0}, s{sT0}, {W_SLOT0*SLOT}"), S(f"s_add_u32 s{sT1}, s{sT1}, {XBUF[0]}")]
    C += add_addr(aT, f"s{sT0}") + add_addr(aN, f"s{sT1}")
    if Cfg.startbar: C += [barrier()]
    if Cfg.touch: C += touches(w, True)
    C += voff_setup(w, 'kv')
    C += flat(dma_kv(w, 'K', 1, False, None)) + flat(dma_kv(w, 'K', 2, False, None))
    C, _ = finish(C)
    out = C
    def one(L): return [[i] for i in L]
    def wadv():
        return [S(f"s_add_u32 s{sCnt}, s{sCnt}, 1"), S(f"s_cmp_eq_u32 s{sCnt}, 3"), S(f"s_cselect_b32 s{sD}, {(-2*SLOT) & 0xffffffff:#x}, s68"),
                S(f"s_cselect_b32 s{sCnt}, 0, s{sCnt}")] + add_addr(aT, f"s{sD}")
    def xadv(): return add_addr(aN, f"s{sXd}") + [S(f"s_sub_u32 s{sXd}, 0, s{sXd}")]
    def qstage(s, zero=False, extra=()):
        p = s & 1
        adv_ = wadv() + (xadv() if p == 1 else []) + list(extra)
        L = [barrier()] + spread(q_mfmas(w, 1 - p, zero), [(q_reads(w, p, p), 0, 16), (one(adv_), 17, 22)]) + [wait(lgkm=0)]
        k = [i for i, c in enumerate(L) if c.kind == 'mfma'][Cfg.qcut]
        return L[:k], L[k:]
    C = [label("L_w3_round")] + stamp(w, 0) + [barrier()] + stamp(w, 1)
    C += flat(q_reads(w, 0, 0))
    C += voff_setup(w, 'kv')
    C += flat(dma_kv(w, 'K', 0, False, None)) + flat(dma_kv(w, 'V', 0, False, None))
    C += add_addr(aT, SLOT)
    C += [S(f"s_mov_b32 s{sCnt}, 1"), S(f"s_mov_b32 s{sXd}, 20480"), S(f"s_mov_b32 s{sLoop}, 8")]
    C += [wait(lgkm=0)]
    h1, t1 = qstage(1, zero=True); he, te = qstage(2); ho, to = qstage(3)
    C += h1 + t1 + he
    C, q = finish(C); out += C
    B = [label("L_w3_q")] + te + ho + to + he
    B += [S(f"s_sub_u32 s{sLoop}, s{sLoop}, 1"), S(f"s_cmp_lg_u32 s{sLoop}, 0"), branch("s_cbranch_scc1", "L_w3_q")]
    Bc, q2 = finish(B, q, pre=out[-12:]); Bc2, _ = finish(B, q2, pre=Bc[-12:])
    assert emit(Bc) == emit(Bc2)
    out += Bc
    curT = (W_SLOT0 + 2) * SLOT; curN = XBUF[0]
    h19, t19 = qstage(19, extra=add_addr(aN, f"s{sLdsWO}") + add_addr(aN, item_slot(kidx(0)) - curN) + add_addr(aT, item_slot(vidx(0)) - curT))
    C = te + h19 + t19
    C += stamp(w, 40) + [wait(vm=0), barrier()] + stamp(w, 41)
    k0 = frags_QK(w, 'zero')
    k1 = frags_QK(w, 'negm', pre=add_addr(aN, item_slot(kidx(1)) - item_slot(kidx(0))))
    w.fpos = 0
    C += stream(w, k0, 0, k1, lead=q_mfmas(w, 1, False), fillers=q_pack_fillers(w))
    C += first_max(w)
    C += stamp(w, 42) + [barrier()] + stamp(w, 43)
    C += flat(softmax_groups(w, 0)) + check_and_accum(w, 0, first=True, check=False)
    v0 = frags_PV(w, 0, zero=True)
    if Cfg.touch:
        C += [S(f"s_cmp_lg_u32 s{sRound}, 0"), branch("s_cbranch_scc1", "L_w3_notouch")] + touches(w, False) + [label("L_w3_notouch")]
    C += [S(f"s_mov_b32 s{sKpos}, {item_slot(kidx(1))}"), S(f"s_mov_b32 s{sVpos}, {item_slot(vidx(0))}"), S(f"s_mov_b32 s{sLoop}, 7")]
    C += stream(w, k1, Cfg.LA, v0)
    C += stamp(w, 44) + [barrier()] + stamp(w, 45)
    def adv(pos, rr):
        return [S(f"s_cmp_ge_u32 s{pos}, {LDS_BYTES - 2*SLOT}"), S(f"s_cselect_b32 s{sD}, {(2*SLOT - LDS_BYTES) & 0xffffffff:#x}, s69"),
                S(f"s_add_u32 s{pos}, s{pos}, s{sD}")] + add_addr(rr, f"s{sD}")
    def pv(par): return frags_PV(w, par, pre=adv(sVpos, aT))
    def qk(): return frags_QK(w, 'negm', pre=adv(sKpos, aN))
    C += stream(w, v0, Cfg.LA, qk(), fillers=[(softmax_groups(w, 1), 0, nm)])
    C += check_and_accum(w, 1)
    C, q = finish(C, q2, pre=out[-12:]); out += C
    B = [label("L_w3_a")]
    for par in (1, 0):
        B += stream(w, qk(), Cfg.LA, pv(par))
        B += [barrier()]
        B += stream(w, pv(par), Cfg.LA, qk(), fillers=[(softmax_groups(w, 1 - par), 0, nm)])
        B += check_and_accum(w, 1 - par)
    B += [S(f"s_sub_u32 s{sLoop}, s{sLoop}, 1"), S(f"s_cmp_lg_u32 s{sLoop}, 0"), branch("s_cbranch_scc1", "L_w3_a")]
    Bc, q2 = finish(B, q, pre=out[-12:]); Bc2, _ = finish(B, q2, pre=Bc[-12:])
    assert emit(Bc) == emit(Bc2)
    out += Bc
    C = stamp(w, 74)
    C += stream(w, pv(1), 0, [], fillers=epi_fillers(w))
    C += stamp(w, 75) + stamp(w, 77, True)
    curT = item_slot(vidx(15)); curN = item_slot(kidx(16))
    C += add_addr(aT, W_SLOT0 * SLOT - curT) + add_addr(aN, XBUF[0] - curN) + [V(f"v_subrev_u32 v{r}, s{sLdsWO}, v{r}") for r in aN]
    C += round_advance()
    C += [branch("s_cbranch_scc1", "L_w3_round")]
    C += [barrier()] + wo_tail(w) + [raw("s_endpgm")]
    C, q = finish(C, q2, pre=out[-12:]); out += C
    out += rare_routine(w, 0) + rare_routine(w, 1)
    return out

def round_advance():
    return [S(f"s_add_u32 s{sKVbase}, s{sKVbase}, 262144"), S(f"s_add_u32 s{sWbase}, s{sWbase}, 512"),
            S(f"s_add_u32 s{sOst}, s{sOst}, {8*10240}"), S(f"s_add_u32 s{sRound}, s{sRound}, 1"), S(f"s_cmp_lt_u32 s{sRound}, 2")]

def gen_w2():
    w = Wave(2); nm = 16
    aN = [w.aN, w.aN + 1]; aT = [w.aT + i for i in range(4)]
    sch = loader_schedule()
    def items(idx):
        G = []
        for kind, i, nx in sch[idx]:
            tag = (kind, i, nx)
            if Cfg.no_dma and not (kind == 'X' and nx and i == 0): continue
            if kind in 'KV': G += dma_kv(w, kind, i, nx, tag)
            elif kind == 'W': G += dma_w(w, i, nx, tag)
            elif kind == 'X':
                if nx and i == 0:
                    g = [S(f"s_cmp_lg_u32 s{sRound}, 0"), branch("s_cbranch_scc1", "L_w2_wo")] + flat(dma_x(w, i, tag)) + [label("L_w2_wo_back")]
                    G.append(g)
                else: G += dma_x(w, i, tag)
        return G
    pro = [label("L_w2")]
    if Cfg.prio == 1: pro += [raw("s_setprio 1")]
    addr0 = [S(f"s_lshr_b32 s{sT0}, s{sWave}, 1"), S(f"s_and_b32 s{sT0}, s{sT0}, 1"), S(f"s_lshl_b32 s{sT0}, s{sT0}, 13"),
            S(f"s_and_b32 s{sT1}, s{sWave}, 1"), S(f"s_lshl_b32 s{sT1}, s{sT1}, 12"), S(f"s_add_u32 s{sT1}, s{sT1}, {6*2048}"),
            S(f"s_sub_u32 s{sXd}, s{sT0}, s{sT1}"),
            S(f"s_add_u32 s{sT0}, s{sT0}, {W_SLOT0*SLOT}"), S(f"s_add_u32 s{sT1}, s{sT1}, {XBUF[0]}")]
    addr0 += add_addr(aT, f"s{sT0}") + add_addr(aN, f"s{sT1}")
    pro += voff_setup(w, 'all')
    pro += flat(dma_w(w, 0, False, ('W', 0, True))) + flat(dma_x(w, 0, ('X', 0, True))) + flat(dma_w(w, 1, False, ('W', 1, True))) \
        + flat(dma_w(w, 2, False, ('W', 2, True))) + flat(dma_x(w, 1, ('X', 1, True)))
    if Cfg.startbar: pro += [barrier()]
    pro += lane_setup(w) + addr0
    C = [label("L_w2_round")] + stamp(w, 76, True)
    def bar(idx, lgkm=None):
        b = wait(vm=63, lgkm=lgkm); b.tag = (('need', idx), lgkm)
        return stamp(w, 2 * idx) + [b, barrier()] + stamp(w, 2 * idx + 1)
    def one(L): return [[i] for i in L]
    prio = lambda p: [raw(f"s_setprio {p}")] if Cfg.prio == 2 else []
    curT = W_SLOT0 * SLOT; curN = XBUF[0]
    C += prio(1)
    for s in range(20):
        if s < 19:
            newT = (W_SLOT0 + (s + 1) % 3) * SLOT; newN = XBUF[((s + 1) >> 1) & 1]
            adv_ = add_addr(aT, newT - curT) + add_addr(aN, newN - curN); curT, curN = newT, newN
        else:
            adv_ = add_addr(aN, f"s{sXd}") + add_addr(aN, item_slot(kidx(0)) - curN) + add_addr(aT, item_slot(vidx(0)) - curT)
        C += bar(s, lgkm=0)
        if s == 0: C += flat(q_reads(w, 0, 0)) + flat(items(0)) + adv_
        else: C += spread(q_mfmas(w, (s - 1) & 1, s == 1), [(q_reads(w, s & 1, s & 1), 0, 10), (items(s), 0, nm - 2), (one(adv_), 11, 15)])
    C += bar(20, lgkm=0)
    def qk(t, fc='negm'): return frags_QK(w, fc, pre=add_addr(aN, item_slot(kidx(t)) - item_slot(kidx(t - 1))) if t else [])
    def pv(t): return frags_PV(w, t & 1, zero=(t == 0), pre=add_addr(aT, item_slot(vidx(t)) - item_slot(vidx(t - 1))) if t else [])
    w.fpos = 0
    C += stream(w, qk(0, 'zero'), 0, qk(1), lead=q_mfmas(w, 1, False), fillers=[(items(20), 0, 2 * nm)] + q_pack_fillers(w))
    C += first_max(w)
    C += flat(softmax_groups(w, 0)) + check_and_accum(w, 0, first=True, check=False)
    for t in range(15):
        C += prio(0)
        C += bar(21 + t)
        if 21 + t == 33:
            C += [S(f"s_cmp_lg_u32 s{sRound}, 0"), S(f"s_cselect_b32 s{sK+2}, 0, s{sK+2}"), S(f"s_cselect_b32 s{sW+2}, 0, s{sW+2}"),
                  S(f"s_cselect_b32 s{sX+2}, 0, s{sX+2}")]
        C += stream(w, qk(t + 1), Cfg.LA, pv(t), fillers=[(items(21 + t), 0, nm)])
        C += prio(1)
        C += stream(w, pv(t), Cfg.LA, qk(t + 2) if t < 14 else [], fillers=[(softmax_groups(w, (t + 1) & 1), 2, nm)])
        C += check_and_accum(w, (t + 1) & 1)
    C += prio(0)
    C += bar(36)
    C += flat(items(36))
    C += stamp(w, 74)
    C += stream(w, pv(15), 0, [], fillers=epi_fillers(w))
    C += stamp(w, 75) + stamp(w, 77, True)
    curT = item_slot(vidx(15)); curN = item_slot(kidx(15))
    C += add_addr(aT, W_SLOT0 * SLOT - curT) + add_addr(aN, XBUF[0] - curN) + [V(f"v_subrev_u32 v{r}, s{sXd}, v{r}") for r in aN]
    C += round_advance()
    C += [branch("s_cbranch_scc1", "L_w2_round")]
    def vm_ops(code): return [c for c in code if c.kind in ('dma', 'vload', 'vstore')]
    def resolve(prefix):
        res = {}
        q = [(c.tag[0], c.tag[1], 0) if c.tag and c.tag[0] != 'ost' and c.tag[2] else None for c in vm_ops(prefix)]
        for c in C:
            if c.kind in ('dma', 'vload', 'vstore'):
                q.append((c.tag[0], c.tag[1], 1 if c.tag[2] else 0) if c.tag[0] != 'ost' else None)
            elif c.kind == 'wait' and isinstance(c.tag[0], tuple):
                idx = c.tag[0][1]
                last = -1
                for k, it in enumerate(q):
                    if it is not None and it[2] == 0 and first_use(it[0], it[1]) <= idx: last = k
                res[idx] = min(63, len(q) - 1 - last)
        return res
    r1 = resolve(pro); r2 = resolve(C)
    for c in C:
        if c.kind == 'wait' and isinstance(c.tag[0], tuple):
            idx = c.tag[0][1]; n = min(r1[idx], r2[idx]); lg = c.tag[1]
            c.text = f"s_waitcnt vmcnt({n})" + (f" lgkmcnt({lg})" if lg is not None else ""); c.tag = (n, lg)
    C += [wait(vm=0), barrier()] + wo_tail(w)
    if Cfg.dbgst:
        C += [wait(vm=0), raw("s_memtime s[92:93]"), raw("s_memrealtime s[94:95]"), wait(lgkm=0)]
        C += srd(sK, 90, 256)
        C += [S(f"s_cmp_lg_u32 s{sWave}, 4"), branch("s_cbranch_scc1", "L_dbg_end"), S("s_mov_b64 exec, 1"), V("v_mov_b32 v0, 0")]
        C += [S("s_not_b32 s76, s76"), V("v_mov_b32 v1, s76"), raw(f"buffer_atomic_umax v1, v0, s[{sK}:{sK+3}], 0 offen"),
              V("v_mov_b32 v2, s94"), raw(f"buffer_atomic_umax v2, v0, s[{sK}:{sK+3}], 0 offen offset:4"),
              S("s_sub_u32 s92, s92, s74"), V("v_mov_b32 v3, s92"), raw(f"buffer_atomic_umax v3, v0, s[{sK}:{sK+3}], 0 offen offset:8")]
        C += [S("s_cmp_lg_u32 s2, 100"), branch("s_cbranch_scc1", "L_dbg_end"), bstore(1, 3, 0, sK, 0, 12)]
        for i in range(12):
            C += [S(f"s_sub_u32 s{78+i}, s{78+i}, s74"), V(f"v_mov_b32 v{4+i}, s{78+i}"), bstore(1, 4 + i, 0, sK, 0, 16 + 4 * i)]
        C += [label("L_dbg_end")]
    C += [raw("s_endpgm")]
    C += [label("L_w2_wo")] + flat(dma_wo(w, None)) + [branch("s_branch", "L_w2_wo_back")]
    pro, _ = finish(pro)
    C, q = finish(C, [], pre=pro[-12:])
    return pro + C + rare_routine(w, 0) + rare_routine(w, 1)

def srd(base, ptr, nbytes):
    return [S(f"s_mov_b32 s{base}, s{ptr}"), S(f"s_mov_b32 s{base+1}, s{ptr+1}"), S(f"s_mov_b32 s{base+2}, {nbytes}"), S(f"s_mov_b32 s{base+3}, 0x20000")]

def gen_k1(name):
    C = [raw(f".globl {name}\n.p2align 8\n.type {name},@function\n{name}:", 'label')]
    C += [S("s_cmp_lt_u32 s2, 256"), branch("s_cbranch_scc1", "L_k1_go"), raw("s_endpgm"), label("L_k1_go")]
    C += [raw("s_load_dwordx8 s[56:63], s[0:1], 0"), raw("s_load_dwordx2 s[64:65], s[0:1], 32"), raw("s_load_dwordx2 s[66:67], s[0:1], 56")]
    if Cfg.dbgst: C += [raw("s_memtime s[74:75]"), raw("s_memrealtime s[76:77]"), raw("s_load_dwordx2 s[90:91], s[0:1], 48")]
    C += [V("v_lshrrev_b32 v1, 6, v0"), V(f"v_readfirstlane_b32 s{sWave}, v1")]
    C += [S(f"s_and_b32 s{sB}, s2, 7"), S(f"s_lshl_b32 s{sB}, s{sB}, 2"), S(f"s_lshr_b32 s{sT0}, s2, 3"), S(f"s_and_b32 s{sT1}, s{sT0}, 3"),
          S(f"s_add_u32 s{sB}, s{sB}, s{sT1}"), S(f"s_lshr_b32 s{sG}, s{sT0}, 2"), S(f"s_mov_b32 s{sRound}, 0")]
    C += [S(f"s_lshr_b32 s{sT0}, s{sWave}, 1"), S(f"s_and_b32 s{sT0}, s{sT0}, 1"), S(f"s_and_b32 s{sT1}, s{sWave}, 1"),
          S(f"s_lshl_b32 s{sT2}, s{sG}, 2"), S(f"s_add_u32 s{sT2}, s{sT2}, s{sT0}"),
          S(f"s_lshl_b32 s{sWbase}, s{sT2}, 8"),
          S(f"s_lshl_b32 s{sT3}, s{sB}, 5"), S(f"s_add_u32 s{sT3}, s{sT3}, s{sT2}"), S(f"s_lshl_b32 s{sKVbase}, s{sT3}, 17"),
          S(f"s_mul_i32 s{sOst}, s{sT3}, 40960"),
          S(f"s_lshl_b32 s{sLdsKV}, s{sT0}, 13"), S(f"s_lshl_b32 s{sT2}, s{sT1}, 10"), S(f"s_add_u32 s{sLdsKV}, s{sLdsKV}, s{sT2}"),
          S(f"s_mul_i32 s{sLdsX}, s{sT0}, 10240"), S(f"s_add_u32 s{sLdsX}, s{sLdsX}, s{sT2}"), S(f"s_mov_b32 s{sLdsWO}, s{sLdsX}"),
          S(f"s_mul_i32 s{sXbase}, s{sB}, 204800"), S(f"s_mul_i32 s{sT2}, s{sT0}, 102400"), S(f"s_add_u32 s{sXbase}, s{sXbase}, s{sT2}"),
          S(f"s_lshr_b32 s{sT2}, s2, 1"), S(f"s_mul_i32 s{sWObase}, s{sT2}, 40960"), S(f"s_mul_i32 s{sT2}, s{sT0}, 20480"), S(f"s_add_u32 s{sWObase}, s{sWObase}, s{sT2}"),
          S(f"s_and_b32 s{sT2}, s2, 1"), S(f"s_mul_i32 s{sT2}, s{sT2}, 640"), S(f"s_add_u32 s{sWObase}, s{sWObase}, s{sT2}")]
    C += [S(f"s_mov_b32 s{sQS}, {f2u(QSCALE)}")]
    C += [S(f"s_mov_b32 s68, {SLOT}"), S(f"s_mov_b32 s69, {2*SLOT}")]
    C += [raw("s_waitcnt lgkmcnt(0)")]
    C += srd(sX, 56, 6553600) + srd(sK, 58, 134217728) + srd(sV, 60, 134217728) + srd(sW, 62, 5242880) + srd(sWO, 64, 5242880) + srd(sWS, 66, (128 << 20) if Cfg.stamps else WS_BYTES)
    if Cfg.stamps:
        C += [S(f"s_lshl_b32 s{sStamp+2}, s2, 3"), S(f"s_add_u32 s{sStamp+2}, s{sStamp+2}, s{sWave}"), S(f"s_lshl_b32 s{sStamp+2}, s{sStamp+2}, 10"),
              S(f"s_add_u32 s{sStamp+2}, s{sStamp+2}, {DBG_OFF}")]
    C += [S(f"s_cmp_ge_u32 s{sWave}, 4"), branch("s_cbranch_scc1", "L_k1_w2"),
          S(f"s_mul_i32 s{sT2}, s{sT1}, 3072"), S(f"s_add_u32 s{sOst}, s{sOst}, s{sT2}"), branch("s_branch", "L_w3"),
          label("L_k1_w2"), S(f"s_lshl_b32 s{sT2}, s{sT1}, 11"), S(f"s_add_u32 s{sT2}, s{sT2}, 6144"), S(f"s_add_u32 s{sOst}, s{sOst}, s{sT2}"),
          branch("s_branch", "L_w2")]
    C = fix_hazards(C)
    C += gen_w3() + gen_w2()
    for k, tag, par in CTX.stubs:
        C += [label(f"L_stub{k}"), raw(f"s_call_b64 s[{sRet}:{sRet+1}], L_rare_{tag}_{par}", 'branch'), branch("s_branch", f"L_back{k}")]
    return C

def gen_k2(name):
    DEPTH = 4
    vB, vA = 0, 10
    FR = 16
    tmp = FR + 60 * DEPTH
    def fB(st, jj): return FR + 60 * st + 4 * jj
    def fA(st, nn): return FR + 60 * st + 40 + 4 * nn
    def acc(jj, nn): return (jj * 5 + nn) * 4
    sOUT, sWS2 = 8, 12
    sSB, sSA = 20, 21
    C = [raw(f".globl {name}\n.p2align 8\n.type {name},@function\n{name}:", 'label')]
    C += [S("s_cmp_lt_u32 s2, 256"), branch("s_cbranch_scc1", "L_k2_go"), raw("s_endpgm"), label("L_k2_go")]
    C += [raw("s_load_dwordx2 s[4:5], s[0:1], 40"), raw("s_load_dwordx2 s[6:7], s[0:1], 56")]
    C += [V("v_lshrrev_b32 v16, 6, v0"), V("v_readfirstlane_b32 s16, v16"), V("v_and_b32 v15, 63, v0"), V("v_lshlrev_b32 v15, 4, v15")]
    C += [S("s_and_b32 s17, s2, 7"), S("s_lshl_b32 s17, s17, 2"), S("s_lshr_b32 s18, s2, 3"), S("s_and_b32 s19, s18, 3"),
          S("s_add_u32 s17, s17, s19"), S("s_lshr_b32 s18, s18, 2")]
    C += [S("s_and_b32 s22, s16, 1"), S("s_lshr_b32 s23, s16, 1")]
    C += [S("s_cmp_lg_u32 s23, 0")]
    for x in range(5): C.append(S(f"s_cselect_b32 s{40+x}, {4-x}, {x}"))
    C += [S("s_mul_i32 s24, s22, 5"), S("s_sub_u32 s25, 5, s24")]
    for x in range(5):
        C += [S(f"s_add_u32 s{30+x}, s{40+x}, s24"), S(f"s_add_u32 s{35+x}, s{40+x}, s25")]
    for jj in range(10): C += [S(f"s_lshl_b32 s26, s{30+jj}, 10"), V(f"v_add_u32 v{vB+jj}, s26, v15")]
    for nn in range(5): C += [S(f"s_lshl_b32 s26, s{40+nn}, 10"), V(f"v_add_u32 v{vA+nn}, s26, v15")]
    C += [S("s_lshl_b32 s26, s17, 7"), S("s_lshl_b32 s27, s16, 5"), S("s_add_u32 s26, s26, s27"), S(f"s_mul_i32 s{sSB}, s26, 10240"),
          S("s_mul_i32 s27, s27, 40960"), S("s_mul_i32 s26, s18, 5120"), S(f"s_add_u32 s{sSA}, s27, s26"), S(f"s_add_u32 s{sSA}, s{sSA}, {WOT_OFF}")]
    C += [raw("s_waitcnt lgkmcnt(0)")]
    C += srd(sOUT, 4, 6553600) + srd(sWS2, 6, (128 << 20) if Cfg.stamps else WS_BYTES)
    def loads(st):
        G = [[bload(4, fA(st, nn), vA + nn, sWS2, f"s{sSA}")] for nn in range(5)]
        G += [[bload(4, fB(st, jj), vB + jj, sWS2, f"s{sSB}")] for jj in range(10)]
        if Cfg.k2_noadv: G[-1] = G[-1] + [S(f"s_xor_b32 s{sSA}, s{sSA}, 65536"), S(f"s_xor_b32 s{sSB}, s{sSB}, 65536")]
        else: G[-1] = G[-1] + [S(f"s_add_u32 s{sSA}, s{sSA}, 40960"), S(f"s_add_u32 s{sSB}, s{sSB}, 10240")]
        return G
    def mms(st, zero):
        return [mfma(acc(jj, nn), fA(st, nn), fB(st, jj), None if zero else acc(jj, nn), df='a', cf='a') for jj in range(10) for nn in range(5)]
    def st2(k): return [raw(f"s_memtime s[{60+2*k}:{61+2*k}]"), wait(lgkm=0)] if Cfg.stamps else []
    C += st2(0)
    for st in range(DEPTH - 1): C += flat(loads(st))
    def step(ks, zero=False, load=True, vm=None):
        st = ks % DEPTH
        c = [wait(vm=15 * (DEPTH - 2) if vm is None else vm)]
        mm = mms(st, zero)
        if Cfg.k2_nomfma and load and not zero: mm = mm[:15]
        c += spread(mm, [(loads((ks - 1) % DEPTH), 0, Cfg.k2_span)] if load else [])
        return c
    C += step(0, zero=True)
    C += st2(1)
    C += [S("s_mov_b32 s28, 7")]
    C = fix_hazards(C)
    B = [label("L_k2_loop")]
    for u in range(DEPTH): B += step(1 + u)
    B += [S("s_sub_u32 s28, s28, 1"), S("s_cmp_lg_u32 s28, 0"), branch("s_cbranch_scc1", "L_k2_loop")]
    C += fix_hazards(B, pre=C[-12:])
    E = st2(2) + step(29, load=False, vm=30) + step(30, load=False, vm=15) + step(31, load=False, vm=0) + st2(3)
    lw = 16; lr = 17
    E += [S("s_mul_i32 s26, s16, 25600"), V(f"v_add_u32 v{lw}, s26, v15"), S("s_xor_b32 s27, s16, 1"), S("s_mul_i32 s26, s27, 25600"), V(f"v_add_u32 v{lr}, s26, v15")]
    E += [nop(7)]
    for i in range(25): E.append(ds_write(4, lw, acc(5, 0) + 4 * i, i * 1024, f='a'))
    E += [wait(lgkm=0), barrier()]
    RB = 32
    for i in range(25): E.append(ds_read(4, RB + 4 * i, lr, i * 1024))
    for i in range(25):
        for r in range(4):
            E.append(V(f"v_accvgpr_read_b32 v{RB+100+r}, a{4*i+r}"))
        for r in range(4):
            E.append(V(f"v_add_f32 v{RB+4*i+r}, v{RB+4*i+r}, v{RB+100+r}"))
    E += [wait(lgkm=0), barrier()]
    E += [S("s_xor_b32 s27, s16, 2"), S("s_mul_i32 s26, s27, 25600"), V(f"v_add_u32 v{lr}, s26, v15")]
    for i in range(12, 25): E.append(ds_write(4, lw, RB + 4 * i, (24 - i) * 1024))
    E += [wait(lgkm=0), barrier()]
    R2 = RB + 104
    for i in range(13): E.append(ds_read(4, R2 + 4 * i, lr, i * 1024))
    E += [V("v_lshrrev_b32 v18, 4, v15"), V("v_and_b32 v19, 15, v18"), V("v_lshrrev_b32 v18, 4, v18"),
          V("v_mul_u32_u24 v19, 1280, v19"), V("v_lshl_add_u32 v19, v18, 3, v19"),
          S("s_mul_i32 s26, s17, 204800"), S("s_mul_i32 s27, s18, 160"), S("s_add_u32 s26, s26, s27")]
    for i in range(13):
        jj, nn = divmod(i, 5)
        a = RB + 4 * i; b = R2 + 4 * i
        for r in range(4): E.append(V(f"v_add_f32 v{a+r}, v{a+r}, v{b+r}"))
        E += [V(f"v_cvt_pk_bf16_f32 v{a}, v{a}, v{a+1}"), V(f"v_cvt_pk_bf16_f32 v{a+1}, v{a+2}, v{a+3}"),
              S(f"s_mul_i32 s27, s{30+jj}, 20480"), S(f"s_lshl_b32 s29, s{40+nn}, 5"), S("s_add_u32 s27, s27, s29"), S("s_add_u32 s27, s27, s26"),
              bstore(2, a, 19, sOUT, "s27")]
    if Cfg.stamps:
        E += st2(4) + [wait(vm=0)] + st2(5)
        E += [S("s_lshl_b32 s26, s2, 2"), S("s_add_u32 s26, s26, s16"), S("s_lshl_b32 s26, s26, 5"), S(f"s_add_u32 s26, s26, {DBG_OFF + (4<<20)}"), V("v_mov_b32 v21, 0")]
        for k in range(6): E += [V(f"v_mov_b32 v20, s{60+2*k}"), bstore(1, 20, 21, sWS2, "s26", 4 * k)]
    E += [raw("s_endpgm")]
    E, _ = finish(E, [], pre=C[-12:])
    return C + E

def kd(name, vgpr, accum, sgpr=96):
    return f""".section .rodata,"a"
.p2align 6
.amdhsa_kernel {name}
  .amdhsa_next_free_vgpr {vgpr}
  .amdhsa_next_free_sgpr {sgpr}
  .amdhsa_accum_offset {accum}
  .amdhsa_group_segment_fixed_size 0
  .amdhsa_kernarg_size 64
  .amdhsa_user_sgpr_count 2
  .amdhsa_user_sgpr_kernarg_segment_ptr 1
  .amdhsa_system_sgpr_workgroup_id_x 1
.end_amdhsa_kernel
"""

HDR = open('standalone__mha_block_cached__near_ridge.s.ref').read().split('; Override launch')[0]
def main(path):
    k1, k2 = "mha_attn_kernel", "mha_oproj_kernel"
    s = HDR
    s += f"; @launch kernel={k1} grid=(256,1,1) block=(512,1,1) lds={LDS_BYTES}\n"
    s += f"; @launch kernel={k2} grid=(256,1,1) block=(256,1,1) lds=102400\n"
    s += '.amdgcn_target "amdgcn-amd-amdhsa--gfx950"\n.text\n'
    s += emit(gen_k1(k1)) + emit(gen_k2(k2))
    s += kd(k1, 256, 256) + kd(k2, 456, 256)
    open(path, 'w').write(s)
if __name__ == '__main__':
    for a in sys.argv[2:]:
        k, v = a.split('='); setattr(Cfg, k, eval(v))
    main(sys.argv[1] if len(sys.argv) > 1 else 'mha.s')
```

```python
import sys, math
from ir import *

SLOT = 16384
NSLOT = 10
W_SLOT0 = 4
XBUF = [114688, 135168]
LDS_BYTES = 163840
O_BYTES = 32 * 128 * 10 * 1024
WOT_OFF = O_BYTES
WOT_BYTES = 128 * 40 * 1024
WS_BYTES = O_BYTES + WOT_BYTES
QSCALE = math.log2(math.e) / math.sqrt(128.0)
THR = 16384.0
import struct
def f2u(x): return "0x%08x" % struct.unpack('<I', struct.pack('<f', x))[0]

sK, sV, sW, sX, sWS, sWO = 8, 12, 16, 20, 24, 28
sWave, sRound, sB, sG = 32, 33, 34, 35
sKVbase, sWbase, sXbase, sLdsKV, sLdsX = 36, 37, 38, 39, 40
sT0, sT1 = 41, 42
sKpos, sVpos, sD, sCnt, sXd, sLoop = 43, 44, 45, 49, 50, 51
sRet = 46
sOst = 48
sWObase, sLdsWO = 52, 53
sT2, sT3 = 54, 55
sQS = 73

DBG_OFF = 64 << 20
sStamp = 70
DSL = {1: 0, 7: 1, 41: 2, 45: 3, 73: 4, 75: 5}
def stamp(w, k, real=False):
    if Cfg.dbgst:
        if w.nq != 2 or k not in DSL or real: return []
        i = DSL[k]
        return [raw(f"s_memtime s[{sStamp}:{sStamp+1}]"), wait(lgkm=0), S(f"s_cmp_eq_u32 s{sRound}, 0"),
                S(f"s_cselect_b32 s{78+i}, s{sStamp}, s{78+i}"), S(f"s_mov_b32 s{84+i}, s{sStamp}")]
    if not Cfg.stamps: return []
    if Cfg.stamps == 2 and k not in (0, 75, 76, 77): return []
    if Cfg.stamps == 3 and k not in (0, 1, 7, 39, 41, 43, 45, 73, 75, 76, 77): return []
    return [raw(f"{'s_memrealtime' if real else 's_memtime'} s[{sStamp}:{sStamp+1}]"), wait(lgkm=0), V(f"v_mov_b32 v{w.tmp+1}, s{sStamp}"), V(f"v_mov_b32 v{w.tmp+2}, 0"),
            S(f"s_lshl_b32 s{sStamp+1}, s{sRound}, 9"), S(f"s_add_u32 s{sStamp+1}, s{sStamp+1}, s{sStamp+2}"),
            bstore(1, w.tmp + 1, w.tmp + 2, sWS, f"s{sStamp+1}", 4 * k, tag=('ost',))]

class Cfg:
    stamps = False
    dbgst = False
    LA = 4
    kv_pol = 'nt'
    touch = True
    qcut = 8
    prio = 2
    startbar = True
    no_sm = False
    no_dma = False
    no_exp = False
    no_chk = False
    no_ds = False
    no_adv = False
    k2_noadv = False
    k2_span = 45
    k2_nomfma = False

def item_slot(n): return (n % NSLOT) * SLOT
def kidx(t): return 0 if t == 0 else 2 * t - 1
def vidx(t): return 2 * t + 2

class Wave:
    def __init__(self, nq):
        self.nq = nq
        n = nq
        p = 0
        self.O = p; p += 32 * n
        self.Q = p; p += 16 * n
        self.NM = p; p += 4 * n
        self.S = p; p += 8 * n
        self.P = p; p += 8 * n
        self.L = p; p += n
        self.LT = p; p += n
        self.T = p; p += 4
        self.aN = p; p += 2
        self.aT = p; p += 4
        p = (p + 3) & ~3
        self.F = p; self.NF = 8; p += 32
        self.dummy = p; p += 1
        self.tmp = p; p += 3
        if nq == 2:
            self.vK = p; self.vV = p + 1; self.vW = p + 2; self.vX = p + 3; self.vWO = p + 4; p += 5
        else:
            self.vK = self.F; self.vV = self.F + 1
        assert p <= 256, p
        self.end = p
        setsz = 32 + 4 * n
        if nq == 3:
            self.set = [self.Q, self.S]
        else:
            q = (p + 3) & ~3
            self.set = [self.Q, q]
            assert q + setsz <= 256
        self.tag = f"w{nq}"
        self.fpos = 0
    def o(self, T, j): return self.O + (T * self.nq + j) * 4
    def q(self, s, j): return self.Q + (s * self.nq + j) * 4
    def nm(self, j): return self.NM + 4 * j
    def s(self, kb, j): return self.S + (kb * self.nq + j) * 4
    def p(self, par, j): return self.P + (par * self.nq + j) * 4
    def fa(self, st, T): return self.set[st] + 4 * T
    def fb(self, st, j): return self.set[st] + 32 + 4 * j

def spread(base, fillers):
    ins = [[] for _ in range(len(base) + 1)]
    for groups, lo, hi in fillers:
        n = len(groups)
        if n == 0: continue
        hi = min(hi, len(base)); lo = min(lo, hi)
        span = hi - lo
        for k, gI in enumerate(groups):
            pos = lo + (k * span) // n + 1 if span > 0 else lo
            ins[min(pos, len(base))].extend(gI)
    out = list(ins[0])
    for i, b in enumerate(base):
        out.append(b); out.extend(ins[i + 1])
    return out

def frag_K(w, s, kb, first_c):
    def reads(f): return [ds_read(4, f, w.aN + (s & 1), kb * 4096 + (s >> 1) * 2048)]
    def mf(f):
        out = []
        for j in range(w.nq):
            c = w.s(kb, j) if s > 0 else (None if first_c == 'zero' else w.nm(j))
            out.append(mfma(w.s(kb, j), f, w.q(s, j), c))
        return out
    return dict(reads=reads, mf=mf, pre=[])
def frags_QK(w, first_c='negm', pre=()):
    fr = [frag_K(w, s, kb, first_c) for s in range(4) for kb in range(2)]
    fr[0]['pre'] = list(pre)
    return fr
def frag_V(w, db, par, zero):
    def reads(f): return [ds_read(2, f + 2 * hh, w.aT + (db & 3), hh * 4096 + (db >> 2) * 2048, tr=True) for hh in range(2)]
    def mf(f): return [mfma(w.o(db, j), f, w.p(par, j), None if zero else w.o(db, j)) for j in range(w.nq)]
    return dict(reads=reads, mf=mf, pre=[])
def frags_PV(w, par, zero=False, pre=()):
    fr = [frag_V(w, db, par, zero) for db in range(8)]
    fr[0]['pre'] = list(pre)
    return fr

def stream(w, frags, preloaded, nxt, fillers=(), lead=()):
    LA = Cfg.LA
    allf = list(frags) + list(nxt[:LA])
    head = []
    def issue(i):
        f = allf[i]
        return ([] if Cfg.no_adv else list(f['pre'])) + ([] if Cfg.no_ds else f['reads'](w.F + 4 * ((w.fpos + i) % w.NF)))
    for i in range(preloaded, min(LA, len(allf))): head += issue(i)
    base = list(lead); extra = []
    for i, f in enumerate(frags):
        m = f['mf'](w.F + 4 * ((w.fpos + i) % w.NF))
        base += m
        post = []
        if i + LA < len(allf) and i + LA >= preloaded: post += issue(i + LA)
        if post: extra.append(([post], len(base) - 1, len(base)))
    body = spread(base, list(extra) + list(fillers))
    w.fpos = (w.fpos + len(frags)) % w.NF
    return head + body

def softmax_groups(w, par):
    G = []
    k = 0
    for kb in range(2):
        for j in range(w.nq):
            for h in range(2):
                t0 = w.T + 2 * (k & 1); t1 = t0 + 1; k += 1
                sr = w.s(kb, j) + 2 * h
                G.append([V(f"v_exp_f32 v{t0}, v{sr}")])
                G.append([V(f"v_exp_f32 v{t1}, v{sr+1}")])
                lt = w.LT + j
                if kb == 0 and h == 0:
                    G.append(('late', [V(f"v_add_f32 v{lt}, v{t0}, v{t1}"), V(f"v_cvt_pk_bf16_f32 v{w.p(par,j)+2*kb+h}, v{t0}, v{t1}")]))
                else:
                    G.append(('late', [V(f"v_add_f32 v{lt}, v{lt}, v{t0}"), V(f"v_cvt_pk_bf16_f32 v{w.p(par,j)+2*kb+h}, v{t0}, v{t1}"),
                                       V(f"v_add_f32 v{lt}, v{lt}, v{t1}")]))
    if Cfg.no_sm: return [[V(f"v_mov_b32 v{w.LT+j}, 1.0")] for j in range(w.nq)]
    if Cfg.no_exp:
        for gI in G:
            if not isinstance(gI, tuple): gI[0] = V(gI[0].text.replace('v_exp_f32', 'v_mov_b32'))
    out = []; pend = None
    for gI in G:
        if isinstance(gI, tuple):
            pend = gI[1]
        else:
            out.append(gI)
            if pend is not None:
                out.append(pend); pend = None
    if pend is not None: out.append(pend)
    return out

class Ctx:
    def __init__(self): self.stubs = []; self.n = 0
CTX = Ctx()

def check_and_accum(w, par, first=False, check=True):
    out = []
    if Cfg.no_chk: return out
    if check:
        if w.nq == 3:
            out.append(V(f"v_max3_f32 v{w.tmp}, v{w.LT}, v{w.LT+1}, v{w.LT+2}"))
        else:
            out.append(V(f"v_max_f32 v{w.tmp}, v{w.LT}, v{w.LT+1}"))
        out.append(I(f"v_cmp_nge_f32 vcc, {f2u(THR)}, v{w.tmp}", 'valu', wr={('s', 'vcc')}, rd=regs(w.tmp)))
        k = CTX.n; CTX.n += 1
        out.append(branch("s_cbranch_vccnz", f"L_stub{k}"))
        out.append(label(f"L_back{k}"))
        CTX.stubs.append((k, w.tag, par))
    for j in range(w.nq):
        if first: out.append(V(f"v_mov_b32 v{w.L+j}, v{w.LT+j}"))
        else: out.append(V(f"v_add_f32 v{w.L+j}, v{w.L+j}, v{w.LT+j}"))
    return out

def xlane(op, r, t):
    return [V(f"v_mov_b32 v{t}, v{r}"), V(f"v_permlane32_swap_b32 v{r}, v{t}"), V(f"{op} v{r}, v{r}, v{t}"),
            V(f"v_mov_b32 v{t}, v{r}"), V(f"v_permlane16_swap_b32 v{r}, v{t}"), V(f"{op} v{r}, v{r}, v{t}")]

def tile_max(w, j, dst):
    a, b = w.s(0, j), w.s(1, j)
    return [V(f"v_max3_f32 v{dst}, v{a}, v{a+1}, v{a+2}"), V(f"v_max3_f32 v{dst}, v{dst}, v{a+3}, v{b}"),
            V(f"v_max3_f32 v{dst}, v{dst}, v{b+1}, v{b+2}"), V(f"v_max_f32 v{dst}, v{dst}, v{b+3}")]

def first_max(w):
    out = []
    for j in range(w.nq): out += tile_max(w, j, w.LT + j)
    seqs = [xlane("v_max_f32", w.LT + j, w.T + j) for j in range(w.nq)]
    for k in range(6):
        for sq in seqs: out.append(sq[k])
    for j in range(w.nq):
        for r in range(4): out.append(V(f"v_sub_f32 v{w.nm(j)+r}, 0, v{w.LT+j}"))
        for kb in range(2):
            for r in range(4): out.append(V(f"v_sub_f32 v{w.s(kb,j)+r}, v{w.s(kb,j)+r}, v{w.LT+j}"))
    return out

def rare_routine(w, par):
    out = [label(f"L_rare_{w.tag}_{par}"), nop(15)]
    for j in range(w.nq):
        d = w.LT + j; f = w.T + 1
        out += tile_max(w, j, d)
        out += xlane("v_max_f32", d, w.T)
        out.append(V(f"v_max_f32 v{d}, 0, v{d}"))
        out.append(V(f"v_sub_f32 v{f}, 0, v{d}"))
        out.append(V(f"v_exp_f32 v{f}, v{f}"))
        for r in range(4): out.append(V(f"v_sub_f32 v{w.nm(j)+r}, v{w.nm(j)+r}, v{d}"))
        for kb in range(2):
            for r in range(4): out.append(V(f"v_sub_f32 v{w.s(kb,j)+r}, v{w.s(kb,j)+r}, v{d}"))
        out.append(V(f"v_mul_f32 v{w.L+j}, v{w.L+j}, v{f}"))
        for T in range(8):
            for r in range(4): out.append(V(f"v_mul_f32 v{w.o(T,j)+r}, v{w.o(T,j)+r}, v{f}"))
    for gI in softmax_groups(w, par): out += gI
    out.append(nop(3))
    out.append(raw(f"s_setpc_b64 s[{sRet}:{sRet+1}]", 'branch'))
    return fix_hazards(out)

def q_reads(w, st, sl):
    G = []
    for j in range(w.nq): G.append([ds_read(4, w.fb(st, j), w.aN + sl, j * 2048)])
    for T in range(8):
        for hh in range(2):
            G.append([ds_read(2, w.fa(st, T) + 2 * hh, w.aT + (T & 3), hh * 4096 + (T >> 2) * 2048, tr=True)])
    return G
def q_mfmas(w, st, zero):
    return [mfma(w.o(T, j), w.fa(st, T), w.fb(st, j), None if zero else w.o(T, j)) for T in range(8) for j in range(w.nq)]

def q_pack_groups(w, s):
    G = []
    for j in range(w.nq):
        for half in range(2):
            a = w.o(2 * s + half, j)
            for r in range(4): G.append([V(f"v_mul_f32 v{a+r}, s{sQS}, v{a+r}")])
            G.append([V(f"v_cvt_pk_bf16_f32 v{w.q(s,j)+2*half}, v{a}, v{a+1}")])
            G.append([V(f"v_cvt_pk_bf16_f32 v{w.q(s,j)+2*half+1}, v{a+2}, v{a+3}")])
    for op in ("v_permlane32_swap_b32", "v_permlane16_swap_b32"):
        for j in range(w.nq):
            q = w.q(s, j)
            G.append([V(f"{op} v{q}, v{q+2}")]); G.append([V(f"{op} v{q+1}, v{q+3}")])
    return G
def q_pack_fillers(w):
    n = w.nq
    rng = [(2 * n + 2, 5 * n), (5 * n, 8 * n), (8 * n, 11 * n), (11 * n, 14 * n - 1)]
    return [(q_pack_groups(w, s), rng[s][0], rng[s][1]) for s in range(4)]

def l_reduce(w):
    out = []
    seqs = [xlane("v_add_f32", w.L + j, w.T + j) for j in range(w.nq)]
    for k in range(6):
        for sq in seqs: out.append(sq[k])
    for j in range(w.nq): out.append(V(f"v_rcp_f32 v{w.L+j}, v{w.L+j}"))
    out += [V(f"v_mbcnt_lo_u32_b32 v{w.tmp}, -1, 0"), V(f"v_mbcnt_hi_u32_b32 v{w.tmp}, -1, v{w.tmp}"), V(f"v_lshlrev_b32 v{w.tmp}, 4, v{w.tmp}")]
    return out
def epi_groups(w, s):
    G = []
    for j in range(w.nq):
        d = w.q(s, j)
        for half in range(2):
            a = w.o(2 * s + half, j)
            for r in range(4): G.append([V(f"v_mul_f32 v{a+r}, v{a+r}, v{w.L+j}")])
            G.append([V(f"v_cvt_pk_bf16_f32 v{d+2*half}, v{a}, v{a+1}")])
            G.append([V(f"v_cvt_pk_bf16_f32 v{d+2*half+1}, v{a+2}, v{a+3}")])
        G.append([S(f"s_add_u32 s{sT1}, s{sOst}, {s*10240}"), bstore(4, d, w.tmp, sWS, f"s{sT1}", j * 1024, tag=('ost',))])
    return G
def epi_fillers(w):
    n = w.nq
    rng = [(2 * n + 2, 4 * n + 2), (4 * n + 2, 6 * n + 2), (6 * n + 2, 8 * n), (8 * n, 8 * n)]
    return [([[i] for i in l_reduce(w)], 0, 2 * n + 1)] + [(epi_groups(w, s), rng[s][0], rng[s][1]) for s in range(4)]

def dma_kv(w, kind, t, nxt_round, tag):
    srd = sK if kind == 'K' else sV
    voff = w.vK if kind == 'K' else w.vV
    n = kidx(t) if kind == 'K' else vidx(t)
    lds = item_slot(n)
    goff = t * 8192 + (262144 if nxt_round else 0)
    G = []
    for a in range(2):
        g = [S(f"s_add_u32 s{sT0}, s{sKVbase}, {goff + a*4096}")]
        for seg in range(2):
            g2 = [S(f"s_add_u32 m0, s{sLdsKV}, {lds + a*4096 + seg*2048 - seg*128}"),
                  dma(voff, srd, f"s{sT0}", seg * 128, Cfg.kv_pol, tag=tag)]
            G.append(g + g2); g = []
    return G
def dma_w(w, s, nxt_round, tag):
    lds = (W_SLOT0 + s % 3) * SLOT
    goff = s * 32 * 8192 + (512 if nxt_round else 0)
    G = []
    for hh in range(2):
        g = [S(f"s_add_u32 s{sT0}, s{sWbase}, {goff + hh*32768}")]
        for seg in range(2):
            g2 = [S(f"s_add_u32 m0, s{sLdsKV}, {lds + hh*4096 + seg*2048 - seg*128}"),
                  dma(w.vW, sW, f"s{sT0}", seg * 128, tag=tag)]
            G.append(g + g2); g = []
    return G
def dma_x(w, u, tag):
    G = []
    for i in range(5):
        G.append([S(f"s_add_u32 s{sT0}, s{sXbase}, {i*20480 + u*128}"),
                  S(f"s_add_u32 m0, s{sLdsX}, {XBUF[u&1] + i*2048}"),
                  dma(w.vX, sX, f"s{sT0}", 0, tag=tag)])
    return G
def dma_wo(w, tag):
    G = []
    for seg in range(5):
        G.append([S(f"s_add_u32 m0, s{sLdsWO}, {XBUF[0] + seg*2048 - seg*128}"),
                  dma(w.vWO, sWO, f"s{sWObase}", seg * 128, tag=tag)])
    return G

def loader_schedule():
    sch = {i: [] for i in range(37)}
    for s in range(3, 20): sch[s - 2].append(('W', s, False))
    for u in range(2, 10): sch[2 * u - 2].append(('X', u, False))
    names = {}
    for t in range(16):
        names[kidx(t)] = ('K', t); names[vidx(t)] = ('V', t)
    first = {6: 18, 7: 18, 4: 19, 5: 20, 8: 20, 9: 20}
    for n in (6, 7, 4, 5, 8, 9): sch[first[n]].append(names[n] + (False,))
    for n in range(10, 33):
        if n not in names: continue
        k, t = names[n - 10]
        last = (20 + t) if k == 'K' else min(22 + t, 36)
        sch[last + 1].append(names[n] + (False,))
    sch[33] += [('K', 1, True), ('K', 2, True)]
    sch[34] += [('W', 0, True), ('W', 1, True)]
    sch[35] += [('W', 2, True)]
    sch[36] += [('X', 0, True), ('X', 1, True)]
    return sch
def first_use(kind, i):
    if kind == 'W': return i
    if kind == 'X': return 2 * i
    if kind == 'K': return 20 if i == 0 else 19 + i
    if kind == 'V': return 21 + i

def lane_setup(w):
    t = w.F + 8
    lane, i16, g, a, b, c = t, t + 1, t + 2, t + 3, t + 4, t + 5
    o = [V(f"v_mbcnt_lo_u32_b32 v{lane}, -1, 0"), V(f"v_mbcnt_hi_u32_b32 v{lane}, -1, v{lane}"),
         V(f"v_and_b32 v{i16}, 15, v{lane}"), V(f"v_lshrrev_b32 v{g}, 4, v{lane}")]
    o += [V(f"v_lshrrev_b32 v{a}, 1, v{i16}"), V(f"v_xor_b32 v{a}, v{a}, v{g}"), V(f"v_lshlrev_b32 v{a}, 4, v{a}"),
          V(f"v_lshl_add_u32 v{w.aN}, v{i16}, 7, v{a}"), V(f"v_xor_b32 v{w.aN+1}, 64, v{w.aN}")]
    o += [V(f"v_lshrrev_b32 v{a}, 2, v{lane}"),
          V(f"v_and_b32 v{b}, 6, v{a}"),
          V(f"v_bfe_u32 v{c}, v{lane}, 1, 1"), V(f"v_xor_b32 v{b}, v{b}, v{c}"), V(f"v_lshlrev_b32 v{b}, 4, v{b}"),
          V(f"v_lshl_add_u32 v{b}, v{a}, 7, v{b}"),
          V(f"v_and_b32 v{c}, 1, v{lane}"), V(f"v_lshl_add_u32 v{w.aT}, v{c}, 3, v{b}")]
    for dq in range(1, 4): o.append(V(f"v_xor_b32 v{w.aT+dq}, {dq<<5}, v{w.aT}"))
    return o
def voff_setup(w, which):
    t = w.F + 8
    lane, r8, p, a, b, row = t, t + 1, t + 2, t + 3, t + 4, t + 5
    o = [S(f"s_and_b32 s{sT1}, s{sWave}, 1"), S(f"s_lshl_b32 s{sT2}, s{sT1}, 3"), S(f"s_lshl_b32 s{sT3}, s{sT1}, 2"),
         V(f"v_mbcnt_lo_u32_b32 v{lane}, -1, 0"), V(f"v_mbcnt_hi_u32_b32 v{lane}, -1, v{lane}"),
         V(f"v_lshrrev_b32 v{r8}, 3, v{lane}"), V(f"v_and_b32 v{p}, 7, v{lane}"),
         V(f"v_add_u32 v{row}, s{sT2}, v{r8}"),
         V(f"v_lshrrev_b32 v{a}, 1, v{r8}"), V(f"v_or_b32 v{a}, s{sT3}, v{a}"), V(f"v_xor_b32 v{a}, v{a}, v{p}"), V(f"v_lshlrev_b32 v{a}, 4, v{a}"),
         V(f"v_and_b32 v{b}, 6, v{r8}"), V(f"v_xor_b32 v{b}, v{b}, v{p}"), V(f"v_lshlrev_b32 v{b}, 4, v{b}")]
    o += [V(f"v_lshl_add_u32 v{w.vK}, v{row}, 8, v{a}"), V(f"v_lshl_add_u32 v{w.vV}, v{row}, 8, v{b}")]
    if which == 'all':
        o += [V(f"v_mul_u32_u24 v{p}, 1280, v{row}"), V(f"v_add_u32 v{w.vX}, v{p}, v{a}"), V(f"v_add_u32 v{w.vWO}, v{p}, v{b}")]
        o += [V(f"v_and_b32 v{p}, 4, v{r8}"), V(f"v_add_u32 v{p}, v{p}, v{r8}"), S(f"s_lshl_b32 s{sT2}, s{sT1}, 4"), V(f"v_add_u32 v{p}, s{sT2}, v{p}"),
              V(f"v_lshl_add_u32 v{w.vW}, v{p}, 13, v{b}")]
    return o

def add_addr(regs_, delta):
    if delta == 0: return []
    if isinstance(delta, str): return [V(f"v_add_u32 v{r}, {delta}, v{r}") for r in regs_]
    return [V(f"v_add_u32 v{r}, {delta & 0xffffffff:#x}, v{r}") for r in regs_]

def finish(code, pending=None, pre=()):
    c, q = add_lgkm_waits(code, pending)
    return fix_hazards(c, pre), q

def wo_tail(w):
    out = []
    if w.nq == 3: out.append(S(f"s_mul_i32 s{sT1}, s{sWave}, 3"))
    else: out += [S(f"s_lshl_b32 s{sT1}, s{sWave}, 1"), S(f"s_add_u32 s{sT1}, s{sT1}, 4")]
    out += lane_setup(w)
    out += [V(f"v_mbcnt_lo_u32_b32 v{w.tmp}, -1, 0"), V(f"v_mbcnt_hi_u32_b32 v{w.tmp}, -1, v{w.tmp}"), V(f"v_lshlrev_b32 v{w.tmp}, 4, v{w.tmp}")]
    for j in range(w.nq):
        out += [S(f"s_add_u32 s{sT2}, s{sT1}, {j}"), S(f"s_and_b32 s{sT3}, s{sT2}, 3"), S(f"s_lshl_b32 s{sT3}, s{sT3}, 5"),
                V(f"v_xor_b32 v{w.T+j}, s{sT3}, v{w.aT}"),
                S(f"s_lshr_b32 s{sT2}, s{sT2}, 2"), S(f"s_lshl_b32 s{sT2}, s{sT2}, 11"), S(f"s_add_u32 s{sT2}, s{sT2}, {XBUF[0]}"),
                V(f"v_add_u32 v{w.T+j}, s{sT2}, v{w.T+j}"),
                ds_read(2, w.q(0, j), w.T + j, 0, tr=True), ds_read(2, w.q(0, j) + 2, w.T + j, 10240, tr=True)]
    out += [S(f"s_mul_i32 s{sT2}, s2, 20"), S(f"s_add_u32 s{sT2}, s{sT2}, s{sT1}"), S(f"s_lshl_b32 s{sT2}, s{sT2}, 10"),
            S(f"s_add_u32 s{sT2}, s{sT2}, {WOT_OFF}")]
    for j in range(w.nq):
        out.append(bstore(4, w.q(0, j), w.tmp, sWS, f"s{sT2}", j * 1024))
    return out

def touches(w, first):
    out = []
    t = w.tmp + 1
    out += [V(f"v_mbcnt_lo_u32_b32 v{t}, -1, 0"), V(f"v_mbcnt_hi_u32_b32 v{t}, -1, v{t}"),
            V(f"v_lshrrev_b32 v{t+1}, 2, v{t}"), V(f"v_and_b32 v{t}, 3, v{t}"), V(f"v_lshlrev_b32 v{t}, 7, v{t}"),
            V(f"v_lshl_add_u32 v{t}, v{t+1}, 13, v{t}")]
    out += [S(f"s_and_b32 s{sT0}, s{sB}, 3"), S(f"s_lshl_b32 s{sT0}, s{sT0}, 2"), S(f"s_add_u32 s{sT0}, s{sT0}, s{sWave}"),
            S(f"s_mul_i32 s{sT0}, s{sT0}, {40*8192}"), S(f"s_lshl_b32 s{sT1}, s{sG}, 10"), S(f"s_add_u32 s{sT0}, s{sT0}, s{sT1}")]
    if not first: out.append(S(f"s_add_u32 s{sT0}, s{sT0}, 512"))
    for i in range(3):
        out.append(bload(1, w.dummy, t, sW, f"s{sT0}"))
        if i < 2: out.append(S(f"s_add_u32 s{sT0}, s{sT0}, {(16 if i == 0 else 8)*8192}"))
    out += [V(f"v_mbcnt_lo_u32_b32 v{t}, -1, 0"), V(f"v_mbcnt_hi_u32_b32 v{t}, -1, v{t}"), V(f"v_lshlrev_b32 v{t}, 7, v{t}"),
            S(f"s_mul_i32 s{sT0}, s{sB}, 204800"), S(f"s_mul_i32 s{sT1}, s{sG}, 25600"), S(f"s_add_u32 s{sT0}, s{sT0}, s{sT1}"),
            S(f"s_mul_i32 s{sT1}, s{sWave}, 5760"), S(f"s_add_u32 s{sT0}, s{sT0}, s{sT1}"),
            bload(1, w.dummy, t, sX, f"s{sT0}")]
    return out

def flat(G): return [i for g in G for i in g]

def gen_w3():
    w = Wave(3); nm = 24
    aN = [w.aN, w.aN + 1]; aT = [w.aT + i for i in range(4)]
    C = [label("L_w3")]
    C += lane_setup(w)
    C += [S(f"s_lshr_b32 s{sT0}, s{sWave}, 1"), S(f"s_and_b32 s{sT0}, s{sT0}, 1"), S(f"s_lshl_b32 s{sT0}, s{sT0}, 13"),
          S(f"s_and_b32 s{sT1}, s{sWave}, 1"), S(f"s_mul_i32 s{sT1}, s{sT1}, 6144"),
          S(f"s_sub_u32 s{sXd}, s{sT0}, s{sT1}"),
          S(f"s_mov_b32 s{sLdsWO}, s{sXd}"),
          S(f"s_add_u32 s{sT0}, s{sT0}, {W_SLOT0*SLOT}"), S(f"s_add_u32 s{sT1}, s{sT1}, {XBUF[0]}")]
    C += add_addr(aT, f"s{sT0}") + add_addr(aN, f"s{sT1}")
    if Cfg.startbar: C += [barrier()]
    if Cfg.touch: C += touches(w, True)
    C += voff_setup(w, 'kv')
    C += flat(dma_kv(w, 'K', 1, False, None)) + flat(dma_kv(w, 'K', 2, False, None))
    C, _ = finish(C)
    out = C
    def one(L): return [[i] for i in L]
    def wadv():
        return [S(f"s_add_u32 s{sCnt}, s{sCnt}, 1"), S(f"s_cmp_eq_u32 s{sCnt}, 3"), S(f"s_cselect_b32 s{sD}, {(-2*SLOT) & 0xffffffff:#x}, s68"),
                S(f"s_cselect_b32 s{sCnt}, 0, s{sCnt}")] + add_addr(aT, f"s{sD}")
    def xadv(): return add_addr(aN, f"s{sXd}") + [S(f"s_sub_u32 s{sXd}, 0, s{sXd}")]
    def qstage(s, zero=False, extra=()):
        p = s & 1
        adv_ = wadv() + (xadv() if p == 1 else []) + list(extra)
        L = [barrier()] + spread(q_mfmas(w, 1 - p, zero), [(q_reads(w, p, p), 0, 16), (one(adv_), 17, 22)]) + [wait(lgkm=0)]
        k = [i for i, c in enumerate(L) if c.kind == 'mfma'][Cfg.qcut]
        return L[:k], L[k:]
    C = [label("L_w3_round")] + stamp(w, 0) + [barrier()] + stamp(w, 1)
    C += flat(q_reads(w, 0, 0))
    C += voff_setup(w, 'kv')
    C += flat(dma_kv(w, 'K', 0, False, None)) + flat(dma_kv(w, 'V', 0, False, None))
    C += add_addr(aT, SLOT)
    C += [S(f"s_mov_b32 s{sCnt}, 1"), S(f"s_mov_b32 s{sXd}, 20480"), S(f"s_mov_b32 s{sLoop}, 8")]
    C += [wait(lgkm=0)]
    h1, t1 = qstage(1, zero=True); he, te = qstage(2); ho, to = qstage(3)
    C += h1 + t1 + he
    C, q = finish(C); out += C
    B = [label("L_w3_q")] + te + ho + to + he
    B += [S(f"s_sub_u32 s{sLoop}, s{sLoop}, 1"), S(f"s_cmp_lg_u32 s{sLoop}, 0"), branch("s_cbranch_scc1", "L_w3_q")]
    Bc, q2 = finish(B, q, pre=out[-12:]); Bc2, _ = finish(B, q2, pre=Bc[-12:])
    assert emit(Bc) == emit(Bc2)
    out += Bc
    curT = (W_SLOT0 + 2) * SLOT; curN = XBUF[0]
    h19, t19 = qstage(19, extra=add_addr(aN, f"s{sLdsWO}") + add_addr(aN, item_slot(kidx(0)) - curN) + add_addr(aT, item_slot(vidx(0)) - curT))
    C = te + h19 + t19
    C += stamp(w, 40) + [wait(vm=0), barrier()] + stamp(w, 41)
    k0 = frags_QK(w, 'zero')
    k1 = frags_QK(w, 'negm', pre=add_addr(aN, item_slot(kidx(1)) - item_slot(kidx(0))))
    w.fpos = 0
    C += stream(w, k0, 0, k1, lead=q_mfmas(w, 1, False), fillers=q_pack_fillers(w))
    C += first_max(w)
    C += stamp(w, 42) + [barrier()] + stamp(w, 43)
    C += flat(softmax_groups(w, 0)) + check_and_accum(w, 0, first=True, check=False)
    v0 = frags_PV(w, 0, zero=True)
    if Cfg.touch:
        C += [S(f"s_cmp_lg_u32 s{sRound}, 0"), branch("s_cbranch_scc1", "L_w3_notouch")] + touches(w, False) + [label("L_w3_notouch")]
    C += [S(f"s_mov_b32 s{sKpos}, {item_slot(kidx(1))}"), S(f"s_mov_b32 s{sVpos}, {item_slot(vidx(0))}"), S(f"s_mov_b32 s{sLoop}, 7")]
    C += stream(w, k1, Cfg.LA, v0)
    C += stamp(w, 44) + [barrier()] + stamp(w, 45)
    def adv(pos, rr):
        return [S(f"s_cmp_ge_u32 s{pos}, {LDS_BYTES - 2*SLOT}"), S(f"s_cselect_b32 s{sD}, {(2*SLOT - LDS_BYTES) & 0xffffffff:#x}, s69"),
                S(f"s_add_u32 s{pos}, s{pos}, s{sD}")] + add_addr(rr, f"s{sD}")
    def pv(par): return frags_PV(w, par, pre=adv(sVpos, aT))
    def qk(): return frags_QK(w, 'negm', pre=adv(sKpos, aN))
    C += stream(w, v0, Cfg.LA, qk(), fillers=[(softmax_groups(w, 1), 0, nm)])
    C += check_and_accum(w, 1)
    C, q = finish(C, q2, pre=out[-12:]); out += C
    B = [label("L_w3_a")]
    for par in (1, 0):
        B += stream(w, qk(), Cfg.LA, pv(par))
        B += [barrier()]
        B += stream(w, pv(par), Cfg.LA, qk(), fillers=[(softmax_groups(w, 1 - par), 0, nm)])
        B += check_and_accum(w, 1 - par)
    B += [S(f"s_sub_u32 s{sLoop}, s{sLoop}, 1"), S(f"s_cmp_lg_u32 s{sLoop}, 0"), branch("s_cbranch_scc1", "L_w3_a")]
    Bc, q2 = finish(B, q, pre=out[-12:]); Bc2, _ = finish(B, q2, pre=Bc[-12:])
    assert emit(Bc) == emit(Bc2)
    out += Bc
    C = stamp(w, 74)
    C += stream(w, pv(1), 0, [], fillers=epi_fillers(w))
    C += stamp(w, 75) + stamp(w, 77, True)
    curT = item_slot(vidx(15)); curN = item_slot(kidx(16))
    C += add_addr(aT, W_SLOT0 * SLOT - curT) + add_addr(aN, XBUF[0] - curN) + [V(f"v_subrev_u32 v{r}, s{sLdsWO}, v{r}") for r in aN]
    C += round_advance()
    C += [branch("s_cbranch_scc1", "L_w3_round")]
    C += [barrier()] + wo_tail(w) + [raw("s_endpgm")]
    C, q = finish(C, q2, pre=out[-12:]); out += C
    out += rare_routine(w, 0) + rare_routine(w, 1)
    return out

def round_advance():
    return [S(f"s_add_u32 s{sKVbase}, s{sKVbase}, 262144"), S(f"s_add_u32 s{sWbase}, s{sWbase}, 512"),
            S(f"s_add_u32 s{sOst}, s{sOst}, {8*10240}"), S(f"s_add_u32 s{sRound}, s{sRound}, 1"), S(f"s_cmp_lt_u32 s{sRound}, 2")]

def gen_w2():
    w = Wave(2); nm = 16
    aN = [w.aN, w.aN + 1]; aT = [w.aT + i for i in range(4)]
    sch = loader_schedule()
    def items(idx):
        G = []
        for kind, i, nx in sch[idx]:
            tag = (kind, i, nx)
            if Cfg.no_dma and not (kind == 'X' and nx and i == 0): continue
            if kind in 'KV': G += dma_kv(w, kind, i, nx, tag)
            elif kind == 'W': G += dma_w(w, i, nx, tag)
            elif kind == 'X':
                if nx and i == 0:
                    g = [S(f"s_cmp_lg_u32 s{sRound}, 0"), branch("s_cbranch_scc1", "L_w2_wo")] + flat(dma_x(w, i, tag)) + [label("L_w2_wo_back")]
                    G.append(g)
                else: G += dma_x(w, i, tag)
        return G
    pro = [label("L_w2")]
    if Cfg.prio == 1: pro += [raw("s_setprio 1")]
    addr0 = [S(f"s_lshr_b32 s{sT0}, s{sWave}, 1"), S(f"s_and_b32 s{sT0}, s{sT0}, 1"), S(f"s_lshl_b32 s{sT0}, s{sT0}, 13"),
            S(f"s_and_b32 s{sT1}, s{sWave}, 1"), S(f"s_lshl_b32 s{sT1}, s{sT1}, 12"), S(f"s_add_u32 s{sT1}, s{sT1}, {6*2048}"),
            S(f"s_sub_u32 s{sXd}, s{sT0}, s{sT1}"),
            S(f"s_add_u32 s{sT0}, s{sT0}, {W_SLOT0*SLOT}"), S(f"s_add_u32 s{sT1}, s{sT1}, {XBUF[0]}")]
    addr0 += add_addr(aT, f"s{sT0}") + add_addr(aN, f"s{sT1}")
    pro += voff_setup(w, 'all')
    pro += flat(dma_w(w, 0, False, ('W', 0, True))) + flat(dma_x(w, 0, ('X', 0, True))) + flat(dma_w(w, 1, False, ('W', 1, True))) \
        + flat(dma_w(w, 2, False, ('W', 2, True))) + flat(dma_x(w, 1, ('X', 1, True)))
    if Cfg.startbar: pro += [barrier()]
    pro += lane_setup(w) + addr0
    C = [label("L_w2_round")] + stamp(w, 76, True)
    def bar(idx, lgkm=None):
        b = wait(vm=63, lgkm=lgkm); b.tag = (('need', idx), lgkm)
        return stamp(w, 2 * idx) + [b, barrier()] + stamp(w, 2 * idx + 1)
    def one(L): return [[i] for i in L]
    prio = lambda p: [raw(f"s_setprio {p}")] if Cfg.prio == 2 else []
    curT = W_SLOT0 * SLOT; curN = XBUF[0]
    C += prio(1)
    for s in range(20):
        if s < 19:
            newT = (W_SLOT0 + (s + 1) % 3) * SLOT; newN = XBUF[((s + 1) >> 1) & 1]
            adv_ = add_addr(aT, newT - curT) + add_addr(aN, newN - curN); curT, curN = newT, newN
        else:
            adv_ = add_addr(aN, f"s{sXd}") + add_addr(aN, item_slot(kidx(0)) - curN) + add_addr(aT, item_slot(vidx(0)) - curT)
        C += bar(s, lgkm=0)
        if s == 0: C += flat(q_reads(w, 0, 0)) + flat(items(0)) + adv_
        else: C += spread(q_mfmas(w, (s - 1) & 1, s == 1), [(q_reads(w, s & 1, s & 1), 0, 10), (items(s), 0, nm - 2), (one(adv_), 11, 15)])
    C += bar(20, lgkm=0)
    def qk(t, fc='negm'): return frags_QK(w, fc, pre=add_addr(aN, item_slot(kidx(t)) - item_slot(kidx(t - 1))) if t else [])
    def pv(t): return frags_PV(w, t & 1, zero=(t == 0), pre=add_addr(aT, item_slot(vidx(t)) - item_slot(vidx(t - 1))) if t else [])
    w.fpos = 0
    C += stream(w, qk(0, 'zero'), 0, qk(1), lead=q_mfmas(w, 1, False), fillers=[(items(20), 0, 2 * nm)] + q_pack_fillers(w))
    C += first_max(w)
    C += flat(softmax_groups(w, 0)) + check_and_accum(w, 0, first=True, check=False)
    for t in range(15):
        C += prio(0)
        C += bar(21 + t)
        if 21 + t == 33:
            C += [S(f"s_cmp_lg_u32 s{sRound}, 0"), S(f"s_cselect_b32 s{sK+2}, 0, s{sK+2}"), S(f"s_cselect_b32 s{sW+2}, 0, s{sW+2}"),
                  S(f"s_cselect_b32 s{sX+2}, 0, s{sX+2}")]
        C += stream(w, qk(t + 1), Cfg.LA, pv(t), fillers=[(items(21 + t), 0, nm)])
        C += prio(1)
        C += stream(w, pv(t), Cfg.LA, qk(t + 2) if t < 14 else [], fillers=[(softmax_groups(w, (t + 1) & 1), 2, nm)])
        C += check_and_accum(w, (t + 1) & 1)
    C += prio(0)
    C += bar(36)
    C += flat(items(36))
    C += stamp(w, 74)
    C += stream(w, pv(15), 0, [], fillers=epi_fillers(w))
    C += stamp(w, 75) + stamp(w, 77, True)
    curT = item_slot(vidx(15)); curN = item_slot(kidx(15))
    C += add_addr(aT, W_SLOT0 * SLOT - curT) + add_addr(aN, XBUF[0] - curN) + [V(f"v_subrev_u32 v{r}, s{sXd}, v{r}") for r in aN]
    C += round_advance()
    C += [branch("s_cbranch_scc1", "L_w2_round")]
    def vm_ops(code): return [c for c in code if c.kind in ('dma', 'vload', 'vstore')]
    def resolve(prefix):
        res = {}
        q = [(c.tag[0], c.tag[1], 0) if c.tag and c.tag[0] != 'ost' and c.tag[2] else None for c in vm_ops(prefix)]
        for c in C:
            if c.kind in ('dma', 'vload', 'vstore'):
                q.append((c.tag[0], c.tag[1], 1 if c.tag[2] else 0) if c.tag[0] != 'ost' else None)
            elif c.kind == 'wait' and isinstance(c.tag[0], tuple):
                idx = c.tag[0][1]
                last = -1
                for k, it in enumerate(q):
                    if it is not None and it[2] == 0 and first_use(it[0], it[1]) <= idx: last = k
                res[idx] = min(63, len(q) - 1 - last)
        return res
    r1 = resolve(pro); r2 = resolve(C)
    for c in C:
        if c.kind == 'wait' and isinstance(c.tag[0], tuple):
            idx = c.tag[0][1]; n = min(r1[idx], r2[idx]); lg = c.tag[1]
            c.text = f"s_waitcnt vmcnt({n})" + (f" lgkmcnt({lg})" if lg is not None else ""); c.tag = (n, lg)
    C += [wait(vm=0), barrier()] + wo_tail(w)
    if Cfg.dbgst:
        C += [wait(vm=0), raw("s_memtime s[92:93]"), raw("s_memrealtime s[94:95]"), wait(lgkm=0)]
        C += [S(f"s_mov_b32 s{sWS+2}, {128<<20}")]
        C += [S(f"s_cmp_lg_u32 s{sWave}, 4"), branch("s_cbranch_scc1", "L_dbg_end"), S("s_cmp_lg_u32 s2, 100"), branch("s_cbranch_scc1", "L_dbg_end"),
              S("s_mov_b64 exec, 1"), V(f"v_mov_b32 v0, {DBG_OFF}")]
        C += [V("v_mov_b32 v1, s76"), bstore(1, 1, 0, sWS, 0, 0), V("v_mov_b32 v2, s94"), bstore(1, 2, 0, sWS, 0, 4),
              S("s_sub_u32 s92, s92, s74"), V("v_mov_b32 v3, s92"), bstore(1, 3, 0, sWS, 0, 8)]
        for n, i in enumerate([0, 1, 2, 3, 4, 5, 8, 9, 10, 11]):
            C += [S(f"s_sub_u32 s{78+i}, s{78+i}, s74"), V(f"v_mov_b32 v{4+i}, s{78+i}"), bstore(1, 4 + i, 0, sWS, 0, 12 + 4 * n)]
        C += [label("L_dbg_end")]
    C += [raw("s_endpgm")]
    C += [label("L_w2_wo")] + flat(dma_wo(w, None)) + [branch("s_branch", "L_w2_wo_back")]
    pro, _ = finish(pro)
    C, q = finish(C, [], pre=pro[-12:])
    return pro + C + rare_routine(w, 0) + rare_routine(w, 1)

def srd(base, ptr, nbytes):
    return [S(f"s_mov_b32 s{base}, s{ptr}"), S(f"s_mov_b32 s{base+1}, s{ptr+1}"), S(f"s_mov_b32 s{base+2}, {nbytes}"), S(f"s_mov_b32 s{base+3}, 0x20000")]

def gen_k1(name):
    C = [raw(f".globl {name}\n.p2align 8\n.type {name},@function\n{name}:", 'label')]
    C += [S("s_cmp_lt_u32 s2, 256"), branch("s_cbranch_scc1", "L_k1_go"), raw("s_endpgm"), label("L_k1_go")]
    C += [raw("s_load_dwordx8 s[56:63], s[0:1], 0"), raw("s_load_dwordx2 s[64:65], s[0:1], 32"), raw("s_load_dwordx2 s[66:67], s[0:1], 56")]
    if Cfg.dbgst: C += [raw("s_memtime s[74:75]"), raw("s_memrealtime s[76:77]"), raw("s_load_dwordx2 s[90:91], s[0:1], 48")]
    C += [V("v_lshrrev_b32 v1, 6, v0"), V(f"v_readfirstlane_b32 s{sWave}, v1")]
    C += [S(f"s_and_b32 s{sB}, s2, 7"), S(f"s_lshl_b32 s{sB}, s{sB}, 2"), S(f"s_lshr_b32 s{sT0}, s2, 3"), S(f"s_and_b32 s{sT1}, s{sT0}, 3"),
          S(f"s_add_u32 s{sB}, s{sB}, s{sT1}"), S(f"s_lshr_b32 s{sG}, s{sT0}, 2"), S(f"s_mov_b32 s{sRound}, 0")]
    C += [S(f"s_lshr_b32 s{sT0}, s{sWave}, 1"), S(f"s_and_b32 s{sT0}, s{sT0}, 1"), S(f"s_and_b32 s{sT1}, s{sWave}, 1"),
          S(f"s_lshl_b32 s{sT2}, s{sG}, 2"), S(f"s_add_u32 s{sT2}, s{sT2}, s{sT0}"),
          S(f"s_lshl_b32 s{sWbase}, s{sT2}, 8"),
          S(f"s_lshl_b32 s{sT3}, s{sB}, 5"), S(f"s_add_u32 s{sT3}, s{sT3}, s{sT2}"), S(f"s_lshl_b32 s{sKVbase}, s{sT3}, 17"),
          S(f"s_mul_i32 s{sOst}, s{sT3}, 40960"),
          S(f"s_lshl_b32 s{sLdsKV}, s{sT0}, 13"), S(f"s_lshl_b32 s{sT2}, s{sT1}, 10"), S(f"s_add_u32 s{sLdsKV}, s{sLdsKV}, s{sT2}"),
          S(f"s_mul_i32 s{sLdsX}, s{sT0}, 10240"), S(f"s_add_u32 s{sLdsX}, s{sLdsX}, s{sT2}"), S(f"s_mov_b32 s{sLdsWO}, s{sLdsX}"),
          S(f"s_mul_i32 s{sXbase}, s{sB}, 204800"), S(f"s_mul_i32 s{sT2}, s{sT0}, 102400"), S(f"s_add_u32 s{sXbase}, s{sXbase}, s{sT2}"),
          S(f"s_lshr_b32 s{sT2}, s2, 1"), S(f"s_mul_i32 s{sWObase}, s{sT2}, 40960"), S(f"s_mul_i32 s{sT2}, s{sT0}, 20480"), S(f"s_add_u32 s{sWObase}, s{sWObase}, s{sT2}"),
          S(f"s_and_b32 s{sT2}, s2, 1"), S(f"s_mul_i32 s{sT2}, s{sT2}, 640"), S(f"s_add_u32 s{sWObase}, s{sWObase}, s{sT2}")]
    C += [S(f"s_mov_b32 s{sQS}, {f2u(QSCALE)}")]
    C += [S(f"s_mov_b32 s68, {SLOT}"), S(f"s_mov_b32 s69, {2*SLOT}")]
    C += [raw("s_waitcnt lgkmcnt(0)")]
    C += srd(sX, 56, 6553600) + srd(sK, 58, 134217728) + srd(sV, 60, 134217728) + srd(sW, 62, 5242880) + srd(sWO, 64, 5242880) + srd(sWS, 66, (128 << 20) if Cfg.stamps else WS_BYTES)
    if Cfg.stamps:
        C += [S(f"s_lshl_b32 s{sStamp+2}, s2, 3"), S(f"s_add_u32 s{sStamp+2}, s{sStamp+2}, s{sWave}"), S(f"s_lshl_b32 s{sStamp+2}, s{sStamp+2}, 10"),
              S(f"s_add_u32 s{sStamp+2}, s{sStamp+2}, {DBG_OFF}")]
    C += [S(f"s_cmp_ge_u32 s{sWave}, 4"), branch("s_cbranch_scc1", "L_k1_w2"),
          S(f"s_mul_i32 s{sT2}, s{sT1}, 3072"), S(f"s_add_u32 s{sOst}, s{sOst}, s{sT2}"), branch("s_branch", "L_w3"),
          label("L_k1_w2"), S(f"s_lshl_b32 s{sT2}, s{sT1}, 11"), S(f"s_add_u32 s{sT2}, s{sT2}, 6144"), S(f"s_add_u32 s{sOst}, s{sOst}, s{sT2}"),
          branch("s_branch", "L_w2")]
    C = fix_hazards(C)
    C += gen_w3() + gen_w2()
    for k, tag, par in CTX.stubs:
        C += [label(f"L_stub{k}"), raw(f"s_call_b64 s[{sRet}:{sRet+1}], L_rare_{tag}_{par}", 'branch'), branch("s_branch", f"L_back{k}")]
    return C

def gen_k2(name):
    DEPTH = 4
    vB, vA = 0, 10
    FR = 16
    tmp = FR + 60 * DEPTH
    def fB(st, jj): return FR + 60 * st + 4 * jj
    def fA(st, nn): return FR + 60 * st + 40 + 4 * nn
    def acc(jj, nn): return (jj * 5 + nn) * 4
    sOUT, sWS2 = 8, 12
    sSB, sSA = 20, 21
    C = [raw(f".globl {name}\n.p2align 8\n.type {name},@function\n{name}:", 'label')]
    C += [S("s_cmp_lt_u32 s2, 256"), branch("s_cbranch_scc1", "L_k2_go"), raw("s_endpgm"), label("L_k2_go")]
    C += [raw("s_load_dwordx2 s[4:5], s[0:1], 40"), raw("s_load_dwordx2 s[6:7], s[0:1], 56")]
    if Cfg.dbgst: C += [raw("s_memtime s[74:75]"), raw("s_memrealtime s[76:77]"), raw("s_load_dwordx2 s[90:91], s[0:1], 48")]
    C += [V("v_lshrrev_b32 v16, 6, v0"), V("v_readfirstlane_b32 s16, v16"), V("v_and_b32 v15, 63, v0"), V("v_lshlrev_b32 v15, 4, v15")]
    C += [S("s_and_b32 s17, s2, 7"), S("s_lshl_b32 s17, s17, 2"), S("s_lshr_b32 s18, s2, 3"), S("s_and_b32 s19, s18, 3"),
          S("s_add_u32 s17, s17, s19"), S("s_lshr_b32 s18, s18, 2")]
    C += [S("s_and_b32 s22, s16, 1"), S("s_lshr_b32 s23, s16, 1")]
    C += [S("s_cmp_lg_u32 s23, 0")]
    for x in range(5): C.append(S(f"s_cselect_b32 s{40+x}, {4-x}, {x}"))
    C += [S("s_mul_i32 s24, s22, 5"), S("s_sub_u32 s25, 5, s24")]
    for x in range(5):
        C += [S(f"s_add_u32 s{30+x}, s{40+x}, s24"), S(f"s_add_u32 s{35+x}, s{40+x}, s25")]
    for jj in range(10): C += [S(f"s_lshl_b32 s26, s{30+jj}, 10"), V(f"v_add_u32 v{vB+jj}, s26, v15")]
    for nn in range(5): C += [S(f"s_lshl_b32 s26, s{40+nn}, 10"), V(f"v_add_u32 v{vA+nn}, s26, v15")]
    C += [S("s_lshl_b32 s26, s17, 7"), S("s_lshl_b32 s27, s16, 5"), S("s_add_u32 s26, s26, s27"), S(f"s_mul_i32 s{sSB}, s26, 10240"),
          S("s_mul_i32 s27, s27, 40960"), S("s_mul_i32 s26, s18, 5120"), S(f"s_add_u32 s{sSA}, s27, s26"), S(f"s_add_u32 s{sSA}, s{sSA}, {WOT_OFF}")]
    C += [raw("s_waitcnt lgkmcnt(0)")]
    C += srd(sOUT, 4, 6553600) + srd(sWS2, 6, (128 << 20) if Cfg.stamps else WS_BYTES)
    def loads(st):
        G = [[bload(4, fA(st, nn), vA + nn, sWS2, f"s{sSA}")] for nn in range(5)]
        G += [[bload(4, fB(st, jj), vB + jj, sWS2, f"s{sSB}")] for jj in range(10)]
        if Cfg.k2_noadv: G[-1] = G[-1] + [S(f"s_xor_b32 s{sSA}, s{sSA}, 65536"), S(f"s_xor_b32 s{sSB}, s{sSB}, 65536")]
        else: G[-1] = G[-1] + [S(f"s_add_u32 s{sSA}, s{sSA}, 40960"), S(f"s_add_u32 s{sSB}, s{sSB}, 10240")]
        return G
    def mms(st, zero):
        return [mfma(acc(jj, nn), fA(st, nn), fB(st, jj), None if zero else acc(jj, nn), df='a', cf='a') for jj in range(10) for nn in range(5)]
    def st2(k): return [raw(f"s_memtime s[{60+2*k}:{61+2*k}]"), wait(lgkm=0)] if Cfg.stamps else []
    C += st2(0)
    for st in range(DEPTH - 1): C += flat(loads(st))
    def step(ks, zero=False, load=True, vm=None):
        st = ks % DEPTH
        c = [wait(vm=15 * (DEPTH - 2) if vm is None else vm)]
        mm = mms(st, zero)
        if Cfg.k2_nomfma and load and not zero: mm = mm[:15]
        c += spread(mm, [(loads((ks - 1) % DEPTH), 0, Cfg.k2_span)] if load else [])
        return c
    C += step(0, zero=True)
    C += st2(1)
    C += [S("s_mov_b32 s28, 7")]
    C = fix_hazards(C)
    B = [label("L_k2_loop")]
    for u in range(DEPTH): B += step(1 + u)
    B += [S("s_sub_u32 s28, s28, 1"), S("s_cmp_lg_u32 s28, 0"), branch("s_cbranch_scc1", "L_k2_loop")]
    C += fix_hazards(B, pre=C[-12:])
    E = st2(2) + step(29, load=False, vm=30) + step(30, load=False, vm=15) + step(31, load=False, vm=0) + st2(3)
    lw = 16; lr = 17
    E += [S("s_mul_i32 s26, s16, 25600"), V(f"v_add_u32 v{lw}, s26, v15"), S("s_xor_b32 s27, s16, 1"), S("s_mul_i32 s26, s27, 25600"), V(f"v_add_u32 v{lr}, s26, v15")]
    E += [nop(7)]
    for i in range(25): E.append(ds_write(4, lw, acc(5, 0) + 4 * i, i * 1024, f='a'))
    E += [wait(lgkm=0), barrier()]
    RB = 32
    for i in range(25): E.append(ds_read(4, RB + 4 * i, lr, i * 1024))
    for i in range(25):
        for r in range(4):
            E.append(V(f"v_accvgpr_read_b32 v{RB+100+r}, a{4*i+r}"))
        for r in range(4):
            E.append(V(f"v_add_f32 v{RB+4*i+r}, v{RB+4*i+r}, v{RB+100+r}"))
    E += [wait(lgkm=0), barrier()]
    E += [S("s_xor_b32 s27, s16, 2"), S("s_mul_i32 s26, s27, 25600"), V(f"v_add_u32 v{lr}, s26, v15")]
    for i in range(12, 25): E.append(ds_write(4, lw, RB + 4 * i, (24 - i) * 1024))
    E += [wait(lgkm=0), barrier()]
    R2 = RB + 104
    for i in range(13): E.append(ds_read(4, R2 + 4 * i, lr, i * 1024))
    E += [V("v_lshrrev_b32 v18, 4, v15"), V("v_and_b32 v19, 15, v18"), V("v_lshrrev_b32 v18, 4, v18"),
          V("v_mul_u32_u24 v19, 1280, v19"), V("v_lshl_add_u32 v19, v18, 3, v19"),
          S("s_mul_i32 s26, s17, 204800"), S("s_mul_i32 s27, s18, 160"), S("s_add_u32 s26, s26, s27")]
    for i in range(13):
        jj, nn = divmod(i, 5)
        a = RB + 4 * i; b = R2 + 4 * i
        for r in range(4): E.append(V(f"v_add_f32 v{a+r}, v{a+r}, v{b+r}"))
        E += [V(f"v_cvt_pk_bf16_f32 v{a}, v{a}, v{a+1}"), V(f"v_cvt_pk_bf16_f32 v{a+1}, v{a+2}, v{a+3}"),
              S(f"s_mul_i32 s27, s{30+jj}, 20480"), S(f"s_lshl_b32 s29, s{40+nn}, 5"), S("s_add_u32 s27, s27, s29"), S("s_add_u32 s27, s27, s26"),
              bstore(2, a, 19, sOUT, "s27")]
    if Cfg.stamps:
        E += st2(4) + [wait(vm=0)] + st2(5)
        E += [S("s_lshl_b32 s26, s2, 2"), S("s_add_u32 s26, s26, s16"), S("s_lshl_b32 s26, s26, 5"), S(f"s_add_u32 s26, s26, {DBG_OFF + (4<<20)}"), V("v_mov_b32 v21, 0")]
        for k in range(6): E += [V(f"v_mov_b32 v20, s{60+2*k}"), bstore(1, 20, 21, sWS2, "s26", 4 * k)]
    if Cfg.dbgst:
        E += [wait(vm=0), raw("s_memtime s[92:93]"), raw("s_memrealtime s[94:95]"), wait(lgkm=0)]
        E += [S("s_cmp_lg_u32 s16, 0"), branch("s_cbranch_scc1", "L_dbg2_end"), S("s_cmp_lg_u32 s2, 100"), branch("s_cbranch_scc1", "L_dbg2_end")]
        E += [S(f"s_mov_b32 s{sWS2+2}, {128<<20}")] + srd(sOUT, 90, 256)
        E += [V("v_lshrrev_b32 v20, 2, v15"), S("s_mov_b64 exec, 0x1fff"), S(f"s_mov_b32 s26, {DBG_OFF}"), bload(1, 21, 20, sWS2, "s26"), wait(vm=0), bstore(1, 21, 20, sOUT, 0),
              S("s_mov_b64 exec, 1"), V("v_mov_b32 v22, s76"), bstore(1, 22, 20, sOUT, 0, 52), V("v_mov_b32 v23, s94"), bstore(1, 23, 20, sOUT, 0, 56),
              S("s_sub_u32 s92, s92, s74"), V("v_mov_b32 v24, s92"), bstore(1, 24, 20, sOUT, 0, 60)]
        E += [label("L_dbg2_end")]
    E += [raw("s_endpgm")]
    E, _ = finish(E, [], pre=C[-12:])
    return C + E

def kd(name, vgpr, accum, sgpr=96):
    return f""".section .rodata,"a"
.p2align 6
.amdhsa_kernel {name}
  .amdhsa_next_free_vgpr {vgpr}
  .amdhsa_next_free_sgpr {sgpr}
  .amdhsa_accum_offset {accum}
  .amdhsa_group_segment_fixed_size 0
  .amdhsa_kernarg_size 64
  .amdhsa_user_sgpr_count 2
  .amdhsa_user_sgpr_kernarg_segment_ptr 1
  .amdhsa_system_sgpr_workgroup_id_x 1
.end_amdhsa_kernel
"""

HDR = open('standalone__mha_block_cached__near_ridge.s.ref').read().split('; Override launch')[0]
def main(path):
    k1, k2 = "mha_attn_kernel", "mha_oproj_kernel"
    s = HDR
    s += f"; @launch kernel={k1} grid=(256,1,1) block=(512,1,1) lds={LDS_BYTES}\n"
    s += f"; @launch kernel={k2} grid=(256,1,1) block=(256,1,1) lds=102400\n"
    s += '.amdgcn_target "amdgcn-amd-amdhsa--gfx950"\n.text\n'
    s += emit(gen_k1(k1)) + emit(gen_k2(k2))
    s += kd(k1, 256, 256) + kd(k2, 456, 256)
    open(path, 'w').write(s)
if __name__ == '__main__':
    for a in sys.argv[2:]:
        k, v = a.split('='); setattr(Cfg, k, eval(v))
    main(sys.argv[1] if len(sys.argv) > 1 else 'mha.s')
```

```python
import sys, math
from ir import *

SLOT = 16384
NSLOT = 10
W_SLOT0 = 4
XBUF = [114688, 135168]
LDS_BYTES = 163840
O_BYTES = 32 * 128 * 10 * 1024
WOT_OFF = O_BYTES
WOT_BYTES = 128 * 40 * 1024
WS_BYTES = O_BYTES + WOT_BYTES
QSCALE = math.log2(math.e) / math.sqrt(128.0)
THR = 16384.0
import struct
def f2u(x): return "0x%08x" % struct.unpack('<I', struct.pack('<f', x))[0]

sK, sV, sW, sX, sWS, sWO = 8, 12, 16, 20, 24, 28
sWave, sRound, sB, sG = 32, 33, 34, 35
sKVbase, sWbase, sXbase, sLdsKV, sLdsX = 36, 37, 38, 39, 40
sT0, sT1 = 41, 42
sKpos, sVpos, sD, sCnt, sXd, sLoop = 43, 44, 45, 49, 50, 51
sRet = 46
sOst = 48
sWObase, sLdsWO = 52, 53
sT2, sT3 = 54, 55
sQS = 73

DBG_OFF = 64 << 20
sStamp = 70
DSL = {1: 0, 7: 1, 41: 2, 45: 3, 73: 4, 75: 5}
DSL2 = {100: 0, 101: 1, 102: 2, 0: 3, 1: 4, 3: 5, 5: 8, 7: 9, 9: 10, 11: 11}
def stamp(w, k, real=False):
    if Cfg.dbgst == 2:
        if (w is not None and w.nq != 2) or k not in DSL2 or real: return []
        i = DSL2[k]
        return [raw(f"s_memtime s[{sStamp}:{sStamp+1}]"), wait(lgkm=0), S(f"s_cmp_eq_u32 s{sRound}, 0"),
                S(f"s_cselect_b32 s{78+i}, s{sStamp}, s{78+i}")]
    if k >= 100: return []
    if Cfg.dbgst:
        if w.nq != 2 or k not in DSL or real: return []
        i = DSL[k]
        return [raw(f"s_memtime s[{sStamp}:{sStamp+1}]"), wait(lgkm=0), S(f"s_cmp_eq_u32 s{sRound}, 0"),
                S(f"s_cselect_b32 s{78+i}, s{sStamp}, s{78+i}"), S(f"s_mov_b32 s{84+i}, s{sStamp}")]
    if not Cfg.stamps: return []
    if Cfg.stamps == 2 and k not in (0, 75, 76, 77): return []
    if Cfg.stamps == 3 and k not in (0, 1, 7, 39, 41, 43, 45, 73, 75, 76, 77): return []
    return [raw(f"{'s_memrealtime' if real else 's_memtime'} s[{sStamp}:{sStamp+1}]"), wait(lgkm=0), V(f"v_mov_b32 v{w.tmp+1}, s{sStamp}"), V(f"v_mov_b32 v{w.tmp+2}, 0"),
            S(f"s_lshl_b32 s{sStamp+1}, s{sRound}, 9"), S(f"s_add_u32 s{sStamp+1}, s{sStamp+1}, s{sStamp+2}"),
            bstore(1, w.tmp + 1, w.tmp + 2, sWS, f"s{sStamp+1}", 4 * k, tag=('ost',))]

class Cfg:
    stamps = False
    dbgst = False
    LA = 4
    kv_pol = 'nt'
    touch = True
    qcut = 8
    prio = 2
    startbar = True
    no_sm = False
    no_dma = False
    no_exp = False
    no_chk = False
    no_ds = False
    no_adv = False
    k2_noadv = False
    k2_span = 45
    k2_nomfma = False

def item_slot(n): return (n % NSLOT) * SLOT
def kidx(t): return 0 if t == 0 else 2 * t - 1
def vidx(t): return 2 * t + 2

class Wave:
    def __init__(self, nq):
        self.nq = nq
        n = nq
        p = 0
        self.O = p; p += 32 * n
        self.Q = p; p += 16 * n
        self.NM = p; p += 4 * n
        self.S = p; p += 8 * n
        self.P = p; p += 8 * n
        self.L = p; p += n
        self.LT = p; p += n
        self.T = p; p += 4
        self.aN = p; p += 2
        self.aT = p; p += 4
        p = (p + 3) & ~3
        self.F = p; self.NF = 8; p += 32
        self.dummy = p; p += 1
        self.tmp = p; p += 3
        if nq == 2:
            self.vK = p; self.vV = p + 1; self.vW = p + 2; self.vX = p + 3; self.vWO = p + 4; p += 5
        else:
            self.vK = self.F; self.vV = self.F + 1
        assert p <= 256, p
        self.end = p
        setsz = 32 + 4 * n
        if nq == 3:
            self.set = [self.Q, self.S]
        else:
            q = (p + 3) & ~3
            self.set = [self.Q, q]
            assert q + setsz <= 256
        self.tag = f"w{nq}"
        self.fpos = 0
    def o(self, T, j): return self.O + (T * self.nq + j) * 4
    def q(self, s, j): return self.Q + (s * self.nq + j) * 4
    def nm(self, j): return self.NM + 4 * j
    def s(self, kb, j): return self.S + (kb * self.nq + j) * 4
    def p(self, par, j): return self.P + (par * self.nq + j) * 4
    def fa(self, st, T): return self.set[st] + 4 * T
    def fb(self, st, j): return self.set[st] + 32 + 4 * j

def spread(base, fillers):
    ins = [[] for _ in range(len(base) + 1)]
    for groups, lo, hi in fillers:
        n = len(groups)
        if n == 0: continue
        hi = min(hi, len(base)); lo = min(lo, hi)
        span = hi - lo
        for k, gI in enumerate(groups):
            pos = lo + (k * span) // n + 1 if span > 0 else lo
            ins[min(pos, len(base))].extend(gI)
    out = list(ins[0])
    for i, b in enumerate(base):
        out.append(b); out.extend(ins[i + 1])
    return out

def frag_K(w, s, kb, first_c):
    def reads(f): return [ds_read(4, f, w.aN + (s & 1), kb * 4096 + (s >> 1) * 2048)]
    def mf(f):
        out = []
        for j in range(w.nq):
            c = w.s(kb, j) if s > 0 else (None if first_c == 'zero' else w.nm(j))
            out.append(mfma(w.s(kb, j), f, w.q(s, j), c))
        return out
    return dict(reads=reads, mf=mf, pre=[])
def frags_QK(w, first_c='negm', pre=()):
    fr = [frag_K(w, s, kb, first_c) for s in range(4) for kb in range(2)]
    fr[0]['pre'] = list(pre)
    return fr
def frag_V(w, db, par, zero):
    def reads(f): return [ds_read(2, f + 2 * hh, w.aT + (db & 3), hh * 4096 + (db >> 2) * 2048, tr=True) for hh in range(2)]
    def mf(f): return [mfma(w.o(db, j), f, w.p(par, j), None if zero else w.o(db, j)) for j in range(w.nq)]
    return dict(reads=reads, mf=mf, pre=[])
def frags_PV(w, par, zero=False, pre=()):
    fr = [frag_V(w, db, par, zero) for db in range(8)]
    fr[0]['pre'] = list(pre)
    return fr

def stream(w, frags, preloaded, nxt, fillers=(), lead=()):
    LA = Cfg.LA
    allf = list(frags) + list(nxt[:LA])
    head = []
    def issue(i):
        f = allf[i]
        return ([] if Cfg.no_adv else list(f['pre'])) + ([] if Cfg.no_ds else f['reads'](w.F + 4 * ((w.fpos + i) % w.NF)))
    for i in range(preloaded, min(LA, len(allf))): head += issue(i)
    base = list(lead); extra = []
    for i, f in enumerate(frags):
        m = f['mf'](w.F + 4 * ((w.fpos + i) % w.NF))
        base += m
        post = []
        if i + LA < len(allf) and i + LA >= preloaded: post += issue(i + LA)
        if post: extra.append(([post], len(base) - 1, len(base)))
    body = spread(base, list(extra) + list(fillers))
    w.fpos = (w.fpos + len(frags)) % w.NF
    return head + body

def softmax_groups(w, par):
    G = []
    k = 0
    for kb in range(2):
        for j in range(w.nq):
            for h in range(2):
                t0 = w.T + 2 * (k & 1); t1 = t0 + 1; k += 1
                sr = w.s(kb, j) + 2 * h
                G.append([V(f"v_exp_f32 v{t0}, v{sr}")])
                G.append([V(f"v_exp_f32 v{t1}, v{sr+1}")])
                lt = w.LT + j
                if kb == 0 and h == 0:
                    G.append(('late', [V(f"v_add_f32 v{lt}, v{t0}, v{t1}"), V(f"v_cvt_pk_bf16_f32 v{w.p(par,j)+2*kb+h}, v{t0}, v{t1}")]))
                else:
                    G.append(('late', [V(f"v_add_f32 v{lt}, v{lt}, v{t0}"), V(f"v_cvt_pk_bf16_f32 v{w.p(par,j)+2*kb+h}, v{t0}, v{t1}"),
                                       V(f"v_add_f32 v{lt}, v{lt}, v{t1}")]))
    if Cfg.no_sm: return [[V(f"v_mov_b32 v{w.LT+j}, 1.0")] for j in range(w.nq)]
    if Cfg.no_exp:
        for gI in G:
            if not isinstance(gI, tuple): gI[0] = V(gI[0].text.replace('v_exp_f32', 'v_mov_b32'))
    out = []; pend = None
    for gI in G:
        if isinstance(gI, tuple):
            pend = gI[1]
        else:
            out.append(gI)
            if pend is not None:
                out.append(pend); pend = None
    if pend is not None: out.append(pend)
    return out

class Ctx:
    def __init__(self): self.stubs = []; self.n = 0
CTX = Ctx()

def check_and_accum(w, par, first=False, check=True):
    out = []
    if Cfg.no_chk: return out
    if check:
        if w.nq == 3:
            out.append(V(f"v_max3_f32 v{w.tmp}, v{w.LT}, v{w.LT+1}, v{w.LT+2}"))
        else:
            out.append(V(f"v_max_f32 v{w.tmp}, v{w.LT}, v{w.LT+1}"))
        out.append(I(f"v_cmp_nge_f32 vcc, {f2u(THR)}, v{w.tmp}", 'valu', wr={('s', 'vcc')}, rd=regs(w.tmp)))
        k = CTX.n; CTX.n += 1
        out.append(branch("s_cbranch_vccnz", f"L_stub{k}"))
        out.append(label(f"L_back{k}"))
        CTX.stubs.append((k, w.tag, par))
    for j in range(w.nq):
        if first: out.append(V(f"v_mov_b32 v{w.L+j}, v{w.LT+j}"))
        else: out.append(V(f"v_add_f32 v{w.L+j}, v{w.L+j}, v{w.LT+j}"))
    return out

def xlane(op, r, t):
    return [V(f"v_mov_b32 v{t}, v{r}"), V(f"v_permlane32_swap_b32 v{r}, v{t}"), V(f"{op} v{r}, v{r}, v{t}"),
            V(f"v_mov_b32 v{t}, v{r}"), V(f"v_permlane16_swap_b32 v{r}, v{t}"), V(f"{op} v{r}, v{r}, v{t}")]

def tile_max(w, j, dst):
    a, b = w.s(0, j), w.s(1, j)
    return [V(f"v_max3_f32 v{dst}, v{a}, v{a+1}, v{a+2}"), V(f"v_max3_f32 v{dst}, v{dst}, v{a+3}, v{b}"),
            V(f"v_max3_f32 v{dst}, v{dst}, v{b+1}, v{b+2}"), V(f"v_max_f32 v{dst}, v{dst}, v{b+3}")]

def first_max(w):
    out = []
    for j in range(w.nq): out += tile_max(w, j, w.LT + j)
    seqs = [xlane("v_max_f32", w.LT + j, w.T + j) for j in range(w.nq)]
    for k in range(6):
        for sq in seqs: out.append(sq[k])
    for j in range(w.nq):
        for r in range(4): out.append(V(f"v_sub_f32 v{w.nm(j)+r}, 0, v{w.LT+j}"))
        for kb in range(2):
            for r in range(4): out.append(V(f"v_sub_f32 v{w.s(kb,j)+r}, v{w.s(kb,j)+r}, v{w.LT+j}"))
    return out

def rare_routine(w, par):
    out = [label(f"L_rare_{w.tag}_{par}"), nop(15)]
    for j in range(w.nq):
        d = w.LT + j; f = w.T + 1
        out += tile_max(w, j, d)
        out += xlane("v_max_f32", d, w.T)
        out.append(V(f"v_max_f32 v{d}, 0, v{d}"))
        out.append(V(f"v_sub_f32 v{f}, 0, v{d}"))
        out.append(V(f"v_exp_f32 v{f}, v{f}"))
        for r in range(4): out.append(V(f"v_sub_f32 v{w.nm(j)+r}, v{w.nm(j)+r}, v{d}"))
        for kb in range(2):
            for r in range(4): out.append(V(f"v_sub_f32 v{w.s(kb,j)+r}, v{w.s(kb,j)+r}, v{d}"))
        out.append(V(f"v_mul_f32 v{w.L+j}, v{w.L+j}, v{f}"))
        for T in range(8):
            for r in range(4): out.append(V(f"v_mul_f32 v{w.o(T,j)+r}, v{w.o(T,j)+r}, v{f}"))
    for gI in softmax_groups(w, par): out += gI
    out.append(nop(3))
    out.append(raw(f"s_setpc_b64 s[{sRet}:{sRet+1}]", 'branch'))
    return fix_hazards(out)

def q_reads(w, st, sl):
    G = []
    for j in range(w.nq): G.append([ds_read(4, w.fb(st, j), w.aN + sl, j * 2048)])
    for T in range(8):
        for hh in range(2):
            G.append([ds_read(2, w.fa(st, T) + 2 * hh, w.aT + (T & 3), hh * 4096 + (T >> 2) * 2048, tr=True)])
    return G
def q_mfmas(w, st, zero):
    return [mfma(w.o(T, j), w.fa(st, T), w.fb(st, j), None if zero else w.o(T, j)) for T in range(8) for j in range(w.nq)]

def q_pack_groups(w, s):
    G = []
    for j in range(w.nq):
        for half in range(2):
            a = w.o(2 * s + half, j)
            for r in range(4): G.append([V(f"v_mul_f32 v{a+r}, s{sQS}, v{a+r}")])
            G.append([V(f"v_cvt_pk_bf16_f32 v{w.q(s,j)+2*half}, v{a}, v{a+1}")])
            G.append([V(f"v_cvt_pk_bf16_f32 v{w.q(s,j)+2*half+1}, v{a+2}, v{a+3}")])
    for op in ("v_permlane32_swap_b32", "v_permlane16_swap_b32"):
        for j in range(w.nq):
            q = w.q(s, j)
            G.append([V(f"{op} v{q}, v{q+2}")]); G.append([V(f"{op} v{q+1}, v{q+3}")])
    return G
def q_pack_fillers(w):
    n = w.nq
    rng = [(2 * n + 2, 5 * n), (5 * n, 8 * n), (8 * n, 11 * n), (11 * n, 14 * n - 1)]
    return [(q_pack_groups(w, s), rng[s][0], rng[s][1]) for s in range(4)]

def l_reduce(w):
    out = []
    seqs = [xlane("v_add_f32", w.L + j, w.T + j) for j in range(w.nq)]
    for k in range(6):
        for sq in seqs: out.append(sq[k])
    for j in range(w.nq): out.append(V(f"v_rcp_f32 v{w.L+j}, v{w.L+j}"))
    out += [V(f"v_mbcnt_lo_u32_b32 v{w.tmp}, -1, 0"), V(f"v_mbcnt_hi_u32_b32 v{w.tmp}, -1, v{w.tmp}"), V(f"v_lshlrev_b32 v{w.tmp}, 4, v{w.tmp}")]
    return out
def epi_groups(w, s):
    G = []
    for j in range(w.nq):
        d = w.q(s, j)
        for half in range(2):
            a = w.o(2 * s + half, j)
            for r in range(4): G.append([V(f"v_mul_f32 v{a+r}, v{a+r}, v{w.L+j}")])
            G.append([V(f"v_cvt_pk_bf16_f32 v{d+2*half}, v{a}, v{a+1}")])
            G.append([V(f"v_cvt_pk_bf16_f32 v{d+2*half+1}, v{a+2}, v{a+3}")])
        G.append([S(f"s_add_u32 s{sT1}, s{sOst}, {s*10240}"), bstore(4, d, w.tmp, sWS, f"s{sT1}", j * 1024, tag=('ost',))])
    return G
def epi_fillers(w):
    n = w.nq
    rng = [(2 * n + 2, 4 * n + 2), (4 * n + 2, 6 * n + 2), (6 * n + 2, 8 * n), (8 * n, 8 * n)]
    return [([[i] for i in l_reduce(w)], 0, 2 * n + 1)] + [(epi_groups(w, s), rng[s][0], rng[s][1]) for s in range(4)]

def dma_kv(w, kind, t, nxt_round, tag):
    srd = sK if kind == 'K' else sV
    voff = w.vK if kind == 'K' else w.vV
    n = kidx(t) if kind == 'K' else vidx(t)
    lds = item_slot(n)
    goff = t * 8192 + (262144 if nxt_round else 0)
    G = []
    for a in range(2):
        g = [S(f"s_add_u32 s{sT0}, s{sKVbase}, {goff + a*4096}")]
        for seg in range(2):
            g2 = [S(f"s_add_u32 m0, s{sLdsKV}, {lds + a*4096 + seg*2048 - seg*128}"),
                  dma(voff, srd, f"s{sT0}", seg * 128, Cfg.kv_pol, tag=tag)]
            G.append(g + g2); g = []
    return G
def dma_w(w, s, nxt_round, tag):
    lds = (W_SLOT0 + s % 3) * SLOT
    goff = s * 32 * 8192 + (512 if nxt_round else 0)
    G = []
    for hh in range(2):
        g = [S(f"s_add_u32 s{sT0}, s{sWbase}, {goff + hh*32768}")]
        for seg in range(2):
            g2 = [S(f"s_add_u32 m0, s{sLdsKV}, {lds + hh*4096 + seg*2048 - seg*128}"),
                  dma(w.vW, sW, f"s{sT0}", seg * 128, tag=tag)]
            G.append(g + g2); g = []
    return G
def dma_x(w, u, tag):
    G = []
    for i in range(5):
        G.append([S(f"s_add_u32 s{sT0}, s{sXbase}, {i*20480 + u*128}"),
                  S(f"s_add_u32 m0, s{sLdsX}, {XBUF[u&1] + i*2048}"),
                  dma(w.vX, sX, f"s{sT0}", 0, tag=tag)])
    return G
def dma_wo(w, tag):
    G = []
    for seg in range(5):
        G.append([S(f"s_add_u32 m0, s{sLdsWO}, {XBUF[0] + seg*2048 - seg*128}"),
                  dma(w.vWO, sWO, f"s{sWObase}", seg * 128, tag=tag)])
    return G

def loader_schedule():
    sch = {i: [] for i in range(37)}
    for s in range(3, 20): sch[s - 2].append(('W', s, False))
    for u in range(2, 10): sch[2 * u - 2].append(('X', u, False))
    names = {}
    for t in range(16):
        names[kidx(t)] = ('K', t); names[vidx(t)] = ('V', t)
    first = {6: 18, 7: 18, 4: 19, 5: 20, 8: 20, 9: 20}
    for n in (6, 7, 4, 5, 8, 9): sch[first[n]].append(names[n] + (False,))
    for n in range(10, 33):
        if n not in names: continue
        k, t = names[n - 10]
        last = (20 + t) if k == 'K' else min(22 + t, 36)
        sch[last + 1].append(names[n] + (False,))
    sch[33] += [('K', 1, True), ('K', 2, True)]
    sch[34] += [('W', 0, True), ('W', 1, True)]
    sch[35] += [('W', 2, True)]
    sch[36] += [('X', 0, True), ('X', 1, True)]
    return sch
def first_use(kind, i):
    if kind == 'W': return i
    if kind == 'X': return 2 * i
    if kind == 'K': return 20 if i == 0 else 19 + i
    if kind == 'V': return 21 + i

def lane_setup(w):
    t = w.F + 8
    lane, i16, g, a, b, c = t, t + 1, t + 2, t + 3, t + 4, t + 5
    o = [V(f"v_mbcnt_lo_u32_b32 v{lane}, -1, 0"), V(f"v_mbcnt_hi_u32_b32 v{lane}, -1, v{lane}"),
         V(f"v_and_b32 v{i16}, 15, v{lane}"), V(f"v_lshrrev_b32 v{g}, 4, v{lane}")]
    o += [V(f"v_lshrrev_b32 v{a}, 1, v{i16}"), V(f"v_xor_b32 v{a}, v{a}, v{g}"), V(f"v_lshlrev_b32 v{a}, 4, v{a}"),
          V(f"v_lshl_add_u32 v{w.aN}, v{i16}, 7, v{a}"), V(f"v_xor_b32 v{w.aN+1}, 64, v{w.aN}")]
    o += [V(f"v_lshrrev_b32 v{a}, 2, v{lane}"),
          V(f"v_and_b32 v{b}, 6, v{a}"),
          V(f"v_bfe_u32 v{c}, v{lane}, 1, 1"), V(f"v_xor_b32 v{b}, v{b}, v{c}"), V(f"v_lshlrev_b32 v{b}, 4, v{b}"),
          V(f"v_lshl_add_u32 v{b}, v{a}, 7, v{b}"),
          V(f"v_and_b32 v{c}, 1, v{lane}"), V(f"v_lshl_add_u32 v{w.aT}, v{c}, 3, v{b}")]
    for dq in range(1, 4): o.append(V(f"v_xor_b32 v{w.aT+dq}, {dq<<5}, v{w.aT}"))
    return o
def voff_setup(w, which):
    t = w.F + 8
    lane, r8, p, a, b, row = t, t + 1, t + 2, t + 3, t + 4, t + 5
    o = [S(f"s_and_b32 s{sT1}, s{sWave}, 1"), S(f"s_lshl_b32 s{sT2}, s{sT1}, 3"), S(f"s_lshl_b32 s{sT3}, s{sT1}, 2"),
         V(f"v_mbcnt_lo_u32_b32 v{lane}, -1, 0"), V(f"v_mbcnt_hi_u32_b32 v{lane}, -1, v{lane}"),
         V(f"v_lshrrev_b32 v{r8}, 3, v{lane}"), V(f"v_and_b32 v{p}, 7, v{lane}"),
         V(f"v_add_u32 v{row}, s{sT2}, v{r8}"),
         V(f"v_lshrrev_b32 v{a}, 1, v{r8}"), V(f"v_or_b32 v{a}, s{sT3}, v{a}"), V(f"v_xor_b32 v{a}, v{a}, v{p}"), V(f"v_lshlrev_b32 v{a}, 4, v{a}"),
         V(f"v_and_b32 v{b}, 6, v{r8}"), V(f"v_xor_b32 v{b}, v{b}, v{p}"), V(f"v_lshlrev_b32 v{b}, 4, v{b}")]
    o += [V(f"v_lshl_add_u32 v{w.vK}, v{row}, 8, v{a}"), V(f"v_lshl_add_u32 v{w.vV}, v{row}, 8, v{b}")]
    if which == 'all':
        o += [V(f"v_mul_u32_u24 v{p}, 1280, v{row}"), V(f"v_add_u32 v{w.vX}, v{p}, v{a}"), V(f"v_add_u32 v{w.vWO}, v{p}, v{b}")]
        o += [V(f"v_and_b32 v{p}, 4, v{r8}"), V(f"v_add_u32 v{p}, v{p}, v{r8}"), S(f"s_lshl_b32 s{sT2}, s{sT1}, 4"), V(f"v_add_u32 v{p}, s{sT2}, v{p}"),
              V(f"v_lshl_add_u32 v{w.vW}, v{p}, 13, v{b}")]
    return o

def add_addr(regs_, delta):
    if delta == 0: return []
    if isinstance(delta, str): return [V(f"v_add_u32 v{r}, {delta}, v{r}") for r in regs_]
    return [V(f"v_add_u32 v{r}, {delta & 0xffffffff:#x}, v{r}") for r in regs_]

def finish(code, pending=None, pre=()):
    c, q = add_lgkm_waits(code, pending)
    return fix_hazards(c, pre), q

def wo_tail(w):
    out = []
    if w.nq == 3: out.append(S(f"s_mul_i32 s{sT1}, s{sWave}, 3"))
    else: out += [S(f"s_lshl_b32 s{sT1}, s{sWave}, 1"), S(f"s_add_u32 s{sT1}, s{sT1}, 4")]
    out += lane_setup(w)
    out += [V(f"v_mbcnt_lo_u32_b32 v{w.tmp}, -1, 0"), V(f"v_mbcnt_hi_u32_b32 v{w.tmp}, -1, v{w.tmp}"), V(f"v_lshlrev_b32 v{w.tmp}, 4, v{w.tmp}")]
    for j in range(w.nq):
        out += [S(f"s_add_u32 s{sT2}, s{sT1}, {j}"), S(f"s_and_b32 s{sT3}, s{sT2}, 3"), S(f"s_lshl_b32 s{sT3}, s{sT3}, 5"),
                V(f"v_xor_b32 v{w.T+j}, s{sT3}, v{w.aT}"),
                S(f"s_lshr_b32 s{sT2}, s{sT2}, 2"), S(f"s_lshl_b32 s{sT2}, s{sT2}, 11"), S(f"s_add_u32 s{sT2}, s{sT2}, {XBUF[0]}"),
                V(f"v_add_u32 v{w.T+j}, s{sT2}, v{w.T+j}"),
                ds_read(2, w.q(0, j), w.T + j, 0, tr=True), ds_read(2, w.q(0, j) + 2, w.T + j, 10240, tr=True)]
    out += [S(f"s_mul_i32 s{sT2}, s2, 20"), S(f"s_add_u32 s{sT2}, s{sT2}, s{sT1}"), S(f"s_lshl_b32 s{sT2}, s{sT2}, 10"),
            S(f"s_add_u32 s{sT2}, s{sT2}, {WOT_OFF}")]
    for j in range(w.nq):
        out.append(bstore(4, w.q(0, j), w.tmp, sWS, f"s{sT2}", j * 1024))
    return out

def touches(w, first):
    out = []
    t = w.tmp + 1
    out += [V(f"v_mbcnt_lo_u32_b32 v{t}, -1, 0"), V(f"v_mbcnt_hi_u32_b32 v{t}, -1, v{t}"),
            V(f"v_lshrrev_b32 v{t+1}, 2, v{t}"), V(f"v_and_b32 v{t}, 3, v{t}"), V(f"v_lshlrev_b32 v{t}, 7, v{t}"),
            V(f"v_lshl_add_u32 v{t}, v{t+1}, 13, v{t}")]
    out += [S(f"s_and_b32 s{sT0}, s{sB}, 3"), S(f"s_lshl_b32 s{sT0}, s{sT0}, 2"), S(f"s_add_u32 s{sT0}, s{sT0}, s{sWave}"),
            S(f"s_mul_i32 s{sT0}, s{sT0}, {40*8192}"), S(f"s_lshl_b32 s{sT1}, s{sG}, 10"), S(f"s_add_u32 s{sT0}, s{sT0}, s{sT1}")]
    if not first: out.append(S(f"s_add_u32 s{sT0}, s{sT0}, 512"))
    for i in range(3):
        out.append(bload(1, w.dummy, t, sW, f"s{sT0}"))
        if i < 2: out.append(S(f"s_add_u32 s{sT0}, s{sT0}, {(16 if i == 0 else 8)*8192}"))
    out += [V(f"v_mbcnt_lo_u32_b32 v{t}, -1, 0"), V(f"v_mbcnt_hi_u32_b32 v{t}, -1, v{t}"), V(f"v_lshlrev_b32 v{t}, 7, v{t}"),
            S(f"s_mul_i32 s{sT0}, s{sB}, 204800"), S(f"s_mul_i32 s{sT1}, s{sG}, 25600"), S(f"s_add_u32 s{sT0}, s{sT0}, s{sT1}"),
            S(f"s_mul_i32 s{sT1}, s{sWave}, 5760"), S(f"s_add_u32 s{sT0}, s{sT0}, s{sT1}"),
            bload(1, w.dummy, t, sX, f"s{sT0}")]
    return out

def flat(G): return [i for g in G for i in g]

def gen_w3():
    w = Wave(3); nm = 24
    aN = [w.aN, w.aN + 1]; aT = [w.aT + i for i in range(4)]
    C = [label("L_w3")]
    C += lane_setup(w)
    C += [S(f"s_lshr_b32 s{sT0}, s{sWave}, 1"), S(f"s_and_b32 s{sT0}, s{sT0}, 1"), S(f"s_lshl_b32 s{sT0}, s{sT0}, 13"),
          S(f"s_and_b32 s{sT1}, s{sWave}, 1"), S(f"s_mul_i32 s{sT1}, s{sT1}, 6144"),
          S(f"s_sub_u32 s{sXd}, s{sT0}, s{sT1}"),
          S(f"s_mov_b32 s{sLdsWO}, s{sXd}"),
          S(f"s_add_u32 s{sT0}, s{sT0}, {W_SLOT0*SLOT}"), S(f"s_add_u32 s{sT1}, s{sT1}, {XBUF[0]}")]
    C += add_addr(aT, f"s{sT0}") + add_addr(aN, f"s{sT1}")
    if Cfg.startbar: C += [barrier()]
    if Cfg.touch: C += touches(w, True)
    C += voff_setup(w, 'kv')
    C += flat(dma_kv(w, 'K', 1, False, None)) + flat(dma_kv(w, 'K', 2, False, None))
    C, _ = finish(C)
    out = C
    def one(L): return [[i] for i in L]
    def wadv():
        return [S(f"s_add_u32 s{sCnt}, s{sCnt}, 1"), S(f"s_cmp_eq_u32 s{sCnt}, 3"), S(f"s_cselect_b32 s{sD}, {(-2*SLOT) & 0xffffffff:#x}, s68"),
                S(f"s_cselect_b32 s{sCnt}, 0, s{sCnt}")] + add_addr(aT, f"s{sD}")
    def xadv(): return add_addr(aN, f"s{sXd}") + [S(f"s_sub_u32 s{sXd}, 0, s{sXd}")]
    def qstage(s, zero=False, extra=()):
        p = s & 1
        adv_ = wadv() + (xadv() if p == 1 else []) + list(extra)
        L = [barrier()] + spread(q_mfmas(w, 1 - p, zero), [(q_reads(w, p, p), 0, 16), (one(adv_), 17, 22)]) + [wait(lgkm=0)]
        k = [i for i, c in enumerate(L) if c.kind == 'mfma'][Cfg.qcut]
        return L[:k], L[k:]
    C = [label("L_w3_round")] + stamp(w, 0) + [barrier()] + stamp(w, 1)
    C += flat(q_reads(w, 0, 0))
    C += voff_setup(w, 'kv')
    C += flat(dma_kv(w, 'K', 0, False, None)) + flat(dma_kv(w, 'V', 0, False, None))
    C += add_addr(aT, SLOT)
    C += [S(f"s_mov_b32 s{sCnt}, 1"), S(f"s_mov_b32 s{sXd}, 20480"), S(f"s_mov_b32 s{sLoop}, 8")]
    C += [wait(lgkm=0)]
    h1, t1 = qstage(1, zero=True); he, te = qstage(2); ho, to = qstage(3)
    C += h1 + t1 + he
    C, q = finish(C); out += C
    B = [label("L_w3_q")] + te + ho + to + he
    B += [S(f"s_sub_u32 s{sLoop}, s{sLoop}, 1"), S(f"s_cmp_lg_u32 s{sLoop}, 0"), branch("s_cbranch_scc1", "L_w3_q")]
    Bc, q2 = finish(B, q, pre=out[-12:]); Bc2, _ = finish(B, q2, pre=Bc[-12:])
    assert emit(Bc) == emit(Bc2)
    out += Bc
    curT = (W_SLOT0 + 2) * SLOT; curN = XBUF[0]
    h19, t19 = qstage(19, extra=add_addr(aN, f"s{sLdsWO}") + add_addr(aN, item_slot(kidx(0)) - curN) + add_addr(aT, item_slot(vidx(0)) - curT))
    C = te + h19 + t19
    C += stamp(w, 40) + [wait(vm=0), barrier()] + stamp(w, 41)
    k0 = frags_QK(w, 'zero')
    k1 = frags_QK(w, 'negm', pre=add_addr(aN, item_slot(kidx(1)) - item_slot(kidx(0))))
    w.fpos = 0
    C += stream(w, k0, 0, k1, lead=q_mfmas(w, 1, False), fillers=q_pack_fillers(w))
    C += first_max(w)
    C += stamp(w, 42) + [barrier()] + stamp(w, 43)
    C += flat(softmax_groups(w, 0)) + check_and_accum(w, 0, first=True, check=False)
    v0 = frags_PV(w, 0, zero=True)
    if Cfg.touch:
        C += [S(f"s_cmp_lg_u32 s{sRound}, 0"), branch("s_cbranch_scc1", "L_w3_notouch")] + touches(w, False) + [label("L_w3_notouch")]
    C += [S(f"s_mov_b32 s{sKpos}, {item_slot(kidx(1))}"), S(f"s_mov_b32 s{sVpos}, {item_slot(vidx(0))}"), S(f"s_mov_b32 s{sLoop}, 7")]
    C += stream(w, k1, Cfg.LA, v0)
    C += stamp(w, 44) + [barrier()] + stamp(w, 45)
    def adv(pos, rr):
        return [S(f"s_cmp_ge_u32 s{pos}, {LDS_BYTES - 2*SLOT}"), S(f"s_cselect_b32 s{sD}, {(2*SLOT - LDS_BYTES) & 0xffffffff:#x}, s69"),
                S(f"s_add_u32 s{pos}, s{pos}, s{sD}")] + add_addr(rr, f"s{sD}")
    def pv(par): return frags_PV(w, par, pre=adv(sVpos, aT))
    def qk(): return frags_QK(w, 'negm', pre=adv(sKpos, aN))
    C += stream(w, v0, Cfg.LA, qk(), fillers=[(softmax_groups(w, 1), 0, nm)])
    C += check_and_accum(w, 1)
    C, q = finish(C, q2, pre=out[-12:]); out += C
    B = [label("L_w3_a")]
    for par in (1, 0):
        B += stream(w, qk(), Cfg.LA, pv(par))
        B += [barrier()]
        B += stream(w, pv(par), Cfg.LA, qk(), fillers=[(softmax_groups(w, 1 - par), 0, nm)])
        B += check_and_accum(w, 1 - par)
    B += [S(f"s_sub_u32 s{sLoop}, s{sLoop}, 1"), S(f"s_cmp_lg_u32 s{sLoop}, 0"), branch("s_cbranch_scc1", "L_w3_a")]
    Bc, q2 = finish(B, q, pre=out[-12:]); Bc2, _ = finish(B, q2, pre=Bc[-12:])
    assert emit(Bc) == emit(Bc2)
    out += Bc
    C = stamp(w, 74)
    C += stream(w, pv(1), 0, [], fillers=epi_fillers(w))
    C += stamp(w, 75) + stamp(w, 77, True)
    curT = item_slot(vidx(15)); curN = item_slot(kidx(16))
    C += add_addr(aT, W_SLOT0 * SLOT - curT) + add_addr(aN, XBUF[0] - curN) + [V(f"v_subrev_u32 v{r}, s{sLdsWO}, v{r}") for r in aN]
    C += round_advance()
    C += [branch("s_cbranch_scc1", "L_w3_round")]
    C += [barrier()] + wo_tail(w) + [raw("s_endpgm")]
    C, q = finish(C, q2, pre=out[-12:]); out += C
    out += rare_routine(w, 0) + rare_routine(w, 1)
    return out

def round_advance():
    return [S(f"s_add_u32 s{sKVbase}, s{sKVbase}, 262144"), S(f"s_add_u32 s{sWbase}, s{sWbase}, 512"),
            S(f"s_add_u32 s{sOst}, s{sOst}, {8*10240}"), S(f"s_add_u32 s{sRound}, s{sRound}, 1"), S(f"s_cmp_lt_u32 s{sRound}, 2")]

def gen_w2():
    w = Wave(2); nm = 16
    aN = [w.aN, w.aN + 1]; aT = [w.aT + i for i in range(4)]
    sch = loader_schedule()
    def items(idx):
        G = []
        for kind, i, nx in sch[idx]:
            tag = (kind, i, nx)
            if Cfg.no_dma and not (kind == 'X' and nx and i == 0): continue
            if kind in 'KV': G += dma_kv(w, kind, i, nx, tag)
            elif kind == 'W': G += dma_w(w, i, nx, tag)
            elif kind == 'X':
                if nx and i == 0:
                    g = [S(f"s_cmp_lg_u32 s{sRound}, 0"), branch("s_cbranch_scc1", "L_w2_wo")] + flat(dma_x(w, i, tag)) + [label("L_w2_wo_back")]
                    G.append(g)
                else: G += dma_x(w, i, tag)
        return G
    pro = [label("L_w2")] + stamp(w, 101)
    if Cfg.prio == 1: pro += [raw("s_setprio 1")]
    addr0 = [S(f"s_lshr_b32 s{sT0}, s{sWave}, 1"), S(f"s_and_b32 s{sT0}, s{sT0}, 1"), S(f"s_lshl_b32 s{sT0}, s{sT0}, 13"),
            S(f"s_and_b32 s{sT1}, s{sWave}, 1"), S(f"s_lshl_b32 s{sT1}, s{sT1}, 12"), S(f"s_add_u32 s{sT1}, s{sT1}, {6*2048}"),
            S(f"s_sub_u32 s{sXd}, s{sT0}, s{sT1}"),
            S(f"s_add_u32 s{sT0}, s{sT0}, {W_SLOT0*SLOT}"), S(f"s_add_u32 s{sT1}, s{sT1}, {XBUF[0]}")]
    addr0 += add_addr(aT, f"s{sT0}") + add_addr(aN, f"s{sT1}")
    pro += voff_setup(w, 'all')
    pro += flat(dma_w(w, 0, False, ('W', 0, True))) + flat(dma_x(w, 0, ('X', 0, True))) + flat(dma_w(w, 1, False, ('W', 1, True))) \
        + flat(dma_w(w, 2, False, ('W', 2, True))) + flat(dma_x(w, 1, ('X', 1, True)))
    pro += stamp(w, 102)
    if Cfg.startbar: pro += [barrier()]
    pro += lane_setup(w) + addr0
    C = [label("L_w2_round")] + stamp(w, 76, True)
    def bar(idx, lgkm=None):
        b = wait(vm=63, lgkm=lgkm); b.tag = (('need', idx), lgkm)
        return stamp(w, 2 * idx) + [b, barrier()] + stamp(w, 2 * idx + 1)
    def one(L): return [[i] for i in L]
    prio = lambda p: [raw(f"s_setprio {p}")] if Cfg.prio == 2 else []
    curT = W_SLOT0 * SLOT; curN = XBUF[0]
    C += prio(1)
    for s in range(20):
        if s < 19:
            newT = (W_SLOT0 + (s + 1) % 3) * SLOT; newN = XBUF[((s + 1) >> 1) & 1]
            adv_ = add_addr(aT, newT - curT) + add_addr(aN, newN - curN); curT, curN = newT, newN
        else:
            adv_ = add_addr(aN, f"s{sXd}") + add_addr(aN, item_slot(kidx(0)) - curN) + add_addr(aT, item_slot(vidx(0)) - curT)
        C += bar(s, lgkm=0)
        if s == 0: C += flat(q_reads(w, 0, 0)) + flat(items(0)) + adv_
        else: C += spread(q_mfmas(w, (s - 1) & 1, s == 1), [(q_reads(w, s & 1, s & 1), 0, 10), (items(s), 0, nm - 2), (one(adv_), 11, 15)])
    C += bar(20, lgkm=0)
    def qk(t, fc='negm'): return frags_QK(w, fc, pre=add_addr(aN, item_slot(kidx(t)) - item_slot(kidx(t - 1))) if t else [])
    def pv(t): return frags_PV(w, t & 1, zero=(t == 0), pre=add_addr(aT, item_slot(vidx(t)) - item_slot(vidx(t - 1))) if t else [])
    w.fpos = 0
    C += stream(w, qk(0, 'zero'), 0, qk(1), lead=q_mfmas(w, 1, False), fillers=[(items(20), 0, 2 * nm)] + q_pack_fillers(w))
    C += first_max(w)
    C += flat(softmax_groups(w, 0)) + check_and_accum(w, 0, first=True, check=False)
    for t in range(15):
        C += prio(0)
        C += bar(21 + t)
        if 21 + t == 33:
            C += [S(f"s_cmp_lg_u32 s{sRound}, 0"), S(f"s_cselect_b32 s{sK+2}, 0, s{sK+2}"), S(f"s_cselect_b32 s{sW+2}, 0, s{sW+2}"),
                  S(f"s_cselect_b32 s{sX+2}, 0, s{sX+2}")]
        C += stream(w, qk(t + 1), Cfg.LA, pv(t), fillers=[(items(21 + t), 0, nm)])
        C += prio(1)
        C += stream(w, pv(t), Cfg.LA, qk(t + 2) if t < 14 else [], fillers=[(softmax_groups(w, (t + 1) & 1), 2, nm)])
        C += check_and_accum(w, (t + 1) & 1)
    C += prio(0)
    C += bar(36)
    C += flat(items(36))
    C += stamp(w, 74)
    C += stream(w, pv(15), 0, [], fillers=epi_fillers(w))
    C += stamp(w, 75) + stamp(w, 77, True)
    curT = item_slot(vidx(15)); curN = item_slot(kidx(15))
    C += add_addr(aT, W_SLOT0 * SLOT - curT) + add_addr(aN, XBUF[0] - curN) + [V(f"v_subrev_u32 v{r}, s{sXd}, v{r}") for r in aN]
    C += round_advance()
    C += [branch("s_cbranch_scc1", "L_w2_round")]
    def vm_ops(code): return [c for c in code if c.kind in ('dma', 'vload', 'vstore')]
    def resolve(prefix):
        res = {}
        q = [(c.tag[0], c.tag[1], 0) if c.tag and c.tag[0] != 'ost' and c.tag[2] else None for c in vm_ops(prefix)]
        for c in C:
            if c.kind in ('dma', 'vload', 'vstore'):
                q.append((c.tag[0], c.tag[1], 1 if c.tag[2] else 0) if c.tag[0] != 'ost' else None)
            elif c.kind == 'wait' and isinstance(c.tag[0], tuple):
                idx = c.tag[0][1]
                last = -1
                for k, it in enumerate(q):
                    if it is not None and it[2] == 0 and first_use(it[0], it[1]) <= idx: last = k
                res[idx] = min(63, len(q) - 1 - last)
        return res
    r1 = resolve(pro); r2 = resolve(C)
    for c in C:
        if c.kind == 'wait' and isinstance(c.tag[0], tuple):
            idx = c.tag[0][1]; n = min(r1[idx], r2[idx]); lg = c.tag[1]
            c.text = f"s_waitcnt vmcnt({n})" + (f" lgkmcnt({lg})" if lg is not None else ""); c.tag = (n, lg)
    C += [wait(vm=0), barrier()] + wo_tail(w)
    if Cfg.dbgst:
        C += [wait(vm=0), raw("s_memtime s[92:93]"), raw("s_memrealtime s[94:95]"), wait(lgkm=0)]
        C += [S(f"s_mov_b32 s{sWS+2}, {128<<20}")]
        C += [S(f"s_cmp_lg_u32 s{sWave}, 4"), branch("s_cbranch_scc1", "L_dbg_end"), S("s_cmp_lg_u32 s2, 100"), branch("s_cbranch_scc1", "L_dbg_end"),
              S("s_mov_b64 exec, 1"), V(f"v_mov_b32 v0, {DBG_OFF}")]
        C += [V("v_mov_b32 v1, s76"), bstore(1, 1, 0, sWS, 0, 0), V("v_mov_b32 v2, s94"), bstore(1, 2, 0, sWS, 0, 4),
              S("s_sub_u32 s92, s92, s74"), V("v_mov_b32 v3, s92"), bstore(1, 3, 0, sWS, 0, 8)]
        for n, i in enumerate([0, 1, 2, 3, 4, 5, 8, 9, 10, 11]):
            C += [S(f"s_sub_u32 s{78+i}, s{78+i}, s74"), V(f"v_mov_b32 v{4+i}, s{78+i}"), bstore(1, 4 + i, 0, sWS, 0, 12 + 4 * n)]
        C += [label("L_dbg_end")]
    C += [raw("s_endpgm")]
    C += [label("L_w2_wo")] + flat(dma_wo(w, None)) + [branch("s_branch", "L_w2_wo_back")]
    pro, _ = finish(pro)
    C, q = finish(C, [], pre=pro[-12:])
    return pro + C + rare_routine(w, 0) + rare_routine(w, 1)

def srd(base, ptr, nbytes):
    return [S(f"s_mov_b32 s{base}, s{ptr}"), S(f"s_mov_b32 s{base+1}, s{ptr+1}"), S(f"s_mov_b32 s{base+2}, {nbytes}"), S(f"s_mov_b32 s{base+3}, 0x20000")]

def gen_k1(name):
    C = [raw(f".globl {name}\n.p2align 8\n.type {name},@function\n{name}:", 'label')]
    C += [S("s_cmp_lt_u32 s2, 256"), branch("s_cbranch_scc1", "L_k1_go"), raw("s_endpgm"), label("L_k1_go")]
    C += [raw("s_load_dwordx8 s[56:63], s[0:1], 0"), raw("s_load_dwordx2 s[64:65], s[0:1], 32"), raw("s_load_dwordx2 s[66:67], s[0:1], 56")]
    if Cfg.dbgst: C += [raw("s_memtime s[74:75]"), raw("s_memrealtime s[76:77]"), raw("s_load_dwordx2 s[90:91], s[0:1], 48")]
    C += [V("v_lshrrev_b32 v1, 6, v0"), V(f"v_readfirstlane_b32 s{sWave}, v1")]
    C += [S(f"s_and_b32 s{sB}, s2, 7"), S(f"s_lshl_b32 s{sB}, s{sB}, 2"), S(f"s_lshr_b32 s{sT0}, s2, 3"), S(f"s_and_b32 s{sT1}, s{sT0}, 3"),
          S(f"s_add_u32 s{sB}, s{sB}, s{sT1}"), S(f"s_lshr_b32 s{sG}, s{sT0}, 2"), S(f"s_mov_b32 s{sRound}, 0")]
    C += [S(f"s_lshr_b32 s{sT0}, s{sWave}, 1"), S(f"s_and_b32 s{sT0}, s{sT0}, 1"), S(f"s_and_b32 s{sT1}, s{sWave}, 1"),
          S(f"s_lshl_b32 s{sT2}, s{sG}, 2"), S(f"s_add_u32 s{sT2}, s{sT2}, s{sT0}"),
          S(f"s_lshl_b32 s{sWbase}, s{sT2}, 8"),
          S(f"s_lshl_b32 s{sT3}, s{sB}, 5"), S(f"s_add_u32 s{sT3}, s{sT3}, s{sT2}"), S(f"s_lshl_b32 s{sKVbase}, s{sT3}, 17"),
          S(f"s_mul_i32 s{sOst}, s{sT3}, 40960"),
          S(f"s_lshl_b32 s{sLdsKV}, s{sT0}, 13"), S(f"s_lshl_b32 s{sT2}, s{sT1}, 10"), S(f"s_add_u32 s{sLdsKV}, s{sLdsKV}, s{sT2}"),
          S(f"s_mul_i32 s{sLdsX}, s{sT0}, 10240"), S(f"s_add_u32 s{sLdsX}, s{sLdsX}, s{sT2}"), S(f"s_mov_b32 s{sLdsWO}, s{sLdsX}"),
          S(f"s_mul_i32 s{sXbase}, s{sB}, 204800"), S(f"s_mul_i32 s{sT2}, s{sT0}, 102400"), S(f"s_add_u32 s{sXbase}, s{sXbase}, s{sT2}"),
          S(f"s_lshr_b32 s{sT2}, s2, 1"), S(f"s_mul_i32 s{sWObase}, s{sT2}, 40960"), S(f"s_mul_i32 s{sT2}, s{sT0}, 20480"), S(f"s_add_u32 s{sWObase}, s{sWObase}, s{sT2}"),
          S(f"s_and_b32 s{sT2}, s2, 1"), S(f"s_mul_i32 s{sT2}, s{sT2}, 640"), S(f"s_add_u32 s{sWObase}, s{sWObase}, s{sT2}")]
    C += [S(f"s_mov_b32 s{sQS}, {f2u(QSCALE)}")]
    C += [S(f"s_mov_b32 s68, {SLOT}"), S(f"s_mov_b32 s69, {2*SLOT}")]
    C += [raw("s_waitcnt lgkmcnt(0)")]
    C += stamp(None, 100)
    C += srd(sX, 56, 6553600) + srd(sK, 58, 134217728) + srd(sV, 60, 134217728) + srd(sW, 62, 5242880) + srd(sWO, 64, 5242880) + srd(sWS, 66, (128 << 20) if Cfg.stamps else WS_BYTES)
    if Cfg.stamps:
        C += [S(f"s_lshl_b32 s{sStamp+2}, s2, 3"), S(f"s_add_u32 s{sStamp+2}, s{sStamp+2}, s{sWave}"), S(f"s_lshl_b32 s{sStamp+2}, s{sStamp+2}, 10"),
              S(f"s_add_u32 s{sStamp+2}, s{sStamp+2}, {DBG_OFF}")]
    C += [S(f"s_cmp_ge_u32 s{sWave}, 4"), branch("s_cbranch_scc1", "L_k1_w2"),
          S(f"s_mul_i32 s{sT2}, s{sT1}, 3072"), S(f"s_add_u32 s{sOst}, s{sOst}, s{sT2}"), branch("s_branch", "L_w3"),
          label("L_k1_w2"), S(f"s_lshl_b32 s{sT2}, s{sT1}, 11"), S(f"s_add_u32 s{sT2}, s{sT2}, 6144"), S(f"s_add_u32 s{sOst}, s{sOst}, s{sT2}"),
          branch("s_branch", "L_w2")]
    C = fix_hazards(C)
    C += gen_w3() + gen_w2()
    for k, tag, par in CTX.stubs:
        C += [label(f"L_stub{k}"), raw(f"s_call_b64 s[{sRet}:{sRet+1}], L_rare_{tag}_{par}", 'branch'), branch("s_branch", f"L_back{k}")]
    return C

def gen_k2(name):
    DEPTH = 4
    vB, vA = 0, 10
    FR = 16
    tmp = FR + 60 * DEPTH
    def fB(st, jj): return FR + 60 * st + 4 * jj
    def fA(st, nn): return FR + 60 * st + 40 + 4 * nn
    def acc(jj, nn): return (jj * 5 + nn) * 4
    sOUT, sWS2 = 8, 12
    sSB, sSA = 20, 21
    C = [raw(f".globl {name}\n.p2align 8\n.type {name},@function\n{name}:", 'label')]
    C += [S("s_cmp_lt_u32 s2, 256"), branch("s_cbranch_scc1", "L_k2_go"), raw("s_endpgm"), label("L_k2_go")]
    C += [raw("s_load_dwordx2 s[4:5], s[0:1], 40"), raw("s_load_dwordx2 s[6:7], s[0:1], 56")]
    if Cfg.dbgst: C += [raw("s_memtime s[74:75]"), raw("s_memrealtime s[76:77]"), raw("s_load_dwordx2 s[90:91], s[0:1], 48")]
    C += [V("v_lshrrev_b32 v16, 6, v0"), V("v_readfirstlane_b32 s16, v16"), V("v_and_b32 v15, 63, v0"), V("v_lshlrev_b32 v15, 4, v15")]
    C += [S("s_and_b32 s17, s2, 7"), S("s_lshl_b32 s17, s17, 2"), S("s_lshr_b32 s18, s2, 3"), S("s_and_b32 s19, s18, 3"),
          S("s_add_u32 s17, s17, s19"), S("s_lshr_b32 s18, s18, 2")]
    C += [S("s_and_b32 s22, s16, 1"), S("s_lshr_b32 s23, s16, 1")]
    C += [S("s_cmp_lg_u32 s23, 0")]
    for x in range(5): C.append(S(f"s_cselect_b32 s{40+x}, {4-x}, {x}"))
    C += [S("s_mul_i32 s24, s22, 5"), S("s_sub_u32 s25, 5, s24")]
    for x in range(5):
        C += [S(f"s_add_u32 s{30+x}, s{40+x}, s24"), S(f"s_add_u32 s{35+x}, s{40+x}, s25")]
    for jj in range(10): C += [S(f"s_lshl_b32 s26, s{30+jj}, 10"), V(f"v_add_u32 v{vB+jj}, s26, v15")]
    for nn in range(5): C += [S(f"s_lshl_b32 s26, s{40+nn}, 10"), V(f"v_add_u32 v{vA+nn}, s26, v15")]
    C += [S("s_lshl_b32 s26, s17, 7"), S("s_lshl_b32 s27, s16, 5"), S("s_add_u32 s26, s26, s27"), S(f"s_mul_i32 s{sSB}, s26, 10240"),
          S("s_mul_i32 s27, s27, 40960"), S("s_mul_i32 s26, s18, 5120"), S(f"s_add_u32 s{sSA}, s27, s26"), S(f"s_add_u32 s{sSA}, s{sSA}, {WOT_OFF}")]
    C += [raw("s_waitcnt lgkmcnt(0)")]
    C += srd(sOUT, 4, 6553600) + srd(sWS2, 6, (128 << 20) if Cfg.stamps else WS_BYTES)
    def loads(st):
        G = [[bload(4, fA(st, nn), vA + nn, sWS2, f"s{sSA}")] for nn in range(5)]
        G += [[bload(4, fB(st, jj), vB + jj, sWS2, f"s{sSB}")] for jj in range(10)]
        if Cfg.k2_noadv: G[-1] = G[-1] + [S(f"s_xor_b32 s{sSA}, s{sSA}, 65536"), S(f"s_xor_b32 s{sSB}, s{sSB}, 65536")]
        else: G[-1] = G[-1] + [S(f"s_add_u32 s{sSA}, s{sSA}, 40960"), S(f"s_add_u32 s{sSB}, s{sSB}, 10240")]
        return G
    def mms(st, zero):
        return [mfma(acc(jj, nn), fA(st, nn), fB(st, jj), None if zero else acc(jj, nn), df='a', cf='a') for jj in range(10) for nn in range(5)]
    def st2(k): return [raw(f"s_memtime s[{60+2*k}:{61+2*k}]"), wait(lgkm=0)] if Cfg.stamps else []
    C += st2(0)
    for st in range(DEPTH - 1): C += flat(loads(st))
    def step(ks, zero=False, load=True, vm=None):
        st = ks % DEPTH
        c = [wait(vm=15 * (DEPTH - 2) if vm is None else vm)]
        mm = mms(st, zero)
        if Cfg.k2_nomfma and load and not zero: mm = mm[:15]
        c += spread(mm, [(loads((ks - 1) % DEPTH), 0, Cfg.k2_span)] if load else [])
        return c
    C += step(0, zero=True)
    C += st2(1)
    C += [S("s_mov_b32 s28, 7")]
    C = fix_hazards(C)
    B = [label("L_k2_loop")]
    for u in range(DEPTH): B += step(1 + u)
    B += [S("s_sub_u32 s28, s28, 1"), S("s_cmp_lg_u32 s28, 0"), branch("s_cbranch_scc1", "L_k2_loop")]
    C += fix_hazards(B, pre=C[-12:])
    E = st2(2) + step(29, load=False, vm=30) + step(30, load=False, vm=15) + step(31, load=False, vm=0) + st2(3)
    lw = 16; lr = 17
    E += [S("s_mul_i32 s26, s16, 25600"), V(f"v_add_u32 v{lw}, s26, v15"), S("s_xor_b32 s27, s16, 1"), S("s_mul_i32 s26, s27, 25600"), V(f"v_add_u32 v{lr}, s26, v15")]
    E += [nop(7)]
    for i in range(25): E.append(ds_write(4, lw, acc(5, 0) + 4 * i, i * 1024, f='a'))
    E += [wait(lgkm=0), barrier()]
    RB = 32
    for i in range(25): E.append(ds_read(4, RB + 4 * i, lr, i * 1024))
    for i in range(25):
        for r in range(4):
            E.append(V(f"v_accvgpr_read_b32 v{RB+100+r}, a{4*i+r}"))
        for r in range(4):
            E.append(V(f"v_add_f32 v{RB+4*i+r}, v{RB+4*i+r}, v{RB+100+r}"))
    E += [wait(lgkm=0), barrier()]
    E += [S("s_xor_b32 s27, s16, 2"), S("s_mul_i32 s26, s27, 25600"), V(f"v_add_u32 v{lr}, s26, v15")]
    for i in range(12, 25): E.append(ds_write(4, lw, RB + 4 * i, (24 - i) * 1024))
    E += [wait(lgkm=0), barrier()]
    R2 = RB + 104
    for i in range(13): E.append(ds_read(4, R2 + 4 * i, lr, i * 1024))
    E += [V("v_lshrrev_b32 v18, 4, v15"), V("v_and_b32 v19, 15, v18"), V("v_lshrrev_b32 v18, 4, v18"),
          V("v_mul_u32_u24 v19, 1280, v19"), V("v_lshl_add_u32 v19, v18, 3, v19"),
          S("s_mul_i32 s26, s17, 204800"), S("s_mul_i32 s27, s18, 160"), S("s_add_u32 s26, s26, s27")]
    for i in range(13):
        jj, nn = divmod(i, 5)
        a = RB + 4 * i; b = R2 + 4 * i
        for r in range(4): E.append(V(f"v_add_f32 v{a+r}, v{a+r}, v{b+r}"))
        E += [V(f"v_cvt_pk_bf16_f32 v{a}, v{a}, v{a+1}"), V(f"v_cvt_pk_bf16_f32 v{a+1}, v{a+2}, v{a+3}"),
              S(f"s_mul_i32 s27, s{30+jj}, 20480"), S(f"s_lshl_b32 s29, s{40+nn}, 5"), S("s_add_u32 s27, s27, s29"), S("s_add_u32 s27, s27, s26"),
              bstore(2, a, 19, sOUT, "s27")]
    if Cfg.stamps:
        E += st2(4) + [wait(vm=0)] + st2(5)
        E += [S("s_lshl_b32 s26, s2, 2"), S("s_add_u32 s26, s26, s16"), S("s_lshl_b32 s26, s26, 5"), S(f"s_add_u32 s26, s26, {DBG_OFF + (4<<20)}"), V("v_mov_b32 v21, 0")]
        for k in range(6): E += [V(f"v_mov_b32 v20, s{60+2*k}"), bstore(1, 20, 21, sWS2, "s26", 4 * k)]
    if Cfg.dbgst:
        E += [wait(vm=0), raw("s_memtime s[92:93]"), raw("s_memrealtime s[94:95]"), wait(lgkm=0)]
        E += [S("s_cmp_lg_u32 s16, 0"), branch("s_cbranch_scc1", "L_dbg2_end"), S("s_cmp_lg_u32 s2, 100"), branch("s_cbranch_scc1", "L_dbg2_end")]
        E += [S(f"s_mov_b32 s{sWS2+2}, {128<<20}")] + srd(sOUT, 90, 256)
        E += [V("v_lshrrev_b32 v20, 2, v15"), S("s_mov_b64 exec, 0x1fff"), S(f"s_mov_b32 s26, {DBG_OFF}"), bload(1, 21, 20, sWS2, "s26"), wait(vm=0), bstore(1, 21, 20, sOUT, 0),
              S("s_mov_b64 exec, 1"), V("v_mov_b32 v22, s76"), bstore(1, 22, 20, sOUT, 0, 52), V("v_mov_b32 v23, s94"), bstore(1, 23, 20, sOUT, 0, 56),
              S("s_sub_u32 s92, s92, s74"), V("v_mov_b32 v24, s92"), bstore(1, 24, 20, sOUT, 0, 60)]
        E += [label("L_dbg2_end")]
    E += [raw("s_endpgm")]
    E, _ = finish(E, [], pre=C[-12:])
    return C + E

def kd(name, vgpr, accum, sgpr=96):
    return f""".section .rodata,"a"
.p2align 6
.amdhsa_kernel {name}
  .amdhsa_next_free_vgpr {vgpr}
  .amdhsa_next_free_sgpr {sgpr}
  .amdhsa_accum_offset {accum}
  .amdhsa_group_segment_fixed_size 0
  .amdhsa_kernarg_size 64
  .amdhsa_user_sgpr_count 2
  .amdhsa_user_sgpr_kernarg_segment_ptr 1
  .amdhsa_system_sgpr_workgroup_id_x 1
.end_amdhsa_kernel
"""

HDR = open('standalone__mha_block_cached__near_ridge.s.ref').read().split('; Override launch')[0]
def main(path):
    k1, k2 = "mha_attn_kernel", "mha_oproj_kernel"
    s = HDR
    s += f"; @launch kernel={k1} grid=(256,1,1) block=(512,1,1) lds={LDS_BYTES}\n"
    s += f"; @launch kernel={k2} grid=(256,1,1) block=(256,1,1) lds=102400\n"
    s += '.amdgcn_target "amdgcn-amd-amdhsa--gfx950"\n.text\n'
    s += emit(gen_k1(k1)) + emit(gen_k2(k2))
    s += kd(k1, 256, 256) + kd(k2, 456, 256)
    open(path, 'w').write(s)
if __name__ == '__main__':
    for a in sys.argv[2:]:
        k, v = a.split('='); setattr(Cfg, k, eval(v))
    main(sys.argv[1] if len(sys.argv) > 1 else 'mha.s')
```

```python
import sys, math, struct
from ir import *

SLOT = 16384
NSLOT = 10
W_SLOT0 = 4
XBUF = [114688, 135168]
LDS_BYTES = 163840
O_BYTES = 32 * 128 * 10 * 1024
XCH_OFF = O_BYTES
XCH_WG = 8 * 7168
WS_BYTES = XCH_OFF + 256 * XCH_WG
QSCALE = math.log2(math.e) / math.sqrt(128.0)
THR = 16384.0
def f2u(x): return "0x%08x" % struct.unpack('<I', struct.pack('<f', x))[0]

sK, sV, sW, sX, sWS, sWO, sOUT, sDBG = 8, 12, 16, 20, 24, 28, 76, 80
sWave, sRound, sB, sG = 32, 33, 34, 35
sKVbase, sWbase, sXbase, sLdsKV, sLdsX = 36, 37, 38, 39, 40
sT0, sT1 = 41, 42
sKpos, sVpos, sD, sCnt, sXd, sLoop = 43, 44, 45, 49, 50, 51
sRet = 46
sOst = 48
sKX, sFlag = 52, 53
sT2, sT3 = 54, 55
sQS, sC16, sC32 = 72, 73, 74
sStamp = 84
DBG_OFF = 64 << 20

class Cfg:
    stamps = False
    LA = 7
    kv_pol = 'nt'
    touch_pol = ''
    touch_at = [1, 3, 5, 7, 9, 11, 13, 15, 17]
    codetouch = True
    qcut = 8
    prio = 2
    no_sm = False
    no_dma = False
    no_exp = False
    no_chk = False
    no_ds = False
    no_adv = False
    ost_pol = 'sc1'
    old_pol = 'sc1'
    smend = 3

STAMP3 = (0, 1, 7, 39, 41, 43, 45, 73, 75, 76, 77, 80, 81, 82, 83, 84, 85, 86)
def stamp(t, k, real=False):
    if not Cfg.stamps: return []
    if Cfg.stamps == 3 and k not in STAMP3: return []
    return [raw(f"{'s_memrealtime' if real else 's_memtime'} s[{sStamp}:{sStamp+1}]"), wait(lgkm=0), V(f"v_mov_b32 v{t}, s{sStamp}"), V(f"v_mov_b32 v{t+1}, 0"),
            S(f"s_and_b32 s{sStamp+1}, s{sRound}, 1"), S(f"s_lshl_b32 s{sStamp+1}, s{sStamp+1}, 9"), S(f"s_add_u32 s{sStamp+1}, s{sStamp+1}, s{sStamp+2}"),
            bstore(1, t, t + 1, sWS, f"s{sStamp+1}", 4 * k, tag=('misc',))]

def item_slot(n): return (n % NSLOT) * SLOT
def kidx(t): return 0 if t == 0 else 2 * t - 1
def vidx(t): return 2 * t + 2

class Wave:
    def __init__(self, nq):
        self.nq = nq
        n = nq
        p = 0
        self.O = p; p += 32 * n
        self.Q = p; p += 16 * n
        self.NM = p; p += 4 * n
        self.S = p; p += 8 * n
        self.P = p; p += 8 * n
        self.L = p; p += n
        self.LT = p; p += n
        self.T = p; p += 4
        self.aN = p; p += 2
        self.aT = p; p += 4
        p = (p + 3) & ~3
        self.F = p; self.NF = 8; p += 32
        self.dummy = p; p += 1
        self.tmp = p; p += 3
        if nq == 2:
            self.vK = p; self.vV = p + 1; self.vW = p + 2; self.vX = p + 3; self.vTch = p + 4; p += 5
        assert p <= 256, p
        self.end = p
        setsz = 32 + 4 * n
        if nq == 3:
            self.set = [self.Q, self.S]
        else:
            q = (p + 3) & ~3
            self.set = [self.Q, q]
            assert q + setsz <= 256
        self.tag = f"w{nq}"
        self.fpos = 0
    def o(self, T, j): return self.O + (T * self.nq + j) * 4
    def q(self, s, j): return self.Q + (s * self.nq + j) * 4
    def nm(self, j): return self.NM + 4 * j
    def s(self, kb, j): return self.S + (kb * self.nq + j) * 4
    def p(self, par, j): return self.P + (par * self.nq + j) * 4
    def fa(self, st, T): return self.set[st] + 4 * T
    def fb(self, st, j): return self.set[st] + 32 + 4 * j

def spread(base, fillers):
    ins = [[] for _ in range(len(base) + 1)]
    for groups, lo, hi in fillers:
        n = len(groups)
        if n == 0: continue
        hi = min(hi, len(base)); lo = min(lo, hi)
        span = hi - lo
        for k, gI in enumerate(groups):
            pos = lo + (k * span) // n + 1 if span > 0 else lo
            ins[min(pos, len(base))].extend(gI)
    out = list(ins[0])
    for i, b in enumerate(base):
        out.append(b); out.extend(ins[i + 1])
    return out

def frag_K(w, s, kb, first_c):
    def reads(f): return [ds_read(4, f, w.aN + (s & 1), kb * 4096 + (s >> 1) * 2048)]
    def mf(f):
        out = []
        for j in range(w.nq):
            c = w.s(kb, j) if s > 0 else (None if first_c == 'zero' else w.nm(j))
            out.append(mfma(w.s(kb, j), f, w.q(s, j), c))
        return out
    return dict(reads=reads, mf=mf, pre=[])
def frags_QK(w, first_c='negm', pre=()):
    fr = [frag_K(w, s, kb, first_c) for s in range(4) for kb in range(2)]
    fr[0]['pre'] = list(pre)
    return fr
def frag_V(w, db, par, zero):
    def reads(f): return [ds_read(2, f + 2 * hh, w.aT + (db & 3), hh * 4096 + (db >> 2) * 2048, tr=True) for hh in range(2)]
    def mf(f): return [mfma(w.o(db, j), f, w.p(par, j), None if zero else w.o(db, j)) for j in range(w.nq)]
    return dict(reads=reads, mf=mf, pre=[])
def frags_PV(w, par, zero=False, pre=()):
    fr = [frag_V(w, db, par, zero) for db in range(8)]
    fr[0]['pre'] = list(pre)
    return fr

def stream(w, frags, preloaded, nxt, fillers=(), lead=()):
    LA = Cfg.LA
    allf = list(frags) + list(nxt[:LA])
    head = []
    def issue(i):
        f = allf[i]
        return ([] if Cfg.no_adv else list(f['pre'])) + ([] if Cfg.no_ds else f['reads'](w.F + 4 * ((w.fpos + i) % w.NF)))
    for i in range(preloaded, min(LA, len(allf))): head += issue(i)
    base = list(lead); extra = []
    for i, f in enumerate(frags):
        m = f['mf'](w.F + 4 * ((w.fpos + i) % w.NF))
        base += m
        post = []
        if i + LA < len(allf) and i + LA >= preloaded: post += issue(i + LA)
        if post: extra.append(([post], len(base) - 1, len(base)))
    body = spread(base, list(extra) + list(fillers))
    w.fpos = (w.fpos + len(frags)) % w.NF
    return head + body

def softmax_groups(w, par):
    G = []
    k = 0
    for kb in range(2):
        for j in range(w.nq):
            for h in range(2):
                t0 = w.T + 2 * (k & 1); t1 = t0 + 1; k += 1
                sr = w.s(kb, j) + 2 * h
                G.append([V(f"v_exp_f32 v{t0}, v{sr}")])
                G.append([V(f"v_exp_f32 v{t1}, v{sr+1}")])
                lt = w.LT + j
                if kb == 0 and h == 0:
                    G.append(('late', [V(f"v_add_f32 v{lt}, v{t0}, v{t1}"), V(f"v_cvt_pk_bf16_f32 v{w.p(par,j)+2*kb+h}, v{t0}, v{t1}")]))
                else:
                    G.append(('late', [V(f"v_add_f32 v{lt}, v{lt}, v{t0}"), V(f"v_cvt_pk_bf16_f32 v{w.p(par,j)+2*kb+h}, v{t0}, v{t1}"),
                                       V(f"v_add_f32 v{lt}, v{lt}, v{t1}")]))
    if Cfg.no_sm: return [[V(f"v_mov_b32 v{w.LT+j}, 1.0")] for j in range(w.nq)]
    if Cfg.no_exp:
        for gI in G:
            if not isinstance(gI, tuple): gI[0] = V(gI[0].text.replace('v_exp_f32', 'v_mov_b32'))
    out = []; pend = None
    for gI in G:
        if isinstance(gI, tuple):
            pend = gI[1]
        else:
            out.append(gI)
            if pend is not None:
                out.append(pend); pend = None
    if pend is not None: out.append(pend)
    return out

class Ctx:
    def __init__(self): self.stubs = []; self.n = 0
CTX = Ctx()

def check_cmp(w):
    if Cfg.no_chk: return []
    out = []
    if w.nq == 3: out.append(V(f"v_max3_f32 v{w.tmp}, v{w.LT}, v{w.LT+1}, v{w.LT+2}"))
    else: out.append(V(f"v_max_f32 v{w.tmp}, v{w.LT}, v{w.LT+1}"))
    out.append(I(f"v_cmp_nge_f32 vcc, {f2u(THR)}, v{w.tmp}", 'valu', wr={('s', 'vcc')}, rd=regs(w.tmp)))
    return out
def check_branch(w, par):
    if Cfg.no_chk: return []
    k = CTX.n; CTX.n += 1
    CTX.stubs.append((k, w.tag, par))
    return [branch("s_cbranch_vccnz", f"L_stub{k}"), label(f"L_back{k}")]
def l_accum(w, first=False):
    if first: return [V(f"v_mov_b32 v{w.L+j}, v{w.LT+j}") for j in range(w.nq)]
    return [V(f"v_add_f32 v{w.L+j}, v{w.L+j}, v{w.LT+j}") for j in range(w.nq)]
def sm_fillers(w, par, lo):
    nm = 8 * w.nq
    return [(softmax_groups(w, par) + [check_cmp(w)], lo, nm - Cfg.smend)]

def xlane(op, r, t):
    return [V(f"v_mov_b32 v{t}, v{r}"), V(f"v_permlane32_swap_b32 v{r}, v{t}"), V(f"{op} v{r}, v{r}, v{t}"),
            V(f"v_mov_b32 v{t}, v{r}"), V(f"v_permlane16_swap_b32 v{r}, v{t}"), V(f"{op} v{r}, v{r}, v{t}")]

def tile_max(w, j, dst):
    a, b = w.s(0, j), w.s(1, j)
    return [V(f"v_max3_f32 v{dst}, v{a}, v{a+1}, v{a+2}"), V(f"v_max3_f32 v{dst}, v{dst}, v{a+3}, v{b}"),
            V(f"v_max3_f32 v{dst}, v{dst}, v{b+1}, v{b+2}"), V(f"v_max_f32 v{dst}, v{dst}, v{b+3}")]

def first_max(w):
    out = []
    for j in range(w.nq): out += tile_max(w, j, w.LT + j)
    seqs = [xlane("v_max_f32", w.LT + j, w.T + j) for j in range(w.nq)]
    for k in range(6):
        for sq in seqs: out.append(sq[k])
    for j in range(w.nq):
        for r in range(4): out.append(V(f"v_sub_f32 v{w.nm(j)+r}, 0, v{w.LT+j}"))
        for kb in range(2):
            for r in range(4): out.append(V(f"v_sub_f32 v{w.s(kb,j)+r}, v{w.s(kb,j)+r}, v{w.LT+j}"))
    return out

def rare_routine(w, par):
    out = [label(f"L_rare_{w.tag}_{par}"), nop(15)]
    for j in range(w.nq):
        d = w.LT + j; f = w.T + 1
        out += tile_max(w, j, d)
        out += xlane("v_max_f32", d, w.T)
        out.append(V(f"v_max_f32 v{d}, 0, v{d}"))
        out.append(V(f"v_sub_f32 v{f}, 0, v{d}"))
        out.append(V(f"v_exp_f32 v{f}, v{f}"))
        for r in range(4): out.append(V(f"v_sub_f32 v{w.nm(j)+r}, v{w.nm(j)+r}, v{d}"))
        for kb in range(2):
            for r in range(4): out.append(V(f"v_sub_f32 v{w.s(kb,j)+r}, v{w.s(kb,j)+r}, v{d}"))
        out.append(V(f"v_mul_f32 v{w.L+j}, v{w.L+j}, v{f}"))
        for T in range(8):
            for r in range(4): out.append(V(f"v_mul_f32 v{w.o(T,j)+r}, v{w.o(T,j)+r}, v{f}"))
    for gI in softmax_groups(w, par): out += gI
    out.append(nop(3))
    out.append(raw(f"s_setpc_b64 s[{sRet}:{sRet+1}]", 'branch'))
    return fix_hazards(out)

def q_reads(w, st, sl):
    G = []
    for j in range(w.nq): G.append([ds_read(4, w.fb(st, j), w.aN + sl, j * 2048)])
    for T in range(8):
        for hh in range(2):
            G.append([ds_read(2, w.fa(st, T) + 2 * hh, w.aT + (T & 3), hh * 4096 + (T >> 2) * 2048, tr=True)])
    return G
def q_mfmas(w, st, zero):
    return [mfma(w.o(T, j), w.fa(st, T), w.fb(st, j), None if zero else w.o(T, j)) for T in range(8) for j in range(w.nq)]

def q_pack_groups(w, s):
    G = []
    for j in range(w.nq):
        for half in range(2):
            a = w.o(2 * s + half, j)
            for r in range(4): G.append([V(f"v_mul_f32 v{a+r}, s{sQS}, v{a+r}")])
            G.append([V(f"v_cvt_pk_bf16_f32 v{w.q(s,j)+2*half}, v{a}, v{a+1}")])
            G.append([V(f"v_cvt_pk_bf16_f32 v{w.q(s,j)+2*half+1}, v{a+2}, v{a+3}")])
    for op in ("v_permlane32_swap_b32", "v_permlane16_swap_b32"):
        for j in range(w.nq):
            q = w.q(s, j)
            G.append([V(f"{op} v{q}, v{q+2}")]); G.append([V(f"{op} v{q+1}, v{q+3}")])
    return G
def q_pack_fillers(w):
    n = w.nq
    rng = [(2 * n + 2, 5 * n), (5 * n, 8 * n), (8 * n, 11 * n), (11 * n, 14 * n - 1)]
    return [(q_pack_groups(w, s), rng[s][0], rng[s][1]) for s in range(4)]

def l_reduce(w):
    out = []
    seqs = [xlane("v_add_f32", w.L + j, w.T + j) for j in range(w.nq)]
    for k in range(6):
        for sq in seqs: out.append(sq[k])
    for j in range(w.nq): out.append(V(f"v_rcp_f32 v{w.L+j}, v{w.L+j}"))
    out += [V(f"v_mbcnt_lo_u32_b32 v{w.tmp}, -1, 0"), V(f"v_mbcnt_hi_u32_b32 v{w.tmp}, -1, v{w.tmp}"), V(f"v_lshlrev_b32 v{w.tmp}, 4, v{w.tmp}")]
    return out
def epi_groups(w, s):
    G = []
    for j in range(w.nq):
        d = w.q(s, j)
        for half in range(2):
            a = w.o(2 * s + half, j)
            for r in range(4): G.append([V(f"v_mul_f32 v{a+r}, v{a+r}, v{w.L+j}")])
            G.append([V(f"v_cvt_pk_bf16_f32 v{d+2*half}, v{a}, v{a+1}")])
            G.append([V(f"v_cvt_pk_bf16_f32 v{d+2*half+1}, v{a+2}, v{a+3}")])
        G.append([S(f"s_add_u32 s{sT1}, s{sOst}, {s*10240}"), bstore(4, d, w.tmp, sWS, f"s{sT1}", j * 1024, Cfg.ost_pol, tag=('O', 0, True))])
    return G
def epi_fillers(w):
    n = w.nq
    rng = [(2 * n + 2, 4 * n + 2), (4 * n + 2, 6 * n + 2), (6 * n + 2, 8 * n), (8 * n, 8 * n)]
    return [([[i] for i in l_reduce(w)], 0, 2 * n + 1)] + [(epi_groups(w, s), rng[s][0], rng[s][1]) for s in range(4)]

def flat(G): return [i for g in G for i in g]
def one(L): return [[i] for i in L]

def dma_kv(w, kind, t, nxt_round, tag):
    srd_ = sK if kind == 'K' else sV
    voff = w.vK if kind == 'K' else w.vV
    n = kidx(t) if kind == 'K' else vidx(t)
    lds = item_slot(n)
    goff = t * 8192 + (262144 if nxt_round else 0)
    G = []
    for a in range(2):
        for seg in range(2):
            G.append([S(f"s_add_u32 m0, s{sLdsKV}, {lds + a*4096 + seg*2048 - seg*128}"),
                      S(f"s_add_u32 s{sT0}, s{sKVbase}, {goff + a*4096}"),
                      dma(voff, srd_, f"s{sT0}", seg * 128, Cfg.kv_pol, tag=tag)])
    return G
def dma_w(w, s, nxt_round, tag):
    lds = (W_SLOT0 + s % 3) * SLOT
    goff = s * 32 * 8192 + (512 if nxt_round else 0)
    G = []
    for hh in range(2):
        for seg in range(2):
            G.append([S(f"s_add_u32 m0, s{sLdsKV}, {lds + hh*4096 + seg*2048 - seg*128}"),
                      S(f"s_add_u32 s{sT0}, s{sWbase}, {goff + hh*32768}"),
                      dma(w.vW, sW, f"s{sT0}", seg * 128, tag=tag)])
    return G
def dma_x(w, u, tag):
    G = []
    for i in range(5):
        G.append([S(f"s_add_u32 m0, s{sLdsX}, {XBUF[u&1] + i*2048}"),
                  S(f"s_add_u32 s{sT0}, s{sXbase}, {i*20480 + u*128}"),
                  dma(w.vX, sX, f"s{sT0}", 0, tag=tag)])
    return G
def touch_kv(w, kind, t, p):
    srd_ = sK if kind == 'K' else sV
    return [[S(f"s_add_u32 s{sT0}, s{sKVbase}, {t*8192}"), bload(1, w.dummy, w.vTch, srd_, f"s{sT0}", p * 2048, Cfg.touch_pol, tag=('misc',))]]

NAMES = {}
for _t in range(16):
    NAMES[kidx(_t)] = ('K', _t); NAMES[vidx(_t)] = ('V', _t)
def first_use(kind, i):
    if kind == 'W': return i
    if kind == 'X': return 2 * i
    if kind == 'K': return 20 if i == 0 else 19 + i
    if kind == 'V': return 21 + i
    if kind == 'O': return 3

COND = [0]
def loader_schedule(w):
    sch = {i: [] for i in range(37)}
    for s in range(3, 20): sch[s - 2] += dma_w(w, s, False, ('W', s, False))
    for u in range(2, 10): sch[2 * u - 2] += dma_x(w, u, ('X', u, False))
    if Cfg.no_dma: return sch
    e = dma_kv(w, 'K', 0, False, ('K', 0, False)) + dma_kv(w, 'V', 0, False, ('V', 0, False))
    for i, g in enumerate(e): sch[1 + i].append(g)
    e = dma_kv(w, 'K', 1, False, ('K', 1, 'cond')) + dma_kv(w, 'K', 2, False, ('K', 2, 'cond'))
    for i, g in enumerate(e):
        k = COND[0]; COND[0] += 1
        sch[9 + i].append([S(f"s_cmp_lg_u32 s{sRound}, 0"), branch("s_cbranch_scc1", f"L_cond{k}")] + g + [label(f"L_cond{k}")])
    pieces = [(n, p) for n in range(4, 16) for p in range(2)]
    for i, idx in enumerate(Cfg.touch_at):
        n, p = pieces[i]
        sch[idx] += touch_kv(w, NAMES[n][0], NAMES[n][1], p)
    first = {6: 18, 7: 18, 4: 19, 5: 20, 8: 20, 9: 20}
    for n in (6, 7, 4, 5, 8, 9): sch[first[n]] += dma_kv(w, *NAMES[n], False, NAMES[n] + (False,))
    for n in range(10, 33):
        if n not in NAMES: continue
        k, t = NAMES[n - 10]
        last = (20 + t) if k == 'K' else min(22 + t, 36)
        sch[last + 1] += dma_kv(w, *NAMES[n], False, NAMES[n] + (False,))
    sch[33] += dma_kv(w, 'K', 1, True, ('K', 1, True)) + dma_kv(w, 'K', 2, True, ('K', 2, True))
    return sch
def loader_tail(w, sch):
    sch[34] += dma_w(w, 0, True, ('W', 0, True)) + dma_w(w, 1, True, ('W', 1, True))
    sch[35] += dma_w(w, 2, True, ('W', 2, True))
    sch[36] += dma_x(w, 0, ('X', 0, True)) + dma_x(w, 1, ('X', 1, True))

def lane_id(r): return [V(f"v_mbcnt_lo_u32_b32 v{r}, -1, 0"), V(f"v_mbcnt_hi_u32_b32 v{r}, -1, v{r}")]
def lane_setup(w):
    t = w.F + 8
    lane, i16, g, a, b, c = t, t + 1, t + 2, t + 3, t + 4, t + 5
    o = lane_id(lane) + [V(f"v_and_b32 v{i16}, 15, v{lane}"), V(f"v_lshrrev_b32 v{g}, 4, v{lane}")]
    o += [V(f"v_lshrrev_b32 v{a}, 1, v{i16}"), V(f"v_xor_b32 v{a}, v{a}, v{g}"), V(f"v_lshlrev_b32 v{a}, 4, v{a}"),
          V(f"v_lshl_add_u32 v{w.aN}, v{i16}, 7, v{a}"), V(f"v_xor_b32 v{w.aN+1}, 64, v{w.aN}")]
    o += [V(f"v_lshrrev_b32 v{a}, 2, v{lane}"), V(f"v_and_b32 v{b}, 6, v{a}"),
          V(f"v_bfe_u32 v{c}, v{lane}, 1, 1"), V(f"v_xor_b32 v{b}, v{b}, v{c}"), V(f"v_lshlrev_b32 v{b}, 4, v{b}"),
          V(f"v_lshl_add_u32 v{b}, v{a}, 7, v{b}"),
          V(f"v_and_b32 v{c}, 1, v{lane}"), V(f"v_lshl_add_u32 v{w.aT}, v{c}, 3, v{b}")]
    for dq in range(1, 4): o.append(V(f"v_xor_b32 v{w.aT+dq}, {dq<<5}, v{w.aT}"))
    return o
def voff_setup(w):
    t = w.F + 16
    r8, p, a, b, row = t, t + 1, t + 2, t + 3, t + 4
    o = [V(f"v_bfe_u32 v{row}, v0, 3, 4"),
         V(f"v_and_b32 v{p}, 7, v0"),
         V(f"v_lshrrev_b32 v{a}, 1, v{row}"), V(f"v_xor_b32 v{a}, v{a}, v{p}"), V(f"v_lshlrev_b32 v{a}, 4, v{a}"),
         V(f"v_and_b32 v{b}, 6, v{row}"), V(f"v_xor_b32 v{b}, v{b}, v{p}"), V(f"v_lshlrev_b32 v{b}, 4, v{b}"),
         V(f"v_and_b32 v{p}, 12, v{row}"), V(f"v_add_u32 v{p}, v{p}, v{row}"), V(f"v_lshl_add_u32 v{w.vW}, v{p}, 13, v{b}"),
         V(f"v_mul_u32_u24 v{p}, 1280, v{row}"), V(f"v_add_u32 v{w.vX}, v{p}, v{a}")]
    o2 = [V(f"v_lshl_add_u32 v{w.vK}, v{row}, 8, v{a}"), V(f"v_lshl_add_u32 v{w.vV}, v{row}, 8, v{b}"),
          V(f"v_and_b32 v{p}, 63, v0"), V(f"v_lshlrev_b32 v{p}, 5, v{p}"), V(f"v_bfe_u32 v{r8}, v0, 6, 1"), V(f"v_lshl_add_u32 v{w.vTch}, v{r8}, 12, v{p}")]
    return o, o2

def add_addr(regs_, delta):
    if delta == 0: return []
    if isinstance(delta, str): return [V(f"v_add_u32 v{r}, {delta}, v{r}") for r in regs_]
    return [V(f"v_add_u32 v{r}, {delta & 0xffffffff:#x}, v{r}") for r in regs_]

def finish(code, pending=None, pre=()):
    c, q = add_lgkm_waits(code, pending)
    return fix_hazards(c, pre), q

def srd(base, ptr, nbytes):
    return [S(f"s_mov_b32 s{base}, s{ptr}"), S(f"s_mov_b32 s{base+1}, s{ptr+1}"), S(f"s_mov_b32 s{base+2}, {nbytes}"), S(f"s_mov_b32 s{base+3}, 0x20000")]

def round_advance():
    return [S(f"s_add_u32 s{sKVbase}, s{sKVbase}, 262144"), S(f"s_add_u32 s{sWbase}, s{sWbase}, 512"),
            S(f"s_add_u32 s{sOst}, s{sOst}, {8*10240}"), S(f"s_add_u32 s{sRound}, s{sRound}, 1"), S(f"s_cmp_lt_u32 s{sRound}, 2")]

def flag_add(t, val, lab):
    return [V(f"v_mov_b32 v{t}, {val}"), V(f"v_mov_b32 v{t+1}, s{sFlag}"), S("s_mov_b64 exec, 1"),
            I(f"buffer_atomic_add v{t}, v{t+1}, s[{sDBG}:{sDBG+3}], 0 offen sc1", 'vstore', rd=regs(t, 2) | regs(sDBG, 4, 's'), tag=('cond',)),
            S("s_mov_b64 exec, -1"), label(lab)]

def common_scalars():
    C = srd(sK, 58, 134217728) + srd(sV, 60, 134217728) + srd(sWO, 64, 5242880) + srd(sOUT, 66, 6553600) + srd(sDBG, 68, 256) \
        + srd(sWS, 70, (128 << 20) if Cfg.stamps else WS_BYTES)
    C += [S(f"s_lshr_b32 s{sT2}, s{sWbase}, 8"),
          S(f"s_lshl_b32 s{sT3}, s{sB}, 5"), S(f"s_add_u32 s{sT3}, s{sT3}, s{sT2}"), S(f"s_lshl_b32 s{sKVbase}, s{sT3}, 17"),
          S(f"s_mul_i32 s{sOst}, s{sT3}, 40960"),
          S(f"s_lshl_b32 s{sFlag}, s{sB}, 1"), S(f"s_lshr_b32 s{sT2}, s{sG}, 2"), S(f"s_add_u32 s{sFlag}, s{sFlag}, s{sT2}"), S(f"s_lshl_b32 s{sFlag}, s{sFlag}, 2"),
          S(f"s_mov_b32 s{sRound}, 0"), S(f"s_mov_b32 s{sQS}, {f2u(QSCALE)}"), S(f"s_mov_b32 s{sC16}, {SLOT}"), S(f"s_mov_b32 s{sC32}, {2*SLOT}")]
    if Cfg.stamps:
        C += [S(f"s_lshl_b32 s{sStamp+2}, s2, 3"), S(f"s_add_u32 s{sStamp+2}, s{sStamp+2}, s{sWave}"), S(f"s_lshl_b32 s{sStamp+2}, s{sStamp+2}, 10"),
              S(f"s_add_u32 s{sStamp+2}, s{sStamp+2}, {DBG_OFF}")]
    return C
def wave_addr0(w, j0mul, j0add):
    aN = [w.aN, w.aN + 1]; aT = [w.aT + i for i in range(4)]
    C = [S(f"s_bfe_u32 s{sT0}, s{sWave}, 0x10001"), S(f"s_lshl_b32 s{sT0}, s{sT0}, 13"),
         S(f"s_and_b32 s{sT1}, s{sWave}, 1"), S(f"s_mul_i32 s{sT1}, s{sT1}, {j0mul*1024}"), S(f"s_add_u32 s{sT1}, s{sT1}, {j0add*1024}"),
         S(f"s_add_u32 s{sOst}, s{sOst}, s{sT1}"), S(f"s_lshl_b32 s{sT1}, s{sT1}, 1"),
         S(f"s_sub_u32 s{sKX}, s{sT0}, s{sT1}"),
         S(f"s_add_u32 s{sT0}, s{sT0}, {W_SLOT0*SLOT}"), S(f"s_add_u32 s{sT1}, s{sT1}, {XBUF[0]}")]
    return C + add_addr(aT, f"s{sT0}") + add_addr(aN, f"s{sT1}")

def gen_w3():
    w = Wave(3); nm = 24
    st = lambda k, real=False: stamp(w.tmp + 1, k, real)
    aN = [w.aN, w.aN + 1]; aT = [w.aT + i for i in range(4)]
    C = [label("L_w3"), raw("s_waitcnt lgkmcnt(0)")]
    if Cfg.codetouch:
        t = w.tmp + 1
        C += [raw(f"s_getpc_b64 s[{sRet}:{sRet+1}]"), label("L_pc0"),
              S(f"s_sub_u32 s{sRet}, s{sRet}, L_pc0-KSTART"), S(f"s_subb_u32 s{sRet+1}, s{sRet+1}, 0"),
              S(f"s_lshr_b32 s{sT0}, s2, 3"), S(f"s_lshl_b32 s{sT0}, s{sT0}, 2"), S(f"s_add_u32 s{sT0}, s{sT0}, s{sWave}"), S(f"s_lshl_b32 s{sT0}, s{sT0}, 7"),
              V(f"v_and_b32 v{t}, 7, v0"), V(f"v_lshlrev_b32 v{t}, 14, v{t}"), V(f"v_add_u32 v{t}, s{sT0}, v{t}"),
              V(f"v_min_u32 v{t}, KEND-KSTART-4, v{t}"),
              I(f"global_load_dword v{w.dummy}, v{t}, s[{sRet}:{sRet+1}]", 'vload', wr=regs(w.dummy), rd=regs(t) | regs(sRet, 2, 's'))]
    C += common_scalars() + lane_setup(w) + wave_addr0(w, 3, 0)
    C, _ = finish(C)
    out = C
    def wadv():
        return [S(f"s_add_u32 s{sCnt}, s{sCnt}, 1"), S(f"s_cmp_eq_u32 s{sCnt}, 3"), S(f"s_cselect_b32 s{sD}, {(-2*SLOT) & 0xffffffff:#x}, s{sC16}"),
                S(f"s_cselect_b32 s{sCnt}, 0, s{sCnt}")] + add_addr(aT, f"s{sD}")
    def xadv(): return add_addr(aN, f"s{sXd}") + [S(f"s_sub_u32 s{sXd}, 0, s{sXd}")]
    def qstage(s, zero=False, extra=()):
        p = s & 1
        adv_ = wadv() + (xadv() if p == 1 else []) + list(extra)
        L = [barrier()] + spread(q_mfmas(w, 1 - p, zero), [(q_reads(w, p, p), 0, 16), (one(adv_), 17, 22)]) + [wait(lgkm=0)]
        k = [i for i, c in enumerate(L) if c.kind == 'mfma'][Cfg.qcut]
        return L[:k], L[k:]
    C = [label("L_w3_round")] + st(0) + [barrier()] + st(1)
    C += flat(q_reads(w, 0, 0))
    C += add_addr(aT, SLOT)
    C += [S(f"s_mov_b32 s{sCnt}, 1"), S(f"s_mov_b32 s{sXd}, 20480"), S(f"s_mov_b32 s{sLoop}, 8")]
    C += [wait(lgkm=0)]
    h1, t1 = qstage(1, zero=True); he, te = qstage(2); ho, to = qstage(3)
    C += h1 + t1 + [wait(vm=0)] + he
    C, q = finish(C); out += C
    B = [label("L_w3_q")] + te + ho + to + he
    B += [S(f"s_sub_u32 s{sLoop}, s{sLoop}, 1"), S(f"s_cmp_lg_u32 s{sLoop}, 0"), branch("s_cbranch_scc1", "L_w3_q")]
    Bc, q2 = finish(B, q, pre=out[-12:]); Bc2, _ = finish(B, q2, pre=Bc[-12:])
    assert emit(Bc) == emit(Bc2)
    out += Bc
    curT = (W_SLOT0 + 2) * SLOT; curN = XBUF[0]
    h19, t19 = qstage(19, extra=add_addr(aN, f"s{sKX}") + add_addr(aN, item_slot(kidx(0)) - curN) + add_addr(aT, item_slot(vidx(0)) - curT))
    C = te + h19 + t19
    C += st(40) + [barrier()] + st(41)
    k0 = frags_QK(w, 'zero')
    k1 = frags_QK(w, 'negm', pre=add_addr(aN, item_slot(kidx(1)) - item_slot(kidx(0))))
    w.fpos = 0
    C += stream(w, k0, 0, k1, lead=q_mfmas(w, 1, False), fillers=q_pack_fillers(w))
    C += first_max(w)
    C += st(42) + [barrier()] + st(43)
    C += flat(softmax_groups(w, 0)) + l_accum(w, first=True)
    v0 = frags_PV(w, 0, zero=True)
    C += [S(f"s_mov_b32 s{sKpos}, {item_slot(kidx(1))}"), S(f"s_mov_b32 s{sVpos}, {item_slot(vidx(0))}"), S(f"s_mov_b32 s{sLoop}, 7")]
    C += stream(w, k1, Cfg.LA, v0)
    C += st(44) + [barrier()] + st(45)
    def adv(pos, rr):
        return [S(f"s_cmp_ge_u32 s{pos}, {LDS_BYTES - 2*SLOT}"), S(f"s_cselect_b32 s{sD}, {(2*SLOT - LDS_BYTES) & 0xffffffff:#x}, s{sC32}"),
                S(f"s_add_u32 s{pos}, s{pos}, s{sD}")] + add_addr(rr, f"s{sD}")
    def pv(par): return frags_PV(w, par, pre=adv(sVpos, aT))
    def qk(): return frags_QK(w, 'negm', pre=adv(sKpos, aN))
    C += stream(w, v0, Cfg.LA, qk(), fillers=sm_fillers(w, 1, 0))
    C += check_branch(w, 1)
    C, q = finish(C, q2, pre=out[-12:]); out += C
    B = [label("L_w3_a")]
    for par in (1, 0):
        B += stream(w, qk(), Cfg.LA, pv(par), fillers=[(one(l_accum(w)), 4, 10)])
        B += [barrier()]
        lp = [(one([S(f"s_sub_u32 s{sLoop}, s{sLoop}, 1"), S(f"s_cmp_lg_u32 s{sLoop}, 0")]), nm - 2, nm)] if par == 0 else []
        B += stream(w, pv(par), Cfg.LA, qk(), fillers=sm_fillers(w, 1 - par, 0) + lp)
        B += check_branch(w, 1 - par)
    B += [branch("s_cbranch_scc1", "L_w3_a")]
    Bc, q2 = finish(B, q, pre=out[-12:]); Bc2, _ = finish(B, q2, pre=Bc[-12:])
    assert emit(Bc) == emit(Bc2)
    out += Bc
    C = st(74) + l_accum(w)
    C += stream(w, pv(1), 0, [], fillers=epi_fillers(w))
    C += st(75) + st(77, True)
    curT = item_slot(vidx(15)); curN = item_slot(kidx(16))
    C += add_addr(aT, W_SLOT0 * SLOT - curT) + add_addr(aN, XBUF[0] - curN) + [V(f"v_subrev_u32 v{r}, s{sKX}, v{r}") for r in aN]
    C += round_advance()
    C += [branch("s_cbranch_scc1", "L_w3_round"), branch("s_branch", "L_o")]
    C, q = finish(C, q2, pre=out[-12:]); out += C
    assert not q
    return out, rare_routine(w, 0) + rare_routine(w, 1)

def gen_w2():
    w = Wave(2); nm = 16
    st = lambda k, real=False: stamp(w.tmp + 1, k, real)
    aN = [w.aN, w.aN + 1]; aT = [w.aT + i for i in range(4)]
    sch = loader_schedule(w); loader_tail(w, sch)
    items = lambda idx: sch[idx]
    vo1, vo2 = voff_setup(w)
    pro = vo1 + [raw("s_waitcnt lgkmcnt(0)")] + srd(sW, 62, 5242880) + srd(sX, 56, 6553600)
    pro += flat(dma_w(w, 0, False, ('W', 0, True))) + flat(dma_x(w, 0, ('X', 0, True))) + flat(dma_w(w, 1, False, ('W', 1, True))) \
        + flat(dma_w(w, 2, False, ('W', 2, True))) + flat(dma_x(w, 1, ('X', 1, True)))
    pro += vo2 + common_scalars() + lane_setup(w) + wave_addr0(w, 2, 6)
    C = [label("L_w2_round")] + st(76, True)
    def bar(idx, lgkm=None):
        b = wait(vm=63, lgkm=lgkm); b.tag = (('need', idx), lgkm)
        return st(2 * idx) + [b, barrier()] + st(2 * idx + 1)
    prio = lambda p: [raw(f"s_setprio {p}")] if Cfg.prio == 2 else []
    curT = W_SLOT0 * SLOT; curN = XBUF[0]
    C += prio(1)
    for s in range(20):
        if s < 19:
            newT = (W_SLOT0 + (s + 1) % 3) * SLOT; newN = XBUF[((s + 1) >> 1) & 1]
            adv_ = add_addr(aT, newT - curT) + add_addr(aN, newN - curN); curT, curN = newT, newN
        else:
            adv_ = add_addr(aN, f"s{sKX}") + add_addr(aN, item_slot(kidx(0)) - curN) + add_addr(aT, item_slot(vidx(0)) - curT)
        C += bar(s, lgkm=0)
        ex = []
        if s == 3:
            ex = [([[S(f"s_lshl_b32 s{sT1}, s{sRound}, 3"), S(f"s_add_u32 s{sT1}, s{sT1}, s{sWave}"), S(f"s_cmp_lg_u32 s{sT1}, 12"),
                     branch("s_cbranch_scc1", "L_nofl1")] + flag_add(w.tmp + 1, 1, "L_nofl1")], 11, 12)]
        if s == 0: C += flat(q_reads(w, 0, 0)) + flat(items(0)) + adv_
        else: C += spread(q_mfmas(w, (s - 1) & 1, s == 1), [(q_reads(w, s & 1, s & 1), 0, 10), (items(s), 0, nm - 2), (one(adv_), 11, 15)] + ex)
    C += bar(20, lgkm=0)
    def qk(t, fc='negm'): return frags_QK(w, fc, pre=add_addr(aN, item_slot(kidx(t)) - item_slot(kidx(t - 1))) if t else [])
    def pv(t): return frags_PV(w, t & 1, zero=(t == 0), pre=add_addr(aT, item_slot(vidx(t)) - item_slot(vidx(t - 1))) if t else [])
    w.fpos = 0
    C += stream(w, qk(0, 'zero'), 0, qk(1), lead=q_mfmas(w, 1, False), fillers=[(items(20), 0, 2 * nm)] + q_pack_fillers(w))
    C += first_max(w)
    C += flat(softmax_groups(w, 0))
    for t in range(15):
        C += prio(0)
        C += bar(21 + t)
        if 21 + t == 33:
            C += [S(f"s_cmp_lg_u32 s{sRound}, 0"), S(f"s_cselect_b32 s{sK+2}, 0, s{sK+2}"), S(f"s_cselect_b32 s{sW+2}, 0, s{sW+2}"),
                  S(f"s_cselect_b32 s{sX+2}, 0, s{sX+2}")]
        C += stream(w, qk(t + 1), Cfg.LA, pv(t), fillers=[(items(21 + t), 0, nm), (one(l_accum(w, first=(t == 0))), 3, 8)])
        C += prio(1)
        C += stream(w, pv(t), Cfg.LA, qk(t + 2) if t < 14 else [], fillers=sm_fillers(w, (t + 1) & 1, 2))
        C += check_branch(w, (t + 1) & 1)
    C += prio(0)
    C += bar(36)
    C += flat(items(36))
    C += st(74) + l_accum(w)
    C += stream(w, pv(15), 0, [], fillers=epi_fillers(w))
    C += st(75) + st(77, True)
    curT = item_slot(vidx(15)); curN = item_slot(kidx(15))
    C += add_addr(aT, W_SLOT0 * SLOT - curT) + add_addr(aN, XBUF[0] - curN) + [V(f"v_subrev_u32 v{r}, s{sKX}, v{r}") for r in aN]
    C += round_advance()
    C += [branch("s_cbranch_scc1", "L_w2_round"), branch("s_branch", "L_o")]
    VM = ('dma', 'vload', 'vstore')
    def resolve(prefix, cond_present):
        res = {}
        q = [(c.tag[0], c.tag[1]) if len(c.tag) == 3 and c.tag[2] is True else None for c in prefix if c.kind in VM and c.tag[-1] != 'cond']
        for c in C:
            if c.kind in VM:
                if c.tag[-1] == 'cond' and not (cond_present and len(c.tag) == 3): continue
                q.append((c.tag[0], c.tag[1]) if len(c.tag) == 3 and c.tag[2] is not True else None)
            elif c.kind == 'wait' and isinstance(c.tag[0], tuple):
                idx = c.tag[0][1]
                last = -1
                for k, it in enumerate(q):
                    if it is not None and first_use(it[0], it[1]) <= idx: last = k
                res[idx] = min(63, len(q) - 1 - last)
        return res
    r1 = resolve(pro, True); r2 = resolve(C, False)
    for c in C:
        if c.kind == 'wait' and isinstance(c.tag[0], tuple):
            idx = c.tag[0][1]; n = min(r1[idx], r2[idx]); lg = c.tag[1]
            c.text = f"s_waitcnt vmcnt({n})" + (f" lgkmcnt({lg})" if lg is not None else ""); c.tag = (n, lg)
    pro, _ = finish(pro)
    C, q = finish(C, [], pre=pro[-12:])
    assert not q
    return pro + C, rare_routine(w, 0) + rare_routine(w, 1)

OSLOT = 40960
def gen_o():
    ACC = 0; SET = [100, 140]
    aB, aA0, aA1 = 180, 182, 184
    VOFF, POLL, VFL, T, L16 = 186, 187, 188, 190, 196
    sSo, sHi, sNeed, sLd, sBase, sKs, sNq = 36, 37, 38, 39, 40, 43, 44
    st = lambda k, real=False: stamp(T, k, real)
    def acc(t): return ACC + 4 * t
    def fB(s_, jj): return SET[s_] + 4 * jj
    def fA(s_, nn): return SET[s_] + 20 + 4 * nn
    C = [label("L_o")] + st(80)
    if Cfg.prio: C += [raw("s_setprio 0")]
    lane = T; a = T + 1; b = T + 2
    C += lane_id(lane) + [V(f"v_lshlrev_b32 v{L16}, 4, v{lane}")]
    C += [S(f"s_lshr_b32 s{sKs}, s{sWave}, 2"), S(f"s_mul_i32 s{sT0}, s{sKs}, 20480"), S(f"s_and_b32 s{sT1}, s{sWave}, 1"), S(f"s_mul_i32 s{sT1}, s{sT1}, 5120"),
          S(f"s_add_u32 s{sLd}, s{sT0}, s{sT1}"),
          V(f"v_add_u32 v{aB}, s{sLd}, v{L16}"), V(f"v_add_u32 v{aB+1}, {2*OSLOT}, v{aB}"),
          V(f"v_lshrrev_b32 v{a}, 2, v{lane}"), V(f"v_bfe_u32 v{b}, v{lane}, 4, 1"), V(f"v_lshlrev_b32 v{b}, 5, v{b}"), V(f"v_lshl_add_u32 v{b}, v{a}, 6, v{b}"),
          V(f"v_and_b32 v{a}, 3, v{lane}"), V(f"v_lshl_add_u32 v{b}, v{a}, 3, v{b}"),
          S(f"s_add_u32 s{sT0}, s{sT0}, 10240"), V(f"v_add_u32 v{aA0}, s{sT0}, v{b}"), V(f"v_xor_b32 v{aA1}, 32, v{aA0}"),
          V(f"v_add_u32 v{aA0+1}, {2*OSLOT}, v{aA0}"), V(f"v_add_u32 v{aA1+1}, {2*OSLOT}, v{aA1}"),
          V(f"v_mov_b32 v{VFL}, s{sFlag}"), S(f"s_and_b32 s{sNq}, s{sG}, 3"), S(f"s_mov_b32 s{sHi}, 0"), S(f"s_mov_b32 s{sNeed}, 0"),
          S(f"s_mov_b32 s{sCnt}, 0x40000")]
    C += [S(f"s_bitcmp1_b32 s{sWave}, 1"), branch("s_cbranch_scc1", "L_o_1")]
    C = fix_hazards(C)
    def poll_load(): return bload(1, POLL, VFL, sDBG, 0, 0, 'sc1')
    epi_entry = {}
    for nh in range(2):
        step = 10240 if nh == 0 else 40960
        R_ = [label(f"L_o_{nh}")]
        if nh == 0:
            R_ += [V(f"v_mov_b32 v{VOFF}, v{L16}"), S(f"s_mul_i32 s{sBase}, s{sB}, {128*10240}"), S(f"s_add_u32 s{sBase}, s{sBase}, s{sT1}")]
        else:
            R_ += [V(f"v_lshrrev_b32 v{a}, 2, v{lane}"), V(f"v_mul_u32_u24 v{a}, 1280, v{a}"), V(f"v_bfe_u32 v{b}, v{lane}, 4, 1"), V(f"v_lshlrev_b32 v{b}, 1, v{b}"),
                   V(f"v_and_b32 v{VOFF}, 3, v{lane}"), V(f"v_xor_b32 v{VOFF}, v{VOFF}, v{b}"), V(f"v_lshl_add_u32 v{VOFF}, v{VOFF}, 4, v{a}"),
                   S(f"s_lshl_b32 s{sBase}, s{sT1}, 2"), S(f"s_mul_i32 s{sT2}, s{sNq}, 320"), S(f"s_add_u32 s{sBase}, s{sBase}, s{sT2}"),
                   S(f"s_add_u32 s{sLd}, s{sLd}, 10240")]
        def head_setup():
            return [S(f"s_add_u32 s{sT2}, s{sG}, s{sHi}"), S(f"s_and_b32 s{sT2}, s{sT2}, 3"), S(f"s_and_b32 s{sT3}, s{sG}, 4"), S(f"s_add_u32 s{sT2}, s{sT2}, s{sT3}"),
                    S(f"s_lshl_b32 s{sT2}, s{sT2}, 2"), S(f"s_lshr_b32 s{sT3}, s{sHi}, 2"), S(f"s_lshl_b32 s{sT3}, s{sT3}, 1"), S(f"s_add_u32 s{sT2}, s{sT2}, s{sT3}"),
                    S(f"s_add_u32 s{sT2}, s{sT2}, s{sKs}"), S(f"s_mul_i32 s{sT2}, s{sT2}, {4*step}"), S(f"s_add_u32 s{sSo}, s{sBase}, s{sT2}"),
                    S(f"s_add_u32 s{sHi}, s{sHi}, 1")]
        def odma(u):
            G = []
            for i in range(5):
                if nh == 0:
                    imm = (i & 3) * 1024; ex = (i >> 2) * 4096
                    g = [S(f"s_add_u32 m0, s{sLd}, {u*OSLOT + ex}"), S(f"s_add_u32 s{sT0}, s{sSo}, {u*step + ex}")] if imm == 0 else []
                    G.append(g + [dma(VOFF, sWS, f"s{sT0}", imm, Cfg.old_pol)])
                else:
                    g = [S(f"s_add_u32 m0, s{sLd}, {u*OSLOT + i*1024 - i*64}")]
                    if i == 0: g.append(S(f"s_add_u32 s{sT0}, s{sSo}, {u*step}"))
                    G.append(g + [dma(VOFF, sWO, f"s{sT0}", i * 64)])
            return G
        def oreads(u):
            s_ = u & 1; hi = u >> 1; off = (u & 1) * OSLOT
            G = []
            for k in range(5):
                nb = 5 * nh + k
                ar = (aA1 if nb & 1 else aA0) + hi
                G.append([ds_read(2, fA(s_, k) + 2 * hh, ar, off + (hh * 5 + (nb >> 1)) * 1024, tr=True) for hh in range(2)])
                G.append([ds_read(4, fB(s_, k), aB + hi, off + k * 1024)])
            return G
        def omf(s_, order=None):
            return [mfma(acc(t), fA(s_, t % 5), fB(s_, t // 5), acc(t)) for t in (order or range(25))]
        def spin(lab, shift, need, mask=0xff, vfl=VFL):
            return [label(lab), bload(1, POLL, vfl, sDBG, 0, 0, 'sc1'), S(f"s_sub_u32 s{sCnt}, s{sCnt}, 1"), S(f"s_cmp_lt_i32 s{sCnt}, 0"), branch("s_cbranch_scc1", lab + "_x"),
                    wait(vm=0), V(f"v_readfirstlane_b32 s{sT2}, v{POLL}"),
                    S(f"s_lshr_b32 s{sT2}, s{sT2}, {shift}"), S(f"s_and_b32 s{sT2}, s{sT2}, {mask}"), S(f"s_cmp_lt_u32 s{sT2}, {need}"),
                    branch("s_cbranch_scc1", lab), label(lab + "_x")]
        R_ += head_setup()
        if nh == 0: R_ += spin("L_o_spin1", 0, 4)
        else: R_ += [wait(vm=0)]
        R_ += [barrier()] + st(81)
        for u in range(3): R_ += flat(odma(u))
        if nh == 1:
            R_ += [S(f"s_cmp_lg_u32 s{sWave}, 2"), branch("s_cbranch_scc1", "L_nofl2")] + flag_add(T, 0x100, "L_nofl2")
        for r in range(100): R_.append(V(f"v_mov_b32 v{ACC+r}, 0"))
        R_ += [S(f"s_mov_b32 s{sLoop}, 7")]
        R_ += [wait(vm=10), barrier()] + st(82)
        R_ += flat(oreads(0)) + flat(odma(3))
        R_, q = finish(R_)
        NP = 1 if nh == 0 else 0
        def ostage(u, load=True, vm=None, extra=()):
            L = [wait(vm=vm, lgkm=0), barrier()]
            fill = [(oreads(u), 0, 16)]
            pre_ = []
            if load:
                if u == 1:
                    pre_ = head_setup()
                    if nh == 0:
                        pre_ += [S(f"s_cmp_ge_u32 s{sHi}, 6"), S(f"s_cselect_b32 s{sNeed}, 4, 0"), V(f"v_readfirstlane_b32 s{sT2}, v{POLL}"),
                                 S(f"s_lshr_b32 s{sT2}, s{sT2}, 8"), S(f"s_and_b32 s{sT2}, s{sT2}, 0xff"), S(f"s_cmp_lt_u32 s{sT2}, s{sNeed}"),
                                 branch("s_cbranch_scc1", "L_o_spin2"), label("L_o_spin2_back")]
                    fill.append((one(pre_), 0, 6))
                d = odma((u + 3) & 3)
                if u == 2 and nh == 0: d = [[poll_load()]] + d
                fill.append((d, 7, 23))
            fill += list(extra)
            return L + spread(omf(1 - (u & 1)), fill)
        B = [label(f"L_o_loop{nh}")]
        B += ostage(1, vm=10)
        B += ostage(2, vm=10) + ostage(3, vm=10)
        B += ostage(0, vm=10, extra=[(one([S(f"s_sub_u32 s{sLoop}, s{sLoop}, 1"), S(f"s_cmp_lg_u32 s{sLoop}, 0")]), 23, 25)])
        B += [branch("s_cbranch_scc1", f"L_o_loop{nh}")]
        Bc, q2 = finish(B, q, pre=R_[-12:]); Bc2, _ = finish(B, q2, pre=Bc[-12:])
        assert emit(Bc) == emit(Bc2)
        E = ostage(1, load=False, vm=10) + ostage(2, load=False, vm=5) + ostage(3, load=False, vm=0) + [wait(lgkm=0)] + st(83)
        E += [branch("s_branch", "L_o_epi")]
        if nh == 0: E += spin("L_o_spin2", 8, 4) + [branch("s_branch", "L_o_spin2_back")]
        E, _ = finish(E, q2, pre=Bc[-12:])
        C += R_ + Bc + E
    TS = [list(range(0, 7)), list(range(7, 13)), list(range(13, 19)), list(range(19, 25))]
    LW, LR, VO, VP = T, T + 1, T + 2, T + 3
    RB = 200
    E = [label("L_o_epi"),
         S(f"s_mul_i32 s{sT0}, s{sWave}, 13312"), V(f"v_add_u32 v{LW}, s{sT0}, v{L16}"),
         S(f"s_xor_b32 s{sT1}, s{sWave}, 4"), S(f"s_mul_i32 s{sT0}, s{sT1}, 13312"), V(f"v_add_u32 v{LR}, s{sT0}, v{L16}"),
         S(f"s_lshl_b32 s{sT0}, s2, 3"), S(f"s_add_u32 s{sT0}, s{sT0}, s{sWave}"), S(f"s_mul_i32 s{sSo}, s{sT0}, 7168"), S(f"s_add_u32 s{sSo}, s{sSo}, {XCH_OFF}"),
         S(f"s_xor_b32 s{sT0}, s{sT0}, 256"), S(f"s_mul_i32 s{sBase}, s{sT0}, 7168"), S(f"s_add_u32 s{sBase}, s{sBase}, {XCH_OFF}"),
         V(f"v_xor_b32 v{VP}, 4, v{VFL}"),
         V(f"v_bfe_u32 v{VO}, v{L16}, 4, 4"), V(f"v_mul_u32_u24 v{VO}, 1280, v{VO}"), V(f"v_lshrrev_b32 v{POLL}, 8, v{L16}"), V(f"v_lshl_add_u32 v{VO}, v{POLL}, 3, v{VO}"),
         S(f"s_mul_i32 s{sLd}, s{sB}, 204800"), S(f"s_and_b32 s{sT0}, s{sWave}, 1"), S(f"s_mul_i32 s{sT0}, s{sT0}, 102400"), S(f"s_add_u32 s{sLd}, s{sLd}, s{sT0}"),
         S(f"s_mul_i32 s{sT0}, s{sNq}, 320"), S(f"s_add_u32 s{sLd}, s{sLd}, s{sT0}"), S(f"s_bfe_u32 s{sT0}, s{sWave}, 0x10001"), S(f"s_mul_i32 s{sT0}, s{sT0}, 160"),
         S(f"s_add_u32 s{sLd}, s{sLd}, s{sT0}"),
         S(f"s_lshl_b32 s{sNeed}, 0x10000, s{sNq}"), S(f"s_add_u32 s{sHi}, s{sNq}, 16"),
         S(f"s_lshr_b32 s{sT0}, s{sG}, 2"), S(f"s_lshl_b32 s{sT1}, s{sKs}, 1"), S(f"s_add_u32 s{sT0}, s{sT0}, s{sT1}")]
    for v in range(1, 4): E += [S(f"s_cmp_eq_u32 s{sT0}, {v}"), branch("s_cbranch_scc1", f"L_o_epi{v}")]
    C += fix_hazards(E)
    for v in range(4):
        ks, kh = v >> 1, v & 1
        mine = TS[v]; xsend = TS[v ^ 1]; keep = sorted(mine + xsend); lsend = sorted(TS[v ^ 2] + TS[v ^ 3])
        E = [label(f"L_o_epi{v}")]
        order = lsend + xsend + mine
        mf = [mfma(acc(t), fA(1, t % 5), fB(1, t // 5), acc(t)) for t in order]
        wr = [[ds_write(4, LW, acc(t), i * 1024)] for i, t in enumerate(lsend)]
        E += spread(mf, [(wr, 6, 25)])
        E += [wait(lgkm=0), barrier()]
        rorder = xsend + mine
        for i, t in enumerate(rorder): E.append(ds_read(4, RB + 4 * i, LR, keep.index(t) * 1024))
        for i, t in enumerate(rorder):
            for r in range(4): E.append(V(f"v_add_f32 v{acc(t)+r}, v{acc(t)+r}, v{RB+4*i+r}"))
            if t in xsend:
                k = xsend.index(t)
                if k == 4: E.append(S(f"s_add_u32 s{sSo}, s{sSo}, 4096"))
                E.append(bstore(4, acc(t), L16, sWS, f"s{sSo}", (k & 3) * 1024, 'sc1'))
        E += st(84)
        E += [wait(vm=0), barrier(), S(f"s_cmp_lg_u32 s{sWave}, {0 if ks == 0 else 99}"), branch("s_cbranch_scc1", f"L_nofl3_{v}")] + flag_add(RB, f"s{sNeed}", f"L_nofl3_{v}")
        E += [label(f"L_o_spin3_{v}"), bload(1, POLL, VP, sDBG, 0, 0, 'sc1'), S(f"s_sub_u32 s{sCnt}, s{sCnt}, 1"), S(f"s_cmp_lt_i32 s{sCnt}, 0"), branch("s_cbranch_scc1", f"L_o_spin3_{v}_x"),
              wait(vm=0), V(f"v_readfirstlane_b32 s{sT2}, v{POLL}"),
              S(f"s_bitcmp0_b32 s{sT2}, s{sHi}"), branch("s_cbranch_scc1", f"L_o_spin3_{v}"), label(f"L_o_spin3_{v}_x")]
        E += st(85)
        for k, t in enumerate(mine):
            if k == 4: E.append(S(f"s_add_u32 s{sBase}, s{sBase}, 4096"))
            E.append(bload(4, RB + 4 * k, L16, sWS, f"s{sBase}", (k & 3) * 1024, 'sc1'))
        for k, t in enumerate(mine):
            a_ = acc(t)
            E.append(wait(vm=len(mine) - 1))
            for r in range(4): E.append(V(f"v_add_f32 v{a_+r}, v{a_+r}, v{RB+4*k+r}"))
            E += [V(f"v_cvt_pk_bf16_f32 v{a_}, v{a_}, v{a_+1}"), V(f"v_cvt_pk_bf16_f32 v{a_+1}, v{a_+2}, v{a_+3}"),
                  S(f"s_add_u32 s{sT0}, s{sLd}, {(t//5)*20480}"), bstore(2, a_, VO, sOUT, f"s{sT0}", (t % 5) * 32)]
        E += st(86) + st(77, True)
        E += [raw("s_endpgm")]
        E, _ = finish(E)
        C += E
    return C

def gen_kernel(name):
    C = [raw(f".globl {name}\n.p2align 8\n.type {name},@function\n{name}:\nKSTART:", 'label')]
    C += [S("s_cmp_lt_u32 s2, 256"), branch("s_cbranch_scc1", "L_go"), raw("s_endpgm"), label("L_go")]
    C += [raw("s_load_dwordx16 s[56:71], s[0:1], 0")]
    C += [V("v_lshrrev_b32 v1, 6, v0"),
          S(f"s_and_b32 s{sB}, s2, 7"), S(f"s_lshl_b32 s{sB}, s{sB}, 2"), V(f"v_readfirstlane_b32 s{sWave}, v1"),
          S(f"s_lshr_b32 s{sT0}, s2, 6"), S(f"s_add_u32 s{sB}, s{sB}, s{sT0}"), S(f"s_bfe_u32 s{sG}, s2, 0x30003")]
    C += [S(f"s_bfe_u32 s{sT0}, s{sWave}, 0x10001"), S(f"s_lshl_b32 s{sT2}, s{sG}, 2"), S(f"s_add_u32 s{sT2}, s{sT2}, s{sT0}"), S(f"s_lshl_b32 s{sWbase}, s{sT2}, 8"),
          S(f"s_cmp_lt_u32 s{sWave}, 4"), branch("s_cbranch_scc1", "L_w3"),
          S(f"s_and_b32 s{sT1}, s{sWave}, 1"), S(f"s_lshl_b32 s{sT2}, s{sT1}, 10"),
          S(f"s_lshl_b32 s{sLdsKV}, s{sT0}, 13"), S(f"s_add_u32 s{sLdsKV}, s{sLdsKV}, s{sT2}"),
          S(f"s_mul_i32 s{sLdsX}, s{sT0}, 10240"), S(f"s_add_u32 s{sLdsX}, s{sLdsX}, s{sT2}"),
          S(f"s_mul_i32 s{sXbase}, s{sB}, 204800"), S(f"s_mul_i32 s{sT2}, s{sT0}, 102400"), S(f"s_add_u32 s{sXbase}, s{sXbase}, s{sT2}")]
    C = fix_hazards(C)
    w2, r2 = gen_w2(); w3, r3 = gen_w3()
    C += w2 + w3 + gen_o() + [label("KEND")] + r2 + r3
    for k, tag, par in CTX.stubs:
        C += [label(f"L_stub{k}"), raw(f"s_call_b64 s[{sRet}:{sRet+1}], L_rare_{tag}_{par}", 'branch'), branch("s_branch", f"L_back{k}")]
    return C

def kd(name, vgpr, accum, sgpr=96):
    return f""".section .rodata,"a"
.p2align 6
.amdhsa_kernel {name}
  .amdhsa_next_free_vgpr {vgpr}
  .amdhsa_next_free_sgpr {sgpr}
  .amdhsa_accum_offset {accum}
  .amdhsa_group_segment_fixed_size 0
  .amdhsa_kernarg_size 64
  .amdhsa_user_sgpr_count 2
  .amdhsa_user_sgpr_kernarg_segment_ptr 1
  .amdhsa_system_sgpr_workgroup_id_x 1
.end_amdhsa_kernel
"""

HDR = open('standalone__mha_block_cached__near_ridge.s.ref').read().split('; Override launch')[0]
def main(path):
    k1 = "standalone__mha_block_cached__near_ridge_kernel"
    s = HDR
    s += f"; @launch grid=(256,1,1) block=(512,1,1) lds={LDS_BYTES}\n"
    s += '.amdgcn_target "amdgcn-amd-amdhsa--gfx950"\n.text\n'
    s += emit(gen_kernel(k1))
    s += kd(k1, 256, 256)
    open(path, 'w').write(s)
if __name__ == '__main__':
    for a in sys.argv[2:]:
        k, v = a.split('=', 1); setattr(Cfg, k, eval(v))
    main(sys.argv[1] if len(sys.argv) > 1 else 'mha2.s')
```

```python
import sys, math, struct
from ir import *

SLOT = 16384
NSLOT = 10
NW, NX = 6, 3
WPERM = [4, 5, 1, 3, 0, 2]
def wslot(s): return WPERM[s % NW] * SLOT
def xbuf(u): return NW * SLOT + (u % NX) * 20480
WTAB = sum((((WPERM[(m + 1) % NW] - WPERM[m]) & 15) << (4 * m)) for m in range(NW))
LDS_BYTES = 163840
O_BYTES = 32 * 128 * 10 * 1024
XCH_OFF = O_BYTES
XCH_WG = 8 * 7168
WS_BYTES = XCH_OFF + 256 * XCH_WG
QSCALE = math.log2(math.e) / math.sqrt(128.0)
THR = 16384.0
def f2u(x): return "0x%08x" % struct.unpack('<I', struct.pack('<f', x))[0]

sK, sV, sW, sX, sWS, sWO, sOUT, sDBG = 8, 12, 16, 20, 24, 28, 76, 80
sWave, sRound, sB, sG = 32, 33, 34, 35
sKVbase, sWbase, sXbase, sLdsKV, sLdsX = 36, 37, 38, 39, 40
sT0, sT1 = 41, 42
sKpos, sVpos, sD, sCnt, sXd, sLoop = 43, 44, 45, 49, 50, 51
sRet = 46
sOst = 48
sKX, sFlag = 52, 53
sT2, sT3 = 54, 55
sQS, sC16, sC32, sCX = 72, 73, 74, 75
sTK, sTV, sCnt2 = 88, 89, 90
sStamp = 84
DBG_OFF = 64 << 20

class Cfg:
    stamps = False
    LA = 7
    kv_pol = 'nt'
    touch_pol = ''
    touch_at = []
    warm = True
    xsleep = 2
    codetouch = True
    qcut = 8
    prio = 2
    no_sm = False
    no_dma = False
    no_exp = False
    no_chk = False
    no_ds = False
    no_adv = False
    ost_pol = 'sc1'
    old_pol = 'sc1'
    o_skip = 0
    smend = 3

STAMP3 = (0, 1, 7, 39, 41, 43, 45, 73, 75, 76, 77, 80, 81, 82, 83, 84, 85, 86)
def stamp(t, k, real=False):
    if not Cfg.stamps: return []
    if Cfg.stamps == 3 and k not in STAMP3: return []
    return [raw(f"{'s_memrealtime' if real else 's_memtime'} s[{sStamp}:{sStamp+1}]"), wait(lgkm=0), V(f"v_mov_b32 v{t}, s{sStamp}"), V(f"v_mov_b32 v{t+1}, 0"),
            S(f"s_and_b32 s{sStamp+1}, s{sRound}, 1"), S(f"s_lshl_b32 s{sStamp+1}, s{sStamp+1}, 9"), S(f"s_add_u32 s{sStamp+1}, s{sStamp+1}, s{sStamp+2}"),
            bstore(1, t, t + 1, sWS, f"s{sStamp+1}", 4 * k, tag=('misc',))]

def item_slot(n): return (n % NSLOT) * SLOT
def kidx(t): return 0 if t == 0 else 2 * t - 1
def vidx(t): return 2 * t + 2

class Wave:
    def __init__(self, nq):
        self.nq = nq
        n = nq
        p = 0
        self.O = p; p += 32 * n
        self.Q = p; p += 16 * n
        self.NM = p; p += 4 * n
        self.S = p; p += 8 * n
        self.P = p; p += 8 * n
        self.L = p; p += n
        self.LT = p; p += n
        self.T = p; p += 4
        self.aN = p; p += 2
        self.aT = p; p += 4
        p = (p + 3) & ~3
        self.F = p; self.NF = 8; p += 32
        self.dummy = p; p += 1
        self.tmp = p; p += 3
        if nq == 2:
            self.vK = p; self.vV = p + 1; self.vW = p + 2; self.vX = p + 3; self.vTch = p + 4; p += 5
        assert p <= 256, p
        self.end = p
        setsz = 32 + 4 * n
        if nq == 3:
            self.set = [self.Q, self.S]
        else:
            q = (p + 3) & ~3
            self.set = [self.Q, q]
            assert q + setsz <= 256
        self.tag = f"w{nq}"
        self.fpos = 0
    def o(self, T, j): return self.O + (T * self.nq + j) * 4
    def q(self, s, j): return self.Q + (s * self.nq + j) * 4
    def nm(self, j): return self.NM + 4 * j
    def s(self, kb, j): return self.S + (kb * self.nq + j) * 4
    def p(self, par, j): return self.P + (par * self.nq + j) * 4
    def fa(self, st, T): return self.set[st] + 4 * T
    def fb(self, st, j): return self.set[st] + 32 + 4 * j

def spread(base, fillers):
    ins = [[] for _ in range(len(base) + 1)]
    for groups, lo, hi in fillers:
        n = len(groups)
        if n == 0: continue
        hi = min(hi, len(base)); lo = min(lo, hi)
        span = hi - lo
        for k, gI in enumerate(groups):
            pos = lo + (k * span) // n + 1 if span > 0 else lo
            ins[min(pos, len(base))].extend(gI)
    out = list(ins[0])
    for i, b in enumerate(base):
        out.append(b); out.extend(ins[i + 1])
    return out

def frag_K(w, s, kb, first_c):
    def reads(f): return [ds_read(4, f, w.aN + (s & 1), kb * 4096 + (s >> 1) * 2048)]
    def mf(f):
        out = []
        for j in range(w.nq):
            c = w.s(kb, j) if s > 0 else (None if first_c == 'zero' else w.nm(j))
            out.append(mfma(w.s(kb, j), f, w.q(s, j), c))
        return out
    return dict(reads=reads, mf=mf, pre=[])
def frags_QK(w, first_c='negm', pre=()):
    fr = [frag_K(w, s, kb, first_c) for s in range(4) for kb in range(2)]
    fr[0]['pre'] = list(pre)
    return fr
def frag_V(w, db, par, zero):
    def reads(f): return [ds_read(2, f + 2 * hh, w.aT + (db & 3), hh * 4096 + (db >> 2) * 2048, tr=True) for hh in range(2)]
    def mf(f): return [mfma(w.o(db, j), f, w.p(par, j), None if zero else w.o(db, j)) for j in range(w.nq)]
    return dict(reads=reads, mf=mf, pre=[])
def frags_PV(w, par, zero=False, pre=()):
    fr = [frag_V(w, db, par, zero) for db in range(8)]
    fr[0]['pre'] = list(pre)
    return fr

def stream(w, frags, preloaded, nxt, fillers=(), lead=()):
    LA = Cfg.LA
    allf = list(frags) + list(nxt[:LA])
    head = []
    def issue(i):
        f = allf[i]
        return ([] if Cfg.no_adv else list(f['pre'])) + ([] if Cfg.no_ds else f['reads'](w.F + 4 * ((w.fpos + i) % w.NF)))
    for i in range(preloaded, min(LA, len(allf))): head += issue(i)
    base = list(lead); extra = []
    for i, f in enumerate(frags):
        m = f['mf'](w.F + 4 * ((w.fpos + i) % w.NF))
        base += m
        post = []
        if i + LA < len(allf) and i + LA >= preloaded: post += issue(i + LA)
        if post: extra.append(([post], len(base) - 1, len(base)))
    body = spread(base, list(extra) + list(fillers))
    w.fpos = (w.fpos + len(frags)) % w.NF
    return head + body

def softmax_groups(w, par):
    G = []
    k = 0
    for kb in range(2):
        for j in range(w.nq):
            for h in range(2):
                t0 = w.T + 2 * (k & 1); t1 = t0 + 1; k += 1
                sr = w.s(kb, j) + 2 * h
                G.append([V(f"v_exp_f32 v{t0}, v{sr}")])
                G.append([V(f"v_exp_f32 v{t1}, v{sr+1}")])
                lt = w.LT + j
                if kb == 0 and h == 0:
                    G.append(('late', [V(f"v_add_f32 v{lt}, v{t0}, v{t1}"), V(f"v_cvt_pk_bf16_f32 v{w.p(par,j)+2*kb+h}, v{t0}, v{t1}")]))
                else:
                    G.append(('late', [V(f"v_add_f32 v{lt}, v{lt}, v{t0}"), V(f"v_cvt_pk_bf16_f32 v{w.p(par,j)+2*kb+h}, v{t0}, v{t1}"),
                                       V(f"v_add_f32 v{lt}, v{lt}, v{t1}")]))
    if Cfg.no_sm: return [[V(f"v_mov_b32 v{w.LT+j}, 1.0")] for j in range(w.nq)]
    if Cfg.no_exp:
        for gI in G:
            if not isinstance(gI, tuple): gI[0] = V(gI[0].text.replace('v_exp_f32', 'v_mov_b32'))
    out = []; pend = None
    for gI in G:
        if isinstance(gI, tuple):
            pend = gI[1]
        else:
            out.append(gI)
            if pend is not None:
                out.append(pend); pend = None
    if pend is not None: out.append(pend)
    return out

class Ctx:
    def __init__(self): self.stubs = []; self.n = 0
CTX = Ctx()

def check_cmp(w):
    if Cfg.no_chk: return []
    out = []
    if w.nq == 3: out.append(V(f"v_max3_f32 v{w.tmp}, v{w.LT}, v{w.LT+1}, v{w.LT+2}"))
    else: out.append(V(f"v_max_f32 v{w.tmp}, v{w.LT}, v{w.LT+1}"))
    out.append(I(f"v_cmp_nge_f32 vcc, {f2u(THR)}, v{w.tmp}", 'valu', wr={('s', 'vcc')}, rd=regs(w.tmp)))
    return out
def check_branch(w, par):
    if Cfg.no_chk: return []
    k = CTX.n; CTX.n += 1
    CTX.stubs.append((k, w.tag, par))
    return [branch("s_cbranch_vccnz", f"L_stub{k}"), label(f"L_back{k}")]
def l_accum(w, first=False):
    if first: return [V(f"v_mov_b32 v{w.L+j}, v{w.LT+j}") for j in range(w.nq)]
    return [V(f"v_add_f32 v{w.L+j}, v{w.L+j}, v{w.LT+j}") for j in range(w.nq)]
def sm_fillers(w, par, lo):
    nm = 8 * w.nq
    return [(softmax_groups(w, par) + [check_cmp(w)], lo, nm - Cfg.smend)]

def xlane(op, r, t):
    return [V(f"v_mov_b32 v{t}, v{r}"), V(f"v_permlane32_swap_b32 v{r}, v{t}"), V(f"{op} v{r}, v{r}, v{t}"),
            V(f"v_mov_b32 v{t}, v{r}"), V(f"v_permlane16_swap_b32 v{r}, v{t}"), V(f"{op} v{r}, v{r}, v{t}")]

def tile_max(w, j, dst):
    a, b = w.s(0, j), w.s(1, j)
    return [V(f"v_max3_f32 v{dst}, v{a}, v{a+1}, v{a+2}"), V(f"v_max3_f32 v{dst}, v{dst}, v{a+3}, v{b}"),
            V(f"v_max3_f32 v{dst}, v{dst}, v{b+1}, v{b+2}"), V(f"v_max_f32 v{dst}, v{dst}, v{b+3}")]

def first_max(w):
    out = []
    for j in range(w.nq): out += tile_max(w, j, w.LT + j)
    seqs = [xlane("v_max_f32", w.LT + j, w.T + j) for j in range(w.nq)]
    for k in range(6):
        for sq in seqs: out.append(sq[k])
    for j in range(w.nq):
        for r in range(4): out.append(V(f"v_sub_f32 v{w.nm(j)+r}, 0, v{w.LT+j}"))
        for kb in range(2):
            for r in range(4): out.append(V(f"v_sub_f32 v{w.s(kb,j)+r}, v{w.s(kb,j)+r}, v{w.LT+j}"))
    return out

def rare_routine(w, par):
    out = [label(f"L_rare_{w.tag}_{par}"), nop(15)]
    for j in range(w.nq):
        d = w.LT + j; f = w.T + 1
        out += tile_max(w, j, d)
        out += xlane("v_max_f32", d, w.T)
        out.append(V(f"v_max_f32 v{d}, 0, v{d}"))
        out.append(V(f"v_sub_f32 v{f}, 0, v{d}"))
        out.append(V(f"v_exp_f32 v{f}, v{f}"))
        for r in range(4): out.append(V(f"v_sub_f32 v{w.nm(j)+r}, v{w.nm(j)+r}, v{d}"))
        for kb in range(2):
            for r in range(4): out.append(V(f"v_sub_f32 v{w.s(kb,j)+r}, v{w.s(kb,j)+r}, v{d}"))
        out.append(V(f"v_mul_f32 v{w.L+j}, v{w.L+j}, v{f}"))
        for T in range(8):
            for r in range(4): out.append(V(f"v_mul_f32 v{w.o(T,j)+r}, v{w.o(T,j)+r}, v{f}"))
    for gI in softmax_groups(w, par): out += gI
    out.append(nop(3))
    out.append(raw(f"s_setpc_b64 s[{sRet}:{sRet+1}]", 'branch'))
    return fix_hazards(out)

def q_reads(w, st, sl):
    G = []
    for j in range(w.nq): G.append([ds_read(4, w.fb(st, j), w.aN + sl, j * 2048)])
    for T in range(8):
        for hh in range(2):
            G.append([ds_read(2, w.fa(st, T) + 2 * hh, w.aT + (T & 3), hh * 4096 + (T >> 2) * 2048, tr=True)])
    return G
def q_mfmas(w, st, zero):
    return [mfma(w.o(T, j), w.fa(st, T), w.fb(st, j), None if zero else w.o(T, j)) for T in range(8) for j in range(w.nq)]

def q_pack_groups(w, s):
    G = []
    for j in range(w.nq):
        for half in range(2):
            a = w.o(2 * s + half, j)
            for r in range(4): G.append([V(f"v_mul_f32 v{a+r}, s{sQS}, v{a+r}")])
            G.append([V(f"v_cvt_pk_bf16_f32 v{w.q(s,j)+2*half}, v{a}, v{a+1}")])
            G.append([V(f"v_cvt_pk_bf16_f32 v{w.q(s,j)+2*half+1}, v{a+2}, v{a+3}")])
    for op in ("v_permlane32_swap_b32", "v_permlane16_swap_b32"):
        for j in range(w.nq):
            q = w.q(s, j)
            G.append([V(f"{op} v{q}, v{q+2}")]); G.append([V(f"{op} v{q+1}, v{q+3}")])
    return G
def q_pack_fillers(w):
    n = w.nq
    rng = [(2 * n + 2, 5 * n), (5 * n, 8 * n), (8 * n, 11 * n), (11 * n, 14 * n - 1)]
    return [(q_pack_groups(w, s), rng[s][0], rng[s][1]) for s in range(4)]

def l_reduce(w):
    out = []
    seqs = [xlane("v_add_f32", w.L + j, w.T + j) for j in range(w.nq)]
    for k in range(6):
        for sq in seqs: out.append(sq[k])
    for j in range(w.nq): out.append(V(f"v_rcp_f32 v{w.L+j}, v{w.L+j}"))
    out += [V(f"v_mbcnt_lo_u32_b32 v{w.tmp}, -1, 0"), V(f"v_mbcnt_hi_u32_b32 v{w.tmp}, -1, v{w.tmp}"), V(f"v_lshlrev_b32 v{w.tmp}, 4, v{w.tmp}")]
    return out
def epi_groups(w, s):
    G = []
    for j in range(w.nq):
        d = w.q(s, j)
        for half in range(2):
            a = w.o(2 * s + half, j)
            for r in range(4): G.append([V(f"v_mul_f32 v{a+r}, v{a+r}, v{w.L+j}")])
            G.append([V(f"v_cvt_pk_bf16_f32 v{d+2*half}, v{a}, v{a+1}")])
            G.append([V(f"v_cvt_pk_bf16_f32 v{d+2*half+1}, v{a+2}, v{a+3}")])
        G.append([S(f"s_add_u32 s{sT1}, s{sOst}, {s*10240}"), bstore(4, d, w.tmp, sWS, f"s{sT1}", j * 1024, Cfg.ost_pol, tag=('O', 0, True))])
    return G
def epi_fillers(w):
    n = w.nq
    rng = [(2 * n + 2, 4 * n + 2), (4 * n + 2, 6 * n + 2), (6 * n + 2, 8 * n), (8 * n, 8 * n)]
    return [([[i] for i in l_reduce(w)], 0, 2 * n + 1)] + [(epi_groups(w, s), rng[s][0], rng[s][1]) for s in range(4)]

def flat(G): return [i for g in G for i in g]
def one(L): return [[i] for i in L]

def dma_kv(w, kind, t, nxt_round, tag):
    srd_ = sK if kind == 'K' else sV
    voff = w.vK if kind == 'K' else w.vV
    n = kidx(t) if kind == 'K' else vidx(t)
    lds = item_slot(n)
    goff = t * 8192 + (262144 if nxt_round else 0)
    G = []
    for a in range(2):
        for seg in range(2):
            G.append([S(f"s_add_u32 m0, s{sLdsKV}, {lds + a*4096 + seg*2048 - seg*128}"),
                      S(f"s_add_u32 s{sT0}, s{sKVbase}, {goff + a*4096}"),
                      dma(voff, srd_, f"s{sT0}", seg * 128, Cfg.kv_pol, tag=tag)])
    return G
def dma_w(w, s, nxt_round, tag):
    lds = wslot(s)
    goff = s * 32 * 8192 + (512 if nxt_round else 0)
    G = []
    for hh in range(2):
        for seg in range(2):
            G.append([S(f"s_add_u32 m0, s{sLdsKV}, {lds + hh*4096 + seg*2048 - seg*128}"),
                      S(f"s_add_u32 s{sT0}, s{sWbase}, {goff + hh*32768}"),
                      dma(w.vW, sW, f"s{sT0}", seg * 128, tag=tag)])
    return G
def dma_x(w, u, tag):
    G = []
    for i in range(5):
        G.append([S(f"s_add_u32 m0, s{sLdsX}, {xbuf(u) + i*2048}"),
                  S(f"s_add_u32 s{sT0}, s{sXbase}, {i*20480 + u*128}"),
                  dma(w.vX, sX, f"s{sT0}", 0, tag=tag)])
    return G
def touch_kv(w, kind):
    srd_, ptr = (sK, sTK) if kind == 'K' else (sV, sTV)
    return [[bload(1, w.dummy, w.vTch, srd_, f"s{ptr}", 0, Cfg.touch_pol, tag=('misc',)), S(f"s_add_u32 s{ptr}, s{ptr}, 4096")]]

NAMES = {}
for _t in range(16):
    NAMES[kidx(_t)] = ('K', _t); NAMES[vidx(_t)] = ('V', _t)
def first_use(kind, i):
    if kind == 'W': return i
    if kind == 'X': return 2 * i
    if kind == 'K': return 20 if i == 0 else 19 + i
    if kind == 'V': return 21 + i
    if kind == 'O': return 3

def loader_schedule(w):
    sch = {i: [] for i in range(37)}
    sch[0] += dma_w(w, 4, False, ('W', 4, False)) + dma_w(w, 5, False, ('W', 5, False))
    for s in range(NW, 20): sch[s - NW + 1] += dma_w(w, s, False, ('W', s, False))
    for u in range(NX, 10): sch[2 * (u - NX) + 2] += dma_x(w, u, ('X', u, False))
    if not Cfg.no_dma:
        first = {0: 17, 1: 15, 2: 18, 3: 16, 4: 19, 5: 20, 6: 20, 7: 20, 8: 18, 9: 19}
        for n in range(10): sch[first[n]] += dma_kv(w, *NAMES[n], False, NAMES[n] + (False,))
        for n in range(10, 33):
            if n not in NAMES: continue
            k, t = NAMES[n - 10]
            last = (20 + t) if k == 'K' else min(22 + t, 36)
            sch[last + 1] += dma_kv(w, *NAMES[n], False, NAMES[n] + (False,))
    sch[33] += [[S(f"s_cmp_lg_u32 s{sRound}, 0"), S(f"s_cselect_b32 s{sK+2}, 0, s{sK+2}"), S(f"s_cselect_b32 s{sV+2}, 0, s{sV+2}"),
                 S(f"s_cselect_b32 s{sW+2}, 0, s{sW+2}"), S(f"s_cselect_b32 s{sX+2}, 0, s{sX+2}"),
                 S(f"s_add_u32 s{sTK}, s{sKVbase}, 262144"), S(f"s_add_u32 s{sTV}, s{sKVbase}, 262144")]]
    sch[33] += dma_w(w, 2, True, ('W', 2, True)) + dma_w(w, 3, True, ('W', 3, True))
    sch[34] += dma_w(w, 0, True, ('W', 0, True)) + dma_w(w, 1, True, ('W', 1, True))
    sch[35] += dma_x(w, 0, ('X', 0, True))
    sch[36] += dma_x(w, 1, ('X', 1, True)) + dma_x(w, 2, ('X', 2, True))
    if not Cfg.no_dma:
        for i, idx in enumerate(sorted(Cfg.touch_at)): sch[idx] += touch_kv(w, 'KV'[i & 1])
    return sch

def lane_id(r): return [V(f"v_mbcnt_lo_u32_b32 v{r}, -1, 0"), V(f"v_mbcnt_hi_u32_b32 v{r}, -1, v{r}")]
def lane_setup(w):
    t = w.F + 8
    lane, i16, g, a, b, c = t, t + 1, t + 2, t + 3, t + 4, t + 5
    o = lane_id(lane) + [V(f"v_and_b32 v{i16}, 15, v{lane}"), V(f"v_lshrrev_b32 v{g}, 4, v{lane}")]
    o += [V(f"v_lshrrev_b32 v{a}, 1, v{i16}"), V(f"v_xor_b32 v{a}, v{a}, v{g}"), V(f"v_lshlrev_b32 v{a}, 4, v{a}"),
          V(f"v_lshl_add_u32 v{w.aN}, v{i16}, 7, v{a}"), V(f"v_xor_b32 v{w.aN+1}, 64, v{w.aN}")]
    o += [V(f"v_lshrrev_b32 v{a}, 2, v{lane}"), V(f"v_and_b32 v{b}, 6, v{a}"),
          V(f"v_bfe_u32 v{c}, v{lane}, 1, 1"), V(f"v_xor_b32 v{b}, v{b}, v{c}"), V(f"v_lshlrev_b32 v{b}, 4, v{b}"),
          V(f"v_lshl_add_u32 v{b}, v{a}, 7, v{b}"),
          V(f"v_and_b32 v{c}, 1, v{lane}"), V(f"v_lshl_add_u32 v{w.aT}, v{c}, 3, v{b}")]
    for dq in range(1, 4): o.append(V(f"v_xor_b32 v{w.aT+dq}, {dq<<5}, v{w.aT}"))
    return o
def voff_setup(w):
    t = w.F + 16
    r8, p, a, b, row = t, t + 1, t + 2, t + 3, t + 4
    o = [V(f"v_bfe_u32 v{row}, v0, 3, 4"),
         V(f"v_and_b32 v{p}, 7, v0"),
         V(f"v_lshrrev_b32 v{a}, 1, v{row}"), V(f"v_xor_b32 v{a}, v{a}, v{p}"), V(f"v_lshlrev_b32 v{a}, 4, v{a}"),
         V(f"v_and_b32 v{b}, 6, v{row}"), V(f"v_xor_b32 v{b}, v{b}, v{p}"), V(f"v_lshlrev_b32 v{b}, 4, v{b}"),
         V(f"v_and_b32 v{p}, 12, v{row}"), V(f"v_add_u32 v{p}, v{p}, v{row}"), V(f"v_lshl_add_u32 v{w.vW}, v{p}, 13, v{b}"),
         V(f"v_mul_u32_u24 v{p}, 1280, v{row}"), V(f"v_add_u32 v{w.vX}, v{p}, v{a}")]
    o2 = [V(f"v_lshl_add_u32 v{w.vK}, v{row}, 8, v{a}"), V(f"v_lshl_add_u32 v{w.vV}, v{row}, 8, v{b}"),
          V(f"v_and_b32 v{p}, 63, v0"), V(f"v_lshlrev_b32 v{p}, 5, v{p}"), V(f"v_bfe_u32 v{r8}, v0, 6, 1"), V(f"v_lshl_add_u32 v{w.vTch}, v{r8}, 11, v{p}")]
    return o, o2

def add_addr(regs_, delta):
    if delta == 0: return []
    if isinstance(delta, str): return [V(f"v_add_u32 v{r}, {delta}, v{r}") for r in regs_]
    return [V(f"v_add_u32 v{r}, {delta & 0xffffffff:#x}, v{r}") for r in regs_]

def finish(code, pending=None, pre=()):
    c, q = add_lgkm_waits(code, pending)
    return fix_hazards(c, pre), q

def srd(base, ptr, nbytes):
    return [S(f"s_mov_b32 s{base}, s{ptr}"), S(f"s_mov_b32 s{base+1}, s{ptr+1}"), S(f"s_mov_b32 s{base+2}, {nbytes}"), S(f"s_mov_b32 s{base+3}, 0x20000")]

def round_advance():
    return [S(f"s_add_u32 s{sKVbase}, s{sKVbase}, 262144"), S(f"s_add_u32 s{sWbase}, s{sWbase}, 512"),
            S(f"s_add_u32 s{sOst}, s{sOst}, {8*10240}"), S(f"s_add_u32 s{sRound}, s{sRound}, 1"), S(f"s_cmp_lt_u32 s{sRound}, 2")]

def flag_add(t, val, lab):
    return [V(f"v_mov_b32 v{t}, {val}"), V(f"v_mov_b32 v{t+1}, s{sFlag}"), S("s_mov_b64 exec, 1"),
            I(f"buffer_atomic_or v{t}, v{t+1}, s[{sDBG}:{sDBG+3}], 0 offen sc1", 'vstore', rd=regs(t, 2) | regs(sDBG, 4, 's'), tag=('cond',)),
            S("s_mov_b64 exec, -1"), label(lab)]

def common_scalars():
    C = srd(sK, 58, 134217728) + srd(sV, 60, 134217728) + srd(sWO, 64, 5242880) + srd(sOUT, 66, 6553600) + srd(sDBG, 68, 256) \
        + srd(sWS, 70, (128 << 20) if Cfg.stamps else WS_BYTES)
    C += [S(f"s_lshr_b32 s{sT2}, s{sWbase}, 8"),
          S(f"s_lshl_b32 s{sT3}, s{sB}, 5"), S(f"s_add_u32 s{sT3}, s{sT3}, s{sT2}"), S(f"s_lshl_b32 s{sKVbase}, s{sT3}, 17"),
          S(f"s_mul_i32 s{sOst}, s{sT3}, 40960"),
          S(f"s_lshl_b32 s{sFlag}, s{sB}, 1"), S(f"s_lshr_b32 s{sT2}, s{sG}, 2"), S(f"s_add_u32 s{sFlag}, s{sFlag}, s{sT2}"), S(f"s_lshl_b32 s{sFlag}, s{sFlag}, 2"),
          S(f"s_mov_b32 s{sRound}, 0"), S(f"s_mov_b32 s{sQS}, {f2u(QSCALE)}"), S(f"s_mov_b32 s{sC16}, {WTAB:#x}"), S(f"s_mov_b32 s{sC32}, {2*SLOT}"),
          S(f"s_mov_b32 s{sCX}, 20480"), S(f"s_mov_b32 s{sTK}, s{sKVbase}"), S(f"s_mov_b32 s{sTV}, s{sKVbase}")]
    if Cfg.stamps:
        C += [S(f"s_lshl_b32 s{sStamp+2}, s2, 3"), S(f"s_add_u32 s{sStamp+2}, s{sStamp+2}, s{sWave}"), S(f"s_lshl_b32 s{sStamp+2}, s{sStamp+2}, 10"),
              S(f"s_add_u32 s{sStamp+2}, s{sStamp+2}, {DBG_OFF}")]
    return C
def wave_addr0(w, j0mul, j0add):
    aN = [w.aN, w.aN + 1]; aT = [w.aT + i for i in range(4)]
    C = [S(f"s_bfe_u32 s{sT0}, s{sWave}, 0x10001"), S(f"s_lshl_b32 s{sT0}, s{sT0}, 13"),
         S(f"s_and_b32 s{sT1}, s{sWave}, 1"), S(f"s_mul_i32 s{sT1}, s{sT1}, {j0mul*1024}"), S(f"s_add_u32 s{sT1}, s{sT1}, {j0add*1024}"),
         S(f"s_add_u32 s{sOst}, s{sOst}, s{sT1}"), S(f"s_lshl_b32 s{sT1}, s{sT1}, 1"),
         S(f"s_sub_u32 s{sKX}, s{sT0}, s{sT1}"),
         S(f"s_add_u32 s{sT0}, s{sT0}, {wslot(0)}"), S(f"s_add_u32 s{sT1}, s{sT1}, {xbuf(0)}")]
    return C + add_addr(aT, f"s{sT0}") + add_addr(aN, f"s{sT1}")

def gen_w3():
    w = Wave(3); nm = 24
    st = lambda k, real=False: stamp(w.tmp + 1, k, real)
    aN = [w.aN, w.aN + 1]; aT = [w.aT + i for i in range(4)]
    C = [label("L_w3"), raw("s_waitcnt lgkmcnt(0)")]
    if Cfg.codetouch:
        t = w.tmp + 1
        C += [raw(f"s_getpc_b64 s[{sRet}:{sRet+1}]"), label("L_pc0"),
              S(f"s_sub_u32 s{sRet}, s{sRet}, L_pc0-KSTART"), S(f"s_subb_u32 s{sRet+1}, s{sRet+1}, 0"),
              S(f"s_lshr_b32 s{sT0}, s2, 3"), S(f"s_lshl_b32 s{sT0}, s{sT0}, 2"), S(f"s_add_u32 s{sT0}, s{sT0}, s{sWave}"), S(f"s_lshl_b32 s{sT0}, s{sT0}, 7"),
              V(f"v_and_b32 v{t}, 7, v0"), V(f"v_lshlrev_b32 v{t}, 14, v{t}"), V(f"v_add_u32 v{t}, s{sT0}, v{t}"),
              V(f"v_min_u32 v{t}, KEND-KSTART-4, v{t}"),
              I(f"global_load_dword v{w.dummy}, v{t}, s[{sRet}:{sRet+1}]", 'vload', wr=regs(w.dummy), rd=regs(t) | regs(sRet, 2, 's'))]
    if Cfg.warm:
        t = w.tmp + 1
        C += srd(sW, 62, 5242880) + srd(sX, 56, 6553600)
        C += [V(f"v_and_b32 v{t}, 63, v0"), V(f"v_lshlrev_b32 v{t}, 7, v{t}"),
              S(f"s_mul_i32 s{sT0}, s{sB}, 204800"), S(f"s_mul_i32 s{sT1}, s{sG}, 25600"), S(f"s_add_u32 s{sT0}, s{sT0}, s{sT1}"),
              S(f"s_mul_i32 s{sT1}, s{sWave}, 5760"), S(f"s_add_u32 s{sT0}, s{sT0}, s{sT1}"),
              V(f"v_bfe_u32 v{t+1}, v0, 3, 3"), V(f"v_min_u32 v{t+1}, 4, v{t+1}"), V(f"v_lshlrev_b32 v{t+1}, 13, v{t+1}"),
              V(f"v_and_b32 v{w.T}, 7, v0"), V(f"v_lshl_add_u32 v{t+1}, v{w.T}, 7, v{t+1}"),
              S(f"s_lshl_b32 s{sT1}, s{sB}, 2"), S(f"s_add_u32 s{sT1}, s{sT1}, s{sWave}"), S(f"s_mul_i32 s{sT1}, s{sT1}, {5*8192}"),
              S(f"s_lshl_b32 s{sT2}, s{sG}, 10"), S(f"s_add_u32 s{sT1}, s{sT1}, s{sT2}"),
              barrier(), bload(1, w.dummy, t + 1, sW, f"s{sT1}"), bload(1, w.dummy, t, sX, f"s{sT0}")]
    C += common_scalars() + lane_setup(w) + wave_addr0(w, 3, 0)
    C, _ = finish(C)
    out = C
    def wadv():
        return [S(f"s_bfe_i32 s{sD}, s{sC16}, s{sCnt}"), S(f"s_lshl_b32 s{sD}, s{sD}, 14"), S(f"s_add_u32 s{sCnt}, s{sCnt}, 4"),
                S(f"s_cmp_eq_u32 s{sCnt}, {0x40000 + 4*NW:#x}"), S(f"s_cselect_b32 s{sCnt}, 0x40000, s{sCnt}")] + add_addr(aT, f"s{sD}")
    def xadv():
        return [S(f"s_add_u32 s{sCnt2}, s{sCnt2}, 1"), S(f"s_cmp_eq_u32 s{sCnt2}, {NX}"), S(f"s_cselect_b32 s{sXd}, {(-(NX-1)*20480) & 0xffffffff:#x}, s{sCX}"),
                S(f"s_cselect_b32 s{sCnt2}, 0, s{sCnt2}")] + add_addr(aN, f"s{sXd}")
    def qstage(s, zero=False, extra=()):
        p = s & 1
        adv_ = wadv() + (xadv() if p == 1 else []) + list(extra)
        L = [barrier()] + spread(q_mfmas(w, 1 - p, zero), [(q_reads(w, p, p), 0, 16), (one(adv_), 17, 22)]) + [wait(lgkm=0)]
        k = [i for i, c in enumerate(L) if c.kind == 'mfma'][Cfg.qcut]
        return L[:k], L[k:]
    C = [label("L_w3_round")] + st(0) + [barrier()] + st(1)
    C += flat(q_reads(w, 0, 0))
    C += add_addr(aT, wslot(1) - wslot(0))
    C += [S(f"s_mov_b32 s{sCnt}, 0x40004"), S(f"s_mov_b32 s{sCnt2}, {(xbuf(0)-NW*SLOT)//20480}"), S(f"s_mov_b32 s{sLoop}, 8")]
    C += [wait(lgkm=0)]
    h1, t1 = qstage(1, zero=True); he, te = qstage(2); ho, to = qstage(3)
    C += h1 + t1 + [wait(vm=0)] + he
    C, q = finish(C); out += C
    B = [label("L_w3_q")] + te + ho + to + he
    B += [S(f"s_sub_u32 s{sLoop}, s{sLoop}, 1"), S(f"s_cmp_lg_u32 s{sLoop}, 0"), branch("s_cbranch_scc1", "L_w3_q")]
    Bc, q2 = finish(B, q, pre=out[-12:]); Bc2, _ = finish(B, q2, pre=Bc[-12:])
    assert emit(Bc) == emit(Bc2)
    out += Bc
    curT = wslot(20); curN = xbuf(10)
    h19, t19 = qstage(19, extra=add_addr(aN, f"s{sKX}") + add_addr(aN, item_slot(kidx(0)) - curN) + add_addr(aT, item_slot(vidx(0)) - curT))
    C = te + h19 + t19
    C += st(40) + [barrier()] + st(41)
    k0 = frags_QK(w, 'zero')
    k1 = frags_QK(w, 'negm', pre=add_addr(aN, item_slot(kidx(1)) - item_slot(kidx(0))))
    w.fpos = 0
    C += stream(w, k0, 0, k1, lead=q_mfmas(w, 1, False), fillers=q_pack_fillers(w))
    C += first_max(w)
    C += st(42) + [barrier()] + st(43)
    C += flat(softmax_groups(w, 0)) + l_accum(w, first=True)
    v0 = frags_PV(w, 0, zero=True)
    if Cfg.warm:
        t = w.tmp + 1
        C += [S(f"s_cmp_lg_u32 s{sRound}, 0"), branch("s_cbranch_scc1", "L_nowarm")] + lane_id(t) + [V(f"v_min_u32 v{t}, 39, v{t}"), V(f"v_lshlrev_b32 v{t}, 7, v{t}"),
              S(f"s_lshl_b32 s{sT0}, s2, 2"), S(f"s_add_u32 s{sT0}, s{sT0}, s{sWave}"), S(f"s_mul_i32 s{sT0}, s{sT0}, 5120"),
              bload(1, w.dummy, t, sWO, f"s{sT0}"), label("L_nowarm")]
    C += [S(f"s_mov_b32 s{sKpos}, {item_slot(kidx(1))}"), S(f"s_mov_b32 s{sVpos}, {item_slot(vidx(0))}"), S(f"s_mov_b32 s{sLoop}, 7")]
    C += stream(w, k1, Cfg.LA, v0)
    C += st(44) + [barrier()] + st(45)
    def adv(pos, rr):
        return [S(f"s_cmp_ge_u32 s{pos}, {LDS_BYTES - 2*SLOT}"), S(f"s_cselect_b32 s{sD}, {(2*SLOT - LDS_BYTES) & 0xffffffff:#x}, s{sC32}"),
                S(f"s_add_u32 s{pos}, s{pos}, s{sD}")] + add_addr(rr, f"s{sD}")
    def pv(par): return frags_PV(w, par, pre=adv(sVpos, aT))
    def qk(): return frags_QK(w, 'negm', pre=adv(sKpos, aN))
    C += stream(w, v0, Cfg.LA, qk(), fillers=sm_fillers(w, 1, 0))
    C += check_branch(w, 1)
    C, q = finish(C, q2, pre=out[-12:]); out += C
    B = [label("L_w3_a")]
    for par in (1, 0):
        B += stream(w, qk(), Cfg.LA, pv(par), fillers=[(one(l_accum(w)), 4, 10)])
        B += [barrier()]
        lp = [(one([S(f"s_sub_u32 s{sLoop}, s{sLoop}, 1"), S(f"s_cmp_lg_u32 s{sLoop}, 0")]), nm - 2, nm)] if par == 0 else []
        B += stream(w, pv(par), Cfg.LA, qk(), fillers=sm_fillers(w, 1 - par, 0) + lp)
        B += check_branch(w, 1 - par)
    B += [branch("s_cbranch_scc1", "L_w3_a")]
    Bc, q2 = finish(B, q, pre=out[-12:]); Bc2, _ = finish(B, q2, pre=Bc[-12:])
    assert emit(Bc) == emit(Bc2)
    out += Bc
    C = st(74) + l_accum(w)
    C += stream(w, pv(1), 0, [], fillers=epi_fillers(w))
    C += st(75) + st(77, True)
    curT = item_slot(vidx(15)); curN = item_slot(kidx(16))
    C += add_addr(aT, wslot(0) - curT) + add_addr(aN, xbuf(0) - curN) + [V(f"v_subrev_u32 v{r}, s{sKX}, v{r}") for r in aN]
    C += round_advance()
    C += [branch("s_cbranch_scc1", "L_w3_round"), branch("s_branch", "L_o")]
    C, q = finish(C, q2, pre=out[-12:]); out += C
    assert not q
    return out, rare_routine(w, 0) + rare_routine(w, 1)

def gen_w2():
    w = Wave(2); nm = 16
    st = lambda k, real=False: stamp(w.tmp + 1, k, real)
    aN = [w.aN, w.aN + 1]; aT = [w.aT + i for i in range(4)]
    sch = loader_schedule(w)
    items = lambda idx: sch[idx]
    vo1, vo2 = voff_setup(w)
    pro = vo1 + [raw("s_waitcnt lgkmcnt(0)")] + srd(sW, 62, 5242880) + srd(sX, 56, 6553600)
    pro += flat(dma_w(w, 0, False, ('W', 0, True))) + flat(dma_x(w, 0, ('X', 0, True))) + ([barrier()] if Cfg.warm else []) + flat(dma_w(w, 1, False, ('W', 1, True))) \
        + flat(dma_w(w, 2, False, ('W', 2, True))) + flat(dma_x(w, 1, ('X', 1, True))) + flat(dma_w(w, 3, False, ('W', 3, True))) + flat(dma_x(w, 2, ('X', 2, True)))
    pro += vo2 + common_scalars() + lane_setup(w) + wave_addr0(w, 2, 6)
    C = [label("L_w2_round")] + st(76, True)
    def bar(idx, lgkm=None):
        b = wait(vm=63, lgkm=lgkm); b.tag = (('need', idx), lgkm)
        return st(2 * idx) + [b, barrier()] + st(2 * idx + 1)
    prio = lambda p: [raw(f"s_setprio {p}")] if Cfg.prio == 2 else []
    curT = wslot(0); curN = xbuf(0)
    C += prio(1)
    for s in range(20):
        if s < 19:
            newT = wslot(s + 1); newN = xbuf((s + 1) >> 1)
            adv_ = add_addr(aT, newT - curT) + add_addr(aN, newN - curN); curT, curN = newT, newN
        else:
            adv_ = add_addr(aN, f"s{sKX}") + add_addr(aN, item_slot(kidx(0)) - curN) + add_addr(aT, item_slot(vidx(0)) - curT)
        C += bar(s, lgkm=0)
        ex = []
        if s == 3:
            ex = [([[S(f"s_lshl_b32 s{sT1}, s{sRound}, 3"), S(f"s_add_u32 s{sT1}, s{sT1}, s{sWave}"), S(f"s_cmp_lg_u32 s{sT1}, 12"),
                     branch("s_cbranch_scc1", "L_nofl1"), S(f"s_and_b32 s{sT1}, s{sG}, 3"), S(f"s_lshl_b32 s{sT1}, 1, s{sT1}")] + flag_add(w.tmp + 1, f"s{sT1}", "L_nofl1")], 11, 12)]
        if s == 0: C += flat(q_reads(w, 0, 0)) + flat(items(0)) + adv_
        else: C += spread(q_mfmas(w, (s - 1) & 1, s == 1), [(q_reads(w, s & 1, s & 1), 0, 10), (items(s), 0, nm - 2), (one(adv_), 11, 15)] + ex)
    C += bar(20, lgkm=0)
    def qk(t, fc='negm'): return frags_QK(w, fc, pre=add_addr(aN, item_slot(kidx(t)) - item_slot(kidx(t - 1))) if t else [])
    def pv(t): return frags_PV(w, t & 1, zero=(t == 0), pre=add_addr(aT, item_slot(vidx(t)) - item_slot(vidx(t - 1))) if t else [])
    w.fpos = 0
    C += stream(w, qk(0, 'zero'), 0, qk(1), lead=q_mfmas(w, 1, False), fillers=[(items(20), 0, 2 * nm)] + q_pack_fillers(w))
    C += first_max(w)
    C += flat(softmax_groups(w, 0))
    for t in range(15):
        C += prio(0)
        C += bar(21 + t)
        C += stream(w, qk(t + 1), Cfg.LA, pv(t), fillers=[(items(21 + t), 0, nm), (one(l_accum(w, first=(t == 0))), 3, 8)])
        C += prio(1)
        C += stream(w, pv(t), Cfg.LA, qk(t + 2) if t < 14 else [], fillers=sm_fillers(w, (t + 1) & 1, 2))
        C += check_branch(w, (t + 1) & 1)
    C += prio(0)
    C += bar(36)
    C += flat(items(36))
    C += st(74) + l_accum(w)
    C += stream(w, pv(15), 0, [], fillers=epi_fillers(w))
    C += st(75) + st(77, True)
    curT = item_slot(vidx(15)); curN = item_slot(kidx(15))
    C += add_addr(aT, wslot(0) - curT) + add_addr(aN, xbuf(0) - curN) + [V(f"v_subrev_u32 v{r}, s{sKX}, v{r}") for r in aN]
    C += round_advance()
    C += [branch("s_cbranch_scc1", "L_w2_round"), branch("s_branch", "L_o")]
    VM = ('dma', 'vload', 'vstore')
    def resolve(prefix, cond_present):
        res = {}
        q = [(c.tag[0], c.tag[1]) if len(c.tag) == 3 and c.tag[2] is True else None for c in prefix if c.kind in VM and c.tag[-1] != 'cond']
        for c in C:
            if c.kind in VM:
                if c.tag[-1] == 'cond' and not (cond_present and len(c.tag) == 3): continue
                q.append((c.tag[0], c.tag[1]) if len(c.tag) == 3 and c.tag[2] is not True else None)
            elif c.kind == 'wait' and isinstance(c.tag[0], tuple):
                idx = c.tag[0][1]
                last = -1
                for k, it in enumerate(q):
                    if it is not None and first_use(it[0], it[1]) <= idx: last = k
                res[idx] = min(63, len(q) - 1 - last)
        return res
    r1 = resolve(pro, True); r2 = resolve(C, False)
    C2 = []
    for c in C:
        if c.kind == 'wait' and isinstance(c.tag[0], tuple):
            idx = c.tag[0][1]; n = min(r1[idx], r2[idx]); lg = c.tag[1]
            if abs(r1[idx] - r2[idx]) > 1:
                C2 += [S(f"s_cmp_eq_u32 s{sRound}, {0 if r1[idx] > r2[idx] else 1}"), branch("s_cbranch_scc1", f"L_rw{idx}"), wait(vm=n), label(f"L_rw{idx}")]
                n = max(r1[idx], r2[idx])
            c.text = f"s_waitcnt vmcnt({n})" + (f" lgkmcnt({lg})" if lg is not None else ""); c.tag = (n, lg)
        C2.append(c)
    C = C2
    pro, _ = finish(pro)
    C, q = finish(C, [], pre=pro[-12:])
    assert not q
    return pro + C, rare_routine(w, 0) + rare_routine(w, 1)

OSLOT = 40960
def gen_o():
    ACC = 0; SET = [100, 140]
    aB, aA0, aA1 = 180, 182, 184
    VOFF, POLL, VFL, T, L16 = 186, 187, 188, 190, 196
    sSo, sHi, sNeed, sLd, sBase, sKs, sNq = 36, 37, 38, 39, 40, 43, 44
    st = lambda k, real=False: stamp(T, k, real)
    def acc(t): return ACC + 4 * t
    def fB(s_, jj): return SET[s_] + 4 * jj
    def fA(s_, nn): return SET[s_] + 20 + 4 * nn
    C = [label("L_o")] + st(80)
    if Cfg.prio: C += [raw("s_setprio 0")]
    lane = T; a = T + 1; b = T + 2
    C += lane_id(lane) + [V(f"v_lshlrev_b32 v{L16}, 4, v{lane}")]
    C += [S(f"s_lshr_b32 s{sKs}, s{sWave}, 2"), S(f"s_mul_i32 s{sT0}, s{sKs}, 20480"), S(f"s_and_b32 s{sT1}, s{sWave}, 1"), S(f"s_mul_i32 s{sT1}, s{sT1}, 5120"),
          S(f"s_add_u32 s{sLd}, s{sT0}, s{sT1}"),
          V(f"v_add_u32 v{aB}, s{sLd}, v{L16}"), V(f"v_add_u32 v{aB+1}, {2*OSLOT}, v{aB}"),
          V(f"v_lshrrev_b32 v{a}, 2, v{lane}"), V(f"v_bfe_u32 v{b}, v{lane}, 4, 1"), V(f"v_lshlrev_b32 v{b}, 5, v{b}"), V(f"v_lshl_add_u32 v{b}, v{a}, 6, v{b}"),
          V(f"v_and_b32 v{a}, 3, v{lane}"), V(f"v_lshl_add_u32 v{b}, v{a}, 3, v{b}"),
          S(f"s_add_u32 s{sT0}, s{sT0}, 10240"), V(f"v_add_u32 v{aA0}, s{sT0}, v{b}"), V(f"v_xor_b32 v{aA1}, 32, v{aA0}"),
          V(f"v_add_u32 v{aA0+1}, {2*OSLOT}, v{aA0}"), V(f"v_add_u32 v{aA1+1}, {2*OSLOT}, v{aA1}"),
          V(f"v_mov_b32 v{VFL}, s{sFlag}"), S(f"s_and_b32 s{sNq}, s{sG}, 3"), S(f"s_mov_b32 s{sHi}, 0"), S(f"s_mov_b32 s{sNeed}, 0"),
          S(f"s_mov_b32 s{sCnt}, 0x40000")]
    C += [S(f"s_bitcmp1_b32 s{sWave}, 1"), branch("s_cbranch_scc1", "L_o_1")]
    C = fix_hazards(C)
    def poll_load(): return bload(1, POLL, VFL, sDBG, 0, 0, 'sc1')
    epi_entry = {}
    for nh in range(2):
        step = 10240 if nh == 0 else 40960
        R_ = [label(f"L_o_{nh}")]
        if nh == 0:
            R_ += [V(f"v_mov_b32 v{VOFF}, v{L16}"), S(f"s_mul_i32 s{sBase}, s{sB}, {128*10240}"), S(f"s_add_u32 s{sBase}, s{sBase}, s{sT1}")]
        else:
            R_ += [V(f"v_lshrrev_b32 v{a}, 2, v{lane}"), V(f"v_mul_u32_u24 v{a}, 1280, v{a}"), V(f"v_bfe_u32 v{b}, v{lane}, 4, 1"), V(f"v_lshlrev_b32 v{b}, 1, v{b}"),
                   V(f"v_and_b32 v{VOFF}, 3, v{lane}"), V(f"v_xor_b32 v{VOFF}, v{VOFF}, v{b}"), V(f"v_lshl_add_u32 v{VOFF}, v{VOFF}, 4, v{a}"),
                   S(f"s_lshl_b32 s{sBase}, s{sT1}, 2"), S(f"s_mul_i32 s{sT2}, s{sNq}, 320"), S(f"s_add_u32 s{sBase}, s{sBase}, s{sT2}"),
                   S(f"s_add_u32 s{sLd}, s{sLd}, 10240")]
        def head_setup():
            return [S(f"s_and_b32 s{sT2}, s{sHi}, 3"), S(f"s_and_b32 s{sT3}, s{sG}, 4"), S(f"s_add_u32 s{sT2}, s{sT2}, s{sT3}"),
                    S(f"s_lshl_b32 s{sT2}, s{sT2}, 2"), S(f"s_lshr_b32 s{sT3}, s{sHi}, 2"), S(f"s_lshl_b32 s{sT3}, s{sT3}, 1"), S(f"s_add_u32 s{sT2}, s{sT2}, s{sT3}"),
                    S(f"s_add_u32 s{sT2}, s{sT2}, s{sKs}"), S(f"s_mul_i32 s{sT2}, s{sT2}, {4*step}"), S(f"s_add_u32 s{sSo}, s{sBase}, s{sT2}"),
                    S(f"s_add_u32 s{sHi}, s{sHi}, 1")]
        def odma(u):
            G = []
            if Cfg.o_skip & (1 << nh): return G
            for i in range(5):
                if nh == 0:
                    imm = (i & 3) * 1024; ex = (i >> 2) * 4096
                    g = [S(f"s_add_u32 m0, s{sLd}, {u*OSLOT + ex}"), S(f"s_add_u32 s{sT0}, s{sSo}, {u*step + ex}")] if imm == 0 else []
                    G.append(g + [dma(VOFF, sWS, f"s{sT0}", imm, Cfg.old_pol)])
                else:
                    g = [S(f"s_add_u32 m0, s{sLd}, {u*OSLOT + i*1024 - i*64}")]
                    if i == 0: g.append(S(f"s_add_u32 s{sT0}, s{sSo}, {u*step}"))
                    G.append(g + [dma(VOFF, sWO, f"s{sT0}", i * 64)])
            return G
        def oreads(u):
            s_ = u & 1; hi = u >> 1; off = (u & 1) * OSLOT
            G = []
            for k in range(5):
                nb = 5 * nh + k
                ar = (aA1 if nb & 1 else aA0) + hi
                G.append([ds_read(2, fA(s_, k) + 2 * hh, ar, off + (hh * 5 + (nb >> 1)) * 1024, tr=True) for hh in range(2)])
                G.append([ds_read(4, fB(s_, k), aB + hi, off + k * 1024)])
            return G
        def omf(s_, order=None):
            return [mfma(acc(t), fA(s_, t % 5), fB(s_, t // 5), acc(t)) for t in (order or range(25))]
        def spin(lab, shift, need, mask=0xf, vfl=VFL):
            return [label(lab), bload(1, POLL, vfl, sDBG, 0, 0, 'sc1'), S(f"s_sub_u32 s{sCnt}, s{sCnt}, 1"), S(f"s_cmp_lt_i32 s{sCnt}, 0"), branch("s_cbranch_scc1", lab + "_x"),
                    wait(vm=0), V(f"v_readfirstlane_b32 s{sT2}, v{POLL}"),
                    S(f"s_lshr_b32 s{sT2}, s{sT2}, {shift}"), S(f"s_and_b32 s{sT2}, s{sT2}, {mask}"), S(f"s_cmp_lt_u32 s{sT2}, {need}"),
                    branch("s_cbranch_scc1", lab), label(lab + "_x")]
        R_ += head_setup()
        if nh == 0: R_ += spin("L_o_spin1", 0, 15)
        else: R_ += [wait(vm=0)]
        R_ += [barrier()] + st(81)
        for u in range(3): R_ += flat(odma(u))
        if nh == 1:
            R_ += [S(f"s_cmp_lg_u32 s{sWave}, 2"), branch("s_cbranch_scc1", "L_nofl2"), S(f"s_lshl_b32 s{sT2}, 0x100, s{sNq}")] + flag_add(T, f"s{sT2}", "L_nofl2")
        for r in range(100): R_.append(V(f"v_mov_b32 v{ACC+r}, 0"))
        R_ += [S(f"s_mov_b32 s{sLoop}, 7")]
        R_ += [wait(vm=10), barrier()] + st(82)
        R_ += flat(oreads(0)) + flat(odma(3))
        R_, q = finish(R_)
        NP = 1 if nh == 0 else 0
        def ostage(u, load=True, vm=None, extra=()):
            L = [wait(vm=vm, lgkm=0), barrier()]
            fill = [(oreads(u), 0, 16)]
            pre_ = []
            if load:
                if u == 1:
                    pre_ = head_setup()
                    if nh == 0:
                        pre_ += [S(f"s_cmp_ge_u32 s{sHi}, 5"), S(f"s_cselect_b32 s{sNeed}, 15, 0"), V(f"v_readfirstlane_b32 s{sT2}, v{POLL}"),
                                 S(f"s_lshr_b32 s{sT2}, s{sT2}, 8"), S(f"s_and_b32 s{sT2}, s{sT2}, 0xf"), S(f"s_cmp_lt_u32 s{sT2}, s{sNeed}"),
                                 branch("s_cbranch_scc1", "L_o_spin2"), label("L_o_spin2_back")]
                    fill.append((one(pre_), 0, 6))
                d = odma((u + 3) & 3)
                if u == 2 and nh == 0: d = [[poll_load()]] + d
                fill.append((d, 7, 23))
            fill += list(extra)
            return L + spread(omf(1 - (u & 1)), fill)
        B = [label(f"L_o_loop{nh}")]
        B += ostage(1, vm=10)
        B += ostage(2, vm=10) + ostage(3, vm=10)
        B += ostage(0, vm=10, extra=[(one([S(f"s_sub_u32 s{sLoop}, s{sLoop}, 1"), S(f"s_cmp_lg_u32 s{sLoop}, 0")]), 23, 25)])
        B += [branch("s_cbranch_scc1", f"L_o_loop{nh}")]
        Bc, q2 = finish(B, q, pre=R_[-12:]); Bc2, _ = finish(B, q2, pre=Bc[-12:])
        assert emit(Bc) == emit(Bc2)
        E = ostage(1, load=False, vm=10) + ostage(2, load=False, vm=5) + ostage(3, load=False, vm=0) + [wait(lgkm=0)] + st(83)
        E += [branch("s_branch", "L_o_epi")]
        if nh == 0: E += spin("L_o_spin2", 8, 15) + [branch("s_branch", "L_o_spin2_back")]
        E, _ = finish(E, q2, pre=Bc[-12:])
        C += R_ + Bc + E
    TS = [list(range(0, 7)), list(range(7, 13)), list(range(13, 19)), list(range(19, 25))]
    LW, LR, VO, VP = T, T + 1, T + 2, T + 3
    RB = 200
    E = [label("L_o_epi"),
         S(f"s_mul_i32 s{sT0}, s{sWave}, 13312"), V(f"v_add_u32 v{LW}, s{sT0}, v{L16}"),
         S(f"s_xor_b32 s{sT1}, s{sWave}, 4"), S(f"s_mul_i32 s{sT0}, s{sT1}, 13312"), V(f"v_add_u32 v{LR}, s{sT0}, v{L16}"),
         S(f"s_lshl_b32 s{sT0}, s2, 3"), S(f"s_add_u32 s{sT0}, s{sT0}, s{sWave}"), S(f"s_mul_i32 s{sSo}, s{sT0}, 7168"), S(f"s_add_u32 s{sSo}, s{sSo}, {XCH_OFF}"),
         S(f"s_xor_b32 s{sT0}, s{sT0}, 256"), S(f"s_mul_i32 s{sBase}, s{sT0}, 7168"), S(f"s_add_u32 s{sBase}, s{sBase}, {XCH_OFF}"),
         V(f"v_xor_b32 v{VP}, 4, v{VFL}"),
         V(f"v_bfe_u32 v{VO}, v{L16}, 4, 4"), V(f"v_mul_u32_u24 v{VO}, 1280, v{VO}"), V(f"v_lshrrev_b32 v{POLL}, 8, v{L16}"), V(f"v_lshl_add_u32 v{VO}, v{POLL}, 3, v{VO}"),
         S(f"s_mul_i32 s{sLd}, s{sB}, 204800"), S(f"s_and_b32 s{sT0}, s{sWave}, 1"), S(f"s_mul_i32 s{sT0}, s{sT0}, 102400"), S(f"s_add_u32 s{sLd}, s{sLd}, s{sT0}"),
         S(f"s_mul_i32 s{sT0}, s{sNq}, 320"), S(f"s_add_u32 s{sLd}, s{sLd}, s{sT0}"), S(f"s_bfe_u32 s{sT0}, s{sWave}, 0x10001"), S(f"s_mul_i32 s{sT0}, s{sT0}, 160"),
         S(f"s_add_u32 s{sLd}, s{sLd}, s{sT0}"),
         S(f"s_lshl_b32 s{sNeed}, 0x10000, s{sNq}"), S(f"s_add_u32 s{sHi}, s{sNq}, 16"),
         S(f"s_lshr_b32 s{sT0}, s{sG}, 2"), S(f"s_lshl_b32 s{sT1}, s{sKs}, 1"), S(f"s_add_u32 s{sT0}, s{sT0}, s{sT1}")]
    for v in range(1, 4): E += [S(f"s_cmp_eq_u32 s{sT0}, {v}"), branch("s_cbranch_scc1", f"L_o_epi{v}")]
    C += fix_hazards(E)
    for v in range(4):
        ks, kh = v >> 1, v & 1
        mine = TS[v]; xsend = TS[v ^ 1]; keep = sorted(mine + xsend); lsend = sorted(TS[v ^ 2] + TS[v ^ 3])
        E = [label(f"L_o_epi{v}")]
        order = lsend + xsend + mine
        mf = [mfma(acc(t), fA(1, t % 5), fB(1, t // 5), acc(t)) for t in order]
        wr = [[ds_write(4, LW, acc(t), i * 1024)] for i, t in enumerate(lsend)]
        E += spread(mf, [(wr, 6, 25)])
        E += [wait(lgkm=0), barrier()]
        rorder = xsend + mine
        for i, t in enumerate(rorder): E.append(ds_read(4, RB + 4 * i, LR, keep.index(t) * 1024))
        for i, t in enumerate(rorder):
            for r in range(4): E.append(V(f"v_add_f32 v{acc(t)+r}, v{acc(t)+r}, v{RB+4*i+r}"))
            if t in xsend:
                k = xsend.index(t)
                if k == 4: E.append(S(f"s_add_u32 s{sSo}, s{sSo}, 4096"))
                E.append(bstore(4, acc(t), L16, sWS, f"s{sSo}", (k & 3) * 1024, 'sc1'))
        E += st(84)
        E += [wait(vm=0), barrier()]
        if ks == 0:
            E += [S(f"s_cmp_lg_u32 s{sWave}, 0"), branch("s_cbranch_scc1", f"L_o_spin3_{v}_x")] + flag_add(RB, f"s{sNeed}", f"L_o_spin3_{v}")
            E += [bload(1, POLL, VP, sDBG, 0, 0, 'sc1'), S(f"s_sub_u32 s{sCnt}, s{sCnt}, 1"), S(f"s_cmp_lt_i32 s{sCnt}, 0"), branch("s_cbranch_scc1", f"L_o_spin3_{v}_x"),
                  wait(vm=0), V(f"v_readfirstlane_b32 s{sT2}, v{POLL}"),
                  S(f"s_bitcmp1_b32 s{sT2}, s{sHi}"), branch("s_cbranch_scc1", f"L_o_spin3_{v}_x")]
            if Cfg.xsleep: E += [raw(f"s_sleep {Cfg.xsleep}")]
            E += [branch("s_branch", f"L_o_spin3_{v}"), label(f"L_o_spin3_{v}_x")]
        E += [barrier()]
        E += st(85)
        for k, t in enumerate(mine):
            if k == 4: E.append(S(f"s_add_u32 s{sBase}, s{sBase}, 4096"))
            E.append(bload(4, RB + 4 * k, L16, sWS, f"s{sBase}", (k & 3) * 1024, 'sc1'))
        for k, t in enumerate(mine):
            a_ = acc(t)
            E.append(wait(vm=len(mine) - 1))
            for r in range(4): E.append(V(f"v_add_f32 v{a_+r}, v{a_+r}, v{RB+4*k+r}"))
            E += [V(f"v_cvt_pk_bf16_f32 v{a_}, v{a_}, v{a_+1}"), V(f"v_cvt_pk_bf16_f32 v{a_+1}, v{a_+2}, v{a_+3}"),
                  S(f"s_add_u32 s{sT0}, s{sLd}, {(t//5)*20480}"), bstore(2, a_, VO, sOUT, f"s{sT0}", (t % 5) * 32)]
        E += st(86) + st(77, True)
        E += [raw("s_endpgm")]
        E, _ = finish(E)
        C += E
    return C

def gen_kernel(name):
    C = [raw(f".globl {name}\n.p2align 8\n.type {name},@function\n{name}:\nKSTART:", 'label')]
    C += [S("s_cmp_lt_u32 s2, 256"), branch("s_cbranch_scc1", "L_go"), raw("s_endpgm"), label("L_go")]
    C += [raw("s_load_dwordx16 s[56:71], s[0:1], 0")]
    C += [V("v_lshrrev_b32 v1, 6, v0"),
          S(f"s_and_b32 s{sB}, s2, 7"), S(f"s_lshl_b32 s{sB}, s{sB}, 2"), V(f"v_readfirstlane_b32 s{sWave}, v1"),
          S(f"s_lshr_b32 s{sT0}, s2, 6"), S(f"s_add_u32 s{sB}, s{sB}, s{sT0}"), S(f"s_bfe_u32 s{sG}, s2, 0x30003")]
    C += [S(f"s_bfe_u32 s{sT0}, s{sWave}, 0x10001"), S(f"s_lshl_b32 s{sT2}, s{sG}, 2"), S(f"s_add_u32 s{sT2}, s{sT2}, s{sT0}"), S(f"s_lshl_b32 s{sWbase}, s{sT2}, 8"),
          S(f"s_cmp_lt_u32 s{sWave}, 4"), branch("s_cbranch_scc1", "L_w3"),
          S(f"s_and_b32 s{sT1}, s{sWave}, 1"), S(f"s_lshl_b32 s{sT2}, s{sT1}, 10"),
          S(f"s_lshl_b32 s{sLdsKV}, s{sT0}, 13"), S(f"s_add_u32 s{sLdsKV}, s{sLdsKV}, s{sT2}"),
          S(f"s_mul_i32 s{sLdsX}, s{sT0}, 10240"), S(f"s_add_u32 s{sLdsX}, s{sLdsX}, s{sT2}"),
          S(f"s_mul_i32 s{sXbase}, s{sB}, 204800"), S(f"s_mul_i32 s{sT2}, s{sT0}, 102400"), S(f"s_add_u32 s{sXbase}, s{sXbase}, s{sT2}")]
    C = fix_hazards(C)
    w2, r2 = gen_w2(); w3, r3 = gen_w3()
    C += w2 + w3 + gen_o() + [label("KEND")] + r2 + r3
    for k, tag, par in CTX.stubs:
        C += [label(f"L_stub{k}"), raw(f"s_call_b64 s[{sRet}:{sRet+1}], L_rare_{tag}_{par}", 'branch'), branch("s_branch", f"L_back{k}")]
    return C

def kd(name, vgpr, accum, sgpr=96):
    return f""".section .rodata,"a"
.p2align 6
.amdhsa_kernel {name}
  .amdhsa_next_free_vgpr {vgpr}
  .amdhsa_next_free_sgpr {sgpr}
  .amdhsa_accum_offset {accum}
  .amdhsa_group_segment_fixed_size 0
  .amdhsa_kernarg_size 64
  .amdhsa_user_sgpr_count 2
  .amdhsa_user_sgpr_kernarg_segment_ptr 1
  .amdhsa_system_sgpr_workgroup_id_x 1
.end_amdhsa_kernel
"""

HDR = open('standalone__mha_block_cached__near_ridge.s.ref').read().split('; Override launch')[0]
def main(path):
    k1 = "standalone__mha_block_cached__near_ridge_kernel"
    s = HDR
    s += f"; @launch grid=(256,1,1) block=(512,1,1) lds={LDS_BYTES}\n"
    s += '.amdgcn_target "amdgcn-amd-amdhsa--gfx950"\n.text\n'
    s += emit(gen_kernel(k1))
    s += kd(k1, 256, 256)
    open(path, 'w').write(s)
if __name__ == '__main__':
    for a in sys.argv[2:]:
        k, v = a.split('=', 1); setattr(Cfg, k, eval(v))
    main(sys.argv[1] if len(sys.argv) > 1 else 'mha2.s')
```

```python
import sys, math, struct
from ir import *

SLOT = 16384
NSLOT = 10
NW, NX = 6, 3
WPERM = [4, 5, 1, 3, 0, 2]
def wslot(s): return WPERM[s % NW] * SLOT
def xbuf(u): return NW * SLOT + (u % NX) * 20480
WTAB = sum((((WPERM[(m + 1) % NW] - WPERM[m]) & 15) << (4 * m)) for m in range(NW))
LDS_BYTES = 163840
O_BYTES = 32 * 128 * 10 * 1024
XCH_OFF = O_BYTES
XCH_WG = 8 * 7168
WS_BYTES = XCH_OFF + 256 * XCH_WG
QSCALE = math.log2(math.e) / math.sqrt(128.0)
THR = 16384.0
def f2u(x): return "0x%08x" % struct.unpack('<I', struct.pack('<f', x))[0]

sK, sV, sW, sX, sWS, sWO, sOUT, sDBG = 8, 12, 16, 20, 24, 28, 76, 80
sWave, sRound, sB, sG = 32, 33, 34, 35
sKVbase, sWbase, sXbase, sLdsKV, sLdsX = 36, 37, 38, 39, 40
sT0, sT1 = 41, 42
sKpos, sVpos, sD, sCnt, sXd, sLoop = 43, 44, 45, 49, 50, 51
sRet = 46
sOst = 48
sKX, sFlag = 52, 53
sT2, sT3 = 54, 55
sQS, sC16, sC32, sCX = 72, 73, 74, 75
sTK, sTV, sCnt2 = 88, 89, 90
sStamp = 84
DBG_OFF = 64 << 20

class Cfg:
    stamps = False
    dbgst = False
    LA = 7
    kv_pol = 'nt'
    touch_pol = ''
    touch_at = []
    warm = True
    xsleep = 2
    codetouch = True
    qcut = 8
    prio = 2
    no_sm = False
    no_dma = False
    no_exp = False
    no_chk = False
    no_ds = False
    no_adv = False
    ost_pol = 'sc1'
    old_pol = 'sc1'
    o_skip = 0
    smend = 3

STAMP3 = (0, 1, 7, 39, 41, 43, 45, 73, 75, 76, 77, 80, 81, 82, 83, 84, 85, 86)
DSL = {(1, 0): 0, (41, 0): 1, (45, 0): 2, (73, 0): 3, (1, 1): 4, (41, 1): 5, (45, 1): 6, (73, 1): 7, (80, 2): 8, (82, 2): 9, (83, 2): 10, (84, 2): 11, (85, 2): 12, (86, 2): 13}
sDS = 4
DREG = [4, 5, 6, 7, 91, 92, 93, 94, 95, 96, 97, 98, 99, 100]
def stamp(t, k, real=False):
    if Cfg.dbgst:
        if real: return []
        hits = [(r, i) for (kk, r), i in DSL.items() if kk == k]
        if not hits: return []
        out = [raw(f"s_memtime s[{sStamp}:{sStamp+1}]"), wait(lgkm=0)]
        for r, i in hits:
            out += [S(f"s_cmp_eq_u32 s{sRound}, {r}"), S(f"s_cselect_b32 s{DREG[i]}, s{sStamp}, s{DREG[i]}")]
        return out
    if not Cfg.stamps: return []
    if Cfg.stamps == 3 and k not in STAMP3: return []
    return [raw(f"{'s_memrealtime' if real else 's_memtime'} s[{sStamp}:{sStamp+1}]"), wait(lgkm=0), V(f"v_mov_b32 v{t}, s{sStamp}"), V(f"v_mov_b32 v{t+1}, 0"),
            S(f"s_and_b32 s{sStamp+1}, s{sRound}, 1"), S(f"s_lshl_b32 s{sStamp+1}, s{sStamp+1}, 9"), S(f"s_add_u32 s{sStamp+1}, s{sStamp+1}, s{sStamp+2}"),
            bstore(1, t, t + 1, sWS, f"s{sStamp+1}", 4 * k, tag=('misc',))]

def item_slot(n): return (n % NSLOT) * SLOT
def kidx(t): return 0 if t == 0 else 2 * t - 1
def vidx(t): return 2 * t + 2

class Wave:
    def __init__(self, nq):
        self.nq = nq
        n = nq
        p = 0
        self.O = p; p += 32 * n
        self.Q = p; p += 16 * n
        self.NM = p; p += 4 * n
        self.S = p; p += 8 * n
        self.P = p; p += 8 * n
        self.L = p; p += n
        self.LT = p; p += n
        self.T = p; p += 4
        self.aN = p; p += 2
        self.aT = p; p += 4
        p = (p + 3) & ~3
        self.F = p; self.NF = 8; p += 32
        self.dummy = p; p += 1
        self.tmp = p; p += 3
        if nq == 2:
            self.vK = p; self.vV = p + 1; self.vW = p + 2; self.vX = p + 3; self.vTch = p + 4; p += 5
        assert p <= 256, p
        self.end = p
        setsz = 32 + 4 * n
        if nq == 3:
            self.set = [self.Q, self.S]
        else:
            q = (p + 3) & ~3
            self.set = [self.Q, q]
            assert q + setsz <= 256
        self.tag = f"w{nq}"
        self.fpos = 0
    def o(self, T, j): return self.O + (T * self.nq + j) * 4
    def q(self, s, j): return self.Q + (s * self.nq + j) * 4
    def nm(self, j): return self.NM + 4 * j
    def s(self, kb, j): return self.S + (kb * self.nq + j) * 4
    def p(self, par, j): return self.P + (par * self.nq + j) * 4
    def fa(self, st, T): return self.set[st] + 4 * T
    def fb(self, st, j): return self.set[st] + 32 + 4 * j

def spread(base, fillers):
    ins = [[] for _ in range(len(base) + 1)]
    for groups, lo, hi in fillers:
        n = len(groups)
        if n == 0: continue
        hi = min(hi, len(base)); lo = min(lo, hi)
        span = hi - lo
        for k, gI in enumerate(groups):
            pos = lo + (k * span) // n + 1 if span > 0 else lo
            ins[min(pos, len(base))].extend(gI)
    out = list(ins[0])
    for i, b in enumerate(base):
        out.append(b); out.extend(ins[i + 1])
    return out

def frag_K(w, s, kb, first_c):
    def reads(f): return [ds_read(4, f, w.aN + (s & 1), kb * 4096 + (s >> 1) * 2048)]
    def mf(f):
        out = []
        for j in range(w.nq):
            c = w.s(kb, j) if s > 0 else (None if first_c == 'zero' else w.nm(j))
            out.append(mfma(w.s(kb, j), f, w.q(s, j), c))
        return out
    return dict(reads=reads, mf=mf, pre=[])
def frags_QK(w, first_c='negm', pre=()):
    fr = [frag_K(w, s, kb, first_c) for s in range(4) for kb in range(2)]
    fr[0]['pre'] = list(pre)
    return fr
def frag_V(w, db, par, zero):
    def reads(f): return [ds_read(2, f + 2 * hh, w.aT + (db & 3), hh * 4096 + (db >> 2) * 2048, tr=True) for hh in range(2)]
    def mf(f): return [mfma(w.o(db, j), f, w.p(par, j), None if zero else w.o(db, j)) for j in range(w.nq)]
    return dict(reads=reads, mf=mf, pre=[])
def frags_PV(w, par, zero=False, pre=()):
    fr = [frag_V(w, db, par, zero) for db in range(8)]
    fr[0]['pre'] = list(pre)
    return fr

def stream(w, frags, preloaded, nxt, fillers=(), lead=()):
    LA = Cfg.LA
    allf = list(frags) + list(nxt[:LA])
    head = []
    def issue(i):
        f = allf[i]
        return ([] if Cfg.no_adv else list(f['pre'])) + ([] if Cfg.no_ds else f['reads'](w.F + 4 * ((w.fpos + i) % w.NF)))
    for i in range(preloaded, min(LA, len(allf))): head += issue(i)
    base = list(lead); extra = []
    for i, f in enumerate(frags):
        m = f['mf'](w.F + 4 * ((w.fpos + i) % w.NF))
        base += m
        post = []
        if i + LA < len(allf) and i + LA >= preloaded: post += issue(i + LA)
        if post: extra.append(([post], len(base) - 1, len(base)))
    body = spread(base, list(extra) + list(fillers))
    w.fpos = (w.fpos + len(frags)) % w.NF
    return head + body

def softmax_groups(w, par):
    G = []
    k = 0
    for kb in range(2):
        for j in range(w.nq):
            for h in range(2):
                t0 = w.T + 2 * (k & 1); t1 = t0 + 1; k += 1
                sr = w.s(kb, j) + 2 * h
                G.append([V(f"v_exp_f32 v{t0}, v{sr}")])
                G.append([V(f"v_exp_f32 v{t1}, v{sr+1}")])
                lt = w.LT + j
                if kb == 0 and h == 0:
                    G.append(('late', [V(f"v_add_f32 v{lt}, v{t0}, v{t1}"), V(f"v_cvt_pk_bf16_f32 v{w.p(par,j)+2*kb+h}, v{t0}, v{t1}")]))
                else:
                    G.append(('late', [V(f"v_add_f32 v{lt}, v{lt}, v{t0}"), V(f"v_cvt_pk_bf16_f32 v{w.p(par,j)+2*kb+h}, v{t0}, v{t1}"),
                                       V(f"v_add_f32 v{lt}, v{lt}, v{t1}")]))
    if Cfg.no_sm: return [[V(f"v_mov_b32 v{w.LT+j}, 1.0")] for j in range(w.nq)]
    if Cfg.no_exp:
        for gI in G:
            if not isinstance(gI, tuple): gI[0] = V(gI[0].text.replace('v_exp_f32', 'v_mov_b32'))
    out = []; pend = None
    for gI in G:
        if isinstance(gI, tuple):
            pend = gI[1]
        else:
            out.append(gI)
            if pend is not None:
                out.append(pend); pend = None
    if pend is not None: out.append(pend)
    return out

class Ctx:
    def __init__(self): self.stubs = []; self.n = 0
CTX = Ctx()

def check_cmp(w):
    if Cfg.no_chk: return []
    out = []
    if w.nq == 3: out.append(V(f"v_max3_f32 v{w.tmp}, v{w.LT}, v{w.LT+1}, v{w.LT+2}"))
    else: out.append(V(f"v_max_f32 v{w.tmp}, v{w.LT}, v{w.LT+1}"))
    out.append(I(f"v_cmp_nge_f32 vcc, {f2u(THR)}, v{w.tmp}", 'valu', wr={('s', 'vcc')}, rd=regs(w.tmp)))
    return out
def check_branch(w, par):
    if Cfg.no_chk: return []
    k = CTX.n; CTX.n += 1
    CTX.stubs.append((k, w.tag, par))
    return [branch("s_cbranch_vccnz", f"L_stub{k}"), label(f"L_back{k}")]
def l_accum(w, first=False):
    if first: return [V(f"v_mov_b32 v{w.L+j}, v{w.LT+j}") for j in range(w.nq)]
    return [V(f"v_add_f32 v{w.L+j}, v{w.L+j}, v{w.LT+j}") for j in range(w.nq)]
def sm_fillers(w, par, lo):
    nm = 8 * w.nq
    return [(softmax_groups(w, par) + [check_cmp(w)], lo, nm - Cfg.smend)]

def xlane(op, r, t):
    return [V(f"v_mov_b32 v{t}, v{r}"), V(f"v_permlane32_swap_b32 v{r}, v{t}"), V(f"{op} v{r}, v{r}, v{t}"),
            V(f"v_mov_b32 v{t}, v{r}"), V(f"v_permlane16_swap_b32 v{r}, v{t}"), V(f"{op} v{r}, v{r}, v{t}")]

def tile_max(w, j, dst):
    a, b = w.s(0, j), w.s(1, j)
    return [V(f"v_max3_f32 v{dst}, v{a}, v{a+1}, v{a+2}"), V(f"v_max3_f32 v{dst}, v{dst}, v{a+3}, v{b}"),
            V(f"v_max3_f32 v{dst}, v{dst}, v{b+1}, v{b+2}"), V(f"v_max_f32 v{dst}, v{dst}, v{b+3}")]

def first_max(w):
    out = []
    for j in range(w.nq): out += tile_max(w, j, w.LT + j)
    seqs = [xlane("v_max_f32", w.LT + j, w.T + j) for j in range(w.nq)]
    for k in range(6):
        for sq in seqs: out.append(sq[k])
    for j in range(w.nq):
        for r in range(4): out.append(V(f"v_sub_f32 v{w.nm(j)+r}, 0, v{w.LT+j}"))
        for kb in range(2):
            for r in range(4): out.append(V(f"v_sub_f32 v{w.s(kb,j)+r}, v{w.s(kb,j)+r}, v{w.LT+j}"))
    return out

def rare_routine(w, par):
    out = [label(f"L_rare_{w.tag}_{par}"), nop(15)]
    for j in range(w.nq):
        d = w.LT + j; f = w.T + 1
        out += tile_max(w, j, d)
        out += xlane("v_max_f32", d, w.T)
        out.append(V(f"v_max_f32 v{d}, 0, v{d}"))
        out.append(V(f"v_sub_f32 v{f}, 0, v{d}"))
        out.append(V(f"v_exp_f32 v{f}, v{f}"))
        for r in range(4): out.append(V(f"v_sub_f32 v{w.nm(j)+r}, v{w.nm(j)+r}, v{d}"))
        for kb in range(2):
            for r in range(4): out.append(V(f"v_sub_f32 v{w.s(kb,j)+r}, v{w.s(kb,j)+r}, v{d}"))
        out.append(V(f"v_mul_f32 v{w.L+j}, v{w.L+j}, v{f}"))
        for T in range(8):
            for r in range(4): out.append(V(f"v_mul_f32 v{w.o(T,j)+r}, v{w.o(T,j)+r}, v{f}"))
    for gI in softmax_groups(w, par): out += gI
    out.append(nop(3))
    out.append(raw(f"s_setpc_b64 s[{sRet}:{sRet+1}]", 'branch'))
    return fix_hazards(out)

def q_reads(w, st, sl):
    G = []
    for j in range(w.nq): G.append([ds_read(4, w.fb(st, j), w.aN + sl, j * 2048)])
    for T in range(8):
        for hh in range(2):
            G.append([ds_read(2, w.fa(st, T) + 2 * hh, w.aT + (T & 3), hh * 4096 + (T >> 2) * 2048, tr=True)])
    return G
def q_mfmas(w, st, zero):
    return [mfma(w.o(T, j), w.fa(st, T), w.fb(st, j), None if zero else w.o(T, j)) for T in range(8) for j in range(w.nq)]

def q_pack_groups(w, s):
    G = []
    for j in range(w.nq):
        for half in range(2):
            a = w.o(2 * s + half, j)
            for r in range(4): G.append([V(f"v_mul_f32 v{a+r}, s{sQS}, v{a+r}")])
            G.append([V(f"v_cvt_pk_bf16_f32 v{w.q(s,j)+2*half}, v{a}, v{a+1}")])
            G.append([V(f"v_cvt_pk_bf16_f32 v{w.q(s,j)+2*half+1}, v{a+2}, v{a+3}")])
    for op in ("v_permlane32_swap_b32", "v_permlane16_swap_b32"):
        for j in range(w.nq):
            q = w.q(s, j)
            G.append([V(f"{op} v{q}, v{q+2}")]); G.append([V(f"{op} v{q+1}, v{q+3}")])
    return G
def q_pack_fillers(w):
    n = w.nq
    rng = [(2 * n + 2, 5 * n), (5 * n, 8 * n), (8 * n, 11 * n), (11 * n, 14 * n - 1)]
    return [(q_pack_groups(w, s), rng[s][0], rng[s][1]) for s in range(4)]

def l_reduce(w):
    out = []
    seqs = [xlane("v_add_f32", w.L + j, w.T + j) for j in range(w.nq)]
    for k in range(6):
        for sq in seqs: out.append(sq[k])
    for j in range(w.nq): out.append(V(f"v_rcp_f32 v{w.L+j}, v{w.L+j}"))
    out += [V(f"v_mbcnt_lo_u32_b32 v{w.tmp}, -1, 0"), V(f"v_mbcnt_hi_u32_b32 v{w.tmp}, -1, v{w.tmp}"), V(f"v_lshlrev_b32 v{w.tmp}, 4, v{w.tmp}")]
    return out
def epi_groups(w, s):
    G = []
    for j in range(w.nq):
        d = w.q(s, j)
        for half in range(2):
            a = w.o(2 * s + half, j)
            for r in range(4): G.append([V(f"v_mul_f32 v{a+r}, v{a+r}, v{w.L+j}")])
            G.append([V(f"v_cvt_pk_bf16_f32 v{d+2*half}, v{a}, v{a+1}")])
            G.append([V(f"v_cvt_pk_bf16_f32 v{d+2*half+1}, v{a+2}, v{a+3}")])
        G.append([S(f"s_add_u32 s{sT1}, s{sOst}, {s*10240}"), bstore(4, d, w.tmp, sWS, f"s{sT1}", j * 1024, Cfg.ost_pol, tag=('O', 0, True))])
    return G
def epi_fillers(w):
    n = w.nq
    rng = [(2 * n + 2, 4 * n + 2), (4 * n + 2, 6 * n + 2), (6 * n + 2, 8 * n), (8 * n, 8 * n)]
    return [([[i] for i in l_reduce(w)], 0, 2 * n + 1)] + [(epi_groups(w, s), rng[s][0], rng[s][1]) for s in range(4)]

def flat(G): return [i for g in G for i in g]
def one(L): return [[i] for i in L]

def dma_kv(w, kind, t, nxt_round, tag):
    srd_ = sK if kind == 'K' else sV
    voff = w.vK if kind == 'K' else w.vV
    n = kidx(t) if kind == 'K' else vidx(t)
    lds = item_slot(n)
    goff = t * 8192 + (262144 if nxt_round else 0)
    G = []
    for a in range(2):
        for seg in range(2):
            G.append([S(f"s_add_u32 m0, s{sLdsKV}, {lds + a*4096 + seg*2048 - seg*128}"),
                      S(f"s_add_u32 s{sT0}, s{sKVbase}, {goff + a*4096}"),
                      dma(voff, srd_, f"s{sT0}", seg * 128, Cfg.kv_pol, tag=tag)])
    return G
def dma_w(w, s, nxt_round, tag):
    lds = wslot(s)
    goff = s * 32 * 8192 + (512 if nxt_round else 0)
    G = []
    for hh in range(2):
        for seg in range(2):
            G.append([S(f"s_add_u32 m0, s{sLdsKV}, {lds + hh*4096 + seg*2048 - seg*128}"),
                      S(f"s_add_u32 s{sT0}, s{sWbase}, {goff + hh*32768}"),
                      dma(w.vW, sW, f"s{sT0}", seg * 128, tag=tag)])
    return G
def dma_x(w, u, tag):
    G = []
    for i in range(5):
        G.append([S(f"s_add_u32 m0, s{sLdsX}, {xbuf(u) + i*2048}"),
                  S(f"s_add_u32 s{sT0}, s{sXbase}, {i*20480 + u*128}"),
                  dma(w.vX, sX, f"s{sT0}", 0, tag=tag)])
    return G
def touch_kv(w, kind):
    srd_, ptr = (sK, sTK) if kind == 'K' else (sV, sTV)
    return [[bload(1, w.dummy, w.vTch, srd_, f"s{ptr}", 0, Cfg.touch_pol, tag=('misc',)), S(f"s_add_u32 s{ptr}, s{ptr}, 4096")]]

NAMES = {}
for _t in range(16):
    NAMES[kidx(_t)] = ('K', _t); NAMES[vidx(_t)] = ('V', _t)
def first_use(kind, i):
    if kind == 'W': return i
    if kind == 'X': return 2 * i
    if kind == 'K': return 20 if i == 0 else 19 + i
    if kind == 'V': return 21 + i
    if kind == 'O': return 3

def loader_schedule(w):
    sch = {i: [] for i in range(37)}
    sch[0] += dma_w(w, 4, False, ('W', 4, False)) + dma_w(w, 5, False, ('W', 5, False))
    for s in range(NW, 20): sch[s - NW + 1] += dma_w(w, s, False, ('W', s, False))
    for u in range(NX, 10): sch[2 * (u - NX) + 2] += dma_x(w, u, ('X', u, False))
    if not Cfg.no_dma:
        first = {0: 17, 1: 15, 2: 18, 3: 16, 4: 19, 5: 20, 6: 20, 7: 20, 8: 18, 9: 19}
        for n in range(10): sch[first[n]] += dma_kv(w, *NAMES[n], False, NAMES[n] + (False,))
        for n in range(10, 33):
            if n not in NAMES: continue
            k, t = NAMES[n - 10]
            last = (20 + t) if k == 'K' else min(22 + t, 36)
            sch[last + 1] += dma_kv(w, *NAMES[n], False, NAMES[n] + (False,))
    sch[33] += [[S(f"s_cmp_lg_u32 s{sRound}, 0"), S(f"s_cselect_b32 s{sK+2}, 0, s{sK+2}"), S(f"s_cselect_b32 s{sV+2}, 0, s{sV+2}"),
                 S(f"s_cselect_b32 s{sW+2}, 0, s{sW+2}"), S(f"s_cselect_b32 s{sX+2}, 0, s{sX+2}"),
                 S(f"s_add_u32 s{sTK}, s{sKVbase}, 262144"), S(f"s_add_u32 s{sTV}, s{sKVbase}, 262144")]]
    sch[33] += dma_w(w, 2, True, ('W', 2, True)) + dma_w(w, 3, True, ('W', 3, True))
    sch[34] += dma_w(w, 0, True, ('W', 0, True)) + dma_w(w, 1, True, ('W', 1, True))
    sch[35] += dma_x(w, 0, ('X', 0, True))
    sch[36] += dma_x(w, 1, ('X', 1, True)) + dma_x(w, 2, ('X', 2, True))
    if not Cfg.no_dma:
        for i, idx in enumerate(sorted(Cfg.touch_at)): sch[idx] += touch_kv(w, 'KV'[i & 1])
    return sch

def lane_id(r): return [V(f"v_mbcnt_lo_u32_b32 v{r}, -1, 0"), V(f"v_mbcnt_hi_u32_b32 v{r}, -1, v{r}")]
def lane_setup(w):
    t = w.F + 8
    lane, i16, g, a, b, c = t, t + 1, t + 2, t + 3, t + 4, t + 5
    o = lane_id(lane) + [V(f"v_and_b32 v{i16}, 15, v{lane}"), V(f"v_lshrrev_b32 v{g}, 4, v{lane}")]
    o += [V(f"v_lshrrev_b32 v{a}, 1, v{i16}"), V(f"v_xor_b32 v{a}, v{a}, v{g}"), V(f"v_lshlrev_b32 v{a}, 4, v{a}"),
          V(f"v_lshl_add_u32 v{w.aN}, v{i16}, 7, v{a}"), V(f"v_xor_b32 v{w.aN+1}, 64, v{w.aN}")]
    o += [V(f"v_lshrrev_b32 v{a}, 2, v{lane}"), V(f"v_and_b32 v{b}, 6, v{a}"),
          V(f"v_bfe_u32 v{c}, v{lane}, 1, 1"), V(f"v_xor_b32 v{b}, v{b}, v{c}"), V(f"v_lshlrev_b32 v{b}, 4, v{b}"),
          V(f"v_lshl_add_u32 v{b}, v{a}, 7, v{b}"),
          V(f"v_and_b32 v{c}, 1, v{lane}"), V(f"v_lshl_add_u32 v{w.aT}, v{c}, 3, v{b}")]
    for dq in range(1, 4): o.append(V(f"v_xor_b32 v{w.aT+dq}, {dq<<5}, v{w.aT}"))
    return o
def voff_setup(w):
    t = w.F + 16
    r8, p, a, b, row = t, t + 1, t + 2, t + 3, t + 4
    o = [V(f"v_bfe_u32 v{row}, v0, 3, 4"),
         V(f"v_and_b32 v{p}, 7, v0"),
         V(f"v_lshrrev_b32 v{a}, 1, v{row}"), V(f"v_xor_b32 v{a}, v{a}, v{p}"), V(f"v_lshlrev_b32 v{a}, 4, v{a}"),
         V(f"v_and_b32 v{b}, 6, v{row}"), V(f"v_xor_b32 v{b}, v{b}, v{p}"), V(f"v_lshlrev_b32 v{b}, 4, v{b}"),
         V(f"v_and_b32 v{p}, 12, v{row}"), V(f"v_add_u32 v{p}, v{p}, v{row}"), V(f"v_lshl_add_u32 v{w.vW}, v{p}, 13, v{b}"),
         V(f"v_mul_u32_u24 v{p}, 1280, v{row}"), V(f"v_add_u32 v{w.vX}, v{p}, v{a}")]
    o2 = [V(f"v_lshl_add_u32 v{w.vK}, v{row}, 8, v{a}"), V(f"v_lshl_add_u32 v{w.vV}, v{row}, 8, v{b}"),
          V(f"v_and_b32 v{p}, 63, v0"), V(f"v_lshlrev_b32 v{p}, 5, v{p}"), V(f"v_bfe_u32 v{r8}, v0, 6, 1"), V(f"v_lshl_add_u32 v{w.vTch}, v{r8}, 11, v{p}")]
    return o, o2

def add_addr(regs_, delta):
    if delta == 0: return []
    if isinstance(delta, str): return [V(f"v_add_u32 v{r}, {delta}, v{r}") for r in regs_]
    return [V(f"v_add_u32 v{r}, {delta & 0xffffffff:#x}, v{r}") for r in regs_]

def finish(code, pending=None, pre=()):
    c, q = add_lgkm_waits(code, pending)
    return fix_hazards(c, pre), q

def srd(base, ptr, nbytes):
    return [S(f"s_mov_b32 s{base}, s{ptr}"), S(f"s_mov_b32 s{base+1}, s{ptr+1}"), S(f"s_mov_b32 s{base+2}, {nbytes}"), S(f"s_mov_b32 s{base+3}, 0x20000")]

def round_advance():
    return [S(f"s_add_u32 s{sKVbase}, s{sKVbase}, 262144"), S(f"s_add_u32 s{sWbase}, s{sWbase}, 512"),
            S(f"s_add_u32 s{sOst}, s{sOst}, {8*10240}"), S(f"s_add_u32 s{sRound}, s{sRound}, 1"), S(f"s_cmp_lt_u32 s{sRound}, 2")]

def flag_add(t, val, lab):
    return [V(f"v_mov_b32 v{t}, {val}"), V(f"v_mov_b32 v{t+1}, s{sFlag}"), S("s_mov_b64 exec, 1"),
            I(f"buffer_atomic_or v{t}, v{t+1}, s[{sDBG}:{sDBG+3}], 0 offen sc1", 'vstore', rd=regs(t, 2) | regs(sDBG, 4, 's'), tag=('cond',)),
            S("s_mov_b64 exec, -1"), label(lab)]

def common_scalars():
    C = srd(sK, 58, 134217728) + srd(sV, 60, 134217728) + srd(sWO, 64, 5242880) + srd(sOUT, 66, 6553600) + srd(sDBG, 68, 256) \
        + srd(sWS, 70, (128 << 20) if Cfg.stamps else WS_BYTES)
    C += [S(f"s_lshr_b32 s{sT2}, s{sWbase}, 8"),
          S(f"s_lshl_b32 s{sT3}, s{sB}, 5"), S(f"s_add_u32 s{sT3}, s{sT3}, s{sT2}"), S(f"s_lshl_b32 s{sKVbase}, s{sT3}, 17"),
          S(f"s_mul_i32 s{sOst}, s{sT3}, 40960"),
          S(f"s_lshl_b32 s{sFlag}, s{sB}, 1"), S(f"s_lshr_b32 s{sT2}, s{sG}, 2"), S(f"s_add_u32 s{sFlag}, s{sFlag}, s{sT2}"), S(f"s_lshl_b32 s{sFlag}, s{sFlag}, 2"),
          S(f"s_mov_b32 s{sRound}, 0"), S(f"s_mov_b32 s{sQS}, {f2u(QSCALE)}"), S(f"s_mov_b32 s{sC16}, {WTAB:#x}"), S(f"s_mov_b32 s{sC32}, {2*SLOT}"),
          S(f"s_mov_b32 s{sCX}, 20480"), S(f"s_mov_b32 s{sTK}, s{sKVbase}"), S(f"s_mov_b32 s{sTV}, s{sKVbase}")]
    if Cfg.stamps:
        C += [S(f"s_lshl_b32 s{sStamp+2}, s2, 3"), S(f"s_add_u32 s{sStamp+2}, s{sStamp+2}, s{sWave}"), S(f"s_lshl_b32 s{sStamp+2}, s{sStamp+2}, 10"),
              S(f"s_add_u32 s{sStamp+2}, s{sStamp+2}, {DBG_OFF}")]
    return C
def wave_addr0(w, j0mul, j0add):
    aN = [w.aN, w.aN + 1]; aT = [w.aT + i for i in range(4)]
    C = [S(f"s_bfe_u32 s{sT0}, s{sWave}, 0x10001"), S(f"s_lshl_b32 s{sT0}, s{sT0}, 13"),
         S(f"s_and_b32 s{sT1}, s{sWave}, 1"), S(f"s_mul_i32 s{sT1}, s{sT1}, {j0mul*1024}"), S(f"s_add_u32 s{sT1}, s{sT1}, {j0add*1024}"),
         S(f"s_add_u32 s{sOst}, s{sOst}, s{sT1}"), S(f"s_lshl_b32 s{sT1}, s{sT1}, 1"),
         S(f"s_sub_u32 s{sKX}, s{sT0}, s{sT1}"),
         S(f"s_add_u32 s{sT0}, s{sT0}, {wslot(0)}"), S(f"s_add_u32 s{sT1}, s{sT1}, {xbuf(0)}")]
    return C + add_addr(aT, f"s{sT0}") + add_addr(aN, f"s{sT1}")

def gen_w3():
    w = Wave(3); nm = 24
    st = lambda k, real=False: stamp(w.tmp + 1, k, real)
    aN = [w.aN, w.aN + 1]; aT = [w.aT + i for i in range(4)]
    C = [label("L_w3"), raw("s_waitcnt lgkmcnt(0)")]
    if Cfg.codetouch:
        t = w.tmp + 1
        C += [raw(f"s_getpc_b64 s[{sRet}:{sRet+1}]"), label("L_pc0"),
              S(f"s_sub_u32 s{sRet}, s{sRet}, L_pc0-KSTART"), S(f"s_subb_u32 s{sRet+1}, s{sRet+1}, 0"),
              S(f"s_lshr_b32 s{sT0}, s2, 3"), S(f"s_lshl_b32 s{sT0}, s{sT0}, 2"), S(f"s_add_u32 s{sT0}, s{sT0}, s{sWave}"), S(f"s_lshl_b32 s{sT0}, s{sT0}, 7"),
              V(f"v_and_b32 v{t}, 7, v0"), V(f"v_lshlrev_b32 v{t}, 14, v{t}"), V(f"v_add_u32 v{t}, s{sT0}, v{t}"),
              V(f"v_min_u32 v{t}, KEND-KSTART-4, v{t}"),
              I(f"global_load_dword v{w.dummy}, v{t}, s[{sRet}:{sRet+1}]", 'vload', wr=regs(w.dummy), rd=regs(t) | regs(sRet, 2, 's'))]
    if Cfg.warm:
        t = w.tmp + 1
        C += srd(sW, 62, 5242880) + srd(sX, 56, 6553600)
        C += [V(f"v_and_b32 v{t}, 63, v0"), V(f"v_lshlrev_b32 v{t}, 7, v{t}"),
              S(f"s_mul_i32 s{sT0}, s{sB}, 204800"), S(f"s_mul_i32 s{sT1}, s{sG}, 25600"), S(f"s_add_u32 s{sT0}, s{sT0}, s{sT1}"),
              S(f"s_mul_i32 s{sT1}, s{sWave}, 5760"), S(f"s_add_u32 s{sT0}, s{sT0}, s{sT1}"),
              V(f"v_bfe_u32 v{t+1}, v0, 3, 3"), V(f"v_min_u32 v{t+1}, 4, v{t+1}"), V(f"v_lshlrev_b32 v{t+1}, 13, v{t+1}"),
              V(f"v_and_b32 v{w.T}, 7, v0"), V(f"v_lshl_add_u32 v{t+1}, v{w.T}, 7, v{t+1}"),
              S(f"s_lshl_b32 s{sT1}, s{sB}, 2"), S(f"s_add_u32 s{sT1}, s{sT1}, s{sWave}"), S(f"s_mul_i32 s{sT1}, s{sT1}, {5*8192}"),
              S(f"s_lshl_b32 s{sT2}, s{sG}, 10"), S(f"s_add_u32 s{sT1}, s{sT1}, s{sT2}"),
              barrier(), bload(1, w.dummy, t + 1, sW, f"s{sT1}"), bload(1, w.dummy, t, sX, f"s{sT0}")]
    C += common_scalars() + lane_setup(w) + wave_addr0(w, 3, 0)
    C, _ = finish(C)
    out = C
    def wadv():
        return [S(f"s_bfe_i32 s{sD}, s{sC16}, s{sCnt}"), S(f"s_lshl_b32 s{sD}, s{sD}, 14"), S(f"s_add_u32 s{sCnt}, s{sCnt}, 4"),
                S(f"s_cmp_eq_u32 s{sCnt}, {0x40000 + 4*NW:#x}"), S(f"s_cselect_b32 s{sCnt}, 0x40000, s{sCnt}")] + add_addr(aT, f"s{sD}")
    def xadv():
        return [S(f"s_add_u32 s{sCnt2}, s{sCnt2}, 1"), S(f"s_cmp_eq_u32 s{sCnt2}, {NX}"), S(f"s_cselect_b32 s{sXd}, {(-(NX-1)*20480) & 0xffffffff:#x}, s{sCX}"),
                S(f"s_cselect_b32 s{sCnt2}, 0, s{sCnt2}")] + add_addr(aN, f"s{sXd}")
    def qstage(s, zero=False, extra=()):
        p = s & 1
        adv_ = wadv() + (xadv() if p == 1 else []) + list(extra)
        L = [barrier()] + spread(q_mfmas(w, 1 - p, zero), [(q_reads(w, p, p), 0, 16), (one(adv_), 17, 22)]) + [wait(lgkm=0)]
        k = [i for i, c in enumerate(L) if c.kind == 'mfma'][Cfg.qcut]
        return L[:k], L[k:]
    C = [label("L_w3_round")] + st(0) + [barrier()] + st(1)
    C += flat(q_reads(w, 0, 0))
    C += add_addr(aT, wslot(1) - wslot(0))
    C += [S(f"s_mov_b32 s{sCnt}, 0x40004"), S(f"s_mov_b32 s{sCnt2}, {(xbuf(0)-NW*SLOT)//20480}"), S(f"s_mov_b32 s{sLoop}, 8")]
    C += [wait(lgkm=0)]
    h1, t1 = qstage(1, zero=True); he, te = qstage(2); ho, to = qstage(3)
    C += h1 + t1 + [wait(vm=0)] + he
    C, q = finish(C); out += C
    B = [label("L_w3_q")] + te + ho + to + he
    B += [S(f"s_sub_u32 s{sLoop}, s{sLoop}, 1"), S(f"s_cmp_lg_u32 s{sLoop}, 0"), branch("s_cbranch_scc1", "L_w3_q")]
    Bc, q2 = finish(B, q, pre=out[-12:]); Bc2, _ = finish(B, q2, pre=Bc[-12:])
    assert emit(Bc) == emit(Bc2)
    out += Bc
    curT = wslot(20); curN = xbuf(10)
    h19, t19 = qstage(19, extra=add_addr(aN, f"s{sKX}") + add_addr(aN, item_slot(kidx(0)) - curN) + add_addr(aT, item_slot(vidx(0)) - curT))
    C = te + h19 + t19
    C += st(40) + [barrier()] + st(41)
    k0 = frags_QK(w, 'zero')
    k1 = frags_QK(w, 'negm', pre=add_addr(aN, item_slot(kidx(1)) - item_slot(kidx(0))))
    w.fpos = 0
    C += stream(w, k0, 0, k1, lead=q_mfmas(w, 1, False), fillers=q_pack_fillers(w))
    C += first_max(w)
    C += st(42) + [barrier()] + st(43)
    C += flat(softmax_groups(w, 0)) + l_accum(w, first=True)
    v0 = frags_PV(w, 0, zero=True)
    if Cfg.warm:
        t = w.tmp + 1
        C += [S(f"s_cmp_lg_u32 s{sRound}, 0"), branch("s_cbranch_scc1", "L_nowarm")] + lane_id(t) + [V(f"v_min_u32 v{t}, 39, v{t}"), V(f"v_lshlrev_b32 v{t}, 7, v{t}"),
              S(f"s_lshl_b32 s{sT0}, s2, 2"), S(f"s_add_u32 s{sT0}, s{sT0}, s{sWave}"), S(f"s_mul_i32 s{sT0}, s{sT0}, 5120"),
              bload(1, w.dummy, t, sWO, f"s{sT0}"), label("L_nowarm")]
    C += [S(f"s_mov_b32 s{sKpos}, {item_slot(kidx(1))}"), S(f"s_mov_b32 s{sVpos}, {item_slot(vidx(0))}"), S(f"s_mov_b32 s{sLoop}, 7")]
    C += stream(w, k1, Cfg.LA, v0)
    C += st(44) + [barrier()] + st(45)
    def adv(pos, rr):
        return [S(f"s_cmp_ge_u32 s{pos}, {LDS_BYTES - 2*SLOT}"), S(f"s_cselect_b32 s{sD}, {(2*SLOT - LDS_BYTES) & 0xffffffff:#x}, s{sC32}"),
                S(f"s_add_u32 s{pos}, s{pos}, s{sD}")] + add_addr(rr, f"s{sD}")
    def pv(par): return frags_PV(w, par, pre=adv(sVpos, aT))
    def qk(): return frags_QK(w, 'negm', pre=adv(sKpos, aN))
    C += stream(w, v0, Cfg.LA, qk(), fillers=sm_fillers(w, 1, 0))
    C += check_branch(w, 1)
    C, q = finish(C, q2, pre=out[-12:]); out += C
    B = [label("L_w3_a")]
    for par in (1, 0):
        B += stream(w, qk(), Cfg.LA, pv(par), fillers=[(one(l_accum(w)), 4, 10)])
        B += [barrier()]
        lp = [(one([S(f"s_sub_u32 s{sLoop}, s{sLoop}, 1"), S(f"s_cmp_lg_u32 s{sLoop}, 0")]), nm - 2, nm)] if par == 0 else []
        B += stream(w, pv(par), Cfg.LA, qk(), fillers=sm_fillers(w, 1 - par, 0) + lp)
        B += check_branch(w, 1 - par)
    B += [branch("s_cbranch_scc1", "L_w3_a")]
    Bc, q2 = finish(B, q, pre=out[-12:]); Bc2, _ = finish(B, q2, pre=Bc[-12:])
    assert emit(Bc) == emit(Bc2)
    out += Bc
    C = st(74) + l_accum(w)
    C += stream(w, pv(1), 0, [], fillers=epi_fillers(w))
    C += st(75) + st(77, True)
    curT = item_slot(vidx(15)); curN = item_slot(kidx(16))
    C += add_addr(aT, wslot(0) - curT) + add_addr(aN, xbuf(0) - curN) + [V(f"v_subrev_u32 v{r}, s{sKX}, v{r}") for r in aN]
    C += round_advance()
    C += [branch("s_cbranch_scc1", "L_w3_round"), branch("s_branch", "L_o")]
    C, q = finish(C, q2, pre=out[-12:]); out += C
    assert not q
    return out, rare_routine(w, 0) + rare_routine(w, 1)

def gen_w2():
    w = Wave(2); nm = 16
    st = lambda k, real=False: stamp(w.tmp + 1, k, real)
    aN = [w.aN, w.aN + 1]; aT = [w.aT + i for i in range(4)]
    sch = loader_schedule(w)
    items = lambda idx: sch[idx]
    vo1, vo2 = voff_setup(w)
    pro = vo1 + [raw("s_waitcnt lgkmcnt(0)")] + srd(sW, 62, 5242880) + srd(sX, 56, 6553600)
    pro += flat(dma_w(w, 0, False, ('W', 0, True))) + flat(dma_x(w, 0, ('X', 0, True))) + ([barrier()] if Cfg.warm else []) + flat(dma_w(w, 1, False, ('W', 1, True))) \
        + flat(dma_w(w, 2, False, ('W', 2, True))) + flat(dma_x(w, 1, ('X', 1, True))) + flat(dma_w(w, 3, False, ('W', 3, True))) + flat(dma_x(w, 2, ('X', 2, True)))
    pro += vo2 + common_scalars() + lane_setup(w) + wave_addr0(w, 2, 6)
    C = [label("L_w2_round")] + st(76, True)
    def bar(idx, lgkm=None):
        b = wait(vm=63, lgkm=lgkm); b.tag = (('need', idx), lgkm)
        return st(2 * idx) + [b, barrier()] + st(2 * idx + 1)
    prio = lambda p: [raw(f"s_setprio {p}")] if Cfg.prio == 2 else []
    curT = wslot(0); curN = xbuf(0)
    C += prio(1)
    for s in range(20):
        if s < 19:
            newT = wslot(s + 1); newN = xbuf((s + 1) >> 1)
            adv_ = add_addr(aT, newT - curT) + add_addr(aN, newN - curN); curT, curN = newT, newN
        else:
            adv_ = add_addr(aN, f"s{sKX}") + add_addr(aN, item_slot(kidx(0)) - curN) + add_addr(aT, item_slot(vidx(0)) - curT)
        C += bar(s, lgkm=0)
        ex = []
        if s == 3:
            ex = [([[S(f"s_lshl_b32 s{sT1}, s{sRound}, 3"), S(f"s_add_u32 s{sT1}, s{sT1}, s{sWave}"), S(f"s_cmp_lg_u32 s{sT1}, 12"),
                     branch("s_cbranch_scc1", "L_nofl1"), S(f"s_and_b32 s{sT1}, s{sG}, 3"), S(f"s_lshl_b32 s{sT1}, 1, s{sT1}")] + flag_add(w.tmp + 1, f"s{sT1}", "L_nofl1")], 11, 12)]
        if s == 0: C += flat(q_reads(w, 0, 0)) + flat(items(0)) + adv_
        else: C += spread(q_mfmas(w, (s - 1) & 1, s == 1), [(q_reads(w, s & 1, s & 1), 0, 10), (items(s), 0, nm - 2), (one(adv_), 11, 15)] + ex)
    C += bar(20, lgkm=0)
    def qk(t, fc='negm'): return frags_QK(w, fc, pre=add_addr(aN, item_slot(kidx(t)) - item_slot(kidx(t - 1))) if t else [])
    def pv(t): return frags_PV(w, t & 1, zero=(t == 0), pre=add_addr(aT, item_slot(vidx(t)) - item_slot(vidx(t - 1))) if t else [])
    w.fpos = 0
    C += stream(w, qk(0, 'zero'), 0, qk(1), lead=q_mfmas(w, 1, False), fillers=[(items(20), 0, 2 * nm)] + q_pack_fillers(w))
    C += first_max(w)
    C += flat(softmax_groups(w, 0))
    for t in range(15):
        C += prio(0)
        C += bar(21 + t)
        C += stream(w, qk(t + 1), Cfg.LA, pv(t), fillers=[(items(21 + t), 0, nm), (one(l_accum(w, first=(t == 0))), 3, 8)])
        C += prio(1)
        C += stream(w, pv(t), Cfg.LA, qk(t + 2) if t < 14 else [], fillers=sm_fillers(w, (t + 1) & 1, 2))
        C += check_branch(w, (t + 1) & 1)
    C += prio(0)
    C += bar(36)
    C += flat(items(36))
    C += st(74) + l_accum(w)
    C += stream(w, pv(15), 0, [], fillers=epi_fillers(w))
    C += st(75) + st(77, True)
    curT = item_slot(vidx(15)); curN = item_slot(kidx(15))
    C += add_addr(aT, wslot(0) - curT) + add_addr(aN, xbuf(0) - curN) + [V(f"v_subrev_u32 v{r}, s{sKX}, v{r}") for r in aN]
    C += round_advance()
    C += [branch("s_cbranch_scc1", "L_w2_round"), branch("s_branch", "L_o")]
    VM = ('dma', 'vload', 'vstore')
    def resolve(prefix, cond_present):
        res = {}
        q = [(c.tag[0], c.tag[1]) if len(c.tag) == 3 and c.tag[2] is True else None for c in prefix if c.kind in VM and c.tag[-1] != 'cond']
        for c in C:
            if c.kind in VM:
                if c.tag[-1] == 'cond' and not (cond_present and len(c.tag) == 3): continue
                q.append((c.tag[0], c.tag[1]) if len(c.tag) == 3 and c.tag[2] is not True else None)
            elif c.kind == 'wait' and isinstance(c.tag[0], tuple):
                idx = c.tag[0][1]
                last = -1
                for k, it in enumerate(q):
                    if it is not None and first_use(it[0], it[1]) <= idx: last = k
                res[idx] = min(63, len(q) - 1 - last)
        return res
    r1 = resolve(pro, True); r2 = resolve(C, False)
    C2 = []
    for c in C:
        if c.kind == 'wait' and isinstance(c.tag[0], tuple):
            idx = c.tag[0][1]; n = min(r1[idx], r2[idx]); lg = c.tag[1]
            if abs(r1[idx] - r2[idx]) > 1:
                C2 += [S(f"s_cmp_eq_u32 s{sRound}, {0 if r1[idx] > r2[idx] else 1}"), branch("s_cbranch_scc1", f"L_rw{idx}"), wait(vm=n), label(f"L_rw{idx}")]
                n = max(r1[idx], r2[idx])
            c.text = f"s_waitcnt vmcnt({n})" + (f" lgkmcnt({lg})" if lg is not None else ""); c.tag = (n, lg)
        C2.append(c)
    C = C2
    pro, _ = finish(pro)
    C, q = finish(C, [], pre=pro[-12:])
    assert not q
    return pro + C, rare_routine(w, 0) + rare_routine(w, 1)

OSLOT = 40960
def gen_o():
    ACC = 0; SET = [100, 140]
    aB, aA0, aA1 = 180, 182, 184
    VOFF, POLL, VFL, T, L16 = 186, 187, 188, 190, 196
    sSo, sHi, sNeed, sLd, sBase, sKs, sNq = 36, 37, 38, 39, 40, 43, 44
    st = lambda k, real=False: stamp(T, k, real)
    def acc(t): return ACC + 4 * t
    def fB(s_, jj): return SET[s_] + 4 * jj
    def fA(s_, nn): return SET[s_] + 20 + 4 * nn
    C = [label("L_o")] + st(80)
    if Cfg.prio: C += [raw("s_setprio 0")]
    lane = T; a = T + 1; b = T + 2
    C += lane_id(lane) + [V(f"v_lshlrev_b32 v{L16}, 4, v{lane}")]
    C += [S(f"s_lshr_b32 s{sKs}, s{sWave}, 2"), S(f"s_mul_i32 s{sT0}, s{sKs}, 20480"), S(f"s_and_b32 s{sT1}, s{sWave}, 1"), S(f"s_mul_i32 s{sT1}, s{sT1}, 5120"),
          S(f"s_add_u32 s{sLd}, s{sT0}, s{sT1}"),
          V(f"v_add_u32 v{aB}, s{sLd}, v{L16}"), V(f"v_add_u32 v{aB+1}, {2*OSLOT}, v{aB}"),
          V(f"v_lshrrev_b32 v{a}, 2, v{lane}"), V(f"v_bfe_u32 v{b}, v{lane}, 4, 1"), V(f"v_lshlrev_b32 v{b}, 5, v{b}"), V(f"v_lshl_add_u32 v{b}, v{a}, 6, v{b}"),
          V(f"v_and_b32 v{a}, 3, v{lane}"), V(f"v_lshl_add_u32 v{b}, v{a}, 3, v{b}"),
          S(f"s_add_u32 s{sT0}, s{sT0}, 10240"), V(f"v_add_u32 v{aA0}, s{sT0}, v{b}"), V(f"v_xor_b32 v{aA1}, 32, v{aA0}"),
          V(f"v_add_u32 v{aA0+1}, {2*OSLOT}, v{aA0}"), V(f"v_add_u32 v{aA1+1}, {2*OSLOT}, v{aA1}"),
          V(f"v_mov_b32 v{VFL}, s{sFlag}"), S(f"s_and_b32 s{sNq}, s{sG}, 3"), S(f"s_mov_b32 s{sHi}, 0"), S(f"s_mov_b32 s{sNeed}, 0"),
          S(f"s_mov_b32 s{sCnt}, 0x40000")]
    C += [S(f"s_bitcmp1_b32 s{sWave}, 1"), branch("s_cbranch_scc1", "L_o_1")]
    C = fix_hazards(C)
    def poll_load(): return bload(1, POLL, VFL, sDBG, 0, 0, 'sc1')
    epi_entry = {}
    for nh in range(2):
        step = 10240 if nh == 0 else 40960
        R_ = [label(f"L_o_{nh}")]
        if nh == 0:
            R_ += [V(f"v_mov_b32 v{VOFF}, v{L16}"), S(f"s_mul_i32 s{sBase}, s{sB}, {128*10240}"), S(f"s_add_u32 s{sBase}, s{sBase}, s{sT1}")]
        else:
            R_ += [V(f"v_lshrrev_b32 v{a}, 2, v{lane}"), V(f"v_mul_u32_u24 v{a}, 1280, v{a}"), V(f"v_bfe_u32 v{b}, v{lane}, 4, 1"), V(f"v_lshlrev_b32 v{b}, 1, v{b}"),
                   V(f"v_and_b32 v{VOFF}, 3, v{lane}"), V(f"v_xor_b32 v{VOFF}, v{VOFF}, v{b}"), V(f"v_lshl_add_u32 v{VOFF}, v{VOFF}, 4, v{a}"),
                   S(f"s_lshl_b32 s{sBase}, s{sT1}, 2"), S(f"s_mul_i32 s{sT2}, s{sNq}, 320"), S(f"s_add_u32 s{sBase}, s{sBase}, s{sT2}"),
                   S(f"s_add_u32 s{sLd}, s{sLd}, 10240")]
        def head_setup():
            return [S(f"s_and_b32 s{sT2}, s{sHi}, 3"), S(f"s_and_b32 s{sT3}, s{sG}, 4"), S(f"s_add_u32 s{sT2}, s{sT2}, s{sT3}"),
                    S(f"s_lshl_b32 s{sT2}, s{sT2}, 2"), S(f"s_lshr_b32 s{sT3}, s{sHi}, 2"), S(f"s_lshl_b32 s{sT3}, s{sT3}, 1"), S(f"s_add_u32 s{sT2}, s{sT2}, s{sT3}"),
                    S(f"s_add_u32 s{sT2}, s{sT2}, s{sKs}"), S(f"s_mul_i32 s{sT2}, s{sT2}, {4*step}"), S(f"s_add_u32 s{sSo}, s{sBase}, s{sT2}"),
                    S(f"s_add_u32 s{sHi}, s{sHi}, 1")]
        def odma(u):
            G = []
            if Cfg.o_skip & (1 << nh): return G
            for i in range(5):
                if nh == 0:
                    imm = (i & 3) * 1024; ex = (i >> 2) * 4096
                    g = [S(f"s_add_u32 m0, s{sLd}, {u*OSLOT + ex}"), S(f"s_add_u32 s{sT0}, s{sSo}, {u*step + ex}")] if imm == 0 else []
                    G.append(g + [dma(VOFF, sWS, f"s{sT0}", imm, Cfg.old_pol)])
                else:
                    g = [S(f"s_add_u32 m0, s{sLd}, {u*OSLOT + i*1024 - i*64}")]
                    if i == 0: g.append(S(f"s_add_u32 s{sT0}, s{sSo}, {u*step}"))
                    G.append(g + [dma(VOFF, sWO, f"s{sT0}", i * 64)])
            return G
        def oreads(u):
            s_ = u & 1; hi = u >> 1; off = (u & 1) * OSLOT
            G = []
            for k in range(5):
                nb = 5 * nh + k
                ar = (aA1 if nb & 1 else aA0) + hi
                G.append([ds_read(2, fA(s_, k) + 2 * hh, ar, off + (hh * 5 + (nb >> 1)) * 1024, tr=True) for hh in range(2)])
                G.append([ds_read(4, fB(s_, k), aB + hi, off + k * 1024)])
            return G
        def omf(s_, order=None):
            return [mfma(acc(t), fA(s_, t % 5), fB(s_, t // 5), acc(t)) for t in (order or range(25))]
        def spin(lab, shift, need, mask=0xf, vfl=VFL):
            return [label(lab), bload(1, POLL, vfl, sDBG, 0, 0, 'sc1'), S(f"s_sub_u32 s{sCnt}, s{sCnt}, 1"), S(f"s_cmp_lt_i32 s{sCnt}, 0"), branch("s_cbranch_scc1", lab + "_x"),
                    wait(vm=0), V(f"v_readfirstlane_b32 s{sT2}, v{POLL}"),
                    S(f"s_lshr_b32 s{sT2}, s{sT2}, {shift}"), S(f"s_and_b32 s{sT2}, s{sT2}, {mask}"), S(f"s_cmp_lt_u32 s{sT2}, {need}"),
                    branch("s_cbranch_scc1", lab), label(lab + "_x")]
        R_ += head_setup()
        if nh == 0: R_ += spin("L_o_spin1", 0, 15)
        else: R_ += [wait(vm=0)]
        R_ += [barrier()] + st(81)
        for u in range(3): R_ += flat(odma(u))
        if nh == 1:
            R_ += [S(f"s_cmp_lg_u32 s{sWave}, 2"), branch("s_cbranch_scc1", "L_nofl2"), S(f"s_lshl_b32 s{sT2}, 0x100, s{sNq}")] + flag_add(T, f"s{sT2}", "L_nofl2")
        for r in range(100): R_.append(V(f"v_mov_b32 v{ACC+r}, 0"))
        R_ += [S(f"s_mov_b32 s{sLoop}, 7")]
        R_ += [wait(vm=10), barrier()] + st(82)
        R_ += flat(oreads(0)) + flat(odma(3))
        R_, q = finish(R_)
        NP = 1 if nh == 0 else 0
        def ostage(u, load=True, vm=None, extra=()):
            L = [wait(vm=vm, lgkm=0), barrier()]
            fill = [(oreads(u), 0, 16)]
            pre_ = []
            if load:
                if u == 1:
                    pre_ = head_setup()
                    if nh == 0:
                        pre_ += [S(f"s_cmp_ge_u32 s{sHi}, 5"), S(f"s_cselect_b32 s{sNeed}, 15, 0"), V(f"v_readfirstlane_b32 s{sT2}, v{POLL}"),
                                 S(f"s_lshr_b32 s{sT2}, s{sT2}, 8"), S(f"s_and_b32 s{sT2}, s{sT2}, 0xf"), S(f"s_cmp_lt_u32 s{sT2}, s{sNeed}"),
                                 branch("s_cbranch_scc1", "L_o_spin2"), label("L_o_spin2_back")]
                    fill.append((one(pre_), 0, 6))
                d = odma((u + 3) & 3)
                if u == 2 and nh == 0: d = [[poll_load()]] + d
                fill.append((d, 7, 23))
            fill += list(extra)
            return L + spread(omf(1 - (u & 1)), fill)
        B = [label(f"L_o_loop{nh}")]
        B += ostage(1, vm=10)
        B += ostage(2, vm=10) + ostage(3, vm=10)
        B += ostage(0, vm=10, extra=[(one([S(f"s_sub_u32 s{sLoop}, s{sLoop}, 1"), S(f"s_cmp_lg_u32 s{sLoop}, 0")]), 23, 25)])
        B += [branch("s_cbranch_scc1", f"L_o_loop{nh}")]
        Bc, q2 = finish(B, q, pre=R_[-12:]); Bc2, _ = finish(B, q2, pre=Bc[-12:])
        assert emit(Bc) == emit(Bc2)
        E = ostage(1, load=False, vm=10) + ostage(2, load=False, vm=5) + ostage(3, load=False, vm=0) + [wait(lgkm=0)] + st(83)
        E += [branch("s_branch", "L_o_epi")]
        if nh == 0: E += spin("L_o_spin2", 8, 15) + [branch("s_branch", "L_o_spin2_back")]
        E, _ = finish(E, q2, pre=Bc[-12:])
        C += R_ + Bc + E
    TS = [list(range(0, 7)), list(range(7, 13)), list(range(13, 19)), list(range(19, 25))]
    LW, LR, VO, VP = T, T + 1, T + 2, T + 3
    RB = 200
    E = [label("L_o_epi"),
         S(f"s_mul_i32 s{sT0}, s{sWave}, 13312"), V(f"v_add_u32 v{LW}, s{sT0}, v{L16}"),
         S(f"s_xor_b32 s{sT1}, s{sWave}, 4"), S(f"s_mul_i32 s{sT0}, s{sT1}, 13312"), V(f"v_add_u32 v{LR}, s{sT0}, v{L16}"),
         S(f"s_lshl_b32 s{sT0}, s2, 3"), S(f"s_add_u32 s{sT0}, s{sT0}, s{sWave}"), S(f"s_mul_i32 s{sSo}, s{sT0}, 7168"), S(f"s_add_u32 s{sSo}, s{sSo}, {XCH_OFF}"),
         S(f"s_xor_b32 s{sT0}, s{sT0}, 256"), S(f"s_mul_i32 s{sBase}, s{sT0}, 7168"), S(f"s_add_u32 s{sBase}, s{sBase}, {XCH_OFF}"),
         V(f"v_xor_b32 v{VP}, 4, v{VFL}"),
         V(f"v_bfe_u32 v{VO}, v{L16}, 4, 4"), V(f"v_mul_u32_u24 v{VO}, 1280, v{VO}"), V(f"v_lshrrev_b32 v{POLL}, 8, v{L16}"), V(f"v_lshl_add_u32 v{VO}, v{POLL}, 3, v{VO}"),
         S(f"s_mul_i32 s{sLd}, s{sB}, 204800"), S(f"s_and_b32 s{sT0}, s{sWave}, 1"), S(f"s_mul_i32 s{sT0}, s{sT0}, 102400"), S(f"s_add_u32 s{sLd}, s{sLd}, s{sT0}"),
         S(f"s_mul_i32 s{sT0}, s{sNq}, 320"), S(f"s_add_u32 s{sLd}, s{sLd}, s{sT0}"), S(f"s_bfe_u32 s{sT0}, s{sWave}, 0x10001"), S(f"s_mul_i32 s{sT0}, s{sT0}, 160"),
         S(f"s_add_u32 s{sLd}, s{sLd}, s{sT0}"),
         S(f"s_lshl_b32 s{sNeed}, 0x10000, s{sNq}"), S(f"s_add_u32 s{sHi}, s{sNq}, 16"),
         S(f"s_lshr_b32 s{sT0}, s{sG}, 2"), S(f"s_lshl_b32 s{sT1}, s{sKs}, 1"), S(f"s_add_u32 s{sT0}, s{sT0}, s{sT1}")]
    for v in range(1, 4): E += [S(f"s_cmp_eq_u32 s{sT0}, {v}"), branch("s_cbranch_scc1", f"L_o_epi{v}")]
    C += fix_hazards(E)
    for v in range(4):
        ks, kh = v >> 1, v & 1
        mine = TS[v]; xsend = TS[v ^ 1]; keep = sorted(mine + xsend); lsend = sorted(TS[v ^ 2] + TS[v ^ 3])
        E = [label(f"L_o_epi{v}")]
        order = lsend + xsend + mine
        mf = [mfma(acc(t), fA(1, t % 5), fB(1, t // 5), acc(t)) for t in order]
        wr = [[ds_write(4, LW, acc(t), i * 1024)] for i, t in enumerate(lsend)]
        E += spread(mf, [(wr, 6, 25)])
        E += [wait(lgkm=0), barrier()]
        rorder = xsend + mine
        for i, t in enumerate(rorder): E.append(ds_read(4, RB + 4 * i, LR, keep.index(t) * 1024))
        for i, t in enumerate(rorder):
            for r in range(4): E.append(V(f"v_add_f32 v{acc(t)+r}, v{acc(t)+r}, v{RB+4*i+r}"))
            if t in xsend:
                k = xsend.index(t)
                if k == 4: E.append(S(f"s_add_u32 s{sSo}, s{sSo}, 4096"))
                E.append(bstore(4, acc(t), L16, sWS, f"s{sSo}", (k & 3) * 1024, 'sc1'))
        E += st(84)
        E += [wait(vm=0), barrier()]
        if ks == 0:
            E += [S(f"s_cmp_lg_u32 s{sWave}, 0"), branch("s_cbranch_scc1", f"L_o_spin3_{v}_x")] + flag_add(RB, f"s{sNeed}", f"L_o_spin3_{v}")
            E += [bload(1, POLL, VP, sDBG, 0, 0, 'sc1'), S(f"s_sub_u32 s{sCnt}, s{sCnt}, 1"), S(f"s_cmp_lt_i32 s{sCnt}, 0"), branch("s_cbranch_scc1", f"L_o_spin3_{v}_x"),
                  wait(vm=0), V(f"v_readfirstlane_b32 s{sT2}, v{POLL}"),
                  S(f"s_bitcmp1_b32 s{sT2}, s{sHi}"), branch("s_cbranch_scc1", f"L_o_spin3_{v}_x")]
            if Cfg.xsleep: E += [raw(f"s_sleep {Cfg.xsleep}")]
            E += [branch("s_branch", f"L_o_spin3_{v}"), label(f"L_o_spin3_{v}_x")]
        E += [barrier()]
        E += st(85)
        for k, t in enumerate(mine):
            if k == 4: E.append(S(f"s_add_u32 s{sBase}, s{sBase}, 4096"))
            E.append(bload(4, RB + 4 * k, L16, sWS, f"s{sBase}", (k & 3) * 1024, 'sc1'))
        for k, t in enumerate(mine):
            a_ = acc(t)
            E.append(wait(vm=len(mine) - 1))
            for r in range(4): E.append(V(f"v_add_f32 v{a_+r}, v{a_+r}, v{RB+4*k+r}"))
            E += [V(f"v_cvt_pk_bf16_f32 v{a_}, v{a_}, v{a_+1}"), V(f"v_cvt_pk_bf16_f32 v{a_+1}, v{a_+2}, v{a_+3}"),
                  S(f"s_add_u32 s{sT0}, s{sLd}, {(t//5)*20480}"), bstore(2, a_, VO, sOUT, f"s{sT0}", (t % 5) * 32)]
        E += st(86) + st(77, True)
        if Cfg.dbgst and ks == 1:
            E += [S(f"s_cmp_lg_u32 s{sWave}, 4"), branch("s_cbranch_scc1", f"L_dbgend{v}"), S(f"s_cmp_lg_u32 s2, {Cfg.dbgst}"), branch("s_cbranch_scc1", f"L_dbgend{v}"),
                  S("s_mov_b64 exec, 1"), V("v_mov_b32 v1, 0")]
            for i, r in enumerate(DREG):
                E += [S(f"s_sub_u32 s{r}, s{r}, s{sStamp+2}"), S(f"s_lshr_b32 s{r}, s{r}, 6"), S(f"s_lshl_b32 s{r}, s{r}, 20"), V(f"v_mov_b32 v{2+i}, s{r}"),
                      raw(f"buffer_atomic_or v{2+i}, v1, s[{sDBG}:{sDBG+3}], 0 offen offset:{4*i} sc1")]
            E += [label(f"L_dbgend{v}")]
        E += [raw("s_endpgm")]
        E, _ = finish(E)
        C += E
    return C

def gen_kernel(name):
    C = [raw(f".globl {name}\n.p2align 8\n.type {name},@function\n{name}:\nKSTART:", 'label')]
    C += [S("s_cmp_lt_u32 s2, 256"), branch("s_cbranch_scc1", "L_go"), raw("s_endpgm"), label("L_go")]
    C += [raw("s_load_dwordx16 s[56:71], s[0:1], 0")]
    if Cfg.dbgst: C += [raw(f"s_memtime s[{sStamp+2}:{sStamp+3}]")] + [S(f"s_mov_b32 s{r}, 0") for r in DREG]
    C += [V("v_lshrrev_b32 v1, 6, v0"),
          S(f"s_and_b32 s{sB}, s2, 7"), S(f"s_lshl_b32 s{sB}, s{sB}, 2"), V(f"v_readfirstlane_b32 s{sWave}, v1"),
          S(f"s_lshr_b32 s{sT0}, s2, 6"), S(f"s_add_u32 s{sB}, s{sB}, s{sT0}"), S(f"s_bfe_u32 s{sG}, s2, 0x30003")]
    C += [S(f"s_bfe_u32 s{sT0}, s{sWave}, 0x10001"), S(f"s_lshl_b32 s{sT2}, s{sG}, 2"), S(f"s_add_u32 s{sT2}, s{sT2}, s{sT0}"), S(f"s_lshl_b32 s{sWbase}, s{sT2}, 8"),
          S(f"s_cmp_lt_u32 s{sWave}, 4"), branch("s_cbranch_scc1", "L_w3"),
          S(f"s_and_b32 s{sT1}, s{sWave}, 1"), S(f"s_lshl_b32 s{sT2}, s{sT1}, 10"),
          S(f"s_lshl_b32 s{sLdsKV}, s{sT0}, 13"), S(f"s_add_u32 s{sLdsKV}, s{sLdsKV}, s{sT2}"),
          S(f"s_mul_i32 s{sLdsX}, s{sT0}, 10240"), S(f"s_add_u32 s{sLdsX}, s{sLdsX}, s{sT2}"),
          S(f"s_mul_i32 s{sXbase}, s{sB}, 204800"), S(f"s_mul_i32 s{sT2}, s{sT0}, 102400"), S(f"s_add_u32 s{sXbase}, s{sXbase}, s{sT2}")]
    C = fix_hazards(C)
    w2, r2 = gen_w2(); w3, r3 = gen_w3()
    C += w2 + w3 + gen_o() + [label("KEND")] + r2 + r3
    for k, tag, par in CTX.stubs:
        C += [label(f"L_stub{k}"), raw(f"s_call_b64 s[{sRet}:{sRet+1}], L_rare_{tag}_{par}", 'branch'), branch("s_branch", f"L_back{k}")]
    return C

def kd(name, vgpr, accum, sgpr=102):
    return f""".section .rodata,"a"
.p2align 6
.amdhsa_kernel {name}
  .amdhsa_next_free_vgpr {vgpr}
  .amdhsa_next_free_sgpr {sgpr}
  .amdhsa_accum_offset {accum}
  .amdhsa_group_segment_fixed_size 0
  .amdhsa_kernarg_size 64
  .amdhsa_user_sgpr_count 2
  .amdhsa_user_sgpr_kernarg_segment_ptr 1
  .amdhsa_system_sgpr_workgroup_id_x 1
.end_amdhsa_kernel
"""

HDR = open('standalone__mha_block_cached__near_ridge.s.ref').read().split('; Override launch')[0]
def main(path):
    k1 = "standalone__mha_block_cached__near_ridge_kernel"
    s = HDR
    s += f"; @launch grid=(256,1,1) block=(512,1,1) lds={LDS_BYTES}\n"
    s += '.amdgcn_target "amdgcn-amd-amdhsa--gfx950"\n.text\n'
    s += emit(gen_kernel(k1))
    s += kd(k1, 256, 256)
    open(path, 'w').write(s)
if __name__ == '__main__':
    for a in sys.argv[2:]:
        k, v = a.split('=', 1); setattr(Cfg, k, eval(v))
    main(sys.argv[1] if len(sys.argv) > 1 else 'mha2.s')
```

```python
import sys, math, struct
from ir import *

SLOT = 16384
NSLOT = 10
NW, NX = 6, 3
WPERM = [4, 5, 1, 3, 0, 2]
def wslot(s): return WPERM[s % NW] * SLOT
def xbuf(u): return NW * SLOT + (u % NX) * 20480
WTAB = sum((((WPERM[(m + 1) % NW] - WPERM[m]) & 15) << (4 * m)) for m in range(NW))
LDS_BYTES = 163840
O_BYTES = 32 * 128 * 10 * 1024
XCH_OFF = O_BYTES
XCH_WG = 8 * 7168
WS_BYTES = XCH_OFF + 256 * XCH_WG
QSCALE = math.log2(math.e) / math.sqrt(128.0)
THR = 16384.0
def f2u(x): return "0x%08x" % struct.unpack('<I', struct.pack('<f', x))[0]

sK, sV, sW, sX, sWS, sWO, sOUT, sDBG = 8, 12, 16, 20, 24, 28, 76, 80
sWave, sRound, sB, sG = 32, 33, 34, 35
sKVbase, sWbase, sXbase, sLdsKV, sLdsX = 36, 37, 38, 39, 40
sT0, sT1 = 41, 42
sKpos, sVpos, sD, sCnt, sXd, sLoop = 43, 44, 45, 49, 50, 51
sRet = 46
sOst = 48
sKX, sFlag = 52, 53
sT2, sT3 = 54, 55
sQS, sC16, sC32, sCX = 72, 73, 74, 75
sTK, sTV, sCnt2 = 88, 89, 90
sStamp = 84
DBG_OFF = 64 << 20

class Cfg:
    stamps = False
    dbgst = False
    dsl = None
    LA = 7
    kv_pol = 'nt'
    touch_pol = ''
    touch_at = []
    warm = True
    xsleep = 2
    codetouch = True
    qcut = 8
    prio = 2
    no_sm = False
    no_dma = False
    no_exp = False
    no_chk = False
    no_ds = False
    no_adv = False
    ost_pol = 'sc1'
    old_pol = 'sc1'
    o_skip = 0
    o_vm1 = 10
    smend = 3

STAMP3 = (0, 1, 7, 39, 41, 43, 45, 73, 75, 76, 77, 80, 81, 82, 83, 84, 85, 86)
DSL = {(1, 0): 0, (41, 0): 1, (45, 0): 2, (73, 0): 3, (1, 1): 4, (41, 1): 5, (45, 1): 6, (73, 1): 7, (80, 2): 8, (82, 2): 9, (83, 2): 10, (84, 2): 11, (85, 2): 12, (86, 2): 13}
sDS = 4
DREG = [4, 5, 6, 7, 91, 92, 93, 94, 95, 96, 97, 98, 99, 100]
def stamp(t, k, real=False):
    if Cfg.dbgst:
        if real: return []
        dsl = DSL if not Cfg.dsl else {(2 * b + 1, Cfg.dsl[0]): i for i, b in enumerate(Cfg.dsl[1:])}
        hits = [(r, i) for (kk, r), i in dsl.items() if kk == k]
        if not hits: return []
        out = [raw(f"s_memtime s[{sStamp}:{sStamp+1}]"), wait(lgkm=0)]
        for r, i in hits:
            out += [S(f"s_cmp_eq_u32 s{sRound}, {r}"), S(f"s_cselect_b32 s{DREG[i]}, s{sStamp}, s{DREG[i]}")]
        return out
    if not Cfg.stamps: return []
    if Cfg.stamps == 3 and k not in STAMP3: return []
    return [raw(f"{'s_memrealtime' if real else 's_memtime'} s[{sStamp}:{sStamp+1}]"), wait(lgkm=0), V(f"v_mov_b32 v{t}, s{sStamp}"), V(f"v_mov_b32 v{t+1}, 0"),
            S(f"s_and_b32 s{sStamp+1}, s{sRound}, 1"), S(f"s_lshl_b32 s{sStamp+1}, s{sStamp+1}, 9"), S(f"s_add_u32 s{sStamp+1}, s{sStamp+1}, s{sStamp+2}"),
            bstore(1, t, t + 1, sWS, f"s{sStamp+1}", 4 * k, tag=('misc',))]

def item_slot(n): return (n % NSLOT) * SLOT
def kidx(t): return 0 if t == 0 else 2 * t - 1
def vidx(t): return 2 * t + 2

class Wave:
    def __init__(self, nq):
        self.nq = nq
        n = nq
        p = 0
        self.O = p; p += 32 * n
        self.Q = p; p += 16 * n
        self.NM = p; p += 4 * n
        self.S = p; p += 8 * n
        self.P = p; p += 8 * n
        self.L = p; p += n
        self.LT = p; p += n
        self.T = p; p += 4
        self.aN = p; p += 2
        self.aT = p; p += 4
        p = (p + 3) & ~3
        self.F = p; self.NF = 8; p += 32
        self.dummy = p; p += 1
        self.tmp = p; p += 3
        if nq == 2:
            self.vK = p; self.vV = p + 1; self.vW = p + 2; self.vX = p + 3; self.vTch = p + 4; self.oVoff = p + 5; self.oPoll = p + 6; p += 7
        assert p <= 256, p
        self.end = p
        setsz = 32 + 4 * n
        if nq == 3:
            self.set = [self.Q, self.S]
        else:
            q = (p + 3) & ~3
            self.set = [self.Q, q]
            assert q + setsz <= 256
        self.tag = f"w{nq}"
        self.fpos = 0
    def o(self, T, j): return self.O + (T * self.nq + j) * 4
    def q(self, s, j): return self.Q + (s * self.nq + j) * 4
    def nm(self, j): return self.NM + 4 * j
    def s(self, kb, j): return self.S + (kb * self.nq + j) * 4
    def p(self, par, j): return self.P + (par * self.nq + j) * 4
    def fa(self, st, T): return self.set[st] + 4 * T
    def fb(self, st, j): return self.set[st] + 32 + 4 * j

def spread(base, fillers):
    ins = [[] for _ in range(len(base) + 1)]
    for groups, lo, hi in fillers:
        n = len(groups)
        if n == 0: continue
        hi = min(hi, len(base)); lo = min(lo, hi)
        span = hi - lo
        for k, gI in enumerate(groups):
            pos = lo + (k * span) // n + 1 if span > 0 else lo
            ins[min(pos, len(base))].extend(gI)
    out = list(ins[0])
    for i, b in enumerate(base):
        out.append(b); out.extend(ins[i + 1])
    return out

def frag_K(w, s, kb, first_c):
    def reads(f): return [ds_read(4, f, w.aN + (s & 1), kb * 4096 + (s >> 1) * 2048)]
    def mf(f):
        out = []
        for j in range(w.nq):
            c = w.s(kb, j) if s > 0 else (None if first_c == 'zero' else w.nm(j))
            out.append(mfma(w.s(kb, j), f, w.q(s, j), c))
        return out
    return dict(reads=reads, mf=mf, pre=[])
def frags_QK(w, first_c='negm', pre=()):
    fr = [frag_K(w, s, kb, first_c) for s in range(4) for kb in range(2)]
    fr[0]['pre'] = list(pre)
    return fr
def frag_V(w, db, par, zero):
    def reads(f): return [ds_read(2, f + 2 * hh, w.aT + (db & 3), hh * 4096 + (db >> 2) * 2048, tr=True) for hh in range(2)]
    def mf(f): return [mfma(w.o(db, j), f, w.p(par, j), None if zero else w.o(db, j)) for j in range(w.nq)]
    return dict(reads=reads, mf=mf, pre=[])
def frags_PV(w, par, zero=False, pre=()):
    fr = [frag_V(w, db, par, zero) for db in range(8)]
    fr[0]['pre'] = list(pre)
    return fr

def stream(w, frags, preloaded, nxt, fillers=(), lead=()):
    LA = Cfg.LA
    allf = list(frags) + list(nxt[:LA])
    head = []
    def issue(i):
        f = allf[i]
        return ([] if Cfg.no_adv else list(f['pre'])) + ([] if Cfg.no_ds else f['reads'](w.F + 4 * ((w.fpos + i) % w.NF)))
    for i in range(preloaded, min(LA, len(allf))): head += issue(i)
    base = list(lead); extra = []
    for i, f in enumerate(frags):
        m = f['mf'](w.F + 4 * ((w.fpos + i) % w.NF))
        base += m
        post = []
        if i + LA < len(allf) and i + LA >= preloaded: post += issue(i + LA)
        if post: extra.append(([post], len(base) - 1, len(base)))
    body = spread(base, list(extra) + list(fillers))
    w.fpos = (w.fpos + len(frags)) % w.NF
    return head + body

def softmax_groups(w, par):
    G = []
    k = 0
    for kb in range(2):
        for j in range(w.nq):
            for h in range(2):
                t0 = w.T + 2 * (k & 1); t1 = t0 + 1; k += 1
                sr = w.s(kb, j) + 2 * h
                G.append([V(f"v_exp_f32 v{t0}, v{sr}")])
                G.append([V(f"v_exp_f32 v{t1}, v{sr+1}")])
                lt = w.LT + j
                if kb == 0 and h == 0:
                    G.append(('late', [V(f"v_add_f32 v{lt}, v{t0}, v{t1}"), V(f"v_cvt_pk_bf16_f32 v{w.p(par,j)+2*kb+h}, v{t0}, v{t1}")]))
                else:
                    G.append(('late', [V(f"v_add_f32 v{lt}, v{lt}, v{t0}"), V(f"v_cvt_pk_bf16_f32 v{w.p(par,j)+2*kb+h}, v{t0}, v{t1}"),
                                       V(f"v_add_f32 v{lt}, v{lt}, v{t1}")]))
    if Cfg.no_sm: return [[V(f"v_mov_b32 v{w.LT+j}, 1.0")] for j in range(w.nq)]
    if Cfg.no_exp:
        for gI in G:
            if not isinstance(gI, tuple): gI[0] = V(gI[0].text.replace('v_exp_f32', 'v_mov_b32'))
    out = []; pend = None
    for gI in G:
        if isinstance(gI, tuple):
            pend = gI[1]
        else:
            out.append(gI)
            if pend is not None:
                out.append(pend); pend = None
    if pend is not None: out.append(pend)
    return out

class Ctx:
    def __init__(self): self.stubs = []; self.n = 0
CTX = Ctx()

def check_cmp(w):
    if Cfg.no_chk: return []
    out = []
    if w.nq == 3: out.append(V(f"v_max3_f32 v{w.tmp}, v{w.LT}, v{w.LT+1}, v{w.LT+2}"))
    else: out.append(V(f"v_max_f32 v{w.tmp}, v{w.LT}, v{w.LT+1}"))
    out.append(I(f"v_cmp_nge_f32 vcc, {f2u(THR)}, v{w.tmp}", 'valu', wr={('s', 'vcc')}, rd=regs(w.tmp)))
    return out
def check_branch(w, par):
    if Cfg.no_chk: return []
    k = CTX.n; CTX.n += 1
    CTX.stubs.append((k, w.tag, par))
    return [branch("s_cbranch_vccnz", f"L_stub{k}"), label(f"L_back{k}")]
def l_accum(w, first=False):
    if first: return [V(f"v_mov_b32 v{w.L+j}, v{w.LT+j}") for j in range(w.nq)]
    return [V(f"v_add_f32 v{w.L+j}, v{w.L+j}, v{w.LT+j}") for j in range(w.nq)]
def sm_fillers(w, par, lo):
    nm = 8 * w.nq
    return [(softmax_groups(w, par) + [check_cmp(w)], lo, nm - Cfg.smend)]

def xlane(op, r, t):
    return [V(f"v_mov_b32 v{t}, v{r}"), V(f"v_permlane32_swap_b32 v{r}, v{t}"), V(f"{op} v{r}, v{r}, v{t}"),
            V(f"v_mov_b32 v{t}, v{r}"), V(f"v_permlane16_swap_b32 v{r}, v{t}"), V(f"{op} v{r}, v{r}, v{t}")]

def tile_max(w, j, dst):
    a, b = w.s(0, j), w.s(1, j)
    return [V(f"v_max3_f32 v{dst}, v{a}, v{a+1}, v{a+2}"), V(f"v_max3_f32 v{dst}, v{dst}, v{a+3}, v{b}"),
            V(f"v_max3_f32 v{dst}, v{dst}, v{b+1}, v{b+2}"), V(f"v_max_f32 v{dst}, v{dst}, v{b+3}")]

def first_max(w):
    out = []
    for j in range(w.nq): out += tile_max(w, j, w.LT + j)
    seqs = [xlane("v_max_f32", w.LT + j, w.T + j) for j in range(w.nq)]
    for k in range(6):
        for sq in seqs: out.append(sq[k])
    for j in range(w.nq):
        for r in range(4): out.append(V(f"v_sub_f32 v{w.nm(j)+r}, 0, v{w.LT+j}"))
        for kb in range(2):
            for r in range(4): out.append(V(f"v_sub_f32 v{w.s(kb,j)+r}, v{w.s(kb,j)+r}, v{w.LT+j}"))
    return out

def rare_routine(w, par):
    out = [label(f"L_rare_{w.tag}_{par}"), nop(15)]
    for j in range(w.nq):
        d = w.LT + j; f = w.T + 1
        out += tile_max(w, j, d)
        out += xlane("v_max_f32", d, w.T)
        out.append(V(f"v_max_f32 v{d}, 0, v{d}"))
        out.append(V(f"v_sub_f32 v{f}, 0, v{d}"))
        out.append(V(f"v_exp_f32 v{f}, v{f}"))
        for r in range(4): out.append(V(f"v_sub_f32 v{w.nm(j)+r}, v{w.nm(j)+r}, v{d}"))
        for kb in range(2):
            for r in range(4): out.append(V(f"v_sub_f32 v{w.s(kb,j)+r}, v{w.s(kb,j)+r}, v{d}"))
        out.append(V(f"v_mul_f32 v{w.L+j}, v{w.L+j}, v{f}"))
        for T in range(8):
            for r in range(4): out.append(V(f"v_mul_f32 v{w.o(T,j)+r}, v{w.o(T,j)+r}, v{f}"))
    for gI in softmax_groups(w, par): out += gI
    out.append(nop(3))
    out.append(raw(f"s_setpc_b64 s[{sRet}:{sRet+1}]", 'branch'))
    return fix_hazards(out)

def q_reads(w, st, sl):
    G = []
    for j in range(w.nq): G.append([ds_read(4, w.fb(st, j), w.aN + sl, j * 2048)])
    for T in range(8):
        for hh in range(2):
            G.append([ds_read(2, w.fa(st, T) + 2 * hh, w.aT + (T & 3), hh * 4096 + (T >> 2) * 2048, tr=True)])
    return G
def q_mfmas(w, st, zero):
    return [mfma(w.o(T, j), w.fa(st, T), w.fb(st, j), None if zero else w.o(T, j)) for T in range(8) for j in range(w.nq)]

def q_pack_groups(w, s):
    G = []
    for j in range(w.nq):
        for half in range(2):
            a = w.o(2 * s + half, j)
            for r in range(4): G.append([V(f"v_mul_f32 v{a+r}, s{sQS}, v{a+r}")])
            G.append([V(f"v_cvt_pk_bf16_f32 v{w.q(s,j)+2*half}, v{a}, v{a+1}")])
            G.append([V(f"v_cvt_pk_bf16_f32 v{w.q(s,j)+2*half+1}, v{a+2}, v{a+3}")])
    for op in ("v_permlane32_swap_b32", "v_permlane16_swap_b32"):
        for j in range(w.nq):
            q = w.q(s, j)
            G.append([V(f"{op} v{q}, v{q+2}")]); G.append([V(f"{op} v{q+1}, v{q+3}")])
    return G
def q_pack_fillers(w):
    n = w.nq
    rng = [(2 * n + 2, 5 * n), (5 * n, 8 * n), (8 * n, 11 * n), (11 * n, 14 * n - 1)]
    return [(q_pack_groups(w, s), rng[s][0], rng[s][1]) for s in range(4)]

def l_reduce(w):
    out = []
    seqs = [xlane("v_add_f32", w.L + j, w.T + j) for j in range(w.nq)]
    for k in range(6):
        for sq in seqs: out.append(sq[k])
    for j in range(w.nq): out.append(V(f"v_rcp_f32 v{w.L+j}, v{w.L+j}"))
    out += [V(f"v_mbcnt_lo_u32_b32 v{w.tmp}, -1, 0"), V(f"v_mbcnt_hi_u32_b32 v{w.tmp}, -1, v{w.tmp}"), V(f"v_lshlrev_b32 v{w.tmp}, 4, v{w.tmp}")]
    return out
def epi_groups(w, s):
    G = []
    for j in range(w.nq):
        d = w.q(s, j)
        for half in range(2):
            a = w.o(2 * s + half, j)
            for r in range(4): G.append([V(f"v_mul_f32 v{a+r}, v{a+r}, v{w.L+j}")])
            G.append([V(f"v_cvt_pk_bf16_f32 v{d+2*half}, v{a}, v{a+1}")])
            G.append([V(f"v_cvt_pk_bf16_f32 v{d+2*half+1}, v{a+2}, v{a+3}")])
        G.append([S(f"s_add_u32 s{sT1}, s{sOst}, {s*10240}"), bstore(4, d, w.tmp, sWS, f"s{sT1}", j * 1024, Cfg.ost_pol, tag=('O', 0, True))])
    return G
def epi_fillers(w):
    n = w.nq
    rng = [(2 * n + 2, 4 * n + 2), (4 * n + 2, 6 * n + 2), (6 * n + 2, 8 * n), (8 * n, 8 * n)]
    return [([[i] for i in l_reduce(w)], 0, 2 * n + 1)] + [(epi_groups(w, s), rng[s][0], rng[s][1]) for s in range(4)]

def flat(G): return [i for g in G for i in g]
def one(L): return [[i] for i in L]

def dma_kv(w, kind, t, nxt_round, tag):
    srd_ = sK if kind == 'K' else sV
    voff = w.vK if kind == 'K' else w.vV
    n = kidx(t) if kind == 'K' else vidx(t)
    lds = item_slot(n)
    goff = t * 8192 + (262144 if nxt_round else 0)
    G = []
    for a in range(2):
        for seg in range(2):
            G.append([S(f"s_add_u32 m0, s{sLdsKV}, {lds + a*4096 + seg*2048 - seg*128}"),
                      S(f"s_add_u32 s{sT0}, s{sKVbase}, {goff + a*4096}"),
                      dma(voff, srd_, f"s{sT0}", seg * 128, Cfg.kv_pol, tag=tag)])
    return G
def dma_w(w, s, nxt_round, tag):
    lds = wslot(s)
    goff = s * 32 * 8192 + (512 if nxt_round else 0)
    G = []
    for hh in range(2):
        for seg in range(2):
            G.append([S(f"s_add_u32 m0, s{sLdsKV}, {lds + hh*4096 + seg*2048 - seg*128}"),
                      S(f"s_add_u32 s{sT0}, s{sWbase}, {goff + hh*32768}"),
                      dma(w.vW, sW, f"s{sT0}", seg * 128, tag=tag)])
    return G
def dma_x(w, u, tag):
    G = []
    for i in range(5):
        G.append([S(f"s_add_u32 m0, s{sLdsX}, {xbuf(u) + i*2048}"),
                  S(f"s_add_u32 s{sT0}, s{sXbase}, {i*20480 + u*128}"),
                  dma(w.vX, sX, f"s{sT0}", 0, tag=tag)])
    return G
def touch_kv(w, kind):
    srd_, ptr = (sK, sTK) if kind == 'K' else (sV, sTV)
    return [[bload(1, w.dummy, w.vTch, srd_, f"s{ptr}", 0, Cfg.touch_pol, tag=('misc',)), S(f"s_add_u32 s{ptr}, s{ptr}, 4096")]]

NAMES = {}
for _t in range(16):
    NAMES[kidx(_t)] = ('K', _t); NAMES[vidx(_t)] = ('V', _t)
def first_use(kind, i):
    if kind == 'W': return i
    if kind == 'X': return 2 * i
    if kind == 'K': return 20 if i == 0 else 19 + i
    if kind == 'V': return 21 + i
    if kind == 'O': return 3
    if kind == 'P': return 35

def loader_schedule(w):
    sch = {i: [] for i in range(37)}
    r0 = lambda G, lab: [[S(f"s_cmp_lg_u32 s{sRound}, 0"), branch("s_cbranch_scc1", lab)] + flat(G) + [label(lab)]]
    sch[0] += r0(dma_w(w, 2, False, ('W', 2, 'cond')), "L_r0a") + dma_x(w, 1, ('X', 1, False)) + r0(dma_w(w, 3, False, ('W', 3, 'cond')), "L_r0b")
    sch[1] += dma_w(w, 4, False, ('W', 4, False)) + dma_x(w, 2, ('X', 2, False))
    sch[2] += dma_w(w, 5, False, ('W', 5, False))
    for s in range(NW, 20): sch[max(s - NW + 1, 3)] += dma_w(w, s, False, ('W', s, False))
    for u in range(NX, 10): sch[2 * (u - NX) + 2] += dma_x(w, u, ('X', u, False))
    if not Cfg.no_dma:
        first = {0: 17, 1: 15, 2: 18, 3: 16, 4: 19, 5: 20, 6: 20, 7: 20, 8: 18, 9: 19}
        for n in range(10): sch[first[n]] += dma_kv(w, *NAMES[n], False, NAMES[n] + (False,))
        for n in range(10, 33):
            if n not in NAMES: continue
            k, t = NAMES[n - 10]
            last = (20 + t) if k == 'K' else min(22 + t, 36)
            sch[last + 1] += dma_kv(w, *NAMES[n], False, NAMES[n] + (False,))
    for idx, ss in ((33, (2, 3)), (34, (0, 1))):
        for s_ in ss: sch[idx] += r0(dma_w(w, s_, True, ('W', s_, 'next')), f"L_r0w{s_}")
    sch[31] += [[V(f"v_mov_b32 v{w.tmp+2}, s{sFlag}"), bload(1, w.oPoll, w.tmp + 2, sDBG, 0, 0, 'sc1', tag=('P', 0, False))]]
    for u in range(2):
        alt = flat(dma_x(w, 0, ('X', 0, 'next'))) if u == 0 else []
        sch[35 + u] += [[S(f"s_cmp_lg_u32 s{sRound}, 0"), branch("s_cbranch_scc1", f"L_opre{u}")] + alt + [label(f"L_opre{u}_back"), I("; opre", 'comment', tag=('phantom', 0 if Cfg.o_skip else 10))]]
    if not Cfg.no_dma:
        for i, idx in enumerate(sorted(Cfg.touch_at)): sch[idx] += touch_kv(w, 'KV'[i & 1])
    return sch

def lane_id(r): return [V(f"v_mbcnt_lo_u32_b32 v{r}, -1, 0"), V(f"v_mbcnt_hi_u32_b32 v{r}, -1, v{r}")]
def lane_setup(w):
    t = w.F + 8
    lane, i16, g, a, b, c = t, t + 1, t + 2, t + 3, t + 4, t + 5
    o = lane_id(lane) + [V(f"v_and_b32 v{i16}, 15, v{lane}"), V(f"v_lshrrev_b32 v{g}, 4, v{lane}")]
    o += [V(f"v_lshrrev_b32 v{a}, 1, v{i16}"), V(f"v_xor_b32 v{a}, v{a}, v{g}"), V(f"v_lshlrev_b32 v{a}, 4, v{a}"),
          V(f"v_lshl_add_u32 v{w.aN}, v{i16}, 7, v{a}"), V(f"v_xor_b32 v{w.aN+1}, 64, v{w.aN}")]
    o += [V(f"v_lshrrev_b32 v{a}, 2, v{lane}"), V(f"v_and_b32 v{b}, 6, v{a}"),
          V(f"v_bfe_u32 v{c}, v{lane}, 1, 1"), V(f"v_xor_b32 v{b}, v{b}, v{c}"), V(f"v_lshlrev_b32 v{b}, 4, v{b}"),
          V(f"v_lshl_add_u32 v{b}, v{a}, 7, v{b}"),
          V(f"v_and_b32 v{c}, 1, v{lane}"), V(f"v_lshl_add_u32 v{w.aT}, v{c}, 3, v{b}")]
    for dq in range(1, 4): o.append(V(f"v_xor_b32 v{w.aT+dq}, {dq<<5}, v{w.aT}"))
    return o
def voff_setup(w):
    t = w.F + 16
    r8, p, a, b, row = t, t + 1, t + 2, t + 3, t + 4
    o = [V(f"v_bfe_u32 v{row}, v0, 3, 4"),
         V(f"v_and_b32 v{p}, 7, v0"),
         V(f"v_lshrrev_b32 v{a}, 1, v{row}"), V(f"v_xor_b32 v{a}, v{a}, v{p}"), V(f"v_lshlrev_b32 v{a}, 4, v{a}"),
         V(f"v_and_b32 v{b}, 6, v{row}"), V(f"v_xor_b32 v{b}, v{b}, v{p}"), V(f"v_lshlrev_b32 v{b}, 4, v{b}"),
         V(f"v_and_b32 v{p}, 12, v{row}"), V(f"v_add_u32 v{p}, v{p}, v{row}"), V(f"v_lshl_add_u32 v{w.vW}, v{p}, 13, v{b}"),
         V(f"v_mul_u32_u24 v{p}, 1280, v{row}"), V(f"v_add_u32 v{w.vX}, v{p}, v{a}")]
    o2 = [V(f"v_lshl_add_u32 v{w.vK}, v{row}, 8, v{a}"), V(f"v_lshl_add_u32 v{w.vV}, v{row}, 8, v{b}"),
          V(f"v_and_b32 v{p}, 63, v0"), V(f"v_lshlrev_b32 v{p}, 5, v{p}"), V(f"v_bfe_u32 v{r8}, v0, 6, 1"), V(f"v_lshl_add_u32 v{w.vTch}, v{r8}, 11, v{p}")]
    return o, o2

def add_addr(regs_, delta):
    if delta == 0: return []
    if isinstance(delta, str): return [V(f"v_add_u32 v{r}, {delta}, v{r}") for r in regs_]
    return [V(f"v_add_u32 v{r}, {delta & 0xffffffff:#x}, v{r}") for r in regs_]

def finish(code, pending=None, pre=()):
    c, q = add_lgkm_waits(code, pending)
    return fix_hazards(c, pre), q

def srd(base, ptr, nbytes):
    return [S(f"s_mov_b32 s{base}, s{ptr}"), S(f"s_mov_b32 s{base+1}, s{ptr+1}"), S(f"s_mov_b32 s{base+2}, {nbytes}"), S(f"s_mov_b32 s{base+3}, 0x20000")]

def round_advance():
    return [S(f"s_add_u32 s{sKVbase}, s{sKVbase}, 262144"), S(f"s_add_u32 s{sWbase}, s{sWbase}, 512"),
            S(f"s_add_u32 s{sOst}, s{sOst}, {8*10240}"), S(f"s_add_u32 s{sRound}, s{sRound}, 1"), S(f"s_cmp_lt_u32 s{sRound}, 2")]

def flag_add(t, val, lab):
    return [V(f"v_mov_b32 v{t}, {val}"), V(f"v_mov_b32 v{t+1}, s{sFlag}"), S("s_mov_b64 exec, 1"),
            I(f"buffer_atomic_or v{t}, v{t+1}, s[{sDBG}:{sDBG+3}], 0 offen sc1", 'vstore', rd=regs(t, 2) | regs(sDBG, 4, 's'), tag=('cond',)),
            S("s_mov_b64 exec, -1"), label(lab)]

def common_scalars():
    C = srd(sK, 58, 134217728) + srd(sV, 60, 134217728) + srd(sWO, 64, 5242880) + srd(sOUT, 66, 6553600) + srd(sDBG, 68, 256) \
        + srd(sWS, 70, (128 << 20) if Cfg.stamps else WS_BYTES)
    C += [S(f"s_lshr_b32 s{sT2}, s{sWbase}, 8"),
          S(f"s_lshl_b32 s{sT3}, s{sB}, 5"), S(f"s_add_u32 s{sT3}, s{sT3}, s{sT2}"), S(f"s_lshl_b32 s{sKVbase}, s{sT3}, 17"),
          S(f"s_mul_i32 s{sOst}, s{sT3}, 40960"),
          S(f"s_lshl_b32 s{sFlag}, s{sB}, 1"), S(f"s_lshr_b32 s{sT2}, s{sG}, 2"), S(f"s_add_u32 s{sFlag}, s{sFlag}, s{sT2}"), S(f"s_lshl_b32 s{sFlag}, s{sFlag}, 2"),
          S(f"s_mov_b32 s{sRound}, 0"), S(f"s_mov_b32 s{sQS}, {f2u(QSCALE)}"), S(f"s_mov_b32 s{sC16}, {WTAB:#x}"), S(f"s_mov_b32 s{sC32}, {2*SLOT}"),
          S(f"s_mov_b32 s{sCX}, 20480"), S(f"s_mov_b32 s{sTK}, s{sKVbase}"), S(f"s_mov_b32 s{sTV}, s{sKVbase}")]
    if Cfg.stamps:
        C += [S(f"s_lshl_b32 s{sStamp+2}, s2, 3"), S(f"s_add_u32 s{sStamp+2}, s{sStamp+2}, s{sWave}"), S(f"s_lshl_b32 s{sStamp+2}, s{sStamp+2}, 10"),
              S(f"s_add_u32 s{sStamp+2}, s{sStamp+2}, {DBG_OFF}")]
    return C
def wave_addr0(w, j0mul, j0add):
    aN = [w.aN, w.aN + 1]; aT = [w.aT + i for i in range(4)]
    C = [S(f"s_bfe_u32 s{sT0}, s{sWave}, 0x10001"), S(f"s_lshl_b32 s{sT0}, s{sT0}, 13"),
         S(f"s_and_b32 s{sT1}, s{sWave}, 1"), S(f"s_mul_i32 s{sT1}, s{sT1}, {j0mul*1024}"), S(f"s_add_u32 s{sT1}, s{sT1}, {j0add*1024}"),
         S(f"s_add_u32 s{sOst}, s{sOst}, s{sT1}"), S(f"s_lshl_b32 s{sT1}, s{sT1}, 1"),
         S(f"s_sub_u32 s{sKX}, s{sT0}, s{sT1}"),
         S(f"s_add_u32 s{sT0}, s{sT0}, {wslot(0)}"), S(f"s_add_u32 s{sT1}, s{sT1}, {xbuf(0)}")]
    return C + add_addr(aT, f"s{sT0}") + add_addr(aN, f"s{sT1}")

def gen_w3():
    w = Wave(3); nm = 24
    st = lambda k, real=False: stamp(w.tmp + 1, k, real)
    aN = [w.aN, w.aN + 1]; aT = [w.aT + i for i in range(4)]
    C = [label("L_w3"), raw("s_waitcnt lgkmcnt(0)")]
    if Cfg.codetouch:
        t = w.tmp + 1
        C += [raw(f"s_getpc_b64 s[{sRet}:{sRet+1}]"), label("L_pc0"),
              S(f"s_sub_u32 s{sRet}, s{sRet}, L_pc0-KSTART"), S(f"s_subb_u32 s{sRet+1}, s{sRet+1}, 0"),
              S(f"s_lshr_b32 s{sT0}, s2, 3"), S(f"s_lshl_b32 s{sT0}, s{sT0}, 2"), S(f"s_add_u32 s{sT0}, s{sT0}, s{sWave}"), S(f"s_lshl_b32 s{sT0}, s{sT0}, 7"),
              V(f"v_and_b32 v{t}, 7, v0"), V(f"v_lshlrev_b32 v{t}, 14, v{t}"), V(f"v_add_u32 v{t}, s{sT0}, v{t}"),
              V(f"v_min_u32 v{t}, KEND-KSTART-4, v{t}"),
              I(f"global_load_dword v{w.dummy}, v{t}, s[{sRet}:{sRet+1}]", 'vload', wr=regs(w.dummy), rd=regs(t) | regs(sRet, 2, 's'))]
    if Cfg.warm:
        t = w.tmp + 1
        C += srd(sW, 62, 5242880) + srd(sX, 56, 6553600)
        C += [V(f"v_and_b32 v{t}, 63, v0"), V(f"v_lshlrev_b32 v{t}, 7, v{t}"),
              S(f"s_mul_i32 s{sT0}, s{sB}, 204800"), S(f"s_mul_i32 s{sT1}, s{sG}, 25600"), S(f"s_add_u32 s{sT0}, s{sT0}, s{sT1}"),
              S(f"s_mul_i32 s{sT1}, s{sWave}, 5760"), S(f"s_add_u32 s{sT0}, s{sT0}, s{sT1}"),
              V(f"v_bfe_u32 v{t+1}, v0, 3, 3"), V(f"v_min_u32 v{t+1}, 4, v{t+1}"), V(f"v_lshlrev_b32 v{t+1}, 13, v{t+1}"),
              V(f"v_and_b32 v{w.T}, 7, v0"), V(f"v_lshl_add_u32 v{t+1}, v{w.T}, 7, v{t+1}"),
              S(f"s_lshl_b32 s{sT1}, s{sB}, 2"), S(f"s_add_u32 s{sT1}, s{sT1}, s{sWave}"), S(f"s_mul_i32 s{sT1}, s{sT1}, {5*8192}"),
              S(f"s_lshl_b32 s{sT2}, s{sG}, 10"), S(f"s_add_u32 s{sT1}, s{sT1}, s{sT2}"),
              barrier(), bload(1, w.dummy, t + 1, sW, f"s{sT1}"), bload(1, w.dummy, t, sX, f"s{sT0}")]
    C += common_scalars() + lane_setup(w) + wave_addr0(w, 3, 0)
    C, _ = finish(C)
    out = C
    def wadv():
        return [S(f"s_bfe_i32 s{sD}, s{sC16}, s{sCnt}"), S(f"s_lshl_b32 s{sD}, s{sD}, 14"), S(f"s_add_u32 s{sCnt}, s{sCnt}, 4"),
                S(f"s_cmp_eq_u32 s{sCnt}, {0x40000 + 4*NW:#x}"), S(f"s_cselect_b32 s{sCnt}, 0x40000, s{sCnt}")] + add_addr(aT, f"s{sD}")
    def xadv():
        return [S(f"s_add_u32 s{sCnt2}, s{sCnt2}, 1"), S(f"s_cmp_eq_u32 s{sCnt2}, {NX}"), S(f"s_cselect_b32 s{sXd}, {(-(NX-1)*20480) & 0xffffffff:#x}, s{sCX}"),
                S(f"s_cselect_b32 s{sCnt2}, 0, s{sCnt2}")] + add_addr(aN, f"s{sXd}")
    def qstage(s, zero=False, extra=()):
        p = s & 1
        adv_ = wadv() + (xadv() if p == 1 else []) + list(extra)
        L = [barrier()] + spread(q_mfmas(w, 1 - p, zero), [(q_reads(w, p, p), 0, 16), (one(adv_), 17, 22)]) + [wait(lgkm=0)]
        k = [i for i, c in enumerate(L) if c.kind == 'mfma'][Cfg.qcut]
        return L[:k], L[k:]
    C = [label("L_w3_round")] + st(0) + [barrier()] + st(1)
    C += flat(q_reads(w, 0, 0))
    C += add_addr(aT, wslot(1) - wslot(0))
    C += [S(f"s_mov_b32 s{sCnt}, 0x40004"), S(f"s_mov_b32 s{sCnt2}, {(xbuf(0)-NW*SLOT)//20480}"), S(f"s_mov_b32 s{sLoop}, 8")]
    C += [wait(lgkm=0)]
    h1, t1 = qstage(1, zero=True); he, te = qstage(2); ho, to = qstage(3)
    C += h1 + t1 + [wait(vm=0)] + he
    C, q = finish(C); out += C
    B = [label("L_w3_q")] + te + ho + to + he
    B += [S(f"s_sub_u32 s{sLoop}, s{sLoop}, 1"), S(f"s_cmp_lg_u32 s{sLoop}, 0"), branch("s_cbranch_scc1", "L_w3_q")]
    Bc, q2 = finish(B, q, pre=out[-12:]); Bc2, _ = finish(B, q2, pre=Bc[-12:])
    assert emit(Bc) == emit(Bc2)
    out += Bc
    curT = wslot(20); curN = xbuf(10)
    h19, t19 = qstage(19, extra=add_addr(aN, f"s{sKX}") + add_addr(aN, item_slot(kidx(0)) - curN) + add_addr(aT, item_slot(vidx(0)) - curT))
    C = te + h19 + t19
    C += st(40) + [barrier()] + st(41)
    k0 = frags_QK(w, 'zero')
    k1 = frags_QK(w, 'negm', pre=add_addr(aN, item_slot(kidx(1)) - item_slot(kidx(0))))
    w.fpos = 0
    C += stream(w, k0, 0, k1, lead=q_mfmas(w, 1, False), fillers=q_pack_fillers(w))
    C += first_max(w)
    C += st(42) + [barrier()] + st(43)
    C += flat(softmax_groups(w, 0)) + l_accum(w, first=True)
    v0 = frags_PV(w, 0, zero=True)
    if Cfg.warm:
        t = w.tmp + 1
        C += [S(f"s_cmp_lg_u32 s{sRound}, 0"), branch("s_cbranch_scc1", "L_nowarm")] + lane_id(t) + [V(f"v_min_u32 v{t}, 39, v{t}"), V(f"v_lshlrev_b32 v{t}, 7, v{t}"),
              S(f"s_lshl_b32 s{sT0}, s2, 2"), S(f"s_add_u32 s{sT0}, s{sT0}, s{sWave}"), S(f"s_mul_i32 s{sT0}, s{sT0}, 5120"),
              bload(1, w.dummy, t, sWO, f"s{sT0}"), label("L_nowarm")]
    C += [S(f"s_mov_b32 s{sKpos}, {item_slot(kidx(1))}"), S(f"s_mov_b32 s{sVpos}, {item_slot(vidx(0))}"), S(f"s_mov_b32 s{sLoop}, 7")]
    C += stream(w, k1, Cfg.LA, v0)
    C += st(44) + [barrier()] + st(45)
    def adv(pos, rr):
        return [S(f"s_cmp_ge_u32 s{pos}, {LDS_BYTES - 2*SLOT}"), S(f"s_cselect_b32 s{sD}, {(2*SLOT - LDS_BYTES) & 0xffffffff:#x}, s{sC32}"),
                S(f"s_add_u32 s{pos}, s{pos}, s{sD}")] + add_addr(rr, f"s{sD}")
    def pv(par): return frags_PV(w, par, pre=adv(sVpos, aT))
    def qk(): return frags_QK(w, 'negm', pre=adv(sKpos, aN))
    C += stream(w, v0, Cfg.LA, qk(), fillers=sm_fillers(w, 1, 0))
    C += check_branch(w, 1)
    C, q = finish(C, q2, pre=out[-12:]); out += C
    B = [label("L_w3_a")]
    for par in (1, 0):
        B += stream(w, qk(), Cfg.LA, pv(par), fillers=[(one(l_accum(w)), 4, 10)])
        B += [barrier()]
        lp = [(one([S(f"s_sub_u32 s{sLoop}, s{sLoop}, 1"), S(f"s_cmp_lg_u32 s{sLoop}, 0")]), nm - 2, nm)] if par == 0 else []
        B += stream(w, pv(par), Cfg.LA, qk(), fillers=sm_fillers(w, 1 - par, 0) + lp)
        B += check_branch(w, 1 - par)
    B += [branch("s_cbranch_scc1", "L_w3_a")]
    Bc, q2 = finish(B, q, pre=out[-12:]); Bc2, _ = finish(B, q2, pre=Bc[-12:])
    assert emit(Bc) == emit(Bc2)
    out += Bc
    C = st(74) + l_accum(w)
    C += stream(w, pv(1), 0, [], fillers=epi_fillers(w))
    C += st(75) + st(77, True)
    curT = item_slot(vidx(15)); curN = item_slot(kidx(16))
    C += add_addr(aT, wslot(0) - curT) + add_addr(aN, xbuf(0) - curN) + [V(f"v_subrev_u32 v{r}, s{sKX}, v{r}") for r in aN]
    C += round_advance()
    C += [branch("s_cbranch_scc1", "L_w3_round"), branch("s_branch", "L_o")]
    C, q = finish(C, q2, pre=out[-12:]); out += C
    assert not q
    return out, rare_routine(w, 0) + rare_routine(w, 1)

def gen_w2():
    w = Wave(2); nm = 16
    st = lambda k, real=False: stamp(w.tmp + 1, k, real)
    aN = [w.aN, w.aN + 1]; aT = [w.aT + i for i in range(4)]
    sch = loader_schedule(w)
    items = lambda idx: sch[idx]
    vo1, vo2 = voff_setup(w)
    pro = vo1 + [raw("s_waitcnt lgkmcnt(0)")] + srd(sW, 62, 5242880) + srd(sX, 56, 6553600)
    pro += flat(dma_w(w, 0, False, ('W', 0, True))) + flat(dma_x(w, 0, ('X', 0, True))) + flat(dma_w(w, 1, False, ('W', 1, True))) + ([barrier()] if Cfg.warm else [])
    pro += vo2 + [V(f"v_mov_b32 v{w.oVoff}, 0")] + common_scalars() + lane_setup(w) + wave_addr0(w, 2, 6)
    C = [label("L_w2_round")] + st(76, True)
    def bar(idx, lgkm=None):
        b = wait(vm=63, lgkm=lgkm); b.tag = (('need', idx), lgkm)
        return st(2 * idx) + [b, barrier()] + st(2 * idx + 1)
    prio = lambda p: [raw(f"s_setprio {p}")] if Cfg.prio == 2 else []
    curT = wslot(0); curN = xbuf(0)
    C += prio(1)
    for s in range(20):
        if s < 19:
            newT = wslot(s + 1); newN = xbuf((s + 1) >> 1)
            adv_ = add_addr(aT, newT - curT) + add_addr(aN, newN - curN); curT, curN = newT, newN
        else:
            adv_ = add_addr(aN, f"s{sKX}") + add_addr(aN, item_slot(kidx(0)) - curN) + add_addr(aT, item_slot(vidx(0)) - curT)
        C += bar(s, lgkm=0)
        ex = []
        if s == 3:
            ex = [([[S(f"s_lshl_b32 s{sT1}, s{sRound}, 3"), S(f"s_add_u32 s{sT1}, s{sT1}, s{sWave}"), S(f"s_cmp_lg_u32 s{sT1}, 12"),
                     branch("s_cbranch_scc1", "L_nofl1"), S(f"s_and_b32 s{sT1}, s{sG}, 3"), S(f"s_lshl_b32 s{sT1}, 1, s{sT1}")] + flag_add(w.tmp + 1, f"s{sT1}", "L_nofl1")], 11, 12)]
        if s == 0: C += flat(q_reads(w, 0, 0)) + flat(items(0)) + adv_
        else: C += spread(q_mfmas(w, (s - 1) & 1, s == 1), [(q_reads(w, s & 1, s & 1), 0, 10), (items(s), 0, nm - 2), (one(adv_), 11, 15)] + ex)
    C += bar(20, lgkm=0)
    def qk(t, fc='negm'): return frags_QK(w, fc, pre=add_addr(aN, item_slot(kidx(t)) - item_slot(kidx(t - 1))) if t else [])
    def pv(t): return frags_PV(w, t & 1, zero=(t == 0), pre=add_addr(aT, item_slot(vidx(t)) - item_slot(vidx(t - 1))) if t else [])
    w.fpos = 0
    C += stream(w, qk(0, 'zero'), 0, qk(1), lead=q_mfmas(w, 1, False), fillers=[(items(20), 0, 2 * nm)] + q_pack_fillers(w))
    C += first_max(w)
    C += flat(softmax_groups(w, 0))
    for t in range(15):
        C += prio(0)
        C += bar(21 + t)
        C += stream(w, qk(t + 1), Cfg.LA, pv(t), fillers=[(items(21 + t), 0, nm), (one(l_accum(w, first=(t == 0))), 3, 8)])
        C += prio(1)
        C += stream(w, pv(t), Cfg.LA, qk(t + 2) if t < 14 else [], fillers=sm_fillers(w, (t + 1) & 1, 2))
        C += check_branch(w, (t + 1) & 1)
    C += prio(0)
    C += bar(36)
    C += flat(items(36))
    C += st(74) + l_accum(w)
    C += stream(w, pv(15), 0, [], fillers=epi_fillers(w))
    C += st(75) + st(77, True)
    curT = item_slot(vidx(15)); curN = item_slot(kidx(15))
    C += add_addr(aT, wslot(0) - curT) + add_addr(aN, xbuf(0) - curN) + [V(f"v_subrev_u32 v{r}, s{sKX}, v{r}") for r in aN]
    C += round_advance()
    C += [branch("s_cbranch_scc1", "L_w2_round"), branch("s_branch", "L_o")]
    VM = ('dma', 'vload', 'vstore')
    def resolve(prefix, first):
        res = {}
        q = [(c.tag[0], c.tag[1]) if len(c.tag) == 3 and c.tag[2] in (True, 'next') else None for c in prefix if c.kind in VM and c.tag != ('cond',)]
        for c in C:
            if c.kind in VM:
                if c.tag == ('cond',): continue
                if c.tag[-1] in ('cond', 'next') and not first: continue
                q.append((c.tag[0], c.tag[1]) if len(c.tag) == 3 and c.tag[2] in (False, 'cond') else None)
            elif c.kind == 'comment' and c.tag and c.tag[0] == 'phantom':
                if not first: q += [None] * c.tag[1]
            elif c.kind == 'wait' and isinstance(c.tag[0], tuple):
                idx = c.tag[0][1]
                last = -1
                for k, it in enumerate(q):
                    if it is not None and first_use(it[0], it[1]) <= idx: last = k
                res[idx] = min(63, len(q) - 1 - last)
        return res
    r1 = resolve(pro, True); r2 = resolve(C, False)
    C2 = []
    for c in C:
        if c.kind == 'wait' and isinstance(c.tag[0], tuple):
            idx = c.tag[0][1]; n = min(r1[idx], r2[idx]); lg = c.tag[1]
            if abs(r1[idx] - r2[idx]) > 1:
                C2 += [S(f"s_cmp_eq_u32 s{sRound}, {0 if r1[idx] > r2[idx] else 1}"), branch("s_cbranch_scc1", f"L_rw{idx}"), wait(vm=n), label(f"L_rw{idx}")]
                n = max(r1[idx], r2[idx])
            c.text = f"s_waitcnt vmcnt({n})" + (f" lgkmcnt({lg})" if lg is not None else ""); c.tag = (n, lg)
        C2.append(c)
    C = C2
    pro, _ = finish(pro)
    C, q = finish(C, [], pre=pro[-12:])
    assert not q
    return pro + C + gen_opre(w), rare_routine(w, 0) + rare_routine(w, 1)

OSLOT = 40960
def oslot(u): return ((u + 2) & 3) * OSLOT
def o_voff(nh, VOFF, lane, a, b):
    if nh == 0: return [V(f"v_lshlrev_b32 v{VOFF}, 4, v{lane}")]
    return [V(f"v_lshrrev_b32 v{a}, 2, v{lane}"), V(f"v_mul_u32_u24 v{a}, 1280, v{a}"), V(f"v_bfe_u32 v{b}, v{lane}, 4, 1"), V(f"v_lshlrev_b32 v{b}, 1, v{b}"),
            V(f"v_and_b32 v{VOFF}, 3, v{lane}"), V(f"v_xor_b32 v{VOFF}, v{VOFF}, v{b}"), V(f"v_lshl_add_u32 v{VOFF}, v{VOFF}, 4, v{a}")]
def o_base(nh, sBase, sLd):
    C = [S(f"s_and_b32 s{sLd}, s{sWave}, 1"), S(f"s_mul_i32 s{sLd}, s{sLd}, 5120")]
    if nh == 0: C += [S(f"s_mul_i32 s{sBase}, s{sB}, {128*10240}"), S(f"s_add_u32 s{sBase}, s{sBase}, s{sLd}")]
    else: C += [S(f"s_lshl_b32 s{sBase}, s{sLd}, 2"), S(f"s_and_b32 s{sT2}, s{sG}, 3"), S(f"s_mul_i32 s{sT2}, s{sT2}, 320"), S(f"s_add_u32 s{sBase}, s{sBase}, s{sT2}"),
                S(f"s_add_u32 s{sLd}, s{sLd}, 10240")]
    return C
def o_dma(nh, u, VOFF, sSo, sLd, goff=0, loff=0):
    step = 10240 if nh == 0 else 40960
    G = []
    if Cfg.o_skip & (1 << nh): return G
    for i in range(5):
        if nh == 0:
            imm = (i & 3) * 1024; ex = (i >> 2) * 4096
            g = [S(f"s_add_u32 m0, s{sLd}, {oslot(u) + ex + loff}"), S(f"s_add_u32 s{sT0}, s{sSo}, {u*step + ex + goff}")] if imm == 0 else []
            G.append(g + [dma(VOFF, sWS, f"s{sT0}", imm, Cfg.old_pol)])
        else:
            g = [S(f"s_add_u32 m0, s{sLd}, {oslot(u) + i*1024 - i*64 + loff}")]
            if i == 0: g.append(S(f"s_add_u32 s{sT0}, s{sSo}, {u*step + goff}"))
            G.append(g + [dma(VOFF, sWO, f"s{sT0}", i * 64)])
    return G
def spin(lab, POLL, vfl, shift, need, mask=0xf):
    return [label(lab), bload(1, POLL, vfl, sDBG, 0, 0, 'sc1'), S(f"s_sub_u32 s{sCnt}, s{sCnt}, 1"), S(f"s_cmp_lt_i32 s{sCnt}, 0"), branch("s_cbranch_scc1", lab + "_x"),
            wait(vm=0), V(f"v_readfirstlane_b32 s{sT2}, v{POLL}"),
            S(f"s_lshr_b32 s{sT2}, s{sT2}, {shift}"), S(f"s_and_b32 s{sT2}, s{sT2}, {mask}"), S(f"s_cmp_lt_u32 s{sT2}, {need}"),
            branch("s_cbranch_scc1", lab), label(lab + "_x")]

def gen_opre(w):
    sSo, sLd = sTK, sTV
    C = []
    for u in range(2):
        C += [label(f"L_opre{u}"), S(f"s_bitcmp1_b32 s{sWave}, 1"), branch("s_cbranch_scc1", f"L_opre{u}_1")]
        for nh in range(2):
            step = 10240 if nh == 0 else 40960
            B = [label(f"L_opre{u}_{nh}")]
            if u == 0:
                t = w.tmp + 1
                B += lane_id(t) + o_voff(nh, w.oVoff, t, w.dummy, w.vTch) + o_base(nh, sSo, sLd)
                B += [S(f"s_and_b32 s{sT3}, s{sG}, 4"), S(f"s_mul_i32 s{sT3}, s{sT3}, {16*step}"), S(f"s_add_u32 s{sSo}, s{sSo}, s{sT3}")]
                if nh == 0:
                    B += [S(f"s_mov_b32 s{sCnt}, 0x40000"), V(f"v_readfirstlane_b32 s{sT2}, v{w.oPoll}"), S(f"s_and_b32 s{sT2}, s{sT2}, 15"), S(f"s_cmp_eq_u32 s{sT2}, 15"),
                          branch("s_cbranch_scc1", "L_opre_spin_x"), V(f"v_mov_b32 v{w.tmp+2}, s{sFlag}")] + spin("L_opre_spin", w.oPoll, w.tmp + 2, 0, 15)
            for ks in range(2): B += flat(o_dma(nh, u, w.oVoff, sSo, sLd, goff=ks * 4 * step, loff=ks * 20480))
            B += [branch("s_branch", f"L_opre{u}_back")]
            C += fix_hazards(B)
    return C

def gen_o():
    ACC = 0; SET = [100, 140]
    aB, aA0, aA1 = 180, 182, 184
    VOFF, POLL, VFL, T, L16 = 186, 187, 188, 190, 196
    sSo, sHi, sNeed, sLd, sBase, sKs, sNq = 36, 37, 38, 39, 40, 43, 44
    st = lambda k, real=False: stamp(T, k, real)
    def acc(t): return ACC + 4 * t
    def fB(s_, jj): return SET[s_] + 4 * jj
    def fA(s_, nn): return SET[s_] + 20 + 4 * nn
    C = [label("L_o")] + st(80)
    if Cfg.prio: C += [raw("s_setprio 0")]
    lane = T; a = T + 1; b = T + 2
    C += lane_id(lane) + [V(f"v_lshlrev_b32 v{L16}, 4, v{lane}")]
    C += [S(f"s_lshr_b32 s{sKs}, s{sWave}, 2"), S(f"s_mul_i32 s{sT0}, s{sKs}, 20480"), S(f"s_and_b32 s{sT1}, s{sWave}, 1"), S(f"s_mul_i32 s{sT1}, s{sT1}, 5120"),
          S(f"s_add_u32 s{sT1}, s{sT0}, s{sT1}"),
          V(f"v_add_u32 v{aB}, s{sT1}, v{L16}"), V(f"v_add_u32 v{aB+1}, {2*OSLOT}, v{aB}"),
          V(f"v_lshrrev_b32 v{a}, 2, v{lane}"), V(f"v_bfe_u32 v{b}, v{lane}, 4, 1"), V(f"v_lshlrev_b32 v{b}, 5, v{b}"), V(f"v_lshl_add_u32 v{b}, v{a}, 6, v{b}"),
          V(f"v_and_b32 v{a}, 3, v{lane}"), V(f"v_lshl_add_u32 v{b}, v{a}, 3, v{b}"),
          S(f"s_add_u32 s{sT1}, s{sT0}, 10240"), V(f"v_add_u32 v{aA0}, s{sT1}, v{b}"), V(f"v_xor_b32 v{aA1}, 32, v{aA0}"),
          V(f"v_add_u32 v{aA0+1}, {2*OSLOT}, v{aA0}"), V(f"v_add_u32 v{aA1+1}, {2*OSLOT}, v{aA1}"),
          V(f"v_mov_b32 v{VFL}, s{sFlag}"), V(f"v_mov_b32 v{POLL}, 0"), S(f"s_and_b32 s{sNq}, s{sG}, 3"), S(f"s_mov_b32 s{sHi}, 0"), S(f"s_mov_b32 s{sNeed}, 0"),
          S(f"s_mov_b32 s{sCnt}, 0x40000"), S(f"s_mov_b32 s{sLoop}, 7")]
    C += [S(f"s_bitcmp1_b32 s{sWave}, 1"), branch("s_cbranch_scc1", "L_o_1")]
    C = fix_hazards(C)
    def poll_load(): return bload(1, POLL, VFL, sDBG, 0, 0, 'sc1')
    for nh in range(2):
        step = 10240 if nh == 0 else 40960
        R_ = [label(f"L_o_{nh}")] + o_voff(nh, VOFF, lane, a, b) + o_base(nh, sBase, sLd) + [S(f"s_add_u32 s{sLd}, s{sLd}, s{sT0}")]
        def head_setup():
            return [S(f"s_and_b32 s{sT2}, s{sHi}, 3"), S(f"s_and_b32 s{sT3}, s{sG}, 4"), S(f"s_add_u32 s{sT2}, s{sT2}, s{sT3}"),
                    S(f"s_lshl_b32 s{sT2}, s{sT2}, 2"), S(f"s_lshr_b32 s{sT3}, s{sHi}, 2"), S(f"s_lshl_b32 s{sT3}, s{sT3}, 1"), S(f"s_add_u32 s{sT2}, s{sT2}, s{sT3}"),
                    S(f"s_add_u32 s{sT2}, s{sT2}, s{sKs}"), S(f"s_mul_i32 s{sT2}, s{sT2}, {4*step}"), S(f"s_add_u32 s{sSo}, s{sBase}, s{sT2}"),
                    S(f"s_add_u32 s{sHi}, s{sHi}, 1")]
        odma = lambda u: o_dma(nh, u, VOFF, sSo, sLd)
        def oreads(u):
            s_ = u & 1; hi = oslot(u) // (2 * OSLOT); off = oslot(u) % (2 * OSLOT)
            G = []
            for k in range(5):
                nb = 5 * nh + k
                ar = (aA1 if nb & 1 else aA0) + hi
                G.append([ds_read(2, fA(s_, k) + 2 * hh, ar, off + (hh * 5 + (nb >> 1)) * 1024, tr=True) for hh in range(2)])
                G.append([ds_read(4, fB(s_, k), aB + hi, off + k * 1024)])
            return G
        def omf(s_): return [mfma(acc(t), fA(s_, t % 5), fB(s_, t // 5), acc(t)) for t in range(25)]
        R_ += head_setup()
        R_ += [wait(vm=18), barrier()] + st(81) + st(82)
        R_ += flat(oreads(0)) + flat(odma(2))
        for r in range(50): R_.append(V(f"v_pk_mov_b32 v[{ACC+2*r}:{ACC+2*r+1}], 0, 0"))
        R_ += flat(odma(3))
        R_, q = finish(R_)
        def ostage(u, load=True, vm=None, extra=()):
            L = [wait(vm=vm, lgkm=0), barrier()]
            fill = [(oreads(u), 0, 16)]
            if load:
                if u == 1:
                    pre_ = head_setup()
                    if nh == 0:
                        pre_ += [S(f"s_cmp_ge_u32 s{sHi}, 5"), S(f"s_cselect_b32 s{sNeed}, 15, 0"), V(f"v_readfirstlane_b32 s{sT2}, v{POLL}"),
                                 S(f"s_lshr_b32 s{sT2}, s{sT2}, 8"), S(f"s_and_b32 s{sT2}, s{sT2}, 0xf"), S(f"s_cmp_lt_u32 s{sT2}, s{sNeed}"),
                                 branch("s_cbranch_scc1", "L_o_spin2"), label("L_o_spin2_back")]
                    fill.append((one(pre_), 0, 6))
                d = odma((u + 3) & 3)
                if u == 2 and nh == 0: d = [[poll_load()]] + d
                if u == 2 and nh == 1:
                    d = [[S(f"s_lshl_b32 s{sT2}, s{sLoop}, 3"), S(f"s_add_u32 s{sT2}, s{sT2}, s{sWave}"), S(f"s_cmp_lg_u32 s{sT2}, {7*8+2}"), branch("s_cbranch_scc1", "L_nofl2"),
                          S(f"s_lshl_b32 s{sT2}, 0x100, s{sNq}")] + flag_add(T, f"s{sT2}", "L_nofl2")] + d
                fill.append((d, 7, 23))
            fill += list(extra)
            return L + spread(omf(1 - (u & 1)), fill)
        B = [label(f"L_o_loop{nh}")]
        B += ostage(1, vm=Cfg.o_vm1)
        B += ostage(2, vm=10) + ostage(3, vm=10)
        B += ostage(0, vm=10, extra=[(one([S(f"s_sub_u32 s{sLoop}, s{sLoop}, 1"), S(f"s_cmp_lg_u32 s{sLoop}, 0")]), 23, 25)])
        B += [branch("s_cbranch_scc1", f"L_o_loop{nh}")]
        Bc, q2 = finish(B, q, pre=R_[-12:]); Bc2, _ = finish(B, q2, pre=Bc[-12:])
        assert emit(Bc) == emit(Bc2)
        E = ostage(1, load=False, vm=10) + ostage(2, load=False, vm=5) + ostage(3, load=False, vm=0) + [wait(lgkm=0)] + st(83)
        E += [branch("s_branch", "L_o_epi")]
        if nh == 0: E += spin("L_o_spin2", POLL, VFL, 8, 15) + [branch("s_branch", "L_o_spin2_back")]
        E, _ = finish(E, q2, pre=Bc[-12:])
        C += R_ + Bc + E
    TS = [list(range(0, 7)), list(range(7, 13)), list(range(13, 19)), list(range(19, 25))]
    LW, LR, VO, VP = T, T + 1, T + 2, T + 3
    RB = 200
    E = [label("L_o_epi"),
         S(f"s_mul_i32 s{sT0}, s{sWave}, 13312"), S(f"s_cmp_ge_u32 s{sWave}, 2"), S(f"s_cselect_b32 s{sT2}, {81920 - 2*13312}, 0"), S(f"s_add_u32 s{sT0}, s{sT0}, s{sT2}"),
         V(f"v_add_u32 v{LW}, s{sT0}, v{L16}"),
         S(f"s_xor_b32 s{sT1}, s{sWave}, 4"), S(f"s_mul_i32 s{sT0}, s{sT1}, 13312"), S(f"s_cmp_ge_u32 s{sT1}, 2"), S(f"s_cselect_b32 s{sT2}, {81920 - 2*13312}, 0"),
         S(f"s_add_u32 s{sT0}, s{sT0}, s{sT2}"), V(f"v_add_u32 v{LR}, s{sT0}, v{L16}"),
         S(f"s_lshl_b32 s{sT0}, s2, 3"), S(f"s_add_u32 s{sT0}, s{sT0}, s{sWave}"), S(f"s_mul_i32 s{sSo}, s{sT0}, 7168"), S(f"s_add_u32 s{sSo}, s{sSo}, {XCH_OFF}"),
         S(f"s_xor_b32 s{sT0}, s{sT0}, 256"), S(f"s_mul_i32 s{sBase}, s{sT0}, 7168"), S(f"s_add_u32 s{sBase}, s{sBase}, {XCH_OFF}"),
         V(f"v_xor_b32 v{VP}, 4, v{VFL}"),
         V(f"v_bfe_u32 v{VO}, v{L16}, 4, 4"), V(f"v_mul_u32_u24 v{VO}, 1280, v{VO}"), V(f"v_lshrrev_b32 v{POLL}, 8, v{L16}"), V(f"v_lshl_add_u32 v{VO}, v{POLL}, 3, v{VO}"),
         S(f"s_mul_i32 s{sLd}, s{sB}, 204800"), S(f"s_and_b32 s{sT0}, s{sWave}, 1"), S(f"s_mul_i32 s{sT0}, s{sT0}, 102400"), S(f"s_add_u32 s{sLd}, s{sLd}, s{sT0}"),
         S(f"s_mul_i32 s{sT0}, s{sNq}, 320"), S(f"s_add_u32 s{sLd}, s{sLd}, s{sT0}"), S(f"s_bfe_u32 s{sT0}, s{sWave}, 0x10001"), S(f"s_mul_i32 s{sT0}, s{sT0}, 160"),
         S(f"s_add_u32 s{sLd}, s{sLd}, s{sT0}"),
         S(f"s_lshl_b32 s{sNeed}, 0x10000, s{sNq}"), S(f"s_add_u32 s{sHi}, s{sNq}, 16"),
         S(f"s_lshr_b32 s{sT0}, s{sG}, 2"), S(f"s_lshl_b32 s{sT1}, s{sKs}, 1"), S(f"s_add_u32 s{sT0}, s{sT0}, s{sT1}")]
    for v in range(1, 4): E += [S(f"s_cmp_eq_u32 s{sT0}, {v}"), branch("s_cbranch_scc1", f"L_o_epi{v}")]
    C += fix_hazards(E)
    for v in range(4):
        ks, kh = v >> 1, v & 1
        mine = TS[v]; xsend = TS[v ^ 1]; keep = sorted(mine + xsend); lsend = sorted(TS[v ^ 2] + TS[v ^ 3])
        E = [label(f"L_o_epi{v}")]
        order = lsend + xsend + mine
        mf = [mfma(acc(t), fA(1, t % 5), fB(1, t // 5), acc(t)) for t in order]
        wr = [[ds_write(4, LW, acc(t), i * 1024)] for i, t in enumerate(lsend)]
        E += spread(mf, [(wr, 6, 25)])
        E += [wait(lgkm=0), barrier()]
        rorder = xsend + mine
        for i, t in enumerate(rorder): E.append(ds_read(4, RB + 4 * i, LR, keep.index(t) * 1024))
        for i, t in enumerate(rorder):
            for r in range(4): E.append(V(f"v_add_f32 v{acc(t)+r}, v{acc(t)+r}, v{RB+4*i+r}"))
            if t in xsend:
                k = xsend.index(t)
                if k == 4: E.append(S(f"s_add_u32 s{sSo}, s{sSo}, 4096"))
                E.append(bstore(4, acc(t), L16, sWS, f"s{sSo}", (k & 3) * 1024, 'sc1'))
        E += st(84)
        E += [wait(vm=0), barrier()]
        if ks == 0:
            E += [S(f"s_cmp_lg_u32 s{sWave}, 0"), branch("s_cbranch_scc1", f"L_o_spin3_{v}_x")] + flag_add(RB, f"s{sNeed}", f"L_o_spin3_{v}")
            E += [bload(1, POLL, VP, sDBG, 0, 0, 'sc1'), S(f"s_sub_u32 s{sCnt}, s{sCnt}, 1"), S(f"s_cmp_lt_i32 s{sCnt}, 0"), branch("s_cbranch_scc1", f"L_o_spin3_{v}_x"),
                  wait(vm=0), V(f"v_readfirstlane_b32 s{sT2}, v{POLL}"),
                  S(f"s_bitcmp1_b32 s{sT2}, s{sHi}"), branch("s_cbranch_scc1", f"L_o_spin3_{v}_x")]
            if Cfg.xsleep: E += [raw(f"s_sleep {Cfg.xsleep}")]
            E += [branch("s_branch", f"L_o_spin3_{v}"), label(f"L_o_spin3_{v}_x")]
        E += [barrier()]
        E += st(85)
        for k, t in enumerate(mine):
            if k == 4: E.append(S(f"s_add_u32 s{sBase}, s{sBase}, 4096"))
            E.append(bload(4, RB + 4 * k, L16, sWS, f"s{sBase}", (k & 3) * 1024, 'sc1'))
        for k, t in enumerate(mine):
            a_ = acc(t)
            E.append(wait(vm=len(mine) - 1))
            for r in range(4): E.append(V(f"v_add_f32 v{a_+r}, v{a_+r}, v{RB+4*k+r}"))
            E += [V(f"v_cvt_pk_bf16_f32 v{a_}, v{a_}, v{a_+1}"), V(f"v_cvt_pk_bf16_f32 v{a_+1}, v{a_+2}, v{a_+3}"),
                  S(f"s_add_u32 s{sT0}, s{sLd}, {(t//5)*20480}"), bstore(2, a_, VO, sOUT, f"s{sT0}", (t % 5) * 32)]
        E += st(86) + st(77, True)
        if Cfg.dbgst and ks == 1:
            E += [S(f"s_cmp_lg_u32 s{sWave}, 4"), branch("s_cbranch_scc1", f"L_dbgend{v}"), S(f"s_cmp_lg_u32 s2, {Cfg.dbgst}"), branch("s_cbranch_scc1", f"L_dbgend{v}"),
                  S("s_mov_b64 exec, 1"), V("v_mov_b32 v1, 0")]
            for i, r in enumerate(DREG):
                E += [S(f"s_sub_u32 s{r}, s{r}, s{sStamp+2}"), S(f"s_lshr_b32 s{r}, s{r}, 6"), S(f"s_lshl_b32 s{r}, s{r}, 20"), V(f"v_mov_b32 v{2+i}, s{r}"),
                      raw(f"buffer_atomic_or v{2+i}, v1, s[{sDBG}:{sDBG+3}], 0 offen offset:{4*i} sc1")]
            E += [label(f"L_dbgend{v}")]
        E += [raw("s_endpgm")]
        E, _ = finish(E)
        C += E
    return C

def gen_kernel(name):
    C = [raw(f".globl {name}\n.p2align 8\n.type {name},@function\n{name}:\nKSTART:", 'label')]
    C += [S("s_cmp_lt_u32 s2, 256"), branch("s_cbranch_scc1", "L_go"), raw("s_endpgm"), label("L_go")]
    C += [raw("s_load_dwordx16 s[56:71], s[0:1], 0")]
    if Cfg.dbgst: C += [raw(f"s_memtime s[{sStamp+2}:{sStamp+3}]")] + [S(f"s_mov_b32 s{r}, 0") for r in DREG]
    C += [V("v_lshrrev_b32 v1, 6, v0"),
          S(f"s_and_b32 s{sB}, s2, 7"), S(f"s_lshl_b32 s{sB}, s{sB}, 2"), V(f"v_readfirstlane_b32 s{sWave}, v1"),
          S(f"s_lshr_b32 s{sT0}, s2, 6"), S(f"s_add_u32 s{sB}, s{sB}, s{sT0}"), S(f"s_bfe_u32 s{sG}, s2, 0x30003")]
    C += [S(f"s_bfe_u32 s{sT0}, s{sWave}, 0x10001"), S(f"s_lshl_b32 s{sT2}, s{sG}, 2"), S(f"s_add_u32 s{sT2}, s{sT2}, s{sT0}"), S(f"s_lshl_b32 s{sWbase}, s{sT2}, 8"),
          S(f"s_cmp_lt_u32 s{sWave}, 4"), branch("s_cbranch_scc1", "L_w3"),
          S(f"s_and_b32 s{sT1}, s{sWave}, 1"), S(f"s_lshl_b32 s{sT2}, s{sT1}, 10"),
          S(f"s_lshl_b32 s{sLdsKV}, s{sT0}, 13"), S(f"s_add_u32 s{sLdsKV}, s{sLdsKV}, s{sT2}"),
          S(f"s_mul_i32 s{sLdsX}, s{sT0}, 10240"), S(f"s_add_u32 s{sLdsX}, s{sLdsX}, s{sT2}"),
          S(f"s_mul_i32 s{sXbase}, s{sB}, 204800"), S(f"s_mul_i32 s{sT2}, s{sT0}, 102400"), S(f"s_add_u32 s{sXbase}, s{sXbase}, s{sT2}")]
    C = fix_hazards(C)
    w2, r2 = gen_w2(); w3, r3 = gen_w3()
    C += w2 + w3 + gen_o() + [label("KEND")] + r2 + r3
    for k, tag, par in CTX.stubs:
        C += [label(f"L_stub{k}"), raw(f"s_call_b64 s[{sRet}:{sRet+1}], L_rare_{tag}_{par}", 'branch'), branch("s_branch", f"L_back{k}")]
    return C

def kd(name, vgpr, accum, sgpr=102):
    return f""".section .rodata,"a"
.p2align 6
.amdhsa_kernel {name}
  .amdhsa_next_free_vgpr {vgpr}
  .amdhsa_next_free_sgpr {sgpr}
  .amdhsa_accum_offset {accum}
  .amdhsa_group_segment_fixed_size 0
  .amdhsa_kernarg_size 64
  .amdhsa_user_sgpr_count 2
  .amdhsa_user_sgpr_kernarg_segment_ptr 1
  .amdhsa_system_sgpr_workgroup_id_x 1
.end_amdhsa_kernel
"""

HDR = open('standalone__mha_block_cached__near_ridge.s.ref').read().split('; Override launch')[0]
def main(path):
    k1 = "standalone__mha_block_cached__near_ridge_kernel"
    s = HDR
    s += f"; @launch grid=(256,1,1) block=(512,1,1) lds={LDS_BYTES}\n"
    s += '.amdgcn_target "amdgcn-amd-amdhsa--gfx950"\n.text\n'
    s += emit(gen_kernel(k1))
    s += kd(k1, 256, 256)
    open(path, 'w').write(s)
if __name__ == '__main__':
    for a in sys.argv[2:]:
        k, v = a.split('=', 1); setattr(Cfg, k, eval(v))
    main(sys.argv[1] if len(sys.argv) > 1 else 'mha2.s')
```

```python
import sys, math, struct
from ir import *

SLOT = 16384
NSLOT = 10
NW, NX = 6, 3
WPERM = [4, 5, 1, 3, 0, 2]
def wslot(s): return WPERM[s % NW] * SLOT
def xbuf(u): return NW * SLOT + (u % NX) * 20480
WTAB = sum((((WPERM[(m + 1) % NW] - WPERM[m]) & 15) << (4 * m)) for m in range(NW))
LDS_BYTES = 163840
O_BYTES = 32 * 128 * 10 * 1024
XCH_OFF = O_BYTES
XCH_WG = 8 * 7168
WS_BYTES = XCH_OFF + 256 * XCH_WG
QSCALE = math.log2(math.e) / math.sqrt(128.0)
THR = 16384.0
def f2u(x): return "0x%08x" % struct.unpack('<I', struct.pack('<f', x))[0]

sK, sV, sW, sX, sWS, sWO, sOUT, sDBG = 8, 12, 16, 20, 24, 28, 76, 80
sWave, sRound, sB, sG = 32, 33, 34, 35
sKVbase, sWbase, sXbase, sLdsKV, sLdsX = 36, 37, 38, 39, 40
sT0, sT1 = 41, 42
sKpos, sVpos, sD, sCnt, sXd, sLoop = 43, 44, 45, 49, 50, 51
sRet = 46
sOst = 48
sKX, sFlag = 52, 53
sT2, sT3 = 54, 55
sQS, sC16, sC32, sCX = 72, 73, 74, 75
sTK, sTV, sCnt2 = 88, 89, 90
sStamp = 84
DBG_OFF = 64 << 20

class Cfg:
    stamps = False
    dbgst = False
    dsl = None
    delay = 0
    delay_bit = 7
    LA = 7
    kv_pol = 'nt'
    touch_pol = ''
    touch_at = []
    warm = True
    xsleep = 2
    codetouch = True
    qcut = 8
    prio = 2
    no_sm = False
    no_dma = False
    no_exp = False
    no_chk = False
    no_ds = False
    no_adv = False
    ost_pol = 'sc1'
    old_pol = 'sc1'
    o_skip = 0
    o_vm1 = 10
    smend = 3

STAMP3 = (0, 1, 7, 39, 41, 43, 45, 73, 75, 76, 77, 80, 81, 82, 83, 84, 85, 86)
DSL = {(1, 0): 0, (41, 0): 1, (45, 0): 2, (73, 0): 3, (1, 1): 4, (41, 1): 5, (45, 1): 6, (73, 1): 7, (80, 2): 8, (82, 2): 9, (83, 2): 10, (84, 2): 11, (85, 2): 12, (86, 2): 13}
sDS = 4
DREG = [4, 5, 6, 7, 91, 92, 93, 94, 95, 96, 97, 98, 99, 100]
def stamp(t, k, real=False):
    if Cfg.dbgst:
        if real: return []
        dsl = DSL if not Cfg.dsl else {(2 * b + 1, Cfg.dsl[0]): i for i, b in enumerate(Cfg.dsl[1:])}
        hits = [(r, i) for (kk, r), i in dsl.items() if kk == k]
        if not hits: return []
        out = [raw(f"s_memtime s[{sStamp}:{sStamp+1}]"), wait(lgkm=0)]
        for r, i in hits:
            out += [S(f"s_cmp_eq_u32 s{sRound}, {r}"), S(f"s_cselect_b32 s{DREG[i]}, s{sStamp}, s{DREG[i]}")]
        return out
    if not Cfg.stamps: return []
    if Cfg.stamps == 3 and k not in STAMP3: return []
    return [raw(f"{'s_memrealtime' if real else 's_memtime'} s[{sStamp}:{sStamp+1}]"), wait(lgkm=0), V(f"v_mov_b32 v{t}, s{sStamp}"), V(f"v_mov_b32 v{t+1}, 0"),
            S(f"s_and_b32 s{sStamp+1}, s{sRound}, 1"), S(f"s_lshl_b32 s{sStamp+1}, s{sStamp+1}, 9"), S(f"s_add_u32 s{sStamp+1}, s{sStamp+1}, s{sStamp+2}"),
            bstore(1, t, t + 1, sWS, f"s{sStamp+1}", 4 * k, tag=('misc',))]

def item_slot(n): return (n % NSLOT) * SLOT
def kidx(t): return 0 if t == 0 else 2 * t - 1
def vidx(t): return 2 * t + 2

class Wave:
    def __init__(self, nq):
        self.nq = nq
        n = nq
        p = 0
        self.O = p; p += 32 * n
        self.Q = p; p += 16 * n
        self.NM = p; p += 4 * n
        self.S = p; p += 8 * n
        self.P = p; p += 8 * n
        self.L = p; p += n
        self.LT = p; p += n
        self.T = p; p += 4
        self.aN = p; p += 2
        self.aT = p; p += 4
        p = (p + 3) & ~3
        self.F = p; self.NF = 8; p += 32
        self.dummy = p; p += 1
        self.tmp = p; p += 3
        if nq == 2:
            self.vK = p; self.vV = p + 1; self.vW = p + 2; self.vX = p + 3; self.vTch = p + 4; self.oVoff = p + 5; self.oPoll = p + 6; p += 7
        assert p <= 256, p
        self.end = p
        setsz = 32 + 4 * n
        if nq == 3:
            self.set = [self.Q, self.S]
        else:
            q = (p + 3) & ~3
            self.set = [self.Q, q]
            assert q + setsz <= 256
        self.tag = f"w{nq}"
        self.fpos = 0
    def o(self, T, j): return self.O + (T * self.nq + j) * 4
    def q(self, s, j): return self.Q + (s * self.nq + j) * 4
    def nm(self, j): return self.NM + 4 * j
    def s(self, kb, j): return self.S + (kb * self.nq + j) * 4
    def p(self, par, j): return self.P + (par * self.nq + j) * 4
    def fa(self, st, T): return self.set[st] + 4 * T
    def fb(self, st, j): return self.set[st] + 32 + 4 * j

def spread(base, fillers):
    ins = [[] for _ in range(len(base) + 1)]
    for groups, lo, hi in fillers:
        n = len(groups)
        if n == 0: continue
        hi = min(hi, len(base)); lo = min(lo, hi)
        span = hi - lo
        for k, gI in enumerate(groups):
            pos = lo + (k * span) // n + 1 if span > 0 else lo
            ins[min(pos, len(base))].extend(gI)
    out = list(ins[0])
    for i, b in enumerate(base):
        out.append(b); out.extend(ins[i + 1])
    return out

def frag_K(w, s, kb, first_c):
    def reads(f): return [ds_read(4, f, w.aN + (s & 1), kb * 4096 + (s >> 1) * 2048)]
    def mf(f):
        out = []
        for j in range(w.nq):
            c = w.s(kb, j) if s > 0 else (None if first_c == 'zero' else w.nm(j))
            out.append(mfma(w.s(kb, j), f, w.q(s, j), c))
        return out
    return dict(reads=reads, mf=mf, pre=[])
def frags_QK(w, first_c='negm', pre=()):
    fr = [frag_K(w, s, kb, first_c) for s in range(4) for kb in range(2)]
    fr[0]['pre'] = list(pre)
    return fr
def frag_V(w, db, par, zero):
    def reads(f): return [ds_read(2, f + 2 * hh, w.aT + (db & 3), hh * 4096 + (db >> 2) * 2048, tr=True) for hh in range(2)]
    def mf(f): return [mfma(w.o(db, j), f, w.p(par, j), None if zero else w.o(db, j)) for j in range(w.nq)]
    return dict(reads=reads, mf=mf, pre=[])
def frags_PV(w, par, zero=False, pre=()):
    fr = [frag_V(w, db, par, zero) for db in range(8)]
    fr[0]['pre'] = list(pre)
    return fr

def stream(w, frags, preloaded, nxt, fillers=(), lead=()):
    LA = Cfg.LA
    allf = list(frags) + list(nxt[:LA])
    head = []
    def issue(i):
        f = allf[i]
        return ([] if Cfg.no_adv else list(f['pre'])) + ([] if Cfg.no_ds else f['reads'](w.F + 4 * ((w.fpos + i) % w.NF)))
    for i in range(preloaded, min(LA, len(allf))): head += issue(i)
    base = list(lead); extra = []
    for i, f in enumerate(frags):
        m = f['mf'](w.F + 4 * ((w.fpos + i) % w.NF))
        base += m
        post = []
        if i + LA < len(allf) and i + LA >= preloaded: post += issue(i + LA)
        if post: extra.append(([post], len(base) - 1, len(base)))
    body = spread(base, list(extra) + list(fillers))
    w.fpos = (w.fpos + len(frags)) % w.NF
    return head + body

def softmax_groups(w, par):
    G = []
    k = 0
    for kb in range(2):
        for j in range(w.nq):
            for h in range(2):
                t0 = w.T + 2 * (k & 1); t1 = t0 + 1; k += 1
                sr = w.s(kb, j) + 2 * h
                G.append([V(f"v_exp_f32 v{t0}, v{sr}")])
                G.append([V(f"v_exp_f32 v{t1}, v{sr+1}")])
                lt = w.LT + j
                if kb == 0 and h == 0:
                    G.append(('late', [V(f"v_add_f32 v{lt}, v{t0}, v{t1}"), V(f"v_cvt_pk_bf16_f32 v{w.p(par,j)+2*kb+h}, v{t0}, v{t1}")]))
                else:
                    G.append(('late', [V(f"v_add_f32 v{lt}, v{lt}, v{t0}"), V(f"v_cvt_pk_bf16_f32 v{w.p(par,j)+2*kb+h}, v{t0}, v{t1}"),
                                       V(f"v_add_f32 v{lt}, v{lt}, v{t1}")]))
    if Cfg.no_sm: return [[V(f"v_mov_b32 v{w.LT+j}, 1.0")] for j in range(w.nq)]
    if Cfg.no_exp:
        for gI in G:
            if not isinstance(gI, tuple): gI[0] = V(gI[0].text.replace('v_exp_f32', 'v_mov_b32'))
    out = []; pend = None
    for gI in G:
        if isinstance(gI, tuple):
            pend = gI[1]
        else:
            out.append(gI)
            if pend is not None:
                out.append(pend); pend = None
    if pend is not None: out.append(pend)
    return out

class Ctx:
    def __init__(self): self.stubs = []; self.n = 0
CTX = Ctx()

def check_cmp(w):
    if Cfg.no_chk: return []
    out = []
    if w.nq == 3: out.append(V(f"v_max3_f32 v{w.tmp}, v{w.LT}, v{w.LT+1}, v{w.LT+2}"))
    else: out.append(V(f"v_max_f32 v{w.tmp}, v{w.LT}, v{w.LT+1}"))
    out.append(I(f"v_cmp_nge_f32 vcc, {f2u(THR)}, v{w.tmp}", 'valu', wr={('s', 'vcc')}, rd=regs(w.tmp)))
    return out
def check_branch(w, par):
    if Cfg.no_chk: return []
    k = CTX.n; CTX.n += 1
    CTX.stubs.append((k, w.tag, par))
    return [branch("s_cbranch_vccnz", f"L_stub{k}"), label(f"L_back{k}")]
def l_accum(w, first=False):
    if first: return [V(f"v_mov_b32 v{w.L+j}, v{w.LT+j}") for j in range(w.nq)]
    return [V(f"v_add_f32 v{w.L+j}, v{w.L+j}, v{w.LT+j}") for j in range(w.nq)]
def sm_fillers(w, par, lo):
    nm = 8 * w.nq
    return [(softmax_groups(w, par) + [check_cmp(w)], lo, nm - Cfg.smend)]

def xlane(op, r, t):
    return [V(f"v_mov_b32 v{t}, v{r}"), V(f"v_permlane32_swap_b32 v{r}, v{t}"), V(f"{op} v{r}, v{r}, v{t}"),
            V(f"v_mov_b32 v{t}, v{r}"), V(f"v_permlane16_swap_b32 v{r}, v{t}"), V(f"{op} v{r}, v{r}, v{t}")]

def tile_max(w, j, dst):
    a, b = w.s(0, j), w.s(1, j)
    return [V(f"v_max3_f32 v{dst}, v{a}, v{a+1}, v{a+2}"), V(f"v_max3_f32 v{dst}, v{dst}, v{a+3}, v{b}"),
            V(f"v_max3_f32 v{dst}, v{dst}, v{b+1}, v{b+2}"), V(f"v_max_f32 v{dst}, v{dst}, v{b+3}")]

def first_max(w):
    out = []
    for j in range(w.nq): out += tile_max(w, j, w.LT + j)
    seqs = [xlane("v_max_f32", w.LT + j, w.T + j) for j in range(w.nq)]
    for k in range(6):
        for sq in seqs: out.append(sq[k])
    for j in range(w.nq):
        for r in range(4): out.append(V(f"v_sub_f32 v{w.nm(j)+r}, 0, v{w.LT+j}"))
        for kb in range(2):
            for r in range(4): out.append(V(f"v_sub_f32 v{w.s(kb,j)+r}, v{w.s(kb,j)+r}, v{w.LT+j}"))
    return out

def rare_routine(w, par):
    out = [label(f"L_rare_{w.tag}_{par}"), nop(15)]
    for j in range(w.nq):
        d = w.LT + j; f = w.T + 1
        out += tile_max(w, j, d)
        out += xlane("v_max_f32", d, w.T)
        out.append(V(f"v_max_f32 v{d}, 0, v{d}"))
        out.append(V(f"v_sub_f32 v{f}, 0, v{d}"))
        out.append(V(f"v_exp_f32 v{f}, v{f}"))
        for r in range(4): out.append(V(f"v_sub_f32 v{w.nm(j)+r}, v{w.nm(j)+r}, v{d}"))
        for kb in range(2):
            for r in range(4): out.append(V(f"v_sub_f32 v{w.s(kb,j)+r}, v{w.s(kb,j)+r}, v{d}"))
        out.append(V(f"v_mul_f32 v{w.L+j}, v{w.L+j}, v{f}"))
        for T in range(8):
            for r in range(4): out.append(V(f"v_mul_f32 v{w.o(T,j)+r}, v{w.o(T,j)+r}, v{f}"))
    for gI in softmax_groups(w, par): out += gI
    out.append(nop(3))
    out.append(raw(f"s_setpc_b64 s[{sRet}:{sRet+1}]", 'branch'))
    return fix_hazards(out)

def q_reads(w, st, sl):
    G = []
    for j in range(w.nq): G.append([ds_read(4, w.fb(st, j), w.aN + sl, j * 2048)])
    for T in range(8):
        for hh in range(2):
            G.append([ds_read(2, w.fa(st, T) + 2 * hh, w.aT + (T & 3), hh * 4096 + (T >> 2) * 2048, tr=True)])
    return G
def q_mfmas(w, st, zero):
    return [mfma(w.o(T, j), w.fa(st, T), w.fb(st, j), None if zero else w.o(T, j)) for T in range(8) for j in range(w.nq)]

def q_pack_groups(w, s):
    G = []
    for j in range(w.nq):
        for half in range(2):
            a = w.o(2 * s + half, j)
            for r in range(4): G.append([V(f"v_mul_f32 v{a+r}, s{sQS}, v{a+r}")])
            G.append([V(f"v_cvt_pk_bf16_f32 v{w.q(s,j)+2*half}, v{a}, v{a+1}")])
            G.append([V(f"v_cvt_pk_bf16_f32 v{w.q(s,j)+2*half+1}, v{a+2}, v{a+3}")])
    for op in ("v_permlane32_swap_b32", "v_permlane16_swap_b32"):
        for j in range(w.nq):
            q = w.q(s, j)
            G.append([V(f"{op} v{q}, v{q+2}")]); G.append([V(f"{op} v{q+1}, v{q+3}")])
    return G
def q_pack_fillers(w):
    n = w.nq
    rng = [(2 * n + 2, 5 * n), (5 * n, 8 * n), (8 * n, 11 * n), (11 * n, 14 * n - 1)]
    return [(q_pack_groups(w, s), rng[s][0], rng[s][1]) for s in range(4)]

def l_reduce(w):
    out = []
    seqs = [xlane("v_add_f32", w.L + j, w.T + j) for j in range(w.nq)]
    for k in range(6):
        for sq in seqs: out.append(sq[k])
    for j in range(w.nq): out.append(V(f"v_rcp_f32 v{w.L+j}, v{w.L+j}"))
    out += [V(f"v_mbcnt_lo_u32_b32 v{w.tmp}, -1, 0"), V(f"v_mbcnt_hi_u32_b32 v{w.tmp}, -1, v{w.tmp}"), V(f"v_lshlrev_b32 v{w.tmp}, 4, v{w.tmp}")]
    return out
def epi_groups(w, s):
    G = []
    for j in range(w.nq):
        d = w.q(s, j)
        for half in range(2):
            a = w.o(2 * s + half, j)
            for r in range(4): G.append([V(f"v_mul_f32 v{a+r}, v{a+r}, v{w.L+j}")])
            G.append([V(f"v_cvt_pk_bf16_f32 v{d+2*half}, v{a}, v{a+1}")])
            G.append([V(f"v_cvt_pk_bf16_f32 v{d+2*half+1}, v{a+2}, v{a+3}")])
        G.append([S(f"s_add_u32 s{sT1}, s{sOst}, {s*10240}"), bstore(4, d, w.tmp, sWS, f"s{sT1}", j * 1024, Cfg.ost_pol, tag=('O', 0, True))])
    return G
def epi_fillers(w):
    n = w.nq
    rng = [(2 * n + 2, 4 * n + 2), (4 * n + 2, 6 * n + 2), (6 * n + 2, 8 * n), (8 * n, 8 * n)]
    return [([[i] for i in l_reduce(w)], 0, 2 * n + 1)] + [(epi_groups(w, s), rng[s][0], rng[s][1]) for s in range(4)]

def flat(G): return [i for g in G for i in g]
def one(L): return [[i] for i in L]

def dma_kv(w, kind, t, nxt_round, tag):
    srd_ = sK if kind == 'K' else sV
    voff = w.vK if kind == 'K' else w.vV
    n = kidx(t) if kind == 'K' else vidx(t)
    lds = item_slot(n)
    goff = t * 8192 + (262144 if nxt_round else 0)
    G = []
    for a in range(2):
        for seg in range(2):
            G.append([S(f"s_add_u32 m0, s{sLdsKV}, {lds + a*4096 + seg*2048 - seg*128}"),
                      S(f"s_add_u32 s{sT0}, s{sKVbase}, {goff + a*4096}"),
                      dma(voff, srd_, f"s{sT0}", seg * 128, Cfg.kv_pol, tag=tag)])
    return G
def dma_w(w, s, nxt_round, tag):
    lds = wslot(s)
    goff = s * 32 * 8192 + (512 if nxt_round else 0)
    G = []
    for hh in range(2):
        for seg in range(2):
            G.append([S(f"s_add_u32 m0, s{sLdsKV}, {lds + hh*4096 + seg*2048 - seg*128}"),
                      S(f"s_add_u32 s{sT0}, s{sWbase}, {goff + hh*32768}"),
                      dma(w.vW, sW, f"s{sT0}", seg * 128, tag=tag)])
    return G
def dma_x(w, u, tag):
    G = []
    for i in range(5):
        G.append([S(f"s_add_u32 m0, s{sLdsX}, {xbuf(u) + i*2048}"),
                  S(f"s_add_u32 s{sT0}, s{sXbase}, {i*20480 + u*128}"),
                  dma(w.vX, sX, f"s{sT0}", 0, tag=tag)])
    return G
def touch_kv(w, kind):
    srd_, ptr = (sK, sTK) if kind == 'K' else (sV, sTV)
    return [[bload(1, w.dummy, w.vTch, srd_, f"s{ptr}", 0, Cfg.touch_pol, tag=('misc',)), S(f"s_add_u32 s{ptr}, s{ptr}, 4096")]]

NAMES = {}
for _t in range(16):
    NAMES[kidx(_t)] = ('K', _t); NAMES[vidx(_t)] = ('V', _t)
def first_use(kind, i):
    if kind == 'W': return i
    if kind == 'X': return 2 * i
    if kind == 'K': return 20 if i == 0 else 19 + i
    if kind == 'V': return 21 + i
    if kind == 'O': return 3
    if kind == 'P': return 35

def loader_schedule(w):
    sch = {i: [] for i in range(37)}
    r0 = lambda G, lab: [[S(f"s_cmp_lg_u32 s{sRound}, 0"), branch("s_cbranch_scc1", lab)] + flat(G) + [label(lab)]]
    sch[0] += r0(dma_w(w, 2, False, ('W', 2, 'cond')), "L_r0a") + dma_x(w, 1, ('X', 1, False)) + r0(dma_w(w, 3, False, ('W', 3, 'cond')), "L_r0b")
    sch[1] += dma_w(w, 4, False, ('W', 4, False)) + dma_x(w, 2, ('X', 2, False))
    sch[2] += dma_w(w, 5, False, ('W', 5, False))
    for s in range(NW, 20): sch[max(s - NW + 1, 3)] += dma_w(w, s, False, ('W', s, False))
    for u in range(NX, 10): sch[2 * (u - NX) + 2] += dma_x(w, u, ('X', u, False))
    if not Cfg.no_dma:
        first = {0: 17, 1: 15, 2: 18, 3: 16, 4: 19, 5: 20, 6: 20, 7: 20, 8: 18, 9: 19}
        for n in range(10): sch[first[n]] += dma_kv(w, *NAMES[n], False, NAMES[n] + (False,))
        for n in range(10, 33):
            if n not in NAMES: continue
            k, t = NAMES[n - 10]
            last = (20 + t) if k == 'K' else min(22 + t, 36)
            sch[last + 1] += dma_kv(w, *NAMES[n], False, NAMES[n] + (False,))
    for idx, ss in ((33, (2, 3)), (34, (0, 1))):
        for s_ in ss: sch[idx] += r0(dma_w(w, s_, True, ('W', s_, 'next')), f"L_r0w{s_}")
    sch[31] += [[V(f"v_mov_b32 v{w.tmp+2}, s{sFlag}"), bload(1, w.oPoll, w.tmp + 2, sDBG, 0, 0, 'sc1', tag=('P', 0, False))]]
    for u in range(2):
        alt = flat(dma_x(w, 0, ('X', 0, 'next'))) if u == 0 else []
        sch[35 + u] += [[S(f"s_cmp_lg_u32 s{sRound}, 0"), branch("s_cbranch_scc1", f"L_opre{u}")] + alt + [label(f"L_opre{u}_back"), I("; opre", 'comment', tag=('phantom', 0 if Cfg.o_skip else 10))]]
    if not Cfg.no_dma:
        for i, idx in enumerate(sorted(Cfg.touch_at)): sch[idx] += touch_kv(w, 'KV'[i & 1])
    return sch

def lane_id(r): return [V(f"v_mbcnt_lo_u32_b32 v{r}, -1, 0"), V(f"v_mbcnt_hi_u32_b32 v{r}, -1, v{r}")]
def lane_setup(w):
    t = w.F + 8
    lane, i16, g, a, b, c = t, t + 1, t + 2, t + 3, t + 4, t + 5
    o = lane_id(lane) + [V(f"v_and_b32 v{i16}, 15, v{lane}"), V(f"v_lshrrev_b32 v{g}, 4, v{lane}")]
    o += [V(f"v_lshrrev_b32 v{a}, 1, v{i16}"), V(f"v_xor_b32 v{a}, v{a}, v{g}"), V(f"v_lshlrev_b32 v{a}, 4, v{a}"),
          V(f"v_lshl_add_u32 v{w.aN}, v{i16}, 7, v{a}"), V(f"v_xor_b32 v{w.aN+1}, 64, v{w.aN}")]
    o += [V(f"v_lshrrev_b32 v{a}, 2, v{lane}"), V(f"v_and_b32 v{b}, 6, v{a}"),
          V(f"v_bfe_u32 v{c}, v{lane}, 1, 1"), V(f"v_xor_b32 v{b}, v{b}, v{c}"), V(f"v_lshlrev_b32 v{b}, 4, v{b}"),
          V(f"v_lshl_add_u32 v{b}, v{a}, 7, v{b}"),
          V(f"v_and_b32 v{c}, 1, v{lane}"), V(f"v_lshl_add_u32 v{w.aT}, v{c}, 3, v{b}")]
    for dq in range(1, 4): o.append(V(f"v_xor_b32 v{w.aT+dq}, {dq<<5}, v{w.aT}"))
    return o
def voff_setup(w):
    t = w.F + 16
    r8, p, a, b, row = t, t + 1, t + 2, t + 3, t + 4
    o = [V(f"v_bfe_u32 v{row}, v0, 3, 4"),
         V(f"v_and_b32 v{p}, 7, v0"),
         V(f"v_lshrrev_b32 v{a}, 1, v{row}"), V(f"v_xor_b32 v{a}, v{a}, v{p}"), V(f"v_lshlrev_b32 v{a}, 4, v{a}"),
         V(f"v_and_b32 v{b}, 6, v{row}"), V(f"v_xor_b32 v{b}, v{b}, v{p}"), V(f"v_lshlrev_b32 v{b}, 4, v{b}"),
         V(f"v_and_b32 v{p}, 12, v{row}"), V(f"v_add_u32 v{p}, v{p}, v{row}"), V(f"v_lshl_add_u32 v{w.vW}, v{p}, 13, v{b}"),
         V(f"v_mul_u32_u24 v{p}, 1280, v{row}"), V(f"v_add_u32 v{w.vX}, v{p}, v{a}")]
    o2 = [V(f"v_lshl_add_u32 v{w.vK}, v{row}, 8, v{a}"), V(f"v_lshl_add_u32 v{w.vV}, v{row}, 8, v{b}"),
          V(f"v_and_b32 v{p}, 63, v0"), V(f"v_lshlrev_b32 v{p}, 5, v{p}"), V(f"v_bfe_u32 v{r8}, v0, 6, 1"), V(f"v_lshl_add_u32 v{w.vTch}, v{r8}, 11, v{p}")]
    return o, o2

def add_addr(regs_, delta):
    if delta == 0: return []
    if isinstance(delta, str): return [V(f"v_add_u32 v{r}, {delta}, v{r}") for r in regs_]
    return [V(f"v_add_u32 v{r}, {delta & 0xffffffff:#x}, v{r}") for r in regs_]

def finish(code, pending=None, pre=()):
    c, q = add_lgkm_waits(code, pending)
    return fix_hazards(c, pre), q

def srd(base, ptr, nbytes):
    return [S(f"s_mov_b32 s{base}, s{ptr}"), S(f"s_mov_b32 s{base+1}, s{ptr+1}"), S(f"s_mov_b32 s{base+2}, {nbytes}"), S(f"s_mov_b32 s{base+3}, 0x20000")]

def round_advance():
    return [S(f"s_add_u32 s{sKVbase}, s{sKVbase}, 262144"), S(f"s_add_u32 s{sWbase}, s{sWbase}, 512"),
            S(f"s_add_u32 s{sOst}, s{sOst}, {8*10240}"), S(f"s_add_u32 s{sRound}, s{sRound}, 1"), S(f"s_cmp_lt_u32 s{sRound}, 2")]

def flag_add(t, val, lab):
    return [V(f"v_mov_b32 v{t}, {val}"), V(f"v_mov_b32 v{t+1}, s{sFlag}"), S("s_mov_b64 exec, 1"),
            I(f"buffer_atomic_or v{t}, v{t+1}, s[{sDBG}:{sDBG+3}], 0 offen sc1", 'vstore', rd=regs(t, 2) | regs(sDBG, 4, 's'), tag=('cond',)),
            S("s_mov_b64 exec, -1"), label(lab)]

def common_scalars():
    C = srd(sK, 58, 134217728) + srd(sV, 60, 134217728) + srd(sWO, 64, 5242880) + srd(sOUT, 66, 6553600) + srd(sDBG, 68, 256) \
        + srd(sWS, 70, (128 << 20) if Cfg.stamps else WS_BYTES)
    C += [S(f"s_lshr_b32 s{sT2}, s{sWbase}, 8"),
          S(f"s_lshl_b32 s{sT3}, s{sB}, 5"), S(f"s_add_u32 s{sT3}, s{sT3}, s{sT2}"), S(f"s_lshl_b32 s{sKVbase}, s{sT3}, 17"),
          S(f"s_mul_i32 s{sOst}, s{sT3}, 40960"),
          S(f"s_lshl_b32 s{sFlag}, s{sB}, 1"), S(f"s_lshr_b32 s{sT2}, s{sG}, 2"), S(f"s_add_u32 s{sFlag}, s{sFlag}, s{sT2}"), S(f"s_lshl_b32 s{sFlag}, s{sFlag}, 2"),
          S(f"s_mov_b32 s{sRound}, 0"), S(f"s_mov_b32 s{sQS}, {f2u(QSCALE)}"), S(f"s_mov_b32 s{sC16}, {WTAB:#x}"), S(f"s_mov_b32 s{sC32}, {2*SLOT}"),
          S(f"s_mov_b32 s{sCX}, 20480"), S(f"s_mov_b32 s{sTK}, s{sKVbase}"), S(f"s_mov_b32 s{sTV}, s{sKVbase}")]
    if Cfg.stamps:
        C += [S(f"s_lshl_b32 s{sStamp+2}, s2, 3"), S(f"s_add_u32 s{sStamp+2}, s{sStamp+2}, s{sWave}"), S(f"s_lshl_b32 s{sStamp+2}, s{sStamp+2}, 10"),
              S(f"s_add_u32 s{sStamp+2}, s{sStamp+2}, {DBG_OFF}")]
    return C
def wave_addr0(w, j0mul, j0add):
    aN = [w.aN, w.aN + 1]; aT = [w.aT + i for i in range(4)]
    C = [S(f"s_bfe_u32 s{sT0}, s{sWave}, 0x10001"), S(f"s_lshl_b32 s{sT0}, s{sT0}, 13"),
         S(f"s_and_b32 s{sT1}, s{sWave}, 1"), S(f"s_mul_i32 s{sT1}, s{sT1}, {j0mul*1024}"), S(f"s_add_u32 s{sT1}, s{sT1}, {j0add*1024}"),
         S(f"s_add_u32 s{sOst}, s{sOst}, s{sT1}"), S(f"s_lshl_b32 s{sT1}, s{sT1}, 1"),
         S(f"s_sub_u32 s{sKX}, s{sT0}, s{sT1}"),
         S(f"s_add_u32 s{sT0}, s{sT0}, {wslot(0)}"), S(f"s_add_u32 s{sT1}, s{sT1}, {xbuf(0)}")]
    return C + add_addr(aT, f"s{sT0}") + add_addr(aN, f"s{sT1}")

def gen_w3():
    w = Wave(3); nm = 24
    st = lambda k, real=False: stamp(w.tmp + 1, k, real)
    aN = [w.aN, w.aN + 1]; aT = [w.aT + i for i in range(4)]
    C = [label("L_w3"), raw("s_waitcnt lgkmcnt(0)")]
    if Cfg.codetouch:
        t = w.tmp + 1
        C += [raw(f"s_getpc_b64 s[{sRet}:{sRet+1}]"), label("L_pc0"),
              S(f"s_sub_u32 s{sRet}, s{sRet}, L_pc0-KSTART"), S(f"s_subb_u32 s{sRet+1}, s{sRet+1}, 0"),
              S(f"s_lshr_b32 s{sT0}, s2, 3"), S(f"s_lshl_b32 s{sT0}, s{sT0}, 2"), S(f"s_add_u32 s{sT0}, s{sT0}, s{sWave}"), S(f"s_lshl_b32 s{sT0}, s{sT0}, 7"),
              V(f"v_and_b32 v{t}, 7, v0"), V(f"v_lshlrev_b32 v{t}, 14, v{t}"), V(f"v_add_u32 v{t}, s{sT0}, v{t}"),
              V(f"v_min_u32 v{t}, KEND-KSTART-4, v{t}"),
              I(f"global_load_dword v{w.dummy}, v{t}, s[{sRet}:{sRet+1}]", 'vload', wr=regs(w.dummy), rd=regs(t) | regs(sRet, 2, 's'))]
    if Cfg.warm:
        t = w.tmp + 1
        C += srd(sW, 62, 5242880) + srd(sX, 56, 6553600)
        C += [V(f"v_and_b32 v{t}, 63, v0"), V(f"v_lshlrev_b32 v{t}, 7, v{t}"),
              S(f"s_mul_i32 s{sT0}, s{sB}, 204800"), S(f"s_mul_i32 s{sT1}, s{sG}, 25600"), S(f"s_add_u32 s{sT0}, s{sT0}, s{sT1}"),
              S(f"s_mul_i32 s{sT1}, s{sWave}, 5760"), S(f"s_add_u32 s{sT0}, s{sT0}, s{sT1}"),
              V(f"v_bfe_u32 v{t+1}, v0, 3, 3"), V(f"v_min_u32 v{t+1}, 4, v{t+1}"), V(f"v_lshlrev_b32 v{t+1}, 13, v{t+1}"),
              V(f"v_and_b32 v{w.T}, 7, v0"), V(f"v_lshl_add_u32 v{t+1}, v{w.T}, 7, v{t+1}"),
              S(f"s_lshl_b32 s{sT1}, s{sB}, 2"), S(f"s_add_u32 s{sT1}, s{sT1}, s{sWave}"), S(f"s_mul_i32 s{sT1}, s{sT1}, {5*8192}"),
              S(f"s_lshl_b32 s{sT2}, s{sG}, 10"), S(f"s_add_u32 s{sT1}, s{sT1}, s{sT2}"),
              barrier(), bload(1, w.dummy, t + 1, sW, f"s{sT1}"), bload(1, w.dummy, t, sX, f"s{sT0}")]
    C += common_scalars() + lane_setup(w) + wave_addr0(w, 3, 0)
    C, _ = finish(C)
    out = C
    def wadv():
        return [S(f"s_bfe_i32 s{sD}, s{sC16}, s{sCnt}"), S(f"s_lshl_b32 s{sD}, s{sD}, 14"), S(f"s_add_u32 s{sCnt}, s{sCnt}, 4"),
                S(f"s_cmp_eq_u32 s{sCnt}, {0x40000 + 4*NW:#x}"), S(f"s_cselect_b32 s{sCnt}, 0x40000, s{sCnt}")] + add_addr(aT, f"s{sD}")
    def xadv():
        return [S(f"s_add_u32 s{sCnt2}, s{sCnt2}, 1"), S(f"s_cmp_eq_u32 s{sCnt2}, {NX}"), S(f"s_cselect_b32 s{sXd}, {(-(NX-1)*20480) & 0xffffffff:#x}, s{sCX}"),
                S(f"s_cselect_b32 s{sCnt2}, 0, s{sCnt2}")] + add_addr(aN, f"s{sXd}")
    def qstage(s, zero=False, extra=()):
        p = s & 1
        adv_ = wadv() + (xadv() if p == 1 else []) + list(extra)
        L = [barrier()] + spread(q_mfmas(w, 1 - p, zero), [(q_reads(w, p, p), 0, 16), (one(adv_), 17, 22)]) + [wait(lgkm=0)]
        k = [i for i, c in enumerate(L) if c.kind == 'mfma'][Cfg.qcut]
        return L[:k], L[k:]
    C = [label("L_w3_round")] + st(0) + [barrier()] + st(1)
    C += flat(q_reads(w, 0, 0))
    C += add_addr(aT, wslot(1) - wslot(0))
    C += [S(f"s_mov_b32 s{sCnt}, 0x40004"), S(f"s_mov_b32 s{sCnt2}, {(xbuf(0)-NW*SLOT)//20480}"), S(f"s_mov_b32 s{sLoop}, 8")]
    C += [wait(lgkm=0)]
    h1, t1 = qstage(1, zero=True); he, te = qstage(2); ho, to = qstage(3)
    C += h1 + t1 + [wait(vm=0)] + he
    C, q = finish(C); out += C
    B = [label("L_w3_q")] + te + ho + to + he
    B += [S(f"s_sub_u32 s{sLoop}, s{sLoop}, 1"), S(f"s_cmp_lg_u32 s{sLoop}, 0"), branch("s_cbranch_scc1", "L_w3_q")]
    Bc, q2 = finish(B, q, pre=out[-12:]); Bc2, _ = finish(B, q2, pre=Bc[-12:])
    assert emit(Bc) == emit(Bc2)
    out += Bc
    curT = wslot(20); curN = xbuf(10)
    h19, t19 = qstage(19, extra=add_addr(aN, f"s{sKX}") + add_addr(aN, item_slot(kidx(0)) - curN) + add_addr(aT, item_slot(vidx(0)) - curT))
    C = te + h19 + t19
    C += st(40) + [barrier()] + st(41)
    k0 = frags_QK(w, 'zero')
    k1 = frags_QK(w, 'negm', pre=add_addr(aN, item_slot(kidx(1)) - item_slot(kidx(0))))
    w.fpos = 0
    C += stream(w, k0, 0, k1, lead=q_mfmas(w, 1, False), fillers=q_pack_fillers(w))
    C += first_max(w)
    C += st(42) + [barrier()] + st(43)
    C += flat(softmax_groups(w, 0)) + l_accum(w, first=True)
    v0 = frags_PV(w, 0, zero=True)
    if Cfg.warm:
        t = w.tmp + 1
        C += [S(f"s_cmp_lg_u32 s{sRound}, 0"), branch("s_cbranch_scc1", "L_nowarm")] + lane_id(t) + [V(f"v_min_u32 v{t}, 39, v{t}"), V(f"v_lshlrev_b32 v{t}, 7, v{t}"),
              S(f"s_lshl_b32 s{sT0}, s2, 2"), S(f"s_add_u32 s{sT0}, s{sT0}, s{sWave}"), S(f"s_mul_i32 s{sT0}, s{sT0}, 5120"),
              bload(1, w.dummy, t, sWO, f"s{sT0}"), label("L_nowarm")]
    C += [S(f"s_mov_b32 s{sKpos}, {item_slot(kidx(1))}"), S(f"s_mov_b32 s{sVpos}, {item_slot(vidx(0))}"), S(f"s_mov_b32 s{sLoop}, 7")]
    C += stream(w, k1, Cfg.LA, v0)
    C += st(44) + [barrier()] + st(45)
    def adv(pos, rr):
        return [S(f"s_cmp_ge_u32 s{pos}, {LDS_BYTES - 2*SLOT}"), S(f"s_cselect_b32 s{sD}, {(2*SLOT - LDS_BYTES) & 0xffffffff:#x}, s{sC32}"),
                S(f"s_add_u32 s{pos}, s{pos}, s{sD}")] + add_addr(rr, f"s{sD}")
    def pv(par): return frags_PV(w, par, pre=adv(sVpos, aT))
    def qk(): return frags_QK(w, 'negm', pre=adv(sKpos, aN))
    C += stream(w, v0, Cfg.LA, qk(), fillers=sm_fillers(w, 1, 0))
    C += check_branch(w, 1)
    C, q = finish(C, q2, pre=out[-12:]); out += C
    B = [label("L_w3_a")]
    for par in (1, 0):
        B += stream(w, qk(), Cfg.LA, pv(par), fillers=[(one(l_accum(w)), 4, 10)])
        B += [barrier()]
        lp = [(one([S(f"s_sub_u32 s{sLoop}, s{sLoop}, 1"), S(f"s_cmp_lg_u32 s{sLoop}, 0")]), nm - 2, nm)] if par == 0 else []
        B += stream(w, pv(par), Cfg.LA, qk(), fillers=sm_fillers(w, 1 - par, 0) + lp)
        B += check_branch(w, 1 - par)
    B += [branch("s_cbranch_scc1", "L_w3_a")]
    Bc, q2 = finish(B, q, pre=out[-12:]); Bc2, _ = finish(B, q2, pre=Bc[-12:])
    assert emit(Bc) == emit(Bc2)
    out += Bc
    C = st(74) + l_accum(w)
    C += stream(w, pv(1), 0, [], fillers=epi_fillers(w))
    C += st(75) + st(77, True)
    curT = item_slot(vidx(15)); curN = item_slot(kidx(16))
    C += add_addr(aT, wslot(0) - curT) + add_addr(aN, xbuf(0) - curN) + [V(f"v_subrev_u32 v{r}, s{sKX}, v{r}") for r in aN]
    C += round_advance()
    C += [branch("s_cbranch_scc1", "L_w3_round"), branch("s_branch", "L_o")]
    C, q = finish(C, q2, pre=out[-12:]); out += C
    assert not q
    return out, rare_routine(w, 0) + rare_routine(w, 1)

def gen_w2():
    w = Wave(2); nm = 16
    st = lambda k, real=False: stamp(w.tmp + 1, k, real)
    aN = [w.aN, w.aN + 1]; aT = [w.aT + i for i in range(4)]
    sch = loader_schedule(w)
    items = lambda idx: sch[idx]
    vo1, vo2 = voff_setup(w)
    pro = vo1 + [raw("s_waitcnt lgkmcnt(0)")] + srd(sW, 62, 5242880) + srd(sX, 56, 6553600)
    pro += flat(dma_w(w, 0, False, ('W', 0, True))) + flat(dma_x(w, 0, ('X', 0, True))) + flat(dma_w(w, 1, False, ('W', 1, True))) + ([barrier()] if Cfg.warm else [])
    pro += vo2 + [V(f"v_mov_b32 v{w.oVoff}, 0")] + common_scalars() + lane_setup(w) + wave_addr0(w, 2, 6)
    C = [label("L_w2_round")] + st(76, True)
    def bar(idx, lgkm=None):
        b = wait(vm=63, lgkm=lgkm); b.tag = (('need', idx), lgkm)
        return st(2 * idx) + [b, barrier()] + st(2 * idx + 1)
    prio = lambda p: [raw(f"s_setprio {p}")] if Cfg.prio == 2 else []
    curT = wslot(0); curN = xbuf(0)
    C += prio(1)
    for s in range(20):
        if s < 19:
            newT = wslot(s + 1); newN = xbuf((s + 1) >> 1)
            adv_ = add_addr(aT, newT - curT) + add_addr(aN, newN - curN); curT, curN = newT, newN
        else:
            adv_ = add_addr(aN, f"s{sKX}") + add_addr(aN, item_slot(kidx(0)) - curN) + add_addr(aT, item_slot(vidx(0)) - curT)
        C += bar(s, lgkm=0)
        ex = []
        if s == 3:
            ex = [([[S(f"s_lshl_b32 s{sT1}, s{sRound}, 3"), S(f"s_add_u32 s{sT1}, s{sT1}, s{sWave}"), S(f"s_cmp_lg_u32 s{sT1}, 12"),
                     branch("s_cbranch_scc1", "L_nofl1"), S(f"s_and_b32 s{sT1}, s{sG}, 3"), S(f"s_lshl_b32 s{sT1}, 1, s{sT1}")] + flag_add(w.tmp + 1, f"s{sT1}", "L_nofl1")], 11, 12)]
        if s == 0: C += flat(q_reads(w, 0, 0)) + flat(items(0)) + adv_
        else: C += spread(q_mfmas(w, (s - 1) & 1, s == 1), [(q_reads(w, s & 1, s & 1), 0, 10), (items(s), 0, nm - 2), (one(adv_), 11, 15)] + ex)
    C += bar(20, lgkm=0)
    def qk(t, fc='negm'): return frags_QK(w, fc, pre=add_addr(aN, item_slot(kidx(t)) - item_slot(kidx(t - 1))) if t else [])
    def pv(t): return frags_PV(w, t & 1, zero=(t == 0), pre=add_addr(aT, item_slot(vidx(t)) - item_slot(vidx(t - 1))) if t else [])
    w.fpos = 0
    C += stream(w, qk(0, 'zero'), 0, qk(1), lead=q_mfmas(w, 1, False), fillers=[(items(20), 0, 2 * nm)] + q_pack_fillers(w))
    C += first_max(w)
    C += flat(softmax_groups(w, 0))
    for t in range(15):
        C += prio(0)
        C += bar(21 + t)
        C += stream(w, qk(t + 1), Cfg.LA, pv(t), fillers=[(items(21 + t), 0, nm), (one(l_accum(w, first=(t == 0))), 3, 8)])
        C += prio(1)
        C += stream(w, pv(t), Cfg.LA, qk(t + 2) if t < 14 else [], fillers=sm_fillers(w, (t + 1) & 1, 2))
        C += check_branch(w, (t + 1) & 1)
    C += prio(0)
    C += bar(36)
    C += flat(items(36))
    C += st(74) + l_accum(w)
    C += stream(w, pv(15), 0, [], fillers=epi_fillers(w))
    C += st(75) + st(77, True)
    curT = item_slot(vidx(15)); curN = item_slot(kidx(15))
    C += add_addr(aT, wslot(0) - curT) + add_addr(aN, xbuf(0) - curN) + [V(f"v_subrev_u32 v{r}, s{sKX}, v{r}") for r in aN]
    C += round_advance()
    C += [branch("s_cbranch_scc1", "L_w2_round"), branch("s_branch", "L_o")]
    VM = ('dma', 'vload', 'vstore')
    def resolve(prefix, first):
        res = {}
        q = [(c.tag[0], c.tag[1]) if len(c.tag) == 3 and c.tag[2] in (True, 'next') else None for c in prefix if c.kind in VM and c.tag != ('cond',)]
        for c in C:
            if c.kind in VM:
                if c.tag == ('cond',): continue
                if c.tag[-1] in ('cond', 'next') and not first: continue
                q.append((c.tag[0], c.tag[1]) if len(c.tag) == 3 and c.tag[2] in (False, 'cond') else None)
            elif c.kind == 'comment' and c.tag and c.tag[0] == 'phantom':
                if not first: q += [None] * c.tag[1]
            elif c.kind == 'wait' and isinstance(c.tag[0], tuple):
                idx = c.tag[0][1]
                last = -1
                for k, it in enumerate(q):
                    if it is not None and first_use(it[0], it[1]) <= idx: last = k
                res[idx] = min(63, len(q) - 1 - last)
        return res
    r1 = resolve(pro, True); r2 = resolve(C, False)
    C2 = []
    for c in C:
        if c.kind == 'wait' and isinstance(c.tag[0], tuple):
            idx = c.tag[0][1]; n = min(r1[idx], r2[idx]); lg = c.tag[1]
            if abs(r1[idx] - r2[idx]) > 1:
                C2 += [S(f"s_cmp_eq_u32 s{sRound}, {0 if r1[idx] > r2[idx] else 1}"), branch("s_cbranch_scc1", f"L_rw{idx}"), wait(vm=n), label(f"L_rw{idx}")]
                n = max(r1[idx], r2[idx])
            c.text = f"s_waitcnt vmcnt({n})" + (f" lgkmcnt({lg})" if lg is not None else ""); c.tag = (n, lg)
        C2.append(c)
    C = C2
    pro, _ = finish(pro)
    C, q = finish(C, [], pre=pro[-12:])
    assert not q
    return pro + C + gen_opre(w), rare_routine(w, 0) + rare_routine(w, 1)

OSLOT = 40960
def oslot(u): return ((u + 2) & 3) * OSLOT
def o_voff(nh, VOFF, lane, a, b):
    if nh == 0: return [V(f"v_lshlrev_b32 v{VOFF}, 4, v{lane}")]
    return [V(f"v_lshrrev_b32 v{a}, 2, v{lane}"), V(f"v_mul_u32_u24 v{a}, 1280, v{a}"), V(f"v_bfe_u32 v{b}, v{lane}, 4, 1"), V(f"v_lshlrev_b32 v{b}, 1, v{b}"),
            V(f"v_and_b32 v{VOFF}, 3, v{lane}"), V(f"v_xor_b32 v{VOFF}, v{VOFF}, v{b}"), V(f"v_lshl_add_u32 v{VOFF}, v{VOFF}, 4, v{a}")]
def o_base(nh, sBase, sLd):
    C = [S(f"s_and_b32 s{sLd}, s{sWave}, 1"), S(f"s_mul_i32 s{sLd}, s{sLd}, 5120")]
    if nh == 0: C += [S(f"s_mul_i32 s{sBase}, s{sB}, {128*10240}"), S(f"s_add_u32 s{sBase}, s{sBase}, s{sLd}")]
    else: C += [S(f"s_lshl_b32 s{sBase}, s{sLd}, 2"), S(f"s_and_b32 s{sT2}, s{sG}, 3"), S(f"s_mul_i32 s{sT2}, s{sT2}, 320"), S(f"s_add_u32 s{sBase}, s{sBase}, s{sT2}"),
                S(f"s_add_u32 s{sLd}, s{sLd}, 10240")]
    return C
def o_dma(nh, u, VOFF, sSo, sLd, goff=0, loff=0):
    step = 10240 if nh == 0 else 40960
    G = []
    if Cfg.o_skip & (1 << nh): return G
    for i in range(5):
        if nh == 0:
            imm = (i & 3) * 1024; ex = (i >> 2) * 4096
            g = [S(f"s_add_u32 m0, s{sLd}, {oslot(u) + ex + loff}"), S(f"s_add_u32 s{sT0}, s{sSo}, {u*step + ex + goff}")] if imm == 0 else []
            G.append(g + [dma(VOFF, sWS, f"s{sT0}", imm, Cfg.old_pol)])
        else:
            g = [S(f"s_add_u32 m0, s{sLd}, {oslot(u) + i*1024 - i*64 + loff}")]
            if i == 0: g.append(S(f"s_add_u32 s{sT0}, s{sSo}, {u*step + goff}"))
            G.append(g + [dma(VOFF, sWO, f"s{sT0}", i * 64)])
    return G
def spin(lab, POLL, vfl, shift, need, mask=0xf):
    return [label(lab), bload(1, POLL, vfl, sDBG, 0, 0, 'sc1'), S(f"s_sub_u32 s{sCnt}, s{sCnt}, 1"), S(f"s_cmp_lt_i32 s{sCnt}, 0"), branch("s_cbranch_scc1", lab + "_x"),
            wait(vm=0), V(f"v_readfirstlane_b32 s{sT2}, v{POLL}"),
            S(f"s_lshr_b32 s{sT2}, s{sT2}, {shift}"), S(f"s_and_b32 s{sT2}, s{sT2}, {mask}"), S(f"s_cmp_lt_u32 s{sT2}, {need}"),
            branch("s_cbranch_scc1", lab), label(lab + "_x")]

def gen_opre(w):
    sSo, sLd = sTK, sTV
    C = []
    for u in range(2):
        C += [label(f"L_opre{u}"), S(f"s_bitcmp1_b32 s{sWave}, 1"), branch("s_cbranch_scc1", f"L_opre{u}_1")]
        for nh in range(2):
            step = 10240 if nh == 0 else 40960
            B = [label(f"L_opre{u}_{nh}")]
            if u == 0:
                t = w.tmp + 1
                B += lane_id(t) + o_voff(nh, w.oVoff, t, w.dummy, w.vTch) + o_base(nh, sSo, sLd)
                B += [S(f"s_and_b32 s{sT3}, s{sG}, 4"), S(f"s_mul_i32 s{sT3}, s{sT3}, {16*step}"), S(f"s_add_u32 s{sSo}, s{sSo}, s{sT3}")]
                if nh == 0:
                    B += [S(f"s_mov_b32 s{sCnt}, 0x40000"), V(f"v_readfirstlane_b32 s{sT2}, v{w.oPoll}"), S(f"s_and_b32 s{sT2}, s{sT2}, 15"), S(f"s_cmp_eq_u32 s{sT2}, 15"),
                          branch("s_cbranch_scc1", "L_opre_spin_x"), V(f"v_mov_b32 v{w.tmp+2}, s{sFlag}")] + spin("L_opre_spin", w.oPoll, w.tmp + 2, 0, 15)
            for ks in range(2): B += flat(o_dma(nh, u, w.oVoff, sSo, sLd, goff=ks * 4 * step, loff=ks * 20480))
            B += [branch("s_branch", f"L_opre{u}_back")]
            C += fix_hazards(B)
    return C

def gen_o():
    ACC = 0; SET = [100, 140]
    aB, aA0, aA1 = 180, 182, 184
    VOFF, POLL, VFL, T, L16 = 186, 187, 188, 190, 196
    sSo, sHi, sNeed, sLd, sBase, sKs, sNq = 36, 37, 38, 39, 40, 43, 44
    st = lambda k, real=False: stamp(T, k, real)
    def acc(t): return ACC + 4 * t
    def fB(s_, jj): return SET[s_] + 4 * jj
    def fA(s_, nn): return SET[s_] + 20 + 4 * nn
    C = [label("L_o")] + st(80)
    if Cfg.prio: C += [raw("s_setprio 0")]
    lane = T; a = T + 1; b = T + 2
    C += lane_id(lane) + [V(f"v_lshlrev_b32 v{L16}, 4, v{lane}")]
    C += [S(f"s_lshr_b32 s{sKs}, s{sWave}, 2"), S(f"s_mul_i32 s{sT0}, s{sKs}, 20480"), S(f"s_and_b32 s{sT1}, s{sWave}, 1"), S(f"s_mul_i32 s{sT1}, s{sT1}, 5120"),
          S(f"s_add_u32 s{sT1}, s{sT0}, s{sT1}"),
          V(f"v_add_u32 v{aB}, s{sT1}, v{L16}"), V(f"v_add_u32 v{aB+1}, {2*OSLOT}, v{aB}"),
          V(f"v_lshrrev_b32 v{a}, 2, v{lane}"), V(f"v_bfe_u32 v{b}, v{lane}, 4, 1"), V(f"v_lshlrev_b32 v{b}, 5, v{b}"), V(f"v_lshl_add_u32 v{b}, v{a}, 6, v{b}"),
          V(f"v_and_b32 v{a}, 3, v{lane}"), V(f"v_lshl_add_u32 v{b}, v{a}, 3, v{b}"),
          S(f"s_add_u32 s{sT1}, s{sT0}, 10240"), V(f"v_add_u32 v{aA0}, s{sT1}, v{b}"), V(f"v_xor_b32 v{aA1}, 32, v{aA0}"),
          V(f"v_add_u32 v{aA0+1}, {2*OSLOT}, v{aA0}"), V(f"v_add_u32 v{aA1+1}, {2*OSLOT}, v{aA1}"),
          V(f"v_mov_b32 v{VFL}, s{sFlag}"), V(f"v_mov_b32 v{POLL}, 0"), S(f"s_and_b32 s{sNq}, s{sG}, 3"), S(f"s_mov_b32 s{sHi}, 0"), S(f"s_mov_b32 s{sNeed}, 0"),
          S(f"s_mov_b32 s{sCnt}, 0x40000"), S(f"s_mov_b32 s{sLoop}, 7")]
    C += [S(f"s_bitcmp1_b32 s{sWave}, 1"), branch("s_cbranch_scc1", "L_o_1")]
    C = fix_hazards(C)
    def poll_load(): return bload(1, POLL, VFL, sDBG, 0, 0, 'sc1')
    for nh in range(2):
        step = 10240 if nh == 0 else 40960
        R_ = [label(f"L_o_{nh}")] + o_voff(nh, VOFF, lane, a, b) + o_base(nh, sBase, sLd) + [S(f"s_add_u32 s{sLd}, s{sLd}, s{sT0}")]
        def head_setup():
            return [S(f"s_and_b32 s{sT2}, s{sHi}, 3"), S(f"s_and_b32 s{sT3}, s{sG}, 4"), S(f"s_add_u32 s{sT2}, s{sT2}, s{sT3}"),
                    S(f"s_lshl_b32 s{sT2}, s{sT2}, 2"), S(f"s_lshr_b32 s{sT3}, s{sHi}, 2"), S(f"s_lshl_b32 s{sT3}, s{sT3}, 1"), S(f"s_add_u32 s{sT2}, s{sT2}, s{sT3}"),
                    S(f"s_add_u32 s{sT2}, s{sT2}, s{sKs}"), S(f"s_mul_i32 s{sT2}, s{sT2}, {4*step}"), S(f"s_add_u32 s{sSo}, s{sBase}, s{sT2}"),
                    S(f"s_add_u32 s{sHi}, s{sHi}, 1")]
        odma = lambda u: o_dma(nh, u, VOFF, sSo, sLd)
        def oreads(u):
            s_ = u & 1; hi = oslot(u) // (2 * OSLOT); off = oslot(u) % (2 * OSLOT)
            G = []
            for k in range(5):
                nb = 5 * nh + k
                ar = (aA1 if nb & 1 else aA0) + hi
                G.append([ds_read(2, fA(s_, k) + 2 * hh, ar, off + (hh * 5 + (nb >> 1)) * 1024, tr=True) for hh in range(2)])
                G.append([ds_read(4, fB(s_, k), aB + hi, off + k * 1024)])
            return G
        def omf(s_): return [mfma(acc(t), fA(s_, t % 5), fB(s_, t // 5), acc(t)) for t in range(25)]
        R_ += head_setup()
        R_ += [wait(vm=18), barrier()] + st(81) + st(82)
        R_ += flat(oreads(0)) + flat(odma(2))
        for r in range(50): R_.append(V(f"v_pk_mov_b32 v[{ACC+2*r}:{ACC+2*r+1}], 0, 0"))
        R_ += flat(odma(3))
        R_, q = finish(R_)
        def ostage(u, load=True, vm=None, extra=()):
            L = [wait(vm=vm, lgkm=0), barrier()]
            fill = [(oreads(u), 0, 16)]
            if load:
                if u == 1:
                    pre_ = head_setup()
                    if nh == 0:
                        pre_ += [S(f"s_cmp_ge_u32 s{sHi}, 5"), S(f"s_cselect_b32 s{sNeed}, 15, 0"), V(f"v_readfirstlane_b32 s{sT2}, v{POLL}"),
                                 S(f"s_lshr_b32 s{sT2}, s{sT2}, 8"), S(f"s_and_b32 s{sT2}, s{sT2}, 0xf"), S(f"s_cmp_lt_u32 s{sT2}, s{sNeed}"),
                                 branch("s_cbranch_scc1", "L_o_spin2"), label("L_o_spin2_back")]
                    fill.append((one(pre_), 0, 6))
                d = odma((u + 3) & 3)
                if u == 2 and nh == 0: d = [[poll_load()]] + d
                if u == 2 and nh == 1:
                    d = [[S(f"s_lshl_b32 s{sT2}, s{sLoop}, 3"), S(f"s_add_u32 s{sT2}, s{sT2}, s{sWave}"), S(f"s_cmp_lg_u32 s{sT2}, {7*8+2}"), branch("s_cbranch_scc1", "L_nofl2"),
                          S(f"s_lshl_b32 s{sT2}, 0x100, s{sNq}")] + flag_add(T, f"s{sT2}", "L_nofl2")] + d
                fill.append((d, 7, 23))
            fill += list(extra)
            return L + spread(omf(1 - (u & 1)), fill)
        B = [label(f"L_o_loop{nh}")]
        B += ostage(1, vm=Cfg.o_vm1)
        B += ostage(2, vm=10) + ostage(3, vm=10)
        B += ostage(0, vm=10, extra=[(one([S(f"s_sub_u32 s{sLoop}, s{sLoop}, 1"), S(f"s_cmp_lg_u32 s{sLoop}, 0")]), 23, 25)])
        B += [branch("s_cbranch_scc1", f"L_o_loop{nh}")]
        Bc, q2 = finish(B, q, pre=R_[-12:]); Bc2, _ = finish(B, q2, pre=Bc[-12:])
        assert emit(Bc) == emit(Bc2)
        E = ostage(1, load=False, vm=10) + ostage(2, load=False, vm=5) + ostage(3, load=False, vm=0) + [wait(lgkm=0)] + st(83)
        E += [branch("s_branch", "L_o_epi")]
        if nh == 0: E += spin("L_o_spin2", POLL, VFL, 8, 15) + [branch("s_branch", "L_o_spin2_back")]
        E, _ = finish(E, q2, pre=Bc[-12:])
        C += R_ + Bc + E
    TS = [list(range(0, 7)), list(range(7, 13)), list(range(13, 19)), list(range(19, 25))]
    LW, LR, VO, VP = T, T + 1, T + 2, T + 3
    RB = 200
    E = [label("L_o_epi"),
         S(f"s_mul_i32 s{sT0}, s{sWave}, 13312"), S(f"s_cmp_ge_u32 s{sWave}, 2"), S(f"s_cselect_b32 s{sT2}, {81920 - 2*13312}, 0"), S(f"s_add_u32 s{sT0}, s{sT0}, s{sT2}"),
         V(f"v_add_u32 v{LW}, s{sT0}, v{L16}"),
         S(f"s_xor_b32 s{sT1}, s{sWave}, 4"), S(f"s_mul_i32 s{sT0}, s{sT1}, 13312"), S(f"s_cmp_ge_u32 s{sT1}, 2"), S(f"s_cselect_b32 s{sT2}, {81920 - 2*13312}, 0"),
         S(f"s_add_u32 s{sT0}, s{sT0}, s{sT2}"), V(f"v_add_u32 v{LR}, s{sT0}, v{L16}"),
         S(f"s_lshl_b32 s{sT0}, s2, 3"), S(f"s_add_u32 s{sT0}, s{sT0}, s{sWave}"), S(f"s_mul_i32 s{sSo}, s{sT0}, 7168"), S(f"s_add_u32 s{sSo}, s{sSo}, {XCH_OFF}"),
         S(f"s_xor_b32 s{sT0}, s{sT0}, 256"), S(f"s_mul_i32 s{sBase}, s{sT0}, 7168"), S(f"s_add_u32 s{sBase}, s{sBase}, {XCH_OFF}"),
         V(f"v_xor_b32 v{VP}, 4, v{VFL}"),
         V(f"v_bfe_u32 v{VO}, v{L16}, 4, 4"), V(f"v_mul_u32_u24 v{VO}, 1280, v{VO}"), V(f"v_lshrrev_b32 v{POLL}, 8, v{L16}"), V(f"v_lshl_add_u32 v{VO}, v{POLL}, 3, v{VO}"),
         S(f"s_mul_i32 s{sLd}, s{sB}, 204800"), S(f"s_and_b32 s{sT0}, s{sWave}, 1"), S(f"s_mul_i32 s{sT0}, s{sT0}, 102400"), S(f"s_add_u32 s{sLd}, s{sLd}, s{sT0}"),
         S(f"s_mul_i32 s{sT0}, s{sNq}, 320"), S(f"s_add_u32 s{sLd}, s{sLd}, s{sT0}"), S(f"s_bfe_u32 s{sT0}, s{sWave}, 0x10001"), S(f"s_mul_i32 s{sT0}, s{sT0}, 160"),
         S(f"s_add_u32 s{sLd}, s{sLd}, s{sT0}"),
         S(f"s_lshl_b32 s{sNeed}, 0x10000, s{sNq}"), S(f"s_add_u32 s{sHi}, s{sNq}, 16"),
         S(f"s_lshr_b32 s{sT0}, s{sG}, 2"), S(f"s_lshl_b32 s{sT1}, s{sKs}, 1"), S(f"s_add_u32 s{sT0}, s{sT0}, s{sT1}")]
    for v in range(1, 4): E += [S(f"s_cmp_eq_u32 s{sT0}, {v}"), branch("s_cbranch_scc1", f"L_o_epi{v}")]
    C += fix_hazards(E)
    for v in range(4):
        ks, kh = v >> 1, v & 1
        mine = TS[v]; xsend = TS[v ^ 1]; keep = sorted(mine + xsend); lsend = sorted(TS[v ^ 2] + TS[v ^ 3])
        E = [label(f"L_o_epi{v}")]
        order = lsend + xsend + mine
        mf = [mfma(acc(t), fA(1, t % 5), fB(1, t // 5), acc(t)) for t in order]
        wr = [[ds_write(4, LW, acc(t), i * 1024)] for i, t in enumerate(lsend)]
        E += spread(mf, [(wr, 6, 25)])
        E += [wait(lgkm=0), barrier()]
        rorder = xsend + mine
        for i, t in enumerate(rorder): E.append(ds_read(4, RB + 4 * i, LR, keep.index(t) * 1024))
        for i, t in enumerate(rorder):
            for r in range(4): E.append(V(f"v_add_f32 v{acc(t)+r}, v{acc(t)+r}, v{RB+4*i+r}"))
            if t in xsend:
                k = xsend.index(t)
                if k == 4: E.append(S(f"s_add_u32 s{sSo}, s{sSo}, 4096"))
                E.append(bstore(4, acc(t), L16, sWS, f"s{sSo}", (k & 3) * 1024, 'sc1'))
        E += st(84)
        E += [wait(vm=0), barrier()]
        if ks == 0:
            E += [S(f"s_cmp_lg_u32 s{sWave}, 0"), branch("s_cbranch_scc1", f"L_o_spin3_{v}_x")] + flag_add(RB, f"s{sNeed}", f"L_o_spin3_{v}")
            E += [bload(1, POLL, VP, sDBG, 0, 0, 'sc1'), S(f"s_sub_u32 s{sCnt}, s{sCnt}, 1"), S(f"s_cmp_lt_i32 s{sCnt}, 0"), branch("s_cbranch_scc1", f"L_o_spin3_{v}_x"),
                  wait(vm=0), V(f"v_readfirstlane_b32 s{sT2}, v{POLL}"),
                  S(f"s_bitcmp1_b32 s{sT2}, s{sHi}"), branch("s_cbranch_scc1", f"L_o_spin3_{v}_x")]
            if Cfg.xsleep: E += [raw(f"s_sleep {Cfg.xsleep}")]
            E += [branch("s_branch", f"L_o_spin3_{v}"), label(f"L_o_spin3_{v}_x")]
        E += [barrier()]
        E += st(85)
        for k, t in enumerate(mine):
            if k == 4: E.append(S(f"s_add_u32 s{sBase}, s{sBase}, 4096"))
            E.append(bload(4, RB + 4 * k, L16, sWS, f"s{sBase}", (k & 3) * 1024, 'sc1'))
        for k, t in enumerate(mine):
            a_ = acc(t)
            E.append(wait(vm=len(mine) - 1))
            for r in range(4): E.append(V(f"v_add_f32 v{a_+r}, v{a_+r}, v{RB+4*k+r}"))
            E += [V(f"v_cvt_pk_bf16_f32 v{a_}, v{a_}, v{a_+1}"), V(f"v_cvt_pk_bf16_f32 v{a_+1}, v{a_+2}, v{a_+3}"),
                  S(f"s_add_u32 s{sT0}, s{sLd}, {(t//5)*20480}"), bstore(2, a_, VO, sOUT, f"s{sT0}", (t % 5) * 32)]
        E += st(86) + st(77, True)
        if Cfg.dbgst and ks == 1:
            E += [S(f"s_cmp_lg_u32 s{sWave}, 4"), branch("s_cbranch_scc1", f"L_dbgend{v}"), S(f"s_cmp_lg_u32 s2, {Cfg.dbgst}"), branch("s_cbranch_scc1", f"L_dbgend{v}"),
                  S("s_mov_b64 exec, 1"), V("v_mov_b32 v1, 0")]
            for i, r in enumerate(DREG):
                E += [S(f"s_sub_u32 s{r}, s{r}, s{sStamp+2}"), S(f"s_lshr_b32 s{r}, s{r}, 6"), S(f"s_lshl_b32 s{r}, s{r}, 20"), V(f"v_mov_b32 v{2+i}, s{r}"),
                      raw(f"buffer_atomic_or v{2+i}, v1, s[{sDBG}:{sDBG+3}], 0 offen offset:{4*i} sc1")]
            E += [label(f"L_dbgend{v}")]
        E += [raw("s_endpgm")]
        E, _ = finish(E)
        C += E
    return C

def gen_kernel(name):
    C = [raw(f".globl {name}\n.p2align 8\n.type {name},@function\n{name}:\nKSTART:", 'label')]
    C += [S("s_cmp_lt_u32 s2, 256"), branch("s_cbranch_scc1", "L_go"), raw("s_endpgm"), label("L_go")]
    C += [raw("s_load_dwordx16 s[56:71], s[0:1], 0")]
    if Cfg.dbgst: C += [raw(f"s_memtime s[{sStamp+2}:{sStamp+3}]")] + [S(f"s_mov_b32 s{r}, 0") for r in DREG]
    if Cfg.delay:
        C += [S(f"s_bitcmp0_b32 s2, {Cfg.delay_bit}"), branch("s_cbranch_scc1", "L_nodelay"), S(f"s_mov_b32 s{sT0}, {Cfg.delay // 1024}"), label("L_delay"), raw("s_sleep 16"),
              S(f"s_sub_u32 s{sT0}, s{sT0}, 1"), S(f"s_cmp_lg_u32 s{sT0}, 0"), branch("s_cbranch_scc1", "L_delay"), label("L_nodelay")]
    C += [V("v_lshrrev_b32 v1, 6, v0"),
          S(f"s_and_b32 s{sB}, s2, 7"), S(f"s_lshl_b32 s{sB}, s{sB}, 2"), V(f"v_readfirstlane_b32 s{sWave}, v1"),
          S(f"s_lshr_b32 s{sT0}, s2, 6"), S(f"s_add_u32 s{sB}, s{sB}, s{sT0}"), S(f"s_bfe_u32 s{sG}, s2, 0x30003")]
    C += [S(f"s_bfe_u32 s{sT0}, s{sWave}, 0x10001"), S(f"s_lshl_b32 s{sT2}, s{sG}, 2"), S(f"s_add_u32 s{sT2}, s{sT2}, s{sT0}"), S(f"s_lshl_b32 s{sWbase}, s{sT2}, 8"),
          S(f"s_cmp_lt_u32 s{sWave}, 4"), branch("s_cbranch_scc1", "L_w3"),
          S(f"s_and_b32 s{sT1}, s{sWave}, 1"), S(f"s_lshl_b32 s{sT2}, s{sT1}, 10"),
          S(f"s_lshl_b32 s{sLdsKV}, s{sT0}, 13"), S(f"s_add_u32 s{sLdsKV}, s{sLdsKV}, s{sT2}"),
          S(f"s_mul_i32 s{sLdsX}, s{sT0}, 10240"), S(f"s_add_u32 s{sLdsX}, s{sLdsX}, s{sT2}"),
          S(f"s_mul_i32 s{sXbase}, s{sB}, 204800"), S(f"s_mul_i32 s{sT2}, s{sT0}, 102400"), S(f"s_add_u32 s{sXbase}, s{sXbase}, s{sT2}")]
    C = fix_hazards(C)
    w2, r2 = gen_w2(); w3, r3 = gen_w3()
    C += w2 + w3 + gen_o() + [label("KEND")] + r2 + r3
    for k, tag, par in CTX.stubs:
        C += [label(f"L_stub{k}"), raw(f"s_call_b64 s[{sRet}:{sRet+1}], L_rare_{tag}_{par}", 'branch'), branch("s_branch", f"L_back{k}")]
    return C

def kd(name, vgpr, accum, sgpr=102):
    return f""".section .rodata,"a"
.p2align 6
.amdhsa_kernel {name}
  .amdhsa_next_free_vgpr {vgpr}
  .amdhsa_next_free_sgpr {sgpr}
  .amdhsa_accum_offset {accum}
  .amdhsa_group_segment_fixed_size 0
  .amdhsa_kernarg_size 64
  .amdhsa_user_sgpr_count 2
  .amdhsa_user_sgpr_kernarg_segment_ptr 1
  .amdhsa_system_sgpr_workgroup_id_x 1
.end_amdhsa_kernel
"""

HDR = open('standalone__mha_block_cached__near_ridge.s.ref').read().split('; Override launch')[0]
def main(path):
    k1 = "standalone__mha_block_cached__near_ridge_kernel"
    s = HDR
    s += f"; @launch grid=(256,1,1) block=(512,1,1) lds={LDS_BYTES}\n"
    s += '.amdgcn_target "amdgcn-amd-amdhsa--gfx950"\n.text\n'
    s += emit(gen_kernel(k1))
    s += kd(k1, 256, 256)
    open(path, 'w').write(s)
if __name__ == '__main__':
    for a in sys.argv[2:]:
        k, v = a.split('=', 1); setattr(Cfg, k, eval(v))
    main(sys.argv[1] if len(sys.argv) > 1 else 'mha2.s')
```

```python
import sys, math, struct
from ir import *

SLOT = 16384
NSLOT = 10
NW, NX = 6, 3
WPERM = [4, 5, 1, 3, 0, 2]
def wslot(s): return WPERM[s % NW] * SLOT
def xbuf(u): return NW * SLOT + (u % NX) * 20480
WTAB = sum((((WPERM[(m + 1) % NW] - WPERM[m]) & 15) << (4 * m)) for m in range(NW))
LDS_BYTES = 163840
O_BYTES = 32 * 128 * 10 * 1024
XCH_OFF = O_BYTES
XCH_WG = 8 * 7168
WS_BYTES = XCH_OFF + 256 * XCH_WG
QSCALE = math.log2(math.e) / math.sqrt(128.0)
THR = 16384.0
def f2u(x): return "0x%08x" % struct.unpack('<I', struct.pack('<f', x))[0]

sK, sV, sW, sX, sWS, sWO, sOUT, sDBG = 8, 12, 16, 20, 24, 28, 76, 80
sWave, sRound, sB, sG = 32, 33, 34, 35
sKVbase, sWbase, sXbase, sLdsKV, sLdsX = 36, 37, 38, 39, 40
sT0, sT1 = 41, 42
sKpos, sVpos, sD, sCnt, sXd, sLoop = 43, 44, 45, 49, 50, 51
sRet = 46
sOst = 48
sKX, sFlag = 52, 53
sT2, sT3 = 54, 55
sQS, sC16, sC32, sCX = 72, 73, 74, 75
sTK, sTV, sCnt2 = 88, 89, 90
sRho, sT4 = 3, 87
sOoff = 56
sStamp = 84
DBG_OFF = 64 << 20

class Cfg:
    stamps = False
    dbgst = False
    dsl = None
    rot = True
    orot = True
    warm0 = False
    delay = 0
    delay_bit = 7
    LA = 7
    kv_pol = 'nt'
    touch_pol = ''
    touch_at = []
    warm = True
    xsleep = 2
    codetouch = True
    qcut = 8
    prio = 2
    no_sm = False
    no_dma = False
    no_exp = False
    no_chk = False
    no_ds = False
    no_adv = False
    ost_pol = 'sc1'
    old_pol = 'sc1'
    o_skip = 0
    o_vm1 = 10
    smend = 3

STAMP3 = (0, 1, 7, 39, 41, 43, 45, 73, 75, 76, 77, 80, 81, 82, 83, 84, 85, 86)
DSL = {(1, 0): 0, (41, 0): 1, (45, 0): 2, (73, 0): 3, (1, 1): 4, (41, 1): 5, (45, 1): 6, (73, 1): 7, (80, 2): 8, (82, 2): 9, (83, 2): 10, (84, 2): 11, (85, 2): 12, (86, 2): 13}
sDS = 4
DREG = [4, 5, 6, 7, 91, 92, 93, 94, 95, 96, 97, 98, 99, 100]
def stamp(t, k, real=False):
    if Cfg.dbgst:
        if real: return []
        dsl = DSL if not Cfg.dsl else {(2 * b + 1, Cfg.dsl[0]): i for i, b in enumerate(Cfg.dsl[1:])}
        hits = [(r, i) for (kk, r), i in dsl.items() if kk == k]
        if not hits: return []
        out = [raw(f"s_memtime s[{sStamp}:{sStamp+1}]"), wait(lgkm=0)]
        for r, i in hits:
            out += [S(f"s_cmp_eq_u32 s{sRound}, {r}"), S(f"s_cselect_b32 s{DREG[i]}, s{sStamp}, s{DREG[i]}")]
        return out
    if not Cfg.stamps: return []
    if Cfg.stamps == 3 and k not in STAMP3: return []
    return [raw(f"{'s_memrealtime' if real else 's_memtime'} s[{sStamp}:{sStamp+1}]"), wait(lgkm=0), V(f"v_mov_b32 v{t}, s{sStamp}"), V(f"v_mov_b32 v{t+1}, 0"),
            S(f"s_and_b32 s{sStamp+1}, s{sRound}, 1"), S(f"s_lshl_b32 s{sStamp+1}, s{sStamp+1}, 9"), S(f"s_add_u32 s{sStamp+1}, s{sStamp+1}, s{sStamp+2}"),
            bstore(1, t, t + 1, sWS, f"s{sStamp+1}", 4 * k, tag=('misc',))]

def item_slot(n): return (n % NSLOT) * SLOT
def kidx(t): return 0 if t == 0 else 2 * t - 1
def vidx(t): return 2 * t + 2

class Wave:
    def __init__(self, nq):
        self.nq = nq
        n = nq
        p = 0
        self.O = p; p += 32 * n
        self.Q = p; p += 16 * n
        self.NM = p; p += 4 * n
        self.S = p; p += 8 * n
        self.P = p; p += 8 * n
        self.L = p; p += n
        self.LT = p; p += n
        self.T = p; p += 4
        self.aN = p; p += 2
        self.aT = p; p += 4
        p = (p + 3) & ~3
        self.F = p; self.NF = 8; p += 32
        self.dummy = p; p += 1
        self.tmp = p; p += 3
        if nq == 2:
            self.vK = p; self.vV = p + 1; self.vW = p + 2; self.vX = p + 3; self.vTch = p + 4; self.oVoff = p + 5; self.oPoll = p + 6; p += 7
        assert p <= 256, p
        self.end = p
        setsz = 32 + 4 * n
        if nq == 3:
            self.set = [self.Q, self.S]
        else:
            q = (p + 3) & ~3
            self.set = [self.Q, q]
            assert q + setsz <= 256
        self.tag = f"w{nq}"
        self.fpos = 0
    def o(self, T, j): return self.O + (T * self.nq + j) * 4
    def q(self, s, j): return self.Q + (s * self.nq + j) * 4
    def nm(self, j): return self.NM + 4 * j
    def s(self, kb, j): return self.S + (kb * self.nq + j) * 4
    def p(self, par, j): return self.P + (par * self.nq + j) * 4
    def fa(self, st, T): return self.set[st] + 4 * T
    def fb(self, st, j): return self.set[st] + 32 + 4 * j

def spread(base, fillers):
    ins = [[] for _ in range(len(base) + 1)]
    for groups, lo, hi in fillers:
        n = len(groups)
        if n == 0: continue
        hi = min(hi, len(base)); lo = min(lo, hi)
        span = hi - lo
        for k, gI in enumerate(groups):
            pos = lo + (k * span) // n + 1 if span > 0 else lo
            ins[min(pos, len(base))].extend(gI)
    out = list(ins[0])
    for i, b in enumerate(base):
        out.append(b); out.extend(ins[i + 1])
    return out

def frag_K(w, s, kb, first_c):
    def reads(f): return [ds_read(4, f, w.aN + (s & 1), kb * 4096 + (s >> 1) * 2048)]
    def mf(f):
        out = []
        for j in range(w.nq):
            c = w.s(kb, j) if s > 0 else (None if first_c == 'zero' else w.nm(j))
            out.append(mfma(w.s(kb, j), f, w.q(s, j), c))
        return out
    return dict(reads=reads, mf=mf, pre=[])
def frags_QK(w, first_c='negm', pre=()):
    fr = [frag_K(w, s, kb, first_c) for s in range(4) for kb in range(2)]
    fr[0]['pre'] = list(pre)
    return fr
def frag_V(w, db, par, zero):
    def reads(f): return [ds_read(2, f + 2 * hh, w.aT + (db & 3), hh * 4096 + (db >> 2) * 2048, tr=True) for hh in range(2)]
    def mf(f): return [mfma(w.o(db, j), f, w.p(par, j), None if zero else w.o(db, j)) for j in range(w.nq)]
    return dict(reads=reads, mf=mf, pre=[])
def frags_PV(w, par, zero=False, pre=()):
    fr = [frag_V(w, db, par, zero) for db in range(8)]
    fr[0]['pre'] = list(pre)
    return fr

def stream(w, frags, preloaded, nxt, fillers=(), lead=()):
    LA = Cfg.LA
    allf = list(frags) + list(nxt[:LA])
    head = []
    def issue(i):
        f = allf[i]
        return ([] if Cfg.no_adv else list(f['pre'])) + ([] if Cfg.no_ds else f['reads'](w.F + 4 * ((w.fpos + i) % w.NF)))
    for i in range(preloaded, min(LA, len(allf))): head += issue(i)
    base = list(lead); extra = []
    for i, f in enumerate(frags):
        m = f['mf'](w.F + 4 * ((w.fpos + i) % w.NF))
        base += m
        post = []
        if i + LA < len(allf) and i + LA >= preloaded: post += issue(i + LA)
        if post: extra.append(([post], len(base) - 1, len(base)))
    body = spread(base, list(extra) + list(fillers))
    w.fpos = (w.fpos + len(frags)) % w.NF
    return head + body

def softmax_groups(w, par):
    G = []
    k = 0
    for kb in range(2):
        for j in range(w.nq):
            for h in range(2):
                t0 = w.T + 2 * (k & 1); t1 = t0 + 1; k += 1
                sr = w.s(kb, j) + 2 * h
                G.append([V(f"v_exp_f32 v{t0}, v{sr}")])
                G.append([V(f"v_exp_f32 v{t1}, v{sr+1}")])
                lt = w.LT + j
                if kb == 0 and h == 0:
                    G.append(('late', [V(f"v_add_f32 v{lt}, v{t0}, v{t1}"), V(f"v_cvt_pk_bf16_f32 v{w.p(par,j)+2*kb+h}, v{t0}, v{t1}")]))
                else:
                    G.append(('late', [V(f"v_add_f32 v{lt}, v{lt}, v{t0}"), V(f"v_cvt_pk_bf16_f32 v{w.p(par,j)+2*kb+h}, v{t0}, v{t1}"),
                                       V(f"v_add_f32 v{lt}, v{lt}, v{t1}")]))
    if Cfg.no_sm: return [[V(f"v_mov_b32 v{w.LT+j}, 1.0")] for j in range(w.nq)]
    if Cfg.no_exp:
        for gI in G:
            if not isinstance(gI, tuple): gI[0] = V(gI[0].text.replace('v_exp_f32', 'v_mov_b32'))
    out = []; pend = None
    for gI in G:
        if isinstance(gI, tuple):
            pend = gI[1]
        else:
            out.append(gI)
            if pend is not None:
                out.append(pend); pend = None
    if pend is not None: out.append(pend)
    return out

class Ctx:
    def __init__(self): self.stubs = []; self.n = 0
CTX = Ctx()

def check_cmp(w):
    if Cfg.no_chk: return []
    out = []
    if w.nq == 3: out.append(V(f"v_max3_f32 v{w.tmp}, v{w.LT}, v{w.LT+1}, v{w.LT+2}"))
    else: out.append(V(f"v_max_f32 v{w.tmp}, v{w.LT}, v{w.LT+1}"))
    out.append(I(f"v_cmp_nge_f32 vcc, {f2u(THR)}, v{w.tmp}", 'valu', wr={('s', 'vcc')}, rd=regs(w.tmp)))
    return out
def check_branch(w, par):
    if Cfg.no_chk: return []
    k = CTX.n; CTX.n += 1
    CTX.stubs.append((k, w.tag, par))
    return [branch("s_cbranch_vccnz", f"L_stub{k}"), label(f"L_back{k}")]
def l_accum(w, first=False):
    if first: return [V(f"v_mov_b32 v{w.L+j}, v{w.LT+j}") for j in range(w.nq)]
    return [V(f"v_add_f32 v{w.L+j}, v{w.L+j}, v{w.LT+j}") for j in range(w.nq)]
def sm_fillers(w, par, lo):
    nm = 8 * w.nq
    return [(softmax_groups(w, par) + [check_cmp(w)], lo, nm - Cfg.smend)]

def xlane(op, r, t):
    return [V(f"v_mov_b32 v{t}, v{r}"), V(f"v_permlane32_swap_b32 v{r}, v{t}"), V(f"{op} v{r}, v{r}, v{t}"),
            V(f"v_mov_b32 v{t}, v{r}"), V(f"v_permlane16_swap_b32 v{r}, v{t}"), V(f"{op} v{r}, v{r}, v{t}")]

def tile_max(w, j, dst):
    a, b = w.s(0, j), w.s(1, j)
    return [V(f"v_max3_f32 v{dst}, v{a}, v{a+1}, v{a+2}"), V(f"v_max3_f32 v{dst}, v{dst}, v{a+3}, v{b}"),
            V(f"v_max3_f32 v{dst}, v{dst}, v{b+1}, v{b+2}"), V(f"v_max_f32 v{dst}, v{dst}, v{b+3}")]

def first_max(w):
    out = []
    for j in range(w.nq): out += tile_max(w, j, w.LT + j)
    seqs = [xlane("v_max_f32", w.LT + j, w.T + j) for j in range(w.nq)]
    for k in range(6):
        for sq in seqs: out.append(sq[k])
    for j in range(w.nq):
        for r in range(4): out.append(V(f"v_sub_f32 v{w.nm(j)+r}, 0, v{w.LT+j}"))
        for kb in range(2):
            for r in range(4): out.append(V(f"v_sub_f32 v{w.s(kb,j)+r}, v{w.s(kb,j)+r}, v{w.LT+j}"))
    return out

def rare_routine(w, par):
    out = [label(f"L_rare_{w.tag}_{par}"), nop(15)]
    for j in range(w.nq):
        d = w.LT + j; f = w.T + 1
        out += tile_max(w, j, d)
        out += xlane("v_max_f32", d, w.T)
        out.append(V(f"v_max_f32 v{d}, 0, v{d}"))
        out.append(V(f"v_sub_f32 v{f}, 0, v{d}"))
        out.append(V(f"v_exp_f32 v{f}, v{f}"))
        for r in range(4): out.append(V(f"v_sub_f32 v{w.nm(j)+r}, v{w.nm(j)+r}, v{d}"))
        for kb in range(2):
            for r in range(4): out.append(V(f"v_sub_f32 v{w.s(kb,j)+r}, v{w.s(kb,j)+r}, v{d}"))
        out.append(V(f"v_mul_f32 v{w.L+j}, v{w.L+j}, v{f}"))
        for T in range(8):
            for r in range(4): out.append(V(f"v_mul_f32 v{w.o(T,j)+r}, v{w.o(T,j)+r}, v{f}"))
    for gI in softmax_groups(w, par): out += gI
    out.append(nop(3))
    out.append(raw(f"s_setpc_b64 s[{sRet}:{sRet+1}]", 'branch'))
    return fix_hazards(out)

def q_reads(w, st, sl):
    G = []
    for j in range(w.nq): G.append([ds_read(4, w.fb(st, j), w.aN + sl, j * 2048)])
    for T in range(8):
        for hh in range(2):
            G.append([ds_read(2, w.fa(st, T) + 2 * hh, w.aT + (T & 3), hh * 4096 + (T >> 2) * 2048, tr=True)])
    return G
def q_mfmas(w, st, zero):
    return [mfma(w.o(T, j), w.fa(st, T), w.fb(st, j), None if zero else w.o(T, j)) for T in range(8) for j in range(w.nq)]

def q_pack_groups(w, s):
    G = []
    for j in range(w.nq):
        for half in range(2):
            a = w.o(2 * s + half, j)
            for r in range(4): G.append([V(f"v_mul_f32 v{a+r}, s{sQS}, v{a+r}")])
            G.append([V(f"v_cvt_pk_bf16_f32 v{w.q(s,j)+2*half}, v{a}, v{a+1}")])
            G.append([V(f"v_cvt_pk_bf16_f32 v{w.q(s,j)+2*half+1}, v{a+2}, v{a+3}")])
    for op in ("v_permlane32_swap_b32", "v_permlane16_swap_b32"):
        for j in range(w.nq):
            q = w.q(s, j)
            G.append([V(f"{op} v{q}, v{q+2}")]); G.append([V(f"{op} v{q+1}, v{q+3}")])
    return G
def q_pack_fillers(w):
    n = w.nq
    rng = [(2 * n + 2, 5 * n), (5 * n, 8 * n), (8 * n, 11 * n), (11 * n, 14 * n - 1)]
    return [(q_pack_groups(w, s), rng[s][0], rng[s][1]) for s in range(4)]

def l_reduce(w):
    out = []
    seqs = [xlane("v_add_f32", w.L + j, w.T + j) for j in range(w.nq)]
    for k in range(6):
        for sq in seqs: out.append(sq[k])
    for j in range(w.nq): out.append(V(f"v_rcp_f32 v{w.L+j}, v{w.L+j}"))
    out += [V(f"v_mbcnt_lo_u32_b32 v{w.tmp}, -1, 0"), V(f"v_mbcnt_hi_u32_b32 v{w.tmp}, -1, v{w.tmp}"), V(f"v_lshlrev_b32 v{w.tmp}, 4, v{w.tmp}")]
    return out
def epi_groups(w, s):
    G = []
    for j in range(w.nq):
        d = w.q(s, j)
        for half in range(2):
            a = w.o(2 * s + half, j)
            for r in range(4): G.append([V(f"v_mul_f32 v{a+r}, v{a+r}, v{w.L+j}")])
            G.append([V(f"v_cvt_pk_bf16_f32 v{d+2*half}, v{a}, v{a+1}")])
            G.append([V(f"v_cvt_pk_bf16_f32 v{d+2*half+1}, v{a+2}, v{a+3}")])
        G.append([S(f"s_add_u32 s{sT1}, s{sOst}, {s*10240}"), bstore(4, d, w.tmp, sWS, f"s{sT1}", j * 1024, Cfg.ost_pol, tag=('O', 0, True))])
    return G
def epi_fillers(w):
    n = w.nq
    rng = [(2 * n + 2, 4 * n + 2), (4 * n + 2, 6 * n + 2), (6 * n + 2, 8 * n), (8 * n, 8 * n)]
    return [([[i] for i in l_reduce(w)], 0, 2 * n + 1)] + [(epi_groups(w, s), rng[s][0], rng[s][1]) for s in range(4)]

def flat(G): return [i for g in G for i in g]
def one(L): return [[i] for i in L]

def dma_kv(w, kind, t, nxt_round, tag):
    srd_ = sK if kind == 'K' else sV
    voff = w.vK if kind == 'K' else w.vV
    n = kidx(t) if kind == 'K' else vidx(t)
    lds = item_slot(n)
    goff = t * 8192 + (262144 if nxt_round else 0)
    G = []
    for a in range(2):
        for seg in range(2):
            G.append([S(f"s_add_u32 m0, s{sLdsKV}, {lds + a*4096 + seg*2048 - seg*128}"),
                      S(f"s_add_u32 s{sT0}, s{sKVbase}, {goff + a*4096}"),
                      dma(voff, srd_, f"s{sT0}", seg * 128, Cfg.kv_pol, tag=tag)])
    return G
def rot_off(u, unit, base):
    if not Cfg.rot: return [S(f"s_add_u32 s{sT4}, s{base}, {u*unit}")]
    return [S(f"s_cmp_ge_u32 s{sRho}, {10-u}"), S(f"s_cselect_b32 s{sT4}, {u-10}, {u}"), S(f"s_add_u32 s{sT4}, s{sT4}, s{sRho}"),
            S(f"s_mul_i32 s{sT4}, s{sT4}, {unit}"), S(f"s_add_u32 s{sT4}, s{sT4}, s{base}")]
def dma_w(w, s, nxt_round, tag):
    lds = wslot(s)
    goff = (s & 1) * 32 * 8192 + (512 if nxt_round else 0)
    G = []
    for hh in range(2):
        for seg in range(2):
            G.append([S(f"s_add_u32 m0, s{sLdsKV}, {lds + hh*4096 + seg*2048 - seg*128}"),
                      S(f"s_add_u32 s{sT0}, s{sT4}, {goff + hh*32768}"),
                      dma(w.vW, sW, f"s{sT0}", seg * 128, tag=tag)])
    G[0] = rot_off(s >> 1, 64 * 8192, sWbase) + G[0]
    return G
def dma_x(w, u, tag):
    G = []
    for i in range(5):
        G.append([S(f"s_add_u32 m0, s{sLdsX}, {xbuf(u) + i*2048}"),
                  S(f"s_add_u32 s{sT0}, s{sT4}, {i*20480}"),
                  dma(w.vX, sX, f"s{sT0}", 0, tag=tag)])
    G[0] = rot_off(u, 128, sXbase) + G[0]
    return G
def touch_kv(w, kind):
    srd_, ptr = (sK, sTK) if kind == 'K' else (sV, sTV)
    return [[bload(1, w.dummy, w.vTch, srd_, f"s{ptr}", 0, Cfg.touch_pol, tag=('misc',)), S(f"s_add_u32 s{ptr}, s{ptr}, 4096")]]

NAMES = {}
for _t in range(16):
    NAMES[kidx(_t)] = ('K', _t); NAMES[vidx(_t)] = ('V', _t)
def first_use(kind, i):
    if kind == 'W': return i
    if kind == 'X': return 2 * i
    if kind == 'K': return 20 if i == 0 else 19 + i
    if kind == 'V': return 21 + i
    if kind == 'O': return 3
    if kind == 'P': return 35

def loader_schedule(w):
    sch = {i: [] for i in range(37)}
    r0 = lambda G, lab: [[S(f"s_cmp_lg_u32 s{sRound}, 0"), branch("s_cbranch_scc1", lab)] + flat(G) + [label(lab)]]
    sch[0] += r0(dma_w(w, 2, False, ('W', 2, 'cond')), "L_r0a") + dma_x(w, 1, ('X', 1, False)) + r0(dma_w(w, 3, False, ('W', 3, 'cond')), "L_r0b")
    sch[1] += dma_w(w, 4, False, ('W', 4, False)) + dma_x(w, 2, ('X', 2, False))
    sch[2] += dma_w(w, 5, False, ('W', 5, False))
    for s in range(NW, 20): sch[max(s - NW + 1, 3)] += dma_w(w, s, False, ('W', s, False))
    for u in range(NX, 10): sch[2 * (u - NX) + 2] += dma_x(w, u, ('X', u, False))
    if not Cfg.no_dma:
        first = {0: 17, 1: 15, 2: 18, 3: 16, 4: 19, 5: 20, 6: 20, 7: 20, 8: 18, 9: 19}
        for n in range(10): sch[first[n]] += dma_kv(w, *NAMES[n], False, NAMES[n] + (False,))
        for n in range(10, 33):
            if n not in NAMES: continue
            k, t = NAMES[n - 10]
            last = (20 + t) if k == 'K' else min(22 + t, 36)
            sch[last + 1] += dma_kv(w, *NAMES[n], False, NAMES[n] + (False,))
    for idx, ss in ((33, (2, 3)), (34, (0, 1))):
        for s_ in ss: sch[idx] += r0(dma_w(w, s_, True, ('W', s_, 'next')), f"L_r0w{s_}")
    sch[31] += [[V(f"v_mov_b32 v{w.tmp+2}, s{sFlag}"), bload(1, w.oPoll, w.tmp + 2, sDBG, 0, 0, 'sc1', tag=('P', 0, False))]]
    for u in range(2):
        alt = flat(dma_x(w, 0, ('X', 0, 'next'))) if u == 0 else []
        sch[35 + u] += [[S(f"s_cmp_lg_u32 s{sRound}, 0"), branch("s_cbranch_scc1", f"L_opre{u}")] + alt + [label(f"L_opre{u}_back"), I("; opre", 'comment', tag=('phantom', 0 if Cfg.o_skip else 10))]]
    if not Cfg.no_dma:
        for i, idx in enumerate(sorted(Cfg.touch_at)): sch[idx] += touch_kv(w, 'KV'[i & 1])
    return sch

def lane_id(r): return [V(f"v_mbcnt_lo_u32_b32 v{r}, -1, 0"), V(f"v_mbcnt_hi_u32_b32 v{r}, -1, v{r}")]
def lane_setup(w):
    t = w.F + 8
    lane, i16, g, a, b, c = t, t + 1, t + 2, t + 3, t + 4, t + 5
    o = lane_id(lane) + [V(f"v_and_b32 v{i16}, 15, v{lane}"), V(f"v_lshrrev_b32 v{g}, 4, v{lane}")]
    o += [V(f"v_lshrrev_b32 v{a}, 1, v{i16}"), V(f"v_xor_b32 v{a}, v{a}, v{g}"), V(f"v_lshlrev_b32 v{a}, 4, v{a}"),
          V(f"v_lshl_add_u32 v{w.aN}, v{i16}, 7, v{a}"), V(f"v_xor_b32 v{w.aN+1}, 64, v{w.aN}")]
    o += [V(f"v_lshrrev_b32 v{a}, 2, v{lane}"), V(f"v_and_b32 v{b}, 6, v{a}"),
          V(f"v_bfe_u32 v{c}, v{lane}, 1, 1"), V(f"v_xor_b32 v{b}, v{b}, v{c}"), V(f"v_lshlrev_b32 v{b}, 4, v{b}"),
          V(f"v_lshl_add_u32 v{b}, v{a}, 7, v{b}"),
          V(f"v_and_b32 v{c}, 1, v{lane}"), V(f"v_lshl_add_u32 v{w.aT}, v{c}, 3, v{b}")]
    for dq in range(1, 4): o.append(V(f"v_xor_b32 v{w.aT+dq}, {dq<<5}, v{w.aT}"))
    return o
def voff_setup(w):
    t = w.F + 16
    r8, p, a, b, row = t, t + 1, t + 2, t + 3, t + 4
    o = [V(f"v_bfe_u32 v{row}, v0, 3, 4"),
         V(f"v_and_b32 v{p}, 7, v0"),
         V(f"v_lshrrev_b32 v{a}, 1, v{row}"), V(f"v_xor_b32 v{a}, v{a}, v{p}"), V(f"v_lshlrev_b32 v{a}, 4, v{a}"),
         V(f"v_and_b32 v{b}, 6, v{row}"), V(f"v_xor_b32 v{b}, v{b}, v{p}"), V(f"v_lshlrev_b32 v{b}, 4, v{b}"),
         V(f"v_and_b32 v{p}, 12, v{row}"), V(f"v_add_u32 v{p}, v{p}, v{row}"), V(f"v_lshl_add_u32 v{w.vW}, v{p}, 13, v{b}"),
         V(f"v_mul_u32_u24 v{p}, 1280, v{row}"), V(f"v_add_u32 v{w.vX}, v{p}, v{a}")]
    o2 = [V(f"v_lshl_add_u32 v{w.vK}, v{row}, 8, v{a}"), V(f"v_lshl_add_u32 v{w.vV}, v{row}, 8, v{b}"),
          V(f"v_and_b32 v{p}, 63, v0"), V(f"v_lshlrev_b32 v{p}, 5, v{p}"), V(f"v_bfe_u32 v{r8}, v0, 6, 1"), V(f"v_lshl_add_u32 v{w.vTch}, v{r8}, 11, v{p}")]
    return o, o2

def add_addr(regs_, delta):
    if delta == 0: return []
    if isinstance(delta, str): return [V(f"v_add_u32 v{r}, {delta}, v{r}") for r in regs_]
    return [V(f"v_add_u32 v{r}, {delta & 0xffffffff:#x}, v{r}") for r in regs_]

def finish(code, pending=None, pre=()):
    c, q = add_lgkm_waits(code, pending)
    return fix_hazards(c, pre), q

def srd(base, ptr, nbytes):
    return [S(f"s_mov_b32 s{base}, s{ptr}"), S(f"s_mov_b32 s{base+1}, s{ptr+1}"), S(f"s_mov_b32 s{base+2}, {nbytes}"), S(f"s_mov_b32 s{base+3}, 0x20000")]

def round_advance():
    return [S(f"s_add_u32 s{sKVbase}, s{sKVbase}, 262144"), S(f"s_add_u32 s{sWbase}, s{sWbase}, 512"),
            S(f"s_add_u32 s{sOst}, s{sOst}, {8*10240}"), S(f"s_add_u32 s{sRound}, s{sRound}, 1"), S(f"s_cmp_lt_u32 s{sRound}, 2")]

def flag_add(t, val, lab):
    return [V(f"v_mov_b32 v{t}, {val}"), V(f"v_mov_b32 v{t+1}, s{sFlag}"), S("s_mov_b64 exec, 1"),
            I(f"buffer_atomic_or v{t}, v{t+1}, s[{sDBG}:{sDBG+3}], 0 offen sc1", 'vstore', rd=regs(t, 2) | regs(sDBG, 4, 's'), tag=('cond',)),
            S("s_mov_b64 exec, -1"), label(lab)]

def common_scalars():
    C = srd(sK, 58, 134217728) + srd(sV, 60, 134217728) + srd(sWO, 64, 5242880) + srd(sOUT, 66, 6553600) + srd(sDBG, 68, 256) \
        + srd(sWS, 70, (128 << 20) if Cfg.stamps else WS_BYTES)
    C += [S(f"s_lshr_b32 s{sT2}, s{sWbase}, 8"),
          S(f"s_lshl_b32 s{sT3}, s{sB}, 5"), S(f"s_add_u32 s{sT3}, s{sT3}, s{sT2}"), S(f"s_lshl_b32 s{sKVbase}, s{sT3}, 17"),
          S(f"s_mul_i32 s{sOst}, s{sT3}, 40960"),
          S(f"s_lshl_b32 s{sFlag}, s{sB}, 1"), S(f"s_lshr_b32 s{sT2}, s{sG}, 2"), S(f"s_add_u32 s{sFlag}, s{sFlag}, s{sT2}"), S(f"s_lshl_b32 s{sFlag}, s{sFlag}, 2"),
          S(f"s_mov_b32 s{sRound}, 0"), S(f"s_mov_b32 s{sQS}, {f2u(QSCALE)}"), S(f"s_mov_b32 s{sC16}, {WTAB:#x}"), S(f"s_mov_b32 s{sC32}, {2*SLOT}"),
          S(f"s_mov_b32 s{sCX}, 20480"), S(f"s_mov_b32 s{sTK}, s{sKVbase}"), S(f"s_mov_b32 s{sTV}, s{sKVbase}")]
    if Cfg.stamps:
        C += [S(f"s_lshl_b32 s{sStamp+2}, s2, 3"), S(f"s_add_u32 s{sStamp+2}, s{sStamp+2}, s{sWave}"), S(f"s_lshl_b32 s{sStamp+2}, s{sStamp+2}, 10"),
              S(f"s_add_u32 s{sStamp+2}, s{sStamp+2}, {DBG_OFF}")]
    return C
def wave_addr0(w, j0mul, j0add):
    aN = [w.aN, w.aN + 1]; aT = [w.aT + i for i in range(4)]
    C = [S(f"s_bfe_u32 s{sT0}, s{sWave}, 0x10001"), S(f"s_lshl_b32 s{sT0}, s{sT0}, 13"),
         S(f"s_and_b32 s{sT1}, s{sWave}, 1"), S(f"s_mul_i32 s{sT1}, s{sT1}, {j0mul*1024}"), S(f"s_add_u32 s{sT1}, s{sT1}, {j0add*1024}"),
         S(f"s_add_u32 s{sOst}, s{sOst}, s{sT1}"), S(f"s_lshl_b32 s{sT1}, s{sT1}, 1"),
         S(f"s_sub_u32 s{sKX}, s{sT0}, s{sT1}"),
         S(f"s_add_u32 s{sT0}, s{sT0}, {wslot(0)}"), S(f"s_add_u32 s{sT1}, s{sT1}, {xbuf(0)}")]
    return C + add_addr(aT, f"s{sT0}") + add_addr(aN, f"s{sT1}")

def gen_w3():
    w = Wave(3); nm = 24
    st = lambda k, real=False: stamp(w.tmp + 1, k, real)
    aN = [w.aN, w.aN + 1]; aT = [w.aT + i for i in range(4)]
    C = [label("L_w3"), raw("s_waitcnt lgkmcnt(0)")]
    if Cfg.codetouch:
        t = w.tmp + 1
        C += [raw(f"s_getpc_b64 s[{sRet}:{sRet+1}]"), label("L_pc0"),
              S(f"s_sub_u32 s{sRet}, s{sRet}, L_pc0-KSTART"), S(f"s_subb_u32 s{sRet+1}, s{sRet+1}, 0"),
              S(f"s_lshr_b32 s{sT0}, s2, 3"), S(f"s_lshl_b32 s{sT0}, s{sT0}, 2"), S(f"s_add_u32 s{sT0}, s{sT0}, s{sWave}"), S(f"s_lshl_b32 s{sT0}, s{sT0}, 7"),
              V(f"v_and_b32 v{t}, 7, v0"), V(f"v_lshlrev_b32 v{t}, 14, v{t}"), V(f"v_add_u32 v{t}, s{sT0}, v{t}"),
              V(f"v_min_u32 v{t}, KEND-KSTART-4, v{t}"),
              I(f"global_load_dword v{w.dummy}, v{t}, s[{sRet}:{sRet+1}]", 'vload', wr=regs(w.dummy), rd=regs(t) | regs(sRet, 2, 's'))]
    if Cfg.warm0:
        t = w.tmp + 1
        C += srd(sW, 62, 5242880) + srd(sX, 56, 6553600)
        C += [V(f"v_and_b32 v{t}, 63, v0"), V(f"v_lshlrev_b32 v{t}, 7, v{t}"),
              S(f"s_mul_i32 s{sT0}, s{sB}, 204800"), S(f"s_mul_i32 s{sT1}, s{sG}, 25600"), S(f"s_add_u32 s{sT0}, s{sT0}, s{sT1}"),
              S(f"s_mul_i32 s{sT1}, s{sWave}, 5760"), S(f"s_add_u32 s{sT0}, s{sT0}, s{sT1}"),
              V(f"v_bfe_u32 v{t+1}, v0, 3, 3"), V(f"v_min_u32 v{t+1}, 4, v{t+1}"), V(f"v_lshlrev_b32 v{t+1}, 13, v{t+1}"),
              V(f"v_and_b32 v{w.T}, 7, v0"), V(f"v_lshl_add_u32 v{t+1}, v{w.T}, 7, v{t+1}"),
              S(f"s_lshl_b32 s{sT1}, s{sB}, 2"), S(f"s_add_u32 s{sT1}, s{sT1}, s{sWave}"), S(f"s_mul_i32 s{sT1}, s{sT1}, {5*8192}"),
              S(f"s_lshl_b32 s{sT2}, s{sG}, 10"), S(f"s_add_u32 s{sT1}, s{sT1}, s{sT2}"),
              barrier(), bload(1, w.dummy, t + 1, sW, f"s{sT1}"), bload(1, w.dummy, t, sX, f"s{sT0}")]
    C += common_scalars() + lane_setup(w) + wave_addr0(w, 3, 0)
    C, _ = finish(C)
    out = C
    def wadv():
        return [S(f"s_bfe_i32 s{sD}, s{sC16}, s{sCnt}"), S(f"s_lshl_b32 s{sD}, s{sD}, 14"), S(f"s_add_u32 s{sCnt}, s{sCnt}, 4"),
                S(f"s_cmp_eq_u32 s{sCnt}, {0x40000 + 4*NW:#x}"), S(f"s_cselect_b32 s{sCnt}, 0x40000, s{sCnt}")] + add_addr(aT, f"s{sD}")
    def xadv():
        return [S(f"s_add_u32 s{sCnt2}, s{sCnt2}, 1"), S(f"s_cmp_eq_u32 s{sCnt2}, {NX}"), S(f"s_cselect_b32 s{sXd}, {(-(NX-1)*20480) & 0xffffffff:#x}, s{sCX}"),
                S(f"s_cselect_b32 s{sCnt2}, 0, s{sCnt2}")] + add_addr(aN, f"s{sXd}")
    def qstage(s, zero=False, extra=()):
        p = s & 1
        adv_ = wadv() + (xadv() if p == 1 else []) + list(extra)
        L = [barrier()] + spread(q_mfmas(w, 1 - p, zero), [(q_reads(w, p, p), 0, 16), (one(adv_), 17, 22)]) + [wait(lgkm=0)]
        k = [i for i, c in enumerate(L) if c.kind == 'mfma'][Cfg.qcut]
        return L[:k], L[k:]
    C = [label("L_w3_round")] + st(0) + [barrier()] + st(1)
    C += flat(q_reads(w, 0, 0))
    C += add_addr(aT, wslot(1) - wslot(0))
    C += [S(f"s_mov_b32 s{sCnt}, 0x40004"), S(f"s_mov_b32 s{sCnt2}, {(xbuf(0)-NW*SLOT)//20480}"), S(f"s_mov_b32 s{sLoop}, 8")]
    C += [wait(lgkm=0)]
    h1, t1 = qstage(1, zero=True); he, te = qstage(2); ho, to = qstage(3)
    C += h1 + t1 + [wait(vm=0)] + he
    C, q = finish(C); out += C
    B = [label("L_w3_q")] + te + ho + to + he
    B += [S(f"s_sub_u32 s{sLoop}, s{sLoop}, 1"), S(f"s_cmp_lg_u32 s{sLoop}, 0"), branch("s_cbranch_scc1", "L_w3_q")]
    Bc, q2 = finish(B, q, pre=out[-12:]); Bc2, _ = finish(B, q2, pre=Bc[-12:])
    assert emit(Bc) == emit(Bc2)
    out += Bc
    curT = wslot(20); curN = xbuf(10)
    h19, t19 = qstage(19, extra=add_addr(aN, f"s{sKX}") + add_addr(aN, item_slot(kidx(0)) - curN) + add_addr(aT, item_slot(vidx(0)) - curT))
    C = te + h19 + t19
    C += st(40) + [barrier()] + st(41)
    k0 = frags_QK(w, 'zero')
    k1 = frags_QK(w, 'negm', pre=add_addr(aN, item_slot(kidx(1)) - item_slot(kidx(0))))
    w.fpos = 0
    C += stream(w, k0, 0, k1, lead=q_mfmas(w, 1, False), fillers=q_pack_fillers(w))
    C += first_max(w)
    C += st(42) + [barrier()] + st(43)
    C += flat(softmax_groups(w, 0)) + l_accum(w, first=True)
    v0 = frags_PV(w, 0, zero=True)
    if Cfg.warm:
        t = w.tmp + 1
        C += [S(f"s_cmp_lg_u32 s{sRound}, 0"), branch("s_cbranch_scc1", "L_nowarm")] + lane_id(t) + [V(f"v_min_u32 v{t}, 39, v{t}"), V(f"v_lshlrev_b32 v{t}, 7, v{t}"),
              S(f"s_lshl_b32 s{sT0}, s2, 2"), S(f"s_add_u32 s{sT0}, s{sT0}, s{sWave}"), S(f"s_mul_i32 s{sT0}, s{sT0}, 5120"),
              bload(1, w.dummy, t, sWO, f"s{sT0}"), label("L_nowarm")]
    C += [S(f"s_mov_b32 s{sKpos}, {item_slot(kidx(1))}"), S(f"s_mov_b32 s{sVpos}, {item_slot(vidx(0))}"), S(f"s_mov_b32 s{sLoop}, 7")]
    C += stream(w, k1, Cfg.LA, v0)
    C += st(44) + [barrier()] + st(45)
    def adv(pos, rr):
        return [S(f"s_cmp_ge_u32 s{pos}, {LDS_BYTES - 2*SLOT}"), S(f"s_cselect_b32 s{sD}, {(2*SLOT - LDS_BYTES) & 0xffffffff:#x}, s{sC32}"),
                S(f"s_add_u32 s{pos}, s{pos}, s{sD}")] + add_addr(rr, f"s{sD}")
    def pv(par): return frags_PV(w, par, pre=adv(sVpos, aT))
    def qk(): return frags_QK(w, 'negm', pre=adv(sKpos, aN))
    C += stream(w, v0, Cfg.LA, qk(), fillers=sm_fillers(w, 1, 0))
    C += check_branch(w, 1)
    C, q = finish(C, q2, pre=out[-12:]); out += C
    B = [label("L_w3_a")]
    for par in (1, 0):
        B += stream(w, qk(), Cfg.LA, pv(par), fillers=[(one(l_accum(w)), 4, 10)])
        B += [barrier()]
        lp = [(one([S(f"s_sub_u32 s{sLoop}, s{sLoop}, 1"), S(f"s_cmp_lg_u32 s{sLoop}, 0")]), nm - 2, nm)] if par == 0 else []
        B += stream(w, pv(par), Cfg.LA, qk(), fillers=sm_fillers(w, 1 - par, 0) + lp)
        B += check_branch(w, 1 - par)
    B += [branch("s_cbranch_scc1", "L_w3_a")]
    Bc, q2 = finish(B, q, pre=out[-12:]); Bc2, _ = finish(B, q2, pre=Bc[-12:])
    assert emit(Bc) == emit(Bc2)
    out += Bc
    C = st(74) + l_accum(w)
    C += stream(w, pv(1), 0, [], fillers=epi_fillers(w))
    C += st(75) + st(77, True)
    curT = item_slot(vidx(15)); curN = item_slot(kidx(16))
    C += add_addr(aT, wslot(0) - curT) + add_addr(aN, xbuf(0) - curN) + [V(f"v_subrev_u32 v{r}, s{sKX}, v{r}") for r in aN]
    C += round_advance()
    C += [branch("s_cbranch_scc1", "L_w3_round"), branch("s_branch", "L_o")]
    C, q = finish(C, q2, pre=out[-12:]); out += C
    assert not q
    return out, rare_routine(w, 0) + rare_routine(w, 1)

def gen_w2():
    w = Wave(2); nm = 16
    st = lambda k, real=False: stamp(w.tmp + 1, k, real)
    aN = [w.aN, w.aN + 1]; aT = [w.aT + i for i in range(4)]
    sch = loader_schedule(w)
    items = lambda idx: sch[idx]
    vo1, vo2 = voff_setup(w)
    pro = vo1 + [raw("s_waitcnt lgkmcnt(0)")] + srd(sW, 62, 5242880) + srd(sX, 56, 6553600)
    pro += flat(dma_w(w, 0, False, ('W', 0, True))) + flat(dma_x(w, 0, ('X', 0, True))) + flat(dma_w(w, 1, False, ('W', 1, True))) + ([barrier()] if Cfg.warm0 else [])
    pro += vo2 + [V(f"v_mov_b32 v{w.oVoff}, 0")] + common_scalars() + lane_setup(w) + wave_addr0(w, 2, 6)
    C = [label("L_w2_round")] + st(76, True)
    def bar(idx, lgkm=None):
        b = wait(vm=63, lgkm=lgkm); b.tag = (('need', idx), lgkm)
        return st(2 * idx) + [b, barrier()] + st(2 * idx + 1)
    prio = lambda p: [raw(f"s_setprio {p}")] if Cfg.prio == 2 else []
    curT = wslot(0); curN = xbuf(0)
    C += prio(1)
    for s in range(20):
        if s < 19:
            newT = wslot(s + 1); newN = xbuf((s + 1) >> 1)
            adv_ = add_addr(aT, newT - curT) + add_addr(aN, newN - curN); curT, curN = newT, newN
        else:
            adv_ = add_addr(aN, f"s{sKX}") + add_addr(aN, item_slot(kidx(0)) - curN) + add_addr(aT, item_slot(vidx(0)) - curT)
        C += bar(s, lgkm=0)
        ex = []
        if s == 3:
            ex = [([[S(f"s_lshl_b32 s{sT1}, s{sRound}, 3"), S(f"s_add_u32 s{sT1}, s{sT1}, s{sWave}"), S(f"s_cmp_lg_u32 s{sT1}, 12"),
                     branch("s_cbranch_scc1", "L_nofl1"), S(f"s_and_b32 s{sT1}, s{sG}, 3"), S(f"s_lshl_b32 s{sT1}, 1, s{sT1}")] + flag_add(w.tmp + 1, f"s{sT1}", "L_nofl1")], 11, 12)]
        if s == 0: C += flat(q_reads(w, 0, 0)) + flat(items(0)) + adv_
        else: C += spread(q_mfmas(w, (s - 1) & 1, s == 1), [(q_reads(w, s & 1, s & 1), 0, 10), (items(s), 0, nm - 2), (one(adv_), 11, 15)] + ex)
    C += bar(20, lgkm=0)
    def qk(t, fc='negm'): return frags_QK(w, fc, pre=add_addr(aN, item_slot(kidx(t)) - item_slot(kidx(t - 1))) if t else [])
    def pv(t): return frags_PV(w, t & 1, zero=(t == 0), pre=add_addr(aT, item_slot(vidx(t)) - item_slot(vidx(t - 1))) if t else [])
    w.fpos = 0
    C += stream(w, qk(0, 'zero'), 0, qk(1), lead=q_mfmas(w, 1, False), fillers=[(items(20), 0, 2 * nm)] + q_pack_fillers(w))
    C += first_max(w)
    C += flat(softmax_groups(w, 0))
    for t in range(15):
        C += prio(0)
        C += bar(21 + t)
        C += stream(w, qk(t + 1), Cfg.LA, pv(t), fillers=[(items(21 + t), 0, nm), (one(l_accum(w, first=(t == 0))), 3, 8)])
        C += prio(1)
        C += stream(w, pv(t), Cfg.LA, qk(t + 2) if t < 14 else [], fillers=sm_fillers(w, (t + 1) & 1, 2))
        C += check_branch(w, (t + 1) & 1)
    C += prio(0)
    C += bar(36)
    C += flat(items(36))
    C += st(74) + l_accum(w)
    C += stream(w, pv(15), 0, [], fillers=epi_fillers(w))
    C += st(75) + st(77, True)
    curT = item_slot(vidx(15)); curN = item_slot(kidx(15))
    C += add_addr(aT, wslot(0) - curT) + add_addr(aN, xbuf(0) - curN) + [V(f"v_subrev_u32 v{r}, s{sKX}, v{r}") for r in aN]
    C += round_advance()
    C += [branch("s_cbranch_scc1", "L_w2_round"), branch("s_branch", "L_o")]
    VM = ('dma', 'vload', 'vstore')
    def resolve(prefix, first):
        res = {}
        q = [(c.tag[0], c.tag[1]) if len(c.tag) == 3 and c.tag[2] in (True, 'next') else None for c in prefix if c.kind in VM and c.tag != ('cond',)]
        for c in C:
            if c.kind in VM:
                if c.tag == ('cond',): continue
                if c.tag[-1] in ('cond', 'next') and not first: continue
                q.append((c.tag[0], c.tag[1]) if len(c.tag) == 3 and c.tag[2] in (False, 'cond') else None)
            elif c.kind == 'comment' and c.tag and c.tag[0] == 'phantom':
                if not first: q += [None] * c.tag[1]
            elif c.kind == 'wait' and isinstance(c.tag[0], tuple):
                idx = c.tag[0][1]
                last = -1
                for k, it in enumerate(q):
                    if it is not None and first_use(it[0], it[1]) <= idx: last = k
                res[idx] = min(63, len(q) - 1 - last)
        return res
    r1 = resolve(pro, True); r2 = resolve(C, False)
    C2 = []
    for c in C:
        if c.kind == 'wait' and isinstance(c.tag[0], tuple):
            idx = c.tag[0][1]; n = min(r1[idx], r2[idx]); lg = c.tag[1]
            if abs(r1[idx] - r2[idx]) > 1:
                C2 += [S(f"s_cmp_eq_u32 s{sRound}, {0 if r1[idx] > r2[idx] else 1}"), branch("s_cbranch_scc1", f"L_rw{idx}"), wait(vm=n), label(f"L_rw{idx}")]
                n = max(r1[idx], r2[idx])
            c.text = f"s_waitcnt vmcnt({n})" + (f" lgkmcnt({lg})" if lg is not None else ""); c.tag = (n, lg)
        C2.append(c)
    C = C2
    pro, _ = finish(pro)
    C, q = finish(C, [], pre=pro[-12:])
    assert not q
    return pro + C + gen_opre(w), rare_routine(w, 0) + rare_routine(w, 1)

OSLOT = 40960
def oslot(u): return ((u + 2) & 3) * OSLOT
def o_voff(nh, VOFF, lane, a, b):
    if nh == 0: return [V(f"v_lshlrev_b32 v{VOFF}, 4, v{lane}")]
    return [V(f"v_lshrrev_b32 v{a}, 2, v{lane}"), V(f"v_mul_u32_u24 v{a}, 1280, v{a}"), V(f"v_bfe_u32 v{b}, v{lane}, 4, 1"), V(f"v_lshlrev_b32 v{b}, 1, v{b}"),
            V(f"v_and_b32 v{VOFF}, 3, v{lane}"), V(f"v_xor_b32 v{VOFF}, v{VOFF}, v{b}"), V(f"v_lshl_add_u32 v{VOFF}, v{VOFF}, 4, v{a}")]
def o_base(nh, sBase, sLd):
    C = [S(f"s_and_b32 s{sLd}, s{sWave}, 1"), S(f"s_mul_i32 s{sLd}, s{sLd}, 5120")]
    if nh == 0: C += [S(f"s_mul_i32 s{sBase}, s{sB}, {128*10240}"), S(f"s_add_u32 s{sBase}, s{sBase}, s{sLd}")]
    else: C += [S(f"s_lshl_b32 s{sBase}, s{sLd}, 2"), S(f"s_and_b32 s{sT2}, s{sG}, 3"), S(f"s_mul_i32 s{sT2}, s{sT2}, 320"), S(f"s_add_u32 s{sBase}, s{sBase}, s{sT2}"),
                S(f"s_add_u32 s{sLd}, s{sLd}, 10240")]
    step = 10240 if nh == 0 else 40960
    C += [S(f"s_add_u32 s{sT3}, s{sG}, s{sB}")] if Cfg.orot else [S(f"s_mov_b32 s{sT3}, 0")]
    for u in range(4):
        C += [S(f"s_add_u32 s{sT2}, s{sT3}, {u}"), S(f"s_and_b32 s{sT2}, s{sT2}, 3"), S(f"s_mul_i32 s{sOoff+u}, s{sT2}, {step}")]
    return C
def o_dma(nh, u, VOFF, sSo, sLd, goff=0, loff=0):
    step = 10240 if nh == 0 else 40960
    G = []
    if Cfg.o_skip & (1 << nh): return G
    for i in range(5):
        if nh == 0:
            imm = (i & 3) * 1024; ex = (i >> 2) * 4096
            g = [S(f"s_add_u32 m0, s{sLd}, {oslot(u) + ex + loff}"), S(f"s_add_u32 s{sT0}, s{sSo}, s{sOoff+u}")] + ([S(f"s_add_u32 s{sT0}, s{sT0}, {ex + goff}")] if ex + goff else []) if imm == 0 else []
            G.append(g + [dma(VOFF, sWS, f"s{sT0}", imm, Cfg.old_pol)])
        else:
            g = [S(f"s_add_u32 m0, s{sLd}, {oslot(u) + i*1024 - i*64 + loff}")]
            if i == 0: g += [S(f"s_add_u32 s{sT0}, s{sSo}, s{sOoff+u}")] + ([S(f"s_add_u32 s{sT0}, s{sT0}, {goff}")] if goff else [])
            G.append(g + [dma(VOFF, sWO, f"s{sT0}", i * 64)])
    return G
def spin(lab, POLL, vfl, shift, need, mask=0xf):
    return [label(lab), bload(1, POLL, vfl, sDBG, 0, 0, 'sc1'), S(f"s_sub_u32 s{sCnt}, s{sCnt}, 1"), S(f"s_cmp_lt_i32 s{sCnt}, 0"), branch("s_cbranch_scc1", lab + "_x"),
            wait(vm=0), V(f"v_readfirstlane_b32 s{sT2}, v{POLL}"),
            S(f"s_lshr_b32 s{sT2}, s{sT2}, {shift}"), S(f"s_and_b32 s{sT2}, s{sT2}, {mask}"), S(f"s_cmp_lt_u32 s{sT2}, {need}"),
            branch("s_cbranch_scc1", lab), label(lab + "_x")]

def gen_opre(w):
    sSo, sLd = sTK, sTV
    C = []
    for u in range(2):
        C += [label(f"L_opre{u}"), S(f"s_bitcmp1_b32 s{sWave}, 1"), branch("s_cbranch_scc1", f"L_opre{u}_1")]
        for nh in range(2):
            step = 10240 if nh == 0 else 40960
            B = [label(f"L_opre{u}_{nh}")]
            if u == 0:
                t = w.tmp + 1
                B += lane_id(t) + o_voff(nh, w.oVoff, t, w.dummy, w.vTch) + o_base(nh, sSo, sLd)
                B += [S(f"s_and_b32 s{sT3}, s{sG}, 4"), S(f"s_mul_i32 s{sT3}, s{sT3}, {16*step}"), S(f"s_add_u32 s{sSo}, s{sSo}, s{sT3}")]
                if nh == 0:
                    B += [S(f"s_mov_b32 s{sCnt}, 0x40000"), V(f"v_readfirstlane_b32 s{sT2}, v{w.oPoll}"), S(f"s_and_b32 s{sT2}, s{sT2}, 15"), S(f"s_cmp_eq_u32 s{sT2}, 15"),
                          branch("s_cbranch_scc1", "L_opre_spin_x"), V(f"v_mov_b32 v{w.tmp+2}, s{sFlag}")] + spin("L_opre_spin", w.oPoll, w.tmp + 2, 0, 15)
            for ks in range(2): B += flat(o_dma(nh, u, w.oVoff, sSo, sLd, goff=ks * 4 * step, loff=ks * 20480))
            B += [branch("s_branch", f"L_opre{u}_back")]
            C += fix_hazards(B)
    return C

def gen_o():
    ACC = 0; SET = [100, 140]
    aB, aA0, aA1 = 180, 182, 184
    VOFF, POLL, VFL, T, L16 = 186, 187, 188, 190, 196
    sSo, sHi, sNeed, sLd, sBase, sKs, sNq = 36, 37, 38, 39, 40, 43, 44
    st = lambda k, real=False: stamp(T, k, real)
    def acc(t): return ACC + 4 * t
    def fB(s_, jj): return SET[s_] + 4 * jj
    def fA(s_, nn): return SET[s_] + 20 + 4 * nn
    C = [label("L_o")] + st(80)
    if Cfg.prio: C += [raw("s_setprio 0")]
    lane = T; a = T + 1; b = T + 2
    C += lane_id(lane) + [V(f"v_lshlrev_b32 v{L16}, 4, v{lane}")]
    C += [S(f"s_lshr_b32 s{sKs}, s{sWave}, 2"), S(f"s_mul_i32 s{sT0}, s{sKs}, 20480"), S(f"s_and_b32 s{sT1}, s{sWave}, 1"), S(f"s_mul_i32 s{sT1}, s{sT1}, 5120"),
          S(f"s_add_u32 s{sT1}, s{sT0}, s{sT1}"),
          V(f"v_add_u32 v{aB}, s{sT1}, v{L16}"), V(f"v_add_u32 v{aB+1}, {2*OSLOT}, v{aB}"),
          V(f"v_lshrrev_b32 v{a}, 2, v{lane}"), V(f"v_bfe_u32 v{b}, v{lane}, 4, 1"), V(f"v_lshlrev_b32 v{b}, 5, v{b}"), V(f"v_lshl_add_u32 v{b}, v{a}, 6, v{b}"),
          V(f"v_and_b32 v{a}, 3, v{lane}"), V(f"v_lshl_add_u32 v{b}, v{a}, 3, v{b}"),
          S(f"s_add_u32 s{sT1}, s{sT0}, 10240"), V(f"v_add_u32 v{aA0}, s{sT1}, v{b}"), V(f"v_xor_b32 v{aA1}, 32, v{aA0}"),
          V(f"v_add_u32 v{aA0+1}, {2*OSLOT}, v{aA0}"), V(f"v_add_u32 v{aA1+1}, {2*OSLOT}, v{aA1}"),
          V(f"v_mov_b32 v{VFL}, s{sFlag}"), V(f"v_mov_b32 v{POLL}, 0"), S(f"s_and_b32 s{sNq}, s{sG}, 3"), S(f"s_mov_b32 s{sHi}, 0"), S(f"s_mov_b32 s{sNeed}, 0"),
          S(f"s_mov_b32 s{sCnt}, 0x40000"), S(f"s_mov_b32 s{sLoop}, 7")]
    C += [S(f"s_bitcmp1_b32 s{sWave}, 1"), branch("s_cbranch_scc1", "L_o_1")]
    C = fix_hazards(C)
    def poll_load(): return bload(1, POLL, VFL, sDBG, 0, 0, 'sc1')
    for nh in range(2):
        step = 10240 if nh == 0 else 40960
        R_ = [label(f"L_o_{nh}")] + o_voff(nh, VOFF, lane, a, b) + o_base(nh, sBase, sLd) + [S(f"s_add_u32 s{sLd}, s{sLd}, s{sT0}")]
        def head_setup():
            return [S(f"s_and_b32 s{sT2}, s{sHi}, 3"), S(f"s_and_b32 s{sT3}, s{sG}, 4"), S(f"s_add_u32 s{sT2}, s{sT2}, s{sT3}"),
                    S(f"s_lshl_b32 s{sT2}, s{sT2}, 2"), S(f"s_lshr_b32 s{sT3}, s{sHi}, 2"), S(f"s_lshl_b32 s{sT3}, s{sT3}, 1"), S(f"s_add_u32 s{sT2}, s{sT2}, s{sT3}"),
                    S(f"s_add_u32 s{sT2}, s{sT2}, s{sKs}"), S(f"s_mul_i32 s{sT2}, s{sT2}, {4*step}"), S(f"s_add_u32 s{sSo}, s{sBase}, s{sT2}"),
                    S(f"s_add_u32 s{sHi}, s{sHi}, 1")]
        odma = lambda u: o_dma(nh, u, VOFF, sSo, sLd)
        def oreads(u):
            s_ = u & 1; hi = oslot(u) // (2 * OSLOT); off = oslot(u) % (2 * OSLOT)
            G = []
            for k in range(5):
                nb = 5 * nh + k
                ar = (aA1 if nb & 1 else aA0) + hi
                G.append([ds_read(2, fA(s_, k) + 2 * hh, ar, off + (hh * 5 + (nb >> 1)) * 1024, tr=True) for hh in range(2)])
                G.append([ds_read(4, fB(s_, k), aB + hi, off + k * 1024)])
            return G
        def omf(s_): return [mfma(acc(t), fA(s_, t % 5), fB(s_, t // 5), acc(t)) for t in range(25)]
        R_ += head_setup()
        R_ += [wait(vm=18), barrier()] + st(81) + st(82)
        R_ += flat(oreads(0)) + flat(odma(2))
        for r in range(50): R_.append(V(f"v_pk_mov_b32 v[{ACC+2*r}:{ACC+2*r+1}], 0, 0"))
        R_ += flat(odma(3))
        R_, q = finish(R_)
        def ostage(u, load=True, vm=None, extra=()):
            L = [wait(vm=vm, lgkm=0), barrier()]
            fill = [(oreads(u), 0, 16)]
            if load:
                if u == 1:
                    pre_ = head_setup()
                    if nh == 0:
                        pre_ += [S(f"s_cmp_ge_u32 s{sHi}, 5"), S(f"s_cselect_b32 s{sNeed}, 15, 0"), V(f"v_readfirstlane_b32 s{sT2}, v{POLL}"),
                                 S(f"s_lshr_b32 s{sT2}, s{sT2}, 8"), S(f"s_and_b32 s{sT2}, s{sT2}, 0xf"), S(f"s_cmp_lt_u32 s{sT2}, s{sNeed}"),
                                 branch("s_cbranch_scc1", "L_o_spin2"), label("L_o_spin2_back")]
                    fill.append((one(pre_), 0, 6))
                d = odma((u + 3) & 3)
                if u == 2 and nh == 0: d = [[poll_load()]] + d
                if u == 2 and nh == 1:
                    d = [[S(f"s_lshl_b32 s{sT2}, s{sLoop}, 3"), S(f"s_add_u32 s{sT2}, s{sT2}, s{sWave}"), S(f"s_cmp_lg_u32 s{sT2}, {7*8+2}"), branch("s_cbranch_scc1", "L_nofl2"),
                          S(f"s_lshl_b32 s{sT2}, 0x100, s{sNq}")] + flag_add(T, f"s{sT2}", "L_nofl2")] + d
                fill.append((d, 7, 23))
            fill += list(extra)
            return L + spread(omf(1 - (u & 1)), fill)
        B = [label(f"L_o_loop{nh}")]
        B += ostage(1, vm=Cfg.o_vm1)
        B += ostage(2, vm=10) + ostage(3, vm=10)
        B += ostage(0, vm=10, extra=[(one([S(f"s_sub_u32 s{sLoop}, s{sLoop}, 1"), S(f"s_cmp_lg_u32 s{sLoop}, 0")]), 23, 25)])
        B += [branch("s_cbranch_scc1", f"L_o_loop{nh}")]
        Bc, q2 = finish(B, q, pre=R_[-12:]); Bc2, _ = finish(B, q2, pre=Bc[-12:])
        assert emit(Bc) == emit(Bc2)
        E = ostage(1, load=False, vm=10) + ostage(2, load=False, vm=5) + ostage(3, load=False, vm=0) + [wait(lgkm=0)] + st(83)
        E += [branch("s_branch", "L_o_epi")]
        if nh == 0: E += spin("L_o_spin2", POLL, VFL, 8, 15) + [branch("s_branch", "L_o_spin2_back")]
        E, _ = finish(E, q2, pre=Bc[-12:])
        C += R_ + Bc + E
    TS = [list(range(0, 7)), list(range(7, 13)), list(range(13, 19)), list(range(19, 25))]
    LW, LR, VO, VP = T, T + 1, T + 2, T + 3
    RB = 200
    E = [label("L_o_epi"),
         S(f"s_mul_i32 s{sT0}, s{sWave}, 13312"), S(f"s_cmp_ge_u32 s{sWave}, 2"), S(f"s_cselect_b32 s{sT2}, {81920 - 2*13312}, 0"), S(f"s_add_u32 s{sT0}, s{sT0}, s{sT2}"),
         V(f"v_add_u32 v{LW}, s{sT0}, v{L16}"),
         S(f"s_xor_b32 s{sT1}, s{sWave}, 4"), S(f"s_mul_i32 s{sT0}, s{sT1}, 13312"), S(f"s_cmp_ge_u32 s{sT1}, 2"), S(f"s_cselect_b32 s{sT2}, {81920 - 2*13312}, 0"),
         S(f"s_add_u32 s{sT0}, s{sT0}, s{sT2}"), V(f"v_add_u32 v{LR}, s{sT0}, v{L16}"),
         S(f"s_lshl_b32 s{sT0}, s2, 3"), S(f"s_add_u32 s{sT0}, s{sT0}, s{sWave}"), S(f"s_mul_i32 s{sSo}, s{sT0}, 7168"), S(f"s_add_u32 s{sSo}, s{sSo}, {XCH_OFF}"),
         S(f"s_xor_b32 s{sT0}, s{sT0}, 256"), S(f"s_mul_i32 s{sBase}, s{sT0}, 7168"), S(f"s_add_u32 s{sBase}, s{sBase}, {XCH_OFF}"),
         V(f"v_xor_b32 v{VP}, 4, v{VFL}"),
         V(f"v_bfe_u32 v{VO}, v{L16}, 4, 4"), V(f"v_mul_u32_u24 v{VO}, 1280, v{VO}"), V(f"v_lshrrev_b32 v{POLL}, 8, v{L16}"), V(f"v_lshl_add_u32 v{VO}, v{POLL}, 3, v{VO}"),
         S(f"s_mul_i32 s{sLd}, s{sB}, 204800"), S(f"s_and_b32 s{sT0}, s{sWave}, 1"), S(f"s_mul_i32 s{sT0}, s{sT0}, 102400"), S(f"s_add_u32 s{sLd}, s{sLd}, s{sT0}"),
         S(f"s_mul_i32 s{sT0}, s{sNq}, 320"), S(f"s_add_u32 s{sLd}, s{sLd}, s{sT0}"), S(f"s_bfe_u32 s{sT0}, s{sWave}, 0x10001"), S(f"s_mul_i32 s{sT0}, s{sT0}, 160"),
         S(f"s_add_u32 s{sLd}, s{sLd}, s{sT0}"),
         S(f"s_lshl_b32 s{sNeed}, 0x10000, s{sNq}"), S(f"s_add_u32 s{sHi}, s{sNq}, 16"),
         S(f"s_lshr_b32 s{sT0}, s{sG}, 2"), S(f"s_lshl_b32 s{sT1}, s{sKs}, 1"), S(f"s_add_u32 s{sT0}, s{sT0}, s{sT1}")]
    for v in range(1, 4): E += [S(f"s_cmp_eq_u32 s{sT0}, {v}"), branch("s_cbranch_scc1", f"L_o_epi{v}")]
    C += fix_hazards(E)
    for v in range(4):
        ks, kh = v >> 1, v & 1
        mine = TS[v]; xsend = TS[v ^ 1]; keep = sorted(mine + xsend); lsend = sorted(TS[v ^ 2] + TS[v ^ 3])
        E = [label(f"L_o_epi{v}")]
        order = lsend + xsend + mine
        mf = [mfma(acc(t), fA(1, t % 5), fB(1, t // 5), acc(t)) for t in order]
        wr = [[ds_write(4, LW, acc(t), i * 1024)] for i, t in enumerate(lsend)]
        E += spread(mf, [(wr, 6, 25)])
        E += [wait(lgkm=0), barrier()]
        rorder = xsend + mine
        for i, t in enumerate(rorder): E.append(ds_read(4, RB + 4 * i, LR, keep.index(t) * 1024))
        for i, t in enumerate(rorder):
            for r in range(4): E.append(V(f"v_add_f32 v{acc(t)+r}, v{acc(t)+r}, v{RB+4*i+r}"))
            if t in xsend:
                k = xsend.index(t)
                if k == 4: E.append(S(f"s_add_u32 s{sSo}, s{sSo}, 4096"))
                E.append(bstore(4, acc(t), L16, sWS, f"s{sSo}", (k & 3) * 1024, 'sc1'))
        E += st(84)
        E += [wait(vm=0), barrier()]
        if ks == 0:
            E += [S(f"s_cmp_lg_u32 s{sWave}, 0"), branch("s_cbranch_scc1", f"L_o_spin3_{v}_x")] + flag_add(RB, f"s{sNeed}", f"L_o_spin3_{v}")
            E += [bload(1, POLL, VP, sDBG, 0, 0, 'sc1'), S(f"s_sub_u32 s{sCnt}, s{sCnt}, 1"), S(f"s_cmp_lt_i32 s{sCnt}, 0"), branch("s_cbranch_scc1", f"L_o_spin3_{v}_x"),
                  wait(vm=0), V(f"v_readfirstlane_b32 s{sT2}, v{POLL}"),
                  S(f"s_bitcmp1_b32 s{sT2}, s{sHi}"), branch("s_cbranch_scc1", f"L_o_spin3_{v}_x")]
            if Cfg.xsleep: E += [raw(f"s_sleep {Cfg.xsleep}")]
            E += [branch("s_branch", f"L_o_spin3_{v}"), label(f"L_o_spin3_{v}_x")]
        E += [barrier()]
        E += st(85)
        for k, t in enumerate(mine):
            if k == 4: E.append(S(f"s_add_u32 s{sBase}, s{sBase}, 4096"))
            E.append(bload(4, RB + 4 * k, L16, sWS, f"s{sBase}", (k & 3) * 1024, 'sc1'))
        for k, t in enumerate(mine):
            a_ = acc(t)
            E.append(wait(vm=len(mine) - 1))
            for r in range(4): E.append(V(f"v_add_f32 v{a_+r}, v{a_+r}, v{RB+4*k+r}"))
            E += [V(f"v_cvt_pk_bf16_f32 v{a_}, v{a_}, v{a_+1}"), V(f"v_cvt_pk_bf16_f32 v{a_+1}, v{a_+2}, v{a_+3}"),
                  S(f"s_add_u32 s{sT0}, s{sLd}, {(t//5)*20480}"), bstore(2, a_, VO, sOUT, f"s{sT0}", (t % 5) * 32)]
        E += st(86) + st(77, True)
        if Cfg.dbgst and ks == 1:
            E += [S(f"s_cmp_lg_u32 s{sWave}, 4"), branch("s_cbranch_scc1", f"L_dbgend{v}"), S(f"s_cmp_lg_u32 s2, {Cfg.dbgst}"), branch("s_cbranch_scc1", f"L_dbgend{v}"),
                  S("s_mov_b64 exec, 1"), V("v_mov_b32 v1, 0")]
            for i, r in enumerate(DREG):
                E += [S(f"s_sub_u32 s{r}, s{r}, s{sStamp+2}"), S(f"s_lshr_b32 s{r}, s{r}, 6"), S(f"s_lshl_b32 s{r}, s{r}, 20"), V(f"v_mov_b32 v{2+i}, s{r}"),
                      raw(f"buffer_atomic_or v{2+i}, v1, s[{sDBG}:{sDBG+3}], 0 offen offset:{4*i} sc1")]
            E += [label(f"L_dbgend{v}")]
        E += [raw("s_endpgm")]
        E, _ = finish(E)
        C += E
    return C

def gen_kernel(name):
    C = [raw(f".globl {name}\n.p2align 8\n.type {name},@function\n{name}:\nKSTART:", 'label')]
    C += [S("s_cmp_lt_u32 s2, 256"), branch("s_cbranch_scc1", "L_go"), raw("s_endpgm"), label("L_go")]
    C += [raw("s_load_dwordx16 s[56:71], s[0:1], 0")]
    if Cfg.dbgst: C += [raw(f"s_memtime s[{sStamp+2}:{sStamp+3}]")] + [S(f"s_mov_b32 s{r}, 0") for r in DREG]
    if Cfg.delay:
        C += [S(f"s_bitcmp0_b32 s2, {Cfg.delay_bit}"), branch("s_cbranch_scc1", "L_nodelay"), S(f"s_mov_b32 s{sT0}, {Cfg.delay // 1024}"), label("L_delay"), raw("s_sleep 16"),
              S(f"s_sub_u32 s{sT0}, s{sT0}, 1"), S(f"s_cmp_lg_u32 s{sT0}, 0"), branch("s_cbranch_scc1", "L_delay"), label("L_nodelay")]
    C += [V("v_lshrrev_b32 v1, 6, v0"),
          S(f"s_and_b32 s{sB}, s2, 7"), S(f"s_lshl_b32 s{sB}, s{sB}, 2"), V(f"v_readfirstlane_b32 s{sWave}, v1"),
          S(f"s_lshr_b32 s{sT0}, s2, 6"), S(f"s_add_u32 s{sB}, s{sB}, s{sT0}"), S(f"s_bfe_u32 s{sG}, s2, 0x30003")]
    C += [S(f"s_bfe_u32 s{sT0}, s{sWave}, 0x10001"), S(f"s_lshl_b32 s{sT2}, s{sG}, 2"), S(f"s_add_u32 s{sT2}, s{sT2}, s{sT0}"), S(f"s_lshl_b32 s{sWbase}, s{sT2}, 8"),
          S(f"s_cmp_lt_u32 s{sWave}, 4"), branch("s_cbranch_scc1", "L_w3"),
          S(f"s_and_b32 s{sT1}, s{sWave}, 1"), S(f"s_lshl_b32 s{sT2}, s{sT1}, 10"),
          S(f"s_lshl_b32 s{sLdsKV}, s{sT0}, 13"), S(f"s_add_u32 s{sLdsKV}, s{sLdsKV}, s{sT2}"),
          S(f"s_mul_i32 s{sLdsX}, s{sT0}, 10240"), S(f"s_add_u32 s{sLdsX}, s{sLdsX}, s{sT2}"),
          S(f"s_mul_i32 s{sXbase}, s{sB}, 204800"), S(f"s_mul_i32 s{sT2}, s{sT0}, 102400"), S(f"s_add_u32 s{sXbase}, s{sXbase}, s{sT2}")]
    if Cfg.rot:
        C += [S(f"s_lshr_b32 s{sRho}, s2, 6"), S(f"s_mul_i32 s{sRho}, s{sRho}, 5"), S(f"s_add_u32 s{sRho}, s{sRho}, 1"), S(f"s_lshr_b32 s{sRho}, s{sRho}, 1"),
              S(f"s_add_u32 s{sRho}, s{sRho}, s{sG}"), S(f"s_and_b32 s{sT2}, s2, 7"), S(f"s_add_u32 s{sRho}, s{sRho}, s{sT2}")]
        for _ in range(2): C += [S(f"s_sub_u32 s{sT2}, s{sRho}, 10"), S(f"s_cmp_ge_u32 s{sRho}, 10"), S(f"s_cselect_b32 s{sRho}, s{sT2}, s{sRho}")]
    C = fix_hazards(C)
    w2, r2 = gen_w2(); w3, r3 = gen_w3()
    C += w2 + w3 + gen_o() + [label("KEND")] + r2 + r3
    for k, tag, par in CTX.stubs:
        C += [label(f"L_stub{k}"), raw(f"s_call_b64 s[{sRet}:{sRet+1}], L_rare_{tag}_{par}", 'branch'), branch("s_branch", f"L_back{k}")]
    return C

def kd(name, vgpr, accum, sgpr=102):
    return f""".section .rodata,"a"
.p2align 6
.amdhsa_kernel {name}
  .amdhsa_next_free_vgpr {vgpr}
  .amdhsa_next_free_sgpr {sgpr}
  .amdhsa_accum_offset {accum}
  .amdhsa_group_segment_fixed_size 0
  .amdhsa_kernarg_size 64
  .amdhsa_user_sgpr_count 2
  .amdhsa_user_sgpr_kernarg_segment_ptr 1
  .amdhsa_system_sgpr_workgroup_id_x 1
.end_amdhsa_kernel
"""

HDR = open('standalone__mha_block_cached__near_ridge.s.ref').read().split('; Override launch')[0]
def main(path):
    k1 = "standalone__mha_block_cached__near_ridge_kernel"
    s = HDR
    s += f"; @launch grid=(256,1,1) block=(512,1,1) lds={LDS_BYTES}\n"
    s += '.amdgcn_target "amdgcn-amd-amdhsa--gfx950"\n.text\n'
    s += emit(gen_kernel(k1))
    s += kd(k1, 256, 256)
    open(path, 'w').write(s)
if __name__ == '__main__':
    for a in sys.argv[2:]:
        k, v = a.split('=', 1); setattr(Cfg, k, eval(v))
    main(sys.argv[1] if len(sys.argv) > 1 else 'mha2.s')
```

```python
import sys, math, struct
from ir import *

SLOT = 16384
NSLOT = 10
NW, NX = 6, 3
WPERM = [4, 5, 1, 3, 0, 2]
def wslot(s): return WPERM[s % NW] * SLOT
def xbuf(u): return NW * SLOT + (u % NX) * 20480
WTAB = sum((((WPERM[(m + 1) % NW] - WPERM[m]) & 15) << (4 * m)) for m in range(NW))
LDS_BYTES = 163840
O_BYTES = 32 * 128 * 10 * 1024
XCH_OFF = O_BYTES
SLAB = 7168 + 128
XCH_WG = 8 * SLAB
MODE_LDS = LDS_BYTES - 4
WS_BYTES = XCH_OFF + 256 * XCH_WG
QSCALE = math.log2(math.e) / math.sqrt(128.0)
THR = 16384.0
def f2u(x): return "0x%08x" % struct.unpack('<I', struct.pack('<f', x))[0]

sK, sV, sW, sX, sWS, sWO, sOUT, sDBG = 8, 12, 16, 20, 24, 28, 76, 80
sWave, sRound, sB, sG = 32, 33, 34, 35
sKVbase, sWbase, sXbase, sLdsKV, sLdsX = 36, 37, 38, 39, 40
sT0, sT1 = 41, 42
sKpos, sVpos, sD, sCnt, sXd, sLoop = 43, 44, 45, 49, 50, 51
sRet = 46
sOst = 48
sKX, sFlag = 52, 53
sT2, sT3 = 54, 55
sQS, sC16, sC32, sCX = 72, 73, 74, 75
sTK, sTV, sCnt2 = 88, 89, 90
sMode = 91
sRho, sT4 = 3, 87
sOoff = 56
sStamp = 84
DBG_OFF = 64 << 20

class Cfg:
    stamps = False
    dbgst = False
    dsl = None
    rot = True
    orot = True
    warm0 = False
    delay = 0
    delay_bit = 7
    LA = 7
    kv_pol = 'nt'
    touch_pol = ''
    touch_at = []
    warm = True
    xsleep = 8
    kv_same = False
    rotn = 10
    late = 8
    smpure = 0.7
    pp = False
    pp_a = 1
    pp_b = 0
    ostamp = False
    xsleep2 = 2
    dual = True
    fast = True
    codetouch2 = True
    codetouch = True
    qcut = 8
    prio = 2
    no_sm = False
    no_dma = False
    no_exp = False
    no_chk = False
    no_ds = False
    no_adv = False
    ost_pol = 'sc1'
    old_pol = 'sc1'
    o_skip = 0
    o_vm1 = 10
    smend = 3

RT4 = {7: 90, 39: 91, 45: 92, 73: 93, 82: 94, 83: 95}
STAMP3 = (0, 1, 7, 39, 41, 43, 45, 73, 75, 76, 77, 80, 81, 82, 83, 84, 85, 86)
DSL = {(1, 0): 0, (41, 0): 1, (45, 0): 2, (73, 0): 3, (1, 1): 4, (41, 1): 5, (45, 1): 6, (73, 1): 7, (80, 2): 8, (82, 2): 9, (83, 2): 10, (84, 2): 11, (85, 2): 12, (86, 2): 13}
sDS = 4
DREG = [4, 5, 6, 7, 101, 92, 93, 94, 95, 96, 97, 98, 99, 100]
def stamp(t, k, real=False):
    if Cfg.dbgst:
        if real: return []
        dsl = DSL if not Cfg.dsl else {(2 * b + 1, Cfg.dsl[0]): i for i, b in enumerate(Cfg.dsl[1:])}
        hits = [(r, i) for (kk, r), i in dsl.items() if kk == k]
        if not hits: return []
        out = [raw(f"s_memtime s[{sStamp}:{sStamp+1}]"), wait(lgkm=0)]
        for r, i in hits:
            out += [S(f"s_cmp_eq_u32 s{sRound}, {r}"), S(f"s_cselect_b32 s{DREG[i]}, s{sStamp}, s{DREG[i]}")]
        return out
    if not Cfg.stamps: return []
    if Cfg.stamps == 6: return []
    if Cfg.stamps == 4 and not real and k in RT4:
        Cfg.stamps = 5; r = stamp(t, k) + stamp(t, RT4[k], True); Cfg.stamps = 4; return r
    if Cfg.stamps in (3, 4) and k not in STAMP3: return []
    return [raw(f"{'s_memrealtime' if real else 's_memtime'} s[{sStamp}:{sStamp+1}]"), wait(lgkm=0), V(f"v_mov_b32 v{t}, s{sStamp}"), V(f"v_mov_b32 v{t+1}, 0"),
            S(f"s_and_b32 s{sStamp+1}, s{sRound}, 1"), S(f"s_lshl_b32 s{sStamp+1}, s{sStamp+1}, 9"), S(f"s_add_u32 s{sStamp+1}, s{sStamp+1}, s{sStamp+2}"),
            bstore(1, t, t + 1, sWS, f"s{sStamp+1}", 4 * k, tag=('misc',))]

def item_slot(n): return (n % NSLOT) * SLOT
def kidx(t): return 0 if t == 0 else 2 * t - 1
def vidx(t): return 2 * t + 2

class Wave:
    def __init__(self, nq):
        self.nq = nq
        n = nq
        p = 0
        self.O = p; p += 32 * n
        self.Q = p; p += 16 * n
        self.NM = p; p += 4 * n
        self.S = p; p += 8 * n
        self.P = p; p += 8 * n
        self.L = p; p += n
        self.LT = p; p += n
        self.T = p; p += 4
        self.aN = p; p += 2
        self.aT = p; p += 4
        p = (p + 3) & ~3
        self.F = p; self.NF = 8; p += 32
        self.dummy = p; p += 1
        self.tmp = p; p += 3
        if nq == 2:
            self.vK = p; self.vV = p + 1; self.vW = p + 2; self.vX = p + 3; self.vTch = p + 4; self.oVoff = p + 5; self.oPoll = p + 6; p += 7
        assert p <= 256, p
        self.end = p
        setsz = 32 + 4 * n
        if nq == 3:
            self.set = [self.Q, self.S]
        else:
            q = (p + 3) & ~3
            self.set = [self.Q, q]
            assert q + setsz <= 256
        self.tag = f"w{nq}"
        self.fpos = 0
    def o(self, T, j): return self.O + (T * self.nq + j) * 4
    def q(self, s, j): return self.Q + (s * self.nq + j) * 4
    def nm(self, j): return self.NM + 4 * j
    def s(self, kb, j): return self.S + (kb * self.nq + j) * 4
    def p(self, par, j): return self.P + (par * self.nq + j) * 4
    def fa(self, st, T): return self.set[st] + 4 * T
    def fb(self, st, j): return self.set[st] + 32 + 4 * j

def spread(base, fillers):
    ins = [[] for _ in range(len(base) + 1)]
    for groups, lo, hi in fillers:
        n = len(groups)
        if n == 0: continue
        hi = min(hi, len(base)); lo = min(lo, hi)
        span = hi - lo
        for k, gI in enumerate(groups):
            pos = lo + (k * span) // n + 1 if span > 0 else lo
            ins[min(pos, len(base))].extend(gI)
    out = list(ins[0])
    for i, b in enumerate(base):
        out.append(b); out.extend(ins[i + 1])
    return out

def frag_K(w, s, kb, first_c):
    def reads(f): return [ds_read(4, f, w.aN + (s & 1), kb * 4096 + (s >> 1) * 2048)]
    def mf(f):
        out = []
        for j in range(w.nq):
            c = w.s(kb, j) if s > 0 else (None if first_c == 'zero' else w.nm(j))
            out.append(mfma(w.s(kb, j), f, w.q(s, j), c))
        return out
    return dict(reads=reads, mf=mf, pre=[])
def frags_QK(w, first_c='negm', pre=()):
    fr = [frag_K(w, s, kb, first_c) for s in range(4) for kb in range(2)]
    fr[0]['pre'] = list(pre)
    return fr
def frag_V(w, db, par, zero):
    def reads(f): return [ds_read(2, f + 2 * hh, w.aT + (db & 3), hh * 4096 + (db >> 2) * 2048, tr=True) for hh in range(2)]
    def mf(f): return [mfma(w.o(db, j), f, w.p(par, j), None if zero else w.o(db, j)) for j in range(w.nq)]
    return dict(reads=reads, mf=mf, pre=[])
def frags_PV(w, par, zero=False, pre=()):
    fr = [frag_V(w, db, par, zero) for db in range(8)]
    fr[0]['pre'] = list(pre)
    return fr

def stream(w, frags, preloaded, nxt, fillers=(), lead=()):
    LA = Cfg.LA
    allf = list(frags) + list(nxt[:LA])
    head = []
    def issue(i):
        f = allf[i]
        return ([] if Cfg.no_adv else list(f['pre'])) + ([] if Cfg.no_ds else f['reads'](w.F + 4 * ((w.fpos + i) % w.NF)))
    for i in range(preloaded, min(LA, len(allf))): head += issue(i)
    base = list(lead); extra = []
    for i, f in enumerate(frags):
        m = f['mf'](w.F + 4 * ((w.fpos + i) % w.NF))
        base += m
        post = []
        if i + LA < len(allf) and i + LA >= preloaded: post += issue(i + LA)
        if post: extra.append(([post], len(base) - 1, len(base)))
    body = spread(base, list(extra) + list(fillers))
    w.fpos = (w.fpos + len(frags)) % w.NF
    return head + body

def softmax_groups(w, par):
    G = []
    k = 0
    for kb in range(2):
        for j in range(w.nq):
            for h in range(2):
                t0 = w.T + 2 * (k & 1); t1 = t0 + 1; k += 1
                sr = w.s(kb, j) + 2 * h
                G.append([V(f"v_exp_f32 v{t0}, v{sr}")])
                G.append([V(f"v_exp_f32 v{t1}, v{sr+1}")])
                lt = w.LT + j
                if kb == 0 and h == 0:
                    G.append(('late', [V(f"v_add_f32 v{lt}, v{t0}, v{t1}"), V(f"v_cvt_pk_bf16_f32 v{w.p(par,j)+2*kb+h}, v{t0}, v{t1}")]))
                else:
                    G.append(('late', [V(f"v_add_f32 v{lt}, v{lt}, v{t0}"), V(f"v_cvt_pk_bf16_f32 v{w.p(par,j)+2*kb+h}, v{t0}, v{t1}"),
                                       V(f"v_add_f32 v{lt}, v{lt}, v{t1}")]))
    if Cfg.no_sm: return [[V(f"v_mov_b32 v{w.LT+j}, 1.0")] for j in range(w.nq)]
    if Cfg.no_exp:
        for gI in G:
            if not isinstance(gI, tuple): gI[0] = V(gI[0].text.replace('v_exp_f32', 'v_mov_b32'))
    out = []; pend = None
    for gI in G:
        if isinstance(gI, tuple):
            pend = gI[1]
        else:
            out.append(gI)
            if pend is not None:
                out.append(pend); pend = None
    if pend is not None: out.append(pend)
    return out

class Ctx:
    def __init__(self): self.stubs = []; self.n = 0
CTX = Ctx()

SLOW = []
def dstore(n, src, voff, srd_, soff, imm, tag=None):
    if not Cfg.dual: return [bstore(n, src, voff, srd_, soff, imm, 'sc1', tag=tag)]
    k = len(SLOW)
    SLOW.append([label(f"L_slow{k}"), bstore(n, src, voff, srd_, soff, imm, 'sc1'), branch("s_branch", f"L_slowb{k}")])
    return [branch("s_cbranch_vccz", f"L_slow{k}"), bstore(n, src, voff, srd_, soff, imm, '', tag=tag), label(f"L_slowb{k}")]
def mode_vcc(): return [S(f"s_and_b32 s{sT1}, s{sMode}, s{sRound}"), S("s_cselect_b64 vcc, -1, 0")]
def mode_read(t):
    return [[V(f"v_mov_b32 v{t}, {MODE_LDS}"), ds_read(1, t, t, 0)],
            [V(f"v_readfirstlane_b32 s{sT1}, v{t}"), S(f"s_cmp_eq_u32 s{sRound}, 0"), S(f"s_cselect_b32 s{sMode}, s{sT1}, s{sMode}")]]

def check_cmp(w):
    if Cfg.no_chk: return []
    out = []
    if w.nq == 3: out.append(V(f"v_max3_f32 v{w.tmp}, v{w.LT}, v{w.LT+1}, v{w.LT+2}"))
    else: out.append(V(f"v_max_f32 v{w.tmp}, v{w.LT}, v{w.LT+1}"))
    out.append(I(f"v_cmp_nge_f32 vcc, {f2u(THR)}, v{w.tmp}", 'valu', wr={('s', 'vcc')}, rd=regs(w.tmp)))
    return out
def check_branch(w, par):
    if Cfg.no_chk: return []
    k = CTX.n; CTX.n += 1
    CTX.stubs.append((k, w.tag, par))
    return [branch("s_cbranch_vccnz", f"L_stub{k}"), label(f"L_back{k}")]
def l_accum(w, first=False):
    if first: return [V(f"v_mov_b32 v{w.L+j}, v{w.LT+j}") for j in range(w.nq)]
    return [V(f"v_add_f32 v{w.L+j}, v{w.L+j}, v{w.LT+j}") for j in range(w.nq)]
def sm_fillers(w, par, lo):
    nm = 8 * w.nq
    return [(softmax_groups(w, par) + [check_cmp(w)], lo, nm - Cfg.smend)]

def xlane(op, r, t):
    return [V(f"v_mov_b32 v{t}, v{r}"), V(f"v_permlane32_swap_b32 v{r}, v{t}"), V(f"{op} v{r}, v{r}, v{t}"),
            V(f"v_mov_b32 v{t}, v{r}"), V(f"v_permlane16_swap_b32 v{r}, v{t}"), V(f"{op} v{r}, v{r}, v{t}")]

def tile_max(w, j, dst):
    a, b = w.s(0, j), w.s(1, j)
    return [V(f"v_max3_f32 v{dst}, v{a}, v{a+1}, v{a+2}"), V(f"v_max3_f32 v{dst}, v{dst}, v{a+3}, v{b}"),
            V(f"v_max3_f32 v{dst}, v{dst}, v{b+1}, v{b+2}"), V(f"v_max_f32 v{dst}, v{dst}, v{b+3}")]

def first_max(w):
    out = []
    for j in range(w.nq): out += tile_max(w, j, w.LT + j)
    seqs = [xlane("v_max_f32", w.LT + j, w.T + j) for j in range(w.nq)]
    for k in range(6):
        for sq in seqs: out.append(sq[k])
    for j in range(w.nq):
        for r in range(4): out.append(V(f"v_sub_f32 v{w.nm(j)+r}, 0, v{w.LT+j}"))
        for kb in range(2):
            for r in range(4): out.append(V(f"v_sub_f32 v{w.s(kb,j)+r}, v{w.s(kb,j)+r}, v{w.LT+j}"))
    return out

def rare_routine(w, par):
    out = [label(f"L_rare_{w.tag}_{par}"), nop(15)]
    for j in range(w.nq):
        d = w.LT + j; f = w.T + 1
        out += tile_max(w, j, d)
        out += xlane("v_max_f32", d, w.T)
        out.append(V(f"v_max_f32 v{d}, 0, v{d}"))
        out.append(V(f"v_sub_f32 v{f}, 0, v{d}"))
        out.append(V(f"v_exp_f32 v{f}, v{f}"))
        for r in range(4): out.append(V(f"v_sub_f32 v{w.nm(j)+r}, v{w.nm(j)+r}, v{d}"))
        for kb in range(2):
            for r in range(4): out.append(V(f"v_sub_f32 v{w.s(kb,j)+r}, v{w.s(kb,j)+r}, v{d}"))
        out.append(V(f"v_mul_f32 v{w.L+j}, v{w.L+j}, v{f}"))
        for T in range(8):
            for r in range(4): out.append(V(f"v_mul_f32 v{w.o(T,j)+r}, v{w.o(T,j)+r}, v{f}"))
    for gI in softmax_groups(w, par): out += gI
    out.append(nop(3))
    out.append(raw(f"s_setpc_b64 s[{sRet}:{sRet+1}]", 'branch'))
    return fix_hazards(out)

def q_reads(w, st, sl):
    G = []
    for j in range(w.nq): G.append([ds_read(4, w.fb(st, j), w.aN + sl, j * 2048)])
    for T in range(8):
        for hh in range(2):
            G.append([ds_read(2, w.fa(st, T) + 2 * hh, w.aT + (T & 3), hh * 4096 + (T >> 2) * 2048, tr=True)])
    return G
def q_mfmas(w, st, zero):
    return [mfma(w.o(T, j), w.fa(st, T), w.fb(st, j), None if zero else w.o(T, j)) for T in range(8) for j in range(w.nq)]

def q_pack_groups(w, s):
    G = []
    for j in range(w.nq):
        for half in range(2):
            a = w.o(2 * s + half, j)
            for r in range(4): G.append([V(f"v_mul_f32 v{a+r}, s{sQS}, v{a+r}")])
            G.append([V(f"v_cvt_pk_bf16_f32 v{w.q(s,j)+2*half}, v{a}, v{a+1}")])
            G.append([V(f"v_cvt_pk_bf16_f32 v{w.q(s,j)+2*half+1}, v{a+2}, v{a+3}")])
    for op in ("v_permlane32_swap_b32", "v_permlane16_swap_b32"):
        for j in range(w.nq):
            q = w.q(s, j)
            G.append([V(f"{op} v{q}, v{q+2}")]); G.append([V(f"{op} v{q+1}, v{q+3}")])
    return G
def q_pack_fillers(w):
    n = w.nq
    rng = [(2 * n + 2, 5 * n), (5 * n, 8 * n), (8 * n, 11 * n), (11 * n, 14 * n - 1)]
    return [(q_pack_groups(w, s), rng[s][0], rng[s][1]) for s in range(4)]

def l_reduce(w):
    out = []
    seqs = [xlane("v_add_f32", w.L + j, w.T + j) for j in range(w.nq)]
    for k in range(6):
        for sq in seqs: out.append(sq[k])
    for j in range(w.nq): out.append(V(f"v_rcp_f32 v{w.L+j}, v{w.L+j}"))
    out += [V(f"v_mbcnt_lo_u32_b32 v{w.tmp}, -1, 0"), V(f"v_mbcnt_hi_u32_b32 v{w.tmp}, -1, v{w.tmp}"), V(f"v_lshlrev_b32 v{w.tmp}, 4, v{w.tmp}")]
    return out
def epi_groups(w, s):
    G = []
    for j in range(w.nq):
        d = w.q(s, j)
        for half in range(2):
            a = w.o(2 * s + half, j)
            for r in range(4): G.append([V(f"v_mul_f32 v{a+r}, v{a+r}, v{w.L+j}")])
            G.append([V(f"v_cvt_pk_bf16_f32 v{d+2*half}, v{a}, v{a+1}")])
            G.append([V(f"v_cvt_pk_bf16_f32 v{d+2*half+1}, v{a+2}, v{a+3}")])
        G.append([S(f"s_add_u32 s{sT1}, s{sOst}, {s*10240}")] + dstore(4, d, w.tmp, sWS, f"s{sT1}", j * 1024, tag=('O', 0, True)))
    return G
def epi_fillers(w):
    n = w.nq
    rng = [(2 * n + 2, 4 * n + 2), (4 * n + 2, 6 * n + 2), (6 * n + 2, 8 * n), (8 * n, 8 * n)]
    return [([[i] for i in l_reduce(w)], 0, 2 * n + 1)] + [(epi_groups(w, s), rng[s][0], rng[s][1]) for s in range(4)]

def flat(G): return [i for g in G for i in g]
def one(L): return [[i] for i in L]

def dma_kv(w, kind, t, nxt_round, tag):
    srd_ = sK if kind == 'K' else sV
    voff = w.vK if kind == 'K' else w.vV
    n = kidx(t) if kind == 'K' else vidx(t)
    lds = item_slot(n)
    goff = t * 8192 + (262144 if nxt_round else 0)
    G = []
    for a in range(2):
        for seg in range(2):
            G.append([S(f"s_add_u32 m0, s{sLdsKV}, {lds + a*4096 + seg*2048 - seg*128}"),
                      S(f"s_add_u32 s{sT0}, s{sKVbase}, {goff + a*4096}"),
                      dma(voff, srd_, f"s{sT0}", seg * 128, Cfg.kv_pol, tag=tag)])
    return G
def rot_off(u, unit, base):
    if not Cfg.rot: return [S(f"s_add_u32 s{sT4}, s{base}, {u*unit}")]
    return [S(f"s_cmp_ge_u32 s{sRho}, {10-u}"), S(f"s_cselect_b32 s{sT4}, {u-10}, {u}"), S(f"s_add_u32 s{sT4}, s{sT4}, s{sRho}"),
            S(f"s_mul_i32 s{sT4}, s{sT4}, {unit}"), S(f"s_add_u32 s{sT4}, s{sT4}, s{base}")]
def dma_w(w, s, nxt_round, tag):
    lds = wslot(s)
    goff = (s & 1) * 32 * 8192 + (512 if nxt_round else 0)
    G = []
    for hh in range(2):
        for seg in range(2):
            G.append([S(f"s_add_u32 m0, s{sLdsKV}, {lds + hh*4096 + seg*2048 - seg*128}"),
                      S(f"s_add_u32 s{sT0}, s{sT4}, {goff + hh*32768}"),
                      dma(w.vW, sW, f"s{sT0}", seg * 128, tag=tag)])
    G[0] = rot_off(s >> 1, 64 * 8192, sWbase) + G[0]
    return G
def dma_x(w, u, tag):
    G = []
    for i in range(5):
        G.append([S(f"s_add_u32 m0, s{sLdsX}, {xbuf(u) + i*2048}"),
                  S(f"s_add_u32 s{sT0}, s{sT4}, {i*20480}"),
                  dma(w.vX, sX, f"s{sT0}", 0, tag=tag)])
    G[0] = rot_off(u, 128, sXbase) + G[0]
    return G
def touch_kv(w, kind):
    srd_, ptr = (sK, sTK) if kind == 'K' else (sV, sTV)
    return [[bload(1, w.dummy, w.vTch, srd_, f"s{ptr}", 0, Cfg.touch_pol, tag=('misc',)), S(f"s_add_u32 s{ptr}, s{ptr}, 4096")]]

NAMES = {}
for _t in range(16):
    NAMES[kidx(_t)] = ('K', _t); NAMES[vidx(_t)] = ('V', _t)
def first_use(kind, i):
    if kind == 'W': return i
    if kind == 'X': return 2 * i
    if kind == 'K': return 20 if i == 0 else 19 + i
    if kind == 'V': return 21 + i
    if kind == 'O': return 3
    if kind == 'P': return 35

def loader_schedule(w):
    sch = {i: [] for i in range(37)}
    r0 = lambda G, lab: [[S(f"s_cmp_lg_u32 s{sRound}, 0"), branch("s_cbranch_scc1", lab)] + flat(G) + [label(lab)]]
    sch[0] += r0(dma_w(w, 2, False, ('W', 2, 'cond')), "L_r0a") + dma_x(w, 1, ('X', 1, False)) + r0(dma_w(w, 3, False, ('W', 3, 'cond')), "L_r0b")
    sch[1] += dma_w(w, 4, False, ('W', 4, False)) + dma_x(w, 2, ('X', 2, False))
    sch[2] += dma_w(w, 5, False, ('W', 5, False))
    for s in range(NW, 20): sch[max(s - NW + 1, 3)] += dma_w(w, s, False, ('W', s, False))
    for u in range(NX, 10): sch[2 * (u - NX) + 2] += dma_x(w, u, ('X', u, False))
    if not Cfg.no_dma:
        first = {0: 17, 1: 15, 2: 18, 3: 16, 4: 19, 5: 20, 6: 20, 7: 20, 8: 18, 9: 19}
        for n in range(10): sch[first[n]] += dma_kv(w, *NAMES[n], False, NAMES[n] + (False,))
        for n in range(10, 33):
            if n not in NAMES: continue
            k, t = NAMES[n - 10]
            last = (20 + t) if k == 'K' else min(22 + t, 36)
            sch[last + 1] += dma_kv(w, *NAMES[n], False, NAMES[n] + (False,))
    for idx, ss in ((33, (2, 3)), (34, (0, 1))):
        for s_ in ss: sch[idx] += r0(dma_w(w, s_, True, ('W', s_, 'next')), f"L_r0w{s_}")
    w4first = lambda lab: [S(f"s_lshl_b32 s{sT1}, s{sRound}, 3"), S(f"s_add_u32 s{sT1}, s{sT1}, s{sWave}"), S(f"s_cmp_lg_u32 s{sT1}, 4"), branch("s_cbranch_scc1", lab)]
    sch[7] = [w4first("L_p0") + [S(f"s_lshl_b32 s{sT1}, s{sB}, 3"), V(f"v_mov_b32 v{w.tmp+2}, s{sT1}"), bload(1, w.oPoll, w.tmp + 2, sDBG, 0, 0, 'sc1', tag=('cond',)), label("L_p0")]] + sch[7]
    sch[14] += [w4first("L_m0") + [V(f"v_readfirstlane_b32 s{sT1}, v{w.oPoll}"), S(f"s_bfe_u32 s{sT2}, s{sT1}, 0x80010"), S(f"s_lshr_b32 s{sT1}, s{sT1}, 24"),
                 S(f"s_bcnt1_i32_b32 s{sT1}, s{sT1}"), S(f"s_lshl_b32 s{sT1}, s{sT1}, 8"), S(f"s_or_b32 s{sT1}, s{sT1}, s{sT2}"), S(f"s_cmp_eq_u32 s{sT1}, 0x1ff"),
                 S(f"s_cselect_b32 s{sT1}, {3 if Cfg.fast else 0}, 0"), V(f"v_mov_b32 v{w.tmp+1}, s{sT1}"), V(f"v_mov_b32 v{w.tmp+2}, {MODE_LDS}"),
                 raw(f"ds_write_b32 v{w.tmp+2}, v{w.tmp+1}"), label("L_m0")]]
    mr = mode_read(w.T)
    sch[17] = [mr[0]] + sch[17]; sch[18] = [mr[1]] + sch[18]
    w4last = lambda lab: [S(f"s_lshl_b32 s{sT1}, s{sRound}, 3"), S(f"s_add_u32 s{sT1}, s{sT1}, s{sWave}"), S(f"s_cmp_lg_u32 s{sT1}, 12"), branch("s_cbranch_scc1", lab)]
    sch[29] = [w4last("L_p1") + [V(f"v_mov_b32 v{w.tmp+2}, s{sFlag}"), bload(1, w.oPoll, w.tmp + 2, sDBG, 0, 0, 'sc1', tag=('cond',)), label("L_p1")]] + sch[29]
    sch[34] += [w4last("L_g1_back") + gate("L_g1", w.oPoll, w.tmp + 2, 0) + [label("L_g1_back")]]
    for u in range(2):
        alt = flat(dma_x(w, 0, ('X', 0, 'next'))) if u == 0 else []
        sch[35 + u] += [[S(f"s_cmp_lg_u32 s{sRound}, 0"), branch("s_cbranch_scc1", f"L_opre{u}")] + alt + [label(f"L_opre{u}_back"), I("; opre", 'comment', tag=('phantom', 0 if Cfg.o_skip else 10))]]
    if not Cfg.no_dma:
        for i, idx in enumerate(sorted(Cfg.touch_at)): sch[idx] += touch_kv(w, 'KV'[i & 1])
    return sch

def lane_id(r): return [V(f"v_mbcnt_lo_u32_b32 v{r}, -1, 0"), V(f"v_mbcnt_hi_u32_b32 v{r}, -1, v{r}")]
def lane_setup(w):
    t = w.F + 8
    lane, i16, g, a, b, c = t, t + 1, t + 2, t + 3, t + 4, t + 5
    o = lane_id(lane) + [V(f"v_and_b32 v{i16}, 15, v{lane}"), V(f"v_lshrrev_b32 v{g}, 4, v{lane}")]
    o += [V(f"v_lshrrev_b32 v{a}, 1, v{i16}"), V(f"v_xor_b32 v{a}, v{a}, v{g}"), V(f"v_lshlrev_b32 v{a}, 4, v{a}"),
          V(f"v_lshl_add_u32 v{w.aN}, v{i16}, 7, v{a}"), V(f"v_xor_b32 v{w.aN+1}, 64, v{w.aN}")]
    o += [V(f"v_lshrrev_b32 v{a}, 2, v{lane}"), V(f"v_and_b32 v{b}, 6, v{a}"),
          V(f"v_bfe_u32 v{c}, v{lane}, 1, 1"), V(f"v_xor_b32 v{b}, v{b}, v{c}"), V(f"v_lshlrev_b32 v{b}, 4, v{b}"),
          V(f"v_lshl_add_u32 v{b}, v{a}, 7, v{b}"),
          V(f"v_and_b32 v{c}, 1, v{lane}"), V(f"v_lshl_add_u32 v{w.aT}, v{c}, 3, v{b}")]
    for dq in range(1, 4): o.append(V(f"v_xor_b32 v{w.aT+dq}, {dq<<5}, v{w.aT}"))
    return o
def voff_setup(w):
    t = w.F + 16
    r8, p, a, b, row = t, t + 1, t + 2, t + 3, t + 4
    o = [V(f"v_bfe_u32 v{row}, v0, 3, 4"),
         V(f"v_and_b32 v{p}, 7, v0"),
         V(f"v_lshrrev_b32 v{a}, 1, v{row}"), V(f"v_xor_b32 v{a}, v{a}, v{p}"), V(f"v_lshlrev_b32 v{a}, 4, v{a}"),
         V(f"v_and_b32 v{b}, 6, v{row}"), V(f"v_xor_b32 v{b}, v{b}, v{p}"), V(f"v_lshlrev_b32 v{b}, 4, v{b}"),
         V(f"v_and_b32 v{p}, 12, v{row}"), V(f"v_add_u32 v{p}, v{p}, v{row}"), V(f"v_lshl_add_u32 v{w.vW}, v{p}, 13, v{b}"),
         V(f"v_mul_u32_u24 v{p}, 1280, v{row}"), V(f"v_add_u32 v{w.vX}, v{p}, v{a}")]
    o2 = [V(f"v_lshl_add_u32 v{w.vK}, v{row}, 8, v{a}"), V(f"v_lshl_add_u32 v{w.vV}, v{row}, 8, v{b}"),
          V(f"v_and_b32 v{p}, 63, v0"), V(f"v_lshlrev_b32 v{p}, 5, v{p}"), V(f"v_bfe_u32 v{r8}, v0, 6, 1"), V(f"v_lshl_add_u32 v{w.vTch}, v{r8}, 11, v{p}")]
    return o, o2

def add_addr(regs_, delta):
    if delta == 0: return []
    if isinstance(delta, str): return [V(f"v_add_u32 v{r}, {delta}, v{r}") for r in regs_]
    return [V(f"v_add_u32 v{r}, {delta & 0xffffffff:#x}, v{r}") for r in regs_]

def finish(code, pending=None, pre=()):
    c, q = add_lgkm_waits(code, pending)
    return fix_hazards(c, pre), q

def loop_finish(B, q, before):
    B1, q1 = finish(B, q, pre=before[-12:])
    B2, q2 = finish(B, q1, pre=B1[-12:])
    B3, q3 = finish(B, q2, pre=B2[-12:])
    assert emit(B2) == emit(B3) and q2 == q3
    assert len(q) <= len(q2) and q == q2[len(q2) - len(q):], "entry LDS queue must be a suffix of the steady-state queue"
    B4 = fix_hazards(B2, before[-12:])
    assert emit(fix_hazards(B4, B4[-12:])) == emit(B4)
    return B4, q2

def srd(base, ptr, nbytes):
    return [S(f"s_mov_b32 s{base}, s{ptr}"), S(f"s_mov_b32 s{base+1}, s{ptr+1}"), S(f"s_mov_b32 s{base+2}, {nbytes}"), S(f"s_mov_b32 s{base+3}, 0x20000")]

def round_advance():
    return [S(f"s_add_u32 s{sKVbase}, s{sKVbase}, 262144"), S(f"s_add_u32 s{sWbase}, s{sWbase}, 512"),
            S(f"s_add_u32 s{sOst}, s{sOst}, {8*10240}"), S(f"s_add_u32 s{sRound}, s{sRound}, 1"), S(f"s_cmp_lt_u32 s{sRound}, 2")]

def flag_add(t, val, lab):
    return [V(f"v_mov_b32 v{t}, {val}"), V(f"v_mov_b32 v{t+1}, s{sFlag}"), S("s_mov_b64 exec, 1"),
            I(f"buffer_atomic_or v{t}, v{t+1}, s[{sDBG}:{sDBG+3}], 0 offen sc1", 'vstore', rd=regs(t, 2) | regs(sDBG, 4, 's'), tag=('cond',)),
            S("s_mov_b64 exec, -1"), label(lab)]

def common_scalars():
    C = srd(sK, 58, 134217728) + srd(sV, 60, 134217728) + srd(sWO, 64, 5242880) + srd(sOUT, 66, 6553600) + srd(sDBG, 68, 256) \
        + srd(sWS, 70, (128 << 20) if Cfg.stamps else WS_BYTES)
    C += [S(f"s_lshr_b32 s{sT2}, s{sWbase}, 8"),
          S(f"s_lshl_b32 s{sT3}, s{sB}, 5"), S(f"s_add_u32 s{sT3}, s{sT3}, s{sT2}"), S(f"s_lshl_b32 s{sKVbase}, s{sT3}, 17"),
          S(f"s_mul_i32 s{sOst}, s{sT3}, 40960"),] + ([S(f"s_and_b32 s{sKVbase}, s{sKVbase}, 0x20000")] if Cfg.kv_same else []) + [
          S(f"s_lshl_b32 s{sFlag}, s{sB}, 1"), S(f"s_lshr_b32 s{sT2}, s{sG}, 2"), S(f"s_add_u32 s{sFlag}, s{sFlag}, s{sT2}"), S(f"s_lshl_b32 s{sFlag}, s{sFlag}, 2"),
          S(f"s_mov_b32 s{sRound}, 0"), S(f"s_mov_b32 s{sMode}, 0"), S(f"s_mov_b32 s{sQS}, {f2u(QSCALE)}"), S(f"s_mov_b32 s{sC16}, {WTAB:#x}"), S(f"s_mov_b32 s{sC32}, {2*SLOT}"),
          S(f"s_mov_b32 s{sCX}, 20480"), S(f"s_mov_b32 s{sTK}, s{sKVbase}"), S(f"s_mov_b32 s{sTV}, s{sKVbase}")]
    if Cfg.stamps:
        C += [S(f"s_lshl_b32 s{sStamp+2}, s2, 3"), S(f"s_add_u32 s{sStamp+2}, s{sStamp+2}, s{sWave}"), S(f"s_lshl_b32 s{sStamp+2}, s{sStamp+2}, 10"),
              S(f"s_add_u32 s{sStamp+2}, s{sStamp+2}, {DBG_OFF}")]
    return C
def wave_addr0(w, j0mul, j0add):
    aN = [w.aN, w.aN + 1]; aT = [w.aT + i for i in range(4)]
    C = [S(f"s_bfe_u32 s{sT0}, s{sWave}, 0x10001"), S(f"s_lshl_b32 s{sT0}, s{sT0}, 13"),
         S(f"s_and_b32 s{sT1}, s{sWave}, 1"), S(f"s_mul_i32 s{sT1}, s{sT1}, {j0mul*1024}"), S(f"s_add_u32 s{sT1}, s{sT1}, {j0add*1024}"),
         S(f"s_add_u32 s{sOst}, s{sOst}, s{sT1}"), S(f"s_lshl_b32 s{sT1}, s{sT1}, 1"),
         S(f"s_sub_u32 s{sKX}, s{sT0}, s{sT1}"),
         S(f"s_add_u32 s{sT0}, s{sT0}, {wslot(0)}"), S(f"s_add_u32 s{sT1}, s{sT1}, {xbuf(0)}")]
    return C + add_addr(aT, f"s{sT0}") + add_addr(aN, f"s{sT1}")

def gen_w3():
    w = Wave(3); nm = 24
    st = lambda k, real=False: stamp(w.tmp + 1, k, real)
    aN = [w.aN, w.aN + 1]; aT = [w.aT + i for i in range(4)]
    C = [label("L_w3"), raw("s_waitcnt lgkmcnt(0)")]
    if Cfg.codetouch:
        t = w.tmp + 1
        C += [raw(f"s_getpc_b64 s[{sRet}:{sRet+1}]"), label("L_pc0"),
              S(f"s_sub_u32 s{sRet}, s{sRet}, L_pc0-KSTART"), S(f"s_subb_u32 s{sRet+1}, s{sRet+1}, 0"),
              S(f"s_lshr_b32 s{sT0}, s2, 3"), S(f"s_lshl_b32 s{sT0}, s{sT0}, 2"), S(f"s_add_u32 s{sT0}, s{sT0}, s{sWave}"), S(f"s_lshl_b32 s{sT0}, s{sT0}, 7"),
              V(f"v_and_b32 v{t}, 7, v0"), V(f"v_lshlrev_b32 v{t}, 14, v{t}"), V(f"v_add_u32 v{t}, s{sT0}, v{t}"),
              V(f"v_min_u32 v{t}, KEND-KSTART-4, v{t}"),
              I(f"global_load_dword v{w.dummy}, v{t}, s[{sRet}:{sRet+1}]", 'vload', wr=regs(w.dummy), rd=regs(t) | regs(sRet, 2, 's'))]
    if Cfg.warm0:
        t = w.tmp + 1
        C += srd(sW, 62, 5242880) + srd(sX, 56, 6553600)
        C += [V(f"v_and_b32 v{t}, 63, v0"), V(f"v_lshlrev_b32 v{t}, 7, v{t}"),
              S(f"s_mul_i32 s{sT0}, s{sB}, 204800"), S(f"s_mul_i32 s{sT1}, s{sG}, 25600"), S(f"s_add_u32 s{sT0}, s{sT0}, s{sT1}"),
              S(f"s_mul_i32 s{sT1}, s{sWave}, 5760"), S(f"s_add_u32 s{sT0}, s{sT0}, s{sT1}"),
              V(f"v_bfe_u32 v{t+1}, v0, 3, 3"), V(f"v_min_u32 v{t+1}, 4, v{t+1}"), V(f"v_lshlrev_b32 v{t+1}, 13, v{t+1}"),
              V(f"v_and_b32 v{w.T}, 7, v0"), V(f"v_lshl_add_u32 v{t+1}, v{w.T}, 7, v{t+1}"),
              S(f"s_lshl_b32 s{sT1}, s{sB}, 2"), S(f"s_add_u32 s{sT1}, s{sT1}, s{sWave}"), S(f"s_mul_i32 s{sT1}, s{sT1}, {5*8192}"),
              S(f"s_lshl_b32 s{sT2}, s{sG}, 10"), S(f"s_add_u32 s{sT1}, s{sT1}, s{sT2}"),
              barrier(), bload(1, w.dummy, t + 1, sW, f"s{sT1}"), bload(1, w.dummy, t, sX, f"s{sT0}")]
    C += common_scalars()
    t = w.tmp + 1
    C += [S(f"s_cmp_lg_u32 s{sWave}, 0"), branch("s_cbranch_scc1", "L_noxcc"), raw(f"s_getreg_b32 s{sT0}, hwreg(HW_REG_XCC_ID, 0, 3)"),
          S(f"s_lshl_b32 s{sT0}, 0x1000000, s{sT0}"), S(f"s_lshl_b32 s{sT1}, 0x10000, s{sG}"), S(f"s_or_b32 s{sT0}, s{sT0}, s{sT1}"), S(f"s_lshl_b32 s{sT1}, s{sB}, 3"),
          V(f"v_mov_b32 v{t}, s{sT0}"), V(f"v_mov_b32 v{t+1}, s{sT1}"), S("s_mov_b64 exec, 1"),
          I(f"buffer_atomic_or v{t}, v{t+1}, s[{sDBG}:{sDBG+3}], 0 offen sc1", 'vstore', rd=regs(t, 2) | regs(sDBG, 4, 's')),
          S("s_mov_b64 exec, 0xff"), V(f"v_mul_u32_u24 v{t}, {SLAB}, v0"), V(f"v_mov_b32 v{t+1}, 0"), S(f"s_mul_i32 s{sT0}, s2, {XCH_WG}"), S(f"s_add_u32 s{sT0}, s{sT0}, {XCH_OFF + 7168}"),
          bstore(1, t + 1, t, sWS, f"s{sT0}", 0, 'sc1'),
          S("s_mov_b64 exec, -1"), label("L_noxcc")]
    C += lane_setup(w) + wave_addr0(w, 3, 0)
    C, _ = finish(C)
    out = C
    def wadv():
        return [S(f"s_bfe_i32 s{sD}, s{sC16}, s{sCnt}"), S(f"s_lshl_b32 s{sD}, s{sD}, 14"), S(f"s_add_u32 s{sCnt}, s{sCnt}, 4"),
                S(f"s_cmp_eq_u32 s{sCnt}, {0x40000 + 4*NW:#x}"), S(f"s_cselect_b32 s{sCnt}, 0x40000, s{sCnt}")] + add_addr(aT, f"s{sD}")
    def xadv():
        return [S(f"s_add_u32 s{sCnt2}, s{sCnt2}, 1"), S(f"s_cmp_eq_u32 s{sCnt2}, {NX}"), S(f"s_cselect_b32 s{sXd}, {(-(NX-1)*20480) & 0xffffffff:#x}, s{sCX}"),
                S(f"s_cselect_b32 s{sCnt2}, 0, s{sCnt2}")] + add_addr(aN, f"s{sXd}")
    def qstage(s, zero=False, extra=()):
        p = s & 1
        adv_ = wadv() + (xadv() if p == 1 else []) + list(extra)
        L = [barrier()] + spread(q_mfmas(w, 1 - p, zero), [(q_reads(w, p, p), 0, 16), (one(adv_), 17, 22)]) + [wait(lgkm=0)]
        k = [i for i, c in enumerate(L) if c.kind == 'mfma'][Cfg.qcut]
        return L[:k], L[k:]
    C = [label("L_w3_round")] + st(0) + [barrier()] + st(1)
    C += flat(q_reads(w, 0, 0))
    C += add_addr(aT, wslot(1) - wslot(0))
    C += [S(f"s_mov_b32 s{sCnt}, 0x40004"), S(f"s_mov_b32 s{sCnt2}, {(xbuf(0)-NW*SLOT)//20480}"), S(f"s_mov_b32 s{sLoop}, 8")]
    C += [wait(lgkm=0)]
    h1, t1 = qstage(1, zero=True); he, te = qstage(2); ho, to = qstage(3)
    C += h1 + t1 + [wait(vm=0)] + he
    C, q = finish(C); out += C
    B = [label("L_w3_q")] + te + ho + to + he
    B += [S(f"s_sub_u32 s{sLoop}, s{sLoop}, 1"), S(f"s_cmp_lg_u32 s{sLoop}, 0"), branch("s_cbranch_scc1", "L_w3_q")]
    Bc, q2 = loop_finish(B, q, out)
    out += Bc
    curT = wslot(20); curN = xbuf(10)
    h19, t19 = qstage(19, extra=add_addr(aN, f"s{sKX}") + add_addr(aN, item_slot(kidx(0)) - curN) + add_addr(aT, item_slot(vidx(0)) - curT))
    mr = mode_read(w.T)
    C = mr[0] + te + mr[1] + h19 + t19
    C += st(40) + [barrier()] + st(41)
    k0 = frags_QK(w, 'zero')
    k1 = frags_QK(w, 'negm', pre=add_addr(aN, item_slot(kidx(1)) - item_slot(kidx(0))))
    w.fpos = 0
    C += stream(w, k0, 0, k1, lead=q_mfmas(w, 1, False), fillers=q_pack_fillers(w))
    C += first_max(w)
    C += st(42) + [barrier()] + st(43)
    C += flat(softmax_groups(w, 0)) + l_accum(w, first=True)
    v0 = frags_PV(w, 0, zero=True)
    if Cfg.warm:
        t = w.tmp + 1
        C += [S(f"s_cmp_lg_u32 s{sRound}, 0"), branch("s_cbranch_scc1", "L_nowarm")] + lane_id(t) + [V(f"v_min_u32 v{t}, 39, v{t}"), V(f"v_lshlrev_b32 v{t}, 7, v{t}"),
              S(f"s_lshl_b32 s{sT0}, s2, 2"), S(f"s_add_u32 s{sT0}, s{sT0}, s{sWave}"), S(f"s_mul_i32 s{sT0}, s{sT0}, 5120"),
              bload(1, w.dummy, t, sWO, f"s{sT0}")]
        C += [branch("s_branch", "L_warm_done"), label("L_nowarm")]
        if Cfg.codetouch2:
            C += [raw(f"s_getpc_b64 s[{sRet}:{sRet+1}]"), label("L_pc1"),
                  S(f"s_add_u32 s{sRet}, s{sRet}, L_o-L_pc1"), S(f"s_addc_u32 s{sRet+1}, s{sRet+1}, 0")] + lane_id(t) + [
                  S(f"s_lshl_b32 s{sT0}, s{sWave}, 13"), V(f"v_lshlrev_b32 v{t}, 7, v{t}"), V(f"v_add_u32 v{t}, s{sT0}, v{t}"), V(f"v_min_u32 v{t}, KEND-L_o-4, v{t}"),
                  I(f"global_load_dword v{w.dummy}, v{t}, s[{sRet}:{sRet+1}]", 'vload', wr=regs(w.dummy), rd=regs(t) | regs(sRet, 2, 's'))]
        C += [label("L_warm_done")]
    C += [S(f"s_mov_b32 s{sKpos}, {item_slot(kidx(1))}"), S(f"s_mov_b32 s{sVpos}, {item_slot(vidx(0))}"), S(f"s_mov_b32 s{sLoop}, 7")]
    def adv(pos, rr):
        return [S(f"s_cmp_ge_u32 s{pos}, {LDS_BYTES - 2*SLOT}"), S(f"s_cselect_b32 s{sD}, {(2*SLOT - LDS_BYTES) & 0xffffffff:#x}, s{sC32}"),
                S(f"s_add_u32 s{pos}, s{pos}, s{sD}")] + add_addr(rr, f"s{sD}")
    def pv(par): return frags_PV(w, par, pre=adv(sVpos, aT))
    def qk(): return frags_QK(w, 'negm', pre=adv(sKpos, aN))
    E_ = 8 - Cfg.late
    def sm_part(late, par, extra=()):
        G = softmax_groups(w, par) + [check_cmp(w)]
        nl = 3 * len(late)
        cut = int(len(G) * Cfg.smpure) if Cfg.late < 8 else 0
        return flat(G[:cut]) + stream(w, late, Cfg.LA, qk(), fillers=[(G[cut:], 0, max(nl - Cfg.smend, 1))] + list(extra)) + check_branch(w, par)
    C += stream(w, k1 + v0[:E_], Cfg.LA, v0[E_:] + qk())
    C += st(44) + [barrier()] + st(45)
    C += sm_part(v0[E_:], 1)
    C, q = finish(C, q2, pre=out[-12:]); out += C
    B = [label("L_w3_a")]
    for par in (1, 0):
        B += stream(w, qk() + pv(par)[:E_], Cfg.LA, pv(par)[E_:] + qk(), fillers=[(one(l_accum(w)), 4, 10)])
        B += [barrier()]
        B += sm_part(pv(par)[E_:], 1 - par)
    B += [S(f"s_sub_u32 s{sLoop}, s{sLoop}, 1"), S(f"s_cmp_lg_u32 s{sLoop}, 0"), branch("s_cbranch_scc1", "L_w3_a")]
    Bc, q2 = loop_finish(B, q, out)
    out += Bc
    C = st(74) + l_accum(w) + mode_vcc()
    C += stream(w, pv(1), 0, [], fillers=epi_fillers(w))
    C += st(75) + st(77, True)
    curT = item_slot(vidx(15)); curN = item_slot(kidx(16))
    C += add_addr(aT, wslot(0) - curT) + add_addr(aN, xbuf(0) - curN) + [V(f"v_subrev_u32 v{r}, s{sKX}, v{r}") for r in aN]
    C += round_advance()
    C += [branch("s_cbranch_scc1", "L_w3_round"), branch("s_branch", "L_o")]
    C, q = finish(C, q2, pre=out[-12:]); out += C
    assert not q
    return out, rare_routine(w, 0) + rare_routine(w, 1)

def gen_w2():
    w = Wave(2); nm = 16
    st = lambda k, real=False: stamp(w.tmp + 1, k, real)
    aN = [w.aN, w.aN + 1]; aT = [w.aT + i for i in range(4)]
    sch = loader_schedule(w)
    items = lambda idx: sch[idx]
    vo1, vo2 = voff_setup(w)
    pro = vo1 + [raw("s_waitcnt lgkmcnt(0)")] + srd(sW, 62, 5242880) + srd(sX, 56, 6553600)
    pro += flat(dma_w(w, 0, False, ('W', 0, True))) + flat(dma_x(w, 0, ('X', 0, True))) + flat(dma_w(w, 1, False, ('W', 1, True))) + ([barrier()] if Cfg.warm0 else [])
    pro += vo2 + [V(f"v_mov_b32 v{w.oVoff}, 0"), V(f"v_mov_b32 v{w.oPoll}, 0")] + common_scalars() + lane_setup(w) + wave_addr0(w, 2, 6)
    C = [label("L_w2_round")] + st(76, True)
    def bar(idx, lgkm=None):
        b = wait(vm=63, lgkm=lgkm); b.tag = (('need', idx), lgkm)
        return st(2 * idx) + [b, barrier()] + st(2 * idx + 1)
    prio = lambda p: [raw(f"s_setprio {p}")] if Cfg.prio == 2 else []
    curT = wslot(0); curN = xbuf(0)
    C += prio(1)
    for s in range(20):
        if s < 19:
            newT = wslot(s + 1); newN = xbuf((s + 1) >> 1)
            adv_ = add_addr(aT, newT - curT) + add_addr(aN, newN - curN); curT, curN = newT, newN
        else:
            adv_ = add_addr(aN, f"s{sKX}") + add_addr(aN, item_slot(kidx(0)) - curN) + add_addr(aT, item_slot(vidx(0)) - curT)
        C += bar(s, lgkm=0)
        ex = []
        if s == 3:
            ex = [([[S(f"s_lshl_b32 s{sT1}, s{sRound}, 3"), S(f"s_add_u32 s{sT1}, s{sT1}, s{sWave}"), S(f"s_cmp_lg_u32 s{sT1}, 12"),
                     branch("s_cbranch_scc1", "L_nofl1"), S(f"s_and_b32 s{sT1}, s{sG}, 3"), S(f"s_lshl_b32 s{sT1}, 1, s{sT1}")] + flag_add(w.tmp + 1, f"s{sT1}", "L_nofl1")], 11, 12)]
        if s == 0: C += flat(q_reads(w, 0, 0)) + flat(items(0)) + adv_
        else: C += spread(q_mfmas(w, (s - 1) & 1, s == 1), [(q_reads(w, s & 1, s & 1), 0, 10), (items(s), 0, nm - 2), (one(adv_), 11, 15)] + ex)
    C += bar(20, lgkm=0)
    def qk(t, fc='negm'): return frags_QK(w, fc, pre=add_addr(aN, item_slot(kidx(t)) - item_slot(kidx(t - 1))) if t else [])
    def pv(t): return frags_PV(w, t & 1, zero=(t == 0), pre=add_addr(aT, item_slot(vidx(t)) - item_slot(vidx(t - 1))) if t else [])
    w.fpos = 0
    C += stream(w, qk(0, 'zero'), 0, qk(1), lead=q_mfmas(w, 1, False), fillers=[(items(20), 0, 2 * nm)] + q_pack_fillers(w))
    C += first_max(w)
    C += flat(softmax_groups(w, 0))
    for t in range(15):
        nx = qk(t + 2) if t < 14 else []
        if Cfg.pp:
            C += prio(Cfg.pp_a)
            C += bar(21 + t)
            C += stream(w, qk(t + 1) + pv(t), Cfg.LA, nx, fillers=[(one(l_accum(w, first=(t == 0))), 3, 8)])
            C += prio(Cfg.pp_b)
            G = softmax_groups(w, (t + 1) & 1) + [check_cmp(w)]
            sm = [g for g in G]
            it_ = items(21 + t)
            base = [I("; g", 'comment') for _ in sm]
            merged = spread(base, [(it_, 0, len(sm))])
            k = 0
            for c in merged:
                if c.kind == 'comment' and c.text == "; g": C += sm[k]; k += 1
                else: C.append(c)
            C += check_branch(w, (t + 1) & 1)
        else:
            C += prio(0)
            C += bar(21 + t)
            C += stream(w, qk(t + 1), Cfg.LA, pv(t), fillers=[(items(21 + t), 0, nm), (one(l_accum(w, first=(t == 0))), 3, 8)])
            C += prio(1)
            C += stream(w, pv(t), Cfg.LA, nx, fillers=sm_fillers(w, (t + 1) & 1, 2))
            C += check_branch(w, (t + 1) & 1)
    C += prio(0)
    C += bar(36)
    C += flat(items(36))
    C += st(74) + l_accum(w) + mode_vcc()
    C += stream(w, pv(15), 0, [], fillers=epi_fillers(w))
    C += st(75) + st(77, True)
    curT = item_slot(vidx(15)); curN = item_slot(kidx(15))
    C += add_addr(aT, wslot(0) - curT) + add_addr(aN, xbuf(0) - curN) + [V(f"v_subrev_u32 v{r}, s{sKX}, v{r}") for r in aN]
    C += round_advance()
    C += [branch("s_cbranch_scc1", "L_w2_round"), branch("s_branch", "L_o")]
    VM = ('dma', 'vload', 'vstore')
    def resolve(prefix, first):
        res = {}
        q = [(c.tag[0], c.tag[1]) if len(c.tag) == 3 and c.tag[2] in (True, 'next') else None for c in prefix if c.kind in VM and c.tag != ('cond',)]
        for c in C:
            if c.kind in VM:
                if c.tag == ('cond',): continue
                if c.tag[-1] in ('cond', 'next') and not first: continue
                q.append((c.tag[0], c.tag[1]) if len(c.tag) == 3 and c.tag[2] in (False, 'cond') else None)
            elif c.kind == 'comment' and c.tag and c.tag[0] == 'phantom':
                if not first: q += [None] * c.tag[1]
            elif c.kind == 'wait' and isinstance(c.tag[0], tuple):
                idx = c.tag[0][1]
                last = -1
                for k, it in enumerate(q):
                    if it is not None and first_use(it[0], it[1]) <= idx: last = k
                res[idx] = min(63, len(q) - 1 - last)
        return res
    r1 = resolve(pro, True); r2 = resolve(C, False)
    C2 = []
    for c in C:
        if c.kind == 'wait' and isinstance(c.tag[0], tuple):
            idx = c.tag[0][1]; n = min(r1[idx], r2[idx]); lg = c.tag[1]
            if abs(r1[idx] - r2[idx]) > 1:
                C2 += [S(f"s_cmp_eq_u32 s{sRound}, {0 if r1[idx] > r2[idx] else 1}"), branch("s_cbranch_scc1", f"L_rw{idx}"), wait(vm=n), label(f"L_rw{idx}")]
                n = max(r1[idx], r2[idx])
            c.text = f"s_waitcnt vmcnt({n})" + (f" lgkmcnt({lg})" if lg is not None else ""); c.tag = (n, lg)
        C2.append(c)
    C = C2
    pro, _ = finish(pro)
    C, q = finish(C, [], pre=pro[-12:])
    assert not q
    return pro + C + gen_opre(w), rare_routine(w, 0) + rare_routine(w, 1)

OSLOT = 40960
def oslot(u): return ((u + 2) & 3) * OSLOT
def o_voff(nh, VOFF, lane, a, b):
    if nh == 0: return [V(f"v_lshlrev_b32 v{VOFF}, 4, v{lane}")]
    return [V(f"v_lshrrev_b32 v{a}, 2, v{lane}"), V(f"v_mul_u32_u24 v{a}, 1280, v{a}"), V(f"v_bfe_u32 v{b}, v{lane}, 4, 1"), V(f"v_lshlrev_b32 v{b}, 1, v{b}"),
            V(f"v_and_b32 v{VOFF}, 3, v{lane}"), V(f"v_xor_b32 v{VOFF}, v{VOFF}, v{b}"), V(f"v_lshl_add_u32 v{VOFF}, v{VOFF}, 4, v{a}")]
def o_base(nh, sBase, sLd):
    C = [S(f"s_and_b32 s{sLd}, s{sWave}, 1"), S(f"s_mul_i32 s{sLd}, s{sLd}, 5120")]
    if nh == 0: C += [S(f"s_mul_i32 s{sBase}, s{sB}, {128*10240}"), S(f"s_add_u32 s{sBase}, s{sBase}, s{sLd}")]
    else: C += [S(f"s_lshl_b32 s{sBase}, s{sLd}, 2"), S(f"s_and_b32 s{sT2}, s{sG}, 3"), S(f"s_mul_i32 s{sT2}, s{sT2}, 320"), S(f"s_add_u32 s{sBase}, s{sBase}, s{sT2}"),
                S(f"s_add_u32 s{sLd}, s{sLd}, 10240")]
    step = 10240 if nh == 0 else 40960
    C += [S(f"s_add_u32 s{sT3}, s{sG}, s{sB}")] if Cfg.orot else [S(f"s_mov_b32 s{sT3}, 0")]
    for u in range(4):
        C += [S(f"s_add_u32 s{sT2}, s{sT3}, {u}"), S(f"s_and_b32 s{sT2}, s{sT2}, 3"), S(f"s_mul_i32 s{sOoff+u}, s{sT2}, {step}")]
    return C
def o_dma(nh, u, VOFF, sSo, sLd, goff=0, loff=0):
    step = 10240 if nh == 0 else 40960
    G = []
    if Cfg.o_skip & (1 << nh): return G
    for i in range(5):
        if nh == 0:
            imm = (i & 3) * 1024; ex = (i >> 2) * 4096
            g = [S(f"s_add_u32 m0, s{sLd}, {oslot(u) + ex + loff}"), S(f"s_add_u32 s{sT0}, s{sSo}, s{sOoff+u}")] + ([S(f"s_add_u32 s{sT0}, s{sT0}, {ex + goff}")] if ex + goff else []) if imm == 0 else []
            G.append(g + [dma(VOFF, sWS, f"s{sT0}", imm, Cfg.old_pol)])
        else:
            g = [S(f"s_add_u32 m0, s{sLd}, {oslot(u) + i*1024 - i*64 + loff}")]
            if i == 0: g += [S(f"s_add_u32 s{sT0}, s{sSo}, s{sOoff+u}")] + ([S(f"s_add_u32 s{sT0}, s{sT0}, {goff}")] if goff else [])
            G.append(g + [dma(VOFF, sWO, f"s{sT0}", i * 64)])
    return G
def gate(lab, POLL, vfl, shift):
    return [V(f"v_readfirstlane_b32 s{sT2}, v{POLL}"), S(f"s_bfe_u32 s{sT2}, s{sT2}, {0x40000 + shift:#x}"), S(f"s_cmp_lg_u32 s{sT2}, 15"),
            branch("s_cbranch_scc1", lab)]
def spin(lab, POLL, vfl, shift, back):
    return [label(lab), bload(1, POLL, vfl, sDBG, 0, 0, 'sc1'), S(f"s_sub_u32 s{sCnt}, s{sCnt}, 1"), S(f"s_cmp_lt_i32 s{sCnt}, 0"), branch("s_cbranch_scc1", back),
            wait(vm=0), V(f"v_readfirstlane_b32 s{sT2}, v{POLL}"), S(f"s_bfe_u32 s{sT2}, s{sT2}, {0x40000 + shift:#x}"), S(f"s_cmp_eq_u32 s{sT2}, 15"),
            branch("s_cbranch_scc1", back), raw(f"s_sleep {Cfg.xsleep}"), branch("s_branch", lab)]

def gen_opre(w):
    sSo, sLd = sTK, sTV
    C = []
    for u in range(2):
        C += [label(f"L_opre{u}"), S(f"s_bitcmp1_b32 s{sWave}, 1"), branch("s_cbranch_scc1", f"L_opre{u}_1")]
        for nh in range(2):
            step = 10240 if nh == 0 else 40960
            B = [label(f"L_opre{u}_{nh}")]
            if u == 0:
                t = w.tmp + 1
                B += lane_id(t) + o_voff(nh, w.oVoff, t, w.dummy, w.vTch) + o_base(nh, sSo, sLd)
                B += [S(f"s_and_b32 s{sT3}, s{sG}, 4"), S(f"s_mul_i32 s{sT3}, s{sT3}, {16*step}"), S(f"s_add_u32 s{sSo}, s{sSo}, s{sT3}")]
            for ks in range(2): B += flat(o_dma(nh, u, w.oVoff, sSo, sLd, goff=ks * 4 * step, loff=ks * 20480))
            B += [branch("s_branch", f"L_opre{u}_back")]
            C += fix_hazards(B)
    C += fix_hazards([label("L_g1"), S(f"s_mov_b32 s{sCnt}, 0x8000"), V(f"v_mov_b32 v{w.tmp+2}, s{sFlag}")] + spin("L_g1_spin", w.oPoll, w.tmp + 2, 0, "L_g1_back"))
    return C

def gen_o():
    ACC = 0; SET = [100, 140]
    aB, aA0, aA1 = 180, 182, 184
    VOFF, POLL, VFL, T, L16, POLL2 = 186, 187, 188, 190, 196, 198
    sSo, sHi, sNeed, sLd, sBase, sKs, sNq = 36, 37, 38, 39, 40, 43, 44
    st = lambda k, real=False: stamp(T, k, real)
    def acc(t): return ACC + 4 * t
    def fB(s_, jj): return SET[s_] + 4 * jj
    def fA(s_, nn): return SET[s_] + 20 + 4 * nn
    C = [label("L_o")] + st(80)
    if Cfg.prio: C += [raw("s_setprio 0")]
    lane = T; a = T + 1; b = T + 2
    C += lane_id(lane) + [V(f"v_lshlrev_b32 v{L16}, 4, v{lane}")]
    C += [S(f"s_lshr_b32 s{sKs}, s{sWave}, 2"), S(f"s_mul_i32 s{sT0}, s{sKs}, 20480"), S(f"s_and_b32 s{sT1}, s{sWave}, 1"), S(f"s_mul_i32 s{sT1}, s{sT1}, 5120"),
          S(f"s_add_u32 s{sT1}, s{sT0}, s{sT1}"),
          V(f"v_add_u32 v{aB}, s{sT1}, v{L16}"), V(f"v_add_u32 v{aB+1}, {2*OSLOT}, v{aB}"),
          V(f"v_lshrrev_b32 v{a}, 2, v{lane}"), V(f"v_bfe_u32 v{b}, v{lane}, 4, 1"), V(f"v_lshlrev_b32 v{b}, 5, v{b}"), V(f"v_lshl_add_u32 v{b}, v{a}, 6, v{b}"),
          V(f"v_and_b32 v{a}, 3, v{lane}"), V(f"v_lshl_add_u32 v{b}, v{a}, 3, v{b}"),
          S(f"s_add_u32 s{sT1}, s{sT0}, 10240"), V(f"v_add_u32 v{aA0}, s{sT1}, v{b}"), V(f"v_xor_b32 v{aA1}, 32, v{aA0}"),
          V(f"v_add_u32 v{aA0+1}, {2*OSLOT}, v{aA0}"), V(f"v_add_u32 v{aA1+1}, {2*OSLOT}, v{aA1}"),
          V(f"v_mov_b32 v{VFL}, s{sFlag}"), V(f"v_xor_b32 v{VFL+1}, 4, v{VFL}"), V(f"v_mov_b32 v{POLL}, 0"), V(f"v_mov_b32 v{POLL2}, 0"), S(f"s_and_b32 s{sNq}, s{sG}, 3"), S(f"s_mov_b32 s{sHi}, 0"), S(f"s_mov_b32 s{sNeed}, 0"),
          S(f"s_mov_b32 s{sCnt}, 0x8000"), S(f"s_mov_b32 s{sLoop}, 7")]
    C += [S(f"s_bitcmp1_b32 s{sWave}, 1"), branch("s_cbranch_scc1", "L_o_1")]
    C = fix_hazards(C)
    TS = [list(range(0, 7)), list(range(7, 13)), list(range(13, 19)), list(range(19, 25))]
    LW, LR, VO = T + 2, T + 3, T + 4
    RB = 200
    def epi_setup():
        return [[S(f"s_mul_i32 s{sT0}, s{sWave}, 13312"), S(f"s_cmp_ge_u32 s{sWave}, 2"), S(f"s_cselect_b32 s{sT2}, {81920 - 2*13312}, 0"), S(f"s_add_u32 s{sT0}, s{sT0}, s{sT2}"),
         V(f"v_add_u32 v{LW}, s{sT0}, v{L16}")],
         [S(f"s_xor_b32 s{sT1}, s{sWave}, 4"), S(f"s_mul_i32 s{sT0}, s{sT1}, 13312"), S(f"s_cmp_ge_u32 s{sT1}, 2"), S(f"s_cselect_b32 s{sT2}, {81920 - 2*13312}, 0"),
         S(f"s_add_u32 s{sT0}, s{sT0}, s{sT2}"), V(f"v_add_u32 v{LR}, s{sT0}, v{L16}")],
         [S(f"s_lshl_b32 s{sT0}, s2, 3"), S(f"s_add_u32 s{sT0}, s{sT0}, s{sWave}"), S(f"s_mul_i32 s{sSo}, s{sT0}, {SLAB}"), S(f"s_add_u32 s{sSo}, s{sSo}, {XCH_OFF}")],
         [S(f"s_xor_b32 s{sT0}, s{sT0}, 256"), S(f"s_mul_i32 s{sBase}, s{sT0}, {SLAB}"), S(f"s_add_u32 s{sBase}, s{sBase}, {XCH_OFF}"), V(f"v_add_u32 v{L16+1}, 4096, v{L16}")],
         [V(f"v_bfe_u32 v{VO}, v{L16}, 4, 4"), V(f"v_mul_u32_u24 v{VO}, 1280, v{VO}")], [V(f"v_lshrrev_b32 v{POLL}, 8, v{L16}"), V(f"v_lshl_add_u32 v{VO}, v{POLL}, 3, v{VO}")],
         [S(f"s_mul_i32 s{sLd}, s{sB}, 204800"), S(f"s_and_b32 s{sT0}, s{sWave}, 1"), S(f"s_mul_i32 s{sT0}, s{sT0}, 102400"), S(f"s_add_u32 s{sLd}, s{sLd}, s{sT0}")],
         [S(f"s_mul_i32 s{sT0}, s{sNq}, 320"), S(f"s_add_u32 s{sLd}, s{sLd}, s{sT0}"), S(f"s_bfe_u32 s{sT0}, s{sWave}, 0x10001"), S(f"s_mul_i32 s{sT0}, s{sT0}, 160"),
         S(f"s_add_u32 s{sLd}, s{sLd}, s{sT0}")],
         mode_vcc(),
         [S(f"s_lshr_b32 s{sHi}, s{sG}, 2"), S(f"s_lshl_b32 s{sT1}, s{sKs}, 1"), S(f"s_add_u32 s{sHi}, s{sHi}, s{sT1}")]]
    def poll_load(): return [bload(1, POLL, VFL, sDBG, 0, 0, 'sc1'), bload(1, POLL2, VFL + 1, sDBG, 0, 0, 'sc1')]
    for nh in range(2):
        step = 10240 if nh == 0 else 40960
        R_ = [label(f"L_o_{nh}")] + o_voff(nh, VOFF, lane, a, b) + o_base(nh, sBase, sLd) + [S(f"s_add_u32 s{sLd}, s{sLd}, s{sT0}")]
        def head_setup():
            return [S(f"s_and_b32 s{sT2}, s{sHi}, 3"), S(f"s_and_b32 s{sT3}, s{sG}, 4"), S(f"s_add_u32 s{sT2}, s{sT2}, s{sT3}"),
                    S(f"s_lshl_b32 s{sT2}, s{sT2}, 2"), S(f"s_lshr_b32 s{sT3}, s{sHi}, 2"), S(f"s_lshl_b32 s{sT3}, s{sT3}, 1"), S(f"s_add_u32 s{sT2}, s{sT2}, s{sT3}"),
                    S(f"s_add_u32 s{sT2}, s{sT2}, s{sKs}"), S(f"s_mul_i32 s{sT2}, s{sT2}, {4*step}"), S(f"s_add_u32 s{sSo}, s{sBase}, s{sT2}"),
                    S(f"s_add_u32 s{sHi}, s{sHi}, 1")]
        odma = lambda u: o_dma(nh, u, VOFF, sSo, sLd)
        def oreads(u):
            s_ = u & 1; hi = oslot(u) // (2 * OSLOT); off = oslot(u) % (2 * OSLOT)
            G = []
            for k in range(5):
                nb = 5 * nh + k
                ar = (aA1 if nb & 1 else aA0) + hi
                G.append([ds_read(2, fA(s_, k) + 2 * hh, ar, off + (hh * 5 + (nb >> 1)) * 1024, tr=True) for hh in range(2)])
                G.append([ds_read(4, fB(s_, k), aB + hi, off + k * 1024)])
            return G
        def omf(s_): return [mfma(acc(t), fA(s_, t % 5), fB(s_, t // 5), acc(t)) for t in range(25)]
        R_ += head_setup()
        R_ += [wait(vm=18), barrier()] + st(81) + st(82)
        R_ += flat(oreads(0)) + flat(odma(2))
        for r in range(50): R_.append(V(f"v_pk_mov_b32 v[{ACC+2*r}:{ACC+2*r+1}], 0, 0"))
        R_ += flat(odma(3))
        R_, q = finish(R_)
        def ostage(u, load=True, vm=None, extra=()):
            L = [wait(vm=vm, lgkm=0), barrier()]
            fill = [(oreads(u), 0, 16)]
            if load:
                if u == 1:
                    pre_ = head_setup()
                    fill.append((one(pre_), 0, 6))
                d = odma((u + 3) & 3)
                w0it = lambda lab: [S(f"s_lshl_b32 s{sT2}, s{sHi}, 3"), S(f"s_add_u32 s{sT2}, s{sT2}, s{sWave}"), S(f"s_cmp_lg_u32 s{sT2}, {4*8}"), branch("s_cbranch_scc1", lab)]
                if u == 2 and nh == 0: d = [w0it("L_p2") + poll_load() + [label("L_p2")]] + d
                if u == 0 and nh == 0: d = d + [w0it("L_g3_back") + gate("L_g2", POLL, VFL, 8) + [label("L_g2_back")] + gate("L_g3", POLL2, VFL + 1, 0) + [label("L_g3_back")]]
                if u == 2 and nh == 1:
                    d = [[S(f"s_lshl_b32 s{sT2}, s{sLoop}, 3"), S(f"s_add_u32 s{sT2}, s{sT2}, s{sWave}"), S(f"s_cmp_lg_u32 s{sT2}, {7*8+2}"), branch("s_cbranch_scc1", "L_nofl2"),
                          S(f"s_lshl_b32 s{sT2}, 0x100, s{sNq}")] + flag_add(T, f"s{sT2}", "L_nofl2")] + d
                fill.append((d, 7, 23))
            fill += list(extra)
            return L + spread(omf(1 - (u & 1)), fill)
        B = [label(f"L_o_loop{nh}")]
        if Cfg.ostamp:
            B += [raw(f"s_memtime s[{sStamp}:{sStamp+1}]"), wait(lgkm=0), V(f"v_mov_b32 v{T}, s{sStamp}"), S(f"s_lshl_b32 s{sStamp+1}, s{sLoop}, 2"), V(f"v_mov_b32 v{T+1}, s{sStamp+1}"),
                  bstore(1, T, T + 1, sWS, f"s{sStamp+2}", 4 * 108)]
        B += ostage(1, vm=Cfg.o_vm1)
        B += ostage(2, vm=10) + ostage(3, vm=10)
        B += ostage(0, vm=10, extra=[(one([S(f"s_sub_u32 s{sLoop}, s{sLoop}, 1"), S(f"s_cmp_lg_u32 s{sLoop}, 0")]), 23, 25)])
        B += [branch("s_cbranch_scc1", f"L_o_loop{nh}")]
        Bc, q2 = loop_finish(B, [], R_)
        E = ostage(1, load=False, vm=10) + ostage(2, load=False, vm=5, extra=[(epi_setup(), 2, 22)]) + ostage(3, load=False, vm=0) + [wait(lgkm=0)] + st(83)
        for v in range(1, 4): E += [S(f"s_cmp_eq_u32 s{sHi}, {v}"), branch("s_cbranch_scc1", f"L_o_epi{v}")]
        E += [branch("s_branch", "L_o_epi0")]
        if nh == 0: E += spin("L_g2", POLL, VFL, 8, "L_g2_back") + spin("L_g3", POLL2, VFL + 1, 0, "L_g3_back")
        E, _ = finish(E, q2, pre=Bc[-12:])
        C += R_ + Bc + E
    for v in range(4):
        ks, kh = v >> 1, v & 1
        mine = TS[v]; xsend = TS[v ^ 1]; keep = sorted(mine + xsend); lsend = sorted(TS[v ^ 2] + TS[v ^ 3])
        ls = lambda i: [raw(f"s_memtime s[{60+2*i}:{61+2*i}]"), wait(lgkm=0)] if Cfg.stamps == 6 else []
        E = [label(f"L_o_epi{v}")] + ls(0)
        order = lsend + xsend + mine
        mf = [mfma(acc(t), fA(1, t % 5), fB(1, t // 5), acc(t)) for t in order]
        wr = [[ds_write(4, LW, acc(t), i * 1024)] for i, t in enumerate(lsend)]
        E += spread(mf, [(wr, 4, 19)])
        E += [wait(lgkm=0)] + ls(1) + [barrier()] + ls(2)
        rorder = xsend + mine
        for i, t in enumerate(rorder): E.append(ds_read(4, RB + 4 * i, LR, keep.index(t) * 1024))
        for i, t in enumerate(rorder):
            for r in range(0, 4, 2): E.append(V(f"v_pk_add_f32 v[{acc(t)+r}:{acc(t)+r+1}], v[{acc(t)+r}:{acc(t)+r+1}], v[{RB+4*i+r}:{RB+4*i+r+1}]"))
            if t in xsend:
                k = xsend.index(t)
                E += dstore(4, acc(t), L16 + (k >> 2), sWS, f"s{sSo}", (k & 3) * 1024)
        E += st(84) + ls(3)
        n = len(mine)
        E += [V(f"v_mov_b32 v{POLL2}, 1"), V(f"v_mov_b32 v{VFL}, 7168"), wait(vm=0), S("s_mov_b64 exec, 1")] + dstore(1, POLL2, VFL, sWS, f"s{sSo}", 0)
        E += [label(f"L_x{v}"), bload(1, POLL, VFL, sWS, f"s{sBase}", 0, 'sc1'),
              S(f"s_sub_u32 s{sCnt}, s{sCnt}, 1"), S(f"s_cmp_lt_i32 s{sCnt}, 0"), branch("s_cbranch_scc1", f"L_x{v}_ok"), wait(vm=0),
              V(f"v_readfirstlane_b32 s{sT2}, v{POLL}"), S(f"s_cmp_eq_u32 s{sT2}, 1"), branch("s_cbranch_scc1", f"L_x{v}_ok"),
              raw(f"s_sleep {Cfg.xsleep2}"), branch("s_branch", f"L_x{v}"), label(f"L_x{v}_ok"), S("s_mov_b64 exec, -1")]
        ld = lambda pol: [bload(4, RB + 4 * k, L16 + (k >> 2), sWS, f"s{sBase}", (k & 3) * 1024, pol) for k in range(n)]
        SLOW.append([label(f"L_xl{v}")] + ld('sc1') + [branch("s_branch", f"L_xl{v}_b")])
        E += [branch("s_cbranch_vccz", f"L_xl{v}")] + ld('') + [label(f"L_xl{v}_b")]
        E += st(85) + ls(4)
        for k, t in enumerate(mine):
            a_ = acc(t)
            E.append(wait(vm=n - 1))
            for r in range(0, 4, 2): E.append(V(f"v_pk_add_f32 v[{a_+r}:{a_+r+1}], v[{a_+r}:{a_+r+1}], v[{RB+4*k+r}:{RB+4*k+r+1}]"))
            E += [V(f"v_cvt_pk_bf16_f32 v{a_}, v{a_}, v{a_+1}"), V(f"v_cvt_pk_bf16_f32 v{a_+1}, v{a_+2}, v{a_+3}"),
                  S(f"s_add_u32 s{sT0}, s{sLd}, {(t//5)*20480}"), bstore(2, a_, VO, sOUT, f"s{sT0}", (t % 5) * 32)]
        E += st(86) + st(77, True)
        if Cfg.stamps == 6:
            E += [wait(vm=0)] + ls(5) + [V(f"v_mov_b32 v{T+1}, 0"), V(f"v_mov_b32 v{T}, s{sCnt}"), bstore(1, T, T + 1, sWS, f"s{sStamp+2}", 4 * 106)]
            for i in range(6): E += [V(f"v_mov_b32 v{T}, s{60+2*i}"), bstore(1, T, T + 1, sWS, f"s{sStamp+2}", 4 * (100 + i))]
        if Cfg.dbgst and ks == 1:
            E += [S(f"s_cmp_lg_u32 s{sWave}, 4"), branch("s_cbranch_scc1", f"L_dbgend{v}"), S(f"s_cmp_lg_u32 s2, {Cfg.dbgst}"), branch("s_cbranch_scc1", f"L_dbgend{v}"),
                  S("s_mov_b64 exec, 1"), V("v_mov_b32 v1, 0")]
            for i, r in enumerate(DREG):
                E += [S(f"s_sub_u32 s{r}, s{r}, s{sStamp+2}"), S(f"s_lshr_b32 s{r}, s{r}, 8"), S(f"s_and_b32 s{r}, s{r}, 0x3ff"), S(f"s_lshl_b32 s{r}, s{r}, {12 + 10*(i&1)}"), V(f"v_mov_b32 v{2+i}, s{r}"),
                      raw(f"buffer_atomic_or v{2+i}, v1, s[{sDBG}:{sDBG+3}], 0 offen offset:{8*(i>>1)+4} sc1")]
            E += [label(f"L_dbgend{v}")]
        E += [raw("s_endpgm")]
        E, _ = finish(E)
        C += E
    return C

def gen_kernel(name):
    C = [raw(f".globl {name}\n.p2align 8\n.type {name},@function\n{name}:\nKSTART:", 'label')]
    C += [S("s_cmp_lt_u32 s2, 256"), branch("s_cbranch_scc1", "L_go"), raw("s_endpgm"), label("L_go")]
    C += [raw("s_load_dwordx16 s[56:71], s[0:1], 0")]
    if Cfg.dbgst: C += [raw(f"s_memtime s[{sStamp+2}:{sStamp+3}]")] + [S(f"s_mov_b32 s{r}, 0") for r in DREG]
    if Cfg.delay:
        C += [S(f"s_bitcmp0_b32 s2, {Cfg.delay_bit}"), branch("s_cbranch_scc1", "L_nodelay"), S(f"s_mov_b32 s{sT0}, {Cfg.delay // 1024}"), label("L_delay"), raw("s_sleep 16"),
              S(f"s_sub_u32 s{sT0}, s{sT0}, 1"), S(f"s_cmp_lg_u32 s{sT0}, 0"), branch("s_cbranch_scc1", "L_delay"), label("L_nodelay")]
    C += [V("v_lshrrev_b32 v1, 6, v0"),
          S(f"s_and_b32 s{sB}, s2, 7"), S(f"s_lshl_b32 s{sB}, s{sB}, 2"), V(f"v_readfirstlane_b32 s{sWave}, v1"),
          S(f"s_lshr_b32 s{sT0}, s2, 6"), S(f"s_add_u32 s{sB}, s{sB}, s{sT0}"), S(f"s_bfe_u32 s{sG}, s2, 0x30003")]
    C += [S(f"s_bfe_u32 s{sT0}, s{sWave}, 0x10001"), S(f"s_lshl_b32 s{sT2}, s{sG}, 2"), S(f"s_add_u32 s{sT2}, s{sT2}, s{sT0}"), S(f"s_lshl_b32 s{sWbase}, s{sT2}, 8"),
          S(f"s_cmp_lt_u32 s{sWave}, 4"), branch("s_cbranch_scc1", "L_w3"),
          S(f"s_and_b32 s{sT1}, s{sWave}, 1"), S(f"s_lshl_b32 s{sT2}, s{sT1}, 10"),
          S(f"s_lshl_b32 s{sLdsKV}, s{sT0}, 13"), S(f"s_add_u32 s{sLdsKV}, s{sLdsKV}, s{sT2}"),
          S(f"s_mul_i32 s{sLdsX}, s{sT0}, 10240"), S(f"s_add_u32 s{sLdsX}, s{sLdsX}, s{sT2}"),
          S(f"s_mul_i32 s{sXbase}, s{sB}, 204800"), S(f"s_mul_i32 s{sT2}, s{sT0}, 102400"), S(f"s_add_u32 s{sXbase}, s{sXbase}, s{sT2}")]
    if Cfg.rot:
        C += [S(f"s_lshr_b32 s{sRho}, s2, 6"), S(f"s_mul_i32 s{sRho}, s{sRho}, 5"), S(f"s_add_u32 s{sRho}, s{sRho}, 1"), S(f"s_lshr_b32 s{sRho}, s{sRho}, 1"),
              S(f"s_add_u32 s{sRho}, s{sRho}, s{sG}"), S(f"s_and_b32 s{sT2}, s2, 7"), S(f"s_add_u32 s{sRho}, s{sRho}, s{sT2}")]
        for _ in range(2): C += [S(f"s_sub_u32 s{sT2}, s{sRho}, 10"), S(f"s_cmp_ge_u32 s{sRho}, 10"), S(f"s_cselect_b32 s{sRho}, s{sT2}, s{sRho}")]
        if Cfg.rotn == 2: C += [S(f"s_and_b32 s{sRho}, s{sRho}, 1"), S(f"s_mul_i32 s{sRho}, s{sRho}, 5")]
        if Cfg.rotn == 4: C += [S(f"s_and_b32 s{sRho}, s{sRho}, 3"), S(f"s_mul_i32 s{sRho}, s{sRho}, 5"), S(f"s_lshr_b32 s{sRho}, s{sRho}, 1")]
    C = fix_hazards(C)
    w2, r2 = gen_w2(); w3, r3 = gen_w3()
    C += w2 + w3 + gen_o() + [label("KEND")] + r2 + r3 + flat(SLOW)
    for k, tag, par in CTX.stubs:
        C += [label(f"L_stub{k}"), raw(f"s_call_b64 s[{sRet}:{sRet+1}], L_rare_{tag}_{par}", 'branch'), branch("s_branch", f"L_back{k}")]
    return C

def kd(name, vgpr, accum, sgpr=102):
    return f""".section .rodata,"a"
.p2align 6
.amdhsa_kernel {name}
  .amdhsa_next_free_vgpr {vgpr}
  .amdhsa_next_free_sgpr {sgpr}
  .amdhsa_accum_offset {accum}
  .amdhsa_group_segment_fixed_size 0
  .amdhsa_kernarg_size 64
  .amdhsa_user_sgpr_count 2
  .amdhsa_user_sgpr_kernarg_segment_ptr 1
  .amdhsa_system_sgpr_workgroup_id_x 1
.end_amdhsa_kernel
"""

HDR = open('standalone__mha_block_cached__near_ridge.s.ref').read().split('; Override launch')[0]
def main(path):
    k1 = "standalone__mha_block_cached__near_ridge_kernel"
    s = HDR
    s += f"; @launch grid=(256,1,1) block=(512,1,1) lds={LDS_BYTES}\n"
    s += '.amdgcn_target "amdgcn-amd-amdhsa--gfx950"\n.text\n'
    s += emit(gen_kernel(k1))
    s += kd(k1, 256, 256)
    open(path, 'w').write(s)
if __name__ == '__main__':
    for a in sys.argv[2:]:
        k, v = a.split('=', 1); setattr(Cfg, k, eval(v))
    main(sys.argv[1] if len(sys.argv) > 1 else 'mha2.s')
```

```python
import sys, math, struct
from ir import *

SLOT = 16384
NSLOT = 10
NW, NX = 6, 3
WPERM = [4, 5, 1, 3, 0, 2]
def wslot(s): return WPERM[s % NW] * SLOT
def xbuf(u): return NW * SLOT + (u % NX) * 20480
WTAB = sum((((WPERM[(m + 1) % NW] - WPERM[m]) & 15) << (4 * m)) for m in range(NW))
LDS_BYTES = 163840
O_BYTES = 32 * 128 * 10 * 1024
XCH_OFF = O_BYTES
SLAB = 7168 + 128
XCH_WG = 8 * SLAB
MODE_LDS = LDS_BYTES - 4
WS_BYTES = XCH_OFF + 256 * XCH_WG
QSCALE = math.log2(math.e) / math.sqrt(128.0)
THR = 16384.0
def f2u(x): return "0x%08x" % struct.unpack('<I', struct.pack('<f', x))[0]

sK, sV, sW, sX, sWS, sWO, sOUT, sDBG = 8, 12, 16, 20, 24, 28, 76, 80
sWave, sRound, sB, sG = 32, 33, 34, 35
sKVbase, sWbase, sXbase, sLdsKV, sLdsX = 36, 37, 38, 39, 40
sT0, sT1 = 41, 42
sKpos, sVpos, sD, sCnt, sXd, sLoop = 43, 44, 45, 49, 50, 51
sRet = 46
sOst = 48
sKX, sFlag = 52, 53
sT2, sT3 = 54, 55
sQS, sC16, sC32, sCX = 72, 73, 74, 75
sTK, sTV, sCnt2 = 88, 89, 90
sMode = 91
sRho, sT4 = 3, 87
sOoff = 56
sStamp = 84
DBG_OFF = 64 << 20

class Cfg:
    stamps = False
    dbgst = False
    dsl = None
    rot = True
    orot = True
    warm0 = False
    delay = 0
    delay_bit = 7
    LA = 7
    kv_pol = 'nt'
    touch_pol = ''
    touch_at = []
    warm = True
    xsleep = 8
    kv_same = False
    dsplit = 100
    rotn = 10
    late = 8
    smpure = 0.7
    pp = False
    pp_a = 1
    pp_b = 0
    ostamp = False
    xsleep2 = 2
    dual = True
    fast = True
    codetouch2 = True
    codetouch = True
    qcut = 8
    prio = 2
    no_sm = False
    no_dma = False
    no_exp = False
    no_chk = False
    no_ds = False
    no_adv = False
    ost_pol = 'sc1'
    old_pol = 'sc1'
    o_skip = 0
    o_vm1 = 10
    smend = 3

RT4 = {7: 90, 39: 91, 45: 92, 73: 93, 82: 94, 83: 95}
STAMP3 = (0, 1, 7, 39, 41, 43, 45, 73, 75, 76, 77, 80, 81, 82, 83, 84, 85, 86)
DSL = {(1, 0): 0, (41, 0): 1, (45, 0): 2, (73, 0): 3, (1, 1): 4, (41, 1): 5, (45, 1): 6, (73, 1): 7, (80, 2): 8, (82, 2): 9, (83, 2): 10, (84, 2): 11, (85, 2): 12, (86, 2): 13}
sDS = 4
DREG = [4, 5, 6, 7, 101, 92, 93, 94, 95, 96, 97, 98, 99, 100]
def stamp(t, k, real=False):
    if Cfg.dbgst:
        if real: return []
        dsl = DSL if not Cfg.dsl else {(2 * b + 1, Cfg.dsl[0]): i for i, b in enumerate(Cfg.dsl[1:])}
        hits = [(r, i) for (kk, r), i in dsl.items() if kk == k]
        if not hits: return []
        out = [raw(f"s_memtime s[{sStamp}:{sStamp+1}]"), wait(lgkm=0)]
        for r, i in hits:
            out += [S(f"s_cmp_eq_u32 s{sRound}, {r}"), S(f"s_cselect_b32 s{DREG[i]}, s{sStamp}, s{DREG[i]}")]
        return out
    if not Cfg.stamps: return []
    if Cfg.stamps == 6: return []
    if Cfg.stamps == 4 and not real and k in RT4:
        Cfg.stamps = 5; r = stamp(t, k) + stamp(t, RT4[k], True); Cfg.stamps = 4; return r
    if Cfg.stamps in (3, 4) and k not in STAMP3: return []
    return [raw(f"{'s_memrealtime' if real else 's_memtime'} s[{sStamp}:{sStamp+1}]"), wait(lgkm=0), V(f"v_mov_b32 v{t}, s{sStamp}"), V(f"v_mov_b32 v{t+1}, 0"),
            S(f"s_and_b32 s{sStamp+1}, s{sRound}, 1"), S(f"s_lshl_b32 s{sStamp+1}, s{sStamp+1}, 9"), S(f"s_add_u32 s{sStamp+1}, s{sStamp+1}, s{sStamp+2}"),
            bstore(1, t, t + 1, sWS, f"s{sStamp+1}", 4 * k, tag=('misc',))]

def item_slot(n): return (n % NSLOT) * SLOT
def kidx(t): return 0 if t == 0 else 2 * t - 1
def vidx(t): return 2 * t + 2

class Wave:
    def __init__(self, nq):
        self.nq = nq
        n = nq
        p = 0
        self.O = p; p += 32 * n
        self.Q = p; p += 16 * n
        self.NM = p; p += 4 * n
        self.S = p; p += 8 * n
        self.P = p; p += 8 * n
        self.L = p; p += n
        self.LT = p; p += n
        self.T = p; p += 4
        self.aN = p; p += 2
        self.aT = p; p += 4
        p = (p + 3) & ~3
        self.F = p; self.NF = 8; p += 32
        self.dummy = p; p += 1
        self.tmp = p; p += 3
        if nq == 2:
            self.vK = p; self.vV = p + 1; self.vW = p + 2; self.vX = p + 3; self.vTch = p + 4; self.oVoff = p + 5; self.oPoll = p + 6; p += 7
        assert p <= 256, p
        self.end = p
        setsz = 32 + 4 * n
        if nq == 3:
            self.set = [self.Q, self.S]
        else:
            q = (p + 3) & ~3
            self.set = [self.Q, q]
            assert q + setsz <= 256
        self.tag = f"w{nq}"
        self.fpos = 0
    def o(self, T, j): return self.O + (T * self.nq + j) * 4
    def q(self, s, j): return self.Q + (s * self.nq + j) * 4
    def nm(self, j): return self.NM + 4 * j
    def s(self, kb, j): return self.S + (kb * self.nq + j) * 4
    def p(self, par, j): return self.P + (par * self.nq + j) * 4
    def fa(self, st, T): return self.set[st] + 4 * T
    def fb(self, st, j): return self.set[st] + 32 + 4 * j

def spread(base, fillers):
    ins = [[] for _ in range(len(base) + 1)]
    for groups, lo, hi in fillers:
        n = len(groups)
        if n == 0: continue
        hi = min(hi, len(base)); lo = min(lo, hi)
        span = hi - lo
        for k, gI in enumerate(groups):
            pos = lo + (k * span) // n + 1 if span > 0 else lo
            ins[min(pos, len(base))].extend(gI)
    out = list(ins[0])
    for i, b in enumerate(base):
        out.append(b); out.extend(ins[i + 1])
    return out

def frag_K(w, s, kb, first_c):
    def reads(f): return [ds_read(4, f, w.aN + (s & 1), kb * 4096 + (s >> 1) * 2048)]
    def mf(f):
        out = []
        for j in range(w.nq):
            c = w.s(kb, j) if s > 0 else (None if first_c == 'zero' else w.nm(j))
            out.append(mfma(w.s(kb, j), f, w.q(s, j), c))
        return out
    return dict(reads=reads, mf=mf, pre=[])
def frags_QK(w, first_c='negm', pre=()):
    fr = [frag_K(w, s, kb, first_c) for s in range(4) for kb in range(2)]
    fr[0]['pre'] = list(pre)
    return fr
def frag_V(w, db, par, zero):
    def reads(f): return [ds_read(2, f + 2 * hh, w.aT + (db & 3), hh * 4096 + (db >> 2) * 2048, tr=True) for hh in range(2)]
    def mf(f): return [mfma(w.o(db, j), f, w.p(par, j), None if zero else w.o(db, j)) for j in range(w.nq)]
    return dict(reads=reads, mf=mf, pre=[])
def frags_PV(w, par, zero=False, pre=()):
    fr = [frag_V(w, db, par, zero) for db in range(8)]
    fr[0]['pre'] = list(pre)
    return fr

def stream(w, frags, preloaded, nxt, fillers=(), lead=()):
    LA = Cfg.LA
    allf = list(frags) + list(nxt[:LA])
    head = []
    def issue(i):
        f = allf[i]
        return ([] if Cfg.no_adv else list(f['pre'])) + ([] if Cfg.no_ds else f['reads'](w.F + 4 * ((w.fpos + i) % w.NF)))
    for i in range(preloaded, min(LA, len(allf))): head += issue(i)
    base = list(lead); extra = []
    for i, f in enumerate(frags):
        m = f['mf'](w.F + 4 * ((w.fpos + i) % w.NF))
        base += m
        post = []
        if i + LA < len(allf) and i + LA >= preloaded: post += issue(i + LA)
        if post: extra.append(([post], len(base) - 1, len(base)))
    body = spread(base, list(extra) + list(fillers))
    w.fpos = (w.fpos + len(frags)) % w.NF
    return head + body

def softmax_groups(w, par):
    G = []
    k = 0
    for kb in range(2):
        for j in range(w.nq):
            for h in range(2):
                t0 = w.T + 2 * (k & 1); t1 = t0 + 1; k += 1
                sr = w.s(kb, j) + 2 * h
                G.append([V(f"v_exp_f32 v{t0}, v{sr}")])
                G.append([V(f"v_exp_f32 v{t1}, v{sr+1}")])
                lt = w.LT + j
                if kb == 0 and h == 0:
                    G.append(('late', [V(f"v_add_f32 v{lt}, v{t0}, v{t1}"), V(f"v_cvt_pk_bf16_f32 v{w.p(par,j)+2*kb+h}, v{t0}, v{t1}")]))
                else:
                    G.append(('late', [V(f"v_add_f32 v{lt}, v{lt}, v{t0}"), V(f"v_cvt_pk_bf16_f32 v{w.p(par,j)+2*kb+h}, v{t0}, v{t1}"),
                                       V(f"v_add_f32 v{lt}, v{lt}, v{t1}")]))
    if Cfg.no_sm: return [[V(f"v_mov_b32 v{w.LT+j}, 1.0")] for j in range(w.nq)]
    if Cfg.no_exp:
        for gI in G:
            if not isinstance(gI, tuple): gI[0] = V(gI[0].text.replace('v_exp_f32', 'v_mov_b32'))
    out = []; pend = None
    for gI in G:
        if isinstance(gI, tuple):
            pend = gI[1]
        else:
            out.append(gI)
            if pend is not None:
                out.append(pend); pend = None
    if pend is not None: out.append(pend)
    return out

class Ctx:
    def __init__(self): self.stubs = []; self.n = 0
CTX = Ctx()

SLOW = []
def dstore(n, src, voff, srd_, soff, imm, tag=None):
    if not Cfg.dual: return [bstore(n, src, voff, srd_, soff, imm, 'sc1', tag=tag)]
    k = len(SLOW)
    SLOW.append([label(f"L_slow{k}"), bstore(n, src, voff, srd_, soff, imm, 'sc1'), branch("s_branch", f"L_slowb{k}")])
    return [branch("s_cbranch_vccz", f"L_slow{k}"), bstore(n, src, voff, srd_, soff, imm, '', tag=tag), label(f"L_slowb{k}")]
def mode_vcc(): return [S(f"s_and_b32 s{sT1}, s{sMode}, s{sRound}"), S("s_cselect_b64 vcc, -1, 0")]
def mode_read(t):
    return [[V(f"v_mov_b32 v{t}, {MODE_LDS}"), ds_read(1, t, t, 0)],
            [V(f"v_readfirstlane_b32 s{sT1}, v{t}"), S(f"s_cmp_eq_u32 s{sRound}, 0"), S(f"s_cselect_b32 s{sMode}, s{sT1}, s{sMode}")]]

def check_cmp(w):
    if Cfg.no_chk: return []
    out = []
    if w.nq == 3: out.append(V(f"v_max3_f32 v{w.tmp}, v{w.LT}, v{w.LT+1}, v{w.LT+2}"))
    else: out.append(V(f"v_max_f32 v{w.tmp}, v{w.LT}, v{w.LT+1}"))
    out.append(I(f"v_cmp_nge_f32 vcc, {f2u(THR)}, v{w.tmp}", 'valu', wr={('s', 'vcc')}, rd=regs(w.tmp)))
    return out
def check_branch(w, par):
    if Cfg.no_chk: return []
    k = CTX.n; CTX.n += 1
    CTX.stubs.append((k, w.tag, par))
    return [branch("s_cbranch_vccnz", f"L_stub{k}"), label(f"L_back{k}")]
def l_accum(w, first=False):
    if first: return [V(f"v_mov_b32 v{w.L+j}, v{w.LT+j}") for j in range(w.nq)]
    return [V(f"v_add_f32 v{w.L+j}, v{w.L+j}, v{w.LT+j}") for j in range(w.nq)]
def sm_fillers(w, par, lo):
    nm = 8 * w.nq
    return [(softmax_groups(w, par) + [check_cmp(w)], lo, nm - Cfg.smend)]

def xlane(op, r, t):
    return [V(f"v_mov_b32 v{t}, v{r}"), V(f"v_permlane32_swap_b32 v{r}, v{t}"), V(f"{op} v{r}, v{r}, v{t}"),
            V(f"v_mov_b32 v{t}, v{r}"), V(f"v_permlane16_swap_b32 v{r}, v{t}"), V(f"{op} v{r}, v{r}, v{t}")]

def tile_max(w, j, dst):
    a, b = w.s(0, j), w.s(1, j)
    return [V(f"v_max3_f32 v{dst}, v{a}, v{a+1}, v{a+2}"), V(f"v_max3_f32 v{dst}, v{dst}, v{a+3}, v{b}"),
            V(f"v_max3_f32 v{dst}, v{dst}, v{b+1}, v{b+2}"), V(f"v_max_f32 v{dst}, v{dst}, v{b+3}")]

def first_max(w):
    out = []
    for j in range(w.nq): out += tile_max(w, j, w.LT + j)
    seqs = [xlane("v_max_f32", w.LT + j, w.T + j) for j in range(w.nq)]
    for k in range(6):
        for sq in seqs: out.append(sq[k])
    for j in range(w.nq):
        for r in range(4): out.append(V(f"v_sub_f32 v{w.nm(j)+r}, 0, v{w.LT+j}"))
        for kb in range(2):
            for r in range(4): out.append(V(f"v_sub_f32 v{w.s(kb,j)+r}, v{w.s(kb,j)+r}, v{w.LT+j}"))
    return out

def rare_routine(w, par):
    out = [label(f"L_rare_{w.tag}_{par}"), nop(15)]
    for j in range(w.nq):
        d = w.LT + j; f = w.T + 1
        out += tile_max(w, j, d)
        out += xlane("v_max_f32", d, w.T)
        out.append(V(f"v_max_f32 v{d}, 0, v{d}"))
        out.append(V(f"v_sub_f32 v{f}, 0, v{d}"))
        out.append(V(f"v_exp_f32 v{f}, v{f}"))
        for r in range(4): out.append(V(f"v_sub_f32 v{w.nm(j)+r}, v{w.nm(j)+r}, v{d}"))
        for kb in range(2):
            for r in range(4): out.append(V(f"v_sub_f32 v{w.s(kb,j)+r}, v{w.s(kb,j)+r}, v{d}"))
        out.append(V(f"v_mul_f32 v{w.L+j}, v{w.L+j}, v{f}"))
        for T in range(8):
            for r in range(4): out.append(V(f"v_mul_f32 v{w.o(T,j)+r}, v{w.o(T,j)+r}, v{f}"))
    for gI in softmax_groups(w, par): out += gI
    out.append(nop(3))
    out.append(raw(f"s_setpc_b64 s[{sRet}:{sRet+1}]", 'branch'))
    return fix_hazards(out)

def q_reads(w, st, sl):
    G = []
    for j in range(w.nq): G.append([ds_read(4, w.fb(st, j), w.aN + sl, j * 2048)])
    for T in range(8):
        for hh in range(2):
            G.append([ds_read(2, w.fa(st, T) + 2 * hh, w.aT + (T & 3), hh * 4096 + (T >> 2) * 2048, tr=True)])
    return G
def q_mfmas(w, st, zero):
    return [mfma(w.o(T, j), w.fa(st, T), w.fb(st, j), None if zero else w.o(T, j)) for T in range(8) for j in range(w.nq)]

def q_pack_groups(w, s):
    G = []
    for j in range(w.nq):
        for half in range(2):
            a = w.o(2 * s + half, j)
            for r in range(4): G.append([V(f"v_mul_f32 v{a+r}, s{sQS}, v{a+r}")])
            G.append([V(f"v_cvt_pk_bf16_f32 v{w.q(s,j)+2*half}, v{a}, v{a+1}")])
            G.append([V(f"v_cvt_pk_bf16_f32 v{w.q(s,j)+2*half+1}, v{a+2}, v{a+3}")])
    for op in ("v_permlane32_swap_b32", "v_permlane16_swap_b32"):
        for j in range(w.nq):
            q = w.q(s, j)
            G.append([V(f"{op} v{q}, v{q+2}")]); G.append([V(f"{op} v{q+1}, v{q+3}")])
    return G
def q_pack_fillers(w):
    n = w.nq
    rng = [(2 * n + 2, 5 * n), (5 * n, 8 * n), (8 * n, 11 * n), (11 * n, 14 * n - 1)]
    return [(q_pack_groups(w, s), rng[s][0], rng[s][1]) for s in range(4)]

def l_reduce(w):
    out = []
    seqs = [xlane("v_add_f32", w.L + j, w.T + j) for j in range(w.nq)]
    for k in range(6):
        for sq in seqs: out.append(sq[k])
    for j in range(w.nq): out.append(V(f"v_rcp_f32 v{w.L+j}, v{w.L+j}"))
    out += [V(f"v_mbcnt_lo_u32_b32 v{w.tmp}, -1, 0"), V(f"v_mbcnt_hi_u32_b32 v{w.tmp}, -1, v{w.tmp}"), V(f"v_lshlrev_b32 v{w.tmp}, 4, v{w.tmp}")]
    return out
def epi_groups(w, s):
    G = []
    for j in range(w.nq):
        d = w.q(s, j)
        for half in range(2):
            a = w.o(2 * s + half, j)
            for r in range(4): G.append([V(f"v_mul_f32 v{a+r}, v{a+r}, v{w.L+j}")])
            G.append([V(f"v_cvt_pk_bf16_f32 v{d+2*half}, v{a}, v{a+1}")])
            G.append([V(f"v_cvt_pk_bf16_f32 v{d+2*half+1}, v{a+2}, v{a+3}")])
        G.append([S(f"s_add_u32 s{sT1}, s{sOst}, {s*10240}")] + dstore(4, d, w.tmp, sWS, f"s{sT1}", j * 1024, tag=('O', 0, True)))
    return G
def epi_fillers(w):
    n = w.nq
    rng = [(2 * n + 2, 4 * n + 2), (4 * n + 2, 6 * n + 2), (6 * n + 2, 8 * n), (8 * n, 8 * n)]
    return [([[i] for i in l_reduce(w)], 0, 2 * n + 1)] + [(epi_groups(w, s), rng[s][0], rng[s][1]) for s in range(4)]

def flat(G): return [i for g in G for i in g]
def one(L): return [[i] for i in L]

def dma_kv(w, kind, t, nxt_round, tag):
    srd_ = sK if kind == 'K' else sV
    voff = w.vK if kind == 'K' else w.vV
    n = kidx(t) if kind == 'K' else vidx(t)
    lds = item_slot(n)
    goff = t * 8192 + (262144 if nxt_round else 0)
    G = []
    for a in range(2):
        for seg in range(2):
            G.append([S(f"s_add_u32 m0, s{sLdsKV}, {lds + a*4096 + seg*2048 - seg*128}"),
                      S(f"s_add_u32 s{sT0}, s{sKVbase}, {goff + a*4096}"),
                      dma(voff, srd_, f"s{sT0}", seg * 128, Cfg.kv_pol, tag=tag)])
    return G
def rot_off(u, unit, base):
    if not Cfg.rot: return [S(f"s_add_u32 s{sT4}, s{base}, {u*unit}")]
    return [S(f"s_cmp_ge_u32 s{sRho}, {10-u}"), S(f"s_cselect_b32 s{sT4}, {u-10}, {u}"), S(f"s_add_u32 s{sT4}, s{sT4}, s{sRho}"),
            S(f"s_mul_i32 s{sT4}, s{sT4}, {unit}"), S(f"s_add_u32 s{sT4}, s{sT4}, s{base}")]
def dma_w(w, s, nxt_round, tag):
    lds = wslot(s)
    goff = (s & 1) * 32 * 8192 + (512 if nxt_round else 0)
    G = []
    for hh in range(2):
        for seg in range(2):
            G.append([S(f"s_add_u32 m0, s{sLdsKV}, {lds + hh*4096 + seg*2048 - seg*128}"),
                      S(f"s_add_u32 s{sT0}, s{sT4}, {goff + hh*32768}"),
                      dma(w.vW, sW, f"s{sT0}", seg * 128, tag=tag)])
    G[0] = rot_off(s >> 1, 64 * 8192, sWbase) + G[0]
    return G
def dma_x(w, u, tag):
    G = []
    for i in range(5):
        G.append([S(f"s_add_u32 m0, s{sLdsX}, {xbuf(u) + i*2048}"),
                  S(f"s_add_u32 s{sT0}, s{sT4}, {i*20480}"),
                  dma(w.vX, sX, f"s{sT0}", 0, tag=tag)])
    G[0] = rot_off(u, 128, sXbase) + G[0]
    return G
def touch_kv(w, kind):
    srd_, ptr = (sK, sTK) if kind == 'K' else (sV, sTV)
    return [[bload(1, w.dummy, w.vTch, srd_, f"s{ptr}", 0, Cfg.touch_pol, tag=('misc',)), S(f"s_add_u32 s{ptr}, s{ptr}, 4096")]]

NAMES = {}
for _t in range(16):
    NAMES[kidx(_t)] = ('K', _t); NAMES[vidx(_t)] = ('V', _t)
def first_use(kind, i):
    if kind == 'W': return i
    if kind == 'X': return 2 * i
    if kind == 'K': return 20 if i == 0 else 19 + i
    if kind == 'V': return 21 + i
    if kind == 'O': return 3
    if kind == 'P': return 35

def loader_schedule(w):
    sch = {i: [] for i in range(37)}
    r0 = lambda G, lab: [[S(f"s_cmp_lg_u32 s{sRound}, 0"), branch("s_cbranch_scc1", lab)] + flat(G) + [label(lab)]]
    sch[0] += r0(dma_w(w, 2, False, ('W', 2, 'cond')), "L_r0a") + dma_x(w, 1, ('X', 1, False)) + r0(dma_w(w, 3, False, ('W', 3, 'cond')), "L_r0b")
    sch[1] += dma_w(w, 4, False, ('W', 4, False)) + dma_x(w, 2, ('X', 2, False))
    sch[2] += dma_w(w, 5, False, ('W', 5, False))
    for s in range(NW, 20): sch[max(s - NW + 1, 3)] += dma_w(w, s, False, ('W', s, False))
    for u in range(NX, 10): sch[2 * (u - NX) + 2] += dma_x(w, u, ('X', u, False))
    if not Cfg.no_dma:
        first = {0: 17, 1: 15, 2: 18, 3: 16, 4: 19, 5: 20, 6: 20, 7: 20, 8: 18, 9: 19}
        for n in range(10): sch[first[n]] += dma_kv(w, *NAMES[n], False, NAMES[n] + (False,))
        for n in range(10, 33):
            if n not in NAMES: continue
            k, t = NAMES[n - 10]
            last = (20 + t) if k == 'K' else min(22 + t, 36)
            sch[last + 1] += dma_kv(w, *NAMES[n], False, NAMES[n] + (False,))
    for idx, ss in ((33, (2, 3)), (34, (0, 1))):
        for s_ in ss: sch[idx] += r0(dma_w(w, s_, True, ('W', s_, 'next')), f"L_r0w{s_}")
    w4first = lambda lab: [S(f"s_lshl_b32 s{sT1}, s{sRound}, 3"), S(f"s_add_u32 s{sT1}, s{sT1}, s{sWave}"), S(f"s_cmp_lg_u32 s{sT1}, 4"), branch("s_cbranch_scc1", lab)]
    sch[7] = [w4first("L_p0") + [S(f"s_lshl_b32 s{sT1}, s{sB}, 3"), V(f"v_mov_b32 v{w.tmp+2}, s{sT1}"), bload(1, w.oPoll, w.tmp + 2, sDBG, 0, 0, 'sc1', tag=('cond',)), label("L_p0")]] + sch[7]
    sch[14] += [w4first("L_m0") + [V(f"v_readfirstlane_b32 s{sT1}, v{w.oPoll}"), S(f"s_bfe_u32 s{sT2}, s{sT1}, 0x80010"), S(f"s_lshr_b32 s{sT1}, s{sT1}, 24"),
                 S(f"s_bcnt1_i32_b32 s{sT1}, s{sT1}"), S(f"s_lshl_b32 s{sT1}, s{sT1}, 8"), S(f"s_or_b32 s{sT1}, s{sT1}, s{sT2}"), S(f"s_cmp_eq_u32 s{sT1}, 0x1ff"),
                 S(f"s_cselect_b32 s{sT1}, {3 if Cfg.fast else 0}, 0"), V(f"v_mov_b32 v{w.tmp+1}, s{sT1}"), V(f"v_mov_b32 v{w.tmp+2}, {MODE_LDS}"),
                 raw(f"ds_write_b32 v{w.tmp+2}, v{w.tmp+1}"), label("L_m0")]]
    mr = mode_read(w.T)
    sch[17] = [mr[0]] + sch[17]; sch[18] = [mr[1]] + sch[18]
    w4last = lambda lab: [S(f"s_lshl_b32 s{sT1}, s{sRound}, 3"), S(f"s_add_u32 s{sT1}, s{sT1}, s{sWave}"), S(f"s_cmp_lg_u32 s{sT1}, 12"), branch("s_cbranch_scc1", lab)]
    sch[29] = [w4last("L_p1") + [V(f"v_mov_b32 v{w.tmp+2}, s{sFlag}"), bload(1, w.oPoll, w.tmp + 2, sDBG, 0, 0, 'sc1', tag=('cond',)), label("L_p1")]] + sch[29]
    sch[34] += [w4last("L_g1_back") + gate("L_g1", w.oPoll, w.tmp + 2, 0) + [label("L_g1_back")]]
    for u in range(2):
        alt = flat(dma_x(w, 0, ('X', 0, 'next'))) if u == 0 else []
        sch[35 + u] += [[S(f"s_cmp_lg_u32 s{sRound}, 0"), branch("s_cbranch_scc1", f"L_opre{u}")] + alt + [label(f"L_opre{u}_back"), I("; opre", 'comment', tag=('phantom', 0 if Cfg.o_skip else 10))]]
    if not Cfg.no_dma:
        for i, idx in enumerate(sorted(Cfg.touch_at)): sch[idx] += touch_kv(w, 'KV'[i & 1])
    return sch

def lane_id(r): return [V(f"v_mbcnt_lo_u32_b32 v{r}, -1, 0"), V(f"v_mbcnt_hi_u32_b32 v{r}, -1, v{r}")]
def lane_setup(w):
    t = w.F + 8
    lane, i16, g, a, b, c = t, t + 1, t + 2, t + 3, t + 4, t + 5
    o = lane_id(lane) + [V(f"v_and_b32 v{i16}, 15, v{lane}"), V(f"v_lshrrev_b32 v{g}, 4, v{lane}")]
    o += [V(f"v_lshrrev_b32 v{a}, 1, v{i16}"), V(f"v_xor_b32 v{a}, v{a}, v{g}"), V(f"v_lshlrev_b32 v{a}, 4, v{a}"),
          V(f"v_lshl_add_u32 v{w.aN}, v{i16}, 7, v{a}"), V(f"v_xor_b32 v{w.aN+1}, 64, v{w.aN}")]
    o += [V(f"v_lshrrev_b32 v{a}, 2, v{lane}"), V(f"v_and_b32 v{b}, 6, v{a}"),
          V(f"v_bfe_u32 v{c}, v{lane}, 1, 1"), V(f"v_xor_b32 v{b}, v{b}, v{c}"), V(f"v_lshlrev_b32 v{b}, 4, v{b}"),
          V(f"v_lshl_add_u32 v{b}, v{a}, 7, v{b}"),
          V(f"v_and_b32 v{c}, 1, v{lane}"), V(f"v_lshl_add_u32 v{w.aT}, v{c}, 3, v{b}")]
    for dq in range(1, 4): o.append(V(f"v_xor_b32 v{w.aT+dq}, {dq<<5}, v{w.aT}"))
    return o
def voff_setup(w):
    t = w.F + 16
    r8, p, a, b, row = t, t + 1, t + 2, t + 3, t + 4
    o = [V(f"v_bfe_u32 v{row}, v0, 3, 4"),
         V(f"v_and_b32 v{p}, 7, v0"),
         V(f"v_lshrrev_b32 v{a}, 1, v{row}"), V(f"v_xor_b32 v{a}, v{a}, v{p}"), V(f"v_lshlrev_b32 v{a}, 4, v{a}"),
         V(f"v_and_b32 v{b}, 6, v{row}"), V(f"v_xor_b32 v{b}, v{b}, v{p}"), V(f"v_lshlrev_b32 v{b}, 4, v{b}"),
         V(f"v_and_b32 v{p}, 12, v{row}"), V(f"v_add_u32 v{p}, v{p}, v{row}"), V(f"v_lshl_add_u32 v{w.vW}, v{p}, 13, v{b}"),
         V(f"v_mul_u32_u24 v{p}, 1280, v{row}"), V(f"v_add_u32 v{w.vX}, v{p}, v{a}")]
    o2 = [V(f"v_lshl_add_u32 v{w.vK}, v{row}, 8, v{a}"), V(f"v_lshl_add_u32 v{w.vV}, v{row}, 8, v{b}"),
          V(f"v_and_b32 v{p}, 63, v0"), V(f"v_lshlrev_b32 v{p}, 5, v{p}"), V(f"v_bfe_u32 v{r8}, v0, 6, 1"), V(f"v_lshl_add_u32 v{w.vTch}, v{r8}, 11, v{p}")]
    return o, o2

def add_addr(regs_, delta):
    if delta == 0: return []
    if isinstance(delta, str): return [V(f"v_add_u32 v{r}, {delta}, v{r}") for r in regs_]
    return [V(f"v_add_u32 v{r}, {delta & 0xffffffff:#x}, v{r}") for r in regs_]

def finish(code, pending=None, pre=()):
    c, q = add_lgkm_waits(code, pending)
    return fix_hazards(c, pre), q

def loop_finish(B, q, before):
    B1, q1 = finish(B, q, pre=before[-12:])
    B2, q2 = finish(B, q1, pre=B1[-12:])
    B3, q3 = finish(B, q2, pre=B2[-12:])
    assert emit(B2) == emit(B3) and q2 == q3
    assert len(q) <= len(q2) and q == q2[len(q2) - len(q):], "entry LDS queue must be a suffix of the steady-state queue"
    B4 = fix_hazards(B2, before[-12:])
    assert emit(fix_hazards(B4, B4[-12:])) == emit(B4)
    return B4, q2

def srd(base, ptr, nbytes):
    return [S(f"s_mov_b32 s{base}, s{ptr}"), S(f"s_mov_b32 s{base+1}, s{ptr+1}"), S(f"s_mov_b32 s{base+2}, {nbytes}"), S(f"s_mov_b32 s{base+3}, 0x20000")]

def round_advance():
    return [S(f"s_add_u32 s{sKVbase}, s{sKVbase}, 262144"), S(f"s_add_u32 s{sWbase}, s{sWbase}, 512"),
            S(f"s_add_u32 s{sOst}, s{sOst}, {8*10240}"), S(f"s_add_u32 s{sRound}, s{sRound}, 1"), S(f"s_cmp_lt_u32 s{sRound}, 2")]

def flag_add(t, val, lab):
    return [V(f"v_mov_b32 v{t}, {val}"), V(f"v_mov_b32 v{t+1}, s{sFlag}"), S("s_mov_b64 exec, 1"),
            I(f"buffer_atomic_or v{t}, v{t+1}, s[{sDBG}:{sDBG+3}], 0 offen sc1", 'vstore', rd=regs(t, 2) | regs(sDBG, 4, 's'), tag=('cond',)),
            S("s_mov_b64 exec, -1"), label(lab)]

def common_scalars():
    C = srd(sK, 58, 134217728) + srd(sV, 60, 134217728) + srd(sWO, 64, 5242880) + srd(sOUT, 66, 6553600) + srd(sDBG, 68, 256) \
        + srd(sWS, 70, (128 << 20) if Cfg.stamps else WS_BYTES)
    C += [S(f"s_lshr_b32 s{sT2}, s{sWbase}, 8"),
          S(f"s_lshl_b32 s{sT3}, s{sB}, 5"), S(f"s_add_u32 s{sT3}, s{sT3}, s{sT2}"), S(f"s_lshl_b32 s{sKVbase}, s{sT3}, 17"),
          S(f"s_mul_i32 s{sOst}, s{sT3}, 40960"),] + ([S(f"s_and_b32 s{sKVbase}, s{sKVbase}, 0x20000")] if Cfg.kv_same else []) + [
          S(f"s_lshl_b32 s{sFlag}, s{sB}, 1"), S(f"s_lshr_b32 s{sT2}, s{sG}, 2"), S(f"s_add_u32 s{sFlag}, s{sFlag}, s{sT2}"), S(f"s_lshl_b32 s{sFlag}, s{sFlag}, 2"),
          S(f"s_mov_b32 s{sRound}, 0"), S(f"s_mov_b32 s{sMode}, 0"), S(f"s_mov_b32 s{sQS}, {f2u(QSCALE)}"), S(f"s_mov_b32 s{sC16}, {WTAB:#x}"), S(f"s_mov_b32 s{sC32}, {2*SLOT}"),
          S(f"s_mov_b32 s{sCX}, 20480"), S(f"s_mov_b32 s{sTK}, s{sKVbase}"), S(f"s_mov_b32 s{sTV}, s{sKVbase}")]
    if Cfg.stamps:
        C += [S(f"s_lshl_b32 s{sStamp+2}, s2, 3"), S(f"s_add_u32 s{sStamp+2}, s{sStamp+2}, s{sWave}"), S(f"s_lshl_b32 s{sStamp+2}, s{sStamp+2}, 10"),
              S(f"s_add_u32 s{sStamp+2}, s{sStamp+2}, {DBG_OFF}")]
    return C
def wave_addr0(w, j0mul, j0add):
    aN = [w.aN, w.aN + 1]; aT = [w.aT + i for i in range(4)]
    C = [S(f"s_bfe_u32 s{sT0}, s{sWave}, 0x10001"), S(f"s_lshl_b32 s{sT0}, s{sT0}, 13"),
         S(f"s_and_b32 s{sT1}, s{sWave}, 1"), S(f"s_mul_i32 s{sT1}, s{sT1}, {j0mul*1024}"), S(f"s_add_u32 s{sT1}, s{sT1}, {j0add*1024}"),
         S(f"s_add_u32 s{sOst}, s{sOst}, s{sT1}"), S(f"s_lshl_b32 s{sT1}, s{sT1}, 1"),
         S(f"s_sub_u32 s{sKX}, s{sT0}, s{sT1}"),
         S(f"s_add_u32 s{sT0}, s{sT0}, {wslot(0)}"), S(f"s_add_u32 s{sT1}, s{sT1}, {xbuf(0)}")]
    return C + add_addr(aT, f"s{sT0}") + add_addr(aN, f"s{sT1}")

def gen_w3():
    w = Wave(3); nm = 24
    st = lambda k, real=False: stamp(w.tmp + 1, k, real)
    aN = [w.aN, w.aN + 1]; aT = [w.aT + i for i in range(4)]
    C = [label("L_w3"), raw("s_waitcnt lgkmcnt(0)")]
    if Cfg.codetouch:
        t = w.tmp + 1
        C += [raw(f"s_getpc_b64 s[{sRet}:{sRet+1}]"), label("L_pc0"),
              S(f"s_sub_u32 s{sRet}, s{sRet}, L_pc0-KSTART"), S(f"s_subb_u32 s{sRet+1}, s{sRet+1}, 0"),
              S(f"s_lshr_b32 s{sT0}, s2, 3"), S(f"s_lshl_b32 s{sT0}, s{sT0}, 2"), S(f"s_add_u32 s{sT0}, s{sT0}, s{sWave}"), S(f"s_lshl_b32 s{sT0}, s{sT0}, 7"),
              V(f"v_and_b32 v{t}, 7, v0"), V(f"v_lshlrev_b32 v{t}, 14, v{t}"), V(f"v_add_u32 v{t}, s{sT0}, v{t}"),
              V(f"v_min_u32 v{t}, KEND-KSTART-4, v{t}"),
              I(f"global_load_dword v{w.dummy}, v{t}, s[{sRet}:{sRet+1}]", 'vload', wr=regs(w.dummy), rd=regs(t) | regs(sRet, 2, 's'))]
    if Cfg.warm0:
        t = w.tmp + 1
        C += srd(sW, 62, 5242880) + srd(sX, 56, 6553600)
        C += [V(f"v_and_b32 v{t}, 63, v0"), V(f"v_lshlrev_b32 v{t}, 7, v{t}"),
              S(f"s_mul_i32 s{sT0}, s{sB}, 204800"), S(f"s_mul_i32 s{sT1}, s{sG}, 25600"), S(f"s_add_u32 s{sT0}, s{sT0}, s{sT1}"),
              S(f"s_mul_i32 s{sT1}, s{sWave}, 5760"), S(f"s_add_u32 s{sT0}, s{sT0}, s{sT1}"),
              V(f"v_bfe_u32 v{t+1}, v0, 3, 3"), V(f"v_min_u32 v{t+1}, 4, v{t+1}"), V(f"v_lshlrev_b32 v{t+1}, 13, v{t+1}"),
              V(f"v_and_b32 v{w.T}, 7, v0"), V(f"v_lshl_add_u32 v{t+1}, v{w.T}, 7, v{t+1}"),
              S(f"s_lshl_b32 s{sT1}, s{sB}, 2"), S(f"s_add_u32 s{sT1}, s{sT1}, s{sWave}"), S(f"s_mul_i32 s{sT1}, s{sT1}, {5*8192}"),
              S(f"s_lshl_b32 s{sT2}, s{sG}, 10"), S(f"s_add_u32 s{sT1}, s{sT1}, s{sT2}"),
              barrier(), bload(1, w.dummy, t + 1, sW, f"s{sT1}"), bload(1, w.dummy, t, sX, f"s{sT0}")]
    C += common_scalars()
    t = w.tmp + 1
    C += [S(f"s_cmp_lg_u32 s{sWave}, 0"), branch("s_cbranch_scc1", "L_noxcc"), raw(f"s_getreg_b32 s{sT0}, hwreg(HW_REG_XCC_ID, 0, 3)"),
          S(f"s_lshl_b32 s{sT0}, 0x1000000, s{sT0}"), S(f"s_lshl_b32 s{sT1}, 0x10000, s{sG}"), S(f"s_or_b32 s{sT0}, s{sT0}, s{sT1}"), S(f"s_lshl_b32 s{sT1}, s{sB}, 3"),
          V(f"v_mov_b32 v{t}, s{sT0}"), V(f"v_mov_b32 v{t+1}, s{sT1}"), S("s_mov_b64 exec, 1"),
          I(f"buffer_atomic_or v{t}, v{t+1}, s[{sDBG}:{sDBG+3}], 0 offen sc1", 'vstore', rd=regs(t, 2) | regs(sDBG, 4, 's')),
          S("s_mov_b64 exec, 0xff"), V(f"v_mul_u32_u24 v{t}, {SLAB}, v0"), V(f"v_mov_b32 v{t+1}, 0"), S(f"s_mul_i32 s{sT0}, s2, {XCH_WG}"), S(f"s_add_u32 s{sT0}, s{sT0}, {XCH_OFF + 7168}"),
          bstore(1, t + 1, t, sWS, f"s{sT0}", 0, 'sc1'),
          S("s_mov_b64 exec, -1"), label("L_noxcc")]
    C += lane_setup(w) + wave_addr0(w, 3, 0)
    C, _ = finish(C)
    out = C
    def wadv():
        return [S(f"s_bfe_i32 s{sD}, s{sC16}, s{sCnt}"), S(f"s_lshl_b32 s{sD}, s{sD}, 14"), S(f"s_add_u32 s{sCnt}, s{sCnt}, 4"),
                S(f"s_cmp_eq_u32 s{sCnt}, {0x40000 + 4*NW:#x}"), S(f"s_cselect_b32 s{sCnt}, 0x40000, s{sCnt}")] + add_addr(aT, f"s{sD}")
    def xadv():
        return [S(f"s_add_u32 s{sCnt2}, s{sCnt2}, 1"), S(f"s_cmp_eq_u32 s{sCnt2}, {NX}"), S(f"s_cselect_b32 s{sXd}, {(-(NX-1)*20480) & 0xffffffff:#x}, s{sCX}"),
                S(f"s_cselect_b32 s{sCnt2}, 0, s{sCnt2}")] + add_addr(aN, f"s{sXd}")
    def qstage(s, zero=False, extra=()):
        p = s & 1
        adv_ = wadv() + (xadv() if p == 1 else []) + list(extra)
        L = [barrier()] + spread(q_mfmas(w, 1 - p, zero), [(q_reads(w, p, p), 0, 16), (one(adv_), 17, 22)]) + [wait(lgkm=0)]
        k = [i for i, c in enumerate(L) if c.kind == 'mfma'][Cfg.qcut]
        return L[:k], L[k:]
    C = [label("L_w3_round")] + st(0) + [barrier()] + st(1)
    C += flat(q_reads(w, 0, 0))
    C += add_addr(aT, wslot(1) - wslot(0))
    C += [S(f"s_mov_b32 s{sCnt}, 0x40004"), S(f"s_mov_b32 s{sCnt2}, {(xbuf(0)-NW*SLOT)//20480}"), S(f"s_mov_b32 s{sLoop}, 8")]
    C += [wait(lgkm=0)]
    h1, t1 = qstage(1, zero=True); he, te = qstage(2); ho, to = qstage(3)
    C += h1 + t1 + [wait(vm=0)] + he
    C, q = finish(C); out += C
    B = [label("L_w3_q")] + te + ho + to + he
    B += [S(f"s_sub_u32 s{sLoop}, s{sLoop}, 1"), S(f"s_cmp_lg_u32 s{sLoop}, 0"), branch("s_cbranch_scc1", "L_w3_q")]
    Bc, q2 = loop_finish(B, q, out)
    out += Bc
    curT = wslot(20); curN = xbuf(10)
    h19, t19 = qstage(19, extra=add_addr(aN, f"s{sKX}") + add_addr(aN, item_slot(kidx(0)) - curN) + add_addr(aT, item_slot(vidx(0)) - curT))
    mr = mode_read(w.T)
    C = mr[0] + te + mr[1] + h19 + t19
    C += st(40) + [barrier()] + st(41)
    k0 = frags_QK(w, 'zero')
    k1 = frags_QK(w, 'negm', pre=add_addr(aN, item_slot(kidx(1)) - item_slot(kidx(0))))
    w.fpos = 0
    C += stream(w, k0, 0, k1, lead=q_mfmas(w, 1, False), fillers=q_pack_fillers(w))
    C += first_max(w)
    C += st(42) + [barrier()] + st(43)
    C += flat(softmax_groups(w, 0)) + l_accum(w, first=True)
    v0 = frags_PV(w, 0, zero=True)
    if Cfg.warm:
        t = w.tmp + 1
        C += [S(f"s_cmp_lg_u32 s{sRound}, 0"), branch("s_cbranch_scc1", "L_nowarm")] + lane_id(t) + [V(f"v_min_u32 v{t}, 39, v{t}"), V(f"v_lshlrev_b32 v{t}, 7, v{t}"),
              S(f"s_lshl_b32 s{sT0}, s2, 2"), S(f"s_add_u32 s{sT0}, s{sT0}, s{sWave}"), S(f"s_mul_i32 s{sT0}, s{sT0}, 5120"),
              bload(1, w.dummy, t, sWO, f"s{sT0}")]
        C += [branch("s_branch", "L_warm_done"), label("L_nowarm")]
        if Cfg.codetouch2:
            C += [raw(f"s_getpc_b64 s[{sRet}:{sRet+1}]"), label("L_pc1"),
                  S(f"s_add_u32 s{sRet}, s{sRet}, L_o-L_pc1"), S(f"s_addc_u32 s{sRet+1}, s{sRet+1}, 0")] + lane_id(t) + [
                  S(f"s_lshl_b32 s{sT0}, s{sWave}, 13"), V(f"v_lshlrev_b32 v{t}, 7, v{t}"), V(f"v_add_u32 v{t}, s{sT0}, v{t}"), V(f"v_min_u32 v{t}, KEND-L_o-4, v{t}"),
                  I(f"global_load_dword v{w.dummy}, v{t}, s[{sRet}:{sRet+1}]", 'vload', wr=regs(w.dummy), rd=regs(t) | regs(sRet, 2, 's'))]
        C += [label("L_warm_done")]
    C += [S(f"s_mov_b32 s{sKpos}, {item_slot(kidx(1))}"), S(f"s_mov_b32 s{sVpos}, {item_slot(vidx(0))}"), S(f"s_mov_b32 s{sLoop}, 7")]
    def adv(pos, rr):
        return [S(f"s_cmp_ge_u32 s{pos}, {LDS_BYTES - 2*SLOT}"), S(f"s_cselect_b32 s{sD}, {(2*SLOT - LDS_BYTES) & 0xffffffff:#x}, s{sC32}"),
                S(f"s_add_u32 s{pos}, s{pos}, s{sD}")] + add_addr(rr, f"s{sD}")
    def pv(par): return frags_PV(w, par, pre=adv(sVpos, aT))
    def qk(): return frags_QK(w, 'negm', pre=adv(sKpos, aN))
    E_ = 8 - Cfg.late
    def sm_part(late, par, extra=()):
        G = softmax_groups(w, par) + [check_cmp(w)]
        nl = 3 * len(late)
        cut = int(len(G) * Cfg.smpure) if Cfg.late < 8 else 0
        return flat(G[:cut]) + stream(w, late, Cfg.LA, qk(), fillers=[(G[cut:], 0, max(nl - Cfg.smend, 1))] + list(extra)) + check_branch(w, par)
    C += stream(w, k1 + v0[:E_], Cfg.LA, v0[E_:] + qk())
    C += st(44) + [barrier()] + st(45)
    C += sm_part(v0[E_:], 1)
    C, q = finish(C, q2, pre=out[-12:]); out += C
    B = [label("L_w3_a")]
    for par in (1, 0):
        B += stream(w, qk() + pv(par)[:E_], Cfg.LA, pv(par)[E_:] + qk(), fillers=[(one(l_accum(w)), 4, 10)])
        B += [barrier()]
        B += sm_part(pv(par)[E_:], 1 - par)
    B += [S(f"s_sub_u32 s{sLoop}, s{sLoop}, 1"), S(f"s_cmp_lg_u32 s{sLoop}, 0"), branch("s_cbranch_scc1", "L_w3_a")]
    Bc, q2 = loop_finish(B, q, out)
    out += Bc
    C = st(74) + l_accum(w) + mode_vcc()
    C += stream(w, pv(1), 0, [], fillers=epi_fillers(w))
    C += st(75) + st(77, True)
    curT = item_slot(vidx(15)); curN = item_slot(kidx(16))
    C += add_addr(aT, wslot(0) - curT) + add_addr(aN, xbuf(0) - curN) + [V(f"v_subrev_u32 v{r}, s{sKX}, v{r}") for r in aN]
    C += round_advance()
    C += [branch("s_cbranch_scc1", "L_w3_round"), branch("s_branch", "L_o")]
    C, q = finish(C, q2, pre=out[-12:]); out += C
    assert not q
    return out, rare_routine(w, 0) + rare_routine(w, 1)

def gen_w2():
    w = Wave(2); nm = 16
    st = lambda k, real=False: stamp(w.tmp + 1, k, real)
    aN = [w.aN, w.aN + 1]; aT = [w.aT + i for i in range(4)]
    sch = loader_schedule(w)
    items = lambda idx: sch[idx]
    vo1, vo2 = voff_setup(w)
    pro = vo1 + [raw("s_waitcnt lgkmcnt(0)")] + srd(sW, 62, 5242880) + srd(sX, 56, 6553600)
    pro += flat(dma_w(w, 0, False, ('W', 0, True))) + flat(dma_x(w, 0, ('X', 0, True))) + flat(dma_w(w, 1, False, ('W', 1, True))) + ([barrier()] if Cfg.warm0 else [])
    pro += vo2 + [V(f"v_mov_b32 v{w.oVoff}, 0"), V(f"v_mov_b32 v{w.oPoll}, 0")] + common_scalars() + lane_setup(w) + wave_addr0(w, 2, 6)
    C = [label("L_w2_round")] + st(76, True)
    def bar(idx, lgkm=None):
        b = wait(vm=63, lgkm=lgkm); b.tag = (('need', idx), lgkm)
        return st(2 * idx) + [b, barrier()] + st(2 * idx + 1)
    prio = lambda p: [raw(f"s_setprio {p}")] if Cfg.prio == 2 else []
    curT = wslot(0); curN = xbuf(0)
    C += prio(1)
    for s in range(20):
        if s < 19:
            newT = wslot(s + 1); newN = xbuf((s + 1) >> 1)
            adv_ = add_addr(aT, newT - curT) + add_addr(aN, newN - curN); curT, curN = newT, newN
        else:
            adv_ = add_addr(aN, f"s{sKX}") + add_addr(aN, item_slot(kidx(0)) - curN) + add_addr(aT, item_slot(vidx(0)) - curT)
        C += bar(s, lgkm=0)
        ex = []
        if s == 3:
            ex = [([[S(f"s_lshl_b32 s{sT1}, s{sRound}, 3"), S(f"s_add_u32 s{sT1}, s{sT1}, s{sWave}"), S(f"s_cmp_lg_u32 s{sT1}, 12"),
                     branch("s_cbranch_scc1", "L_nofl1"), S(f"s_and_b32 s{sT1}, s{sG}, 3"), S(f"s_lshl_b32 s{sT1}, 1, s{sT1}")] + flag_add(w.tmp + 1, f"s{sT1}", "L_nofl1")], 11, 12)]
        if s == 0: C += flat(q_reads(w, 0, 0)) + flat(items(0)) + adv_
        else: C += spread(q_mfmas(w, (s - 1) & 1, s == 1), [(q_reads(w, s & 1, s & 1), 0, 10), (items(s), 0, nm - 2), (one(adv_), 11, 15)] + ex)
    C += bar(20, lgkm=0)
    def qk(t, fc='negm'): return frags_QK(w, fc, pre=add_addr(aN, item_slot(kidx(t)) - item_slot(kidx(t - 1))) if t else [])
    def pv(t): return frags_PV(w, t & 1, zero=(t == 0), pre=add_addr(aT, item_slot(vidx(t)) - item_slot(vidx(t - 1))) if t else [])
    w.fpos = 0
    C += stream(w, qk(0, 'zero'), 0, qk(1), lead=q_mfmas(w, 1, False), fillers=[(items(20), 0, 2 * nm)] + q_pack_fillers(w))
    C += first_max(w)
    C += flat(softmax_groups(w, 0))
    for t in range(15):
        nx = qk(t + 2) if t < 14 else []
        if Cfg.pp:
            C += prio(Cfg.pp_a)
            C += bar(21 + t)
            C += stream(w, qk(t + 1) + pv(t), Cfg.LA, nx, fillers=[(one(l_accum(w, first=(t == 0))), 3, 8)])
            C += prio(Cfg.pp_b)
            G = softmax_groups(w, (t + 1) & 1) + [check_cmp(w)]
            sm = [g for g in G]
            it_ = items(21 + t)
            base = [I("; g", 'comment') for _ in sm]
            merged = spread(base, [(it_, 0, len(sm))])
            k = 0
            for c in merged:
                if c.kind == 'comment' and c.text == "; g": C += sm[k]; k += 1
                else: C.append(c)
            C += check_branch(w, (t + 1) & 1)
        else:
            C += prio(0)
            C += bar(21 + t)
            it_ = items(21 + t); h = (len(it_) * Cfg.dsplit + 99) // 100
            C += stream(w, qk(t + 1), Cfg.LA, pv(t), fillers=[(it_[:h], 0, nm), (one(l_accum(w, first=(t == 0))), 3, 8)])
            C += prio(1)
            C += stream(w, pv(t), Cfg.LA, nx, fillers=[(it_[h:], 1, nm + 1)] + sm_fillers(w, (t + 1) & 1, 2))
            C += check_branch(w, (t + 1) & 1)
    C += prio(0)
    C += bar(36)
    C += flat(items(36))
    C += st(74) + l_accum(w) + mode_vcc()
    C += stream(w, pv(15), 0, [], fillers=epi_fillers(w))
    C += st(75) + st(77, True)
    curT = item_slot(vidx(15)); curN = item_slot(kidx(15))
    C += add_addr(aT, wslot(0) - curT) + add_addr(aN, xbuf(0) - curN) + [V(f"v_subrev_u32 v{r}, s{sKX}, v{r}") for r in aN]
    C += round_advance()
    C += [branch("s_cbranch_scc1", "L_w2_round"), branch("s_branch", "L_o")]
    VM = ('dma', 'vload', 'vstore')
    def resolve(prefix, first):
        res = {}
        q = [(c.tag[0], c.tag[1]) if len(c.tag) == 3 and c.tag[2] in (True, 'next') else None for c in prefix if c.kind in VM and c.tag != ('cond',)]
        for c in C:
            if c.kind in VM:
                if c.tag == ('cond',): continue
                if c.tag[-1] in ('cond', 'next') and not first: continue
                q.append((c.tag[0], c.tag[1]) if len(c.tag) == 3 and c.tag[2] in (False, 'cond') else None)
            elif c.kind == 'comment' and c.tag and c.tag[0] == 'phantom':
                if not first: q += [None] * c.tag[1]
            elif c.kind == 'wait' and isinstance(c.tag[0], tuple):
                idx = c.tag[0][1]
                last = -1
                for k, it in enumerate(q):
                    if it is not None and first_use(it[0], it[1]) <= idx: last = k
                res[idx] = min(63, len(q) - 1 - last)
        return res
    r1 = resolve(pro, True); r2 = resolve(C, False)
    C2 = []
    for c in C:
        if c.kind == 'wait' and isinstance(c.tag[0], tuple):
            idx = c.tag[0][1]; n = min(r1[idx], r2[idx]); lg = c.tag[1]
            if abs(r1[idx] - r2[idx]) > 1:
                C2 += [S(f"s_cmp_eq_u32 s{sRound}, {0 if r1[idx] > r2[idx] else 1}"), branch("s_cbranch_scc1", f"L_rw{idx}"), wait(vm=n), label(f"L_rw{idx}")]
                n = max(r1[idx], r2[idx])
            c.text = f"s_waitcnt vmcnt({n})" + (f" lgkmcnt({lg})" if lg is not None else ""); c.tag = (n, lg)
        C2.append(c)
    C = C2
    pro, _ = finish(pro)
    C, q = finish(C, [], pre=pro[-12:])
    assert not q
    return pro + C + gen_opre(w), rare_routine(w, 0) + rare_routine(w, 1)

OSLOT = 40960
def oslot(u): return ((u + 2) & 3) * OSLOT
def o_voff(nh, VOFF, lane, a, b):
    if nh == 0: return [V(f"v_lshlrev_b32 v{VOFF}, 4, v{lane}")]
    return [V(f"v_lshrrev_b32 v{a}, 2, v{lane}"), V(f"v_mul_u32_u24 v{a}, 1280, v{a}"), V(f"v_bfe_u32 v{b}, v{lane}, 4, 1"), V(f"v_lshlrev_b32 v{b}, 1, v{b}"),
            V(f"v_and_b32 v{VOFF}, 3, v{lane}"), V(f"v_xor_b32 v{VOFF}, v{VOFF}, v{b}"), V(f"v_lshl_add_u32 v{VOFF}, v{VOFF}, 4, v{a}")]
def o_base(nh, sBase, sLd):
    C = [S(f"s_and_b32 s{sLd}, s{sWave}, 1"), S(f"s_mul_i32 s{sLd}, s{sLd}, 5120")]
    if nh == 0: C += [S(f"s_mul_i32 s{sBase}, s{sB}, {128*10240}"), S(f"s_add_u32 s{sBase}, s{sBase}, s{sLd}")]
    else: C += [S(f"s_lshl_b32 s{sBase}, s{sLd}, 2"), S(f"s_and_b32 s{sT2}, s{sG}, 3"), S(f"s_mul_i32 s{sT2}, s{sT2}, 320"), S(f"s_add_u32 s{sBase}, s{sBase}, s{sT2}"),
                S(f"s_add_u32 s{sLd}, s{sLd}, 10240")]
    step = 10240 if nh == 0 else 40960
    C += [S(f"s_add_u32 s{sT3}, s{sG}, s{sB}")] if Cfg.orot else [S(f"s_mov_b32 s{sT3}, 0")]
    for u in range(4):
        C += [S(f"s_add_u32 s{sT2}, s{sT3}, {u}"), S(f"s_and_b32 s{sT2}, s{sT2}, 3"), S(f"s_mul_i32 s{sOoff+u}, s{sT2}, {step}")]
    return C
def o_dma(nh, u, VOFF, sSo, sLd, goff=0, loff=0):
    step = 10240 if nh == 0 else 40960
    G = []
    if Cfg.o_skip & (1 << nh): return G
    for i in range(5):
        if nh == 0:
            imm = (i & 3) * 1024; ex = (i >> 2) * 4096
            g = [S(f"s_add_u32 m0, s{sLd}, {oslot(u) + ex + loff}"), S(f"s_add_u32 s{sT0}, s{sSo}, s{sOoff+u}")] + ([S(f"s_add_u32 s{sT0}, s{sT0}, {ex + goff}")] if ex + goff else []) if imm == 0 else []
            G.append(g + [dma(VOFF, sWS, f"s{sT0}", imm, Cfg.old_pol)])
        else:
            g = [S(f"s_add_u32 m0, s{sLd}, {oslot(u) + i*1024 - i*64 + loff}")]
            if i == 0: g += [S(f"s_add_u32 s{sT0}, s{sSo}, s{sOoff+u}")] + ([S(f"s_add_u32 s{sT0}, s{sT0}, {goff}")] if goff else [])
            G.append(g + [dma(VOFF, sWO, f"s{sT0}", i * 64)])
    return G
def gate(lab, POLL, vfl, shift):
    return [V(f"v_readfirstlane_b32 s{sT2}, v{POLL}"), S(f"s_bfe_u32 s{sT2}, s{sT2}, {0x40000 + shift:#x}"), S(f"s_cmp_lg_u32 s{sT2}, 15"),
            branch("s_cbranch_scc1", lab)]
def spin(lab, POLL, vfl, shift, back):
    return [label(lab), bload(1, POLL, vfl, sDBG, 0, 0, 'sc1'), S(f"s_sub_u32 s{sCnt}, s{sCnt}, 1"), S(f"s_cmp_lt_i32 s{sCnt}, 0"), branch("s_cbranch_scc1", back),
            wait(vm=0), V(f"v_readfirstlane_b32 s{sT2}, v{POLL}"), S(f"s_bfe_u32 s{sT2}, s{sT2}, {0x40000 + shift:#x}"), S(f"s_cmp_eq_u32 s{sT2}, 15"),
            branch("s_cbranch_scc1", back), raw(f"s_sleep {Cfg.xsleep}"), branch("s_branch", lab)]

def gen_opre(w):
    sSo, sLd = sTK, sTV
    C = []
    for u in range(2):
        C += [label(f"L_opre{u}"), S(f"s_bitcmp1_b32 s{sWave}, 1"), branch("s_cbranch_scc1", f"L_opre{u}_1")]
        for nh in range(2):
            step = 10240 if nh == 0 else 40960
            B = [label(f"L_opre{u}_{nh}")]
            if u == 0:
                t = w.tmp + 1
                B += lane_id(t) + o_voff(nh, w.oVoff, t, w.dummy, w.vTch) + o_base(nh, sSo, sLd)
                B += [S(f"s_and_b32 s{sT3}, s{sG}, 4"), S(f"s_mul_i32 s{sT3}, s{sT3}, {16*step}"), S(f"s_add_u32 s{sSo}, s{sSo}, s{sT3}")]
            for ks in range(2): B += flat(o_dma(nh, u, w.oVoff, sSo, sLd, goff=ks * 4 * step, loff=ks * 20480))
            B += [branch("s_branch", f"L_opre{u}_back")]
            C += fix_hazards(B)
    C += fix_hazards([label("L_g1"), S(f"s_mov_b32 s{sCnt}, 0x8000"), V(f"v_mov_b32 v{w.tmp+2}, s{sFlag}")] + spin("L_g1_spin", w.oPoll, w.tmp + 2, 0, "L_g1_back"))
    return C

def gen_o():
    ACC = 0; SET = [100, 140]
    aB, aA0, aA1 = 180, 182, 184
    VOFF, POLL, VFL, T, L16, POLL2 = 186, 187, 188, 190, 196, 198
    sSo, sHi, sNeed, sLd, sBase, sKs, sNq = 36, 37, 38, 39, 40, 43, 44
    st = lambda k, real=False: stamp(T, k, real)
    def acc(t): return ACC + 4 * t
    def fB(s_, jj): return SET[s_] + 4 * jj
    def fA(s_, nn): return SET[s_] + 20 + 4 * nn
    C = [label("L_o")] + st(80)
    if Cfg.prio: C += [raw("s_setprio 0")]
    lane = T; a = T + 1; b = T + 2
    C += lane_id(lane) + [V(f"v_lshlrev_b32 v{L16}, 4, v{lane}")]
    C += [S(f"s_lshr_b32 s{sKs}, s{sWave}, 2"), S(f"s_mul_i32 s{sT0}, s{sKs}, 20480"), S(f"s_and_b32 s{sT1}, s{sWave}, 1"), S(f"s_mul_i32 s{sT1}, s{sT1}, 5120"),
          S(f"s_add_u32 s{sT1}, s{sT0}, s{sT1}"),
          V(f"v_add_u32 v{aB}, s{sT1}, v{L16}"), V(f"v_add_u32 v{aB+1}, {2*OSLOT}, v{aB}"),
          V(f"v_lshrrev_b32 v{a}, 2, v{lane}"), V(f"v_bfe_u32 v{b}, v{lane}, 4, 1"), V(f"v_lshlrev_b32 v{b}, 5, v{b}"), V(f"v_lshl_add_u32 v{b}, v{a}, 6, v{b}"),
          V(f"v_and_b32 v{a}, 3, v{lane}"), V(f"v_lshl_add_u32 v{b}, v{a}, 3, v{b}"),
          S(f"s_add_u32 s{sT1}, s{sT0}, 10240"), V(f"v_add_u32 v{aA0}, s{sT1}, v{b}"), V(f"v_xor_b32 v{aA1}, 32, v{aA0}"),
          V(f"v_add_u32 v{aA0+1}, {2*OSLOT}, v{aA0}"), V(f"v_add_u32 v{aA1+1}, {2*OSLOT}, v{aA1}"),
          V(f"v_mov_b32 v{VFL}, s{sFlag}"), V(f"v_xor_b32 v{VFL+1}, 4, v{VFL}"), V(f"v_mov_b32 v{POLL}, 0"), V(f"v_mov_b32 v{POLL2}, 0"), S(f"s_and_b32 s{sNq}, s{sG}, 3"), S(f"s_mov_b32 s{sHi}, 0"), S(f"s_mov_b32 s{sNeed}, 0"),
          S(f"s_mov_b32 s{sCnt}, 0x8000"), S(f"s_mov_b32 s{sLoop}, 7")]
    C += [S(f"s_bitcmp1_b32 s{sWave}, 1"), branch("s_cbranch_scc1", "L_o_1")]
    C = fix_hazards(C)
    TS = [list(range(0, 7)), list(range(7, 13)), list(range(13, 19)), list(range(19, 25))]
    LW, LR, VO = T + 2, T + 3, T + 4
    RB = 200
    def epi_setup():
        return [[S(f"s_mul_i32 s{sT0}, s{sWave}, 13312"), S(f"s_cmp_ge_u32 s{sWave}, 2"), S(f"s_cselect_b32 s{sT2}, {81920 - 2*13312}, 0"), S(f"s_add_u32 s{sT0}, s{sT0}, s{sT2}"),
         V(f"v_add_u32 v{LW}, s{sT0}, v{L16}")],
         [S(f"s_xor_b32 s{sT1}, s{sWave}, 4"), S(f"s_mul_i32 s{sT0}, s{sT1}, 13312"), S(f"s_cmp_ge_u32 s{sT1}, 2"), S(f"s_cselect_b32 s{sT2}, {81920 - 2*13312}, 0"),
         S(f"s_add_u32 s{sT0}, s{sT0}, s{sT2}"), V(f"v_add_u32 v{LR}, s{sT0}, v{L16}")],
         [S(f"s_lshl_b32 s{sT0}, s2, 3"), S(f"s_add_u32 s{sT0}, s{sT0}, s{sWave}"), S(f"s_mul_i32 s{sSo}, s{sT0}, {SLAB}"), S(f"s_add_u32 s{sSo}, s{sSo}, {XCH_OFF}")],
         [S(f"s_xor_b32 s{sT0}, s{sT0}, 256"), S(f"s_mul_i32 s{sBase}, s{sT0}, {SLAB}"), S(f"s_add_u32 s{sBase}, s{sBase}, {XCH_OFF}"), V(f"v_add_u32 v{L16+1}, 4096, v{L16}")],
         [V(f"v_bfe_u32 v{VO}, v{L16}, 4, 4"), V(f"v_mul_u32_u24 v{VO}, 1280, v{VO}")], [V(f"v_lshrrev_b32 v{POLL}, 8, v{L16}"), V(f"v_lshl_add_u32 v{VO}, v{POLL}, 3, v{VO}")],
         [S(f"s_mul_i32 s{sLd}, s{sB}, 204800"), S(f"s_and_b32 s{sT0}, s{sWave}, 1"), S(f"s_mul_i32 s{sT0}, s{sT0}, 102400"), S(f"s_add_u32 s{sLd}, s{sLd}, s{sT0}")],
         [S(f"s_mul_i32 s{sT0}, s{sNq}, 320"), S(f"s_add_u32 s{sLd}, s{sLd}, s{sT0}"), S(f"s_bfe_u32 s{sT0}, s{sWave}, 0x10001"), S(f"s_mul_i32 s{sT0}, s{sT0}, 160"),
         S(f"s_add_u32 s{sLd}, s{sLd}, s{sT0}")],
         mode_vcc(),
         [S(f"s_lshr_b32 s{sHi}, s{sG}, 2"), S(f"s_lshl_b32 s{sT1}, s{sKs}, 1"), S(f"s_add_u32 s{sHi}, s{sHi}, s{sT1}")]]
    def poll_load(): return [bload(1, POLL, VFL, sDBG, 0, 0, 'sc1'), bload(1, POLL2, VFL + 1, sDBG, 0, 0, 'sc1')]
    for nh in range(2):
        step = 10240 if nh == 0 else 40960
        R_ = [label(f"L_o_{nh}")] + o_voff(nh, VOFF, lane, a, b) + o_base(nh, sBase, sLd) + [S(f"s_add_u32 s{sLd}, s{sLd}, s{sT0}")]
        def head_setup():
            return [S(f"s_and_b32 s{sT2}, s{sHi}, 3"), S(f"s_and_b32 s{sT3}, s{sG}, 4"), S(f"s_add_u32 s{sT2}, s{sT2}, s{sT3}"),
                    S(f"s_lshl_b32 s{sT2}, s{sT2}, 2"), S(f"s_lshr_b32 s{sT3}, s{sHi}, 2"), S(f"s_lshl_b32 s{sT3}, s{sT3}, 1"), S(f"s_add_u32 s{sT2}, s{sT2}, s{sT3}"),
                    S(f"s_add_u32 s{sT2}, s{sT2}, s{sKs}"), S(f"s_mul_i32 s{sT2}, s{sT2}, {4*step}"), S(f"s_add_u32 s{sSo}, s{sBase}, s{sT2}"),
                    S(f"s_add_u32 s{sHi}, s{sHi}, 1")]
        odma = lambda u: o_dma(nh, u, VOFF, sSo, sLd)
        def oreads(u):
            s_ = u & 1; hi = oslot(u) // (2 * OSLOT); off = oslot(u) % (2 * OSLOT)
            G = []
            for k in range(5):
                nb = 5 * nh + k
                ar = (aA1 if nb & 1 else aA0) + hi
                G.append([ds_read(2, fA(s_, k) + 2 * hh, ar, off + (hh * 5 + (nb >> 1)) * 1024, tr=True) for hh in range(2)])
                G.append([ds_read(4, fB(s_, k), aB + hi, off + k * 1024)])
            return G
        def omf(s_): return [mfma(acc(t), fA(s_, t % 5), fB(s_, t // 5), acc(t)) for t in range(25)]
        R_ += head_setup()
        R_ += [wait(vm=18), barrier()] + st(81) + st(82)
        R_ += flat(oreads(0)) + flat(odma(2))
        for r in range(50): R_.append(V(f"v_pk_mov_b32 v[{ACC+2*r}:{ACC+2*r+1}], 0, 0"))
        R_ += flat(odma(3))
        R_, q = finish(R_)
        def ostage(u, load=True, vm=None, extra=()):
            L = [wait(vm=vm, lgkm=0), barrier()]
            fill = [(oreads(u), 0, 16)]
            if load:
                if u == 1:
                    pre_ = head_setup()
                    fill.append((one(pre_), 0, 6))
                d = odma((u + 3) & 3)
                w0it = lambda lab: [S(f"s_lshl_b32 s{sT2}, s{sHi}, 3"), S(f"s_add_u32 s{sT2}, s{sT2}, s{sWave}"), S(f"s_cmp_lg_u32 s{sT2}, {4*8}"), branch("s_cbranch_scc1", lab)]
                if u == 2 and nh == 0: d = [w0it("L_p2") + poll_load() + [label("L_p2")]] + d
                if u == 0 and nh == 0: d = d + [w0it("L_g3_back") + gate("L_g2", POLL, VFL, 8) + [label("L_g2_back")] + gate("L_g3", POLL2, VFL + 1, 0) + [label("L_g3_back")]]
                if u == 2 and nh == 1:
                    d = [[S(f"s_lshl_b32 s{sT2}, s{sLoop}, 3"), S(f"s_add_u32 s{sT2}, s{sT2}, s{sWave}"), S(f"s_cmp_lg_u32 s{sT2}, {7*8+2}"), branch("s_cbranch_scc1", "L_nofl2"),
                          S(f"s_lshl_b32 s{sT2}, 0x100, s{sNq}")] + flag_add(T, f"s{sT2}", "L_nofl2")] + d
                fill.append((d, 7, 23))
            fill += list(extra)
            return L + spread(omf(1 - (u & 1)), fill)
        B = [label(f"L_o_loop{nh}")]
        if Cfg.ostamp:
            B += [raw(f"s_memtime s[{sStamp}:{sStamp+1}]"), wait(lgkm=0), V(f"v_mov_b32 v{T}, s{sStamp}"), S(f"s_lshl_b32 s{sStamp+1}, s{sLoop}, 2"), V(f"v_mov_b32 v{T+1}, s{sStamp+1}"),
                  bstore(1, T, T + 1, sWS, f"s{sStamp+2}", 4 * 108)]
        B += ostage(1, vm=Cfg.o_vm1)
        B += ostage(2, vm=10) + ostage(3, vm=10)
        B += ostage(0, vm=10, extra=[(one([S(f"s_sub_u32 s{sLoop}, s{sLoop}, 1"), S(f"s_cmp_lg_u32 s{sLoop}, 0")]), 23, 25)])
        B += [branch("s_cbranch_scc1", f"L_o_loop{nh}")]
        Bc, q2 = loop_finish(B, [], R_)
        E = ostage(1, load=False, vm=10) + ostage(2, load=False, vm=5, extra=[(epi_setup(), 2, 22)]) + ostage(3, load=False, vm=0) + [wait(lgkm=0)] + st(83)
        for v in range(1, 4): E += [S(f"s_cmp_eq_u32 s{sHi}, {v}"), branch("s_cbranch_scc1", f"L_o_epi{v}")]
        E += [branch("s_branch", "L_o_epi0")]
        if nh == 0: E += spin("L_g2", POLL, VFL, 8, "L_g2_back") + spin("L_g3", POLL2, VFL + 1, 0, "L_g3_back")
        E, _ = finish(E, q2, pre=Bc[-12:])
        C += R_ + Bc + E
    for v in range(4):
        ks, kh = v >> 1, v & 1
        mine = TS[v]; xsend = TS[v ^ 1]; keep = sorted(mine + xsend); lsend = sorted(TS[v ^ 2] + TS[v ^ 3])
        ls = lambda i: [raw(f"s_memtime s[{60+2*i}:{61+2*i}]"), wait(lgkm=0)] if Cfg.stamps == 6 else []
        E = [label(f"L_o_epi{v}")] + ls(0)
        order = lsend + xsend + mine
        mf = [mfma(acc(t), fA(1, t % 5), fB(1, t // 5), acc(t)) for t in order]
        wr = [[ds_write(4, LW, acc(t), i * 1024)] for i, t in enumerate(lsend)]
        E += spread(mf, [(wr, 4, 19)])
        E += [wait(lgkm=0)] + ls(1) + [barrier()] + ls(2)
        rorder = xsend + mine
        for i, t in enumerate(rorder): E.append(ds_read(4, RB + 4 * i, LR, keep.index(t) * 1024))
        for i, t in enumerate(rorder):
            for r in range(0, 4, 2): E.append(V(f"v_pk_add_f32 v[{acc(t)+r}:{acc(t)+r+1}], v[{acc(t)+r}:{acc(t)+r+1}], v[{RB+4*i+r}:{RB+4*i+r+1}]"))
            if t in xsend:
                k = xsend.index(t)
                E += dstore(4, acc(t), L16 + (k >> 2), sWS, f"s{sSo}", (k & 3) * 1024)
        E += st(84) + ls(3)
        n = len(mine)
        E += [V(f"v_mov_b32 v{POLL2}, 1"), V(f"v_mov_b32 v{VFL}, 7168"), wait(vm=0), S("s_mov_b64 exec, 1")] + dstore(1, POLL2, VFL, sWS, f"s{sSo}", 0)
        E += [label(f"L_x{v}"), bload(1, POLL, VFL, sWS, f"s{sBase}", 0, 'sc1'),
              S(f"s_sub_u32 s{sCnt}, s{sCnt}, 1"), S(f"s_cmp_lt_i32 s{sCnt}, 0"), branch("s_cbranch_scc1", f"L_x{v}_ok"), wait(vm=0),
              V(f"v_readfirstlane_b32 s{sT2}, v{POLL}"), S(f"s_cmp_eq_u32 s{sT2}, 1"), branch("s_cbranch_scc1", f"L_x{v}_ok"),
              raw(f"s_sleep {Cfg.xsleep2}"), branch("s_branch", f"L_x{v}"), label(f"L_x{v}_ok"), S("s_mov_b64 exec, -1")]
        ld = lambda pol: [bload(4, RB + 4 * k, L16 + (k >> 2), sWS, f"s{sBase}", (k & 3) * 1024, pol) for k in range(n)]
        SLOW.append([label(f"L_xl{v}")] + ld('sc1') + [branch("s_branch", f"L_xl{v}_b")])
        E += [branch("s_cbranch_vccz", f"L_xl{v}")] + ld('') + [label(f"L_xl{v}_b")]
        E += st(85) + ls(4)
        for k, t in enumerate(mine):
            a_ = acc(t)
            E.append(wait(vm=n - 1))
            for r in range(0, 4, 2): E.append(V(f"v_pk_add_f32 v[{a_+r}:{a_+r+1}], v[{a_+r}:{a_+r+1}], v[{RB+4*k+r}:{RB+4*k+r+1}]"))
            E += [V(f"v_cvt_pk_bf16_f32 v{a_}, v{a_}, v{a_+1}"), V(f"v_cvt_pk_bf16_f32 v{a_+1}, v{a_+2}, v{a_+3}"),
                  S(f"s_add_u32 s{sT0}, s{sLd}, {(t//5)*20480}"), bstore(2, a_, VO, sOUT, f"s{sT0}", (t % 5) * 32)]
        E += st(86) + st(77, True)
        if Cfg.stamps == 6:
            E += [wait(vm=0)] + ls(5) + [V(f"v_mov_b32 v{T+1}, 0"), V(f"v_mov_b32 v{T}, s{sCnt}"), bstore(1, T, T + 1, sWS, f"s{sStamp+2}", 4 * 106)]
            for i in range(6): E += [V(f"v_mov_b32 v{T}, s{60+2*i}"), bstore(1, T, T + 1, sWS, f"s{sStamp+2}", 4 * (100 + i))]
        if Cfg.dbgst and ks == 1:
            E += [S(f"s_cmp_lg_u32 s{sWave}, 4"), branch("s_cbranch_scc1", f"L_dbgend{v}"), S(f"s_cmp_lg_u32 s2, {Cfg.dbgst}"), branch("s_cbranch_scc1", f"L_dbgend{v}"),
                  S("s_mov_b64 exec, 1"), V("v_mov_b32 v1, 0")]
            for i, r in enumerate(DREG):
                E += [S(f"s_sub_u32 s{r}, s{r}, s{sStamp+2}"), S(f"s_lshr_b32 s{r}, s{r}, 8"), S(f"s_and_b32 s{r}, s{r}, 0x3ff"), S(f"s_lshl_b32 s{r}, s{r}, {12 + 10*(i&1)}"), V(f"v_mov_b32 v{2+i}, s{r}"),
                      raw(f"buffer_atomic_or v{2+i}, v1, s[{sDBG}:{sDBG+3}], 0 offen offset:{8*(i>>1)+4} sc1")]
            E += [label(f"L_dbgend{v}")]
        E += [raw("s_endpgm")]
        E, _ = finish(E)
        C += E
    return C

def gen_kernel(name):
    C = [raw(f".globl {name}\n.p2align 8\n.type {name},@function\n{name}:\nKSTART:", 'label')]
    C += [S("s_cmp_lt_u32 s2, 256"), branch("s_cbranch_scc1", "L_go"), raw("s_endpgm"), label("L_go")]
    C += [raw("s_load_dwordx16 s[56:71], s[0:1], 0")]
    if Cfg.dbgst: C += [raw(f"s_memtime s[{sStamp+2}:{sStamp+3}]")] + [S(f"s_mov_b32 s{r}, 0") for r in DREG]
    if Cfg.delay:
        C += [S(f"s_bitcmp0_b32 s2, {Cfg.delay_bit}"), branch("s_cbranch_scc1", "L_nodelay"), S(f"s_mov_b32 s{sT0}, {Cfg.delay // 1024}"), label("L_delay"), raw("s_sleep 16"),
              S(f"s_sub_u32 s{sT0}, s{sT0}, 1"), S(f"s_cmp_lg_u32 s{sT0}, 0"), branch("s_cbranch_scc1", "L_delay"), label("L_nodelay")]
    C += [V("v_lshrrev_b32 v1, 6, v0"),
          S(f"s_and_b32 s{sB}, s2, 7"), S(f"s_lshl_b32 s{sB}, s{sB}, 2"), V(f"v_readfirstlane_b32 s{sWave}, v1"),
          S(f"s_lshr_b32 s{sT0}, s2, 6"), S(f"s_add_u32 s{sB}, s{sB}, s{sT0}"), S(f"s_bfe_u32 s{sG}, s2, 0x30003")]
    C += [S(f"s_bfe_u32 s{sT0}, s{sWave}, 0x10001"), S(f"s_lshl_b32 s{sT2}, s{sG}, 2"), S(f"s_add_u32 s{sT2}, s{sT2}, s{sT0}"), S(f"s_lshl_b32 s{sWbase}, s{sT2}, 8"),
          S(f"s_cmp_lt_u32 s{sWave}, 4"), branch("s_cbranch_scc1", "L_w3"),
          S(f"s_and_b32 s{sT1}, s{sWave}, 1"), S(f"s_lshl_b32 s{sT2}, s{sT1}, 10"),
          S(f"s_lshl_b32 s{sLdsKV}, s{sT0}, 13"), S(f"s_add_u32 s{sLdsKV}, s{sLdsKV}, s{sT2}"),
          S(f"s_mul_i32 s{sLdsX}, s{sT0}, 10240"), S(f"s_add_u32 s{sLdsX}, s{sLdsX}, s{sT2}"),
          S(f"s_mul_i32 s{sXbase}, s{sB}, 204800"), S(f"s_mul_i32 s{sT2}, s{sT0}, 102400"), S(f"s_add_u32 s{sXbase}, s{sXbase}, s{sT2}")]
    if Cfg.rot:
        C += [S(f"s_lshr_b32 s{sRho}, s2, 6"), S(f"s_mul_i32 s{sRho}, s{sRho}, 5"), S(f"s_add_u32 s{sRho}, s{sRho}, 1"), S(f"s_lshr_b32 s{sRho}, s{sRho}, 1"),
              S(f"s_add_u32 s{sRho}, s{sRho}, s{sG}"), S(f"s_and_b32 s{sT2}, s2, 7"), S(f"s_add_u32 s{sRho}, s{sRho}, s{sT2}")]
        for _ in range(2): C += [S(f"s_sub_u32 s{sT2}, s{sRho}, 10"), S(f"s_cmp_ge_u32 s{sRho}, 10"), S(f"s_cselect_b32 s{sRho}, s{sT2}, s{sRho}")]
        if Cfg.rotn == 2: C += [S(f"s_and_b32 s{sRho}, s{sRho}, 1"), S(f"s_mul_i32 s{sRho}, s{sRho}, 5")]
        if Cfg.rotn == 4: C += [S(f"s_and_b32 s{sRho}, s{sRho}, 3"), S(f"s_mul_i32 s{sRho}, s{sRho}, 5"), S(f"s_lshr_b32 s{sRho}, s{sRho}, 1")]
    C = fix_hazards(C)
    w2, r2 = gen_w2(); w3, r3 = gen_w3()
    C += w2 + w3 + gen_o() + [label("KEND")] + r2 + r3 + flat(SLOW)
    for k, tag, par in CTX.stubs:
        C += [label(f"L_stub{k}"), raw(f"s_call_b64 s[{sRet}:{sRet+1}], L_rare_{tag}_{par}", 'branch'), branch("s_branch", f"L_back{k}")]
    return C

def kd(name, vgpr, accum, sgpr=102):
    return f""".section .rodata,"a"
.p2align 6
.amdhsa_kernel {name}
  .amdhsa_next_free_vgpr {vgpr}
  .amdhsa_next_free_sgpr {sgpr}
  .amdhsa_accum_offset {accum}
  .amdhsa_group_segment_fixed_size 0
  .amdhsa_kernarg_size 64
  .amdhsa_user_sgpr_count 2
  .amdhsa_user_sgpr_kernarg_segment_ptr 1
  .amdhsa_system_sgpr_workgroup_id_x 1
.end_amdhsa_kernel
"""

HDR = open('standalone__mha_block_cached__near_ridge.s.ref').read().split('; Override launch')[0]
def main(path):
    k1 = "standalone__mha_block_cached__near_ridge_kernel"
    s = HDR
    s += f"; @launch grid=(256,1,1) block=(512,1,1) lds={LDS_BYTES}\n"
    s += '.amdgcn_target "amdgcn-amd-amdhsa--gfx950"\n.text\n'
    s += emit(gen_kernel(k1))
    s += kd(k1, 256, 256)
    open(path, 'w').write(s)
if __name__ == '__main__':
    for a in sys.argv[2:]:
        k, v = a.split('=', 1); setattr(Cfg, k, eval(v))
    main(sys.argv[1] if len(sys.argv) > 1 else 'mha2.s')
```

```python
import sys, math, struct
from ir import *

SLOT = 16384
NSLOT = 10
NW, NX = 6, 3
WPERM = [4, 5, 1, 3, 0, 2]
def wslot(s): return WPERM[s % NW] * SLOT
def xbuf(u): return NW * SLOT + (u % NX) * 20480
WTAB = sum((((WPERM[(m + 1) % NW] - WPERM[m]) & 15) << (4 * m)) for m in range(NW))
LDS_BYTES = 163840
O_BYTES = 32 * 128 * 10 * 1024
XCH_OFF = O_BYTES
SLAB = 4096 + 128
XCH_WG = 8 * SLAB
MODE_LDS = LDS_BYTES - 4
WS_BYTES = XCH_OFF + 256 * XCH_WG
QSCALE = math.log2(math.e) / math.sqrt(128.0)
THR = 16384.0
def f2u(x): return "0x%08x" % struct.unpack('<I', struct.pack('<f', x))[0]

sK, sV, sW, sX, sWS, sWO, sOUT, sDBG = 8, 12, 16, 20, 24, 28, 76, 80
sWave, sRound, sB, sG = 32, 33, 34, 35
sKVbase, sWbase, sXbase, sLdsKV, sLdsX = 36, 37, 38, 39, 40
sT0, sT1 = 41, 42
sKpos, sVpos, sD, sCnt, sXd, sLoop = 43, 44, 45, 49, 50, 51
sRet = 46
sOst = 48
sKX, sFlag = 52, 53
sT2, sT3 = 54, 55
sQS, sC16, sC32, sCX = 72, 73, 74, 75
sTK, sTV, sCnt2 = 88, 89, 90
sMode = 91
sRho, sT4 = 3, 87
sOoff = 56
sStamp = 84
DBG_OFF = 96 << 20

class Cfg:
    stamps = False
    dbgst = False
    dsl = None
    rot = True
    orot = True
    warm0 = False
    delay = 0
    delay_bit = 7
    LA = 7
    kv_pol = 'nt'
    touch_pol = ''
    touch_at = []
    warm = True
    xsleep = 8
    kv_same = False
    kvgrp = 1
    pace = 0.0
    lead = 2
    tbatch = []
    qr3 = 18
    qr2 = 15
    orh = 20
    od0 = 1
    od1 = 24
    ofirst = True
    qd0 = 0
    qprio = 1
    ofast_pol = ''
    fast0 = False
    out_pol = ''
    dsplit = 100
    rotn = 10
    late = 8
    smpure = 0.7
    pp = False
    pp_a = 1
    pp_b = 0
    ostamp = False
    xsleep2 = 2
    dual = True
    fast = True
    codetouch2 = True
    codetouch = True
    qcut = 4
    prio = 2
    no_sm = False
    no_dma = False
    no_exp = False
    no_chk = False
    no_ds = False
    no_adv = False
    ost_pol = 'sc1'
    old_pol = 'sc1'
    o_skip = 0
    o_vm1 = 10
    smend = 3

RT4 = {7: 90, 39: 91, 45: 92, 73: 93, 82: 94, 83: 95}
STAMP3 = (0, 1, 7, 39, 41, 43, 45, 73, 75, 76, 77, 80, 81, 82, 83, 84, 85, 86)
DSL = {(1, 0): 0, (41, 0): 1, (45, 0): 2, (73, 0): 3, (1, 1): 4, (41, 1): 5, (45, 1): 6, (73, 1): 7, (80, 2): 8, (82, 2): 9, (83, 2): 10, (84, 2): 11, (85, 2): 12, (86, 2): 13}
sDS = 4
DREG = [4, 5, 6, 7, 101, 92, 93, 94, 95, 96, 97, 98, 99, 100]
def stamp(t, k, real=False):
    if Cfg.dbgst:
        if real: return []
        dsl = DSL if not Cfg.dsl else {(2 * b + 1, Cfg.dsl[0]): i for i, b in enumerate(Cfg.dsl[1:])}
        hits = [(r, i) for (kk, r), i in dsl.items() if kk == k]
        if not hits: return []
        out = [raw(f"s_memtime s[{sStamp}:{sStamp+1}]"), wait(lgkm=0)]
        for r, i in hits:
            out += [S(f"s_cmp_eq_u32 s{sRound}, {r}"), S(f"s_cselect_b32 s{DREG[i]}, s{sStamp}, s{DREG[i]}")]
        return out
    if not Cfg.stamps: return []
    if Cfg.stamps == 6: return []
    if Cfg.stamps == 4 and not real and k in RT4:
        Cfg.stamps = 5; r = stamp(t, k) + stamp(t, RT4[k], True); Cfg.stamps = 4; return r
    if Cfg.stamps in (3, 4) and k not in STAMP3: return []
    return [raw(f"{'s_memrealtime' if real else 's_memtime'} s[{sStamp}:{sStamp+1}]"), wait(lgkm=0), V(f"v_mov_b32 v{t}, s{sStamp}"), V(f"v_mov_b32 v{t+1}, 0"),
            S(f"s_and_b32 s{sStamp+1}, s{sRound}, 1"), S(f"s_lshl_b32 s{sStamp+1}, s{sStamp+1}, 9"), S(f"s_add_u32 s{sStamp+1}, s{sStamp+1}, s{sStamp+2}"),
            bstore(1, t, t + 1, sWS, f"s{sStamp+1}", 4 * k, tag=('misc',))]

def item_slot(n): return (n % NSLOT) * SLOT
def kidx(t): return 0 if t == 0 else 2 * t - 1
def vidx(t): return 2 * t + 2

class Wave:
    def __init__(self, nq):
        self.nq = nq
        n = nq
        p = 0
        self.O = p; p += 32 * n
        self.Q = p; p += 16 * n
        self.NM = p; p += 4 * n
        self.S = p; p += 8 * n
        self.P = p; p += 8 * n
        self.L = p; p += n
        self.LT = p; p += n
        self.T = p; p += 4
        self.aN = p; p += 2
        self.aT = p; p += 4
        p = (p + 3) & ~3
        self.F = p; self.NF = 8; p += 32
        self.dummy = p; p += 1
        self.tmp = p; p += 3
        if nq == 2:
            self.vK = p; self.vV = p + 1; self.vW = p + 2; self.vX = p + 3; self.vTch = p + 4; self.oVoff = p + 5; self.oPoll = p + 6; p += 7
        assert p <= 256, p
        self.end = p
        setsz = 32 + 4 * n
        if nq == 3:
            self.set = [self.Q, self.S]
        else:
            q = (p + 3) & ~3
            self.set = [self.Q, q]
            assert q + setsz <= 256
        self.tag = f"w{nq}"
        self.fpos = 0
    def o(self, T, j): return self.O + (T * self.nq + j) * 4
    def q(self, s, j): return self.Q + (s * self.nq + j) * 4
    def nm(self, j): return self.NM + 4 * j
    def s(self, kb, j): return self.S + (kb * self.nq + j) * 4
    def p(self, par, j): return self.P + (par * self.nq + j) * 4
    def fa(self, st, T): return self.set[st] + 4 * T
    def fb(self, st, j): return self.set[st] + 32 + 4 * j

def spread(base, fillers):
    ins = [[] for _ in range(len(base) + 1)]
    for groups, lo, hi in fillers:
        n = len(groups)
        if n == 0: continue
        hi = min(hi, len(base)); lo = min(lo, hi)
        span = hi - lo
        for k, gI in enumerate(groups):
            pos = lo + (k * span) // n + 1 if span > 0 else lo
            ins[min(pos, len(base))].extend(gI)
    out = list(ins[0])
    for i, b in enumerate(base):
        out.append(b); out.extend(ins[i + 1])
    return out

def frag_K(w, s, kb, first_c):
    def reads(f): return [ds_read(4, f, w.aN + (s & 1), kb * 4096 + (s >> 1) * 2048)]
    def mf(f):
        out = []
        for j in range(w.nq):
            c = w.s(kb, j) if s > 0 else (None if first_c == 'zero' else w.nm(j))
            out.append(mfma(w.s(kb, j), f, w.q(s, j), c))
        return out
    return dict(reads=reads, mf=mf, pre=[])
def frags_QK(w, first_c='negm', pre=()):
    fr = [frag_K(w, s, kb, first_c) for s in range(4) for kb in range(2)]
    fr[0]['pre'] = list(pre)
    return fr
def frag_V(w, db, par, zero):
    def reads(f): return [ds_read(2, f + 2 * hh, w.aT + (db & 3), hh * 4096 + (db >> 2) * 2048, tr=True) for hh in range(2)]
    def mf(f): return [mfma(w.o(db, j), f, w.p(par, j), None if zero else w.o(db, j)) for j in range(w.nq)]
    return dict(reads=reads, mf=mf, pre=[])
def frags_PV(w, par, zero=False, pre=()):
    fr = [frag_V(w, db, par, zero) for db in range(8)]
    fr[0]['pre'] = list(pre)
    return fr

def stream(w, frags, preloaded, nxt, fillers=(), lead=()):
    LA = Cfg.LA
    allf = list(frags) + list(nxt[:LA])
    head = []
    def issue(i):
        f = allf[i]
        return ([] if Cfg.no_adv else list(f['pre'])) + ([] if Cfg.no_ds else f['reads'](w.F + 4 * ((w.fpos + i) % w.NF)))
    for i in range(preloaded, min(LA, len(allf))): head += issue(i)
    base = list(lead); extra = []
    for i, f in enumerate(frags):
        m = f['mf'](w.F + 4 * ((w.fpos + i) % w.NF))
        base += m
        post = []
        if i + LA < len(allf) and i + LA >= preloaded: post += issue(i + LA)
        if post: extra.append(([post], len(base) - 1, len(base)))
    body = spread(base, list(extra) + list(fillers))
    w.fpos = (w.fpos + len(frags)) % w.NF
    return head + body

def softmax_groups(w, par):
    G = []
    k = 0
    for kb in range(2):
        for j in range(w.nq):
            for h in range(2):
                t0 = w.T + 2 * (k & 1); t1 = t0 + 1; k += 1
                sr = w.s(kb, j) + 2 * h
                G.append([V(f"v_exp_f32 v{t0}, v{sr}")])
                G.append([V(f"v_exp_f32 v{t1}, v{sr+1}")])
                lt = w.LT + j
                if kb == 0 and h == 0:
                    G.append(('late', [V(f"v_add_f32 v{lt}, v{t0}, v{t1}"), V(f"v_cvt_pk_bf16_f32 v{w.p(par,j)+2*kb+h}, v{t0}, v{t1}")]))
                else:
                    G.append(('late', [V(f"v_add_f32 v{lt}, v{lt}, v{t0}"), V(f"v_cvt_pk_bf16_f32 v{w.p(par,j)+2*kb+h}, v{t0}, v{t1}"),
                                       V(f"v_add_f32 v{lt}, v{lt}, v{t1}")]))
    if Cfg.no_sm: return [[V(f"v_mov_b32 v{w.LT+j}, 1.0")] for j in range(w.nq)]
    if Cfg.no_exp:
        for gI in G:
            if not isinstance(gI, tuple): gI[0] = V(gI[0].text.replace('v_exp_f32', 'v_mov_b32'))
    out = []; pend = None
    for gI in G:
        if isinstance(gI, tuple):
            pend = gI[1]
        else:
            out.append(gI)
            if pend is not None:
                out.append(pend); pend = None
    if pend is not None: out.append(pend)
    return out

class Ctx:
    def __init__(self): self.stubs = []; self.n = 0
CTX = Ctx()

SLOW = []
def dstore(n, src, voff, srd_, soff, imm, tag=None, pol=''):
    if not Cfg.dual: return [bstore(n, src, voff, srd_, soff, imm, 'sc1', tag=tag)]
    k = len(SLOW)
    SLOW.append([label(f"L_slow{k}"), bstore(n, src, voff, srd_, soff, imm, 'sc1'), branch("s_branch", f"L_slowb{k}")])
    return [branch("s_cbranch_vccz", f"L_slow{k}"), bstore(n, src, voff, srd_, soff, imm, pol, tag=tag), label(f"L_slowb{k}")]
def mode_vcc(): return [S(f"s_and_b32 s{sT1}, s{sMode}, s{sMode if Cfg.fast0 else sRound}"), S("s_cselect_b64 vcc, -1, 0")]
def mode_read(t):
    return [[V(f"v_mov_b32 v{t}, {MODE_LDS}"), ds_read(1, t, t, 0)],
            [V(f"v_readfirstlane_b32 s{sT1}, v{t}"), S(f"s_cmp_eq_u32 s{sRound}, 0"), S(f"s_cselect_b32 s{sMode}, s{sT1}, s{sMode}")]]

def check_cmp(w):
    if Cfg.no_chk: return []
    out = []
    if w.nq == 3: out.append(V(f"v_max3_f32 v{w.tmp}, v{w.LT}, v{w.LT+1}, v{w.LT+2}"))
    else: out.append(V(f"v_max_f32 v{w.tmp}, v{w.LT}, v{w.LT+1}"))
    out.append(I(f"v_cmp_nge_f32 vcc, {f2u(THR)}, v{w.tmp}", 'valu', wr={('s', 'vcc')}, rd=regs(w.tmp)))
    return out
def check_branch(w, par):
    if Cfg.no_chk: return []
    k = CTX.n; CTX.n += 1
    CTX.stubs.append((k, w.tag, par))
    return [branch("s_cbranch_vccnz", f"L_stub{k}"), label(f"L_back{k}")]
def l_accum(w, first=False):
    if first: return [V(f"v_mov_b32 v{w.L+j}, v{w.LT+j}") for j in range(w.nq)]
    return [V(f"v_add_f32 v{w.L+j}, v{w.L+j}, v{w.LT+j}") for j in range(w.nq)]
def sm_fillers(w, par, lo):
    nm = 8 * w.nq
    return [(softmax_groups(w, par) + [check_cmp(w)], lo, nm - Cfg.smend)]

def xlane(op, r, t):
    return [V(f"v_mov_b32 v{t}, v{r}"), V(f"v_permlane32_swap_b32 v{r}, v{t}"), V(f"{op} v{r}, v{r}, v{t}"),
            V(f"v_mov_b32 v{t}, v{r}"), V(f"v_permlane16_swap_b32 v{r}, v{t}"), V(f"{op} v{r}, v{r}, v{t}")]

def tile_max(w, j, dst):
    a, b = w.s(0, j), w.s(1, j)
    return [V(f"v_max3_f32 v{dst}, v{a}, v{a+1}, v{a+2}"), V(f"v_max3_f32 v{dst}, v{dst}, v{a+3}, v{b}"),
            V(f"v_max3_f32 v{dst}, v{dst}, v{b+1}, v{b+2}"), V(f"v_max_f32 v{dst}, v{dst}, v{b+3}")]

def first_max(w):
    out = []
    for j in range(w.nq): out += tile_max(w, j, w.LT + j)
    seqs = [xlane("v_max_f32", w.LT + j, w.T + j) for j in range(w.nq)]
    for k in range(6):
        for sq in seqs: out.append(sq[k])
    for j in range(w.nq):
        for r in range(4): out.append(V(f"v_sub_f32 v{w.nm(j)+r}, 0, v{w.LT+j}"))
        for kb in range(2):
            for r in range(4): out.append(V(f"v_sub_f32 v{w.s(kb,j)+r}, v{w.s(kb,j)+r}, v{w.LT+j}"))
    return out

def rare_routine(w, par):
    out = [label(f"L_rare_{w.tag}_{par}"), nop(15)]
    for j in range(w.nq):
        d = w.LT + j; f = w.T + 1
        out += tile_max(w, j, d)
        out += xlane("v_max_f32", d, w.T)
        out.append(V(f"v_max_f32 v{d}, 0, v{d}"))
        out.append(V(f"v_sub_f32 v{f}, 0, v{d}"))
        out.append(V(f"v_exp_f32 v{f}, v{f}"))
        for r in range(4): out.append(V(f"v_sub_f32 v{w.nm(j)+r}, v{w.nm(j)+r}, v{d}"))
        for kb in range(2):
            for r in range(4): out.append(V(f"v_sub_f32 v{w.s(kb,j)+r}, v{w.s(kb,j)+r}, v{d}"))
        out.append(V(f"v_mul_f32 v{w.L+j}, v{w.L+j}, v{f}"))
        for T in range(8):
            for r in range(4): out.append(V(f"v_mul_f32 v{w.o(T,j)+r}, v{w.o(T,j)+r}, v{f}"))
    for gI in softmax_groups(w, par): out += gI
    out.append(nop(3))
    out.append(raw(f"s_setpc_b64 s[{sRet}:{sRet+1}]", 'branch'))
    return fix_hazards(out)

def q_reads(w, st, sl):
    G = []
    for j in range(w.nq): G.append([ds_read(4, w.fb(st, j), w.aN + sl, j * 2048)])
    for T in range(8):
        for hh in range(2):
            G.append([ds_read(2, w.fa(st, T) + 2 * hh, w.aT + ((T >> 1) & 1), hh * 4096 + (T >> 2) * 2048 + (T & 1) * 8, tr=True)])
    return G
def q_mfmas(w, st, zero):
    return [mfma(w.o(T, j), w.fa(st, T), w.fb(st, j), None if zero else w.o(T, j)) for T in range(8) for j in range(w.nq)]

def q_pack_groups(w, s):
    G = []
    for j in range(w.nq):
        for half in range(2):
            a = w.o(2 * s + half, j)
            for r in range(4): G.append([V(f"v_mul_f32 v{a+r}, s{sQS}, v{a+r}")])
            G.append([V(f"v_cvt_pk_bf16_f32 v{w.q(s,j)+2*half}, v{a}, v{a+1}")])
            G.append([V(f"v_cvt_pk_bf16_f32 v{w.q(s,j)+2*half+1}, v{a+2}, v{a+3}")])
    return G
def q_pack_fillers(w):
    n = w.nq
    rng = [(2 * n + 2, 5 * n), (5 * n, 8 * n), (8 * n, 11 * n), (11 * n, 14 * n - 1)]
    return [(q_pack_groups(w, s), rng[s][0], rng[s][1]) for s in range(4)]

def l_reduce(w):
    out = []
    seqs = [xlane("v_add_f32", w.L + j, w.T + j) for j in range(w.nq)]
    for k in range(6):
        for sq in seqs: out.append(sq[k])
    for j in range(w.nq): out.append(V(f"v_rcp_f32 v{w.L+j}, v{w.L+j}"))
    out += [V(f"v_mbcnt_lo_u32_b32 v{w.tmp}, -1, 0"), V(f"v_mbcnt_hi_u32_b32 v{w.tmp}, -1, v{w.tmp}"), V(f"v_lshlrev_b32 v{w.tmp}, 4, v{w.tmp}")]
    return out
def epi_groups(w, s):
    G = []
    for j in range(w.nq):
        d = w.q(s, j)
        for half in range(2):
            a = w.o(2 * s + half, j)
            for r in range(4): G.append([V(f"v_mul_f32 v{a+r}, v{a+r}, v{w.L+j}")])
            G.append([V(f"v_cvt_pk_bf16_f32 v{d+2*half}, v{a}, v{a+1}")])
            G.append([V(f"v_cvt_pk_bf16_f32 v{d+2*half+1}, v{a+2}, v{a+3}")])
        G.append([S(f"s_add_u32 s{sT1}, s{sOst}, {s*10240}")] + dstore(4, d, w.tmp, sWS, f"s{sT1}", j * 1024, tag=('O', 0, True), pol=Cfg.ofast_pol))
    return G
def epi_fillers(w):
    n = w.nq
    rng = [(2 * n + 2, 4 * n + 2), (4 * n + 2, 6 * n + 2), (6 * n + 2, 8 * n), (8 * n, 8 * n)]
    return [([[i] for i in l_reduce(w)], 0, 2 * n + 1)] + [(epi_groups(w, s), rng[s][0], rng[s][1]) for s in range(4)]

def flat(G): return [i for g in G for i in g]
def one(L): return [[i] for i in L]

def dma_kv(w, kind, t, nxt_round, tag):
    srd_ = sK if kind == 'K' else sV
    voff = w.vK if kind == 'K' else w.vV
    n = kidx(t) if kind == 'K' else vidx(t)
    lds = item_slot(n)
    goff = t * 8192 + (262144 if nxt_round else 0)
    G = []
    for a in range(2):
        for seg in range(2):
            G.append([S(f"s_add_u32 m0, s{sLdsKV}, {lds + a*4096 + seg*2048 - seg*128}"),
                      S(f"s_add_u32 s{sT0}, s{sKVbase}, {goff + a*4096}"),
                      dma(voff, srd_, f"s{sT0}", seg * 128, Cfg.kv_pol, tag=tag)])
    if Cfg.kvgrp == 2: G = [G[0] + [G[1][0], G[1][2]], G[2] + [G[3][0], G[3][2]]]
    if Cfg.kvgrp == 4: G = [G[0] + [G[1][0], G[1][2]] + G[2] + [G[3][0], G[3][2]]]
    return G
def rot_off(u, unit, base):
    if not Cfg.rot: return [S(f"s_add_u32 s{sT4}, s{base}, {u*unit}")]
    return [S(f"s_cmp_ge_u32 s{sRho}, {10-u}"), S(f"s_cselect_b32 s{sT4}, {u-10}, {u}"), S(f"s_add_u32 s{sT4}, s{sT4}, s{sRho}"),
            S(f"s_mul_i32 s{sT4}, s{sT4}, {unit}"), S(f"s_add_u32 s{sT4}, s{sT4}, s{base}")]
def dma_w(w, s, nxt_round, tag):
    lds = wslot(s)
    goff = (s & 1) * 32 * 8192 + (512 if nxt_round else 0)
    G = []
    for hh in range(2):
        for seg in range(2):
            G.append([S(f"s_add_u32 m0, s{sLdsKV}, {lds + hh*4096 + seg*2048 - seg*128}"),
                      S(f"s_add_u32 s{sT0}, s{sT4}, {goff + hh*32768}"),
                      dma(w.vW, sW, f"s{sT0}", seg * 128, tag=tag)])
    G[0] = rot_off(s >> 1, 64 * 8192, sWbase) + G[0]
    return G
def dma_x(w, u, tag):
    G = []
    for i in range(5):
        G.append([S(f"s_add_u32 m0, s{sLdsX}, {xbuf(u) + i*2048}"),
                  S(f"s_add_u32 s{sT0}, s{sT4}, {i*20480}"),
                  dma(w.vX, sX, f"s{sT0}", 0, tag=tag)])
    G[0] = rot_off(u, 128, sXbase) + G[0]
    return G
def touch_kv(w, kind):
    srd_, ptr = (sK, sTK) if kind == 'K' else (sV, sTV)
    return [[bload(1, w.dummy, w.vTch, srd_, f"s{ptr}", 0, Cfg.touch_pol, tag=('misc',)), S(f"s_add_u32 s{ptr}, s{ptr}, 4096")]]

NAMES = {}
for _t in range(16):
    NAMES[kidx(_t)] = ('K', _t); NAMES[vidx(_t)] = ('V', _t)
def first_use(kind, i):
    if kind == 'W': return i
    if kind == 'X': return 2 * i
    if kind == 'K': return 20 if i == 0 else 19 + i
    if kind == 'V': return 21 + i
    if kind == 'O': return 3
    if kind == 'P': return 35

def loader_schedule(w):
    sch = {i: [] for i in range(37)}
    r0 = lambda G, lab: [[S(f"s_cmp_lg_u32 s{sRound}, 0"), branch("s_cbranch_scc1", lab)] + flat(G) + [label(lab)]]
    sch[0] += r0(dma_w(w, 2, False, ('W', 2, 'cond')), "L_r0a") + dma_x(w, 1, ('X', 1, False)) + r0(dma_w(w, 3, False, ('W', 3, 'cond')), "L_r0b")
    sch[1] += dma_w(w, 4, False, ('W', 4, False)) + dma_x(w, 2, ('X', 2, False))
    sch[2] += dma_w(w, 5, False, ('W', 5, False))
    for s in range(NW, 20): sch[max(s - NW + 1, 3)] += dma_w(w, s, False, ('W', s, False))
    for u in range(NX, 10): sch[2 * (u - NX) + 2] += dma_x(w, u, ('X', u, False))
    if not Cfg.no_dma:
        first = {0: 17, 1: 15, 2: 18, 3: 16, 4: 19, 5: 20, 6: 20, 7: 20, 8: 18, 9: 19}
        for n in range(10): sch[first[n]] += dma_kv(w, *NAMES[n], False, NAMES[n] + (False,))
        for n in range(10, 33):
            if n not in NAMES: continue
            k, t = NAMES[n - 10]
            last = (20 + t) if k == 'K' else min(22 + t, 36)
            rem = [m for m in range(10, 33) if m in NAMES]
            paced = 21 + int(rem.index(n) * Cfg.pace)
            when = max(last + 1, min(paced, first_use(*NAMES[n]) - Cfg.lead))
            sch[when] += dma_kv(w, *NAMES[n], False, NAMES[n] + (False,))
    for idx, ss in ((33, (2, 3)), (34, (0, 1))):
        for s_ in ss: sch[idx] += r0(dma_w(w, s_, True, ('W', s_, 'next')), f"L_r0w{s_}")
    w4first = lambda lab: [S(f"s_lshl_b32 s{sT1}, s{sRound}, 3"), S(f"s_add_u32 s{sT1}, s{sT1}, s{sWave}"), S(f"s_cmp_lg_u32 s{sT1}, 4"), branch("s_cbranch_scc1", lab)]
    sch[7] = [w4first("L_p0") + [S(f"s_lshl_b32 s{sT1}, s{sB}, 3"), V(f"v_mov_b32 v{w.tmp+2}, s{sT1}"), bload(1, w.oPoll, w.tmp + 2, sDBG, 0, 0, 'sc1', tag=('cond',)), label("L_p0")]] + sch[7]
    sch[14] += [w4first("L_m0") + [V(f"v_readfirstlane_b32 s{sT1}, v{w.oPoll}"), S(f"s_bfe_u32 s{sT2}, s{sT1}, 0x80010"), S(f"s_lshr_b32 s{sT1}, s{sT1}, 24"),
                 S(f"s_bcnt1_i32_b32 s{sT1}, s{sT1}"), S(f"s_lshl_b32 s{sT1}, s{sT1}, 8"), S(f"s_or_b32 s{sT1}, s{sT1}, s{sT2}"), S(f"s_cmp_eq_u32 s{sT1}, 0x1ff"),
                 S(f"s_cselect_b32 s{sT1}, {3 if Cfg.fast else 0}, 0"), V(f"v_mov_b32 v{w.tmp+1}, s{sT1}"), V(f"v_mov_b32 v{w.tmp+2}, {MODE_LDS}"),
                 raw(f"ds_write_b32 v{w.tmp+2}, v{w.tmp+1}"), label("L_m0")]]
    mr = mode_read(w.T)
    sch[17] = [mr[0]] + sch[17]; sch[18] = [mr[1]] + sch[18]
    w4last = lambda lab: [S(f"s_lshl_b32 s{sT1}, s{sRound}, 3"), S(f"s_add_u32 s{sT1}, s{sT1}, s{sWave}"), S(f"s_cmp_lg_u32 s{sT1}, 12"), branch("s_cbranch_scc1", lab)]
    sch[29] = [w4last("L_p1") + [V(f"v_mov_b32 v{w.tmp+2}, s{sFlag}"), bload(1, w.oPoll, w.tmp + 2, sDBG, 0, 0, 'sc1', tag=('cond',)), label("L_p1")]] + sch[29]
    sch[34] += [w4last("L_g1_back") + gate("L_g1", w.oPoll, w.tmp + 2, 0) + [label("L_g1_back")]]
    for u in range(2):
        alt = flat(dma_x(w, 0, ('X', 0, 'next'))) if u == 0 else []
        sch[35 + u] += [[S(f"s_cmp_lg_u32 s{sRound}, 0"), branch("s_cbranch_scc1", f"L_opre{u}")] + alt + [label(f"L_opre{u}_back"), I("; opre", 'comment', tag=('phantom', 0 if Cfg.o_skip else 10))]]
    if not Cfg.no_dma:
        for i, idx in enumerate(sorted(Cfg.touch_at)): sch[idx] += touch_kv(w, 'KV'[i & 1])
        for idx, goff in Cfg.tbatch:
            sch[idx] += [[S(f"s_add_u32 s{sT0}, s{sKVbase}, {goff}"), bload(1, w.dummy, w.vTch, sK, f"s{sT0}", 0, Cfg.touch_pol, tag=('misc',)),
                          bload(1, w.dummy, w.vTch, sV, f"s{sT0}", 0, Cfg.touch_pol, tag=('misc',))]]
    return sch

def lane_id(r): return [V(f"v_mbcnt_lo_u32_b32 v{r}, -1, 0"), V(f"v_mbcnt_hi_u32_b32 v{r}, -1, v{r}")]
def lane_setup(w):
    t = w.F + 8
    lane, i16, g, a, b, c = t, t + 1, t + 2, t + 3, t + 4, t + 5
    o = lane_id(lane) + [V(f"v_and_b32 v{i16}, 15, v{lane}"), V(f"v_lshrrev_b32 v{g}, 4, v{lane}")]
    o += [V(f"v_lshrrev_b32 v{a}, 1, v{i16}"), V(f"v_xor_b32 v{a}, v{a}, v{g}"), V(f"v_lshlrev_b32 v{a}, 4, v{a}"),
          V(f"v_lshl_add_u32 v{w.aN}, v{i16}, 7, v{a}"), V(f"v_xor_b32 v{w.aN+1}, 64, v{w.aN}")]
    o += [V(f"v_lshrrev_b32 v{a}, 2, v{lane}"), V(f"v_and_b32 v{b}, 6, v{a}"),
          V(f"v_bfe_u32 v{c}, v{lane}, 1, 1"), V(f"v_xor_b32 v{b}, v{b}, v{c}"), V(f"v_lshlrev_b32 v{b}, 4, v{b}"),
          V(f"v_lshl_add_u32 v{b}, v{a}, 7, v{b}"),
          V(f"v_and_b32 v{c}, 1, v{lane}"), V(f"v_lshl_add_u32 v{w.aT}, v{c}, 3, v{b}")]
    for dq in range(1, 4): o.append(V(f"v_xor_b32 v{w.aT+dq}, {dq<<5}, v{w.aT}"))
    return o
def voff_setup(w):
    t = w.F + 16
    r8, p, a, b, row = t, t + 1, t + 2, t + 3, t + 4
    o = [V(f"v_bfe_u32 v{row}, v0, 3, 4"),
         V(f"v_and_b32 v{p}, 7, v0"),
         V(f"v_lshrrev_b32 v{a}, 1, v{row}"), V(f"v_xor_b32 v{a}, v{a}, v{p}"), V(f"v_lshlrev_b32 v{a}, 4, v{a}"),
         V(f"v_and_b32 v{b}, 6, v{row}"), V(f"v_xor_b32 v{b}, v{b}, v{p}"), V(f"v_lshlrev_b32 v{b}, 4, v{b}"),
         V(f"v_and_b32 v{p}, 12, v{row}"), V(f"v_add_u32 v{p}, v{p}, v{row}"), V(f"v_lshl_add_u32 v{w.vW}, v{p}, 13, v{b}"),
         V(f"v_mul_u32_u24 v{p}, 1280, v{row}"), V(f"v_add_u32 v{w.vX}, v{p}, v{a}")]
    o2 = [V(f"v_lshl_add_u32 v{w.vK}, v{row}, 8, v{a}"), V(f"v_lshl_add_u32 v{w.vV}, v{row}, 8, v{b}"),
          V(f"v_and_b32 v{p}, 63, v0"), V(f"v_lshlrev_b32 v{p}, 6, v{p}"), V(f"v_bfe_u32 v{r8}, v0, 6, 1"), V(f"v_lshl_add_u32 v{w.vTch}, v{r8}, 12, v{p}")]
    return o, o2

def add_addr(regs_, delta):
    if delta == 0: return []
    if isinstance(delta, str): return [V(f"v_add_u32 v{r}, {delta}, v{r}") for r in regs_]
    return [V(f"v_add_u32 v{r}, {delta & 0xffffffff:#x}, v{r}") for r in regs_]

def to_w(w, cur):
    t = w.T
    return add_addr([w.aT + 2, w.aT + 3], item_slot(vidx(0)) - cur) + add_addr([w.aT], wslot(0) - cur) + [
        V(f"v_bfe_u32 v{t}, v{w.aT}, 3, 2"), V(f"v_and_b32 v{w.aT}, 0xffffffe7, v{w.aT}"), V(f"v_lshlrev_b32 v{t}, 4, v{t}"),
        V(f"v_xor_b32 v{w.aT}, v{w.aT}, v{t}"), V(f"v_xor_b32 v{w.aT+1}, 64, v{w.aT}")]
def to_v(w): return [V(f"v_xor_b32 v{w.aT}, 64, v{w.aT+2}"), V(f"v_xor_b32 v{w.aT+1}, 64, v{w.aT+3}")]

def finish(code, pending=None, pre=()):
    c, q = add_lgkm_waits(code, pending)
    return fix_hazards(c, pre), q

def loop_finish(B, q, before):
    B1, q1 = finish(B, q, pre=before[-12:])
    B2, q2 = finish(B, q1, pre=B1[-12:])
    B3, q3 = finish(B, q2, pre=B2[-12:])
    assert emit(B2) == emit(B3) and q2 == q3
    assert len(q) <= len(q2) and q == q2[len(q2) - len(q):], "entry LDS queue must be a suffix of the steady-state queue"
    B4 = fix_hazards(B2, before[-12:])
    assert emit(fix_hazards(B4, B4[-12:])) == emit(B4)
    return B4, q2

def srd(base, ptr, nbytes):
    return [S(f"s_mov_b32 s{base}, s{ptr}"), S(f"s_mov_b32 s{base+1}, s{ptr+1}"), S(f"s_mov_b32 s{base+2}, {nbytes}"), S(f"s_mov_b32 s{base+3}, 0x20000")]

def round_advance():
    return [S(f"s_add_u32 s{sKVbase}, s{sKVbase}, 262144"), S(f"s_add_u32 s{sWbase}, s{sWbase}, 512"),
            S(f"s_add_u32 s{sOst}, s{sOst}, {8*10240}"), S(f"s_add_u32 s{sRound}, s{sRound}, 1"), S(f"s_cmp_lt_u32 s{sRound}, 2")]

def flag_add(t, val, lab):
    return [V(f"v_mov_b32 v{t}, {val}"), V(f"v_mov_b32 v{t+1}, s{sFlag}"), S("s_mov_b64 exec, 1"),
            I(f"buffer_atomic_or v{t}, v{t+1}, s[{sDBG}:{sDBG+3}], 0 offen sc1", 'vstore', rd=regs(t, 2) | regs(sDBG, 4, 's'), tag=('cond',)),
            S("s_mov_b64 exec, -1"), label(lab)]

def common_scalars():
    C = srd(sK, 58, 134217728) + srd(sV, 60, 134217728) + srd(sWO, 64, 5242880) + srd(sOUT, 66, 6553600) + srd(sDBG, 68, 256) \
        + srd(sWS, 70, (160 << 20) if Cfg.stamps else WS_BYTES)
    C += [S(f"s_lshr_b32 s{sT2}, s{sWbase}, 8"),
          S(f"s_lshl_b32 s{sT3}, s{sB}, 5"), S(f"s_add_u32 s{sT3}, s{sT3}, s{sT2}"), S(f"s_lshl_b32 s{sKVbase}, s{sT3}, 17"),
          S(f"s_mul_i32 s{sOst}, s{sT3}, 40960"),] + ([S(f"s_and_b32 s{sKVbase}, s{sKVbase}, 0x20000")] if Cfg.kv_same else []) + [
          S(f"s_lshl_b32 s{sFlag}, s{sB}, 1"), S(f"s_lshr_b32 s{sT2}, s{sG}, 2"), S(f"s_add_u32 s{sFlag}, s{sFlag}, s{sT2}"), S(f"s_lshl_b32 s{sFlag}, s{sFlag}, 2"),
          S(f"s_mov_b32 s{sRound}, 0"), S(f"s_mov_b32 s{sMode}, 0"), S(f"s_mov_b32 s{sQS}, {f2u(QSCALE)}"), S(f"s_mov_b32 s{sC16}, {WTAB:#x}"), S(f"s_mov_b32 s{sC32}, {2*SLOT}"),
          S(f"s_mov_b32 s{sCX}, 20480"), S(f"s_mov_b32 s{sTK}, s{sKVbase}"), S(f"s_mov_b32 s{sTV}, s{sKVbase}")]
    if Cfg.stamps:
        C += [S(f"s_lshl_b32 s{sStamp+2}, s2, 3"), S(f"s_add_u32 s{sStamp+2}, s{sStamp+2}, s{sWave}"), S(f"s_lshl_b32 s{sStamp+2}, s{sStamp+2}, 10"),
              S(f"s_add_u32 s{sStamp+2}, s{sStamp+2}, {DBG_OFF}")]
    return C
def wave_addr0(w, j0mul, j0add):
    aN = [w.aN, w.aN + 1]; aT = [w.aT + i for i in range(4)]
    C = [S(f"s_bfe_u32 s{sT0}, s{sWave}, 0x10001"), S(f"s_lshl_b32 s{sT0}, s{sT0}, 13"),
         S(f"s_and_b32 s{sT1}, s{sWave}, 1"), S(f"s_mul_i32 s{sT1}, s{sT1}, {j0mul*1024}"), S(f"s_add_u32 s{sT1}, s{sT1}, {j0add*1024}"),
         S(f"s_add_u32 s{sOst}, s{sOst}, s{sT1}"), S(f"s_lshl_b32 s{sT1}, s{sT1}, 1"),
         S(f"s_sub_u32 s{sKX}, s{sT0}, s{sT1}"),
         S(f"s_add_u32 s{sT1}, s{sT1}, {xbuf(0)}")]
    return C + add_addr(aT, f"s{sT0}") + add_addr(aN, f"s{sT1}") + to_w(w, 0)

def gen_w3():
    w = Wave(3); nm = 24
    st = lambda k, real=False: stamp(w.tmp + 1, k, real)
    aN = [w.aN, w.aN + 1]; aT = [w.aT + i for i in range(4)]
    C = [label("L_w3"), raw("s_waitcnt lgkmcnt(0)")]
    if Cfg.codetouch:
        t = w.tmp + 1
        C += [raw(f"s_getpc_b64 s[{sRet}:{sRet+1}]"), label("L_pc0"),
              S(f"s_sub_u32 s{sRet}, s{sRet}, L_pc0-KSTART"), S(f"s_subb_u32 s{sRet+1}, s{sRet+1}, 0"),
              S(f"s_lshr_b32 s{sT0}, s2, 3"), S(f"s_lshl_b32 s{sT0}, s{sT0}, 2"), S(f"s_add_u32 s{sT0}, s{sT0}, s{sWave}"), S(f"s_lshl_b32 s{sT0}, s{sT0}, 7"),
              V(f"v_and_b32 v{t}, 7, v0"), V(f"v_lshlrev_b32 v{t}, 14, v{t}"), V(f"v_add_u32 v{t}, s{sT0}, v{t}"),
              V(f"v_min_u32 v{t}, KEND-KSTART-4, v{t}"),
              I(f"global_load_dword v{w.dummy}, v{t}, s[{sRet}:{sRet+1}]", 'vload', wr=regs(w.dummy), rd=regs(t) | regs(sRet, 2, 's'))]
    if Cfg.warm0:
        t = w.tmp + 1
        C += srd(sW, 62, 5242880) + srd(sX, 56, 6553600)
        C += [V(f"v_and_b32 v{t}, 63, v0"), V(f"v_lshlrev_b32 v{t}, 7, v{t}"),
              S(f"s_mul_i32 s{sT0}, s{sB}, 204800"), S(f"s_mul_i32 s{sT1}, s{sG}, 25600"), S(f"s_add_u32 s{sT0}, s{sT0}, s{sT1}"),
              S(f"s_mul_i32 s{sT1}, s{sWave}, 5760"), S(f"s_add_u32 s{sT0}, s{sT0}, s{sT1}"),
              V(f"v_bfe_u32 v{t+1}, v0, 3, 3"), V(f"v_min_u32 v{t+1}, 4, v{t+1}"), V(f"v_lshlrev_b32 v{t+1}, 13, v{t+1}"),
              V(f"v_and_b32 v{w.T}, 7, v0"), V(f"v_lshl_add_u32 v{t+1}, v{w.T}, 7, v{t+1}"),
              S(f"s_lshl_b32 s{sT1}, s{sB}, 2"), S(f"s_add_u32 s{sT1}, s{sT1}, s{sWave}"), S(f"s_mul_i32 s{sT1}, s{sT1}, {5*8192}"),
              S(f"s_lshl_b32 s{sT2}, s{sG}, 10"), S(f"s_add_u32 s{sT1}, s{sT1}, s{sT2}"),
              barrier(), bload(1, w.dummy, t + 1, sW, f"s{sT1}"), bload(1, w.dummy, t, sX, f"s{sT0}")]
    C += common_scalars()
    t = w.tmp + 1
    C += [S(f"s_cmp_lg_u32 s{sWave}, 0"), branch("s_cbranch_scc1", "L_noxcc"), raw(f"s_getreg_b32 s{sT0}, hwreg(HW_REG_XCC_ID, 0, 3)"),
          S(f"s_lshl_b32 s{sT0}, 0x1000000, s{sT0}"), S(f"s_lshl_b32 s{sT1}, 0x10000, s{sG}"), S(f"s_or_b32 s{sT0}, s{sT0}, s{sT1}"), S(f"s_lshl_b32 s{sT1}, s{sB}, 3"),
          V(f"v_mov_b32 v{t}, s{sT0}"), V(f"v_mov_b32 v{t+1}, s{sT1}"), S("s_mov_b64 exec, 1"),
          I(f"buffer_atomic_or v{t}, v{t+1}, s[{sDBG}:{sDBG+3}], 0 offen sc1", 'vstore', rd=regs(t, 2) | regs(sDBG, 4, 's')),
          S("s_mov_b64 exec, 0xff"), V(f"v_mul_u32_u24 v{t}, {SLAB}, v0"), V(f"v_mov_b32 v{t+1}, 0"), S(f"s_mul_i32 s{sT0}, s2, {XCH_WG}"), S(f"s_add_u32 s{sT0}, s{sT0}, {XCH_OFF + SLAB - 128}"),
          bstore(1, t + 1, t, sWS, f"s{sT0}", 0, 'sc1'),
          S("s_mov_b64 exec, -1"), label("L_noxcc")]
    C += lane_setup(w) + wave_addr0(w, 3, 0)
    C, _ = finish(C)
    out = C
    def wadv():
        return [S(f"s_bfe_i32 s{sD}, s{sC16}, s{sCnt}"), S(f"s_lshl_b32 s{sD}, s{sD}, 14"), S(f"s_add_u32 s{sCnt}, s{sCnt}, 4"),
                S(f"s_cmp_eq_u32 s{sCnt}, {0x40000 + 4*NW:#x}"), S(f"s_cselect_b32 s{sCnt}, 0x40000, s{sCnt}")] + add_addr(aT[:2], f"s{sD}")
    def xadv():
        return [S(f"s_add_u32 s{sCnt2}, s{sCnt2}, 1"), S(f"s_cmp_eq_u32 s{sCnt2}, {NX}"), S(f"s_cselect_b32 s{sXd}, {(-(NX-1)*20480) & 0xffffffff:#x}, s{sCX}"),
                S(f"s_cselect_b32 s{sCnt2}, 0, s{sCnt2}")] + add_addr(aN, f"s{sXd}")
    def qstage(s, zero=False, extra=()):
        p = s & 1
        adv_ = wadv() + (xadv() if p == 1 else []) + list(extra)
        L = [barrier()] + spread(q_mfmas(w, 1 - p, zero), [(q_reads(w, p, p), 0, Cfg.qr3), (one(adv_), Cfg.qr3 + 1, 23)]) + [wait(lgkm=0)]
        k = [i for i, c in enumerate(L) if c.kind == 'mfma'][Cfg.qcut]
        return L[:k], L[k:]
    C = [label("L_w3_round")] + st(0) + [barrier()] + st(1)
    C += flat(q_reads(w, 0, 0))
    C += add_addr(aT[:2], wslot(1) - wslot(0))
    C += [S(f"s_mov_b32 s{sCnt}, 0x40004"), S(f"s_mov_b32 s{sCnt2}, {(xbuf(0)-NW*SLOT)//20480}"), S(f"s_mov_b32 s{sLoop}, 8")]
    C += [wait(lgkm=0)]
    h1, t1 = qstage(1, zero=True); he, te = qstage(2); ho, to = qstage(3)
    C += h1 + t1 + [wait(vm=0)] + he
    C, q = finish(C); out += C
    B = [label("L_w3_q")] + te + ho + to + he
    B += [S(f"s_sub_u32 s{sLoop}, s{sLoop}, 1"), S(f"s_cmp_lg_u32 s{sLoop}, 0"), branch("s_cbranch_scc1", "L_w3_q")]
    Bc, q2 = loop_finish(B, q, out)
    out += Bc
    curT = wslot(20); curN = xbuf(10)
    h19, t19 = qstage(19, extra=add_addr(aN, f"s{sKX}") + add_addr(aN, item_slot(kidx(0)) - curN) + to_v(w))
    mr = mode_read(w.T)
    C = mr[0] + te + mr[1] + h19 + t19
    C += st(40) + [barrier()] + st(41)
    k0 = frags_QK(w, 'zero')
    k1 = frags_QK(w, 'negm', pre=add_addr(aN, item_slot(kidx(1)) - item_slot(kidx(0))))
    w.fpos = 0
    C += stream(w, k0, 0, k1, lead=q_mfmas(w, 1, False), fillers=q_pack_fillers(w))
    C += first_max(w)
    C += st(42) + [barrier()] + st(43)
    C += flat(softmax_groups(w, 0)) + l_accum(w, first=True)
    v0 = frags_PV(w, 0, zero=True)
    if Cfg.warm:
        t = w.tmp + 1
        C += [S(f"s_cmp_lg_u32 s{sRound}, 0"), branch("s_cbranch_scc1", "L_nowarm")] + lane_id(t) + [V(f"v_min_u32 v{t}, 39, v{t}"), V(f"v_lshlrev_b32 v{t}, 7, v{t}"),
              S(f"s_lshl_b32 s{sT0}, s2, 2"), S(f"s_add_u32 s{sT0}, s{sT0}, s{sWave}"), S(f"s_mul_i32 s{sT0}, s{sT0}, 5120"),
              bload(1, w.dummy, t, sWO, f"s{sT0}")]
        C += [branch("s_branch", "L_warm_done"), label("L_nowarm")]
        if Cfg.codetouch2:
            C += [raw(f"s_getpc_b64 s[{sRet}:{sRet+1}]"), label("L_pc1"),
                  S(f"s_add_u32 s{sRet}, s{sRet}, L_o-L_pc1"), S(f"s_addc_u32 s{sRet+1}, s{sRet+1}, 0")] + lane_id(t) + [
                  S(f"s_lshl_b32 s{sT0}, s{sWave}, 13"), V(f"v_lshlrev_b32 v{t}, 7, v{t}"), V(f"v_add_u32 v{t}, s{sT0}, v{t}"), V(f"v_min_u32 v{t}, KEND-L_o-4, v{t}"),
                  I(f"global_load_dword v{w.dummy}, v{t}, s[{sRet}:{sRet+1}]", 'vload', wr=regs(w.dummy), rd=regs(t) | regs(sRet, 2, 's'))]
        C += [label("L_warm_done")]
    C += [S(f"s_mov_b32 s{sKpos}, {item_slot(kidx(1))}"), S(f"s_mov_b32 s{sVpos}, {item_slot(vidx(0))}"), S(f"s_mov_b32 s{sLoop}, 7")]
    def adv(pos, rr):
        return [S(f"s_cmp_ge_u32 s{pos}, {LDS_BYTES - 2*SLOT}"), S(f"s_cselect_b32 s{sD}, {(2*SLOT - LDS_BYTES) & 0xffffffff:#x}, s{sC32}"),
                S(f"s_add_u32 s{pos}, s{pos}, s{sD}")] + add_addr(rr, f"s{sD}")
    def pv(par): return frags_PV(w, par, pre=adv(sVpos, aT))
    def qk(): return frags_QK(w, 'negm', pre=adv(sKpos, aN))
    E_ = 8 - Cfg.late
    def sm_part(late, par, extra=()):
        G = softmax_groups(w, par) + [check_cmp(w)]
        nl = 3 * len(late)
        cut = int(len(G) * Cfg.smpure) if Cfg.late < 8 else 0
        return flat(G[:cut]) + stream(w, late, Cfg.LA, qk(), fillers=[(G[cut:], 0, max(nl - Cfg.smend, 1))] + list(extra)) + check_branch(w, par)
    C += stream(w, k1 + v0[:E_], Cfg.LA, v0[E_:] + qk())
    C += st(44) + [barrier()] + st(45)
    C += sm_part(v0[E_:], 1)
    C, q = finish(C, q2, pre=out[-12:]); out += C
    B = [label("L_w3_a")]
    for par in (1, 0):
        B += stream(w, qk() + pv(par)[:E_], Cfg.LA, pv(par)[E_:] + qk(), fillers=[(one(l_accum(w)), 4, 10)])
        B += [barrier()]
        B += sm_part(pv(par)[E_:], 1 - par)
    B += [S(f"s_sub_u32 s{sLoop}, s{sLoop}, 1"), S(f"s_cmp_lg_u32 s{sLoop}, 0"), branch("s_cbranch_scc1", "L_w3_a")]
    Bc, q2 = loop_finish(B, q, out)
    out += Bc
    C = st(74) + l_accum(w) + mode_vcc()
    C += stream(w, pv(1), 0, [], fillers=epi_fillers(w))
    C += st(75) + st(77, True)
    curT = item_slot(vidx(15)); curN = item_slot(kidx(16))
    C += to_w(w, curT) + add_addr(aN, xbuf(0) - curN) + [V(f"v_subrev_u32 v{r}, s{sKX}, v{r}") for r in aN]
    C += round_advance()
    C += [branch("s_cbranch_scc1", "L_w3_round"), branch("s_branch", "L_o")]
    C, q = finish(C, q2, pre=out[-12:]); out += C
    assert not q
    return out, rare_routine(w, 0) + rare_routine(w, 1)

def gen_w2():
    w = Wave(2); nm = 16
    st = lambda k, real=False: stamp(w.tmp + 1, k, real)
    aN = [w.aN, w.aN + 1]; aT = [w.aT + i for i in range(4)]
    sch = loader_schedule(w)
    items = lambda idx: sch[idx]
    vo1, vo2 = voff_setup(w)
    pro = vo1 + [raw("s_waitcnt lgkmcnt(0)")] + srd(sW, 62, 5242880) + srd(sX, 56, 6553600)
    pro += flat(dma_w(w, 0, False, ('W', 0, True))) + flat(dma_x(w, 0, ('X', 0, True))) + flat(dma_w(w, 1, False, ('W', 1, True))) + ([barrier()] if Cfg.warm0 else [])
    pro += vo2 + [V(f"v_mov_b32 v{w.oVoff}, 0"), V(f"v_mov_b32 v{w.oPoll}, 0")] + common_scalars() + lane_setup(w) + wave_addr0(w, 2, 6)
    C = [label("L_w2_round")] + st(76, True)
    def bar(idx, lgkm=None):
        b = wait(vm=63, lgkm=lgkm); b.tag = (('need', idx), lgkm)
        return st(2 * idx) + [b, barrier()] + st(2 * idx + 1)
    prio = lambda p: [raw(f"s_setprio {p}")] if Cfg.prio == 2 else []
    curT = wslot(0); curN = xbuf(0)
    C += prio(Cfg.qprio)
    for s in range(20):
        if s < 19:
            newT = wslot(s + 1); newN = xbuf((s + 1) >> 1)
            adv_ = add_addr(aT[:2], newT - curT) + add_addr(aN, newN - curN); curT, curN = newT, newN
        else:
            adv_ = add_addr(aN, f"s{sKX}") + add_addr(aN, item_slot(kidx(0)) - curN) + to_v(w)
        C += bar(s, lgkm=0)
        ex = []
        if s == 3:
            ex = [([[S(f"s_lshl_b32 s{sT1}, s{sRound}, 3"), S(f"s_add_u32 s{sT1}, s{sT1}, s{sWave}"), S(f"s_cmp_lg_u32 s{sT1}, 12"),
                     branch("s_cbranch_scc1", "L_nofl1"), S(f"s_and_b32 s{sT1}, s{sG}, 3"), S(f"s_lshl_b32 s{sT1}, 1, s{sT1}")] + flag_add(w.tmp + 1, f"s{sT1}", "L_nofl1")], 11, 12)]
        if s == 0: C += flat(q_reads(w, 0, 0)) + flat(items(0)) + adv_
        else: C += spread(q_mfmas(w, (s - 1) & 1, s == 1), [(q_reads(w, s & 1, s & 1), 0, Cfg.qr2), (items(s), Cfg.qd0, nm - 2), (one(adv_), Cfg.qr2 + 1, 16)] + ex)
    C += bar(20, lgkm=0)
    def qk(t, fc='negm'): return frags_QK(w, fc, pre=add_addr(aN, item_slot(kidx(t)) - item_slot(kidx(t - 1))) if t else [])
    def pv(t): return frags_PV(w, t & 1, zero=(t == 0), pre=add_addr(aT, item_slot(vidx(t)) - item_slot(vidx(t - 1))) if t else [])
    w.fpos = 0
    C += stream(w, qk(0, 'zero'), 0, qk(1), lead=q_mfmas(w, 1, False), fillers=[(items(20), 0, 2 * nm)] + q_pack_fillers(w))
    C += first_max(w)
    C += flat(softmax_groups(w, 0))
    for t in range(15):
        nx = qk(t + 2) if t < 14 else []
        if Cfg.pp:
            C += prio(Cfg.pp_a)
            C += bar(21 + t)
            C += stream(w, qk(t + 1) + pv(t), Cfg.LA, nx, fillers=[(one(l_accum(w, first=(t == 0))), 3, 8)])
            C += prio(Cfg.pp_b)
            G = softmax_groups(w, (t + 1) & 1) + [check_cmp(w)]
            sm = [g for g in G]
            it_ = items(21 + t)
            base = [I("; g", 'comment') for _ in sm]
            merged = spread(base, [(it_, 0, len(sm))])
            k = 0
            for c in merged:
                if c.kind == 'comment' and c.text == "; g": C += sm[k]; k += 1
                else: C.append(c)
            C += check_branch(w, (t + 1) & 1)
        else:
            C += prio(0)
            C += bar(21 + t)
            it_ = items(21 + t); h = (len(it_) * Cfg.dsplit + 99) // 100
            C += stream(w, qk(t + 1), Cfg.LA, pv(t), fillers=[(it_[:h], 0, nm), (one(l_accum(w, first=(t == 0))), 3, 8)])
            C += prio(1)
            C += stream(w, pv(t), Cfg.LA, nx, fillers=[(it_[h:], 1, nm + 1)] + sm_fillers(w, (t + 1) & 1, 2))
            C += check_branch(w, (t + 1) & 1)
    C += prio(0)
    C += bar(36)
    C += flat(items(36))
    C += st(74) + l_accum(w) + mode_vcc()
    C += stream(w, pv(15), 0, [], fillers=epi_fillers(w))
    C += st(75) + st(77, True)
    curT = item_slot(vidx(15)); curN = item_slot(kidx(15))
    C += to_w(w, curT) + add_addr(aN, xbuf(0) - curN) + [V(f"v_subrev_u32 v{r}, s{sKX}, v{r}") for r in aN]
    C += round_advance()
    C += [branch("s_cbranch_scc1", "L_w2_round"), branch("s_branch", "L_o")]
    VM = ('dma', 'vload', 'vstore')
    def resolve(prefix, first):
        res = {}
        q = [(c.tag[0], c.tag[1]) if len(c.tag) == 3 and c.tag[2] in (True, 'next') else None for c in prefix if c.kind in VM and c.tag != ('cond',)]
        for c in C:
            if c.kind in VM:
                if c.tag == ('cond',): continue
                if c.tag[-1] in ('cond', 'next') and not first: continue
                q.append((c.tag[0], c.tag[1]) if len(c.tag) == 3 and c.tag[2] in (False, 'cond') else None)
            elif c.kind == 'comment' and c.tag and c.tag[0] == 'phantom':
                if not first: q += [None] * c.tag[1]
            elif c.kind == 'wait' and isinstance(c.tag[0], tuple):
                idx = c.tag[0][1]
                last = -1
                for k, it in enumerate(q):
                    if it is not None and first_use(it[0], it[1]) <= idx: last = k
                res[idx] = min(63, len(q) - 1 - last)
        return res
    r1 = resolve(pro, True); r2 = resolve(C, False)
    C2 = []
    for c in C:
        if c.kind == 'wait' and isinstance(c.tag[0], tuple):
            idx = c.tag[0][1]; n = min(r1[idx], r2[idx]); lg = c.tag[1]
            if abs(r1[idx] - r2[idx]) > 1:
                C2 += [S(f"s_cmp_eq_u32 s{sRound}, {0 if r1[idx] > r2[idx] else 1}"), branch("s_cbranch_scc1", f"L_rw{idx}"), wait(vm=n), label(f"L_rw{idx}")]
                n = max(r1[idx], r2[idx])
            c.text = f"s_waitcnt vmcnt({n})" + (f" lgkmcnt({lg})" if lg is not None else ""); c.tag = (n, lg)
        C2.append(c)
    C = C2
    pro, _ = finish(pro)
    C, q = finish(C, [], pre=pro[-12:])
    assert not q
    return pro + C + gen_opre(w), rare_routine(w, 0) + rare_routine(w, 1)

OSLOT = 40960
def oslot(u): return ((u + 2) & 3) * OSLOT
def o_voff(nh, VOFF, lane, a, b):
    if nh == 0: return [V(f"v_lshlrev_b32 v{VOFF}, 4, v{lane}")]
    return [V(f"v_lshrrev_b32 v{a}, 2, v{lane}"), V(f"v_mul_u32_u24 v{a}, 1280, v{a}"), V(f"v_bfe_u32 v{b}, v{lane}, 4, 1"), V(f"v_lshlrev_b32 v{b}, 1, v{b}"),
            V(f"v_and_b32 v{VOFF}, 3, v{lane}"), V(f"v_xor_b32 v{VOFF}, v{VOFF}, v{b}"), V(f"v_lshl_add_u32 v{VOFF}, v{VOFF}, 4, v{a}")]
def o_base(nh, sBase, sLd):
    C = [S(f"s_and_b32 s{sLd}, s{sWave}, 1"), S(f"s_mul_i32 s{sLd}, s{sLd}, 5120")]
    if nh == 0: C += [S(f"s_mul_i32 s{sBase}, s{sB}, {128*10240}"), S(f"s_add_u32 s{sBase}, s{sBase}, s{sLd}")]
    else: C += [S(f"s_lshl_b32 s{sBase}, s{sLd}, 2"), S(f"s_and_b32 s{sT2}, s{sG}, 3"), S(f"s_mul_i32 s{sT2}, s{sT2}, 320"), S(f"s_add_u32 s{sBase}, s{sBase}, s{sT2}"),
                S(f"s_add_u32 s{sLd}, s{sLd}, 10240")]
    step = 10240 if nh == 0 else 40960
    C += [S(f"s_add_u32 s{sT3}, s{sG}, s{sB}")] if Cfg.orot else [S(f"s_mov_b32 s{sT3}, 0")]
    for u in range(4):
        C += [S(f"s_add_u32 s{sT2}, s{sT3}, {u}"), S(f"s_and_b32 s{sT2}, s{sT2}, 3"), S(f"s_mul_i32 s{sOoff+u}, s{sT2}, {step}")]
    return C
def o_dma(nh, u, VOFF, sSo, sLd, goff=0, loff=0, srd_=None):
    step = 10240 if nh == 0 else 40960
    G = []
    if Cfg.o_skip & (1 << nh): return G
    for i in range(5):
        if nh == 0:
            imm = (i & 3) * 1024; ex = (i >> 2) * 4096
            g = [S(f"s_add_u32 m0, s{sLd}, {oslot(u) + ex + loff}"), S(f"s_add_u32 s{sT0}, s{sSo}, s{sOoff+u}")] + ([S(f"s_add_u32 s{sT0}, s{sT0}, {ex + goff}")] if ex + goff else []) if imm == 0 else []
            G.append(g + [dma(VOFF, srd_ or sWS, f"s{sT0}", imm, Cfg.old_pol)])
        else:
            g = [S(f"s_add_u32 m0, s{sLd}, {oslot(u) + i*1024 - i*64 + loff}")]
            if i == 0: g += [S(f"s_add_u32 s{sT0}, s{sSo}, s{sOoff+u}")] + ([S(f"s_add_u32 s{sT0}, s{sT0}, {goff}")] if goff else [])
            G.append(g + [dma(VOFF, srd_ or sWO, f"s{sT0}", i * 64)])
    return G
def gate(lab, POLL, vfl, shift):
    return [V(f"v_readfirstlane_b32 s{sT2}, v{POLL}"), S(f"s_bfe_u32 s{sT2}, s{sT2}, {0x40000 + shift:#x}"), S(f"s_cmp_lg_u32 s{sT2}, 15"),
            branch("s_cbranch_scc1", lab)]
def spin(lab, POLL, vfl, shift, back):
    return [label(lab), bload(1, POLL, vfl, sDBG, 0, 0, 'sc1'), S(f"s_sub_u32 s{sCnt}, s{sCnt}, 1"), S(f"s_cmp_lt_i32 s{sCnt}, 0"), branch("s_cbranch_scc1", back),
            wait(vm=0), V(f"v_readfirstlane_b32 s{sT2}, v{POLL}"), S(f"s_bfe_u32 s{sT2}, s{sT2}, {0x40000 + shift:#x}"), S(f"s_cmp_eq_u32 s{sT2}, 15"),
            branch("s_cbranch_scc1", back), raw(f"s_sleep {Cfg.xsleep}"), branch("s_branch", lab)]

def gen_opre(w):
    sSo, sLd = sTK, sTV
    C = []
    for u in range(2):
        C += [label(f"L_opre{u}"), S(f"s_bitcmp1_b32 s{sWave}, 1"), branch("s_cbranch_scc1", f"L_opre{u}_1")]
        for nh in range(2):
            step = 10240 if nh == 0 else 40960
            B = [label(f"L_opre{u}_{nh}")]
            if u == 0:
                t = w.tmp + 1
                B += lane_id(t) + o_voff(nh, w.oVoff, t, w.dummy, w.vTch) + o_base(nh, sSo, sLd)
                B += [S(f"s_and_b32 s{sT3}, s{sG}, 4"), S(f"s_mul_i32 s{sT3}, s{sT3}, {16*step}"), S(f"s_add_u32 s{sSo}, s{sSo}, s{sT3}")]
            for ks in range(2): B += flat(o_dma(nh, u, w.oVoff, sSo, sLd, goff=ks * 4 * step, loff=ks * 20480))
            B += [branch("s_branch", f"L_opre{u}_back")]
            C += fix_hazards(B)
    C += fix_hazards([label("L_g1"), S(f"s_mov_b32 s{sCnt}, 0x8000"), V(f"v_mov_b32 v{w.tmp+2}, s{sFlag}")] + spin("L_g1_spin", w.oPoll, w.tmp + 2, 0, "L_g1_back"))
    return C

def gen_o():
    ACC = 0; SET = [100, 140]
    aB, aA0, aA1 = 180, 182, 184
    VOFF, POLL, VFL, T, L16, POLL2 = 186, 187, 188, 190, 196, 198
    LW, LR, VO = T + 2, T + 3, T + 4
    RB = 200
    sSo, sHi, sLd, sBase, sKs, sNq = 36, 37, 39, 40, 43, 44
    sXo, sXp, sOb, sVar = 60, 61, 62, 63
    sOD = sK
    st = lambda k, real=False: stamp(T, k, real)
    def acc(t): return ACC + 4 * t
    def fB(s_, jj): return SET[s_] + 4 * jj
    def fA(s_, nn): return SET[s_] + 20 + 4 * nn
    TS = [list(range(0, 7)), list(range(7, 13)), list(range(13, 19)), list(range(19, 25))]
    C = [label("L_o")] + st(80)
    if Cfg.prio: C += [raw("s_setprio 0")]
    lane = T; a = T + 1; b = T + 5
    C += lane_id(lane) + [V(f"v_lshlrev_b32 v{L16}, 4, v{lane}")]
    C += [S(f"s_lshr_b32 s{sKs}, s{sWave}, 2"), S(f"s_mul_i32 s{sT0}, s{sKs}, 20480"), S(f"s_and_b32 s{sT1}, s{sWave}, 1"), S(f"s_mul_i32 s{sT1}, s{sT1}, 5120"),
          S(f"s_add_u32 s{sT1}, s{sT0}, s{sT1}"),
          V(f"v_add_u32 v{aB}, s{sT1}, v{L16}"), V(f"v_add_u32 v{aB+1}, {2*OSLOT}, v{aB}"),
          V(f"v_lshrrev_b32 v{a}, 2, v{lane}"), V(f"v_bfe_u32 v{b}, v{lane}, 4, 1"), V(f"v_lshlrev_b32 v{b}, 5, v{b}"), V(f"v_lshl_add_u32 v{b}, v{a}, 6, v{b}"),
          V(f"v_and_b32 v{a}, 3, v{lane}"), V(f"v_lshl_add_u32 v{b}, v{a}, 3, v{b}"),
          S(f"s_add_u32 s{sT1}, s{sT0}, 10240"), V(f"v_add_u32 v{aA0}, s{sT1}, v{b}"), V(f"v_xor_b32 v{aA1}, 32, v{aA0}"),
          V(f"v_add_u32 v{aA0+1}, {2*OSLOT}, v{aA0}"), V(f"v_add_u32 v{aA1+1}, {2*OSLOT}, v{aA1}"),
          S(f"s_mov_b32 s{sHi}, 0")]
    C += [S(f"s_bitcmp1_b32 s{sWave}, 1"), branch("s_cbranch_scc1", "L_o_1")]
    C = fix_hazards(C)
    def late_setup():
        return [V(f"v_mov_b32 v{VFL}, s{sFlag}"), V(f"v_xor_b32 v{VFL+1}, 4, v{VFL}"), V(f"v_mov_b32 v{POLL}, 0"), V(f"v_mov_b32 v{POLL2}, 0"),
         S(f"s_and_b32 s{sNq}, s{sG}, 3"), S(f"s_mov_b32 s{sCnt}, 0x8000"),
         S(f"s_mul_i32 s{sT0}, s{sWave}, 13312"), V(f"v_add_u32 v{LW}, s{sT0}, v{L16}"),
         S(f"s_xor_b32 s{sT1}, s{sWave}, 4"), S(f"s_mul_i32 s{sT0}, s{sT1}, 13312"), V(f"v_add_u32 v{LR}, s{sT0}, v{L16}"),
         S(f"s_lshl_b32 s{sT0}, s2, 3"), S(f"s_add_u32 s{sT0}, s{sT0}, s{sWave}"), S(f"s_mul_i32 s{sXo}, s{sT0}, {SLAB}"), S(f"s_add_u32 s{sXo}, s{sXo}, {XCH_OFF}"),
         S(f"s_xor_b32 s{sT0}, s{sT0}, 256"), S(f"s_mul_i32 s{sXp}, s{sT0}, {SLAB}"), S(f"s_add_u32 s{sXp}, s{sXp}, {XCH_OFF}"),
         V(f"v_bfe_u32 v{VO}, v{L16}, 4, 4"), V(f"v_mul_u32_u24 v{VO}, 1280, v{VO}"), V(f"v_lshrrev_b32 v{a}, 8, v{L16}"), V(f"v_lshl_add_u32 v{VO}, v{a}, 3, v{VO}"),
         S(f"s_mul_i32 s{sOb}, s{sB}, 204800"), S(f"s_and_b32 s{sT0}, s{sWave}, 1"), S(f"s_mul_i32 s{sT0}, s{sT0}, 102400"), S(f"s_add_u32 s{sOb}, s{sOb}, s{sT0}"),
         S(f"s_mul_i32 s{sT0}, s{sNq}, 320"), S(f"s_add_u32 s{sOb}, s{sOb}, s{sT0}"), S(f"s_bfe_u32 s{sT0}, s{sWave}, 0x10001"), S(f"s_mul_i32 s{sT0}, s{sT0}, 160"),
         S(f"s_add_u32 s{sOb}, s{sOb}, s{sT0}"),
         S(f"s_lshr_b32 s{sVar}, s{sG}, 2"), S(f"s_lshl_b32 s{sT1}, s{sKs}, 1"), S(f"s_add_u32 s{sVar}, s{sVar}, s{sT1}")] + mode_vcc()
    def poll_load(): return [bload(1, POLL, VFL, sDBG, 0, 0, 'sc1'), bload(1, POLL2, VFL + 1, sDBG, 0, 0, 'sc1')]
    for nh in range(2):
        step = 10240 if nh == 0 else 40960
        src = sWS if nh == 0 else sWO
        R_ = [label(f"L_o_{nh}")] + o_voff(nh, VOFF, lane, a, b) + o_base(nh, sBase, sLd) + [S(f"s_add_u32 s{sLd}, s{sLd}, s{sT0}")]
        R_ += [S(f"s_mov_b32 s{sOD+i}, s{src+i}") for i in range(3)]
        def head_setup():
            return [S(f"s_and_b32 s{sT2}, s{sHi}, 3"), S(f"s_and_b32 s{sT3}, s{sG}, 4"), S(f"s_add_u32 s{sT2}, s{sT2}, s{sT3}"),
                    S(f"s_lshl_b32 s{sT2}, s{sT2}, 2"), S(f"s_lshr_b32 s{sT3}, s{sHi}, 2"), S(f"s_lshl_b32 s{sT3}, s{sT3}, 1"), S(f"s_add_u32 s{sT2}, s{sT2}, s{sT3}"),
                    S(f"s_add_u32 s{sT2}, s{sT2}, s{sKs}"), S(f"s_mul_i32 s{sT2}, s{sT2}, {4*step}"), S(f"s_add_u32 s{sSo}, s{sBase}, s{sT2}"),
                    S(f"s_add_u32 s{sHi}, s{sHi}, 1")]
        odma = lambda u: o_dma(nh, u, VOFF, sSo, sLd, srd_=sOD)
        def oreads(u):
            s_ = u & 1; hi = oslot(u) // (2 * OSLOT); off = oslot(u) % (2 * OSLOT)
            G = []
            for k in range(5):
                nb = 5 * nh + k
                ar = (aA1 if nb & 1 else aA0) + hi
                G.append([ds_read(2, fA(s_, k) + 2 * hh, ar, off + (hh * 5 + (nb >> 1)) * 1024, tr=True) for hh in range(2)])
                G.append([ds_read(4, fB(s_, k), aB + hi, off + k * 1024)])
            return G
        def omf(s_): return [mfma(acc(t), fA(s_, t % 5), fB(s_, t // 5), acc(t)) for t in range(25)]
        R_ += head_setup()
        R_ += [wait(vm=18), barrier()] + st(81) + st(82)
        R_ += flat(oreads(0))
        for r in range(50): R_.append(V(f"v_pk_mov_b32 v[{ACC+2*r}:{ACC+2*r+1}], 0, 0"))
        R_ += late_setup() + flat(odma(2))
        R_ += [wait(vm=13), branch("s_branch", f"L_o_in{nh}")]
        R_, q = finish(R_)
        it = lambda hi, wv, lab: [S(f"s_lshl_b32 s{sT2}, s{sHi}, 3"), S(f"s_add_u32 s{sT2}, s{sT2}, s{sWave}"), S(f"s_cmp_lg_u32 s{sT2}, {hi*8+wv}"), branch("s_cbranch_scc1", lab)]
        def ostage(u):
            L = [wait(vm=5, lgkm=0), barrier()]
            if u == 1: L = [wait(vm=5), label(f"L_o_in{nh}"), wait(lgkm=0), barrier()]
            fill = [(oreads(u), 0, Cfg.orh)]
            d = odma((u + 2) & 3)
            if u == 1:
                d = d + [head_setup() + [S(f"s_cmp_gt_u32 s{sHi}, 8"), S(f"s_cselect_b32 s{sOD+2}, 0, s{sOD+2}")]]
                if nh == 0: d = d + [it(5, 0, "L_g3_back") + gate("L_g2", POLL, VFL, 8) + [label("L_g2_back")] + gate("L_g3", POLL2, VFL + 1, 0) + [label("L_g3_back")]]
            if u == 3 and nh == 0: d = [it(4, 0, "L_p2") + poll_load() + [label("L_p2")]] + d
            if u == 2 and nh == 1:
                d = [it(2, 2, "L_nofl2") + [S(f"s_lshl_b32 s{sT2}, 0x100, s{sNq}")] + flag_add(T, f"s{sT2}", "L_nofl2")] + d
            if u == 3: d = d + [[S(f"s_cmp_gt_u32 s{sHi}, 8")]]
            fill.append((d, Cfg.od0, Cfg.od1))
            return L + spread(omf(1 - (u & 1)), fill)
        B = [label(f"L_o_loop{nh}")] + ostage(1) + ostage(2) + ostage(3) + [branch("s_cbranch_scc1", "L_o_fin")] + ostage(0) + [branch("s_branch", f"L_o_loop{nh}")]
        Bc, q2 = loop_finish(B, [], R_)
        E = []
        if nh == 0: E += spin("L_g2", POLL, VFL, 8, "L_g2_back") + spin("L_g3", POLL2, VFL + 1, 0, "L_g3_back")
        C += R_ + Bc + fix_hazards(E)
    E = [label("L_o_fin")] + st(83) + [wait(vm=0, lgkm=0), barrier()]
    for v in range(1, 4): E += [S(f"s_cmp_eq_u32 s{sVar}, {v}"), branch("s_cbranch_scc1", f"L_o_epi{v}")]
    C += E
    for v in range(4):
        ks, kh = v >> 1, v & 1
        mine = TS[v]; xsend = TS[v ^ 1]; keep = sorted(mine + xsend); lsend = sorted(TS[v ^ 2] + TS[v ^ 3])
        ls = lambda i: [raw(f"s_memtime s[{64+2*i}:{65+2*i}]" if i < 4 else f"s_memtime s[{92+2*(i-4)}:{93+2*(i-4)}]"), wait(lgkm=0)] if Cfg.stamps == 6 else []
        E = [label(f"L_o_epi{v}")] + ls(0)
        order = lsend + xsend + mine
        mf = [mfma(acc(t), fA(1, t % 5), fB(1, t // 5), acc(t)) for t in order]
        wr = [[ds_write(4, LW, acc(t), i * 1024)] for i, t in enumerate(lsend)]
        E += spread(mf, [(wr, 4, 19)])
        E += [wait(lgkm=0)] + ls(1) + [barrier()] + ls(2)
        rorder = xsend + mine
        for i, t in enumerate(rorder): E.append(ds_read(4, RB + 4 * i, LR, keep.index(t) * 1024))
        PK = SET[0]
        for i, t in enumerate(rorder):
            for r in range(0, 4, 2): E.append(V(f"v_pk_add_f32 v[{acc(t)+r}:{acc(t)+r+1}], v[{acc(t)+r}:{acc(t)+r+1}], v[{RB+4*i+r}:{RB+4*i+r+1}]"))
            if t in xsend:
                k = xsend.index(t)
                E += [V(f"v_cvt_pk_bf16_f32 v{PK+2*k}, v{acc(t)}, v{acc(t)+1}"), V(f"v_cvt_pk_bf16_f32 v{PK+2*k+1}, v{acc(t)+2}, v{acc(t)+3}")]
                if k & 1 or k == len(xsend) - 1: E += dstore(4, PK + 4 * (k >> 1), L16, sWS, f"s{sXo}", (k >> 1) * 1024)
        E += st(84) + ls(3)
        n = len(mine); nl = (n + 1) // 2
        E += [V(f"v_mov_b32 v{POLL2}, 1"), V(f"v_mov_b32 v{VFL}, {SLAB-128}"), wait(vm=0), S("s_mov_b64 exec, 1")] + dstore(1, POLL2, VFL, sWS, f"s{sXo}", 0)
        E += [label(f"L_x{v}"), bload(1, POLL, VFL, sWS, f"s{sXp}", 0, 'sc1'),
              S(f"s_sub_u32 s{sCnt}, s{sCnt}, 1"), S(f"s_cmp_lt_i32 s{sCnt}, 0"), branch("s_cbranch_scc1", f"L_x{v}_ok"), wait(vm=0),
              V(f"v_readfirstlane_b32 s{sT2}, v{POLL}"), S(f"s_cmp_eq_u32 s{sT2}, 1"), branch("s_cbranch_scc1", f"L_x{v}_ok"),
              raw(f"s_sleep {Cfg.xsleep2}"), branch("s_branch", f"L_x{v}"), label(f"L_x{v}_ok"), S("s_mov_b64 exec, -1")]
        ld = lambda pol: [bload(4, RB + 4 * k, L16, sWS, f"s{sXp}", k * 1024, pol) for k in range(nl)]
        SLOW.append([label(f"L_xl{v}")] + ld('sc1') + [branch("s_branch", f"L_xl{v}_b")])
        E += [branch("s_cbranch_vccz", f"L_xl{v}")] + ld('') + [label(f"L_xl{v}_b")]
        E += st(85) + ls(4)
        E += [wait(vm=0)] + ls(6)
        U = RB + 16
        for k, t in enumerate(mine):
            a_ = acc(t); r0 = RB + 2 * k
            E += [V(f"v_lshlrev_b32 v{U}, 16, v{r0}"), V(f"v_and_b32 v{U+1}, 0xffff0000, v{r0}"), V(f"v_lshlrev_b32 v{U+2}, 16, v{r0+1}"), V(f"v_and_b32 v{U+3}, 0xffff0000, v{r0+1}")]
            for r in range(0, 4, 2): E.append(V(f"v_pk_add_f32 v[{a_+r}:{a_+r+1}], v[{a_+r}:{a_+r+1}], v[{U+r}:{U+r+1}]"))
            E += [V(f"v_cvt_pk_bf16_f32 v{a_}, v{a_}, v{a_+1}"), V(f"v_cvt_pk_bf16_f32 v{a_+1}, v{a_+2}, v{a_+3}"),
                  S(f"s_add_u32 s{sT0}, s{sOb}, {(t//5)*20480}"), bstore(2, a_, VO, sOUT, f"s{sT0}", (t % 5) * 32, Cfg.out_pol)]
        E += st(86) + st(77, True)
        if Cfg.stamps == 6:
            E += [wait(vm=0)] + ls(5) + [V(f"v_mov_b32 v{T+1}, 0"), V(f"v_mov_b32 v{T}, s{sCnt}"), bstore(1, T, T + 1, sWS, f"s{sStamp+2}", 4 * 106)]
            for i, r in enumerate([64, 66, 68, 70, 92, 94]): E += [V(f"v_mov_b32 v{T}, s{r}"), bstore(1, T, T + 1, sWS, f"s{sStamp+2}", 4 * (100 + i))]
            E += [V(f"v_mov_b32 v{T}, s96"), bstore(1, T, T + 1, sWS, f"s{sStamp+2}", 4 * 107)]
        if Cfg.dbgst and ks == 1:
            E += [S(f"s_cmp_lg_u32 s{sWave}, 4"), branch("s_cbranch_scc1", f"L_dbgend{v}"), S(f"s_cmp_lg_u32 s2, {Cfg.dbgst}"), branch("s_cbranch_scc1", f"L_dbgend{v}"),
                  S("s_mov_b64 exec, 1"), V("v_mov_b32 v1, 0")]
            for i, r in enumerate(DREG):
                E += [S(f"s_sub_u32 s{r}, s{r}, s{sStamp+2}"), S(f"s_lshr_b32 s{r}, s{r}, 8"), S(f"s_and_b32 s{r}, s{r}, 0x3ff"), S(f"s_lshl_b32 s{r}, s{r}, {12 + 10*(i&1)}"), V(f"v_mov_b32 v{2+i}, s{r}"),
                      raw(f"buffer_atomic_or v{2+i}, v1, s[{sDBG}:{sDBG+3}], 0 offen offset:{8*(i>>1)+4} sc1")]
            E += [label(f"L_dbgend{v}")]
        E += [raw("s_endpgm")]
        E, _ = finish(E)
        C += E
    return C

def gen_kernel(name):
    C = [raw(f".globl {name}\n.p2align 8\n.type {name},@function\n{name}:\nKSTART:", 'label')]
    C += [S("s_cmp_lt_u32 s2, 256"), branch("s_cbranch_scc1", "L_go"), raw("s_endpgm"), label("L_go")]
    C += [raw("s_load_dwordx16 s[56:71], s[0:1], 0")]
    if Cfg.dbgst: C += [raw(f"s_memtime s[{sStamp+2}:{sStamp+3}]")] + [S(f"s_mov_b32 s{r}, 0") for r in DREG]
    if Cfg.delay:
        C += [S(f"s_bitcmp0_b32 s2, {Cfg.delay_bit}"), branch("s_cbranch_scc1", "L_nodelay"), S(f"s_mov_b32 s{sT0}, {Cfg.delay // 1024}"), label("L_delay"), raw("s_sleep 16"),
              S(f"s_sub_u32 s{sT0}, s{sT0}, 1"), S(f"s_cmp_lg_u32 s{sT0}, 0"), branch("s_cbranch_scc1", "L_delay"), label("L_nodelay")]
    C += [V("v_lshrrev_b32 v1, 6, v0"),
          S(f"s_and_b32 s{sB}, s2, 7"), S(f"s_lshl_b32 s{sB}, s{sB}, 2"), V(f"v_readfirstlane_b32 s{sWave}, v1"),
          S(f"s_lshr_b32 s{sT0}, s2, 6"), S(f"s_add_u32 s{sB}, s{sB}, s{sT0}"), S(f"s_bfe_u32 s{sG}, s2, 0x30003")]
    C += [S(f"s_bfe_u32 s{sT0}, s{sWave}, 0x10001"), S(f"s_lshl_b32 s{sT2}, s{sG}, 2"), S(f"s_add_u32 s{sT2}, s{sT2}, s{sT0}"), S(f"s_lshl_b32 s{sWbase}, s{sT2}, 8"),
          S(f"s_cmp_lt_u32 s{sWave}, 4"), branch("s_cbranch_scc1", "L_w3"),
          S(f"s_and_b32 s{sT1}, s{sWave}, 1"), S(f"s_lshl_b32 s{sT2}, s{sT1}, 10"),
          S(f"s_lshl_b32 s{sLdsKV}, s{sT0}, 13"), S(f"s_add_u32 s{sLdsKV}, s{sLdsKV}, s{sT2}"),
          S(f"s_mul_i32 s{sLdsX}, s{sT0}, 10240"), S(f"s_add_u32 s{sLdsX}, s{sLdsX}, s{sT2}"),
          S(f"s_mul_i32 s{sXbase}, s{sB}, 204800"), S(f"s_mul_i32 s{sT2}, s{sT0}, 102400"), S(f"s_add_u32 s{sXbase}, s{sXbase}, s{sT2}")]
    if Cfg.rot:
        C += [S(f"s_lshr_b32 s{sRho}, s2, 6"), S(f"s_mul_i32 s{sRho}, s{sRho}, 5"), S(f"s_add_u32 s{sRho}, s{sRho}, 1"), S(f"s_lshr_b32 s{sRho}, s{sRho}, 1"),
              S(f"s_add_u32 s{sRho}, s{sRho}, s{sG}"), S(f"s_and_b32 s{sT2}, s2, 7"), S(f"s_add_u32 s{sRho}, s{sRho}, s{sT2}")]
        for _ in range(2): C += [S(f"s_sub_u32 s{sT2}, s{sRho}, 10"), S(f"s_cmp_ge_u32 s{sRho}, 10"), S(f"s_cselect_b32 s{sRho}, s{sT2}, s{sRho}")]
        if Cfg.rotn == 2: C += [S(f"s_and_b32 s{sRho}, s{sRho}, 1"), S(f"s_mul_i32 s{sRho}, s{sRho}, 5")]
        if Cfg.rotn == 4: C += [S(f"s_and_b32 s{sRho}, s{sRho}, 3"), S(f"s_mul_i32 s{sRho}, s{sRho}, 5"), S(f"s_lshr_b32 s{sRho}, s{sRho}, 1")]
    C = fix_hazards(C)
    w2, r2 = gen_w2(); w3, r3 = gen_w3()
    C += w2 + w3 + gen_o() + [label("KEND")] + r2 + r3 + flat(SLOW)
    for k, tag, par in CTX.stubs:
        C += [label(f"L_stub{k}"), raw(f"s_call_b64 s[{sRet}:{sRet+1}], L_rare_{tag}_{par}", 'branch'), branch("s_branch", f"L_back{k}")]
    return C

def kd(name, vgpr, accum, sgpr=102):
    return f""".section .rodata,"a"
.p2align 6
.amdhsa_kernel {name}
  .amdhsa_next_free_vgpr {vgpr}
  .amdhsa_next_free_sgpr {sgpr}
  .amdhsa_accum_offset {accum}
  .amdhsa_group_segment_fixed_size 0
  .amdhsa_kernarg_size 64
  .amdhsa_user_sgpr_count 2
  .amdhsa_user_sgpr_kernarg_segment_ptr 1
  .amdhsa_system_sgpr_workgroup_id_x 1
.end_amdhsa_kernel
"""

HDR = open('standalone__mha_block_cached__near_ridge.s.ref').read().split('; Override launch')[0]
def main(path):
    k1 = "standalone__mha_block_cached__near_ridge_kernel"
    s = HDR
    s += f"; @launch grid=(256,1,1) block=(512,1,1) lds={LDS_BYTES}\n"
    s += '.amdgcn_target "amdgcn-amd-amdhsa--gfx950"\n.text\n'
    s += emit(gen_kernel(k1))
    s += kd(k1, 256, 256)
    open(path, 'w').write(s)
if __name__ == '__main__':
    for a in sys.argv[2:]:
        k, v = a.split('=', 1); setattr(Cfg, k, eval(v))
    main(sys.argv[1] if len(sys.argv) > 1 else 'mha2.s')
```

```python
import sys, math, struct
from ir import *

SLOT = 16384
NSLOT = 10
NW, NX = 6, 3
WPERM = [4, 5, 1, 3, 0, 2]
def wslot(s): return WPERM[s % NW] * SLOT
def xbuf(u): return NW * SLOT + (u % NX) * 20480
WTAB = sum((((WPERM[(m + 1) % NW] - WPERM[m]) & 15) << (4 * m)) for m in range(NW))
LDS_BYTES = 163840
O_BYTES = 32 * 128 * 10 * 1024
XCH_OFF = O_BYTES
SLAB = 4096 + 128
XCH_WG = 8 * SLAB
MODE_LDS = LDS_BYTES - 4
WS_BYTES = XCH_OFF + 256 * XCH_WG
QSCALE = math.log2(math.e) / math.sqrt(128.0)
THR = 16384.0
def f2u(x): return "0x%08x" % struct.unpack('<I', struct.pack('<f', x))[0]

sK, sV, sW, sX, sWS, sWO, sOUT, sDBG = 8, 12, 16, 20, 24, 28, 76, 80
sWave, sRound, sB, sG = 32, 33, 34, 35
sKVbase, sWbase, sXbase, sLdsKV, sLdsX = 36, 37, 38, 39, 40
sT0, sT1 = 41, 42
sKpos, sVpos, sD, sCnt, sXd, sLoop = 43, 44, 45, 49, 50, 51
sRet = 46
sOst = 48
sKX, sFlag = 52, 53
sT2, sT3 = 54, 55
sQS, sC16, sC32, sCX = 72, 73, 74, 75
sTK, sTV, sCnt2 = 88, 89, 90
sTau = 64
sMode = 91
sRho, sT4 = 3, 87
sOoff = 56
sStamp = 84
DBG_OFF = 96 << 20

class Cfg:
    stamps = False
    dbgst = False
    dsl = None
    rot = True
    orot = True
    warm0 = False
    delay = 0
    delay_bit = 7
    LA = 7
    kv_pol = 'nt'
    touch_pol = ''
    touch_at = []
    warm = True
    xsleep = 8
    kv_same = False
    v_pol = None
    ent = False
    tlbwarm = 8
    widest = True
    pro_pol = ''
    wx_pol = ''
    poll_nt = False
    taumul = 8
    taush = 2
    taumask = 15
    kvgrp = 1
    pace = 0.0
    lead = 2
    tbatch = []
    qr3 = 18
    qr2 = 15
    orh = 20
    od0 = 1
    od1 = 24
    ofirst = True
    qd0 = 0
    qprio = 1
    ofast_pol = ''
    fast0 = False
    out_pol = ''
    dsplit = 100
    rotn = 10
    late = 8
    smpure = 0.7
    pp = False
    pp_a = 1
    pp_b = 0
    ostamp = False
    xsleep2 = 2
    dual = True
    fast = True
    codetouch2 = True
    codetouch = True
    qcut = 4
    prio = 2
    no_sm = False
    no_dma = False
    no_exp = False
    no_chk = False
    no_ds = False
    no_adv = False
    ost_pol = 'sc1'
    old_pol = 'sc1'
    o_skip = 0
    o_vm1 = 10
    smend = 3

RT4 = {7: 90, 39: 91, 45: 92, 73: 93, 82: 94, 83: 95}
STAMP3 = (0, 1, 3, 5, 7, 39, 41, 43, 45, 73, 75, 76, 77, 80, 81, 82, 83, 84, 85, 86)
DSL = {(1, 0): 0, (41, 0): 1, (45, 0): 2, (73, 0): 3, (1, 1): 4, (41, 1): 5, (45, 1): 6, (73, 1): 7, (80, 2): 8, (82, 2): 9, (83, 2): 10, (84, 2): 11, (85, 2): 12, (86, 2): 13}
sDS = 4
DREG = [4, 5, 6, 7, 101, 92, 93, 94, 95, 96, 97, 98, 99, 100]
def stamp(t, k, real=False):
    if Cfg.dbgst:
        if real: return []
        dsl = DSL if not Cfg.dsl else {(2 * b + 1, Cfg.dsl[0]): i for i, b in enumerate(Cfg.dsl[1:])}
        hits = [(r, i) for (kk, r), i in dsl.items() if kk == k]
        if not hits: return []
        out = [raw(f"s_memtime s[{sStamp}:{sStamp+1}]"), wait(lgkm=0)]
        for r, i in hits:
            out += [S(f"s_cmp_eq_u32 s{sRound}, {r}"), S(f"s_cselect_b32 s{DREG[i]}, s{sStamp}, s{DREG[i]}")]
        return out
    if not Cfg.stamps: return []
    if Cfg.stamps == 6: return []
    if Cfg.stamps == 4 and not real and k in RT4:
        Cfg.stamps = 5; r = stamp(t, k) + stamp(t, RT4[k], True); Cfg.stamps = 4; return r
    if Cfg.stamps in (3, 4) and k not in STAMP3: return []
    return [raw(f"{'s_memrealtime' if real else 's_memtime'} s[{sStamp}:{sStamp+1}]"), wait(lgkm=0), V(f"v_mov_b32 v{t}, s{sStamp}"), V(f"v_mov_b32 v{t+1}, 0"),
            S(f"s_and_b32 s{sStamp+1}, s{sRound}, 1"), S(f"s_lshl_b32 s{sStamp+1}, s{sStamp+1}, 9"), S(f"s_add_u32 s{sStamp+1}, s{sStamp+1}, s{sStamp+2}"),
            bstore(1, t, t + 1, sWS, f"s{sStamp+1}", 4 * k, tag=('misc',))]

def item_slot(n): return (n % NSLOT) * SLOT
def kidx(t): return 0 if t == 0 else 2 * t - 1
def vidx(t): return 2 * t + 2

class Wave:
    def __init__(self, nq):
        self.nq = nq
        n = nq
        p = 0
        self.O = p; p += 32 * n
        self.Q = p; p += 16 * n
        self.NM = p; p += 4 * n
        self.S = p; p += 8 * n
        self.P = p; p += 8 * n
        self.L = p; p += n
        self.LT = p; p += n
        self.T = p; p += 4
        self.aN = p; p += 2
        self.aT = p; p += 4
        p = (p + 3) & ~3
        self.F = p; self.NF = 8; p += 32
        self.dummy = p; p += 1
        self.tmp = p; p += 3
        if nq == 2:
            self.vK = p; self.vV = p + 1; self.vW = p + 2; self.vX = p + 3; self.vTch = p + 4; self.oVoff = p + 5; self.oPoll = p + 6; p += 7
        assert p <= 256, p
        self.end = p
        setsz = 32 + 4 * n
        if nq == 3:
            self.set = [self.Q, self.S]
        else:
            q = (p + 3) & ~3
            self.set = [self.Q, q]
            assert q + setsz <= 256
        self.tag = f"w{nq}"
        self.fpos = 0
    def o(self, T, j): return self.O + (T * self.nq + j) * 4
    def q(self, s, j): return self.Q + (s * self.nq + j) * 4
    def nm(self, j): return self.NM + 4 * j
    def s(self, kb, j): return self.S + (kb * self.nq + j) * 4
    def p(self, par, j): return self.P + (par * self.nq + j) * 4
    def fa(self, st, T): return self.set[st] + 4 * T
    def fb(self, st, j): return self.set[st] + 32 + 4 * j

def spread(base, fillers):
    ins = [[] for _ in range(len(base) + 1)]
    for groups, lo, hi in fillers:
        n = len(groups)
        if n == 0: continue
        hi = min(hi, len(base)); lo = min(lo, hi)
        span = hi - lo
        for k, gI in enumerate(groups):
            pos = lo + (k * span) // n + 1 if span > 0 else lo
            ins[min(pos, len(base))].extend(gI)
    out = list(ins[0])
    for i, b in enumerate(base):
        out.append(b); out.extend(ins[i + 1])
    return out

def frag_K(w, s, kb, first_c):
    def reads(f): return [ds_read(4, f, w.aN + (s & 1), kb * 4096 + (s >> 1) * 2048)]
    def mf(f):
        out = []
        for j in range(w.nq):
            c = w.s(kb, j) if s > 0 else (None if first_c == 'zero' else w.nm(j))
            out.append(mfma(w.s(kb, j), f, w.q(s, j), c))
        return out
    return dict(reads=reads, mf=mf, pre=[])
def frags_QK(w, first_c='negm', pre=()):
    fr = [frag_K(w, s, kb, first_c) for s in range(4) for kb in range(2)]
    fr[0]['pre'] = list(pre)
    return fr
def frag_V(w, db, par, zero):
    def reads(f): return [ds_read(2, f + 2 * hh, w.aT + (db & 3), hh * 4096 + (db >> 2) * 2048, tr=True) for hh in range(2)]
    def mf(f): return [mfma(w.o(db, j), f, w.p(par, j), None if zero else w.o(db, j)) for j in range(w.nq)]
    return dict(reads=reads, mf=mf, pre=[])
def frags_PV(w, par, zero=False, pre=()):
    fr = [frag_V(w, db, par, zero) for db in range(8)]
    fr[0]['pre'] = list(pre)
    return fr

def stream(w, frags, preloaded, nxt, fillers=(), lead=()):
    LA = Cfg.LA
    allf = list(frags) + list(nxt[:LA])
    head = []
    def issue(i):
        f = allf[i]
        return ([] if Cfg.no_adv else list(f['pre'])) + ([] if Cfg.no_ds else f['reads'](w.F + 4 * ((w.fpos + i) % w.NF)))
    for i in range(preloaded, min(LA, len(allf))): head += issue(i)
    base = list(lead); extra = []
    for i, f in enumerate(frags):
        m = f['mf'](w.F + 4 * ((w.fpos + i) % w.NF))
        base += m
        post = []
        if i + LA < len(allf) and i + LA >= preloaded: post += issue(i + LA)
        if post: extra.append(([post], len(base) - 1, len(base)))
    body = spread(base, list(extra) + list(fillers))
    w.fpos = (w.fpos + len(frags)) % w.NF
    return head + body

def softmax_groups(w, par):
    G = []
    k = 0
    for kb in range(2):
        for j in range(w.nq):
            for h in range(2):
                t0 = w.T + 2 * (k & 1); t1 = t0 + 1; k += 1
                sr = w.s(kb, j) + 2 * h
                G.append([V(f"v_exp_f32 v{t0}, v{sr}")])
                G.append([V(f"v_exp_f32 v{t1}, v{sr+1}")])
                lt = w.LT + j
                if kb == 0 and h == 0:
                    G.append(('late', [V(f"v_add_f32 v{lt}, v{t0}, v{t1}"), V(f"v_cvt_pk_bf16_f32 v{w.p(par,j)+2*kb+h}, v{t0}, v{t1}")]))
                else:
                    G.append(('late', [V(f"v_add_f32 v{lt}, v{lt}, v{t0}"), V(f"v_cvt_pk_bf16_f32 v{w.p(par,j)+2*kb+h}, v{t0}, v{t1}"),
                                       V(f"v_add_f32 v{lt}, v{lt}, v{t1}")]))
    if Cfg.no_sm: return [[V(f"v_mov_b32 v{w.LT+j}, 1.0")] for j in range(w.nq)]
    if Cfg.no_exp:
        for gI in G:
            if not isinstance(gI, tuple): gI[0] = V(gI[0].text.replace('v_exp_f32', 'v_mov_b32'))
    out = []; pend = None
    for gI in G:
        if isinstance(gI, tuple):
            pend = gI[1]
        else:
            out.append(gI)
            if pend is not None:
                out.append(pend); pend = None
    if pend is not None: out.append(pend)
    return out

class Ctx:
    def __init__(self): self.stubs = []; self.n = 0
CTX = Ctx()

SLOW = []
def dstore(n, src, voff, srd_, soff, imm, tag=None, pol=''):
    if not Cfg.dual: return [bstore(n, src, voff, srd_, soff, imm, 'sc1', tag=tag)]
    k = len(SLOW)
    SLOW.append([label(f"L_slow{k}"), bstore(n, src, voff, srd_, soff, imm, 'sc1'), branch("s_branch", f"L_slowb{k}")])
    return [branch("s_cbranch_vccz", f"L_slow{k}"), bstore(n, src, voff, srd_, soff, imm, pol, tag=tag), label(f"L_slowb{k}")]
def mode_vcc(): return [S(f"s_and_b32 s{sT1}, s{sMode}, s{sMode if Cfg.fast0 else sRound}"), S("s_cselect_b64 vcc, -1, 0")]
def mode_read(t):
    return [[V(f"v_mov_b32 v{t}, {MODE_LDS}"), ds_read(1, t, t, 0)],
            [V(f"v_readfirstlane_b32 s{sT1}, v{t}"), S(f"s_cmp_eq_u32 s{sRound}, 0"), S(f"s_cselect_b32 s{sMode}, s{sT1}, s{sMode}")]]

def check_cmp(w):
    if Cfg.no_chk: return []
    out = []
    if w.nq == 3: out.append(V(f"v_max3_f32 v{w.tmp}, v{w.LT}, v{w.LT+1}, v{w.LT+2}"))
    else: out.append(V(f"v_max_f32 v{w.tmp}, v{w.LT}, v{w.LT+1}"))
    out.append(I(f"v_cmp_nge_f32 vcc, {f2u(THR)}, v{w.tmp}", 'valu', wr={('s', 'vcc')}, rd=regs(w.tmp)))
    return out
def check_branch(w, par):
    if Cfg.no_chk: return []
    k = CTX.n; CTX.n += 1
    CTX.stubs.append((k, w.tag, par))
    return [branch("s_cbranch_vccnz", f"L_stub{k}"), label(f"L_back{k}")]
def l_accum(w, first=False):
    if first: return [V(f"v_mov_b32 v{w.L+j}, v{w.LT+j}") for j in range(w.nq)]
    return [V(f"v_add_f32 v{w.L+j}, v{w.L+j}, v{w.LT+j}") for j in range(w.nq)]
def sm_fillers(w, par, lo):
    nm = 8 * w.nq
    return [(softmax_groups(w, par) + [check_cmp(w)], lo, nm - Cfg.smend)]

def xlane(op, r, t):
    return [V(f"v_mov_b32 v{t}, v{r}"), V(f"v_permlane32_swap_b32 v{r}, v{t}"), V(f"{op} v{r}, v{r}, v{t}"),
            V(f"v_mov_b32 v{t}, v{r}"), V(f"v_permlane16_swap_b32 v{r}, v{t}"), V(f"{op} v{r}, v{r}, v{t}")]

def tile_max(w, j, dst):
    a, b = w.s(0, j), w.s(1, j)
    return [V(f"v_max3_f32 v{dst}, v{a}, v{a+1}, v{a+2}"), V(f"v_max3_f32 v{dst}, v{dst}, v{a+3}, v{b}"),
            V(f"v_max3_f32 v{dst}, v{dst}, v{b+1}, v{b+2}"), V(f"v_max_f32 v{dst}, v{dst}, v{b+3}")]

def first_max(w):
    out = []
    for j in range(w.nq): out += tile_max(w, j, w.LT + j)
    seqs = [xlane("v_max_f32", w.LT + j, w.T + j) for j in range(w.nq)]
    for k in range(6):
        for sq in seqs: out.append(sq[k])
    for j in range(w.nq):
        for r in range(4): out.append(V(f"v_sub_f32 v{w.nm(j)+r}, 0, v{w.LT+j}"))
        for kb in range(2):
            for r in range(4): out.append(V(f"v_sub_f32 v{w.s(kb,j)+r}, v{w.s(kb,j)+r}, v{w.LT+j}"))
    return out

def rare_routine(w, par):
    out = [label(f"L_rare_{w.tag}_{par}"), nop(15)]
    for j in range(w.nq):
        d = w.LT + j; f = w.T + 1
        out += tile_max(w, j, d)
        out += xlane("v_max_f32", d, w.T)
        out.append(V(f"v_max_f32 v{d}, 0, v{d}"))
        out.append(V(f"v_sub_f32 v{f}, 0, v{d}"))
        out.append(V(f"v_exp_f32 v{f}, v{f}"))
        for r in range(4): out.append(V(f"v_sub_f32 v{w.nm(j)+r}, v{w.nm(j)+r}, v{d}"))
        for kb in range(2):
            for r in range(4): out.append(V(f"v_sub_f32 v{w.s(kb,j)+r}, v{w.s(kb,j)+r}, v{d}"))
        out.append(V(f"v_mul_f32 v{w.L+j}, v{w.L+j}, v{f}"))
        for T in range(8):
            for r in range(4): out.append(V(f"v_mul_f32 v{w.o(T,j)+r}, v{w.o(T,j)+r}, v{f}"))
    for gI in softmax_groups(w, par): out += gI
    out.append(nop(3))
    out.append(raw(f"s_setpc_b64 s[{sRet}:{sRet+1}]", 'branch'))
    return fix_hazards(out)

def q_reads(w, st, sl):
    G = []
    for j in range(w.nq): G.append([ds_read(4, w.fb(st, j), w.aN + sl, j * 2048)])
    for T in range(8):
        for hh in range(2):
            G.append([ds_read(2, w.fa(st, T) + 2 * hh, w.aT + ((T >> 1) & 1), hh * 4096 + (T >> 2) * 2048 + (T & 1) * 8, tr=True)])
    return G
def q_mfmas(w, st, zero):
    return [mfma(w.o(T, j), w.fa(st, T), w.fb(st, j), None if zero else w.o(T, j)) for T in range(8) for j in range(w.nq)]

def q_pack_groups(w, s):
    G = []
    for j in range(w.nq):
        for half in range(2):
            a = w.o(2 * s + half, j)
            for r in range(4): G.append([V(f"v_mul_f32 v{a+r}, s{sQS}, v{a+r}")])
            G.append([V(f"v_cvt_pk_bf16_f32 v{w.q(s,j)+2*half}, v{a}, v{a+1}")])
            G.append([V(f"v_cvt_pk_bf16_f32 v{w.q(s,j)+2*half+1}, v{a+2}, v{a+3}")])
    return G
def q_pack_fillers(w):
    n = w.nq
    rng = [(2 * n + 2, 5 * n), (5 * n, 8 * n), (8 * n, 11 * n), (11 * n, 14 * n - 1)]
    return [(q_pack_groups(w, s), rng[s][0], rng[s][1]) for s in range(4)]

def l_reduce(w):
    out = []
    seqs = [xlane("v_add_f32", w.L + j, w.T + j) for j in range(w.nq)]
    for k in range(6):
        for sq in seqs: out.append(sq[k])
    for j in range(w.nq): out.append(V(f"v_rcp_f32 v{w.L+j}, v{w.L+j}"))
    out += [V(f"v_mbcnt_lo_u32_b32 v{w.tmp}, -1, 0"), V(f"v_mbcnt_hi_u32_b32 v{w.tmp}, -1, v{w.tmp}"), V(f"v_lshlrev_b32 v{w.tmp}, 4, v{w.tmp}")]
    return out
def epi_groups(w, s):
    G = []
    for j in range(w.nq):
        d = w.q(s, j)
        for half in range(2):
            a = w.o(2 * s + half, j)
            for r in range(4): G.append([V(f"v_mul_f32 v{a+r}, v{a+r}, v{w.L+j}")])
            G.append([V(f"v_cvt_pk_bf16_f32 v{d+2*half}, v{a}, v{a+1}")])
            G.append([V(f"v_cvt_pk_bf16_f32 v{d+2*half+1}, v{a+2}, v{a+3}")])
        G.append([S(f"s_add_u32 s{sT1}, s{sOst}, {s*10240}")] + dstore(4, d, w.tmp, sWS, f"s{sT1}", j * 1024, tag=('O', 0, True), pol=Cfg.ofast_pol))
    return G
def epi_fillers(w):
    n = w.nq
    rng = [(2 * n + 2, 4 * n + 2), (4 * n + 2, 6 * n + 2), (6 * n + 2, 8 * n), (8 * n, 8 * n)]
    return [([[i] for i in l_reduce(w)], 0, 2 * n + 1)] + [(epi_groups(w, s), rng[s][0], rng[s][1]) for s in range(4)]

def flat(G): return [i for g in G for i in g]
def one(L): return [[i] for i in L]

def dma_kv(w, kind, t, nxt_round, tag):
    srd_ = sK if kind == 'K' else sV
    voff = w.vK if kind == 'K' else w.vV
    n = kidx(t) if kind == 'K' else vidx(t)
    lds = item_slot(n)
    G = []
    for a in range(2):
        for seg in range(2):
            G.append([S(f"s_add_u32 m0, s{sLdsKV}, {lds + a*4096 + seg*2048 - seg*128}"),
                      S(f"s_add_u32 s{sT0}, s{sT4}, {a*4096}"),
                      dma(voff, srd_, f"s{sT0}", seg * 128, Cfg.kv_pol if (kind == 'K' or Cfg.v_pol is None) else Cfg.v_pol, tag=tag)])
    G[0] = [S(f"s_add_u32 s{sT4}, s{sTau}, {t*8192}"), S(f"s_and_b32 s{sT4}, s{sT4}, 0x1ffff"), S(f"s_add_u32 s{sT4}, s{sT4}, s{sKVbase}")] + G[0]
    return G
POL = ['']
def rot_off(u, unit, base):
    if not Cfg.rot: return [S(f"s_add_u32 s{sT4}, s{base}, {u*unit}")]
    return [S(f"s_cmp_ge_u32 s{sRho}, {10-u}"), S(f"s_cselect_b32 s{sT4}, {u-10}, {u}"), S(f"s_add_u32 s{sT4}, s{sT4}, s{sRho}"),
            S(f"s_mul_i32 s{sT4}, s{sT4}, {unit}"), S(f"s_add_u32 s{sT4}, s{sT4}, s{base}")]
def dma_w(w, s, nxt_round, tag):
    lds = wslot(s)
    goff = (s & 1) * 32 * 8192 + (512 if nxt_round else 0)
    G = []
    for hh in range(2):
        for seg in range(2):
            G.append([S(f"s_add_u32 m0, s{sLdsKV}, {lds + hh*4096 + seg*2048 - seg*128}"),
                      S(f"s_add_u32 s{sT0}, s{sT4}, {goff + hh*32768}"),
                      dma(w.vW, sW, f"s{sT0}", seg * 128, POL[0], tag=tag)])
    G[0] = rot_off(s >> 1, 64 * 8192, sWbase) + G[0]
    return G
def dma_x(w, u, tag):
    G = []
    for i in range(5):
        G.append([S(f"s_add_u32 m0, s{sLdsX}, {xbuf(u) + i*2048}"),
                  S(f"s_add_u32 s{sT0}, s{sT4}, {i*20480}"),
                  dma(w.vX, sX, f"s{sT0}", 0, POL[0], tag=tag)])
    G[0] = rot_off(u, 128, sXbase) + G[0]
    return G
def touch_kv(w, kind):
    srd_, ptr = (sK, sTK) if kind == 'K' else (sV, sTV)
    return [[bload(1, w.dummy, w.vTch, srd_, f"s{ptr}", 0, Cfg.touch_pol, tag=('misc',)), S(f"s_add_u32 s{ptr}, s{ptr}, 4096")]]

NAMES = {}
for _t in range(16):
    NAMES[kidx(_t)] = ('K', _t); NAMES[vidx(_t)] = ('V', _t)
def first_use(kind, i):
    if kind == 'W': return i
    if kind == 'X': return 2 * i
    if kind == 'K': return 20 if i == 0 else 19 + i
    if kind == 'V': return 21 + i
    if kind == 'O': return 3
    if kind == 'P': return 35

def loader_schedule(w):
    sch = {i: [] for i in range(37)}
    r0 = lambda G, lab: [[S(f"s_cmp_lg_u32 s{sRound}, 0"), branch("s_cbranch_scc1", lab)] + flat(G) + [label(lab)]]
    sch[0] += r0(dma_w(w, 2, False, ('W', 2, 'cond')), "L_r0a") + dma_x(w, 1, ('X', 1, False)) + r0(dma_w(w, 3, False, ('W', 3, 'cond')), "L_r0b")
    sch[1] += dma_w(w, 4, False, ('W', 4, False)) + dma_x(w, 2, ('X', 2, False))
    sch[2] += dma_w(w, 5, False, ('W', 5, False))
    for s in range(NW, 20): sch[max(s - NW + 1, 3)] += dma_w(w, s, False, ('W', s, False))
    for u in range(NX, 10): sch[2 * (u - NX) + 2] += dma_x(w, u, ('X', u, False))
    if not Cfg.no_dma:
        first = {0: 17, 1: 15, 2: 18, 3: 16, 4: 19, 5: 20, 6: 20, 7: 20, 8: 18, 9: 19}
        for n in range(10): sch[first[n]] += dma_kv(w, *NAMES[n], False, NAMES[n] + (False,))
        for n in range(10, 33):
            if n not in NAMES: continue
            k, t = NAMES[n - 10]
            last = (20 + t) if k == 'K' else min(22 + t, 36)
            rem = [m for m in range(10, 33) if m in NAMES]
            paced = 21 + int(rem.index(n) * Cfg.pace)
            when = max(last + 1, min(paced, first_use(*NAMES[n]) - Cfg.lead))
            sch[when] += dma_kv(w, *NAMES[n], False, NAMES[n] + (False,))
    for idx, ss in ((33, (2, 3)), (34, (0, 1))):
        for s_ in ss: sch[idx] += r0(dma_w(w, s_, True, ('W', s_, 'next')), f"L_r0w{s_}")
    w4first = lambda lab: [S(f"s_lshl_b32 s{sT1}, s{sRound}, 3"), S(f"s_add_u32 s{sT1}, s{sT1}, s{sWave}"), S(f"s_cmp_lg_u32 s{sT1}, 4"), branch("s_cbranch_scc1", lab)]
    sch[7] = [w4first("L_p0") + [S(f"s_lshl_b32 s{sT1}, s{sB}, 3"), V(f"v_mov_b32 v{w.tmp+2}, s{sT1}"), bload(1, w.oPoll, w.tmp + 2, sDBG, 0, 0, 'sc1', tag=('cond',)), label("L_p0")]] + sch[7]
    sch[14] += [w4first("L_m0") + [V(f"v_readfirstlane_b32 s{sT1}, v{w.oPoll}"), S(f"s_bfe_u32 s{sT2}, s{sT1}, 0x80010"), S(f"s_lshr_b32 s{sT1}, s{sT1}, 24"),
                 S(f"s_bcnt1_i32_b32 s{sT1}, s{sT1}"), S(f"s_lshl_b32 s{sT1}, s{sT1}, 8"), S(f"s_or_b32 s{sT1}, s{sT1}, s{sT2}"), S(f"s_cmp_eq_u32 s{sT1}, 0x1ff"),
                 S(f"s_cselect_b32 s{sT1}, {3 if Cfg.fast else 0}, 0"), V(f"v_mov_b32 v{w.tmp+1}, s{sT1}"), V(f"v_mov_b32 v{w.tmp+2}, {MODE_LDS}"),
                 raw(f"ds_write_b32 v{w.tmp+2}, v{w.tmp+1}"), label("L_m0")]]
    mr = mode_read(w.T)
    sch[17] = [mr[0]] + sch[17]; sch[18] = [mr[1]] + sch[18]
    w4last = lambda lab: [S(f"s_lshl_b32 s{sT1}, s{sRound}, 3"), S(f"s_add_u32 s{sT1}, s{sT1}, s{sWave}"), S(f"s_cmp_lg_u32 s{sT1}, 12"), branch("s_cbranch_scc1", lab)]
    sch[29] = [w4last("L_p1") + [V(f"v_mov_b32 v{w.tmp+2}, s{sFlag}"), bload(1, w.oPoll, w.tmp + 2, sDBG, 0, 0, 'sc1', tag=('cond',)), label("L_p1")]] + sch[29]
    sch[34] += [w4last("L_g1_back") + gate("L_g1", w.oPoll, w.tmp + 2, 0) + [label("L_g1_back")]]
    for u in range(2):
        alt = flat(dma_x(w, 0, ('X', 0, 'next'))) if u == 0 else []
        sch[35 + u] += [[S(f"s_cmp_lg_u32 s{sRound}, 0"), branch("s_cbranch_scc1", f"L_opre{u}")] + alt + [label(f"L_opre{u}_back"), I("; opre", 'comment', tag=('phantom', 0 if Cfg.o_skip else 10))]]
    if not Cfg.no_dma:
        for i, idx in enumerate(sorted(Cfg.touch_at)): sch[idx] += touch_kv(w, 'KV'[i & 1])
        for idx, goff in Cfg.tbatch:
            sch[idx] += [[S(f"s_add_u32 s{sT0}, s{sKVbase}, {goff}"), bload(1, w.dummy, w.vTch, sK, f"s{sT0}", 0, Cfg.touch_pol, tag=('misc',)),
                          bload(1, w.dummy, w.vTch, sV, f"s{sT0}", 0, Cfg.touch_pol, tag=('misc',))]]
    return sch

def lane_id(r): return [V(f"v_mbcnt_lo_u32_b32 v{r}, -1, 0"), V(f"v_mbcnt_hi_u32_b32 v{r}, -1, v{r}")]
def lane_setup(w):
    t = w.F + 8
    lane, i16, g, a, b, c = t, t + 1, t + 2, t + 3, t + 4, t + 5
    o = lane_id(lane) + [V(f"v_and_b32 v{i16}, 15, v{lane}"), V(f"v_lshrrev_b32 v{g}, 4, v{lane}")]
    o += [V(f"v_lshrrev_b32 v{a}, 1, v{i16}"), V(f"v_xor_b32 v{a}, v{a}, v{g}"), V(f"v_lshlrev_b32 v{a}, 4, v{a}"),
          V(f"v_lshl_add_u32 v{w.aN}, v{i16}, 7, v{a}"), V(f"v_xor_b32 v{w.aN+1}, 64, v{w.aN}")]
    o += [V(f"v_lshrrev_b32 v{a}, 2, v{lane}"), V(f"v_and_b32 v{b}, 6, v{a}"),
          V(f"v_bfe_u32 v{c}, v{lane}, 1, 1"), V(f"v_xor_b32 v{b}, v{b}, v{c}"), V(f"v_lshlrev_b32 v{b}, 4, v{b}"),
          V(f"v_lshl_add_u32 v{b}, v{a}, 7, v{b}"),
          V(f"v_and_b32 v{c}, 1, v{lane}"), V(f"v_lshl_add_u32 v{w.aT}, v{c}, 3, v{b}")]
    for dq in range(1, 4): o.append(V(f"v_xor_b32 v{w.aT+dq}, {dq<<5}, v{w.aT}"))
    return o
def voff_setup(w):
    t = w.F + 16
    r8, p, a, b, row = t, t + 1, t + 2, t + 3, t + 4
    o = [V(f"v_bfe_u32 v{row}, v0, 3, 4"),
         V(f"v_and_b32 v{p}, 7, v0"),
         V(f"v_lshrrev_b32 v{a}, 1, v{row}"), V(f"v_xor_b32 v{a}, v{a}, v{p}"), V(f"v_lshlrev_b32 v{a}, 4, v{a}"),
         V(f"v_and_b32 v{b}, 6, v{row}"), V(f"v_xor_b32 v{b}, v{b}, v{p}"), V(f"v_lshlrev_b32 v{b}, 4, v{b}"),
         V(f"v_and_b32 v{p}, 12, v{row}"), V(f"v_add_u32 v{p}, v{p}, v{row}"), V(f"v_lshl_add_u32 v{w.vW}, v{p}, 13, v{b}"),
         V(f"v_mul_u32_u24 v{p}, 1280, v{row}"), V(f"v_add_u32 v{w.vX}, v{p}, v{a}")]
    o2 = [V(f"v_lshl_add_u32 v{w.vK}, v{row}, 8, v{a}"), V(f"v_lshl_add_u32 v{w.vV}, v{row}, 8, v{b}"),
          V(f"v_and_b32 v{p}, 63, v0"), V(f"v_lshlrev_b32 v{p}, 6, v{p}"), V(f"v_bfe_u32 v{r8}, v0, 6, 1"), V(f"v_lshl_add_u32 v{w.vTch}, v{r8}, 12, v{p}")]
    return o, o2

def add_addr(regs_, delta):
    if delta == 0: return []
    if isinstance(delta, str): return [V(f"v_add_u32 v{r}, {delta}, v{r}") for r in regs_]
    return [V(f"v_add_u32 v{r}, {delta & 0xffffffff:#x}, v{r}") for r in regs_]

def to_w(w, cur):
    t = w.T
    return add_addr([w.aT + 2, w.aT + 3], item_slot(vidx(0)) - cur) + add_addr([w.aT], wslot(0) - cur) + [
        V(f"v_bfe_u32 v{t}, v{w.aT}, 3, 2"), V(f"v_and_b32 v{w.aT}, 0xffffffe7, v{w.aT}"), V(f"v_lshlrev_b32 v{t}, 4, v{t}"),
        V(f"v_xor_b32 v{w.aT}, v{w.aT}, v{t}"), V(f"v_xor_b32 v{w.aT+1}, 64, v{w.aT}")]
def to_v(w): return [V(f"v_xor_b32 v{w.aT}, 64, v{w.aT+2}"), V(f"v_xor_b32 v{w.aT+1}, 64, v{w.aT+3}")]

def finish(code, pending=None, pre=()):
    c, q = add_lgkm_waits(code, pending)
    return fix_hazards(c, pre), q

def loop_finish(B, q, before):
    B1, q1 = finish(B, q, pre=before[-12:])
    B2, q2 = finish(B, q1, pre=B1[-12:])
    B3, q3 = finish(B, q2, pre=B2[-12:])
    assert emit(B2) == emit(B3) and q2 == q3
    assert len(q) <= len(q2) and q == q2[len(q2) - len(q):], "entry LDS queue must be a suffix of the steady-state queue"
    B4 = fix_hazards(B2, before[-12:])
    assert emit(fix_hazards(B4, B4[-12:])) == emit(B4)
    return B4, q2

def srd(base, ptr, nbytes):
    return [S(f"s_mov_b32 s{base}, s{ptr}"), S(f"s_mov_b32 s{base+1}, s{ptr+1}"), S(f"s_mov_b32 s{base+2}, {nbytes}"), S(f"s_mov_b32 s{base+3}, 0x20000")]

def round_advance():
    return [S(f"s_add_u32 s{sKVbase}, s{sKVbase}, 262144"), S(f"s_add_u32 s{sWbase}, s{sWbase}, 512"),
            S(f"s_add_u32 s{sOst}, s{sOst}, {8*10240}"), S(f"s_add_u32 s{sRound}, s{sRound}, 1"), S(f"s_cmp_lt_u32 s{sRound}, 2")]

def flag_add(t, val, lab):
    return [V(f"v_mov_b32 v{t}, {val}"), V(f"v_mov_b32 v{t+1}, s{sFlag}"), S("s_mov_b64 exec, 1"),
            I(f"buffer_atomic_or v{t}, v{t+1}, s[{sDBG}:{sDBG+3}], 0 offen sc1", 'vstore', rd=regs(t, 2) | regs(sDBG, 4, 's'), tag=('cond',)),
            S("s_mov_b64 exec, -1"), label(lab)]

def common_scalars():
    C = srd(sK, 58, 134217728) + srd(sV, 60, 134217728) + srd(sWO, 64, 5242880) + srd(sOUT, 66, 6553600) + srd(sDBG, 68, 256) \
        + srd(sWS, 70, (160 << 20) if Cfg.stamps else WS_BYTES)
    C += [S(f"s_lshr_b32 s{sT2}, s{sWbase}, 8"),
          S(f"s_lshl_b32 s{sT3}, s{sB}, 5"), S(f"s_add_u32 s{sT3}, s{sT3}, s{sT2}"), S(f"s_lshl_b32 s{sKVbase}, s{sT3}, 17"),
          S(f"s_mul_i32 s{sOst}, s{sT3}, 40960"),] + ([S(f"s_and_b32 s{sKVbase}, s{sKVbase}, 0x20000")] if Cfg.kv_same else []) + [
          S(f"s_lshl_b32 s{sFlag}, s{sB}, 1"), S(f"s_lshr_b32 s{sT2}, s{sG}, 2"), S(f"s_add_u32 s{sFlag}, s{sFlag}, s{sT2}"), S(f"s_lshl_b32 s{sFlag}, s{sFlag}, 2"),
          S(f"s_mul_i32 s{sTau}, s{sT3}, {Cfg.taumul}"), S(f"s_lshr_b32 s{sT2}, s{sT3}, {Cfg.taush}"), S(f"s_add_u32 s{sTau}, s{sTau}, s{sT2}"),
          S(f"s_and_b32 s{sTau}, s{sTau}, {Cfg.taumask}"), S(f"s_lshl_b32 s{sTau}, s{sTau}, 13"),
          S(f"s_mov_b32 s{sRound}, 0"), S(f"s_mov_b32 s{sMode}, 0"), S(f"s_mov_b32 s{sQS}, {f2u(QSCALE)}"), S(f"s_mov_b32 s{sC16}, {WTAB:#x}"), S(f"s_mov_b32 s{sC32}, {2*SLOT}"),
          S(f"s_mov_b32 s{sCX}, 20480"), S(f"s_mov_b32 s{sTK}, s{sKVbase}"), S(f"s_mov_b32 s{sTV}, s{sKVbase}")]
    if Cfg.stamps:
        C += [S(f"s_lshl_b32 s{sStamp+2}, s2, 3"), S(f"s_add_u32 s{sStamp+2}, s{sStamp+2}, s{sWave}"), S(f"s_lshl_b32 s{sStamp+2}, s{sStamp+2}, 10"),
              S(f"s_add_u32 s{sStamp+2}, s{sStamp+2}, {DBG_OFF}")]
    return C
def wave_addr0(w, j0mul, j0add):
    aN = [w.aN, w.aN + 1]; aT = [w.aT + i for i in range(4)]
    C = [S(f"s_bfe_u32 s{sT0}, s{sWave}, 0x10001"), S(f"s_lshl_b32 s{sT0}, s{sT0}, 13"),
         S(f"s_and_b32 s{sT1}, s{sWave}, 1"), S(f"s_mul_i32 s{sT1}, s{sT1}, {j0mul*1024}"), S(f"s_add_u32 s{sT1}, s{sT1}, {j0add*1024}"),
         S(f"s_add_u32 s{sOst}, s{sOst}, s{sT1}"), S(f"s_lshl_b32 s{sT1}, s{sT1}, 1"),
         S(f"s_sub_u32 s{sKX}, s{sT0}, s{sT1}"),
         S(f"s_add_u32 s{sT1}, s{sT1}, {xbuf(0)}")]
    return C + add_addr(aT, f"s{sT0}") + add_addr(aN, f"s{sT1}") + to_w(w, 0)

def gen_w3():
    w = Wave(3); nm = 24
    st = lambda k, real=False: stamp(w.tmp + 1, k, real)
    aN = [w.aN, w.aN + 1]; aT = [w.aT + i for i in range(4)]
    C = [label("L_w3"), raw("s_waitcnt lgkmcnt(0)")]
    if Cfg.codetouch:
        t = w.tmp + 1
        C += [raw(f"s_getpc_b64 s[{sRet}:{sRet+1}]"), label("L_pc0"),
              S(f"s_sub_u32 s{sRet}, s{sRet}, L_pc0-KSTART"), S(f"s_subb_u32 s{sRet+1}, s{sRet+1}, 0"),
              S(f"s_lshr_b32 s{sT0}, s2, 3"), S(f"s_lshl_b32 s{sT0}, s{sT0}, 2"), S(f"s_add_u32 s{sT0}, s{sT0}, s{sWave}"), S(f"s_lshl_b32 s{sT0}, s{sT0}, 7"),
              V(f"v_and_b32 v{t}, 7, v0"), V(f"v_lshlrev_b32 v{t}, 14, v{t}"), V(f"v_add_u32 v{t}, s{sT0}, v{t}"),
              V(f"v_min_u32 v{t}, KEND-KSTART-4, v{t}"),
              I(f"global_load_dword v{w.dummy}, v{t}, s[{sRet}:{sRet+1}]", 'vload', wr=regs(w.dummy), rd=regs(t) | regs(sRet, 2, 's'))]
    if Cfg.warm0:
        t = w.tmp + 1
        C += srd(sW, 62, 5242880) + srd(sX, 56, 6553600)
        C += [V(f"v_and_b32 v{t}, 63, v0"), V(f"v_lshlrev_b32 v{t}, 7, v{t}"),
              S(f"s_mul_i32 s{sT0}, s{sB}, 204800"), S(f"s_mul_i32 s{sT1}, s{sG}, 25600"), S(f"s_add_u32 s{sT0}, s{sT0}, s{sT1}"),
              S(f"s_mul_i32 s{sT1}, s{sWave}, 5760"), S(f"s_add_u32 s{sT0}, s{sT0}, s{sT1}"),
              V(f"v_bfe_u32 v{t+1}, v0, 3, 3"), V(f"v_min_u32 v{t+1}, 4, v{t+1}"), V(f"v_lshlrev_b32 v{t+1}, 13, v{t+1}"),
              V(f"v_and_b32 v{w.T}, 7, v0"), V(f"v_lshl_add_u32 v{t+1}, v{w.T}, 7, v{t+1}"),
              S(f"s_lshl_b32 s{sT1}, s{sB}, 2"), S(f"s_add_u32 s{sT1}, s{sT1}, s{sWave}"), S(f"s_mul_i32 s{sT1}, s{sT1}, {5*8192}"),
              S(f"s_lshl_b32 s{sT2}, s{sG}, 10"), S(f"s_add_u32 s{sT1}, s{sT1}, s{sT2}"),
              barrier()] + ([bload(1, w.dummy, t + 1, sW, f"s{sT1}")] if Cfg.warm0 == 1 else []) + [bload(1, w.dummy, t, sX, f"s{sT0}")]
    C += common_scalars()
    t = w.tmp + 1
    C += [S(f"s_cmp_lg_u32 s{sWave}, 0"), branch("s_cbranch_scc1", "L_noxcc"), raw(f"s_getreg_b32 s{sT0}, hwreg(HW_REG_XCC_ID, 0, 3)"),
          S(f"s_lshl_b32 s{sT0}, 0x1000000, s{sT0}"), S(f"s_lshl_b32 s{sT1}, 0x10000, s{sG}"), S(f"s_or_b32 s{sT0}, s{sT0}, s{sT1}"), S(f"s_lshl_b32 s{sT1}, s{sB}, 3"),
          V(f"v_mov_b32 v{t}, s{sT0}"), V(f"v_mov_b32 v{t+1}, s{sT1}"), S("s_mov_b64 exec, 1"),
          I(f"buffer_atomic_or v{t}, v{t+1}, s[{sDBG}:{sDBG+3}], 0 offen sc1", 'vstore', rd=regs(t, 2) | regs(sDBG, 4, 's')),
          S("s_mov_b64 exec, 0xff"), V(f"v_mul_u32_u24 v{t}, {SLAB}, v0"), V(f"v_mov_b32 v{t+1}, 0"), S(f"s_mul_i32 s{sT0}, s2, {XCH_WG}"), S(f"s_add_u32 s{sT0}, s{sT0}, {XCH_OFF + SLAB - 128}"),
          bstore(1, t + 1, t, sWS, f"s{sT0}", 0, 'sc1'),
          S("s_mov_b64 exec, -1"), label("L_noxcc")]
    C += lane_setup(w) + wave_addr0(w, 3, 0)
    C, _ = finish(C)
    out = C
    def wadv():
        return [S(f"s_bfe_i32 s{sD}, s{sC16}, s{sCnt}"), S(f"s_lshl_b32 s{sD}, s{sD}, 14"), S(f"s_add_u32 s{sCnt}, s{sCnt}, 4"),
                S(f"s_cmp_eq_u32 s{sCnt}, {0x40000 + 4*NW:#x}"), S(f"s_cselect_b32 s{sCnt}, 0x40000, s{sCnt}")] + add_addr(aT[:2], f"s{sD}")
    def xadv():
        return [S(f"s_add_u32 s{sCnt2}, s{sCnt2}, 1"), S(f"s_cmp_eq_u32 s{sCnt2}, {NX}"), S(f"s_cselect_b32 s{sXd}, {(-(NX-1)*20480) & 0xffffffff:#x}, s{sCX}"),
                S(f"s_cselect_b32 s{sCnt2}, 0, s{sCnt2}")] + add_addr(aN, f"s{sXd}")
    def qstage(s, zero=False, extra=()):
        p = s & 1
        adv_ = wadv() + (xadv() if p == 1 else []) + list(extra)
        L = [barrier()] + spread(q_mfmas(w, 1 - p, zero), [(q_reads(w, p, p), 0, Cfg.qr3), (one(adv_), Cfg.qr3 + 1, 23)]) + [wait(lgkm=0)]
        k = [i for i, c in enumerate(L) if c.kind == 'mfma'][Cfg.qcut]
        return L[:k], L[k:]
    C = [label("L_w3_round")] + st(0) + [barrier()] + st(1)
    C += flat(q_reads(w, 0, 0))
    C += add_addr(aT[:2], wslot(1) - wslot(0))
    C += [S(f"s_mov_b32 s{sCnt}, 0x40004"), S(f"s_mov_b32 s{sCnt2}, {(xbuf(0)-NW*SLOT)//20480}"), S(f"s_mov_b32 s{sLoop}, 8")]
    C += [wait(lgkm=0)]
    h1, t1 = qstage(1, zero=True); he, te = qstage(2); ho, to = qstage(3)
    C += h1 + t1 + [wait(vm=0)] + he
    C, q = finish(C); out += C
    B = [label("L_w3_q")] + te + ho + to + he
    B += [S(f"s_sub_u32 s{sLoop}, s{sLoop}, 1"), S(f"s_cmp_lg_u32 s{sLoop}, 0"), branch("s_cbranch_scc1", "L_w3_q")]
    Bc, q2 = loop_finish(B, q, out)
    out += Bc
    curT = wslot(20); curN = xbuf(10)
    h19, t19 = qstage(19, extra=add_addr(aN, f"s{sKX}") + add_addr(aN, item_slot(kidx(0)) - curN) + to_v(w))
    mr = mode_read(w.T)
    C = mr[0] + te + mr[1] + h19 + t19
    C += st(40) + [barrier()] + st(41)
    k0 = frags_QK(w, 'zero')
    k1 = frags_QK(w, 'negm', pre=add_addr(aN, item_slot(kidx(1)) - item_slot(kidx(0))))
    w.fpos = 0
    C += stream(w, k0, 0, k1, lead=q_mfmas(w, 1, False), fillers=q_pack_fillers(w))
    C += first_max(w)
    C += st(42) + [barrier()] + st(43)
    C += flat(softmax_groups(w, 0)) + l_accum(w, first=True)
    v0 = frags_PV(w, 0, zero=True)
    if Cfg.warm:
        t = w.tmp + 1
        C += [S(f"s_cmp_lg_u32 s{sRound}, 0"), branch("s_cbranch_scc1", "L_nowarm")] + lane_id(t) + [V(f"v_min_u32 v{t}, 39, v{t}"), V(f"v_lshlrev_b32 v{t}, 7, v{t}"),
              S(f"s_lshl_b32 s{sT0}, s2, 2"), S(f"s_add_u32 s{sT0}, s{sT0}, s{sWave}"), S(f"s_mul_i32 s{sT0}, s{sT0}, 5120"),
              bload(1, w.dummy, t, sWO, f"s{sT0}")]
        C += [branch("s_branch", "L_warm_done"), label("L_nowarm")]
        if Cfg.codetouch2:
            C += [raw(f"s_getpc_b64 s[{sRet}:{sRet+1}]"), label("L_pc1"),
                  S(f"s_add_u32 s{sRet}, s{sRet}, L_o-L_pc1"), S(f"s_addc_u32 s{sRet+1}, s{sRet+1}, 0")] + lane_id(t) + [
                  S(f"s_lshl_b32 s{sT0}, s{sWave}, 13"), V(f"v_lshlrev_b32 v{t}, 7, v{t}"), V(f"v_add_u32 v{t}, s{sT0}, v{t}"), V(f"v_min_u32 v{t}, KEND-L_o-4, v{t}"),
                  I(f"global_load_dword v{w.dummy}, v{t}, s[{sRet}:{sRet+1}]", 'vload', wr=regs(w.dummy), rd=regs(t) | regs(sRet, 2, 's'))]
        C += [label("L_warm_done")]
    C += [S(f"s_mov_b32 s{sKpos}, {item_slot(kidx(1))}"), S(f"s_mov_b32 s{sVpos}, {item_slot(vidx(0))}"), S(f"s_mov_b32 s{sLoop}, 7")]
    def adv(pos, rr):
        return [S(f"s_cmp_ge_u32 s{pos}, {LDS_BYTES - 2*SLOT}"), S(f"s_cselect_b32 s{sD}, {(2*SLOT - LDS_BYTES) & 0xffffffff:#x}, s{sC32}"),
                S(f"s_add_u32 s{pos}, s{pos}, s{sD}")] + add_addr(rr, f"s{sD}")
    def pv(par): return frags_PV(w, par, pre=adv(sVpos, aT))
    def qk(): return frags_QK(w, 'negm', pre=adv(sKpos, aN))
    E_ = 8 - Cfg.late
    def sm_part(late, par, extra=()):
        G = softmax_groups(w, par) + [check_cmp(w)]
        nl = 3 * len(late)
        cut = int(len(G) * Cfg.smpure) if Cfg.late < 8 else 0
        return flat(G[:cut]) + stream(w, late, Cfg.LA, qk(), fillers=[(G[cut:], 0, max(nl - Cfg.smend, 1))] + list(extra)) + check_branch(w, par)
    C += stream(w, k1 + v0[:E_], Cfg.LA, v0[E_:] + qk())
    C += st(44) + [barrier()] + st(45)
    C += sm_part(v0[E_:], 1)
    C, q = finish(C, q2, pre=out[-12:]); out += C
    B = [label("L_w3_a")]
    for par in (1, 0):
        B += stream(w, qk() + pv(par)[:E_], Cfg.LA, pv(par)[E_:] + qk(), fillers=[(one(l_accum(w)), 4, 10)])
        B += [barrier()]
        B += sm_part(pv(par)[E_:], 1 - par)
    B += [S(f"s_sub_u32 s{sLoop}, s{sLoop}, 1"), S(f"s_cmp_lg_u32 s{sLoop}, 0"), branch("s_cbranch_scc1", "L_w3_a")]
    Bc, q2 = loop_finish(B, q, out)
    out += Bc
    C = st(74) + l_accum(w) + mode_vcc()
    C += stream(w, pv(1), 0, [], fillers=epi_fillers(w))
    C += st(75) + st(77, True)
    curT = item_slot(vidx(15)); curN = item_slot(kidx(16))
    C += to_w(w, curT) + add_addr(aN, xbuf(0) - curN) + [V(f"v_subrev_u32 v{r}, s{sKX}, v{r}") for r in aN]
    C += round_advance()
    C += [branch("s_cbranch_scc1", "L_w3_round"), branch("s_branch", "L_o")]
    C, q = finish(C, q2, pre=out[-12:]); out += C
    assert not q
    return out, rare_routine(w, 0) + rare_routine(w, 1)

def gen_w2():
    w = Wave(2); nm = 16
    st = lambda k, real=False: stamp(w.tmp + 1, k, real)
    aN = [w.aN, w.aN + 1]; aT = [w.aT + i for i in range(4)]
    POL[0] = Cfg.wx_pol
    sch = loader_schedule(w)
    items = lambda idx: sch[idx]
    vo1, vo2 = voff_setup(w)
    en = lambda r: [raw(f"s_memtime s[{r}:{r+1}]")] if Cfg.ent else []
    pro = vo1 + [raw("s_waitcnt lgkmcnt(0)")] + en(94) + srd(sW, 62, 5242880) + srd(sX, 56, 6553600)
    POL[0] = Cfg.pro_pol
    pro += flat(dma_w(w, 0, False, ('W', 0, True))) + flat(dma_x(w, 0, ('X', 0, True))) + flat(dma_w(w, 1, False, ('W', 1, True))) + ([barrier()] if Cfg.warm0 else [])
    pro += en(96)
    pro += vo2 + [V(f"v_mov_b32 v{w.oVoff}, 0"), V(f"v_mov_b32 v{w.oPoll}, 0")] + common_scalars() + lane_setup(w) + wave_addr0(w, 2, 6)
    if Cfg.ent:
        pro += en(98) + [raw("s_waitcnt lgkmcnt(0)"), V(f"v_mov_b32 v{w.tmp+2}, 0")]
        for i, r in enumerate((92, 94, 96, 98, 100)): pro += [V(f"v_mov_b32 v{w.tmp+1}, s{r}"), bstore(1, w.tmp + 1, w.tmp + 2, sWS, f"s{sStamp+2}", 4 * (120 + i), tag=('misc',))]
    C = [label("L_w2_round")] + st(76, True)
    def bar(idx, lgkm=None):
        b = wait(vm=63, lgkm=lgkm); b.tag = (('need', idx), lgkm)
        return st(2 * idx) + [b, barrier()] + st(2 * idx + 1)
    prio = lambda p: [raw(f"s_setprio {p}")] if Cfg.prio == 2 else []
    curT = wslot(0); curN = xbuf(0)
    C += prio(Cfg.qprio)
    for s in range(20):
        if s < 19:
            newT = wslot(s + 1); newN = xbuf((s + 1) >> 1)
            adv_ = add_addr(aT[:2], newT - curT) + add_addr(aN, newN - curN); curT, curN = newT, newN
        else:
            adv_ = add_addr(aN, f"s{sKX}") + add_addr(aN, item_slot(kidx(0)) - curN) + to_v(w)
        C += bar(s, lgkm=0)
        ex = []
        if s == 3:
            ex = [([[S(f"s_lshl_b32 s{sT1}, s{sRound}, 3"), S(f"s_add_u32 s{sT1}, s{sT1}, s{sWave}"), S(f"s_cmp_lg_u32 s{sT1}, 12"),
                     branch("s_cbranch_scc1", "L_nofl1"), S(f"s_and_b32 s{sT1}, s{sG}, 3"), S(f"s_lshl_b32 s{sT1}, 1, s{sT1}")] + flag_add(w.tmp + 1, f"s{sT1}", "L_nofl1")], 11, 12)]
        if s == 0: C += flat(q_reads(w, 0, 0)) + flat(items(0)) + adv_
        else: C += spread(q_mfmas(w, (s - 1) & 1, s == 1), [(q_reads(w, s & 1, s & 1), 0, Cfg.qr2), (items(s), Cfg.qd0, nm - 2), (one(adv_), Cfg.qr2 + 1, 16)] + ex)
    C += bar(20, lgkm=0)
    def qk(t, fc='negm'): return frags_QK(w, fc, pre=add_addr(aN, item_slot(kidx(t)) - item_slot(kidx(t - 1))) if t else [])
    def pv(t): return frags_PV(w, t & 1, zero=(t == 0), pre=add_addr(aT, item_slot(vidx(t)) - item_slot(vidx(t - 1))) if t else [])
    w.fpos = 0
    C += stream(w, qk(0, 'zero'), 0, qk(1), lead=q_mfmas(w, 1, False), fillers=[(items(20), 0, 2 * nm)] + q_pack_fillers(w))
    C += first_max(w)
    C += flat(softmax_groups(w, 0))
    for t in range(15):
        nx = qk(t + 2) if t < 14 else []
        if Cfg.pp:
            C += prio(Cfg.pp_a)
            C += bar(21 + t)
            C += stream(w, qk(t + 1) + pv(t), Cfg.LA, nx, fillers=[(one(l_accum(w, first=(t == 0))), 3, 8)])
            C += prio(Cfg.pp_b)
            G = softmax_groups(w, (t + 1) & 1) + [check_cmp(w)]
            sm = [g for g in G]
            it_ = items(21 + t)
            base = [I("; g", 'comment') for _ in sm]
            merged = spread(base, [(it_, 0, len(sm))])
            k = 0
            for c in merged:
                if c.kind == 'comment' and c.text == "; g": C += sm[k]; k += 1
                else: C.append(c)
            C += check_branch(w, (t + 1) & 1)
        else:
            C += prio(0)
            C += bar(21 + t)
            it_ = items(21 + t); h = (len(it_) * Cfg.dsplit + 99) // 100
            C += stream(w, qk(t + 1), Cfg.LA, pv(t), fillers=[(it_[:h], 0, nm), (one(l_accum(w, first=(t == 0))), 3, 8)])
            C += prio(1)
            C += stream(w, pv(t), Cfg.LA, nx, fillers=[(it_[h:], 1, nm + 1)] + sm_fillers(w, (t + 1) & 1, 2))
            C += check_branch(w, (t + 1) & 1)
    C += prio(0)
    C += bar(36)
    C += flat(items(36))
    C += st(74) + l_accum(w) + mode_vcc()
    C += stream(w, pv(15), 0, [], fillers=epi_fillers(w))
    C += st(75) + st(77, True)
    curT = item_slot(vidx(15)); curN = item_slot(kidx(15))
    C += to_w(w, curT) + add_addr(aN, xbuf(0) - curN) + [V(f"v_subrev_u32 v{r}, s{sKX}, v{r}") for r in aN]
    C += round_advance()
    C += [branch("s_cbranch_scc1", "L_w2_round"), branch("s_branch", "L_o")]
    VM = ('dma', 'vload', 'vstore')
    def resolve(prefix, first):
        res = {}
        q = [(c.tag[0], c.tag[1]) if len(c.tag) == 3 and c.tag[2] in (True, 'next') else None for c in prefix if c.kind in VM and c.tag != ('cond',)]
        for c in C:
            if c.kind in VM:
                if c.tag == ('cond',): continue
                if c.tag[-1] in ('cond', 'next') and not first: continue
                q.append((c.tag[0], c.tag[1]) if len(c.tag) == 3 and c.tag[2] in (False, 'cond') else None)
            elif c.kind == 'comment' and c.tag and c.tag[0] == 'phantom':
                if not first: q += [None] * c.tag[1]
            elif c.kind == 'wait' and isinstance(c.tag[0], tuple):
                idx = c.tag[0][1]
                last = -1
                for k, it in enumerate(q):
                    if it is not None and first_use(it[0], it[1]) <= idx: last = k
                res[idx] = min(63, len(q) - 1 - last)
        return res
    r1 = resolve(pro, True); r2 = resolve(C, False)
    C2 = []
    for c in C:
        if c.kind == 'wait' and isinstance(c.tag[0], tuple):
            idx = c.tag[0][1]; n = min(r1[idx], r2[idx]); lg = c.tag[1]
            if abs(r1[idx] - r2[idx]) > 1:
                C2 += [S(f"s_cmp_eq_u32 s{sRound}, {0 if r1[idx] > r2[idx] else 1}"), branch("s_cbranch_scc1", f"L_rw{idx}"), wait(vm=n), label(f"L_rw{idx}")]
                n = max(r1[idx], r2[idx])
            c.text = f"s_waitcnt vmcnt({n})" + (f" lgkmcnt({lg})" if lg is not None else ""); c.tag = (n, lg)
        C2.append(c)
    C = C2
    pro, _ = finish(pro)
    C, q = finish(C, [], pre=pro[-12:])
    assert not q
    return pro + C + gen_opre(w), rare_routine(w, 0) + rare_routine(w, 1)

OSLOT = 40960
def oslot(u): return ((u + 2) & 3) * OSLOT
def o_voff(nh, VOFF, lane, a, b):
    if nh == 0: return [V(f"v_lshlrev_b32 v{VOFF}, 4, v{lane}")]
    return [V(f"v_lshrrev_b32 v{a}, 2, v{lane}"), V(f"v_mul_u32_u24 v{a}, 1280, v{a}"), V(f"v_bfe_u32 v{b}, v{lane}, 4, 1"), V(f"v_lshlrev_b32 v{b}, 1, v{b}"),
            V(f"v_and_b32 v{VOFF}, 3, v{lane}"), V(f"v_xor_b32 v{VOFF}, v{VOFF}, v{b}"), V(f"v_lshl_add_u32 v{VOFF}, v{VOFF}, 4, v{a}")]
def o_base(nh, sBase, sLd):
    C = [S(f"s_and_b32 s{sLd}, s{sWave}, 1"), S(f"s_mul_i32 s{sLd}, s{sLd}, 5120")]
    if nh == 0: C += [S(f"s_mul_i32 s{sBase}, s{sB}, {128*10240}"), S(f"s_add_u32 s{sBase}, s{sBase}, s{sLd}")]
    else: C += [S(f"s_lshl_b32 s{sBase}, s{sLd}, 2"), S(f"s_and_b32 s{sT2}, s{sG}, 3"), S(f"s_mul_i32 s{sT2}, s{sT2}, 320"), S(f"s_add_u32 s{sBase}, s{sBase}, s{sT2}"),
                S(f"s_add_u32 s{sLd}, s{sLd}, 10240")]
    step = 10240 if nh == 0 else 40960
    C += [S(f"s_add_u32 s{sT3}, s{sG}, s{sB}")] if Cfg.orot else [S(f"s_mov_b32 s{sT3}, 0")]
    for u in range(4):
        C += [S(f"s_add_u32 s{sT2}, s{sT3}, {u}"), S(f"s_and_b32 s{sT2}, s{sT2}, 3"), S(f"s_mul_i32 s{sOoff+u}, s{sT2}, {step}")]
    return C
def o_dma(nh, u, VOFF, sSo, sLd, goff=0, loff=0, srd_=None):
    step = 10240 if nh == 0 else 40960
    G = []
    if Cfg.o_skip & (1 << nh): return G
    for i in range(5):
        if nh == 0:
            imm = (i & 3) * 1024; ex = (i >> 2) * 4096
            g = [S(f"s_add_u32 m0, s{sLd}, {oslot(u) + ex + loff}"), S(f"s_add_u32 s{sT0}, s{sSo}, s{sOoff+u}")] + ([S(f"s_add_u32 s{sT0}, s{sT0}, {ex + goff}")] if ex + goff else []) if imm == 0 else []
            G.append(g + [dma(VOFF, srd_ or sWS, f"s{sT0}", imm, Cfg.old_pol)])
        else:
            g = [S(f"s_add_u32 m0, s{sLd}, {oslot(u) + i*1024 - i*64 + loff}")]
            if i == 0: g += [S(f"s_add_u32 s{sT0}, s{sSo}, s{sOoff+u}")] + ([S(f"s_add_u32 s{sT0}, s{sT0}, {goff}")] if goff else [])
            G.append(g + [dma(VOFF, srd_ or sWO, f"s{sT0}", i * 64)])
    return G
def gate(lab, POLL, vfl, shift):
    return [V(f"v_readfirstlane_b32 s{sT2}, v{POLL}"), S(f"s_bfe_u32 s{sT2}, s{sT2}, {0x40000 + shift:#x}"), S(f"s_cmp_lg_u32 s{sT2}, 15"),
            branch("s_cbranch_scc1", lab)]
def spin(lab, POLL, vfl, shift, back):
    return [label(lab), bload(1, POLL, vfl, sDBG, 0, 0, 'sc1'), S(f"s_sub_u32 s{sCnt}, s{sCnt}, 1"), S(f"s_cmp_lt_i32 s{sCnt}, 0"), branch("s_cbranch_scc1", back),
            wait(vm=0), V(f"v_readfirstlane_b32 s{sT2}, v{POLL}"), S(f"s_bfe_u32 s{sT2}, s{sT2}, {0x40000 + shift:#x}"), S(f"s_cmp_eq_u32 s{sT2}, 15"),
            branch("s_cbranch_scc1", back), raw(f"s_sleep {Cfg.xsleep}"), branch("s_branch", lab)]

def gen_opre(w):
    sSo, sLd = sTK, sTV
    C = []
    for u in range(2):
        C += [label(f"L_opre{u}"), S(f"s_bitcmp1_b32 s{sWave}, 1"), branch("s_cbranch_scc1", f"L_opre{u}_1")]
        for nh in range(2):
            step = 10240 if nh == 0 else 40960
            B = [label(f"L_opre{u}_{nh}")]
            if u == 0:
                t = w.tmp + 1
                B += lane_id(t) + o_voff(nh, w.oVoff, t, w.dummy, w.vTch) + o_base(nh, sSo, sLd)
                B += [S(f"s_and_b32 s{sT3}, s{sG}, 4"), S(f"s_mul_i32 s{sT3}, s{sT3}, {16*step}"), S(f"s_add_u32 s{sSo}, s{sSo}, s{sT3}")]
            for ks in range(2): B += flat(o_dma(nh, u, w.oVoff, sSo, sLd, goff=ks * 4 * step, loff=ks * 20480))
            B += [branch("s_branch", f"L_opre{u}_back")]
            C += fix_hazards(B)
    C += fix_hazards([label("L_g1"), S(f"s_mov_b32 s{sCnt}, 0x8000"), V(f"v_mov_b32 v{w.tmp+2}, s{sFlag}")] + spin("L_g1_spin", w.oPoll, w.tmp + 2, 0, "L_g1_back"))
    return C

def gen_o():
    ACC = 0; SET = [100, 140]
    aB, aA0, aA1 = 180, 182, 184
    VOFF, POLL, VFL, T, L16, POLL2 = 186, 187, 188, 190, 196, 198
    LW, LR, VO, VO2 = T + 2, T + 3, T + 4, 199
    RB = 200
    sSo, sHi, sLd, sBase, sKs, sNq = 36, 37, 39, 40, 43, 44
    sXo, sXp, sOb, sVar = 60, 61, 62, 63
    sOD = sK
    st = lambda k, real=False: stamp(T, k, real)
    def acc(t): return ACC + 4 * t
    def fB(s_, jj): return SET[s_] + 4 * jj
    def fA(s_, nn): return SET[s_] + 20 + 4 * nn
    TS = [list(range(0, 7)), list(range(7, 13)), list(range(13, 19)), list(range(19, 25))]
    C = [label("L_o")] + st(80)
    if Cfg.prio: C += [raw("s_setprio 0")]
    lane = T; a = T + 1; b = T + 5
    C += lane_id(lane) + [V(f"v_lshlrev_b32 v{L16}, 4, v{lane}")]
    C += [S(f"s_lshr_b32 s{sKs}, s{sWave}, 2"), S(f"s_mul_i32 s{sT0}, s{sKs}, 20480"), S(f"s_and_b32 s{sT1}, s{sWave}, 1"), S(f"s_mul_i32 s{sT1}, s{sT1}, 5120"),
          S(f"s_add_u32 s{sT1}, s{sT0}, s{sT1}"),
          V(f"v_add_u32 v{aB}, s{sT1}, v{L16}"), V(f"v_add_u32 v{aB+1}, {2*OSLOT}, v{aB}"),
          V(f"v_lshrrev_b32 v{a}, 2, v{lane}"), V(f"v_bfe_u32 v{b}, v{lane}, 4, 1"), V(f"v_lshlrev_b32 v{b}, 5, v{b}"), V(f"v_lshl_add_u32 v{b}, v{a}, 6, v{b}"),
          V(f"v_and_b32 v{a}, 3, v{lane}"), V(f"v_lshl_add_u32 v{b}, v{a}, 3, v{b}"),
          S(f"s_add_u32 s{sT1}, s{sT0}, 10240"), V(f"v_add_u32 v{aA0}, s{sT1}, v{b}"), V(f"v_xor_b32 v{aA1}, 32, v{aA0}"),
          V(f"v_add_u32 v{aA0+1}, {2*OSLOT}, v{aA0}"), V(f"v_add_u32 v{aA1+1}, {2*OSLOT}, v{aA1}"),
          S(f"s_mov_b32 s{sHi}, 0")]
    C += [S(f"s_bitcmp1_b32 s{sWave}, 1"), branch("s_cbranch_scc1", "L_o_1")]
    C = fix_hazards(C)
    def late_setup():
        return [V(f"v_mov_b32 v{VFL}, s{sFlag}"), V(f"v_xor_b32 v{VFL+1}, 4, v{VFL}"), V(f"v_mov_b32 v{POLL}, 0"), V(f"v_mov_b32 v{POLL2}, 0"),
         S(f"s_and_b32 s{sNq}, s{sG}, 3"), S(f"s_mov_b32 s{sCnt}, 0x8000"),
         S(f"s_mul_i32 s{sT0}, s{sWave}, 13312"), V(f"v_add_u32 v{LW}, s{sT0}, v{L16}"),
         S(f"s_xor_b32 s{sT1}, s{sWave}, 4"), S(f"s_mul_i32 s{sT0}, s{sT1}, 13312"), V(f"v_add_u32 v{LR}, s{sT0}, v{L16}"),
         S(f"s_lshl_b32 s{sT0}, s2, 3"), S(f"s_add_u32 s{sT0}, s{sT0}, s{sWave}"), S(f"s_mul_i32 s{sXo}, s{sT0}, {SLAB}"), S(f"s_add_u32 s{sXo}, s{sXo}, {XCH_OFF}"),
         S(f"s_xor_b32 s{sT0}, s{sT0}, 256"), S(f"s_mul_i32 s{sXp}, s{sT0}, {SLAB}"), S(f"s_add_u32 s{sXp}, s{sXp}, {XCH_OFF}"),
         V(f"v_bfe_u32 v{VO}, v{L16}, 4, 4"), V(f"v_mul_u32_u24 v{VO}, 1280, v{VO}"),
         V(f"v_bfe_u32 v{a}, v{L16}, 8, 1"), V(f"v_lshl_add_u32 v{VO2}, v{a}, 5, v{VO}"), V(f"v_lshrrev_b32 v{a}, 9, v{L16}"), V(f"v_lshl_add_u32 v{VO2}, v{a}, 4, v{VO2}"),
         V(f"v_lshrrev_b32 v{a}, 8, v{L16}"), V(f"v_lshl_add_u32 v{VO}, v{a}, 3, v{VO}"),
         S(f"s_mul_i32 s{sOb}, s{sB}, 204800"), S(f"s_and_b32 s{sT0}, s{sWave}, 1"), S(f"s_mul_i32 s{sT0}, s{sT0}, 102400"), S(f"s_add_u32 s{sOb}, s{sOb}, s{sT0}"),
         S(f"s_mul_i32 s{sT0}, s{sNq}, 320"), S(f"s_add_u32 s{sOb}, s{sOb}, s{sT0}"), S(f"s_bfe_u32 s{sT0}, s{sWave}, 0x10001"), S(f"s_mul_i32 s{sT0}, s{sT0}, 160"),
         S(f"s_add_u32 s{sOb}, s{sOb}, s{sT0}"),
         S(f"s_lshr_b32 s{sVar}, s{sG}, 2"), S(f"s_lshl_b32 s{sT1}, s{sKs}, 1"), S(f"s_add_u32 s{sVar}, s{sVar}, s{sT1}")] + mode_vcc()
    def poll_load(): return [bload(1, POLL, VFL, sDBG, 0, 0, 'sc1'), bload(1, POLL2, VFL + 1, sDBG, 0, 0, 'sc1')]
    for nh in range(2):
        step = 10240 if nh == 0 else 40960
        src = sWS if nh == 0 else sWO
        R_ = [label(f"L_o_{nh}")] + o_voff(nh, VOFF, lane, a, b) + o_base(nh, sBase, sLd) + [S(f"s_add_u32 s{sLd}, s{sLd}, s{sT0}")]
        R_ += [S(f"s_mov_b32 s{sOD+i}, s{src+i}") for i in range(3)]
        def head_setup():
            return [S(f"s_and_b32 s{sT2}, s{sHi}, 3"), S(f"s_and_b32 s{sT3}, s{sG}, 4"), S(f"s_add_u32 s{sT2}, s{sT2}, s{sT3}"),
                    S(f"s_lshl_b32 s{sT2}, s{sT2}, 2"), S(f"s_lshr_b32 s{sT3}, s{sHi}, 2"), S(f"s_lshl_b32 s{sT3}, s{sT3}, 1"), S(f"s_add_u32 s{sT2}, s{sT2}, s{sT3}"),
                    S(f"s_add_u32 s{sT2}, s{sT2}, s{sKs}"), S(f"s_mul_i32 s{sT2}, s{sT2}, {4*step}"), S(f"s_add_u32 s{sSo}, s{sBase}, s{sT2}"),
                    S(f"s_add_u32 s{sHi}, s{sHi}, 1")]
        odma = lambda u: o_dma(nh, u, VOFF, sSo, sLd, srd_=sOD)
        def oreads(u):
            s_ = u & 1; hi = oslot(u) // (2 * OSLOT); off = oslot(u) % (2 * OSLOT)
            G = []
            for k in range(5):
                nb = 5 * nh + k
                ar = (aA1 if nb & 1 else aA0) + hi
                G.append([ds_read(2, fA(s_, k) + 2 * hh, ar, off + (hh * 5 + (nb >> 1)) * 1024, tr=True) for hh in range(2)])
                G.append([ds_read(4, fB(s_, k), aB + hi, off + k * 1024)])
            return G
        def omf(s_): return [mfma(acc(t), fA(s_, t % 5), fB(s_, t // 5), acc(t)) for t in range(25)]
        R_ += head_setup()
        R_ += [wait(vm=18), barrier()] + st(81) + st(82)
        R_ += flat(oreads(0))
        for r in range(50): R_.append(V(f"v_pk_mov_b32 v[{ACC+2*r}:{ACC+2*r+1}], 0, 0"))
        R_ += late_setup() + flat(odma(2))
        R_ += [wait(vm=13), branch("s_branch", f"L_o_in{nh}")]
        R_, q = finish(R_)
        it = lambda hi, wv, lab: [S(f"s_lshl_b32 s{sT2}, s{sHi}, 3"), S(f"s_add_u32 s{sT2}, s{sT2}, s{sWave}"), S(f"s_cmp_lg_u32 s{sT2}, {hi*8+wv}"), branch("s_cbranch_scc1", lab)]
        def ostage(u):
            L = [wait(vm=5, lgkm=0), barrier()]
            if u == 1: L = [wait(vm=5), label(f"L_o_in{nh}"), wait(lgkm=0), barrier()]
            fill = [(oreads(u), 0, Cfg.orh)]
            d = odma((u + 2) & 3)
            if u == 1:
                d = d + [head_setup() + [S(f"s_cmp_gt_u32 s{sHi}, 8"), S(f"s_cselect_b32 s{sOD+2}, 0, s{sOD+2}")]]
                if nh == 0: d = d + [it(5, 0, "L_g3_back") + gate("L_g2", POLL, VFL, 8) + [label("L_g2_back")] + gate("L_g3", POLL2, VFL + 1, 0) + [label("L_g3_back")]]
            if u == 3 and nh == 0: d = [it(4, 0, "L_p2") + poll_load() + [label("L_p2")]] + d
            if u == 2 and nh == 1:
                d = [it(2, 2, "L_nofl2") + [S(f"s_lshl_b32 s{sT2}, 0x100, s{sNq}")] + flag_add(T, f"s{sT2}", "L_nofl2")] + d
            if u == 0 and Cfg.tlbwarm:
                d = d + [[S(f"s_cmp_lg_u32 s{sHi}, {Cfg.tlbwarm}"), branch("s_cbranch_scc1", f"L_tw{nh}"), V(f"v_lshlrev_b32 v{T}, 3, v{L16}"), V(f"v_min_u32 v{T}, {SLAB-128}, v{T}"),
                          bload(1, RB, T, sWS, f"s{sXo}", 0, 'sc1'), label(f"L_tw{nh}")]]
            if u == 3: d = d + [[S(f"s_cmp_gt_u32 s{sHi}, 8")]]
            fill.append((d, Cfg.od0, Cfg.od1))
            return L + spread(omf(1 - (u & 1)), fill)
        B = [label(f"L_o_loop{nh}")] + ostage(1) + ostage(2) + ostage(3) + [branch("s_cbranch_scc1", "L_o_fin")] + ostage(0) + [branch("s_branch", f"L_o_loop{nh}")]
        Bc, q2 = loop_finish(B, [], R_)
        E = []
        if nh == 0: E += spin("L_g2", POLL, VFL, 8, "L_g2_back") + spin("L_g3", POLL2, VFL + 1, 0, "L_g3_back")
        C += R_ + Bc + fix_hazards(E)
    E = [label("L_o_fin")] + st(83) + [wait(vm=0, lgkm=0), barrier()]
    for v in range(1, 4): E += [S(f"s_cmp_eq_u32 s{sVar}, {v}"), branch("s_cbranch_scc1", f"L_o_epi{v}")]
    C += E
    for v in range(4):
        ks, kh = v >> 1, v & 1
        mine = TS[v]; xsend = TS[v ^ 1]; keep = sorted(mine + xsend); lsend = sorted(TS[v ^ 2] + TS[v ^ 3])
        ls = lambda i: [raw(f"s_memtime s[{64+2*i}:{65+2*i}]" if i < 4 else f"s_memtime s[{92+2*(i-4)}:{93+2*(i-4)}]"), wait(lgkm=0)] if Cfg.stamps == 6 else []
        E = [label(f"L_o_epi{v}")] + ls(0)
        order = lsend + xsend + mine
        mf = [mfma(acc(t), fA(1, t % 5), fB(1, t // 5), acc(t)) for t in order]
        wr = [[ds_write(4, LW, acc(t), i * 1024)] for i, t in enumerate(lsend)]
        E += spread(mf, [(wr, 4, 19)])
        E += [wait(lgkm=0)] + ls(1) + [barrier()] + ls(2)
        rorder = xsend + mine
        for i, t in enumerate(rorder): E.append(ds_read(4, RB + 4 * i, LR, keep.index(t) * 1024))
        PK = SET[0]
        for i, t in enumerate(rorder):
            for r in range(0, 4, 2): E.append(V(f"v_pk_add_f32 v[{acc(t)+r}:{acc(t)+r+1}], v[{acc(t)+r}:{acc(t)+r+1}], v[{RB+4*i+r}:{RB+4*i+r+1}]"))
            if t in xsend:
                k = xsend.index(t)
                E += [V(f"v_cvt_pk_bf16_f32 v{PK+2*k}, v{acc(t)}, v{acc(t)+1}"), V(f"v_cvt_pk_bf16_f32 v{PK+2*k+1}, v{acc(t)+2}, v{acc(t)+3}")]
                if k & 1 or k == len(xsend) - 1: E += dstore(4, PK + 4 * (k >> 1), L16, sWS, f"s{sXo}", (k >> 1) * 1024)
        E += st(84) + ls(3)
        n = len(mine); nl = (n + 1) // 2
        E += [V(f"v_mov_b32 v{POLL2}, 1"), V(f"v_mov_b32 v{VFL}, {SLAB-128}"), wait(vm=0), S("s_mov_b64 exec, 1")] + dstore(1, POLL2, VFL, sWS, f"s{sXo}", 0)
        if Cfg.poll_nt:
            SLOW.append([label(f"L_xp{v}"), bload(1, POLL, VFL, sWS, f"s{sXp}", 0, 'sc1'), branch("s_branch", f"L_xp{v}_b")])
            pl = [branch("s_cbranch_vccz", f"L_xp{v}"), bload(1, POLL, VFL, sWS, f"s{sXp}", 0, 'nt'), label(f"L_xp{v}_b")]
        else: pl = [bload(1, POLL, VFL, sWS, f"s{sXp}", 0, 'sc1')]
        E += [label(f"L_x{v}")] + pl + [
              S(f"s_sub_u32 s{sCnt}, s{sCnt}, 1"), S(f"s_cmp_lt_i32 s{sCnt}, 0"), branch("s_cbranch_scc1", f"L_x{v}_ok"), wait(vm=0),
              V(f"v_readfirstlane_b32 s{sT2}, v{POLL}"), S(f"s_cmp_eq_u32 s{sT2}, 1"), branch("s_cbranch_scc1", f"L_x{v}_ok"),
              raw(f"s_sleep {Cfg.xsleep2}"), branch("s_branch", f"L_x{v}"), label(f"L_x{v}_ok"), S("s_mov_b64 exec, -1")]
        ld = lambda pol: [bload(4, RB + 4 * k, L16, sWS, f"s{sXp}", k * 1024, pol) for k in range(nl)]
        SLOW.append([label(f"L_xl{v}")] + ld('sc1') + [branch("s_branch", f"L_xl{v}_b")])
        E += [branch("s_cbranch_vccz", f"L_xl{v}")] + ld('') + [label(f"L_xl{v}_b")]
        E += st(85) + ls(4)
        E += [wait(vm=0)] + ls(6)
        U = RB + 16
        k = 0
        while k < n:
            pair = Cfg.widest and k + 1 < n and mine[k] // 5 == mine[k + 1] // 5
            d = acc(mine[k])
            for h in range(2 if pair else 1):
                a_ = acc(mine[k + h]); r0 = RB + 2 * (k + h)
                E += [V(f"v_lshlrev_b32 v{U}, 16, v{r0}"), V(f"v_and_b32 v{U+1}, 0xffff0000, v{r0}"), V(f"v_lshlrev_b32 v{U+2}, 16, v{r0+1}"), V(f"v_and_b32 v{U+3}, 0xffff0000, v{r0+1}")]
                for r in range(0, 4, 2): E.append(V(f"v_pk_add_f32 v[{a_+r}:{a_+r+1}], v[{a_+r}:{a_+r+1}], v[{U+r}:{U+r+1}]"))
                E += [V(f"v_cvt_pk_bf16_f32 v{d+2*h}, v{a_}, v{a_+1}"), V(f"v_cvt_pk_bf16_f32 v{d+2*h+1}, v{a_+2}, v{a_+3}")]
            t = mine[k]
            E += [S(f"s_add_u32 s{sT0}, s{sOb}, {(t//5)*20480}")]
            if pair: E += [V(f"v_permlane16_swap_b32 v{d}, v{d+2}"), V(f"v_permlane16_swap_b32 v{d+1}, v{d+3}"), bstore(4, d, VO2, sOUT, f"s{sT0}", (t % 5) * 32, Cfg.out_pol)]
            else: E += [bstore(2, d, VO, sOUT, f"s{sT0}", (t % 5) * 32, Cfg.out_pol)]
            k += 2 if pair else 1
        E += st(86) + st(77, True)
        if Cfg.stamps == 6:
            E += [wait(vm=0)] + ls(5) + [V(f"v_mov_b32 v{T+1}, 0"), V(f"v_mov_b32 v{T}, s{sCnt}"), bstore(1, T, T + 1, sWS, f"s{sStamp+2}", 4 * 106)]
            for i, r in enumerate([64, 66, 68, 70, 92, 94]): E += [V(f"v_mov_b32 v{T}, s{r}"), bstore(1, T, T + 1, sWS, f"s{sStamp+2}", 4 * (100 + i))]
            E += [V(f"v_mov_b32 v{T}, s96"), bstore(1, T, T + 1, sWS, f"s{sStamp+2}", 4 * 107)]
        if Cfg.dbgst and ks == 1:
            E += [S(f"s_cmp_lg_u32 s{sWave}, 4"), branch("s_cbranch_scc1", f"L_dbgend{v}"), S(f"s_cmp_lg_u32 s2, {Cfg.dbgst}"), branch("s_cbranch_scc1", f"L_dbgend{v}"),
                  S("s_mov_b64 exec, 1"), V("v_mov_b32 v1, 0")]
            for i, r in enumerate(DREG):
                E += [S(f"s_sub_u32 s{r}, s{r}, s{sStamp+2}"), S(f"s_lshr_b32 s{r}, s{r}, 8"), S(f"s_and_b32 s{r}, s{r}, 0x3ff"), S(f"s_lshl_b32 s{r}, s{r}, {12 + 10*(i&1)}"), V(f"v_mov_b32 v{2+i}, s{r}"),
                      raw(f"buffer_atomic_or v{2+i}, v1, s[{sDBG}:{sDBG+3}], 0 offen offset:{8*(i>>1)+4} sc1")]
            E += [label(f"L_dbgend{v}")]
        E += [raw("s_endpgm")]
        E, _ = finish(E)
        C += E
    return C

def gen_kernel(name):
    C = [raw(f".globl {name}\n.p2align 8\n.type {name},@function\n{name}:\nKSTART:", 'label')]
    C += [S("s_cmp_lt_u32 s2, 256"), branch("s_cbranch_scc1", "L_go"), raw("s_endpgm"), label("L_go")]
    C += [raw("s_load_dwordx16 s[56:71], s[0:1], 0")]
    if Cfg.ent: C += [raw("s_memtime s[92:93]"), raw("s_memrealtime s[100:101]")]
    if Cfg.dbgst: C += [raw(f"s_memtime s[{sStamp+2}:{sStamp+3}]")] + [S(f"s_mov_b32 s{r}, 0") for r in DREG]
    if Cfg.delay:
        C += [S(f"s_bitcmp0_b32 s2, {Cfg.delay_bit}"), branch("s_cbranch_scc1", "L_nodelay"), S(f"s_mov_b32 s{sT0}, {Cfg.delay // 1024}"), label("L_delay"), raw("s_sleep 16"),
              S(f"s_sub_u32 s{sT0}, s{sT0}, 1"), S(f"s_cmp_lg_u32 s{sT0}, 0"), branch("s_cbranch_scc1", "L_delay"), label("L_nodelay")]
    C += [V("v_lshrrev_b32 v1, 6, v0"),
          S(f"s_and_b32 s{sB}, s2, 7"), S(f"s_lshl_b32 s{sB}, s{sB}, 2"), V(f"v_readfirstlane_b32 s{sWave}, v1"),
          S(f"s_lshr_b32 s{sT0}, s2, 6"), S(f"s_add_u32 s{sB}, s{sB}, s{sT0}"), S(f"s_bfe_u32 s{sG}, s2, 0x30003")]
    C += [S(f"s_bfe_u32 s{sT0}, s{sWave}, 0x10001"), S(f"s_lshl_b32 s{sT2}, s{sG}, 2"), S(f"s_add_u32 s{sT2}, s{sT2}, s{sT0}"), S(f"s_lshl_b32 s{sWbase}, s{sT2}, 8"),
          S(f"s_cmp_lt_u32 s{sWave}, 4"), branch("s_cbranch_scc1", "L_w3"),
          S(f"s_and_b32 s{sT1}, s{sWave}, 1"), S(f"s_lshl_b32 s{sT2}, s{sT1}, 10"),
          S(f"s_lshl_b32 s{sLdsKV}, s{sT0}, 13"), S(f"s_add_u32 s{sLdsKV}, s{sLdsKV}, s{sT2}"),
          S(f"s_mul_i32 s{sLdsX}, s{sT0}, 10240"), S(f"s_add_u32 s{sLdsX}, s{sLdsX}, s{sT2}"),
          S(f"s_mul_i32 s{sXbase}, s{sB}, 204800"), S(f"s_mul_i32 s{sT2}, s{sT0}, 102400"), S(f"s_add_u32 s{sXbase}, s{sXbase}, s{sT2}")]
    if Cfg.rot:
        C += [S(f"s_lshr_b32 s{sRho}, s2, 6"), S(f"s_mul_i32 s{sRho}, s{sRho}, 5"), S(f"s_add_u32 s{sRho}, s{sRho}, 1"), S(f"s_lshr_b32 s{sRho}, s{sRho}, 1"),
              S(f"s_add_u32 s{sRho}, s{sRho}, s{sG}"), S(f"s_and_b32 s{sT2}, s2, 7"), S(f"s_add_u32 s{sRho}, s{sRho}, s{sT2}")]
        for _ in range(2): C += [S(f"s_sub_u32 s{sT2}, s{sRho}, 10"), S(f"s_cmp_ge_u32 s{sRho}, 10"), S(f"s_cselect_b32 s{sRho}, s{sT2}, s{sRho}")]
        if Cfg.rotn == 8: C += [S(f"s_and_b32 s{sRho}, s2, 7")]
        if Cfg.rotn == 16:
            C += [S(f"s_and_b32 s{sRho}, s{sRho}, 1"), S(f"s_mul_i32 s{sRho}, s{sRho}, 5"), S(f"s_and_b32 s{sT2}, s2, 7"), S(f"s_add_u32 s{sRho}, s{sRho}, s{sT2}"),
                  S(f"s_sub_u32 s{sT2}, s{sRho}, 10"), S(f"s_cmp_ge_u32 s{sRho}, 10"), S(f"s_cselect_b32 s{sRho}, s{sT2}, s{sRho}")]
        if Cfg.rotn == 2: C += [S(f"s_and_b32 s{sRho}, s{sRho}, 1"), S(f"s_mul_i32 s{sRho}, s{sRho}, 5")]
        if Cfg.rotn == 4: C += [S(f"s_and_b32 s{sRho}, s{sRho}, 3"), S(f"s_mul_i32 s{sRho}, s{sRho}, 5"), S(f"s_lshr_b32 s{sRho}, s{sRho}, 1")]
    C = fix_hazards(C)
    w2, r2 = gen_w2(); w3, r3 = gen_w3()
    C += w2 + w3 + gen_o() + [label("KEND")] + r2 + r3 + flat(SLOW)
    for k, tag, par in CTX.stubs:
        C += [label(f"L_stub{k}"), raw(f"s_call_b64 s[{sRet}:{sRet+1}], L_rare_{tag}_{par}", 'branch'), branch("s_branch", f"L_back{k}")]
    return C

def kd(name, vgpr, accum, sgpr=102):
    return f""".section .rodata,"a"
.p2align 6
.amdhsa_kernel {name}
  .amdhsa_next_free_vgpr {vgpr}
  .amdhsa_next_free_sgpr {sgpr}
  .amdhsa_accum_offset {accum}
  .amdhsa_group_segment_fixed_size 0
  .amdhsa_kernarg_size 64
  .amdhsa_user_sgpr_count 2
  .amdhsa_user_sgpr_kernarg_segment_ptr 1
  .amdhsa_system_sgpr_workgroup_id_x 1
.end_amdhsa_kernel
"""

HDR = open('standalone__mha_block_cached__near_ridge.s.ref').read().split('; Override launch')[0]
def main(path):
    k1 = "standalone__mha_block_cached__near_ridge_kernel"
    s = HDR
    s += f"; @launch grid=(256,1,1) block=(512,1,1) lds={LDS_BYTES}\n"
    s += '.amdgcn_target "amdgcn-amd-amdhsa--gfx950"\n.text\n'
    s += emit(gen_kernel(k1))
    s += kd(k1, 256, 256)
    open(path, 'w').write(s)
if __name__ == '__main__':
    for a in sys.argv[2:]:
        k, v = a.split('=', 1); setattr(Cfg, k, eval(v))
    main(sys.argv[1] if len(sys.argv) > 1 else 'mha2.s')
```

```python
import sys, math, struct
from ir import *

SLOT = 16384
NSLOT = 10
NW, NX = 6, 3
WPERM = [4, 5, 1, 3, 0, 2]
def wslot(s): return WPERM[s % NW] * SLOT
def xbuf(u): return NW * SLOT + (u % NX) * 20480
WTAB = sum((((WPERM[(m + 1) % NW] - WPERM[m]) & 15) << (4 * m)) for m in range(NW))
LDS_BYTES = 163840
O_BYTES = 32 * 128 * 10 * 1024
XCH_OFF = O_BYTES
SLAB = 4096 + 128
XCH_WG = 8 * SLAB
MODE_LDS = LDS_BYTES - 4
WS_BYTES = XCH_OFF + 256 * XCH_WG
QSCALE = math.log2(math.e) / math.sqrt(128.0)
THR = 16384.0
def f2u(x): return "0x%08x" % struct.unpack('<I', struct.pack('<f', x))[0]

sK, sV, sW, sX, sWS, sWO, sOUT, sDBG = 8, 12, 16, 20, 24, 28, 76, 80
sWave, sRound, sB, sG = 32, 33, 34, 35
sKVbase, sWbase, sXbase, sLdsKV, sLdsX = 36, 37, 38, 39, 40
sT0, sT1 = 41, 42
sKpos, sVpos, sD, sCnt, sXd, sLoop = 43, 44, 45, 49, 50, 51
sRet = 46
sOst = 48
sKX, sFlag = 52, 53
sT2, sT3 = 54, 55
sQS, sC16, sC32, sCX = 72, 73, 74, 75
sTK, sTV, sCnt2 = 88, 89, 90
sTau = 64
sMode = 91
sRho, sT4 = 3, 87
sOoff = 56
sStamp = 84
DBG_OFF = 96 << 20

class Cfg:
    stamps = False
    dbgst = False
    dsl = None
    rot = True
    orot = True
    warm0 = False
    delay = 0
    delay_bit = 7
    LA = 7
    kv_pol = 'nt'
    touch_pol = ''
    touch_at = []
    warm = True
    xsleep = 8
    kv_same = False
    capfrom = 0
    cap0 = False
    place2 = {}
    cap = 0
    drain = {}
    wo2n = 39
    jit = 1
    wo2pol = ''
    place = {'wo': ('A0', 0), 'code': ('A0', 1)}
    oprio = [6, 12, 18]
    v_pol = None
    ent = False
    tlbwarm = 9
    tlbu = 1
    slabmall = True
    widest = True
    pro_pol = ''
    wx_pol = ''
    poll_nt = False
    taumul = 8
    taush = 2
    taumask = 15
    kvgrp = 1
    pace = 0.0
    lead = 2
    tbatch = []
    qr3 = 18
    qr2 = 15
    orh = 20
    od0 = 1
    od1 = 24
    ofirst = True
    qd0 = 0
    qprio = 1
    ofast_pol = ''
    fast0 = False
    out_pol = ''
    dsplit = 100
    rotn = 10
    late = 8
    smpure = 0.7
    pp = False
    pp_a = 1
    pp_b = 0
    ostamp = False
    xsleep2 = 2
    dual = True
    fast = True
    codetouch2 = True
    codetouch = True
    qcut = 4
    prio = 2
    no_sm = False
    no_dma = False
    no_exp = False
    no_chk = False
    no_ds = False
    no_adv = False
    ost_pol = 'sc1'
    old_pol = 'sc1'
    o_skip = 0
    o_vm1 = 10
    smend = 3

RT4 = {7: 90, 39: 91, 45: 92, 73: 93, 82: 94, 83: 95}
STAMP3 = (0, 1, 3, 5, 7, 39, 41, 43, 45, 73, 75, 76, 77, 80, 81, 82, 83, 84, 85, 86)
DSL = {(1, 0): 0, (41, 0): 1, (45, 0): 2, (73, 0): 3, (1, 1): 4, (41, 1): 5, (45, 1): 6, (73, 1): 7, (80, 2): 8, (82, 2): 9, (83, 2): 10, (84, 2): 11, (85, 2): 12, (86, 2): 13}
sDS = 4
DREG = [4, 5, 6, 7, 101, 92, 93, 94, 95, 96, 97, 98, 99, 100]
def stamp(t, k, real=False):
    if Cfg.dbgst:
        if real: return []
        dsl = DSL if not Cfg.dsl else {(2 * b + 1, Cfg.dsl[0]): i for i, b in enumerate(Cfg.dsl[1:])}
        hits = [(r, i) for (kk, r), i in dsl.items() if kk == k]
        if not hits: return []
        out = [raw(f"s_memtime s[{sStamp}:{sStamp+1}]"), wait(lgkm=0)]
        for r, i in hits:
            out += [S(f"s_cmp_eq_u32 s{sRound}, {r}"), S(f"s_cselect_b32 s{DREG[i]}, s{sStamp}, s{DREG[i]}")]
        return out
    if not Cfg.stamps: return []
    if Cfg.stamps == 6: return []
    if Cfg.stamps == 4 and not real and k in RT4:
        Cfg.stamps = 5; r = stamp(t, k) + stamp(t, RT4[k], True); Cfg.stamps = 4; return r
    if Cfg.stamps in (3, 4) and k not in STAMP3: return []
    return [raw(f"{'s_memrealtime' if real else 's_memtime'} s[{sStamp}:{sStamp+1}]"), wait(lgkm=0), V(f"v_mov_b32 v{t}, s{sStamp}"), V(f"v_mov_b32 v{t+1}, 0"),
            S(f"s_and_b32 s{sStamp+1}, s{sRound}, 1"), S(f"s_lshl_b32 s{sStamp+1}, s{sStamp+1}, 9"), S(f"s_add_u32 s{sStamp+1}, s{sStamp+1}, s{sStamp+2}"),
            bstore(1, t, t + 1, sWS, f"s{sStamp+1}", 4 * k, tag=('misc',))]

def item_slot(n): return (n % NSLOT) * SLOT
def kidx(t): return 0 if t == 0 else 2 * t - 1
def vidx(t): return 2 * t + 2

class Wave:
    def __init__(self, nq):
        self.nq = nq
        n = nq
        p = 0
        self.O = p; p += 32 * n
        self.Q = p; p += 16 * n
        self.NM = p; p += 4 * n
        self.S = p; p += 8 * n
        self.P = p; p += 8 * n
        self.L = p; p += n
        self.LT = p; p += n
        self.T = p; p += 4
        self.aN = p; p += 2
        self.aT = p; p += 4
        p = (p + 3) & ~3
        self.F = p; self.NF = 8; p += 32
        self.dummy = p; p += 1
        self.tmp = p; p += 3
        if nq == 2:
            self.vK = p; self.vV = p + 1; self.vW = p + 2; self.vX = p + 3; self.vTch = p + 4; self.oVoff = p + 5; self.oPoll = p + 6; p += 7
        assert p <= 256, p
        self.end = p
        setsz = 32 + 4 * n
        if nq == 3:
            self.set = [self.Q, self.S]
        else:
            q = (p + 3) & ~3
            self.set = [self.Q, q]
            assert q + setsz <= 256
        self.tag = f"w{nq}"
        self.fpos = 0
    def o(self, T, j): return self.O + (T * self.nq + j) * 4
    def q(self, s, j): return self.Q + (s * self.nq + j) * 4
    def nm(self, j): return self.NM + 4 * j
    def s(self, kb, j): return self.S + (kb * self.nq + j) * 4
    def p(self, par, j): return self.P + (par * self.nq + j) * 4
    def fa(self, st, T): return self.set[st] + 4 * T
    def fb(self, st, j): return self.set[st] + 32 + 4 * j

def spread(base, fillers):
    ins = [[] for _ in range(len(base) + 1)]
    for groups, lo, hi in fillers:
        n = len(groups)
        if n == 0: continue
        hi = min(hi, len(base)); lo = min(lo, hi)
        span = hi - lo
        for k, gI in enumerate(groups):
            pos = lo + (k * span) // n + 1 if span > 0 else lo
            ins[min(pos, len(base))].extend(gI)
    out = list(ins[0])
    for i, b in enumerate(base):
        out.append(b); out.extend(ins[i + 1])
    return out

def frag_K(w, s, kb, first_c):
    def reads(f): return [ds_read(4, f, w.aN + (s & 1), kb * 4096 + (s >> 1) * 2048)]
    def mf(f):
        out = []
        for j in range(w.nq):
            c = w.s(kb, j) if s > 0 else (None if first_c == 'zero' else w.nm(j))
            out.append(mfma(w.s(kb, j), f, w.q(s, j), c))
        return out
    return dict(reads=reads, mf=mf, pre=[])
def frags_QK(w, first_c='negm', pre=()):
    fr = [frag_K(w, s, kb, first_c) for s in range(4) for kb in range(2)]
    fr[0]['pre'] = list(pre)
    return fr
def frag_V(w, db, par, zero):
    def reads(f): return [ds_read(2, f + 2 * hh, w.aT + (db & 3), hh * 4096 + (db >> 2) * 2048, tr=True) for hh in range(2)]
    def mf(f): return [mfma(w.o(db, j), f, w.p(par, j), None if zero else w.o(db, j)) for j in range(w.nq)]
    return dict(reads=reads, mf=mf, pre=[])
def frags_PV(w, par, zero=False, pre=()):
    fr = [frag_V(w, db, par, zero) for db in range(8)]
    fr[0]['pre'] = list(pre)
    return fr

def stream(w, frags, preloaded, nxt, fillers=(), lead=()):
    LA = Cfg.LA
    allf = list(frags) + list(nxt[:LA])
    head = []
    def issue(i):
        f = allf[i]
        return ([] if Cfg.no_adv else list(f['pre'])) + ([] if Cfg.no_ds else f['reads'](w.F + 4 * ((w.fpos + i) % w.NF)))
    for i in range(preloaded, min(LA, len(allf))): head += issue(i)
    base = list(lead); extra = []
    for i, f in enumerate(frags):
        m = f['mf'](w.F + 4 * ((w.fpos + i) % w.NF))
        base += m
        post = []
        if i + LA < len(allf) and i + LA >= preloaded: post += issue(i + LA)
        if post: extra.append(([post], len(base) - 1, len(base)))
    body = spread(base, list(extra) + list(fillers))
    w.fpos = (w.fpos + len(frags)) % w.NF
    return head + body

def softmax_groups(w, par):
    G = []
    k = 0
    for kb in range(2):
        for j in range(w.nq):
            for h in range(2):
                t0 = w.T + 2 * (k & 1); t1 = t0 + 1; k += 1
                sr = w.s(kb, j) + 2 * h
                G.append([V(f"v_exp_f32 v{t0}, v{sr}")])
                G.append([V(f"v_exp_f32 v{t1}, v{sr+1}")])
                lt = w.LT + j
                if kb == 0 and h == 0:
                    G.append(('late', [V(f"v_add_f32 v{lt}, v{t0}, v{t1}"), V(f"v_cvt_pk_bf16_f32 v{w.p(par,j)+2*kb+h}, v{t0}, v{t1}")]))
                else:
                    G.append(('late', [V(f"v_add_f32 v{lt}, v{lt}, v{t0}"), V(f"v_cvt_pk_bf16_f32 v{w.p(par,j)+2*kb+h}, v{t0}, v{t1}"),
                                       V(f"v_add_f32 v{lt}, v{lt}, v{t1}")]))
    if Cfg.no_sm: return [[V(f"v_mov_b32 v{w.LT+j}, 1.0")] for j in range(w.nq)]
    if Cfg.no_exp:
        for gI in G:
            if not isinstance(gI, tuple): gI[0] = V(gI[0].text.replace('v_exp_f32', 'v_mov_b32'))
    out = []; pend = None
    for gI in G:
        if isinstance(gI, tuple):
            pend = gI[1]
        else:
            out.append(gI)
            if pend is not None:
                out.append(pend); pend = None
    if pend is not None: out.append(pend)
    return out

class Ctx:
    def __init__(self): self.stubs = []; self.n = 0
CTX = Ctx()

SLOW = []
def dstore(n, src, voff, srd_, soff, imm, tag=None, pol=''):
    if not Cfg.dual: return [bstore(n, src, voff, srd_, soff, imm, 'sc1', tag=tag)]
    k = len(SLOW)
    SLOW.append([label(f"L_slow{k}"), bstore(n, src, voff, srd_, soff, imm, 'sc1'), branch("s_branch", f"L_slowb{k}")])
    return [branch("s_cbranch_vccz", f"L_slow{k}"), bstore(n, src, voff, srd_, soff, imm, pol, tag=tag), label(f"L_slowb{k}")]
def mode_vcc(): return [S(f"s_and_b32 s{sT1}, s{sMode}, s{sMode if Cfg.fast0 else sRound}"), S("s_cselect_b64 vcc, -1, 0")]
def mode_read(t):
    return [[V(f"v_mov_b32 v{t}, {MODE_LDS}"), ds_read(1, t, t, 0)],
            [V(f"v_readfirstlane_b32 s{sT1}, v{t}"), S(f"s_cmp_eq_u32 s{sRound}, 0"), S(f"s_cselect_b32 s{sMode}, s{sT1}, s{sMode}")]]

def check_cmp(w):
    if Cfg.no_chk: return []
    out = []
    if w.nq == 3: out.append(V(f"v_max3_f32 v{w.tmp}, v{w.LT}, v{w.LT+1}, v{w.LT+2}"))
    else: out.append(V(f"v_max_f32 v{w.tmp}, v{w.LT}, v{w.LT+1}"))
    out.append(I(f"v_cmp_nge_f32 vcc, {f2u(THR)}, v{w.tmp}", 'valu', wr={('s', 'vcc')}, rd=regs(w.tmp)))
    return out
def check_branch(w, par):
    if Cfg.no_chk: return []
    k = CTX.n; CTX.n += 1
    CTX.stubs.append((k, w.tag, par))
    return [branch("s_cbranch_vccnz", f"L_stub{k}"), label(f"L_back{k}")]
def l_accum(w, first=False):
    if first: return [V(f"v_mov_b32 v{w.L+j}, v{w.LT+j}") for j in range(w.nq)]
    return [V(f"v_add_f32 v{w.L+j}, v{w.L+j}, v{w.LT+j}") for j in range(w.nq)]
def sm_fillers(w, par, lo):
    nm = 8 * w.nq
    return [(softmax_groups(w, par) + [check_cmp(w)], lo, nm - Cfg.smend)]

def xlane(op, r, t):
    return [V(f"v_mov_b32 v{t}, v{r}"), V(f"v_permlane32_swap_b32 v{r}, v{t}"), V(f"{op} v{r}, v{r}, v{t}"),
            V(f"v_mov_b32 v{t}, v{r}"), V(f"v_permlane16_swap_b32 v{r}, v{t}"), V(f"{op} v{r}, v{r}, v{t}")]

def tile_max(w, j, dst):
    a, b = w.s(0, j), w.s(1, j)
    return [V(f"v_max3_f32 v{dst}, v{a}, v{a+1}, v{a+2}"), V(f"v_max3_f32 v{dst}, v{dst}, v{a+3}, v{b}"),
            V(f"v_max3_f32 v{dst}, v{dst}, v{b+1}, v{b+2}"), V(f"v_max_f32 v{dst}, v{dst}, v{b+3}")]

def first_max(w):
    out = []
    for j in range(w.nq): out += tile_max(w, j, w.LT + j)
    seqs = [xlane("v_max_f32", w.LT + j, w.T + j) for j in range(w.nq)]
    for k in range(6):
        for sq in seqs: out.append(sq[k])
    for j in range(w.nq):
        for r in range(4): out.append(V(f"v_sub_f32 v{w.nm(j)+r}, 0, v{w.LT+j}"))
        for kb in range(2):
            for r in range(4): out.append(V(f"v_sub_f32 v{w.s(kb,j)+r}, v{w.s(kb,j)+r}, v{w.LT+j}"))
    return out

def rare_routine(w, par):
    out = [label(f"L_rare_{w.tag}_{par}"), nop(15)]
    for j in range(w.nq):
        d = w.LT + j; f = w.T + 1
        out += tile_max(w, j, d)
        out += xlane("v_max_f32", d, w.T)
        out.append(V(f"v_max_f32 v{d}, 0, v{d}"))
        out.append(V(f"v_sub_f32 v{f}, 0, v{d}"))
        out.append(V(f"v_exp_f32 v{f}, v{f}"))
        for r in range(4): out.append(V(f"v_sub_f32 v{w.nm(j)+r}, v{w.nm(j)+r}, v{d}"))
        for kb in range(2):
            for r in range(4): out.append(V(f"v_sub_f32 v{w.s(kb,j)+r}, v{w.s(kb,j)+r}, v{d}"))
        out.append(V(f"v_mul_f32 v{w.L+j}, v{w.L+j}, v{f}"))
        for T in range(8):
            for r in range(4): out.append(V(f"v_mul_f32 v{w.o(T,j)+r}, v{w.o(T,j)+r}, v{f}"))
    for gI in softmax_groups(w, par): out += gI
    out.append(nop(3))
    out.append(raw(f"s_setpc_b64 s[{sRet}:{sRet+1}]", 'branch'))
    return fix_hazards(out)

def q_reads(w, st, sl):
    G = []
    for j in range(w.nq): G.append([ds_read(4, w.fb(st, j), w.aN + sl, j * 2048)])
    for T in range(8):
        for hh in range(2):
            G.append([ds_read(2, w.fa(st, T) + 2 * hh, w.aT + ((T >> 1) & 1), hh * 4096 + (T >> 2) * 2048 + (T & 1) * 8, tr=True)])
    return G
def q_mfmas(w, st, zero):
    return [mfma(w.o(T, j), w.fa(st, T), w.fb(st, j), None if zero else w.o(T, j)) for T in range(8) for j in range(w.nq)]

def q_pack_groups(w, s):
    G = []
    for j in range(w.nq):
        for half in range(2):
            a = w.o(2 * s + half, j)
            for r in range(4): G.append([V(f"v_mul_f32 v{a+r}, s{sQS}, v{a+r}")])
            G.append([V(f"v_cvt_pk_bf16_f32 v{w.q(s,j)+2*half}, v{a}, v{a+1}")])
            G.append([V(f"v_cvt_pk_bf16_f32 v{w.q(s,j)+2*half+1}, v{a+2}, v{a+3}")])
    return G
def q_pack_fillers(w):
    n = w.nq
    rng = [(2 * n + 2, 5 * n), (5 * n, 8 * n), (8 * n, 11 * n), (11 * n, 14 * n - 1)]
    return [(q_pack_groups(w, s), rng[s][0], rng[s][1]) for s in range(4)]

def l_reduce(w):
    out = []
    seqs = [xlane("v_add_f32", w.L + j, w.T + j) for j in range(w.nq)]
    for k in range(6):
        for sq in seqs: out.append(sq[k])
    for j in range(w.nq): out.append(V(f"v_rcp_f32 v{w.L+j}, v{w.L+j}"))
    out += [V(f"v_mbcnt_lo_u32_b32 v{w.tmp}, -1, 0"), V(f"v_mbcnt_hi_u32_b32 v{w.tmp}, -1, v{w.tmp}"), V(f"v_lshlrev_b32 v{w.tmp}, 4, v{w.tmp}")]
    return out
def epi_groups(w, s):
    G = []
    for j in range(w.nq):
        d = w.q(s, j)
        for half in range(2):
            a = w.o(2 * s + half, j)
            for r in range(4): G.append([V(f"v_mul_f32 v{a+r}, v{a+r}, v{w.L+j}")])
            G.append([V(f"v_cvt_pk_bf16_f32 v{d+2*half}, v{a}, v{a+1}")])
            G.append([V(f"v_cvt_pk_bf16_f32 v{d+2*half+1}, v{a+2}, v{a+3}")])
        G.append([S(f"s_add_u32 s{sT1}, s{sOst}, {s*10240}")] + dstore(4, d, w.tmp, sWS, f"s{sT1}", j * 1024, tag=('O', 0, True), pol=Cfg.ofast_pol))
    return G
def epi_fillers(w):
    n = w.nq
    rng = [(2 * n + 2, 4 * n + 2), (4 * n + 2, 6 * n + 2), (6 * n + 2, 8 * n), (8 * n, 8 * n)]
    return [([[i] for i in l_reduce(w)], 0, 2 * n + 1)] + [(epi_groups(w, s), rng[s][0], rng[s][1]) for s in range(4)]

def flat(G): return [i for g in G for i in g]
def one(L): return [[i] for i in L]

CAPN = [0]
def dma_kv(w, kind, t, nxt_round, tag):
    srd_ = sK if kind == 'K' else sV
    voff = w.vK if kind == 'K' else w.vV
    n = kidx(t) if kind == 'K' else vidx(t)
    lds = item_slot(n)
    G = []
    for a in range(2):
        for seg in range(2):
            G.append([S(f"s_add_u32 m0, s{sLdsKV}, {lds + a*4096 + seg*2048 - seg*128}"),
                      S(f"s_add_u32 s{sT0}, s{sT4}, {a*4096}"),
                      dma(voff, srd_, f"s{sT0}", seg * 128, Cfg.kv_pol if (kind == 'K' or Cfg.v_pol is None) else Cfg.v_pol, tag=tag)])
    if Cfg.cap and n >= Cfg.capfrom:
        for g in G:
            if Cfg.cap0:
                CAPN[0] += 1
                g[0:0] = [S(f"s_cmp_lg_u32 s{sRound}, 0"), branch("s_cbranch_scc1", f"L_cap{CAPN[0]}"), wait(vm=Cfg.cap - 1), label(f"L_cap{CAPN[0]}")]
            else: g.insert(2, wait(vm=Cfg.cap - 1))
    G[0] = [S(f"s_add_u32 s{sT4}, s{sTau}, {t*8192}"), S(f"s_and_b32 s{sT4}, s{sT4}, 0x1ffff"), S(f"s_add_u32 s{sT4}, s{sT4}, s{sKVbase}")] + G[0]
    return G
POL = ['']
def rot_off(u, unit, base):
    if not Cfg.rot: return [S(f"s_add_u32 s{sT4}, s{base}, {u*unit}")]
    return [S(f"s_cmp_ge_u32 s{sRho}, {10-u}"), S(f"s_cselect_b32 s{sT4}, {u-10}, {u}"), S(f"s_add_u32 s{sT4}, s{sT4}, s{sRho}"),
            S(f"s_mul_i32 s{sT4}, s{sT4}, {unit}"), S(f"s_add_u32 s{sT4}, s{sT4}, s{base}")]
def dma_w(w, s, nxt_round, tag):
    lds = wslot(s)
    goff = (s & 1) * 32 * 8192 + (512 if nxt_round else 0)
    G = []
    for hh in range(2):
        for seg in range(2):
            G.append([S(f"s_add_u32 m0, s{sLdsKV}, {lds + hh*4096 + seg*2048 - seg*128}"),
                      S(f"s_add_u32 s{sT0}, s{sT4}, {goff + hh*32768}"),
                      dma(w.vW, sW, f"s{sT0}", seg * 128, POL[0], tag=tag)])
    G[0] = rot_off(s >> 1, 64 * 8192, sWbase) + G[0]
    return G
def dma_x(w, u, tag):
    G = []
    for i in range(5):
        G.append([S(f"s_add_u32 m0, s{sLdsX}, {xbuf(u) + i*2048}"),
                  S(f"s_add_u32 s{sT0}, s{sT4}, {i*20480}"),
                  dma(w.vX, sX, f"s{sT0}", 0, POL[0], tag=tag)])
    G[0] = rot_off(u, 128, sXbase) + G[0]
    return G
def touch_kv(w, kind):
    srd_, ptr = (sK, sTK) if kind == 'K' else (sV, sTV)
    return [[bload(1, w.dummy, w.vTch, srd_, f"s{ptr}", 0, Cfg.touch_pol, tag=('misc',)), S(f"s_add_u32 s{ptr}, s{ptr}, 4096")]]

NAMES = {}
for _t in range(16):
    NAMES[kidx(_t)] = ('K', _t); NAMES[vidx(_t)] = ('V', _t)
def first_use(kind, i):
    if kind == 'W': return i
    if kind == 'X': return 2 * i
    if kind == 'K': return 20 if i == 0 else 19 + i
    if kind == 'V': return 21 + i
    if kind == 'O': return 3
    if kind == 'P': return 35

def loader_schedule(w):
    sch = {i: [] for i in range(37)}
    r0 = lambda G, lab: [[S(f"s_cmp_lg_u32 s{sRound}, 0"), branch("s_cbranch_scc1", lab)] + flat(G) + [label(lab)]]
    sch[0] += r0(dma_w(w, 2, False, ('W', 2, 'cond')), "L_r0a") + dma_x(w, 1, ('X', 1, False)) + r0(dma_w(w, 3, False, ('W', 3, 'cond')), "L_r0b")
    sch[1] += dma_w(w, 4, False, ('W', 4, False)) + dma_x(w, 2, ('X', 2, False))
    sch[2] += dma_w(w, 5, False, ('W', 5, False))
    for s in range(NW, 20): sch[max(s - NW + 1, 3)] += dma_w(w, s, False, ('W', s, False))
    for u in range(NX, 10): sch[2 * (u - NX) + 2] += dma_x(w, u, ('X', u, False))
    if not Cfg.no_dma:
        first = {0: 17, 1: 15, 2: 18, 3: 16, 4: 19, 5: 20, 6: 20, 7: 20, 8: 18, 9: 19}
        for n in range(10): sch[first[n]] += dma_kv(w, *NAMES[n], False, NAMES[n] + (False,))
        for n in range(10, 33):
            if n not in NAMES: continue
            k, t = NAMES[n - 10]
            last = (20 + t) if k == 'K' else min(22 + t, 36)
            rem = [m for m in range(10, 33) if m in NAMES]
            paced = 21 + int(rem.index(n) * Cfg.pace)
            when = max(last + 1, min(paced, first_use(*NAMES[n]) - Cfg.lead))
            sch[when] += dma_kv(w, *NAMES[n], False, NAMES[n] + (False,))
    for idx, ss in ((33, (2, 3)), (34, (0, 1))):
        for s_ in ss: sch[idx] += r0(dma_w(w, s_, True, ('W', s_, 'next')), f"L_r0w{s_}")
    w4first = lambda lab: [S(f"s_lshl_b32 s{sT1}, s{sRound}, 3"), S(f"s_add_u32 s{sT1}, s{sT1}, s{sWave}"), S(f"s_cmp_lg_u32 s{sT1}, 4"), branch("s_cbranch_scc1", lab)]
    sch[7] = [w4first("L_p0") + [S(f"s_lshl_b32 s{sT1}, s{sB}, 3"), V(f"v_mov_b32 v{w.tmp+2}, s{sT1}"), bload(1, w.oPoll, w.tmp + 2, sDBG, 0, 0, 'sc1', tag=('cond',)), label("L_p0")]] + sch[7]
    sch[14] += [w4first("L_m0") + [V(f"v_readfirstlane_b32 s{sT1}, v{w.oPoll}"), S(f"s_bfe_u32 s{sT2}, s{sT1}, 0x80010"), S(f"s_lshr_b32 s{sT1}, s{sT1}, 24"),
                 S(f"s_bcnt1_i32_b32 s{sT1}, s{sT1}"), S(f"s_lshl_b32 s{sT1}, s{sT1}, 8"), S(f"s_or_b32 s{sT1}, s{sT1}, s{sT2}"), S(f"s_cmp_eq_u32 s{sT1}, 0x1ff"),
                 S(f"s_cselect_b32 s{sT1}, {3 if Cfg.fast else 0}, 0"), V(f"v_mov_b32 v{w.tmp+1}, s{sT1}"), V(f"v_mov_b32 v{w.tmp+2}, {MODE_LDS}"),
                 raw(f"ds_write_b32 v{w.tmp+2}, v{w.tmp+1}"), label("L_m0")]]
    for name, (idx, rnd) in Cfg.place2.items():
        t = w.tmp + 1
        if name == 'wo':
            body = lane_id(t) + [V(f"v_min_u32 v{t}, 39, v{t}"), V(f"v_lshlrev_b32 v{t}, 7, v{t}"), S(f"s_lshl_b32 s{sT1}, s2, 2"), S(f"s_add_u32 s{sT1}, s{sT1}, s{sWave}"),
                    S(f"s_sub_u32 s{sT1}, s{sT1}, 4"), S(f"s_mul_i32 s{sT1}, s{sT1}, 5120"), bload(1, w.dummy, t, sWO, f"s{sT1}", tag=('cond',))]
        else:
            body = lane_id(t) + [V(f"v_lshlrev_b32 v{t}, 7, v{t}"), V(f"v_min_u32 v{t}, {SLAB-128}, v{t}"),
                    S(f"s_lshl_b32 s{sT1}, s2, 3"), S(f"s_add_u32 s{sT1}, s{sT1}, s{sWave}"), S(f"s_mul_i32 s{sT1}, s{sT1}, {SLAB}"), S(f"s_add_u32 s{sT1}, s{sT1}, {XCH_OFF}"),
                    bload(1, w.dummy, t, sWS, f"s{sT1}", 0, 'sc1', tag=('cond',)), S(f"s_sub_u32 s{sT1}, s{sT1}, {4*SLAB}"), bload(1, w.dummy, t, sWS, f"s{sT1}", 0, 'sc1', tag=('cond',))]
        sch[idx] += [[S(f"s_cmp_lg_u32 s{sRound}, {rnd}"), branch("s_cbranch_scc1", f"L_p2{name}")] + body + [label(f"L_p2{name}")]]
    mr = mode_read(w.T)
    sch[17] = [mr[0]] + sch[17]; sch[18] = [mr[1]] + sch[18]
    w4last = lambda lab: [S(f"s_lshl_b32 s{sT1}, s{sRound}, 3"), S(f"s_add_u32 s{sT1}, s{sT1}, s{sWave}"), S(f"s_cmp_lg_u32 s{sT1}, 12"), branch("s_cbranch_scc1", lab)]
    sch[29] = [w4last("L_p1") + [V(f"v_mov_b32 v{w.tmp+2}, s{sFlag}"), bload(1, w.oPoll, w.tmp + 2, sDBG, 0, 0, 'sc1', tag=('cond',)), label("L_p1")]] + sch[29]
    sch[34] += [w4last("L_g1_back") + gate("L_g1", w.oPoll, w.tmp + 2, 0) + [label("L_g1_back")]]
    for u in range(2):
        alt = flat(dma_x(w, 0, ('X', 0, 'next'))) if u == 0 else []
        sch[35 + u] += [[S(f"s_cmp_lg_u32 s{sRound}, 0"), branch("s_cbranch_scc1", f"L_opre{u}")] + alt + [label(f"L_opre{u}_back"), I("; opre", 'comment', tag=('phantom', 0 if Cfg.o_skip else 10))]]
    if not Cfg.no_dma:
        for i, idx in enumerate(sorted(Cfg.touch_at)): sch[idx] += touch_kv(w, 'KV'[i & 1])
        for idx, goff in Cfg.tbatch:
            sch[idx] += [[S(f"s_add_u32 s{sT0}, s{sKVbase}, {goff}"), bload(1, w.dummy, w.vTch, sK, f"s{sT0}", 0, Cfg.touch_pol, tag=('misc',)),
                          bload(1, w.dummy, w.vTch, sV, f"s{sT0}", 0, Cfg.touch_pol, tag=('misc',))]]
    return sch

def lane_id(r): return [V(f"v_mbcnt_lo_u32_b32 v{r}, -1, 0"), V(f"v_mbcnt_hi_u32_b32 v{r}, -1, v{r}")]
def lane_setup(w):
    t = w.F + 8
    lane, i16, g, a, b, c = t, t + 1, t + 2, t + 3, t + 4, t + 5
    o = lane_id(lane) + [V(f"v_and_b32 v{i16}, 15, v{lane}"), V(f"v_lshrrev_b32 v{g}, 4, v{lane}")]
    o += [V(f"v_lshrrev_b32 v{a}, 1, v{i16}"), V(f"v_xor_b32 v{a}, v{a}, v{g}"), V(f"v_lshlrev_b32 v{a}, 4, v{a}"),
          V(f"v_lshl_add_u32 v{w.aN}, v{i16}, 7, v{a}"), V(f"v_xor_b32 v{w.aN+1}, 64, v{w.aN}")]
    o += [V(f"v_lshrrev_b32 v{a}, 2, v{lane}"), V(f"v_and_b32 v{b}, 6, v{a}"),
          V(f"v_bfe_u32 v{c}, v{lane}, 1, 1"), V(f"v_xor_b32 v{b}, v{b}, v{c}"), V(f"v_lshlrev_b32 v{b}, 4, v{b}"),
          V(f"v_lshl_add_u32 v{b}, v{a}, 7, v{b}"),
          V(f"v_and_b32 v{c}, 1, v{lane}"), V(f"v_lshl_add_u32 v{w.aT}, v{c}, 3, v{b}")]
    for dq in range(1, 4): o.append(V(f"v_xor_b32 v{w.aT+dq}, {dq<<5}, v{w.aT}"))
    return o
def voff_setup(w):
    t = w.F + 16
    r8, p, a, b, row = t, t + 1, t + 2, t + 3, t + 4
    o = [V(f"v_bfe_u32 v{row}, v0, 3, 4"),
         V(f"v_and_b32 v{p}, 7, v0"),
         V(f"v_lshrrev_b32 v{a}, 1, v{row}"), V(f"v_xor_b32 v{a}, v{a}, v{p}"), V(f"v_lshlrev_b32 v{a}, 4, v{a}"),
         V(f"v_and_b32 v{b}, 6, v{row}"), V(f"v_xor_b32 v{b}, v{b}, v{p}"), V(f"v_lshlrev_b32 v{b}, 4, v{b}"),
         V(f"v_and_b32 v{p}, 12, v{row}"), V(f"v_add_u32 v{p}, v{p}, v{row}"), V(f"v_lshl_add_u32 v{w.vW}, v{p}, 13, v{b}"),
         V(f"v_mul_u32_u24 v{p}, 1280, v{row}"), V(f"v_add_u32 v{w.vX}, v{p}, v{a}")]
    o2 = [V(f"v_lshl_add_u32 v{w.vK}, v{row}, 8, v{a}"), V(f"v_lshl_add_u32 v{w.vV}, v{row}, 8, v{b}"),
          V(f"v_and_b32 v{p}, 63, v0"), V(f"v_lshlrev_b32 v{p}, 6, v{p}"), V(f"v_bfe_u32 v{r8}, v0, 6, 1"), V(f"v_lshl_add_u32 v{w.vTch}, v{r8}, 12, v{p}")]
    return o, o2

def add_addr(regs_, delta):
    if delta == 0: return []
    if isinstance(delta, str): return [V(f"v_add_u32 v{r}, {delta}, v{r}") for r in regs_]
    return [V(f"v_add_u32 v{r}, {delta & 0xffffffff:#x}, v{r}") for r in regs_]

def to_w(w, cur):
    t = w.T
    return add_addr([w.aT + 2, w.aT + 3], item_slot(vidx(0)) - cur) + add_addr([w.aT], wslot(0) - cur) + [
        V(f"v_bfe_u32 v{t}, v{w.aT}, 3, 2"), V(f"v_and_b32 v{w.aT}, 0xffffffe7, v{w.aT}"), V(f"v_lshlrev_b32 v{t}, 4, v{t}"),
        V(f"v_xor_b32 v{w.aT}, v{w.aT}, v{t}"), V(f"v_xor_b32 v{w.aT+1}, 64, v{w.aT}")]
def to_v(w): return [V(f"v_xor_b32 v{w.aT}, 64, v{w.aT+2}"), V(f"v_xor_b32 v{w.aT+1}, 64, v{w.aT+3}")]

def finish(code, pending=None, pre=()):
    c, q = add_lgkm_waits(code, pending)
    return fix_hazards(c, pre), q

def loop_finish(B, q, before):
    B1, q1 = finish(B, q, pre=before[-12:])
    B2, q2 = finish(B, q1, pre=B1[-12:])
    B3, q3 = finish(B, q2, pre=B2[-12:])
    assert emit(B2) == emit(B3) and q2 == q3
    assert len(q) <= len(q2) and q == q2[len(q2) - len(q):], "entry LDS queue must be a suffix of the steady-state queue"
    B4 = fix_hazards(B2, before[-12:])
    assert emit(fix_hazards(B4, B4[-12:])) == emit(B4)
    return B4, q2

def srd(base, ptr, nbytes):
    return [S(f"s_mov_b32 s{base}, s{ptr}"), S(f"s_mov_b32 s{base+1}, s{ptr+1}"), S(f"s_mov_b32 s{base+2}, {nbytes}"), S(f"s_mov_b32 s{base+3}, 0x20000")]

def round_advance():
    return [S(f"s_add_u32 s{sKVbase}, s{sKVbase}, 262144"), S(f"s_add_u32 s{sWbase}, s{sWbase}, 512"),
            S(f"s_add_u32 s{sOst}, s{sOst}, {8*10240}"), S(f"s_add_u32 s{sRound}, s{sRound}, 1"), S(f"s_cmp_lt_u32 s{sRound}, 2")]

def flag_add(t, val, lab):
    return [V(f"v_mov_b32 v{t}, {val}"), V(f"v_mov_b32 v{t+1}, s{sFlag}"), S("s_mov_b64 exec, 1"),
            I(f"buffer_atomic_or v{t}, v{t+1}, s[{sDBG}:{sDBG+3}], 0 offen sc1", 'vstore', rd=regs(t, 2) | regs(sDBG, 4, 's'), tag=('cond',)),
            S("s_mov_b64 exec, -1"), label(lab)]

def common_scalars():
    C = srd(sK, 58, 134217728) + srd(sV, 60, 134217728) + srd(sWO, 64, 5242880) + srd(sOUT, 66, 6553600) + srd(sDBG, 68, 256) \
        + srd(sWS, 70, (160 << 20) if Cfg.stamps else WS_BYTES)
    C += [S(f"s_lshr_b32 s{sT2}, s{sWbase}, 8"),
          S(f"s_lshl_b32 s{sT3}, s{sB}, 5"), S(f"s_add_u32 s{sT3}, s{sT3}, s{sT2}"), S(f"s_lshl_b32 s{sKVbase}, s{sT3}, 17"),
          S(f"s_mul_i32 s{sOst}, s{sT3}, 40960"),] + ([S(f"s_and_b32 s{sKVbase}, s{sKVbase}, 0x20000")] if Cfg.kv_same else []) + [
          S(f"s_lshl_b32 s{sFlag}, s{sB}, 1"), S(f"s_lshr_b32 s{sT2}, s{sG}, 2"), S(f"s_add_u32 s{sFlag}, s{sFlag}, s{sT2}"), S(f"s_lshl_b32 s{sFlag}, s{sFlag}, 2"),
          S(f"s_mul_i32 s{sTau}, s{sT3}, {Cfg.taumul}"), S(f"s_lshr_b32 s{sT2}, s{sT3}, {Cfg.taush}"), S(f"s_add_u32 s{sTau}, s{sTau}, s{sT2}"),
          S(f"s_and_b32 s{sTau}, s{sTau}, {Cfg.taumask}"), S(f"s_lshl_b32 s{sTau}, s{sTau}, 13"),
          S(f"s_mov_b32 s{sRound}, 0"), S(f"s_mov_b32 s{sMode}, 0"), S(f"s_mov_b32 s{sQS}, {f2u(QSCALE)}"), S(f"s_mov_b32 s{sC16}, {WTAB:#x}"), S(f"s_mov_b32 s{sC32}, {2*SLOT}"),
          S(f"s_mov_b32 s{sCX}, 20480"), S(f"s_mov_b32 s{sTK}, s{sKVbase}"), S(f"s_mov_b32 s{sTV}, s{sKVbase}")]
    if Cfg.stamps:
        C += [S(f"s_lshl_b32 s{sStamp+2}, s2, 3"), S(f"s_add_u32 s{sStamp+2}, s{sStamp+2}, s{sWave}"), S(f"s_lshl_b32 s{sStamp+2}, s{sStamp+2}, 10"),
              S(f"s_add_u32 s{sStamp+2}, s{sStamp+2}, {DBG_OFF}")]
    return C
def wave_addr0(w, j0mul, j0add):
    aN = [w.aN, w.aN + 1]; aT = [w.aT + i for i in range(4)]
    C = [S(f"s_bfe_u32 s{sT0}, s{sWave}, 0x10001"), S(f"s_lshl_b32 s{sT0}, s{sT0}, 13"),
         S(f"s_and_b32 s{sT1}, s{sWave}, 1"), S(f"s_mul_i32 s{sT1}, s{sT1}, {j0mul*1024}"), S(f"s_add_u32 s{sT1}, s{sT1}, {j0add*1024}"),
         S(f"s_add_u32 s{sOst}, s{sOst}, s{sT1}"), S(f"s_lshl_b32 s{sT1}, s{sT1}, 1"),
         S(f"s_sub_u32 s{sKX}, s{sT0}, s{sT1}"),
         S(f"s_add_u32 s{sT1}, s{sT1}, {xbuf(0)}")]
    return C + add_addr(aT, f"s{sT0}") + add_addr(aN, f"s{sT1}") + to_w(w, 0)

def gen_w3():
    w = Wave(3); nm = 24
    st = lambda k, real=False: stamp(w.tmp + 1, k, real)
    aN = [w.aN, w.aN + 1]; aT = [w.aT + i for i in range(4)]
    C = [label("L_w3"), raw("s_waitcnt lgkmcnt(0)")]
    if Cfg.codetouch:
        t = w.tmp + 1
        C += [raw(f"s_getpc_b64 s[{sRet}:{sRet+1}]"), label("L_pc0"),
              S(f"s_sub_u32 s{sRet}, s{sRet}, L_pc0-KSTART"), S(f"s_subb_u32 s{sRet+1}, s{sRet+1}, 0"),
              S(f"s_lshr_b32 s{sT0}, s2, 3"), S(f"s_lshl_b32 s{sT0}, s{sT0}, 2"), S(f"s_add_u32 s{sT0}, s{sT0}, s{sWave}"), S(f"s_lshl_b32 s{sT0}, s{sT0}, 7"),
              V(f"v_and_b32 v{t}, 7, v0"), V(f"v_lshlrev_b32 v{t}, 14, v{t}"), V(f"v_add_u32 v{t}, s{sT0}, v{t}"),
              V(f"v_min_u32 v{t}, KEND-KSTART-4, v{t}"),
              I(f"global_load_dword v{w.dummy}, v{t}, s[{sRet}:{sRet+1}]", 'vload', wr=regs(w.dummy), rd=regs(t) | regs(sRet, 2, 's'))]
    if Cfg.warm0:
        t = w.tmp + 1
        C += srd(sW, 62, 5242880) + srd(sX, 56, 6553600)
        C += [V(f"v_and_b32 v{t}, 63, v0"), V(f"v_lshlrev_b32 v{t}, 7, v{t}"),
              S(f"s_mul_i32 s{sT0}, s{sB}, 204800"), S(f"s_mul_i32 s{sT1}, s{sG}, 25600"), S(f"s_add_u32 s{sT0}, s{sT0}, s{sT1}"),
              S(f"s_mul_i32 s{sT1}, s{sWave}, 5760"), S(f"s_add_u32 s{sT0}, s{sT0}, s{sT1}"),
              V(f"v_bfe_u32 v{t+1}, v0, 3, 3"), V(f"v_min_u32 v{t+1}, 4, v{t+1}"), V(f"v_lshlrev_b32 v{t+1}, 13, v{t+1}"),
              V(f"v_and_b32 v{w.T}, 7, v0"), V(f"v_lshl_add_u32 v{t+1}, v{w.T}, 7, v{t+1}"),
              S(f"s_lshl_b32 s{sT1}, s{sB}, 2"), S(f"s_add_u32 s{sT1}, s{sT1}, s{sWave}"), S(f"s_mul_i32 s{sT1}, s{sT1}, {5*8192}"),
              S(f"s_lshl_b32 s{sT2}, s{sG}, 10"), S(f"s_add_u32 s{sT1}, s{sT1}, s{sT2}"),
              barrier()] + ([bload(1, w.dummy, t + 1, sW, f"s{sT1}")] if Cfg.warm0 == 1 else []) + [bload(1, w.dummy, t, sX, f"s{sT0}")]
    C += common_scalars()
    t = w.tmp + 1
    C += [S(f"s_cmp_lg_u32 s{sWave}, 0"), branch("s_cbranch_scc1", "L_noxcc"), raw(f"s_getreg_b32 s{sT0}, hwreg(HW_REG_XCC_ID, 0, 3)"),
          S(f"s_lshl_b32 s{sT0}, 0x1000000, s{sT0}"), S(f"s_lshl_b32 s{sT1}, 0x10000, s{sG}"), S(f"s_or_b32 s{sT0}, s{sT0}, s{sT1}"), S(f"s_lshl_b32 s{sT1}, s{sB}, 3"),
          V(f"v_mov_b32 v{t}, s{sT0}"), V(f"v_mov_b32 v{t+1}, s{sT1}"), S("s_mov_b64 exec, 1"),
          I(f"buffer_atomic_or v{t}, v{t+1}, s[{sDBG}:{sDBG+3}], 0 offen sc1", 'vstore', rd=regs(t, 2) | regs(sDBG, 4, 's')),
          S("s_mov_b64 exec, 0xff"), V(f"v_mul_u32_u24 v{t}, {SLAB}, v0"), V(f"v_mov_b32 v{t+1}, 0"), S(f"s_mul_i32 s{sT0}, s2, {XCH_WG}"), S(f"s_add_u32 s{sT0}, s{sT0}, {XCH_OFF + SLAB - 128}"),
          bstore(1, t + 1, t, sWS, f"s{sT0}", 0, 'sc1'),
          S("s_mov_b64 exec, -1"), label("L_noxcc")]
    C += lane_setup(w) + wave_addr0(w, 3, 0)
    def x_wo():
        t = w.tmp + 1
        return lane_id(t) + [V(f"v_min_u32 v{t}, 39, v{t}"), V(f"v_lshlrev_b32 v{t}, 7, v{t}"),
              S(f"s_lshl_b32 s{sT0}, s2, 2"), S(f"s_add_u32 s{sT0}, s{sT0}, s{sWave}"), S(f"s_mul_i32 s{sT0}, s{sT0}, 5120"), bload(1, w.dummy, t, sWO, f"s{sT0}")]
    def x_code():
        t = w.tmp + 1
        return [raw(f"s_getpc_b64 s[{sRet}:{sRet+1}]"), label("L_pc1"),
              S(f"s_add_u32 s{sRet}, s{sRet}, L_o-L_pc1"), S(f"s_addc_u32 s{sRet+1}, s{sRet+1}, 0")] + lane_id(t) + [
              S(f"s_lshl_b32 s{sT0}, s{sWave}, 13"), V(f"v_lshlrev_b32 v{t}, 7, v{t}"), V(f"v_add_u32 v{t}, s{sT0}, v{t}"), V(f"v_min_u32 v{t}, KEND-L_o-4, v{t}"),
              I(f"global_load_dword v{w.dummy}, v{t}, s[{sRet}:{sRet+1}]", 'vload', wr=regs(w.dummy), rd=regs(t) | regs(sRet, 2, 's'))]
    def x_slab():
        t = w.tmp + 1
        return lane_id(t) + [V(f"v_lshlrev_b32 v{t}, 7, v{t}"), V(f"v_min_u32 v{t}, {SLAB-128}, v{t}"),
              S(f"s_lshl_b32 s{sT0}, s2, 3"), S(f"s_add_u32 s{sT0}, s{sT0}, s{sWave}"), S(f"s_mul_i32 s{sT0}, s{sT0}, {SLAB}"), S(f"s_add_u32 s{sT0}, s{sT0}, {XCH_OFF}"),
              bload(1, w.dummy, t, sWS, f"s{sT0}", 0, 'sc1'), S(f"s_add_u32 s{sT0}, s{sT0}, {4*SLAB}"), bload(1, w.dummy, t, sWS, f"s{sT0}", 0, 'sc1')]
    def x_jit():
        return [S(f"s_mul_i32 s{sT0}, s2, 11"), S(f"s_and_b32 s{sT0}, s{sT0}, 31"), label("L_jit"), raw(f"s_sleep {Cfg.jit}"), S(f"s_sub_u32 s{sT0}, s{sT0}, 1"), branch("s_cbranch_scc0", "L_jit")]
    def x_wo2():
        r = [i if i.kind != 'vload' else bload(1, w.dummy, w.tmp + 1, sWO, f"s{sT0}", 0, Cfg.wo2pol) for i in x_wo()]
        r[2] = V(f"v_min_u32 v{w.tmp+1}, {Cfg.wo2n}, v{w.tmp+1}")
        return r
    def extras(where):
        out_ = []
        for name, fn in (('wo', x_wo), ('code', x_code), ('slab', x_slab), ('jit', x_jit), ('wo2', x_wo2)):
            pl = Cfg.place.get(name)
            if pl and pl[0] == where:
                out_ += [S(f"s_cmp_lg_u32 s{sRound}, {pl[1]}"), branch("s_cbranch_scc1", f"L_ex_{name}")] + fn() + [label(f"L_ex_{name}")]
        return out_
    C, _ = finish(C)
    out = C
    def wadv():
        return [S(f"s_bfe_i32 s{sD}, s{sC16}, s{sCnt}"), S(f"s_lshl_b32 s{sD}, s{sD}, 14"), S(f"s_add_u32 s{sCnt}, s{sCnt}, 4"),
                S(f"s_cmp_eq_u32 s{sCnt}, {0x40000 + 4*NW:#x}"), S(f"s_cselect_b32 s{sCnt}, 0x40000, s{sCnt}")] + add_addr(aT[:2], f"s{sD}")
    def xadv():
        return [S(f"s_add_u32 s{sCnt2}, s{sCnt2}, 1"), S(f"s_cmp_eq_u32 s{sCnt2}, {NX}"), S(f"s_cselect_b32 s{sXd}, {(-(NX-1)*20480) & 0xffffffff:#x}, s{sCX}"),
                S(f"s_cselect_b32 s{sCnt2}, 0, s{sCnt2}")] + add_addr(aN, f"s{sXd}")
    def qstage(s, zero=False, extra=()):
        p = s & 1
        adv_ = wadv() + (xadv() if p == 1 else []) + list(extra)
        L = [barrier()] + spread(q_mfmas(w, 1 - p, zero), [(q_reads(w, p, p), 0, Cfg.qr3), (one(adv_), Cfg.qr3 + 1, 23)]) + [wait(lgkm=0)]
        k = [i for i, c in enumerate(L) if c.kind == 'mfma'][Cfg.qcut]
        return L[:k], L[k:]
    C = [label("L_w3_round")] + st(0) + [barrier()] + st(1)
    C += flat(q_reads(w, 0, 0))
    C += add_addr(aT[:2], wslot(1) - wslot(0))
    C += [S(f"s_mov_b32 s{sCnt}, 0x40004"), S(f"s_mov_b32 s{sCnt2}, {(xbuf(0)-NW*SLOT)//20480}"), S(f"s_mov_b32 s{sLoop}, 8")]
    C += [wait(lgkm=0)]
    h1, t1 = qstage(1, zero=True); he, te = qstage(2); ho, to = qstage(3)
    C += h1 + t1 + [wait(vm=0)] + extras('Q2') + he
    C, q = finish(C); out += C
    B = [label("L_w3_q")] + te + ho + to + he
    B += [S(f"s_sub_u32 s{sLoop}, s{sLoop}, 1"), S(f"s_cmp_lg_u32 s{sLoop}, 0"), branch("s_cbranch_scc1", "L_w3_q")]
    Bc, q2 = loop_finish(B, q, out)
    out += Bc
    curT = wslot(20); curN = xbuf(10)
    h19, t19 = qstage(19, extra=add_addr(aN, f"s{sKX}") + add_addr(aN, item_slot(kidx(0)) - curN) + to_v(w))
    mr = mode_read(w.T)
    C = mr[0] + te + mr[1] + extras('Q18') + h19 + t19
    C += st(40) + [barrier()] + st(41)
    k0 = frags_QK(w, 'zero')
    k1 = frags_QK(w, 'negm', pre=add_addr(aN, item_slot(kidx(1)) - item_slot(kidx(0))))
    w.fpos = 0
    C += stream(w, k0, 0, k1, lead=q_mfmas(w, 1, False), fillers=q_pack_fillers(w))
    C += first_max(w)
    C += st(42) + [barrier()] + st(43)
    C += flat(softmax_groups(w, 0)) + l_accum(w, first=True)
    v0 = frags_PV(w, 0, zero=True)
    C += extras('A0')
    C += [S(f"s_mov_b32 s{sKpos}, {item_slot(kidx(1))}"), S(f"s_mov_b32 s{sVpos}, {item_slot(vidx(0))}"), S(f"s_mov_b32 s{sLoop}, 7")]
    def adv(pos, rr):
        return [S(f"s_cmp_ge_u32 s{pos}, {LDS_BYTES - 2*SLOT}"), S(f"s_cselect_b32 s{sD}, {(2*SLOT - LDS_BYTES) & 0xffffffff:#x}, s{sC32}"),
                S(f"s_add_u32 s{pos}, s{pos}, s{sD}")] + add_addr(rr, f"s{sD}")
    def pv(par): return frags_PV(w, par, pre=adv(sVpos, aT))
    def qk(): return frags_QK(w, 'negm', pre=adv(sKpos, aN))
    E_ = 8 - Cfg.late
    def sm_part(late, par, extra=()):
        G = softmax_groups(w, par) + [check_cmp(w)]
        nl = 3 * len(late)
        cut = int(len(G) * Cfg.smpure) if Cfg.late < 8 else 0
        return flat(G[:cut]) + stream(w, late, Cfg.LA, qk(), fillers=[(G[cut:], 0, max(nl - Cfg.smend, 1))] + list(extra)) + check_branch(w, par)
    C += stream(w, k1 + v0[:E_], Cfg.LA, v0[E_:] + qk())
    C += st(44) + [barrier()] + st(45)
    C += sm_part(v0[E_:], 1)
    C, q = finish(C, q2, pre=out[-12:]); out += C
    B = [label("L_w3_a")]
    for par in (1, 0):
        B += stream(w, qk() + pv(par)[:E_], Cfg.LA, pv(par)[E_:] + qk(), fillers=[(one(l_accum(w)), 4, 10)])
        B += [barrier()]
        B += sm_part(pv(par)[E_:], 1 - par)
    B += [S(f"s_sub_u32 s{sLoop}, s{sLoop}, 1"), S(f"s_cmp_lg_u32 s{sLoop}, 0"), branch("s_cbranch_scc1", "L_w3_a")]
    Bc, q2 = loop_finish(B, q, out)
    out += Bc
    C = st(74) + l_accum(w) + mode_vcc() + extras('A15')
    C += stream(w, pv(1), 0, [], fillers=epi_fillers(w))
    C += st(75) + st(77, True)
    curT = item_slot(vidx(15)); curN = item_slot(kidx(16))
    C += to_w(w, curT) + add_addr(aN, xbuf(0) - curN) + [V(f"v_subrev_u32 v{r}, s{sKX}, v{r}") for r in aN]
    C += round_advance()
    C += [branch("s_cbranch_scc1", "L_w3_round"), branch("s_branch", "L_o")]
    C, q = finish(C, q2, pre=out[-12:]); out += C
    assert not q
    return out, rare_routine(w, 0) + rare_routine(w, 1)

def gen_w2():
    w = Wave(2); nm = 16
    st = lambda k, real=False: stamp(w.tmp + 1, k, real)
    aN = [w.aN, w.aN + 1]; aT = [w.aT + i for i in range(4)]
    POL[0] = Cfg.wx_pol
    sch = loader_schedule(w)
    items = lambda idx: sch[idx]
    vo1, vo2 = voff_setup(w)
    en = lambda r: [raw(f"s_memtime s[{r}:{r+1}]")] if Cfg.ent else []
    pro = vo1 + [raw("s_waitcnt lgkmcnt(0)")] + en(94) + srd(sW, 62, 5242880) + srd(sX, 56, 6553600)
    POL[0] = Cfg.pro_pol
    pro += flat(dma_w(w, 0, False, ('W', 0, True))) + flat(dma_x(w, 0, ('X', 0, True))) + flat(dma_w(w, 1, False, ('W', 1, True))) + ([barrier()] if Cfg.warm0 else [])
    pro += en(96)
    pro += vo2 + [V(f"v_mov_b32 v{w.oVoff}, 0"), V(f"v_mov_b32 v{w.oPoll}, 0")] + common_scalars() + lane_setup(w) + wave_addr0(w, 2, 6)
    if Cfg.ent:
        pro += en(98) + [raw("s_waitcnt lgkmcnt(0)"), V(f"v_mov_b32 v{w.tmp+2}, 0")]
        for i, r in enumerate((92, 94, 96, 98, 100)): pro += [V(f"v_mov_b32 v{w.tmp+1}, s{r}"), bstore(1, w.tmp + 1, w.tmp + 2, sWS, f"s{sStamp+2}", 4 * (120 + i), tag=('misc',))]
    C = [label("L_w2_round")] + st(76, True)
    def bar(idx, lgkm=None):
        b = wait(vm=63, lgkm=lgkm); b.tag = (('need', idx), lgkm)
        return st(2 * idx) + [b, barrier()] + st(2 * idx + 1)
    prio = lambda p: [raw(f"s_setprio {p}")] if Cfg.prio == 2 else []
    curT = wslot(0); curN = xbuf(0)
    C += prio(Cfg.qprio)
    for s in range(20):
        if s < 19:
            newT = wslot(s + 1); newN = xbuf((s + 1) >> 1)
            adv_ = add_addr(aT[:2], newT - curT) + add_addr(aN, newN - curN); curT, curN = newT, newN
        else:
            adv_ = add_addr(aN, f"s{sKX}") + add_addr(aN, item_slot(kidx(0)) - curN) + to_v(w)
        C += bar(s, lgkm=0)
        ex = []
        if s == 3:
            ex = [([[S(f"s_lshl_b32 s{sT1}, s{sRound}, 3"), S(f"s_add_u32 s{sT1}, s{sT1}, s{sWave}"), S(f"s_cmp_lg_u32 s{sT1}, 12"),
                     branch("s_cbranch_scc1", "L_nofl1"), S(f"s_and_b32 s{sT1}, s{sG}, 3"), S(f"s_lshl_b32 s{sT1}, 1, s{sT1}")] + flag_add(w.tmp + 1, f"s{sT1}", "L_nofl1")], 11, 12)]
        if s == 0: C += flat(q_reads(w, 0, 0)) + flat(items(0)) + adv_
        else: C += spread(q_mfmas(w, (s - 1) & 1, s == 1), [(q_reads(w, s & 1, s & 1), 0, Cfg.qr2), (items(s), Cfg.qd0, nm - 2), (one(adv_), Cfg.qr2 + 1, 16)] + ex)
    C += bar(20, lgkm=0)
    def qk(t, fc='negm'): return frags_QK(w, fc, pre=add_addr(aN, item_slot(kidx(t)) - item_slot(kidx(t - 1))) if t else [])
    def pv(t): return frags_PV(w, t & 1, zero=(t == 0), pre=add_addr(aT, item_slot(vidx(t)) - item_slot(vidx(t - 1))) if t else [])
    w.fpos = 0
    C += stream(w, qk(0, 'zero'), 0, qk(1), lead=q_mfmas(w, 1, False), fillers=[(items(20), 0, 2 * nm)] + q_pack_fillers(w))
    C += first_max(w)
    C += flat(softmax_groups(w, 0))
    for t in range(15):
        nx = qk(t + 2) if t < 14 else []
        if Cfg.pp:
            C += prio(Cfg.pp_a)
            C += bar(21 + t)
            C += stream(w, qk(t + 1) + pv(t), Cfg.LA, nx, fillers=[(one(l_accum(w, first=(t == 0))), 3, 8)])
            C += prio(Cfg.pp_b)
            G = softmax_groups(w, (t + 1) & 1) + [check_cmp(w)]
            sm = [g for g in G]
            it_ = items(21 + t)
            base = [I("; g", 'comment') for _ in sm]
            merged = spread(base, [(it_, 0, len(sm))])
            k = 0
            for c in merged:
                if c.kind == 'comment' and c.text == "; g": C += sm[k]; k += 1
                else: C.append(c)
            C += check_branch(w, (t + 1) & 1)
        else:
            C += prio(0)
            if 21 + t in Cfg.drain: C += [wait(vm=Cfg.drain[21 + t])]
            C += bar(21 + t)
            it_ = items(21 + t); h = (len(it_) * Cfg.dsplit + 99) // 100
            C += stream(w, qk(t + 1), Cfg.LA, pv(t), fillers=[(it_[:h], 0, nm), (one(l_accum(w, first=(t == 0))), 3, 8)])
            C += prio(1)
            C += stream(w, pv(t), Cfg.LA, nx, fillers=[(it_[h:], 1, nm + 1)] + sm_fillers(w, (t + 1) & 1, 2))
            C += check_branch(w, (t + 1) & 1)
    C += prio(0)
    C += bar(36)
    C += flat(items(36))
    C += st(74) + l_accum(w) + mode_vcc()
    C += stream(w, pv(15), 0, [], fillers=epi_fillers(w))
    C += st(75) + st(77, True)
    curT = item_slot(vidx(15)); curN = item_slot(kidx(15))
    C += to_w(w, curT) + add_addr(aN, xbuf(0) - curN) + [V(f"v_subrev_u32 v{r}, s{sKX}, v{r}") for r in aN]
    C += round_advance()
    C += [branch("s_cbranch_scc1", "L_w2_round"), branch("s_branch", "L_o")]
    VM = ('dma', 'vload', 'vstore')
    def resolve(prefix, first):
        res = {}
        q = [(c.tag[0], c.tag[1]) if len(c.tag) == 3 and c.tag[2] in (True, 'next') else None for c in prefix if c.kind in VM and c.tag != ('cond',)]
        for c in C:
            if c.kind in VM:
                if c.tag == ('cond',): continue
                if c.tag[-1] in ('cond', 'next') and not first: continue
                q.append((c.tag[0], c.tag[1]) if len(c.tag) == 3 and c.tag[2] in (False, 'cond') else None)
            elif c.kind == 'comment' and c.tag and c.tag[0] == 'phantom':
                if not first: q += [None] * c.tag[1]
            elif c.kind == 'wait' and isinstance(c.tag[0], tuple):
                idx = c.tag[0][1]
                last = -1
                for k, it in enumerate(q):
                    if it is not None and first_use(it[0], it[1]) <= idx: last = k
                res[idx] = min(63, len(q) - 1 - last)
        return res
    r1 = resolve(pro, True); r2 = resolve(C, False)
    C2 = []
    for c in C:
        if c.kind == 'wait' and isinstance(c.tag[0], tuple):
            idx = c.tag[0][1]; n = min(r1[idx], r2[idx]); lg = c.tag[1]
            if abs(r1[idx] - r2[idx]) > 1:
                C2 += [S(f"s_cmp_eq_u32 s{sRound}, {0 if r1[idx] > r2[idx] else 1}"), branch("s_cbranch_scc1", f"L_rw{idx}"), wait(vm=n), label(f"L_rw{idx}")]
                n = max(r1[idx], r2[idx])
            c.text = f"s_waitcnt vmcnt({n})" + (f" lgkmcnt({lg})" if lg is not None else ""); c.tag = (n, lg)
        C2.append(c)
    C = C2
    pro, _ = finish(pro)
    C, q = finish(C, [], pre=pro[-12:])
    assert not q
    return pro + C + gen_opre(w), rare_routine(w, 0) + rare_routine(w, 1)

OSLOT = 40960
def oslot(u): return ((u + 2) & 3) * OSLOT
def o_voff(nh, VOFF, lane, a, b):
    if nh == 0: return [V(f"v_lshlrev_b32 v{VOFF}, 4, v{lane}")]
    return [V(f"v_lshrrev_b32 v{a}, 2, v{lane}"), V(f"v_mul_u32_u24 v{a}, 1280, v{a}"), V(f"v_bfe_u32 v{b}, v{lane}, 4, 1"), V(f"v_lshlrev_b32 v{b}, 1, v{b}"),
            V(f"v_and_b32 v{VOFF}, 3, v{lane}"), V(f"v_xor_b32 v{VOFF}, v{VOFF}, v{b}"), V(f"v_lshl_add_u32 v{VOFF}, v{VOFF}, 4, v{a}")]
def o_base(nh, sBase, sLd):
    C = [S(f"s_and_b32 s{sLd}, s{sWave}, 1"), S(f"s_mul_i32 s{sLd}, s{sLd}, 5120")]
    if nh == 0: C += [S(f"s_mul_i32 s{sBase}, s{sB}, {128*10240}"), S(f"s_add_u32 s{sBase}, s{sBase}, s{sLd}")]
    else: C += [S(f"s_lshl_b32 s{sBase}, s{sLd}, 2"), S(f"s_and_b32 s{sT2}, s{sG}, 3"), S(f"s_mul_i32 s{sT2}, s{sT2}, 320"), S(f"s_add_u32 s{sBase}, s{sBase}, s{sT2}"),
                S(f"s_add_u32 s{sLd}, s{sLd}, 10240")]
    step = 10240 if nh == 0 else 40960
    C += [S(f"s_add_u32 s{sT3}, s{sG}, s{sB}")] if Cfg.orot else [S(f"s_mov_b32 s{sT3}, 0")]
    for u in range(4):
        C += [S(f"s_add_u32 s{sT2}, s{sT3}, {u}"), S(f"s_and_b32 s{sT2}, s{sT2}, 3"), S(f"s_mul_i32 s{sOoff+u}, s{sT2}, {step}")]
    return C
def o_dma(nh, u, VOFF, sSo, sLd, goff=0, loff=0, srd_=None):
    step = 10240 if nh == 0 else 40960
    G = []
    if Cfg.o_skip & (1 << nh): return G
    for i in range(5):
        if nh == 0:
            imm = (i & 3) * 1024; ex = (i >> 2) * 4096
            g = [S(f"s_add_u32 m0, s{sLd}, {oslot(u) + ex + loff}"), S(f"s_add_u32 s{sT0}, s{sSo}, s{sOoff+u}")] + ([S(f"s_add_u32 s{sT0}, s{sT0}, {ex + goff}")] if ex + goff else []) if imm == 0 else []
            G.append(g + [dma(VOFF, srd_ or sWS, f"s{sT0}", imm, Cfg.old_pol)])
        else:
            g = [S(f"s_add_u32 m0, s{sLd}, {oslot(u) + i*1024 - i*64 + loff}")]
            if i == 0: g += [S(f"s_add_u32 s{sT0}, s{sSo}, s{sOoff+u}")] + ([S(f"s_add_u32 s{sT0}, s{sT0}, {goff}")] if goff else [])
            G.append(g + [dma(VOFF, srd_ or sWO, f"s{sT0}", i * 64)])
    return G
def gate(lab, POLL, vfl, shift):
    return [V(f"v_readfirstlane_b32 s{sT2}, v{POLL}"), S(f"s_bfe_u32 s{sT2}, s{sT2}, {0x40000 + shift:#x}"), S(f"s_cmp_lg_u32 s{sT2}, 15"),
            branch("s_cbranch_scc1", lab)]
def spin(lab, POLL, vfl, shift, back):
    return [label(lab), bload(1, POLL, vfl, sDBG, 0, 0, 'sc1'), S(f"s_sub_u32 s{sCnt}, s{sCnt}, 1"), S(f"s_cmp_lt_i32 s{sCnt}, 0"), branch("s_cbranch_scc1", back),
            wait(vm=0), V(f"v_readfirstlane_b32 s{sT2}, v{POLL}"), S(f"s_bfe_u32 s{sT2}, s{sT2}, {0x40000 + shift:#x}"), S(f"s_cmp_eq_u32 s{sT2}, 15"),
            branch("s_cbranch_scc1", back), raw(f"s_sleep {Cfg.xsleep}"), branch("s_branch", lab)]

def gen_opre(w):
    sSo, sLd = sTK, sTV
    C = []
    for u in range(2):
        C += [label(f"L_opre{u}"), S(f"s_bitcmp1_b32 s{sWave}, 1"), branch("s_cbranch_scc1", f"L_opre{u}_1")]
        for nh in range(2):
            step = 10240 if nh == 0 else 40960
            B = [label(f"L_opre{u}_{nh}")]
            if u == 0:
                t = w.tmp + 1
                B += lane_id(t) + o_voff(nh, w.oVoff, t, w.dummy, w.vTch) + o_base(nh, sSo, sLd)
                B += [S(f"s_and_b32 s{sT3}, s{sG}, 4"), S(f"s_mul_i32 s{sT3}, s{sT3}, {16*step}"), S(f"s_add_u32 s{sSo}, s{sSo}, s{sT3}")]
            for ks in range(2): B += flat(o_dma(nh, u, w.oVoff, sSo, sLd, goff=ks * 4 * step, loff=ks * 20480))
            B += [branch("s_branch", f"L_opre{u}_back")]
            C += fix_hazards(B)
    C += fix_hazards([label("L_g1"), S(f"s_mov_b32 s{sCnt}, 0x8000"), V(f"v_mov_b32 v{w.tmp+2}, s{sFlag}")] + spin("L_g1_spin", w.oPoll, w.tmp + 2, 0, "L_g1_back"))
    return C

def gen_o():
    ACC = 0; SET = [100, 140]
    aB, aA0, aA1 = 180, 182, 184
    VOFF, POLL, VFL, T, L16, POLL2 = 186, 187, 188, 190, 196, 198
    LW, LR, VO, VO2 = T + 2, T + 3, T + 4, 199
    RB = 200
    sSo, sHi, sLd, sBase, sKs, sNq = 36, 37, 39, 40, 43, 44
    sXo, sXp, sOb, sVar = 60, 61, 62, 63
    sOD = sK
    st = lambda k, real=False: stamp(T, k, real)
    def acc(t): return ACC + 4 * t
    def fB(s_, jj): return SET[s_] + 4 * jj
    def fA(s_, nn): return SET[s_] + 20 + 4 * nn
    TS = [list(range(0, 7)), list(range(7, 13)), list(range(13, 19)), list(range(19, 25))]
    C = [label("L_o")] + st(80)
    if Cfg.prio: C += [raw("s_setprio 0")]
    lane = T; a = T + 1; b = T + 5
    C += lane_id(lane) + [V(f"v_lshlrev_b32 v{L16}, 4, v{lane}")]
    C += [S(f"s_lshr_b32 s{sKs}, s{sWave}, 2"), S(f"s_mul_i32 s{sT0}, s{sKs}, 20480"), S(f"s_and_b32 s{sT1}, s{sWave}, 1"), S(f"s_mul_i32 s{sT1}, s{sT1}, 5120"),
          S(f"s_add_u32 s{sT1}, s{sT0}, s{sT1}"),
          V(f"v_add_u32 v{aB}, s{sT1}, v{L16}"), V(f"v_add_u32 v{aB+1}, {2*OSLOT}, v{aB}"),
          V(f"v_lshrrev_b32 v{a}, 2, v{lane}"), V(f"v_bfe_u32 v{b}, v{lane}, 4, 1"), V(f"v_lshlrev_b32 v{b}, 5, v{b}"), V(f"v_lshl_add_u32 v{b}, v{a}, 6, v{b}"),
          V(f"v_and_b32 v{a}, 3, v{lane}"), V(f"v_lshl_add_u32 v{b}, v{a}, 3, v{b}"),
          S(f"s_add_u32 s{sT1}, s{sT0}, 10240"), V(f"v_add_u32 v{aA0}, s{sT1}, v{b}"), V(f"v_xor_b32 v{aA1}, 32, v{aA0}"),
          V(f"v_add_u32 v{aA0+1}, {2*OSLOT}, v{aA0}"), V(f"v_add_u32 v{aA1+1}, {2*OSLOT}, v{aA1}"),
          S(f"s_mov_b32 s{sHi}, 0")]
    C += [S(f"s_bitcmp1_b32 s{sWave}, 1"), branch("s_cbranch_scc1", "L_o_1")]
    C = fix_hazards(C)
    def late_setup():
        return [V(f"v_mov_b32 v{VFL}, s{sFlag}"), V(f"v_xor_b32 v{VFL+1}, 4, v{VFL}"), V(f"v_mov_b32 v{POLL}, 0"), V(f"v_mov_b32 v{POLL2}, 0"),
         S(f"s_and_b32 s{sNq}, s{sG}, 3"), S(f"s_mov_b32 s{sCnt}, 0x8000"),
         S(f"s_mul_i32 s{sT0}, s{sWave}, 13312"), V(f"v_add_u32 v{LW}, s{sT0}, v{L16}"),
         S(f"s_xor_b32 s{sT1}, s{sWave}, 4"), S(f"s_mul_i32 s{sT0}, s{sT1}, 13312"), V(f"v_add_u32 v{LR}, s{sT0}, v{L16}"),
         S(f"s_lshl_b32 s{sT0}, s2, 3"), S(f"s_add_u32 s{sT0}, s{sT0}, s{sWave}"), S(f"s_mul_i32 s{sXo}, s{sT0}, {SLAB}"), S(f"s_add_u32 s{sXo}, s{sXo}, {XCH_OFF}"),
         S(f"s_xor_b32 s{sT0}, s{sT0}, 256"), S(f"s_mul_i32 s{sXp}, s{sT0}, {SLAB}"), S(f"s_add_u32 s{sXp}, s{sXp}, {XCH_OFF}"),
         V(f"v_bfe_u32 v{VO}, v{L16}, 4, 4"), V(f"v_mul_u32_u24 v{VO}, 1280, v{VO}"),
         V(f"v_bfe_u32 v{a}, v{L16}, 8, 1"), V(f"v_lshl_add_u32 v{VO2}, v{a}, 5, v{VO}"), V(f"v_lshrrev_b32 v{a}, 9, v{L16}"), V(f"v_lshl_add_u32 v{VO2}, v{a}, 4, v{VO2}"),
         V(f"v_lshrrev_b32 v{a}, 8, v{L16}"), V(f"v_lshl_add_u32 v{VO}, v{a}, 3, v{VO}"),
         S(f"s_mul_i32 s{sOb}, s{sB}, 204800"), S(f"s_and_b32 s{sT0}, s{sWave}, 1"), S(f"s_mul_i32 s{sT0}, s{sT0}, 102400"), S(f"s_add_u32 s{sOb}, s{sOb}, s{sT0}"),
         S(f"s_mul_i32 s{sT0}, s{sNq}, 320"), S(f"s_add_u32 s{sOb}, s{sOb}, s{sT0}"), S(f"s_bfe_u32 s{sT0}, s{sWave}, 0x10001"), S(f"s_mul_i32 s{sT0}, s{sT0}, 160"),
         S(f"s_add_u32 s{sOb}, s{sOb}, s{sT0}"),
         S(f"s_lshr_b32 s{sVar}, s{sG}, 2"), S(f"s_lshl_b32 s{sT1}, s{sKs}, 1"), S(f"s_add_u32 s{sVar}, s{sVar}, s{sT1}")] + mode_vcc()
    def poll_load(): return [bload(1, POLL, VFL, sDBG, 0, 0, 'sc1'), bload(1, POLL2, VFL + 1, sDBG, 0, 0, 'sc1')]
    for nh in range(2):
        step = 10240 if nh == 0 else 40960
        src = sWS if nh == 0 else sWO
        R_ = [label(f"L_o_{nh}")] + o_voff(nh, VOFF, lane, a, b) + o_base(nh, sBase, sLd) + [S(f"s_add_u32 s{sLd}, s{sLd}, s{sT0}")]
        R_ += [S(f"s_mov_b32 s{sOD+i}, s{src+i}") for i in range(3)]
        def head_setup():
            return [S(f"s_and_b32 s{sT2}, s{sHi}, 3"), S(f"s_and_b32 s{sT3}, s{sG}, 4"), S(f"s_add_u32 s{sT2}, s{sT2}, s{sT3}"),
                    S(f"s_lshl_b32 s{sT2}, s{sT2}, 2"), S(f"s_lshr_b32 s{sT3}, s{sHi}, 2"), S(f"s_lshl_b32 s{sT3}, s{sT3}, 1"), S(f"s_add_u32 s{sT2}, s{sT2}, s{sT3}"),
                    S(f"s_add_u32 s{sT2}, s{sT2}, s{sKs}"), S(f"s_mul_i32 s{sT2}, s{sT2}, {4*step}"), S(f"s_add_u32 s{sSo}, s{sBase}, s{sT2}"),
                    S(f"s_add_u32 s{sHi}, s{sHi}, 1")]
        odma = lambda u: o_dma(nh, u, VOFF, sSo, sLd, srd_=sOD)
        def oreads(u):
            s_ = u & 1; hi = oslot(u) // (2 * OSLOT); off = oslot(u) % (2 * OSLOT)
            G = []
            for k in range(5):
                nb = 5 * nh + k
                ar = (aA1 if nb & 1 else aA0) + hi
                G.append([ds_read(2, fA(s_, k) + 2 * hh, ar, off + (hh * 5 + (nb >> 1)) * 1024, tr=True) for hh in range(2)])
                G.append([ds_read(4, fB(s_, k), aB + hi, off + k * 1024)])
            return G
        def omf(s_): return [mfma(acc(t), fA(s_, t % 5), fB(s_, t // 5), acc(t)) for t in range(25)]
        R_ += head_setup()
        R_ += [wait(vm=18), barrier()] + st(81) + st(82)
        R_ += flat(oreads(0))
        for r in range(50): R_.append(V(f"v_pk_mov_b32 v[{ACC+2*r}:{ACC+2*r+1}], 0, 0"))
        R_ += late_setup() + flat(odma(2))
        R_ += [wait(vm=13), branch("s_branch", f"L_o_in{nh}")]
        R_, q = finish(R_)
        it = lambda hi, wv, lab: [S(f"s_lshl_b32 s{sT2}, s{sHi}, 3"), S(f"s_add_u32 s{sT2}, s{sT2}, s{sWave}"), S(f"s_cmp_lg_u32 s{sT2}, {hi*8+wv}"), branch("s_cbranch_scc1", lab)]
        def ostage(u):
            L = [wait(vm=5, lgkm=0), barrier()]
            if u == 1: L = [wait(vm=5), label(f"L_o_in{nh}"), wait(lgkm=0), barrier()]
            fill = [(oreads(u), 0, Cfg.orh)]
            d = odma((u + 2) & 3)
            if u == 1:
                d = d + [head_setup() + [S(f"s_cmp_gt_u32 s{sHi}, 8"), S(f"s_cselect_b32 s{sOD+2}, 0, s{sOD+2}")]]
                if nh == 0: d = d + [it(5, 0, "L_g3_back") + gate("L_g2", POLL, VFL, 8) + [label("L_g2_back")] + gate("L_g3", POLL2, VFL + 1, 0) + [label("L_g3_back")]]
            if u == 3 and nh == 0: d = [it(4, 0, "L_p2") + poll_load() + [label("L_p2")]] + d
            if u == 2 and nh == 1:
                d = [it(2, 2, "L_nofl2") + [S(f"s_lshl_b32 s{sT2}, 0x100, s{sNq}")] + flag_add(T, f"s{sT2}", "L_nofl2")] + d
            if u == Cfg.tlbu and Cfg.tlbwarm:
                d = d + [[S(f"s_cmp_lg_u32 s{sHi}, {Cfg.tlbwarm}"), branch("s_cbranch_scc1", f"L_tw{nh}"), V(f"v_lshlrev_b32 v{T}, 3, v{L16}"), V(f"v_min_u32 v{T}, {SLAB-128}, v{T}"),
                          bload(1, RB, T, sWS, f"s{sXo}", 0, 'sc1'), label(f"L_tw{nh}")]]
            if u == 3: d = d + [[S(f"s_cmp_gt_u32 s{sHi}, 8")]]
            fill.append((d, Cfg.od0, Cfg.od1))
            if Cfg.oprio:
                n_ = len(Cfg.oprio)
                L = L[:-1] + [raw(f"s_setprio {n_}"), L[-1]]
                for i, pos in enumerate(Cfg.oprio): fill.append(([[raw(f"s_setprio {n_-1-i}")]], pos - 1, pos))
            return L + spread(omf(1 - (u & 1)), fill)
        B = [label(f"L_o_loop{nh}")] + ostage(1) + ostage(2) + ostage(3) + [branch("s_cbranch_scc1", "L_o_fin")] + ostage(0) + [branch("s_branch", f"L_o_loop{nh}")]
        Bc, q2 = loop_finish(B, [], R_)
        E = []
        if nh == 0: E += spin("L_g2", POLL, VFL, 8, "L_g2_back") + spin("L_g3", POLL2, VFL + 1, 0, "L_g3_back")
        C += R_ + Bc + fix_hazards(E)
    E = [label("L_o_fin")] + st(83) + [wait(vm=0, lgkm=0), barrier()]
    for v in range(1, 4): E += [S(f"s_cmp_eq_u32 s{sVar}, {v}"), branch("s_cbranch_scc1", f"L_o_epi{v}")]
    C += E
    for v in range(4):
        ks, kh = v >> 1, v & 1
        mine = TS[v]; xsend = TS[v ^ 1]; keep = sorted(mine + xsend); lsend = sorted(TS[v ^ 2] + TS[v ^ 3])
        ls = lambda i: [raw(f"s_memtime s[{64+2*i}:{65+2*i}]" if i < 4 else f"s_memtime s[{92+2*(i-4)}:{93+2*(i-4)}]"), wait(lgkm=0)] if Cfg.stamps == 6 else []
        E = [label(f"L_o_epi{v}")] + ls(0)
        order = lsend + xsend + mine
        mf = [mfma(acc(t), fA(1, t % 5), fB(1, t // 5), acc(t)) for t in order]
        wr = [[ds_write(4, LW, acc(t), i * 1024)] for i, t in enumerate(lsend)]
        E += spread(mf, [(wr, 4, 19)])
        E += [wait(lgkm=0)] + ls(1) + [barrier()] + ls(2)
        rorder = xsend + mine
        for i, t in enumerate(rorder): E.append(ds_read(4, RB + 4 * i, LR, keep.index(t) * 1024))
        PK = SET[0]
        for i, t in enumerate(rorder):
            for r in range(0, 4, 2): E.append(V(f"v_pk_add_f32 v[{acc(t)+r}:{acc(t)+r+1}], v[{acc(t)+r}:{acc(t)+r+1}], v[{RB+4*i+r}:{RB+4*i+r+1}]"))
            if t in xsend:
                k = xsend.index(t)
                E += [V(f"v_cvt_pk_bf16_f32 v{PK+2*k}, v{acc(t)}, v{acc(t)+1}"), V(f"v_cvt_pk_bf16_f32 v{PK+2*k+1}, v{acc(t)+2}, v{acc(t)+3}")]
                if k & 1 or k == len(xsend) - 1: E += dstore(4, PK + 4 * (k >> 1), L16, sWS, f"s{sXo}", (k >> 1) * 1024)
        E += st(84) + ls(3)
        n = len(mine); nl = (n + 1) // 2
        E += [V(f"v_mov_b32 v{POLL2}, 1"), V(f"v_mov_b32 v{VFL}, {SLAB-128}"), wait(vm=0), S("s_mov_b64 exec, 1")] + dstore(1, POLL2, VFL, sWS, f"s{sXo}", 0)
        if Cfg.poll_nt:
            SLOW.append([label(f"L_xp{v}"), bload(1, POLL, VFL, sWS, f"s{sXp}", 0, 'sc1'), branch("s_branch", f"L_xp{v}_b")])
            pl = [branch("s_cbranch_vccz", f"L_xp{v}"), bload(1, POLL, VFL, sWS, f"s{sXp}", 0, 'nt'), label(f"L_xp{v}_b")]
        else: pl = [bload(1, POLL, VFL, sWS, f"s{sXp}", 0, 'sc1')]
        E += [label(f"L_x{v}")] + pl + [
              S(f"s_sub_u32 s{sCnt}, s{sCnt}, 1"), S(f"s_cmp_lt_i32 s{sCnt}, 0"), branch("s_cbranch_scc1", f"L_x{v}_ok"), wait(vm=0),
              V(f"v_readfirstlane_b32 s{sT2}, v{POLL}"), S(f"s_cmp_eq_u32 s{sT2}, 1"), branch("s_cbranch_scc1", f"L_x{v}_ok"),
              raw(f"s_sleep {Cfg.xsleep2}"), branch("s_branch", f"L_x{v}"), label(f"L_x{v}_ok"), S("s_mov_b64 exec, -1")]
        ld = lambda pol: [bload(4, RB + 4 * k, L16, sWS, f"s{sXp}", k * 1024, pol) for k in range(nl)]
        SLOW.append([label(f"L_xl{v}")] + ld('sc1') + [branch("s_branch", f"L_xl{v}_b")])
        E += [branch("s_cbranch_vccz", f"L_xl{v}")] + ld('') + [label(f"L_xl{v}_b")]
        E += st(85) + ls(4)
        E += [wait(vm=0)] + ls(6)
        U = RB + 16
        k = 0
        while k < n:
            pair = Cfg.widest and k + 1 < n and mine[k] // 5 == mine[k + 1] // 5
            d = acc(mine[k])
            for h in range(2 if pair else 1):
                a_ = acc(mine[k + h]); r0 = RB + 2 * (k + h)
                E += [V(f"v_lshlrev_b32 v{U}, 16, v{r0}"), V(f"v_and_b32 v{U+1}, 0xffff0000, v{r0}"), V(f"v_lshlrev_b32 v{U+2}, 16, v{r0+1}"), V(f"v_and_b32 v{U+3}, 0xffff0000, v{r0+1}")]
                for r in range(0, 4, 2): E.append(V(f"v_pk_add_f32 v[{a_+r}:{a_+r+1}], v[{a_+r}:{a_+r+1}], v[{U+r}:{U+r+1}]"))
                E += [V(f"v_cvt_pk_bf16_f32 v{d+2*h}, v{a_}, v{a_+1}"), V(f"v_cvt_pk_bf16_f32 v{d+2*h+1}, v{a_+2}, v{a_+3}")]
            t = mine[k]
            E += [S(f"s_add_u32 s{sT0}, s{sOb}, {(t//5)*20480}")]
            if pair: E += [V(f"v_permlane16_swap_b32 v{d}, v{d+2}"), V(f"v_permlane16_swap_b32 v{d+1}, v{d+3}"), bstore(4, d, VO2, sOUT, f"s{sT0}", (t % 5) * 32, Cfg.out_pol)]
            else: E += [bstore(2, d, VO, sOUT, f"s{sT0}", (t % 5) * 32, Cfg.out_pol)]
            k += 2 if pair else 1
        E += st(86) + st(77, True)
        if Cfg.stamps == 6:
            E += [wait(vm=0)] + ls(5) + [V(f"v_mov_b32 v{T+1}, 0"), V(f"v_mov_b32 v{T}, s{sCnt}"), bstore(1, T, T + 1, sWS, f"s{sStamp+2}", 4 * 106)]
            for i, r in enumerate([64, 66, 68, 70, 92, 94]): E += [V(f"v_mov_b32 v{T}, s{r}"), bstore(1, T, T + 1, sWS, f"s{sStamp+2}", 4 * (100 + i))]
            E += [V(f"v_mov_b32 v{T}, s96"), bstore(1, T, T + 1, sWS, f"s{sStamp+2}", 4 * 107)]
        if Cfg.dbgst and ks == 1:
            E += [S(f"s_cmp_lg_u32 s{sWave}, 4"), branch("s_cbranch_scc1", f"L_dbgend{v}"), S(f"s_cmp_lg_u32 s2, {Cfg.dbgst}"), branch("s_cbranch_scc1", f"L_dbgend{v}"),
                  S("s_mov_b64 exec, 1"), V("v_mov_b32 v1, 0")]
            for i, r in enumerate(DREG):
                E += [S(f"s_sub_u32 s{r}, s{r}, s{sStamp+2}"), S(f"s_lshr_b32 s{r}, s{r}, 8"), S(f"s_and_b32 s{r}, s{r}, 0x3ff"), S(f"s_lshl_b32 s{r}, s{r}, {12 + 10*(i&1)}"), V(f"v_mov_b32 v{2+i}, s{r}"),
                      raw(f"buffer_atomic_or v{2+i}, v1, s[{sDBG}:{sDBG+3}], 0 offen offset:{8*(i>>1)+4} sc1")]
            E += [label(f"L_dbgend{v}")]
        E += [raw("s_endpgm")]
        E, _ = finish(E)
        C += E
    return C

def gen_kernel(name):
    C = [raw(f".globl {name}\n.p2align 8\n.type {name},@function\n{name}:\nKSTART:", 'label')]
    C += [S("s_cmp_lt_u32 s2, 256"), branch("s_cbranch_scc1", "L_go"), raw("s_endpgm"), label("L_go")]
    C += [raw("s_load_dwordx16 s[56:71], s[0:1], 0")]
    if Cfg.ent: C += [raw("s_memtime s[92:93]"), raw("s_memrealtime s[100:101]")]
    if Cfg.dbgst: C += [raw(f"s_memtime s[{sStamp+2}:{sStamp+3}]")] + [S(f"s_mov_b32 s{r}, 0") for r in DREG]
    if Cfg.delay:
        C += [S(f"s_bitcmp0_b32 s2, {Cfg.delay_bit}"), branch("s_cbranch_scc1", "L_nodelay"), S(f"s_mov_b32 s{sT0}, {Cfg.delay // 1024}"), label("L_delay"), raw("s_sleep 16"),
              S(f"s_sub_u32 s{sT0}, s{sT0}, 1"), S(f"s_cmp_lg_u32 s{sT0}, 0"), branch("s_cbranch_scc1", "L_delay"), label("L_nodelay")]
    C += [V("v_lshrrev_b32 v1, 6, v0"),
          S(f"s_and_b32 s{sB}, s2, 7"), S(f"s_lshl_b32 s{sB}, s{sB}, 2"), V(f"v_readfirstlane_b32 s{sWave}, v1"),
          S(f"s_lshr_b32 s{sT0}, s2, 6"), S(f"s_add_u32 s{sB}, s{sB}, s{sT0}"), S(f"s_bfe_u32 s{sG}, s2, 0x30003")]
    C += [S(f"s_bfe_u32 s{sT0}, s{sWave}, 0x10001"), S(f"s_lshl_b32 s{sT2}, s{sG}, 2"), S(f"s_add_u32 s{sT2}, s{sT2}, s{sT0}"), S(f"s_lshl_b32 s{sWbase}, s{sT2}, 8"),
          S(f"s_cmp_lt_u32 s{sWave}, 4"), branch("s_cbranch_scc1", "L_w3"),
          S(f"s_and_b32 s{sT1}, s{sWave}, 1"), S(f"s_lshl_b32 s{sT2}, s{sT1}, 10"),
          S(f"s_lshl_b32 s{sLdsKV}, s{sT0}, 13"), S(f"s_add_u32 s{sLdsKV}, s{sLdsKV}, s{sT2}"),
          S(f"s_mul_i32 s{sLdsX}, s{sT0}, 10240"), S(f"s_add_u32 s{sLdsX}, s{sLdsX}, s{sT2}"),
          S(f"s_mul_i32 s{sXbase}, s{sB}, 204800"), S(f"s_mul_i32 s{sT2}, s{sT0}, 102400"), S(f"s_add_u32 s{sXbase}, s{sXbase}, s{sT2}")]
    if Cfg.rot:
        C += [S(f"s_lshr_b32 s{sRho}, s2, 6"), S(f"s_mul_i32 s{sRho}, s{sRho}, 5"), S(f"s_add_u32 s{sRho}, s{sRho}, 1"), S(f"s_lshr_b32 s{sRho}, s{sRho}, 1"),
              S(f"s_add_u32 s{sRho}, s{sRho}, s{sG}"), S(f"s_and_b32 s{sT2}, s2, 7"), S(f"s_add_u32 s{sRho}, s{sRho}, s{sT2}")]
        for _ in range(2): C += [S(f"s_sub_u32 s{sT2}, s{sRho}, 10"), S(f"s_cmp_ge_u32 s{sRho}, 10"), S(f"s_cselect_b32 s{sRho}, s{sT2}, s{sRho}")]
        if Cfg.rotn == 8: C += [S(f"s_and_b32 s{sRho}, s2, 7")]
        if Cfg.rotn == 16:
            C += [S(f"s_and_b32 s{sRho}, s{sRho}, 1"), S(f"s_mul_i32 s{sRho}, s{sRho}, 5"), S(f"s_and_b32 s{sT2}, s2, 7"), S(f"s_add_u32 s{sRho}, s{sRho}, s{sT2}"),
                  S(f"s_sub_u32 s{sT2}, s{sRho}, 10"), S(f"s_cmp_ge_u32 s{sRho}, 10"), S(f"s_cselect_b32 s{sRho}, s{sT2}, s{sRho}")]
        if Cfg.rotn == 2: C += [S(f"s_and_b32 s{sRho}, s{sRho}, 1"), S(f"s_mul_i32 s{sRho}, s{sRho}, 5")]
        if Cfg.rotn == 4: C += [S(f"s_and_b32 s{sRho}, s{sRho}, 3"), S(f"s_mul_i32 s{sRho}, s{sRho}, 5"), S(f"s_lshr_b32 s{sRho}, s{sRho}, 1")]
    C = fix_hazards(C)
    w2, r2 = gen_w2(); w3, r3 = gen_w3()
    C += w2 + w3 + gen_o() + [label("KEND")] + r2 + r3 + flat(SLOW)
    for k, tag, par in CTX.stubs:
        C += [label(f"L_stub{k}"), raw(f"s_call_b64 s[{sRet}:{sRet+1}], L_rare_{tag}_{par}", 'branch'), branch("s_branch", f"L_back{k}")]
    return C

def kd(name, vgpr, accum, sgpr=102):
    return f""".section .rodata,"a"
.p2align 6
.amdhsa_kernel {name}
  .amdhsa_next_free_vgpr {vgpr}
  .amdhsa_next_free_sgpr {sgpr}
  .amdhsa_accum_offset {accum}
  .amdhsa_group_segment_fixed_size 0
  .amdhsa_kernarg_size 64
  .amdhsa_user_sgpr_count 2
  .amdhsa_user_sgpr_kernarg_segment_ptr 1
  .amdhsa_system_sgpr_workgroup_id_x 1
.end_amdhsa_kernel
"""

HDR = open('standalone__mha_block_cached__near_ridge.s.ref').read().split('; Override launch')[0]
def main(path):
    k1 = "standalone__mha_block_cached__near_ridge_kernel"
    s = HDR
    s += f"; @launch grid=(256,1,1) block=(512,1,1) lds={LDS_BYTES}\n"
    s += '.amdgcn_target "amdgcn-amd-amdhsa--gfx950"\n.text\n'
    s += emit(gen_kernel(k1))
    s += kd(k1, 256, 256)
    open(path, 'w').write(s)
if __name__ == '__main__':
    for a in sys.argv[2:]:
        k, v = a.split('=', 1); setattr(Cfg, k, eval(v))
    main(sys.argv[1] if len(sys.argv) > 1 else 'mha2.s')
```

```python
import sys, math, struct
from ir import *

SLOT = 16384
NSLOT = 10
NW, NX = 6, 3
WPERM = [4, 5, 1, 3, 0, 2]
def wslot(s): return WPERM[s % NW] * SLOT
def xbuf(u): return NW * SLOT + (u % NX) * 20480
WTAB = sum((((WPERM[(m + 1) % NW] - WPERM[m]) & 15) << (4 * m)) for m in range(NW))
LDS_BYTES = 163840
O_BYTES = 32 * 128 * 10 * 1024
XCH_OFF = O_BYTES
SLAB = 4096 + 128
XCH_WG = 8 * SLAB
MODE_LDS = LDS_BYTES - 4
WS_BYTES = XCH_OFF + 256 * XCH_WG
QSCALE = math.log2(math.e) / math.sqrt(128.0)
THR = 16384.0
def f2u(x): return "0x%08x" % struct.unpack('<I', struct.pack('<f', x))[0]

sK, sV, sW, sX, sWS, sWO, sOUT, sDBG = 8, 12, 16, 20, 24, 28, 76, 80
sWave, sRound, sB, sG = 32, 33, 34, 35
sKVbase, sWbase, sXbase, sLdsKV, sLdsX = 36, 37, 38, 39, 40
sT0, sT1 = 41, 42
sKpos, sVpos, sD, sCnt, sXd, sLoop = 43, 44, 45, 49, 50, 51
sRet = 46
sOst = 48
sKX, sFlag = 52, 53
sT2, sT3 = 54, 55
sQS, sC16, sC32, sCX = 72, 73, 74, 75
sTK, sTV, sCnt2 = 88, 89, 90
sTau = 64
sMode = 91
sRho, sT4 = 3, 87
sOoff = 56
sStamp = 84
DBG_OFF = 96 << 20

class Cfg:
    stamps = False
    dbgst = False
    dsl = None
    rot = True
    orot = True
    warm0 = False
    delay = 0
    delay_bit = 7
    LA = 7
    kv_pol = 'nt'
    touch_pol = ''
    touch_at = []
    warm = True
    xsleep = 8
    kv_same = False
    fake_wot = False
    capfrom = 0
    cap0 = False
    place2 = {}
    cap = 0
    drain = {}
    wo2n = 39
    jit = 1
    wo2pol = ''
    place = {'wo': ('A0', 0), 'code': ('A0', 1)}
    oprio = [6, 12, 18]
    v_pol = None
    ent = False
    tlbwarm = 9
    tlbu = 1
    slabmall = True
    widest = True
    pro_pol = ''
    wx_pol = ''
    poll_nt = False
    taumul = 8
    taush = 2
    taumask = 15
    kvgrp = 1
    pace = 0.0
    lead = 2
    tbatch = []
    qr3 = 18
    qr2 = 15
    orh = 20
    od0 = 1
    od1 = 24
    ofirst = True
    qd0 = 0
    qprio = 1
    ofast_pol = ''
    fast0 = False
    out_pol = ''
    dsplit = 100
    rotn = 10
    late = 8
    smpure = 0.7
    pp = False
    pp_a = 1
    pp_b = 0
    ostamp = False
    xsleep2 = 2
    dual = True
    fast = True
    codetouch2 = True
    codetouch = True
    qcut = 4
    prio = 2
    no_sm = False
    no_dma = False
    no_exp = False
    no_chk = False
    no_ds = False
    no_adv = False
    ost_pol = 'sc1'
    old_pol = 'sc1'
    o_skip = 0
    o_vm1 = 10
    smend = 3

RT4 = {7: 90, 39: 91, 45: 92, 73: 93, 82: 94, 83: 95}
STAMP3 = (0, 1, 3, 5, 7, 39, 41, 43, 45, 73, 75, 76, 77, 80, 81, 82, 83, 84, 85, 86)
DSL = {(1, 0): 0, (41, 0): 1, (45, 0): 2, (73, 0): 3, (1, 1): 4, (41, 1): 5, (45, 1): 6, (73, 1): 7, (80, 2): 8, (82, 2): 9, (83, 2): 10, (84, 2): 11, (85, 2): 12, (86, 2): 13}
sDS = 4
DREG = [4, 5, 6, 7, 101, 92, 93, 94, 95, 96, 97, 98, 99, 100]
def stamp(t, k, real=False):
    if Cfg.dbgst:
        if real: return []
        dsl = DSL if not Cfg.dsl else {(2 * b + 1, Cfg.dsl[0]): i for i, b in enumerate(Cfg.dsl[1:])}
        hits = [(r, i) for (kk, r), i in dsl.items() if kk == k]
        if not hits: return []
        out = [raw(f"s_memtime s[{sStamp}:{sStamp+1}]"), wait(lgkm=0)]
        for r, i in hits:
            out += [S(f"s_cmp_eq_u32 s{sRound}, {r}"), S(f"s_cselect_b32 s{DREG[i]}, s{sStamp}, s{DREG[i]}")]
        return out
    if not Cfg.stamps: return []
    if Cfg.stamps == 6: return []
    if Cfg.stamps == 4 and not real and k in RT4:
        Cfg.stamps = 5; r = stamp(t, k) + stamp(t, RT4[k], True); Cfg.stamps = 4; return r
    if Cfg.stamps in (3, 4) and k not in STAMP3: return []
    return [raw(f"{'s_memrealtime' if real else 's_memtime'} s[{sStamp}:{sStamp+1}]"), wait(lgkm=0), V(f"v_mov_b32 v{t}, s{sStamp}"), V(f"v_mov_b32 v{t+1}, 0"),
            S(f"s_and_b32 s{sStamp+1}, s{sRound}, 1"), S(f"s_lshl_b32 s{sStamp+1}, s{sStamp+1}, 9"), S(f"s_add_u32 s{sStamp+1}, s{sStamp+1}, s{sStamp+2}"),
            bstore(1, t, t + 1, sWS, f"s{sStamp+1}", 4 * k, tag=('misc',))]

def item_slot(n): return (n % NSLOT) * SLOT
def kidx(t): return 0 if t == 0 else 2 * t - 1
def vidx(t): return 2 * t + 2

class Wave:
    def __init__(self, nq):
        self.nq = nq
        n = nq
        p = 0
        self.O = p; p += 32 * n
        self.Q = p; p += 16 * n
        self.NM = p; p += 4 * n
        self.S = p; p += 8 * n
        self.P = p; p += 8 * n
        self.L = p; p += n
        self.LT = p; p += n
        self.T = p; p += 4
        self.aN = p; p += 2
        self.aT = p; p += 4
        p = (p + 3) & ~3
        self.F = p; self.NF = 8; p += 32
        self.dummy = p; p += 1
        self.tmp = p; p += 3
        if nq == 2:
            self.vK = p; self.vV = p + 1; self.vW = p + 2; self.vX = p + 3; self.vTch = p + 4; self.oVoff = p + 5; self.oPoll = p + 6; p += 7
        assert p <= 256, p
        self.end = p
        setsz = 32 + 4 * n
        if nq == 3:
            self.set = [self.Q, self.S]
        else:
            q = (p + 3) & ~3
            self.set = [self.Q, q]
            assert q + setsz <= 256
        self.tag = f"w{nq}"
        self.fpos = 0
    def o(self, T, j): return self.O + (T * self.nq + j) * 4
    def q(self, s, j): return self.Q + (s * self.nq + j) * 4
    def nm(self, j): return self.NM + 4 * j
    def s(self, kb, j): return self.S + (kb * self.nq + j) * 4
    def p(self, par, j): return self.P + (par * self.nq + j) * 4
    def fa(self, st, T): return self.set[st] + 4 * T
    def fb(self, st, j): return self.set[st] + 32 + 4 * j

def spread(base, fillers):
    ins = [[] for _ in range(len(base) + 1)]
    for groups, lo, hi in fillers:
        n = len(groups)
        if n == 0: continue
        hi = min(hi, len(base)); lo = min(lo, hi)
        span = hi - lo
        for k, gI in enumerate(groups):
            pos = lo + (k * span) // n + 1 if span > 0 else lo
            ins[min(pos, len(base))].extend(gI)
    out = list(ins[0])
    for i, b in enumerate(base):
        out.append(b); out.extend(ins[i + 1])
    return out

def frag_K(w, s, kb, first_c):
    def reads(f): return [ds_read(4, f, w.aN + (s & 1), kb * 4096 + (s >> 1) * 2048)]
    def mf(f):
        out = []
        for j in range(w.nq):
            c = w.s(kb, j) if s > 0 else (None if first_c == 'zero' else w.nm(j))
            out.append(mfma(w.s(kb, j), f, w.q(s, j), c))
        return out
    return dict(reads=reads, mf=mf, pre=[])
def frags_QK(w, first_c='negm', pre=()):
    fr = [frag_K(w, s, kb, first_c) for s in range(4) for kb in range(2)]
    fr[0]['pre'] = list(pre)
    return fr
def frag_V(w, db, par, zero):
    def reads(f): return [ds_read(2, f + 2 * hh, w.aT + (db & 3), hh * 4096 + (db >> 2) * 2048, tr=True) for hh in range(2)]
    def mf(f): return [mfma(w.o(db, j), f, w.p(par, j), None if zero else w.o(db, j)) for j in range(w.nq)]
    return dict(reads=reads, mf=mf, pre=[])
def frags_PV(w, par, zero=False, pre=()):
    fr = [frag_V(w, db, par, zero) for db in range(8)]
    fr[0]['pre'] = list(pre)
    return fr

def stream(w, frags, preloaded, nxt, fillers=(), lead=()):
    LA = Cfg.LA
    allf = list(frags) + list(nxt[:LA])
    head = []
    def issue(i):
        f = allf[i]
        return ([] if Cfg.no_adv else list(f['pre'])) + ([] if Cfg.no_ds else f['reads'](w.F + 4 * ((w.fpos + i) % w.NF)))
    for i in range(preloaded, min(LA, len(allf))): head += issue(i)
    base = list(lead); extra = []
    for i, f in enumerate(frags):
        m = f['mf'](w.F + 4 * ((w.fpos + i) % w.NF))
        base += m
        post = []
        if i + LA < len(allf) and i + LA >= preloaded: post += issue(i + LA)
        if post: extra.append(([post], len(base) - 1, len(base)))
    body = spread(base, list(extra) + list(fillers))
    w.fpos = (w.fpos + len(frags)) % w.NF
    return head + body

def softmax_groups(w, par):
    G = []
    k = 0
    for kb in range(2):
        for j in range(w.nq):
            for h in range(2):
                t0 = w.T + 2 * (k & 1); t1 = t0 + 1; k += 1
                sr = w.s(kb, j) + 2 * h
                G.append([V(f"v_exp_f32 v{t0}, v{sr}")])
                G.append([V(f"v_exp_f32 v{t1}, v{sr+1}")])
                lt = w.LT + j
                if kb == 0 and h == 0:
                    G.append(('late', [V(f"v_add_f32 v{lt}, v{t0}, v{t1}"), V(f"v_cvt_pk_bf16_f32 v{w.p(par,j)+2*kb+h}, v{t0}, v{t1}")]))
                else:
                    G.append(('late', [V(f"v_add_f32 v{lt}, v{lt}, v{t0}"), V(f"v_cvt_pk_bf16_f32 v{w.p(par,j)+2*kb+h}, v{t0}, v{t1}"),
                                       V(f"v_add_f32 v{lt}, v{lt}, v{t1}")]))
    if Cfg.no_sm: return [[V(f"v_mov_b32 v{w.LT+j}, 1.0")] for j in range(w.nq)]
    if Cfg.no_exp:
        for gI in G:
            if not isinstance(gI, tuple): gI[0] = V(gI[0].text.replace('v_exp_f32', 'v_mov_b32'))
    out = []; pend = None
    for gI in G:
        if isinstance(gI, tuple):
            pend = gI[1]
        else:
            out.append(gI)
            if pend is not None:
                out.append(pend); pend = None
    if pend is not None: out.append(pend)
    return out

class Ctx:
    def __init__(self): self.stubs = []; self.n = 0
CTX = Ctx()

SLOW = []
def dstore(n, src, voff, srd_, soff, imm, tag=None, pol=''):
    if not Cfg.dual: return [bstore(n, src, voff, srd_, soff, imm, 'sc1', tag=tag)]
    k = len(SLOW)
    SLOW.append([label(f"L_slow{k}"), bstore(n, src, voff, srd_, soff, imm, 'sc1'), branch("s_branch", f"L_slowb{k}")])
    return [branch("s_cbranch_vccz", f"L_slow{k}"), bstore(n, src, voff, srd_, soff, imm, pol, tag=tag), label(f"L_slowb{k}")]
def mode_vcc(): return [S(f"s_and_b32 s{sT1}, s{sMode}, s{sMode if Cfg.fast0 else sRound}"), S("s_cselect_b64 vcc, -1, 0")]
def mode_read(t):
    return [[V(f"v_mov_b32 v{t}, {MODE_LDS}"), ds_read(1, t, t, 0)],
            [V(f"v_readfirstlane_b32 s{sT1}, v{t}"), S(f"s_cmp_eq_u32 s{sRound}, 0"), S(f"s_cselect_b32 s{sMode}, s{sT1}, s{sMode}")]]

def check_cmp(w):
    if Cfg.no_chk: return []
    out = []
    if w.nq == 3: out.append(V(f"v_max3_f32 v{w.tmp}, v{w.LT}, v{w.LT+1}, v{w.LT+2}"))
    else: out.append(V(f"v_max_f32 v{w.tmp}, v{w.LT}, v{w.LT+1}"))
    out.append(I(f"v_cmp_nge_f32 vcc, {f2u(THR)}, v{w.tmp}", 'valu', wr={('s', 'vcc')}, rd=regs(w.tmp)))
    return out
def check_branch(w, par):
    if Cfg.no_chk: return []
    k = CTX.n; CTX.n += 1
    CTX.stubs.append((k, w.tag, par))
    return [branch("s_cbranch_vccnz", f"L_stub{k}"), label(f"L_back{k}")]
def l_accum(w, first=False):
    if first: return [V(f"v_mov_b32 v{w.L+j}, v{w.LT+j}") for j in range(w.nq)]
    return [V(f"v_add_f32 v{w.L+j}, v{w.L+j}, v{w.LT+j}") for j in range(w.nq)]
def sm_fillers(w, par, lo):
    nm = 8 * w.nq
    return [(softmax_groups(w, par) + [check_cmp(w)], lo, nm - Cfg.smend)]

def xlane(op, r, t):
    return [V(f"v_mov_b32 v{t}, v{r}"), V(f"v_permlane32_swap_b32 v{r}, v{t}"), V(f"{op} v{r}, v{r}, v{t}"),
            V(f"v_mov_b32 v{t}, v{r}"), V(f"v_permlane16_swap_b32 v{r}, v{t}"), V(f"{op} v{r}, v{r}, v{t}")]

def tile_max(w, j, dst):
    a, b = w.s(0, j), w.s(1, j)
    return [V(f"v_max3_f32 v{dst}, v{a}, v{a+1}, v{a+2}"), V(f"v_max3_f32 v{dst}, v{dst}, v{a+3}, v{b}"),
            V(f"v_max3_f32 v{dst}, v{dst}, v{b+1}, v{b+2}"), V(f"v_max_f32 v{dst}, v{dst}, v{b+3}")]

def first_max(w):
    out = []
    for j in range(w.nq): out += tile_max(w, j, w.LT + j)
    seqs = [xlane("v_max_f32", w.LT + j, w.T + j) for j in range(w.nq)]
    for k in range(6):
        for sq in seqs: out.append(sq[k])
    for j in range(w.nq):
        for r in range(4): out.append(V(f"v_sub_f32 v{w.nm(j)+r}, 0, v{w.LT+j}"))
        for kb in range(2):
            for r in range(4): out.append(V(f"v_sub_f32 v{w.s(kb,j)+r}, v{w.s(kb,j)+r}, v{w.LT+j}"))
    return out

def rare_routine(w, par):
    out = [label(f"L_rare_{w.tag}_{par}"), nop(15)]
    for j in range(w.nq):
        d = w.LT + j; f = w.T + 1
        out += tile_max(w, j, d)
        out += xlane("v_max_f32", d, w.T)
        out.append(V(f"v_max_f32 v{d}, 0, v{d}"))
        out.append(V(f"v_sub_f32 v{f}, 0, v{d}"))
        out.append(V(f"v_exp_f32 v{f}, v{f}"))
        for r in range(4): out.append(V(f"v_sub_f32 v{w.nm(j)+r}, v{w.nm(j)+r}, v{d}"))
        for kb in range(2):
            for r in range(4): out.append(V(f"v_sub_f32 v{w.s(kb,j)+r}, v{w.s(kb,j)+r}, v{d}"))
        out.append(V(f"v_mul_f32 v{w.L+j}, v{w.L+j}, v{f}"))
        for T in range(8):
            for r in range(4): out.append(V(f"v_mul_f32 v{w.o(T,j)+r}, v{w.o(T,j)+r}, v{f}"))
    for gI in softmax_groups(w, par): out += gI
    out.append(nop(3))
    out.append(raw(f"s_setpc_b64 s[{sRet}:{sRet+1}]", 'branch'))
    return fix_hazards(out)

def q_reads(w, st, sl):
    G = []
    for j in range(w.nq): G.append([ds_read(4, w.fb(st, j), w.aN + sl, j * 2048)])
    for T in range(8):
        for hh in range(2):
            G.append([ds_read(2, w.fa(st, T) + 2 * hh, w.aT + ((T >> 1) & 1), hh * 4096 + (T >> 2) * 2048 + (T & 1) * 8, tr=True)])
    return G
def q_mfmas(w, st, zero):
    return [mfma(w.o(T, j), w.fa(st, T), w.fb(st, j), None if zero else w.o(T, j)) for T in range(8) for j in range(w.nq)]

def q_pack_groups(w, s):
    G = []
    for j in range(w.nq):
        for half in range(2):
            a = w.o(2 * s + half, j)
            for r in range(4): G.append([V(f"v_mul_f32 v{a+r}, s{sQS}, v{a+r}")])
            G.append([V(f"v_cvt_pk_bf16_f32 v{w.q(s,j)+2*half}, v{a}, v{a+1}")])
            G.append([V(f"v_cvt_pk_bf16_f32 v{w.q(s,j)+2*half+1}, v{a+2}, v{a+3}")])
    return G
def q_pack_fillers(w):
    n = w.nq
    rng = [(2 * n + 2, 5 * n), (5 * n, 8 * n), (8 * n, 11 * n), (11 * n, 14 * n - 1)]
    return [(q_pack_groups(w, s), rng[s][0], rng[s][1]) for s in range(4)]

def l_reduce(w):
    out = []
    seqs = [xlane("v_add_f32", w.L + j, w.T + j) for j in range(w.nq)]
    for k in range(6):
        for sq in seqs: out.append(sq[k])
    for j in range(w.nq): out.append(V(f"v_rcp_f32 v{w.L+j}, v{w.L+j}"))
    out += [V(f"v_mbcnt_lo_u32_b32 v{w.tmp}, -1, 0"), V(f"v_mbcnt_hi_u32_b32 v{w.tmp}, -1, v{w.tmp}"), V(f"v_lshlrev_b32 v{w.tmp}, 4, v{w.tmp}")]
    return out
def epi_groups(w, s):
    G = []
    for j in range(w.nq):
        d = w.q(s, j)
        for half in range(2):
            a = w.o(2 * s + half, j)
            for r in range(4): G.append([V(f"v_mul_f32 v{a+r}, v{a+r}, v{w.L+j}")])
            G.append([V(f"v_cvt_pk_bf16_f32 v{d+2*half}, v{a}, v{a+1}")])
            G.append([V(f"v_cvt_pk_bf16_f32 v{d+2*half+1}, v{a+2}, v{a+3}")])
        G.append([S(f"s_add_u32 s{sT1}, s{sOst}, {s*10240}")] + dstore(4, d, w.tmp, sWS, f"s{sT1}", j * 1024, tag=('O', 0, True), pol=Cfg.ofast_pol))
    return G
def epi_fillers(w):
    n = w.nq
    rng = [(2 * n + 2, 4 * n + 2), (4 * n + 2, 6 * n + 2), (6 * n + 2, 8 * n), (8 * n, 8 * n)]
    return [([[i] for i in l_reduce(w)], 0, 2 * n + 1)] + [(epi_groups(w, s), rng[s][0], rng[s][1]) for s in range(4)]

def flat(G): return [i for g in G for i in g]
def one(L): return [[i] for i in L]

CAPN = [0]
def dma_kv(w, kind, t, nxt_round, tag):
    srd_ = sK if kind == 'K' else sV
    voff = w.vK if kind == 'K' else w.vV
    n = kidx(t) if kind == 'K' else vidx(t)
    lds = item_slot(n)
    G = []
    for a in range(2):
        for seg in range(2):
            G.append([S(f"s_add_u32 m0, s{sLdsKV}, {lds + a*4096 + seg*2048 - seg*128}"),
                      S(f"s_add_u32 s{sT0}, s{sT4}, {a*4096}"),
                      dma(voff, srd_, f"s{sT0}", seg * 128, Cfg.kv_pol if (kind == 'K' or Cfg.v_pol is None) else Cfg.v_pol, tag=tag)])
    if Cfg.cap and n >= Cfg.capfrom:
        for g in G:
            if Cfg.cap0:
                CAPN[0] += 1
                g[0:0] = [S(f"s_cmp_lg_u32 s{sRound}, 0"), branch("s_cbranch_scc1", f"L_cap{CAPN[0]}"), wait(vm=Cfg.cap - 1), label(f"L_cap{CAPN[0]}")]
            else: g.insert(2, wait(vm=Cfg.cap - 1))
    G[0] = [S(f"s_add_u32 s{sT4}, s{sTau}, {t*8192}"), S(f"s_and_b32 s{sT4}, s{sT4}, 0x1ffff"), S(f"s_add_u32 s{sT4}, s{sT4}, s{sKVbase}")] + G[0]
    return G
POL = ['']
def rot_off(u, unit, base):
    if not Cfg.rot: return [S(f"s_add_u32 s{sT4}, s{base}, {u*unit}")]
    if Cfg.rotn == 88:
        if u < 2: return [S(f"s_add_u32 s{sT4}, s{base}, {u*unit}")]
        return [S(f"s_add_u32 s{sT4}, s{sRho}, {u-2}"), S(f"s_and_b32 s{sT4}, s{sT4}, 7"), S(f"s_add_u32 s{sT4}, s{sT4}, 2"),
                S(f"s_mul_i32 s{sT4}, s{sT4}, {unit}"), S(f"s_add_u32 s{sT4}, s{sT4}, s{base}")]
    if Cfg.rotn == 19:
        if u < 1: return [S(f"s_add_u32 s{sT4}, s{base}, {u*unit}")]
        return [S(f"s_cmp_ge_u32 s{sRho}, {10-u}"), S(f"s_cselect_b32 s{sT4}, {u-9}, {u}"), S(f"s_add_u32 s{sT4}, s{sT4}, s{sRho}"),
                S(f"s_mul_i32 s{sT4}, s{sT4}, {unit}"), S(f"s_add_u32 s{sT4}, s{sT4}, s{base}")]
    return [S(f"s_cmp_ge_u32 s{sRho}, {10-u}"), S(f"s_cselect_b32 s{sT4}, {u-10}, {u}"), S(f"s_add_u32 s{sT4}, s{sT4}, s{sRho}"),
            S(f"s_mul_i32 s{sT4}, s{sT4}, {unit}"), S(f"s_add_u32 s{sT4}, s{sT4}, s{base}")]
def dma_w(w, s, nxt_round, tag):
    lds = wslot(s)
    goff = (s & 1) * 32 * 8192 + (512 if nxt_round else 0)
    G = []
    for hh in range(2):
        for seg in range(2):
            G.append([S(f"s_add_u32 m0, s{sLdsKV}, {lds + hh*4096 + seg*2048 - seg*128}"),
                      S(f"s_add_u32 s{sT0}, s{sT4}, {goff + hh*32768}"),
                      dma(w.vW, sW, f"s{sT0}", seg * 128, POL[0], tag=tag)])
    G[0] = rot_off(s >> 1, 64 * 8192, sWbase) + G[0]
    return G
def dma_x(w, u, tag):
    G = []
    for i in range(5):
        G.append([S(f"s_add_u32 m0, s{sLdsX}, {xbuf(u) + i*2048}"),
                  S(f"s_add_u32 s{sT0}, s{sT4}, {i*20480}"),
                  dma(w.vX, sX, f"s{sT0}", 0, POL[0], tag=tag)])
    G[0] = rot_off(u, 128, sXbase) + G[0]
    return G
def touch_kv(w, kind):
    srd_, ptr = (sK, sTK) if kind == 'K' else (sV, sTV)
    return [[bload(1, w.dummy, w.vTch, srd_, f"s{ptr}", 0, Cfg.touch_pol, tag=('misc',)), S(f"s_add_u32 s{ptr}, s{ptr}, 4096")]]

NAMES = {}
for _t in range(16):
    NAMES[kidx(_t)] = ('K', _t); NAMES[vidx(_t)] = ('V', _t)
def first_use(kind, i):
    if kind == 'W': return i
    if kind == 'X': return 2 * i
    if kind == 'K': return 20 if i == 0 else 19 + i
    if kind == 'V': return 21 + i
    if kind == 'O': return 3
    if kind == 'P': return 35

def loader_schedule(w):
    sch = {i: [] for i in range(37)}
    r0 = lambda G, lab: [[S(f"s_cmp_lg_u32 s{sRound}, 0"), branch("s_cbranch_scc1", lab)] + flat(G) + [label(lab)]]
    sch[0] += r0(dma_w(w, 2, False, ('W', 2, 'cond')), "L_r0a") + dma_x(w, 1, ('X', 1, False)) + r0(dma_w(w, 3, False, ('W', 3, 'cond')), "L_r0b")
    sch[1] += dma_w(w, 4, False, ('W', 4, False)) + dma_x(w, 2, ('X', 2, False))
    sch[2] += dma_w(w, 5, False, ('W', 5, False))
    for s in range(NW, 20): sch[max(s - NW + 1, 3)] += dma_w(w, s, False, ('W', s, False))
    for u in range(NX, 10): sch[2 * (u - NX) + 2] += dma_x(w, u, ('X', u, False))
    if not Cfg.no_dma:
        first = {0: 17, 1: 15, 2: 18, 3: 16, 4: 19, 5: 20, 6: 20, 7: 20, 8: 18, 9: 19}
        for n in range(10): sch[first[n]] += dma_kv(w, *NAMES[n], False, NAMES[n] + (False,))
        for n in range(10, 33):
            if n not in NAMES: continue
            k, t = NAMES[n - 10]
            last = (20 + t) if k == 'K' else min(22 + t, 36)
            rem = [m for m in range(10, 33) if m in NAMES]
            paced = 21 + int(rem.index(n) * Cfg.pace)
            when = max(last + 1, min(paced, first_use(*NAMES[n]) - Cfg.lead))
            sch[when] += dma_kv(w, *NAMES[n], False, NAMES[n] + (False,))
    for idx, ss in ((33, (2, 3)), (34, (0, 1))):
        for s_ in ss: sch[idx] += r0(dma_w(w, s_, True, ('W', s_, 'next')), f"L_r0w{s_}")
    w4first = lambda lab: [S(f"s_lshl_b32 s{sT1}, s{sRound}, 3"), S(f"s_add_u32 s{sT1}, s{sT1}, s{sWave}"), S(f"s_cmp_lg_u32 s{sT1}, 4"), branch("s_cbranch_scc1", lab)]
    sch[7] = [w4first("L_p0") + [S(f"s_lshl_b32 s{sT1}, s{sB}, 3"), V(f"v_mov_b32 v{w.tmp+2}, s{sT1}"), bload(1, w.oPoll, w.tmp + 2, sDBG, 0, 0, 'sc1', tag=('cond',)), label("L_p0")]] + sch[7]
    sch[14] += [w4first("L_m0") + [V(f"v_readfirstlane_b32 s{sT1}, v{w.oPoll}"), S(f"s_bfe_u32 s{sT2}, s{sT1}, 0x80010"), S(f"s_lshr_b32 s{sT1}, s{sT1}, 24"),
                 S(f"s_bcnt1_i32_b32 s{sT1}, s{sT1}"), S(f"s_lshl_b32 s{sT1}, s{sT1}, 8"), S(f"s_or_b32 s{sT1}, s{sT1}, s{sT2}"), S(f"s_cmp_eq_u32 s{sT1}, 0x1ff"),
                 S(f"s_cselect_b32 s{sT1}, {3 if Cfg.fast else 0}, 0"), V(f"v_mov_b32 v{w.tmp+1}, s{sT1}"), V(f"v_mov_b32 v{w.tmp+2}, {MODE_LDS}"),
                 raw(f"ds_write_b32 v{w.tmp+2}, v{w.tmp+1}"), label("L_m0")]]
    for name, (idx, rnd) in Cfg.place2.items():
        t = w.tmp + 1
        if name == 'wo':
            body = lane_id(t) + [V(f"v_min_u32 v{t}, 39, v{t}"), V(f"v_lshlrev_b32 v{t}, 7, v{t}"), S(f"s_lshl_b32 s{sT1}, s2, 2"), S(f"s_add_u32 s{sT1}, s{sT1}, s{sWave}"),
                    S(f"s_sub_u32 s{sT1}, s{sT1}, 4"), S(f"s_mul_i32 s{sT1}, s{sT1}, 5120"), bload(1, w.dummy, t, sWO, f"s{sT1}", tag=('cond',))]
        else:
            body = lane_id(t) + [V(f"v_lshlrev_b32 v{t}, 7, v{t}"), V(f"v_min_u32 v{t}, {SLAB-128}, v{t}"),
                    S(f"s_lshl_b32 s{sT1}, s2, 3"), S(f"s_add_u32 s{sT1}, s{sT1}, s{sWave}"), S(f"s_mul_i32 s{sT1}, s{sT1}, {SLAB}"), S(f"s_add_u32 s{sT1}, s{sT1}, {XCH_OFF}"),
                    bload(1, w.dummy, t, sWS, f"s{sT1}", 0, 'sc1', tag=('cond',)), S(f"s_sub_u32 s{sT1}, s{sT1}, {4*SLAB}"), bload(1, w.dummy, t, sWS, f"s{sT1}", 0, 'sc1', tag=('cond',))]
        sch[idx] += [[S(f"s_cmp_lg_u32 s{sRound}, {rnd}"), branch("s_cbranch_scc1", f"L_p2{name}")] + body + [label(f"L_p2{name}")]]
    mr = mode_read(w.T)
    sch[17] = [mr[0]] + sch[17]; sch[18] = [mr[1]] + sch[18]
    w4last = lambda lab: [S(f"s_lshl_b32 s{sT1}, s{sRound}, 3"), S(f"s_add_u32 s{sT1}, s{sT1}, s{sWave}"), S(f"s_cmp_lg_u32 s{sT1}, 12"), branch("s_cbranch_scc1", lab)]
    sch[29] = [w4last("L_p1") + [V(f"v_mov_b32 v{w.tmp+2}, s{sFlag}"), bload(1, w.oPoll, w.tmp + 2, sDBG, 0, 0, 'sc1', tag=('cond',)), label("L_p1")]] + sch[29]
    sch[34] += [w4last("L_g1_back") + gate("L_g1", w.oPoll, w.tmp + 2, 0) + [label("L_g1_back")]]
    for u in range(2):
        alt = flat(dma_x(w, 0, ('X', 0, 'next'))) if u == 0 else []
        sch[35 + u] += [[S(f"s_cmp_lg_u32 s{sRound}, 0"), branch("s_cbranch_scc1", f"L_opre{u}")] + alt + [label(f"L_opre{u}_back"), I("; opre", 'comment', tag=('phantom', 0 if Cfg.o_skip else 10))]]
    if not Cfg.no_dma:
        for i, idx in enumerate(sorted(Cfg.touch_at)): sch[idx] += touch_kv(w, 'KV'[i & 1])
        for idx, goff in Cfg.tbatch:
            sch[idx] += [[S(f"s_add_u32 s{sT0}, s{sKVbase}, {goff}"), bload(1, w.dummy, w.vTch, sK, f"s{sT0}", 0, Cfg.touch_pol, tag=('misc',)),
                          bload(1, w.dummy, w.vTch, sV, f"s{sT0}", 0, Cfg.touch_pol, tag=('misc',))]]
    return sch

def lane_id(r): return [V(f"v_mbcnt_lo_u32_b32 v{r}, -1, 0"), V(f"v_mbcnt_hi_u32_b32 v{r}, -1, v{r}")]
def lane_setup(w):
    t = w.F + 8
    lane, i16, g, a, b, c = t, t + 1, t + 2, t + 3, t + 4, t + 5
    o = lane_id(lane) + [V(f"v_and_b32 v{i16}, 15, v{lane}"), V(f"v_lshrrev_b32 v{g}, 4, v{lane}")]
    o += [V(f"v_lshrrev_b32 v{a}, 1, v{i16}"), V(f"v_xor_b32 v{a}, v{a}, v{g}"), V(f"v_lshlrev_b32 v{a}, 4, v{a}"),
          V(f"v_lshl_add_u32 v{w.aN}, v{i16}, 7, v{a}"), V(f"v_xor_b32 v{w.aN+1}, 64, v{w.aN}")]
    o += [V(f"v_lshrrev_b32 v{a}, 2, v{lane}"), V(f"v_and_b32 v{b}, 6, v{a}"),
          V(f"v_bfe_u32 v{c}, v{lane}, 1, 1"), V(f"v_xor_b32 v{b}, v{b}, v{c}"), V(f"v_lshlrev_b32 v{b}, 4, v{b}"),
          V(f"v_lshl_add_u32 v{b}, v{a}, 7, v{b}"),
          V(f"v_and_b32 v{c}, 1, v{lane}"), V(f"v_lshl_add_u32 v{w.aT}, v{c}, 3, v{b}")]
    for dq in range(1, 4): o.append(V(f"v_xor_b32 v{w.aT+dq}, {dq<<5}, v{w.aT}"))
    return o
def voff_setup(w):
    t = w.F + 16
    r8, p, a, b, row = t, t + 1, t + 2, t + 3, t + 4
    o = [V(f"v_bfe_u32 v{row}, v0, 3, 4"),
         V(f"v_and_b32 v{p}, 7, v0"),
         V(f"v_lshrrev_b32 v{a}, 1, v{row}"), V(f"v_xor_b32 v{a}, v{a}, v{p}"), V(f"v_lshlrev_b32 v{a}, 4, v{a}"),
         V(f"v_and_b32 v{b}, 6, v{row}"), V(f"v_xor_b32 v{b}, v{b}, v{p}"), V(f"v_lshlrev_b32 v{b}, 4, v{b}"),
         V(f"v_and_b32 v{p}, 12, v{row}"), V(f"v_add_u32 v{p}, v{p}, v{row}"), V(f"v_lshl_add_u32 v{w.vW}, v{p}, 13, v{b}"),
         V(f"v_mul_u32_u24 v{p}, 1280, v{row}"), V(f"v_add_u32 v{w.vX}, v{p}, v{a}")]
    o2 = [V(f"v_lshl_add_u32 v{w.vK}, v{row}, 8, v{a}"), V(f"v_lshl_add_u32 v{w.vV}, v{row}, 8, v{b}"),
          V(f"v_and_b32 v{p}, 63, v0"), V(f"v_lshlrev_b32 v{p}, 6, v{p}"), V(f"v_bfe_u32 v{r8}, v0, 6, 1"), V(f"v_lshl_add_u32 v{w.vTch}, v{r8}, 12, v{p}")]
    return o, o2

def add_addr(regs_, delta):
    if delta == 0: return []
    if isinstance(delta, str): return [V(f"v_add_u32 v{r}, {delta}, v{r}") for r in regs_]
    return [V(f"v_add_u32 v{r}, {delta & 0xffffffff:#x}, v{r}") for r in regs_]

def to_w(w, cur):
    t = w.T
    return add_addr([w.aT + 2, w.aT + 3], item_slot(vidx(0)) - cur) + add_addr([w.aT], wslot(0) - cur) + [
        V(f"v_bfe_u32 v{t}, v{w.aT}, 3, 2"), V(f"v_and_b32 v{w.aT}, 0xffffffe7, v{w.aT}"), V(f"v_lshlrev_b32 v{t}, 4, v{t}"),
        V(f"v_xor_b32 v{w.aT}, v{w.aT}, v{t}"), V(f"v_xor_b32 v{w.aT+1}, 64, v{w.aT}")]
def to_v(w): return [V(f"v_xor_b32 v{w.aT}, 64, v{w.aT+2}"), V(f"v_xor_b32 v{w.aT+1}, 64, v{w.aT+3}")]

def finish(code, pending=None, pre=()):
    c, q = add_lgkm_waits(code, pending)
    return fix_hazards(c, pre), q

def loop_finish(B, q, before):
    B1, q1 = finish(B, q, pre=before[-12:])
    B2, q2 = finish(B, q1, pre=B1[-12:])
    B3, q3 = finish(B, q2, pre=B2[-12:])
    assert emit(B2) == emit(B3) and q2 == q3
    assert len(q) <= len(q2) and q == q2[len(q2) - len(q):], "entry LDS queue must be a suffix of the steady-state queue"
    B4 = fix_hazards(B2, before[-12:])
    assert emit(fix_hazards(B4, B4[-12:])) == emit(B4)
    return B4, q2

def srd(base, ptr, nbytes):
    return [S(f"s_mov_b32 s{base}, s{ptr}"), S(f"s_mov_b32 s{base+1}, s{ptr+1}"), S(f"s_mov_b32 s{base+2}, {nbytes}"), S(f"s_mov_b32 s{base+3}, 0x20000")]

def round_advance():
    return [S(f"s_add_u32 s{sKVbase}, s{sKVbase}, 262144"), S(f"s_add_u32 s{sWbase}, s{sWbase}, 512"),
            S(f"s_add_u32 s{sOst}, s{sOst}, {8*10240}"), S(f"s_add_u32 s{sRound}, s{sRound}, 1"), S(f"s_cmp_lt_u32 s{sRound}, 2")]

def flag_add(t, val, lab):
    return [V(f"v_mov_b32 v{t}, {val}"), V(f"v_mov_b32 v{t+1}, s{sFlag}"), S("s_mov_b64 exec, 1"),
            I(f"buffer_atomic_or v{t}, v{t+1}, s[{sDBG}:{sDBG+3}], 0 offen sc1", 'vstore', rd=regs(t, 2) | regs(sDBG, 4, 's'), tag=('cond',)),
            S("s_mov_b64 exec, -1"), label(lab)]

def common_scalars():
    C = srd(sK, 58, 134217728) + srd(sV, 60, 134217728) + srd(sWO, 64, 5242880) + srd(sOUT, 66, 6553600) + srd(sDBG, 68, 256) \
        + srd(sWS, 70, (160 << 20) if Cfg.stamps else WS_BYTES)
    C += [S(f"s_lshr_b32 s{sT2}, s{sWbase}, 8"),
          S(f"s_lshl_b32 s{sT3}, s{sB}, 5"), S(f"s_add_u32 s{sT3}, s{sT3}, s{sT2}"), S(f"s_lshl_b32 s{sKVbase}, s{sT3}, 17"),
          S(f"s_mul_i32 s{sOst}, s{sT3}, 40960"),] + ([S(f"s_and_b32 s{sKVbase}, s{sKVbase}, 0x20000")] if Cfg.kv_same else []) + [
          S(f"s_lshl_b32 s{sFlag}, s{sB}, 1"), S(f"s_lshr_b32 s{sT2}, s{sG}, 2"), S(f"s_add_u32 s{sFlag}, s{sFlag}, s{sT2}"), S(f"s_lshl_b32 s{sFlag}, s{sFlag}, 2"),
          S(f"s_mul_i32 s{sTau}, s{sT3}, {Cfg.taumul}"), S(f"s_lshr_b32 s{sT2}, s{sT3}, {Cfg.taush}"), S(f"s_add_u32 s{sTau}, s{sTau}, s{sT2}"),
          S(f"s_and_b32 s{sTau}, s{sTau}, {Cfg.taumask}"), S(f"s_lshl_b32 s{sTau}, s{sTau}, 13"),
          S(f"s_mov_b32 s{sRound}, 0"), S(f"s_mov_b32 s{sMode}, 0"), S(f"s_mov_b32 s{sQS}, {f2u(QSCALE)}"), S(f"s_mov_b32 s{sC16}, {WTAB:#x}"), S(f"s_mov_b32 s{sC32}, {2*SLOT}"),
          S(f"s_mov_b32 s{sCX}, 20480"), S(f"s_mov_b32 s{sTK}, s{sKVbase}"), S(f"s_mov_b32 s{sTV}, s{sKVbase}")]
    if Cfg.stamps:
        C += [S(f"s_lshl_b32 s{sStamp+2}, s2, 3"), S(f"s_add_u32 s{sStamp+2}, s{sStamp+2}, s{sWave}"), S(f"s_lshl_b32 s{sStamp+2}, s{sStamp+2}, 10"),
              S(f"s_add_u32 s{sStamp+2}, s{sStamp+2}, {DBG_OFF}")]
    return C
def wave_addr0(w, j0mul, j0add):
    aN = [w.aN, w.aN + 1]; aT = [w.aT + i for i in range(4)]
    C = [S(f"s_bfe_u32 s{sT0}, s{sWave}, 0x10001"), S(f"s_lshl_b32 s{sT0}, s{sT0}, 13"),
         S(f"s_and_b32 s{sT1}, s{sWave}, 1"), S(f"s_mul_i32 s{sT1}, s{sT1}, {j0mul*1024}"), S(f"s_add_u32 s{sT1}, s{sT1}, {j0add*1024}"),
         S(f"s_add_u32 s{sOst}, s{sOst}, s{sT1}"), S(f"s_lshl_b32 s{sT1}, s{sT1}, 1"),
         S(f"s_sub_u32 s{sKX}, s{sT0}, s{sT1}"),
         S(f"s_add_u32 s{sT1}, s{sT1}, {xbuf(0)}")]
    return C + add_addr(aT, f"s{sT0}") + add_addr(aN, f"s{sT1}") + to_w(w, 0)

def gen_w3():
    w = Wave(3); nm = 24
    st = lambda k, real=False: stamp(w.tmp + 1, k, real)
    aN = [w.aN, w.aN + 1]; aT = [w.aT + i for i in range(4)]
    C = [label("L_w3"), raw("s_waitcnt lgkmcnt(0)")]
    if Cfg.codetouch:
        t = w.tmp + 1
        C += [raw(f"s_getpc_b64 s[{sRet}:{sRet+1}]"), label("L_pc0"),
              S(f"s_sub_u32 s{sRet}, s{sRet}, L_pc0-KSTART"), S(f"s_subb_u32 s{sRet+1}, s{sRet+1}, 0"),
              S(f"s_lshr_b32 s{sT0}, s2, 3"), S(f"s_lshl_b32 s{sT0}, s{sT0}, 2"), S(f"s_add_u32 s{sT0}, s{sT0}, s{sWave}"), S(f"s_lshl_b32 s{sT0}, s{sT0}, 7"),
              V(f"v_and_b32 v{t}, 7, v0"), V(f"v_lshlrev_b32 v{t}, 14, v{t}"), V(f"v_add_u32 v{t}, s{sT0}, v{t}"),
              V(f"v_min_u32 v{t}, KEND-KSTART-4, v{t}"),
              I(f"global_load_dword v{w.dummy}, v{t}, s[{sRet}:{sRet+1}]", 'vload', wr=regs(w.dummy), rd=regs(t) | regs(sRet, 2, 's'))]
    if Cfg.warm0:
        t = w.tmp + 1
        C += srd(sW, 62, 5242880) + srd(sX, 56, 6553600)
        C += [V(f"v_and_b32 v{t}, 63, v0"), V(f"v_lshlrev_b32 v{t}, 7, v{t}"),
              S(f"s_mul_i32 s{sT0}, s{sB}, 204800"), S(f"s_mul_i32 s{sT1}, s{sG}, 25600"), S(f"s_add_u32 s{sT0}, s{sT0}, s{sT1}"),
              S(f"s_mul_i32 s{sT1}, s{sWave}, 5760"), S(f"s_add_u32 s{sT0}, s{sT0}, s{sT1}"),
              V(f"v_bfe_u32 v{t+1}, v0, 3, 3"), V(f"v_min_u32 v{t+1}, 4, v{t+1}"), V(f"v_lshlrev_b32 v{t+1}, 13, v{t+1}"),
              V(f"v_and_b32 v{w.T}, 7, v0"), V(f"v_lshl_add_u32 v{t+1}, v{w.T}, 7, v{t+1}"),
              S(f"s_lshl_b32 s{sT1}, s{sB}, 2"), S(f"s_add_u32 s{sT1}, s{sT1}, s{sWave}"), S(f"s_mul_i32 s{sT1}, s{sT1}, {5*8192}"),
              S(f"s_lshl_b32 s{sT2}, s{sG}, 10"), S(f"s_add_u32 s{sT1}, s{sT1}, s{sT2}"),
              barrier()] + ([bload(1, w.dummy, t + 1, sW, f"s{sT1}")] if Cfg.warm0 == 1 else []) + [bload(1, w.dummy, t, sX, f"s{sT0}")]
    C += common_scalars()
    t = w.tmp + 1
    C += [S(f"s_cmp_lg_u32 s{sWave}, 0"), branch("s_cbranch_scc1", "L_noxcc"), raw(f"s_getreg_b32 s{sT0}, hwreg(HW_REG_XCC_ID, 0, 3)"),
          S(f"s_lshl_b32 s{sT0}, 0x1000000, s{sT0}"), S(f"s_lshl_b32 s{sT1}, 0x10000, s{sG}"), S(f"s_or_b32 s{sT0}, s{sT0}, s{sT1}"), S(f"s_lshl_b32 s{sT1}, s{sB}, 3"),
          V(f"v_mov_b32 v{t}, s{sT0}"), V(f"v_mov_b32 v{t+1}, s{sT1}"), S("s_mov_b64 exec, 1"),
          I(f"buffer_atomic_or v{t}, v{t+1}, s[{sDBG}:{sDBG+3}], 0 offen sc1", 'vstore', rd=regs(t, 2) | regs(sDBG, 4, 's')),
          S("s_mov_b64 exec, 0xff"), V(f"v_mul_u32_u24 v{t}, {SLAB}, v0"), V(f"v_mov_b32 v{t+1}, 0"), S(f"s_mul_i32 s{sT0}, s2, {XCH_WG}"), S(f"s_add_u32 s{sT0}, s{sT0}, {XCH_OFF + SLAB - 128}"),
          bstore(1, t + 1, t, sWS, f"s{sT0}", 0, 'sc1'),
          S("s_mov_b64 exec, -1"), label("L_noxcc")]
    C += lane_setup(w) + wave_addr0(w, 3, 0)
    def x_wo():
        t = w.tmp + 1
        return lane_id(t) + [V(f"v_min_u32 v{t}, 39, v{t}"), V(f"v_lshlrev_b32 v{t}, 7, v{t}"),
              S(f"s_lshl_b32 s{sT0}, s2, 2"), S(f"s_add_u32 s{sT0}, s{sT0}, s{sWave}"), S(f"s_mul_i32 s{sT0}, s{sT0}, 5120"), bload(1, w.dummy, t, sWO, f"s{sT0}")]
    def x_code():
        t = w.tmp + 1
        return [raw(f"s_getpc_b64 s[{sRet}:{sRet+1}]"), label("L_pc1"),
              S(f"s_add_u32 s{sRet}, s{sRet}, L_o-L_pc1"), S(f"s_addc_u32 s{sRet+1}, s{sRet+1}, 0")] + lane_id(t) + [
              S(f"s_lshl_b32 s{sT0}, s{sWave}, 13"), V(f"v_lshlrev_b32 v{t}, 7, v{t}"), V(f"v_add_u32 v{t}, s{sT0}, v{t}"), V(f"v_min_u32 v{t}, KEND-L_o-4, v{t}"),
              I(f"global_load_dword v{w.dummy}, v{t}, s[{sRet}:{sRet+1}]", 'vload', wr=regs(w.dummy), rd=regs(t) | regs(sRet, 2, 's'))]
    def x_slab():
        t = w.tmp + 1
        return lane_id(t) + [V(f"v_lshlrev_b32 v{t}, 7, v{t}"), V(f"v_min_u32 v{t}, {SLAB-128}, v{t}"),
              S(f"s_lshl_b32 s{sT0}, s2, 3"), S(f"s_add_u32 s{sT0}, s{sT0}, s{sWave}"), S(f"s_mul_i32 s{sT0}, s{sT0}, {SLAB}"), S(f"s_add_u32 s{sT0}, s{sT0}, {XCH_OFF}"),
              bload(1, w.dummy, t, sWS, f"s{sT0}", 0, 'sc1'), S(f"s_add_u32 s{sT0}, s{sT0}, {4*SLAB}"), bload(1, w.dummy, t, sWS, f"s{sT0}", 0, 'sc1')]
    def x_jit():
        return [S(f"s_mul_i32 s{sT0}, s2, 11"), S(f"s_and_b32 s{sT0}, s{sT0}, 31"), label("L_jit"), raw(f"s_sleep {Cfg.jit}"), S(f"s_sub_u32 s{sT0}, s{sT0}, 1"), branch("s_cbranch_scc0", "L_jit")]
    def x_wo2():
        r = [i if i.kind != 'vload' else bload(1, w.dummy, w.tmp + 1, sWO, f"s{sT0}", 0, Cfg.wo2pol) for i in x_wo()]
        r[2] = V(f"v_min_u32 v{w.tmp+1}, {Cfg.wo2n}, v{w.tmp+1}")
        return r
    def extras(where):
        out_ = []
        for name, fn in (('wo', x_wo), ('code', x_code), ('slab', x_slab), ('jit', x_jit), ('wo2', x_wo2)):
            pl = Cfg.place.get(name)
            if pl and pl[0] == where:
                out_ += [S(f"s_cmp_lg_u32 s{sRound}, {pl[1]}"), branch("s_cbranch_scc1", f"L_ex_{name}")] + fn() + [label(f"L_ex_{name}")]
        return out_
    C, _ = finish(C)
    out = C
    def wadv():
        return [S(f"s_bfe_i32 s{sD}, s{sC16}, s{sCnt}"), S(f"s_lshl_b32 s{sD}, s{sD}, 14"), S(f"s_add_u32 s{sCnt}, s{sCnt}, 4"),
                S(f"s_cmp_eq_u32 s{sCnt}, {0x40000 + 4*NW:#x}"), S(f"s_cselect_b32 s{sCnt}, 0x40000, s{sCnt}")] + add_addr(aT[:2], f"s{sD}")
    def xadv():
        return [S(f"s_add_u32 s{sCnt2}, s{sCnt2}, 1"), S(f"s_cmp_eq_u32 s{sCnt2}, {NX}"), S(f"s_cselect_b32 s{sXd}, {(-(NX-1)*20480) & 0xffffffff:#x}, s{sCX}"),
                S(f"s_cselect_b32 s{sCnt2}, 0, s{sCnt2}")] + add_addr(aN, f"s{sXd}")
    def qstage(s, zero=False, extra=()):
        p = s & 1
        adv_ = wadv() + (xadv() if p == 1 else []) + list(extra)
        L = [barrier()] + spread(q_mfmas(w, 1 - p, zero), [(q_reads(w, p, p), 0, Cfg.qr3), (one(adv_), Cfg.qr3 + 1, 23)]) + [wait(lgkm=0)]
        k = [i for i, c in enumerate(L) if c.kind == 'mfma'][Cfg.qcut]
        return L[:k], L[k:]
    C = [label("L_w3_round")] + st(0) + [barrier()] + st(1)
    C += flat(q_reads(w, 0, 0))
    C += add_addr(aT[:2], wslot(1) - wslot(0))
    C += [S(f"s_mov_b32 s{sCnt}, 0x40004"), S(f"s_mov_b32 s{sCnt2}, {(xbuf(0)-NW*SLOT)//20480}"), S(f"s_mov_b32 s{sLoop}, 8")]
    C += [wait(lgkm=0)]
    h1, t1 = qstage(1, zero=True); he, te = qstage(2); ho, to = qstage(3)
    C += h1 + t1 + [wait(vm=0)] + extras('Q2') + he
    C, q = finish(C); out += C
    B = [label("L_w3_q")] + te + ho + to + he
    B += [S(f"s_sub_u32 s{sLoop}, s{sLoop}, 1"), S(f"s_cmp_lg_u32 s{sLoop}, 0"), branch("s_cbranch_scc1", "L_w3_q")]
    Bc, q2 = loop_finish(B, q, out)
    out += Bc
    curT = wslot(20); curN = xbuf(10)
    h19, t19 = qstage(19, extra=add_addr(aN, f"s{sKX}") + add_addr(aN, item_slot(kidx(0)) - curN) + to_v(w))
    mr = mode_read(w.T)
    C = mr[0] + te + mr[1] + extras('Q18') + h19 + t19
    C += st(40) + [barrier()] + st(41)
    k0 = frags_QK(w, 'zero')
    k1 = frags_QK(w, 'negm', pre=add_addr(aN, item_slot(kidx(1)) - item_slot(kidx(0))))
    w.fpos = 0
    C += stream(w, k0, 0, k1, lead=q_mfmas(w, 1, False), fillers=q_pack_fillers(w))
    C += first_max(w)
    C += st(42) + [barrier()] + st(43)
    C += flat(softmax_groups(w, 0)) + l_accum(w, first=True)
    v0 = frags_PV(w, 0, zero=True)
    C += extras('A0')
    C += [S(f"s_mov_b32 s{sKpos}, {item_slot(kidx(1))}"), S(f"s_mov_b32 s{sVpos}, {item_slot(vidx(0))}"), S(f"s_mov_b32 s{sLoop}, 7")]
    def adv(pos, rr):
        return [S(f"s_cmp_ge_u32 s{pos}, {LDS_BYTES - 2*SLOT}"), S(f"s_cselect_b32 s{sD}, {(2*SLOT - LDS_BYTES) & 0xffffffff:#x}, s{sC32}"),
                S(f"s_add_u32 s{pos}, s{pos}, s{sD}")] + add_addr(rr, f"s{sD}")
    def pv(par): return frags_PV(w, par, pre=adv(sVpos, aT))
    def qk(): return frags_QK(w, 'negm', pre=adv(sKpos, aN))
    E_ = 8 - Cfg.late
    def sm_part(late, par, extra=()):
        G = softmax_groups(w, par) + [check_cmp(w)]
        nl = 3 * len(late)
        cut = int(len(G) * Cfg.smpure) if Cfg.late < 8 else 0
        return flat(G[:cut]) + stream(w, late, Cfg.LA, qk(), fillers=[(G[cut:], 0, max(nl - Cfg.smend, 1))] + list(extra)) + check_branch(w, par)
    C += stream(w, k1 + v0[:E_], Cfg.LA, v0[E_:] + qk())
    C += st(44) + [barrier()] + st(45)
    C += sm_part(v0[E_:], 1)
    C, q = finish(C, q2, pre=out[-12:]); out += C
    B = [label("L_w3_a")]
    for par in (1, 0):
        B += stream(w, qk() + pv(par)[:E_], Cfg.LA, pv(par)[E_:] + qk(), fillers=[(one(l_accum(w)), 4, 10)])
        B += [barrier()]
        B += sm_part(pv(par)[E_:], 1 - par)
    B += [S(f"s_sub_u32 s{sLoop}, s{sLoop}, 1"), S(f"s_cmp_lg_u32 s{sLoop}, 0"), branch("s_cbranch_scc1", "L_w3_a")]
    Bc, q2 = loop_finish(B, q, out)
    out += Bc
    C = st(74) + l_accum(w) + mode_vcc() + extras('A15')
    C += stream(w, pv(1), 0, [], fillers=epi_fillers(w))
    C += st(75) + st(77, True)
    curT = item_slot(vidx(15)); curN = item_slot(kidx(16))
    C += to_w(w, curT) + add_addr(aN, xbuf(0) - curN) + [V(f"v_subrev_u32 v{r}, s{sKX}, v{r}") for r in aN]
    C += round_advance()
    C += [branch("s_cbranch_scc1", "L_w3_round"), branch("s_branch", "L_o")]
    C, q = finish(C, q2, pre=out[-12:]); out += C
    assert not q
    return out, rare_routine(w, 0) + rare_routine(w, 1)

def gen_w2():
    w = Wave(2); nm = 16
    st = lambda k, real=False: stamp(w.tmp + 1, k, real)
    aN = [w.aN, w.aN + 1]; aT = [w.aT + i for i in range(4)]
    POL[0] = Cfg.wx_pol
    sch = loader_schedule(w)
    items = lambda idx: sch[idx]
    vo1, vo2 = voff_setup(w)
    en = lambda r: [raw(f"s_memtime s[{r}:{r+1}]")] if Cfg.ent else []
    pro = vo1 + [raw("s_waitcnt lgkmcnt(0)")] + en(94) + srd(sW, 62, 5242880) + srd(sX, 56, 6553600)
    POL[0] = Cfg.pro_pol
    pro += flat(dma_w(w, 0, False, ('W', 0, True))) + flat(dma_x(w, 0, ('X', 0, True))) + flat(dma_w(w, 1, False, ('W', 1, True))) + ([barrier()] if Cfg.warm0 else [])
    pro += en(96)
    pro += vo2 + [V(f"v_mov_b32 v{w.oVoff}, 0"), V(f"v_mov_b32 v{w.oPoll}, 0")] + common_scalars() + lane_setup(w) + wave_addr0(w, 2, 6)
    if Cfg.ent:
        pro += en(98) + [raw("s_waitcnt lgkmcnt(0)"), V(f"v_mov_b32 v{w.tmp+2}, 0")]
        for i, r in enumerate((92, 94, 96, 98, 100)): pro += [V(f"v_mov_b32 v{w.tmp+1}, s{r}"), bstore(1, w.tmp + 1, w.tmp + 2, sWS, f"s{sStamp+2}", 4 * (120 + i), tag=('misc',))]
    C = [label("L_w2_round")] + st(76, True)
    def bar(idx, lgkm=None):
        b = wait(vm=63, lgkm=lgkm); b.tag = (('need', idx), lgkm)
        return st(2 * idx) + [b, barrier()] + st(2 * idx + 1)
    prio = lambda p: [raw(f"s_setprio {p}")] if Cfg.prio == 2 else []
    curT = wslot(0); curN = xbuf(0)
    C += prio(Cfg.qprio)
    for s in range(20):
        if s < 19:
            newT = wslot(s + 1); newN = xbuf((s + 1) >> 1)
            adv_ = add_addr(aT[:2], newT - curT) + add_addr(aN, newN - curN); curT, curN = newT, newN
        else:
            adv_ = add_addr(aN, f"s{sKX}") + add_addr(aN, item_slot(kidx(0)) - curN) + to_v(w)
        C += bar(s, lgkm=0)
        ex = []
        if s == 3:
            ex = [([[S(f"s_lshl_b32 s{sT1}, s{sRound}, 3"), S(f"s_add_u32 s{sT1}, s{sT1}, s{sWave}"), S(f"s_cmp_lg_u32 s{sT1}, 12"),
                     branch("s_cbranch_scc1", "L_nofl1"), S(f"s_and_b32 s{sT1}, s{sG}, 3"), S(f"s_lshl_b32 s{sT1}, 1, s{sT1}")] + flag_add(w.tmp + 1, f"s{sT1}", "L_nofl1")], 11, 12)]
        if s == 0: C += flat(q_reads(w, 0, 0)) + flat(items(0)) + adv_
        else: C += spread(q_mfmas(w, (s - 1) & 1, s == 1), [(q_reads(w, s & 1, s & 1), 0, Cfg.qr2), (items(s), Cfg.qd0, nm - 2), (one(adv_), Cfg.qr2 + 1, 16)] + ex)
    C += bar(20, lgkm=0)
    def qk(t, fc='negm'): return frags_QK(w, fc, pre=add_addr(aN, item_slot(kidx(t)) - item_slot(kidx(t - 1))) if t else [])
    def pv(t): return frags_PV(w, t & 1, zero=(t == 0), pre=add_addr(aT, item_slot(vidx(t)) - item_slot(vidx(t - 1))) if t else [])
    w.fpos = 0
    C += stream(w, qk(0, 'zero'), 0, qk(1), lead=q_mfmas(w, 1, False), fillers=[(items(20), 0, 2 * nm)] + q_pack_fillers(w))
    C += first_max(w)
    C += flat(softmax_groups(w, 0))
    for t in range(15):
        nx = qk(t + 2) if t < 14 else []
        if Cfg.pp:
            C += prio(Cfg.pp_a)
            C += bar(21 + t)
            C += stream(w, qk(t + 1) + pv(t), Cfg.LA, nx, fillers=[(one(l_accum(w, first=(t == 0))), 3, 8)])
            C += prio(Cfg.pp_b)
            G = softmax_groups(w, (t + 1) & 1) + [check_cmp(w)]
            sm = [g for g in G]
            it_ = items(21 + t)
            base = [I("; g", 'comment') for _ in sm]
            merged = spread(base, [(it_, 0, len(sm))])
            k = 0
            for c in merged:
                if c.kind == 'comment' and c.text == "; g": C += sm[k]; k += 1
                else: C.append(c)
            C += check_branch(w, (t + 1) & 1)
        else:
            C += prio(0)
            if 21 + t in Cfg.drain: C += [wait(vm=Cfg.drain[21 + t])]
            C += bar(21 + t)
            it_ = items(21 + t); h = (len(it_) * Cfg.dsplit + 99) // 100
            C += stream(w, qk(t + 1), Cfg.LA, pv(t), fillers=[(it_[:h], 0, nm), (one(l_accum(w, first=(t == 0))), 3, 8)])
            C += prio(1)
            C += stream(w, pv(t), Cfg.LA, nx, fillers=[(it_[h:], 1, nm + 1)] + sm_fillers(w, (t + 1) & 1, 2))
            C += check_branch(w, (t + 1) & 1)
    C += prio(0)
    C += bar(36)
    C += flat(items(36))
    C += st(74) + l_accum(w) + mode_vcc()
    C += stream(w, pv(15), 0, [], fillers=epi_fillers(w))
    C += st(75) + st(77, True)
    curT = item_slot(vidx(15)); curN = item_slot(kidx(15))
    C += to_w(w, curT) + add_addr(aN, xbuf(0) - curN) + [V(f"v_subrev_u32 v{r}, s{sKX}, v{r}") for r in aN]
    C += round_advance()
    C += [branch("s_cbranch_scc1", "L_w2_round"), branch("s_branch", "L_o")]
    VM = ('dma', 'vload', 'vstore')
    def resolve(prefix, first):
        res = {}
        q = [(c.tag[0], c.tag[1]) if len(c.tag) == 3 and c.tag[2] in (True, 'next') else None for c in prefix if c.kind in VM and c.tag != ('cond',)]
        for c in C:
            if c.kind in VM:
                if c.tag == ('cond',): continue
                if c.tag[-1] in ('cond', 'next') and not first: continue
                q.append((c.tag[0], c.tag[1]) if len(c.tag) == 3 and c.tag[2] in (False, 'cond') else None)
            elif c.kind == 'comment' and c.tag and c.tag[0] == 'phantom':
                if not first: q += [None] * c.tag[1]
            elif c.kind == 'wait' and isinstance(c.tag[0], tuple):
                idx = c.tag[0][1]
                last = -1
                for k, it in enumerate(q):
                    if it is not None and first_use(it[0], it[1]) <= idx: last = k
                res[idx] = min(63, len(q) - 1 - last)
        return res
    r1 = resolve(pro, True); r2 = resolve(C, False)
    C2 = []
    for c in C:
        if c.kind == 'wait' and isinstance(c.tag[0], tuple):
            idx = c.tag[0][1]; n = min(r1[idx], r2[idx]); lg = c.tag[1]
            if abs(r1[idx] - r2[idx]) > 1:
                C2 += [S(f"s_cmp_eq_u32 s{sRound}, {0 if r1[idx] > r2[idx] else 1}"), branch("s_cbranch_scc1", f"L_rw{idx}"), wait(vm=n), label(f"L_rw{idx}")]
                n = max(r1[idx], r2[idx])
            c.text = f"s_waitcnt vmcnt({n})" + (f" lgkmcnt({lg})" if lg is not None else ""); c.tag = (n, lg)
        C2.append(c)
    C = C2
    pro, _ = finish(pro)
    C, q = finish(C, [], pre=pro[-12:])
    assert not q
    return pro + C + gen_opre(w), rare_routine(w, 0) + rare_routine(w, 1)

OSLOT = 40960
def oslot(u): return ((u + 2) & 3) * OSLOT
def o_voff(nh, VOFF, lane, a, b):
    if nh == 1 and Cfg.fake_wot:
        return [V(f"v_lshrrev_b32 v{a}, 2, v{lane}"), V(f"v_mul_u32_u24 v{a}, 320, v{a}"), V(f"v_and_b32 v{VOFF}, 3, v{lane}"), V(f"v_lshl_add_u32 v{VOFF}, v{VOFF}, 4, v{a}")]
    if nh == 0: return [V(f"v_lshlrev_b32 v{VOFF}, 4, v{lane}")]
    return [V(f"v_lshrrev_b32 v{a}, 2, v{lane}"), V(f"v_mul_u32_u24 v{a}, 1280, v{a}"), V(f"v_bfe_u32 v{b}, v{lane}, 4, 1"), V(f"v_lshlrev_b32 v{b}, 1, v{b}"),
            V(f"v_and_b32 v{VOFF}, 3, v{lane}"), V(f"v_xor_b32 v{VOFF}, v{VOFF}, v{b}"), V(f"v_lshl_add_u32 v{VOFF}, v{VOFF}, 4, v{a}")]
def o_base(nh, sBase, sLd):
    C = [S(f"s_and_b32 s{sLd}, s{sWave}, 1"), S(f"s_mul_i32 s{sLd}, s{sLd}, 5120")]
    if nh == 0: C += [S(f"s_mul_i32 s{sBase}, s{sB}, {128*10240}"), S(f"s_add_u32 s{sBase}, s{sBase}, s{sLd}")]
    else: C += [S(f"s_lshl_b32 s{sBase}, s{sLd}, 2"), S(f"s_and_b32 s{sT2}, s{sG}, 3"), S(f"s_mul_i32 s{sT2}, s{sT2}, {5120 if Cfg.fake_wot else 320}"), S(f"s_add_u32 s{sBase}, s{sBase}, s{sT2}"),
                S(f"s_add_u32 s{sLd}, s{sLd}, 10240")]
    step = 10240 if nh == 0 else 40960
    C += [S(f"s_add_u32 s{sT3}, s{sG}, s{sB}")] if Cfg.orot else [S(f"s_mov_b32 s{sT3}, 0")]
    for u in range(4):
        C += [S(f"s_add_u32 s{sT2}, s{sT3}, {u}"), S(f"s_and_b32 s{sT2}, s{sT2}, 3"), S(f"s_mul_i32 s{sOoff+u}, s{sT2}, {step}")]
    return C
def o_dma(nh, u, VOFF, sSo, sLd, goff=0, loff=0, srd_=None):
    step = 10240 if nh == 0 else 40960
    G = []
    if Cfg.o_skip & (1 << nh): return G
    for i in range(5):
        if nh == 0:
            imm = (i & 3) * 1024; ex = (i >> 2) * 4096
            g = [S(f"s_add_u32 m0, s{sLd}, {oslot(u) + ex + loff}"), S(f"s_add_u32 s{sT0}, s{sSo}, s{sOoff+u}")] + ([S(f"s_add_u32 s{sT0}, s{sT0}, {ex + goff}")] if ex + goff else []) if imm == 0 else []
            G.append(g + [dma(VOFF, srd_ or sWS, f"s{sT0}", imm, Cfg.old_pol)])
        else:
            g = [S(f"s_add_u32 m0, s{sLd}, {oslot(u) + i*1024 - i*64 + loff}")]
            if i == 0: g += [S(f"s_add_u32 s{sT0}, s{sSo}, s{sOoff+u}")] + ([S(f"s_add_u32 s{sT0}, s{sT0}, {goff}")] if goff else [])
            G.append(g + [dma(VOFF, srd_ or sWO, f"s{sT0}", i * 64)])
    return G
def gate(lab, POLL, vfl, shift):
    return [V(f"v_readfirstlane_b32 s{sT2}, v{POLL}"), S(f"s_bfe_u32 s{sT2}, s{sT2}, {0x40000 + shift:#x}"), S(f"s_cmp_lg_u32 s{sT2}, 15"),
            branch("s_cbranch_scc1", lab)]
def spin(lab, POLL, vfl, shift, back):
    return [label(lab), bload(1, POLL, vfl, sDBG, 0, 0, 'sc1'), S(f"s_sub_u32 s{sCnt}, s{sCnt}, 1"), S(f"s_cmp_lt_i32 s{sCnt}, 0"), branch("s_cbranch_scc1", back),
            wait(vm=0), V(f"v_readfirstlane_b32 s{sT2}, v{POLL}"), S(f"s_bfe_u32 s{sT2}, s{sT2}, {0x40000 + shift:#x}"), S(f"s_cmp_eq_u32 s{sT2}, 15"),
            branch("s_cbranch_scc1", back), raw(f"s_sleep {Cfg.xsleep}"), branch("s_branch", lab)]

def gen_opre(w):
    sSo, sLd = sTK, sTV
    C = []
    for u in range(2):
        C += [label(f"L_opre{u}"), S(f"s_bitcmp1_b32 s{sWave}, 1"), branch("s_cbranch_scc1", f"L_opre{u}_1")]
        for nh in range(2):
            step = 10240 if nh == 0 else 40960
            B = [label(f"L_opre{u}_{nh}")]
            if u == 0:
                t = w.tmp + 1
                B += lane_id(t) + o_voff(nh, w.oVoff, t, w.dummy, w.vTch) + o_base(nh, sSo, sLd)
                B += [S(f"s_and_b32 s{sT3}, s{sG}, 4"), S(f"s_mul_i32 s{sT3}, s{sT3}, {16*step}"), S(f"s_add_u32 s{sSo}, s{sSo}, s{sT3}")]
            for ks in range(2): B += flat(o_dma(nh, u, w.oVoff, sSo, sLd, goff=ks * 4 * step, loff=ks * 20480))
            B += [branch("s_branch", f"L_opre{u}_back")]
            C += fix_hazards(B)
    C += fix_hazards([label("L_g1"), S(f"s_mov_b32 s{sCnt}, 0x8000"), V(f"v_mov_b32 v{w.tmp+2}, s{sFlag}")] + spin("L_g1_spin", w.oPoll, w.tmp + 2, 0, "L_g1_back"))
    return C

def gen_o():
    ACC = 0; SET = [100, 140]
    aB, aA0, aA1 = 180, 182, 184
    VOFF, POLL, VFL, T, L16, POLL2 = 186, 187, 188, 190, 196, 198
    LW, LR, VO, VO2 = T + 2, T + 3, T + 4, 199
    RB = 200
    sSo, sHi, sLd, sBase, sKs, sNq = 36, 37, 39, 40, 43, 44
    sXo, sXp, sOb, sVar = 60, 61, 62, 63
    sOD = sK
    st = lambda k, real=False: stamp(T, k, real)
    def acc(t): return ACC + 4 * t
    def fB(s_, jj): return SET[s_] + 4 * jj
    def fA(s_, nn): return SET[s_] + 20 + 4 * nn
    TS = [list(range(0, 7)), list(range(7, 13)), list(range(13, 19)), list(range(19, 25))]
    C = [label("L_o")] + st(80)
    if Cfg.prio: C += [raw("s_setprio 0")]
    lane = T; a = T + 1; b = T + 5
    C += lane_id(lane) + [V(f"v_lshlrev_b32 v{L16}, 4, v{lane}")]
    C += [S(f"s_lshr_b32 s{sKs}, s{sWave}, 2"), S(f"s_mul_i32 s{sT0}, s{sKs}, 20480"), S(f"s_and_b32 s{sT1}, s{sWave}, 1"), S(f"s_mul_i32 s{sT1}, s{sT1}, 5120"),
          S(f"s_add_u32 s{sT1}, s{sT0}, s{sT1}"),
          V(f"v_add_u32 v{aB}, s{sT1}, v{L16}"), V(f"v_add_u32 v{aB+1}, {2*OSLOT}, v{aB}"),
          V(f"v_lshrrev_b32 v{a}, 2, v{lane}"), V(f"v_bfe_u32 v{b}, v{lane}, 4, 1"), V(f"v_lshlrev_b32 v{b}, 5, v{b}"), V(f"v_lshl_add_u32 v{b}, v{a}, 6, v{b}"),
          V(f"v_and_b32 v{a}, 3, v{lane}"), V(f"v_lshl_add_u32 v{b}, v{a}, 3, v{b}"),
          S(f"s_add_u32 s{sT1}, s{sT0}, 10240"), V(f"v_add_u32 v{aA0}, s{sT1}, v{b}"), V(f"v_xor_b32 v{aA1}, 32, v{aA0}"),
          V(f"v_add_u32 v{aA0+1}, {2*OSLOT}, v{aA0}"), V(f"v_add_u32 v{aA1+1}, {2*OSLOT}, v{aA1}"),
          S(f"s_mov_b32 s{sHi}, 0")]
    C += [S(f"s_bitcmp1_b32 s{sWave}, 1"), branch("s_cbranch_scc1", "L_o_1")]
    C = fix_hazards(C)
    def late_setup():
        return [V(f"v_mov_b32 v{VFL}, s{sFlag}"), V(f"v_xor_b32 v{VFL+1}, 4, v{VFL}"), V(f"v_mov_b32 v{POLL}, 0"), V(f"v_mov_b32 v{POLL2}, 0"),
         S(f"s_and_b32 s{sNq}, s{sG}, 3"), S(f"s_mov_b32 s{sCnt}, 0x8000"),
         S(f"s_mul_i32 s{sT0}, s{sWave}, 13312"), V(f"v_add_u32 v{LW}, s{sT0}, v{L16}"),
         S(f"s_xor_b32 s{sT1}, s{sWave}, 4"), S(f"s_mul_i32 s{sT0}, s{sT1}, 13312"), V(f"v_add_u32 v{LR}, s{sT0}, v{L16}"),
         S(f"s_lshl_b32 s{sT0}, s2, 3"), S(f"s_add_u32 s{sT0}, s{sT0}, s{sWave}"), S(f"s_mul_i32 s{sXo}, s{sT0}, {SLAB}"), S(f"s_add_u32 s{sXo}, s{sXo}, {XCH_OFF}"),
         S(f"s_xor_b32 s{sT0}, s{sT0}, 256"), S(f"s_mul_i32 s{sXp}, s{sT0}, {SLAB}"), S(f"s_add_u32 s{sXp}, s{sXp}, {XCH_OFF}"),
         V(f"v_bfe_u32 v{VO}, v{L16}, 4, 4"), V(f"v_mul_u32_u24 v{VO}, 1280, v{VO}"),
         V(f"v_bfe_u32 v{a}, v{L16}, 8, 1"), V(f"v_lshl_add_u32 v{VO2}, v{a}, 5, v{VO}"), V(f"v_lshrrev_b32 v{a}, 9, v{L16}"), V(f"v_lshl_add_u32 v{VO2}, v{a}, 4, v{VO2}"),
         V(f"v_lshrrev_b32 v{a}, 8, v{L16}"), V(f"v_lshl_add_u32 v{VO}, v{a}, 3, v{VO}"),
         S(f"s_mul_i32 s{sOb}, s{sB}, 204800"), S(f"s_and_b32 s{sT0}, s{sWave}, 1"), S(f"s_mul_i32 s{sT0}, s{sT0}, 102400"), S(f"s_add_u32 s{sOb}, s{sOb}, s{sT0}"),
         S(f"s_mul_i32 s{sT0}, s{sNq}, 320"), S(f"s_add_u32 s{sOb}, s{sOb}, s{sT0}"), S(f"s_bfe_u32 s{sT0}, s{sWave}, 0x10001"), S(f"s_mul_i32 s{sT0}, s{sT0}, 160"),
         S(f"s_add_u32 s{sOb}, s{sOb}, s{sT0}"),
         S(f"s_lshr_b32 s{sVar}, s{sG}, 2"), S(f"s_lshl_b32 s{sT1}, s{sKs}, 1"), S(f"s_add_u32 s{sVar}, s{sVar}, s{sT1}")] + mode_vcc()
    def poll_load(): return [bload(1, POLL, VFL, sDBG, 0, 0, 'sc1'), bload(1, POLL2, VFL + 1, sDBG, 0, 0, 'sc1')]
    for nh in range(2):
        step = 10240 if nh == 0 else 40960
        src = sWS if nh == 0 else sWO
        R_ = [label(f"L_o_{nh}")] + o_voff(nh, VOFF, lane, a, b) + o_base(nh, sBase, sLd) + [S(f"s_add_u32 s{sLd}, s{sLd}, s{sT0}")]
        R_ += [S(f"s_mov_b32 s{sOD+i}, s{src+i}") for i in range(3)]
        def head_setup():
            return [S(f"s_and_b32 s{sT2}, s{sHi}, 3"), S(f"s_and_b32 s{sT3}, s{sG}, 4"), S(f"s_add_u32 s{sT2}, s{sT2}, s{sT3}"),
                    S(f"s_lshl_b32 s{sT2}, s{sT2}, 2"), S(f"s_lshr_b32 s{sT3}, s{sHi}, 2"), S(f"s_lshl_b32 s{sT3}, s{sT3}, 1"), S(f"s_add_u32 s{sT2}, s{sT2}, s{sT3}"),
                    S(f"s_add_u32 s{sT2}, s{sT2}, s{sKs}"), S(f"s_mul_i32 s{sT2}, s{sT2}, {4*step}"), S(f"s_add_u32 s{sSo}, s{sBase}, s{sT2}"),
                    S(f"s_add_u32 s{sHi}, s{sHi}, 1")]
        odma = lambda u: o_dma(nh, u, VOFF, sSo, sLd, srd_=sOD)
        def oreads(u):
            s_ = u & 1; hi = oslot(u) // (2 * OSLOT); off = oslot(u) % (2 * OSLOT)
            G = []
            for k in range(5):
                nb = 5 * nh + k
                ar = (aA1 if nb & 1 else aA0) + hi
                G.append([ds_read(2, fA(s_, k) + 2 * hh, ar, off + (hh * 5 + (nb >> 1)) * 1024, tr=True) for hh in range(2)])
                G.append([ds_read(4, fB(s_, k), aB + hi, off + k * 1024)])
            return G
        def omf(s_): return [mfma(acc(t), fA(s_, t % 5), fB(s_, t // 5), acc(t)) for t in range(25)]
        R_ += head_setup()
        R_ += [wait(vm=18), barrier()] + st(81) + st(82)
        R_ += flat(oreads(0))
        for r in range(50): R_.append(V(f"v_pk_mov_b32 v[{ACC+2*r}:{ACC+2*r+1}], 0, 0"))
        R_ += late_setup() + flat(odma(2))
        R_ += [wait(vm=13), branch("s_branch", f"L_o_in{nh}")]
        R_, q = finish(R_)
        it = lambda hi, wv, lab: [S(f"s_lshl_b32 s{sT2}, s{sHi}, 3"), S(f"s_add_u32 s{sT2}, s{sT2}, s{sWave}"), S(f"s_cmp_lg_u32 s{sT2}, {hi*8+wv}"), branch("s_cbranch_scc1", lab)]
        def ostage(u):
            L = [wait(vm=5, lgkm=0), barrier()]
            if u == 1: L = [wait(vm=5), label(f"L_o_in{nh}"), wait(lgkm=0), barrier()]
            fill = [(oreads(u), 0, Cfg.orh)]
            d = odma((u + 2) & 3)
            if u == 1:
                d = d + [head_setup() + [S(f"s_cmp_gt_u32 s{sHi}, 8"), S(f"s_cselect_b32 s{sOD+2}, 0, s{sOD+2}")]]
                if nh == 0: d = d + [it(5, 0, "L_g3_back") + gate("L_g2", POLL, VFL, 8) + [label("L_g2_back")] + gate("L_g3", POLL2, VFL + 1, 0) + [label("L_g3_back")]]
            if u == 3 and nh == 0: d = [it(4, 0, "L_p2") + poll_load() + [label("L_p2")]] + d
            if u == 2 and nh == 1:
                d = [it(2, 2, "L_nofl2") + [S(f"s_lshl_b32 s{sT2}, 0x100, s{sNq}")] + flag_add(T, f"s{sT2}", "L_nofl2")] + d
            if u == Cfg.tlbu and Cfg.tlbwarm:
                d = d + [[S(f"s_cmp_lg_u32 s{sHi}, {Cfg.tlbwarm}"), branch("s_cbranch_scc1", f"L_tw{nh}"), V(f"v_lshlrev_b32 v{T}, 3, v{L16}"), V(f"v_min_u32 v{T}, {SLAB-128}, v{T}"),
                          bload(1, RB, T, sWS, f"s{sXo}", 0, 'sc1'), label(f"L_tw{nh}")]]
            if u == 3: d = d + [[S(f"s_cmp_gt_u32 s{sHi}, 8")]]
            fill.append((d, Cfg.od0, Cfg.od1))
            if Cfg.oprio:
                n_ = len(Cfg.oprio)
                L = L[:-1] + [raw(f"s_setprio {n_}"), L[-1]]
                for i, pos in enumerate(Cfg.oprio): fill.append(([[raw(f"s_setprio {n_-1-i}")]], pos - 1, pos))
            return L + spread(omf(1 - (u & 1)), fill)
        B = [label(f"L_o_loop{nh}")] + ostage(1) + ostage(2) + ostage(3) + [branch("s_cbranch_scc1", "L_o_fin")] + ostage(0) + [branch("s_branch", f"L_o_loop{nh}")]
        Bc, q2 = loop_finish(B, [], R_)
        E = []
        if nh == 0: E += spin("L_g2", POLL, VFL, 8, "L_g2_back") + spin("L_g3", POLL2, VFL + 1, 0, "L_g3_back")
        C += R_ + Bc + fix_hazards(E)
    E = [label("L_o_fin")] + st(83) + [wait(vm=0, lgkm=0), barrier()]
    for v in range(1, 4): E += [S(f"s_cmp_eq_u32 s{sVar}, {v}"), branch("s_cbranch_scc1", f"L_o_epi{v}")]
    C += E
    for v in range(4):
        ks, kh = v >> 1, v & 1
        mine = TS[v]; xsend = TS[v ^ 1]; keep = sorted(mine + xsend); lsend = sorted(TS[v ^ 2] + TS[v ^ 3])
        ls = lambda i: [raw(f"s_memtime s[{64+2*i}:{65+2*i}]" if i < 4 else f"s_memtime s[{92+2*(i-4)}:{93+2*(i-4)}]"), wait(lgkm=0)] if Cfg.stamps == 6 else []
        E = [label(f"L_o_epi{v}")] + ls(0)
        order = lsend + xsend + mine
        mf = [mfma(acc(t), fA(1, t % 5), fB(1, t // 5), acc(t)) for t in order]
        wr = [[ds_write(4, LW, acc(t), i * 1024)] for i, t in enumerate(lsend)]
        E += spread(mf, [(wr, 4, 19)])
        E += [wait(lgkm=0)] + ls(1) + [barrier()] + ls(2)
        rorder = xsend + mine
        for i, t in enumerate(rorder): E.append(ds_read(4, RB + 4 * i, LR, keep.index(t) * 1024))
        PK = SET[0]
        for i, t in enumerate(rorder):
            for r in range(0, 4, 2): E.append(V(f"v_pk_add_f32 v[{acc(t)+r}:{acc(t)+r+1}], v[{acc(t)+r}:{acc(t)+r+1}], v[{RB+4*i+r}:{RB+4*i+r+1}]"))
            if t in xsend:
                k = xsend.index(t)
                E += [V(f"v_cvt_pk_bf16_f32 v{PK+2*k}, v{acc(t)}, v{acc(t)+1}"), V(f"v_cvt_pk_bf16_f32 v{PK+2*k+1}, v{acc(t)+2}, v{acc(t)+3}")]
                if k & 1 or k == len(xsend) - 1: E += dstore(4, PK + 4 * (k >> 1), L16, sWS, f"s{sXo}", (k >> 1) * 1024)
        E += st(84) + ls(3)
        n = len(mine); nl = (n + 1) // 2
        E += [V(f"v_mov_b32 v{POLL2}, 1"), V(f"v_mov_b32 v{VFL}, {SLAB-128}"), wait(vm=0), S("s_mov_b64 exec, 1")] + dstore(1, POLL2, VFL, sWS, f"s{sXo}", 0)
        if Cfg.poll_nt:
            SLOW.append([label(f"L_xp{v}"), bload(1, POLL, VFL, sWS, f"s{sXp}", 0, 'sc1'), branch("s_branch", f"L_xp{v}_b")])
            pl = [branch("s_cbranch_vccz", f"L_xp{v}"), bload(1, POLL, VFL, sWS, f"s{sXp}", 0, 'nt'), label(f"L_xp{v}_b")]
        else: pl = [bload(1, POLL, VFL, sWS, f"s{sXp}", 0, 'sc1')]
        E += [label(f"L_x{v}")] + pl + [
              S(f"s_sub_u32 s{sCnt}, s{sCnt}, 1"), S(f"s_cmp_lt_i32 s{sCnt}, 0"), branch("s_cbranch_scc1", f"L_x{v}_ok"), wait(vm=0),
              V(f"v_readfirstlane_b32 s{sT2}, v{POLL}"), S(f"s_cmp_eq_u32 s{sT2}, 1"), branch("s_cbranch_scc1", f"L_x{v}_ok"),
              raw(f"s_sleep {Cfg.xsleep2}"), branch("s_branch", f"L_x{v}"), label(f"L_x{v}_ok"), S("s_mov_b64 exec, -1")]
        ld = lambda pol: [bload(4, RB + 4 * k, L16, sWS, f"s{sXp}", k * 1024, pol) for k in range(nl)]
        SLOW.append([label(f"L_xl{v}")] + ld('sc1') + [branch("s_branch", f"L_xl{v}_b")])
        E += [branch("s_cbranch_vccz", f"L_xl{v}")] + ld('') + [label(f"L_xl{v}_b")]
        E += st(85) + ls(4)
        E += [wait(vm=0)] + ls(6)
        U = RB + 16
        k = 0
        while k < n:
            pair = Cfg.widest and k + 1 < n and mine[k] // 5 == mine[k + 1] // 5
            d = acc(mine[k])
            for h in range(2 if pair else 1):
                a_ = acc(mine[k + h]); r0 = RB + 2 * (k + h)
                E += [V(f"v_lshlrev_b32 v{U}, 16, v{r0}"), V(f"v_and_b32 v{U+1}, 0xffff0000, v{r0}"), V(f"v_lshlrev_b32 v{U+2}, 16, v{r0+1}"), V(f"v_and_b32 v{U+3}, 0xffff0000, v{r0+1}")]
                for r in range(0, 4, 2): E.append(V(f"v_pk_add_f32 v[{a_+r}:{a_+r+1}], v[{a_+r}:{a_+r+1}], v[{U+r}:{U+r+1}]"))
                E += [V(f"v_cvt_pk_bf16_f32 v{d+2*h}, v{a_}, v{a_+1}"), V(f"v_cvt_pk_bf16_f32 v{d+2*h+1}, v{a_+2}, v{a_+3}")]
            t = mine[k]
            E += [S(f"s_add_u32 s{sT0}, s{sOb}, {(t//5)*20480}")]
            if pair: E += [V(f"v_permlane16_swap_b32 v{d}, v{d+2}"), V(f"v_permlane16_swap_b32 v{d+1}, v{d+3}"), bstore(4, d, VO2, sOUT, f"s{sT0}", (t % 5) * 32, Cfg.out_pol)]
            else: E += [bstore(2, d, VO, sOUT, f"s{sT0}", (t % 5) * 32, Cfg.out_pol)]
            k += 2 if pair else 1
        E += st(86) + st(77, True)
        if Cfg.stamps == 6:
            E += [wait(vm=0)] + ls(5) + [V(f"v_mov_b32 v{T+1}, 0"), V(f"v_mov_b32 v{T}, s{sCnt}"), bstore(1, T, T + 1, sWS, f"s{sStamp+2}", 4 * 106)]
            for i, r in enumerate([64, 66, 68, 70, 92, 94]): E += [V(f"v_mov_b32 v{T}, s{r}"), bstore(1, T, T + 1, sWS, f"s{sStamp+2}", 4 * (100 + i))]
            E += [V(f"v_mov_b32 v{T}, s96"), bstore(1, T, T + 1, sWS, f"s{sStamp+2}", 4 * 107)]
        if Cfg.dbgst and ks == 1:
            E += [S(f"s_cmp_lg_u32 s{sWave}, 4"), branch("s_cbranch_scc1", f"L_dbgend{v}"), S(f"s_cmp_lg_u32 s2, {Cfg.dbgst}"), branch("s_cbranch_scc1", f"L_dbgend{v}"),
                  S("s_mov_b64 exec, 1"), V("v_mov_b32 v1, 0")]
            for i, r in enumerate(DREG):
                E += [S(f"s_sub_u32 s{r}, s{r}, s{sStamp+2}"), S(f"s_lshr_b32 s{r}, s{r}, 8"), S(f"s_and_b32 s{r}, s{r}, 0x3ff"), S(f"s_lshl_b32 s{r}, s{r}, {12 + 10*(i&1)}"), V(f"v_mov_b32 v{2+i}, s{r}"),
                      raw(f"buffer_atomic_or v{2+i}, v1, s[{sDBG}:{sDBG+3}], 0 offen offset:{8*(i>>1)+4} sc1")]
            E += [label(f"L_dbgend{v}")]
        E += [raw("s_endpgm")]
        E, _ = finish(E)
        C += E
    return C

def gen_kernel(name):
    C = [raw(f".globl {name}\n.p2align 8\n.type {name},@function\n{name}:\nKSTART:", 'label')]
    C += [S("s_cmp_lt_u32 s2, 256"), branch("s_cbranch_scc1", "L_go"), raw("s_endpgm"), label("L_go")]
    C += [raw("s_load_dwordx16 s[56:71], s[0:1], 0")]
    if Cfg.ent: C += [raw("s_memtime s[92:93]"), raw("s_memrealtime s[100:101]")]
    if Cfg.dbgst: C += [raw(f"s_memtime s[{sStamp+2}:{sStamp+3}]")] + [S(f"s_mov_b32 s{r}, 0") for r in DREG]
    if Cfg.delay:
        C += [S(f"s_bitcmp0_b32 s2, {Cfg.delay_bit}"), branch("s_cbranch_scc1", "L_nodelay"), S(f"s_mov_b32 s{sT0}, {Cfg.delay // 1024}"), label("L_delay"), raw("s_sleep 16"),
              S(f"s_sub_u32 s{sT0}, s{sT0}, 1"), S(f"s_cmp_lg_u32 s{sT0}, 0"), branch("s_cbranch_scc1", "L_delay"), label("L_nodelay")]
    C += [V("v_lshrrev_b32 v1, 6, v0"),
          S(f"s_and_b32 s{sB}, s2, 7"), S(f"s_lshl_b32 s{sB}, s{sB}, 2"), V(f"v_readfirstlane_b32 s{sWave}, v1"),
          S(f"s_lshr_b32 s{sT0}, s2, 6"), S(f"s_add_u32 s{sB}, s{sB}, s{sT0}"), S(f"s_bfe_u32 s{sG}, s2, 0x30003")]
    C += [S(f"s_bfe_u32 s{sT0}, s{sWave}, 0x10001"), S(f"s_lshl_b32 s{sT2}, s{sG}, 2"), S(f"s_add_u32 s{sT2}, s{sT2}, s{sT0}"), S(f"s_lshl_b32 s{sWbase}, s{sT2}, 8"),
          S(f"s_cmp_lt_u32 s{sWave}, 4"), branch("s_cbranch_scc1", "L_w3"),
          S(f"s_and_b32 s{sT1}, s{sWave}, 1"), S(f"s_lshl_b32 s{sT2}, s{sT1}, 10"),
          S(f"s_lshl_b32 s{sLdsKV}, s{sT0}, 13"), S(f"s_add_u32 s{sLdsKV}, s{sLdsKV}, s{sT2}"),
          S(f"s_mul_i32 s{sLdsX}, s{sT0}, 10240"), S(f"s_add_u32 s{sLdsX}, s{sLdsX}, s{sT2}"),
          S(f"s_mul_i32 s{sXbase}, s{sB}, 204800"), S(f"s_mul_i32 s{sT2}, s{sT0}, 102400"), S(f"s_add_u32 s{sXbase}, s{sXbase}, s{sT2}")]
    if Cfg.rot:
        C += [S(f"s_lshr_b32 s{sRho}, s2, 6"), S(f"s_mul_i32 s{sRho}, s{sRho}, 5"), S(f"s_add_u32 s{sRho}, s{sRho}, 1"), S(f"s_lshr_b32 s{sRho}, s{sRho}, 1"),
              S(f"s_add_u32 s{sRho}, s{sRho}, s{sG}"), S(f"s_and_b32 s{sT2}, s2, 7"), S(f"s_add_u32 s{sRho}, s{sRho}, s{sT2}")]
        for _ in range(2): C += [S(f"s_sub_u32 s{sT2}, s{sRho}, 10"), S(f"s_cmp_ge_u32 s{sRho}, 10"), S(f"s_cselect_b32 s{sRho}, s{sT2}, s{sRho}")]
        if Cfg.rotn == 88: C += [S(f"s_lshr_b32 s{sRho}, s2, 5"), S(f"s_and_b32 s{sRho}, s{sRho}, 6"), S(f"s_add_u32 s{sRho}, s{sRho}, s{sG}"), S(f"s_add_u32 s{sRho}, s{sRho}, s2")]
        if Cfg.rotn == 19: C += [S(f"s_cmp_eq_u32 s{sRho}, 9"), S(f"s_cselect_b32 s{sRho}, 4, s{sRho}")]
        if Cfg.rotn == 8: C += [S(f"s_and_b32 s{sRho}, s2, 7")]
        if Cfg.rotn == 16:
            C += [S(f"s_and_b32 s{sRho}, s{sRho}, 1"), S(f"s_mul_i32 s{sRho}, s{sRho}, 5"), S(f"s_and_b32 s{sT2}, s2, 7"), S(f"s_add_u32 s{sRho}, s{sRho}, s{sT2}"),
                  S(f"s_sub_u32 s{sT2}, s{sRho}, 10"), S(f"s_cmp_ge_u32 s{sRho}, 10"), S(f"s_cselect_b32 s{sRho}, s{sT2}, s{sRho}")]
        if Cfg.rotn == 2: C += [S(f"s_and_b32 s{sRho}, s{sRho}, 1"), S(f"s_mul_i32 s{sRho}, s{sRho}, 5")]
        if Cfg.rotn == 4: C += [S(f"s_and_b32 s{sRho}, s{sRho}, 3"), S(f"s_mul_i32 s{sRho}, s{sRho}, 5"), S(f"s_lshr_b32 s{sRho}, s{sRho}, 1")]
    C = fix_hazards(C)
    w2, r2 = gen_w2(); w3, r3 = gen_w3()
    C += w2 + w3 + gen_o() + [label("KEND")] + r2 + r3 + flat(SLOW)
    for k, tag, par in CTX.stubs:
        C += [label(f"L_stub{k}"), raw(f"s_call_b64 s[{sRet}:{sRet+1}], L_rare_{tag}_{par}", 'branch'), branch("s_branch", f"L_back{k}")]
    return C

def kd(name, vgpr, accum, sgpr=102):
    return f""".section .rodata,"a"
.p2align 6
.amdhsa_kernel {name}
  .amdhsa_next_free_vgpr {vgpr}
  .amdhsa_next_free_sgpr {sgpr}
  .amdhsa_accum_offset {accum}
  .amdhsa_group_segment_fixed_size 0
  .amdhsa_kernarg_size 64
  .amdhsa_user_sgpr_count 2
  .amdhsa_user_sgpr_kernarg_segment_ptr 1
  .amdhsa_system_sgpr_workgroup_id_x 1
.end_amdhsa_kernel
"""

HDR = open('standalone__mha_block_cached__near_ridge.s.ref').read().split('; Override launch')[0]
def main(path):
    k1 = "standalone__mha_block_cached__near_ridge_kernel"
    s = HDR
    s += f"; @launch grid=(256,1,1) block=(512,1,1) lds={LDS_BYTES}\n"
    s += '.amdgcn_target "amdgcn-amd-amdhsa--gfx950"\n.text\n'
    s += emit(gen_kernel(k1))
    s += kd(k1, 256, 256)
    open(path, 'w').write(s)
if __name__ == '__main__':
    for a in sys.argv[2:]:
        k, v = a.split('=', 1); setattr(Cfg, k, eval(v))
    main(sys.argv[1] if len(sys.argv) > 1 else 'mha2.s')
```

```python
import sys, math, struct
from ir import *

SLOT = 16384
NSLOT = 10
NW, NX = 6, 3
WPERM = [4, 5, 1, 3, 0, 2]
def wslot(s): return WPERM[s % NW] * SLOT
def xbuf(u): return NW * SLOT + (u % NX) * 20480
WTAB = sum((((WPERM[(m + 1) % NW] - WPERM[m]) & 15) << (4 * m)) for m in range(NW))
LDS_BYTES = 163840
O_BYTES = 32 * 128 * 10 * 1024
XCH_OFF = O_BYTES
SLAB = 4096 + 128
XCH_WG = 8 * SLAB
MODE_LDS = LDS_BYTES - 4
WS_BYTES = XCH_OFF + 256 * XCH_WG
QSCALE = math.log2(math.e) / math.sqrt(128.0)
THR = 16384.0
def f2u(x): return "0x%08x" % struct.unpack('<I', struct.pack('<f', x))[0]

sK, sV, sW, sX, sWS, sWO, sOUT, sDBG = 8, 12, 16, 20, 24, 28, 76, 80
sWave, sRound, sB, sG = 32, 33, 34, 35
sKVbase, sWbase, sXbase, sLdsKV, sLdsX = 36, 37, 38, 39, 40
sT0, sT1 = 41, 42
sKpos, sVpos, sD, sCnt, sXd, sLoop = 43, 44, 45, 49, 50, 51
sRet = 46
sOst = 48
sKX, sFlag = 52, 53
sT2, sT3 = 54, 55
sQS, sC16, sC32, sCX = 72, 73, 74, 75
sTK, sTV, sCnt2 = 88, 89, 90
sTau = 64
sMode = 91
sRho, sT4 = 3, 87
sOoff = 56
sStamp = 84
DBG_OFF = 96 << 20

class Cfg:
    stamps = False
    dbgst = False
    dsl = None
    rot = True
    orot = True
    warm0 = False
    delay = 0
    delay_bit = 7
    LA = 7
    kv_pol = 'nt'
    touch_pol = ''
    touch_at = []
    warm = True
    xsleep = 8
    kv_same = False
    holes = []
    qcap = 9
    map84 = True
    fake_wot = False
    capfrom = 0
    cap0 = False
    place2 = {}
    cap = 0
    drain = {}
    wo2n = 39
    jit = 1
    wo2pol = ''
    place = {'wo': ('A0', 0), 'code': ('A0', 1)}
    oprio = [6, 12, 18]
    v_pol = None
    ent = False
    tlbwarm = 0
    tlbu = 1
    slabmall = True
    widest = True
    pro_pol = ''
    wx_pol = ''
    poll_nt = False
    taumul = 8
    taush = 2
    taumask = 15
    kvgrp = 1
    pace = 0.8
    lead = 2
    tbatch = []
    qr3 = 18
    qr2 = 15
    orh = 20
    od0 = 1
    od1 = 24
    ofirst = True
    qd0 = 0
    qprio = 1
    ofast_pol = ''
    fast0 = False
    out_pol = ''
    dsplit = 100
    rotn = 10
    late = 8
    smpure = 0.7
    pp = False
    pp_a = 1
    pp_b = 0
    ostamp = False
    xsleep2 = 2
    dual = True
    fast = True
    codetouch2 = True
    codetouch = True
    qcut = 4
    prio = 2
    no_sm = False
    no_dma = False
    no_exp = False
    no_chk = False
    no_ds = False
    no_adv = False
    ost_pol = 'sc1'
    old_pol = 'sc1'
    o_skip = 0
    o_vm1 = 10
    smend = 3

RT4 = {7: 90, 39: 91, 45: 92, 73: 93, 82: 94, 83: 95}
STAMP3 = (0, 1, 3, 5, 7, 39, 41, 43, 45, 73, 75, 76, 77, 80, 81, 82, 83, 84, 85, 86)
DSL = {(1, 0): 0, (41, 0): 1, (45, 0): 2, (73, 0): 3, (1, 1): 4, (41, 1): 5, (45, 1): 6, (73, 1): 7, (80, 2): 8, (82, 2): 9, (83, 2): 10, (84, 2): 11, (85, 2): 12, (86, 2): 13}
sDS = 4
DREG = [4, 5, 6, 7, 101, 92, 93, 94, 95, 96, 97, 98, 99, 100]
def stamp(t, k, real=False):
    if Cfg.dbgst:
        if real: return []
        dsl = DSL if not Cfg.dsl else {(2 * b + 1, Cfg.dsl[0]): i for i, b in enumerate(Cfg.dsl[1:])}
        hits = [(r, i) for (kk, r), i in dsl.items() if kk == k]
        if not hits: return []
        out = [raw(f"s_memtime s[{sStamp}:{sStamp+1}]"), wait(lgkm=0)]
        for r, i in hits:
            out += [S(f"s_cmp_eq_u32 s{sRound}, {r}"), S(f"s_cselect_b32 s{DREG[i]}, s{sStamp}, s{DREG[i]}")]
        return out
    if not Cfg.stamps: return []
    if Cfg.stamps == 6: return []
    if Cfg.stamps == 7:
        if not (41 <= k <= 73 and k % 4 == 1) or real: return []
        real = True
    if Cfg.stamps == 4 and not real and k in RT4:
        Cfg.stamps = 5; r = stamp(t, k) + stamp(t, RT4[k], True); Cfg.stamps = 4; return r
    if Cfg.stamps in (3, 4) and k not in STAMP3: return []
    return [raw(f"{'s_memrealtime' if real else 's_memtime'} s[{sStamp}:{sStamp+1}]"), wait(lgkm=0), V(f"v_mov_b32 v{t}, s{sStamp}"), V(f"v_mov_b32 v{t+1}, 0"),
            S(f"s_and_b32 s{sStamp+1}, s{sRound}, 1"), S(f"s_lshl_b32 s{sStamp+1}, s{sStamp+1}, 9"), S(f"s_add_u32 s{sStamp+1}, s{sStamp+1}, s{sStamp+2}"),
            bstore(1, t, t + 1, sWS, f"s{sStamp+1}", 4 * k, tag=('misc',))]

def item_slot(n): return (n % NSLOT) * SLOT
def kidx(t): return 0 if t == 0 else 2 * t - 1
def vidx(t): return 2 * t + 2

class Wave:
    def __init__(self, nq):
        self.nq = nq
        n = nq
        p = 0
        self.O = p; p += 32 * n
        self.Q = p; p += 16 * n
        self.NM = p; p += 4 * n
        self.S = p; p += 8 * n
        self.P = p; p += 8 * n
        self.L = p; p += n
        self.LT = p; p += n
        self.T = p; p += 4
        self.aN = p; p += 2
        self.aT = p; p += 4
        p = (p + 3) & ~3
        self.F = p; self.NF = 8; p += 32
        self.dummy = p; p += 1
        self.tmp = p; p += 3
        if nq == 2:
            self.vK = p; self.vV = p + 1; self.vW = p + 2; self.vX = p + 3; self.vTch = p + 4; self.oVoff = p + 5; self.oPoll = p + 6; p += 7
        assert p <= 256, p
        self.end = p
        setsz = 32 + 4 * n
        if nq == 3:
            self.set = [self.Q, self.S]
        else:
            q = (p + 3) & ~3
            self.set = [self.Q, q]
            assert q + setsz <= 256
        self.tag = f"w{nq}"
        self.fpos = 0
    def o(self, T, j): return self.O + (T * self.nq + j) * 4
    def q(self, s, j): return self.Q + (s * self.nq + j) * 4
    def nm(self, j): return self.NM + 4 * j
    def s(self, kb, j): return self.S + (kb * self.nq + j) * 4
    def p(self, par, j): return self.P + (par * self.nq + j) * 4
    def fa(self, st, T): return self.set[st] + 4 * T
    def fb(self, st, j): return self.set[st] + 32 + 4 * j

def spread(base, fillers):
    ins = [[] for _ in range(len(base) + 1)]
    for groups, lo, hi in fillers:
        n = len(groups)
        if n == 0: continue
        hi = min(hi, len(base)); lo = min(lo, hi)
        span = hi - lo
        for k, gI in enumerate(groups):
            pos = lo + (k * span) // n + 1 if span > 0 else lo
            ins[min(pos, len(base))].extend(gI)
    out = list(ins[0])
    for i, b in enumerate(base):
        out.append(b); out.extend(ins[i + 1])
    return out

def frag_K(w, s, kb, first_c):
    def reads(f): return [ds_read(4, f, w.aN + (s & 1), kb * 4096 + (s >> 1) * 2048)]
    def mf(f):
        out = []
        for j in range(w.nq):
            c = w.s(kb, j) if s > 0 else (None if first_c == 'zero' else w.nm(j))
            out.append(mfma(w.s(kb, j), f, w.q(s, j), c))
        return out
    return dict(reads=reads, mf=mf, pre=[])
def frags_QK(w, first_c='negm', pre=()):
    fr = [frag_K(w, s, kb, first_c) for s in range(4) for kb in range(2)]
    fr[0]['pre'] = list(pre)
    return fr
def frag_V(w, db, par, zero):
    def reads(f): return [ds_read(2, f + 2 * hh, w.aT + (db & 3), hh * 4096 + (db >> 2) * 2048, tr=True) for hh in range(2)]
    def mf(f): return [mfma(w.o(db, j), f, w.p(par, j), None if zero else w.o(db, j)) for j in range(w.nq)]
    return dict(reads=reads, mf=mf, pre=[])
def frags_PV(w, par, zero=False, pre=()):
    fr = [frag_V(w, db, par, zero) for db in range(8)]
    fr[0]['pre'] = list(pre)
    return fr

def stream(w, frags, preloaded, nxt, fillers=(), lead=()):
    LA = Cfg.LA
    allf = list(frags) + list(nxt[:LA])
    head = []
    def issue(i):
        f = allf[i]
        return ([] if Cfg.no_adv else list(f['pre'])) + ([] if Cfg.no_ds else f['reads'](w.F + 4 * ((w.fpos + i) % w.NF)))
    for i in range(preloaded, min(LA, len(allf))): head += issue(i)
    base = list(lead); extra = []
    for i, f in enumerate(frags):
        m = f['mf'](w.F + 4 * ((w.fpos + i) % w.NF))
        base += m
        post = []
        if i + LA < len(allf) and i + LA >= preloaded: post += issue(i + LA)
        if post: extra.append(([post], len(base) - 1, len(base)))
    body = spread(base, list(extra) + list(fillers))
    w.fpos = (w.fpos + len(frags)) % w.NF
    return head + body

def softmax_groups(w, par):
    G = []
    k = 0
    for kb in range(2):
        for j in range(w.nq):
            for h in range(2):
                t0 = w.T + 2 * (k & 1); t1 = t0 + 1; k += 1
                sr = w.s(kb, j) + 2 * h
                G.append([V(f"v_exp_f32 v{t0}, v{sr}")])
                G.append([V(f"v_exp_f32 v{t1}, v{sr+1}")])
                lt = w.LT + j
                if kb == 0 and h == 0:
                    G.append(('late', [V(f"v_add_f32 v{lt}, v{t0}, v{t1}"), V(f"v_cvt_pk_bf16_f32 v{w.p(par,j)+2*kb+h}, v{t0}, v{t1}")]))
                else:
                    G.append(('late', [V(f"v_add_f32 v{lt}, v{lt}, v{t0}"), V(f"v_cvt_pk_bf16_f32 v{w.p(par,j)+2*kb+h}, v{t0}, v{t1}"),
                                       V(f"v_add_f32 v{lt}, v{lt}, v{t1}")]))
    if Cfg.no_sm: return [[V(f"v_mov_b32 v{w.LT+j}, 1.0")] for j in range(w.nq)]
    if Cfg.no_exp:
        for gI in G:
            if not isinstance(gI, tuple): gI[0] = V(gI[0].text.replace('v_exp_f32', 'v_mov_b32'))
    out = []; pend = None
    for gI in G:
        if isinstance(gI, tuple):
            pend = gI[1]
        else:
            out.append(gI)
            if pend is not None:
                out.append(pend); pend = None
    if pend is not None: out.append(pend)
    return out

class Ctx:
    def __init__(self): self.stubs = []; self.n = 0
CTX = Ctx()

SLOW = []
def dstore(n, src, voff, srd_, soff, imm, tag=None, pol=''):
    if not Cfg.dual: return [bstore(n, src, voff, srd_, soff, imm, 'sc1', tag=tag)]
    k = len(SLOW)
    SLOW.append([label(f"L_slow{k}"), bstore(n, src, voff, srd_, soff, imm, 'sc1'), branch("s_branch", f"L_slowb{k}")])
    return [branch("s_cbranch_vccz", f"L_slow{k}"), bstore(n, src, voff, srd_, soff, imm, pol, tag=tag), label(f"L_slowb{k}")]
def mode_vcc(): return [S(f"s_and_b32 s{sT1}, s{sMode}, s{sMode if Cfg.fast0 else sRound}"), S("s_cselect_b64 vcc, -1, 0")]
def mode_read(t):
    return [[V(f"v_mov_b32 v{t}, {MODE_LDS}"), ds_read(1, t, t, 0)],
            [V(f"v_readfirstlane_b32 s{sT1}, v{t}"), S(f"s_cmp_eq_u32 s{sRound}, 0"), S(f"s_cselect_b32 s{sMode}, s{sT1}, s{sMode}")]]

def check_cmp(w):
    if Cfg.no_chk: return []
    out = []
    if w.nq == 3: out.append(V(f"v_max3_f32 v{w.tmp}, v{w.LT}, v{w.LT+1}, v{w.LT+2}"))
    else: out.append(V(f"v_max_f32 v{w.tmp}, v{w.LT}, v{w.LT+1}"))
    out.append(I(f"v_cmp_nge_f32 vcc, {f2u(THR)}, v{w.tmp}", 'valu', wr={('s', 'vcc')}, rd=regs(w.tmp)))
    return out
def check_branch(w, par):
    if Cfg.no_chk: return []
    k = CTX.n; CTX.n += 1
    CTX.stubs.append((k, w.tag, par))
    return [branch("s_cbranch_vccnz", f"L_stub{k}"), label(f"L_back{k}")]
def l_accum(w, first=False):
    if first: return [V(f"v_mov_b32 v{w.L+j}, v{w.LT+j}") for j in range(w.nq)]
    return [V(f"v_add_f32 v{w.L+j}, v{w.L+j}, v{w.LT+j}") for j in range(w.nq)]
def sm_fillers(w, par, lo):
    nm = 8 * w.nq
    return [(softmax_groups(w, par) + [check_cmp(w)], lo, nm - Cfg.smend)]

def xlane(op, r, t):
    return [V(f"v_mov_b32 v{t}, v{r}"), V(f"v_permlane32_swap_b32 v{r}, v{t}"), V(f"{op} v{r}, v{r}, v{t}"),
            V(f"v_mov_b32 v{t}, v{r}"), V(f"v_permlane16_swap_b32 v{r}, v{t}"), V(f"{op} v{r}, v{r}, v{t}")]

def tile_max(w, j, dst):
    a, b = w.s(0, j), w.s(1, j)
    return [V(f"v_max3_f32 v{dst}, v{a}, v{a+1}, v{a+2}"), V(f"v_max3_f32 v{dst}, v{dst}, v{a+3}, v{b}"),
            V(f"v_max3_f32 v{dst}, v{dst}, v{b+1}, v{b+2}"), V(f"v_max_f32 v{dst}, v{dst}, v{b+3}")]

def first_max(w):
    out = []
    for j in range(w.nq): out += tile_max(w, j, w.LT + j)
    seqs = [xlane("v_max_f32", w.LT + j, w.T + j) for j in range(w.nq)]
    for k in range(6):
        for sq in seqs: out.append(sq[k])
    for j in range(w.nq):
        for r in range(4): out.append(V(f"v_sub_f32 v{w.nm(j)+r}, 0, v{w.LT+j}"))
        for kb in range(2):
            for r in range(4): out.append(V(f"v_sub_f32 v{w.s(kb,j)+r}, v{w.s(kb,j)+r}, v{w.LT+j}"))
    return out

def rare_routine(w, par):
    out = [label(f"L_rare_{w.tag}_{par}"), nop(15)]
    for j in range(w.nq):
        d = w.LT + j; f = w.T + 1
        out += tile_max(w, j, d)
        out += xlane("v_max_f32", d, w.T)
        out.append(V(f"v_max_f32 v{d}, 0, v{d}"))
        out.append(V(f"v_sub_f32 v{f}, 0, v{d}"))
        out.append(V(f"v_exp_f32 v{f}, v{f}"))
        for r in range(4): out.append(V(f"v_sub_f32 v{w.nm(j)+r}, v{w.nm(j)+r}, v{d}"))
        for kb in range(2):
            for r in range(4): out.append(V(f"v_sub_f32 v{w.s(kb,j)+r}, v{w.s(kb,j)+r}, v{d}"))
        out.append(V(f"v_mul_f32 v{w.L+j}, v{w.L+j}, v{f}"))
        for T in range(8):
            for r in range(4): out.append(V(f"v_mul_f32 v{w.o(T,j)+r}, v{w.o(T,j)+r}, v{f}"))
    for gI in softmax_groups(w, par): out += gI
    out.append(nop(3))
    out.append(raw(f"s_setpc_b64 s[{sRet}:{sRet+1}]", 'branch'))
    return fix_hazards(out)

def q_reads(w, st, sl):
    G = []
    for j in range(w.nq): G.append([ds_read(4, w.fb(st, j), w.aN + sl, j * 2048)])
    for T in range(8):
        for hh in range(2):
            G.append([ds_read(2, w.fa(st, T) + 2 * hh, w.aT + ((T >> 1) & 1), hh * 4096 + (T >> 2) * 2048 + (T & 1) * 8, tr=True)])
    return G
def q_mfmas(w, st, zero):
    return [mfma(w.o(T, j), w.fa(st, T), w.fb(st, j), None if zero else w.o(T, j)) for T in range(8) for j in range(w.nq)]

def q_pack_groups(w, s):
    G = []
    for j in range(w.nq):
        for half in range(2):
            a = w.o(2 * s + half, j)
            for r in range(4): G.append([V(f"v_mul_f32 v{a+r}, s{sQS}, v{a+r}")])
            G.append([V(f"v_cvt_pk_bf16_f32 v{w.q(s,j)+2*half}, v{a}, v{a+1}")])
            G.append([V(f"v_cvt_pk_bf16_f32 v{w.q(s,j)+2*half+1}, v{a+2}, v{a+3}")])
    return G
def q_pack_fillers(w):
    n = w.nq
    rng = [(2 * n + 2, 5 * n), (5 * n, 8 * n), (8 * n, 11 * n), (11 * n, 14 * n - 1)]
    return [(q_pack_groups(w, s), rng[s][0], rng[s][1]) for s in range(4)]

def l_reduce(w):
    out = []
    seqs = [xlane("v_add_f32", w.L + j, w.T + j) for j in range(w.nq)]
    for k in range(6):
        for sq in seqs: out.append(sq[k])
    for j in range(w.nq): out.append(V(f"v_rcp_f32 v{w.L+j}, v{w.L+j}"))
    out += [V(f"v_mbcnt_lo_u32_b32 v{w.tmp}, -1, 0"), V(f"v_mbcnt_hi_u32_b32 v{w.tmp}, -1, v{w.tmp}"), V(f"v_lshlrev_b32 v{w.tmp}, 4, v{w.tmp}")]
    return out
def epi_groups(w, s):
    G = []
    for j in range(w.nq):
        d = w.q(s, j)
        for half in range(2):
            a = w.o(2 * s + half, j)
            for r in range(4): G.append([V(f"v_mul_f32 v{a+r}, v{a+r}, v{w.L+j}")])
            G.append([V(f"v_cvt_pk_bf16_f32 v{d+2*half}, v{a}, v{a+1}")])
            G.append([V(f"v_cvt_pk_bf16_f32 v{d+2*half+1}, v{a+2}, v{a+3}")])
        G.append([S(f"s_add_u32 s{sT1}, s{sOst}, {s*10240}")] + dstore(4, d, w.tmp, sWS, f"s{sT1}", j * 1024, tag=('O', 0, True), pol=Cfg.ofast_pol))
    return G
def epi_fillers(w):
    n = w.nq
    rng = [(2 * n + 2, 4 * n + 2), (4 * n + 2, 6 * n + 2), (6 * n + 2, 8 * n), (8 * n, 8 * n)]
    return [([[i] for i in l_reduce(w)], 0, 2 * n + 1)] + [(epi_groups(w, s), rng[s][0], rng[s][1]) for s in range(4)]

def flat(G): return [i for g in G for i in g]
def one(L): return [[i] for i in L]

CAPN = [0]
def dma_kv(w, kind, t, nxt_round, tag):
    srd_ = sK if kind == 'K' else sV
    voff = w.vK if kind == 'K' else w.vV
    n = kidx(t) if kind == 'K' else vidx(t)
    lds = item_slot(n)
    G = []
    for a in range(2):
        for seg in range(2):
            G.append([S(f"s_add_u32 m0, s{sLdsKV}, {lds + a*4096 + seg*2048 - seg*128}"),
                      S(f"s_add_u32 s{sT0}, s{sT4}, {a*4096}"),
                      dma(voff, srd_, f"s{sT0}", seg * 128, Cfg.kv_pol if (kind == 'K' or Cfg.v_pol is None) else Cfg.v_pol, tag=tag)])
    if Cfg.cap and n >= Cfg.capfrom:
        for g in G:
            if Cfg.cap0:
                CAPN[0] += 1
                g[0:0] = [S(f"s_cmp_lg_u32 s{sRound}, 0"), branch("s_cbranch_scc1", f"L_cap{CAPN[0]}"), wait(vm=Cfg.cap - 1), label(f"L_cap{CAPN[0]}")]
            else: g.insert(2, wait(vm=Cfg.cap - 1))
    G[0] = [S(f"s_add_u32 s{sT4}, s{sTau}, {t*8192}"), S(f"s_and_b32 s{sT4}, s{sT4}, 0x1ffff"), S(f"s_add_u32 s{sT4}, s{sT4}, s{sKVbase}")] + G[0]
    return G
POL = ['']
def rot_off(u, unit, base):
    if not Cfg.rot: return [S(f"s_add_u32 s{sT4}, s{base}, {u*unit}")]
    if Cfg.rotn == 88:
        if u < 2: return [S(f"s_add_u32 s{sT4}, s{base}, {u*unit}")]
        return [S(f"s_add_u32 s{sT4}, s{sRho}, {u-2}"), S(f"s_and_b32 s{sT4}, s{sT4}, 7"), S(f"s_add_u32 s{sT4}, s{sT4}, 2"),
                S(f"s_mul_i32 s{sT4}, s{sT4}, {unit}"), S(f"s_add_u32 s{sT4}, s{sT4}, s{base}")]
    if Cfg.rotn == 19:
        if u < 1: return [S(f"s_add_u32 s{sT4}, s{base}, {u*unit}")]
        return [S(f"s_cmp_ge_u32 s{sRho}, {10-u}"), S(f"s_cselect_b32 s{sT4}, {u-9}, {u}"), S(f"s_add_u32 s{sT4}, s{sT4}, s{sRho}"),
                S(f"s_mul_i32 s{sT4}, s{sT4}, {unit}"), S(f"s_add_u32 s{sT4}, s{sT4}, s{base}")]
    return [S(f"s_cmp_ge_u32 s{sRho}, {10-u}"), S(f"s_cselect_b32 s{sT4}, {u-10}, {u}"), S(f"s_add_u32 s{sT4}, s{sT4}, s{sRho}"),
            S(f"s_mul_i32 s{sT4}, s{sT4}, {unit}"), S(f"s_add_u32 s{sT4}, s{sT4}, s{base}")]
def dma_w(w, s, nxt_round, tag):
    lds = wslot(s)
    goff = (s & 1) * 32 * 8192 + (512 if nxt_round else 0)
    G = []
    for hh in range(2):
        for seg in range(2):
            G.append([S(f"s_add_u32 m0, s{sLdsKV}, {lds + hh*4096 + seg*2048 - seg*128}"),
                      S(f"s_add_u32 s{sT0}, s{sT4}, {goff + hh*32768}"),
                      dma(w.vW, sW, f"s{sT0}", seg * 128, POL[0], tag=tag)])
    G[0] = rot_off(s >> 1, 64 * 8192, sWbase) + G[0]
    return G
def dma_x(w, u, tag):
    G = []
    for i in range(5):
        G.append([S(f"s_add_u32 m0, s{sLdsX}, {xbuf(u) + i*2048}"),
                  S(f"s_add_u32 s{sT0}, s{sT4}, {i*20480}"),
                  dma(w.vX, sX, f"s{sT0}", 0, POL[0], tag=tag)])
    G[0] = rot_off(u, 128, sXbase) + G[0]
    return G
def touch_kv(w, kind):
    srd_, ptr = (sK, sTK) if kind == 'K' else (sV, sTV)
    return [[bload(1, w.dummy, w.vTch, srd_, f"s{ptr}", 0, Cfg.touch_pol, tag=('misc',)), S(f"s_add_u32 s{ptr}, s{ptr}, 4096")]]

NAMES = {}
for _t in range(16):
    NAMES[kidx(_t)] = ('K', _t); NAMES[vidx(_t)] = ('V', _t)
def first_use(kind, i):
    if kind == 'W': return i
    if kind == 'X': return 2 * i
    if kind == 'K': return 20 if i == 0 else 19 + i
    if kind == 'V': return 21 + i
    if kind == 'O': return 3
    if kind == 'P': return 35

def loader_schedule(w):
    sch = {i: [] for i in range(37)}
    r0 = lambda G, lab: [[S(f"s_cmp_lg_u32 s{sRound}, 0"), branch("s_cbranch_scc1", lab)] + flat(G) + [label(lab)]]
    sch[0] += r0(dma_w(w, 2, False, ('W', 2, 'cond')), "L_r0a") + dma_x(w, 1, ('X', 1, False)) + r0(dma_w(w, 3, False, ('W', 3, 'cond')), "L_r0b")
    sch[1] += dma_w(w, 4, False, ('W', 4, False)) + dma_x(w, 2, ('X', 2, False))
    sch[2] += dma_w(w, 5, False, ('W', 5, False))
    if not Cfg.holes:
        for s in range(NW, 20): sch[max(s - NW + 1, 3)] += dma_w(w, s, False, ('W', s, False))
        for u in range(NX, 10): sch[2 * (u - NX) + 2] += dma_x(w, u, ('X', u, False))
    else:
        todo = sorted([(s, 'W', s, max(s - NW + 1, 3)) for s in range(NW, 20)] + [(2 * u - 0.5, 'X', u, 2 * (u - NX) + 2) for u in range(NX, 10)])
        load = {i: 0 for i in range(21)}; load[2] = 4
        cur = 2
        for need, kind, i, t0 in todo:
            n = 4 if kind == 'W' else 5
            t = max(t0, cur)
            while t in Cfg.holes or load[t] + n > Cfg.qcap: t += 1
            assert t <= need - 1.5, (kind, i, t)
            cur = t; load[t] += n
            sch[t] += dma_w(w, i, False, ('W', i, False)) if kind == 'W' else dma_x(w, i, ('X', i, False))
        print("Q load", load, file=sys.stderr)
    if not Cfg.no_dma:
        first = {0: 17, 1: 15, 2: 18, 3: 16, 4: 19, 5: 20, 6: 20, 7: 20, 8: 18, 9: 19}
        for n in range(10): sch[first[n]] += dma_kv(w, *NAMES[n], False, NAMES[n] + (False,))
        for n in range(10, 33):
            if n not in NAMES: continue
            k, t = NAMES[n - 10]
            last = (20 + t) if k == 'K' else min(22 + t, 36)
            rem = [m for m in range(10, 33) if m in NAMES]
            paced = 21 + int(rem.index(n) * Cfg.pace)
            when = max(last + 1, min(paced, first_use(*NAMES[n]) - Cfg.lead))
            sch[when] += dma_kv(w, *NAMES[n], False, NAMES[n] + (False,))
    for idx, ss in ((33, (2, 3)), (34, (0, 1))):
        for s_ in ss: sch[idx] += r0(dma_w(w, s_, True, ('W', s_, 'next')), f"L_r0w{s_}")
    w4first = lambda lab: [S(f"s_lshl_b32 s{sT1}, s{sRound}, 3"), S(f"s_add_u32 s{sT1}, s{sT1}, s{sWave}"), S(f"s_cmp_lg_u32 s{sT1}, 4"), branch("s_cbranch_scc1", lab)]
    sch[7] = [w4first("L_p0") + [S(f"s_mov_b32 s{sT1}, s{sFlag}") if Cfg.map84 else S(f"s_lshl_b32 s{sT1}, s{sB}, 3"), V(f"v_mov_b32 v{w.tmp+2}, s{sT1}"), bload(1, w.oPoll, w.tmp + 2, sDBG, 0, 0, 'sc1', tag=('cond',)), label("L_p0")]] + sch[7]
    sch[14] += [w4first("L_m0") + [V(f"v_readfirstlane_b32 s{sT1}, v{w.oPoll}"), S(f"s_bfe_u32 s{sT2}, s{sT1}, 0x80010"), S(f"s_lshr_b32 s{sT1}, s{sT1}, 24"),
                 S(f"s_bcnt1_i32_b32 s{sT1}, s{sT1}"), S(f"s_lshl_b32 s{sT1}, s{sT1}, 8"), S(f"s_or_b32 s{sT1}, s{sT1}, s{sT2}"), S(f"s_cmp_eq_u32 s{sT1}, 0x1ff"),
                 S(f"s_cselect_b32 s{sT1}, {(1 if Cfg.map84 else 3) if Cfg.fast else 0}, 0"), V(f"v_mov_b32 v{w.tmp+1}, s{sT1}"), V(f"v_mov_b32 v{w.tmp+2}, {MODE_LDS}"),
                 raw(f"ds_write_b32 v{w.tmp+2}, v{w.tmp+1}"), label("L_m0")]]
    for name, (idx, rnd) in Cfg.place2.items():
        t = w.tmp + 1
        if name == 'wo':
            body = lane_id(t) + [V(f"v_min_u32 v{t}, 39, v{t}"), V(f"v_lshlrev_b32 v{t}, 7, v{t}"), S(f"s_lshl_b32 s{sT1}, s2, 2"), S(f"s_add_u32 s{sT1}, s{sT1}, s{sWave}"),
                    S(f"s_sub_u32 s{sT1}, s{sT1}, 4"), S(f"s_mul_i32 s{sT1}, s{sT1}, 5120"), bload(1, w.dummy, t, sWO, f"s{sT1}", tag=('cond',))]
        else:
            body = lane_id(t) + [V(f"v_lshlrev_b32 v{t}, 7, v{t}"), V(f"v_min_u32 v{t}, {SLAB-128}, v{t}"),
                    S(f"s_lshl_b32 s{sT1}, s2, 3"), S(f"s_add_u32 s{sT1}, s{sT1}, s{sWave}"), S(f"s_mul_i32 s{sT1}, s{sT1}, {SLAB}"), S(f"s_add_u32 s{sT1}, s{sT1}, {XCH_OFF}"),
                    bload(1, w.dummy, t, sWS, f"s{sT1}", 0, 'sc1', tag=('cond',)), S(f"s_sub_u32 s{sT1}, s{sT1}, {4*SLAB}"), bload(1, w.dummy, t, sWS, f"s{sT1}", 0, 'sc1', tag=('cond',))]
        sch[idx] += [[S(f"s_cmp_lg_u32 s{sRound}, {rnd}"), branch("s_cbranch_scc1", f"L_p2{name}")] + body + [label(f"L_p2{name}")]]
    mr = mode_read(w.T)
    sch[17] = [mr[0]] + sch[17]; sch[18] = [mr[1]] + sch[18]
    w4last = lambda lab: [S(f"s_lshl_b32 s{sT1}, s{sRound}, 3"), S(f"s_add_u32 s{sT1}, s{sT1}, s{sWave}"), S(f"s_cmp_lg_u32 s{sT1}, 12"), branch("s_cbranch_scc1", lab)]
    sch[29] = [w4last("L_p1") + [V(f"v_mov_b32 v{w.tmp+2}, s{sFlag}"), bload(1, w.oPoll, w.tmp + 2, sDBG, 0, 0, 'sc1', tag=('cond',)), label("L_p1")]] + sch[29]
    sch[34] += [w4last("L_g1_back") + gate("L_g1", w.oPoll, w.tmp + 2, 0) + [label("L_g1_back")]]
    for u in range(2):
        alt = flat(dma_x(w, 0, ('X', 0, 'next'))) if u == 0 else []
        sch[35 + u] += [[S(f"s_cmp_lg_u32 s{sRound}, 0"), branch("s_cbranch_scc1", f"L_opre{u}")] + alt + [label(f"L_opre{u}_back"), I("; opre", 'comment', tag=('phantom', 0 if Cfg.o_skip else 10))]]
    if not Cfg.no_dma:
        for i, idx in enumerate(sorted(Cfg.touch_at)): sch[idx] += touch_kv(w, 'KV'[i & 1])
        for idx, goff in Cfg.tbatch:
            sch[idx] += [[S(f"s_add_u32 s{sT0}, s{sTau}, {goff}"), S(f"s_and_b32 s{sT0}, s{sT0}, 0x1ffff"), S(f"s_add_u32 s{sT0}, s{sT0}, s{sKVbase}"), bload(1, w.dummy, w.vTch, sK, f"s{sT0}", 0, Cfg.touch_pol, tag=('misc',)),
                          bload(1, w.dummy, w.vTch, sV, f"s{sT0}", 0, Cfg.touch_pol, tag=('misc',))]]
    return sch

def lane_id(r): return [V(f"v_mbcnt_lo_u32_b32 v{r}, -1, 0"), V(f"v_mbcnt_hi_u32_b32 v{r}, -1, v{r}")]
def lane_setup(w):
    t = w.F + 8
    lane, i16, g, a, b, c = t, t + 1, t + 2, t + 3, t + 4, t + 5
    o = lane_id(lane) + [V(f"v_and_b32 v{i16}, 15, v{lane}"), V(f"v_lshrrev_b32 v{g}, 4, v{lane}")]
    o += [V(f"v_lshrrev_b32 v{a}, 1, v{i16}"), V(f"v_xor_b32 v{a}, v{a}, v{g}"), V(f"v_lshlrev_b32 v{a}, 4, v{a}"),
          V(f"v_lshl_add_u32 v{w.aN}, v{i16}, 7, v{a}"), V(f"v_xor_b32 v{w.aN+1}, 64, v{w.aN}")]
    o += [V(f"v_lshrrev_b32 v{a}, 2, v{lane}"), V(f"v_and_b32 v{b}, 6, v{a}"),
          V(f"v_bfe_u32 v{c}, v{lane}, 1, 1"), V(f"v_xor_b32 v{b}, v{b}, v{c}"), V(f"v_lshlrev_b32 v{b}, 4, v{b}"),
          V(f"v_lshl_add_u32 v{b}, v{a}, 7, v{b}"),
          V(f"v_and_b32 v{c}, 1, v{lane}"), V(f"v_lshl_add_u32 v{w.aT}, v{c}, 3, v{b}")]
    for dq in range(1, 4): o.append(V(f"v_xor_b32 v{w.aT+dq}, {dq<<5}, v{w.aT}"))
    return o
def voff_setup(w):
    t = w.F + 16
    r8, p, a, b, row = t, t + 1, t + 2, t + 3, t + 4
    o = [V(f"v_bfe_u32 v{row}, v0, 3, 4"),
         V(f"v_and_b32 v{p}, 7, v0"),
         V(f"v_lshrrev_b32 v{a}, 1, v{row}"), V(f"v_xor_b32 v{a}, v{a}, v{p}"), V(f"v_lshlrev_b32 v{a}, 4, v{a}"),
         V(f"v_and_b32 v{b}, 6, v{row}"), V(f"v_xor_b32 v{b}, v{b}, v{p}"), V(f"v_lshlrev_b32 v{b}, 4, v{b}"),
         V(f"v_and_b32 v{p}, 12, v{row}"), V(f"v_add_u32 v{p}, v{p}, v{row}"), V(f"v_lshl_add_u32 v{w.vW}, v{p}, 13, v{b}"),
         V(f"v_mul_u32_u24 v{p}, 1280, v{row}"), V(f"v_add_u32 v{w.vX}, v{p}, v{a}")]
    o2 = [V(f"v_lshl_add_u32 v{w.vK}, v{row}, 8, v{a}"), V(f"v_lshl_add_u32 v{w.vV}, v{row}, 8, v{b}"),
          V(f"v_and_b32 v{p}, 63, v0"), V(f"v_lshlrev_b32 v{p}, 6, v{p}"), V(f"v_bfe_u32 v{r8}, v0, 6, 1"), V(f"v_lshl_add_u32 v{w.vTch}, v{r8}, 12, v{p}")]
    return o, o2

def add_addr(regs_, delta):
    if delta == 0: return []
    if isinstance(delta, str): return [V(f"v_add_u32 v{r}, {delta}, v{r}") for r in regs_]
    return [V(f"v_add_u32 v{r}, {delta & 0xffffffff:#x}, v{r}") for r in regs_]

def to_w(w, cur):
    t = w.T
    return add_addr([w.aT + 2, w.aT + 3], item_slot(vidx(0)) - cur) + add_addr([w.aT], wslot(0) - cur) + [
        V(f"v_bfe_u32 v{t}, v{w.aT}, 3, 2"), V(f"v_and_b32 v{w.aT}, 0xffffffe7, v{w.aT}"), V(f"v_lshlrev_b32 v{t}, 4, v{t}"),
        V(f"v_xor_b32 v{w.aT}, v{w.aT}, v{t}"), V(f"v_xor_b32 v{w.aT+1}, 64, v{w.aT}")]
def to_v(w): return [V(f"v_xor_b32 v{w.aT}, 64, v{w.aT+2}"), V(f"v_xor_b32 v{w.aT+1}, 64, v{w.aT+3}")]

def finish(code, pending=None, pre=()):
    c, q = add_lgkm_waits(code, pending)
    return fix_hazards(c, pre), q

def loop_finish(B, q, before):
    B1, q1 = finish(B, q, pre=before[-12:])
    B2, q2 = finish(B, q1, pre=B1[-12:])
    B3, q3 = finish(B, q2, pre=B2[-12:])
    assert emit(B2) == emit(B3) and q2 == q3
    assert len(q) <= len(q2) and q == q2[len(q2) - len(q):], "entry LDS queue must be a suffix of the steady-state queue"
    B4 = fix_hazards(B2, before[-12:])
    assert emit(fix_hazards(B4, B4[-12:])) == emit(B4)
    return B4, q2

def srd(base, ptr, nbytes):
    return [S(f"s_mov_b32 s{base}, s{ptr}"), S(f"s_mov_b32 s{base+1}, s{ptr+1}"), S(f"s_mov_b32 s{base+2}, {nbytes}"), S(f"s_mov_b32 s{base+3}, 0x20000")]

def round_advance():
    return [S(f"s_add_u32 s{sKVbase}, s{sKVbase}, 262144"), S(f"s_add_u32 s{sWbase}, s{sWbase}, 512"),
            S(f"s_add_u32 s{sOst}, s{sOst}, {8*10240}"), S(f"s_add_u32 s{sRound}, s{sRound}, 1"), S(f"s_cmp_lt_u32 s{sRound}, 2")]

def flag_add(t, val, lab):
    return [V(f"v_mov_b32 v{t}, {val}"), V(f"v_mov_b32 v{t+1}, s{sFlag}"), S("s_mov_b64 exec, 1"),
            I(f"buffer_atomic_or v{t}, v{t+1}, s[{sDBG}:{sDBG+3}], 0 offen sc1", 'vstore', rd=regs(t, 2) | regs(sDBG, 4, 's'), tag=('cond',)),
            S("s_mov_b64 exec, -1"), label(lab)]

def common_scalars():
    C = srd(sK, 58, 134217728) + srd(sV, 60, 134217728) + srd(sWO, 64, 5242880) + srd(sOUT, 66, 6553600) + srd(sDBG, 68, 256) \
        + srd(sWS, 70, (160 << 20) if Cfg.stamps else WS_BYTES)
    C += [S(f"s_lshr_b32 s{sT2}, s{sWbase}, 8"),
          S(f"s_lshl_b32 s{sT3}, s{sB}, 5"), S(f"s_add_u32 s{sT3}, s{sT3}, s{sT2}"), S(f"s_lshl_b32 s{sKVbase}, s{sT3}, 17"),
          S(f"s_mul_i32 s{sOst}, s{sT3}, 40960"),] + ([S(f"s_and_b32 s{sKVbase}, s{sKVbase}, 0x20000")] if Cfg.kv_same else []) + [
          S(f"s_lshl_b32 s{sFlag}, s{sB}, 1"), S(f"s_lshr_b32 s{sT2}, s{sG}, 2"), S(f"s_add_u32 s{sFlag}, s{sFlag}, s{sT2}"), S(f"s_lshl_b32 s{sFlag}, s{sFlag}, 2"),
          S(f"s_mul_i32 s{sTau}, s{sT3}, {Cfg.taumul}"), S(f"s_lshr_b32 s{sT2}, s{sT3}, {Cfg.taush}"), S(f"s_add_u32 s{sTau}, s{sTau}, s{sT2}"),
          S(f"s_and_b32 s{sTau}, s{sTau}, {Cfg.taumask}"), S(f"s_lshl_b32 s{sTau}, s{sTau}, 13"),
          S(f"s_mov_b32 s{sRound}, 0"), S(f"s_mov_b32 s{sMode}, 0"), S(f"s_mov_b32 s{sQS}, {f2u(QSCALE)}"), S(f"s_mov_b32 s{sC16}, {WTAB:#x}"), S(f"s_mov_b32 s{sC32}, {2*SLOT}"),
          S(f"s_mov_b32 s{sCX}, 20480"), S(f"s_mov_b32 s{sTK}, s{sKVbase}"), S(f"s_mov_b32 s{sTV}, s{sKVbase}")]
    if Cfg.stamps:
        C += [S(f"s_lshl_b32 s{sStamp+2}, s2, 3"), S(f"s_add_u32 s{sStamp+2}, s{sStamp+2}, s{sWave}"), S(f"s_lshl_b32 s{sStamp+2}, s{sStamp+2}, 10"),
              S(f"s_add_u32 s{sStamp+2}, s{sStamp+2}, {DBG_OFF}")]
    return C
def wave_addr0(w, j0mul, j0add):
    aN = [w.aN, w.aN + 1]; aT = [w.aT + i for i in range(4)]
    C = [S(f"s_bfe_u32 s{sT0}, s{sWave}, 0x10001"), S(f"s_lshl_b32 s{sT0}, s{sT0}, 13"),
         S(f"s_and_b32 s{sT1}, s{sWave}, 1"), S(f"s_mul_i32 s{sT1}, s{sT1}, {j0mul*1024}"), S(f"s_add_u32 s{sT1}, s{sT1}, {j0add*1024}"),
         S(f"s_add_u32 s{sOst}, s{sOst}, s{sT1}"), S(f"s_lshl_b32 s{sT1}, s{sT1}, 1"),
         S(f"s_sub_u32 s{sKX}, s{sT0}, s{sT1}"),
         S(f"s_add_u32 s{sT1}, s{sT1}, {xbuf(0)}")]
    return C + add_addr(aT, f"s{sT0}") + add_addr(aN, f"s{sT1}") + to_w(w, 0)

def gen_w3():
    w = Wave(3); nm = 24
    st = lambda k, real=False: stamp(w.tmp + 1, k, real)
    aN = [w.aN, w.aN + 1]; aT = [w.aT + i for i in range(4)]
    C = [label("L_w3"), raw("s_waitcnt lgkmcnt(0)")]
    if Cfg.codetouch:
        t = w.tmp + 1
        C += [raw(f"s_getpc_b64 s[{sRet}:{sRet+1}]"), label("L_pc0"),
              S(f"s_sub_u32 s{sRet}, s{sRet}, L_pc0-KSTART"), S(f"s_subb_u32 s{sRet+1}, s{sRet+1}, 0"),
              S(f"s_lshr_b32 s{sT0}, s2, 3"), S(f"s_lshl_b32 s{sT0}, s{sT0}, 2"), S(f"s_add_u32 s{sT0}, s{sT0}, s{sWave}"), S(f"s_lshl_b32 s{sT0}, s{sT0}, 7"),
              V(f"v_and_b32 v{t}, 7, v0"), V(f"v_lshlrev_b32 v{t}, 14, v{t}"), V(f"v_add_u32 v{t}, s{sT0}, v{t}"),
              V(f"v_min_u32 v{t}, KEND-KSTART-4, v{t}"),
              I(f"global_load_dword v{w.dummy}, v{t}, s[{sRet}:{sRet+1}]", 'vload', wr=regs(w.dummy), rd=regs(t) | regs(sRet, 2, 's'))]
    if Cfg.warm0:
        t = w.tmp + 1
        C += srd(sW, 62, 5242880) + srd(sX, 56, 6553600)
        C += [V(f"v_and_b32 v{t}, 63, v0"), V(f"v_lshlrev_b32 v{t}, 7, v{t}"),
              S(f"s_mul_i32 s{sT0}, s{sB}, 204800"), S(f"s_mul_i32 s{sT1}, s{sG}, 25600"), S(f"s_add_u32 s{sT0}, s{sT0}, s{sT1}"),
              S(f"s_mul_i32 s{sT1}, s{sWave}, 5760"), S(f"s_add_u32 s{sT0}, s{sT0}, s{sT1}"),
              V(f"v_bfe_u32 v{t+1}, v0, 3, 3"), V(f"v_min_u32 v{t+1}, 4, v{t+1}"), V(f"v_lshlrev_b32 v{t+1}, 13, v{t+1}"),
              V(f"v_and_b32 v{w.T}, 7, v0"), V(f"v_lshl_add_u32 v{t+1}, v{w.T}, 7, v{t+1}"),
              S(f"s_lshl_b32 s{sT1}, s{sB}, 2"), S(f"s_add_u32 s{sT1}, s{sT1}, s{sWave}"), S(f"s_mul_i32 s{sT1}, s{sT1}, {5*8192}"),
              S(f"s_lshl_b32 s{sT2}, s{sG}, 10"), S(f"s_add_u32 s{sT1}, s{sT1}, s{sT2}"),
              barrier()] + ([bload(1, w.dummy, t + 1, sW, f"s{sT1}")] if Cfg.warm0 == 1 else []) + [bload(1, w.dummy, t, sX, f"s{sT0}")]
    C += common_scalars()
    t = w.tmp + 1
    C += [S(f"s_cmp_lg_u32 s{sWave}, 0"), branch("s_cbranch_scc1", "L_noxcc"), raw(f"s_getreg_b32 s{sT0}, hwreg(HW_REG_XCC_ID, 0, 3)"),
          S(f"s_lshl_b32 s{sT0}, 0x1000000, s{sT0}"), S(f"s_lshl_b32 s{sT1}, {0x110000 if Cfg.map84 else 0x10000}, s{sG}"), S(f"s_lshr_b32 s{sT2}, s{sT1}, {4 if Cfg.map84 else 0}"), S(f"s_or_b32 s{sT1}, s{sT1}, s{sT2}"), S(f"s_and_b32 s{sT1}, s{sT1}, 0xff0000"),
          S(f"s_or_b32 s{sT0}, s{sT0}, s{sT1}"), S(f"s_mov_b32 s{sT1}, s{sFlag}") if Cfg.map84 else S(f"s_lshl_b32 s{sT1}, s{sB}, 3"),
          V(f"v_mov_b32 v{t}, s{sT0}"), V(f"v_mov_b32 v{t+1}, s{sT1}"), S("s_mov_b64 exec, 1"),
          I(f"buffer_atomic_or v{t}, v{t+1}, s[{sDBG}:{sDBG+3}], 0 offen sc1", 'vstore', rd=regs(t, 2) | regs(sDBG, 4, 's')),
          S("s_mov_b64 exec, 0xff"), V(f"v_mul_u32_u24 v{t}, {SLAB}, v0"), V(f"v_mov_b32 v{t+1}, 0"), S(f"s_mul_i32 s{sT0}, s2, {XCH_WG}"), S(f"s_add_u32 s{sT0}, s{sT0}, {XCH_OFF + SLAB - 128}"),
          bstore(1, t + 1, t, sWS, f"s{sT0}", 0, 'sc1'),
          S("s_mov_b64 exec, -1"), label("L_noxcc")]
    C += lane_setup(w) + wave_addr0(w, 3, 0)
    def x_wo():
        t = w.tmp + 1
        return lane_id(t) + [V(f"v_min_u32 v{t}, 39, v{t}"), V(f"v_lshlrev_b32 v{t}, 7, v{t}"),
              S(f"s_lshl_b32 s{sT0}, s2, 2"), S(f"s_add_u32 s{sT0}, s{sT0}, s{sWave}"), S(f"s_mul_i32 s{sT0}, s{sT0}, 5120"), bload(1, w.dummy, t, sWO, f"s{sT0}")]
    def x_code():
        t = w.tmp + 1
        return [raw(f"s_getpc_b64 s[{sRet}:{sRet+1}]"), label("L_pc1"),
              S(f"s_add_u32 s{sRet}, s{sRet}, L_o-L_pc1"), S(f"s_addc_u32 s{sRet+1}, s{sRet+1}, 0")] + lane_id(t) + [
              S(f"s_lshl_b32 s{sT0}, s{sWave}, 13"), V(f"v_lshlrev_b32 v{t}, 7, v{t}"), V(f"v_add_u32 v{t}, s{sT0}, v{t}"), V(f"v_min_u32 v{t}, KEND-L_o-4, v{t}"),
              I(f"global_load_dword v{w.dummy}, v{t}, s[{sRet}:{sRet+1}]", 'vload', wr=regs(w.dummy), rd=regs(t) | regs(sRet, 2, 's'))]
    def x_slab():
        t = w.tmp + 1
        return lane_id(t) + [V(f"v_lshlrev_b32 v{t}, 7, v{t}"), V(f"v_min_u32 v{t}, {SLAB-128}, v{t}"),
              S(f"s_lshl_b32 s{sT0}, s2, 3"), S(f"s_add_u32 s{sT0}, s{sT0}, s{sWave}"), S(f"s_mul_i32 s{sT0}, s{sT0}, {SLAB}"), S(f"s_add_u32 s{sT0}, s{sT0}, {XCH_OFF}"),
              bload(1, w.dummy, t, sWS, f"s{sT0}", 0, 'sc1'), S(f"s_add_u32 s{sT0}, s{sT0}, {4*SLAB}"), bload(1, w.dummy, t, sWS, f"s{sT0}", 0, 'sc1')]
    def x_jit():
        return [S(f"s_mul_i32 s{sT0}, s2, 11"), S(f"s_and_b32 s{sT0}, s{sT0}, 31"), label("L_jit"), raw(f"s_sleep {Cfg.jit}"), S(f"s_sub_u32 s{sT0}, s{sT0}, 1"), branch("s_cbranch_scc0", "L_jit")]
    def x_wo2():
        r = [i if i.kind != 'vload' else bload(1, w.dummy, w.tmp + 1, sWO, f"s{sT0}", 0, Cfg.wo2pol) for i in x_wo()]
        r[2] = V(f"v_min_u32 v{w.tmp+1}, {Cfg.wo2n}, v{w.tmp+1}")
        return r
    def extras(where):
        out_ = []
        for name, fn in (('wo', x_wo), ('code', x_code), ('slab', x_slab), ('jit', x_jit), ('wo2', x_wo2)):
            pl = Cfg.place.get(name)
            if pl and pl[0] == where:
                out_ += [S(f"s_cmp_lg_u32 s{sRound}, {pl[1]}"), branch("s_cbranch_scc1", f"L_ex_{name}")] + fn() + [label(f"L_ex_{name}")]
        return out_
    C, _ = finish(C)
    out = C
    def wadv():
        return [S(f"s_bfe_i32 s{sD}, s{sC16}, s{sCnt}"), S(f"s_lshl_b32 s{sD}, s{sD}, 14"), S(f"s_add_u32 s{sCnt}, s{sCnt}, 4"),
                S(f"s_cmp_eq_u32 s{sCnt}, {0x40000 + 4*NW:#x}"), S(f"s_cselect_b32 s{sCnt}, 0x40000, s{sCnt}")] + add_addr(aT[:2], f"s{sD}")
    def xadv():
        return [S(f"s_add_u32 s{sCnt2}, s{sCnt2}, 1"), S(f"s_cmp_eq_u32 s{sCnt2}, {NX}"), S(f"s_cselect_b32 s{sXd}, {(-(NX-1)*20480) & 0xffffffff:#x}, s{sCX}"),
                S(f"s_cselect_b32 s{sCnt2}, 0, s{sCnt2}")] + add_addr(aN, f"s{sXd}")
    def qstage(s, zero=False, extra=()):
        p = s & 1
        adv_ = wadv() + (xadv() if p == 1 else []) + list(extra)
        L = [barrier()] + spread(q_mfmas(w, 1 - p, zero), [(q_reads(w, p, p), 0, Cfg.qr3), (one(adv_), Cfg.qr3 + 1, 23)]) + [wait(lgkm=0)]
        k = [i for i, c in enumerate(L) if c.kind == 'mfma'][Cfg.qcut]
        return L[:k], L[k:]
    C = [label("L_w3_round")] + st(0) + [barrier()] + st(1)
    C += flat(q_reads(w, 0, 0))
    C += add_addr(aT[:2], wslot(1) - wslot(0))
    C += [S(f"s_mov_b32 s{sCnt}, 0x40004"), S(f"s_mov_b32 s{sCnt2}, {(xbuf(0)-NW*SLOT)//20480}"), S(f"s_mov_b32 s{sLoop}, 8")]
    C += [wait(lgkm=0)]
    h1, t1 = qstage(1, zero=True); he, te = qstage(2); ho, to = qstage(3)
    C += h1 + t1 + [wait(vm=0)] + extras('Q2') + he
    C, q = finish(C); out += C
    B = [label("L_w3_q")] + te + ho + to + he
    B += [S(f"s_sub_u32 s{sLoop}, s{sLoop}, 1"), S(f"s_cmp_lg_u32 s{sLoop}, 0"), branch("s_cbranch_scc1", "L_w3_q")]
    Bc, q2 = loop_finish(B, q, out)
    out += Bc
    curT = wslot(20); curN = xbuf(10)
    h19, t19 = qstage(19, extra=add_addr(aN, f"s{sKX}") + add_addr(aN, item_slot(kidx(0)) - curN) + to_v(w))
    mr = mode_read(w.T)
    C = mr[0] + te + mr[1] + extras('Q18') + h19 + t19
    C += st(40) + [barrier()] + st(41)
    k0 = frags_QK(w, 'zero')
    k1 = frags_QK(w, 'negm', pre=add_addr(aN, item_slot(kidx(1)) - item_slot(kidx(0))))
    w.fpos = 0
    C += stream(w, k0, 0, k1, lead=q_mfmas(w, 1, False), fillers=q_pack_fillers(w))
    C += first_max(w)
    C += st(42) + [barrier()] + st(43)
    C += flat(softmax_groups(w, 0)) + l_accum(w, first=True)
    v0 = frags_PV(w, 0, zero=True)
    C += extras('A0')
    C += [S(f"s_mov_b32 s{sKpos}, {item_slot(kidx(1))}"), S(f"s_mov_b32 s{sVpos}, {item_slot(vidx(0))}"), S(f"s_mov_b32 s{sLoop}, 7")]
    def adv(pos, rr):
        return [S(f"s_cmp_ge_u32 s{pos}, {LDS_BYTES - 2*SLOT}"), S(f"s_cselect_b32 s{sD}, {(2*SLOT - LDS_BYTES) & 0xffffffff:#x}, s{sC32}"),
                S(f"s_add_u32 s{pos}, s{pos}, s{sD}")] + add_addr(rr, f"s{sD}")
    def pv(par): return frags_PV(w, par, pre=adv(sVpos, aT))
    def qk(): return frags_QK(w, 'negm', pre=adv(sKpos, aN))
    E_ = 8 - Cfg.late
    def sm_part(late, par, extra=()):
        G = softmax_groups(w, par) + [check_cmp(w)]
        nl = 3 * len(late)
        cut = int(len(G) * Cfg.smpure) if Cfg.late < 8 else 0
        return flat(G[:cut]) + stream(w, late, Cfg.LA, qk(), fillers=[(G[cut:], 0, max(nl - Cfg.smend, 1))] + list(extra)) + check_branch(w, par)
    C += stream(w, k1 + v0[:E_], Cfg.LA, v0[E_:] + qk())
    C += st(44) + [barrier()] + st(45)
    C += sm_part(v0[E_:], 1)
    C, q = finish(C, q2, pre=out[-12:]); out += C
    B = [label("L_w3_a")]
    for par in (1, 0):
        B += stream(w, qk() + pv(par)[:E_], Cfg.LA, pv(par)[E_:] + qk(), fillers=[(one(l_accum(w)), 4, 10)])
        B += [barrier()]
        B += sm_part(pv(par)[E_:], 1 - par)
    B += [S(f"s_sub_u32 s{sLoop}, s{sLoop}, 1"), S(f"s_cmp_lg_u32 s{sLoop}, 0"), branch("s_cbranch_scc1", "L_w3_a")]
    Bc, q2 = loop_finish(B, q, out)
    out += Bc
    C = st(74) + l_accum(w) + mode_vcc() + extras('A15')
    C += stream(w, pv(1), 0, [], fillers=epi_fillers(w))
    C += st(75) + st(77, True)
    curT = item_slot(vidx(15)); curN = item_slot(kidx(16))
    C += to_w(w, curT) + add_addr(aN, xbuf(0) - curN) + [V(f"v_subrev_u32 v{r}, s{sKX}, v{r}") for r in aN]
    C += round_advance()
    C += [branch("s_cbranch_scc1", "L_w3_round"), branch("s_branch", "L_o")]
    C, q = finish(C, q2, pre=out[-12:]); out += C
    assert not q
    return out, rare_routine(w, 0) + rare_routine(w, 1)

def gen_w2():
    w = Wave(2); nm = 16
    st = lambda k, real=False: stamp(w.tmp + 1, k, real)
    aN = [w.aN, w.aN + 1]; aT = [w.aT + i for i in range(4)]
    POL[0] = Cfg.wx_pol
    sch = loader_schedule(w)
    items = lambda idx: sch[idx]
    vo1, vo2 = voff_setup(w)
    en = lambda r: [raw(f"s_memtime s[{r}:{r+1}]")] if Cfg.ent else []
    pro = vo1 + [raw("s_waitcnt lgkmcnt(0)")] + en(94) + srd(sW, 62, 5242880) + srd(sX, 56, 6553600)
    POL[0] = Cfg.pro_pol
    pro += flat(dma_w(w, 0, False, ('W', 0, True))) + flat(dma_x(w, 0, ('X', 0, True))) + flat(dma_w(w, 1, False, ('W', 1, True))) + ([barrier()] if Cfg.warm0 else [])
    pro += en(96)
    pro += vo2 + [V(f"v_mov_b32 v{w.oVoff}, 0"), V(f"v_mov_b32 v{w.oPoll}, 0")] + common_scalars() + lane_setup(w) + wave_addr0(w, 2, 6)
    if Cfg.ent:
        pro += en(98) + [raw("s_waitcnt lgkmcnt(0)"), V(f"v_mov_b32 v{w.tmp+2}, 0")]
        for i, r in enumerate((92, 94, 96, 98, 100)): pro += [V(f"v_mov_b32 v{w.tmp+1}, s{r}"), bstore(1, w.tmp + 1, w.tmp + 2, sWS, f"s{sStamp+2}", 4 * (120 + i), tag=('misc',))]
    C = [label("L_w2_round")] + st(76, True)
    def bar(idx, lgkm=None):
        b = wait(vm=63, lgkm=lgkm); b.tag = (('need', idx), lgkm)
        return st(2 * idx) + [b, barrier()] + st(2 * idx + 1)
    prio = lambda p: [raw(f"s_setprio {p}")] if Cfg.prio == 2 else []
    curT = wslot(0); curN = xbuf(0)
    C += prio(Cfg.qprio)
    for s in range(20):
        if s < 19:
            newT = wslot(s + 1); newN = xbuf((s + 1) >> 1)
            adv_ = add_addr(aT[:2], newT - curT) + add_addr(aN, newN - curN); curT, curN = newT, newN
        else:
            adv_ = add_addr(aN, f"s{sKX}") + add_addr(aN, item_slot(kidx(0)) - curN) + to_v(w)
        C += bar(s, lgkm=0)
        ex = []
        if s == 3:
            ex = [([[S(f"s_lshl_b32 s{sT1}, s{sRound}, 3"), S(f"s_add_u32 s{sT1}, s{sT1}, s{sWave}"), S(f"s_cmp_lg_u32 s{sT1}, 12"),
                     branch("s_cbranch_scc1", "L_nofl1"), S(f"s_and_b32 s{sT1}, s{sG}, 3"), S(f"s_lshl_b32 s{sT1}, 1, s{sT1}")] + flag_add(w.tmp + 1, f"s{sT1}", "L_nofl1")], 11, 12)]
        if s == 0: C += flat(q_reads(w, 0, 0)) + flat(items(0)) + adv_
        else: C += spread(q_mfmas(w, (s - 1) & 1, s == 1), [(q_reads(w, s & 1, s & 1), 0, Cfg.qr2), (items(s), Cfg.qd0, nm - 2), (one(adv_), Cfg.qr2 + 1, 16)] + ex)
    C += bar(20, lgkm=0)
    def qk(t, fc='negm'): return frags_QK(w, fc, pre=add_addr(aN, item_slot(kidx(t)) - item_slot(kidx(t - 1))) if t else [])
    def pv(t): return frags_PV(w, t & 1, zero=(t == 0), pre=add_addr(aT, item_slot(vidx(t)) - item_slot(vidx(t - 1))) if t else [])
    w.fpos = 0
    C += stream(w, qk(0, 'zero'), 0, qk(1), lead=q_mfmas(w, 1, False), fillers=[(items(20), 0, 2 * nm)] + q_pack_fillers(w))
    C += first_max(w)
    C += flat(softmax_groups(w, 0))
    for t in range(15):
        nx = qk(t + 2) if t < 14 else []
        if Cfg.pp:
            C += prio(Cfg.pp_a)
            C += bar(21 + t)
            C += stream(w, qk(t + 1) + pv(t), Cfg.LA, nx, fillers=[(one(l_accum(w, first=(t == 0))), 3, 8)])
            C += prio(Cfg.pp_b)
            G = softmax_groups(w, (t + 1) & 1) + [check_cmp(w)]
            sm = [g for g in G]
            it_ = items(21 + t)
            base = [I("; g", 'comment') for _ in sm]
            merged = spread(base, [(it_, 0, len(sm))])
            k = 0
            for c in merged:
                if c.kind == 'comment' and c.text == "; g": C += sm[k]; k += 1
                else: C.append(c)
            C += check_branch(w, (t + 1) & 1)
        else:
            C += prio(0)
            if 21 + t in Cfg.drain: C += [wait(vm=Cfg.drain[21 + t])]
            C += bar(21 + t)
            it_ = items(21 + t); h = (len(it_) * Cfg.dsplit + 99) // 100
            C += stream(w, qk(t + 1), Cfg.LA, pv(t), fillers=[(it_[:h], 0, nm), (one(l_accum(w, first=(t == 0))), 3, 8)])
            C += prio(1)
            C += stream(w, pv(t), Cfg.LA, nx, fillers=[(it_[h:], 1, nm + 1)] + sm_fillers(w, (t + 1) & 1, 2))
            C += check_branch(w, (t + 1) & 1)
    C += prio(0)
    C += bar(36)
    C += flat(items(36))
    C += st(74) + l_accum(w) + mode_vcc()
    C += stream(w, pv(15), 0, [], fillers=epi_fillers(w))
    C += st(75) + st(77, True)
    curT = item_slot(vidx(15)); curN = item_slot(kidx(15))
    C += to_w(w, curT) + add_addr(aN, xbuf(0) - curN) + [V(f"v_subrev_u32 v{r}, s{sKX}, v{r}") for r in aN]
    C += round_advance()
    C += [branch("s_cbranch_scc1", "L_w2_round"), branch("s_branch", "L_o")]
    VM = ('dma', 'vload', 'vstore')
    def resolve(prefix, first):
        res = {}
        q = [(c.tag[0], c.tag[1]) if len(c.tag) == 3 and c.tag[2] in (True, 'next') else None for c in prefix if c.kind in VM and c.tag != ('cond',)]
        for c in C:
            if c.kind in VM:
                if c.tag == ('cond',): continue
                if c.tag[-1] in ('cond', 'next') and not first: continue
                q.append((c.tag[0], c.tag[1]) if len(c.tag) == 3 and c.tag[2] in (False, 'cond') else None)
            elif c.kind == 'comment' and c.tag and c.tag[0] == 'phantom':
                if not first: q += [None] * c.tag[1]
            elif c.kind == 'wait' and isinstance(c.tag[0], tuple):
                idx = c.tag[0][1]
                last = -1
                for k, it in enumerate(q):
                    if it is not None and first_use(it[0], it[1]) <= idx: last = k
                res[idx] = min(63, len(q) - 1 - last)
        return res
    r1 = resolve(pro, True); r2 = resolve(C, False)
    C2 = []
    for c in C:
        if c.kind == 'wait' and isinstance(c.tag[0], tuple):
            idx = c.tag[0][1]; n = min(r1[idx], r2[idx]); lg = c.tag[1]
            if abs(r1[idx] - r2[idx]) > 1:
                C2 += [S(f"s_cmp_eq_u32 s{sRound}, {0 if r1[idx] > r2[idx] else 1}"), branch("s_cbranch_scc1", f"L_rw{idx}"), wait(vm=n), label(f"L_rw{idx}")]
                n = max(r1[idx], r2[idx])
            c.text = f"s_waitcnt vmcnt({n})" + (f" lgkmcnt({lg})" if lg is not None else ""); c.tag = (n, lg)
        C2.append(c)
    C = C2
    pro, _ = finish(pro)
    C, q = finish(C, [], pre=pro[-12:])
    assert not q
    return pro + C + gen_opre(w), rare_routine(w, 0) + rare_routine(w, 1)

OSLOT = 40960
def oslot(u): return ((u + 2) & 3) * OSLOT
def o_voff(nh, VOFF, lane, a, b):
    if nh == 1 and Cfg.fake_wot:
        return [V(f"v_lshrrev_b32 v{a}, 2, v{lane}"), V(f"v_mul_u32_u24 v{a}, 320, v{a}"), V(f"v_and_b32 v{VOFF}, 3, v{lane}"), V(f"v_lshl_add_u32 v{VOFF}, v{VOFF}, 4, v{a}")]
    if nh == 0: return [V(f"v_lshlrev_b32 v{VOFF}, 4, v{lane}")]
    return [V(f"v_lshrrev_b32 v{a}, 2, v{lane}"), V(f"v_mul_u32_u24 v{a}, 1280, v{a}"), V(f"v_bfe_u32 v{b}, v{lane}, 4, 1"), V(f"v_lshlrev_b32 v{b}, 1, v{b}"),
            V(f"v_and_b32 v{VOFF}, 3, v{lane}"), V(f"v_xor_b32 v{VOFF}, v{VOFF}, v{b}"), V(f"v_lshl_add_u32 v{VOFF}, v{VOFF}, 4, v{a}")]
def o_base(nh, sBase, sLd):
    C = [S(f"s_and_b32 s{sLd}, s{sWave}, 1"), S(f"s_mul_i32 s{sLd}, s{sLd}, 5120")]
    if nh == 0: C += [S(f"s_mul_i32 s{sBase}, s{sB}, {128*10240}"), S(f"s_add_u32 s{sBase}, s{sBase}, s{sLd}")]
    else: C += [S(f"s_lshl_b32 s{sBase}, s{sLd}, 2"), S(f"s_and_b32 s{sT2}, s{sG}, 3"), S(f"s_mul_i32 s{sT2}, s{sT2}, {5120 if Cfg.fake_wot else 320}"), S(f"s_add_u32 s{sBase}, s{sBase}, s{sT2}"),
                S(f"s_add_u32 s{sLd}, s{sLd}, 10240")]
    step = 10240 if nh == 0 else 40960
    C += [S(f"s_add_u32 s{sT3}, s{sG}, s{sB}")] if Cfg.orot else [S(f"s_mov_b32 s{sT3}, 0")]
    for u in range(4):
        C += [S(f"s_add_u32 s{sT2}, s{sT3}, {u}"), S(f"s_and_b32 s{sT2}, s{sT2}, 3"), S(f"s_mul_i32 s{sOoff+u}, s{sT2}, {step}")]
    return C
def o_dma(nh, u, VOFF, sSo, sLd, goff=0, loff=0, srd_=None):
    step = 10240 if nh == 0 else 40960
    G = []
    if Cfg.o_skip & (1 << nh): return G
    for i in range(5):
        if nh == 0:
            imm = (i & 3) * 1024; ex = (i >> 2) * 4096
            g = [S(f"s_add_u32 m0, s{sLd}, {oslot(u) + ex + loff}"), S(f"s_add_u32 s{sT0}, s{sSo}, s{sOoff+u}")] + ([S(f"s_add_u32 s{sT0}, s{sT0}, {ex + goff}")] if ex + goff else []) if imm == 0 else []
            G.append(g + [dma(VOFF, srd_ or sWS, f"s{sT0}", imm, Cfg.old_pol)])
        else:
            g = [S(f"s_add_u32 m0, s{sLd}, {oslot(u) + i*1024 - i*64 + loff}")]
            if i == 0: g += [S(f"s_add_u32 s{sT0}, s{sSo}, s{sOoff+u}")] + ([S(f"s_add_u32 s{sT0}, s{sT0}, {goff}")] if goff else [])
            G.append(g + [dma(VOFF, srd_ or sWO, f"s{sT0}", i * 64)])
    return G
def gate(lab, POLL, vfl, shift):
    return [V(f"v_readfirstlane_b32 s{sT2}, v{POLL}"), S(f"s_bfe_u32 s{sT2}, s{sT2}, {0x40000 + shift:#x}"), S(f"s_cmp_lg_u32 s{sT2}, 15"),
            branch("s_cbranch_scc1", lab)]
def spin(lab, POLL, vfl, shift, back):
    return [label(lab), bload(1, POLL, vfl, sDBG, 0, 0, 'sc1'), S(f"s_sub_u32 s{sCnt}, s{sCnt}, 1"), S(f"s_cmp_lt_i32 s{sCnt}, 0"), branch("s_cbranch_scc1", back),
            wait(vm=0), V(f"v_readfirstlane_b32 s{sT2}, v{POLL}"), S(f"s_bfe_u32 s{sT2}, s{sT2}, {0x40000 + shift:#x}"), S(f"s_cmp_eq_u32 s{sT2}, 15"),
            branch("s_cbranch_scc1", back), raw(f"s_sleep {Cfg.xsleep}"), branch("s_branch", lab)]

def gen_opre(w):
    sSo, sLd = sTK, sTV
    C = []
    for u in range(2):
        C += [label(f"L_opre{u}"), S(f"s_bitcmp1_b32 s{sWave}, 1"), branch("s_cbranch_scc1", f"L_opre{u}_1")]
        for nh in range(2):
            step = 10240 if nh == 0 else 40960
            B = [label(f"L_opre{u}_{nh}")]
            if u == 0:
                t = w.tmp + 1
                B += lane_id(t) + o_voff(nh, w.oVoff, t, w.dummy, w.vTch) + o_base(nh, sSo, sLd)
                B += [S(f"s_and_b32 s{sT3}, s{sG}, 4"), S(f"s_mul_i32 s{sT3}, s{sT3}, {16*step}"), S(f"s_add_u32 s{sSo}, s{sSo}, s{sT3}")]
            for ks in range(2): B += flat(o_dma(nh, u, w.oVoff, sSo, sLd, goff=ks * 4 * step, loff=ks * 20480))
            B += [branch("s_branch", f"L_opre{u}_back")]
            C += fix_hazards(B)
    C += fix_hazards([label("L_g1"), S(f"s_mov_b32 s{sCnt}, 0x8000"), V(f"v_mov_b32 v{w.tmp+2}, s{sFlag}")] + spin("L_g1_spin", w.oPoll, w.tmp + 2, 0, "L_g1_back"))
    return C

def gen_o():
    ACC = 0; SET = [100, 140]
    aB, aA0, aA1 = 180, 182, 184
    VOFF, POLL, VFL, T, L16, POLL2 = 186, 187, 188, 190, 196, 198
    LW, LR, VO, VO2 = T + 2, T + 3, T + 4, 199
    RB = 200
    sSo, sHi, sLd, sBase, sKs, sNq = 36, 37, 39, 40, 43, 44
    sXo, sXp, sOb, sVar = 60, 61, 62, 63
    sOD = sK
    st = lambda k, real=False: stamp(T, k, real)
    def acc(t): return ACC + 4 * t
    def fB(s_, jj): return SET[s_] + 4 * jj
    def fA(s_, nn): return SET[s_] + 20 + 4 * nn
    TS = [list(range(0, 7)), list(range(7, 13)), list(range(13, 19)), list(range(19, 25))]
    C = [label("L_o")] + st(80)
    if Cfg.prio: C += [raw("s_setprio 0")]
    lane = T; a = T + 1; b = T + 5
    C += lane_id(lane) + [V(f"v_lshlrev_b32 v{L16}, 4, v{lane}")]
    C += [S(f"s_lshr_b32 s{sKs}, s{sWave}, 2"), S(f"s_mul_i32 s{sT0}, s{sKs}, 20480"), S(f"s_and_b32 s{sT1}, s{sWave}, 1"), S(f"s_mul_i32 s{sT1}, s{sT1}, 5120"),
          S(f"s_add_u32 s{sT1}, s{sT0}, s{sT1}"),
          V(f"v_add_u32 v{aB}, s{sT1}, v{L16}"), V(f"v_add_u32 v{aB+1}, {2*OSLOT}, v{aB}"),
          V(f"v_lshrrev_b32 v{a}, 2, v{lane}"), V(f"v_bfe_u32 v{b}, v{lane}, 4, 1"), V(f"v_lshlrev_b32 v{b}, 5, v{b}"), V(f"v_lshl_add_u32 v{b}, v{a}, 6, v{b}"),
          V(f"v_and_b32 v{a}, 3, v{lane}"), V(f"v_lshl_add_u32 v{b}, v{a}, 3, v{b}"),
          S(f"s_add_u32 s{sT1}, s{sT0}, 10240"), V(f"v_add_u32 v{aA0}, s{sT1}, v{b}"), V(f"v_xor_b32 v{aA1}, 32, v{aA0}"),
          V(f"v_add_u32 v{aA0+1}, {2*OSLOT}, v{aA0}"), V(f"v_add_u32 v{aA1+1}, {2*OSLOT}, v{aA1}"),
          S(f"s_mov_b32 s{sHi}, 0")]
    C += [S(f"s_bitcmp1_b32 s{sWave}, 1"), branch("s_cbranch_scc1", "L_o_1")]
    C = fix_hazards(C)
    def late_setup():
        return [V(f"v_mov_b32 v{VFL}, s{sFlag}"), V(f"v_xor_b32 v{VFL+1}, 4, v{VFL}"), V(f"v_mov_b32 v{POLL}, 0"), V(f"v_mov_b32 v{POLL2}, 0"),
         S(f"s_and_b32 s{sNq}, s{sG}, 3"), S(f"s_mov_b32 s{sCnt}, 0x8000"),
         S(f"s_mul_i32 s{sT0}, s{sWave}, 13312"), V(f"v_add_u32 v{LW}, s{sT0}, v{L16}"),
         S(f"s_xor_b32 s{sT1}, s{sWave}, 4"), S(f"s_mul_i32 s{sT0}, s{sT1}, 13312"), V(f"v_add_u32 v{LR}, s{sT0}, v{L16}"),
         S(f"s_lshl_b32 s{sT0}, s2, 3"), S(f"s_add_u32 s{sT0}, s{sT0}, s{sWave}"), S(f"s_mul_i32 s{sXo}, s{sT0}, {SLAB}"), S(f"s_add_u32 s{sXo}, s{sXo}, {XCH_OFF}"),
         S(f"s_xor_b32 s{sT0}, s{sT0}, {8 if Cfg.map84 else 256}"), S(f"s_mul_i32 s{sXp}, s{sT0}, {SLAB}"), S(f"s_add_u32 s{sXp}, s{sXp}, {XCH_OFF}"),
         V(f"v_bfe_u32 v{VO}, v{L16}, 4, 4"), V(f"v_mul_u32_u24 v{VO}, 1280, v{VO}"),
         V(f"v_bfe_u32 v{a}, v{L16}, 8, 1"), V(f"v_lshl_add_u32 v{VO2}, v{a}, 5, v{VO}"), V(f"v_lshrrev_b32 v{a}, 9, v{L16}"), V(f"v_lshl_add_u32 v{VO2}, v{a}, 4, v{VO2}"),
         V(f"v_lshrrev_b32 v{a}, 8, v{L16}"), V(f"v_lshl_add_u32 v{VO}, v{a}, 3, v{VO}"),
         S(f"s_mul_i32 s{sOb}, s{sB}, 204800"), S(f"s_and_b32 s{sT0}, s{sWave}, 1"), S(f"s_mul_i32 s{sT0}, s{sT0}, 102400"), S(f"s_add_u32 s{sOb}, s{sOb}, s{sT0}"),
         S(f"s_mul_i32 s{sT0}, s{sNq}, 320"), S(f"s_add_u32 s{sOb}, s{sOb}, s{sT0}"), S(f"s_bfe_u32 s{sT0}, s{sWave}, 0x10001"), S(f"s_mul_i32 s{sT0}, s{sT0}, 160"),
         S(f"s_add_u32 s{sOb}, s{sOb}, s{sT0}"),
         S(f"s_lshr_b32 s{sVar}, s{sG}, 2"), S(f"s_lshl_b32 s{sT1}, s{sKs}, 1"), S(f"s_add_u32 s{sVar}, s{sVar}, s{sT1}")] + mode_vcc()
    def poll_load(): return [bload(1, POLL, VFL, sDBG, 0, 0, 'sc1'), bload(1, POLL2, VFL + 1, sDBG, 0, 0, 'sc1')]
    for nh in range(2):
        step = 10240 if nh == 0 else 40960
        src = sWS if nh == 0 else sWO
        R_ = [label(f"L_o_{nh}")] + o_voff(nh, VOFF, lane, a, b) + o_base(nh, sBase, sLd) + [S(f"s_add_u32 s{sLd}, s{sLd}, s{sT0}")]
        R_ += [S(f"s_mov_b32 s{sOD+i}, s{src+i}") for i in range(3)]
        def head_setup():
            return [S(f"s_and_b32 s{sT2}, s{sHi}, 3"), S(f"s_and_b32 s{sT3}, s{sG}, 4"), S(f"s_add_u32 s{sT2}, s{sT2}, s{sT3}"),
                    S(f"s_lshl_b32 s{sT2}, s{sT2}, 2"), S(f"s_lshr_b32 s{sT3}, s{sHi}, 2"), S(f"s_lshl_b32 s{sT3}, s{sT3}, 1"), S(f"s_add_u32 s{sT2}, s{sT2}, s{sT3}"),
                    S(f"s_add_u32 s{sT2}, s{sT2}, s{sKs}"), S(f"s_mul_i32 s{sT2}, s{sT2}, {4*step}"), S(f"s_add_u32 s{sSo}, s{sBase}, s{sT2}"),
                    S(f"s_add_u32 s{sHi}, s{sHi}, 1")]
        odma = lambda u: o_dma(nh, u, VOFF, sSo, sLd, srd_=sOD)
        def oreads(u):
            s_ = u & 1; hi = oslot(u) // (2 * OSLOT); off = oslot(u) % (2 * OSLOT)
            G = []
            for k in range(5):
                nb = 5 * nh + k
                ar = (aA1 if nb & 1 else aA0) + hi
                G.append([ds_read(2, fA(s_, k) + 2 * hh, ar, off + (hh * 5 + (nb >> 1)) * 1024, tr=True) for hh in range(2)])
                G.append([ds_read(4, fB(s_, k), aB + hi, off + k * 1024)])
            return G
        def omf(s_): return [mfma(acc(t), fA(s_, t % 5), fB(s_, t // 5), acc(t)) for t in range(25)]
        R_ += head_setup()
        R_ += [wait(vm=18), barrier()] + st(81) + st(82)
        R_ += flat(oreads(0))
        for r in range(50): R_.append(V(f"v_pk_mov_b32 v[{ACC+2*r}:{ACC+2*r+1}], 0, 0"))
        R_ += late_setup() + flat(odma(2))
        R_ += [wait(vm=13), branch("s_branch", f"L_o_in{nh}")]
        R_, q = finish(R_)
        it = lambda hi, wv, lab: [S(f"s_lshl_b32 s{sT2}, s{sHi}, 3"), S(f"s_add_u32 s{sT2}, s{sT2}, s{sWave}"), S(f"s_cmp_lg_u32 s{sT2}, {hi*8+wv}"), branch("s_cbranch_scc1", lab)]
        def ostage(u):
            L = [wait(vm=5, lgkm=0), barrier()]
            if u == 1: L = [wait(vm=5), label(f"L_o_in{nh}"), wait(lgkm=0), barrier()]
            fill = [(oreads(u), 0, Cfg.orh)]
            d = odma((u + 2) & 3)
            if u == 1:
                d = d + [head_setup() + [S(f"s_cmp_gt_u32 s{sHi}, 8"), S(f"s_cselect_b32 s{sOD+2}, 0, s{sOD+2}")]]
                if nh == 0: d = d + [it(5, 0, "L_g3_back") + gate("L_g2", POLL, VFL, 8) + [label("L_g2_back")] + gate("L_g3", POLL2, VFL + 1, 0) + [label("L_g3_back")]]
            if u == 3 and nh == 0: d = [it(4, 0, "L_p2") + poll_load() + [label("L_p2")]] + d
            if u == 2 and nh == 1:
                d = [it(2, 2, "L_nofl2") + [S(f"s_lshl_b32 s{sT2}, 0x100, s{sNq}")] + flag_add(T, f"s{sT2}", "L_nofl2")] + d
            if u == Cfg.tlbu and Cfg.tlbwarm:
                d = d + [[S(f"s_cmp_lg_u32 s{sHi}, {Cfg.tlbwarm}"), branch("s_cbranch_scc1", f"L_tw{nh}"), V(f"v_lshlrev_b32 v{T}, 3, v{L16}"), V(f"v_min_u32 v{T}, {SLAB-128}, v{T}"),
                          bload(1, RB, T, sWS, f"s{sXo}", 0, 'sc1'), label(f"L_tw{nh}")]]
            if u == 3: d = d + [[S(f"s_cmp_gt_u32 s{sHi}, 8")]]
            fill.append((d, Cfg.od0, Cfg.od1))
            if Cfg.oprio:
                n_ = len(Cfg.oprio)
                L = L[:-1] + [raw(f"s_setprio {n_}"), L[-1]]
                for i, pos in enumerate(Cfg.oprio): fill.append(([[raw(f"s_setprio {n_-1-i}")]], pos - 1, pos))
            return L + spread(omf(1 - (u & 1)), fill)
        B = [label(f"L_o_loop{nh}")] + ostage(1) + ostage(2) + ostage(3) + [branch("s_cbranch_scc1", "L_o_fin")] + ostage(0) + [branch("s_branch", f"L_o_loop{nh}")]
        Bc, q2 = loop_finish(B, [], R_)
        E = []
        if nh == 0: E += spin("L_g2", POLL, VFL, 8, "L_g2_back") + spin("L_g3", POLL2, VFL + 1, 0, "L_g3_back")
        C += R_ + Bc + fix_hazards(E)
    E = [label("L_o_fin")] + st(83) + [wait(vm=0, lgkm=0), barrier()]
    for v in range(1, 4): E += [S(f"s_cmp_eq_u32 s{sVar}, {v}"), branch("s_cbranch_scc1", f"L_o_epi{v}")]
    C += E
    for v in range(4):
        ks, kh = v >> 1, v & 1
        mine = TS[v]; xsend = TS[v ^ 1]; keep = sorted(mine + xsend); lsend = sorted(TS[v ^ 2] + TS[v ^ 3])
        ls = lambda i: [raw(f"s_memtime s[{64+2*i}:{65+2*i}]" if i < 4 else f"s_memtime s[{92+2*(i-4)}:{93+2*(i-4)}]"), wait(lgkm=0)] if Cfg.stamps == 6 else []
        E = [label(f"L_o_epi{v}")] + ls(0)
        order = lsend + xsend + mine
        mf = [mfma(acc(t), fA(1, t % 5), fB(1, t // 5), acc(t)) for t in order]
        wr = [[ds_write(4, LW, acc(t), i * 1024)] for i, t in enumerate(lsend)]
        E += spread(mf, [(wr, 4, 19)])
        E += [wait(lgkm=0)] + ls(1) + [barrier()] + ls(2)
        rorder = xsend + mine
        for i, t in enumerate(rorder): E.append(ds_read(4, RB + 4 * i, LR, keep.index(t) * 1024))
        PK = SET[0]
        for i, t in enumerate(rorder):
            for r in range(0, 4, 2): E.append(V(f"v_pk_add_f32 v[{acc(t)+r}:{acc(t)+r+1}], v[{acc(t)+r}:{acc(t)+r+1}], v[{RB+4*i+r}:{RB+4*i+r+1}]"))
            if t in xsend:
                k = xsend.index(t)
                E += [V(f"v_cvt_pk_bf16_f32 v{PK+2*k}, v{acc(t)}, v{acc(t)+1}"), V(f"v_cvt_pk_bf16_f32 v{PK+2*k+1}, v{acc(t)+2}, v{acc(t)+3}")]
                if k & 1 or k == len(xsend) - 1: E += dstore(4, PK + 4 * (k >> 1), L16, sWS, f"s{sXo}", (k >> 1) * 1024)
        E += st(84) + ls(3)
        n = len(mine); nl = (n + 1) // 2
        E += [V(f"v_mov_b32 v{POLL2}, 1"), V(f"v_mov_b32 v{VFL}, {SLAB-128}"), wait(vm=0), S("s_mov_b64 exec, 1")] + dstore(1, POLL2, VFL, sWS, f"s{sXo}", 0)
        if Cfg.poll_nt:
            SLOW.append([label(f"L_xp{v}"), bload(1, POLL, VFL, sWS, f"s{sXp}", 0, 'sc1'), branch("s_branch", f"L_xp{v}_b")])
            pl = [branch("s_cbranch_vccz", f"L_xp{v}"), bload(1, POLL, VFL, sWS, f"s{sXp}", 0, 'nt'), label(f"L_xp{v}_b")]
        else: pl = [bload(1, POLL, VFL, sWS, f"s{sXp}", 0, 'sc1')]
        E += [label(f"L_x{v}")] + pl + [
              S(f"s_sub_u32 s{sCnt}, s{sCnt}, 1"), S(f"s_cmp_lt_i32 s{sCnt}, 0"), branch("s_cbranch_scc1", f"L_x{v}_ok"), wait(vm=0),
              V(f"v_readfirstlane_b32 s{sT2}, v{POLL}"), S(f"s_cmp_eq_u32 s{sT2}, 1"), branch("s_cbranch_scc1", f"L_x{v}_ok"),
              raw(f"s_sleep {Cfg.xsleep2}"), branch("s_branch", f"L_x{v}"), label(f"L_x{v}_ok"), S("s_mov_b64 exec, -1")]
        ld = lambda pol: [bload(4, RB + 4 * k, L16, sWS, f"s{sXp}", k * 1024, pol) for k in range(nl)]
        SLOW.append([label(f"L_xl{v}")] + ld('sc1') + [branch("s_branch", f"L_xl{v}_b")])
        E += [branch("s_cbranch_vccz", f"L_xl{v}")] + ld('') + [label(f"L_xl{v}_b")]
        E += st(85) + ls(4)
        E += [wait(vm=0)] + ls(6)
        U = RB + 16
        k = 0
        while k < n:
            pair = Cfg.widest and k + 1 < n and mine[k] // 5 == mine[k + 1] // 5
            d = acc(mine[k])
            for h in range(2 if pair else 1):
                a_ = acc(mine[k + h]); r0 = RB + 2 * (k + h)
                E += [V(f"v_lshlrev_b32 v{U}, 16, v{r0}"), V(f"v_and_b32 v{U+1}, 0xffff0000, v{r0}"), V(f"v_lshlrev_b32 v{U+2}, 16, v{r0+1}"), V(f"v_and_b32 v{U+3}, 0xffff0000, v{r0+1}")]
                for r in range(0, 4, 2): E.append(V(f"v_pk_add_f32 v[{a_+r}:{a_+r+1}], v[{a_+r}:{a_+r+1}], v[{U+r}:{U+r+1}]"))
                E += [V(f"v_cvt_pk_bf16_f32 v{d+2*h}, v{a_}, v{a_+1}"), V(f"v_cvt_pk_bf16_f32 v{d+2*h+1}, v{a_+2}, v{a_+3}")]
            t = mine[k]
            E += [S(f"s_add_u32 s{sT0}, s{sOb}, {(t//5)*20480}")]
            if pair: E += [V(f"v_permlane16_swap_b32 v{d}, v{d+2}"), V(f"v_permlane16_swap_b32 v{d+1}, v{d+3}"), bstore(4, d, VO2, sOUT, f"s{sT0}", (t % 5) * 32, Cfg.out_pol)]
            else: E += [bstore(2, d, VO, sOUT, f"s{sT0}", (t % 5) * 32, Cfg.out_pol)]
            k += 2 if pair else 1
        E += st(86) + st(77, True)
        if Cfg.stamps == 6:
            E += [wait(vm=0)] + ls(5) + [V(f"v_mov_b32 v{T+1}, 0"), V(f"v_mov_b32 v{T}, s{sCnt}"), bstore(1, T, T + 1, sWS, f"s{sStamp+2}", 4 * 106)]
            for i, r in enumerate([64, 66, 68, 70, 92, 94]): E += [V(f"v_mov_b32 v{T}, s{r}"), bstore(1, T, T + 1, sWS, f"s{sStamp+2}", 4 * (100 + i))]
            E += [V(f"v_mov_b32 v{T}, s96"), bstore(1, T, T + 1, sWS, f"s{sStamp+2}", 4 * 107)]
        if Cfg.dbgst and ks == 1:
            E += [S(f"s_cmp_lg_u32 s{sWave}, 4"), branch("s_cbranch_scc1", f"L_dbgend{v}"), S(f"s_cmp_lg_u32 s2, {Cfg.dbgst}"), branch("s_cbranch_scc1", f"L_dbgend{v}"),
                  S("s_mov_b64 exec, 1"), V("v_mov_b32 v1, 0")]
            for i, r in enumerate(DREG):
                E += [S(f"s_sub_u32 s{r}, s{r}, s{sStamp+2}"), S(f"s_lshr_b32 s{r}, s{r}, 8"), S(f"s_and_b32 s{r}, s{r}, 0x3ff"), S(f"s_lshl_b32 s{r}, s{r}, {12 + 10*(i&1)}"), V(f"v_mov_b32 v{2+i}, s{r}"),
                      raw(f"buffer_atomic_or v{2+i}, v1, s[{sDBG}:{sDBG+3}], 0 offen offset:{8*(i>>1)+4} sc1")]
            E += [label(f"L_dbgend{v}")]
        E += [raw("s_endpgm")]
        E, _ = finish(E)
        C += E
    return C

def gen_kernel(name):
    C = [raw(f".globl {name}\n.p2align 8\n.type {name},@function\n{name}:\nKSTART:", 'label')]
    C += [S("s_cmp_lt_u32 s2, 256"), branch("s_cbranch_scc1", "L_go"), raw("s_endpgm"), label("L_go")]
    C += [raw("s_load_dwordx16 s[56:71], s[0:1], 0")]
    if Cfg.ent: C += [raw("s_memtime s[92:93]"), raw("s_memrealtime s[100:101]")]
    if Cfg.dbgst: C += [raw(f"s_memtime s[{sStamp+2}:{sStamp+3}]")] + [S(f"s_mov_b32 s{r}, 0") for r in DREG]
    if Cfg.delay:
        C += [S(f"s_bitcmp0_b32 s2, {Cfg.delay_bit}"), branch("s_cbranch_scc1", "L_nodelay"), S(f"s_mov_b32 s{sT0}, {Cfg.delay // 1024}"), label("L_delay"), raw("s_sleep 16"),
              S(f"s_sub_u32 s{sT0}, s{sT0}, 1"), S(f"s_cmp_lg_u32 s{sT0}, 0"), branch("s_cbranch_scc1", "L_delay"), label("L_nodelay")]
    C += [V("v_lshrrev_b32 v1, 6, v0"),
          S(f"s_and_b32 s{sB}, s2, 7"), S(f"s_lshl_b32 s{sB}, s{sB}, 2"), V(f"v_readfirstlane_b32 s{sWave}, v1"),
          S(f"s_lshr_b32 s{sT0}, s2, 6"), S(f"s_add_u32 s{sB}, s{sB}, s{sT0}"), S(f"s_bfe_u32 s{sG}, s2, 0x30003")]
    if Cfg.map84:
        C += [S(f"s_and_b32 s{sB}, s2, 6"), S(f"s_lshl_b32 s{sB}, s{sB}, 2"), S(f"s_lshr_b32 s{sT0}, s2, 5"), S(f"s_add_u32 s{sB}, s{sB}, s{sT0}"),
              S(f"s_and_b32 s{sG}, s2, 1"), S(f"s_lshl_b32 s{sG}, s{sG}, 2"), S(f"s_bfe_u32 s{sT0}, s2, 0x20003"), S(f"s_add_u32 s{sG}, s{sG}, s{sT0}")]
    C += [S(f"s_bfe_u32 s{sT0}, s{sWave}, 0x10001"), S(f"s_lshl_b32 s{sT2}, s{sG}, 2"), S(f"s_add_u32 s{sT2}, s{sT2}, s{sT0}"), S(f"s_lshl_b32 s{sWbase}, s{sT2}, 8"),
          S(f"s_cmp_lt_u32 s{sWave}, 4"), branch("s_cbranch_scc1", "L_w3"),
          S(f"s_and_b32 s{sT1}, s{sWave}, 1"), S(f"s_lshl_b32 s{sT2}, s{sT1}, 10"),
          S(f"s_lshl_b32 s{sLdsKV}, s{sT0}, 13"), S(f"s_add_u32 s{sLdsKV}, s{sLdsKV}, s{sT2}"),
          S(f"s_mul_i32 s{sLdsX}, s{sT0}, 10240"), S(f"s_add_u32 s{sLdsX}, s{sLdsX}, s{sT2}"),
          S(f"s_mul_i32 s{sXbase}, s{sB}, 204800"), S(f"s_mul_i32 s{sT2}, s{sT0}, 102400"), S(f"s_add_u32 s{sXbase}, s{sXbase}, s{sT2}")]
    if Cfg.rot:
        C += [S(f"s_bfe_u32 s{sRho}, s2, 0x20003") if Cfg.map84 else S(f"s_lshr_b32 s{sRho}, s2, 6"), S(f"s_mul_i32 s{sRho}, s{sRho}, 5"), S(f"s_add_u32 s{sRho}, s{sRho}, 1"), S(f"s_lshr_b32 s{sRho}, s{sRho}, 1"),
              S(f"s_lshr_b32 s{sT2}, s2, 5") if Cfg.map84 else S(f"s_mov_b32 s{sT2}, s{sG}"), S(f"s_add_u32 s{sRho}, s{sRho}, s{sT2}"), S(f"s_and_b32 s{sT2}, s2, 7"), S(f"s_add_u32 s{sRho}, s{sRho}, s{sT2}")]
        for _ in range(2): C += [S(f"s_sub_u32 s{sT2}, s{sRho}, 10"), S(f"s_cmp_ge_u32 s{sRho}, 10"), S(f"s_cselect_b32 s{sRho}, s{sT2}, s{sRho}")]
        if Cfg.rotn == 88: C += [S(f"s_lshr_b32 s{sRho}, s2, 5"), S(f"s_and_b32 s{sRho}, s{sRho}, 6"), S(f"s_add_u32 s{sRho}, s{sRho}, s{sG}"), S(f"s_add_u32 s{sRho}, s{sRho}, s2")]
        if Cfg.rotn == 19: C += [S(f"s_cmp_eq_u32 s{sRho}, 9"), S(f"s_cselect_b32 s{sRho}, 4, s{sRho}")]
        if Cfg.rotn == 8: C += [S(f"s_and_b32 s{sRho}, s2, 7")]
        if Cfg.rotn == 16:
            C += [S(f"s_and_b32 s{sRho}, s{sRho}, 1"), S(f"s_mul_i32 s{sRho}, s{sRho}, 5"), S(f"s_and_b32 s{sT2}, s2, 7"), S(f"s_add_u32 s{sRho}, s{sRho}, s{sT2}"),
                  S(f"s_sub_u32 s{sT2}, s{sRho}, 10"), S(f"s_cmp_ge_u32 s{sRho}, 10"), S(f"s_cselect_b32 s{sRho}, s{sT2}, s{sRho}")]
        if Cfg.rotn == 2: C += [S(f"s_and_b32 s{sRho}, s{sRho}, 1"), S(f"s_mul_i32 s{sRho}, s{sRho}, 5")]
        if Cfg.rotn == 4: C += [S(f"s_and_b32 s{sRho}, s{sRho}, 3"), S(f"s_mul_i32 s{sRho}, s{sRho}, 5"), S(f"s_lshr_b32 s{sRho}, s{sRho}, 1")]
    C = fix_hazards(C)
    w2, r2 = gen_w2(); w3, r3 = gen_w3()
    C += w2 + w3 + gen_o() + [label("KEND")] + r2 + r3 + flat(SLOW)
    for k, tag, par in CTX.stubs:
        C += [label(f"L_stub{k}"), raw(f"s_call_b64 s[{sRet}:{sRet+1}], L_rare_{tag}_{par}", 'branch'), branch("s_branch", f"L_back{k}")]
    return C

def kd(name, vgpr, accum, sgpr=102):
    return f""".section .rodata,"a"
.p2align 6
.amdhsa_kernel {name}
  .amdhsa_next_free_vgpr {vgpr}
  .amdhsa_next_free_sgpr {sgpr}
  .amdhsa_accum_offset {accum}
  .amdhsa_group_segment_fixed_size 0
  .amdhsa_kernarg_size 64
  .amdhsa_user_sgpr_count 2
  .amdhsa_user_sgpr_kernarg_segment_ptr 1
  .amdhsa_system_sgpr_workgroup_id_x 1
.end_amdhsa_kernel
"""

HDR = open('standalone__mha_block_cached__near_ridge.s.ref').read().split('; Override launch')[0]
def main(path):
    k1 = "standalone__mha_block_cached__near_ridge_kernel"
    s = HDR
    s += f"; @launch grid=(256,1,1) block=(512,1,1) lds={LDS_BYTES}\n"
    s += '.amdgcn_target "amdgcn-amd-amdhsa--gfx950"\n.text\n'
    s += emit(gen_kernel(k1))
    s += kd(k1, 256, 256)
    open(path, 'w').write(s)
if __name__ == '__main__':
    for a in sys.argv[2:]:
        k, v = a.split('=', 1); setattr(Cfg, k, eval(v))
    main(sys.argv[1] if len(sys.argv) > 1 else 'mha2.s')
```

```python
import sys, math, struct
from ir import *

SLOT = 16384
NSLOT = 10
NW, NX = 6, 3
WPERM = [4, 5, 1, 3, 0, 2]
def wslot(s): return WPERM[s % NW] * SLOT
def xbuf(u): return NW * SLOT + (u % NX) * 20480
WTAB = sum((((WPERM[(m + 1) % NW] - WPERM[m]) & 15) << (4 * m)) for m in range(NW))
LDS_BYTES = 163840
O_BYTES = 32 * 128 * 10 * 1024
XCH_OFF = O_BYTES
SLAB = 4096 + 128
XCH_WG = 8 * SLAB
MODE_LDS = LDS_BYTES - 4
WS_BYTES = XCH_OFF + 256 * XCH_WG
QSCALE = math.log2(math.e) / math.sqrt(128.0)
THR = 16384.0
def f2u(x): return "0x%08x" % struct.unpack('<I', struct.pack('<f', x))[0]

sK, sV, sW, sX, sWS, sWO, sOUT, sDBG = 8, 12, 16, 20, 24, 28, 76, 80
sWave, sRound, sB, sG = 32, 33, 34, 35
sKVbase, sWbase, sXbase, sLdsKV, sLdsX = 36, 37, 38, 39, 40
sT0, sT1 = 41, 42
sKpos, sVpos, sD, sCnt, sXd, sLoop = 43, 44, 45, 49, 50, 51
sRet = 46
sOst = 48
sKX, sFlag = 52, 53
sT2, sT3 = 54, 55
sQS, sC16, sC32, sCX = 72, 73, 74, 75
sTK, sTV, sCnt2 = 88, 89, 90
sTau = 64
sMode = 91
sRho, sT4 = 3, 87
sOoff = 56
sStamp = 84
DBG_OFF = 96 << 20

class Cfg:
    stamps = False
    dbgst = False
    dsl = None
    rot = True
    orot = True
    warm0 = False
    delay = 0
    delay_bit = 7
    LA = 7
    kv_pol = 'nt'
    touch_pol = ''
    touch_at = []
    warm = True
    xsleep = 8
    kv_same = False
    holes = []
    qcap = 9
    map84 = True
    fake_wot = False
    capfrom = 10
    cap0 = False
    place2 = {'wo': (8, 0)}
    cap = 5
    drain = {}
    wo2n = 39
    jit = 1
    wo2pol = ''
    place = {'code': ('A0', 1)}
    oprio = [6, 12, 18]
    v_pol = None
    ent = False
    tlbwarm = 0
    tlbu = 1
    slabmall = True
    widest = True
    pro_pol = ''
    wx_pol = ''
    poll_nt = False
    taumul = 8
    taush = 2
    taumask = 15
    kvgrp = 1
    pace = 5.0
    lead = 2
    tbatch = []
    qr3 = 18
    qr2 = 15
    orh = 20
    od0 = 1
    od1 = 24
    ofirst = True
    qd0 = 0
    qprio = 1
    ofast_pol = ''
    fast0 = False
    out_pol = ''
    dsplit = 50
    rotn = 10
    late = 8
    smpure = 0.7
    pp = False
    pp_a = 1
    pp_b = 0
    ostamp = False
    xsleep2 = 2
    dual = True
    fast = True
    codetouch2 = True
    codetouch = True
    qcut = 4
    prio = 2
    no_sm = False
    no_dma = False
    no_exp = False
    no_chk = False
    no_ds = False
    no_adv = False
    ost_pol = 'sc1'
    old_pol = 'sc1'
    o_skip = 0
    o_vm1 = 10
    smend = 3

RT4 = {7: 90, 39: 91, 45: 92, 73: 93, 82: 94, 83: 95}
STAMP3 = (0, 1, 3, 5, 7, 39, 41, 43, 45, 73, 75, 76, 77, 80, 81, 82, 83, 84, 85, 86)
DSL = {(1, 0): 0, (41, 0): 1, (45, 0): 2, (73, 0): 3, (1, 1): 4, (41, 1): 5, (45, 1): 6, (73, 1): 7, (80, 2): 8, (82, 2): 9, (83, 2): 10, (84, 2): 11, (85, 2): 12, (86, 2): 13}
sDS = 4
DREG = [4, 5, 6, 7, 101, 92, 93, 94, 95, 96, 97, 98, 99, 100]
def stamp(t, k, real=False):
    if Cfg.dbgst:
        if real: return []
        dsl = DSL if not Cfg.dsl else {(2 * b + 1, Cfg.dsl[0]): i for i, b in enumerate(Cfg.dsl[1:])}
        hits = [(r, i) for (kk, r), i in dsl.items() if kk == k]
        if not hits: return []
        out = [raw(f"s_memtime s[{sStamp}:{sStamp+1}]"), wait(lgkm=0)]
        for r, i in hits:
            out += [S(f"s_cmp_eq_u32 s{sRound}, {r}"), S(f"s_cselect_b32 s{DREG[i]}, s{sStamp}, s{DREG[i]}")]
        return out
    if not Cfg.stamps: return []
    if Cfg.stamps == 6: return []
    if Cfg.stamps == 7:
        if not (41 <= k <= 73 and k % 4 == 1) or real: return []
        real = True
    if Cfg.stamps == 4 and not real and k in RT4:
        Cfg.stamps = 5; r = stamp(t, k) + stamp(t, RT4[k], True); Cfg.stamps = 4; return r
    if Cfg.stamps in (3, 4) and k not in STAMP3: return []
    return [raw(f"{'s_memrealtime' if real else 's_memtime'} s[{sStamp}:{sStamp+1}]"), wait(lgkm=0), V(f"v_mov_b32 v{t}, s{sStamp}"), V(f"v_mov_b32 v{t+1}, 0"),
            S(f"s_and_b32 s{sStamp+1}, s{sRound}, 1"), S(f"s_lshl_b32 s{sStamp+1}, s{sStamp+1}, 9"), S(f"s_add_u32 s{sStamp+1}, s{sStamp+1}, s{sStamp+2}"),
            bstore(1, t, t + 1, sWS, f"s{sStamp+1}", 4 * k, tag=('misc',))]

def item_slot(n): return (n % NSLOT) * SLOT
def kidx(t): return 0 if t == 0 else 2 * t - 1
def vidx(t): return 2 * t + 2

class Wave:
    def __init__(self, nq):
        self.nq = nq
        n = nq
        p = 0
        self.O = p; p += 32 * n
        self.Q = p; p += 16 * n
        self.NM = p; p += 4 * n
        self.S = p; p += 8 * n
        self.P = p; p += 8 * n
        self.L = p; p += n
        self.LT = p; p += n
        self.T = p; p += 4
        self.aN = p; p += 2
        self.aT = p; p += 4
        p = (p + 3) & ~3
        self.F = p; self.NF = 8; p += 32
        self.dummy = p; p += 1
        self.tmp = p; p += 3
        if nq == 2:
            self.vK = p; self.vV = p + 1; self.vW = p + 2; self.vX = p + 3; self.vTch = p + 4; self.oVoff = p + 5; self.oPoll = p + 6; p += 7
        assert p <= 256, p
        self.end = p
        setsz = 32 + 4 * n
        if nq == 3:
            self.set = [self.Q, self.S]
        else:
            q = (p + 3) & ~3
            self.set = [self.Q, q]
            assert q + setsz <= 256
        self.tag = f"w{nq}"
        self.fpos = 0
    def o(self, T, j): return self.O + (T * self.nq + j) * 4
    def q(self, s, j): return self.Q + (s * self.nq + j) * 4
    def nm(self, j): return self.NM + 4 * j
    def s(self, kb, j): return self.S + (kb * self.nq + j) * 4
    def p(self, par, j): return self.P + (par * self.nq + j) * 4
    def fa(self, st, T): return self.set[st] + 4 * T
    def fb(self, st, j): return self.set[st] + 32 + 4 * j

def spread(base, fillers):
    ins = [[] for _ in range(len(base) + 1)]
    for groups, lo, hi in fillers:
        n = len(groups)
        if n == 0: continue
        hi = min(hi, len(base)); lo = min(lo, hi)
        span = hi - lo
        for k, gI in enumerate(groups):
            pos = lo + (k * span) // n + 1 if span > 0 else lo
            ins[min(pos, len(base))].extend(gI)
    out = list(ins[0])
    for i, b in enumerate(base):
        out.append(b); out.extend(ins[i + 1])
    return out

def frag_K(w, s, kb, first_c):
    def reads(f): return [ds_read(4, f, w.aN + (s & 1), kb * 4096 + (s >> 1) * 2048)]
    def mf(f):
        out = []
        for j in range(w.nq):
            c = w.s(kb, j) if s > 0 else (None if first_c == 'zero' else w.nm(j))
            out.append(mfma(w.s(kb, j), f, w.q(s, j), c))
        return out
    return dict(reads=reads, mf=mf, pre=[])
def frags_QK(w, first_c='negm', pre=()):
    fr = [frag_K(w, s, kb, first_c) for s in range(4) for kb in range(2)]
    fr[0]['pre'] = list(pre)
    return fr
def frag_V(w, db, par, zero):
    def reads(f): return [ds_read(2, f + 2 * hh, w.aT + (db & 3), hh * 4096 + (db >> 2) * 2048, tr=True) for hh in range(2)]
    def mf(f): return [mfma(w.o(db, j), f, w.p(par, j), None if zero else w.o(db, j)) for j in range(w.nq)]
    return dict(reads=reads, mf=mf, pre=[])
def frags_PV(w, par, zero=False, pre=()):
    fr = [frag_V(w, db, par, zero) for db in range(8)]
    fr[0]['pre'] = list(pre)
    return fr

def stream(w, frags, preloaded, nxt, fillers=(), lead=()):
    LA = Cfg.LA
    allf = list(frags) + list(nxt[:LA])
    head = []
    def issue(i):
        f = allf[i]
        return ([] if Cfg.no_adv else list(f['pre'])) + ([] if Cfg.no_ds else f['reads'](w.F + 4 * ((w.fpos + i) % w.NF)))
    for i in range(preloaded, min(LA, len(allf))): head += issue(i)
    base = list(lead); extra = []
    for i, f in enumerate(frags):
        m = f['mf'](w.F + 4 * ((w.fpos + i) % w.NF))
        base += m
        post = []
        if i + LA < len(allf) and i + LA >= preloaded: post += issue(i + LA)
        if post: extra.append(([post], len(base) - 1, len(base)))
    body = spread(base, list(extra) + list(fillers))
    w.fpos = (w.fpos + len(frags)) % w.NF
    return head + body

def softmax_groups(w, par):
    G = []
    k = 0
    for kb in range(2):
        for j in range(w.nq):
            for h in range(2):
                t0 = w.T + 2 * (k & 1); t1 = t0 + 1; k += 1
                sr = w.s(kb, j) + 2 * h
                G.append([V(f"v_exp_f32 v{t0}, v{sr}")])
                G.append([V(f"v_exp_f32 v{t1}, v{sr+1}")])
                lt = w.LT + j
                if kb == 0 and h == 0:
                    G.append(('late', [V(f"v_add_f32 v{lt}, v{t0}, v{t1}"), V(f"v_cvt_pk_bf16_f32 v{w.p(par,j)+2*kb+h}, v{t0}, v{t1}")]))
                else:
                    G.append(('late', [V(f"v_add_f32 v{lt}, v{lt}, v{t0}"), V(f"v_cvt_pk_bf16_f32 v{w.p(par,j)+2*kb+h}, v{t0}, v{t1}"),
                                       V(f"v_add_f32 v{lt}, v{lt}, v{t1}")]))
    if Cfg.no_sm: return [[V(f"v_mov_b32 v{w.LT+j}, 1.0")] for j in range(w.nq)]
    if Cfg.no_exp:
        for gI in G:
            if not isinstance(gI, tuple): gI[0] = V(gI[0].text.replace('v_exp_f32', 'v_mov_b32'))
    out = []; pend = None
    for gI in G:
        if isinstance(gI, tuple):
            pend = gI[1]
        else:
            out.append(gI)
            if pend is not None:
                out.append(pend); pend = None
    if pend is not None: out.append(pend)
    return out

class Ctx:
    def __init__(self): self.stubs = []; self.n = 0
CTX = Ctx()

SLOW = []
def dstore(n, src, voff, srd_, soff, imm, tag=None, pol=''):
    if not Cfg.dual: return [bstore(n, src, voff, srd_, soff, imm, 'sc1', tag=tag)]
    k = len(SLOW)
    SLOW.append([label(f"L_slow{k}"), bstore(n, src, voff, srd_, soff, imm, 'sc1'), branch("s_branch", f"L_slowb{k}")])
    return [branch("s_cbranch_vccz", f"L_slow{k}"), bstore(n, src, voff, srd_, soff, imm, pol, tag=tag), label(f"L_slowb{k}")]
def mode_vcc(): return [S(f"s_and_b32 s{sT1}, s{sMode}, s{sMode if Cfg.fast0 else sRound}"), S("s_cselect_b64 vcc, -1, 0")]
def mode_read(t):
    return [[V(f"v_mov_b32 v{t}, {MODE_LDS}"), ds_read(1, t, t, 0)],
            [V(f"v_readfirstlane_b32 s{sT1}, v{t}"), S(f"s_cmp_eq_u32 s{sRound}, 0"), S(f"s_cselect_b32 s{sMode}, s{sT1}, s{sMode}")]]

def check_cmp(w):
    if Cfg.no_chk: return []
    out = []
    if w.nq == 3: out.append(V(f"v_max3_f32 v{w.tmp}, v{w.LT}, v{w.LT+1}, v{w.LT+2}"))
    else: out.append(V(f"v_max_f32 v{w.tmp}, v{w.LT}, v{w.LT+1}"))
    out.append(I(f"v_cmp_nge_f32 vcc, {f2u(THR)}, v{w.tmp}", 'valu', wr={('s', 'vcc')}, rd=regs(w.tmp)))
    return out
def check_branch(w, par):
    if Cfg.no_chk: return []
    k = CTX.n; CTX.n += 1
    CTX.stubs.append((k, w.tag, par))
    return [branch("s_cbranch_vccnz", f"L_stub{k}"), label(f"L_back{k}")]
def l_accum(w, first=False):
    if first: return [V(f"v_mov_b32 v{w.L+j}, v{w.LT+j}") for j in range(w.nq)]
    return [V(f"v_add_f32 v{w.L+j}, v{w.L+j}, v{w.LT+j}") for j in range(w.nq)]
def sm_fillers(w, par, lo):
    nm = 8 * w.nq
    return [(softmax_groups(w, par) + [check_cmp(w)], lo, nm - Cfg.smend)]

def xlane(op, r, t):
    return [V(f"v_mov_b32 v{t}, v{r}"), V(f"v_permlane32_swap_b32 v{r}, v{t}"), V(f"{op} v{r}, v{r}, v{t}"),
            V(f"v_mov_b32 v{t}, v{r}"), V(f"v_permlane16_swap_b32 v{r}, v{t}"), V(f"{op} v{r}, v{r}, v{t}")]

def tile_max(w, j, dst):
    a, b = w.s(0, j), w.s(1, j)
    return [V(f"v_max3_f32 v{dst}, v{a}, v{a+1}, v{a+2}"), V(f"v_max3_f32 v{dst}, v{dst}, v{a+3}, v{b}"),
            V(f"v_max3_f32 v{dst}, v{dst}, v{b+1}, v{b+2}"), V(f"v_max_f32 v{dst}, v{dst}, v{b+3}")]

def first_max(w):
    out = []
    for j in range(w.nq): out += tile_max(w, j, w.LT + j)
    seqs = [xlane("v_max_f32", w.LT + j, w.T + j) for j in range(w.nq)]
    for k in range(6):
        for sq in seqs: out.append(sq[k])
    for j in range(w.nq):
        for r in range(4): out.append(V(f"v_sub_f32 v{w.nm(j)+r}, 0, v{w.LT+j}"))
        for kb in range(2):
            for r in range(4): out.append(V(f"v_sub_f32 v{w.s(kb,j)+r}, v{w.s(kb,j)+r}, v{w.LT+j}"))
    return out

def rare_routine(w, par):
    out = [label(f"L_rare_{w.tag}_{par}"), nop(15)]
    for j in range(w.nq):
        d = w.LT + j; f = w.T + 1
        out += tile_max(w, j, d)
        out += xlane("v_max_f32", d, w.T)
        out.append(V(f"v_max_f32 v{d}, 0, v{d}"))
        out.append(V(f"v_sub_f32 v{f}, 0, v{d}"))
        out.append(V(f"v_exp_f32 v{f}, v{f}"))
        for r in range(4): out.append(V(f"v_sub_f32 v{w.nm(j)+r}, v{w.nm(j)+r}, v{d}"))
        for kb in range(2):
            for r in range(4): out.append(V(f"v_sub_f32 v{w.s(kb,j)+r}, v{w.s(kb,j)+r}, v{d}"))
        out.append(V(f"v_mul_f32 v{w.L+j}, v{w.L+j}, v{f}"))
        for T in range(8):
            for r in range(4): out.append(V(f"v_mul_f32 v{w.o(T,j)+r}, v{w.o(T,j)+r}, v{f}"))
    for gI in softmax_groups(w, par): out += gI
    out.append(nop(3))
    out.append(raw(f"s_setpc_b64 s[{sRet}:{sRet+1}]", 'branch'))
    return fix_hazards(out)

def q_reads(w, st, sl):
    G = []
    for j in range(w.nq): G.append([ds_read(4, w.fb(st, j), w.aN + sl, j * 2048)])
    for T in range(8):
        for hh in range(2):
            G.append([ds_read(2, w.fa(st, T) + 2 * hh, w.aT + ((T >> 1) & 1), hh * 4096 + (T >> 2) * 2048 + (T & 1) * 8, tr=True)])
    return G
def q_mfmas(w, st, zero):
    return [mfma(w.o(T, j), w.fa(st, T), w.fb(st, j), None if zero else w.o(T, j)) for T in range(8) for j in range(w.nq)]

def q_pack_groups(w, s):
    G = []
    for j in range(w.nq):
        for half in range(2):
            a = w.o(2 * s + half, j)
            for r in range(4): G.append([V(f"v_mul_f32 v{a+r}, s{sQS}, v{a+r}")])
            G.append([V(f"v_cvt_pk_bf16_f32 v{w.q(s,j)+2*half}, v{a}, v{a+1}")])
            G.append([V(f"v_cvt_pk_bf16_f32 v{w.q(s,j)+2*half+1}, v{a+2}, v{a+3}")])
    return G
def q_pack_fillers(w):
    n = w.nq
    rng = [(2 * n + 2, 5 * n), (5 * n, 8 * n), (8 * n, 11 * n), (11 * n, 14 * n - 1)]
    return [(q_pack_groups(w, s), rng[s][0], rng[s][1]) for s in range(4)]

def l_reduce(w):
    out = []
    seqs = [xlane("v_add_f32", w.L + j, w.T + j) for j in range(w.nq)]
    for k in range(6):
        for sq in seqs: out.append(sq[k])
    for j in range(w.nq): out.append(V(f"v_rcp_f32 v{w.L+j}, v{w.L+j}"))
    out += [V(f"v_mbcnt_lo_u32_b32 v{w.tmp}, -1, 0"), V(f"v_mbcnt_hi_u32_b32 v{w.tmp}, -1, v{w.tmp}"), V(f"v_lshlrev_b32 v{w.tmp}, 4, v{w.tmp}")]
    return out
def epi_groups(w, s):
    G = []
    for j in range(w.nq):
        d = w.q(s, j)
        for half in range(2):
            a = w.o(2 * s + half, j)
            for r in range(4): G.append([V(f"v_mul_f32 v{a+r}, v{a+r}, v{w.L+j}")])
            G.append([V(f"v_cvt_pk_bf16_f32 v{d+2*half}, v{a}, v{a+1}")])
            G.append([V(f"v_cvt_pk_bf16_f32 v{d+2*half+1}, v{a+2}, v{a+3}")])
        G.append([S(f"s_add_u32 s{sT1}, s{sOst}, {s*10240}")] + dstore(4, d, w.tmp, sWS, f"s{sT1}", j * 1024, tag=('O', 0, True), pol=Cfg.ofast_pol))
    return G
def epi_fillers(w):
    n = w.nq
    rng = [(2 * n + 2, 4 * n + 2), (4 * n + 2, 6 * n + 2), (6 * n + 2, 8 * n), (8 * n, 8 * n)]
    return [([[i] for i in l_reduce(w)], 0, 2 * n + 1)] + [(epi_groups(w, s), rng[s][0], rng[s][1]) for s in range(4)]

def flat(G): return [i for g in G for i in g]
def one(L): return [[i] for i in L]

CAPN = [0]
def dma_kv(w, kind, t, nxt_round, tag):
    srd_ = sK if kind == 'K' else sV
    voff = w.vK if kind == 'K' else w.vV
    n = kidx(t) if kind == 'K' else vidx(t)
    lds = item_slot(n)
    G = []
    for a in range(2):
        for seg in range(2):
            G.append([S(f"s_add_u32 m0, s{sLdsKV}, {lds + a*4096 + seg*2048 - seg*128}"),
                      S(f"s_add_u32 s{sT0}, s{sT4}, {a*4096}"),
                      dma(voff, srd_, f"s{sT0}", seg * 128, Cfg.kv_pol if (kind == 'K' or Cfg.v_pol is None) else Cfg.v_pol, tag=tag)])
    if Cfg.cap and n >= Cfg.capfrom:
        for g in G:
            if Cfg.cap0:
                CAPN[0] += 1
                g[0:0] = [S(f"s_cmp_lg_u32 s{sRound}, 0"), branch("s_cbranch_scc1", f"L_cap{CAPN[0]}"), wait(vm=Cfg.cap - 1), label(f"L_cap{CAPN[0]}")]
            else: g.insert(2, wait(vm=Cfg.cap - 1))
    G[0] = [S(f"s_add_u32 s{sT4}, s{sTau}, {t*8192}"), S(f"s_and_b32 s{sT4}, s{sT4}, 0x1ffff"), S(f"s_add_u32 s{sT4}, s{sT4}, s{sKVbase}")] + G[0]
    return G
POL = ['']
def rot_off(u, unit, base):
    if not Cfg.rot: return [S(f"s_add_u32 s{sT4}, s{base}, {u*unit}")]
    if Cfg.rotn == 88:
        if u < 2: return [S(f"s_add_u32 s{sT4}, s{base}, {u*unit}")]
        return [S(f"s_add_u32 s{sT4}, s{sRho}, {u-2}"), S(f"s_and_b32 s{sT4}, s{sT4}, 7"), S(f"s_add_u32 s{sT4}, s{sT4}, 2"),
                S(f"s_mul_i32 s{sT4}, s{sT4}, {unit}"), S(f"s_add_u32 s{sT4}, s{sT4}, s{base}")]
    if Cfg.rotn == 19:
        if u < 1: return [S(f"s_add_u32 s{sT4}, s{base}, {u*unit}")]
        return [S(f"s_cmp_ge_u32 s{sRho}, {10-u}"), S(f"s_cselect_b32 s{sT4}, {u-9}, {u}"), S(f"s_add_u32 s{sT4}, s{sT4}, s{sRho}"),
                S(f"s_mul_i32 s{sT4}, s{sT4}, {unit}"), S(f"s_add_u32 s{sT4}, s{sT4}, s{base}")]
    return [S(f"s_cmp_ge_u32 s{sRho}, {10-u}"), S(f"s_cselect_b32 s{sT4}, {u-10}, {u}"), S(f"s_add_u32 s{sT4}, s{sT4}, s{sRho}"),
            S(f"s_mul_i32 s{sT4}, s{sT4}, {unit}"), S(f"s_add_u32 s{sT4}, s{sT4}, s{base}")]
def dma_w(w, s, nxt_round, tag):
    lds = wslot(s)
    goff = (s & 1) * 32 * 8192 + (512 if nxt_round else 0)
    G = []
    for hh in range(2):
        for seg in range(2):
            G.append([S(f"s_add_u32 m0, s{sLdsKV}, {lds + hh*4096 + seg*2048 - seg*128}"),
                      S(f"s_add_u32 s{sT0}, s{sT4}, {goff + hh*32768}"),
                      dma(w.vW, sW, f"s{sT0}", seg * 128, POL[0], tag=tag)])
    G[0] = rot_off(s >> 1, 64 * 8192, sWbase) + G[0]
    return G
def dma_x(w, u, tag):
    G = []
    for i in range(5):
        G.append([S(f"s_add_u32 m0, s{sLdsX}, {xbuf(u) + i*2048}"),
                  S(f"s_add_u32 s{sT0}, s{sT4}, {i*20480}"),
                  dma(w.vX, sX, f"s{sT0}", 0, POL[0], tag=tag)])
    G[0] = rot_off(u, 128, sXbase) + G[0]
    return G
def touch_kv(w, kind):
    srd_, ptr = (sK, sTK) if kind == 'K' else (sV, sTV)
    return [[bload(1, w.dummy, w.vTch, srd_, f"s{ptr}", 0, Cfg.touch_pol, tag=('misc',)), S(f"s_add_u32 s{ptr}, s{ptr}, 4096")]]

NAMES = {}
for _t in range(16):
    NAMES[kidx(_t)] = ('K', _t); NAMES[vidx(_t)] = ('V', _t)
def first_use(kind, i):
    if kind == 'W': return i
    if kind == 'X': return 2 * i
    if kind == 'K': return 20 if i == 0 else 19 + i
    if kind == 'V': return 21 + i
    if kind == 'O': return 3
    if kind == 'P': return 35

def loader_schedule(w):
    sch = {i: [] for i in range(37)}
    r0 = lambda G, lab: [[S(f"s_cmp_lg_u32 s{sRound}, 0"), branch("s_cbranch_scc1", lab)] + flat(G) + [label(lab)]]
    sch[0] += r0(dma_w(w, 2, False, ('W', 2, 'cond')), "L_r0a") + dma_x(w, 1, ('X', 1, False)) + r0(dma_w(w, 3, False, ('W', 3, 'cond')), "L_r0b")
    sch[1] += dma_w(w, 4, False, ('W', 4, False)) + dma_x(w, 2, ('X', 2, False))
    sch[2] += dma_w(w, 5, False, ('W', 5, False))
    if not Cfg.holes:
        for s in range(NW, 20): sch[max(s - NW + 1, 3)] += dma_w(w, s, False, ('W', s, False))
        for u in range(NX, 10): sch[2 * (u - NX) + 2] += dma_x(w, u, ('X', u, False))
    else:
        todo = sorted([(s, 'W', s, max(s - NW + 1, 3)) for s in range(NW, 20)] + [(2 * u - 0.5, 'X', u, 2 * (u - NX) + 2) for u in range(NX, 10)])
        load = {i: 0 for i in range(21)}; load[2] = 4
        cur = 2
        for need, kind, i, t0 in todo:
            n = 4 if kind == 'W' else 5
            t = max(t0, cur)
            while t in Cfg.holes or load[t] + n > Cfg.qcap: t += 1
            assert t <= need - 1.5, (kind, i, t)
            cur = t; load[t] += n
            sch[t] += dma_w(w, i, False, ('W', i, False)) if kind == 'W' else dma_x(w, i, ('X', i, False))
        print("Q load", load, file=sys.stderr)
    if not Cfg.no_dma:
        first = {0: 17, 1: 15, 2: 18, 3: 16, 4: 19, 5: 20, 6: 20, 7: 20, 8: 18, 9: 19}
        for n in range(10): sch[first[n]] += dma_kv(w, *NAMES[n], False, NAMES[n] + (False,))
        for n in range(10, 33):
            if n not in NAMES: continue
            k, t = NAMES[n - 10]
            last = (20 + t) if k == 'K' else min(22 + t, 36)
            rem = [m for m in range(10, 33) if m in NAMES]
            paced = 21 + int(rem.index(n) * Cfg.pace)
            when = max(last + 1, min(paced, first_use(*NAMES[n]) - Cfg.lead))
            sch[when] += dma_kv(w, *NAMES[n], False, NAMES[n] + (False,))
    for idx, ss in ((33, (2, 3)), (34, (0, 1))):
        for s_ in ss: sch[idx] += r0(dma_w(w, s_, True, ('W', s_, 'next')), f"L_r0w{s_}")
    w4first = lambda lab: [S(f"s_lshl_b32 s{sT1}, s{sRound}, 3"), S(f"s_add_u32 s{sT1}, s{sT1}, s{sWave}"), S(f"s_cmp_lg_u32 s{sT1}, 4"), branch("s_cbranch_scc1", lab)]
    sch[7] = [w4first("L_p0") + [S(f"s_mov_b32 s{sT1}, s{sFlag}") if Cfg.map84 else S(f"s_lshl_b32 s{sT1}, s{sB}, 3"), V(f"v_mov_b32 v{w.tmp+2}, s{sT1}"), bload(1, w.oPoll, w.tmp + 2, sDBG, 0, 0, 'sc1', tag=('cond',)), label("L_p0")]] + sch[7]
    sch[14] += [w4first("L_m0") + [V(f"v_readfirstlane_b32 s{sT1}, v{w.oPoll}"), S(f"s_bfe_u32 s{sT2}, s{sT1}, 0x80010"), S(f"s_lshr_b32 s{sT1}, s{sT1}, 24"),
                 S(f"s_bcnt1_i32_b32 s{sT1}, s{sT1}"), S(f"s_lshl_b32 s{sT1}, s{sT1}, 8"), S(f"s_or_b32 s{sT1}, s{sT1}, s{sT2}"), S(f"s_cmp_eq_u32 s{sT1}, 0x1ff"),
                 S(f"s_cselect_b32 s{sT1}, {(1 if Cfg.map84 else 3) if Cfg.fast else 0}, 0"), V(f"v_mov_b32 v{w.tmp+1}, s{sT1}"), V(f"v_mov_b32 v{w.tmp+2}, {MODE_LDS}"),
                 raw(f"ds_write_b32 v{w.tmp+2}, v{w.tmp+1}"), label("L_m0")]]
    for name, (idx, rnd) in Cfg.place2.items():
        t = w.tmp + 1
        if name == 'wo':
            body = lane_id(t) + [V(f"v_min_u32 v{t}, 39, v{t}"), V(f"v_lshlrev_b32 v{t}, 7, v{t}"), S(f"s_lshl_b32 s{sT1}, s2, 2"), S(f"s_add_u32 s{sT1}, s{sT1}, s{sWave}"),
                    S(f"s_sub_u32 s{sT1}, s{sT1}, 4"), S(f"s_mul_i32 s{sT1}, s{sT1}, 5120"), bload(1, w.dummy, t, sWO, f"s{sT1}", tag=('cond',))]
        else:
            body = lane_id(t) + [V(f"v_lshlrev_b32 v{t}, 7, v{t}"), V(f"v_min_u32 v{t}, {SLAB-128}, v{t}"),
                    S(f"s_lshl_b32 s{sT1}, s2, 3"), S(f"s_add_u32 s{sT1}, s{sT1}, s{sWave}"), S(f"s_mul_i32 s{sT1}, s{sT1}, {SLAB}"), S(f"s_add_u32 s{sT1}, s{sT1}, {XCH_OFF}"),
                    bload(1, w.dummy, t, sWS, f"s{sT1}", 0, 'sc1', tag=('cond',)), S(f"s_sub_u32 s{sT1}, s{sT1}, {4*SLAB}"), bload(1, w.dummy, t, sWS, f"s{sT1}", 0, 'sc1', tag=('cond',))]
        sch[idx] += [[S(f"s_cmp_lg_u32 s{sRound}, {rnd}"), branch("s_cbranch_scc1", f"L_p2{name}")] + body + [label(f"L_p2{name}")]]
    mr = mode_read(w.T)
    sch[17] = [mr[0]] + sch[17]; sch[18] = [mr[1]] + sch[18]
    w4last = lambda lab: [S(f"s_lshl_b32 s{sT1}, s{sRound}, 3"), S(f"s_add_u32 s{sT1}, s{sT1}, s{sWave}"), S(f"s_cmp_lg_u32 s{sT1}, 12"), branch("s_cbranch_scc1", lab)]
    sch[29] = [w4last("L_p1") + [V(f"v_mov_b32 v{w.tmp+2}, s{sFlag}"), bload(1, w.oPoll, w.tmp + 2, sDBG, 0, 0, 'sc1', tag=('cond',)), label("L_p1")]] + sch[29]
    sch[34] += [w4last("L_g1_back") + gate("L_g1", w.oPoll, w.tmp + 2, 0) + [label("L_g1_back")]]
    for u in range(2):
        alt = flat(dma_x(w, 0, ('X', 0, 'next'))) if u == 0 else []
        sch[35 + u] += [[S(f"s_cmp_lg_u32 s{sRound}, 0"), branch("s_cbranch_scc1", f"L_opre{u}")] + alt + [label(f"L_opre{u}_back"), I("; opre", 'comment', tag=('phantom', 0 if Cfg.o_skip else 10))]]
    if not Cfg.no_dma:
        for i, idx in enumerate(sorted(Cfg.touch_at)): sch[idx] += touch_kv(w, 'KV'[i & 1])
        for idx, goff in Cfg.tbatch:
            sch[idx] += [[S(f"s_add_u32 s{sT0}, s{sTau}, {goff}"), S(f"s_and_b32 s{sT0}, s{sT0}, 0x1ffff"), S(f"s_add_u32 s{sT0}, s{sT0}, s{sKVbase}"), bload(1, w.dummy, w.vTch, sK, f"s{sT0}", 0, Cfg.touch_pol, tag=('misc',)),
                          bload(1, w.dummy, w.vTch, sV, f"s{sT0}", 0, Cfg.touch_pol, tag=('misc',))]]
    return sch

def lane_id(r): return [V(f"v_mbcnt_lo_u32_b32 v{r}, -1, 0"), V(f"v_mbcnt_hi_u32_b32 v{r}, -1, v{r}")]
def lane_setup(w):
    t = w.F + 8
    lane, i16, g, a, b, c = t, t + 1, t + 2, t + 3, t + 4, t + 5
    o = lane_id(lane) + [V(f"v_and_b32 v{i16}, 15, v{lane}"), V(f"v_lshrrev_b32 v{g}, 4, v{lane}")]
    o += [V(f"v_lshrrev_b32 v{a}, 1, v{i16}"), V(f"v_xor_b32 v{a}, v{a}, v{g}"), V(f"v_lshlrev_b32 v{a}, 4, v{a}"),
          V(f"v_lshl_add_u32 v{w.aN}, v{i16}, 7, v{a}"), V(f"v_xor_b32 v{w.aN+1}, 64, v{w.aN}")]
    o += [V(f"v_lshrrev_b32 v{a}, 2, v{lane}"), V(f"v_and_b32 v{b}, 6, v{a}"),
          V(f"v_bfe_u32 v{c}, v{lane}, 1, 1"), V(f"v_xor_b32 v{b}, v{b}, v{c}"), V(f"v_lshlrev_b32 v{b}, 4, v{b}"),
          V(f"v_lshl_add_u32 v{b}, v{a}, 7, v{b}"),
          V(f"v_and_b32 v{c}, 1, v{lane}"), V(f"v_lshl_add_u32 v{w.aT}, v{c}, 3, v{b}")]
    for dq in range(1, 4): o.append(V(f"v_xor_b32 v{w.aT+dq}, {dq<<5}, v{w.aT}"))
    return o
def voff_setup(w):
    t = w.F + 16
    r8, p, a, b, row = t, t + 1, t + 2, t + 3, t + 4
    o = [V(f"v_bfe_u32 v{row}, v0, 3, 4"),
         V(f"v_and_b32 v{p}, 7, v0"),
         V(f"v_lshrrev_b32 v{a}, 1, v{row}"), V(f"v_xor_b32 v{a}, v{a}, v{p}"), V(f"v_lshlrev_b32 v{a}, 4, v{a}"),
         V(f"v_and_b32 v{b}, 6, v{row}"), V(f"v_xor_b32 v{b}, v{b}, v{p}"), V(f"v_lshlrev_b32 v{b}, 4, v{b}"),
         V(f"v_and_b32 v{p}, 12, v{row}"), V(f"v_add_u32 v{p}, v{p}, v{row}"), V(f"v_lshl_add_u32 v{w.vW}, v{p}, 13, v{b}"),
         V(f"v_mul_u32_u24 v{p}, 1280, v{row}"), V(f"v_add_u32 v{w.vX}, v{p}, v{a}")]
    o2 = [V(f"v_lshl_add_u32 v{w.vK}, v{row}, 8, v{a}"), V(f"v_lshl_add_u32 v{w.vV}, v{row}, 8, v{b}"),
          V(f"v_and_b32 v{p}, 63, v0"), V(f"v_lshlrev_b32 v{p}, 6, v{p}"), V(f"v_bfe_u32 v{r8}, v0, 6, 1"), V(f"v_lshl_add_u32 v{w.vTch}, v{r8}, 12, v{p}")]
    return o, o2

def add_addr(regs_, delta):
    if delta == 0: return []
    if isinstance(delta, str): return [V(f"v_add_u32 v{r}, {delta}, v{r}") for r in regs_]
    return [V(f"v_add_u32 v{r}, {delta & 0xffffffff:#x}, v{r}") for r in regs_]

def to_w(w, cur):
    t = w.T
    return add_addr([w.aT + 2, w.aT + 3], item_slot(vidx(0)) - cur) + add_addr([w.aT], wslot(0) - cur) + [
        V(f"v_bfe_u32 v{t}, v{w.aT}, 3, 2"), V(f"v_and_b32 v{w.aT}, 0xffffffe7, v{w.aT}"), V(f"v_lshlrev_b32 v{t}, 4, v{t}"),
        V(f"v_xor_b32 v{w.aT}, v{w.aT}, v{t}"), V(f"v_xor_b32 v{w.aT+1}, 64, v{w.aT}")]
def to_v(w): return [V(f"v_xor_b32 v{w.aT}, 64, v{w.aT+2}"), V(f"v_xor_b32 v{w.aT+1}, 64, v{w.aT+3}")]

def finish(code, pending=None, pre=()):
    c, q = add_lgkm_waits(code, pending)
    return fix_hazards(c, pre), q

def loop_finish(B, q, before):
    B1, q1 = finish(B, q, pre=before[-12:])
    B2, q2 = finish(B, q1, pre=B1[-12:])
    B3, q3 = finish(B, q2, pre=B2[-12:])
    assert emit(B2) == emit(B3) and q2 == q3
    assert len(q) <= len(q2) and q == q2[len(q2) - len(q):], "entry LDS queue must be a suffix of the steady-state queue"
    B4 = fix_hazards(B2, before[-12:])
    assert emit(fix_hazards(B4, B4[-12:])) == emit(B4)
    return B4, q2

def srd(base, ptr, nbytes):
    return [S(f"s_mov_b32 s{base}, s{ptr}"), S(f"s_mov_b32 s{base+1}, s{ptr+1}"), S(f"s_mov_b32 s{base+2}, {nbytes}"), S(f"s_mov_b32 s{base+3}, 0x20000")]

def round_advance():
    return [S(f"s_add_u32 s{sKVbase}, s{sKVbase}, 262144"), S(f"s_add_u32 s{sWbase}, s{sWbase}, 512"),
            S(f"s_add_u32 s{sOst}, s{sOst}, {8*10240}"), S(f"s_add_u32 s{sRound}, s{sRound}, 1"), S(f"s_cmp_lt_u32 s{sRound}, 2")]

def flag_add(t, val, lab):
    return [V(f"v_mov_b32 v{t}, {val}"), V(f"v_mov_b32 v{t+1}, s{sFlag}"), S("s_mov_b64 exec, 1"),
            I(f"buffer_atomic_or v{t}, v{t+1}, s[{sDBG}:{sDBG+3}], 0 offen sc1", 'vstore', rd=regs(t, 2) | regs(sDBG, 4, 's'), tag=('cond',)),
            S("s_mov_b64 exec, -1"), label(lab)]

def common_scalars():
    C = srd(sK, 58, 134217728) + srd(sV, 60, 134217728) + srd(sWO, 64, 5242880) + srd(sOUT, 66, 6553600) + srd(sDBG, 68, 256) \
        + srd(sWS, 70, (160 << 20) if Cfg.stamps else WS_BYTES)
    C += [S(f"s_lshr_b32 s{sT2}, s{sWbase}, 8"),
          S(f"s_lshl_b32 s{sT3}, s{sB}, 5"), S(f"s_add_u32 s{sT3}, s{sT3}, s{sT2}"), S(f"s_lshl_b32 s{sKVbase}, s{sT3}, 17"),
          S(f"s_mul_i32 s{sOst}, s{sT3}, 40960"),] + ([S(f"s_and_b32 s{sKVbase}, s{sKVbase}, 0x20000")] if Cfg.kv_same else []) + [
          S(f"s_lshl_b32 s{sFlag}, s{sB}, 1"), S(f"s_lshr_b32 s{sT2}, s{sG}, 2"), S(f"s_add_u32 s{sFlag}, s{sFlag}, s{sT2}"), S(f"s_lshl_b32 s{sFlag}, s{sFlag}, 2"),
          S(f"s_mul_i32 s{sTau}, s{sT3}, {Cfg.taumul}"), S(f"s_lshr_b32 s{sT2}, s{sT3}, {Cfg.taush}"), S(f"s_add_u32 s{sTau}, s{sTau}, s{sT2}"),
          S(f"s_and_b32 s{sTau}, s{sTau}, {Cfg.taumask}"), S(f"s_lshl_b32 s{sTau}, s{sTau}, 13"),
          S(f"s_mov_b32 s{sRound}, 0"), S(f"s_mov_b32 s{sMode}, 0"), S(f"s_mov_b32 s{sQS}, {f2u(QSCALE)}"), S(f"s_mov_b32 s{sC16}, {WTAB:#x}"), S(f"s_mov_b32 s{sC32}, {2*SLOT}"),
          S(f"s_mov_b32 s{sCX}, 20480"), S(f"s_mov_b32 s{sTK}, s{sKVbase}"), S(f"s_mov_b32 s{sTV}, s{sKVbase}")]
    if Cfg.stamps:
        C += [S(f"s_lshl_b32 s{sStamp+2}, s2, 3"), S(f"s_add_u32 s{sStamp+2}, s{sStamp+2}, s{sWave}"), S(f"s_lshl_b32 s{sStamp+2}, s{sStamp+2}, 10"),
              S(f"s_add_u32 s{sStamp+2}, s{sStamp+2}, {DBG_OFF}")]
    return C
def wave_addr0(w, j0mul, j0add):
    aN = [w.aN, w.aN + 1]; aT = [w.aT + i for i in range(4)]
    C = [S(f"s_bfe_u32 s{sT0}, s{sWave}, 0x10001"), S(f"s_lshl_b32 s{sT0}, s{sT0}, 13"),
         S(f"s_and_b32 s{sT1}, s{sWave}, 1"), S(f"s_mul_i32 s{sT1}, s{sT1}, {j0mul*1024}"), S(f"s_add_u32 s{sT1}, s{sT1}, {j0add*1024}"),
         S(f"s_add_u32 s{sOst}, s{sOst}, s{sT1}"), S(f"s_lshl_b32 s{sT1}, s{sT1}, 1"),
         S(f"s_sub_u32 s{sKX}, s{sT0}, s{sT1}"),
         S(f"s_add_u32 s{sT1}, s{sT1}, {xbuf(0)}")]
    return C + add_addr(aT, f"s{sT0}") + add_addr(aN, f"s{sT1}") + to_w(w, 0)

def gen_w3():
    w = Wave(3); nm = 24
    st = lambda k, real=False: stamp(w.tmp + 1, k, real)
    aN = [w.aN, w.aN + 1]; aT = [w.aT + i for i in range(4)]
    C = [label("L_w3"), raw("s_waitcnt lgkmcnt(0)")]
    if Cfg.codetouch:
        t = w.tmp + 1
        C += [raw(f"s_getpc_b64 s[{sRet}:{sRet+1}]"), label("L_pc0"),
              S(f"s_sub_u32 s{sRet}, s{sRet}, L_pc0-KSTART"), S(f"s_subb_u32 s{sRet+1}, s{sRet+1}, 0"),
              S(f"s_lshr_b32 s{sT0}, s2, 3"), S(f"s_lshl_b32 s{sT0}, s{sT0}, 2"), S(f"s_add_u32 s{sT0}, s{sT0}, s{sWave}"), S(f"s_lshl_b32 s{sT0}, s{sT0}, 7"),
              V(f"v_and_b32 v{t}, 7, v0"), V(f"v_lshlrev_b32 v{t}, 14, v{t}"), V(f"v_add_u32 v{t}, s{sT0}, v{t}"),
              V(f"v_min_u32 v{t}, KEND-KSTART-4, v{t}"),
              I(f"global_load_dword v{w.dummy}, v{t}, s[{sRet}:{sRet+1}]", 'vload', wr=regs(w.dummy), rd=regs(t) | regs(sRet, 2, 's'))]
    if Cfg.warm0:
        t = w.tmp + 1
        C += srd(sW, 62, 5242880) + srd(sX, 56, 6553600)
        C += [V(f"v_and_b32 v{t}, 63, v0"), V(f"v_lshlrev_b32 v{t}, 7, v{t}"),
              S(f"s_mul_i32 s{sT0}, s{sB}, 204800"), S(f"s_mul_i32 s{sT1}, s{sG}, 25600"), S(f"s_add_u32 s{sT0}, s{sT0}, s{sT1}"),
              S(f"s_mul_i32 s{sT1}, s{sWave}, 5760"), S(f"s_add_u32 s{sT0}, s{sT0}, s{sT1}"),
              V(f"v_bfe_u32 v{t+1}, v0, 3, 3"), V(f"v_min_u32 v{t+1}, 4, v{t+1}"), V(f"v_lshlrev_b32 v{t+1}, 13, v{t+1}"),
              V(f"v_and_b32 v{w.T}, 7, v0"), V(f"v_lshl_add_u32 v{t+1}, v{w.T}, 7, v{t+1}"),
              S(f"s_lshl_b32 s{sT1}, s{sB}, 2"), S(f"s_add_u32 s{sT1}, s{sT1}, s{sWave}"), S(f"s_mul_i32 s{sT1}, s{sT1}, {5*8192}"),
              S(f"s_lshl_b32 s{sT2}, s{sG}, 10"), S(f"s_add_u32 s{sT1}, s{sT1}, s{sT2}"),
              barrier()] + ([bload(1, w.dummy, t + 1, sW, f"s{sT1}")] if Cfg.warm0 == 1 else []) + [bload(1, w.dummy, t, sX, f"s{sT0}")]
    C += common_scalars()
    t = w.tmp + 1
    C += [S(f"s_cmp_lg_u32 s{sWave}, 0"), branch("s_cbranch_scc1", "L_noxcc"), raw(f"s_getreg_b32 s{sT0}, hwreg(HW_REG_XCC_ID, 0, 3)"),
          S(f"s_lshl_b32 s{sT0}, 0x1000000, s{sT0}"), S(f"s_lshl_b32 s{sT1}, {0x110000 if Cfg.map84 else 0x10000}, s{sG}"), S(f"s_lshr_b32 s{sT2}, s{sT1}, {4 if Cfg.map84 else 0}"), S(f"s_or_b32 s{sT1}, s{sT1}, s{sT2}"), S(f"s_and_b32 s{sT1}, s{sT1}, 0xff0000"),
          S(f"s_or_b32 s{sT0}, s{sT0}, s{sT1}"), S(f"s_mov_b32 s{sT1}, s{sFlag}") if Cfg.map84 else S(f"s_lshl_b32 s{sT1}, s{sB}, 3"),
          V(f"v_mov_b32 v{t}, s{sT0}"), V(f"v_mov_b32 v{t+1}, s{sT1}"), S("s_mov_b64 exec, 1"),
          I(f"buffer_atomic_or v{t}, v{t+1}, s[{sDBG}:{sDBG+3}], 0 offen sc1", 'vstore', rd=regs(t, 2) | regs(sDBG, 4, 's')),
          S("s_mov_b64 exec, 0xff"), V(f"v_mul_u32_u24 v{t}, {SLAB}, v0"), V(f"v_mov_b32 v{t+1}, 0"), S(f"s_mul_i32 s{sT0}, s2, {XCH_WG}"), S(f"s_add_u32 s{sT0}, s{sT0}, {XCH_OFF + SLAB - 128}"),
          bstore(1, t + 1, t, sWS, f"s{sT0}", 0, 'sc1'),
          S("s_mov_b64 exec, -1"), label("L_noxcc")]
    C += lane_setup(w) + wave_addr0(w, 3, 0)
    def x_wo():
        t = w.tmp + 1
        return lane_id(t) + [V(f"v_min_u32 v{t}, 39, v{t}"), V(f"v_lshlrev_b32 v{t}, 7, v{t}"),
              S(f"s_lshl_b32 s{sT0}, s2, 2"), S(f"s_add_u32 s{sT0}, s{sT0}, s{sWave}"), S(f"s_mul_i32 s{sT0}, s{sT0}, 5120"), bload(1, w.dummy, t, sWO, f"s{sT0}")]
    def x_code():
        t = w.tmp + 1
        return [raw(f"s_getpc_b64 s[{sRet}:{sRet+1}]"), label("L_pc1"),
              S(f"s_add_u32 s{sRet}, s{sRet}, L_o-L_pc1"), S(f"s_addc_u32 s{sRet+1}, s{sRet+1}, 0")] + lane_id(t) + [
              S(f"s_lshl_b32 s{sT0}, s{sWave}, 13"), V(f"v_lshlrev_b32 v{t}, 7, v{t}"), V(f"v_add_u32 v{t}, s{sT0}, v{t}"), V(f"v_min_u32 v{t}, KEND-L_o-4, v{t}"),
              I(f"global_load_dword v{w.dummy}, v{t}, s[{sRet}:{sRet+1}]", 'vload', wr=regs(w.dummy), rd=regs(t) | regs(sRet, 2, 's'))]
    def x_slab():
        t = w.tmp + 1
        return lane_id(t) + [V(f"v_lshlrev_b32 v{t}, 7, v{t}"), V(f"v_min_u32 v{t}, {SLAB-128}, v{t}"),
              S(f"s_lshl_b32 s{sT0}, s2, 3"), S(f"s_add_u32 s{sT0}, s{sT0}, s{sWave}"), S(f"s_mul_i32 s{sT0}, s{sT0}, {SLAB}"), S(f"s_add_u32 s{sT0}, s{sT0}, {XCH_OFF}"),
              bload(1, w.dummy, t, sWS, f"s{sT0}", 0, 'sc1'), S(f"s_add_u32 s{sT0}, s{sT0}, {4*SLAB}"), bload(1, w.dummy, t, sWS, f"s{sT0}", 0, 'sc1')]
    def x_jit():
        return [S(f"s_mul_i32 s{sT0}, s2, 11"), S(f"s_and_b32 s{sT0}, s{sT0}, 31"), label("L_jit"), raw(f"s_sleep {Cfg.jit}"), S(f"s_sub_u32 s{sT0}, s{sT0}, 1"), branch("s_cbranch_scc0", "L_jit")]
    def x_wo2():
        r = [i if i.kind != 'vload' else bload(1, w.dummy, w.tmp + 1, sWO, f"s{sT0}", 0, Cfg.wo2pol) for i in x_wo()]
        r[2] = V(f"v_min_u32 v{w.tmp+1}, {Cfg.wo2n}, v{w.tmp+1}")
        return r
    def extras(where):
        out_ = []
        for name, fn in (('wo', x_wo), ('code', x_code), ('slab', x_slab), ('jit', x_jit), ('wo2', x_wo2)):
            pl = Cfg.place.get(name)
            if pl and pl[0] == where:
                out_ += [S(f"s_cmp_lg_u32 s{sRound}, {pl[1]}"), branch("s_cbranch_scc1", f"L_ex_{name}")] + fn() + [label(f"L_ex_{name}")]
        return out_
    C, _ = finish(C)
    out = C
    def wadv():
        return [S(f"s_bfe_i32 s{sD}, s{sC16}, s{sCnt}"), S(f"s_lshl_b32 s{sD}, s{sD}, 14"), S(f"s_add_u32 s{sCnt}, s{sCnt}, 4"),
                S(f"s_cmp_eq_u32 s{sCnt}, {0x40000 + 4*NW:#x}"), S(f"s_cselect_b32 s{sCnt}, 0x40000, s{sCnt}")] + add_addr(aT[:2], f"s{sD}")
    def xadv():
        return [S(f"s_add_u32 s{sCnt2}, s{sCnt2}, 1"), S(f"s_cmp_eq_u32 s{sCnt2}, {NX}"), S(f"s_cselect_b32 s{sXd}, {(-(NX-1)*20480) & 0xffffffff:#x}, s{sCX}"),
                S(f"s_cselect_b32 s{sCnt2}, 0, s{sCnt2}")] + add_addr(aN, f"s{sXd}")
    def qstage(s, zero=False, extra=()):
        p = s & 1
        adv_ = wadv() + (xadv() if p == 1 else []) + list(extra)
        L = [barrier()] + spread(q_mfmas(w, 1 - p, zero), [(q_reads(w, p, p), 0, Cfg.qr3), (one(adv_), Cfg.qr3 + 1, 23)]) + [wait(lgkm=0)]
        k = [i for i, c in enumerate(L) if c.kind == 'mfma'][Cfg.qcut]
        return L[:k], L[k:]
    C = [label("L_w3_round")] + st(0) + [barrier()] + st(1)
    C += flat(q_reads(w, 0, 0))
    C += add_addr(aT[:2], wslot(1) - wslot(0))
    C += [S(f"s_mov_b32 s{sCnt}, 0x40004"), S(f"s_mov_b32 s{sCnt2}, {(xbuf(0)-NW*SLOT)//20480}"), S(f"s_mov_b32 s{sLoop}, 8")]
    C += [wait(lgkm=0)]
    h1, t1 = qstage(1, zero=True); he, te = qstage(2); ho, to = qstage(3)
    C += h1 + t1 + [wait(vm=0)] + extras('Q2') + he
    C, q = finish(C); out += C
    B = [label("L_w3_q")] + te + ho + to + he
    B += [S(f"s_sub_u32 s{sLoop}, s{sLoop}, 1"), S(f"s_cmp_lg_u32 s{sLoop}, 0"), branch("s_cbranch_scc1", "L_w3_q")]
    Bc, q2 = loop_finish(B, q, out)
    out += Bc
    curT = wslot(20); curN = xbuf(10)
    h19, t19 = qstage(19, extra=add_addr(aN, f"s{sKX}") + add_addr(aN, item_slot(kidx(0)) - curN) + to_v(w))
    mr = mode_read(w.T)
    C = mr[0] + te + mr[1] + extras('Q18') + h19 + t19
    C += st(40) + [barrier()] + st(41)
    k0 = frags_QK(w, 'zero')
    k1 = frags_QK(w, 'negm', pre=add_addr(aN, item_slot(kidx(1)) - item_slot(kidx(0))))
    w.fpos = 0
    C += stream(w, k0, 0, k1, lead=q_mfmas(w, 1, False), fillers=q_pack_fillers(w))
    C += first_max(w)
    C += st(42) + [barrier()] + st(43)
    C += flat(softmax_groups(w, 0)) + l_accum(w, first=True)
    v0 = frags_PV(w, 0, zero=True)
    C += extras('A0')
    C += [S(f"s_mov_b32 s{sKpos}, {item_slot(kidx(1))}"), S(f"s_mov_b32 s{sVpos}, {item_slot(vidx(0))}"), S(f"s_mov_b32 s{sLoop}, 7")]
    def adv(pos, rr):
        return [S(f"s_cmp_ge_u32 s{pos}, {LDS_BYTES - 2*SLOT}"), S(f"s_cselect_b32 s{sD}, {(2*SLOT - LDS_BYTES) & 0xffffffff:#x}, s{sC32}"),
                S(f"s_add_u32 s{pos}, s{pos}, s{sD}")] + add_addr(rr, f"s{sD}")
    def pv(par): return frags_PV(w, par, pre=adv(sVpos, aT))
    def qk(): return frags_QK(w, 'negm', pre=adv(sKpos, aN))
    E_ = 8 - Cfg.late
    def sm_part(late, par, extra=()):
        G = softmax_groups(w, par) + [check_cmp(w)]
        nl = 3 * len(late)
        cut = int(len(G) * Cfg.smpure) if Cfg.late < 8 else 0
        return flat(G[:cut]) + stream(w, late, Cfg.LA, qk(), fillers=[(G[cut:], 0, max(nl - Cfg.smend, 1))] + list(extra)) + check_branch(w, par)
    C += stream(w, k1 + v0[:E_], Cfg.LA, v0[E_:] + qk())
    C += st(44) + [barrier()] + st(45)
    C += sm_part(v0[E_:], 1)
    C, q = finish(C, q2, pre=out[-12:]); out += C
    B = [label("L_w3_a")]
    for par in (1, 0):
        B += stream(w, qk() + pv(par)[:E_], Cfg.LA, pv(par)[E_:] + qk(), fillers=[(one(l_accum(w)), 4, 10)])
        B += [barrier()]
        B += sm_part(pv(par)[E_:], 1 - par)
    B += [S(f"s_sub_u32 s{sLoop}, s{sLoop}, 1"), S(f"s_cmp_lg_u32 s{sLoop}, 0"), branch("s_cbranch_scc1", "L_w3_a")]
    Bc, q2 = loop_finish(B, q, out)
    out += Bc
    C = st(74) + l_accum(w) + mode_vcc() + extras('A15')
    C += stream(w, pv(1), 0, [], fillers=epi_fillers(w))
    C += st(75) + st(77, True)
    curT = item_slot(vidx(15)); curN = item_slot(kidx(16))
    C += to_w(w, curT) + add_addr(aN, xbuf(0) - curN) + [V(f"v_subrev_u32 v{r}, s{sKX}, v{r}") for r in aN]
    C += round_advance()
    C += [branch("s_cbranch_scc1", "L_w3_round"), branch("s_branch", "L_o")]
    C, q = finish(C, q2, pre=out[-12:]); out += C
    assert not q
    return out, rare_routine(w, 0) + rare_routine(w, 1)

def gen_w2():
    w = Wave(2); nm = 16
    st = lambda k, real=False: stamp(w.tmp + 1, k, real)
    aN = [w.aN, w.aN + 1]; aT = [w.aT + i for i in range(4)]
    POL[0] = Cfg.wx_pol
    sch = loader_schedule(w)
    items = lambda idx: sch[idx]
    vo1, vo2 = voff_setup(w)
    en = lambda r: [raw(f"s_memtime s[{r}:{r+1}]")] if Cfg.ent else []
    pro = vo1 + [raw("s_waitcnt lgkmcnt(0)")] + en(94) + srd(sW, 62, 5242880) + srd(sX, 56, 6553600)
    POL[0] = Cfg.pro_pol
    pro += flat(dma_w(w, 0, False, ('W', 0, True))) + flat(dma_x(w, 0, ('X', 0, True))) + flat(dma_w(w, 1, False, ('W', 1, True))) + ([barrier()] if Cfg.warm0 else [])
    pro += en(96)
    pro += vo2 + [V(f"v_mov_b32 v{w.oVoff}, 0"), V(f"v_mov_b32 v{w.oPoll}, 0")] + common_scalars() + lane_setup(w) + wave_addr0(w, 2, 6)
    if Cfg.ent:
        pro += en(98) + [raw("s_waitcnt lgkmcnt(0)"), V(f"v_mov_b32 v{w.tmp+2}, 0")]
        for i, r in enumerate((92, 94, 96, 98, 100)): pro += [V(f"v_mov_b32 v{w.tmp+1}, s{r}"), bstore(1, w.tmp + 1, w.tmp + 2, sWS, f"s{sStamp+2}", 4 * (120 + i), tag=('misc',))]
    C = [label("L_w2_round")] + st(76, True)
    def bar(idx, lgkm=None):
        b = wait(vm=63, lgkm=lgkm); b.tag = (('need', idx), lgkm)
        return st(2 * idx) + [b, barrier()] + st(2 * idx + 1)
    prio = lambda p: [raw(f"s_setprio {p}")] if Cfg.prio == 2 else []
    curT = wslot(0); curN = xbuf(0)
    C += prio(Cfg.qprio)
    for s in range(20):
        if s < 19:
            newT = wslot(s + 1); newN = xbuf((s + 1) >> 1)
            adv_ = add_addr(aT[:2], newT - curT) + add_addr(aN, newN - curN); curT, curN = newT, newN
        else:
            adv_ = add_addr(aN, f"s{sKX}") + add_addr(aN, item_slot(kidx(0)) - curN) + to_v(w)
        C += bar(s, lgkm=0)
        ex = []
        if s == 3:
            ex = [([[S(f"s_lshl_b32 s{sT1}, s{sRound}, 3"), S(f"s_add_u32 s{sT1}, s{sT1}, s{sWave}"), S(f"s_cmp_lg_u32 s{sT1}, 12"),
                     branch("s_cbranch_scc1", "L_nofl1"), S(f"s_and_b32 s{sT1}, s{sG}, 3"), S(f"s_lshl_b32 s{sT1}, 1, s{sT1}")] + flag_add(w.tmp + 1, f"s{sT1}", "L_nofl1")], 11, 12)]
        if s == 0: C += flat(q_reads(w, 0, 0)) + flat(items(0)) + adv_
        else: C += spread(q_mfmas(w, (s - 1) & 1, s == 1), [(q_reads(w, s & 1, s & 1), 0, Cfg.qr2), (items(s), Cfg.qd0, nm - 2), (one(adv_), Cfg.qr2 + 1, 16)] + ex)
    C += bar(20, lgkm=0)
    def qk(t, fc='negm'): return frags_QK(w, fc, pre=add_addr(aN, item_slot(kidx(t)) - item_slot(kidx(t - 1))) if t else [])
    def pv(t): return frags_PV(w, t & 1, zero=(t == 0), pre=add_addr(aT, item_slot(vidx(t)) - item_slot(vidx(t - 1))) if t else [])
    w.fpos = 0
    C += stream(w, qk(0, 'zero'), 0, qk(1), lead=q_mfmas(w, 1, False), fillers=[(items(20), 0, 2 * nm)] + q_pack_fillers(w))
    C += first_max(w)
    C += flat(softmax_groups(w, 0))
    for t in range(15):
        nx = qk(t + 2) if t < 14 else []
        if Cfg.pp:
            C += prio(Cfg.pp_a)
            C += bar(21 + t)
            C += stream(w, qk(t + 1) + pv(t), Cfg.LA, nx, fillers=[(one(l_accum(w, first=(t == 0))), 3, 8)])
            C += prio(Cfg.pp_b)
            G = softmax_groups(w, (t + 1) & 1) + [check_cmp(w)]
            sm = [g for g in G]
            it_ = items(21 + t)
            base = [I("; g", 'comment') for _ in sm]
            merged = spread(base, [(it_, 0, len(sm))])
            k = 0
            for c in merged:
                if c.kind == 'comment' and c.text == "; g": C += sm[k]; k += 1
                else: C.append(c)
            C += check_branch(w, (t + 1) & 1)
        else:
            C += prio(0)
            if 21 + t in Cfg.drain: C += [wait(vm=Cfg.drain[21 + t])]
            C += bar(21 + t)
            it_ = items(21 + t); h = (len(it_) * Cfg.dsplit + 99) // 100
            C += stream(w, qk(t + 1), Cfg.LA, pv(t), fillers=[(it_[:h], 0, nm), (one(l_accum(w, first=(t == 0))), 3, 8)])
            C += prio(1)
            C += stream(w, pv(t), Cfg.LA, nx, fillers=[(it_[h:], 1, nm + 1)] + sm_fillers(w, (t + 1) & 1, 2))
            C += check_branch(w, (t + 1) & 1)
    C += prio(0)
    C += bar(36)
    C += flat(items(36))
    C += st(74) + l_accum(w) + mode_vcc()
    C += stream(w, pv(15), 0, [], fillers=epi_fillers(w))
    C += st(75) + st(77, True)
    curT = item_slot(vidx(15)); curN = item_slot(kidx(15))
    C += to_w(w, curT) + add_addr(aN, xbuf(0) - curN) + [V(f"v_subrev_u32 v{r}, s{sKX}, v{r}") for r in aN]
    C += round_advance()
    C += [branch("s_cbranch_scc1", "L_w2_round"), branch("s_branch", "L_o")]
    VM = ('dma', 'vload', 'vstore')
    def resolve(prefix, first):
        res = {}
        q = [(c.tag[0], c.tag[1]) if len(c.tag) == 3 and c.tag[2] in (True, 'next') else None for c in prefix if c.kind in VM and c.tag != ('cond',)]
        for c in C:
            if c.kind in VM:
                if c.tag == ('cond',): continue
                if c.tag[-1] in ('cond', 'next') and not first: continue
                q.append((c.tag[0], c.tag[1]) if len(c.tag) == 3 and c.tag[2] in (False, 'cond') else None)
            elif c.kind == 'comment' and c.tag and c.tag[0] == 'phantom':
                if not first: q += [None] * c.tag[1]
            elif c.kind == 'wait' and isinstance(c.tag[0], tuple):
                idx = c.tag[0][1]
                last = -1
                for k, it in enumerate(q):
                    if it is not None and first_use(it[0], it[1]) <= idx: last = k
                res[idx] = min(63, len(q) - 1 - last)
        return res
    r1 = resolve(pro, True); r2 = resolve(C, False)
    C2 = []
    for c in C:
        if c.kind == 'wait' and isinstance(c.tag[0], tuple):
            idx = c.tag[0][1]; n = min(r1[idx], r2[idx]); lg = c.tag[1]
            if abs(r1[idx] - r2[idx]) > 1:
                C2 += [S(f"s_cmp_eq_u32 s{sRound}, {0 if r1[idx] > r2[idx] else 1}"), branch("s_cbranch_scc1", f"L_rw{idx}"), wait(vm=n), label(f"L_rw{idx}")]
                n = max(r1[idx], r2[idx])
            c.text = f"s_waitcnt vmcnt({n})" + (f" lgkmcnt({lg})" if lg is not None else ""); c.tag = (n, lg)
        C2.append(c)
    C = C2
    pro, _ = finish(pro)
    C, q = finish(C, [], pre=pro[-12:])
    assert not q
    return pro + C + gen_opre(w), rare_routine(w, 0) + rare_routine(w, 1)

OSLOT = 40960
def oslot(u): return ((u + 2) & 3) * OSLOT
def o_voff(nh, VOFF, lane, a, b):
    if nh == 1 and Cfg.fake_wot:
        return [V(f"v_lshrrev_b32 v{a}, 2, v{lane}"), V(f"v_mul_u32_u24 v{a}, 320, v{a}"), V(f"v_and_b32 v{VOFF}, 3, v{lane}"), V(f"v_lshl_add_u32 v{VOFF}, v{VOFF}, 4, v{a}")]
    if nh == 0: return [V(f"v_lshlrev_b32 v{VOFF}, 4, v{lane}")]
    return [V(f"v_lshrrev_b32 v{a}, 2, v{lane}"), V(f"v_mul_u32_u24 v{a}, 1280, v{a}"), V(f"v_bfe_u32 v{b}, v{lane}, 4, 1"), V(f"v_lshlrev_b32 v{b}, 1, v{b}"),
            V(f"v_and_b32 v{VOFF}, 3, v{lane}"), V(f"v_xor_b32 v{VOFF}, v{VOFF}, v{b}"), V(f"v_lshl_add_u32 v{VOFF}, v{VOFF}, 4, v{a}")]
def o_base(nh, sBase, sLd):
    C = [S(f"s_and_b32 s{sLd}, s{sWave}, 1"), S(f"s_mul_i32 s{sLd}, s{sLd}, 5120")]
    if nh == 0: C += [S(f"s_mul_i32 s{sBase}, s{sB}, {128*10240}"), S(f"s_add_u32 s{sBase}, s{sBase}, s{sLd}")]
    else: C += [S(f"s_lshl_b32 s{sBase}, s{sLd}, 2"), S(f"s_and_b32 s{sT2}, s{sG}, 3"), S(f"s_mul_i32 s{sT2}, s{sT2}, {5120 if Cfg.fake_wot else 320}"), S(f"s_add_u32 s{sBase}, s{sBase}, s{sT2}"),
                S(f"s_add_u32 s{sLd}, s{sLd}, 10240")]
    step = 10240 if nh == 0 else 40960
    C += [S(f"s_add_u32 s{sT3}, s{sG}, s{sB}")] if Cfg.orot else [S(f"s_mov_b32 s{sT3}, 0")]
    for u in range(4):
        C += [S(f"s_add_u32 s{sT2}, s{sT3}, {u}"), S(f"s_and_b32 s{sT2}, s{sT2}, 3"), S(f"s_mul_i32 s{sOoff+u}, s{sT2}, {step}")]
    return C
def o_dma(nh, u, VOFF, sSo, sLd, goff=0, loff=0, srd_=None):
    step = 10240 if nh == 0 else 40960
    G = []
    if Cfg.o_skip & (1 << nh): return G
    for i in range(5):
        if nh == 0:
            imm = (i & 3) * 1024; ex = (i >> 2) * 4096
            g = [S(f"s_add_u32 m0, s{sLd}, {oslot(u) + ex + loff}"), S(f"s_add_u32 s{sT0}, s{sSo}, s{sOoff+u}")] + ([S(f"s_add_u32 s{sT0}, s{sT0}, {ex + goff}")] if ex + goff else []) if imm == 0 else []
            G.append(g + [dma(VOFF, srd_ or sWS, f"s{sT0}", imm, Cfg.old_pol)])
        else:
            g = [S(f"s_add_u32 m0, s{sLd}, {oslot(u) + i*1024 - i*64 + loff}")]
            if i == 0: g += [S(f"s_add_u32 s{sT0}, s{sSo}, s{sOoff+u}")] + ([S(f"s_add_u32 s{sT0}, s{sT0}, {goff}")] if goff else [])
            G.append(g + [dma(VOFF, srd_ or sWO, f"s{sT0}", i * 64)])
    return G
def gate(lab, POLL, vfl, shift):
    return [V(f"v_readfirstlane_b32 s{sT2}, v{POLL}"), S(f"s_bfe_u32 s{sT2}, s{sT2}, {0x40000 + shift:#x}"), S(f"s_cmp_lg_u32 s{sT2}, 15"),
            branch("s_cbranch_scc1", lab)]
def spin(lab, POLL, vfl, shift, back):
    return [label(lab), bload(1, POLL, vfl, sDBG, 0, 0, 'sc1'), S(f"s_sub_u32 s{sCnt}, s{sCnt}, 1"), S(f"s_cmp_lt_i32 s{sCnt}, 0"), branch("s_cbranch_scc1", back),
            wait(vm=0), V(f"v_readfirstlane_b32 s{sT2}, v{POLL}"), S(f"s_bfe_u32 s{sT2}, s{sT2}, {0x40000 + shift:#x}"), S(f"s_cmp_eq_u32 s{sT2}, 15"),
            branch("s_cbranch_scc1", back), raw(f"s_sleep {Cfg.xsleep}"), branch("s_branch", lab)]

def gen_opre(w):
    sSo, sLd = sTK, sTV
    C = []
    for u in range(2):
        C += [label(f"L_opre{u}"), S(f"s_bitcmp1_b32 s{sWave}, 1"), branch("s_cbranch_scc1", f"L_opre{u}_1")]
        for nh in range(2):
            step = 10240 if nh == 0 else 40960
            B = [label(f"L_opre{u}_{nh}")]
            if u == 0:
                t = w.tmp + 1
                B += lane_id(t) + o_voff(nh, w.oVoff, t, w.dummy, w.vTch) + o_base(nh, sSo, sLd)
                B += [S(f"s_and_b32 s{sT3}, s{sG}, 4"), S(f"s_mul_i32 s{sT3}, s{sT3}, {16*step}"), S(f"s_add_u32 s{sSo}, s{sSo}, s{sT3}")]
            for ks in range(2): B += flat(o_dma(nh, u, w.oVoff, sSo, sLd, goff=ks * 4 * step, loff=ks * 20480))
            B += [branch("s_branch", f"L_opre{u}_back")]
            C += fix_hazards(B)
    C += fix_hazards([label("L_g1"), S(f"s_mov_b32 s{sCnt}, 0x8000"), V(f"v_mov_b32 v{w.tmp+2}, s{sFlag}")] + spin("L_g1_spin", w.oPoll, w.tmp + 2, 0, "L_g1_back"))
    return C

def gen_o():
    ACC = 0; SET = [100, 140]
    aB, aA0, aA1 = 180, 182, 184
    VOFF, POLL, VFL, T, L16, POLL2 = 186, 187, 188, 190, 196, 198
    LW, LR, VO, VO2 = T + 2, T + 3, T + 4, 199
    RB = 200
    sSo, sHi, sLd, sBase, sKs, sNq = 36, 37, 39, 40, 43, 44
    sXo, sXp, sOb, sVar = 60, 61, 62, 63
    sOD = sK
    st = lambda k, real=False: stamp(T, k, real)
    def acc(t): return ACC + 4 * t
    def fB(s_, jj): return SET[s_] + 4 * jj
    def fA(s_, nn): return SET[s_] + 20 + 4 * nn
    TS = [list(range(0, 7)), list(range(7, 13)), list(range(13, 19)), list(range(19, 25))]
    C = [label("L_o")] + st(80)
    if Cfg.prio: C += [raw("s_setprio 0")]
    lane = T; a = T + 1; b = T + 5
    C += lane_id(lane) + [V(f"v_lshlrev_b32 v{L16}, 4, v{lane}")]
    C += [S(f"s_lshr_b32 s{sKs}, s{sWave}, 2"), S(f"s_mul_i32 s{sT0}, s{sKs}, 20480"), S(f"s_and_b32 s{sT1}, s{sWave}, 1"), S(f"s_mul_i32 s{sT1}, s{sT1}, 5120"),
          S(f"s_add_u32 s{sT1}, s{sT0}, s{sT1}"),
          V(f"v_add_u32 v{aB}, s{sT1}, v{L16}"), V(f"v_add_u32 v{aB+1}, {2*OSLOT}, v{aB}"),
          V(f"v_lshrrev_b32 v{a}, 2, v{lane}"), V(f"v_bfe_u32 v{b}, v{lane}, 4, 1"), V(f"v_lshlrev_b32 v{b}, 5, v{b}"), V(f"v_lshl_add_u32 v{b}, v{a}, 6, v{b}"),
          V(f"v_and_b32 v{a}, 3, v{lane}"), V(f"v_lshl_add_u32 v{b}, v{a}, 3, v{b}"),
          S(f"s_add_u32 s{sT1}, s{sT0}, 10240"), V(f"v_add_u32 v{aA0}, s{sT1}, v{b}"), V(f"v_xor_b32 v{aA1}, 32, v{aA0}"),
          V(f"v_add_u32 v{aA0+1}, {2*OSLOT}, v{aA0}"), V(f"v_add_u32 v{aA1+1}, {2*OSLOT}, v{aA1}"),
          S(f"s_mov_b32 s{sHi}, 0")]
    C += [S(f"s_bitcmp1_b32 s{sWave}, 1"), branch("s_cbranch_scc1", "L_o_1")]
    C = fix_hazards(C)
    def late_setup():
        return [V(f"v_mov_b32 v{VFL}, s{sFlag}"), V(f"v_xor_b32 v{VFL+1}, 4, v{VFL}"), V(f"v_mov_b32 v{POLL}, 0"), V(f"v_mov_b32 v{POLL2}, 0"),
         S(f"s_and_b32 s{sNq}, s{sG}, 3"), S(f"s_mov_b32 s{sCnt}, 0x8000"),
         S(f"s_mul_i32 s{sT0}, s{sWave}, 13312"), V(f"v_add_u32 v{LW}, s{sT0}, v{L16}"),
         S(f"s_xor_b32 s{sT1}, s{sWave}, 4"), S(f"s_mul_i32 s{sT0}, s{sT1}, 13312"), V(f"v_add_u32 v{LR}, s{sT0}, v{L16}"),
         S(f"s_lshl_b32 s{sT0}, s2, 3"), S(f"s_add_u32 s{sT0}, s{sT0}, s{sWave}"), S(f"s_mul_i32 s{sXo}, s{sT0}, {SLAB}"), S(f"s_add_u32 s{sXo}, s{sXo}, {XCH_OFF}"),
         S(f"s_xor_b32 s{sT0}, s{sT0}, {8 if Cfg.map84 else 256}"), S(f"s_mul_i32 s{sXp}, s{sT0}, {SLAB}"), S(f"s_add_u32 s{sXp}, s{sXp}, {XCH_OFF}"),
         V(f"v_bfe_u32 v{VO}, v{L16}, 4, 4"), V(f"v_mul_u32_u24 v{VO}, 1280, v{VO}"),
         V(f"v_bfe_u32 v{a}, v{L16}, 8, 1"), V(f"v_lshl_add_u32 v{VO2}, v{a}, 5, v{VO}"), V(f"v_lshrrev_b32 v{a}, 9, v{L16}"), V(f"v_lshl_add_u32 v{VO2}, v{a}, 4, v{VO2}"),
         V(f"v_lshrrev_b32 v{a}, 8, v{L16}"), V(f"v_lshl_add_u32 v{VO}, v{a}, 3, v{VO}"),
         S(f"s_mul_i32 s{sOb}, s{sB}, 204800"), S(f"s_and_b32 s{sT0}, s{sWave}, 1"), S(f"s_mul_i32 s{sT0}, s{sT0}, 102400"), S(f"s_add_u32 s{sOb}, s{sOb}, s{sT0}"),
         S(f"s_mul_i32 s{sT0}, s{sNq}, 320"), S(f"s_add_u32 s{sOb}, s{sOb}, s{sT0}"), S(f"s_bfe_u32 s{sT0}, s{sWave}, 0x10001"), S(f"s_mul_i32 s{sT0}, s{sT0}, 160"),
         S(f"s_add_u32 s{sOb}, s{sOb}, s{sT0}"),
         S(f"s_lshr_b32 s{sVar}, s{sG}, 2"), S(f"s_lshl_b32 s{sT1}, s{sKs}, 1"), S(f"s_add_u32 s{sVar}, s{sVar}, s{sT1}")] + mode_vcc()
    def poll_load(): return [bload(1, POLL, VFL, sDBG, 0, 0, 'sc1'), bload(1, POLL2, VFL + 1, sDBG, 0, 0, 'sc1')]
    for nh in range(2):
        step = 10240 if nh == 0 else 40960
        src = sWS if nh == 0 else sWO
        R_ = [label(f"L_o_{nh}")] + o_voff(nh, VOFF, lane, a, b) + o_base(nh, sBase, sLd) + [S(f"s_add_u32 s{sLd}, s{sLd}, s{sT0}")]
        R_ += [S(f"s_mov_b32 s{sOD+i}, s{src+i}") for i in range(3)]
        def head_setup():
            return [S(f"s_and_b32 s{sT2}, s{sHi}, 3"), S(f"s_and_b32 s{sT3}, s{sG}, 4"), S(f"s_add_u32 s{sT2}, s{sT2}, s{sT3}"),
                    S(f"s_lshl_b32 s{sT2}, s{sT2}, 2"), S(f"s_lshr_b32 s{sT3}, s{sHi}, 2"), S(f"s_lshl_b32 s{sT3}, s{sT3}, 1"), S(f"s_add_u32 s{sT2}, s{sT2}, s{sT3}"),
                    S(f"s_add_u32 s{sT2}, s{sT2}, s{sKs}"), S(f"s_mul_i32 s{sT2}, s{sT2}, {4*step}"), S(f"s_add_u32 s{sSo}, s{sBase}, s{sT2}"),
                    S(f"s_add_u32 s{sHi}, s{sHi}, 1")]
        odma = lambda u: o_dma(nh, u, VOFF, sSo, sLd, srd_=sOD)
        def oreads(u):
            s_ = u & 1; hi = oslot(u) // (2 * OSLOT); off = oslot(u) % (2 * OSLOT)
            G = []
            for k in range(5):
                nb = 5 * nh + k
                ar = (aA1 if nb & 1 else aA0) + hi
                G.append([ds_read(2, fA(s_, k) + 2 * hh, ar, off + (hh * 5 + (nb >> 1)) * 1024, tr=True) for hh in range(2)])
                G.append([ds_read(4, fB(s_, k), aB + hi, off + k * 1024)])
            return G
        def omf(s_): return [mfma(acc(t), fA(s_, t % 5), fB(s_, t // 5), acc(t)) for t in range(25)]
        R_ += head_setup()
        R_ += [wait(vm=18), barrier()] + st(81) + st(82)
        R_ += flat(oreads(0))
        for r in range(50): R_.append(V(f"v_pk_mov_b32 v[{ACC+2*r}:{ACC+2*r+1}], 0, 0"))
        R_ += late_setup() + flat(odma(2))
        R_ += [wait(vm=13), branch("s_branch", f"L_o_in{nh}")]
        R_, q = finish(R_)
        it = lambda hi, wv, lab: [S(f"s_lshl_b32 s{sT2}, s{sHi}, 3"), S(f"s_add_u32 s{sT2}, s{sT2}, s{sWave}"), S(f"s_cmp_lg_u32 s{sT2}, {hi*8+wv}"), branch("s_cbranch_scc1", lab)]
        def ostage(u):
            L = [wait(vm=5, lgkm=0), barrier()]
            if u == 1: L = [wait(vm=5), label(f"L_o_in{nh}"), wait(lgkm=0), barrier()]
            fill = [(oreads(u), 0, Cfg.orh)]
            d = odma((u + 2) & 3)
            if u == 1:
                d = d + [head_setup() + [S(f"s_cmp_gt_u32 s{sHi}, 8"), S(f"s_cselect_b32 s{sOD+2}, 0, s{sOD+2}")]]
                if nh == 0: d = d + [it(5, 0, "L_g3_back") + gate("L_g2", POLL, VFL, 8) + [label("L_g2_back")] + gate("L_g3", POLL2, VFL + 1, 0) + [label("L_g3_back")]]
            if u == 3 and nh == 0: d = [it(4, 0, "L_p2") + poll_load() + [label("L_p2")]] + d
            if u == 2 and nh == 1:
                d = [it(2, 2, "L_nofl2") + [S(f"s_lshl_b32 s{sT2}, 0x100, s{sNq}")] + flag_add(T, f"s{sT2}", "L_nofl2")] + d
            if u == Cfg.tlbu and Cfg.tlbwarm:
                d = d + [[S(f"s_cmp_lg_u32 s{sHi}, {Cfg.tlbwarm}"), branch("s_cbranch_scc1", f"L_tw{nh}"), V(f"v_lshlrev_b32 v{T}, 3, v{L16}"), V(f"v_min_u32 v{T}, {SLAB-128}, v{T}"),
                          bload(1, RB, T, sWS, f"s{sXo}", 0, 'sc1'), label(f"L_tw{nh}")]]
            if u == 3: d = d + [[S(f"s_cmp_gt_u32 s{sHi}, 8")]]
            fill.append((d, Cfg.od0, Cfg.od1))
            if Cfg.oprio:
                n_ = len(Cfg.oprio)
                L = L[:-1] + [raw(f"s_setprio {n_}"), L[-1]]
                for i, pos in enumerate(Cfg.oprio): fill.append(([[raw(f"s_setprio {n_-1-i}")]], pos - 1, pos))
            return L + spread(omf(1 - (u & 1)), fill)
        B = [label(f"L_o_loop{nh}")] + ostage(1) + ostage(2) + ostage(3) + [branch("s_cbranch_scc1", "L_o_fin")] + ostage(0) + [branch("s_branch", f"L_o_loop{nh}")]
        Bc, q2 = loop_finish(B, [], R_)
        E = []
        if nh == 0: E += spin("L_g2", POLL, VFL, 8, "L_g2_back") + spin("L_g3", POLL2, VFL + 1, 0, "L_g3_back")
        C += R_ + Bc + fix_hazards(E)
    E = [label("L_o_fin")] + st(83) + [wait(vm=0, lgkm=0), barrier()]
    for v in range(1, 4): E += [S(f"s_cmp_eq_u32 s{sVar}, {v}"), branch("s_cbranch_scc1", f"L_o_epi{v}")]
    C += E
    for v in range(4):
        ks, kh = v >> 1, v & 1
        mine = TS[v]; xsend = TS[v ^ 1]; keep = sorted(mine + xsend); lsend = sorted(TS[v ^ 2] + TS[v ^ 3])
        ls = lambda i: [raw(f"s_memtime s[{64+2*i}:{65+2*i}]" if i < 4 else f"s_memtime s[{92+2*(i-4)}:{93+2*(i-4)}]"), wait(lgkm=0)] if Cfg.stamps == 6 else []
        E = [label(f"L_o_epi{v}")] + ls(0)
        order = lsend + xsend + mine
        mf = [mfma(acc(t), fA(1, t % 5), fB(1, t // 5), acc(t)) for t in order]
        wr = [[ds_write(4, LW, acc(t), i * 1024)] for i, t in enumerate(lsend)]
        E += spread(mf, [(wr, 4, 19)])
        E += [wait(lgkm=0)] + ls(1) + [barrier()] + ls(2)
        rorder = xsend + mine
        for i, t in enumerate(rorder): E.append(ds_read(4, RB + 4 * i, LR, keep.index(t) * 1024))
        PK = SET[0]
        for i, t in enumerate(rorder):
            for r in range(0, 4, 2): E.append(V(f"v_pk_add_f32 v[{acc(t)+r}:{acc(t)+r+1}], v[{acc(t)+r}:{acc(t)+r+1}], v[{RB+4*i+r}:{RB+4*i+r+1}]"))
            if t in xsend:
                k = xsend.index(t)
                E += [V(f"v_cvt_pk_bf16_f32 v{PK+2*k}, v{acc(t)}, v{acc(t)+1}"), V(f"v_cvt_pk_bf16_f32 v{PK+2*k+1}, v{acc(t)+2}, v{acc(t)+3}")]
                if k & 1 or k == len(xsend) - 1: E += dstore(4, PK + 4 * (k >> 1), L16, sWS, f"s{sXo}", (k >> 1) * 1024)
        E += st(84) + ls(3)
        n = len(mine); nl = (n + 1) // 2
        E += [V(f"v_mov_b32 v{POLL2}, 1"), V(f"v_mov_b32 v{VFL}, {SLAB-128}"), wait(vm=0), S("s_mov_b64 exec, 1")] + dstore(1, POLL2, VFL, sWS, f"s{sXo}", 0)
        if Cfg.poll_nt:
            SLOW.append([label(f"L_xp{v}"), bload(1, POLL, VFL, sWS, f"s{sXp}", 0, 'sc1'), branch("s_branch", f"L_xp{v}_b")])
            pl = [branch("s_cbranch_vccz", f"L_xp{v}"), bload(1, POLL, VFL, sWS, f"s{sXp}", 0, 'nt'), label(f"L_xp{v}_b")]
        else: pl = [bload(1, POLL, VFL, sWS, f"s{sXp}", 0, 'sc1')]
        E += [label(f"L_x{v}")] + pl + [
              S(f"s_sub_u32 s{sCnt}, s{sCnt}, 1"), S(f"s_cmp_lt_i32 s{sCnt}, 0"), branch("s_cbranch_scc1", f"L_x{v}_ok"), wait(vm=0),
              V(f"v_readfirstlane_b32 s{sT2}, v{POLL}"), S(f"s_cmp_eq_u32 s{sT2}, 1"), branch("s_cbranch_scc1", f"L_x{v}_ok"),
              raw(f"s_sleep {Cfg.xsleep2}"), branch("s_branch", f"L_x{v}"), label(f"L_x{v}_ok"), S("s_mov_b64 exec, -1")]
        ld = lambda pol: [bload(4, RB + 4 * k, L16, sWS, f"s{sXp}", k * 1024, pol) for k in range(nl)]
        SLOW.append([label(f"L_xl{v}")] + ld('sc1') + [branch("s_branch", f"L_xl{v}_b")])
        E += [branch("s_cbranch_vccz", f"L_xl{v}")] + ld('') + [label(f"L_xl{v}_b")]
        E += st(85) + ls(4)
        E += [wait(vm=0)] + ls(6)
        U = RB + 16
        k = 0
        while k < n:
            pair = Cfg.widest and k + 1 < n and mine[k] // 5 == mine[k + 1] // 5
            d = acc(mine[k])
            for h in range(2 if pair else 1):
                a_ = acc(mine[k + h]); r0 = RB + 2 * (k + h)
                E += [V(f"v_lshlrev_b32 v{U}, 16, v{r0}"), V(f"v_and_b32 v{U+1}, 0xffff0000, v{r0}"), V(f"v_lshlrev_b32 v{U+2}, 16, v{r0+1}"), V(f"v_and_b32 v{U+3}, 0xffff0000, v{r0+1}")]
                for r in range(0, 4, 2): E.append(V(f"v_pk_add_f32 v[{a_+r}:{a_+r+1}], v[{a_+r}:{a_+r+1}], v[{U+r}:{U+r+1}]"))
                E += [V(f"v_cvt_pk_bf16_f32 v{d+2*h}, v{a_}, v{a_+1}"), V(f"v_cvt_pk_bf16_f32 v{d+2*h+1}, v{a_+2}, v{a_+3}")]
            t = mine[k]
            E += [S(f"s_add_u32 s{sT0}, s{sOb}, {(t//5)*20480}")]
            if pair: E += [V(f"v_permlane16_swap_b32 v{d}, v{d+2}"), V(f"v_permlane16_swap_b32 v{d+1}, v{d+3}"), bstore(4, d, VO2, sOUT, f"s{sT0}", (t % 5) * 32, Cfg.out_pol)]
            else: E += [bstore(2, d, VO, sOUT, f"s{sT0}", (t % 5) * 32, Cfg.out_pol)]
            k += 2 if pair else 1
        E += st(86) + st(77, True)
        if Cfg.stamps == 6:
            E += [wait(vm=0)] + ls(5) + [V(f"v_mov_b32 v{T+1}, 0"), V(f"v_mov_b32 v{T}, s{sCnt}"), bstore(1, T, T + 1, sWS, f"s{sStamp+2}", 4 * 106)]
            for i, r in enumerate([64, 66, 68, 70, 92, 94]): E += [V(f"v_mov_b32 v{T}, s{r}"), bstore(1, T, T + 1, sWS, f"s{sStamp+2}", 4 * (100 + i))]
            E += [V(f"v_mov_b32 v{T}, s96"), bstore(1, T, T + 1, sWS, f"s{sStamp+2}", 4 * 107)]
        if Cfg.dbgst and ks == 1:
            E += [S(f"s_cmp_lg_u32 s{sWave}, 4"), branch("s_cbranch_scc1", f"L_dbgend{v}"), S(f"s_cmp_lg_u32 s2, {Cfg.dbgst}"), branch("s_cbranch_scc1", f"L_dbgend{v}"),
                  S("s_mov_b64 exec, 1"), V("v_mov_b32 v1, 0")]
            for i, r in enumerate(DREG):
                E += [S(f"s_sub_u32 s{r}, s{r}, s{sStamp+2}"), S(f"s_lshr_b32 s{r}, s{r}, 8"), S(f"s_and_b32 s{r}, s{r}, 0x3ff"), S(f"s_lshl_b32 s{r}, s{r}, {12 + 10*(i&1)}"), V(f"v_mov_b32 v{2+i}, s{r}"),
                      raw(f"buffer_atomic_or v{2+i}, v1, s[{sDBG}:{sDBG+3}], 0 offen offset:{8*(i>>1)+4} sc1")]
            E += [label(f"L_dbgend{v}")]
        E += [raw("s_endpgm")]
        E, _ = finish(E)
        C += E
    return C

def gen_kernel(name):
    C = [raw(f".globl {name}\n.p2align 8\n.type {name},@function\n{name}:\nKSTART:", 'label')]
    C += [S("s_cmp_lt_u32 s2, 256"), branch("s_cbranch_scc1", "L_go"), raw("s_endpgm"), label("L_go")]
    C += [raw("s_load_dwordx16 s[56:71], s[0:1], 0")]
    if Cfg.ent: C += [raw("s_memtime s[92:93]"), raw("s_memrealtime s[100:101]")]
    if Cfg.dbgst: C += [raw(f"s_memtime s[{sStamp+2}:{sStamp+3}]")] + [S(f"s_mov_b32 s{r}, 0") for r in DREG]
    if Cfg.delay:
        C += [S(f"s_bitcmp0_b32 s2, {Cfg.delay_bit}"), branch("s_cbranch_scc1", "L_nodelay"), S(f"s_mov_b32 s{sT0}, {Cfg.delay // 1024}"), label("L_delay"), raw("s_sleep 16"),
              S(f"s_sub_u32 s{sT0}, s{sT0}, 1"), S(f"s_cmp_lg_u32 s{sT0}, 0"), branch("s_cbranch_scc1", "L_delay"), label("L_nodelay")]
    C += [V("v_lshrrev_b32 v1, 6, v0"),
          S(f"s_and_b32 s{sB}, s2, 7"), S(f"s_lshl_b32 s{sB}, s{sB}, 2"), V(f"v_readfirstlane_b32 s{sWave}, v1"),
          S(f"s_lshr_b32 s{sT0}, s2, 6"), S(f"s_add_u32 s{sB}, s{sB}, s{sT0}"), S(f"s_bfe_u32 s{sG}, s2, 0x30003")]
    if Cfg.map84:
        C += [S(f"s_and_b32 s{sB}, s2, 6"), S(f"s_lshl_b32 s{sB}, s{sB}, 2"), S(f"s_lshr_b32 s{sT0}, s2, 5"), S(f"s_add_u32 s{sB}, s{sB}, s{sT0}"),
              S(f"s_and_b32 s{sG}, s2, 1"), S(f"s_lshl_b32 s{sG}, s{sG}, 2"), S(f"s_bfe_u32 s{sT0}, s2, 0x20003"), S(f"s_add_u32 s{sG}, s{sG}, s{sT0}")]
    C += [S(f"s_bfe_u32 s{sT0}, s{sWave}, 0x10001"), S(f"s_lshl_b32 s{sT2}, s{sG}, 2"), S(f"s_add_u32 s{sT2}, s{sT2}, s{sT0}"), S(f"s_lshl_b32 s{sWbase}, s{sT2}, 8"),
          S(f"s_cmp_lt_u32 s{sWave}, 4"), branch("s_cbranch_scc1", "L_w3"),
          S(f"s_and_b32 s{sT1}, s{sWave}, 1"), S(f"s_lshl_b32 s{sT2}, s{sT1}, 10"),
          S(f"s_lshl_b32 s{sLdsKV}, s{sT0}, 13"), S(f"s_add_u32 s{sLdsKV}, s{sLdsKV}, s{sT2}"),
          S(f"s_mul_i32 s{sLdsX}, s{sT0}, 10240"), S(f"s_add_u32 s{sLdsX}, s{sLdsX}, s{sT2}"),
          S(f"s_mul_i32 s{sXbase}, s{sB}, 204800"), S(f"s_mul_i32 s{sT2}, s{sT0}, 102400"), S(f"s_add_u32 s{sXbase}, s{sXbase}, s{sT2}")]
    if Cfg.rot:
        C += [S(f"s_bfe_u32 s{sRho}, s2, 0x20003") if Cfg.map84 else S(f"s_lshr_b32 s{sRho}, s2, 6"), S(f"s_mul_i32 s{sRho}, s{sRho}, 5"), S(f"s_add_u32 s{sRho}, s{sRho}, 1"), S(f"s_lshr_b32 s{sRho}, s{sRho}, 1"),
              S(f"s_lshr_b32 s{sT2}, s2, 5") if Cfg.map84 else S(f"s_mov_b32 s{sT2}, s{sG}"), S(f"s_add_u32 s{sRho}, s{sRho}, s{sT2}"), S(f"s_and_b32 s{sT2}, s2, 7"), S(f"s_add_u32 s{sRho}, s{sRho}, s{sT2}")]
        for _ in range(2): C += [S(f"s_sub_u32 s{sT2}, s{sRho}, 10"), S(f"s_cmp_ge_u32 s{sRho}, 10"), S(f"s_cselect_b32 s{sRho}, s{sT2}, s{sRho}")]
        if Cfg.rotn == 88: C += [S(f"s_lshr_b32 s{sRho}, s2, 5"), S(f"s_and_b32 s{sRho}, s{sRho}, 6"), S(f"s_add_u32 s{sRho}, s{sRho}, s{sG}"), S(f"s_add_u32 s{sRho}, s{sRho}, s2")]
        if Cfg.rotn == 19: C += [S(f"s_cmp_eq_u32 s{sRho}, 9"), S(f"s_cselect_b32 s{sRho}, 4, s{sRho}")]
        if Cfg.rotn == 8: C += [S(f"s_and_b32 s{sRho}, s2, 7")]
        if Cfg.rotn == 16:
            C += [S(f"s_and_b32 s{sRho}, s{sRho}, 1"), S(f"s_mul_i32 s{sRho}, s{sRho}, 5"), S(f"s_and_b32 s{sT2}, s2, 7"), S(f"s_add_u32 s{sRho}, s{sRho}, s{sT2}"),
                  S(f"s_sub_u32 s{sT2}, s{sRho}, 10"), S(f"s_cmp_ge_u32 s{sRho}, 10"), S(f"s_cselect_b32 s{sRho}, s{sT2}, s{sRho}")]
        if Cfg.rotn == 2: C += [S(f"s_and_b32 s{sRho}, s{sRho}, 1"), S(f"s_mul_i32 s{sRho}, s{sRho}, 5")]
        if Cfg.rotn == 4: C += [S(f"s_and_b32 s{sRho}, s{sRho}, 3"), S(f"s_mul_i32 s{sRho}, s{sRho}, 5"), S(f"s_lshr_b32 s{sRho}, s{sRho}, 1")]
    C = fix_hazards(C)
    w2, r2 = gen_w2(); w3, r3 = gen_w3()
    C += w2 + w3 + gen_o() + [label("KEND")] + r2 + r3 + flat(SLOW)
    for k, tag, par in CTX.stubs:
        C += [label(f"L_stub{k}"), raw(f"s_call_b64 s[{sRet}:{sRet+1}], L_rare_{tag}_{par}", 'branch'), branch("s_branch", f"L_back{k}")]
    return C

def kd(name, vgpr, accum, sgpr=102):
    return f""".section .rodata,"a"
.p2align 6
.amdhsa_kernel {name}
  .amdhsa_next_free_vgpr {vgpr}
  .amdhsa_next_free_sgpr {sgpr}
  .amdhsa_accum_offset {accum}
  .amdhsa_group_segment_fixed_size 0
  .amdhsa_kernarg_size 64
  .amdhsa_user_sgpr_count 2
  .amdhsa_user_sgpr_kernarg_segment_ptr 1
  .amdhsa_system_sgpr_workgroup_id_x 1
.end_amdhsa_kernel
"""

HDR = open('standalone__mha_block_cached__near_ridge.s.ref').read().split('; Override launch')[0]
def main(path):
    k1 = "standalone__mha_block_cached__near_ridge_kernel"
    s = HDR
    s += f"; @launch grid=(256,1,1) block=(512,1,1) lds={LDS_BYTES}\n"
    s += '.amdgcn_target "amdgcn-amd-amdhsa--gfx950"\n.text\n'
    s += emit(gen_kernel(k1))
    s += kd(k1, 256, 256)
    open(path, 'w').write(s)
if __name__ == '__main__':
    for a in sys.argv[2:]:
        k, v = a.split('=', 1); setattr(Cfg, k, eval(v))
    main(sys.argv[1] if len(sys.argv) > 1 else 'mha2.s')
```

```python
import sys, math, struct
from ir import *

SLOT = 16384
NSLOT = 10
NW, NX = 6, 3
WPERM = [4, 5, 1, 3, 0, 2]
def wslot(s): return WPERM[s % NW] * SLOT
def xbuf(u): return NW * SLOT + (u % NX) * 20480
WTAB = sum((((WPERM[(m + 1) % NW] - WPERM[m]) & 15) << (4 * m)) for m in range(NW))
LDS_BYTES = 163840
O_BYTES = 32 * 128 * 10 * 1024
XCH_OFF = O_BYTES
SLAB = 4096 + 128
XCH_WG = 8 * SLAB
MODE_LDS = LDS_BYTES - 4
WS_BYTES = XCH_OFF + 256 * XCH_WG
QSCALE = math.log2(math.e) / math.sqrt(128.0)
THR = 16384.0
def f2u(x): return "0x%08x" % struct.unpack('<I', struct.pack('<f', x))[0]

sK, sV, sW, sX, sWS, sWO, sOUT, sDBG = 8, 12, 16, 20, 24, 28, 76, 80
sWave, sRound, sB, sG = 32, 33, 34, 35
sKVbase, sWbase, sXbase, sLdsKV, sLdsX = 36, 37, 38, 39, 40
sT0, sT1 = 41, 42
sKpos, sVpos, sD, sCnt, sXd, sLoop = 43, 44, 45, 49, 50, 51
sRet = 46
sOst = 48
sKX, sFlag = 52, 53
sT2, sT3 = 54, 55
sQS, sC16, sC32, sCX = 72, 73, 74, 75
sTK, sTV, sCnt2 = 88, 89, 90
sTau = 64
sMode = 91
sRho, sT4 = 3, 87
sOoff = 56
sStamp = 84
DBG_OFF = 96 << 20

class Cfg:
    stamps = False
    dbgst = False
    dsl = None
    rot = True
    orot = True
    warm0 = False
    delay = 0
    delay_bit = 7
    LA = 7
    kv_pol = 'nt'
    touch_pol = ''
    touch_at = []
    warm = True
    xsleep = 8
    kv_same = False
    capi = 5
    wnext = ((33, (2, 3)), (34, (0, 1)))
    holes = []
    qcap = 9
    map84 = True
    fake_wot = False
    capfrom = 10
    cap0 = False
    place2 = {'wo': (8, 0)}
    cap = 5
    drain = {}
    wo2n = 39
    jit = 1
    wo2pol = ''
    place = {'code': ('A0', 1)}
    oprio = [6, 12, 18]
    v_pol = None
    ent = False
    tlbwarm = 0
    tlbu = 1
    slabmall = True
    widest = True
    pro_pol = ''
    wx_pol = ''
    poll_nt = False
    taumul = 8
    taush = 2
    taumask = 15
    kvgrp = 1
    pace = 5.0
    lead = 2
    tbatch = []
    qr3 = 18
    qr2 = 15
    orh = 20
    od0 = 1
    od1 = 24
    ofirst = True
    qd0 = 0
    qprio = 1
    ofast_pol = ''
    fast0 = False
    out_pol = ''
    dsplit = 50
    rotn = 10
    late = 8
    smpure = 0.7
    pp = False
    pp_a = 1
    pp_b = 0
    ostamp = False
    xsleep2 = 2
    dual = True
    fast = True
    codetouch2 = True
    codetouch = True
    qcut = 4
    prio = 2
    no_sm = False
    no_dma = False
    no_exp = False
    no_chk = False
    no_ds = False
    no_adv = False
    ost_pol = 'sc1'
    old_pol = 'sc1'
    o_skip = 0
    o_vm1 = 10
    smend = 3

RT4 = {7: 90, 39: 91, 45: 92, 73: 93, 82: 94, 83: 95}
STAMP3 = (0, 1, 3, 5, 7, 39, 41, 43, 45, 73, 75, 76, 77, 80, 81, 82, 83, 84, 85, 86)
DSL = {(1, 0): 0, (41, 0): 1, (45, 0): 2, (73, 0): 3, (1, 1): 4, (41, 1): 5, (45, 1): 6, (73, 1): 7, (80, 2): 8, (82, 2): 9, (83, 2): 10, (84, 2): 11, (85, 2): 12, (86, 2): 13}
sDS = 4
DREG = [4, 5, 6, 7, 101, 92, 93, 94, 95, 96, 97, 98, 99, 100]
def stamp(t, k, real=False):
    if Cfg.dbgst:
        if real: return []
        dsl = DSL if not Cfg.dsl else {(2 * b + 1, Cfg.dsl[0]): i for i, b in enumerate(Cfg.dsl[1:])}
        hits = [(r, i) for (kk, r), i in dsl.items() if kk == k]
        if not hits: return []
        out = [raw(f"s_memtime s[{sStamp}:{sStamp+1}]"), wait(lgkm=0)]
        for r, i in hits:
            out += [S(f"s_cmp_eq_u32 s{sRound}, {r}"), S(f"s_cselect_b32 s{DREG[i]}, s{sStamp}, s{DREG[i]}")]
        return out
    if not Cfg.stamps: return []
    if Cfg.stamps == 6: return []
    if Cfg.stamps == 7:
        if not ((41 <= k <= 73 and k % 4 == 1 and not real) or k in (76, 77, 31)): return []
        real = True
    if Cfg.stamps == 4 and not real and k in RT4:
        Cfg.stamps = 5; r = stamp(t, k) + stamp(t, RT4[k], True); Cfg.stamps = 4; return r
    if Cfg.stamps in (3, 4) and k not in STAMP3: return []
    return [raw(f"{'s_memrealtime' if real else 's_memtime'} s[{sStamp}:{sStamp+1}]"), wait(lgkm=0), V(f"v_mov_b32 v{t}, s{sStamp}"), V(f"v_mov_b32 v{t+1}, 0"),
            S(f"s_and_b32 s{sStamp+1}, s{sRound}, 1"), S(f"s_lshl_b32 s{sStamp+1}, s{sStamp+1}, 9"), S(f"s_add_u32 s{sStamp+1}, s{sStamp+1}, s{sStamp+2}"),
            bstore(1, t, t + 1, sWS, f"s{sStamp+1}", 4 * k, tag=('misc',))]

def item_slot(n): return (n % NSLOT) * SLOT
def kidx(t): return 0 if t == 0 else 2 * t - 1
def vidx(t): return 2 * t + 2

class Wave:
    def __init__(self, nq):
        self.nq = nq
        n = nq
        p = 0
        self.O = p; p += 32 * n
        self.Q = p; p += 16 * n
        self.NM = p; p += 4 * n
        self.S = p; p += 8 * n
        self.P = p; p += 8 * n
        self.L = p; p += n
        self.LT = p; p += n
        self.T = p; p += 4
        self.aN = p; p += 2
        self.aT = p; p += 4
        p = (p + 3) & ~3
        self.F = p; self.NF = 8; p += 32
        self.dummy = p; p += 1
        self.tmp = p; p += 3
        if nq == 2:
            self.vK = p; self.vV = p + 1; self.vW = p + 2; self.vX = p + 3; self.vTch = p + 4; self.oVoff = p + 5; self.oPoll = p + 6; p += 7
        assert p <= 256, p
        self.end = p
        setsz = 32 + 4 * n
        if nq == 3:
            self.set = [self.Q, self.S]
        else:
            q = (p + 3) & ~3
            self.set = [self.Q, q]
            assert q + setsz <= 256
        self.tag = f"w{nq}"
        self.fpos = 0
    def o(self, T, j): return self.O + (T * self.nq + j) * 4
    def q(self, s, j): return self.Q + (s * self.nq + j) * 4
    def nm(self, j): return self.NM + 4 * j
    def s(self, kb, j): return self.S + (kb * self.nq + j) * 4
    def p(self, par, j): return self.P + (par * self.nq + j) * 4
    def fa(self, st, T): return self.set[st] + 4 * T
    def fb(self, st, j): return self.set[st] + 32 + 4 * j

def spread(base, fillers):
    ins = [[] for _ in range(len(base) + 1)]
    for groups, lo, hi in fillers:
        n = len(groups)
        if n == 0: continue
        hi = min(hi, len(base)); lo = min(lo, hi)
        span = hi - lo
        for k, gI in enumerate(groups):
            pos = lo + (k * span) // n + 1 if span > 0 else lo
            ins[min(pos, len(base))].extend(gI)
    out = list(ins[0])
    for i, b in enumerate(base):
        out.append(b); out.extend(ins[i + 1])
    return out

def frag_K(w, s, kb, first_c):
    def reads(f): return [ds_read(4, f, w.aN + (s & 1), kb * 4096 + (s >> 1) * 2048)]
    def mf(f):
        out = []
        for j in range(w.nq):
            c = w.s(kb, j) if s > 0 else (None if first_c == 'zero' else w.nm(j))
            out.append(mfma(w.s(kb, j), f, w.q(s, j), c))
        return out
    return dict(reads=reads, mf=mf, pre=[])
def frags_QK(w, first_c='negm', pre=()):
    fr = [frag_K(w, s, kb, first_c) for s in range(4) for kb in range(2)]
    fr[0]['pre'] = list(pre)
    return fr
def frag_V(w, db, par, zero):
    def reads(f): return [ds_read(2, f + 2 * hh, w.aT + (db & 3), hh * 4096 + (db >> 2) * 2048, tr=True) for hh in range(2)]
    def mf(f): return [mfma(w.o(db, j), f, w.p(par, j), None if zero else w.o(db, j)) for j in range(w.nq)]
    return dict(reads=reads, mf=mf, pre=[])
def frags_PV(w, par, zero=False, pre=()):
    fr = [frag_V(w, db, par, zero) for db in range(8)]
    fr[0]['pre'] = list(pre)
    return fr

def stream(w, frags, preloaded, nxt, fillers=(), lead=()):
    LA = Cfg.LA
    allf = list(frags) + list(nxt[:LA])
    head = []
    def issue(i):
        f = allf[i]
        return ([] if Cfg.no_adv else list(f['pre'])) + ([] if Cfg.no_ds else f['reads'](w.F + 4 * ((w.fpos + i) % w.NF)))
    for i in range(preloaded, min(LA, len(allf))): head += issue(i)
    base = list(lead); extra = []
    for i, f in enumerate(frags):
        m = f['mf'](w.F + 4 * ((w.fpos + i) % w.NF))
        base += m
        post = []
        if i + LA < len(allf) and i + LA >= preloaded: post += issue(i + LA)
        if post: extra.append(([post], len(base) - 1, len(base)))
    body = spread(base, list(extra) + list(fillers))
    w.fpos = (w.fpos + len(frags)) % w.NF
    return head + body

def softmax_groups(w, par):
    G = []
    k = 0
    for kb in range(2):
        for j in range(w.nq):
            for h in range(2):
                t0 = w.T + 2 * (k & 1); t1 = t0 + 1; k += 1
                sr = w.s(kb, j) + 2 * h
                G.append([V(f"v_exp_f32 v{t0}, v{sr}")])
                G.append([V(f"v_exp_f32 v{t1}, v{sr+1}")])
                lt = w.LT + j
                if kb == 0 and h == 0:
                    G.append(('late', [V(f"v_add_f32 v{lt}, v{t0}, v{t1}"), V(f"v_cvt_pk_bf16_f32 v{w.p(par,j)+2*kb+h}, v{t0}, v{t1}")]))
                else:
                    G.append(('late', [V(f"v_add_f32 v{lt}, v{lt}, v{t0}"), V(f"v_cvt_pk_bf16_f32 v{w.p(par,j)+2*kb+h}, v{t0}, v{t1}"),
                                       V(f"v_add_f32 v{lt}, v{lt}, v{t1}")]))
    if Cfg.no_sm: return [[V(f"v_mov_b32 v{w.LT+j}, 1.0")] for j in range(w.nq)]
    if Cfg.no_exp:
        for gI in G:
            if not isinstance(gI, tuple): gI[0] = V(gI[0].text.replace('v_exp_f32', 'v_mov_b32'))
    out = []; pend = None
    for gI in G:
        if isinstance(gI, tuple):
            pend = gI[1]
        else:
            out.append(gI)
            if pend is not None:
                out.append(pend); pend = None
    if pend is not None: out.append(pend)
    return out

class Ctx:
    def __init__(self): self.stubs = []; self.n = 0
CTX = Ctx()

SLOW = []
def dstore(n, src, voff, srd_, soff, imm, tag=None, pol=''):
    if not Cfg.dual: return [bstore(n, src, voff, srd_, soff, imm, 'sc1', tag=tag)]
    k = len(SLOW)
    SLOW.append([label(f"L_slow{k}"), bstore(n, src, voff, srd_, soff, imm, 'sc1'), branch("s_branch", f"L_slowb{k}")])
    return [branch("s_cbranch_vccz", f"L_slow{k}"), bstore(n, src, voff, srd_, soff, imm, pol, tag=tag), label(f"L_slowb{k}")]
def mode_vcc(): return [S(f"s_and_b32 s{sT1}, s{sMode}, s{sMode if Cfg.fast0 else sRound}"), S("s_cselect_b64 vcc, -1, 0")]
def mode_read(t):
    return [[V(f"v_mov_b32 v{t}, {MODE_LDS}"), ds_read(1, t, t, 0)],
            [V(f"v_readfirstlane_b32 s{sT1}, v{t}"), S(f"s_cmp_eq_u32 s{sRound}, 0"), S(f"s_cselect_b32 s{sMode}, s{sT1}, s{sMode}")]]

def check_cmp(w):
    if Cfg.no_chk: return []
    out = []
    if w.nq == 3: out.append(V(f"v_max3_f32 v{w.tmp}, v{w.LT}, v{w.LT+1}, v{w.LT+2}"))
    else: out.append(V(f"v_max_f32 v{w.tmp}, v{w.LT}, v{w.LT+1}"))
    out.append(I(f"v_cmp_nge_f32 vcc, {f2u(THR)}, v{w.tmp}", 'valu', wr={('s', 'vcc')}, rd=regs(w.tmp)))
    return out
def check_branch(w, par):
    if Cfg.no_chk: return []
    k = CTX.n; CTX.n += 1
    CTX.stubs.append((k, w.tag, par))
    return [branch("s_cbranch_vccnz", f"L_stub{k}"), label(f"L_back{k}")]
def l_accum(w, first=False):
    if first: return [V(f"v_mov_b32 v{w.L+j}, v{w.LT+j}") for j in range(w.nq)]
    return [V(f"v_add_f32 v{w.L+j}, v{w.L+j}, v{w.LT+j}") for j in range(w.nq)]
def sm_fillers(w, par, lo):
    nm = 8 * w.nq
    return [(softmax_groups(w, par) + [check_cmp(w)], lo, nm - Cfg.smend)]

def xlane(op, r, t):
    return [V(f"v_mov_b32 v{t}, v{r}"), V(f"v_permlane32_swap_b32 v{r}, v{t}"), V(f"{op} v{r}, v{r}, v{t}"),
            V(f"v_mov_b32 v{t}, v{r}"), V(f"v_permlane16_swap_b32 v{r}, v{t}"), V(f"{op} v{r}, v{r}, v{t}")]

def tile_max(w, j, dst):
    a, b = w.s(0, j), w.s(1, j)
    return [V(f"v_max3_f32 v{dst}, v{a}, v{a+1}, v{a+2}"), V(f"v_max3_f32 v{dst}, v{dst}, v{a+3}, v{b}"),
            V(f"v_max3_f32 v{dst}, v{dst}, v{b+1}, v{b+2}"), V(f"v_max_f32 v{dst}, v{dst}, v{b+3}")]

def first_max(w):
    out = []
    for j in range(w.nq): out += tile_max(w, j, w.LT + j)
    seqs = [xlane("v_max_f32", w.LT + j, w.T + j) for j in range(w.nq)]
    for k in range(6):
        for sq in seqs: out.append(sq[k])
    for j in range(w.nq):
        for r in range(4): out.append(V(f"v_sub_f32 v{w.nm(j)+r}, 0, v{w.LT+j}"))
        for kb in range(2):
            for r in range(4): out.append(V(f"v_sub_f32 v{w.s(kb,j)+r}, v{w.s(kb,j)+r}, v{w.LT+j}"))
    return out

def rare_routine(w, par):
    out = [label(f"L_rare_{w.tag}_{par}"), nop(15)]
    for j in range(w.nq):
        d = w.LT + j; f = w.T + 1
        out += tile_max(w, j, d)
        out += xlane("v_max_f32", d, w.T)
        out.append(V(f"v_max_f32 v{d}, 0, v{d}"))
        out.append(V(f"v_sub_f32 v{f}, 0, v{d}"))
        out.append(V(f"v_exp_f32 v{f}, v{f}"))
        for r in range(4): out.append(V(f"v_sub_f32 v{w.nm(j)+r}, v{w.nm(j)+r}, v{d}"))
        for kb in range(2):
            for r in range(4): out.append(V(f"v_sub_f32 v{w.s(kb,j)+r}, v{w.s(kb,j)+r}, v{d}"))
        out.append(V(f"v_mul_f32 v{w.L+j}, v{w.L+j}, v{f}"))
        for T in range(8):
            for r in range(4): out.append(V(f"v_mul_f32 v{w.o(T,j)+r}, v{w.o(T,j)+r}, v{f}"))
    for gI in softmax_groups(w, par): out += gI
    out.append(nop(3))
    out.append(raw(f"s_setpc_b64 s[{sRet}:{sRet+1}]", 'branch'))
    return fix_hazards(out)

def q_reads(w, st, sl):
    G = []
    for j in range(w.nq): G.append([ds_read(4, w.fb(st, j), w.aN + sl, j * 2048)])
    for T in range(8):
        for hh in range(2):
            G.append([ds_read(2, w.fa(st, T) + 2 * hh, w.aT + ((T >> 1) & 1), hh * 4096 + (T >> 2) * 2048 + (T & 1) * 8, tr=True)])
    return G
def q_mfmas(w, st, zero):
    return [mfma(w.o(T, j), w.fa(st, T), w.fb(st, j), None if zero else w.o(T, j)) for T in range(8) for j in range(w.nq)]

def q_pack_groups(w, s):
    G = []
    for j in range(w.nq):
        for half in range(2):
            a = w.o(2 * s + half, j)
            for r in range(4): G.append([V(f"v_mul_f32 v{a+r}, s{sQS}, v{a+r}")])
            G.append([V(f"v_cvt_pk_bf16_f32 v{w.q(s,j)+2*half}, v{a}, v{a+1}")])
            G.append([V(f"v_cvt_pk_bf16_f32 v{w.q(s,j)+2*half+1}, v{a+2}, v{a+3}")])
    return G
def q_pack_fillers(w):
    n = w.nq
    rng = [(2 * n + 2, 5 * n), (5 * n, 8 * n), (8 * n, 11 * n), (11 * n, 14 * n - 1)]
    return [(q_pack_groups(w, s), rng[s][0], rng[s][1]) for s in range(4)]

def l_reduce(w):
    out = []
    seqs = [xlane("v_add_f32", w.L + j, w.T + j) for j in range(w.nq)]
    for k in range(6):
        for sq in seqs: out.append(sq[k])
    for j in range(w.nq): out.append(V(f"v_rcp_f32 v{w.L+j}, v{w.L+j}"))
    out += [V(f"v_mbcnt_lo_u32_b32 v{w.tmp}, -1, 0"), V(f"v_mbcnt_hi_u32_b32 v{w.tmp}, -1, v{w.tmp}"), V(f"v_lshlrev_b32 v{w.tmp}, 4, v{w.tmp}")]
    return out
def epi_groups(w, s):
    G = []
    for j in range(w.nq):
        d = w.q(s, j)
        for half in range(2):
            a = w.o(2 * s + half, j)
            for r in range(4): G.append([V(f"v_mul_f32 v{a+r}, v{a+r}, v{w.L+j}")])
            G.append([V(f"v_cvt_pk_bf16_f32 v{d+2*half}, v{a}, v{a+1}")])
            G.append([V(f"v_cvt_pk_bf16_f32 v{d+2*half+1}, v{a+2}, v{a+3}")])
        G.append([S(f"s_add_u32 s{sT1}, s{sOst}, {s*10240}")] + dstore(4, d, w.tmp, sWS, f"s{sT1}", j * 1024, tag=('O', 0, True), pol=Cfg.ofast_pol))
    return G
def epi_fillers(w):
    n = w.nq
    rng = [(2 * n + 2, 4 * n + 2), (4 * n + 2, 6 * n + 2), (6 * n + 2, 8 * n), (8 * n, 8 * n)]
    return [([[i] for i in l_reduce(w)], 0, 2 * n + 1)] + [(epi_groups(w, s), rng[s][0], rng[s][1]) for s in range(4)]

def flat(G): return [i for g in G for i in g]
def one(L): return [[i] for i in L]

CAPN = [0]
def dma_kv(w, kind, t, nxt_round, tag):
    srd_ = sK if kind == 'K' else sV
    voff = w.vK if kind == 'K' else w.vV
    n = kidx(t) if kind == 'K' else vidx(t)
    lds = item_slot(n)
    G = []
    for a in range(2):
        for seg in range(2):
            G.append([S(f"s_add_u32 m0, s{sLdsKV}, {lds + a*4096 + seg*2048 - seg*128}"),
                      S(f"s_add_u32 s{sT0}, s{sT4}, {a*4096}"),
                      dma(voff, srd_, f"s{sT0}", seg * 128, Cfg.kv_pol if (kind == 'K' or Cfg.v_pol is None) else Cfg.v_pol, tag=tag)])
    if Cfg.cap and n >= Cfg.capfrom:
        for g in G:
            if Cfg.cap0:
                CAPN[0] += 1
                g[0:0] = [S(f"s_cmp_lg_u32 s{sRound}, 0"), branch("s_cbranch_scc1", f"L_cap{CAPN[0]}"), wait(vm=Cfg.cap - 1), label(f"L_cap{CAPN[0]}")]
            else: g.insert(2, wait(vm=(Cfg.cap if n >= 10 else Cfg.capi) - 1))
    G[0] = [S(f"s_add_u32 s{sT4}, s{sTau}, {t*8192}"), S(f"s_and_b32 s{sT4}, s{sT4}, 0x1ffff"), S(f"s_add_u32 s{sT4}, s{sT4}, s{sKVbase}")] + G[0]
    return G
POL = ['']
def rot_off(u, unit, base):
    if not Cfg.rot: return [S(f"s_add_u32 s{sT4}, s{base}, {u*unit}")]
    if Cfg.rotn == 88:
        if u < 2: return [S(f"s_add_u32 s{sT4}, s{base}, {u*unit}")]
        return [S(f"s_add_u32 s{sT4}, s{sRho}, {u-2}"), S(f"s_and_b32 s{sT4}, s{sT4}, 7"), S(f"s_add_u32 s{sT4}, s{sT4}, 2"),
                S(f"s_mul_i32 s{sT4}, s{sT4}, {unit}"), S(f"s_add_u32 s{sT4}, s{sT4}, s{base}")]
    if Cfg.rotn == 19:
        if u < 1: return [S(f"s_add_u32 s{sT4}, s{base}, {u*unit}")]
        return [S(f"s_cmp_ge_u32 s{sRho}, {10-u}"), S(f"s_cselect_b32 s{sT4}, {u-9}, {u}"), S(f"s_add_u32 s{sT4}, s{sT4}, s{sRho}"),
                S(f"s_mul_i32 s{sT4}, s{sT4}, {unit}"), S(f"s_add_u32 s{sT4}, s{sT4}, s{base}")]
    return [S(f"s_cmp_ge_u32 s{sRho}, {10-u}"), S(f"s_cselect_b32 s{sT4}, {u-10}, {u}"), S(f"s_add_u32 s{sT4}, s{sT4}, s{sRho}"),
            S(f"s_mul_i32 s{sT4}, s{sT4}, {unit}"), S(f"s_add_u32 s{sT4}, s{sT4}, s{base}")]
def dma_w(w, s, nxt_round, tag):
    lds = wslot(s)
    goff = (s & 1) * 32 * 8192 + (512 if nxt_round else 0)
    G = []
    for hh in range(2):
        for seg in range(2):
            G.append([S(f"s_add_u32 m0, s{sLdsKV}, {lds + hh*4096 + seg*2048 - seg*128}"),
                      S(f"s_add_u32 s{sT0}, s{sT4}, {goff + hh*32768}"),
                      dma(w.vW, sW, f"s{sT0}", seg * 128, POL[0], tag=tag)])
    G[0] = rot_off(s >> 1, 64 * 8192, sWbase) + G[0]
    return G
def dma_x(w, u, tag):
    G = []
    for i in range(5):
        G.append([S(f"s_add_u32 m0, s{sLdsX}, {xbuf(u) + i*2048}"),
                  S(f"s_add_u32 s{sT0}, s{sT4}, {i*20480}"),
                  dma(w.vX, sX, f"s{sT0}", 0, POL[0], tag=tag)])
    G[0] = rot_off(u, 128, sXbase) + G[0]
    return G
def touch_kv(w, kind):
    srd_, ptr = (sK, sTK) if kind == 'K' else (sV, sTV)
    return [[bload(1, w.dummy, w.vTch, srd_, f"s{ptr}", 0, Cfg.touch_pol, tag=('misc',)), S(f"s_add_u32 s{ptr}, s{ptr}, 4096")]]

NAMES = {}
for _t in range(16):
    NAMES[kidx(_t)] = ('K', _t); NAMES[vidx(_t)] = ('V', _t)
def first_use(kind, i):
    if kind == 'W': return i
    if kind == 'X': return 2 * i
    if kind == 'K': return 20 if i == 0 else 19 + i
    if kind == 'V': return 21 + i
    if kind == 'O': return 3
    if kind == 'P': return 35

def loader_schedule(w):
    sch = {i: [] for i in range(37)}
    r0 = lambda G, lab: [[S(f"s_cmp_lg_u32 s{sRound}, 0"), branch("s_cbranch_scc1", lab)] + flat(G) + [label(lab)]]
    sch[0] += r0(dma_w(w, 2, False, ('W', 2, 'cond')), "L_r0a") + dma_x(w, 1, ('X', 1, False)) + r0(dma_w(w, 3, False, ('W', 3, 'cond')), "L_r0b")
    sch[1] += dma_w(w, 4, False, ('W', 4, False)) + dma_x(w, 2, ('X', 2, False))
    sch[2] += dma_w(w, 5, False, ('W', 5, False))
    if not Cfg.holes:
        for s in range(NW, 20): sch[max(s - NW + 1, 3)] += dma_w(w, s, False, ('W', s, False))
        for u in range(NX, 10): sch[2 * (u - NX) + 2] += dma_x(w, u, ('X', u, False))
    else:
        todo = sorted([(s, 'W', s, max(s - NW + 1, 3)) for s in range(NW, 20)] + [(2 * u - 0.5, 'X', u, 2 * (u - NX) + 2) for u in range(NX, 10)])
        load = {i: 0 for i in range(21)}; load[2] = 4
        cur = 2
        for need, kind, i, t0 in todo:
            n = 4 if kind == 'W' else 5
            t = max(t0, cur)
            while t in Cfg.holes or load[t] + n > Cfg.qcap: t += 1
            assert t <= need - 1.5, (kind, i, t)
            cur = t; load[t] += n
            sch[t] += dma_w(w, i, False, ('W', i, False)) if kind == 'W' else dma_x(w, i, ('X', i, False))
        print("Q load", load, file=sys.stderr)
    if not Cfg.no_dma:
        first = {0: 17, 1: 15, 2: 18, 3: 16, 4: 19, 5: 20, 6: 20, 7: 20, 8: 18, 9: 19}
        for n in range(10): sch[first[n]] += dma_kv(w, *NAMES[n], False, NAMES[n] + (False,))
        for n in range(10, 33):
            if n not in NAMES: continue
            k, t = NAMES[n - 10]
            last = (20 + t) if k == 'K' else min(22 + t, 36)
            rem = [m for m in range(10, 33) if m in NAMES]
            paced = 21 + int(rem.index(n) * Cfg.pace)
            when = max(last + 1, min(paced, first_use(*NAMES[n]) - Cfg.lead))
            sch[when] += dma_kv(w, *NAMES[n], False, NAMES[n] + (False,))
    for idx, ss in Cfg.wnext:
        for s_ in ss: sch[idx] += r0(dma_w(w, s_, True, ('W', s_, 'next')), f"L_r0w{s_}")
    w4first = lambda lab: [S(f"s_lshl_b32 s{sT1}, s{sRound}, 3"), S(f"s_add_u32 s{sT1}, s{sT1}, s{sWave}"), S(f"s_cmp_lg_u32 s{sT1}, 4"), branch("s_cbranch_scc1", lab)]
    sch[7] = [w4first("L_p0") + [S(f"s_mov_b32 s{sT1}, s{sFlag}") if Cfg.map84 else S(f"s_lshl_b32 s{sT1}, s{sB}, 3"), V(f"v_mov_b32 v{w.tmp+2}, s{sT1}"), bload(1, w.oPoll, w.tmp + 2, sDBG, 0, 0, 'sc1', tag=('cond',)), label("L_p0")]] + sch[7]
    sch[14] += [w4first("L_m0") + [V(f"v_readfirstlane_b32 s{sT1}, v{w.oPoll}"), S(f"s_bfe_u32 s{sT2}, s{sT1}, 0x80010"), S(f"s_lshr_b32 s{sT1}, s{sT1}, 24"),
                 S(f"s_bcnt1_i32_b32 s{sT1}, s{sT1}"), S(f"s_lshl_b32 s{sT1}, s{sT1}, 8"), S(f"s_or_b32 s{sT1}, s{sT1}, s{sT2}"), S(f"s_cmp_eq_u32 s{sT1}, 0x1ff"),
                 S(f"s_cselect_b32 s{sT1}, {(1 if Cfg.map84 else 3) if Cfg.fast else 0}, 0"), V(f"v_mov_b32 v{w.tmp+1}, s{sT1}"), V(f"v_mov_b32 v{w.tmp+2}, {MODE_LDS}"),
                 raw(f"ds_write_b32 v{w.tmp+2}, v{w.tmp+1}"), label("L_m0")]]
    for name, (idx, rnd) in Cfg.place2.items():
        t = w.tmp + 1
        if name == 'wo':
            body = lane_id(t) + [V(f"v_min_u32 v{t}, 39, v{t}"), V(f"v_lshlrev_b32 v{t}, 7, v{t}"), S(f"s_lshl_b32 s{sT1}, s2, 2"), S(f"s_add_u32 s{sT1}, s{sT1}, s{sWave}"),
                    S(f"s_sub_u32 s{sT1}, s{sT1}, 4"), S(f"s_mul_i32 s{sT1}, s{sT1}, 5120"), bload(1, w.dummy, t, sWO, f"s{sT1}", tag=('cond',))]
        elif name == 'wq2':
            body = lane_id(t) + [V(f"v_lshrrev_b32 v{t+1}, 2, v{t}"), V(f"v_min_u32 v{t+1}, 4, v{t+1}"), V(f"v_and_b32 v{t}, 3, v{t}"), V(f"v_lshlrev_b32 v{t}, 7, v{t}"),
                    V(f"v_lshl_add_u32 v{t}, v{t+1}, 13, v{t}"), S(f"s_lshl_b32 s{sT1}, s{sB}, 2"), S(f"s_add_u32 s{sT1}, s{sT1}, s{sWave}"), S(f"s_sub_u32 s{sT1}, s{sT1}, 4"),
                    S(f"s_mul_i32 s{sT1}, s{sT1}, {5*8192}"), S(f"s_lshl_b32 s{sT2}, s{sG}, 10"), S(f"s_add_u32 s{sT1}, s{sT1}, s{sT2}"),
                    bload(1, w.dummy, t, sW, f"s{sT1}", 512, tag=('cond',))]
        else:
            body = lane_id(t) + [V(f"v_lshlrev_b32 v{t}, 7, v{t}"), V(f"v_min_u32 v{t}, {SLAB-128}, v{t}"),
                    S(f"s_lshl_b32 s{sT1}, s2, 3"), S(f"s_add_u32 s{sT1}, s{sT1}, s{sWave}"), S(f"s_mul_i32 s{sT1}, s{sT1}, {SLAB}"), S(f"s_add_u32 s{sT1}, s{sT1}, {XCH_OFF}"),
                    bload(1, w.dummy, t, sWS, f"s{sT1}", 0, 'sc1', tag=('cond',)), S(f"s_sub_u32 s{sT1}, s{sT1}, {4*SLAB}"), bload(1, w.dummy, t, sWS, f"s{sT1}", 0, 'sc1', tag=('cond',))]
        sch[idx] += [[S(f"s_cmp_lg_u32 s{sRound}, {rnd}"), branch("s_cbranch_scc1", f"L_p2{name}")] + body + [label(f"L_p2{name}")]]
    mr = mode_read(w.T)
    sch[17] = [mr[0]] + sch[17]; sch[18] = [mr[1]] + sch[18]
    w4last = lambda lab: [S(f"s_lshl_b32 s{sT1}, s{sRound}, 3"), S(f"s_add_u32 s{sT1}, s{sT1}, s{sWave}"), S(f"s_cmp_lg_u32 s{sT1}, 12"), branch("s_cbranch_scc1", lab)]
    sch[29] = [w4last("L_p1") + [V(f"v_mov_b32 v{w.tmp+2}, s{sFlag}"), bload(1, w.oPoll, w.tmp + 2, sDBG, 0, 0, 'sc1', tag=('cond',)), label("L_p1")]] + sch[29]
    sch[34] += [w4last("L_g1_back") + gate("L_g1", w.oPoll, w.tmp + 2, 0) + [label("L_g1_back")]]
    for u in range(2):
        alt = flat(dma_x(w, 0, ('X', 0, 'next'))) if u == 0 else []
        sch[35 + u] += [[S(f"s_cmp_lg_u32 s{sRound}, 0"), branch("s_cbranch_scc1", f"L_opre{u}")] + alt + [label(f"L_opre{u}_back"), I("; opre", 'comment', tag=('phantom', 0 if Cfg.o_skip else 10))]]
    if not Cfg.no_dma:
        for i, idx in enumerate(sorted(Cfg.touch_at)): sch[idx] += touch_kv(w, 'KV'[i & 1])
        for idx, goff in Cfg.tbatch:
            sch[idx] += [[S(f"s_add_u32 s{sT0}, s{sTau}, {goff}"), S(f"s_and_b32 s{sT0}, s{sT0}, 0x1ffff"), S(f"s_add_u32 s{sT0}, s{sT0}, s{sKVbase}"), bload(1, w.dummy, w.vTch, sK, f"s{sT0}", 0, Cfg.touch_pol, tag=('misc',)),
                          bload(1, w.dummy, w.vTch, sV, f"s{sT0}", 0, Cfg.touch_pol, tag=('misc',))]]
    return sch

def lane_id(r): return [V(f"v_mbcnt_lo_u32_b32 v{r}, -1, 0"), V(f"v_mbcnt_hi_u32_b32 v{r}, -1, v{r}")]
def lane_setup(w):
    t = w.F + 8
    lane, i16, g, a, b, c = t, t + 1, t + 2, t + 3, t + 4, t + 5
    o = lane_id(lane) + [V(f"v_and_b32 v{i16}, 15, v{lane}"), V(f"v_lshrrev_b32 v{g}, 4, v{lane}")]
    o += [V(f"v_lshrrev_b32 v{a}, 1, v{i16}"), V(f"v_xor_b32 v{a}, v{a}, v{g}"), V(f"v_lshlrev_b32 v{a}, 4, v{a}"),
          V(f"v_lshl_add_u32 v{w.aN}, v{i16}, 7, v{a}"), V(f"v_xor_b32 v{w.aN+1}, 64, v{w.aN}")]
    o += [V(f"v_lshrrev_b32 v{a}, 2, v{lane}"), V(f"v_and_b32 v{b}, 6, v{a}"),
          V(f"v_bfe_u32 v{c}, v{lane}, 1, 1"), V(f"v_xor_b32 v{b}, v{b}, v{c}"), V(f"v_lshlrev_b32 v{b}, 4, v{b}"),
          V(f"v_lshl_add_u32 v{b}, v{a}, 7, v{b}"),
          V(f"v_and_b32 v{c}, 1, v{lane}"), V(f"v_lshl_add_u32 v{w.aT}, v{c}, 3, v{b}")]
    for dq in range(1, 4): o.append(V(f"v_xor_b32 v{w.aT+dq}, {dq<<5}, v{w.aT}"))
    return o
def voff_setup(w):
    t = w.F + 16
    r8, p, a, b, row = t, t + 1, t + 2, t + 3, t + 4
    o = [V(f"v_bfe_u32 v{row}, v0, 3, 4"),
         V(f"v_and_b32 v{p}, 7, v0"),
         V(f"v_lshrrev_b32 v{a}, 1, v{row}"), V(f"v_xor_b32 v{a}, v{a}, v{p}"), V(f"v_lshlrev_b32 v{a}, 4, v{a}"),
         V(f"v_and_b32 v{b}, 6, v{row}"), V(f"v_xor_b32 v{b}, v{b}, v{p}"), V(f"v_lshlrev_b32 v{b}, 4, v{b}"),
         V(f"v_and_b32 v{p}, 12, v{row}"), V(f"v_add_u32 v{p}, v{p}, v{row}"), V(f"v_lshl_add_u32 v{w.vW}, v{p}, 13, v{b}"),
         V(f"v_mul_u32_u24 v{p}, 1280, v{row}"), V(f"v_add_u32 v{w.vX}, v{p}, v{a}")]
    o2 = [V(f"v_lshl_add_u32 v{w.vK}, v{row}, 8, v{a}"), V(f"v_lshl_add_u32 v{w.vV}, v{row}, 8, v{b}"),
          V(f"v_and_b32 v{p}, 63, v0"), V(f"v_lshlrev_b32 v{p}, 6, v{p}"), V(f"v_bfe_u32 v{r8}, v0, 6, 1"), V(f"v_lshl_add_u32 v{w.vTch}, v{r8}, 12, v{p}")]
    return o, o2

def add_addr(regs_, delta):
    if delta == 0: return []
    if isinstance(delta, str): return [V(f"v_add_u32 v{r}, {delta}, v{r}") for r in regs_]
    return [V(f"v_add_u32 v{r}, {delta & 0xffffffff:#x}, v{r}") for r in regs_]

def to_w(w, cur):
    t = w.T
    return add_addr([w.aT + 2, w.aT + 3], item_slot(vidx(0)) - cur) + add_addr([w.aT], wslot(0) - cur) + [
        V(f"v_bfe_u32 v{t}, v{w.aT}, 3, 2"), V(f"v_and_b32 v{w.aT}, 0xffffffe7, v{w.aT}"), V(f"v_lshlrev_b32 v{t}, 4, v{t}"),
        V(f"v_xor_b32 v{w.aT}, v{w.aT}, v{t}"), V(f"v_xor_b32 v{w.aT+1}, 64, v{w.aT}")]
def to_v(w): return [V(f"v_xor_b32 v{w.aT}, 64, v{w.aT+2}"), V(f"v_xor_b32 v{w.aT+1}, 64, v{w.aT+3}")]

def finish(code, pending=None, pre=()):
    c, q = add_lgkm_waits(code, pending)
    return fix_hazards(c, pre), q

def loop_finish(B, q, before):
    B1, q1 = finish(B, q, pre=before[-12:])
    B2, q2 = finish(B, q1, pre=B1[-12:])
    B3, q3 = finish(B, q2, pre=B2[-12:])
    assert emit(B2) == emit(B3) and q2 == q3
    assert len(q) <= len(q2) and q == q2[len(q2) - len(q):], "entry LDS queue must be a suffix of the steady-state queue"
    B4 = fix_hazards(B2, before[-12:])
    assert emit(fix_hazards(B4, B4[-12:])) == emit(B4)
    return B4, q2

def srd(base, ptr, nbytes):
    return [S(f"s_mov_b32 s{base}, s{ptr}"), S(f"s_mov_b32 s{base+1}, s{ptr+1}"), S(f"s_mov_b32 s{base+2}, {nbytes}"), S(f"s_mov_b32 s{base+3}, 0x20000")]

def round_advance():
    return [S(f"s_add_u32 s{sKVbase}, s{sKVbase}, 262144"), S(f"s_add_u32 s{sWbase}, s{sWbase}, 512"),
            S(f"s_add_u32 s{sOst}, s{sOst}, {8*10240}"), S(f"s_add_u32 s{sRound}, s{sRound}, 1"), S(f"s_cmp_lt_u32 s{sRound}, 2")]

def flag_add(t, val, lab):
    return [V(f"v_mov_b32 v{t}, {val}"), V(f"v_mov_b32 v{t+1}, s{sFlag}"), S("s_mov_b64 exec, 1"),
            I(f"buffer_atomic_or v{t}, v{t+1}, s[{sDBG}:{sDBG+3}], 0 offen sc1", 'vstore', rd=regs(t, 2) | regs(sDBG, 4, 's'), tag=('cond',)),
            S("s_mov_b64 exec, -1"), label(lab)]

def common_scalars():
    C = srd(sK, 58, 134217728) + srd(sV, 60, 134217728) + srd(sWO, 64, 5242880) + srd(sOUT, 66, 6553600) + srd(sDBG, 68, 256) \
        + srd(sWS, 70, (160 << 20) if Cfg.stamps else WS_BYTES)
    C += [S(f"s_lshr_b32 s{sT2}, s{sWbase}, 8"),
          S(f"s_lshl_b32 s{sT3}, s{sB}, 5"), S(f"s_add_u32 s{sT3}, s{sT3}, s{sT2}"), S(f"s_lshl_b32 s{sKVbase}, s{sT3}, 17"),
          S(f"s_mul_i32 s{sOst}, s{sT3}, 40960"),] + ([S(f"s_and_b32 s{sKVbase}, s{sKVbase}, 0x20000")] if Cfg.kv_same else []) + [
          S(f"s_lshl_b32 s{sFlag}, s{sB}, 1"), S(f"s_lshr_b32 s{sT2}, s{sG}, 2"), S(f"s_add_u32 s{sFlag}, s{sFlag}, s{sT2}"), S(f"s_lshl_b32 s{sFlag}, s{sFlag}, 2"),
          S(f"s_mul_i32 s{sTau}, s{sT3}, {Cfg.taumul}"), S(f"s_lshr_b32 s{sT2}, s{sT3}, {Cfg.taush}"), S(f"s_add_u32 s{sTau}, s{sTau}, s{sT2}"),
          S(f"s_and_b32 s{sTau}, s{sTau}, {Cfg.taumask}"), S(f"s_lshl_b32 s{sTau}, s{sTau}, 13"),
          S(f"s_mov_b32 s{sRound}, 0"), S(f"s_mov_b32 s{sMode}, 0"), S(f"s_mov_b32 s{sQS}, {f2u(QSCALE)}"), S(f"s_mov_b32 s{sC16}, {WTAB:#x}"), S(f"s_mov_b32 s{sC32}, {2*SLOT}"),
          S(f"s_mov_b32 s{sCX}, 20480"), S(f"s_mov_b32 s{sTK}, s{sKVbase}"), S(f"s_mov_b32 s{sTV}, s{sKVbase}")]
    if Cfg.stamps:
        C += [S(f"s_lshl_b32 s{sStamp+2}, s2, 3"), S(f"s_add_u32 s{sStamp+2}, s{sStamp+2}, s{sWave}"), S(f"s_lshl_b32 s{sStamp+2}, s{sStamp+2}, 10"),
              S(f"s_add_u32 s{sStamp+2}, s{sStamp+2}, {DBG_OFF}")]
    return C
def wave_addr0(w, j0mul, j0add):
    aN = [w.aN, w.aN + 1]; aT = [w.aT + i for i in range(4)]
    C = [S(f"s_bfe_u32 s{sT0}, s{sWave}, 0x10001"), S(f"s_lshl_b32 s{sT0}, s{sT0}, 13"),
         S(f"s_and_b32 s{sT1}, s{sWave}, 1"), S(f"s_mul_i32 s{sT1}, s{sT1}, {j0mul*1024}"), S(f"s_add_u32 s{sT1}, s{sT1}, {j0add*1024}"),
         S(f"s_add_u32 s{sOst}, s{sOst}, s{sT1}"), S(f"s_lshl_b32 s{sT1}, s{sT1}, 1"),
         S(f"s_sub_u32 s{sKX}, s{sT0}, s{sT1}"),
         S(f"s_add_u32 s{sT1}, s{sT1}, {xbuf(0)}")]
    return C + add_addr(aT, f"s{sT0}") + add_addr(aN, f"s{sT1}") + to_w(w, 0)

def gen_w3():
    w = Wave(3); nm = 24
    st = lambda k, real=False: stamp(w.tmp + 1, k, real)
    aN = [w.aN, w.aN + 1]; aT = [w.aT + i for i in range(4)]
    C = [label("L_w3"), raw("s_waitcnt lgkmcnt(0)")]
    if Cfg.codetouch:
        t = w.tmp + 1
        C += [raw(f"s_getpc_b64 s[{sRet}:{sRet+1}]"), label("L_pc0"),
              S(f"s_sub_u32 s{sRet}, s{sRet}, L_pc0-KSTART"), S(f"s_subb_u32 s{sRet+1}, s{sRet+1}, 0"),
              S(f"s_lshr_b32 s{sT0}, s2, 3"), S(f"s_lshl_b32 s{sT0}, s{sT0}, 2"), S(f"s_add_u32 s{sT0}, s{sT0}, s{sWave}"), S(f"s_lshl_b32 s{sT0}, s{sT0}, 7"),
              V(f"v_and_b32 v{t}, 7, v0"), V(f"v_lshlrev_b32 v{t}, 14, v{t}"), V(f"v_add_u32 v{t}, s{sT0}, v{t}"),
              V(f"v_min_u32 v{t}, KEND-KSTART-4, v{t}"),
              I(f"global_load_dword v{w.dummy}, v{t}, s[{sRet}:{sRet+1}]", 'vload', wr=regs(w.dummy), rd=regs(t) | regs(sRet, 2, 's'))]
    if Cfg.warm0:
        t = w.tmp + 1
        C += srd(sW, 62, 5242880) + srd(sX, 56, 6553600)
        C += [V(f"v_and_b32 v{t}, 63, v0"), V(f"v_lshlrev_b32 v{t}, 7, v{t}"),
              S(f"s_mul_i32 s{sT0}, s{sB}, 204800"), S(f"s_mul_i32 s{sT1}, s{sG}, 25600"), S(f"s_add_u32 s{sT0}, s{sT0}, s{sT1}"),
              S(f"s_mul_i32 s{sT1}, s{sWave}, 5760"), S(f"s_add_u32 s{sT0}, s{sT0}, s{sT1}"),
              V(f"v_bfe_u32 v{t+1}, v0, 3, 3"), V(f"v_min_u32 v{t+1}, 4, v{t+1}"), V(f"v_lshlrev_b32 v{t+1}, 13, v{t+1}"),
              V(f"v_and_b32 v{w.T}, 7, v0"), V(f"v_lshl_add_u32 v{t+1}, v{w.T}, 7, v{t+1}"),
              S(f"s_lshl_b32 s{sT1}, s{sB}, 2"), S(f"s_add_u32 s{sT1}, s{sT1}, s{sWave}"), S(f"s_mul_i32 s{sT1}, s{sT1}, {5*8192}"),
              S(f"s_lshl_b32 s{sT2}, s{sG}, 10"), S(f"s_add_u32 s{sT1}, s{sT1}, s{sT2}"),
              barrier()] + ([bload(1, w.dummy, t + 1, sW, f"s{sT1}")] if Cfg.warm0 == 1 else []) + [bload(1, w.dummy, t, sX, f"s{sT0}")]
    C += common_scalars()
    t = w.tmp + 1
    C += [S(f"s_cmp_lg_u32 s{sWave}, 0"), branch("s_cbranch_scc1", "L_noxcc"), raw(f"s_getreg_b32 s{sT0}, hwreg(HW_REG_XCC_ID, 0, 3)"),
          S(f"s_lshl_b32 s{sT0}, 0x1000000, s{sT0}"), S(f"s_lshl_b32 s{sT1}, {0x110000 if Cfg.map84 else 0x10000}, s{sG}"), S(f"s_lshr_b32 s{sT2}, s{sT1}, {4 if Cfg.map84 else 0}"), S(f"s_or_b32 s{sT1}, s{sT1}, s{sT2}"), S(f"s_and_b32 s{sT1}, s{sT1}, 0xff0000"),
          S(f"s_or_b32 s{sT0}, s{sT0}, s{sT1}"), S(f"s_mov_b32 s{sT1}, s{sFlag}") if Cfg.map84 else S(f"s_lshl_b32 s{sT1}, s{sB}, 3"),
          V(f"v_mov_b32 v{t}, s{sT0}"), V(f"v_mov_b32 v{t+1}, s{sT1}"), S("s_mov_b64 exec, 1"),
          I(f"buffer_atomic_or v{t}, v{t+1}, s[{sDBG}:{sDBG+3}], 0 offen sc1", 'vstore', rd=regs(t, 2) | regs(sDBG, 4, 's')),
          S("s_mov_b64 exec, 0xff"), V(f"v_mul_u32_u24 v{t}, {SLAB}, v0"), V(f"v_mov_b32 v{t+1}, 0"), S(f"s_mul_i32 s{sT0}, s2, {XCH_WG}"), S(f"s_add_u32 s{sT0}, s{sT0}, {XCH_OFF + SLAB - 128}"),
          bstore(1, t + 1, t, sWS, f"s{sT0}", 0, 'sc1'),
          S("s_mov_b64 exec, -1"), label("L_noxcc")]
    C += lane_setup(w) + wave_addr0(w, 3, 0)
    def x_wo():
        t = w.tmp + 1
        return lane_id(t) + [V(f"v_min_u32 v{t}, 39, v{t}"), V(f"v_lshlrev_b32 v{t}, 7, v{t}"),
              S(f"s_lshl_b32 s{sT0}, s2, 2"), S(f"s_add_u32 s{sT0}, s{sT0}, s{sWave}"), S(f"s_mul_i32 s{sT0}, s{sT0}, 5120"), bload(1, w.dummy, t, sWO, f"s{sT0}")]
    def x_code():
        t = w.tmp + 1
        return [raw(f"s_getpc_b64 s[{sRet}:{sRet+1}]"), label("L_pc1"),
              S(f"s_add_u32 s{sRet}, s{sRet}, L_o-L_pc1"), S(f"s_addc_u32 s{sRet+1}, s{sRet+1}, 0")] + lane_id(t) + [
              S(f"s_lshl_b32 s{sT0}, s{sWave}, 13"), V(f"v_lshlrev_b32 v{t}, 7, v{t}"), V(f"v_add_u32 v{t}, s{sT0}, v{t}"), V(f"v_min_u32 v{t}, KEND-L_o-4, v{t}"),
              I(f"global_load_dword v{w.dummy}, v{t}, s[{sRet}:{sRet+1}]", 'vload', wr=regs(w.dummy), rd=regs(t) | regs(sRet, 2, 's'))]
    def x_slab():
        t = w.tmp + 1
        return lane_id(t) + [V(f"v_lshlrev_b32 v{t}, 7, v{t}"), V(f"v_min_u32 v{t}, {SLAB-128}, v{t}"),
              S(f"s_lshl_b32 s{sT0}, s2, 3"), S(f"s_add_u32 s{sT0}, s{sT0}, s{sWave}"), S(f"s_mul_i32 s{sT0}, s{sT0}, {SLAB}"), S(f"s_add_u32 s{sT0}, s{sT0}, {XCH_OFF}"),
              bload(1, w.dummy, t, sWS, f"s{sT0}", 0, 'sc1'), S(f"s_add_u32 s{sT0}, s{sT0}, {4*SLAB}"), bload(1, w.dummy, t, sWS, f"s{sT0}", 0, 'sc1')]
    def x_jit():
        return [S(f"s_mul_i32 s{sT0}, s2, 11"), S(f"s_and_b32 s{sT0}, s{sT0}, 31"), label("L_jit"), raw(f"s_sleep {Cfg.jit}"), S(f"s_sub_u32 s{sT0}, s{sT0}, 1"), branch("s_cbranch_scc0", "L_jit")]
    def x_wo2():
        r = [i if i.kind != 'vload' else bload(1, w.dummy, w.tmp + 1, sWO, f"s{sT0}", 0, Cfg.wo2pol) for i in x_wo()]
        r[2] = V(f"v_min_u32 v{w.tmp+1}, {Cfg.wo2n}, v{w.tmp+1}")
        return r
    def extras(where):
        out_ = []
        for name, fn in (('wo', x_wo), ('code', x_code), ('slab', x_slab), ('jit', x_jit), ('wo2', x_wo2)):
            pl = Cfg.place.get(name)
            if pl and pl[0] == where:
                out_ += [S(f"s_cmp_lg_u32 s{sRound}, {pl[1]}"), branch("s_cbranch_scc1", f"L_ex_{name}")] + fn() + [label(f"L_ex_{name}")]
        return out_
    C, _ = finish(C)
    out = C
    def wadv():
        return [S(f"s_bfe_i32 s{sD}, s{sC16}, s{sCnt}"), S(f"s_lshl_b32 s{sD}, s{sD}, 14"), S(f"s_add_u32 s{sCnt}, s{sCnt}, 4"),
                S(f"s_cmp_eq_u32 s{sCnt}, {0x40000 + 4*NW:#x}"), S(f"s_cselect_b32 s{sCnt}, 0x40000, s{sCnt}")] + add_addr(aT[:2], f"s{sD}")
    def xadv():
        return [S(f"s_add_u32 s{sCnt2}, s{sCnt2}, 1"), S(f"s_cmp_eq_u32 s{sCnt2}, {NX}"), S(f"s_cselect_b32 s{sXd}, {(-(NX-1)*20480) & 0xffffffff:#x}, s{sCX}"),
                S(f"s_cselect_b32 s{sCnt2}, 0, s{sCnt2}")] + add_addr(aN, f"s{sXd}")
    def qstage(s, zero=False, extra=()):
        p = s & 1
        adv_ = wadv() + (xadv() if p == 1 else []) + list(extra)
        L = [barrier()] + spread(q_mfmas(w, 1 - p, zero), [(q_reads(w, p, p), 0, Cfg.qr3), (one(adv_), Cfg.qr3 + 1, 23)]) + [wait(lgkm=0)]
        k = [i for i, c in enumerate(L) if c.kind == 'mfma'][Cfg.qcut]
        return L[:k], L[k:]
    C = [label("L_w3_round")] + st(0) + [barrier()] + st(1)
    C += flat(q_reads(w, 0, 0))
    C += add_addr(aT[:2], wslot(1) - wslot(0))
    C += [S(f"s_mov_b32 s{sCnt}, 0x40004"), S(f"s_mov_b32 s{sCnt2}, {(xbuf(0)-NW*SLOT)//20480}"), S(f"s_mov_b32 s{sLoop}, 8")]
    C += [wait(lgkm=0)]
    h1, t1 = qstage(1, zero=True); he, te = qstage(2); ho, to = qstage(3)
    C += h1 + t1 + [wait(vm=0)] + extras('Q2') + he
    C, q = finish(C); out += C
    B = [label("L_w3_q")] + te + ho + to + he
    B += [S(f"s_sub_u32 s{sLoop}, s{sLoop}, 1"), S(f"s_cmp_lg_u32 s{sLoop}, 0"), branch("s_cbranch_scc1", "L_w3_q")]
    Bc, q2 = loop_finish(B, q, out)
    out += Bc
    curT = wslot(20); curN = xbuf(10)
    h19, t19 = qstage(19, extra=add_addr(aN, f"s{sKX}") + add_addr(aN, item_slot(kidx(0)) - curN) + to_v(w))
    mr = mode_read(w.T)
    C = mr[0] + te + mr[1] + extras('Q18') + h19 + t19
    C += st(40) + [barrier()] + st(41)
    k0 = frags_QK(w, 'zero')
    k1 = frags_QK(w, 'negm', pre=add_addr(aN, item_slot(kidx(1)) - item_slot(kidx(0))))
    w.fpos = 0
    C += stream(w, k0, 0, k1, lead=q_mfmas(w, 1, False), fillers=q_pack_fillers(w))
    C += first_max(w)
    C += st(42) + [barrier()] + st(43)
    C += flat(softmax_groups(w, 0)) + l_accum(w, first=True)
    v0 = frags_PV(w, 0, zero=True)
    C += extras('A0')
    C += [S(f"s_mov_b32 s{sKpos}, {item_slot(kidx(1))}"), S(f"s_mov_b32 s{sVpos}, {item_slot(vidx(0))}"), S(f"s_mov_b32 s{sLoop}, 7")]
    def adv(pos, rr):
        return [S(f"s_cmp_ge_u32 s{pos}, {LDS_BYTES - 2*SLOT}"), S(f"s_cselect_b32 s{sD}, {(2*SLOT - LDS_BYTES) & 0xffffffff:#x}, s{sC32}"),
                S(f"s_add_u32 s{pos}, s{pos}, s{sD}")] + add_addr(rr, f"s{sD}")
    def pv(par): return frags_PV(w, par, pre=adv(sVpos, aT))
    def qk(): return frags_QK(w, 'negm', pre=adv(sKpos, aN))
    E_ = 8 - Cfg.late
    def sm_part(late, par, extra=()):
        G = softmax_groups(w, par) + [check_cmp(w)]
        nl = 3 * len(late)
        cut = int(len(G) * Cfg.smpure) if Cfg.late < 8 else 0
        return flat(G[:cut]) + stream(w, late, Cfg.LA, qk(), fillers=[(G[cut:], 0, max(nl - Cfg.smend, 1))] + list(extra)) + check_branch(w, par)
    C += stream(w, k1 + v0[:E_], Cfg.LA, v0[E_:] + qk())
    C += st(44) + [barrier()] + st(45)
    C += sm_part(v0[E_:], 1)
    C, q = finish(C, q2, pre=out[-12:]); out += C
    B = [label("L_w3_a")]
    for par in (1, 0):
        B += stream(w, qk() + pv(par)[:E_], Cfg.LA, pv(par)[E_:] + qk(), fillers=[(one(l_accum(w)), 4, 10)])
        B += [barrier()]
        B += sm_part(pv(par)[E_:], 1 - par)
    B += [S(f"s_sub_u32 s{sLoop}, s{sLoop}, 1"), S(f"s_cmp_lg_u32 s{sLoop}, 0"), branch("s_cbranch_scc1", "L_w3_a")]
    Bc, q2 = loop_finish(B, q, out)
    out += Bc
    C = st(74) + l_accum(w) + mode_vcc() + extras('A15')
    C += stream(w, pv(1), 0, [], fillers=epi_fillers(w))
    C += st(75) + st(77, True)
    curT = item_slot(vidx(15)); curN = item_slot(kidx(16))
    C += to_w(w, curT) + add_addr(aN, xbuf(0) - curN) + [V(f"v_subrev_u32 v{r}, s{sKX}, v{r}") for r in aN]
    C += round_advance()
    C += [branch("s_cbranch_scc1", "L_w3_round"), branch("s_branch", "L_o")]
    C, q = finish(C, q2, pre=out[-12:]); out += C
    assert not q
    return out, rare_routine(w, 0) + rare_routine(w, 1)

def gen_w2():
    w = Wave(2); nm = 16
    st = lambda k, real=False: stamp(w.tmp + 1, k, real)
    aN = [w.aN, w.aN + 1]; aT = [w.aT + i for i in range(4)]
    POL[0] = Cfg.wx_pol
    sch = loader_schedule(w)
    items = lambda idx: sch[idx]
    vo1, vo2 = voff_setup(w)
    en = lambda r: [raw(f"s_memtime s[{r}:{r+1}]")] if Cfg.ent else []
    pro = vo1 + [raw("s_waitcnt lgkmcnt(0)")] + en(94) + srd(sW, 62, 5242880) + srd(sX, 56, 6553600)
    POL[0] = Cfg.pro_pol
    pro += flat(dma_w(w, 0, False, ('W', 0, True))) + flat(dma_x(w, 0, ('X', 0, True))) + flat(dma_w(w, 1, False, ('W', 1, True))) + ([barrier()] if Cfg.warm0 else [])
    pro += en(96)
    pro += vo2 + [V(f"v_mov_b32 v{w.oVoff}, 0"), V(f"v_mov_b32 v{w.oPoll}, 0")] + common_scalars() + lane_setup(w) + wave_addr0(w, 2, 6)
    if Cfg.ent:
        pro += en(98) + [raw("s_waitcnt lgkmcnt(0)"), V(f"v_mov_b32 v{w.tmp+2}, 0")]
        for i, r in enumerate((92, 94, 96, 98, 100)): pro += [V(f"v_mov_b32 v{w.tmp+1}, s{r}"), bstore(1, w.tmp + 1, w.tmp + 2, sWS, f"s{sStamp+2}", 4 * (120 + i), tag=('misc',))]
    C = [label("L_w2_round")] + st(76, True)
    def bar(idx, lgkm=None):
        b = wait(vm=63, lgkm=lgkm); b.tag = (('need', idx), lgkm)
        return st(2 * idx) + [b, barrier()] + st(2 * idx + 1)
    prio = lambda p: [raw(f"s_setprio {p}")] if Cfg.prio == 2 else []
    curT = wslot(0); curN = xbuf(0)
    C += prio(Cfg.qprio)
    for s in range(20):
        if s < 19:
            newT = wslot(s + 1); newN = xbuf((s + 1) >> 1)
            adv_ = add_addr(aT[:2], newT - curT) + add_addr(aN, newN - curN); curT, curN = newT, newN
        else:
            adv_ = add_addr(aN, f"s{sKX}") + add_addr(aN, item_slot(kidx(0)) - curN) + to_v(w)
        C += bar(s, lgkm=0)
        ex = []
        if s == 3:
            ex = [([[S(f"s_lshl_b32 s{sT1}, s{sRound}, 3"), S(f"s_add_u32 s{sT1}, s{sT1}, s{sWave}"), S(f"s_cmp_lg_u32 s{sT1}, 12"),
                     branch("s_cbranch_scc1", "L_nofl1"), S(f"s_and_b32 s{sT1}, s{sG}, 3"), S(f"s_lshl_b32 s{sT1}, 1, s{sT1}")] + flag_add(w.tmp + 1, f"s{sT1}", "L_nofl1")], 11, 12)]
        if s == 0: C += flat(q_reads(w, 0, 0)) + flat(items(0)) + adv_
        else: C += spread(q_mfmas(w, (s - 1) & 1, s == 1), [(q_reads(w, s & 1, s & 1), 0, Cfg.qr2), (items(s), Cfg.qd0, nm - 2), (one(adv_), Cfg.qr2 + 1, 16)] + ex)
    C += bar(20, lgkm=0)
    def qk(t, fc='negm'): return frags_QK(w, fc, pre=add_addr(aN, item_slot(kidx(t)) - item_slot(kidx(t - 1))) if t else [])
    def pv(t): return frags_PV(w, t & 1, zero=(t == 0), pre=add_addr(aT, item_slot(vidx(t)) - item_slot(vidx(t - 1))) if t else [])
    w.fpos = 0
    C += stream(w, qk(0, 'zero'), 0, qk(1), lead=q_mfmas(w, 1, False), fillers=[(items(20), 0, 2 * nm)] + q_pack_fillers(w))
    C += first_max(w)
    C += flat(softmax_groups(w, 0))
    for t in range(15):
        nx = qk(t + 2) if t < 14 else []
        if Cfg.pp:
            C += prio(Cfg.pp_a)
            C += bar(21 + t)
            C += stream(w, qk(t + 1) + pv(t), Cfg.LA, nx, fillers=[(one(l_accum(w, first=(t == 0))), 3, 8)])
            C += prio(Cfg.pp_b)
            G = softmax_groups(w, (t + 1) & 1) + [check_cmp(w)]
            sm = [g for g in G]
            it_ = items(21 + t)
            base = [I("; g", 'comment') for _ in sm]
            merged = spread(base, [(it_, 0, len(sm))])
            k = 0
            for c in merged:
                if c.kind == 'comment' and c.text == "; g": C += sm[k]; k += 1
                else: C.append(c)
            C += check_branch(w, (t + 1) & 1)
        else:
            C += prio(0)
            if 21 + t in Cfg.drain: C += [wait(vm=Cfg.drain[21 + t])]
            C += bar(21 + t)
            it_ = items(21 + t); h = (len(it_) * Cfg.dsplit + 99) // 100
            C += stream(w, qk(t + 1), Cfg.LA, pv(t), fillers=[(it_[:h], 0, nm), (one(l_accum(w, first=(t == 0))), 3, 8)])
            C += prio(1)
            C += stream(w, pv(t), Cfg.LA, nx, fillers=[(it_[h:], 1, nm + 1)] + sm_fillers(w, (t + 1) & 1, 2))
            C += check_branch(w, (t + 1) & 1)
    C += prio(0)
    C += bar(36)
    C += flat(items(36))
    C += st(74) + l_accum(w) + mode_vcc()
    C += stream(w, pv(15), 0, [], fillers=epi_fillers(w))
    C += st(75) + st(77, True)
    curT = item_slot(vidx(15)); curN = item_slot(kidx(15))
    C += to_w(w, curT) + add_addr(aN, xbuf(0) - curN) + [V(f"v_subrev_u32 v{r}, s{sKX}, v{r}") for r in aN]
    C += round_advance()
    C += [branch("s_cbranch_scc1", "L_w2_round"), branch("s_branch", "L_o")]
    VM = ('dma', 'vload', 'vstore')
    def resolve(prefix, first):
        res = {}
        q = [(c.tag[0], c.tag[1]) if len(c.tag) == 3 and c.tag[2] in (True, 'next') else None for c in prefix if c.kind in VM and c.tag != ('cond',)]
        for c in C:
            if c.kind in VM:
                if c.tag == ('cond',): continue
                if c.tag[-1] in ('cond', 'next') and not first: continue
                q.append((c.tag[0], c.tag[1]) if len(c.tag) == 3 and c.tag[2] in (False, 'cond') else None)
            elif c.kind == 'comment' and c.tag and c.tag[0] == 'phantom':
                if not first: q += [None] * c.tag[1]
            elif c.kind == 'wait' and isinstance(c.tag[0], tuple):
                idx = c.tag[0][1]
                last = -1
                for k, it in enumerate(q):
                    if it is not None and first_use(it[0], it[1]) <= idx: last = k
                res[idx] = min(63, len(q) - 1 - last)
        return res
    r1 = resolve(pro, True); r2 = resolve(C, False)
    C2 = []
    for c in C:
        if c.kind == 'wait' and isinstance(c.tag[0], tuple):
            idx = c.tag[0][1]; n = min(r1[idx], r2[idx]); lg = c.tag[1]
            if abs(r1[idx] - r2[idx]) > 1:
                C2 += [S(f"s_cmp_eq_u32 s{sRound}, {0 if r1[idx] > r2[idx] else 1}"), branch("s_cbranch_scc1", f"L_rw{idx}"), wait(vm=n), label(f"L_rw{idx}")]
                n = max(r1[idx], r2[idx])
            c.text = f"s_waitcnt vmcnt({n})" + (f" lgkmcnt({lg})" if lg is not None else ""); c.tag = (n, lg)
        C2.append(c)
    C = C2
    pro, _ = finish(pro)
    C, q = finish(C, [], pre=pro[-12:])
    assert not q
    return pro + C + gen_opre(w), rare_routine(w, 0) + rare_routine(w, 1)

OSLOT = 40960
def oslot(u): return ((u + 2) & 3) * OSLOT
def o_voff(nh, VOFF, lane, a, b):
    if nh == 1 and Cfg.fake_wot:
        return [V(f"v_lshrrev_b32 v{a}, 2, v{lane}"), V(f"v_mul_u32_u24 v{a}, 320, v{a}"), V(f"v_and_b32 v{VOFF}, 3, v{lane}"), V(f"v_lshl_add_u32 v{VOFF}, v{VOFF}, 4, v{a}")]
    if nh == 0: return [V(f"v_lshlrev_b32 v{VOFF}, 4, v{lane}")]
    return [V(f"v_lshrrev_b32 v{a}, 2, v{lane}"), V(f"v_mul_u32_u24 v{a}, 1280, v{a}"), V(f"v_bfe_u32 v{b}, v{lane}, 4, 1"), V(f"v_lshlrev_b32 v{b}, 1, v{b}"),
            V(f"v_and_b32 v{VOFF}, 3, v{lane}"), V(f"v_xor_b32 v{VOFF}, v{VOFF}, v{b}"), V(f"v_lshl_add_u32 v{VOFF}, v{VOFF}, 4, v{a}")]
def o_base(nh, sBase, sLd):
    C = [S(f"s_and_b32 s{sLd}, s{sWave}, 1"), S(f"s_mul_i32 s{sLd}, s{sLd}, 5120")]
    if nh == 0: C += [S(f"s_mul_i32 s{sBase}, s{sB}, {128*10240}"), S(f"s_add_u32 s{sBase}, s{sBase}, s{sLd}")]
    else: C += [S(f"s_lshl_b32 s{sBase}, s{sLd}, 2"), S(f"s_and_b32 s{sT2}, s{sG}, 3"), S(f"s_mul_i32 s{sT2}, s{sT2}, {5120 if Cfg.fake_wot else 320}"), S(f"s_add_u32 s{sBase}, s{sBase}, s{sT2}"),
                S(f"s_add_u32 s{sLd}, s{sLd}, 10240")]
    step = 10240 if nh == 0 else 40960
    C += [S(f"s_add_u32 s{sT3}, s{sG}, s{sB}")] if Cfg.orot else [S(f"s_mov_b32 s{sT3}, 0")]
    for u in range(4):
        C += [S(f"s_add_u32 s{sT2}, s{sT3}, {u}"), S(f"s_and_b32 s{sT2}, s{sT2}, 3"), S(f"s_mul_i32 s{sOoff+u}, s{sT2}, {step}")]
    return C
def o_dma(nh, u, VOFF, sSo, sLd, goff=0, loff=0, srd_=None):
    step = 10240 if nh == 0 else 40960
    G = []
    if Cfg.o_skip & (1 << nh): return G
    for i in range(5):
        if nh == 0:
            imm = (i & 3) * 1024; ex = (i >> 2) * 4096
            g = [S(f"s_add_u32 m0, s{sLd}, {oslot(u) + ex + loff}"), S(f"s_add_u32 s{sT0}, s{sSo}, s{sOoff+u}")] + ([S(f"s_add_u32 s{sT0}, s{sT0}, {ex + goff}")] if ex + goff else []) if imm == 0 else []
            G.append(g + [dma(VOFF, srd_ or sWS, f"s{sT0}", imm, Cfg.old_pol)])
        else:
            g = [S(f"s_add_u32 m0, s{sLd}, {oslot(u) + i*1024 - i*64 + loff}")]
            if i == 0: g += [S(f"s_add_u32 s{sT0}, s{sSo}, s{sOoff+u}")] + ([S(f"s_add_u32 s{sT0}, s{sT0}, {goff}")] if goff else [])
            G.append(g + [dma(VOFF, srd_ or sWO, f"s{sT0}", i * 64)])
    return G
def gate(lab, POLL, vfl, shift):
    return [V(f"v_readfirstlane_b32 s{sT2}, v{POLL}"), S(f"s_bfe_u32 s{sT2}, s{sT2}, {0x40000 + shift:#x}"), S(f"s_cmp_lg_u32 s{sT2}, 15"),
            branch("s_cbranch_scc1", lab)]
def spin(lab, POLL, vfl, shift, back):
    return [label(lab), bload(1, POLL, vfl, sDBG, 0, 0, 'sc1'), S(f"s_sub_u32 s{sCnt}, s{sCnt}, 1"), S(f"s_cmp_lt_i32 s{sCnt}, 0"), branch("s_cbranch_scc1", back),
            wait(vm=0), V(f"v_readfirstlane_b32 s{sT2}, v{POLL}"), S(f"s_bfe_u32 s{sT2}, s{sT2}, {0x40000 + shift:#x}"), S(f"s_cmp_eq_u32 s{sT2}, 15"),
            branch("s_cbranch_scc1", back), raw(f"s_sleep {Cfg.xsleep}"), branch("s_branch", lab)]

def gen_opre(w):
    sSo, sLd = sTK, sTV
    C = []
    for u in range(2):
        C += [label(f"L_opre{u}"), S(f"s_bitcmp1_b32 s{sWave}, 1"), branch("s_cbranch_scc1", f"L_opre{u}_1")]
        for nh in range(2):
            step = 10240 if nh == 0 else 40960
            B = [label(f"L_opre{u}_{nh}")]
            if u == 0:
                t = w.tmp + 1
                B += lane_id(t) + o_voff(nh, w.oVoff, t, w.dummy, w.vTch) + o_base(nh, sSo, sLd)
                B += [S(f"s_and_b32 s{sT3}, s{sG}, 4"), S(f"s_mul_i32 s{sT3}, s{sT3}, {16*step}"), S(f"s_add_u32 s{sSo}, s{sSo}, s{sT3}")]
            for ks in range(2): B += flat(o_dma(nh, u, w.oVoff, sSo, sLd, goff=ks * 4 * step, loff=ks * 20480))
            B += [branch("s_branch", f"L_opre{u}_back")]
            C += fix_hazards(B)
    C += fix_hazards([label("L_g1"), S(f"s_mov_b32 s{sCnt}, 0x8000"), V(f"v_mov_b32 v{w.tmp+2}, s{sFlag}")] + spin("L_g1_spin", w.oPoll, w.tmp + 2, 0, "L_g1_back"))
    return C

def gen_o():
    ACC = 0; SET = [100, 140]
    aB, aA0, aA1 = 180, 182, 184
    VOFF, POLL, VFL, T, L16, POLL2 = 186, 187, 188, 190, 196, 198
    LW, LR, VO, VO2 = T + 2, T + 3, T + 4, 199
    RB = 200
    sSo, sHi, sLd, sBase, sKs, sNq = 36, 37, 39, 40, 43, 44
    sXo, sXp, sOb, sVar = 60, 61, 62, 63
    sOD = sK
    st = lambda k, real=False: stamp(T, k, real)
    def acc(t): return ACC + 4 * t
    def fB(s_, jj): return SET[s_] + 4 * jj
    def fA(s_, nn): return SET[s_] + 20 + 4 * nn
    TS = [list(range(0, 7)), list(range(7, 13)), list(range(13, 19)), list(range(19, 25))]
    C = [label("L_o")] + st(80)
    if Cfg.prio: C += [raw("s_setprio 0")]
    lane = T; a = T + 1; b = T + 5
    C += lane_id(lane) + [V(f"v_lshlrev_b32 v{L16}, 4, v{lane}")]
    C += [S(f"s_lshr_b32 s{sKs}, s{sWave}, 2"), S(f"s_mul_i32 s{sT0}, s{sKs}, 20480"), S(f"s_and_b32 s{sT1}, s{sWave}, 1"), S(f"s_mul_i32 s{sT1}, s{sT1}, 5120"),
          S(f"s_add_u32 s{sT1}, s{sT0}, s{sT1}"),
          V(f"v_add_u32 v{aB}, s{sT1}, v{L16}"), V(f"v_add_u32 v{aB+1}, {2*OSLOT}, v{aB}"),
          V(f"v_lshrrev_b32 v{a}, 2, v{lane}"), V(f"v_bfe_u32 v{b}, v{lane}, 4, 1"), V(f"v_lshlrev_b32 v{b}, 5, v{b}"), V(f"v_lshl_add_u32 v{b}, v{a}, 6, v{b}"),
          V(f"v_and_b32 v{a}, 3, v{lane}"), V(f"v_lshl_add_u32 v{b}, v{a}, 3, v{b}"),
          S(f"s_add_u32 s{sT1}, s{sT0}, 10240"), V(f"v_add_u32 v{aA0}, s{sT1}, v{b}"), V(f"v_xor_b32 v{aA1}, 32, v{aA0}"),
          V(f"v_add_u32 v{aA0+1}, {2*OSLOT}, v{aA0}"), V(f"v_add_u32 v{aA1+1}, {2*OSLOT}, v{aA1}"),
          S(f"s_mov_b32 s{sHi}, 0")]
    C += [S(f"s_bitcmp1_b32 s{sWave}, 1"), branch("s_cbranch_scc1", "L_o_1")]
    C = fix_hazards(C)
    def late_setup():
        return [V(f"v_mov_b32 v{VFL}, s{sFlag}"), V(f"v_xor_b32 v{VFL+1}, 4, v{VFL}"), V(f"v_mov_b32 v{POLL}, 0"), V(f"v_mov_b32 v{POLL2}, 0"),
         S(f"s_and_b32 s{sNq}, s{sG}, 3"), S(f"s_mov_b32 s{sCnt}, 0x8000"),
         S(f"s_mul_i32 s{sT0}, s{sWave}, 13312"), V(f"v_add_u32 v{LW}, s{sT0}, v{L16}"),
         S(f"s_xor_b32 s{sT1}, s{sWave}, 4"), S(f"s_mul_i32 s{sT0}, s{sT1}, 13312"), V(f"v_add_u32 v{LR}, s{sT0}, v{L16}"),
         S(f"s_lshl_b32 s{sT0}, s2, 3"), S(f"s_add_u32 s{sT0}, s{sT0}, s{sWave}"), S(f"s_mul_i32 s{sXo}, s{sT0}, {SLAB}"), S(f"s_add_u32 s{sXo}, s{sXo}, {XCH_OFF}"),
         S(f"s_xor_b32 s{sT0}, s{sT0}, {8 if Cfg.map84 else 256}"), S(f"s_mul_i32 s{sXp}, s{sT0}, {SLAB}"), S(f"s_add_u32 s{sXp}, s{sXp}, {XCH_OFF}"),
         V(f"v_bfe_u32 v{VO}, v{L16}, 4, 4"), V(f"v_mul_u32_u24 v{VO}, 1280, v{VO}"),
         V(f"v_bfe_u32 v{a}, v{L16}, 8, 1"), V(f"v_lshl_add_u32 v{VO2}, v{a}, 5, v{VO}"), V(f"v_lshrrev_b32 v{a}, 9, v{L16}"), V(f"v_lshl_add_u32 v{VO2}, v{a}, 4, v{VO2}"),
         V(f"v_lshrrev_b32 v{a}, 8, v{L16}"), V(f"v_lshl_add_u32 v{VO}, v{a}, 3, v{VO}"),
         S(f"s_mul_i32 s{sOb}, s{sB}, 204800"), S(f"s_and_b32 s{sT0}, s{sWave}, 1"), S(f"s_mul_i32 s{sT0}, s{sT0}, 102400"), S(f"s_add_u32 s{sOb}, s{sOb}, s{sT0}"),
         S(f"s_mul_i32 s{sT0}, s{sNq}, 320"), S(f"s_add_u32 s{sOb}, s{sOb}, s{sT0}"), S(f"s_bfe_u32 s{sT0}, s{sWave}, 0x10001"), S(f"s_mul_i32 s{sT0}, s{sT0}, 160"),
         S(f"s_add_u32 s{sOb}, s{sOb}, s{sT0}"),
         S(f"s_lshr_b32 s{sVar}, s{sG}, 2"), S(f"s_lshl_b32 s{sT1}, s{sKs}, 1"), S(f"s_add_u32 s{sVar}, s{sVar}, s{sT1}")] + mode_vcc()
    def poll_load(): return [bload(1, POLL, VFL, sDBG, 0, 0, 'sc1'), bload(1, POLL2, VFL + 1, sDBG, 0, 0, 'sc1')]
    for nh in range(2):
        step = 10240 if nh == 0 else 40960
        src = sWS if nh == 0 else sWO
        R_ = [label(f"L_o_{nh}")] + o_voff(nh, VOFF, lane, a, b) + o_base(nh, sBase, sLd) + [S(f"s_add_u32 s{sLd}, s{sLd}, s{sT0}")]
        R_ += [S(f"s_mov_b32 s{sOD+i}, s{src+i}") for i in range(3)]
        def head_setup():
            return [S(f"s_and_b32 s{sT2}, s{sHi}, 3"), S(f"s_and_b32 s{sT3}, s{sG}, 4"), S(f"s_add_u32 s{sT2}, s{sT2}, s{sT3}"),
                    S(f"s_lshl_b32 s{sT2}, s{sT2}, 2"), S(f"s_lshr_b32 s{sT3}, s{sHi}, 2"), S(f"s_lshl_b32 s{sT3}, s{sT3}, 1"), S(f"s_add_u32 s{sT2}, s{sT2}, s{sT3}"),
                    S(f"s_add_u32 s{sT2}, s{sT2}, s{sKs}"), S(f"s_mul_i32 s{sT2}, s{sT2}, {4*step}"), S(f"s_add_u32 s{sSo}, s{sBase}, s{sT2}"),
                    S(f"s_add_u32 s{sHi}, s{sHi}, 1")]
        odma = lambda u: o_dma(nh, u, VOFF, sSo, sLd, srd_=sOD)
        def oreads(u):
            s_ = u & 1; hi = oslot(u) // (2 * OSLOT); off = oslot(u) % (2 * OSLOT)
            G = []
            for k in range(5):
                nb = 5 * nh + k
                ar = (aA1 if nb & 1 else aA0) + hi
                G.append([ds_read(2, fA(s_, k) + 2 * hh, ar, off + (hh * 5 + (nb >> 1)) * 1024, tr=True) for hh in range(2)])
                G.append([ds_read(4, fB(s_, k), aB + hi, off + k * 1024)])
            return G
        def omf(s_): return [mfma(acc(t), fA(s_, t % 5), fB(s_, t // 5), acc(t)) for t in range(25)]
        R_ += head_setup()
        R_ += [wait(vm=18), barrier()] + st(81) + st(82)
        R_ += flat(oreads(0))
        for r in range(50): R_.append(V(f"v_pk_mov_b32 v[{ACC+2*r}:{ACC+2*r+1}], 0, 0"))
        R_ += late_setup() + flat(odma(2))
        R_ += [wait(vm=13), branch("s_branch", f"L_o_in{nh}")]
        R_, q = finish(R_)
        it = lambda hi, wv, lab: [S(f"s_lshl_b32 s{sT2}, s{sHi}, 3"), S(f"s_add_u32 s{sT2}, s{sT2}, s{sWave}"), S(f"s_cmp_lg_u32 s{sT2}, {hi*8+wv}"), branch("s_cbranch_scc1", lab)]
        def ostage(u):
            L = [wait(vm=5, lgkm=0), barrier()]
            if u == 1: L = [wait(vm=5), label(f"L_o_in{nh}"), wait(lgkm=0), barrier()]
            fill = [(oreads(u), 0, Cfg.orh)]
            d = odma((u + 2) & 3)
            if u == 1:
                d = d + [head_setup() + [S(f"s_cmp_gt_u32 s{sHi}, 8"), S(f"s_cselect_b32 s{sOD+2}, 0, s{sOD+2}")]]
                if nh == 0: d = d + [it(5, 0, "L_g3_back") + gate("L_g2", POLL, VFL, 8) + [label("L_g2_back")] + gate("L_g3", POLL2, VFL + 1, 0) + [label("L_g3_back")]]
            if u == 3 and nh == 0: d = [it(4, 0, "L_p2") + poll_load() + [label("L_p2")]] + d
            if u == 2 and nh == 1:
                d = [it(2, 2, "L_nofl2") + [S(f"s_lshl_b32 s{sT2}, 0x100, s{sNq}")] + flag_add(T, f"s{sT2}", "L_nofl2")] + d
            if u == Cfg.tlbu and Cfg.tlbwarm:
                d = d + [[S(f"s_cmp_lg_u32 s{sHi}, {Cfg.tlbwarm}"), branch("s_cbranch_scc1", f"L_tw{nh}"), V(f"v_lshlrev_b32 v{T}, 3, v{L16}"), V(f"v_min_u32 v{T}, {SLAB-128}, v{T}"),
                          bload(1, RB, T, sWS, f"s{sXo}", 0, 'sc1'), label(f"L_tw{nh}")]]
            if u == 3: d = d + [[S(f"s_cmp_gt_u32 s{sHi}, 8")]]
            fill.append((d, Cfg.od0, Cfg.od1))
            if Cfg.oprio:
                n_ = len(Cfg.oprio)
                L = L[:-1] + [raw(f"s_setprio {n_}"), L[-1]]
                for i, pos in enumerate(Cfg.oprio): fill.append(([[raw(f"s_setprio {n_-1-i}")]], pos - 1, pos))
            return L + spread(omf(1 - (u & 1)), fill)
        B = [label(f"L_o_loop{nh}")] + ostage(1) + ostage(2) + ostage(3) + [branch("s_cbranch_scc1", "L_o_fin")] + ostage(0) + [branch("s_branch", f"L_o_loop{nh}")]
        Bc, q2 = loop_finish(B, [], R_)
        E = []
        if nh == 0: E += spin("L_g2", POLL, VFL, 8, "L_g2_back") + spin("L_g3", POLL2, VFL + 1, 0, "L_g3_back")
        C += R_ + Bc + fix_hazards(E)
    E = [label("L_o_fin")] + st(83) + [wait(vm=0, lgkm=0), barrier()]
    for v in range(1, 4): E += [S(f"s_cmp_eq_u32 s{sVar}, {v}"), branch("s_cbranch_scc1", f"L_o_epi{v}")]
    C += E
    for v in range(4):
        ks, kh = v >> 1, v & 1
        mine = TS[v]; xsend = TS[v ^ 1]; keep = sorted(mine + xsend); lsend = sorted(TS[v ^ 2] + TS[v ^ 3])
        ls = lambda i: [raw(f"s_memtime s[{64+2*i}:{65+2*i}]" if i < 4 else f"s_memtime s[{92+2*(i-4)}:{93+2*(i-4)}]"), wait(lgkm=0)] if Cfg.stamps == 6 else []
        E = [label(f"L_o_epi{v}")] + ls(0)
        order = lsend + xsend + mine
        mf = [mfma(acc(t), fA(1, t % 5), fB(1, t // 5), acc(t)) for t in order]
        wr = [[ds_write(4, LW, acc(t), i * 1024)] for i, t in enumerate(lsend)]
        E += spread(mf, [(wr, 4, 19)])
        E += [wait(lgkm=0)] + ls(1) + [barrier()] + ls(2)
        rorder = xsend + mine
        for i, t in enumerate(rorder): E.append(ds_read(4, RB + 4 * i, LR, keep.index(t) * 1024))
        PK = SET[0]
        for i, t in enumerate(rorder):
            for r in range(0, 4, 2): E.append(V(f"v_pk_add_f32 v[{acc(t)+r}:{acc(t)+r+1}], v[{acc(t)+r}:{acc(t)+r+1}], v[{RB+4*i+r}:{RB+4*i+r+1}]"))
            if t in xsend:
                k = xsend.index(t)
                E += [V(f"v_cvt_pk_bf16_f32 v{PK+2*k}, v{acc(t)}, v{acc(t)+1}"), V(f"v_cvt_pk_bf16_f32 v{PK+2*k+1}, v{acc(t)+2}, v{acc(t)+3}")]
                if k & 1 or k == len(xsend) - 1: E += dstore(4, PK + 4 * (k >> 1), L16, sWS, f"s{sXo}", (k >> 1) * 1024)
        E += st(84) + ls(3)
        n = len(mine); nl = (n + 1) // 2
        E += [V(f"v_mov_b32 v{POLL2}, 1"), V(f"v_mov_b32 v{VFL}, {SLAB-128}"), wait(vm=0), S("s_mov_b64 exec, 1")] + dstore(1, POLL2, VFL, sWS, f"s{sXo}", 0)
        if Cfg.poll_nt:
            SLOW.append([label(f"L_xp{v}"), bload(1, POLL, VFL, sWS, f"s{sXp}", 0, 'sc1'), branch("s_branch", f"L_xp{v}_b")])
            pl = [branch("s_cbranch_vccz", f"L_xp{v}"), bload(1, POLL, VFL, sWS, f"s{sXp}", 0, 'nt'), label(f"L_xp{v}_b")]
        else: pl = [bload(1, POLL, VFL, sWS, f"s{sXp}", 0, 'sc1')]
        E += [label(f"L_x{v}")] + pl + [
              S(f"s_sub_u32 s{sCnt}, s{sCnt}, 1"), S(f"s_cmp_lt_i32 s{sCnt}, 0"), branch("s_cbranch_scc1", f"L_x{v}_ok"), wait(vm=0),
              V(f"v_readfirstlane_b32 s{sT2}, v{POLL}"), S(f"s_cmp_eq_u32 s{sT2}, 1"), branch("s_cbranch_scc1", f"L_x{v}_ok"),
              raw(f"s_sleep {Cfg.xsleep2}"), branch("s_branch", f"L_x{v}"), label(f"L_x{v}_ok"), S("s_mov_b64 exec, -1")]
        ld = lambda pol: [bload(4, RB + 4 * k, L16, sWS, f"s{sXp}", k * 1024, pol) for k in range(nl)]
        SLOW.append([label(f"L_xl{v}")] + ld('sc1') + [branch("s_branch", f"L_xl{v}_b")])
        E += [branch("s_cbranch_vccz", f"L_xl{v}")] + ld('') + [label(f"L_xl{v}_b")]
        E += st(85) + ls(4)
        E += [wait(vm=0)] + ls(6)
        U = RB + 16
        k = 0
        while k < n:
            pair = Cfg.widest and k + 1 < n and mine[k] // 5 == mine[k + 1] // 5
            d = acc(mine[k])
            for h in range(2 if pair else 1):
                a_ = acc(mine[k + h]); r0 = RB + 2 * (k + h)
                E += [V(f"v_lshlrev_b32 v{U}, 16, v{r0}"), V(f"v_and_b32 v{U+1}, 0xffff0000, v{r0}"), V(f"v_lshlrev_b32 v{U+2}, 16, v{r0+1}"), V(f"v_and_b32 v{U+3}, 0xffff0000, v{r0+1}")]
                for r in range(0, 4, 2): E.append(V(f"v_pk_add_f32 v[{a_+r}:{a_+r+1}], v[{a_+r}:{a_+r+1}], v[{U+r}:{U+r+1}]"))
                E += [V(f"v_cvt_pk_bf16_f32 v{d+2*h}, v{a_}, v{a_+1}"), V(f"v_cvt_pk_bf16_f32 v{d+2*h+1}, v{a_+2}, v{a_+3}")]
            t = mine[k]
            E += [S(f"s_add_u32 s{sT0}, s{sOb}, {(t//5)*20480}")]
            if pair: E += [V(f"v_permlane16_swap_b32 v{d}, v{d+2}"), V(f"v_permlane16_swap_b32 v{d+1}, v{d+3}"), bstore(4, d, VO2, sOUT, f"s{sT0}", (t % 5) * 32, Cfg.out_pol)]
            else: E += [bstore(2, d, VO, sOUT, f"s{sT0}", (t % 5) * 32, Cfg.out_pol)]
            k += 2 if pair else 1
        E += st(86) + st(77, True)
        if Cfg.stamps == 6:
            E += [wait(vm=0)] + ls(5) + [V(f"v_mov_b32 v{T+1}, 0"), V(f"v_mov_b32 v{T}, s{sCnt}"), bstore(1, T, T + 1, sWS, f"s{sStamp+2}", 4 * 106)]
            for i, r in enumerate([64, 66, 68, 70, 92, 94]): E += [V(f"v_mov_b32 v{T}, s{r}"), bstore(1, T, T + 1, sWS, f"s{sStamp+2}", 4 * (100 + i))]
            E += [V(f"v_mov_b32 v{T}, s96"), bstore(1, T, T + 1, sWS, f"s{sStamp+2}", 4 * 107)]
        if Cfg.dbgst and ks == 1:
            E += [S(f"s_cmp_lg_u32 s{sWave}, 4"), branch("s_cbranch_scc1", f"L_dbgend{v}"), S(f"s_cmp_lg_u32 s2, {Cfg.dbgst}"), branch("s_cbranch_scc1", f"L_dbgend{v}"),
                  S("s_mov_b64 exec, 1"), V("v_mov_b32 v1, 0")]
            for i, r in enumerate(DREG):
                E += [S(f"s_sub_u32 s{r}, s{r}, s{sStamp+2}"), S(f"s_lshr_b32 s{r}, s{r}, 8"), S(f"s_and_b32 s{r}, s{r}, 0x3ff"), S(f"s_lshl_b32 s{r}, s{r}, {12 + 10*(i&1)}"), V(f"v_mov_b32 v{2+i}, s{r}"),
                      raw(f"buffer_atomic_or v{2+i}, v1, s[{sDBG}:{sDBG+3}], 0 offen offset:{8*(i>>1)+4} sc1")]
            E += [label(f"L_dbgend{v}")]
        E += [raw("s_endpgm")]
        E, _ = finish(E)
        C += E
    return C

def gen_kernel(name):
    C = [raw(f".globl {name}\n.p2align 8\n.type {name},@function\n{name}:\nKSTART:", 'label')]
    C += [S("s_cmp_lt_u32 s2, 256"), branch("s_cbranch_scc1", "L_go"), raw("s_endpgm"), label("L_go")]
    C += [raw("s_load_dwordx16 s[56:71], s[0:1], 0")]
    if Cfg.ent: C += [raw("s_memtime s[92:93]"), raw("s_memrealtime s[100:101]")]
    if Cfg.dbgst: C += [raw(f"s_memtime s[{sStamp+2}:{sStamp+3}]")] + [S(f"s_mov_b32 s{r}, 0") for r in DREG]
    if Cfg.delay:
        C += [S(f"s_bitcmp0_b32 s2, {Cfg.delay_bit}"), branch("s_cbranch_scc1", "L_nodelay"), S(f"s_mov_b32 s{sT0}, {Cfg.delay // 1024}"), label("L_delay"), raw("s_sleep 16"),
              S(f"s_sub_u32 s{sT0}, s{sT0}, 1"), S(f"s_cmp_lg_u32 s{sT0}, 0"), branch("s_cbranch_scc1", "L_delay"), label("L_nodelay")]
    C += [V("v_lshrrev_b32 v1, 6, v0"),
          S(f"s_and_b32 s{sB}, s2, 7"), S(f"s_lshl_b32 s{sB}, s{sB}, 2"), V(f"v_readfirstlane_b32 s{sWave}, v1"),
          S(f"s_lshr_b32 s{sT0}, s2, 6"), S(f"s_add_u32 s{sB}, s{sB}, s{sT0}"), S(f"s_bfe_u32 s{sG}, s2, 0x30003")]
    if Cfg.map84:
        C += [S(f"s_and_b32 s{sB}, s2, 6"), S(f"s_lshl_b32 s{sB}, s{sB}, 2"), S(f"s_lshr_b32 s{sT0}, s2, 5"), S(f"s_add_u32 s{sB}, s{sB}, s{sT0}"),
              S(f"s_and_b32 s{sG}, s2, 1"), S(f"s_lshl_b32 s{sG}, s{sG}, 2"), S(f"s_bfe_u32 s{sT0}, s2, 0x20003"), S(f"s_add_u32 s{sG}, s{sG}, s{sT0}")]
    C += [S(f"s_bfe_u32 s{sT0}, s{sWave}, 0x10001"), S(f"s_lshl_b32 s{sT2}, s{sG}, 2"), S(f"s_add_u32 s{sT2}, s{sT2}, s{sT0}"), S(f"s_lshl_b32 s{sWbase}, s{sT2}, 8"),
          S(f"s_cmp_lt_u32 s{sWave}, 4"), branch("s_cbranch_scc1", "L_w3"),
          S(f"s_and_b32 s{sT1}, s{sWave}, 1"), S(f"s_lshl_b32 s{sT2}, s{sT1}, 10"),
          S(f"s_lshl_b32 s{sLdsKV}, s{sT0}, 13"), S(f"s_add_u32 s{sLdsKV}, s{sLdsKV}, s{sT2}"),
          S(f"s_mul_i32 s{sLdsX}, s{sT0}, 10240"), S(f"s_add_u32 s{sLdsX}, s{sLdsX}, s{sT2}"),
          S(f"s_mul_i32 s{sXbase}, s{sB}, 204800"), S(f"s_mul_i32 s{sT2}, s{sT0}, 102400"), S(f"s_add_u32 s{sXbase}, s{sXbase}, s{sT2}")]
    if Cfg.rot:
        C += [S(f"s_bfe_u32 s{sRho}, s2, 0x20003") if Cfg.map84 else S(f"s_lshr_b32 s{sRho}, s2, 6"), S(f"s_mul_i32 s{sRho}, s{sRho}, 5"), S(f"s_add_u32 s{sRho}, s{sRho}, 1"), S(f"s_lshr_b32 s{sRho}, s{sRho}, 1"),
              S(f"s_lshr_b32 s{sT2}, s2, 5") if Cfg.map84 else S(f"s_mov_b32 s{sT2}, s{sG}"), S(f"s_add_u32 s{sRho}, s{sRho}, s{sT2}"), S(f"s_and_b32 s{sT2}, s2, 7"), S(f"s_add_u32 s{sRho}, s{sRho}, s{sT2}")]
        for _ in range(2): C += [S(f"s_sub_u32 s{sT2}, s{sRho}, 10"), S(f"s_cmp_ge_u32 s{sRho}, 10"), S(f"s_cselect_b32 s{sRho}, s{sT2}, s{sRho}")]
        if Cfg.rotn == 88: C += [S(f"s_lshr_b32 s{sRho}, s2, 5"), S(f"s_and_b32 s{sRho}, s{sRho}, 6"), S(f"s_add_u32 s{sRho}, s{sRho}, s{sG}"), S(f"s_add_u32 s{sRho}, s{sRho}, s2")]
        if Cfg.rotn == 19: C += [S(f"s_cmp_eq_u32 s{sRho}, 9"), S(f"s_cselect_b32 s{sRho}, 4, s{sRho}")]
        if Cfg.rotn == 8: C += [S(f"s_and_b32 s{sRho}, s2, 7")]
        if Cfg.rotn == 16:
            C += [S(f"s_and_b32 s{sRho}, s{sRho}, 1"), S(f"s_mul_i32 s{sRho}, s{sRho}, 5"), S(f"s_and_b32 s{sT2}, s2, 7"), S(f"s_add_u32 s{sRho}, s{sRho}, s{sT2}"),
                  S(f"s_sub_u32 s{sT2}, s{sRho}, 10"), S(f"s_cmp_ge_u32 s{sRho}, 10"), S(f"s_cselect_b32 s{sRho}, s{sT2}, s{sRho}")]
        if Cfg.rotn == 2: C += [S(f"s_and_b32 s{sRho}, s{sRho}, 1"), S(f"s_mul_i32 s{sRho}, s{sRho}, 5")]
        if Cfg.rotn == 4: C += [S(f"s_and_b32 s{sRho}, s{sRho}, 3"), S(f"s_mul_i32 s{sRho}, s{sRho}, 5"), S(f"s_lshr_b32 s{sRho}, s{sRho}, 1")]
    C = fix_hazards(C)
    w2, r2 = gen_w2(); w3, r3 = gen_w3()
    C += w2 + w3 + gen_o() + [label("KEND")] + r2 + r3 + flat(SLOW)
    for k, tag, par in CTX.stubs:
        C += [label(f"L_stub{k}"), raw(f"s_call_b64 s[{sRet}:{sRet+1}], L_rare_{tag}_{par}", 'branch'), branch("s_branch", f"L_back{k}")]
    return C

def kd(name, vgpr, accum, sgpr=102):
    return f""".section .rodata,"a"
.p2align 6
.amdhsa_kernel {name}
  .amdhsa_next_free_vgpr {vgpr}
  .amdhsa_next_free_sgpr {sgpr}
  .amdhsa_accum_offset {accum}
  .amdhsa_group_segment_fixed_size 0
  .amdhsa_kernarg_size 64
  .amdhsa_user_sgpr_count 2
  .amdhsa_user_sgpr_kernarg_segment_ptr 1
  .amdhsa_system_sgpr_workgroup_id_x 1
.end_amdhsa_kernel
"""

HDR = open('standalone__mha_block_cached__near_ridge.s.ref').read().split('; Override launch')[0]
def main(path):
    k1 = "standalone__mha_block_cached__near_ridge_kernel"
    s = HDR
    s += f"; @launch grid=(256,1,1) block=(512,1,1) lds={LDS_BYTES}\n"
    s += '.amdgcn_target "amdgcn-amd-amdhsa--gfx950"\n.text\n'
    s += emit(gen_kernel(k1))
    s += kd(k1, 256, 256)
    open(path, 'w').write(s)
if __name__ == '__main__':
    for a in sys.argv[2:]:
        k, v = a.split('=', 1); setattr(Cfg, k, eval(v))
    main(sys.argv[1] if len(sys.argv) > 1 else 'mha2.s')
```

```python
import sys, math, struct
from ir import *

SLOT = 16384
NSLOT = 10
NW, NX = 6, 3
WPERM = [4, 5, 1, 3, 0, 2]
def wslot(s): return WPERM[s % NW] * SLOT
def xbuf(u): return NW * SLOT + (u % NX) * 20480
WTAB = sum((((WPERM[(m + 1) % NW] - WPERM[m]) & 15) << (4 * m)) for m in range(NW))
LDS_BYTES = 163840
O_BYTES = 32 * 128 * 10 * 1024
XCH_OFF = O_BYTES
SLAB = 4096 + 128
XCH_WG = 8 * SLAB
MODE_LDS = LDS_BYTES - 4
WS_BYTES = XCH_OFF + 256 * XCH_WG
QSCALE = math.log2(math.e) / math.sqrt(128.0)
THR = 16384.0
def f2u(x): return "0x%08x" % struct.unpack('<I', struct.pack('<f', x))[0]

sK, sV, sW, sX, sWS, sWO, sOUT, sDBG = 8, 12, 16, 20, 24, 28, 76, 80
sWave, sRound, sB, sG = 32, 33, 34, 35
sKVbase, sWbase, sXbase, sLdsKV, sLdsX = 36, 37, 38, 39, 40
sT0, sT1 = 41, 42
sKpos, sVpos, sD, sCnt, sXd, sLoop = 43, 44, 45, 49, 50, 51
sRet = 46
sOst = 48
sKX, sFlag = 52, 53
sT2, sT3 = 54, 55
sQS, sC16, sC32, sCX = 72, 73, 74, 75
sTK, sTV, sCnt2 = 88, 89, 90
sTau = 64
sMode = 91
sRho, sT4 = 3, 87
sOoff = 56
sStamp = 84
DBG_OFF = 96 << 20

class Cfg:
    stamps = False
    dbgst = False
    dsl = None
    rot = True
    orot = True
    warm0 = False
    delay = 0
    delay_bit = 7
    LA = 7
    kv_pol = 'nt'
    touch_pol = ''
    touch_at = []
    warm = True
    xsleep = 8
    kv_same = False
    q0soft = 0
    q0sleep = 0
    q0n = 20
    tlbsh = 12
    capr0 = 0
    capr0_items = (0, 1, 2, 3, 4, 8, 9)
    first = {0: 17, 1: 15, 2: 18, 3: 16, 4: 19, 5: 20, 6: 20, 7: 21, 8: 21, 9: 22}
    capi = 5
    wnext = ((33, (2, 3)), (34, (0, 1)))
    holes = []
    qcap = 9
    map84 = True
    fake_wot = False
    capfrom = 0
    cap0 = False
    place2 = {'wo': (8, 0)}
    cap = 5
    drain = {}
    wo2n = 39
    jit = 1
    wo2pol = ''
    place = {'code': ('A0', 1)}
    oprio = [6, 12, 18]
    v_pol = None
    ent = False
    tlbwarm = 0
    tlbu = 1
    slabmall = True
    widest = True
    pro_pol = ''
    wx_pol = ''
    poll_nt = False
    taumul = 8
    taush = 2
    taumask = 15
    kvgrp = 1
    pace = 5.0
    lead = 2
    tbatch = []
    qr3 = 18
    qr2 = 15
    orh = 20
    od0 = 1
    od1 = 24
    ofirst = True
    qd0 = 0
    qprio = 1
    ofast_pol = ''
    fast0 = False
    out_pol = ''
    dsplit = 50
    rotn = 10
    late = 8
    smpure = 0.7
    pp = False
    pp_a = 1
    pp_b = 0
    ostamp = False
    xsleep2 = 2
    dual = True
    fast = True
    codetouch2 = True
    codetouch = True
    qcut = 4
    prio = 2
    no_sm = False
    no_dma = False
    no_exp = False
    no_chk = False
    no_ds = False
    no_adv = False
    ost_pol = 'sc1'
    old_pol = 'sc1'
    o_skip = 0
    o_vm1 = 10
    smend = 3

RT4 = {7: 90, 39: 91, 45: 92, 73: 93, 82: 94, 83: 95}
STAMP3 = (0, 1, 3, 5, 7, 39, 41, 43, 45, 73, 75, 76, 77, 80, 81, 82, 83, 84, 85, 86)
DSL = {(1, 0): 0, (41, 0): 1, (45, 0): 2, (73, 0): 3, (1, 1): 4, (41, 1): 5, (45, 1): 6, (73, 1): 7, (80, 2): 8, (82, 2): 9, (83, 2): 10, (84, 2): 11, (85, 2): 12, (86, 2): 13}
sDS = 4
DREG = [4, 5, 6, 7, 101, 92, 93, 94, 95, 96, 97, 98, 99, 100]
def stamp(t, k, real=False):
    if Cfg.dbgst:
        if real: return []
        dsl = DSL if not Cfg.dsl else {(2 * b + 1, Cfg.dsl[0]): i for i, b in enumerate(Cfg.dsl[1:])}
        hits = [(r, i) for (kk, r), i in dsl.items() if kk == k]
        if not hits: return []
        out = [raw(f"s_memtime s[{sStamp}:{sStamp+1}]"), wait(lgkm=0)]
        for r, i in hits:
            out += [S(f"s_cmp_eq_u32 s{sRound}, {r}"), S(f"s_cselect_b32 s{DREG[i]}, s{sStamp}, s{DREG[i]}")]
        return out
    if not Cfg.stamps: return []
    if Cfg.stamps == 6: return []
    if Cfg.stamps == 7:
        if not ((41 <= k <= 73 and k % 4 == 1 and not real) or k in (76, 77, 31)): return []
        real = True
    if Cfg.stamps == 4 and not real and k in RT4:
        Cfg.stamps = 5; r = stamp(t, k) + stamp(t, RT4[k], True); Cfg.stamps = 4; return r
    if Cfg.stamps in (3, 4) and k not in STAMP3: return []
    return [raw(f"{'s_memrealtime' if real else 's_memtime'} s[{sStamp}:{sStamp+1}]"), wait(lgkm=0), V(f"v_mov_b32 v{t}, s{sStamp}"), V(f"v_mov_b32 v{t+1}, 0"),
            S(f"s_and_b32 s{sStamp+1}, s{sRound}, 1"), S(f"s_lshl_b32 s{sStamp+1}, s{sStamp+1}, 9"), S(f"s_add_u32 s{sStamp+1}, s{sStamp+1}, s{sStamp+2}"),
            bstore(1, t, t + 1, sWS, f"s{sStamp+1}", 4 * k, tag=('misc',))]

def item_slot(n): return (n % NSLOT) * SLOT
def kidx(t): return 0 if t == 0 else 2 * t - 1
def vidx(t): return 2 * t + 2

class Wave:
    def __init__(self, nq):
        self.nq = nq
        n = nq
        p = 0
        self.O = p; p += 32 * n
        self.Q = p; p += 16 * n
        self.NM = p; p += 4 * n
        self.S = p; p += 8 * n
        self.P = p; p += 8 * n
        self.L = p; p += n
        self.LT = p; p += n
        self.T = p; p += 4
        self.aN = p; p += 2
        self.aT = p; p += 4
        p = (p + 3) & ~3
        self.F = p; self.NF = 8; p += 32
        self.dummy = p; p += 1
        self.tmp = p; p += 3
        if nq == 2:
            self.vK = p; self.vV = p + 1; self.vW = p + 2; self.vX = p + 3; self.vTch = p + 4; self.oVoff = p + 5; self.oPoll = p + 6; p += 7
        assert p <= 256, p
        self.end = p
        setsz = 32 + 4 * n
        if nq == 3:
            self.set = [self.Q, self.S]
        else:
            q = (p + 3) & ~3
            self.set = [self.Q, q]
            assert q + setsz <= 256
        self.tag = f"w{nq}"
        self.fpos = 0
    def o(self, T, j): return self.O + (T * self.nq + j) * 4
    def q(self, s, j): return self.Q + (s * self.nq + j) * 4
    def nm(self, j): return self.NM + 4 * j
    def s(self, kb, j): return self.S + (kb * self.nq + j) * 4
    def p(self, par, j): return self.P + (par * self.nq + j) * 4
    def fa(self, st, T): return self.set[st] + 4 * T
    def fb(self, st, j): return self.set[st] + 32 + 4 * j

def spread(base, fillers):
    ins = [[] for _ in range(len(base) + 1)]
    for groups, lo, hi in fillers:
        n = len(groups)
        if n == 0: continue
        hi = min(hi, len(base)); lo = min(lo, hi)
        span = hi - lo
        for k, gI in enumerate(groups):
            pos = lo + (k * span) // n + 1 if span > 0 else lo
            ins[min(pos, len(base))].extend(gI)
    out = list(ins[0])
    for i, b in enumerate(base):
        out.append(b); out.extend(ins[i + 1])
    return out

def frag_K(w, s, kb, first_c):
    def reads(f): return [ds_read(4, f, w.aN + (s & 1), kb * 4096 + (s >> 1) * 2048)]
    def mf(f):
        out = []
        for j in range(w.nq):
            c = w.s(kb, j) if s > 0 else (None if first_c == 'zero' else w.nm(j))
            out.append(mfma(w.s(kb, j), f, w.q(s, j), c))
        return out
    return dict(reads=reads, mf=mf, pre=[])
def frags_QK(w, first_c='negm', pre=()):
    fr = [frag_K(w, s, kb, first_c) for s in range(4) for kb in range(2)]
    fr[0]['pre'] = list(pre)
    return fr
def frag_V(w, db, par, zero):
    def reads(f): return [ds_read(2, f + 2 * hh, w.aT + (db & 3), hh * 4096 + (db >> 2) * 2048, tr=True) for hh in range(2)]
    def mf(f): return [mfma(w.o(db, j), f, w.p(par, j), None if zero else w.o(db, j)) for j in range(w.nq)]
    return dict(reads=reads, mf=mf, pre=[])
def frags_PV(w, par, zero=False, pre=()):
    fr = [frag_V(w, db, par, zero) for db in range(8)]
    fr[0]['pre'] = list(pre)
    return fr

def stream(w, frags, preloaded, nxt, fillers=(), lead=()):
    LA = Cfg.LA
    allf = list(frags) + list(nxt[:LA])
    head = []
    def issue(i):
        f = allf[i]
        return ([] if Cfg.no_adv else list(f['pre'])) + ([] if Cfg.no_ds else f['reads'](w.F + 4 * ((w.fpos + i) % w.NF)))
    for i in range(preloaded, min(LA, len(allf))): head += issue(i)
    base = list(lead); extra = []
    for i, f in enumerate(frags):
        m = f['mf'](w.F + 4 * ((w.fpos + i) % w.NF))
        base += m
        post = []
        if i + LA < len(allf) and i + LA >= preloaded: post += issue(i + LA)
        if post: extra.append(([post], len(base) - 1, len(base)))
    body = spread(base, list(extra) + list(fillers))
    w.fpos = (w.fpos + len(frags)) % w.NF
    return head + body

def softmax_groups(w, par):
    G = []
    k = 0
    for kb in range(2):
        for j in range(w.nq):
            for h in range(2):
                t0 = w.T + 2 * (k & 1); t1 = t0 + 1; k += 1
                sr = w.s(kb, j) + 2 * h
                G.append([V(f"v_exp_f32 v{t0}, v{sr}")])
                G.append([V(f"v_exp_f32 v{t1}, v{sr+1}")])
                lt = w.LT + j
                if kb == 0 and h == 0:
                    G.append(('late', [V(f"v_add_f32 v{lt}, v{t0}, v{t1}"), V(f"v_cvt_pk_bf16_f32 v{w.p(par,j)+2*kb+h}, v{t0}, v{t1}")]))
                else:
                    G.append(('late', [V(f"v_add_f32 v{lt}, v{lt}, v{t0}"), V(f"v_cvt_pk_bf16_f32 v{w.p(par,j)+2*kb+h}, v{t0}, v{t1}"),
                                       V(f"v_add_f32 v{lt}, v{lt}, v{t1}")]))
    if Cfg.no_sm: return [[V(f"v_mov_b32 v{w.LT+j}, 1.0")] for j in range(w.nq)]
    if Cfg.no_exp:
        for gI in G:
            if not isinstance(gI, tuple): gI[0] = V(gI[0].text.replace('v_exp_f32', 'v_mov_b32'))
    out = []; pend = None
    for gI in G:
        if isinstance(gI, tuple):
            pend = gI[1]
        else:
            out.append(gI)
            if pend is not None:
                out.append(pend); pend = None
    if pend is not None: out.append(pend)
    return out

class Ctx:
    def __init__(self): self.stubs = []; self.n = 0
CTX = Ctx()

SLOW = []
def dstore(n, src, voff, srd_, soff, imm, tag=None, pol=''):
    if not Cfg.dual: return [bstore(n, src, voff, srd_, soff, imm, 'sc1', tag=tag)]
    k = len(SLOW)
    SLOW.append([label(f"L_slow{k}"), bstore(n, src, voff, srd_, soff, imm, 'sc1'), branch("s_branch", f"L_slowb{k}")])
    return [branch("s_cbranch_vccz", f"L_slow{k}"), bstore(n, src, voff, srd_, soff, imm, pol, tag=tag), label(f"L_slowb{k}")]
def mode_vcc(): return [S(f"s_and_b32 s{sT1}, s{sMode}, s{sMode if Cfg.fast0 else sRound}"), S("s_cselect_b64 vcc, -1, 0")]
def mode_read(t):
    return [[V(f"v_mov_b32 v{t}, {MODE_LDS}"), ds_read(1, t, t, 0)],
            [V(f"v_readfirstlane_b32 s{sT1}, v{t}"), S(f"s_cmp_eq_u32 s{sRound}, 0"), S(f"s_cselect_b32 s{sMode}, s{sT1}, s{sMode}")]]

def check_cmp(w):
    if Cfg.no_chk: return []
    out = []
    if w.nq == 3: out.append(V(f"v_max3_f32 v{w.tmp}, v{w.LT}, v{w.LT+1}, v{w.LT+2}"))
    else: out.append(V(f"v_max_f32 v{w.tmp}, v{w.LT}, v{w.LT+1}"))
    out.append(I(f"v_cmp_nge_f32 vcc, {f2u(THR)}, v{w.tmp}", 'valu', wr={('s', 'vcc')}, rd=regs(w.tmp)))
    return out
def check_branch(w, par):
    if Cfg.no_chk: return []
    k = CTX.n; CTX.n += 1
    CTX.stubs.append((k, w.tag, par))
    return [branch("s_cbranch_vccnz", f"L_stub{k}"), label(f"L_back{k}")]
def l_accum(w, first=False):
    if first: return [V(f"v_mov_b32 v{w.L+j}, v{w.LT+j}") for j in range(w.nq)]
    return [V(f"v_add_f32 v{w.L+j}, v{w.L+j}, v{w.LT+j}") for j in range(w.nq)]
def sm_fillers(w, par, lo):
    nm = 8 * w.nq
    return [(softmax_groups(w, par) + [check_cmp(w)], lo, nm - Cfg.smend)]

def xlane(op, r, t):
    return [V(f"v_mov_b32 v{t}, v{r}"), V(f"v_permlane32_swap_b32 v{r}, v{t}"), V(f"{op} v{r}, v{r}, v{t}"),
            V(f"v_mov_b32 v{t}, v{r}"), V(f"v_permlane16_swap_b32 v{r}, v{t}"), V(f"{op} v{r}, v{r}, v{t}")]

def tile_max(w, j, dst):
    a, b = w.s(0, j), w.s(1, j)
    return [V(f"v_max3_f32 v{dst}, v{a}, v{a+1}, v{a+2}"), V(f"v_max3_f32 v{dst}, v{dst}, v{a+3}, v{b}"),
            V(f"v_max3_f32 v{dst}, v{dst}, v{b+1}, v{b+2}"), V(f"v_max_f32 v{dst}, v{dst}, v{b+3}")]

def first_max(w):
    out = []
    for j in range(w.nq): out += tile_max(w, j, w.LT + j)
    seqs = [xlane("v_max_f32", w.LT + j, w.T + j) for j in range(w.nq)]
    for k in range(6):
        for sq in seqs: out.append(sq[k])
    for j in range(w.nq):
        for r in range(4): out.append(V(f"v_sub_f32 v{w.nm(j)+r}, 0, v{w.LT+j}"))
        for kb in range(2):
            for r in range(4): out.append(V(f"v_sub_f32 v{w.s(kb,j)+r}, v{w.s(kb,j)+r}, v{w.LT+j}"))
    return out

def rare_routine(w, par):
    out = [label(f"L_rare_{w.tag}_{par}"), nop(15)]
    for j in range(w.nq):
        d = w.LT + j; f = w.T + 1
        out += tile_max(w, j, d)
        out += xlane("v_max_f32", d, w.T)
        out.append(V(f"v_max_f32 v{d}, 0, v{d}"))
        out.append(V(f"v_sub_f32 v{f}, 0, v{d}"))
        out.append(V(f"v_exp_f32 v{f}, v{f}"))
        for r in range(4): out.append(V(f"v_sub_f32 v{w.nm(j)+r}, v{w.nm(j)+r}, v{d}"))
        for kb in range(2):
            for r in range(4): out.append(V(f"v_sub_f32 v{w.s(kb,j)+r}, v{w.s(kb,j)+r}, v{d}"))
        out.append(V(f"v_mul_f32 v{w.L+j}, v{w.L+j}, v{f}"))
        for T in range(8):
            for r in range(4): out.append(V(f"v_mul_f32 v{w.o(T,j)+r}, v{w.o(T,j)+r}, v{f}"))
    for gI in softmax_groups(w, par): out += gI
    out.append(nop(3))
    out.append(raw(f"s_setpc_b64 s[{sRet}:{sRet+1}]", 'branch'))
    return fix_hazards(out)

def q_reads(w, st, sl):
    G = []
    for j in range(w.nq): G.append([ds_read(4, w.fb(st, j), w.aN + sl, j * 2048)])
    for T in range(8):
        for hh in range(2):
            G.append([ds_read(2, w.fa(st, T) + 2 * hh, w.aT + ((T >> 1) & 1), hh * 4096 + (T >> 2) * 2048 + (T & 1) * 8, tr=True)])
    return G
def q_mfmas(w, st, zero):
    return [mfma(w.o(T, j), w.fa(st, T), w.fb(st, j), None if zero else w.o(T, j)) for T in range(8) for j in range(w.nq)]

def q_pack_groups(w, s):
    G = []
    for j in range(w.nq):
        for half in range(2):
            a = w.o(2 * s + half, j)
            for r in range(4): G.append([V(f"v_mul_f32 v{a+r}, s{sQS}, v{a+r}")])
            G.append([V(f"v_cvt_pk_bf16_f32 v{w.q(s,j)+2*half}, v{a}, v{a+1}")])
            G.append([V(f"v_cvt_pk_bf16_f32 v{w.q(s,j)+2*half+1}, v{a+2}, v{a+3}")])
    return G
def q_pack_fillers(w):
    n = w.nq
    rng = [(2 * n + 2, 5 * n), (5 * n, 8 * n), (8 * n, 11 * n), (11 * n, 14 * n - 1)]
    return [(q_pack_groups(w, s), rng[s][0], rng[s][1]) for s in range(4)]

def l_reduce(w):
    out = []
    seqs = [xlane("v_add_f32", w.L + j, w.T + j) for j in range(w.nq)]
    for k in range(6):
        for sq in seqs: out.append(sq[k])
    for j in range(w.nq): out.append(V(f"v_rcp_f32 v{w.L+j}, v{w.L+j}"))
    out += [V(f"v_mbcnt_lo_u32_b32 v{w.tmp}, -1, 0"), V(f"v_mbcnt_hi_u32_b32 v{w.tmp}, -1, v{w.tmp}"), V(f"v_lshlrev_b32 v{w.tmp}, 4, v{w.tmp}")]
    return out
def epi_groups(w, s):
    G = []
    for j in range(w.nq):
        d = w.q(s, j)
        for half in range(2):
            a = w.o(2 * s + half, j)
            for r in range(4): G.append([V(f"v_mul_f32 v{a+r}, v{a+r}, v{w.L+j}")])
            G.append([V(f"v_cvt_pk_bf16_f32 v{d+2*half}, v{a}, v{a+1}")])
            G.append([V(f"v_cvt_pk_bf16_f32 v{d+2*half+1}, v{a+2}, v{a+3}")])
        G.append([S(f"s_add_u32 s{sT1}, s{sOst}, {s*10240}")] + dstore(4, d, w.tmp, sWS, f"s{sT1}", j * 1024, tag=('O', 0, True), pol=Cfg.ofast_pol))
    return G
def epi_fillers(w):
    n = w.nq
    rng = [(2 * n + 2, 4 * n + 2), (4 * n + 2, 6 * n + 2), (6 * n + 2, 8 * n), (8 * n, 8 * n)]
    return [([[i] for i in l_reduce(w)], 0, 2 * n + 1)] + [(epi_groups(w, s), rng[s][0], rng[s][1]) for s in range(4)]

def flat(G): return [i for g in G for i in g]
def one(L): return [[i] for i in L]

CAPN = [0]
def dma_kv(w, kind, t, nxt_round, tag):
    srd_ = sK if kind == 'K' else sV
    voff = w.vK if kind == 'K' else w.vV
    n = kidx(t) if kind == 'K' else vidx(t)
    lds = item_slot(n)
    G = []
    for a in range(2):
        for seg in range(2):
            G.append([S(f"s_add_u32 m0, s{sLdsKV}, {lds + a*4096 + seg*2048 - seg*128}"),
                      S(f"s_add_u32 s{sT0}, s{sT4}, {a*4096}"),
                      dma(voff, srd_, f"s{sT0}", seg * 128, Cfg.kv_pol if (kind == 'K' or Cfg.v_pol is None) else Cfg.v_pol, tag=tag)])
    if Cfg.cap and n >= Cfg.capfrom:
        for g in G:
            if Cfg.cap0:
                CAPN[0] += 1
                g[0:0] = [S(f"s_cmp_lg_u32 s{sRound}, 0"), branch("s_cbranch_scc1", f"L_cap{CAPN[0]}"), wait(vm=Cfg.cap - 1), label(f"L_cap{CAPN[0]}")]
            else: g.insert(2, wait(vm=(Cfg.cap if n >= 10 else Cfg.capi) - 1))
    if Cfg.capr0 and n in Cfg.capr0_items:
        for g in G:
            CAPN[0] += 1
            g[0:0] = [S(f"s_cmp_lg_u32 s{sRound}, 0"), branch("s_cbranch_scc1", f"L_cap{CAPN[0]}"), wait(vm=Cfg.capr0 - 1), label(f"L_cap{CAPN[0]}")]
    G[0] = [S(f"s_add_u32 s{sT4}, s{sTau}, {t*8192}"), S(f"s_and_b32 s{sT4}, s{sT4}, 0x1ffff"), S(f"s_add_u32 s{sT4}, s{sT4}, s{sKVbase}")] + G[0]
    return G
POL = ['']
def rot_off(u, unit, base):
    if not Cfg.rot: return [S(f"s_add_u32 s{sT4}, s{base}, {u*unit}")]
    if Cfg.rotn == 88:
        if u < 2: return [S(f"s_add_u32 s{sT4}, s{base}, {u*unit}")]
        return [S(f"s_add_u32 s{sT4}, s{sRho}, {u-2}"), S(f"s_and_b32 s{sT4}, s{sT4}, 7"), S(f"s_add_u32 s{sT4}, s{sT4}, 2"),
                S(f"s_mul_i32 s{sT4}, s{sT4}, {unit}"), S(f"s_add_u32 s{sT4}, s{sT4}, s{base}")]
    if Cfg.rotn == 19:
        if u < 1: return [S(f"s_add_u32 s{sT4}, s{base}, {u*unit}")]
        return [S(f"s_cmp_ge_u32 s{sRho}, {10-u}"), S(f"s_cselect_b32 s{sT4}, {u-9}, {u}"), S(f"s_add_u32 s{sT4}, s{sT4}, s{sRho}"),
                S(f"s_mul_i32 s{sT4}, s{sT4}, {unit}"), S(f"s_add_u32 s{sT4}, s{sT4}, s{base}")]
    return [S(f"s_cmp_ge_u32 s{sRho}, {10-u}"), S(f"s_cselect_b32 s{sT4}, {u-10}, {u}"), S(f"s_add_u32 s{sT4}, s{sT4}, s{sRho}"),
            S(f"s_mul_i32 s{sT4}, s{sT4}, {unit}"), S(f"s_add_u32 s{sT4}, s{sT4}, s{base}")]
def dma_w(w, s, nxt_round, tag):
    lds = wslot(s)
    goff = (s & 1) * 32 * 8192 + (512 if nxt_round else 0)
    G = []
    for hh in range(2):
        for seg in range(2):
            G.append([S(f"s_add_u32 m0, s{sLdsKV}, {lds + hh*4096 + seg*2048 - seg*128}"),
                      S(f"s_add_u32 s{sT0}, s{sT4}, {goff + hh*32768}"),
                      dma(w.vW, sW, f"s{sT0}", seg * 128, POL[0], tag=tag)])
    G[0] = rot_off(s >> 1, 64 * 8192, sWbase) + G[0]
    return G
def dma_x(w, u, tag):
    G = []
    for i in range(5):
        G.append([S(f"s_add_u32 m0, s{sLdsX}, {xbuf(u) + i*2048}"),
                  S(f"s_add_u32 s{sT0}, s{sT4}, {i*20480}"),
                  dma(w.vX, sX, f"s{sT0}", 0, POL[0], tag=tag)])
    G[0] = rot_off(u, 128, sXbase) + G[0]
    return G
def touch_kv(w, kind):
    srd_, ptr = (sK, sTK) if kind == 'K' else (sV, sTV)
    return [[bload(1, w.dummy, w.vTch, srd_, f"s{ptr}", 0, Cfg.touch_pol, tag=('misc',)), S(f"s_add_u32 s{ptr}, s{ptr}, 4096")]]

NAMES = {}
for _t in range(16):
    NAMES[kidx(_t)] = ('K', _t); NAMES[vidx(_t)] = ('V', _t)
def first_use(kind, i):
    if kind == 'W': return i
    if kind == 'X': return 2 * i
    if kind == 'K': return 20 if i == 0 else 19 + i
    if kind == 'V': return 21 + i
    if kind == 'O': return 3
    if kind == 'P': return 35

def loader_schedule(w):
    sch = {i: [] for i in range(37)}
    r0 = lambda G, lab: [[S(f"s_cmp_lg_u32 s{sRound}, 0"), branch("s_cbranch_scc1", lab)] + flat(G) + [label(lab)]]
    sch[0] += r0(dma_w(w, 2, False, ('W', 2, 'cond')), "L_r0a") + dma_x(w, 1, ('X', 1, False)) + r0(dma_w(w, 3, False, ('W', 3, 'cond')), "L_r0b")
    sch[1] += dma_w(w, 4, False, ('W', 4, False)) + dma_x(w, 2, ('X', 2, False))
    sch[2] += dma_w(w, 5, False, ('W', 5, False))
    if not Cfg.holes:
        for s in range(NW, 20): sch[max(s - NW + 1, 3)] += dma_w(w, s, False, ('W', s, False))
        for u in range(NX, 10): sch[2 * (u - NX) + 2] += dma_x(w, u, ('X', u, False))
    else:
        todo = sorted([(s, 'W', s, max(s - NW + 1, 3)) for s in range(NW, 20)] + [(2 * u - 0.5, 'X', u, 2 * (u - NX) + 2) for u in range(NX, 10)])
        load = {i: 0 for i in range(21)}; load[2] = 4
        cur = 2
        for need, kind, i, t0 in todo:
            n = 4 if kind == 'W' else 5
            t = max(t0, cur)
            while t in Cfg.holes or load[t] + n > Cfg.qcap: t += 1
            assert t <= need - 1.5, (kind, i, t)
            cur = t; load[t] += n
            sch[t] += dma_w(w, i, False, ('W', i, False)) if kind == 'W' else dma_x(w, i, ('X', i, False))
        print("Q load", load, file=sys.stderr)
    if not Cfg.no_dma:
        first = Cfg.first
        for n in range(10): sch[first[n]] += dma_kv(w, *NAMES[n], False, NAMES[n] + (False,))
        for n in range(10, 33):
            if n not in NAMES: continue
            k, t = NAMES[n - 10]
            last = (20 + t) if k == 'K' else min(22 + t, 36)
            rem = [m for m in range(10, 33) if m in NAMES]
            paced = 21 + int(rem.index(n) * Cfg.pace)
            when = max(last + 1, min(paced, first_use(*NAMES[n]) - Cfg.lead))
            sch[when] += dma_kv(w, *NAMES[n], False, NAMES[n] + (False,))
    for idx, ss in Cfg.wnext:
        for s_ in ss: sch[idx] += r0(dma_w(w, s_, True, ('W', s_, 'next')), f"L_r0w{s_}")
    w4first = lambda lab: [S(f"s_lshl_b32 s{sT1}, s{sRound}, 3"), S(f"s_add_u32 s{sT1}, s{sT1}, s{sWave}"), S(f"s_cmp_lg_u32 s{sT1}, 4"), branch("s_cbranch_scc1", lab)]
    sch[7] = [w4first("L_p0") + [S(f"s_mov_b32 s{sT1}, s{sFlag}") if Cfg.map84 else S(f"s_lshl_b32 s{sT1}, s{sB}, 3"), V(f"v_mov_b32 v{w.tmp+2}, s{sT1}"), bload(1, w.oPoll, w.tmp + 2, sDBG, 0, 0, 'sc1', tag=('cond',)), label("L_p0")]] + sch[7]
    sch[14] += [w4first("L_m0") + [V(f"v_readfirstlane_b32 s{sT1}, v{w.oPoll}"), S(f"s_bfe_u32 s{sT2}, s{sT1}, 0x80010"), S(f"s_lshr_b32 s{sT1}, s{sT1}, 24"),
                 S(f"s_bcnt1_i32_b32 s{sT1}, s{sT1}"), S(f"s_lshl_b32 s{sT1}, s{sT1}, 8"), S(f"s_or_b32 s{sT1}, s{sT1}, s{sT2}"), S(f"s_cmp_eq_u32 s{sT1}, 0x1ff"),
                 S(f"s_cselect_b32 s{sT1}, {(1 if Cfg.map84 else 3) if Cfg.fast else 0}, 0"), V(f"v_mov_b32 v{w.tmp+1}, s{sT1}"), V(f"v_mov_b32 v{w.tmp+2}, {MODE_LDS}"),
                 raw(f"ds_write_b32 v{w.tmp+2}, v{w.tmp+1}"), label("L_m0")]]
    for name, (idx, rnd) in Cfg.place2.items():
        t = w.tmp + 1
        if name == 'wo':
            body = lane_id(t) + [V(f"v_min_u32 v{t}, 39, v{t}"), V(f"v_lshlrev_b32 v{t}, 7, v{t}"), S(f"s_lshl_b32 s{sT1}, s2, 2"), S(f"s_add_u32 s{sT1}, s{sT1}, s{sWave}"),
                    S(f"s_sub_u32 s{sT1}, s{sT1}, 4"), S(f"s_mul_i32 s{sT1}, s{sT1}, 5120"), bload(1, w.dummy, t, sWO, f"s{sT1}", tag=('cond',))]
        elif name == 'tlb':
            sh = Cfg.tlbsh
            body = lane_id(t) + [V(f"v_and_b32 v{t}, {(131072 >> sh) - 1}, v{t}"), V(f"v_lshlrev_b32 v{t}, {sh}, v{t}"),
                    S(f"s_and_b32 s{sT1}, s{sWave}, 1"), S(f"s_lshl_b32 s{sT1}, s{sT1}, 18"), S(f"s_add_u32 s{sT1}, s{sT1}, s{sKVbase}"),
                    bload(1, w.dummy, t, sK, f"s{sT1}", 0, 'nt', tag=('cond',)), bload(1, w.dummy, t, sV, f"s{sT1}", 0, 'nt', tag=('cond',))]
        elif name == 'wq2':
            body = lane_id(t) + [V(f"v_lshrrev_b32 v{t+1}, 2, v{t}"), V(f"v_min_u32 v{t+1}, 4, v{t+1}"), V(f"v_and_b32 v{t}, 3, v{t}"), V(f"v_lshlrev_b32 v{t}, 7, v{t}"),
                    V(f"v_lshl_add_u32 v{t}, v{t+1}, 13, v{t}"), S(f"s_lshl_b32 s{sT1}, s{sB}, 2"), S(f"s_add_u32 s{sT1}, s{sT1}, s{sWave}"), S(f"s_sub_u32 s{sT1}, s{sT1}, 4"),
                    S(f"s_mul_i32 s{sT1}, s{sT1}, {5*8192}"), S(f"s_lshl_b32 s{sT2}, s{sG}, 10"), S(f"s_add_u32 s{sT1}, s{sT1}, s{sT2}"),
                    bload(1, w.dummy, t, sW, f"s{sT1}", 512, tag=('cond',))]
        else:
            body = lane_id(t) + [V(f"v_lshlrev_b32 v{t}, 7, v{t}"), V(f"v_min_u32 v{t}, {SLAB-128}, v{t}"),
                    S(f"s_lshl_b32 s{sT1}, s2, 3"), S(f"s_add_u32 s{sT1}, s{sT1}, s{sWave}"), S(f"s_mul_i32 s{sT1}, s{sT1}, {SLAB}"), S(f"s_add_u32 s{sT1}, s{sT1}, {XCH_OFF}"),
                    bload(1, w.dummy, t, sWS, f"s{sT1}", 0, 'sc1', tag=('cond',)), S(f"s_sub_u32 s{sT1}, s{sT1}, {4*SLAB}"), bload(1, w.dummy, t, sWS, f"s{sT1}", 0, 'sc1', tag=('cond',))]
        sch[idx] += [[S(f"s_cmp_lg_u32 s{sRound}, {rnd}"), branch("s_cbranch_scc1", f"L_p2{name}")] + body + [label(f"L_p2{name}")]]
    mr = mode_read(w.T)
    sch[17] = [mr[0]] + sch[17]; sch[18] = [mr[1]] + sch[18]
    w4last = lambda lab: [S(f"s_lshl_b32 s{sT1}, s{sRound}, 3"), S(f"s_add_u32 s{sT1}, s{sT1}, s{sWave}"), S(f"s_cmp_lg_u32 s{sT1}, 12"), branch("s_cbranch_scc1", lab)]
    sch[29] = [w4last("L_p1") + [V(f"v_mov_b32 v{w.tmp+2}, s{sFlag}"), bload(1, w.oPoll, w.tmp + 2, sDBG, 0, 0, 'sc1', tag=('cond',)), label("L_p1")]] + sch[29]
    sch[34] += [w4last("L_g1_back") + gate("L_g1", w.oPoll, w.tmp + 2, 0) + [label("L_g1_back")]]
    for u in range(2):
        alt = flat(dma_x(w, 0, ('X', 0, 'next'))) if u == 0 else []
        sch[35 + u] += [[S(f"s_cmp_lg_u32 s{sRound}, 0"), branch("s_cbranch_scc1", f"L_opre{u}")] + alt + [label(f"L_opre{u}_back"), I("; opre", 'comment', tag=('phantom', 0 if Cfg.o_skip else 10))]]
    if not Cfg.no_dma:
        for i, idx in enumerate(sorted(Cfg.touch_at)): sch[idx] += touch_kv(w, 'KV'[i & 1])
        for idx, goff in Cfg.tbatch:
            sch[idx] += [[S(f"s_add_u32 s{sT0}, s{sTau}, {goff}"), S(f"s_and_b32 s{sT0}, s{sT0}, 0x1ffff"), S(f"s_add_u32 s{sT0}, s{sT0}, s{sKVbase}"), bload(1, w.dummy, w.vTch, sK, f"s{sT0}", 0, Cfg.touch_pol, tag=('misc',)),
                          bload(1, w.dummy, w.vTch, sV, f"s{sT0}", 0, Cfg.touch_pol, tag=('misc',))]]
    return sch

def lane_id(r): return [V(f"v_mbcnt_lo_u32_b32 v{r}, -1, 0"), V(f"v_mbcnt_hi_u32_b32 v{r}, -1, v{r}")]
def lane_setup(w):
    t = w.F + 8
    lane, i16, g, a, b, c = t, t + 1, t + 2, t + 3, t + 4, t + 5
    o = lane_id(lane) + [V(f"v_and_b32 v{i16}, 15, v{lane}"), V(f"v_lshrrev_b32 v{g}, 4, v{lane}")]
    o += [V(f"v_lshrrev_b32 v{a}, 1, v{i16}"), V(f"v_xor_b32 v{a}, v{a}, v{g}"), V(f"v_lshlrev_b32 v{a}, 4, v{a}"),
          V(f"v_lshl_add_u32 v{w.aN}, v{i16}, 7, v{a}"), V(f"v_xor_b32 v{w.aN+1}, 64, v{w.aN}")]
    o += [V(f"v_lshrrev_b32 v{a}, 2, v{lane}"), V(f"v_and_b32 v{b}, 6, v{a}"),
          V(f"v_bfe_u32 v{c}, v{lane}, 1, 1"), V(f"v_xor_b32 v{b}, v{b}, v{c}"), V(f"v_lshlrev_b32 v{b}, 4, v{b}"),
          V(f"v_lshl_add_u32 v{b}, v{a}, 7, v{b}"),
          V(f"v_and_b32 v{c}, 1, v{lane}"), V(f"v_lshl_add_u32 v{w.aT}, v{c}, 3, v{b}")]
    for dq in range(1, 4): o.append(V(f"v_xor_b32 v{w.aT+dq}, {dq<<5}, v{w.aT}"))
    return o
def voff_setup(w):
    t = w.F + 16
    r8, p, a, b, row = t, t + 1, t + 2, t + 3, t + 4
    o = [V(f"v_bfe_u32 v{row}, v0, 3, 4"),
         V(f"v_and_b32 v{p}, 7, v0"),
         V(f"v_lshrrev_b32 v{a}, 1, v{row}"), V(f"v_xor_b32 v{a}, v{a}, v{p}"), V(f"v_lshlrev_b32 v{a}, 4, v{a}"),
         V(f"v_and_b32 v{b}, 6, v{row}"), V(f"v_xor_b32 v{b}, v{b}, v{p}"), V(f"v_lshlrev_b32 v{b}, 4, v{b}"),
         V(f"v_and_b32 v{p}, 12, v{row}"), V(f"v_add_u32 v{p}, v{p}, v{row}"), V(f"v_lshl_add_u32 v{w.vW}, v{p}, 13, v{b}"),
         V(f"v_mul_u32_u24 v{p}, 1280, v{row}"), V(f"v_add_u32 v{w.vX}, v{p}, v{a}")]
    o2 = [V(f"v_lshl_add_u32 v{w.vK}, v{row}, 8, v{a}"), V(f"v_lshl_add_u32 v{w.vV}, v{row}, 8, v{b}"),
          V(f"v_and_b32 v{p}, 63, v0"), V(f"v_lshlrev_b32 v{p}, 6, v{p}"), V(f"v_bfe_u32 v{r8}, v0, 6, 1"), V(f"v_lshl_add_u32 v{w.vTch}, v{r8}, 12, v{p}")]
    return o, o2

def add_addr(regs_, delta):
    if delta == 0: return []
    if isinstance(delta, str): return [V(f"v_add_u32 v{r}, {delta}, v{r}") for r in regs_]
    return [V(f"v_add_u32 v{r}, {delta & 0xffffffff:#x}, v{r}") for r in regs_]

def to_w(w, cur):
    t = w.T
    return add_addr([w.aT + 2, w.aT + 3], item_slot(vidx(0)) - cur) + add_addr([w.aT], wslot(0) - cur) + [
        V(f"v_bfe_u32 v{t}, v{w.aT}, 3, 2"), V(f"v_and_b32 v{w.aT}, 0xffffffe7, v{w.aT}"), V(f"v_lshlrev_b32 v{t}, 4, v{t}"),
        V(f"v_xor_b32 v{w.aT}, v{w.aT}, v{t}"), V(f"v_xor_b32 v{w.aT+1}, 64, v{w.aT}")]
def to_v(w): return [V(f"v_xor_b32 v{w.aT}, 64, v{w.aT+2}"), V(f"v_xor_b32 v{w.aT+1}, 64, v{w.aT+3}")]

def finish(code, pending=None, pre=()):
    c, q = add_lgkm_waits(code, pending)
    return fix_hazards(c, pre), q

def loop_finish(B, q, before):
    B1, q1 = finish(B, q, pre=before[-12:])
    B2, q2 = finish(B, q1, pre=B1[-12:])
    B3, q3 = finish(B, q2, pre=B2[-12:])
    assert emit(B2) == emit(B3) and q2 == q3
    assert len(q) <= len(q2) and q == q2[len(q2) - len(q):], "entry LDS queue must be a suffix of the steady-state queue"
    B4 = fix_hazards(B2, before[-12:])
    assert emit(fix_hazards(B4, B4[-12:])) == emit(B4)
    return B4, q2

def srd(base, ptr, nbytes):
    return [S(f"s_mov_b32 s{base}, s{ptr}"), S(f"s_mov_b32 s{base+1}, s{ptr+1}"), S(f"s_mov_b32 s{base+2}, {nbytes}"), S(f"s_mov_b32 s{base+3}, 0x20000")]

def round_advance():
    return [S(f"s_add_u32 s{sKVbase}, s{sKVbase}, 262144"), S(f"s_add_u32 s{sWbase}, s{sWbase}, 512"),
            S(f"s_add_u32 s{sOst}, s{sOst}, {8*10240}"), S(f"s_add_u32 s{sRound}, s{sRound}, 1"), S(f"s_cmp_lt_u32 s{sRound}, 2")]

def flag_add(t, val, lab):
    return [V(f"v_mov_b32 v{t}, {val}"), V(f"v_mov_b32 v{t+1}, s{sFlag}"), S("s_mov_b64 exec, 1"),
            I(f"buffer_atomic_or v{t}, v{t+1}, s[{sDBG}:{sDBG+3}], 0 offen sc1", 'vstore', rd=regs(t, 2) | regs(sDBG, 4, 's'), tag=('cond',)),
            S("s_mov_b64 exec, -1"), label(lab)]

def common_scalars():
    C = srd(sK, 58, 134217728) + srd(sV, 60, 134217728) + srd(sWO, 64, 5242880) + srd(sOUT, 66, 6553600) + srd(sDBG, 68, 256) \
        + srd(sWS, 70, (160 << 20) if Cfg.stamps else WS_BYTES)
    C += [S(f"s_lshr_b32 s{sT2}, s{sWbase}, 8"),
          S(f"s_lshl_b32 s{sT3}, s{sB}, 5"), S(f"s_add_u32 s{sT3}, s{sT3}, s{sT2}"), S(f"s_lshl_b32 s{sKVbase}, s{sT3}, 17"),
          S(f"s_mul_i32 s{sOst}, s{sT3}, 40960"),] + ([S(f"s_and_b32 s{sKVbase}, s{sKVbase}, 0x20000")] if Cfg.kv_same else []) + [
          S(f"s_lshl_b32 s{sFlag}, s{sB}, 1"), S(f"s_lshr_b32 s{sT2}, s{sG}, 2"), S(f"s_add_u32 s{sFlag}, s{sFlag}, s{sT2}"), S(f"s_lshl_b32 s{sFlag}, s{sFlag}, 2"),
          S(f"s_mul_i32 s{sTau}, s{sT3}, {Cfg.taumul}"), S(f"s_lshr_b32 s{sT2}, s{sT3}, {Cfg.taush}"), S(f"s_add_u32 s{sTau}, s{sTau}, s{sT2}"),
          S(f"s_and_b32 s{sTau}, s{sTau}, {Cfg.taumask}"), S(f"s_lshl_b32 s{sTau}, s{sTau}, 13"),
          S(f"s_mov_b32 s{sRound}, 0"), S(f"s_mov_b32 s{sMode}, 0"), S(f"s_mov_b32 s{sQS}, {f2u(QSCALE)}"), S(f"s_mov_b32 s{sC16}, {WTAB:#x}"), S(f"s_mov_b32 s{sC32}, {2*SLOT}"),
          S(f"s_mov_b32 s{sCX}, 20480"), S(f"s_mov_b32 s{sTK}, s{sKVbase}"), S(f"s_mov_b32 s{sTV}, s{sKVbase}")]
    if Cfg.stamps:
        C += [S(f"s_lshl_b32 s{sStamp+2}, s2, 3"), S(f"s_add_u32 s{sStamp+2}, s{sStamp+2}, s{sWave}"), S(f"s_lshl_b32 s{sStamp+2}, s{sStamp+2}, 10"),
              S(f"s_add_u32 s{sStamp+2}, s{sStamp+2}, {DBG_OFF}")]
    return C
def wave_addr0(w, j0mul, j0add):
    aN = [w.aN, w.aN + 1]; aT = [w.aT + i for i in range(4)]
    C = [S(f"s_bfe_u32 s{sT0}, s{sWave}, 0x10001"), S(f"s_lshl_b32 s{sT0}, s{sT0}, 13"),
         S(f"s_and_b32 s{sT1}, s{sWave}, 1"), S(f"s_mul_i32 s{sT1}, s{sT1}, {j0mul*1024}"), S(f"s_add_u32 s{sT1}, s{sT1}, {j0add*1024}"),
         S(f"s_add_u32 s{sOst}, s{sOst}, s{sT1}"), S(f"s_lshl_b32 s{sT1}, s{sT1}, 1"),
         S(f"s_sub_u32 s{sKX}, s{sT0}, s{sT1}"),
         S(f"s_add_u32 s{sT1}, s{sT1}, {xbuf(0)}")]
    return C + add_addr(aT, f"s{sT0}") + add_addr(aN, f"s{sT1}") + to_w(w, 0)

def gen_w3():
    w = Wave(3); nm = 24
    st = lambda k, real=False: stamp(w.tmp + 1, k, real)
    aN = [w.aN, w.aN + 1]; aT = [w.aT + i for i in range(4)]
    C = [label("L_w3"), raw("s_waitcnt lgkmcnt(0)")]
    if Cfg.codetouch:
        t = w.tmp + 1
        C += [raw(f"s_getpc_b64 s[{sRet}:{sRet+1}]"), label("L_pc0"),
              S(f"s_sub_u32 s{sRet}, s{sRet}, L_pc0-KSTART"), S(f"s_subb_u32 s{sRet+1}, s{sRet+1}, 0"),
              S(f"s_lshr_b32 s{sT0}, s2, 3"), S(f"s_lshl_b32 s{sT0}, s{sT0}, 2"), S(f"s_add_u32 s{sT0}, s{sT0}, s{sWave}"), S(f"s_lshl_b32 s{sT0}, s{sT0}, 7"),
              V(f"v_and_b32 v{t}, 7, v0"), V(f"v_lshlrev_b32 v{t}, 14, v{t}"), V(f"v_add_u32 v{t}, s{sT0}, v{t}"),
              V(f"v_min_u32 v{t}, KEND-KSTART-4, v{t}"),
              I(f"global_load_dword v{w.dummy}, v{t}, s[{sRet}:{sRet+1}]", 'vload', wr=regs(w.dummy), rd=regs(t) | regs(sRet, 2, 's'))]
    if Cfg.warm0:
        t = w.tmp + 1
        C += srd(sW, 62, 5242880) + srd(sX, 56, 6553600)
        C += [V(f"v_and_b32 v{t}, 63, v0"), V(f"v_lshlrev_b32 v{t}, 7, v{t}"),
              S(f"s_mul_i32 s{sT0}, s{sB}, 204800"), S(f"s_mul_i32 s{sT1}, s{sG}, 25600"), S(f"s_add_u32 s{sT0}, s{sT0}, s{sT1}"),
              S(f"s_mul_i32 s{sT1}, s{sWave}, 5760"), S(f"s_add_u32 s{sT0}, s{sT0}, s{sT1}"),
              V(f"v_bfe_u32 v{t+1}, v0, 3, 3"), V(f"v_min_u32 v{t+1}, 4, v{t+1}"), V(f"v_lshlrev_b32 v{t+1}, 13, v{t+1}"),
              V(f"v_and_b32 v{w.T}, 7, v0"), V(f"v_lshl_add_u32 v{t+1}, v{w.T}, 7, v{t+1}"),
              S(f"s_lshl_b32 s{sT1}, s{sB}, 2"), S(f"s_add_u32 s{sT1}, s{sT1}, s{sWave}"), S(f"s_mul_i32 s{sT1}, s{sT1}, {5*8192}"),
              S(f"s_lshl_b32 s{sT2}, s{sG}, 10"), S(f"s_add_u32 s{sT1}, s{sT1}, s{sT2}"),
              barrier()] + ([bload(1, w.dummy, t + 1, sW, f"s{sT1}")] if Cfg.warm0 == 1 else []) + [bload(1, w.dummy, t, sX, f"s{sT0}")]
    C += common_scalars()
    t = w.tmp + 1
    C += [S(f"s_cmp_lg_u32 s{sWave}, 0"), branch("s_cbranch_scc1", "L_noxcc"), raw(f"s_getreg_b32 s{sT0}, hwreg(HW_REG_XCC_ID, 0, 3)"),
          S(f"s_lshl_b32 s{sT0}, 0x1000000, s{sT0}"), S(f"s_lshl_b32 s{sT1}, {0x110000 if Cfg.map84 else 0x10000}, s{sG}"), S(f"s_lshr_b32 s{sT2}, s{sT1}, {4 if Cfg.map84 else 0}"), S(f"s_or_b32 s{sT1}, s{sT1}, s{sT2}"), S(f"s_and_b32 s{sT1}, s{sT1}, 0xff0000"),
          S(f"s_or_b32 s{sT0}, s{sT0}, s{sT1}"), S(f"s_mov_b32 s{sT1}, s{sFlag}") if Cfg.map84 else S(f"s_lshl_b32 s{sT1}, s{sB}, 3"),
          V(f"v_mov_b32 v{t}, s{sT0}"), V(f"v_mov_b32 v{t+1}, s{sT1}"), S("s_mov_b64 exec, 1"),
          I(f"buffer_atomic_or v{t}, v{t+1}, s[{sDBG}:{sDBG+3}], 0 offen sc1", 'vstore', rd=regs(t, 2) | regs(sDBG, 4, 's')),
          S("s_mov_b64 exec, 0xff"), V(f"v_mul_u32_u24 v{t}, {SLAB}, v0"), V(f"v_mov_b32 v{t+1}, 0"), S(f"s_mul_i32 s{sT0}, s2, {XCH_WG}"), S(f"s_add_u32 s{sT0}, s{sT0}, {XCH_OFF + SLAB - 128}"),
          bstore(1, t + 1, t, sWS, f"s{sT0}", 0, 'sc1'),
          S("s_mov_b64 exec, -1"), label("L_noxcc")]
    C += lane_setup(w) + wave_addr0(w, 3, 0)
    def x_wo():
        t = w.tmp + 1
        return lane_id(t) + [V(f"v_min_u32 v{t}, 39, v{t}"), V(f"v_lshlrev_b32 v{t}, 7, v{t}"),
              S(f"s_lshl_b32 s{sT0}, s2, 2"), S(f"s_add_u32 s{sT0}, s{sT0}, s{sWave}"), S(f"s_mul_i32 s{sT0}, s{sT0}, 5120"), bload(1, w.dummy, t, sWO, f"s{sT0}")]
    def x_code():
        t = w.tmp + 1
        return [raw(f"s_getpc_b64 s[{sRet}:{sRet+1}]"), label("L_pc1"),
              S(f"s_add_u32 s{sRet}, s{sRet}, L_o-L_pc1"), S(f"s_addc_u32 s{sRet+1}, s{sRet+1}, 0")] + lane_id(t) + [
              S(f"s_lshl_b32 s{sT0}, s{sWave}, 13"), V(f"v_lshlrev_b32 v{t}, 7, v{t}"), V(f"v_add_u32 v{t}, s{sT0}, v{t}"), V(f"v_min_u32 v{t}, KEND-L_o-4, v{t}"),
              I(f"global_load_dword v{w.dummy}, v{t}, s[{sRet}:{sRet+1}]", 'vload', wr=regs(w.dummy), rd=regs(t) | regs(sRet, 2, 's'))]
    def x_slab():
        t = w.tmp + 1
        return lane_id(t) + [V(f"v_lshlrev_b32 v{t}, 7, v{t}"), V(f"v_min_u32 v{t}, {SLAB-128}, v{t}"),
              S(f"s_lshl_b32 s{sT0}, s2, 3"), S(f"s_add_u32 s{sT0}, s{sT0}, s{sWave}"), S(f"s_mul_i32 s{sT0}, s{sT0}, {SLAB}"), S(f"s_add_u32 s{sT0}, s{sT0}, {XCH_OFF}"),
              bload(1, w.dummy, t, sWS, f"s{sT0}", 0, 'sc1'), S(f"s_add_u32 s{sT0}, s{sT0}, {4*SLAB}"), bload(1, w.dummy, t, sWS, f"s{sT0}", 0, 'sc1')]
    def x_jit():
        return [S(f"s_mul_i32 s{sT0}, s2, 11"), S(f"s_and_b32 s{sT0}, s{sT0}, 31"), label("L_jit"), raw(f"s_sleep {Cfg.jit}"), S(f"s_sub_u32 s{sT0}, s{sT0}, 1"), branch("s_cbranch_scc0", "L_jit")]
    def x_wo2():
        r = [i if i.kind != 'vload' else bload(1, w.dummy, w.tmp + 1, sWO, f"s{sT0}", 0, Cfg.wo2pol) for i in x_wo()]
        r[2] = V(f"v_min_u32 v{w.tmp+1}, {Cfg.wo2n}, v{w.tmp+1}")
        return r
    def extras(where):
        out_ = []
        for name, fn in (('wo', x_wo), ('code', x_code), ('slab', x_slab), ('jit', x_jit), ('wo2', x_wo2)):
            pl = Cfg.place.get(name)
            if pl and pl[0] == where:
                out_ += [S(f"s_cmp_lg_u32 s{sRound}, {pl[1]}"), branch("s_cbranch_scc1", f"L_ex_{name}")] + fn() + [label(f"L_ex_{name}")]
        return out_
    C, _ = finish(C)
    out = C
    def wadv():
        return [S(f"s_bfe_i32 s{sD}, s{sC16}, s{sCnt}"), S(f"s_lshl_b32 s{sD}, s{sD}, 14"), S(f"s_add_u32 s{sCnt}, s{sCnt}, 4"),
                S(f"s_cmp_eq_u32 s{sCnt}, {0x40000 + 4*NW:#x}"), S(f"s_cselect_b32 s{sCnt}, 0x40000, s{sCnt}")] + add_addr(aT[:2], f"s{sD}")
    def xadv():
        return [S(f"s_add_u32 s{sCnt2}, s{sCnt2}, 1"), S(f"s_cmp_eq_u32 s{sCnt2}, {NX}"), S(f"s_cselect_b32 s{sXd}, {(-(NX-1)*20480) & 0xffffffff:#x}, s{sCX}"),
                S(f"s_cselect_b32 s{sCnt2}, 0, s{sCnt2}")] + add_addr(aN, f"s{sXd}")
    def qstage(s, zero=False, extra=()):
        p = s & 1
        adv_ = wadv() + (xadv() if p == 1 else []) + list(extra)
        L = [barrier()] + spread(q_mfmas(w, 1 - p, zero), [(q_reads(w, p, p), 0, Cfg.qr3), (one(adv_), Cfg.qr3 + 1, 23)]) + [wait(lgkm=0)]
        k = [i for i, c in enumerate(L) if c.kind == 'mfma'][Cfg.qcut]
        return L[:k], L[k:]
    C = [label("L_w3_round")] + st(0) + [barrier()] + st(1)
    C += flat(q_reads(w, 0, 0))
    C += add_addr(aT[:2], wslot(1) - wslot(0))
    C += [S(f"s_mov_b32 s{sCnt}, 0x40004"), S(f"s_mov_b32 s{sCnt2}, {(xbuf(0)-NW*SLOT)//20480}"), S(f"s_mov_b32 s{sLoop}, 8")]
    C += [wait(lgkm=0)]
    h1, t1 = qstage(1, zero=True); he, te = qstage(2); ho, to = qstage(3)
    C += h1 + t1 + [wait(vm=0)] + extras('Q2') + he
    C, q = finish(C); out += C
    B = [label("L_w3_q")] + te + ho + to + he
    B += [S(f"s_sub_u32 s{sLoop}, s{sLoop}, 1"), S(f"s_cmp_lg_u32 s{sLoop}, 0"), branch("s_cbranch_scc1", "L_w3_q")]
    Bc, q2 = loop_finish(B, q, out)
    out += Bc
    curT = wslot(20); curN = xbuf(10)
    h19, t19 = qstage(19, extra=add_addr(aN, f"s{sKX}") + add_addr(aN, item_slot(kidx(0)) - curN) + to_v(w))
    mr = mode_read(w.T)
    C = mr[0] + te + mr[1] + extras('Q18') + h19 + t19
    C += st(40) + [barrier()] + st(41)
    k0 = frags_QK(w, 'zero')
    k1 = frags_QK(w, 'negm', pre=add_addr(aN, item_slot(kidx(1)) - item_slot(kidx(0))))
    w.fpos = 0
    C += stream(w, k0, 0, k1, lead=q_mfmas(w, 1, False), fillers=q_pack_fillers(w))
    C += first_max(w)
    C += st(42) + [barrier()] + st(43)
    C += flat(softmax_groups(w, 0)) + l_accum(w, first=True)
    v0 = frags_PV(w, 0, zero=True)
    C += extras('A0')
    C += [S(f"s_mov_b32 s{sKpos}, {item_slot(kidx(1))}"), S(f"s_mov_b32 s{sVpos}, {item_slot(vidx(0))}"), S(f"s_mov_b32 s{sLoop}, 7")]
    def adv(pos, rr):
        return [S(f"s_cmp_ge_u32 s{pos}, {LDS_BYTES - 2*SLOT}"), S(f"s_cselect_b32 s{sD}, {(2*SLOT - LDS_BYTES) & 0xffffffff:#x}, s{sC32}"),
                S(f"s_add_u32 s{pos}, s{pos}, s{sD}")] + add_addr(rr, f"s{sD}")
    def pv(par): return frags_PV(w, par, pre=adv(sVpos, aT))
    def qk(): return frags_QK(w, 'negm', pre=adv(sKpos, aN))
    E_ = 8 - Cfg.late
    def sm_part(late, par, extra=()):
        G = softmax_groups(w, par) + [check_cmp(w)]
        nl = 3 * len(late)
        cut = int(len(G) * Cfg.smpure) if Cfg.late < 8 else 0
        return flat(G[:cut]) + stream(w, late, Cfg.LA, qk(), fillers=[(G[cut:], 0, max(nl - Cfg.smend, 1))] + list(extra)) + check_branch(w, par)
    C += stream(w, k1 + v0[:E_], Cfg.LA, v0[E_:] + qk())
    C += st(44) + [barrier()] + st(45)
    C += sm_part(v0[E_:], 1)
    C, q = finish(C, q2, pre=out[-12:]); out += C
    B = [label("L_w3_a")]
    for par in (1, 0):
        B += stream(w, qk() + pv(par)[:E_], Cfg.LA, pv(par)[E_:] + qk(), fillers=[(one(l_accum(w)), 4, 10)])
        B += [barrier()]
        B += sm_part(pv(par)[E_:], 1 - par)
    B += [S(f"s_sub_u32 s{sLoop}, s{sLoop}, 1"), S(f"s_cmp_lg_u32 s{sLoop}, 0"), branch("s_cbranch_scc1", "L_w3_a")]
    Bc, q2 = loop_finish(B, q, out)
    out += Bc
    C = st(74) + l_accum(w) + mode_vcc() + extras('A15')
    C += stream(w, pv(1), 0, [], fillers=epi_fillers(w))
    C += st(75) + st(77, True)
    curT = item_slot(vidx(15)); curN = item_slot(kidx(16))
    C += to_w(w, curT) + add_addr(aN, xbuf(0) - curN) + [V(f"v_subrev_u32 v{r}, s{sKX}, v{r}") for r in aN]
    C += round_advance()
    C += [branch("s_cbranch_scc1", "L_w3_round"), branch("s_branch", "L_o")]
    C, q = finish(C, q2, pre=out[-12:]); out += C
    assert not q
    return out, rare_routine(w, 0) + rare_routine(w, 1)

def gen_w2():
    w = Wave(2); nm = 16
    st = lambda k, real=False: stamp(w.tmp + 1, k, real)
    aN = [w.aN, w.aN + 1]; aT = [w.aT + i for i in range(4)]
    POL[0] = Cfg.wx_pol
    sch = loader_schedule(w)
    items = lambda idx: sch[idx]
    vo1, vo2 = voff_setup(w)
    en = lambda r: [raw(f"s_memtime s[{r}:{r+1}]")] if Cfg.ent else []
    pro = vo1 + [raw("s_waitcnt lgkmcnt(0)")] + en(94) + srd(sW, 62, 5242880) + srd(sX, 56, 6553600)
    POL[0] = Cfg.pro_pol
    pro += flat(dma_w(w, 0, False, ('W', 0, True))) + flat(dma_x(w, 0, ('X', 0, True))) + flat(dma_w(w, 1, False, ('W', 1, True))) + ([barrier()] if Cfg.warm0 else [])
    pro += en(96)
    pro += vo2 + [V(f"v_mov_b32 v{w.oVoff}, 0"), V(f"v_mov_b32 v{w.oPoll}, 0")] + common_scalars() + lane_setup(w) + wave_addr0(w, 2, 6)
    if Cfg.ent:
        pro += en(98) + [raw("s_waitcnt lgkmcnt(0)"), V(f"v_mov_b32 v{w.tmp+2}, 0")]
        for i, r in enumerate((92, 94, 96, 98, 100)): pro += [V(f"v_mov_b32 v{w.tmp+1}, s{r}"), bstore(1, w.tmp + 1, w.tmp + 2, sWS, f"s{sStamp+2}", 4 * (120 + i), tag=('misc',))]
    C = [label("L_w2_round")] + st(76, True)
    def bar(idx, lgkm=None):
        b = wait(vm=63, lgkm=lgkm); b.tag = (('need', idx), lgkm)
        return st(2 * idx) + [b, barrier()] + st(2 * idx + 1)
    prio = lambda p: [raw(f"s_setprio {p}")] if Cfg.prio == 2 else []
    curT = wslot(0); curN = xbuf(0)
    C += prio(Cfg.qprio)
    if Cfg.q0soft: C += [S(f"s_cmp_lg_u32 s{sRound}, 0"), branch("s_cbranch_scc1", "L_q0p"), raw("s_setprio 0"), label("L_q0p")]
    for s in range(20):
        if Cfg.q0soft and s == Cfg.q0soft: C += prio(Cfg.qprio)
        if Cfg.q0sleep and s < Cfg.q0n: C += [S(f"s_cmp_lg_u32 s{sRound}, 0"), branch("s_cbranch_scc1", f"L_q0s{s}"), raw(f"s_sleep {Cfg.q0sleep}"), label(f"L_q0s{s}")]
        if s < 19:
            newT = wslot(s + 1); newN = xbuf((s + 1) >> 1)
            adv_ = add_addr(aT[:2], newT - curT) + add_addr(aN, newN - curN); curT, curN = newT, newN
        else:
            adv_ = add_addr(aN, f"s{sKX}") + add_addr(aN, item_slot(kidx(0)) - curN) + to_v(w)
        C += bar(s, lgkm=0)
        ex = []
        if s == 3:
            ex = [([[S(f"s_lshl_b32 s{sT1}, s{sRound}, 3"), S(f"s_add_u32 s{sT1}, s{sT1}, s{sWave}"), S(f"s_cmp_lg_u32 s{sT1}, 12"),
                     branch("s_cbranch_scc1", "L_nofl1"), S(f"s_and_b32 s{sT1}, s{sG}, 3"), S(f"s_lshl_b32 s{sT1}, 1, s{sT1}")] + flag_add(w.tmp + 1, f"s{sT1}", "L_nofl1")], 11, 12)]
        if s == 0: C += flat(q_reads(w, 0, 0)) + flat(items(0)) + adv_
        else: C += spread(q_mfmas(w, (s - 1) & 1, s == 1), [(q_reads(w, s & 1, s & 1), 0, Cfg.qr2), (items(s), Cfg.qd0, nm - 2), (one(adv_), Cfg.qr2 + 1, 16)] + ex)
    C += bar(20, lgkm=0)
    def qk(t, fc='negm'): return frags_QK(w, fc, pre=add_addr(aN, item_slot(kidx(t)) - item_slot(kidx(t - 1))) if t else [])
    def pv(t): return frags_PV(w, t & 1, zero=(t == 0), pre=add_addr(aT, item_slot(vidx(t)) - item_slot(vidx(t - 1))) if t else [])
    w.fpos = 0
    C += stream(w, qk(0, 'zero'), 0, qk(1), lead=q_mfmas(w, 1, False), fillers=[(items(20), 0, 2 * nm)] + q_pack_fillers(w))
    C += first_max(w)
    C += flat(softmax_groups(w, 0))
    for t in range(15):
        nx = qk(t + 2) if t < 14 else []
        if Cfg.pp:
            C += prio(Cfg.pp_a)
            C += bar(21 + t)
            C += stream(w, qk(t + 1) + pv(t), Cfg.LA, nx, fillers=[(one(l_accum(w, first=(t == 0))), 3, 8)])
            C += prio(Cfg.pp_b)
            G = softmax_groups(w, (t + 1) & 1) + [check_cmp(w)]
            sm = [g for g in G]
            it_ = items(21 + t)
            base = [I("; g", 'comment') for _ in sm]
            merged = spread(base, [(it_, 0, len(sm))])
            k = 0
            for c in merged:
                if c.kind == 'comment' and c.text == "; g": C += sm[k]; k += 1
                else: C.append(c)
            C += check_branch(w, (t + 1) & 1)
        else:
            C += prio(0)
            if 21 + t in Cfg.drain: C += [wait(vm=Cfg.drain[21 + t])]
            C += bar(21 + t)
            it_ = items(21 + t); h = (len(it_) * Cfg.dsplit + 99) // 100
            C += stream(w, qk(t + 1), Cfg.LA, pv(t), fillers=[(it_[:h], 0, nm), (one(l_accum(w, first=(t == 0))), 3, 8)])
            C += prio(1)
            C += stream(w, pv(t), Cfg.LA, nx, fillers=[(it_[h:], 1, nm + 1)] + sm_fillers(w, (t + 1) & 1, 2))
            C += check_branch(w, (t + 1) & 1)
    C += prio(0)
    C += bar(36)
    C += flat(items(36))
    C += st(74) + l_accum(w) + mode_vcc()
    C += stream(w, pv(15), 0, [], fillers=epi_fillers(w))
    C += st(75) + st(77, True)
    curT = item_slot(vidx(15)); curN = item_slot(kidx(15))
    C += to_w(w, curT) + add_addr(aN, xbuf(0) - curN) + [V(f"v_subrev_u32 v{r}, s{sKX}, v{r}") for r in aN]
    C += round_advance()
    C += [branch("s_cbranch_scc1", "L_w2_round"), branch("s_branch", "L_o")]
    VM = ('dma', 'vload', 'vstore')
    def resolve(prefix, first):
        res = {}
        q = [(c.tag[0], c.tag[1]) if len(c.tag) == 3 and c.tag[2] in (True, 'next') else None for c in prefix if c.kind in VM and c.tag != ('cond',)]
        for c in C:
            if c.kind in VM:
                if c.tag == ('cond',): continue
                if c.tag[-1] in ('cond', 'next') and not first: continue
                q.append((c.tag[0], c.tag[1]) if len(c.tag) == 3 and c.tag[2] in (False, 'cond') else None)
            elif c.kind == 'comment' and c.tag and c.tag[0] == 'phantom':
                if not first: q += [None] * c.tag[1]
            elif c.kind == 'wait' and isinstance(c.tag[0], tuple):
                idx = c.tag[0][1]
                last = -1
                for k, it in enumerate(q):
                    if it is not None and first_use(it[0], it[1]) <= idx: last = k
                res[idx] = min(63, len(q) - 1 - last)
        return res
    r1 = resolve(pro, True); r2 = resolve(C, False)
    C2 = []
    for c in C:
        if c.kind == 'wait' and isinstance(c.tag[0], tuple):
            idx = c.tag[0][1]; n = min(r1[idx], r2[idx]); lg = c.tag[1]
            if abs(r1[idx] - r2[idx]) > 1:
                C2 += [S(f"s_cmp_eq_u32 s{sRound}, {0 if r1[idx] > r2[idx] else 1}"), branch("s_cbranch_scc1", f"L_rw{idx}"), wait(vm=n), label(f"L_rw{idx}")]
                n = max(r1[idx], r2[idx])
            c.text = f"s_waitcnt vmcnt({n})" + (f" lgkmcnt({lg})" if lg is not None else ""); c.tag = (n, lg)
        C2.append(c)
    C = C2
    pro, _ = finish(pro)
    C, q = finish(C, [], pre=pro[-12:])
    assert not q
    return pro + C + gen_opre(w), rare_routine(w, 0) + rare_routine(w, 1)

OSLOT = 40960
def oslot(u): return ((u + 2) & 3) * OSLOT
def o_voff(nh, VOFF, lane, a, b):
    if nh == 1 and Cfg.fake_wot:
        return [V(f"v_lshrrev_b32 v{a}, 2, v{lane}"), V(f"v_mul_u32_u24 v{a}, 320, v{a}"), V(f"v_and_b32 v{VOFF}, 3, v{lane}"), V(f"v_lshl_add_u32 v{VOFF}, v{VOFF}, 4, v{a}")]
    if nh == 0: return [V(f"v_lshlrev_b32 v{VOFF}, 4, v{lane}")]
    return [V(f"v_lshrrev_b32 v{a}, 2, v{lane}"), V(f"v_mul_u32_u24 v{a}, 1280, v{a}"), V(f"v_bfe_u32 v{b}, v{lane}, 4, 1"), V(f"v_lshlrev_b32 v{b}, 1, v{b}"),
            V(f"v_and_b32 v{VOFF}, 3, v{lane}"), V(f"v_xor_b32 v{VOFF}, v{VOFF}, v{b}"), V(f"v_lshl_add_u32 v{VOFF}, v{VOFF}, 4, v{a}")]
def o_base(nh, sBase, sLd):
    C = [S(f"s_and_b32 s{sLd}, s{sWave}, 1"), S(f"s_mul_i32 s{sLd}, s{sLd}, 5120")]
    if nh == 0: C += [S(f"s_mul_i32 s{sBase}, s{sB}, {128*10240}"), S(f"s_add_u32 s{sBase}, s{sBase}, s{sLd}")]
    else: C += [S(f"s_lshl_b32 s{sBase}, s{sLd}, 2"), S(f"s_and_b32 s{sT2}, s{sG}, 3"), S(f"s_mul_i32 s{sT2}, s{sT2}, {5120 if Cfg.fake_wot else 320}"), S(f"s_add_u32 s{sBase}, s{sBase}, s{sT2}"),
                S(f"s_add_u32 s{sLd}, s{sLd}, 10240")]
    step = 10240 if nh == 0 else 40960
    C += [S(f"s_add_u32 s{sT3}, s{sG}, s{sB}")] if Cfg.orot else [S(f"s_mov_b32 s{sT3}, 0")]
    for u in range(4):
        C += [S(f"s_add_u32 s{sT2}, s{sT3}, {u}"), S(f"s_and_b32 s{sT2}, s{sT2}, 3"), S(f"s_mul_i32 s{sOoff+u}, s{sT2}, {step}")]
    return C
def o_dma(nh, u, VOFF, sSo, sLd, goff=0, loff=0, srd_=None):
    step = 10240 if nh == 0 else 40960
    G = []
    if Cfg.o_skip & (1 << nh): return G
    for i in range(5):
        if nh == 0:
            imm = (i & 3) * 1024; ex = (i >> 2) * 4096
            g = [S(f"s_add_u32 m0, s{sLd}, {oslot(u) + ex + loff}"), S(f"s_add_u32 s{sT0}, s{sSo}, s{sOoff+u}")] + ([S(f"s_add_u32 s{sT0}, s{sT0}, {ex + goff}")] if ex + goff else []) if imm == 0 else []
            G.append(g + [dma(VOFF, srd_ or sWS, f"s{sT0}", imm, Cfg.old_pol)])
        else:
            g = [S(f"s_add_u32 m0, s{sLd}, {oslot(u) + i*1024 - i*64 + loff}")]
            if i == 0: g += [S(f"s_add_u32 s{sT0}, s{sSo}, s{sOoff+u}")] + ([S(f"s_add_u32 s{sT0}, s{sT0}, {goff}")] if goff else [])
            G.append(g + [dma(VOFF, srd_ or sWO, f"s{sT0}", i * 64)])
    return G
def gate(lab, POLL, vfl, shift):
    return [V(f"v_readfirstlane_b32 s{sT2}, v{POLL}"), S(f"s_bfe_u32 s{sT2}, s{sT2}, {0x40000 + shift:#x}"), S(f"s_cmp_lg_u32 s{sT2}, 15"),
            branch("s_cbranch_scc1", lab)]
def spin(lab, POLL, vfl, shift, back):
    return [label(lab), bload(1, POLL, vfl, sDBG, 0, 0, 'sc1'), S(f"s_sub_u32 s{sCnt}, s{sCnt}, 1"), S(f"s_cmp_lt_i32 s{sCnt}, 0"), branch("s_cbranch_scc1", back),
            wait(vm=0), V(f"v_readfirstlane_b32 s{sT2}, v{POLL}"), S(f"s_bfe_u32 s{sT2}, s{sT2}, {0x40000 + shift:#x}"), S(f"s_cmp_eq_u32 s{sT2}, 15"),
            branch("s_cbranch_scc1", back), raw(f"s_sleep {Cfg.xsleep}"), branch("s_branch", lab)]

def gen_opre(w):
    sSo, sLd = sTK, sTV
    C = []
    for u in range(2):
        C += [label(f"L_opre{u}"), S(f"s_bitcmp1_b32 s{sWave}, 1"), branch("s_cbranch_scc1", f"L_opre{u}_1")]
        for nh in range(2):
            step = 10240 if nh == 0 else 40960
            B = [label(f"L_opre{u}_{nh}")]
            if u == 0:
                t = w.tmp + 1
                B += lane_id(t) + o_voff(nh, w.oVoff, t, w.dummy, w.vTch) + o_base(nh, sSo, sLd)
                B += [S(f"s_and_b32 s{sT3}, s{sG}, 4"), S(f"s_mul_i32 s{sT3}, s{sT3}, {16*step}"), S(f"s_add_u32 s{sSo}, s{sSo}, s{sT3}")]
            for ks in range(2): B += flat(o_dma(nh, u, w.oVoff, sSo, sLd, goff=ks * 4 * step, loff=ks * 20480))
            B += [branch("s_branch", f"L_opre{u}_back")]
            C += fix_hazards(B)
    C += fix_hazards([label("L_g1"), S(f"s_mov_b32 s{sCnt}, 0x8000"), V(f"v_mov_b32 v{w.tmp+2}, s{sFlag}")] + spin("L_g1_spin", w.oPoll, w.tmp + 2, 0, "L_g1_back"))
    return C

def gen_o():
    ACC = 0; SET = [100, 140]
    aB, aA0, aA1 = 180, 182, 184
    VOFF, POLL, VFL, T, L16, POLL2 = 186, 187, 188, 190, 196, 198
    LW, LR, VO, VO2 = T + 2, T + 3, T + 4, 199
    RB = 200
    sSo, sHi, sLd, sBase, sKs, sNq = 36, 37, 39, 40, 43, 44
    sXo, sXp, sOb, sVar = 60, 61, 62, 63
    sOD = sK
    st = lambda k, real=False: stamp(T, k, real)
    def acc(t): return ACC + 4 * t
    def fB(s_, jj): return SET[s_] + 4 * jj
    def fA(s_, nn): return SET[s_] + 20 + 4 * nn
    TS = [list(range(0, 7)), list(range(7, 13)), list(range(13, 19)), list(range(19, 25))]
    C = [label("L_o")] + st(80)
    if Cfg.prio: C += [raw("s_setprio 0")]
    lane = T; a = T + 1; b = T + 5
    C += lane_id(lane) + [V(f"v_lshlrev_b32 v{L16}, 4, v{lane}")]
    C += [S(f"s_lshr_b32 s{sKs}, s{sWave}, 2"), S(f"s_mul_i32 s{sT0}, s{sKs}, 20480"), S(f"s_and_b32 s{sT1}, s{sWave}, 1"), S(f"s_mul_i32 s{sT1}, s{sT1}, 5120"),
          S(f"s_add_u32 s{sT1}, s{sT0}, s{sT1}"),
          V(f"v_add_u32 v{aB}, s{sT1}, v{L16}"), V(f"v_add_u32 v{aB+1}, {2*OSLOT}, v{aB}"),
          V(f"v_lshrrev_b32 v{a}, 2, v{lane}"), V(f"v_bfe_u32 v{b}, v{lane}, 4, 1"), V(f"v_lshlrev_b32 v{b}, 5, v{b}"), V(f"v_lshl_add_u32 v{b}, v{a}, 6, v{b}"),
          V(f"v_and_b32 v{a}, 3, v{lane}"), V(f"v_lshl_add_u32 v{b}, v{a}, 3, v{b}"),
          S(f"s_add_u32 s{sT1}, s{sT0}, 10240"), V(f"v_add_u32 v{aA0}, s{sT1}, v{b}"), V(f"v_xor_b32 v{aA1}, 32, v{aA0}"),
          V(f"v_add_u32 v{aA0+1}, {2*OSLOT}, v{aA0}"), V(f"v_add_u32 v{aA1+1}, {2*OSLOT}, v{aA1}"),
          S(f"s_mov_b32 s{sHi}, 0")]
    C += [S(f"s_bitcmp1_b32 s{sWave}, 1"), branch("s_cbranch_scc1", "L_o_1")]
    C = fix_hazards(C)
    def late_setup():
        return [V(f"v_mov_b32 v{VFL}, s{sFlag}"), V(f"v_xor_b32 v{VFL+1}, 4, v{VFL}"), V(f"v_mov_b32 v{POLL}, 0"), V(f"v_mov_b32 v{POLL2}, 0"),
         S(f"s_and_b32 s{sNq}, s{sG}, 3"), S(f"s_mov_b32 s{sCnt}, 0x8000"),
         S(f"s_mul_i32 s{sT0}, s{sWave}, 13312"), V(f"v_add_u32 v{LW}, s{sT0}, v{L16}"),
         S(f"s_xor_b32 s{sT1}, s{sWave}, 4"), S(f"s_mul_i32 s{sT0}, s{sT1}, 13312"), V(f"v_add_u32 v{LR}, s{sT0}, v{L16}"),
         S(f"s_lshl_b32 s{sT0}, s2, 3"), S(f"s_add_u32 s{sT0}, s{sT0}, s{sWave}"), S(f"s_mul_i32 s{sXo}, s{sT0}, {SLAB}"), S(f"s_add_u32 s{sXo}, s{sXo}, {XCH_OFF}"),
         S(f"s_xor_b32 s{sT0}, s{sT0}, {8 if Cfg.map84 else 256}"), S(f"s_mul_i32 s{sXp}, s{sT0}, {SLAB}"), S(f"s_add_u32 s{sXp}, s{sXp}, {XCH_OFF}"),
         V(f"v_bfe_u32 v{VO}, v{L16}, 4, 4"), V(f"v_mul_u32_u24 v{VO}, 1280, v{VO}"),
         V(f"v_bfe_u32 v{a}, v{L16}, 8, 1"), V(f"v_lshl_add_u32 v{VO2}, v{a}, 5, v{VO}"), V(f"v_lshrrev_b32 v{a}, 9, v{L16}"), V(f"v_lshl_add_u32 v{VO2}, v{a}, 4, v{VO2}"),
         V(f"v_lshrrev_b32 v{a}, 8, v{L16}"), V(f"v_lshl_add_u32 v{VO}, v{a}, 3, v{VO}"),
         S(f"s_mul_i32 s{sOb}, s{sB}, 204800"), S(f"s_and_b32 s{sT0}, s{sWave}, 1"), S(f"s_mul_i32 s{sT0}, s{sT0}, 102400"), S(f"s_add_u32 s{sOb}, s{sOb}, s{sT0}"),
         S(f"s_mul_i32 s{sT0}, s{sNq}, 320"), S(f"s_add_u32 s{sOb}, s{sOb}, s{sT0}"), S(f"s_bfe_u32 s{sT0}, s{sWave}, 0x10001"), S(f"s_mul_i32 s{sT0}, s{sT0}, 160"),
         S(f"s_add_u32 s{sOb}, s{sOb}, s{sT0}"),
         S(f"s_lshr_b32 s{sVar}, s{sG}, 2"), S(f"s_lshl_b32 s{sT1}, s{sKs}, 1"), S(f"s_add_u32 s{sVar}, s{sVar}, s{sT1}")] + mode_vcc()
    def poll_load(): return [bload(1, POLL, VFL, sDBG, 0, 0, 'sc1'), bload(1, POLL2, VFL + 1, sDBG, 0, 0, 'sc1')]
    for nh in range(2):
        step = 10240 if nh == 0 else 40960
        src = sWS if nh == 0 else sWO
        R_ = [label(f"L_o_{nh}")] + o_voff(nh, VOFF, lane, a, b) + o_base(nh, sBase, sLd) + [S(f"s_add_u32 s{sLd}, s{sLd}, s{sT0}")]
        R_ += [S(f"s_mov_b32 s{sOD+i}, s{src+i}") for i in range(3)]
        def head_setup():
            return [S(f"s_and_b32 s{sT2}, s{sHi}, 3"), S(f"s_and_b32 s{sT3}, s{sG}, 4"), S(f"s_add_u32 s{sT2}, s{sT2}, s{sT3}"),
                    S(f"s_lshl_b32 s{sT2}, s{sT2}, 2"), S(f"s_lshr_b32 s{sT3}, s{sHi}, 2"), S(f"s_lshl_b32 s{sT3}, s{sT3}, 1"), S(f"s_add_u32 s{sT2}, s{sT2}, s{sT3}"),
                    S(f"s_add_u32 s{sT2}, s{sT2}, s{sKs}"), S(f"s_mul_i32 s{sT2}, s{sT2}, {4*step}"), S(f"s_add_u32 s{sSo}, s{sBase}, s{sT2}"),
                    S(f"s_add_u32 s{sHi}, s{sHi}, 1")]
        odma = lambda u: o_dma(nh, u, VOFF, sSo, sLd, srd_=sOD)
        def oreads(u):
            s_ = u & 1; hi = oslot(u) // (2 * OSLOT); off = oslot(u) % (2 * OSLOT)
            G = []
            for k in range(5):
                nb = 5 * nh + k
                ar = (aA1 if nb & 1 else aA0) + hi
                G.append([ds_read(2, fA(s_, k) + 2 * hh, ar, off + (hh * 5 + (nb >> 1)) * 1024, tr=True) for hh in range(2)])
                G.append([ds_read(4, fB(s_, k), aB + hi, off + k * 1024)])
            return G
        def omf(s_): return [mfma(acc(t), fA(s_, t % 5), fB(s_, t // 5), acc(t)) for t in range(25)]
        R_ += head_setup()
        R_ += [wait(vm=18), barrier()] + st(81) + st(82)
        R_ += flat(oreads(0))
        for r in range(50): R_.append(V(f"v_pk_mov_b32 v[{ACC+2*r}:{ACC+2*r+1}], 0, 0"))
        R_ += late_setup() + flat(odma(2))
        R_ += [wait(vm=13), branch("s_branch", f"L_o_in{nh}")]
        R_, q = finish(R_)
        it = lambda hi, wv, lab: [S(f"s_lshl_b32 s{sT2}, s{sHi}, 3"), S(f"s_add_u32 s{sT2}, s{sT2}, s{sWave}"), S(f"s_cmp_lg_u32 s{sT2}, {hi*8+wv}"), branch("s_cbranch_scc1", lab)]
        def ostage(u):
            L = [wait(vm=5, lgkm=0), barrier()]
            if u == 1: L = [wait(vm=5), label(f"L_o_in{nh}"), wait(lgkm=0), barrier()]
            fill = [(oreads(u), 0, Cfg.orh)]
            d = odma((u + 2) & 3)
            if u == 1:
                d = d + [head_setup() + [S(f"s_cmp_gt_u32 s{sHi}, 8"), S(f"s_cselect_b32 s{sOD+2}, 0, s{sOD+2}")]]
                if nh == 0: d = d + [it(5, 0, "L_g3_back") + gate("L_g2", POLL, VFL, 8) + [label("L_g2_back")] + gate("L_g3", POLL2, VFL + 1, 0) + [label("L_g3_back")]]
            if u == 3 and nh == 0: d = [it(4, 0, "L_p2") + poll_load() + [label("L_p2")]] + d
            if u == 2 and nh == 1:
                d = [it(2, 2, "L_nofl2") + [S(f"s_lshl_b32 s{sT2}, 0x100, s{sNq}")] + flag_add(T, f"s{sT2}", "L_nofl2")] + d
            if u == Cfg.tlbu and Cfg.tlbwarm:
                d = d + [[S(f"s_cmp_lg_u32 s{sHi}, {Cfg.tlbwarm}"), branch("s_cbranch_scc1", f"L_tw{nh}"), V(f"v_lshlrev_b32 v{T}, 3, v{L16}"), V(f"v_min_u32 v{T}, {SLAB-128}, v{T}"),
                          bload(1, RB, T, sWS, f"s{sXo}", 0, 'sc1'), label(f"L_tw{nh}")]]
            if u == 3: d = d + [[S(f"s_cmp_gt_u32 s{sHi}, 8")]]
            fill.append((d, Cfg.od0, Cfg.od1))
            if Cfg.oprio:
                n_ = len(Cfg.oprio)
                L = L[:-1] + [raw(f"s_setprio {n_}"), L[-1]]
                for i, pos in enumerate(Cfg.oprio): fill.append(([[raw(f"s_setprio {n_-1-i}")]], pos - 1, pos))
            return L + spread(omf(1 - (u & 1)), fill)
        B = [label(f"L_o_loop{nh}")] + ostage(1) + ostage(2) + ostage(3) + [branch("s_cbranch_scc1", "L_o_fin")] + ostage(0) + [branch("s_branch", f"L_o_loop{nh}")]
        Bc, q2 = loop_finish(B, [], R_)
        E = []
        if nh == 0: E += spin("L_g2", POLL, VFL, 8, "L_g2_back") + spin("L_g3", POLL2, VFL + 1, 0, "L_g3_back")
        C += R_ + Bc + fix_hazards(E)
    E = [label("L_o_fin")] + st(83) + [wait(vm=0, lgkm=0), barrier()]
    for v in range(1, 4): E += [S(f"s_cmp_eq_u32 s{sVar}, {v}"), branch("s_cbranch_scc1", f"L_o_epi{v}")]
    C += E
    for v in range(4):
        ks, kh = v >> 1, v & 1
        mine = TS[v]; xsend = TS[v ^ 1]; keep = sorted(mine + xsend); lsend = sorted(TS[v ^ 2] + TS[v ^ 3])
        ls = lambda i: [raw(f"s_memtime s[{64+2*i}:{65+2*i}]" if i < 4 else f"s_memtime s[{92+2*(i-4)}:{93+2*(i-4)}]"), wait(lgkm=0)] if Cfg.stamps == 6 else []
        E = [label(f"L_o_epi{v}")] + ls(0)
        order = lsend + xsend + mine
        mf = [mfma(acc(t), fA(1, t % 5), fB(1, t // 5), acc(t)) for t in order]
        wr = [[ds_write(4, LW, acc(t), i * 1024)] for i, t in enumerate(lsend)]
        E += spread(mf, [(wr, 4, 19)])
        E += [wait(lgkm=0)] + ls(1) + [barrier()] + ls(2)
        rorder = xsend + mine
        for i, t in enumerate(rorder): E.append(ds_read(4, RB + 4 * i, LR, keep.index(t) * 1024))
        PK = SET[0]
        for i, t in enumerate(rorder):
            for r in range(0, 4, 2): E.append(V(f"v_pk_add_f32 v[{acc(t)+r}:{acc(t)+r+1}], v[{acc(t)+r}:{acc(t)+r+1}], v[{RB+4*i+r}:{RB+4*i+r+1}]"))
            if t in xsend:
                k = xsend.index(t)
                E += [V(f"v_cvt_pk_bf16_f32 v{PK+2*k}, v{acc(t)}, v{acc(t)+1}"), V(f"v_cvt_pk_bf16_f32 v{PK+2*k+1}, v{acc(t)+2}, v{acc(t)+3}")]
                if k & 1 or k == len(xsend) - 1: E += dstore(4, PK + 4 * (k >> 1), L16, sWS, f"s{sXo}", (k >> 1) * 1024)
        E += st(84) + ls(3)
        n = len(mine); nl = (n + 1) // 2
        E += [V(f"v_mov_b32 v{POLL2}, 1"), V(f"v_mov_b32 v{VFL}, {SLAB-128}"), wait(vm=0), S("s_mov_b64 exec, 1")] + dstore(1, POLL2, VFL, sWS, f"s{sXo}", 0)
        if Cfg.poll_nt:
            SLOW.append([label(f"L_xp{v}"), bload(1, POLL, VFL, sWS, f"s{sXp}", 0, 'sc1'), branch("s_branch", f"L_xp{v}_b")])
            pl = [branch("s_cbranch_vccz", f"L_xp{v}"), bload(1, POLL, VFL, sWS, f"s{sXp}", 0, 'nt'), label(f"L_xp{v}_b")]
        else: pl = [bload(1, POLL, VFL, sWS, f"s{sXp}", 0, 'sc1')]
        E += [label(f"L_x{v}")] + pl + [
              S(f"s_sub_u32 s{sCnt}, s{sCnt}, 1"), S(f"s_cmp_lt_i32 s{sCnt}, 0"), branch("s_cbranch_scc1", f"L_x{v}_ok"), wait(vm=0),
              V(f"v_readfirstlane_b32 s{sT2}, v{POLL}"), S(f"s_cmp_eq_u32 s{sT2}, 1"), branch("s_cbranch_scc1", f"L_x{v}_ok"),
              raw(f"s_sleep {Cfg.xsleep2}"), branch("s_branch", f"L_x{v}"), label(f"L_x{v}_ok"), S("s_mov_b64 exec, -1")]
        ld = lambda pol: [bload(4, RB + 4 * k, L16, sWS, f"s{sXp}", k * 1024, pol) for k in range(nl)]
        SLOW.append([label(f"L_xl{v}")] + ld('sc1') + [branch("s_branch", f"L_xl{v}_b")])
        E += [branch("s_cbranch_vccz", f"L_xl{v}")] + ld('') + [label(f"L_xl{v}_b")]
        E += st(85) + ls(4)
        E += [wait(vm=0)] + ls(6)
        U = RB + 16
        k = 0
        while k < n:
            pair = Cfg.widest and k + 1 < n and mine[k] // 5 == mine[k + 1] // 5
            d = acc(mine[k])
            for h in range(2 if pair else 1):
                a_ = acc(mine[k + h]); r0 = RB + 2 * (k + h)
                E += [V(f"v_lshlrev_b32 v{U}, 16, v{r0}"), V(f"v_and_b32 v{U+1}, 0xffff0000, v{r0}"), V(f"v_lshlrev_b32 v{U+2}, 16, v{r0+1}"), V(f"v_and_b32 v{U+3}, 0xffff0000, v{r0+1}")]
                for r in range(0, 4, 2): E.append(V(f"v_pk_add_f32 v[{a_+r}:{a_+r+1}], v[{a_+r}:{a_+r+1}], v[{U+r}:{U+r+1}]"))
                E += [V(f"v_cvt_pk_bf16_f32 v{d+2*h}, v{a_}, v{a_+1}"), V(f"v_cvt_pk_bf16_f32 v{d+2*h+1}, v{a_+2}, v{a_+3}")]
            t = mine[k]
            E += [S(f"s_add_u32 s{sT0}, s{sOb}, {(t//5)*20480}")]
            if pair: E += [V(f"v_permlane16_swap_b32 v{d}, v{d+2}"), V(f"v_permlane16_swap_b32 v{d+1}, v{d+3}"), bstore(4, d, VO2, sOUT, f"s{sT0}", (t % 5) * 32, Cfg.out_pol)]
            else: E += [bstore(2, d, VO, sOUT, f"s{sT0}", (t % 5) * 32, Cfg.out_pol)]
            k += 2 if pair else 1
        E += st(86) + st(77, True)
        if Cfg.stamps == 6:
            E += [wait(vm=0)] + ls(5) + [V(f"v_mov_b32 v{T+1}, 0"), V(f"v_mov_b32 v{T}, s{sCnt}"), bstore(1, T, T + 1, sWS, f"s{sStamp+2}", 4 * 106)]
            for i, r in enumerate([64, 66, 68, 70, 92, 94]): E += [V(f"v_mov_b32 v{T}, s{r}"), bstore(1, T, T + 1, sWS, f"s{sStamp+2}", 4 * (100 + i))]
            E += [V(f"v_mov_b32 v{T}, s96"), bstore(1, T, T + 1, sWS, f"s{sStamp+2}", 4 * 107)]
        if Cfg.dbgst and ks == 1:
            E += [S(f"s_cmp_lg_u32 s{sWave}, 4"), branch("s_cbranch_scc1", f"L_dbgend{v}"), S(f"s_cmp_lg_u32 s2, {Cfg.dbgst}"), branch("s_cbranch_scc1", f"L_dbgend{v}"),
                  S("s_mov_b64 exec, 1"), V("v_mov_b32 v1, 0")]
            for i, r in enumerate(DREG):
                E += [S(f"s_sub_u32 s{r}, s{r}, s{sStamp+2}"), S(f"s_lshr_b32 s{r}, s{r}, 8"), S(f"s_and_b32 s{r}, s{r}, 0x3ff"), S(f"s_lshl_b32 s{r}, s{r}, {12 + 10*(i&1)}"), V(f"v_mov_b32 v{2+i}, s{r}"),
                      raw(f"buffer_atomic_or v{2+i}, v1, s[{sDBG}:{sDBG+3}], 0 offen offset:{8*(i>>1)+4} sc1")]
            E += [label(f"L_dbgend{v}")]
        E += [raw("s_endpgm")]
        E, _ = finish(E)
        C += E
    return C

def gen_kernel(name):
    C = [raw(f".globl {name}\n.p2align 8\n.type {name},@function\n{name}:\nKSTART:", 'label')]
    C += [S("s_cmp_lt_u32 s2, 256"), branch("s_cbranch_scc1", "L_go"), raw("s_endpgm"), label("L_go")]
    C += [raw("s_load_dwordx16 s[56:71], s[0:1], 0")]
    if Cfg.ent: C += [raw("s_memtime s[92:93]"), raw("s_memrealtime s[100:101]")]
    if Cfg.dbgst: C += [raw(f"s_memtime s[{sStamp+2}:{sStamp+3}]")] + [S(f"s_mov_b32 s{r}, 0") for r in DREG]
    if Cfg.delay:
        C += [S(f"s_bitcmp0_b32 s2, {Cfg.delay_bit}"), branch("s_cbranch_scc1", "L_nodelay"), S(f"s_mov_b32 s{sT0}, {Cfg.delay // 1024}"), label("L_delay"), raw("s_sleep 16"),
              S(f"s_sub_u32 s{sT0}, s{sT0}, 1"), S(f"s_cmp_lg_u32 s{sT0}, 0"), branch("s_cbranch_scc1", "L_delay"), label("L_nodelay")]
    C += [V("v_lshrrev_b32 v1, 6, v0"),
          S(f"s_and_b32 s{sB}, s2, 7"), S(f"s_lshl_b32 s{sB}, s{sB}, 2"), V(f"v_readfirstlane_b32 s{sWave}, v1"),
          S(f"s_lshr_b32 s{sT0}, s2, 6"), S(f"s_add_u32 s{sB}, s{sB}, s{sT0}"), S(f"s_bfe_u32 s{sG}, s2, 0x30003")]
    if Cfg.map84:
        C += [S(f"s_and_b32 s{sB}, s2, 6"), S(f"s_lshl_b32 s{sB}, s{sB}, 2"), S(f"s_lshr_b32 s{sT0}, s2, 5"), S(f"s_add_u32 s{sB}, s{sB}, s{sT0}"),
              S(f"s_and_b32 s{sG}, s2, 1"), S(f"s_lshl_b32 s{sG}, s{sG}, 2"), S(f"s_bfe_u32 s{sT0}, s2, 0x20003"), S(f"s_add_u32 s{sG}, s{sG}, s{sT0}")]
    C += [S(f"s_bfe_u32 s{sT0}, s{sWave}, 0x10001"), S(f"s_lshl_b32 s{sT2}, s{sG}, 2"), S(f"s_add_u32 s{sT2}, s{sT2}, s{sT0}"), S(f"s_lshl_b32 s{sWbase}, s{sT2}, 8"),
          S(f"s_cmp_lt_u32 s{sWave}, 4"), branch("s_cbranch_scc1", "L_w3"),
          S(f"s_and_b32 s{sT1}, s{sWave}, 1"), S(f"s_lshl_b32 s{sT2}, s{sT1}, 10"),
          S(f"s_lshl_b32 s{sLdsKV}, s{sT0}, 13"), S(f"s_add_u32 s{sLdsKV}, s{sLdsKV}, s{sT2}"),
          S(f"s_mul_i32 s{sLdsX}, s{sT0}, 10240"), S(f"s_add_u32 s{sLdsX}, s{sLdsX}, s{sT2}"),
          S(f"s_mul_i32 s{sXbase}, s{sB}, 204800"), S(f"s_mul_i32 s{sT2}, s{sT0}, 102400"), S(f"s_add_u32 s{sXbase}, s{sXbase}, s{sT2}")]
    if Cfg.rot:
        C += [S(f"s_bfe_u32 s{sRho}, s2, 0x20003") if Cfg.map84 else S(f"s_lshr_b32 s{sRho}, s2, 6"), S(f"s_mul_i32 s{sRho}, s{sRho}, 5"), S(f"s_add_u32 s{sRho}, s{sRho}, 1"), S(f"s_lshr_b32 s{sRho}, s{sRho}, 1"),
              S(f"s_lshr_b32 s{sT2}, s2, 5") if Cfg.map84 else S(f"s_mov_b32 s{sT2}, s{sG}"), S(f"s_add_u32 s{sRho}, s{sRho}, s{sT2}"), S(f"s_and_b32 s{sT2}, s2, 7"), S(f"s_add_u32 s{sRho}, s{sRho}, s{sT2}")]
        for _ in range(2): C += [S(f"s_sub_u32 s{sT2}, s{sRho}, 10"), S(f"s_cmp_ge_u32 s{sRho}, 10"), S(f"s_cselect_b32 s{sRho}, s{sT2}, s{sRho}")]
        if Cfg.rotn == 88: C += [S(f"s_lshr_b32 s{sRho}, s2, 5"), S(f"s_and_b32 s{sRho}, s{sRho}, 6"), S(f"s_add_u32 s{sRho}, s{sRho}, s{sG}"), S(f"s_add_u32 s{sRho}, s{sRho}, s2")]
        if Cfg.rotn == 19: C += [S(f"s_cmp_eq_u32 s{sRho}, 9"), S(f"s_cselect_b32 s{sRho}, 4, s{sRho}")]
        if Cfg.rotn == 8: C += [S(f"s_and_b32 s{sRho}, s2, 7")]
        if Cfg.rotn == 16:
            C += [S(f"s_and_b32 s{sRho}, s{sRho}, 1"), S(f"s_mul_i32 s{sRho}, s{sRho}, 5"), S(f"s_and_b32 s{sT2}, s2, 7"), S(f"s_add_u32 s{sRho}, s{sRho}, s{sT2}"),
                  S(f"s_sub_u32 s{sT2}, s{sRho}, 10"), S(f"s_cmp_ge_u32 s{sRho}, 10"), S(f"s_cselect_b32 s{sRho}, s{sT2}, s{sRho}")]
        if Cfg.rotn == 2: C += [S(f"s_and_b32 s{sRho}, s{sRho}, 1"), S(f"s_mul_i32 s{sRho}, s{sRho}, 5")]
        if Cfg.rotn == 4: C += [S(f"s_and_b32 s{sRho}, s{sRho}, 3"), S(f"s_mul_i32 s{sRho}, s{sRho}, 5"), S(f"s_lshr_b32 s{sRho}, s{sRho}, 1")]
    C = fix_hazards(C)
    w2, r2 = gen_w2(); w3, r3 = gen_w3()
    C += w2 + w3 + gen_o() + [label("KEND")] + r2 + r3 + flat(SLOW)
    for k, tag, par in CTX.stubs:
        C += [label(f"L_stub{k}"), raw(f"s_call_b64 s[{sRet}:{sRet+1}], L_rare_{tag}_{par}", 'branch'), branch("s_branch", f"L_back{k}")]
    return C

def kd(name, vgpr, accum, sgpr=102):
    return f""".section .rodata,"a"
.p2align 6
.amdhsa_kernel {name}
  .amdhsa_next_free_vgpr {vgpr}
  .amdhsa_next_free_sgpr {sgpr}
  .amdhsa_accum_offset {accum}
  .amdhsa_group_segment_fixed_size 0
  .amdhsa_kernarg_size 64
  .amdhsa_user_sgpr_count 2
  .amdhsa_user_sgpr_kernarg_segment_ptr 1
  .amdhsa_system_sgpr_workgroup_id_x 1
.end_amdhsa_kernel
"""

HDR = open('standalone__mha_block_cached__near_ridge.s.ref').read().split('; Override launch')[0]
def main(path):
    k1 = "standalone__mha_block_cached__near_ridge_kernel"
    s = HDR
    s += f"; @launch grid=(256,1,1) block=(512,1,1) lds={LDS_BYTES}\n"
    s += '.amdgcn_target "amdgcn-amd-amdhsa--gfx950"\n.text\n'
    s += emit(gen_kernel(k1))
    s += kd(k1, 256, 256)
    open(path, 'w').write(s)
if __name__ == '__main__':
    for a in sys.argv[2:]:
        k, v = a.split('=', 1); setattr(Cfg, k, eval(v))
    main(sys.argv[1] if len(sys.argv) > 1 else 'mha2.s')
```

```python
import sys, math, struct
from ir import *

SLOT = 16384
NSLOT = 10
NW, NX = 6, 3
WPERM = [4, 5, 1, 3, 0, 2]
def wslot(s): return WPERM[s % NW] * SLOT
def xbuf(u): return NW * SLOT + (u % NX) * 20480
WTAB = sum((((WPERM[(m + 1) % NW] - WPERM[m]) & 15) << (4 * m)) for m in range(NW))
LDS_BYTES = 163840
O_BYTES = 32 * 128 * 10 * 1024
XCH_OFF = O_BYTES
SLAB = 4096 + 128
XCH_WG = 8 * SLAB
MODE_LDS = LDS_BYTES - 4
WS_BYTES = XCH_OFF + 256 * XCH_WG
QSCALE = math.log2(math.e) / math.sqrt(128.0)
THR = 16384.0
def f2u(x): return "0x%08x" % struct.unpack('<I', struct.pack('<f', x))[0]

sK, sV, sW, sX, sWS, sWO, sOUT, sDBG = 8, 12, 16, 20, 24, 28, 76, 80
sWave, sRound, sB, sG = 32, 33, 34, 35
sKVbase, sWbase, sXbase, sLdsKV, sLdsX = 36, 37, 38, 39, 40
sT0, sT1 = 41, 42
sKpos, sVpos, sD, sCnt, sXd, sLoop = 43, 44, 45, 49, 50, 51
sRet = 46
sOst = 48
sKX, sFlag = 52, 53
sT2, sT3 = 54, 55
sQS, sC16, sC32, sCX = 72, 73, 74, 75
sTK, sTV, sCnt2 = 88, 89, 90
sTau = 64
sMode = 91
sRho, sT4 = 3, 87
sOoff = 56
sStamp = 84
DBG_OFF = 96 << 20

class Cfg:
    stamps = False
    dbgst = False
    dsl = None
    rot = True
    orot = True
    warm0 = False
    delay = 0
    delay_bit = 7
    LA = 7
    kv_pol = 'nt'
    touch_pol = ''
    touch_at = []
    warm = True
    xsleep = 8
    kv_same = False
    o_nr = 10
    wperm = True
    q0soft = 0
    q0sleep = 0
    q0n = 20
    tlbsh = 12
    capr0 = 0
    capr0_items = (0, 1, 2, 3, 4, 8, 9)
    first = {0: 17, 1: 15, 2: 18, 3: 16, 4: 19, 5: 20, 6: 20, 7: 21, 8: 21, 9: 22}
    capi = 5
    wnext = ((33, (2, 3)), (34, (0, 1)))
    holes = []
    qcap = 9
    map84 = True
    fake_wot = False
    capfrom = 0
    cap0 = False
    place2 = {'wo': (8, 0)}
    cap = 5
    drain = {}
    wo2n = 39
    jit = 1
    wo2pol = ''
    place = {'code': ('A0', 1)}
    oprio = [6, 12, 18]
    v_pol = None
    ent = False
    tlbwarm = 0
    tlbu = 1
    slabmall = True
    widest = True
    pro_pol = ''
    wx_pol = ''
    poll_nt = False
    taumul = 8
    taush = 2
    taumask = 15
    kvgrp = 1
    pace = 5.0
    lead = 2
    tbatch = []
    qr3 = 18
    qr2 = 15
    orh = 20
    od0 = 1
    od1 = 24
    ofirst = True
    qd0 = 0
    qprio = 1
    ofast_pol = ''
    fast0 = False
    out_pol = ''
    dsplit = 50
    rotn = 10
    late = 8
    smpure = 0.7
    pp = False
    pp_a = 1
    pp_b = 0
    ostamp = False
    xsleep2 = 2
    dual = True
    fast = True
    codetouch2 = True
    codetouch = True
    qcut = 4
    prio = 2
    no_sm = False
    no_dma = False
    no_exp = False
    no_chk = False
    no_ds = False
    no_adv = False
    ost_pol = 'sc1'
    old_pol = 'sc1'
    o_skip = 0
    o_vm1 = 10
    smend = 3

RT4 = {7: 90, 39: 91, 45: 92, 73: 93, 82: 94, 83: 95}
STAMP3 = (0, 1, 3, 5, 7, 39, 41, 43, 45, 73, 75, 76, 77, 80, 81, 82, 83, 84, 85, 86)
DSL = {(1, 0): 0, (41, 0): 1, (45, 0): 2, (73, 0): 3, (1, 1): 4, (41, 1): 5, (45, 1): 6, (73, 1): 7, (80, 2): 8, (82, 2): 9, (83, 2): 10, (84, 2): 11, (85, 2): 12, (86, 2): 13}
sDS = 4
DREG = [4, 5, 6, 7, 101, 92, 93, 94, 95, 96, 97, 98, 99, 100]
def stamp(t, k, real=False):
    if Cfg.dbgst:
        if real: return []
        dsl = DSL if not Cfg.dsl else {(2 * b + 1, Cfg.dsl[0]): i for i, b in enumerate(Cfg.dsl[1:])}
        hits = [(r, i) for (kk, r), i in dsl.items() if kk == k]
        if not hits: return []
        out = [raw(f"s_memtime s[{sStamp}:{sStamp+1}]"), wait(lgkm=0)]
        for r, i in hits:
            out += [S(f"s_cmp_eq_u32 s{sRound}, {r}"), S(f"s_cselect_b32 s{DREG[i]}, s{sStamp}, s{DREG[i]}")]
        return out
    if not Cfg.stamps: return []
    if Cfg.stamps == 6: return []
    if Cfg.stamps == 7:
        if not ((41 <= k <= 73 and k % 4 == 1 and not real) or k in (76, 77, 31)): return []
        real = True
    if Cfg.stamps == 4 and not real and k in RT4:
        Cfg.stamps = 5; r = stamp(t, k) + stamp(t, RT4[k], True); Cfg.stamps = 4; return r
    if Cfg.stamps in (3, 4) and k not in STAMP3: return []
    return [raw(f"{'s_memrealtime' if real else 's_memtime'} s[{sStamp}:{sStamp+1}]"), wait(lgkm=0), V(f"v_mov_b32 v{t}, s{sStamp}"), V(f"v_mov_b32 v{t+1}, 0"),
            S(f"s_and_b32 s{sStamp+1}, s{sRound}, 1"), S(f"s_lshl_b32 s{sStamp+1}, s{sStamp+1}, 9"), S(f"s_add_u32 s{sStamp+1}, s{sStamp+1}, s{sStamp+2}"),
            bstore(1, t, t + 1, sWS, f"s{sStamp+1}", 4 * k, tag=('misc',))]

def item_slot(n): return (n % NSLOT) * SLOT
def kidx(t): return 0 if t == 0 else 2 * t - 1
def vidx(t): return 2 * t + 2

class Wave:
    def __init__(self, nq):
        self.nq = nq
        n = nq
        p = 0
        self.O = p; p += 32 * n
        self.Q = p; p += 16 * n
        self.NM = p; p += 4 * n
        self.S = p; p += 8 * n
        self.P = p; p += 8 * n
        self.L = p; p += n
        self.LT = p; p += n
        self.T = p; p += 4
        self.aN = p; p += 2
        self.aT = p; p += 4
        p = (p + 3) & ~3
        self.F = p; self.NF = 8; p += 32
        self.dummy = p; p += 1
        self.tmp = p; p += 3
        if nq == 2:
            self.vK = p; self.vV = p + 1; self.vW = p + 2; self.vX = p + 3; self.vTch = p + 4; self.oVoff = p + 5; self.oPoll = p + 6; p += 7
        assert p <= 256, p
        self.end = p
        setsz = 32 + 4 * n
        if nq == 3:
            self.set = [self.Q, self.S]
        else:
            q = (p + 3) & ~3
            self.set = [self.Q, q]
            assert q + setsz <= 256
        self.tag = f"w{nq}"
        self.fpos = 0
    def o(self, T, j): return self.O + (T * self.nq + j) * 4
    def q(self, s, j): return self.Q + (s * self.nq + j) * 4
    def nm(self, j): return self.NM + 4 * j
    def s(self, kb, j): return self.S + (kb * self.nq + j) * 4
    def p(self, par, j): return self.P + (par * self.nq + j) * 4
    def fa(self, st, T): return self.set[st] + 4 * T
    def fb(self, st, j): return self.set[st] + 32 + 4 * j

def spread(base, fillers):
    ins = [[] for _ in range(len(base) + 1)]
    for groups, lo, hi in fillers:
        n = len(groups)
        if n == 0: continue
        hi = min(hi, len(base)); lo = min(lo, hi)
        span = hi - lo
        for k, gI in enumerate(groups):
            pos = lo + (k * span) // n + 1 if span > 0 else lo
            ins[min(pos, len(base))].extend(gI)
    out = list(ins[0])
    for i, b in enumerate(base):
        out.append(b); out.extend(ins[i + 1])
    return out

def frag_K(w, s, kb, first_c):
    def reads(f): return [ds_read(4, f, w.aN + (s & 1), kb * 4096 + (s >> 1) * 2048)]
    def mf(f):
        out = []
        for j in range(w.nq):
            c = w.s(kb, j) if s > 0 else (None if first_c == 'zero' else w.nm(j))
            out.append(mfma(w.s(kb, j), f, w.q(s, j), c))
        return out
    return dict(reads=reads, mf=mf, pre=[])
def frags_QK(w, first_c='negm', pre=()):
    fr = [frag_K(w, s, kb, first_c) for s in range(4) for kb in range(2)]
    fr[0]['pre'] = list(pre)
    return fr
def frag_V(w, db, par, zero):
    def reads(f): return [ds_read(2, f + 2 * hh, w.aT + (db & 3), hh * 4096 + (db >> 2) * 2048, tr=True) for hh in range(2)]
    def mf(f): return [mfma(w.o(db, j), f, w.p(par, j), None if zero else w.o(db, j)) for j in range(w.nq)]
    return dict(reads=reads, mf=mf, pre=[])
def frags_PV(w, par, zero=False, pre=()):
    fr = [frag_V(w, db, par, zero) for db in range(8)]
    fr[0]['pre'] = list(pre)
    return fr

def stream(w, frags, preloaded, nxt, fillers=(), lead=()):
    LA = Cfg.LA
    allf = list(frags) + list(nxt[:LA])
    head = []
    def issue(i):
        f = allf[i]
        return ([] if Cfg.no_adv else list(f['pre'])) + ([] if Cfg.no_ds else f['reads'](w.F + 4 * ((w.fpos + i) % w.NF)))
    for i in range(preloaded, min(LA, len(allf))): head += issue(i)
    base = list(lead); extra = []
    for i, f in enumerate(frags):
        m = f['mf'](w.F + 4 * ((w.fpos + i) % w.NF))
        base += m
        post = []
        if i + LA < len(allf) and i + LA >= preloaded: post += issue(i + LA)
        if post: extra.append(([post], len(base) - 1, len(base)))
    body = spread(base, list(extra) + list(fillers))
    w.fpos = (w.fpos + len(frags)) % w.NF
    return head + body

def softmax_groups(w, par):
    G = []
    k = 0
    for kb in range(2):
        for j in range(w.nq):
            for h in range(2):
                t0 = w.T + 2 * (k & 1); t1 = t0 + 1; k += 1
                sr = w.s(kb, j) + 2 * h
                G.append([V(f"v_exp_f32 v{t0}, v{sr}")])
                G.append([V(f"v_exp_f32 v{t1}, v{sr+1}")])
                lt = w.LT + j
                if kb == 0 and h == 0:
                    G.append(('late', [V(f"v_add_f32 v{lt}, v{t0}, v{t1}"), V(f"v_cvt_pk_bf16_f32 v{w.p(par,j)+2*kb+h}, v{t0}, v{t1}")]))
                else:
                    G.append(('late', [V(f"v_add_f32 v{lt}, v{lt}, v{t0}"), V(f"v_cvt_pk_bf16_f32 v{w.p(par,j)+2*kb+h}, v{t0}, v{t1}"),
                                       V(f"v_add_f32 v{lt}, v{lt}, v{t1}")]))
    if Cfg.no_sm: return [[V(f"v_mov_b32 v{w.LT+j}, 1.0")] for j in range(w.nq)]
    if Cfg.no_exp:
        for gI in G:
            if not isinstance(gI, tuple): gI[0] = V(gI[0].text.replace('v_exp_f32', 'v_mov_b32'))
    out = []; pend = None
    for gI in G:
        if isinstance(gI, tuple):
            pend = gI[1]
        else:
            out.append(gI)
            if pend is not None:
                out.append(pend); pend = None
    if pend is not None: out.append(pend)
    return out

class Ctx:
    def __init__(self): self.stubs = []; self.n = 0
CTX = Ctx()

SLOW = []
def dstore(n, src, voff, srd_, soff, imm, tag=None, pol=''):
    if not Cfg.dual: return [bstore(n, src, voff, srd_, soff, imm, 'sc1', tag=tag)]
    k = len(SLOW)
    SLOW.append([label(f"L_slow{k}"), bstore(n, src, voff, srd_, soff, imm, 'sc1'), branch("s_branch", f"L_slowb{k}")])
    return [branch("s_cbranch_vccz", f"L_slow{k}"), bstore(n, src, voff, srd_, soff, imm, pol, tag=tag), label(f"L_slowb{k}")]
def mode_vcc(): return [S(f"s_and_b32 s{sT1}, s{sMode}, s{sMode if Cfg.fast0 else sRound}"), S("s_cselect_b64 vcc, -1, 0")]
def mode_read(t):
    return [[V(f"v_mov_b32 v{t}, {MODE_LDS}"), ds_read(1, t, t, 0)],
            [V(f"v_readfirstlane_b32 s{sT1}, v{t}"), S(f"s_cmp_eq_u32 s{sRound}, 0"), S(f"s_cselect_b32 s{sMode}, s{sT1}, s{sMode}")]]

def check_cmp(w):
    if Cfg.no_chk: return []
    out = []
    if w.nq == 3: out.append(V(f"v_max3_f32 v{w.tmp}, v{w.LT}, v{w.LT+1}, v{w.LT+2}"))
    else: out.append(V(f"v_max_f32 v{w.tmp}, v{w.LT}, v{w.LT+1}"))
    out.append(I(f"v_cmp_nge_f32 vcc, {f2u(THR)}, v{w.tmp}", 'valu', wr={('s', 'vcc')}, rd=regs(w.tmp)))
    return out
def check_branch(w, par):
    if Cfg.no_chk: return []
    k = CTX.n; CTX.n += 1
    CTX.stubs.append((k, w.tag, par))
    return [branch("s_cbranch_vccnz", f"L_stub{k}"), label(f"L_back{k}")]
def l_accum(w, first=False):
    if first: return [V(f"v_mov_b32 v{w.L+j}, v{w.LT+j}") for j in range(w.nq)]
    return [V(f"v_add_f32 v{w.L+j}, v{w.L+j}, v{w.LT+j}") for j in range(w.nq)]
def sm_fillers(w, par, lo):
    nm = 8 * w.nq
    return [(softmax_groups(w, par) + [check_cmp(w)], lo, nm - Cfg.smend)]

def xlane(op, r, t):
    return [V(f"v_mov_b32 v{t}, v{r}"), V(f"v_permlane32_swap_b32 v{r}, v{t}"), V(f"{op} v{r}, v{r}, v{t}"),
            V(f"v_mov_b32 v{t}, v{r}"), V(f"v_permlane16_swap_b32 v{r}, v{t}"), V(f"{op} v{r}, v{r}, v{t}")]

def tile_max(w, j, dst):
    a, b = w.s(0, j), w.s(1, j)
    return [V(f"v_max3_f32 v{dst}, v{a}, v{a+1}, v{a+2}"), V(f"v_max3_f32 v{dst}, v{dst}, v{a+3}, v{b}"),
            V(f"v_max3_f32 v{dst}, v{dst}, v{b+1}, v{b+2}"), V(f"v_max_f32 v{dst}, v{dst}, v{b+3}")]

def first_max(w):
    out = []
    for j in range(w.nq): out += tile_max(w, j, w.LT + j)
    seqs = [xlane("v_max_f32", w.LT + j, w.T + j) for j in range(w.nq)]
    for k in range(6):
        for sq in seqs: out.append(sq[k])
    for j in range(w.nq):
        for r in range(4): out.append(V(f"v_sub_f32 v{w.nm(j)+r}, 0, v{w.LT+j}"))
        for kb in range(2):
            for r in range(4): out.append(V(f"v_sub_f32 v{w.s(kb,j)+r}, v{w.s(kb,j)+r}, v{w.LT+j}"))
    return out

def rare_routine(w, par):
    out = [label(f"L_rare_{w.tag}_{par}"), nop(15)]
    for j in range(w.nq):
        d = w.LT + j; f = w.T + 1
        out += tile_max(w, j, d)
        out += xlane("v_max_f32", d, w.T)
        out.append(V(f"v_max_f32 v{d}, 0, v{d}"))
        out.append(V(f"v_sub_f32 v{f}, 0, v{d}"))
        out.append(V(f"v_exp_f32 v{f}, v{f}"))
        for r in range(4): out.append(V(f"v_sub_f32 v{w.nm(j)+r}, v{w.nm(j)+r}, v{d}"))
        for kb in range(2):
            for r in range(4): out.append(V(f"v_sub_f32 v{w.s(kb,j)+r}, v{w.s(kb,j)+r}, v{d}"))
        out.append(V(f"v_mul_f32 v{w.L+j}, v{w.L+j}, v{f}"))
        for T in range(8):
            for r in range(4): out.append(V(f"v_mul_f32 v{w.o(T,j)+r}, v{w.o(T,j)+r}, v{f}"))
    for gI in softmax_groups(w, par): out += gI
    out.append(nop(3))
    out.append(raw(f"s_setpc_b64 s[{sRet}:{sRet+1}]", 'branch'))
    return fix_hazards(out)

def q_reads(w, st, sl):
    G = []
    for j in range(w.nq): G.append([ds_read(4, w.fb(st, j), w.aN + sl, j * 2048)])
    for T in range(8):
        for hh in range(2):
            if Cfg.wperm: G.append([ds_read(2, w.fa(st, T) + 2 * hh, w.aT + ((T >> 1) & 1), hh * 4096 + (T >> 2) * 2048 + (T & 1) * 8, tr=True)])
            else: G.append([ds_read(2, w.fa(st, T) + 2 * hh, w.aT + (T & 3), hh * 4096 + (T >> 2) * 2048, tr=True)])
    return G
def q_mfmas(w, st, zero):
    return [mfma(w.o(T, j), w.fa(st, T), w.fb(st, j), None if zero else w.o(T, j)) for T in range(8) for j in range(w.nq)]

def q_pack_groups(w, s):
    G = []
    for j in range(w.nq):
        for half in range(2):
            a = w.o(2 * s + half, j)
            for r in range(4): G.append([V(f"v_mul_f32 v{a+r}, s{sQS}, v{a+r}")])
            G.append([V(f"v_cvt_pk_bf16_f32 v{w.q(s,j)+2*half}, v{a}, v{a+1}")])
            G.append([V(f"v_cvt_pk_bf16_f32 v{w.q(s,j)+2*half+1}, v{a+2}, v{a+3}")])
    if not Cfg.wperm:
        for op in ("v_permlane32_swap_b32", "v_permlane16_swap_b32"):
            for j in range(w.nq):
                q = w.q(s, j)
                G.append([V(f"{op} v{q}, v{q+2}")]); G.append([V(f"{op} v{q+1}, v{q+3}")])
    return G
def q_pack_fillers(w):
    n = w.nq
    rng = [(2 * n + 2, 5 * n), (5 * n, 8 * n), (8 * n, 11 * n), (11 * n, 14 * n - 1)]
    return [(q_pack_groups(w, s), rng[s][0], rng[s][1]) for s in range(4)]

def l_reduce(w):
    out = []
    seqs = [xlane("v_add_f32", w.L + j, w.T + j) for j in range(w.nq)]
    for k in range(6):
        for sq in seqs: out.append(sq[k])
    for j in range(w.nq): out.append(V(f"v_rcp_f32 v{w.L+j}, v{w.L+j}"))
    out += [V(f"v_mbcnt_lo_u32_b32 v{w.tmp}, -1, 0"), V(f"v_mbcnt_hi_u32_b32 v{w.tmp}, -1, v{w.tmp}"), V(f"v_lshlrev_b32 v{w.tmp}, 4, v{w.tmp}")]
    return out
def epi_groups(w, s):
    G = []
    for j in range(w.nq):
        d = w.q(s, j)
        for half in range(2):
            a = w.o(2 * s + half, j)
            for r in range(4): G.append([V(f"v_mul_f32 v{a+r}, v{a+r}, v{w.L+j}")])
            G.append([V(f"v_cvt_pk_bf16_f32 v{d+2*half}, v{a}, v{a+1}")])
            G.append([V(f"v_cvt_pk_bf16_f32 v{d+2*half+1}, v{a+2}, v{a+3}")])
        G.append([S(f"s_add_u32 s{sT1}, s{sOst}, {s*10240}")] + dstore(4, d, w.tmp, sWS, f"s{sT1}", j * 1024, tag=('O', 0, True), pol=Cfg.ofast_pol))
    return G
def epi_fillers(w):
    n = w.nq
    rng = [(2 * n + 2, 4 * n + 2), (4 * n + 2, 6 * n + 2), (6 * n + 2, 8 * n), (8 * n, 8 * n)]
    return [([[i] for i in l_reduce(w)], 0, 2 * n + 1)] + [(epi_groups(w, s), rng[s][0], rng[s][1]) for s in range(4)]

def flat(G): return [i for g in G for i in g]
def one(L): return [[i] for i in L]

CAPN = [0]
def dma_kv(w, kind, t, nxt_round, tag):
    srd_ = sK if kind == 'K' else sV
    voff = w.vK if kind == 'K' else w.vV
    n = kidx(t) if kind == 'K' else vidx(t)
    lds = item_slot(n)
    G = []
    for a in range(2):
        for seg in range(2):
            G.append([S(f"s_add_u32 m0, s{sLdsKV}, {lds + a*4096 + seg*2048 - seg*128}"),
                      S(f"s_add_u32 s{sT0}, s{sT4}, {a*4096}"),
                      dma(voff, srd_, f"s{sT0}", seg * 128, Cfg.kv_pol if (kind == 'K' or Cfg.v_pol is None) else Cfg.v_pol, tag=tag)])
    if Cfg.cap and n >= Cfg.capfrom:
        for g in G:
            if Cfg.cap0:
                CAPN[0] += 1
                g[0:0] = [S(f"s_cmp_lg_u32 s{sRound}, 0"), branch("s_cbranch_scc1", f"L_cap{CAPN[0]}"), wait(vm=Cfg.cap - 1), label(f"L_cap{CAPN[0]}")]
            else: g.insert(2, wait(vm=(Cfg.cap if n >= 10 else Cfg.capi) - 1))
    if Cfg.capr0 and n in Cfg.capr0_items:
        for g in G:
            CAPN[0] += 1
            g[0:0] = [S(f"s_cmp_lg_u32 s{sRound}, 0"), branch("s_cbranch_scc1", f"L_cap{CAPN[0]}"), wait(vm=Cfg.capr0 - 1), label(f"L_cap{CAPN[0]}")]
    G[0] = [S(f"s_add_u32 s{sT4}, s{sTau}, {t*8192}"), S(f"s_and_b32 s{sT4}, s{sT4}, 0x1ffff"), S(f"s_add_u32 s{sT4}, s{sT4}, s{sKVbase}")] + G[0]
    return G
POL = ['']
def rot_off(u, unit, base):
    if not Cfg.rot: return [S(f"s_add_u32 s{sT4}, s{base}, {u*unit}")]
    if Cfg.rotn == 88:
        if u < 2: return [S(f"s_add_u32 s{sT4}, s{base}, {u*unit}")]
        return [S(f"s_add_u32 s{sT4}, s{sRho}, {u-2}"), S(f"s_and_b32 s{sT4}, s{sT4}, 7"), S(f"s_add_u32 s{sT4}, s{sT4}, 2"),
                S(f"s_mul_i32 s{sT4}, s{sT4}, {unit}"), S(f"s_add_u32 s{sT4}, s{sT4}, s{base}")]
    if Cfg.rotn == 19:
        if u < 1: return [S(f"s_add_u32 s{sT4}, s{base}, {u*unit}")]
        return [S(f"s_cmp_ge_u32 s{sRho}, {10-u}"), S(f"s_cselect_b32 s{sT4}, {u-9}, {u}"), S(f"s_add_u32 s{sT4}, s{sT4}, s{sRho}"),
                S(f"s_mul_i32 s{sT4}, s{sT4}, {unit}"), S(f"s_add_u32 s{sT4}, s{sT4}, s{base}")]
    return [S(f"s_cmp_ge_u32 s{sRho}, {10-u}"), S(f"s_cselect_b32 s{sT4}, {u-10}, {u}"), S(f"s_add_u32 s{sT4}, s{sT4}, s{sRho}"),
            S(f"s_mul_i32 s{sT4}, s{sT4}, {unit}"), S(f"s_add_u32 s{sT4}, s{sT4}, s{base}")]
def dma_w(w, s, nxt_round, tag):
    lds = wslot(s)
    goff = (s & 1) * 32 * 8192 + (512 if nxt_round else 0)
    G = []
    for hh in range(2):
        for seg in range(2):
            G.append([S(f"s_add_u32 m0, s{sLdsKV}, {lds + hh*4096 + seg*2048 - seg*128}"),
                      S(f"s_add_u32 s{sT0}, s{sT4}, {goff + hh*32768}"),
                      dma(w.vW, sW, f"s{sT0}", seg * 128, POL[0], tag=tag)])
    G[0] = rot_off(s >> 1, 64 * 8192, sWbase) + G[0]
    return G
def dma_x(w, u, tag):
    G = []
    for i in range(5):
        G.append([S(f"s_add_u32 m0, s{sLdsX}, {xbuf(u) + i*2048}"),
                  S(f"s_add_u32 s{sT0}, s{sT4}, {i*20480}"),
                  dma(w.vX, sX, f"s{sT0}", 0, POL[0], tag=tag)])
    G[0] = rot_off(u, 128, sXbase) + G[0]
    return G
def touch_kv(w, kind):
    srd_, ptr = (sK, sTK) if kind == 'K' else (sV, sTV)
    return [[bload(1, w.dummy, w.vTch, srd_, f"s{ptr}", 0, Cfg.touch_pol, tag=('misc',)), S(f"s_add_u32 s{ptr}, s{ptr}, 4096")]]

NAMES = {}
for _t in range(16):
    NAMES[kidx(_t)] = ('K', _t); NAMES[vidx(_t)] = ('V', _t)
def first_use(kind, i):
    if kind == 'W': return i
    if kind == 'X': return 2 * i
    if kind == 'K': return 20 if i == 0 else 19 + i
    if kind == 'V': return 21 + i
    if kind == 'O': return 3
    if kind == 'P': return 35

def loader_schedule(w):
    sch = {i: [] for i in range(37)}
    r0 = lambda G, lab: [[S(f"s_cmp_lg_u32 s{sRound}, 0"), branch("s_cbranch_scc1", lab)] + flat(G) + [label(lab)]]
    sch[0] += r0(dma_w(w, 2, False, ('W', 2, 'cond')), "L_r0a") + dma_x(w, 1, ('X', 1, False)) + r0(dma_w(w, 3, False, ('W', 3, 'cond')), "L_r0b")
    sch[1] += dma_w(w, 4, False, ('W', 4, False)) + dma_x(w, 2, ('X', 2, False))
    sch[2] += dma_w(w, 5, False, ('W', 5, False))
    if not Cfg.holes:
        for s in range(NW, 20): sch[max(s - NW + 1, 3)] += dma_w(w, s, False, ('W', s, False))
        for u in range(NX, 10): sch[2 * (u - NX) + 2] += dma_x(w, u, ('X', u, False))
    else:
        todo = sorted([(s, 'W', s, max(s - NW + 1, 3)) for s in range(NW, 20)] + [(2 * u - 0.5, 'X', u, 2 * (u - NX) + 2) for u in range(NX, 10)])
        load = {i: 0 for i in range(21)}; load[2] = 4
        cur = 2
        for need, kind, i, t0 in todo:
            n = 4 if kind == 'W' else 5
            t = max(t0, cur)
            while t in Cfg.holes or load[t] + n > Cfg.qcap: t += 1
            assert t <= need - 1.5, (kind, i, t)
            cur = t; load[t] += n
            sch[t] += dma_w(w, i, False, ('W', i, False)) if kind == 'W' else dma_x(w, i, ('X', i, False))
        print("Q load", load, file=sys.stderr)
    if not Cfg.no_dma:
        first = Cfg.first
        for n in range(10): sch[first[n]] += dma_kv(w, *NAMES[n], False, NAMES[n] + (False,))
        for n in range(10, 33):
            if n not in NAMES: continue
            k, t = NAMES[n - 10]
            last = (20 + t) if k == 'K' else min(22 + t, 36)
            rem = [m for m in range(10, 33) if m in NAMES]
            paced = 21 + int(rem.index(n) * Cfg.pace)
            when = max(last + 1, min(paced, first_use(*NAMES[n]) - Cfg.lead))
            sch[when] += dma_kv(w, *NAMES[n], False, NAMES[n] + (False,))
    for idx, ss in Cfg.wnext:
        for s_ in ss: sch[idx] += r0(dma_w(w, s_, True, ('W', s_, 'next')), f"L_r0w{s_}")
    w4first = lambda lab: [S(f"s_lshl_b32 s{sT1}, s{sRound}, 3"), S(f"s_add_u32 s{sT1}, s{sT1}, s{sWave}"), S(f"s_cmp_lg_u32 s{sT1}, 4"), branch("s_cbranch_scc1", lab)]
    sch[7] = [w4first("L_p0") + [S(f"s_mov_b32 s{sT1}, s{sFlag}") if Cfg.map84 else S(f"s_lshl_b32 s{sT1}, s{sB}, 3"), V(f"v_mov_b32 v{w.tmp+2}, s{sT1}"), bload(1, w.oPoll, w.tmp + 2, sDBG, 0, 0, 'sc1', tag=('cond',)), label("L_p0")]] + sch[7]
    sch[14] += [w4first("L_m0") + [V(f"v_readfirstlane_b32 s{sT1}, v{w.oPoll}"), S(f"s_bfe_u32 s{sT2}, s{sT1}, 0x80010"), S(f"s_lshr_b32 s{sT1}, s{sT1}, 24"),
                 S(f"s_bcnt1_i32_b32 s{sT1}, s{sT1}"), S(f"s_lshl_b32 s{sT1}, s{sT1}, 8"), S(f"s_or_b32 s{sT1}, s{sT1}, s{sT2}"), S(f"s_cmp_eq_u32 s{sT1}, 0x1ff"),
                 S(f"s_cselect_b32 s{sT1}, {(1 if Cfg.map84 else 3) if Cfg.fast else 0}, 0"), V(f"v_mov_b32 v{w.tmp+1}, s{sT1}"), V(f"v_mov_b32 v{w.tmp+2}, {MODE_LDS}"),
                 raw(f"ds_write_b32 v{w.tmp+2}, v{w.tmp+1}"), label("L_m0")]]
    for name, (idx, rnd) in Cfg.place2.items():
        t = w.tmp + 1
        if name == 'wo':
            body = lane_id(t) + [V(f"v_min_u32 v{t}, 39, v{t}"), V(f"v_lshlrev_b32 v{t}, 7, v{t}"), S(f"s_lshl_b32 s{sT1}, s2, 2"), S(f"s_add_u32 s{sT1}, s{sT1}, s{sWave}"),
                    S(f"s_sub_u32 s{sT1}, s{sT1}, 4"), S(f"s_mul_i32 s{sT1}, s{sT1}, 5120"), bload(1, w.dummy, t, sWO, f"s{sT1}", tag=('cond',))]
        elif name == 'tlb':
            sh = Cfg.tlbsh
            body = lane_id(t) + [V(f"v_and_b32 v{t}, {(131072 >> sh) - 1}, v{t}"), V(f"v_lshlrev_b32 v{t}, {sh}, v{t}"),
                    S(f"s_and_b32 s{sT1}, s{sWave}, 1"), S(f"s_lshl_b32 s{sT1}, s{sT1}, 18"), S(f"s_add_u32 s{sT1}, s{sT1}, s{sKVbase}"),
                    bload(1, w.dummy, t, sK, f"s{sT1}", 0, 'nt', tag=('cond',)), bload(1, w.dummy, t, sV, f"s{sT1}", 0, 'nt', tag=('cond',))]
        elif name == 'wq2':
            body = lane_id(t) + [V(f"v_lshrrev_b32 v{t+1}, 2, v{t}"), V(f"v_min_u32 v{t+1}, 4, v{t+1}"), V(f"v_and_b32 v{t}, 3, v{t}"), V(f"v_lshlrev_b32 v{t}, 7, v{t}"),
                    V(f"v_lshl_add_u32 v{t}, v{t+1}, 13, v{t}"), S(f"s_lshl_b32 s{sT1}, s{sB}, 2"), S(f"s_add_u32 s{sT1}, s{sT1}, s{sWave}"), S(f"s_sub_u32 s{sT1}, s{sT1}, 4"),
                    S(f"s_mul_i32 s{sT1}, s{sT1}, {5*8192}"), S(f"s_lshl_b32 s{sT2}, s{sG}, 10"), S(f"s_add_u32 s{sT1}, s{sT1}, s{sT2}"),
                    bload(1, w.dummy, t, sW, f"s{sT1}", 512, tag=('cond',))]
        else:
            body = lane_id(t) + [V(f"v_lshlrev_b32 v{t}, 7, v{t}"), V(f"v_min_u32 v{t}, {SLAB-128}, v{t}"),
                    S(f"s_lshl_b32 s{sT1}, s2, 3"), S(f"s_add_u32 s{sT1}, s{sT1}, s{sWave}"), S(f"s_mul_i32 s{sT1}, s{sT1}, {SLAB}"), S(f"s_add_u32 s{sT1}, s{sT1}, {XCH_OFF}"),
                    bload(1, w.dummy, t, sWS, f"s{sT1}", 0, 'sc1', tag=('cond',)), S(f"s_sub_u32 s{sT1}, s{sT1}, {4*SLAB}"), bload(1, w.dummy, t, sWS, f"s{sT1}", 0, 'sc1', tag=('cond',))]
        sch[idx] += [[S(f"s_cmp_lg_u32 s{sRound}, {rnd}"), branch("s_cbranch_scc1", f"L_p2{name}")] + body + [label(f"L_p2{name}")]]
    mr = mode_read(w.T)
    sch[17] = [mr[0]] + sch[17]; sch[18] = [mr[1]] + sch[18]
    w4last = lambda lab: [S(f"s_lshl_b32 s{sT1}, s{sRound}, 3"), S(f"s_add_u32 s{sT1}, s{sT1}, s{sWave}"), S(f"s_cmp_lg_u32 s{sT1}, 12"), branch("s_cbranch_scc1", lab)]
    sch[29] = [w4last("L_p1") + [V(f"v_mov_b32 v{w.tmp+2}, s{sFlag}"), bload(1, w.oPoll, w.tmp + 2, sDBG, 0, 0, 'sc1', tag=('cond',)), label("L_p1")]] + sch[29]
    sch[34] += [w4last("L_g1_back") + gate("L_g1", w.oPoll, w.tmp + 2, 0) + [label("L_g1_back")]]
    for u in range(2):
        alt = flat(dma_x(w, 0, ('X', 0, 'next'))) if u == 0 else []
        sch[35 + u] += [[S(f"s_cmp_lg_u32 s{sRound}, 0"), branch("s_cbranch_scc1", f"L_opre{u}")] + alt + [label(f"L_opre{u}_back"), I("; opre", 'comment', tag=('phantom', 0 if Cfg.o_skip else 10))]]
    if not Cfg.no_dma:
        for i, idx in enumerate(sorted(Cfg.touch_at)): sch[idx] += touch_kv(w, 'KV'[i & 1])
        for idx, goff in Cfg.tbatch:
            sch[idx] += [[S(f"s_add_u32 s{sT0}, s{sTau}, {goff}"), S(f"s_and_b32 s{sT0}, s{sT0}, 0x1ffff"), S(f"s_add_u32 s{sT0}, s{sT0}, s{sKVbase}"), bload(1, w.dummy, w.vTch, sK, f"s{sT0}", 0, Cfg.touch_pol, tag=('misc',)),
                          bload(1, w.dummy, w.vTch, sV, f"s{sT0}", 0, Cfg.touch_pol, tag=('misc',))]]
    return sch

def lane_id(r): return [V(f"v_mbcnt_lo_u32_b32 v{r}, -1, 0"), V(f"v_mbcnt_hi_u32_b32 v{r}, -1, v{r}")]
def lane_setup(w):
    t = w.F + 8
    lane, i16, g, a, b, c = t, t + 1, t + 2, t + 3, t + 4, t + 5
    o = lane_id(lane) + [V(f"v_and_b32 v{i16}, 15, v{lane}"), V(f"v_lshrrev_b32 v{g}, 4, v{lane}")]
    o += [V(f"v_lshrrev_b32 v{a}, 1, v{i16}"), V(f"v_xor_b32 v{a}, v{a}, v{g}"), V(f"v_lshlrev_b32 v{a}, 4, v{a}"),
          V(f"v_lshl_add_u32 v{w.aN}, v{i16}, 7, v{a}"), V(f"v_xor_b32 v{w.aN+1}, 64, v{w.aN}")]
    o += [V(f"v_lshrrev_b32 v{a}, 2, v{lane}"), V(f"v_and_b32 v{b}, 6, v{a}"),
          V(f"v_bfe_u32 v{c}, v{lane}, 1, 1"), V(f"v_xor_b32 v{b}, v{b}, v{c}"), V(f"v_lshlrev_b32 v{b}, 4, v{b}"),
          V(f"v_lshl_add_u32 v{b}, v{a}, 7, v{b}"),
          V(f"v_and_b32 v{c}, 1, v{lane}"), V(f"v_lshl_add_u32 v{w.aT}, v{c}, 3, v{b}")]
    for dq in range(1, 4): o.append(V(f"v_xor_b32 v{w.aT+dq}, {dq<<5}, v{w.aT}"))
    return o
def voff_setup(w):
    t = w.F + 16
    r8, p, a, b, row = t, t + 1, t + 2, t + 3, t + 4
    o = [V(f"v_bfe_u32 v{row}, v0, 3, 4"),
         V(f"v_and_b32 v{p}, 7, v0"),
         V(f"v_lshrrev_b32 v{a}, 1, v{row}"), V(f"v_xor_b32 v{a}, v{a}, v{p}"), V(f"v_lshlrev_b32 v{a}, 4, v{a}"),
         V(f"v_and_b32 v{b}, 6, v{row}"), V(f"v_xor_b32 v{b}, v{b}, v{p}"), V(f"v_lshlrev_b32 v{b}, 4, v{b}"),
         V(f"v_and_b32 v{p}, 12, v{row}"), V(f"v_add_u32 v{p}, v{p}, v{row}"), V(f"v_lshl_add_u32 v{w.vW}, v{p}, 13, v{b}"),
         V(f"v_mul_u32_u24 v{p}, 1280, v{row}"), V(f"v_add_u32 v{w.vX}, v{p}, v{a}")]
    o2 = [V(f"v_lshl_add_u32 v{w.vK}, v{row}, 8, v{a}"), V(f"v_lshl_add_u32 v{w.vV}, v{row}, 8, v{b}"),
          V(f"v_and_b32 v{p}, 63, v0"), V(f"v_lshlrev_b32 v{p}, 6, v{p}"), V(f"v_bfe_u32 v{r8}, v0, 6, 1"), V(f"v_lshl_add_u32 v{w.vTch}, v{r8}, 12, v{p}")]
    return o, o2

def add_addr(regs_, delta):
    if delta == 0: return []
    if isinstance(delta, str): return [V(f"v_add_u32 v{r}, {delta}, v{r}") for r in regs_]
    return [V(f"v_add_u32 v{r}, {delta & 0xffffffff:#x}, v{r}") for r in regs_]

def to_w(w, cur):
    t = w.T
    if not Cfg.wperm: return add_addr([w.aT + i for i in range(4)], wslot(0) - cur)
    return add_addr([w.aT + 2, w.aT + 3], item_slot(vidx(0)) - cur) + add_addr([w.aT], wslot(0) - cur) + [
        V(f"v_bfe_u32 v{t}, v{w.aT}, 3, 2"), V(f"v_and_b32 v{w.aT}, 0xffffffe7, v{w.aT}"), V(f"v_lshlrev_b32 v{t}, 4, v{t}"),
        V(f"v_xor_b32 v{w.aT}, v{w.aT}, v{t}"), V(f"v_xor_b32 v{w.aT+1}, 64, v{w.aT}")]
def to_v(w, cur):
    if not Cfg.wperm: return add_addr([w.aT + i for i in range(4)], item_slot(vidx(0)) - cur)
    return [V(f"v_xor_b32 v{w.aT}, 64, v{w.aT+2}"), V(f"v_xor_b32 v{w.aT+1}, 64, v{w.aT+3}")]

def finish(code, pending=None, pre=()):
    c, q = add_lgkm_waits(code, pending)
    return fix_hazards(c, pre), q

def loop_finish(B, q, before):
    B1, q1 = finish(B, q, pre=before[-12:])
    B2, q2 = finish(B, q1, pre=B1[-12:])
    B3, q3 = finish(B, q2, pre=B2[-12:])
    assert emit(B2) == emit(B3) and q2 == q3
    assert len(q) <= len(q2) and q == q2[len(q2) - len(q):], "entry LDS queue must be a suffix of the steady-state queue"
    B4 = fix_hazards(B2, before[-12:])
    assert emit(fix_hazards(B4, B4[-12:])) == emit(B4)
    return B4, q2

def srd(base, ptr, nbytes):
    return [S(f"s_mov_b32 s{base}, s{ptr}"), S(f"s_mov_b32 s{base+1}, s{ptr+1}"), S(f"s_mov_b32 s{base+2}, {nbytes}"), S(f"s_mov_b32 s{base+3}, 0x20000")]

def round_advance():
    return [S(f"s_add_u32 s{sKVbase}, s{sKVbase}, 262144"), S(f"s_add_u32 s{sWbase}, s{sWbase}, 512"),
            S(f"s_add_u32 s{sOst}, s{sOst}, {8*10240}"), S(f"s_add_u32 s{sRound}, s{sRound}, 1"), S(f"s_cmp_lt_u32 s{sRound}, 2")]

def flag_add(t, val, lab):
    return [V(f"v_mov_b32 v{t}, {val}"), V(f"v_mov_b32 v{t+1}, s{sFlag}"), S("s_mov_b64 exec, 1"),
            I(f"buffer_atomic_or v{t}, v{t+1}, s[{sDBG}:{sDBG+3}], 0 offen sc1", 'vstore', rd=regs(t, 2) | regs(sDBG, 4, 's'), tag=('cond',)),
            S("s_mov_b64 exec, -1"), label(lab)]

def common_scalars():
    C = srd(sK, 58, 134217728) + srd(sV, 60, 134217728) + srd(sWO, 64, 5242880) + srd(sOUT, 66, 6553600) + srd(sDBG, 68, 256) \
        + srd(sWS, 70, (160 << 20) if Cfg.stamps else WS_BYTES)
    C += [S(f"s_lshr_b32 s{sT2}, s{sWbase}, 8"),
          S(f"s_lshl_b32 s{sT3}, s{sB}, 5"), S(f"s_add_u32 s{sT3}, s{sT3}, s{sT2}"), S(f"s_lshl_b32 s{sKVbase}, s{sT3}, 17"),
          S(f"s_mul_i32 s{sOst}, s{sT3}, 40960"),] + ([S(f"s_and_b32 s{sKVbase}, s{sKVbase}, 0x20000")] if Cfg.kv_same else []) + [
          S(f"s_lshl_b32 s{sFlag}, s{sB}, 1"), S(f"s_lshr_b32 s{sT2}, s{sG}, 2"), S(f"s_add_u32 s{sFlag}, s{sFlag}, s{sT2}"), S(f"s_lshl_b32 s{sFlag}, s{sFlag}, 2"),
          S(f"s_mul_i32 s{sTau}, s{sT3}, {Cfg.taumul}"), S(f"s_lshr_b32 s{sT2}, s{sT3}, {Cfg.taush}"), S(f"s_add_u32 s{sTau}, s{sTau}, s{sT2}"),
          S(f"s_and_b32 s{sTau}, s{sTau}, {Cfg.taumask}"), S(f"s_lshl_b32 s{sTau}, s{sTau}, 13"),
          S(f"s_mov_b32 s{sRound}, 0"), S(f"s_mov_b32 s{sMode}, 0"), S(f"s_mov_b32 s{sQS}, {f2u(QSCALE)}"), S(f"s_mov_b32 s{sC16}, {WTAB:#x}"), S(f"s_mov_b32 s{sC32}, {2*SLOT}"),
          S(f"s_mov_b32 s{sCX}, 20480"), S(f"s_mov_b32 s{sTK}, s{sKVbase}"), S(f"s_mov_b32 s{sTV}, s{sKVbase}")]
    if Cfg.stamps:
        C += [S(f"s_lshl_b32 s{sStamp+2}, s2, 3"), S(f"s_add_u32 s{sStamp+2}, s{sStamp+2}, s{sWave}"), S(f"s_lshl_b32 s{sStamp+2}, s{sStamp+2}, 10"),
              S(f"s_add_u32 s{sStamp+2}, s{sStamp+2}, {DBG_OFF}")]
    return C
def wave_addr0(w, j0mul, j0add):
    aN = [w.aN, w.aN + 1]; aT = [w.aT + i for i in range(4)]
    C = [S(f"s_bfe_u32 s{sT0}, s{sWave}, 0x10001"), S(f"s_lshl_b32 s{sT0}, s{sT0}, 13"),
         S(f"s_and_b32 s{sT1}, s{sWave}, 1"), S(f"s_mul_i32 s{sT1}, s{sT1}, {j0mul*1024}"), S(f"s_add_u32 s{sT1}, s{sT1}, {j0add*1024}"),
         S(f"s_add_u32 s{sOst}, s{sOst}, s{sT1}"), S(f"s_lshl_b32 s{sT1}, s{sT1}, 1"),
         S(f"s_sub_u32 s{sKX}, s{sT0}, s{sT1}"),
         S(f"s_add_u32 s{sT1}, s{sT1}, {xbuf(0)}")]
    return C + add_addr(aT, f"s{sT0}") + add_addr(aN, f"s{sT1}") + to_w(w, 0)

def gen_w3():
    w = Wave(3); nm = 24
    st = lambda k, real=False: stamp(w.tmp + 1, k, real)
    aN = [w.aN, w.aN + 1]; aT = [w.aT + i for i in range(4)]
    C = [label("L_w3"), raw("s_waitcnt lgkmcnt(0)")]
    if Cfg.codetouch:
        t = w.tmp + 1
        C += [raw(f"s_getpc_b64 s[{sRet}:{sRet+1}]"), label("L_pc0"),
              S(f"s_sub_u32 s{sRet}, s{sRet}, L_pc0-KSTART"), S(f"s_subb_u32 s{sRet+1}, s{sRet+1}, 0"),
              S(f"s_lshr_b32 s{sT0}, s2, 3"), S(f"s_lshl_b32 s{sT0}, s{sT0}, 2"), S(f"s_add_u32 s{sT0}, s{sT0}, s{sWave}"), S(f"s_lshl_b32 s{sT0}, s{sT0}, 7"),
              V(f"v_and_b32 v{t}, 7, v0"), V(f"v_lshlrev_b32 v{t}, 14, v{t}"), V(f"v_add_u32 v{t}, s{sT0}, v{t}"),
              V(f"v_min_u32 v{t}, KEND-KSTART-4, v{t}"),
              I(f"global_load_dword v{w.dummy}, v{t}, s[{sRet}:{sRet+1}]", 'vload', wr=regs(w.dummy), rd=regs(t) | regs(sRet, 2, 's'))]
    if Cfg.warm0:
        t = w.tmp + 1
        C += srd(sW, 62, 5242880) + srd(sX, 56, 6553600)
        C += [V(f"v_and_b32 v{t}, 63, v0"), V(f"v_lshlrev_b32 v{t}, 7, v{t}"),
              S(f"s_mul_i32 s{sT0}, s{sB}, 204800"), S(f"s_mul_i32 s{sT1}, s{sG}, 25600"), S(f"s_add_u32 s{sT0}, s{sT0}, s{sT1}"),
              S(f"s_mul_i32 s{sT1}, s{sWave}, 5760"), S(f"s_add_u32 s{sT0}, s{sT0}, s{sT1}"),
              V(f"v_bfe_u32 v{t+1}, v0, 3, 3"), V(f"v_min_u32 v{t+1}, 4, v{t+1}"), V(f"v_lshlrev_b32 v{t+1}, 13, v{t+1}"),
              V(f"v_and_b32 v{w.T}, 7, v0"), V(f"v_lshl_add_u32 v{t+1}, v{w.T}, 7, v{t+1}"),
              S(f"s_lshl_b32 s{sT1}, s{sB}, 2"), S(f"s_add_u32 s{sT1}, s{sT1}, s{sWave}"), S(f"s_mul_i32 s{sT1}, s{sT1}, {5*8192}"),
              S(f"s_lshl_b32 s{sT2}, s{sG}, 10"), S(f"s_add_u32 s{sT1}, s{sT1}, s{sT2}"),
              barrier()] + ([bload(1, w.dummy, t + 1, sW, f"s{sT1}")] if Cfg.warm0 == 1 else []) + [bload(1, w.dummy, t, sX, f"s{sT0}")]
    C += common_scalars()
    t = w.tmp + 1
    C += [S(f"s_cmp_lg_u32 s{sWave}, 0"), branch("s_cbranch_scc1", "L_noxcc"), raw(f"s_getreg_b32 s{sT0}, hwreg(HW_REG_XCC_ID, 0, 3)"),
          S(f"s_lshl_b32 s{sT0}, 0x1000000, s{sT0}"), S(f"s_lshl_b32 s{sT1}, {0x110000 if Cfg.map84 else 0x10000}, s{sG}"), S(f"s_lshr_b32 s{sT2}, s{sT1}, {4 if Cfg.map84 else 0}"), S(f"s_or_b32 s{sT1}, s{sT1}, s{sT2}"), S(f"s_and_b32 s{sT1}, s{sT1}, 0xff0000"),
          S(f"s_or_b32 s{sT0}, s{sT0}, s{sT1}"), S(f"s_mov_b32 s{sT1}, s{sFlag}") if Cfg.map84 else S(f"s_lshl_b32 s{sT1}, s{sB}, 3"),
          V(f"v_mov_b32 v{t}, s{sT0}"), V(f"v_mov_b32 v{t+1}, s{sT1}"), S("s_mov_b64 exec, 1"),
          I(f"buffer_atomic_or v{t}, v{t+1}, s[{sDBG}:{sDBG+3}], 0 offen sc1", 'vstore', rd=regs(t, 2) | regs(sDBG, 4, 's')),
          S("s_mov_b64 exec, 0xff"), V(f"v_mul_u32_u24 v{t}, {SLAB}, v0"), V(f"v_mov_b32 v{t+1}, 0"), S(f"s_mul_i32 s{sT0}, s2, {XCH_WG}"), S(f"s_add_u32 s{sT0}, s{sT0}, {XCH_OFF + SLAB - 128}"),
          bstore(1, t + 1, t, sWS, f"s{sT0}", 0, 'sc1'),
          S("s_mov_b64 exec, -1"), label("L_noxcc")]
    C += lane_setup(w) + wave_addr0(w, 3, 0)
    def x_wo():
        t = w.tmp + 1
        return lane_id(t) + [V(f"v_min_u32 v{t}, 39, v{t}"), V(f"v_lshlrev_b32 v{t}, 7, v{t}"),
              S(f"s_lshl_b32 s{sT0}, s2, 2"), S(f"s_add_u32 s{sT0}, s{sT0}, s{sWave}"), S(f"s_mul_i32 s{sT0}, s{sT0}, 5120"), bload(1, w.dummy, t, sWO, f"s{sT0}")]
    def x_code():
        t = w.tmp + 1
        return [raw(f"s_getpc_b64 s[{sRet}:{sRet+1}]"), label("L_pc1"),
              S(f"s_add_u32 s{sRet}, s{sRet}, L_o-L_pc1"), S(f"s_addc_u32 s{sRet+1}, s{sRet+1}, 0")] + lane_id(t) + [
              S(f"s_lshl_b32 s{sT0}, s{sWave}, 13"), V(f"v_lshlrev_b32 v{t}, 7, v{t}"), V(f"v_add_u32 v{t}, s{sT0}, v{t}"), V(f"v_min_u32 v{t}, KEND-L_o-4, v{t}"),
              I(f"global_load_dword v{w.dummy}, v{t}, s[{sRet}:{sRet+1}]", 'vload', wr=regs(w.dummy), rd=regs(t) | regs(sRet, 2, 's'))]
    def x_slab():
        t = w.tmp + 1
        return lane_id(t) + [V(f"v_lshlrev_b32 v{t}, 7, v{t}"), V(f"v_min_u32 v{t}, {SLAB-128}, v{t}"),
              S(f"s_lshl_b32 s{sT0}, s2, 3"), S(f"s_add_u32 s{sT0}, s{sT0}, s{sWave}"), S(f"s_mul_i32 s{sT0}, s{sT0}, {SLAB}"), S(f"s_add_u32 s{sT0}, s{sT0}, {XCH_OFF}"),
              bload(1, w.dummy, t, sWS, f"s{sT0}", 0, 'sc1'), S(f"s_add_u32 s{sT0}, s{sT0}, {4*SLAB}"), bload(1, w.dummy, t, sWS, f"s{sT0}", 0, 'sc1')]
    def x_jit():
        return [S(f"s_mul_i32 s{sT0}, s2, 11"), S(f"s_and_b32 s{sT0}, s{sT0}, 31"), label("L_jit"), raw(f"s_sleep {Cfg.jit}"), S(f"s_sub_u32 s{sT0}, s{sT0}, 1"), branch("s_cbranch_scc0", "L_jit")]
    def x_wo2():
        r = [i if i.kind != 'vload' else bload(1, w.dummy, w.tmp + 1, sWO, f"s{sT0}", 0, Cfg.wo2pol) for i in x_wo()]
        r[2] = V(f"v_min_u32 v{w.tmp+1}, {Cfg.wo2n}, v{w.tmp+1}")
        return r
    def extras(where):
        out_ = []
        for name, fn in (('wo', x_wo), ('code', x_code), ('slab', x_slab), ('jit', x_jit), ('wo2', x_wo2)):
            pl = Cfg.place.get(name)
            if pl and pl[0] == where:
                out_ += [S(f"s_cmp_lg_u32 s{sRound}, {pl[1]}"), branch("s_cbranch_scc1", f"L_ex_{name}")] + fn() + [label(f"L_ex_{name}")]
        return out_
    C, _ = finish(C)
    out = C
    def wadv():
        return [S(f"s_bfe_i32 s{sD}, s{sC16}, s{sCnt}"), S(f"s_lshl_b32 s{sD}, s{sD}, 14"), S(f"s_add_u32 s{sCnt}, s{sCnt}, 4"),
                S(f"s_cmp_eq_u32 s{sCnt}, {0x40000 + 4*NW:#x}"), S(f"s_cselect_b32 s{sCnt}, 0x40000, s{sCnt}")] + add_addr(aT[:(2 if Cfg.wperm else 4)], f"s{sD}")
    def xadv():
        return [S(f"s_add_u32 s{sCnt2}, s{sCnt2}, 1"), S(f"s_cmp_eq_u32 s{sCnt2}, {NX}"), S(f"s_cselect_b32 s{sXd}, {(-(NX-1)*20480) & 0xffffffff:#x}, s{sCX}"),
                S(f"s_cselect_b32 s{sCnt2}, 0, s{sCnt2}")] + add_addr(aN, f"s{sXd}")
    def qstage(s, zero=False, extra=()):
        p = s & 1
        adv_ = wadv() + (xadv() if p == 1 else []) + list(extra)
        L = [barrier()] + spread(q_mfmas(w, 1 - p, zero), [(q_reads(w, p, p), 0, Cfg.qr3), (one(adv_), Cfg.qr3 + 1, 23)]) + [wait(lgkm=0)]
        k = [i for i, c in enumerate(L) if c.kind == 'mfma'][Cfg.qcut]
        return L[:k], L[k:]
    C = [label("L_w3_round")] + st(0) + [barrier()] + st(1)
    C += flat(q_reads(w, 0, 0))
    C += add_addr(aT[:(2 if Cfg.wperm else 4)], wslot(1) - wslot(0))
    C += [S(f"s_mov_b32 s{sCnt}, 0x40004"), S(f"s_mov_b32 s{sCnt2}, {(xbuf(0)-NW*SLOT)//20480}"), S(f"s_mov_b32 s{sLoop}, 8")]
    C += [wait(lgkm=0)]
    h1, t1 = qstage(1, zero=True); he, te = qstage(2); ho, to = qstage(3)
    C += h1 + t1 + [wait(vm=0)] + extras('Q2') + he
    C, q = finish(C); out += C
    B = [label("L_w3_q")] + te + ho + to + he
    B += [S(f"s_sub_u32 s{sLoop}, s{sLoop}, 1"), S(f"s_cmp_lg_u32 s{sLoop}, 0"), branch("s_cbranch_scc1", "L_w3_q")]
    Bc, q2 = loop_finish(B, q, out)
    out += Bc
    curT = wslot(20); curN = xbuf(10)
    h19, t19 = qstage(19, extra=add_addr(aN, f"s{sKX}") + add_addr(aN, item_slot(kidx(0)) - curN) + to_v(w, curT))
    mr = mode_read(w.T)
    C = mr[0] + te + mr[1] + extras('Q18') + h19 + t19
    C += st(40) + [barrier()] + st(41)
    k0 = frags_QK(w, 'zero')
    k1 = frags_QK(w, 'negm', pre=add_addr(aN, item_slot(kidx(1)) - item_slot(kidx(0))))
    w.fpos = 0
    C += stream(w, k0, 0, k1, lead=q_mfmas(w, 1, False), fillers=q_pack_fillers(w))
    C += first_max(w)
    C += st(42) + [barrier()] + st(43)
    C += flat(softmax_groups(w, 0)) + l_accum(w, first=True)
    v0 = frags_PV(w, 0, zero=True)
    C += extras('A0')
    C += [S(f"s_mov_b32 s{sKpos}, {item_slot(kidx(1))}"), S(f"s_mov_b32 s{sVpos}, {item_slot(vidx(0))}"), S(f"s_mov_b32 s{sLoop}, 7")]
    def adv(pos, rr):
        return [S(f"s_cmp_ge_u32 s{pos}, {LDS_BYTES - 2*SLOT}"), S(f"s_cselect_b32 s{sD}, {(2*SLOT - LDS_BYTES) & 0xffffffff:#x}, s{sC32}"),
                S(f"s_add_u32 s{pos}, s{pos}, s{sD}")] + add_addr(rr, f"s{sD}")
    def pv(par): return frags_PV(w, par, pre=adv(sVpos, aT))
    def qk(): return frags_QK(w, 'negm', pre=adv(sKpos, aN))
    E_ = 8 - Cfg.late
    def sm_part(late, par, extra=()):
        G = softmax_groups(w, par) + [check_cmp(w)]
        nl = 3 * len(late)
        cut = int(len(G) * Cfg.smpure) if Cfg.late < 8 else 0
        return flat(G[:cut]) + stream(w, late, Cfg.LA, qk(), fillers=[(G[cut:], 0, max(nl - Cfg.smend, 1))] + list(extra)) + check_branch(w, par)
    C += stream(w, k1 + v0[:E_], Cfg.LA, v0[E_:] + qk())
    C += st(44) + [barrier()] + st(45)
    C += sm_part(v0[E_:], 1)
    C, q = finish(C, q2, pre=out[-12:]); out += C
    B = [label("L_w3_a")]
    for par in (1, 0):
        B += stream(w, qk() + pv(par)[:E_], Cfg.LA, pv(par)[E_:] + qk(), fillers=[(one(l_accum(w)), 4, 10)])
        B += [barrier()]
        B += sm_part(pv(par)[E_:], 1 - par)
    B += [S(f"s_sub_u32 s{sLoop}, s{sLoop}, 1"), S(f"s_cmp_lg_u32 s{sLoop}, 0"), branch("s_cbranch_scc1", "L_w3_a")]
    Bc, q2 = loop_finish(B, q, out)
    out += Bc
    C = st(74) + l_accum(w) + mode_vcc() + extras('A15')
    C += stream(w, pv(1), 0, [], fillers=epi_fillers(w))
    C += st(75) + st(77, True)
    curT = item_slot(vidx(15)); curN = item_slot(kidx(16))
    C += to_w(w, curT) + add_addr(aN, xbuf(0) - curN) + [V(f"v_subrev_u32 v{r}, s{sKX}, v{r}") for r in aN]
    C += round_advance()
    C += [branch("s_cbranch_scc1", "L_w3_round"), branch("s_branch", "L_o")]
    C, q = finish(C, q2, pre=out[-12:]); out += C
    assert not q
    return out, rare_routine(w, 0) + rare_routine(w, 1)

def gen_w2():
    w = Wave(2); nm = 16
    st = lambda k, real=False: stamp(w.tmp + 1, k, real)
    aN = [w.aN, w.aN + 1]; aT = [w.aT + i for i in range(4)]
    POL[0] = Cfg.wx_pol
    sch = loader_schedule(w)
    items = lambda idx: sch[idx]
    vo1, vo2 = voff_setup(w)
    en = lambda r: [raw(f"s_memtime s[{r}:{r+1}]")] if Cfg.ent else []
    pro = vo1 + [raw("s_waitcnt lgkmcnt(0)")] + en(94) + srd(sW, 62, 5242880) + srd(sX, 56, 6553600)
    POL[0] = Cfg.pro_pol
    pro += flat(dma_w(w, 0, False, ('W', 0, True))) + flat(dma_x(w, 0, ('X', 0, True))) + flat(dma_w(w, 1, False, ('W', 1, True))) + ([barrier()] if Cfg.warm0 else [])
    pro += en(96)
    pro += vo2 + [V(f"v_mov_b32 v{w.oVoff}, 0"), V(f"v_mov_b32 v{w.oPoll}, 0")] + common_scalars() + lane_setup(w) + wave_addr0(w, 2, 6)
    if Cfg.ent:
        pro += en(98) + [raw("s_waitcnt lgkmcnt(0)"), V(f"v_mov_b32 v{w.tmp+2}, 0")]
        for i, r in enumerate((92, 94, 96, 98, 100)): pro += [V(f"v_mov_b32 v{w.tmp+1}, s{r}"), bstore(1, w.tmp + 1, w.tmp + 2, sWS, f"s{sStamp+2}", 4 * (120 + i), tag=('misc',))]
    C = [label("L_w2_round")] + st(76, True)
    def bar(idx, lgkm=None):
        b = wait(vm=63, lgkm=lgkm); b.tag = (('need', idx), lgkm)
        return st(2 * idx) + [b, barrier()] + st(2 * idx + 1)
    prio = lambda p: [raw(f"s_setprio {p}")] if Cfg.prio == 2 else []
    curT = wslot(0); curN = xbuf(0)
    C += prio(Cfg.qprio)
    if Cfg.q0soft: C += [S(f"s_cmp_lg_u32 s{sRound}, 0"), branch("s_cbranch_scc1", "L_q0p"), raw("s_setprio 0"), label("L_q0p")]
    for s in range(20):
        if Cfg.q0soft and s == Cfg.q0soft: C += prio(Cfg.qprio)
        if Cfg.q0sleep and s < Cfg.q0n: C += [S(f"s_cmp_lg_u32 s{sRound}, 0"), branch("s_cbranch_scc1", f"L_q0s{s}"), raw(f"s_sleep {Cfg.q0sleep}"), label(f"L_q0s{s}")]
        if s < 19:
            newT = wslot(s + 1); newN = xbuf((s + 1) >> 1)
            adv_ = add_addr(aT[:(2 if Cfg.wperm else 4)], newT - curT) + add_addr(aN, newN - curN); curT, curN = newT, newN
        else:
            adv_ = add_addr(aN, f"s{sKX}") + add_addr(aN, item_slot(kidx(0)) - curN) + to_v(w, curT)
        C += bar(s, lgkm=0)
        ex = []
        if s == 3:
            ex = [([[S(f"s_lshl_b32 s{sT1}, s{sRound}, 3"), S(f"s_add_u32 s{sT1}, s{sT1}, s{sWave}"), S(f"s_cmp_lg_u32 s{sT1}, 12"),
                     branch("s_cbranch_scc1", "L_nofl1"), S(f"s_and_b32 s{sT1}, s{sG}, 3"), S(f"s_lshl_b32 s{sT1}, 1, s{sT1}")] + flag_add(w.tmp + 1, f"s{sT1}", "L_nofl1")], 11, 12)]
        if s == 0: C += flat(q_reads(w, 0, 0)) + flat(items(0)) + adv_
        else: C += spread(q_mfmas(w, (s - 1) & 1, s == 1), [(q_reads(w, s & 1, s & 1), 0, Cfg.qr2), (items(s), Cfg.qd0, nm - 2), (one(adv_), Cfg.qr2 + 1, 16)] + ex)
    C += bar(20, lgkm=0)
    def qk(t, fc='negm'): return frags_QK(w, fc, pre=add_addr(aN, item_slot(kidx(t)) - item_slot(kidx(t - 1))) if t else [])
    def pv(t): return frags_PV(w, t & 1, zero=(t == 0), pre=add_addr(aT, item_slot(vidx(t)) - item_slot(vidx(t - 1))) if t else [])
    w.fpos = 0
    C += stream(w, qk(0, 'zero'), 0, qk(1), lead=q_mfmas(w, 1, False), fillers=[(items(20), 0, 2 * nm)] + q_pack_fillers(w))
    C += first_max(w)
    C += flat(softmax_groups(w, 0))
    for t in range(15):
        nx = qk(t + 2) if t < 14 else []
        if Cfg.pp:
            C += prio(Cfg.pp_a)
            C += bar(21 + t)
            C += stream(w, qk(t + 1) + pv(t), Cfg.LA, nx, fillers=[(one(l_accum(w, first=(t == 0))), 3, 8)])
            C += prio(Cfg.pp_b)
            G = softmax_groups(w, (t + 1) & 1) + [check_cmp(w)]
            sm = [g for g in G]
            it_ = items(21 + t)
            base = [I("; g", 'comment') for _ in sm]
            merged = spread(base, [(it_, 0, len(sm))])
            k = 0
            for c in merged:
                if c.kind == 'comment' and c.text == "; g": C += sm[k]; k += 1
                else: C.append(c)
            C += check_branch(w, (t + 1) & 1)
        else:
            C += prio(0)
            if 21 + t in Cfg.drain: C += [wait(vm=Cfg.drain[21 + t])]
            C += bar(21 + t)
            it_ = items(21 + t); h = (len(it_) * Cfg.dsplit + 99) // 100
            C += stream(w, qk(t + 1), Cfg.LA, pv(t), fillers=[(it_[:h], 0, nm), (one(l_accum(w, first=(t == 0))), 3, 8)])
            C += prio(1)
            C += stream(w, pv(t), Cfg.LA, nx, fillers=[(it_[h:], 1, nm + 1)] + sm_fillers(w, (t + 1) & 1, 2))
            C += check_branch(w, (t + 1) & 1)
    C += prio(0)
    C += bar(36)
    C += flat(items(36))
    C += st(74) + l_accum(w) + mode_vcc()
    C += stream(w, pv(15), 0, [], fillers=epi_fillers(w))
    C += st(75) + st(77, True)
    curT = item_slot(vidx(15)); curN = item_slot(kidx(15))
    C += to_w(w, curT) + add_addr(aN, xbuf(0) - curN) + [V(f"v_subrev_u32 v{r}, s{sKX}, v{r}") for r in aN]
    C += round_advance()
    C += [branch("s_cbranch_scc1", "L_w2_round"), branch("s_branch", "L_o")]
    VM = ('dma', 'vload', 'vstore')
    def resolve(prefix, first):
        res = {}
        q = [(c.tag[0], c.tag[1]) if len(c.tag) == 3 and c.tag[2] in (True, 'next') else None for c in prefix if c.kind in VM and c.tag != ('cond',)]
        for c in C:
            if c.kind in VM:
                if c.tag == ('cond',): continue
                if c.tag[-1] in ('cond', 'next') and not first: continue
                q.append((c.tag[0], c.tag[1]) if len(c.tag) == 3 and c.tag[2] in (False, 'cond') else None)
            elif c.kind == 'comment' and c.tag and c.tag[0] == 'phantom':
                if not first: q += [None] * c.tag[1]
            elif c.kind == 'wait' and isinstance(c.tag[0], tuple):
                idx = c.tag[0][1]
                last = -1
                for k, it in enumerate(q):
                    if it is not None and first_use(it[0], it[1]) <= idx: last = k
                res[idx] = min(63, len(q) - 1 - last)
        return res
    r1 = resolve(pro, True); r2 = resolve(C, False)
    C2 = []
    for c in C:
        if c.kind == 'wait' and isinstance(c.tag[0], tuple):
            idx = c.tag[0][1]; n = min(r1[idx], r2[idx]); lg = c.tag[1]
            if abs(r1[idx] - r2[idx]) > 1:
                C2 += [S(f"s_cmp_eq_u32 s{sRound}, {0 if r1[idx] > r2[idx] else 1}"), branch("s_cbranch_scc1", f"L_rw{idx}"), wait(vm=n), label(f"L_rw{idx}")]
                n = max(r1[idx], r2[idx])
            c.text = f"s_waitcnt vmcnt({n})" + (f" lgkmcnt({lg})" if lg is not None else ""); c.tag = (n, lg)
        C2.append(c)
    C = C2
    pro, _ = finish(pro)
    C, q = finish(C, [], pre=pro[-12:])
    assert not q
    return pro + C + gen_opre(w), rare_routine(w, 0) + rare_routine(w, 1)

OSLOT = 40960
def oslot(u): return ((u + 2) & 3) * OSLOT
def o_voff(nh, VOFF, lane, a, b):
    if nh == 1 and Cfg.fake_wot:
        return [V(f"v_lshrrev_b32 v{a}, 2, v{lane}"), V(f"v_mul_u32_u24 v{a}, 320, v{a}"), V(f"v_and_b32 v{VOFF}, 3, v{lane}"), V(f"v_lshl_add_u32 v{VOFF}, v{VOFF}, 4, v{a}")]
    if nh == 0: return [V(f"v_lshlrev_b32 v{VOFF}, 4, v{lane}")]
    return [V(f"v_lshrrev_b32 v{a}, 2, v{lane}"), V(f"v_mul_u32_u24 v{a}, 1280, v{a}"), V(f"v_bfe_u32 v{b}, v{lane}, 4, 1"), V(f"v_lshlrev_b32 v{b}, 1, v{b}"),
            V(f"v_and_b32 v{VOFF}, 3, v{lane}"), V(f"v_xor_b32 v{VOFF}, v{VOFF}, v{b}"), V(f"v_lshl_add_u32 v{VOFF}, v{VOFF}, 4, v{a}")]
def o_base(nh, sBase, sLd):
    C = [S(f"s_and_b32 s{sLd}, s{sWave}, 1"), S(f"s_mul_i32 s{sLd}, s{sLd}, 5120")]
    if nh == 0: C += [S(f"s_mul_i32 s{sBase}, s{sB}, {128*10240}"), S(f"s_add_u32 s{sBase}, s{sBase}, s{sLd}")]
    else: C += [S(f"s_lshl_b32 s{sBase}, s{sLd}, 2"), S(f"s_and_b32 s{sT2}, s{sG}, 3"), S(f"s_mul_i32 s{sT2}, s{sT2}, {5120 if Cfg.fake_wot else 320}"), S(f"s_add_u32 s{sBase}, s{sBase}, s{sT2}"),
                S(f"s_add_u32 s{sLd}, s{sLd}, 10240")]
    step = 10240 if nh == 0 else 40960
    C += [S(f"s_add_u32 s{sT3}, s{sG}, s{sB}")] if Cfg.orot else [S(f"s_mov_b32 s{sT3}, 0")]
    for u in range(4):
        C += [S(f"s_add_u32 s{sT2}, s{sT3}, {u}"), S(f"s_and_b32 s{sT2}, s{sT2}, 3"), S(f"s_mul_i32 s{sOoff+u}, s{sT2}, {step}")]
    return C
def o_dma(nh, u, VOFF, sSo, sLd, goff=0, loff=0, srd_=None):
    step = 10240 if nh == 0 else 40960
    G = []
    if Cfg.o_skip & (1 << nh): return G
    for i in range(5):
        if nh == 0:
            imm = (i & 3) * 1024; ex = (i >> 2) * 4096
            g = [S(f"s_add_u32 m0, s{sLd}, {oslot(u) + ex + loff}"), S(f"s_add_u32 s{sT0}, s{sSo}, s{sOoff+u}")] + ([S(f"s_add_u32 s{sT0}, s{sT0}, {ex + goff}")] if ex + goff else []) if imm == 0 else []
            G.append(g + [dma(VOFF, srd_ or sWS, f"s{sT0}", imm, Cfg.old_pol)])
        else:
            g = [S(f"s_add_u32 m0, s{sLd}, {oslot(u) + i*1024 - i*64 + loff}")]
            if i == 0: g += [S(f"s_add_u32 s{sT0}, s{sSo}, s{sOoff+u}")] + ([S(f"s_add_u32 s{sT0}, s{sT0}, {goff}")] if goff else [])
            G.append(g + [dma(VOFF, srd_ or sWO, f"s{sT0}", i * 64)])
    return G
def gate(lab, POLL, vfl, shift):
    return [V(f"v_readfirstlane_b32 s{sT2}, v{POLL}"), S(f"s_bfe_u32 s{sT2}, s{sT2}, {0x40000 + shift:#x}"), S(f"s_cmp_lg_u32 s{sT2}, 15"),
            branch("s_cbranch_scc1", lab)]
def spin(lab, POLL, vfl, shift, back):
    return [label(lab), bload(1, POLL, vfl, sDBG, 0, 0, 'sc1'), S(f"s_sub_u32 s{sCnt}, s{sCnt}, 1"), S(f"s_cmp_lt_i32 s{sCnt}, 0"), branch("s_cbranch_scc1", back),
            wait(vm=0), V(f"v_readfirstlane_b32 s{sT2}, v{POLL}"), S(f"s_bfe_u32 s{sT2}, s{sT2}, {0x40000 + shift:#x}"), S(f"s_cmp_eq_u32 s{sT2}, 15"),
            branch("s_cbranch_scc1", back), raw(f"s_sleep {Cfg.xsleep}"), branch("s_branch", lab)]

def gen_opre(w):
    sSo, sLd = sTK, sTV
    C = []
    for u in range(2):
        C += [label(f"L_opre{u}"), S(f"s_bitcmp1_b32 s{sWave}, 1"), branch("s_cbranch_scc1", f"L_opre{u}_1")]
        for nh in range(2):
            step = 10240 if nh == 0 else 40960
            B = [label(f"L_opre{u}_{nh}")]
            if u == 0:
                t = w.tmp + 1
                B += lane_id(t) + o_voff(nh, w.oVoff, t, w.dummy, w.vTch) + o_base(nh, sSo, sLd)
                B += [S(f"s_and_b32 s{sT3}, s{sG}, 4"), S(f"s_mul_i32 s{sT3}, s{sT3}, {16*step}"), S(f"s_add_u32 s{sSo}, s{sSo}, s{sT3}")]
            for ks in range(2): B += flat(o_dma(nh, u, w.oVoff, sSo, sLd, goff=ks * 4 * step, loff=ks * 20480))
            B += [branch("s_branch", f"L_opre{u}_back")]
            C += fix_hazards(B)
    C += fix_hazards([label("L_g1"), S(f"s_mov_b32 s{sCnt}, 0x8000"), V(f"v_mov_b32 v{w.tmp+2}, s{sFlag}")] + spin("L_g1_spin", w.oPoll, w.tmp + 2, 0, "L_g1_back"))
    return C

def gen_o():
    ACC = 0; SET = [100, 140]
    aB, aA0, aA1 = 180, 182, 184
    VOFF, POLL, VFL, T, L16, POLL2 = 186, 187, 188, 190, 196, 198
    LW, LR, VO, VO2 = T + 2, T + 3, T + 4, 199
    RB = 200
    sSo, sHi, sLd, sBase, sKs, sNq = 36, 37, 39, 40, 43, 44
    sXo, sXp, sOb, sVar = 60, 61, 62, 63
    sOD = sK
    st = lambda k, real=False: stamp(T, k, real)
    def acc(t): return ACC + 4 * t
    def fB(s_, jj): return SET[s_] + 4 * jj
    def fA(s_, nn): return SET[s_] + 20 + 4 * nn
    TS = [list(range(0, 7)), list(range(7, 13)), list(range(13, 19)), list(range(19, 25))]
    C = [label("L_o")] + st(80)
    if Cfg.prio: C += [raw("s_setprio 0")]
    lane = T; a = T + 1; b = T + 5
    C += lane_id(lane) + [V(f"v_lshlrev_b32 v{L16}, 4, v{lane}")]
    C += [S(f"s_lshr_b32 s{sKs}, s{sWave}, 2"), S(f"s_mul_i32 s{sT0}, s{sKs}, 20480"), S(f"s_and_b32 s{sT1}, s{sWave}, 1"), S(f"s_mul_i32 s{sT1}, s{sT1}, 5120"),
          S(f"s_add_u32 s{sT1}, s{sT0}, s{sT1}"),
          V(f"v_add_u32 v{aB}, s{sT1}, v{L16}"), V(f"v_add_u32 v{aB+1}, {2*OSLOT}, v{aB}"),
          V(f"v_lshrrev_b32 v{a}, 2, v{lane}"), V(f"v_bfe_u32 v{b}, v{lane}, 4, 1"), V(f"v_lshlrev_b32 v{b}, 5, v{b}"), V(f"v_lshl_add_u32 v{b}, v{a}, 6, v{b}"),
          V(f"v_and_b32 v{a}, 3, v{lane}"), V(f"v_lshl_add_u32 v{b}, v{a}, 3, v{b}"),
          S(f"s_add_u32 s{sT1}, s{sT0}, 10240"), V(f"v_add_u32 v{aA0}, s{sT1}, v{b}"), V(f"v_xor_b32 v{aA1}, 32, v{aA0}"),
          V(f"v_add_u32 v{aA0+1}, {2*OSLOT}, v{aA0}"), V(f"v_add_u32 v{aA1+1}, {2*OSLOT}, v{aA1}"),
          S(f"s_mov_b32 s{sHi}, 0")]
    C += [S(f"s_bitcmp1_b32 s{sWave}, 1"), branch("s_cbranch_scc1", "L_o_1")]
    C = fix_hazards(C)
    def late_setup():
        return [V(f"v_mov_b32 v{VFL}, s{sFlag}"), V(f"v_xor_b32 v{VFL+1}, 4, v{VFL}"), V(f"v_mov_b32 v{POLL}, 0"), V(f"v_mov_b32 v{POLL2}, 0"),
         S(f"s_and_b32 s{sNq}, s{sG}, 3"), S(f"s_mov_b32 s{sCnt}, 0x8000"),
         S(f"s_mul_i32 s{sT0}, s{sWave}, 13312"), V(f"v_add_u32 v{LW}, s{sT0}, v{L16}"),
         S(f"s_xor_b32 s{sT1}, s{sWave}, 4"), S(f"s_mul_i32 s{sT0}, s{sT1}, 13312"), V(f"v_add_u32 v{LR}, s{sT0}, v{L16}"),
         S(f"s_lshl_b32 s{sT0}, s2, 3"), S(f"s_add_u32 s{sT0}, s{sT0}, s{sWave}"), S(f"s_mul_i32 s{sXo}, s{sT0}, {SLAB}"), S(f"s_add_u32 s{sXo}, s{sXo}, {XCH_OFF}"),
         S(f"s_xor_b32 s{sT0}, s{sT0}, {8 if Cfg.map84 else 256}"), S(f"s_mul_i32 s{sXp}, s{sT0}, {SLAB}"), S(f"s_add_u32 s{sXp}, s{sXp}, {XCH_OFF}"),
         V(f"v_bfe_u32 v{VO}, v{L16}, 4, 4"), V(f"v_mul_u32_u24 v{VO}, 1280, v{VO}"),
         V(f"v_bfe_u32 v{a}, v{L16}, 8, 1"), V(f"v_lshl_add_u32 v{VO2}, v{a}, 5, v{VO}"), V(f"v_lshrrev_b32 v{a}, 9, v{L16}"), V(f"v_lshl_add_u32 v{VO2}, v{a}, 4, v{VO2}"),
         V(f"v_lshrrev_b32 v{a}, 8, v{L16}"), V(f"v_lshl_add_u32 v{VO}, v{a}, 3, v{VO}"),
         S(f"s_mul_i32 s{sOb}, s{sB}, 204800"), S(f"s_and_b32 s{sT0}, s{sWave}, 1"), S(f"s_mul_i32 s{sT0}, s{sT0}, 102400"), S(f"s_add_u32 s{sOb}, s{sOb}, s{sT0}"),
         S(f"s_mul_i32 s{sT0}, s{sNq}, 320"), S(f"s_add_u32 s{sOb}, s{sOb}, s{sT0}"), S(f"s_bfe_u32 s{sT0}, s{sWave}, 0x10001"), S(f"s_mul_i32 s{sT0}, s{sT0}, 160"),
         S(f"s_add_u32 s{sOb}, s{sOb}, s{sT0}"),
         S(f"s_lshr_b32 s{sVar}, s{sG}, 2"), S(f"s_lshl_b32 s{sT1}, s{sKs}, 1"), S(f"s_add_u32 s{sVar}, s{sVar}, s{sT1}")] + mode_vcc()
    def poll_load(): return [bload(1, POLL, VFL, sDBG, 0, 0, 'sc1'), bload(1, POLL2, VFL + 1, sDBG, 0, 0, 'sc1')]
    for nh in range(2):
        step = 10240 if nh == 0 else 40960
        src = sWS if nh == 0 else sWO
        R_ = [label(f"L_o_{nh}")] + o_voff(nh, VOFF, lane, a, b) + o_base(nh, sBase, sLd) + [S(f"s_add_u32 s{sLd}, s{sLd}, s{sT0}")]
        R_ += [S(f"s_mov_b32 s{sOD+i}, s{src+i}") for i in range(3)]
        def head_setup():
            return [S(f"s_and_b32 s{sT2}, s{sHi}, 3"), S(f"s_and_b32 s{sT3}, s{sG}, 4"), S(f"s_add_u32 s{sT2}, s{sT2}, s{sT3}"),
                    S(f"s_lshl_b32 s{sT2}, s{sT2}, 2"), S(f"s_lshr_b32 s{sT3}, s{sHi}, 2"), S(f"s_lshl_b32 s{sT3}, s{sT3}, 1"), S(f"s_add_u32 s{sT2}, s{sT2}, s{sT3}"),
                    S(f"s_add_u32 s{sT2}, s{sT2}, s{sKs}"), S(f"s_mul_i32 s{sT2}, s{sT2}, {4*step}"), S(f"s_add_u32 s{sSo}, s{sBase}, s{sT2}"),
                    S(f"s_add_u32 s{sHi}, s{sHi}, 1")]
        odma = lambda u: o_dma(nh, u, VOFF, sSo, sLd, srd_=sOD)
        def oreads(u):
            s_ = u & 1; hi = oslot(u) // (2 * OSLOT); off = oslot(u) % (2 * OSLOT)
            G = []
            for k in range(5):
                nb = 5 * nh + k
                ar = (aA1 if nb & 1 else aA0) + hi
                G.append([ds_read(2, fA(s_, k) + 2 * hh, ar, off + (hh * 5 + (nb >> 1)) * 1024, tr=True) for hh in range(2)])
                G.append([ds_read(4, fB(s_, k), aB + hi, off + k * 1024)])
            return G
        def omf(s_): return [mfma(acc(t), fA(s_, t % 5), fB(s_, t // 5), acc(t)) for t in range(25)]
        R_ += head_setup()
        R_ += [wait(vm=18), barrier()] + st(81) + st(82)
        R_ += flat(oreads(0))
        for r in range(50): R_.append(V(f"v_pk_mov_b32 v[{ACC+2*r}:{ACC+2*r+1}], 0, 0"))
        R_ += late_setup() + flat(odma(2))
        R_ += [wait(vm=13), branch("s_branch", f"L_o_in{nh}")]
        R_, q = finish(R_)
        it = lambda hi, wv, lab: [S(f"s_lshl_b32 s{sT2}, s{sHi}, 3"), S(f"s_add_u32 s{sT2}, s{sT2}, s{sWave}"), S(f"s_cmp_lg_u32 s{sT2}, {hi*8+wv}"), branch("s_cbranch_scc1", lab)]
        def ostage(u):
            L = [wait(vm=5, lgkm=0), barrier()]
            if u == 1: L = [wait(vm=5), label(f"L_o_in{nh}"), wait(lgkm=0), barrier()]
            fill = [(oreads(u)[:Cfg.o_nr], 0, Cfg.orh)]
            d = odma((u + 2) & 3)
            if u == 1:
                d = d + [head_setup() + [S(f"s_cmp_gt_u32 s{sHi}, 8"), S(f"s_cselect_b32 s{sOD+2}, 0, s{sOD+2}")]]
                if nh == 0: d = d + [it(5, 0, "L_g3_back") + gate("L_g2", POLL, VFL, 8) + [label("L_g2_back")] + gate("L_g3", POLL2, VFL + 1, 0) + [label("L_g3_back")]]
            if u == 3 and nh == 0: d = [it(4, 0, "L_p2") + poll_load() + [label("L_p2")]] + d
            if u == 2 and nh == 1:
                d = [it(2, 2, "L_nofl2") + [S(f"s_lshl_b32 s{sT2}, 0x100, s{sNq}")] + flag_add(T, f"s{sT2}", "L_nofl2")] + d
            if u == Cfg.tlbu and Cfg.tlbwarm:
                d = d + [[S(f"s_cmp_lg_u32 s{sHi}, {Cfg.tlbwarm}"), branch("s_cbranch_scc1", f"L_tw{nh}"), V(f"v_lshlrev_b32 v{T}, 3, v{L16}"), V(f"v_min_u32 v{T}, {SLAB-128}, v{T}"),
                          bload(1, RB, T, sWS, f"s{sXo}", 0, 'sc1'), label(f"L_tw{nh}")]]
            if u == 3: d = d + [[S(f"s_cmp_gt_u32 s{sHi}, 8")]]
            fill.append((d, Cfg.od0, Cfg.od1))
            if Cfg.oprio:
                n_ = len(Cfg.oprio)
                L = L[:-1] + [raw(f"s_setprio {n_}"), L[-1]]
                for i, pos in enumerate(Cfg.oprio): fill.append(([[raw(f"s_setprio {n_-1-i}")]], pos - 1, pos))
            return L + spread(omf(1 - (u & 1)), fill)
        B = [label(f"L_o_loop{nh}")] + ostage(1) + ostage(2) + ostage(3) + [branch("s_cbranch_scc1", "L_o_fin")] + ostage(0) + [branch("s_branch", f"L_o_loop{nh}")]
        Bc, q2 = loop_finish(B, [], R_)
        E = []
        if nh == 0: E += spin("L_g2", POLL, VFL, 8, "L_g2_back") + spin("L_g3", POLL2, VFL + 1, 0, "L_g3_back")
        C += R_ + Bc + fix_hazards(E)
    E = [label("L_o_fin")] + st(83) + [wait(vm=0, lgkm=0), barrier()]
    for v in range(1, 4): E += [S(f"s_cmp_eq_u32 s{sVar}, {v}"), branch("s_cbranch_scc1", f"L_o_epi{v}")]
    C += E
    for v in range(4):
        ks, kh = v >> 1, v & 1
        mine = TS[v]; xsend = TS[v ^ 1]; keep = sorted(mine + xsend); lsend = sorted(TS[v ^ 2] + TS[v ^ 3])
        ls = lambda i: [raw(f"s_memtime s[{64+2*i}:{65+2*i}]" if i < 4 else f"s_memtime s[{92+2*(i-4)}:{93+2*(i-4)}]"), wait(lgkm=0)] if Cfg.stamps == 6 else []
        E = [label(f"L_o_epi{v}")] + ls(0)
        order = lsend + xsend + mine
        mf = [mfma(acc(t), fA(1, t % 5), fB(1, t // 5), acc(t)) for t in order]
        wr = [[ds_write(4, LW, acc(t), i * 1024)] for i, t in enumerate(lsend)]
        E += spread(mf, [(wr, 4, 19)])
        E += [wait(lgkm=0)] + ls(1) + [barrier()] + ls(2)
        rorder = xsend + mine
        for i, t in enumerate(rorder): E.append(ds_read(4, RB + 4 * i, LR, keep.index(t) * 1024))
        PK = SET[0]
        for i, t in enumerate(rorder):
            for r in range(0, 4, 2): E.append(V(f"v_pk_add_f32 v[{acc(t)+r}:{acc(t)+r+1}], v[{acc(t)+r}:{acc(t)+r+1}], v[{RB+4*i+r}:{RB+4*i+r+1}]"))
            if t in xsend:
                k = xsend.index(t)
                E += [V(f"v_cvt_pk_bf16_f32 v{PK+2*k}, v{acc(t)}, v{acc(t)+1}"), V(f"v_cvt_pk_bf16_f32 v{PK+2*k+1}, v{acc(t)+2}, v{acc(t)+3}")]
                if k & 1 or k == len(xsend) - 1: E += dstore(4, PK + 4 * (k >> 1), L16, sWS, f"s{sXo}", (k >> 1) * 1024)
        E += st(84) + ls(3)
        n = len(mine); nl = (n + 1) // 2
        E += [V(f"v_mov_b32 v{POLL2}, 1"), V(f"v_mov_b32 v{VFL}, {SLAB-128}"), wait(vm=0), S("s_mov_b64 exec, 1")] + dstore(1, POLL2, VFL, sWS, f"s{sXo}", 0)
        if Cfg.poll_nt:
            SLOW.append([label(f"L_xp{v}"), bload(1, POLL, VFL, sWS, f"s{sXp}", 0, 'sc1'), branch("s_branch", f"L_xp{v}_b")])
            pl = [branch("s_cbranch_vccz", f"L_xp{v}"), bload(1, POLL, VFL, sWS, f"s{sXp}", 0, 'nt'), label(f"L_xp{v}_b")]
        else: pl = [bload(1, POLL, VFL, sWS, f"s{sXp}", 0, 'sc1')]
        E += [label(f"L_x{v}")] + pl + [
              S(f"s_sub_u32 s{sCnt}, s{sCnt}, 1"), S(f"s_cmp_lt_i32 s{sCnt}, 0"), branch("s_cbranch_scc1", f"L_x{v}_ok"), wait(vm=0),
              V(f"v_readfirstlane_b32 s{sT2}, v{POLL}"), S(f"s_cmp_eq_u32 s{sT2}, 1"), branch("s_cbranch_scc1", f"L_x{v}_ok"),
              raw(f"s_sleep {Cfg.xsleep2}"), branch("s_branch", f"L_x{v}"), label(f"L_x{v}_ok"), S("s_mov_b64 exec, -1")]
        ld = lambda pol: [bload(4, RB + 4 * k, L16, sWS, f"s{sXp}", k * 1024, pol) for k in range(nl)]
        SLOW.append([label(f"L_xl{v}")] + ld('sc1') + [branch("s_branch", f"L_xl{v}_b")])
        E += [branch("s_cbranch_vccz", f"L_xl{v}")] + ld('') + [label(f"L_xl{v}_b")]
        E += st(85) + ls(4)
        E += [wait(vm=0)] + ls(6)
        U = RB + 16
        k = 0
        while k < n:
            pair = Cfg.widest and k + 1 < n and mine[k] // 5 == mine[k + 1] // 5
            d = acc(mine[k])
            for h in range(2 if pair else 1):
                a_ = acc(mine[k + h]); r0 = RB + 2 * (k + h)
                E += [V(f"v_lshlrev_b32 v{U}, 16, v{r0}"), V(f"v_and_b32 v{U+1}, 0xffff0000, v{r0}"), V(f"v_lshlrev_b32 v{U+2}, 16, v{r0+1}"), V(f"v_and_b32 v{U+3}, 0xffff0000, v{r0+1}")]
                for r in range(0, 4, 2): E.append(V(f"v_pk_add_f32 v[{a_+r}:{a_+r+1}], v[{a_+r}:{a_+r+1}], v[{U+r}:{U+r+1}]"))
                E += [V(f"v_cvt_pk_bf16_f32 v{d+2*h}, v{a_}, v{a_+1}"), V(f"v_cvt_pk_bf16_f32 v{d+2*h+1}, v{a_+2}, v{a_+3}")]
            t = mine[k]
            E += [S(f"s_add_u32 s{sT0}, s{sOb}, {(t//5)*20480}")]
            if pair: E += [V(f"v_permlane16_swap_b32 v{d}, v{d+2}"), V(f"v_permlane16_swap_b32 v{d+1}, v{d+3}"), bstore(4, d, VO2, sOUT, f"s{sT0}", (t % 5) * 32, Cfg.out_pol)]
            else: E += [bstore(2, d, VO, sOUT, f"s{sT0}", (t % 5) * 32, Cfg.out_pol)]
            k += 2 if pair else 1
        E += st(86) + st(77, True)
        if Cfg.stamps == 6:
            E += [wait(vm=0)] + ls(5) + [V(f"v_mov_b32 v{T+1}, 0"), V(f"v_mov_b32 v{T}, s{sCnt}"), bstore(1, T, T + 1, sWS, f"s{sStamp+2}", 4 * 106)]
            for i, r in enumerate([64, 66, 68, 70, 92, 94]): E += [V(f"v_mov_b32 v{T}, s{r}"), bstore(1, T, T + 1, sWS, f"s{sStamp+2}", 4 * (100 + i))]
            E += [V(f"v_mov_b32 v{T}, s96"), bstore(1, T, T + 1, sWS, f"s{sStamp+2}", 4 * 107)]
        if Cfg.dbgst and ks == 1:
            E += [S(f"s_cmp_lg_u32 s{sWave}, 4"), branch("s_cbranch_scc1", f"L_dbgend{v}"), S(f"s_cmp_lg_u32 s2, {Cfg.dbgst}"), branch("s_cbranch_scc1", f"L_dbgend{v}"),
                  S("s_mov_b64 exec, 1"), V("v_mov_b32 v1, 0")]
            for i, r in enumerate(DREG):
                E += [S(f"s_sub_u32 s{r}, s{r}, s{sStamp+2}"), S(f"s_lshr_b32 s{r}, s{r}, 8"), S(f"s_and_b32 s{r}, s{r}, 0x3ff"), S(f"s_lshl_b32 s{r}, s{r}, {12 + 10*(i&1)}"), V(f"v_mov_b32 v{2+i}, s{r}"),
                      raw(f"buffer_atomic_or v{2+i}, v1, s[{sDBG}:{sDBG+3}], 0 offen offset:{8*(i>>1)+4} sc1")]
            E += [label(f"L_dbgend{v}")]
        E += [raw("s_endpgm")]
        E, _ = finish(E)
        C += E
    return C

def gen_kernel(name):
    C = [raw(f".globl {name}\n.p2align 8\n.type {name},@function\n{name}:\nKSTART:", 'label')]
    C += [S("s_cmp_lt_u32 s2, 256"), branch("s_cbranch_scc1", "L_go"), raw("s_endpgm"), label("L_go")]
    C += [raw("s_load_dwordx16 s[56:71], s[0:1], 0")]
    if Cfg.ent: C += [raw("s_memtime s[92:93]"), raw("s_memrealtime s[100:101]")]
    if Cfg.dbgst: C += [raw(f"s_memtime s[{sStamp+2}:{sStamp+3}]")] + [S(f"s_mov_b32 s{r}, 0") for r in DREG]
    if Cfg.delay:
        C += [S(f"s_bitcmp0_b32 s2, {Cfg.delay_bit}"), branch("s_cbranch_scc1", "L_nodelay"), S(f"s_mov_b32 s{sT0}, {Cfg.delay // 1024}"), label("L_delay"), raw("s_sleep 16"),
              S(f"s_sub_u32 s{sT0}, s{sT0}, 1"), S(f"s_cmp_lg_u32 s{sT0}, 0"), branch("s_cbranch_scc1", "L_delay"), label("L_nodelay")]
    C += [V("v_lshrrev_b32 v1, 6, v0"),
          S(f"s_and_b32 s{sB}, s2, 7"), S(f"s_lshl_b32 s{sB}, s{sB}, 2"), V(f"v_readfirstlane_b32 s{sWave}, v1"),
          S(f"s_lshr_b32 s{sT0}, s2, 6"), S(f"s_add_u32 s{sB}, s{sB}, s{sT0}"), S(f"s_bfe_u32 s{sG}, s2, 0x30003")]
    if Cfg.map84:
        C += [S(f"s_and_b32 s{sB}, s2, 6"), S(f"s_lshl_b32 s{sB}, s{sB}, 2"), S(f"s_lshr_b32 s{sT0}, s2, 5"), S(f"s_add_u32 s{sB}, s{sB}, s{sT0}"),
              S(f"s_and_b32 s{sG}, s2, 1"), S(f"s_lshl_b32 s{sG}, s{sG}, 2"), S(f"s_bfe_u32 s{sT0}, s2, 0x20003"), S(f"s_add_u32 s{sG}, s{sG}, s{sT0}")]
    C += [S(f"s_bfe_u32 s{sT0}, s{sWave}, 0x10001"), S(f"s_lshl_b32 s{sT2}, s{sG}, 2"), S(f"s_add_u32 s{sT2}, s{sT2}, s{sT0}"), S(f"s_lshl_b32 s{sWbase}, s{sT2}, 8"),
          S(f"s_cmp_lt_u32 s{sWave}, 4"), branch("s_cbranch_scc1", "L_w3"),
          S(f"s_and_b32 s{sT1}, s{sWave}, 1"), S(f"s_lshl_b32 s{sT2}, s{sT1}, 10"),
          S(f"s_lshl_b32 s{sLdsKV}, s{sT0}, 13"), S(f"s_add_u32 s{sLdsKV}, s{sLdsKV}, s{sT2}"),
          S(f"s_mul_i32 s{sLdsX}, s{sT0}, 10240"), S(f"s_add_u32 s{sLdsX}, s{sLdsX}, s{sT2}"),
          S(f"s_mul_i32 s{sXbase}, s{sB}, 204800"), S(f"s_mul_i32 s{sT2}, s{sT0}, 102400"), S(f"s_add_u32 s{sXbase}, s{sXbase}, s{sT2}")]
    if Cfg.rot:
        C += [S(f"s_bfe_u32 s{sRho}, s2, 0x20003") if Cfg.map84 else S(f"s_lshr_b32 s{sRho}, s2, 6"), S(f"s_mul_i32 s{sRho}, s{sRho}, 5"), S(f"s_add_u32 s{sRho}, s{sRho}, 1"), S(f"s_lshr_b32 s{sRho}, s{sRho}, 1"),
              S(f"s_lshr_b32 s{sT2}, s2, 5") if Cfg.map84 else S(f"s_mov_b32 s{sT2}, s{sG}"), S(f"s_add_u32 s{sRho}, s{sRho}, s{sT2}"), S(f"s_and_b32 s{sT2}, s2, 7"), S(f"s_add_u32 s{sRho}, s{sRho}, s{sT2}")]
        for _ in range(2): C += [S(f"s_sub_u32 s{sT2}, s{sRho}, 10"), S(f"s_cmp_ge_u32 s{sRho}, 10"), S(f"s_cselect_b32 s{sRho}, s{sT2}, s{sRho}")]
        if Cfg.rotn == 88: C += [S(f"s_lshr_b32 s{sRho}, s2, 5"), S(f"s_and_b32 s{sRho}, s{sRho}, 6"), S(f"s_add_u32 s{sRho}, s{sRho}, s{sG}"), S(f"s_add_u32 s{sRho}, s{sRho}, s2")]
        if Cfg.rotn == 19: C += [S(f"s_cmp_eq_u32 s{sRho}, 9"), S(f"s_cselect_b32 s{sRho}, 4, s{sRho}")]
        if Cfg.rotn == 8: C += [S(f"s_and_b32 s{sRho}, s2, 7")]
        if Cfg.rotn == 16:
            C += [S(f"s_and_b32 s{sRho}, s{sRho}, 1"), S(f"s_mul_i32 s{sRho}, s{sRho}, 5"), S(f"s_and_b32 s{sT2}, s2, 7"), S(f"s_add_u32 s{sRho}, s{sRho}, s{sT2}"),
                  S(f"s_sub_u32 s{sT2}, s{sRho}, 10"), S(f"s_cmp_ge_u32 s{sRho}, 10"), S(f"s_cselect_b32 s{sRho}, s{sT2}, s{sRho}")]
        if Cfg.rotn == 2: C += [S(f"s_and_b32 s{sRho}, s{sRho}, 1"), S(f"s_mul_i32 s{sRho}, s{sRho}, 5")]
        if Cfg.rotn == 4: C += [S(f"s_and_b32 s{sRho}, s{sRho}, 3"), S(f"s_mul_i32 s{sRho}, s{sRho}, 5"), S(f"s_lshr_b32 s{sRho}, s{sRho}, 1")]
    C = fix_hazards(C)
    w2, r2 = gen_w2(); w3, r3 = gen_w3()
    C += w2 + w3 + gen_o() + [label("KEND")] + r2 + r3 + flat(SLOW)
    for k, tag, par in CTX.stubs:
        C += [label(f"L_stub{k}"), raw(f"s_call_b64 s[{sRet}:{sRet+1}], L_rare_{tag}_{par}", 'branch'), branch("s_branch", f"L_back{k}")]
    return C

def kd(name, vgpr, accum, sgpr=102):
    return f""".section .rodata,"a"
.p2align 6
.amdhsa_kernel {name}
  .amdhsa_next_free_vgpr {vgpr}
  .amdhsa_next_free_sgpr {sgpr}
  .amdhsa_accum_offset {accum}
  .amdhsa_group_segment_fixed_size 0
  .amdhsa_kernarg_size 64
  .amdhsa_user_sgpr_count 2
  .amdhsa_user_sgpr_kernarg_segment_ptr 1
  .amdhsa_system_sgpr_workgroup_id_x 1
.end_amdhsa_kernel
"""

HDR = open('standalone__mha_block_cached__near_ridge.s.ref').read().split('; Override launch')[0]
DOC = """; Fused MHA block, one persistent workgroup per CU (generated by the author's own script).
; Two rounds of 2 heads: Q^T = Wq^T x^T (20 k-steps) -> S^T = K Q^T -> online softmax (running max kept as MFMA C input, re-based to
; Then out^T tile (160 x 160) over half of K from the four sibling workgroups' O (flags in d_debug), pair-wise partial-sum exchange via d_ws.
"""
def main(path):
    k1 = "standalone__mha_block_cached__near_ridge_kernel"
    s = HDR
    s += f"; @launch grid=(256,1,1) block=(512,1,1) lds={LDS_BYTES}\n"
    s += '.amdgcn_target "amdgcn-amd-amdhsa--gfx950"\n.text\n'
    s += DOC
    s += emit(gen_kernel(k1))
    s += kd(k1, 256, 256)
    open(path, 'w').write(s)
if __name__ == '__main__':
    for a in sys.argv[2:]:
        k, v = a.split('=', 1); setattr(Cfg, k, eval(v))
    main(sys.argv[1] if len(sys.argv) > 1 else 'mha2.s')
```

```python
import sys, math, struct
from ir import *

SLOT = 16384
NSLOT = 10
NW, NX = 6, 3
WPERM = [4, 5, 1, 3, 0, 2]
def wslot(s): return WPERM[s % NW] * SLOT
def xbuf(u): return NW * SLOT + (u % NX) * 20480
WTAB = sum((((WPERM[(m + 1) % NW] - WPERM[m]) & 15) << (4 * m)) for m in range(NW))
LDS_BYTES = 163840
O_BYTES = 32 * 128 * 10 * 1024
XCH_OFF = O_BYTES
SLAB = 4096 + 128
XCH_WG = 8 * SLAB
MODE_LDS = LDS_BYTES - 4
WS_BYTES = XCH_OFF + 256 * XCH_WG
QSCALE = math.log2(math.e) / math.sqrt(128.0)
THR = 16384.0
def f2u(x): return "0x%08x" % struct.unpack('<I', struct.pack('<f', x))[0]

sK, sV, sW, sX, sWS, sWO, sOUT, sDBG = 8, 12, 16, 20, 24, 28, 76, 80
sWave, sRound, sB, sG = 32, 33, 34, 35
sKVbase, sWbase, sXbase, sLdsKV, sLdsX = 36, 37, 38, 39, 40
sT0, sT1 = 41, 42
sKpos, sVpos, sD, sCnt, sXd, sLoop = 43, 44, 45, 49, 50, 51
sRet = 46
sOst = 48
sKX, sFlag = 52, 53
sT2, sT3 = 54, 55
sQS, sC16, sC32, sCX = 72, 73, 74, 75
sTK, sTV, sCnt2 = 88, 89, 90
sTau = 64
sMode = 91
sRho, sT4 = 3, 87
sOoff = 56
sStamp = 84
DBG_OFF = 96 << 20

class Cfg:
    stamps = False
    dbgst = False
    dsl = None
    rot = True
    orot = True
    warm0 = False
    delay = 0
    delay_bit = 7
    LA = 7
    kv_pol = 'nt'
    touch_pol = ''
    touch_at = []
    warm = True
    xsleep = 8
    kv_same = False
    o_nr = 10
    wperm = True
    q0soft = 0
    q0sleep = 0
    q0n = 20
    tlbsh = 12
    capr0 = 0
    capr0_items = (0, 1, 2, 3, 4, 8, 9)
    first = {0: 17, 1: 15, 2: 18, 3: 16, 4: 19, 5: 20, 6: 20, 7: 20, 8: 18, 9: 19}
    capi = 5
    wnext = ((33, (2, 3)), (34, (0, 1)))
    holes = []
    qcap = 9
    map84 = True
    fake_wot = False
    capfrom = 0
    cap0 = False
    place2 = {'wo': (8, 0)}
    cap = 5
    drain = {}
    wo2n = 39
    jit = 1
    wo2pol = ''
    place = {'code': ('A0', 1)}
    oprio = [6, 12, 18]
    v_pol = None
    ent = False
    tlbwarm = 0
    tlbu = 1
    slabmall = True
    widest = True
    pro_pol = ''
    wx_pol = ''
    poll_nt = False
    taumul = 8
    taush = 2
    taumask = 15
    kvgrp = 1
    pace = 5.0
    lead = 2
    tbatch = []
    qr3 = 18
    qr2 = 15
    orh = 20
    od0 = 1
    od1 = 24
    ofirst = True
    qd0 = 0
    qprio = 1
    ofast_pol = ''
    fast0 = False
    out_pol = ''
    dsplit = 50
    rotn = 10
    late = 8
    smpure = 0.7
    pp = False
    pp_a = 1
    pp_b = 0
    ostamp = False
    xsleep2 = 2
    dual = True
    fast = True
    codetouch2 = True
    codetouch = True
    qcut = 4
    prio = 2
    no_sm = False
    no_dma = False
    no_exp = False
    no_chk = False
    no_ds = False
    no_adv = False
    ost_pol = 'sc1'
    old_pol = 'sc1'
    o_skip = 0
    o_vm1 = 10
    smend = 3

RT4 = {7: 90, 39: 91, 45: 92, 73: 93, 82: 94, 83: 95}
STAMP3 = (0, 1, 3, 5, 7, 39, 41, 43, 45, 73, 75, 76, 77, 80, 81, 82, 83, 84, 85, 86)
DSL = {(1, 0): 0, (41, 0): 1, (45, 0): 2, (73, 0): 3, (1, 1): 4, (41, 1): 5, (45, 1): 6, (73, 1): 7, (80, 2): 8, (82, 2): 9, (83, 2): 10, (84, 2): 11, (85, 2): 12, (86, 2): 13}
sDS = 4
DREG = [4, 5, 6, 7, 101, 92, 93, 94, 95, 96, 97, 98, 99, 100]
def stamp(t, k, real=False):
    if Cfg.dbgst:
        if real: return []
        dsl = DSL if not Cfg.dsl else {(2 * b + 1, Cfg.dsl[0]): i for i, b in enumerate(Cfg.dsl[1:])}
        hits = [(r, i) for (kk, r), i in dsl.items() if kk == k]
        if not hits: return []
        out = [raw(f"s_memtime s[{sStamp}:{sStamp+1}]"), wait(lgkm=0)]
        for r, i in hits:
            out += [S(f"s_cmp_eq_u32 s{sRound}, {r}"), S(f"s_cselect_b32 s{DREG[i]}, s{sStamp}, s{DREG[i]}")]
        return out
    if not Cfg.stamps: return []
    if Cfg.stamps == 6: return []
    if Cfg.stamps == 7:
        if not ((41 <= k <= 73 and k % 4 == 1 and not real) or k in (76, 77, 31)): return []
        real = True
    if Cfg.stamps == 4 and not real and k in RT4:
        Cfg.stamps = 5; r = stamp(t, k) + stamp(t, RT4[k], True); Cfg.stamps = 4; return r
    if Cfg.stamps in (3, 4) and k not in STAMP3: return []
    return [raw(f"{'s_memrealtime' if real else 's_memtime'} s[{sStamp}:{sStamp+1}]"), wait(lgkm=0), V(f"v_mov_b32 v{t}, s{sStamp}"), V(f"v_mov_b32 v{t+1}, 0"),
            S(f"s_and_b32 s{sStamp+1}, s{sRound}, 1"), S(f"s_lshl_b32 s{sStamp+1}, s{sStamp+1}, 9"), S(f"s_add_u32 s{sStamp+1}, s{sStamp+1}, s{sStamp+2}"),
            bstore(1, t, t + 1, sWS, f"s{sStamp+1}", 4 * k, tag=('misc',))]

def item_slot(n): return (n % NSLOT) * SLOT
def kidx(t): return 0 if t == 0 else 2 * t - 1
def vidx(t): return 2 * t + 2

class Wave:
    def __init__(self, nq):
        self.nq = nq
        n = nq
        p = 0
        self.O = p; p += 32 * n
        self.Q = p; p += 16 * n
        self.NM = p; p += 4 * n
        self.S = p; p += 8 * n
        self.P = p; p += 8 * n
        self.L = p; p += n
        self.LT = p; p += n
        self.T = p; p += 4
        self.aN = p; p += 2
        self.aT = p; p += 4
        p = (p + 3) & ~3
        self.F = p; self.NF = 8; p += 32
        self.dummy = p; p += 1
        self.tmp = p; p += 3
        if nq == 2:
            self.vK = p; self.vV = p + 1; self.vW = p + 2; self.vX = p + 3; self.vTch = p + 4; self.oVoff = p + 5; self.oPoll = p + 6; p += 7
        assert p <= 256, p
        self.end = p
        setsz = 32 + 4 * n
        if nq == 3:
            self.set = [self.Q, self.S]
        else:
            q = (p + 3) & ~3
            self.set = [self.Q, q]
            assert q + setsz <= 256
        self.tag = f"w{nq}"
        self.fpos = 0
    def o(self, T, j): return self.O + (T * self.nq + j) * 4
    def q(self, s, j): return self.Q + (s * self.nq + j) * 4
    def nm(self, j): return self.NM + 4 * j
    def s(self, kb, j): return self.S + (kb * self.nq + j) * 4
    def p(self, par, j): return self.P + (par * self.nq + j) * 4
    def fa(self, st, T): return self.set[st] + 4 * T
    def fb(self, st, j): return self.set[st] + 32 + 4 * j

def spread(base, fillers):
    ins = [[] for _ in range(len(base) + 1)]
    for groups, lo, hi in fillers:
        n = len(groups)
        if n == 0: continue
        hi = min(hi, len(base)); lo = min(lo, hi)
        span = hi - lo
        for k, gI in enumerate(groups):
            pos = lo + (k * span) // n + 1 if span > 0 else lo
            ins[min(pos, len(base))].extend(gI)
    out = list(ins[0])
    for i, b in enumerate(base):
        out.append(b); out.extend(ins[i + 1])
    return out

def frag_K(w, s, kb, first_c):
    def reads(f): return [ds_read(4, f, w.aN + (s & 1), kb * 4096 + (s >> 1) * 2048)]
    def mf(f):
        out = []
        for j in range(w.nq):
            c = w.s(kb, j) if s > 0 else (None if first_c == 'zero' else w.nm(j))
            out.append(mfma(w.s(kb, j), f, w.q(s, j), c))
        return out
    return dict(reads=reads, mf=mf, pre=[])
def frags_QK(w, first_c='negm', pre=()):
    fr = [frag_K(w, s, kb, first_c) for s in range(4) for kb in range(2)]
    fr[0]['pre'] = list(pre)
    return fr
def frag_V(w, db, par, zero):
    def reads(f): return [ds_read(2, f + 2 * hh, w.aT + (db & 3), hh * 4096 + (db >> 2) * 2048, tr=True) for hh in range(2)]
    def mf(f): return [mfma(w.o(db, j), f, w.p(par, j), None if zero else w.o(db, j)) for j in range(w.nq)]
    return dict(reads=reads, mf=mf, pre=[])
def frags_PV(w, par, zero=False, pre=()):
    fr = [frag_V(w, db, par, zero) for db in range(8)]
    fr[0]['pre'] = list(pre)
    return fr

def stream(w, frags, preloaded, nxt, fillers=(), lead=()):
    LA = Cfg.LA
    allf = list(frags) + list(nxt[:LA])
    head = []
    def issue(i):
        f = allf[i]
        return ([] if Cfg.no_adv else list(f['pre'])) + ([] if Cfg.no_ds else f['reads'](w.F + 4 * ((w.fpos + i) % w.NF)))
    for i in range(preloaded, min(LA, len(allf))): head += issue(i)
    base = list(lead); extra = []
    for i, f in enumerate(frags):
        m = f['mf'](w.F + 4 * ((w.fpos + i) % w.NF))
        base += m
        post = []
        if i + LA < len(allf) and i + LA >= preloaded: post += issue(i + LA)
        if post: extra.append(([post], len(base) - 1, len(base)))
    body = spread(base, list(extra) + list(fillers))
    w.fpos = (w.fpos + len(frags)) % w.NF
    return head + body

def softmax_groups(w, par):
    G = []
    k = 0
    for kb in range(2):
        for j in range(w.nq):
            for h in range(2):
                t0 = w.T + 2 * (k & 1); t1 = t0 + 1; k += 1
                sr = w.s(kb, j) + 2 * h
                G.append([V(f"v_exp_f32 v{t0}, v{sr}")])
                G.append([V(f"v_exp_f32 v{t1}, v{sr+1}")])
                lt = w.LT + j
                if kb == 0 and h == 0:
                    G.append(('late', [V(f"v_add_f32 v{lt}, v{t0}, v{t1}"), V(f"v_cvt_pk_bf16_f32 v{w.p(par,j)+2*kb+h}, v{t0}, v{t1}")]))
                else:
                    G.append(('late', [V(f"v_add_f32 v{lt}, v{lt}, v{t0}"), V(f"v_cvt_pk_bf16_f32 v{w.p(par,j)+2*kb+h}, v{t0}, v{t1}"),
                                       V(f"v_add_f32 v{lt}, v{lt}, v{t1}")]))
    if Cfg.no_sm: return [[V(f"v_mov_b32 v{w.LT+j}, 1.0")] for j in range(w.nq)]
    if Cfg.no_exp:
        for gI in G:
            if not isinstance(gI, tuple): gI[0] = V(gI[0].text.replace('v_exp_f32', 'v_mov_b32'))
    out = []; pend = None
    for gI in G:
        if isinstance(gI, tuple):
            pend = gI[1]
        else:
            out.append(gI)
            if pend is not None:
                out.append(pend); pend = None
    if pend is not None: out.append(pend)
    return out

class Ctx:
    def __init__(self): self.stubs = []; self.n = 0
CTX = Ctx()

SLOW = []
def dstore(n, src, voff, srd_, soff, imm, tag=None, pol=''):
    if not Cfg.dual: return [bstore(n, src, voff, srd_, soff, imm, 'sc1', tag=tag)]
    k = len(SLOW)
    SLOW.append([label(f"L_slow{k}"), bstore(n, src, voff, srd_, soff, imm, 'sc1'), branch("s_branch", f"L_slowb{k}")])
    return [branch("s_cbranch_vccz", f"L_slow{k}"), bstore(n, src, voff, srd_, soff, imm, pol, tag=tag), label(f"L_slowb{k}")]
def mode_vcc(): return [S(f"s_and_b32 s{sT1}, s{sMode}, s{sMode if Cfg.fast0 else sRound}"), S("s_cselect_b64 vcc, -1, 0")]
def mode_read(t):
    return [[V(f"v_mov_b32 v{t}, {MODE_LDS}"), ds_read(1, t, t, 0)],
            [V(f"v_readfirstlane_b32 s{sT1}, v{t}"), S(f"s_cmp_eq_u32 s{sRound}, 0"), S(f"s_cselect_b32 s{sMode}, s{sT1}, s{sMode}")]]

def check_cmp(w):
    if Cfg.no_chk: return []
    out = []
    if w.nq == 3: out.append(V(f"v_max3_f32 v{w.tmp}, v{w.LT}, v{w.LT+1}, v{w.LT+2}"))
    else: out.append(V(f"v_max_f32 v{w.tmp}, v{w.LT}, v{w.LT+1}"))
    out.append(I(f"v_cmp_nge_f32 vcc, {f2u(THR)}, v{w.tmp}", 'valu', wr={('s', 'vcc')}, rd=regs(w.tmp)))
    return out
def check_branch(w, par):
    if Cfg.no_chk: return []
    k = CTX.n; CTX.n += 1
    CTX.stubs.append((k, w.tag, par))
    return [branch("s_cbranch_vccnz", f"L_stub{k}"), label(f"L_back{k}")]
def l_accum(w, first=False):
    if first: return [V(f"v_mov_b32 v{w.L+j}, v{w.LT+j}") for j in range(w.nq)]
    return [V(f"v_add_f32 v{w.L+j}, v{w.L+j}, v{w.LT+j}") for j in range(w.nq)]
def sm_fillers(w, par, lo):
    nm = 8 * w.nq
    return [(softmax_groups(w, par) + [check_cmp(w)], lo, nm - Cfg.smend)]

def xlane(op, r, t):
    return [V(f"v_mov_b32 v{t}, v{r}"), V(f"v_permlane32_swap_b32 v{r}, v{t}"), V(f"{op} v{r}, v{r}, v{t}"),
            V(f"v_mov_b32 v{t}, v{r}"), V(f"v_permlane16_swap_b32 v{r}, v{t}"), V(f"{op} v{r}, v{r}, v{t}")]

def tile_max(w, j, dst):
    a, b = w.s(0, j), w.s(1, j)
    return [V(f"v_max3_f32 v{dst}, v{a}, v{a+1}, v{a+2}"), V(f"v_max3_f32 v{dst}, v{dst}, v{a+3}, v{b}"),
            V(f"v_max3_f32 v{dst}, v{dst}, v{b+1}, v{b+2}"), V(f"v_max_f32 v{dst}, v{dst}, v{b+3}")]

def first_max(w):
    out = []
    for j in range(w.nq): out += tile_max(w, j, w.LT + j)
    seqs = [xlane("v_max_f32", w.LT + j, w.T + j) for j in range(w.nq)]
    for k in range(6):
        for sq in seqs: out.append(sq[k])
    for j in range(w.nq):
        for r in range(4): out.append(V(f"v_sub_f32 v{w.nm(j)+r}, 0, v{w.LT+j}"))
        for kb in range(2):
            for r in range(4): out.append(V(f"v_sub_f32 v{w.s(kb,j)+r}, v{w.s(kb,j)+r}, v{w.LT+j}"))
    return out

def rare_routine(w, par):
    out = [label(f"L_rare_{w.tag}_{par}"), nop(15)]
    for j in range(w.nq):
        d = w.LT + j; f = w.T + 1
        out += tile_max(w, j, d)
        out += xlane("v_max_f32", d, w.T)
        out.append(V(f"v_max_f32 v{d}, 0, v{d}"))
        out.append(V(f"v_sub_f32 v{f}, 0, v{d}"))
        out.append(V(f"v_exp_f32 v{f}, v{f}"))
        for r in range(4): out.append(V(f"v_sub_f32 v{w.nm(j)+r}, v{w.nm(j)+r}, v{d}"))
        for kb in range(2):
            for r in range(4): out.append(V(f"v_sub_f32 v{w.s(kb,j)+r}, v{w.s(kb,j)+r}, v{d}"))
        out.append(V(f"v_mul_f32 v{w.L+j}, v{w.L+j}, v{f}"))
        for T in range(8):
            for r in range(4): out.append(V(f"v_mul_f32 v{w.o(T,j)+r}, v{w.o(T,j)+r}, v{f}"))
    for gI in softmax_groups(w, par): out += gI
    out.append(nop(3))
    out.append(raw(f"s_setpc_b64 s[{sRet}:{sRet+1}]", 'branch'))
    return fix_hazards(out)

def q_reads(w, st, sl):
    G = []
    for j in range(w.nq): G.append([ds_read(4, w.fb(st, j), w.aN + sl, j * 2048)])
    for T in range(8):
        for hh in range(2):
            if Cfg.wperm: G.append([ds_read(2, w.fa(st, T) + 2 * hh, w.aT + ((T >> 1) & 1), hh * 4096 + (T >> 2) * 2048 + (T & 1) * 8, tr=True)])
            else: G.append([ds_read(2, w.fa(st, T) + 2 * hh, w.aT + (T & 3), hh * 4096 + (T >> 2) * 2048, tr=True)])
    return G
def q_mfmas(w, st, zero):
    return [mfma(w.o(T, j), w.fa(st, T), w.fb(st, j), None if zero else w.o(T, j)) for T in range(8) for j in range(w.nq)]

def q_pack_groups(w, s):
    G = []
    for j in range(w.nq):
        for half in range(2):
            a = w.o(2 * s + half, j)
            for r in range(4): G.append([V(f"v_mul_f32 v{a+r}, s{sQS}, v{a+r}")])
            G.append([V(f"v_cvt_pk_bf16_f32 v{w.q(s,j)+2*half}, v{a}, v{a+1}")])
            G.append([V(f"v_cvt_pk_bf16_f32 v{w.q(s,j)+2*half+1}, v{a+2}, v{a+3}")])
    if not Cfg.wperm:
        for op in ("v_permlane32_swap_b32", "v_permlane16_swap_b32"):
            for j in range(w.nq):
                q = w.q(s, j)
                G.append([V(f"{op} v{q}, v{q+2}")]); G.append([V(f"{op} v{q+1}, v{q+3}")])
    return G
def q_pack_fillers(w):
    n = w.nq
    rng = [(2 * n + 2, 5 * n), (5 * n, 8 * n), (8 * n, 11 * n), (11 * n, 14 * n - 1)]
    return [(q_pack_groups(w, s), rng[s][0], rng[s][1]) for s in range(4)]

def l_reduce(w):
    out = []
    seqs = [xlane("v_add_f32", w.L + j, w.T + j) for j in range(w.nq)]
    for k in range(6):
        for sq in seqs: out.append(sq[k])
    for j in range(w.nq): out.append(V(f"v_rcp_f32 v{w.L+j}, v{w.L+j}"))
    out += [V(f"v_mbcnt_lo_u32_b32 v{w.tmp}, -1, 0"), V(f"v_mbcnt_hi_u32_b32 v{w.tmp}, -1, v{w.tmp}"), V(f"v_lshlrev_b32 v{w.tmp}, 4, v{w.tmp}")]
    return out
def epi_groups(w, s):
    G = []
    for j in range(w.nq):
        d = w.q(s, j)
        for half in range(2):
            a = w.o(2 * s + half, j)
            for r in range(4): G.append([V(f"v_mul_f32 v{a+r}, v{a+r}, v{w.L+j}")])
            G.append([V(f"v_cvt_pk_bf16_f32 v{d+2*half}, v{a}, v{a+1}")])
            G.append([V(f"v_cvt_pk_bf16_f32 v{d+2*half+1}, v{a+2}, v{a+3}")])
        G.append([S(f"s_add_u32 s{sT1}, s{sOst}, {s*10240}")] + dstore(4, d, w.tmp, sWS, f"s{sT1}", j * 1024, tag=('O', 0, True), pol=Cfg.ofast_pol))
    return G
def epi_fillers(w):
    n = w.nq
    rng = [(2 * n + 2, 4 * n + 2), (4 * n + 2, 6 * n + 2), (6 * n + 2, 8 * n), (8 * n, 8 * n)]
    return [([[i] for i in l_reduce(w)], 0, 2 * n + 1)] + [(epi_groups(w, s), rng[s][0], rng[s][1]) for s in range(4)]

def flat(G): return [i for g in G for i in g]
def one(L): return [[i] for i in L]

CAPN = [0]
def dma_kv(w, kind, t, nxt_round, tag):
    srd_ = sK if kind == 'K' else sV
    voff = w.vK if kind == 'K' else w.vV
    n = kidx(t) if kind == 'K' else vidx(t)
    lds = item_slot(n)
    G = []
    for a in range(2):
        for seg in range(2):
            G.append([S(f"s_add_u32 m0, s{sLdsKV}, {lds + a*4096 + seg*2048 - seg*128}"),
                      S(f"s_add_u32 s{sT0}, s{sT4}, {a*4096}"),
                      dma(voff, srd_, f"s{sT0}", seg * 128, Cfg.kv_pol if (kind == 'K' or Cfg.v_pol is None) else Cfg.v_pol, tag=tag)])
    if Cfg.cap and n >= Cfg.capfrom:
        for g in G:
            if Cfg.cap0:
                CAPN[0] += 1
                g[0:0] = [S(f"s_cmp_lg_u32 s{sRound}, 0"), branch("s_cbranch_scc1", f"L_cap{CAPN[0]}"), wait(vm=Cfg.cap - 1), label(f"L_cap{CAPN[0]}")]
            else: g.insert(2, wait(vm=(Cfg.cap if n >= 10 else Cfg.capi) - 1))
    if Cfg.capr0 and n in Cfg.capr0_items:
        for g in G:
            CAPN[0] += 1
            g[0:0] = [S(f"s_cmp_lg_u32 s{sRound}, 0"), branch("s_cbranch_scc1", f"L_cap{CAPN[0]}"), wait(vm=Cfg.capr0 - 1), label(f"L_cap{CAPN[0]}")]
    G[0] = [S(f"s_add_u32 s{sT4}, s{sTau}, {t*8192}"), S(f"s_and_b32 s{sT4}, s{sT4}, 0x1ffff"), S(f"s_add_u32 s{sT4}, s{sT4}, s{sKVbase}")] + G[0]
    return G
POL = ['']
def rot_off(u, unit, base):
    if not Cfg.rot: return [S(f"s_add_u32 s{sT4}, s{base}, {u*unit}")]
    if Cfg.rotn == 88:
        if u < 2: return [S(f"s_add_u32 s{sT4}, s{base}, {u*unit}")]
        return [S(f"s_add_u32 s{sT4}, s{sRho}, {u-2}"), S(f"s_and_b32 s{sT4}, s{sT4}, 7"), S(f"s_add_u32 s{sT4}, s{sT4}, 2"),
                S(f"s_mul_i32 s{sT4}, s{sT4}, {unit}"), S(f"s_add_u32 s{sT4}, s{sT4}, s{base}")]
    if Cfg.rotn == 19:
        if u < 1: return [S(f"s_add_u32 s{sT4}, s{base}, {u*unit}")]
        return [S(f"s_cmp_ge_u32 s{sRho}, {10-u}"), S(f"s_cselect_b32 s{sT4}, {u-9}, {u}"), S(f"s_add_u32 s{sT4}, s{sT4}, s{sRho}"),
                S(f"s_mul_i32 s{sT4}, s{sT4}, {unit}"), S(f"s_add_u32 s{sT4}, s{sT4}, s{base}")]
    return [S(f"s_cmp_ge_u32 s{sRho}, {10-u}"), S(f"s_cselect_b32 s{sT4}, {u-10}, {u}"), S(f"s_add_u32 s{sT4}, s{sT4}, s{sRho}"),
            S(f"s_mul_i32 s{sT4}, s{sT4}, {unit}"), S(f"s_add_u32 s{sT4}, s{sT4}, s{base}")]
def dma_w(w, s, nxt_round, tag):
    lds = wslot(s)
    goff = (s & 1) * 32 * 8192 + (512 if nxt_round else 0)
    G = []
    for hh in range(2):
        for seg in range(2):
            G.append([S(f"s_add_u32 m0, s{sLdsKV}, {lds + hh*4096 + seg*2048 - seg*128}"),
                      S(f"s_add_u32 s{sT0}, s{sT4}, {goff + hh*32768}"),
                      dma(w.vW, sW, f"s{sT0}", seg * 128, POL[0], tag=tag)])
    G[0] = rot_off(s >> 1, 64 * 8192, sWbase) + G[0]
    return G
def dma_x(w, u, tag):
    G = []
    for i in range(5):
        G.append([S(f"s_add_u32 m0, s{sLdsX}, {xbuf(u) + i*2048}"),
                  S(f"s_add_u32 s{sT0}, s{sT4}, {i*20480}"),
                  dma(w.vX, sX, f"s{sT0}", 0, POL[0], tag=tag)])
    G[0] = rot_off(u, 128, sXbase) + G[0]
    return G
def touch_kv(w, kind):
    srd_, ptr = (sK, sTK) if kind == 'K' else (sV, sTV)
    return [[bload(1, w.dummy, w.vTch, srd_, f"s{ptr}", 0, Cfg.touch_pol, tag=('misc',)), S(f"s_add_u32 s{ptr}, s{ptr}, 4096")]]

NAMES = {}
for _t in range(16):
    NAMES[kidx(_t)] = ('K', _t); NAMES[vidx(_t)] = ('V', _t)
def first_use(kind, i):
    if kind == 'W': return i
    if kind == 'X': return 2 * i
    if kind == 'K': return 20 if i == 0 else 19 + i
    if kind == 'V': return 21 + i
    if kind == 'O': return 3
    if kind == 'P': return 35

def loader_schedule(w):
    sch = {i: [] for i in range(37)}
    r0 = lambda G, lab: [[S(f"s_cmp_lg_u32 s{sRound}, 0"), branch("s_cbranch_scc1", lab)] + flat(G) + [label(lab)]]
    sch[0] += r0(dma_w(w, 2, False, ('W', 2, 'cond')), "L_r0a") + dma_x(w, 1, ('X', 1, False)) + r0(dma_w(w, 3, False, ('W', 3, 'cond')), "L_r0b")
    sch[1] += dma_w(w, 4, False, ('W', 4, False)) + dma_x(w, 2, ('X', 2, False))
    sch[2] += dma_w(w, 5, False, ('W', 5, False))
    if not Cfg.holes:
        for s in range(NW, 20): sch[max(s - NW + 1, 3)] += dma_w(w, s, False, ('W', s, False))
        for u in range(NX, 10): sch[2 * (u - NX) + 2] += dma_x(w, u, ('X', u, False))
    else:
        todo = sorted([(s, 'W', s, max(s - NW + 1, 3)) for s in range(NW, 20)] + [(2 * u - 0.5, 'X', u, 2 * (u - NX) + 2) for u in range(NX, 10)])
        load = {i: 0 for i in range(21)}; load[2] = 4
        cur = 2
        for need, kind, i, t0 in todo:
            n = 4 if kind == 'W' else 5
            t = max(t0, cur)
            while t in Cfg.holes or load[t] + n > Cfg.qcap: t += 1
            assert t <= need - 1.5, (kind, i, t)
            cur = t; load[t] += n
            sch[t] += dma_w(w, i, False, ('W', i, False)) if kind == 'W' else dma_x(w, i, ('X', i, False))
        print("Q load", load, file=sys.stderr)
    if not Cfg.no_dma:
        first = Cfg.first
        for n in range(10): sch[first[n]] += dma_kv(w, *NAMES[n], False, NAMES[n] + (False,))
        for n in range(10, 33):
            if n not in NAMES: continue
            k, t = NAMES[n - 10]
            last = (20 + t) if k == 'K' else min(22 + t, 36)
            rem = [m for m in range(10, 33) if m in NAMES]
            paced = 21 + int(rem.index(n) * Cfg.pace)
            when = max(last + 1, min(paced, first_use(*NAMES[n]) - Cfg.lead))
            sch[when] += dma_kv(w, *NAMES[n], False, NAMES[n] + (False,))
    for idx, ss in Cfg.wnext:
        for s_ in ss: sch[idx] += r0(dma_w(w, s_, True, ('W', s_, 'next')), f"L_r0w{s_}")
    w4first = lambda lab: [S(f"s_lshl_b32 s{sT1}, s{sRound}, 3"), S(f"s_add_u32 s{sT1}, s{sT1}, s{sWave}"), S(f"s_cmp_lg_u32 s{sT1}, 4"), branch("s_cbranch_scc1", lab)]
    sch[7] = [w4first("L_p0") + [S(f"s_mov_b32 s{sT1}, s{sFlag}") if Cfg.map84 else S(f"s_lshl_b32 s{sT1}, s{sB}, 3"), V(f"v_mov_b32 v{w.tmp+2}, s{sT1}"), bload(1, w.oPoll, w.tmp + 2, sDBG, 0, 0, 'sc1', tag=('cond',)), label("L_p0")]] + sch[7]
    sch[14] += [w4first("L_m0") + [V(f"v_readfirstlane_b32 s{sT1}, v{w.oPoll}"), S(f"s_bfe_u32 s{sT2}, s{sT1}, 0x80010"), S(f"s_lshr_b32 s{sT1}, s{sT1}, 24"),
                 S(f"s_bcnt1_i32_b32 s{sT1}, s{sT1}"), S(f"s_lshl_b32 s{sT1}, s{sT1}, 8"), S(f"s_or_b32 s{sT1}, s{sT1}, s{sT2}"), S(f"s_cmp_eq_u32 s{sT1}, 0x1ff"),
                 S(f"s_cselect_b32 s{sT1}, {(1 if Cfg.map84 else 3) if Cfg.fast else 0}, 0"), V(f"v_mov_b32 v{w.tmp+1}, s{sT1}"), V(f"v_mov_b32 v{w.tmp+2}, {MODE_LDS}"),
                 raw(f"ds_write_b32 v{w.tmp+2}, v{w.tmp+1}"), label("L_m0")]]
    for name, (idx, rnd) in Cfg.place2.items():
        t = w.tmp + 1
        if name in ('wo', 'wob', 'woc', 'wod'):
            body = lane_id(t) + [V(f"v_min_u32 v{t}, 39, v{t}"), V(f"v_lshlrev_b32 v{t}, 7, v{t}"), S(f"s_lshl_b32 s{sT1}, s2, 2"), S(f"s_add_u32 s{sT1}, s{sT1}, s{sWave}"),
                    S(f"s_sub_u32 s{sT1}, s{sT1}, 4"), S(f"s_mul_i32 s{sT1}, s{sT1}, 5120"), bload(1, 255, t, sWO, f"s{sT1}", tag=('cond',))]
        elif name == 'tlb':
            sh = Cfg.tlbsh
            body = lane_id(t) + [V(f"v_and_b32 v{t}, {(131072 >> sh) - 1}, v{t}"), V(f"v_lshlrev_b32 v{t}, {sh}, v{t}"),
                    S(f"s_and_b32 s{sT1}, s{sWave}, 1"), S(f"s_lshl_b32 s{sT1}, s{sT1}, 18"), S(f"s_add_u32 s{sT1}, s{sT1}, s{sKVbase}"),
                    bload(1, w.dummy, t, sK, f"s{sT1}", 0, 'nt', tag=('cond',)), bload(1, w.dummy, t, sV, f"s{sT1}", 0, 'nt', tag=('cond',))]
        elif name == 'wq2':
            body = lane_id(t) + [V(f"v_lshrrev_b32 v{t+1}, 2, v{t}"), V(f"v_min_u32 v{t+1}, 4, v{t+1}"), V(f"v_and_b32 v{t}, 3, v{t}"), V(f"v_lshlrev_b32 v{t}, 7, v{t}"),
                    V(f"v_lshl_add_u32 v{t}, v{t+1}, 13, v{t}"), S(f"s_lshl_b32 s{sT1}, s{sB}, 2"), S(f"s_add_u32 s{sT1}, s{sT1}, s{sWave}"), S(f"s_sub_u32 s{sT1}, s{sT1}, 4"),
                    S(f"s_mul_i32 s{sT1}, s{sT1}, {5*8192}"), S(f"s_lshl_b32 s{sT2}, s{sG}, 10"), S(f"s_add_u32 s{sT1}, s{sT1}, s{sT2}"),
                    bload(1, w.dummy, t, sW, f"s{sT1}", 512, tag=('cond',))]
        else:
            body = lane_id(t) + [V(f"v_lshlrev_b32 v{t}, 7, v{t}"), V(f"v_min_u32 v{t}, {SLAB-128}, v{t}"),
                    S(f"s_lshl_b32 s{sT1}, s2, 3"), S(f"s_add_u32 s{sT1}, s{sT1}, s{sWave}"), S(f"s_mul_i32 s{sT1}, s{sT1}, {SLAB}"), S(f"s_add_u32 s{sT1}, s{sT1}, {XCH_OFF}"),
                    bload(1, w.dummy, t, sWS, f"s{sT1}", 0, 'sc1', tag=('cond',)), S(f"s_sub_u32 s{sT1}, s{sT1}, {4*SLAB}"), bload(1, w.dummy, t, sWS, f"s{sT1}", 0, 'sc1', tag=('cond',))]
        sch[idx] += [[S(f"s_cmp_lg_u32 s{sRound}, {rnd}"), branch("s_cbranch_scc1", f"L_p2{name}")] + body + [label(f"L_p2{name}")]]
    mr = mode_read(w.T)
    sch[17] = [mr[0]] + sch[17]; sch[18] = [mr[1]] + sch[18]
    w4last = lambda lab: [S(f"s_lshl_b32 s{sT1}, s{sRound}, 3"), S(f"s_add_u32 s{sT1}, s{sT1}, s{sWave}"), S(f"s_cmp_lg_u32 s{sT1}, 12"), branch("s_cbranch_scc1", lab)]
    sch[29] = [w4last("L_p1") + [V(f"v_mov_b32 v{w.tmp+2}, s{sFlag}"), bload(1, w.oPoll, w.tmp + 2, sDBG, 0, 0, 'sc1', tag=('cond',)), label("L_p1")]] + sch[29]
    sch[34] += [w4last("L_g1_back") + gate("L_g1", w.oPoll, w.tmp + 2, 0) + [label("L_g1_back")]]
    for u in range(2):
        alt = flat(dma_x(w, 0, ('X', 0, 'next'))) if u == 0 else []
        sch[35 + u] += [[S(f"s_cmp_lg_u32 s{sRound}, 0"), branch("s_cbranch_scc1", f"L_opre{u}")] + alt + [label(f"L_opre{u}_back"), I("; opre", 'comment', tag=('phantom', 0 if Cfg.o_skip else 10))]]
    if not Cfg.no_dma:
        for i, idx in enumerate(sorted(Cfg.touch_at)): sch[idx] += touch_kv(w, 'KV'[i & 1])
        for idx, goff in Cfg.tbatch:
            sch[idx] += [[S(f"s_add_u32 s{sT0}, s{sTau}, {goff}"), S(f"s_and_b32 s{sT0}, s{sT0}, 0x1ffff"), S(f"s_add_u32 s{sT0}, s{sT0}, s{sKVbase}"), bload(1, w.dummy, w.vTch, sK, f"s{sT0}", 0, Cfg.touch_pol, tag=('misc',)),
                          bload(1, w.dummy, w.vTch, sV, f"s{sT0}", 0, Cfg.touch_pol, tag=('misc',))]]
    return sch

def lane_id(r): return [V(f"v_mbcnt_lo_u32_b32 v{r}, -1, 0"), V(f"v_mbcnt_hi_u32_b32 v{r}, -1, v{r}")]
def lane_setup(w):
    t = w.F + 8
    lane, i16, g, a, b, c = t, t + 1, t + 2, t + 3, t + 4, t + 5
    o = lane_id(lane) + [V(f"v_and_b32 v{i16}, 15, v{lane}"), V(f"v_lshrrev_b32 v{g}, 4, v{lane}")]
    o += [V(f"v_lshrrev_b32 v{a}, 1, v{i16}"), V(f"v_xor_b32 v{a}, v{a}, v{g}"), V(f"v_lshlrev_b32 v{a}, 4, v{a}"),
          V(f"v_lshl_add_u32 v{w.aN}, v{i16}, 7, v{a}"), V(f"v_xor_b32 v{w.aN+1}, 64, v{w.aN}")]
    o += [V(f"v_lshrrev_b32 v{a}, 2, v{lane}"), V(f"v_and_b32 v{b}, 6, v{a}"),
          V(f"v_bfe_u32 v{c}, v{lane}, 1, 1"), V(f"v_xor_b32 v{b}, v{b}, v{c}"), V(f"v_lshlrev_b32 v{b}, 4, v{b}"),
          V(f"v_lshl_add_u32 v{b}, v{a}, 7, v{b}"),
          V(f"v_and_b32 v{c}, 1, v{lane}"), V(f"v_lshl_add_u32 v{w.aT}, v{c}, 3, v{b}")]
    for dq in range(1, 4): o.append(V(f"v_xor_b32 v{w.aT+dq}, {dq<<5}, v{w.aT}"))
    return o
def voff_setup(w):
    t = w.F + 16
    r8, p, a, b, row = t, t + 1, t + 2, t + 3, t + 4
    o = [V(f"v_bfe_u32 v{row}, v0, 3, 4"),
         V(f"v_and_b32 v{p}, 7, v0"),
         V(f"v_lshrrev_b32 v{a}, 1, v{row}"), V(f"v_xor_b32 v{a}, v{a}, v{p}"), V(f"v_lshlrev_b32 v{a}, 4, v{a}"),
         V(f"v_and_b32 v{b}, 6, v{row}"), V(f"v_xor_b32 v{b}, v{b}, v{p}"), V(f"v_lshlrev_b32 v{b}, 4, v{b}"),
         V(f"v_and_b32 v{p}, 12, v{row}"), V(f"v_add_u32 v{p}, v{p}, v{row}"), V(f"v_lshl_add_u32 v{w.vW}, v{p}, 13, v{b}"),
         V(f"v_mul_u32_u24 v{p}, 1280, v{row}"), V(f"v_add_u32 v{w.vX}, v{p}, v{a}")]
    o2 = [V(f"v_lshl_add_u32 v{w.vK}, v{row}, 8, v{a}"), V(f"v_lshl_add_u32 v{w.vV}, v{row}, 8, v{b}"),
          V(f"v_and_b32 v{p}, 63, v0"), V(f"v_lshlrev_b32 v{p}, 6, v{p}"), V(f"v_bfe_u32 v{r8}, v0, 6, 1"), V(f"v_lshl_add_u32 v{w.vTch}, v{r8}, 12, v{p}")]
    return o, o2

def add_addr(regs_, delta):
    if delta == 0: return []
    if isinstance(delta, str): return [V(f"v_add_u32 v{r}, {delta}, v{r}") for r in regs_]
    return [V(f"v_add_u32 v{r}, {delta & 0xffffffff:#x}, v{r}") for r in regs_]

def to_w(w, cur):
    t = w.T
    if not Cfg.wperm: return add_addr([w.aT + i for i in range(4)], wslot(0) - cur)
    return add_addr([w.aT + 2, w.aT + 3], item_slot(vidx(0)) - cur) + add_addr([w.aT], wslot(0) - cur) + [
        V(f"v_bfe_u32 v{t}, v{w.aT}, 3, 2"), V(f"v_and_b32 v{w.aT}, 0xffffffe7, v{w.aT}"), V(f"v_lshlrev_b32 v{t}, 4, v{t}"),
        V(f"v_xor_b32 v{w.aT}, v{w.aT}, v{t}"), V(f"v_xor_b32 v{w.aT+1}, 64, v{w.aT}")]
def to_v(w, cur):
    if not Cfg.wperm: return add_addr([w.aT + i for i in range(4)], item_slot(vidx(0)) - cur)
    return [V(f"v_xor_b32 v{w.aT}, 64, v{w.aT+2}"), V(f"v_xor_b32 v{w.aT+1}, 64, v{w.aT+3}")]

def finish(code, pending=None, pre=()):
    c, q = add_lgkm_waits(code, pending)
    return fix_hazards(c, pre), q

def loop_finish(B, q, before):
    B1, q1 = finish(B, q, pre=before[-12:])
    B2, q2 = finish(B, q1, pre=B1[-12:])
    B3, q3 = finish(B, q2, pre=B2[-12:])
    assert emit(B2) == emit(B3) and q2 == q3
    assert len(q) <= len(q2) and q == q2[len(q2) - len(q):], "entry LDS queue must be a suffix of the steady-state queue"
    B4 = fix_hazards(B2, before[-12:])
    assert emit(fix_hazards(B4, B4[-12:])) == emit(B4)
    return B4, q2

def srd(base, ptr, nbytes):
    return [S(f"s_mov_b32 s{base}, s{ptr}"), S(f"s_mov_b32 s{base+1}, s{ptr+1}"), S(f"s_mov_b32 s{base+2}, {nbytes}"), S(f"s_mov_b32 s{base+3}, 0x20000")]

def round_advance():
    return [S(f"s_add_u32 s{sKVbase}, s{sKVbase}, 262144"), S(f"s_add_u32 s{sWbase}, s{sWbase}, 512"),
            S(f"s_add_u32 s{sOst}, s{sOst}, {8*10240}"), S(f"s_add_u32 s{sRound}, s{sRound}, 1"), S(f"s_cmp_lt_u32 s{sRound}, 2")]

def flag_add(t, val, lab):
    return [V(f"v_mov_b32 v{t}, {val}"), V(f"v_mov_b32 v{t+1}, s{sFlag}"), S("s_mov_b64 exec, 1"),
            I(f"buffer_atomic_or v{t}, v{t+1}, s[{sDBG}:{sDBG+3}], 0 offen sc1", 'vstore', rd=regs(t, 2) | regs(sDBG, 4, 's'), tag=('cond',)),
            S("s_mov_b64 exec, -1"), label(lab)]

def common_scalars():
    C = srd(sK, 58, 134217728) + srd(sV, 60, 134217728) + srd(sWO, 64, 5242880) + srd(sOUT, 66, 6553600) + srd(sDBG, 68, 256) \
        + srd(sWS, 70, (160 << 20) if Cfg.stamps else WS_BYTES)
    C += [S(f"s_lshr_b32 s{sT2}, s{sWbase}, 8"),
          S(f"s_lshl_b32 s{sT3}, s{sB}, 5"), S(f"s_add_u32 s{sT3}, s{sT3}, s{sT2}"), S(f"s_lshl_b32 s{sKVbase}, s{sT3}, 17"),
          S(f"s_mul_i32 s{sOst}, s{sT3}, 40960"),] + ([S(f"s_and_b32 s{sKVbase}, s{sKVbase}, 0x20000")] if Cfg.kv_same else []) + [
          S(f"s_lshl_b32 s{sFlag}, s{sB}, 1"), S(f"s_lshr_b32 s{sT2}, s{sG}, 2"), S(f"s_add_u32 s{sFlag}, s{sFlag}, s{sT2}"), S(f"s_lshl_b32 s{sFlag}, s{sFlag}, 2"),
          S(f"s_mul_i32 s{sTau}, s{sT3}, {Cfg.taumul}"), S(f"s_lshr_b32 s{sT2}, s{sT3}, {Cfg.taush}"), S(f"s_add_u32 s{sTau}, s{sTau}, s{sT2}"),
          S(f"s_and_b32 s{sTau}, s{sTau}, {Cfg.taumask}"), S(f"s_lshl_b32 s{sTau}, s{sTau}, 13"),
          S(f"s_mov_b32 s{sRound}, 0"), S(f"s_mov_b32 s{sMode}, 0"), S(f"s_mov_b32 s{sQS}, {f2u(QSCALE)}"), S(f"s_mov_b32 s{sC16}, {WTAB:#x}"), S(f"s_mov_b32 s{sC32}, {2*SLOT}"),
          S(f"s_mov_b32 s{sCX}, 20480"), S(f"s_mov_b32 s{sTK}, s{sKVbase}"), S(f"s_mov_b32 s{sTV}, s{sKVbase}")]
    if Cfg.stamps:
        C += [S(f"s_lshl_b32 s{sStamp+2}, s2, 3"), S(f"s_add_u32 s{sStamp+2}, s{sStamp+2}, s{sWave}"), S(f"s_lshl_b32 s{sStamp+2}, s{sStamp+2}, 10"),
              S(f"s_add_u32 s{sStamp+2}, s{sStamp+2}, {DBG_OFF}")]
    return C
def wave_addr0(w, j0mul, j0add):
    aN = [w.aN, w.aN + 1]; aT = [w.aT + i for i in range(4)]
    C = [S(f"s_bfe_u32 s{sT0}, s{sWave}, 0x10001"), S(f"s_lshl_b32 s{sT0}, s{sT0}, 13"),
         S(f"s_and_b32 s{sT1}, s{sWave}, 1"), S(f"s_mul_i32 s{sT1}, s{sT1}, {j0mul*1024}"), S(f"s_add_u32 s{sT1}, s{sT1}, {j0add*1024}"),
         S(f"s_add_u32 s{sOst}, s{sOst}, s{sT1}"), S(f"s_lshl_b32 s{sT1}, s{sT1}, 1"),
         S(f"s_sub_u32 s{sKX}, s{sT0}, s{sT1}"),
         S(f"s_add_u32 s{sT1}, s{sT1}, {xbuf(0)}")]
    return C + add_addr(aT, f"s{sT0}") + add_addr(aN, f"s{sT1}") + to_w(w, 0)

def gen_w3():
    w = Wave(3); nm = 24
    st = lambda k, real=False: stamp(w.tmp + 1, k, real)
    aN = [w.aN, w.aN + 1]; aT = [w.aT + i for i in range(4)]
    C = [label("L_w3"), raw("s_waitcnt lgkmcnt(0)")]
    if Cfg.codetouch:
        t = w.tmp + 1
        C += [raw(f"s_getpc_b64 s[{sRet}:{sRet+1}]"), label("L_pc0"),
              S(f"s_sub_u32 s{sRet}, s{sRet}, L_pc0-KSTART"), S(f"s_subb_u32 s{sRet+1}, s{sRet+1}, 0"),
              S(f"s_lshr_b32 s{sT0}, s2, 3"), S(f"s_lshl_b32 s{sT0}, s{sT0}, 2"), S(f"s_add_u32 s{sT0}, s{sT0}, s{sWave}"), S(f"s_lshl_b32 s{sT0}, s{sT0}, 7"),
              V(f"v_and_b32 v{t}, 7, v0"), V(f"v_lshlrev_b32 v{t}, 14, v{t}"), V(f"v_add_u32 v{t}, s{sT0}, v{t}"),
              V(f"v_min_u32 v{t}, KEND-KSTART-4, v{t}"),
              I(f"global_load_dword v{w.dummy}, v{t}, s[{sRet}:{sRet+1}]", 'vload', wr=regs(w.dummy), rd=regs(t) | regs(sRet, 2, 's'))]
    if Cfg.warm0:
        t = w.tmp + 1
        C += srd(sW, 62, 5242880) + srd(sX, 56, 6553600)
        C += [V(f"v_and_b32 v{t}, 63, v0"), V(f"v_lshlrev_b32 v{t}, 7, v{t}"),
              S(f"s_mul_i32 s{sT0}, s{sB}, 204800"), S(f"s_mul_i32 s{sT1}, s{sG}, 25600"), S(f"s_add_u32 s{sT0}, s{sT0}, s{sT1}"),
              S(f"s_mul_i32 s{sT1}, s{sWave}, 5760"), S(f"s_add_u32 s{sT0}, s{sT0}, s{sT1}"),
              V(f"v_bfe_u32 v{t+1}, v0, 3, 3"), V(f"v_min_u32 v{t+1}, 4, v{t+1}"), V(f"v_lshlrev_b32 v{t+1}, 13, v{t+1}"),
              V(f"v_and_b32 v{w.T}, 7, v0"), V(f"v_lshl_add_u32 v{t+1}, v{w.T}, 7, v{t+1}"),
              S(f"s_lshl_b32 s{sT1}, s{sB}, 2"), S(f"s_add_u32 s{sT1}, s{sT1}, s{sWave}"), S(f"s_mul_i32 s{sT1}, s{sT1}, {5*8192}"),
              S(f"s_lshl_b32 s{sT2}, s{sG}, 10"), S(f"s_add_u32 s{sT1}, s{sT1}, s{sT2}"),
              barrier()] + ([bload(1, w.dummy, t + 1, sW, f"s{sT1}")] if Cfg.warm0 == 1 else []) + [bload(1, w.dummy, t, sX, f"s{sT0}")]
    C += common_scalars()
    t = w.tmp + 1
    C += [S(f"s_cmp_lg_u32 s{sWave}, 0"), branch("s_cbranch_scc1", "L_noxcc"), raw(f"s_getreg_b32 s{sT0}, hwreg(HW_REG_XCC_ID, 0, 3)"),
          S(f"s_lshl_b32 s{sT0}, 0x1000000, s{sT0}"), S(f"s_lshl_b32 s{sT1}, {0x110000 if Cfg.map84 else 0x10000}, s{sG}"), S(f"s_lshr_b32 s{sT2}, s{sT1}, {4 if Cfg.map84 else 0}"), S(f"s_or_b32 s{sT1}, s{sT1}, s{sT2}"), S(f"s_and_b32 s{sT1}, s{sT1}, 0xff0000"),
          S(f"s_or_b32 s{sT0}, s{sT0}, s{sT1}"), S(f"s_mov_b32 s{sT1}, s{sFlag}") if Cfg.map84 else S(f"s_lshl_b32 s{sT1}, s{sB}, 3"),
          V(f"v_mov_b32 v{t}, s{sT0}"), V(f"v_mov_b32 v{t+1}, s{sT1}"), S("s_mov_b64 exec, 1"),
          I(f"buffer_atomic_or v{t}, v{t+1}, s[{sDBG}:{sDBG+3}], 0 offen sc1", 'vstore', rd=regs(t, 2) | regs(sDBG, 4, 's')),
          S("s_mov_b64 exec, 0xff"), V(f"v_mul_u32_u24 v{t}, {SLAB}, v0"), V(f"v_mov_b32 v{t+1}, 0"), S(f"s_mul_i32 s{sT0}, s2, {XCH_WG}"), S(f"s_add_u32 s{sT0}, s{sT0}, {XCH_OFF + SLAB - 128}"),
          bstore(1, t + 1, t, sWS, f"s{sT0}", 0, 'sc1'),
          S("s_mov_b64 exec, -1"), label("L_noxcc")]
    C += lane_setup(w) + wave_addr0(w, 3, 0)
    def x_wo():
        t = w.tmp + 1
        return lane_id(t) + [V(f"v_min_u32 v{t}, 39, v{t}"), V(f"v_lshlrev_b32 v{t}, 7, v{t}"),
              S(f"s_lshl_b32 s{sT0}, s2, 2"), S(f"s_add_u32 s{sT0}, s{sT0}, s{sWave}"), S(f"s_mul_i32 s{sT0}, s{sT0}, 5120"), bload(1, w.dummy, t, sWO, f"s{sT0}")]
    def x_code():
        t = w.tmp + 1
        return [raw(f"s_getpc_b64 s[{sRet}:{sRet+1}]"), label("L_pc1"),
              S(f"s_add_u32 s{sRet}, s{sRet}, L_o-L_pc1"), S(f"s_addc_u32 s{sRet+1}, s{sRet+1}, 0")] + lane_id(t) + [
              S(f"s_lshl_b32 s{sT0}, s{sWave}, 13"), V(f"v_lshlrev_b32 v{t}, 7, v{t}"), V(f"v_add_u32 v{t}, s{sT0}, v{t}"), V(f"v_min_u32 v{t}, KEND-L_o-4, v{t}"),
              I(f"global_load_dword v{w.dummy}, v{t}, s[{sRet}:{sRet+1}]", 'vload', wr=regs(w.dummy), rd=regs(t) | regs(sRet, 2, 's'))]
    def x_slab():
        t = w.tmp + 1
        return lane_id(t) + [V(f"v_lshlrev_b32 v{t}, 7, v{t}"), V(f"v_min_u32 v{t}, {SLAB-128}, v{t}"),
              S(f"s_lshl_b32 s{sT0}, s2, 3"), S(f"s_add_u32 s{sT0}, s{sT0}, s{sWave}"), S(f"s_mul_i32 s{sT0}, s{sT0}, {SLAB}"), S(f"s_add_u32 s{sT0}, s{sT0}, {XCH_OFF}"),
              bload(1, w.dummy, t, sWS, f"s{sT0}", 0, 'sc1'), S(f"s_add_u32 s{sT0}, s{sT0}, {4*SLAB}"), bload(1, w.dummy, t, sWS, f"s{sT0}", 0, 'sc1')]
    def x_jit():
        return [S(f"s_mul_i32 s{sT0}, s2, 11"), S(f"s_and_b32 s{sT0}, s{sT0}, 31"), label("L_jit"), raw(f"s_sleep {Cfg.jit}"), S(f"s_sub_u32 s{sT0}, s{sT0}, 1"), branch("s_cbranch_scc0", "L_jit")]
    def x_wo2():
        r = [i if i.kind != 'vload' else bload(1, w.dummy, w.tmp + 1, sWO, f"s{sT0}", 0, Cfg.wo2pol) for i in x_wo()]
        r[2] = V(f"v_min_u32 v{w.tmp+1}, {Cfg.wo2n}, v{w.tmp+1}")
        return r
    def extras(where):
        out_ = []
        for name, fn in (('wo', x_wo), ('code', x_code), ('slab', x_slab), ('jit', x_jit), ('wo2', x_wo2)):
            pl = Cfg.place.get(name)
            if pl and pl[0] == where:
                out_ += [S(f"s_cmp_lg_u32 s{sRound}, {pl[1]}"), branch("s_cbranch_scc1", f"L_ex_{name}")] + fn() + [label(f"L_ex_{name}")]
        return out_
    C, _ = finish(C)
    out = C
    def wadv():
        return [S(f"s_bfe_i32 s{sD}, s{sC16}, s{sCnt}"), S(f"s_lshl_b32 s{sD}, s{sD}, 14"), S(f"s_add_u32 s{sCnt}, s{sCnt}, 4"),
                S(f"s_cmp_eq_u32 s{sCnt}, {0x40000 + 4*NW:#x}"), S(f"s_cselect_b32 s{sCnt}, 0x40000, s{sCnt}")] + add_addr(aT[:(2 if Cfg.wperm else 4)], f"s{sD}")
    def xadv():
        return [S(f"s_add_u32 s{sCnt2}, s{sCnt2}, 1"), S(f"s_cmp_eq_u32 s{sCnt2}, {NX}"), S(f"s_cselect_b32 s{sXd}, {(-(NX-1)*20480) & 0xffffffff:#x}, s{sCX}"),
                S(f"s_cselect_b32 s{sCnt2}, 0, s{sCnt2}")] + add_addr(aN, f"s{sXd}")
    def qstage(s, zero=False, extra=()):
        p = s & 1
        adv_ = wadv() + (xadv() if p == 1 else []) + list(extra)
        L = [barrier()] + spread(q_mfmas(w, 1 - p, zero), [(q_reads(w, p, p), 0, Cfg.qr3), (one(adv_), Cfg.qr3 + 1, 23)]) + [wait(lgkm=0)]
        k = [i for i, c in enumerate(L) if c.kind == 'mfma'][Cfg.qcut]
        return L[:k], L[k:]
    C = [label("L_w3_round")] + st(0) + [barrier()] + st(1)
    C += flat(q_reads(w, 0, 0))
    C += add_addr(aT[:(2 if Cfg.wperm else 4)], wslot(1) - wslot(0))
    C += [S(f"s_mov_b32 s{sCnt}, 0x40004"), S(f"s_mov_b32 s{sCnt2}, {(xbuf(0)-NW*SLOT)//20480}"), S(f"s_mov_b32 s{sLoop}, 8")]
    C += [wait(lgkm=0)]
    h1, t1 = qstage(1, zero=True); he, te = qstage(2); ho, to = qstage(3)
    C += h1 + t1 + [wait(vm=0)] + extras('Q2') + he
    C, q = finish(C); out += C
    B = [label("L_w3_q")] + te + ho + to + he
    B += [S(f"s_sub_u32 s{sLoop}, s{sLoop}, 1"), S(f"s_cmp_lg_u32 s{sLoop}, 0"), branch("s_cbranch_scc1", "L_w3_q")]
    Bc, q2 = loop_finish(B, q, out)
    out += Bc
    curT = wslot(20); curN = xbuf(10)
    h19, t19 = qstage(19, extra=add_addr(aN, f"s{sKX}") + add_addr(aN, item_slot(kidx(0)) - curN) + to_v(w, curT))
    mr = mode_read(w.T)
    C = mr[0] + te + mr[1] + extras('Q18') + h19 + t19
    C += st(40) + [barrier()] + st(41)
    k0 = frags_QK(w, 'zero')
    k1 = frags_QK(w, 'negm', pre=add_addr(aN, item_slot(kidx(1)) - item_slot(kidx(0))))
    w.fpos = 0
    C += stream(w, k0, 0, k1, lead=q_mfmas(w, 1, False), fillers=q_pack_fillers(w))
    C += first_max(w)
    C += st(42) + [barrier()] + st(43)
    C += flat(softmax_groups(w, 0)) + l_accum(w, first=True)
    v0 = frags_PV(w, 0, zero=True)
    C += extras('A0')
    C += [S(f"s_mov_b32 s{sKpos}, {item_slot(kidx(1))}"), S(f"s_mov_b32 s{sVpos}, {item_slot(vidx(0))}"), S(f"s_mov_b32 s{sLoop}, 7")]
    def adv(pos, rr):
        return [S(f"s_cmp_ge_u32 s{pos}, {LDS_BYTES - 2*SLOT}"), S(f"s_cselect_b32 s{sD}, {(2*SLOT - LDS_BYTES) & 0xffffffff:#x}, s{sC32}"),
                S(f"s_add_u32 s{pos}, s{pos}, s{sD}")] + add_addr(rr, f"s{sD}")
    def pv(par): return frags_PV(w, par, pre=adv(sVpos, aT))
    def qk(): return frags_QK(w, 'negm', pre=adv(sKpos, aN))
    E_ = 8 - Cfg.late
    def sm_part(late, par, extra=()):
        G = softmax_groups(w, par) + [check_cmp(w)]
        nl = 3 * len(late)
        cut = int(len(G) * Cfg.smpure) if Cfg.late < 8 else 0
        return flat(G[:cut]) + stream(w, late, Cfg.LA, qk(), fillers=[(G[cut:], 0, max(nl - Cfg.smend, 1))] + list(extra)) + check_branch(w, par)
    C += stream(w, k1 + v0[:E_], Cfg.LA, v0[E_:] + qk())
    C += st(44) + [barrier()] + st(45)
    C += sm_part(v0[E_:], 1)
    C, q = finish(C, q2, pre=out[-12:]); out += C
    B = [label("L_w3_a")]
    for par in (1, 0):
        B += stream(w, qk() + pv(par)[:E_], Cfg.LA, pv(par)[E_:] + qk(), fillers=[(one(l_accum(w)), 4, 10)])
        B += [barrier()]
        B += sm_part(pv(par)[E_:], 1 - par)
    B += [S(f"s_sub_u32 s{sLoop}, s{sLoop}, 1"), S(f"s_cmp_lg_u32 s{sLoop}, 0"), branch("s_cbranch_scc1", "L_w3_a")]
    Bc, q2 = loop_finish(B, q, out)
    out += Bc
    C = st(74) + l_accum(w) + mode_vcc() + extras('A15')
    C += stream(w, pv(1), 0, [], fillers=epi_fillers(w))
    C += st(75) + st(77, True)
    curT = item_slot(vidx(15)); curN = item_slot(kidx(16))
    C += to_w(w, curT) + add_addr(aN, xbuf(0) - curN) + [V(f"v_subrev_u32 v{r}, s{sKX}, v{r}") for r in aN]
    C += round_advance()
    C += [branch("s_cbranch_scc1", "L_w3_round"), branch("s_branch", "L_o")]
    C, q = finish(C, q2, pre=out[-12:]); out += C
    assert not q
    return out, rare_routine(w, 0) + rare_routine(w, 1)

def gen_w2():
    w = Wave(2); nm = 16
    st = lambda k, real=False: stamp(w.tmp + 1, k, real)
    aN = [w.aN, w.aN + 1]; aT = [w.aT + i for i in range(4)]
    POL[0] = Cfg.wx_pol
    sch = loader_schedule(w)
    items = lambda idx: sch[idx]
    vo1, vo2 = voff_setup(w)
    en = lambda r: [raw(f"s_memtime s[{r}:{r+1}]")] if Cfg.ent else []
    pro = vo1 + [raw("s_waitcnt lgkmcnt(0)")] + en(94) + srd(sW, 62, 5242880) + srd(sX, 56, 6553600)
    POL[0] = Cfg.pro_pol
    pro += flat(dma_w(w, 0, False, ('W', 0, True))) + flat(dma_x(w, 0, ('X', 0, True))) + flat(dma_w(w, 1, False, ('W', 1, True))) + ([barrier()] if Cfg.warm0 else [])
    pro += en(96)
    pro += vo2 + [V(f"v_mov_b32 v{w.oVoff}, 0"), V(f"v_mov_b32 v{w.oPoll}, 0")] + common_scalars() + lane_setup(w) + wave_addr0(w, 2, 6)
    if Cfg.ent:
        pro += en(98) + [raw("s_waitcnt lgkmcnt(0)"), V(f"v_mov_b32 v{w.tmp+2}, 0")]
        for i, r in enumerate((92, 94, 96, 98, 100)): pro += [V(f"v_mov_b32 v{w.tmp+1}, s{r}"), bstore(1, w.tmp + 1, w.tmp + 2, sWS, f"s{sStamp+2}", 4 * (120 + i), tag=('misc',))]
    C = [label("L_w2_round")] + st(76, True)
    def bar(idx, lgkm=None):
        b = wait(vm=63, lgkm=lgkm); b.tag = (('need', idx), lgkm)
        return st(2 * idx) + [b, barrier()] + st(2 * idx + 1)
    prio = lambda p: [raw(f"s_setprio {p}")] if Cfg.prio == 2 else []
    curT = wslot(0); curN = xbuf(0)
    C += prio(Cfg.qprio)
    if Cfg.q0soft: C += [S(f"s_cmp_lg_u32 s{sRound}, 0"), branch("s_cbranch_scc1", "L_q0p"), raw("s_setprio 0"), label("L_q0p")]
    for s in range(20):
        if Cfg.q0soft and s == Cfg.q0soft: C += prio(Cfg.qprio)
        if Cfg.q0sleep and s < Cfg.q0n: C += [S(f"s_cmp_lg_u32 s{sRound}, 0"), branch("s_cbranch_scc1", f"L_q0s{s}"), raw(f"s_sleep {Cfg.q0sleep}"), label(f"L_q0s{s}")]
        if s < 19:
            newT = wslot(s + 1); newN = xbuf((s + 1) >> 1)
            adv_ = add_addr(aT[:(2 if Cfg.wperm else 4)], newT - curT) + add_addr(aN, newN - curN); curT, curN = newT, newN
        else:
            adv_ = add_addr(aN, f"s{sKX}") + add_addr(aN, item_slot(kidx(0)) - curN) + to_v(w, curT)
        C += bar(s, lgkm=0)
        ex = []
        if s == 3:
            ex = [([[S(f"s_lshl_b32 s{sT1}, s{sRound}, 3"), S(f"s_add_u32 s{sT1}, s{sT1}, s{sWave}"), S(f"s_cmp_lg_u32 s{sT1}, 12"),
                     branch("s_cbranch_scc1", "L_nofl1"), S(f"s_and_b32 s{sT1}, s{sG}, 3"), S(f"s_lshl_b32 s{sT1}, 1, s{sT1}")] + flag_add(w.tmp + 1, f"s{sT1}", "L_nofl1")], 11, 12)]
        if s == 0: C += flat(q_reads(w, 0, 0)) + flat(items(0)) + adv_
        else: C += spread(q_mfmas(w, (s - 1) & 1, s == 1), [(q_reads(w, s & 1, s & 1), 0, Cfg.qr2), (items(s), Cfg.qd0, nm - 2), (one(adv_), Cfg.qr2 + 1, 16)] + ex)
    C += bar(20, lgkm=0)
    def qk(t, fc='negm'): return frags_QK(w, fc, pre=add_addr(aN, item_slot(kidx(t)) - item_slot(kidx(t - 1))) if t else [])
    def pv(t): return frags_PV(w, t & 1, zero=(t == 0), pre=add_addr(aT, item_slot(vidx(t)) - item_slot(vidx(t - 1))) if t else [])
    w.fpos = 0
    C += stream(w, qk(0, 'zero'), 0, qk(1), lead=q_mfmas(w, 1, False), fillers=[(items(20), 0, 2 * nm)] + q_pack_fillers(w))
    C += first_max(w)
    C += flat(softmax_groups(w, 0))
    for t in range(15):
        nx = qk(t + 2) if t < 14 else []
        if Cfg.pp:
            C += prio(Cfg.pp_a)
            C += bar(21 + t)
            C += stream(w, qk(t + 1) + pv(t), Cfg.LA, nx, fillers=[(one(l_accum(w, first=(t == 0))), 3, 8)])
            C += prio(Cfg.pp_b)
            G = softmax_groups(w, (t + 1) & 1) + [check_cmp(w)]
            sm = [g for g in G]
            it_ = items(21 + t)
            base = [I("; g", 'comment') for _ in sm]
            merged = spread(base, [(it_, 0, len(sm))])
            k = 0
            for c in merged:
                if c.kind == 'comment' and c.text == "; g": C += sm[k]; k += 1
                else: C.append(c)
            C += check_branch(w, (t + 1) & 1)
        else:
            C += prio(0)
            if 21 + t in Cfg.drain: C += [wait(vm=Cfg.drain[21 + t])]
            C += bar(21 + t)
            it_ = items(21 + t); h = (len(it_) * Cfg.dsplit + 99) // 100
            C += stream(w, qk(t + 1), Cfg.LA, pv(t), fillers=[(it_[:h], 0, nm), (one(l_accum(w, first=(t == 0))), 3, 8)])
            C += prio(1)
            C += stream(w, pv(t), Cfg.LA, nx, fillers=[(it_[h:], 1, nm + 1)] + sm_fillers(w, (t + 1) & 1, 2))
            C += check_branch(w, (t + 1) & 1)
    C += prio(0)
    C += bar(36)
    C += flat(items(36))
    C += st(74) + l_accum(w) + mode_vcc()
    C += stream(w, pv(15), 0, [], fillers=epi_fillers(w))
    C += st(75) + st(77, True)
    curT = item_slot(vidx(15)); curN = item_slot(kidx(15))
    C += to_w(w, curT) + add_addr(aN, xbuf(0) - curN) + [V(f"v_subrev_u32 v{r}, s{sKX}, v{r}") for r in aN]
    C += round_advance()
    C += [branch("s_cbranch_scc1", "L_w2_round"), branch("s_branch", "L_o")]
    VM = ('dma', 'vload', 'vstore')
    def resolve(prefix, first):
        res = {}
        q = [(c.tag[0], c.tag[1]) if len(c.tag) == 3 and c.tag[2] in (True, 'next') else None for c in prefix if c.kind in VM and c.tag != ('cond',)]
        for c in C:
            if c.kind in VM:
                if c.tag == ('cond',): continue
                if c.tag[-1] in ('cond', 'next') and not first: continue
                q.append((c.tag[0], c.tag[1]) if len(c.tag) == 3 and c.tag[2] in (False, 'cond') else None)
            elif c.kind == 'comment' and c.tag and c.tag[0] == 'phantom':
                if not first: q += [None] * c.tag[1]
            elif c.kind == 'wait' and isinstance(c.tag[0], tuple):
                idx = c.tag[0][1]
                last = -1
                for k, it in enumerate(q):
                    if it is not None and first_use(it[0], it[1]) <= idx: last = k
                res[idx] = min(63, len(q) - 1 - last)
        return res
    r1 = resolve(pro, True); r2 = resolve(C, False)
    C2 = []
    for c in C:
        if c.kind == 'wait' and isinstance(c.tag[0], tuple):
            idx = c.tag[0][1]; n = min(r1[idx], r2[idx]); lg = c.tag[1]
            if abs(r1[idx] - r2[idx]) > 1:
                C2 += [S(f"s_cmp_eq_u32 s{sRound}, {0 if r1[idx] > r2[idx] else 1}"), branch("s_cbranch_scc1", f"L_rw{idx}"), wait(vm=n), label(f"L_rw{idx}")]
                n = max(r1[idx], r2[idx])
            c.text = f"s_waitcnt vmcnt({n})" + (f" lgkmcnt({lg})" if lg is not None else ""); c.tag = (n, lg)
        C2.append(c)
    C = C2
    pro, _ = finish(pro)
    C, q = finish(C, [], pre=pro[-12:])
    assert not q
    return pro + C + gen_opre(w), rare_routine(w, 0) + rare_routine(w, 1)

OSLOT = 40960
def oslot(u): return ((u + 2) & 3) * OSLOT
def o_voff(nh, VOFF, lane, a, b):
    if nh == 1 and Cfg.fake_wot:
        return [V(f"v_lshrrev_b32 v{a}, 2, v{lane}"), V(f"v_mul_u32_u24 v{a}, 320, v{a}"), V(f"v_and_b32 v{VOFF}, 3, v{lane}"), V(f"v_lshl_add_u32 v{VOFF}, v{VOFF}, 4, v{a}")]
    if nh == 0: return [V(f"v_lshlrev_b32 v{VOFF}, 4, v{lane}")]
    return [V(f"v_lshrrev_b32 v{a}, 2, v{lane}"), V(f"v_mul_u32_u24 v{a}, 1280, v{a}"), V(f"v_bfe_u32 v{b}, v{lane}, 4, 1"), V(f"v_lshlrev_b32 v{b}, 1, v{b}"),
            V(f"v_and_b32 v{VOFF}, 3, v{lane}"), V(f"v_xor_b32 v{VOFF}, v{VOFF}, v{b}"), V(f"v_lshl_add_u32 v{VOFF}, v{VOFF}, 4, v{a}")]
def o_base(nh, sBase, sLd):
    C = [S(f"s_and_b32 s{sLd}, s{sWave}, 1"), S(f"s_mul_i32 s{sLd}, s{sLd}, 5120")]
    if nh == 0: C += [S(f"s_mul_i32 s{sBase}, s{sB}, {128*10240}"), S(f"s_add_u32 s{sBase}, s{sBase}, s{sLd}")]
    else: C += [S(f"s_lshl_b32 s{sBase}, s{sLd}, 2"), S(f"s_and_b32 s{sT2}, s{sG}, 3"), S(f"s_mul_i32 s{sT2}, s{sT2}, {5120 if Cfg.fake_wot else 320}"), S(f"s_add_u32 s{sBase}, s{sBase}, s{sT2}"),
                S(f"s_add_u32 s{sLd}, s{sLd}, 10240")]
    step = 10240 if nh == 0 else 40960
    C += [S(f"s_add_u32 s{sT3}, s{sG}, s{sB}")] if Cfg.orot else [S(f"s_mov_b32 s{sT3}, 0")]
    for u in range(4):
        C += [S(f"s_add_u32 s{sT2}, s{sT3}, {u}"), S(f"s_and_b32 s{sT2}, s{sT2}, 3"), S(f"s_mul_i32 s{sOoff+u}, s{sT2}, {step}")]
    return C
def o_dma(nh, u, VOFF, sSo, sLd, goff=0, loff=0, srd_=None):
    step = 10240 if nh == 0 else 40960
    G = []
    if Cfg.o_skip & (1 << nh): return G
    for i in range(5):
        if nh == 0:
            imm = (i & 3) * 1024; ex = (i >> 2) * 4096
            g = [S(f"s_add_u32 m0, s{sLd}, {oslot(u) + ex + loff}"), S(f"s_add_u32 s{sT0}, s{sSo}, s{sOoff+u}")] + ([S(f"s_add_u32 s{sT0}, s{sT0}, {ex + goff}")] if ex + goff else []) if imm == 0 else []
            G.append(g + [dma(VOFF, srd_ or sWS, f"s{sT0}", imm, Cfg.old_pol)])
        else:
            g = [S(f"s_add_u32 m0, s{sLd}, {oslot(u) + i*1024 - i*64 + loff}")]
            if i == 0: g += [S(f"s_add_u32 s{sT0}, s{sSo}, s{sOoff+u}")] + ([S(f"s_add_u32 s{sT0}, s{sT0}, {goff}")] if goff else [])
            G.append(g + [dma(VOFF, srd_ or sWO, f"s{sT0}", i * 64)])
    return G
def gate(lab, POLL, vfl, shift):
    return [V(f"v_readfirstlane_b32 s{sT2}, v{POLL}"), S(f"s_bfe_u32 s{sT2}, s{sT2}, {0x40000 + shift:#x}"), S(f"s_cmp_lg_u32 s{sT2}, 15"),
            branch("s_cbranch_scc1", lab)]
def spin(lab, POLL, vfl, shift, back):
    return [label(lab), bload(1, POLL, vfl, sDBG, 0, 0, 'sc1'), S(f"s_sub_u32 s{sCnt}, s{sCnt}, 1"), S(f"s_cmp_lt_i32 s{sCnt}, 0"), branch("s_cbranch_scc1", back),
            wait(vm=0), V(f"v_readfirstlane_b32 s{sT2}, v{POLL}"), S(f"s_bfe_u32 s{sT2}, s{sT2}, {0x40000 + shift:#x}"), S(f"s_cmp_eq_u32 s{sT2}, 15"),
            branch("s_cbranch_scc1", back), raw(f"s_sleep {Cfg.xsleep}"), branch("s_branch", lab)]

def gen_opre(w):
    sSo, sLd = sTK, sTV
    C = []
    for u in range(2):
        C += [label(f"L_opre{u}"), S(f"s_bitcmp1_b32 s{sWave}, 1"), branch("s_cbranch_scc1", f"L_opre{u}_1")]
        for nh in range(2):
            step = 10240 if nh == 0 else 40960
            B = [label(f"L_opre{u}_{nh}")]
            if u == 0:
                t = w.tmp + 1
                B += lane_id(t) + o_voff(nh, w.oVoff, t, w.dummy, w.vTch) + o_base(nh, sSo, sLd)
                B += [S(f"s_and_b32 s{sT3}, s{sG}, 4"), S(f"s_mul_i32 s{sT3}, s{sT3}, {16*step}"), S(f"s_add_u32 s{sSo}, s{sSo}, s{sT3}")]
            for ks in range(2): B += flat(o_dma(nh, u, w.oVoff, sSo, sLd, goff=ks * 4 * step, loff=ks * 20480))
            B += [branch("s_branch", f"L_opre{u}_back")]
            C += fix_hazards(B)
    C += fix_hazards([label("L_g1"), S(f"s_mov_b32 s{sCnt}, 0x8000"), V(f"v_mov_b32 v{w.tmp+2}, s{sFlag}")] + spin("L_g1_spin", w.oPoll, w.tmp + 2, 0, "L_g1_back"))
    return C

def gen_o():
    ACC = 0; SET = [100, 140]
    aB, aA0, aA1 = 180, 182, 184
    VOFF, POLL, VFL, T, L16, POLL2 = 186, 187, 188, 190, 196, 198
    LW, LR, VO, VO2 = T + 2, T + 3, T + 4, 199
    RB = 200
    sSo, sHi, sLd, sBase, sKs, sNq = 36, 37, 39, 40, 43, 44
    sXo, sXp, sOb, sVar = 60, 61, 62, 63
    sOD = sK
    st = lambda k, real=False: stamp(T, k, real)
    def acc(t): return ACC + 4 * t
    def fB(s_, jj): return SET[s_] + 4 * jj
    def fA(s_, nn): return SET[s_] + 20 + 4 * nn
    TS = [list(range(0, 7)), list(range(7, 13)), list(range(13, 19)), list(range(19, 25))]
    C = [label("L_o")] + st(80)
    if Cfg.prio: C += [raw("s_setprio 0")]
    lane = T; a = T + 1; b = T + 5
    C += lane_id(lane) + [V(f"v_lshlrev_b32 v{L16}, 4, v{lane}")]
    C += [S(f"s_lshr_b32 s{sKs}, s{sWave}, 2"), S(f"s_mul_i32 s{sT0}, s{sKs}, 20480"), S(f"s_and_b32 s{sT1}, s{sWave}, 1"), S(f"s_mul_i32 s{sT1}, s{sT1}, 5120"),
          S(f"s_add_u32 s{sT1}, s{sT0}, s{sT1}"),
          V(f"v_add_u32 v{aB}, s{sT1}, v{L16}"), V(f"v_add_u32 v{aB+1}, {2*OSLOT}, v{aB}"),
          V(f"v_lshrrev_b32 v{a}, 2, v{lane}"), V(f"v_bfe_u32 v{b}, v{lane}, 4, 1"), V(f"v_lshlrev_b32 v{b}, 5, v{b}"), V(f"v_lshl_add_u32 v{b}, v{a}, 6, v{b}"),
          V(f"v_and_b32 v{a}, 3, v{lane}"), V(f"v_lshl_add_u32 v{b}, v{a}, 3, v{b}"),
          S(f"s_add_u32 s{sT1}, s{sT0}, 10240"), V(f"v_add_u32 v{aA0}, s{sT1}, v{b}"), V(f"v_xor_b32 v{aA1}, 32, v{aA0}"),
          V(f"v_add_u32 v{aA0+1}, {2*OSLOT}, v{aA0}"), V(f"v_add_u32 v{aA1+1}, {2*OSLOT}, v{aA1}"),
          S(f"s_mov_b32 s{sHi}, 0")]
    C += [S(f"s_bitcmp1_b32 s{sWave}, 1"), branch("s_cbranch_scc1", "L_o_1")]
    C = fix_hazards(C)
    def late_setup():
        return [V(f"v_mov_b32 v{VFL}, s{sFlag}"), V(f"v_xor_b32 v{VFL+1}, 4, v{VFL}"), V(f"v_mov_b32 v{POLL}, 0"), V(f"v_mov_b32 v{POLL2}, 0"),
         S(f"s_and_b32 s{sNq}, s{sG}, 3"), S(f"s_mov_b32 s{sCnt}, 0x8000"),
         S(f"s_mul_i32 s{sT0}, s{sWave}, 13312"), V(f"v_add_u32 v{LW}, s{sT0}, v{L16}"),
         S(f"s_xor_b32 s{sT1}, s{sWave}, 4"), S(f"s_mul_i32 s{sT0}, s{sT1}, 13312"), V(f"v_add_u32 v{LR}, s{sT0}, v{L16}"),
         S(f"s_lshl_b32 s{sT0}, s2, 3"), S(f"s_add_u32 s{sT0}, s{sT0}, s{sWave}"), S(f"s_mul_i32 s{sXo}, s{sT0}, {SLAB}"), S(f"s_add_u32 s{sXo}, s{sXo}, {XCH_OFF}"),
         S(f"s_xor_b32 s{sT0}, s{sT0}, {8 if Cfg.map84 else 256}"), S(f"s_mul_i32 s{sXp}, s{sT0}, {SLAB}"), S(f"s_add_u32 s{sXp}, s{sXp}, {XCH_OFF}"),
         V(f"v_bfe_u32 v{VO}, v{L16}, 4, 4"), V(f"v_mul_u32_u24 v{VO}, 1280, v{VO}"),
         V(f"v_bfe_u32 v{a}, v{L16}, 8, 1"), V(f"v_lshl_add_u32 v{VO2}, v{a}, 5, v{VO}"), V(f"v_lshrrev_b32 v{a}, 9, v{L16}"), V(f"v_lshl_add_u32 v{VO2}, v{a}, 4, v{VO2}"),
         V(f"v_lshrrev_b32 v{a}, 8, v{L16}"), V(f"v_lshl_add_u32 v{VO}, v{a}, 3, v{VO}"),
         S(f"s_mul_i32 s{sOb}, s{sB}, 204800"), S(f"s_and_b32 s{sT0}, s{sWave}, 1"), S(f"s_mul_i32 s{sT0}, s{sT0}, 102400"), S(f"s_add_u32 s{sOb}, s{sOb}, s{sT0}"),
         S(f"s_mul_i32 s{sT0}, s{sNq}, 320"), S(f"s_add_u32 s{sOb}, s{sOb}, s{sT0}"), S(f"s_bfe_u32 s{sT0}, s{sWave}, 0x10001"), S(f"s_mul_i32 s{sT0}, s{sT0}, 160"),
         S(f"s_add_u32 s{sOb}, s{sOb}, s{sT0}"),
         S(f"s_lshr_b32 s{sVar}, s{sG}, 2"), S(f"s_lshl_b32 s{sT1}, s{sKs}, 1"), S(f"s_add_u32 s{sVar}, s{sVar}, s{sT1}")] + mode_vcc()
    def poll_load(): return [bload(1, POLL, VFL, sDBG, 0, 0, 'sc1'), bload(1, POLL2, VFL + 1, sDBG, 0, 0, 'sc1')]
    for nh in range(2):
        step = 10240 if nh == 0 else 40960
        src = sWS if nh == 0 else sWO
        R_ = [label(f"L_o_{nh}")] + o_voff(nh, VOFF, lane, a, b) + o_base(nh, sBase, sLd) + [S(f"s_add_u32 s{sLd}, s{sLd}, s{sT0}")]
        R_ += [S(f"s_mov_b32 s{sOD+i}, s{src+i}") for i in range(3)]
        def head_setup():
            return [S(f"s_and_b32 s{sT2}, s{sHi}, 3"), S(f"s_and_b32 s{sT3}, s{sG}, 4"), S(f"s_add_u32 s{sT2}, s{sT2}, s{sT3}"),
                    S(f"s_lshl_b32 s{sT2}, s{sT2}, 2"), S(f"s_lshr_b32 s{sT3}, s{sHi}, 2"), S(f"s_lshl_b32 s{sT3}, s{sT3}, 1"), S(f"s_add_u32 s{sT2}, s{sT2}, s{sT3}"),
                    S(f"s_add_u32 s{sT2}, s{sT2}, s{sKs}"), S(f"s_mul_i32 s{sT2}, s{sT2}, {4*step}"), S(f"s_add_u32 s{sSo}, s{sBase}, s{sT2}"),
                    S(f"s_add_u32 s{sHi}, s{sHi}, 1")]
        odma = lambda u: o_dma(nh, u, VOFF, sSo, sLd, srd_=sOD)
        def oreads(u):
            s_ = u & 1; hi = oslot(u) // (2 * OSLOT); off = oslot(u) % (2 * OSLOT)
            G = []
            for k in range(5):
                nb = 5 * nh + k
                ar = (aA1 if nb & 1 else aA0) + hi
                G.append([ds_read(2, fA(s_, k) + 2 * hh, ar, off + (hh * 5 + (nb >> 1)) * 1024, tr=True) for hh in range(2)])
                G.append([ds_read(4, fB(s_, k), aB + hi, off + k * 1024)])
            return G
        def omf(s_): return [mfma(acc(t), fA(s_, t % 5), fB(s_, t // 5), acc(t)) for t in range(25)]
        R_ += head_setup()
        R_ += [wait(vm=18), barrier()] + st(81) + st(82)
        R_ += flat(oreads(0))
        for r in range(50): R_.append(V(f"v_pk_mov_b32 v[{ACC+2*r}:{ACC+2*r+1}], 0, 0"))
        R_ += late_setup() + flat(odma(2))
        R_ += [wait(vm=13), branch("s_branch", f"L_o_in{nh}")]
        R_, q = finish(R_)
        it = lambda hi, wv, lab: [S(f"s_lshl_b32 s{sT2}, s{sHi}, 3"), S(f"s_add_u32 s{sT2}, s{sT2}, s{sWave}"), S(f"s_cmp_lg_u32 s{sT2}, {hi*8+wv}"), branch("s_cbranch_scc1", lab)]
        def ostage(u):
            L = [wait(vm=5, lgkm=0), barrier()]
            if u == 1: L = [wait(vm=5), label(f"L_o_in{nh}"), wait(lgkm=0), barrier()]
            fill = [(oreads(u)[:Cfg.o_nr], 0, Cfg.orh)]
            d = odma((u + 2) & 3)
            if u == 1:
                d = d + [head_setup() + [S(f"s_cmp_gt_u32 s{sHi}, 8"), S(f"s_cselect_b32 s{sOD+2}, 0, s{sOD+2}")]]
                if nh == 0: d = d + [it(5, 0, "L_g3_back") + gate("L_g2", POLL, VFL, 8) + [label("L_g2_back")] + gate("L_g3", POLL2, VFL + 1, 0) + [label("L_g3_back")]]
            if u == 3 and nh == 0: d = [it(4, 0, "L_p2") + poll_load() + [label("L_p2")]] + d
            if u == 2 and nh == 1:
                d = [it(2, 2, "L_nofl2") + [S(f"s_lshl_b32 s{sT2}, 0x100, s{sNq}")] + flag_add(T, f"s{sT2}", "L_nofl2")] + d
            if u == Cfg.tlbu and Cfg.tlbwarm:
                d = d + [[S(f"s_cmp_lg_u32 s{sHi}, {Cfg.tlbwarm}"), branch("s_cbranch_scc1", f"L_tw{nh}"), V(f"v_lshlrev_b32 v{T}, 3, v{L16}"), V(f"v_min_u32 v{T}, {SLAB-128}, v{T}"),
                          bload(1, RB, T, sWS, f"s{sXo}", 0, 'sc1'), label(f"L_tw{nh}")]]
            if u == 3: d = d + [[S(f"s_cmp_gt_u32 s{sHi}, 8")]]
            fill.append((d, Cfg.od0, Cfg.od1))
            if Cfg.oprio:
                n_ = len(Cfg.oprio)
                L = L[:-1] + [raw(f"s_setprio {n_}"), L[-1]]
                for i, pos in enumerate(Cfg.oprio): fill.append(([[raw(f"s_setprio {n_-1-i}")]], pos - 1, pos))
            return L + spread(omf(1 - (u & 1)), fill)
        B = [label(f"L_o_loop{nh}")] + ostage(1) + ostage(2) + ostage(3) + [branch("s_cbranch_scc1", "L_o_fin")] + ostage(0) + [branch("s_branch", f"L_o_loop{nh}")]
        Bc, q2 = loop_finish(B, [], R_)
        E = []
        if nh == 0: E += spin("L_g2", POLL, VFL, 8, "L_g2_back") + spin("L_g3", POLL2, VFL + 1, 0, "L_g3_back")
        C += R_ + Bc + fix_hazards(E)
    E = [label("L_o_fin")] + st(83) + [wait(vm=0, lgkm=0), barrier()]
    for v in range(1, 4): E += [S(f"s_cmp_eq_u32 s{sVar}, {v}"), branch("s_cbranch_scc1", f"L_o_epi{v}")]
    C += E
    for v in range(4):
        ks, kh = v >> 1, v & 1
        mine = TS[v]; xsend = TS[v ^ 1]; keep = sorted(mine + xsend); lsend = sorted(TS[v ^ 2] + TS[v ^ 3])
        ls = lambda i: [raw(f"s_memtime s[{64+2*i}:{65+2*i}]" if i < 4 else f"s_memtime s[{92+2*(i-4)}:{93+2*(i-4)}]"), wait(lgkm=0)] if Cfg.stamps == 6 else []
        E = [label(f"L_o_epi{v}")] + ls(0)
        order = lsend + xsend + mine
        mf = [mfma(acc(t), fA(1, t % 5), fB(1, t // 5), acc(t)) for t in order]
        wr = [[ds_write(4, LW, acc(t), i * 1024)] for i, t in enumerate(lsend)]
        E += spread(mf, [(wr, 4, 19)])
        E += [wait(lgkm=0)] + ls(1) + [barrier()] + ls(2)
        rorder = xsend + mine
        for i, t in enumerate(rorder): E.append(ds_read(4, RB + 4 * i, LR, keep.index(t) * 1024))
        PK = SET[0]
        for i, t in enumerate(rorder):
            for r in range(0, 4, 2): E.append(V(f"v_pk_add_f32 v[{acc(t)+r}:{acc(t)+r+1}], v[{acc(t)+r}:{acc(t)+r+1}], v[{RB+4*i+r}:{RB+4*i+r+1}]"))
            if t in xsend:
                k = xsend.index(t)
                E += [V(f"v_cvt_pk_bf16_f32 v{PK+2*k}, v{acc(t)}, v{acc(t)+1}"), V(f"v_cvt_pk_bf16_f32 v{PK+2*k+1}, v{acc(t)+2}, v{acc(t)+3}")]
                if k & 1 or k == len(xsend) - 1: E += dstore(4, PK + 4 * (k >> 1), L16, sWS, f"s{sXo}", (k >> 1) * 1024)
        E += st(84) + ls(3)
        n = len(mine); nl = (n + 1) // 2
        E += [V(f"v_mov_b32 v{POLL2}, 1"), V(f"v_mov_b32 v{VFL}, {SLAB-128}"), wait(vm=0), S("s_mov_b64 exec, 1")] + dstore(1, POLL2, VFL, sWS, f"s{sXo}", 0)
        if Cfg.poll_nt:
            SLOW.append([label(f"L_xp{v}"), bload(1, POLL, VFL, sWS, f"s{sXp}", 0, 'sc1'), branch("s_branch", f"L_xp{v}_b")])
            pl = [branch("s_cbranch_vccz", f"L_xp{v}"), bload(1, POLL, VFL, sWS, f"s{sXp}", 0, 'nt'), label(f"L_xp{v}_b")]
        else: pl = [bload(1, POLL, VFL, sWS, f"s{sXp}", 0, 'sc1')]
        E += [label(f"L_x{v}")] + pl + [
              S(f"s_sub_u32 s{sCnt}, s{sCnt}, 1"), S(f"s_cmp_lt_i32 s{sCnt}, 0"), branch("s_cbranch_scc1", f"L_x{v}_ok"), wait(vm=0),
              V(f"v_readfirstlane_b32 s{sT2}, v{POLL}"), S(f"s_cmp_eq_u32 s{sT2}, 1"), branch("s_cbranch_scc1", f"L_x{v}_ok"),
              raw(f"s_sleep {Cfg.xsleep2}"), branch("s_branch", f"L_x{v}"), label(f"L_x{v}_ok"), S("s_mov_b64 exec, -1")]
        ld = lambda pol: [bload(4, RB + 4 * k, L16, sWS, f"s{sXp}", k * 1024, pol) for k in range(nl)]
        SLOW.append([label(f"L_xl{v}")] + ld('sc1') + [branch("s_branch", f"L_xl{v}_b")])
        E += [branch("s_cbranch_vccz", f"L_xl{v}")] + ld('') + [label(f"L_xl{v}_b")]
        E += st(85) + ls(4)
        E += [wait(vm=0)] + ls(6)
        U = RB + 16
        k = 0
        while k < n:
            pair = Cfg.widest and k + 1 < n and mine[k] // 5 == mine[k + 1] // 5
            d = acc(mine[k])
            for h in range(2 if pair else 1):
                a_ = acc(mine[k + h]); r0 = RB + 2 * (k + h)
                E += [V(f"v_lshlrev_b32 v{U}, 16, v{r0}"), V(f"v_and_b32 v{U+1}, 0xffff0000, v{r0}"), V(f"v_lshlrev_b32 v{U+2}, 16, v{r0+1}"), V(f"v_and_b32 v{U+3}, 0xffff0000, v{r0+1}")]
                for r in range(0, 4, 2): E.append(V(f"v_pk_add_f32 v[{a_+r}:{a_+r+1}], v[{a_+r}:{a_+r+1}], v[{U+r}:{U+r+1}]"))
                E += [V(f"v_cvt_pk_bf16_f32 v{d+2*h}, v{a_}, v{a_+1}"), V(f"v_cvt_pk_bf16_f32 v{d+2*h+1}, v{a_+2}, v{a_+3}")]
            t = mine[k]
            E += [S(f"s_add_u32 s{sT0}, s{sOb}, {(t//5)*20480}")]
            if pair: E += [V(f"v_permlane16_swap_b32 v{d}, v{d+2}"), V(f"v_permlane16_swap_b32 v{d+1}, v{d+3}"), bstore(4, d, VO2, sOUT, f"s{sT0}", (t % 5) * 32, Cfg.out_pol)]
            else: E += [bstore(2, d, VO, sOUT, f"s{sT0}", (t % 5) * 32, Cfg.out_pol)]
            k += 2 if pair else 1
        E += st(86) + st(77, True)
        if Cfg.stamps == 6:
            E += [wait(vm=0)] + ls(5) + [V(f"v_mov_b32 v{T+1}, 0"), V(f"v_mov_b32 v{T}, s{sCnt}"), bstore(1, T, T + 1, sWS, f"s{sStamp+2}", 4 * 106)]
            for i, r in enumerate([64, 66, 68, 70, 92, 94]): E += [V(f"v_mov_b32 v{T}, s{r}"), bstore(1, T, T + 1, sWS, f"s{sStamp+2}", 4 * (100 + i))]
            E += [V(f"v_mov_b32 v{T}, s96"), bstore(1, T, T + 1, sWS, f"s{sStamp+2}", 4 * 107)]
        if Cfg.dbgst and ks == 1:
            E += [S(f"s_cmp_lg_u32 s{sWave}, 4"), branch("s_cbranch_scc1", f"L_dbgend{v}"), S(f"s_cmp_lg_u32 s2, {Cfg.dbgst}"), branch("s_cbranch_scc1", f"L_dbgend{v}"),
                  S("s_mov_b64 exec, 1"), V("v_mov_b32 v1, 0")]
            for i, r in enumerate(DREG):
                E += [S(f"s_sub_u32 s{r}, s{r}, s{sStamp+2}"), S(f"s_lshr_b32 s{r}, s{r}, 8"), S(f"s_and_b32 s{r}, s{r}, 0x3ff"), S(f"s_lshl_b32 s{r}, s{r}, {12 + 10*(i&1)}"), V(f"v_mov_b32 v{2+i}, s{r}"),
                      raw(f"buffer_atomic_or v{2+i}, v1, s[{sDBG}:{sDBG+3}], 0 offen offset:{8*(i>>1)+4} sc1")]
            E += [label(f"L_dbgend{v}")]
        E += [raw("s_endpgm")]
        E, _ = finish(E)
        C += E
    return C

def gen_kernel(name):
    C = [raw(f".globl {name}\n.p2align 8\n.type {name},@function\n{name}:\nKSTART:", 'label')]
    C += [S("s_cmp_lt_u32 s2, 256"), branch("s_cbranch_scc1", "L_go"), raw("s_endpgm"), label("L_go")]
    C += [raw("s_load_dwordx16 s[56:71], s[0:1], 0")]
    if Cfg.ent: C += [raw("s_memtime s[92:93]"), raw("s_memrealtime s[100:101]")]
    if Cfg.dbgst: C += [raw(f"s_memtime s[{sStamp+2}:{sStamp+3}]")] + [S(f"s_mov_b32 s{r}, 0") for r in DREG]
    if Cfg.delay:
        C += [S(f"s_bitcmp0_b32 s2, {Cfg.delay_bit}"), branch("s_cbranch_scc1", "L_nodelay"), S(f"s_mov_b32 s{sT0}, {Cfg.delay // 1024}"), label("L_delay"), raw("s_sleep 16"),
              S(f"s_sub_u32 s{sT0}, s{sT0}, 1"), S(f"s_cmp_lg_u32 s{sT0}, 0"), branch("s_cbranch_scc1", "L_delay"), label("L_nodelay")]
    C += [V("v_lshrrev_b32 v1, 6, v0"),
          S(f"s_and_b32 s{sB}, s2, 7"), S(f"s_lshl_b32 s{sB}, s{sB}, 2"), V(f"v_readfirstlane_b32 s{sWave}, v1"),
          S(f"s_lshr_b32 s{sT0}, s2, 6"), S(f"s_add_u32 s{sB}, s{sB}, s{sT0}"), S(f"s_bfe_u32 s{sG}, s2, 0x30003")]
    if Cfg.map84:
        C += [S(f"s_and_b32 s{sB}, s2, 6"), S(f"s_lshl_b32 s{sB}, s{sB}, 2"), S(f"s_lshr_b32 s{sT0}, s2, 5"), S(f"s_add_u32 s{sB}, s{sB}, s{sT0}"),
              S(f"s_and_b32 s{sG}, s2, 1"), S(f"s_lshl_b32 s{sG}, s{sG}, 2"), S(f"s_bfe_u32 s{sT0}, s2, 0x20003"), S(f"s_add_u32 s{sG}, s{sG}, s{sT0}")]
    C += [S(f"s_bfe_u32 s{sT0}, s{sWave}, 0x10001"), S(f"s_lshl_b32 s{sT2}, s{sG}, 2"), S(f"s_add_u32 s{sT2}, s{sT2}, s{sT0}"), S(f"s_lshl_b32 s{sWbase}, s{sT2}, 8"),
          S(f"s_cmp_lt_u32 s{sWave}, 4"), branch("s_cbranch_scc1", "L_w3"),
          S(f"s_and_b32 s{sT1}, s{sWave}, 1"), S(f"s_lshl_b32 s{sT2}, s{sT1}, 10"),
          S(f"s_lshl_b32 s{sLdsKV}, s{sT0}, 13"), S(f"s_add_u32 s{sLdsKV}, s{sLdsKV}, s{sT2}"),
          S(f"s_mul_i32 s{sLdsX}, s{sT0}, 10240"), S(f"s_add_u32 s{sLdsX}, s{sLdsX}, s{sT2}"),
          S(f"s_mul_i32 s{sXbase}, s{sB}, 204800"), S(f"s_mul_i32 s{sT2}, s{sT0}, 102400"), S(f"s_add_u32 s{sXbase}, s{sXbase}, s{sT2}")]
    if Cfg.rot:
        C += [S(f"s_bfe_u32 s{sRho}, s2, 0x20003") if Cfg.map84 else S(f"s_lshr_b32 s{sRho}, s2, 6"), S(f"s_mul_i32 s{sRho}, s{sRho}, 5"), S(f"s_add_u32 s{sRho}, s{sRho}, 1"), S(f"s_lshr_b32 s{sRho}, s{sRho}, 1"),
              S(f"s_lshr_b32 s{sT2}, s2, 5") if Cfg.map84 else S(f"s_mov_b32 s{sT2}, s{sG}"), S(f"s_add_u32 s{sRho}, s{sRho}, s{sT2}"), S(f"s_and_b32 s{sT2}, s2, 7"), S(f"s_add_u32 s{sRho}, s{sRho}, s{sT2}")]
        for _ in range(2): C += [S(f"s_sub_u32 s{sT2}, s{sRho}, 10"), S(f"s_cmp_ge_u32 s{sRho}, 10"), S(f"s_cselect_b32 s{sRho}, s{sT2}, s{sRho}")]
        if Cfg.rotn == 88: C += [S(f"s_lshr_b32 s{sRho}, s2, 5"), S(f"s_and_b32 s{sRho}, s{sRho}, 6"), S(f"s_add_u32 s{sRho}, s{sRho}, s{sG}"), S(f"s_add_u32 s{sRho}, s{sRho}, s2")]
        if Cfg.rotn == 19: C += [S(f"s_cmp_eq_u32 s{sRho}, 9"), S(f"s_cselect_b32 s{sRho}, 4, s{sRho}")]
        if Cfg.rotn == 8: C += [S(f"s_and_b32 s{sRho}, s2, 7")]
        if Cfg.rotn == 16:
            C += [S(f"s_and_b32 s{sRho}, s{sRho}, 1"), S(f"s_mul_i32 s{sRho}, s{sRho}, 5"), S(f"s_and_b32 s{sT2}, s2, 7"), S(f"s_add_u32 s{sRho}, s{sRho}, s{sT2}"),
                  S(f"s_sub_u32 s{sT2}, s{sRho}, 10"), S(f"s_cmp_ge_u32 s{sRho}, 10"), S(f"s_cselect_b32 s{sRho}, s{sT2}, s{sRho}")]
        if Cfg.rotn == 2: C += [S(f"s_and_b32 s{sRho}, s{sRho}, 1"), S(f"s_mul_i32 s{sRho}, s{sRho}, 5")]
        if Cfg.rotn == 4: C += [S(f"s_and_b32 s{sRho}, s{sRho}, 3"), S(f"s_mul_i32 s{sRho}, s{sRho}, 5"), S(f"s_lshr_b32 s{sRho}, s{sRho}, 1")]
    C = fix_hazards(C)
    w2, r2 = gen_w2(); w3, r3 = gen_w3()
    C += w2 + w3 + gen_o() + [label("KEND")] + r2 + r3 + flat(SLOW)
    for k, tag, par in CTX.stubs:
        C += [label(f"L_stub{k}"), raw(f"s_call_b64 s[{sRet}:{sRet+1}], L_rare_{tag}_{par}", 'branch'), branch("s_branch", f"L_back{k}")]
    return C

def kd(name, vgpr, accum, sgpr=102):
    return f""".section .rodata,"a"
.p2align 6
.amdhsa_kernel {name}
  .amdhsa_next_free_vgpr {vgpr}
  .amdhsa_next_free_sgpr {sgpr}
  .amdhsa_accum_offset {accum}
  .amdhsa_group_segment_fixed_size 0
  .amdhsa_kernarg_size 64
  .amdhsa_user_sgpr_count 2
  .amdhsa_user_sgpr_kernarg_segment_ptr 1
  .amdhsa_system_sgpr_workgroup_id_x 1
.end_amdhsa_kernel
"""

HDR = open('standalone__mha_block_cached__near_ridge.s.ref').read().split('; Override launch')[0]
DOC = """; Fused MHA block, one persistent workgroup per CU (generated by the author's own script).
; Two rounds of 2 heads: Q^T = Wq^T x^T (20 k-steps) -> S^T = K Q^T -> online softmax (running max kept as MFMA C input, re-based to
; Then out^T tile (160 x 160) over half of K from the four sibling workgroups' O (flags in d_debug), pair-wise partial-sum exchange via d_ws.
"""
def main(path):
    k1 = "standalone__mha_block_cached__near_ridge_kernel"
    s = HDR
    s += f"; @launch grid=(256,1,1) block=(512,1,1) lds={LDS_BYTES}\n"
    s += '.amdgcn_target "amdgcn-amd-amdhsa--gfx950"\n.text\n'
    s += DOC
    s += emit(gen_kernel(k1))
    s += kd(k1, 256, 256)
    open(path, 'w').write(s)
if __name__ == '__main__':
    for a in sys.argv[2:]:
        k, v = a.split('=', 1); setattr(Cfg, k, eval(v))
    main(sys.argv[1] if len(sys.argv) > 1 else 'mha2.s')
```

```python
import sys, math, struct
from ir import *

SLOT = 16384
NSLOT = 10
NW, NX = 6, 3
WPERM = [4, 5, 1, 3, 0, 2]
def wslot(s): return WPERM[s % NW] * SLOT
def xbuf(u): return NW * SLOT + (u % NX) * 20480
WTAB = sum((((WPERM[(m + 1) % NW] - WPERM[m]) & 15) << (4 * m)) for m in range(NW))
LDS_BYTES = 163840
O_BYTES = 32 * 128 * 10 * 1024
XCH_OFF = O_BYTES
SLAB = 4096 + 128
XCH_WG = 8 * SLAB
MODE_LDS = LDS_BYTES - 4
WS_BYTES = XCH_OFF + 256 * XCH_WG
QSCALE = math.log2(math.e) / math.sqrt(128.0)
THR = 16384.0
def f2u(x): return "0x%08x" % struct.unpack('<I', struct.pack('<f', x))[0]

sK, sV, sW, sX, sWS, sWO, sOUT, sDBG = 8, 12, 16, 20, 24, 28, 76, 80
sWave, sRound, sB, sG = 32, 33, 34, 35
sKVbase, sWbase, sXbase, sLdsKV, sLdsX = 36, 37, 38, 39, 40
sT0, sT1 = 41, 42
sKpos, sVpos, sD, sCnt, sXd, sLoop = 43, 44, 45, 49, 50, 51
sRet = 46
sOst = 48
sKX, sFlag = 52, 53
sT2, sT3 = 54, 55
sQS, sC16, sC32, sCX = 72, 73, 74, 75
sTK, sTV, sCnt2 = 88, 89, 90
sTau = 64
sMode = 91
sRho, sT4 = 3, 87
sOoff = 56
sStamp = 84
DBG_OFF = 96 << 20

class Cfg:
    stamps = False
    dbgst = False
    dsl = None
    rot = True
    orot = True
    warm0 = False
    delay = 0
    delay_bit = 7
    LA = 7
    kv_pol = 'nt'
    touch_pol = ''
    touch_at = []
    warm = True
    xsleep = 8
    kv_same = False
    prenorm = False
    w3sync = False
    pa = 0
    pb = 1
    o_nr = 10
    wperm = True
    q0soft = 0
    q0sleep = 0
    q0n = 20
    tlbsh = 12
    capr0 = 0
    capr0_items = (0, 1, 2, 3, 4, 8, 9)
    first = {0: 17, 1: 15, 2: 18, 3: 16, 4: 19, 5: 20, 6: 20, 7: 20, 8: 18, 9: 19}
    capi = 5
    wnext = ((33, (2, 3)), (34, (0, 1)))
    holes = []
    qcap = 9
    map84 = True
    fake_wot = False
    capfrom = 0
    cap0 = False
    place2 = {'wo': (8, 0)}
    cap = 5
    drain = {}
    wo2n = 39
    jit = 1
    wo2pol = ''
    place = {'code': ('A0', 1)}
    oprio = [6, 12, 18]
    v_pol = None
    ent = False
    tlbwarm = 0
    tlbu = 1
    slabmall = True
    widest = True
    pro_pol = ''
    wx_pol = ''
    poll_nt = False
    taumul = 8
    taush = 2
    taumask = 15
    kvgrp = 1
    pace = 5.0
    lead = 2
    tbatch = []
    qr3 = 18
    qr2 = 15
    orh = 20
    od0 = 1
    od1 = 24
    ofirst = True
    qd0 = 0
    qprio = 1
    ofast_pol = ''
    fast0 = False
    out_pol = ''
    dsplit = 50
    rotn = 10
    late = 8
    smpure = 0.7
    pp = False
    pp_a = 1
    pp_b = 0
    ostamp = False
    xsleep2 = 2
    dual = True
    fast = True
    codetouch2 = True
    codetouch = True
    qcut = 4
    prio = 2
    no_sm = False
    no_dma = False
    no_exp = False
    no_chk = False
    no_ds = False
    no_adv = False
    ost_pol = 'sc1'
    old_pol = 'sc1'
    o_skip = 0
    o_vm1 = 10
    smend = 3

RT4 = {7: 90, 39: 91, 45: 92, 73: 93, 82: 94, 83: 95}
STAMP3 = (0, 1, 3, 5, 7, 39, 41, 43, 45, 73, 75, 76, 77, 80, 81, 82, 83, 84, 85, 86)
DSL = {(1, 0): 0, (41, 0): 1, (45, 0): 2, (73, 0): 3, (1, 1): 4, (41, 1): 5, (45, 1): 6, (73, 1): 7, (80, 2): 8, (82, 2): 9, (83, 2): 10, (84, 2): 11, (85, 2): 12, (86, 2): 13}
sDS = 4
DREG = [4, 5, 6, 7, 101, 92, 93, 94, 95, 96, 97, 98, 99, 100]
def stamp(t, k, real=False):
    if Cfg.dbgst:
        if real: return []
        dsl = DSL if not Cfg.dsl else {(2 * b + 1, Cfg.dsl[0]): i for i, b in enumerate(Cfg.dsl[1:])}
        hits = [(r, i) for (kk, r), i in dsl.items() if kk == k]
        if not hits: return []
        out = [raw(f"s_memtime s[{sStamp}:{sStamp+1}]"), wait(lgkm=0)]
        for r, i in hits:
            out += [S(f"s_cmp_eq_u32 s{sRound}, {r}"), S(f"s_cselect_b32 s{DREG[i]}, s{sStamp}, s{DREG[i]}")]
        return out
    if not Cfg.stamps: return []
    if Cfg.stamps == 6: return []
    if Cfg.stamps == 7:
        if not ((41 <= k <= 73 and k % 4 == 1 and not real) or k in (76, 77, 31)): return []
        real = True
    if Cfg.stamps == 4 and not real and k in RT4:
        Cfg.stamps = 5; r = stamp(t, k) + stamp(t, RT4[k], True); Cfg.stamps = 4; return r
    if Cfg.stamps in (3, 4) and k not in STAMP3: return []
    return [raw(f"{'s_memrealtime' if real else 's_memtime'} s[{sStamp}:{sStamp+1}]"), wait(lgkm=0), V(f"v_mov_b32 v{t}, s{sStamp}"), V(f"v_mov_b32 v{t+1}, 0"),
            S(f"s_and_b32 s{sStamp+1}, s{sRound}, 1"), S(f"s_lshl_b32 s{sStamp+1}, s{sStamp+1}, 9"), S(f"s_add_u32 s{sStamp+1}, s{sStamp+1}, s{sStamp+2}"),
            bstore(1, t, t + 1, sWS, f"s{sStamp+1}", 4 * k, tag=('misc',))]

def item_slot(n): return (n % NSLOT) * SLOT
def kidx(t): return 0 if t == 0 else 2 * t - 1
def vidx(t): return 2 * t + 2

class Wave:
    def __init__(self, nq):
        self.nq = nq
        n = nq
        p = 0
        self.O = p; p += 32 * n
        self.Q = p; p += 16 * n
        self.NM = p; p += 4 * n
        self.S = p; p += 8 * n
        self.P = p; p += 8 * n
        self.L = p; p += n
        self.LT = p; p += n
        self.T = p; p += 4
        self.aN = p; p += 2
        self.aT = p; p += 4
        p = (p + 3) & ~3
        self.F = p; self.NF = 8; p += 32
        self.dummy = p; p += 1
        self.tmp = p; p += 3
        if nq == 2:
            self.vK = p; self.vV = p + 1; self.vW = p + 2; self.vX = p + 3; self.vTch = p + 4; self.oVoff = p + 5; self.oPoll = p + 6; p += 7
        assert p <= 256, p
        self.end = p
        setsz = 32 + 4 * n
        if nq == 3:
            self.set = [self.Q, self.S]
        else:
            q = (p + 3) & ~3
            self.set = [self.Q, q]
            assert q + setsz <= 256
        self.tag = f"w{nq}"
        self.fpos = 0
    def o(self, T, j): return self.O + (T * self.nq + j) * 4
    def q(self, s, j): return self.Q + (s * self.nq + j) * 4
    def nm(self, j): return self.NM + 4 * j
    def s(self, kb, j): return self.S + (kb * self.nq + j) * 4
    def p(self, par, j): return self.P + (par * self.nq + j) * 4
    def fa(self, st, T): return self.set[st] + 4 * T
    def fb(self, st, j): return self.set[st] + 32 + 4 * j

def spread(base, fillers):
    ins = [[] for _ in range(len(base) + 1)]
    for groups, lo, hi in fillers:
        n = len(groups)
        if n == 0: continue
        hi = min(hi, len(base)); lo = min(lo, hi)
        span = hi - lo
        for k, gI in enumerate(groups):
            pos = lo + (k * span) // n + 1 if span > 0 else lo
            ins[min(pos, len(base))].extend(gI)
    out = list(ins[0])
    for i, b in enumerate(base):
        out.append(b); out.extend(ins[i + 1])
    return out

def frag_K(w, s, kb, first_c):
    def reads(f): return [ds_read(4, f, w.aN + (s & 1), kb * 4096 + (s >> 1) * 2048)]
    def mf(f):
        out = []
        for j in range(w.nq):
            c = w.s(kb, j) if s > 0 else (None if first_c == 'zero' else w.nm(j))
            out.append(mfma(w.s(kb, j), f, w.q(s, j), c))
        return out
    return dict(reads=reads, mf=mf, pre=[])
def frags_QK(w, first_c='negm', pre=()):
    fr = [frag_K(w, s, kb, first_c) for s in range(4) for kb in range(2)]
    fr[0]['pre'] = list(pre)
    return fr
def frag_V(w, db, par, zero):
    def reads(f): return [ds_read(2, f + 2 * hh, w.aT + (db & 3), hh * 4096 + (db >> 2) * 2048, tr=True) for hh in range(2)]
    def mf(f): return [mfma(w.o(db, j), f, w.p(par, j), None if zero else w.o(db, j)) for j in range(w.nq)]
    return dict(reads=reads, mf=mf, pre=[])
def frags_PV(w, par, zero=False, pre=()):
    fr = [frag_V(w, db, par, zero) for db in range(8)]
    fr[0]['pre'] = list(pre)
    return fr

def stream(w, frags, preloaded, nxt, fillers=(), lead=()):
    LA = Cfg.LA
    allf = list(frags) + list(nxt[:LA])
    head = []
    def issue(i):
        f = allf[i]
        return ([] if Cfg.no_adv else list(f['pre'])) + ([] if Cfg.no_ds else f['reads'](w.F + 4 * ((w.fpos + i) % w.NF)))
    for i in range(preloaded, min(LA, len(allf))): head += issue(i)
    base = list(lead); extra = []
    for i, f in enumerate(frags):
        m = f['mf'](w.F + 4 * ((w.fpos + i) % w.NF))
        base += m
        post = []
        if i + LA < len(allf) and i + LA >= preloaded: post += issue(i + LA)
        if post: extra.append(([post], len(base) - 1, len(base)))
    body = spread(base, list(extra) + list(fillers))
    w.fpos = (w.fpos + len(frags)) % w.NF
    return head + body

def softmax_groups(w, par):
    G = []
    if par == 'f':
        for kb in range(2):
            for j in range(w.nq):
                for r in range(4): G.append([V(f"v_exp_f32 v{w.Q+(kb*w.nq+j)*4+r}, v{w.s(kb,j)+r}")])
                e = w.Q + (kb * w.nq + j) * 4; lt = w.LT + j
                G.append(([V(f"v_add_f32 v{lt}, v{e}, v{e+1}")] if kb == 0 else [V(f"v_add_f32 v{lt}, v{lt}, v{e}"), V(f"v_add_f32 v{lt}, v{lt}, v{e+1}")])
                         + [V(f"v_add_f32 v{lt}, v{lt}, v{e+2}"), V(f"v_add_f32 v{lt}, v{lt}, v{e+3}")])
        return G
    k = 0
    for kb in range(2):
        for j in range(w.nq):
            for h in range(2):
                t0 = w.T + 2 * (k & 1); t1 = t0 + 1; k += 1
                sr = w.s(kb, j) + 2 * h
                G.append([V(f"v_exp_f32 v{t0}, v{sr}")])
                G.append([V(f"v_exp_f32 v{t1}, v{sr+1}")])
                lt = w.LT + j
                if kb == 0 and h == 0:
                    G.append(('late', [V(f"v_add_f32 v{lt}, v{t0}, v{t1}"), V(f"v_cvt_pk_bf16_f32 v{w.p(par,j)+2*kb+h}, v{t0}, v{t1}")]))
                else:
                    G.append(('late', [V(f"v_add_f32 v{lt}, v{lt}, v{t0}"), V(f"v_cvt_pk_bf16_f32 v{w.p(par,j)+2*kb+h}, v{t0}, v{t1}"),
                                       V(f"v_add_f32 v{lt}, v{lt}, v{t1}")]))
    if Cfg.no_sm: return [[V(f"v_mov_b32 v{w.LT+j}, 1.0")] for j in range(w.nq)]
    if Cfg.no_exp:
        for gI in G:
            if not isinstance(gI, tuple): gI[0] = V(gI[0].text.replace('v_exp_f32', 'v_mov_b32'))
    out = []; pend = None
    for gI in G:
        if isinstance(gI, tuple):
            pend = gI[1]
        else:
            out.append(gI)
            if pend is not None:
                out.append(pend); pend = None
    if pend is not None: out.append(pend)
    return out

class Ctx:
    def __init__(self): self.stubs = []; self.n = 0
CTX = Ctx()

SLOW = []
def dstore(n, src, voff, srd_, soff, imm, tag=None, pol=''):
    if not Cfg.dual: return [bstore(n, src, voff, srd_, soff, imm, 'sc1', tag=tag)]
    k = len(SLOW)
    SLOW.append([label(f"L_slow{k}"), bstore(n, src, voff, srd_, soff, imm, 'sc1'), branch("s_branch", f"L_slowb{k}")])
    return [branch("s_cbranch_vccz", f"L_slow{k}"), bstore(n, src, voff, srd_, soff, imm, pol, tag=tag), label(f"L_slowb{k}")]
def mode_vcc(): return [S(f"s_and_b32 s{sT1}, s{sMode}, s{sMode if Cfg.fast0 else sRound}"), S("s_cselect_b64 vcc, -1, 0")]
def mode_read(t):
    return [[V(f"v_mov_b32 v{t}, {MODE_LDS}"), ds_read(1, t, t, 0)],
            [V(f"v_readfirstlane_b32 s{sT1}, v{t}"), S(f"s_cmp_eq_u32 s{sRound}, 0"), S(f"s_cselect_b32 s{sMode}, s{sT1}, s{sMode}")]]

def check_cmp(w):
    if Cfg.no_chk: return []
    out = []
    if w.nq == 3: out.append(V(f"v_max3_f32 v{w.tmp}, v{w.LT}, v{w.LT+1}, v{w.LT+2}"))
    else: out.append(V(f"v_max_f32 v{w.tmp}, v{w.LT}, v{w.LT+1}"))
    out.append(I(f"v_cmp_nge_f32 vcc, {f2u(THR)}, v{w.tmp}", 'valu', wr={('s', 'vcc')}, rd=regs(w.tmp)))
    return out
def check_branch(w, par):
    if Cfg.no_chk: return []
    k = CTX.n; CTX.n += 1
    CTX.stubs.append((k, w.tag, par))
    return [branch("s_cbranch_vccnz", f"L_stub{k}"), label(f"L_back{k}")]
def l_accum(w, first=False):
    if first: return [V(f"v_mov_b32 v{w.L+j}, v{w.LT+j}") for j in range(w.nq)]
    return [V(f"v_add_f32 v{w.L+j}, v{w.L+j}, v{w.LT+j}") for j in range(w.nq)]
def sm_fillers(w, par, lo):
    nm = 8 * w.nq
    return [(softmax_groups(w, par) + [check_cmp(w)], lo, nm - Cfg.smend)]

def xlane(op, r, t):
    return [V(f"v_mov_b32 v{t}, v{r}"), V(f"v_permlane32_swap_b32 v{r}, v{t}"), V(f"{op} v{r}, v{r}, v{t}"),
            V(f"v_mov_b32 v{t}, v{r}"), V(f"v_permlane16_swap_b32 v{r}, v{t}"), V(f"{op} v{r}, v{r}, v{t}")]

def tile_max(w, j, dst):
    a, b = w.s(0, j), w.s(1, j)
    return [V(f"v_max3_f32 v{dst}, v{a}, v{a+1}, v{a+2}"), V(f"v_max3_f32 v{dst}, v{dst}, v{a+3}, v{b}"),
            V(f"v_max3_f32 v{dst}, v{dst}, v{b+1}, v{b+2}"), V(f"v_max_f32 v{dst}, v{dst}, v{b+3}")]

def first_max(w):
    out = []
    for j in range(w.nq): out += tile_max(w, j, w.LT + j)
    seqs = [xlane("v_max_f32", w.LT + j, w.T + j) for j in range(w.nq)]
    for k in range(6):
        for sq in seqs: out.append(sq[k])
    for j in range(w.nq):
        for r in range(4): out.append(V(f"v_sub_f32 v{w.nm(j)+r}, 0, v{w.LT+j}"))
        for kb in range(2):
            for r in range(4): out.append(V(f"v_sub_f32 v{w.s(kb,j)+r}, v{w.s(kb,j)+r}, v{w.LT+j}"))
    return out

def rare_routine(w, par):
    out = [label(f"L_rare_{w.tag}_{par}"), nop(15)]
    for j in range(w.nq):
        d = w.LT + j; f = w.T + 1
        out += tile_max(w, j, d)
        out += xlane("v_max_f32", d, w.T)
        out.append(V(f"v_max_f32 v{d}, 0, v{d}"))
        out.append(V(f"v_sub_f32 v{f}, 0, v{d}"))
        out.append(V(f"v_exp_f32 v{f}, v{f}"))
        for r in range(4): out.append(V(f"v_sub_f32 v{w.nm(j)+r}, v{w.nm(j)+r}, v{d}"))
        for kb in range(2):
            for r in range(4): out.append(V(f"v_sub_f32 v{w.s(kb,j)+r}, v{w.s(kb,j)+r}, v{d}"))
        out.append(V(f"v_mul_f32 v{w.L+j}, v{w.L+j}, v{f}"))
        for T in range(8):
            for r in range(4): out.append(V(f"v_mul_f32 v{w.o(T,j)+r}, v{w.o(T,j)+r}, v{f}"))
    for gI in softmax_groups(w, par): out += gI
    out.append(nop(3))
    out.append(raw(f"s_setpc_b64 s[{sRet}:{sRet+1}]", 'branch'))
    return fix_hazards(out)

def q_reads(w, st, sl):
    G = []
    for j in range(w.nq): G.append([ds_read(4, w.fb(st, j), w.aN + sl, j * 2048)])
    for T in range(8):
        for hh in range(2):
            if Cfg.wperm: G.append([ds_read(2, w.fa(st, T) + 2 * hh, w.aT + ((T >> 1) & 1), hh * 4096 + (T >> 2) * 2048 + (T & 1) * 8, tr=True)])
            else: G.append([ds_read(2, w.fa(st, T) + 2 * hh, w.aT + (T & 3), hh * 4096 + (T >> 2) * 2048, tr=True)])
    return G
def q_mfmas(w, st, zero):
    return [mfma(w.o(T, j), w.fa(st, T), w.fb(st, j), None if zero else w.o(T, j)) for T in range(8) for j in range(w.nq)]

def q_pack_groups(w, s):
    G = []
    for j in range(w.nq):
        for half in range(2):
            a = w.o(2 * s + half, j)
            for r in range(4): G.append([V(f"v_mul_f32 v{a+r}, s{sQS}, v{a+r}")])
            G.append([V(f"v_cvt_pk_bf16_f32 v{w.q(s,j)+2*half}, v{a}, v{a+1}")])
            G.append([V(f"v_cvt_pk_bf16_f32 v{w.q(s,j)+2*half+1}, v{a+2}, v{a+3}")])
    if not Cfg.wperm:
        for op in ("v_permlane32_swap_b32", "v_permlane16_swap_b32"):
            for j in range(w.nq):
                q = w.q(s, j)
                G.append([V(f"{op} v{q}, v{q+2}")]); G.append([V(f"{op} v{q+1}, v{q+3}")])
    return G
def q_pack_fillers(w):
    n = w.nq
    rng = [(2 * n + 2, 5 * n), (5 * n, 8 * n), (8 * n, 11 * n), (11 * n, 14 * n - 1)]
    return [(q_pack_groups(w, s), rng[s][0], rng[s][1]) for s in range(4)]

def l_reduce(w):
    out = []
    seqs = [xlane("v_add_f32", w.L + j, w.T + j) for j in range(w.nq)]
    for k in range(6):
        for sq in seqs: out.append(sq[k])
    for j in range(w.nq): out.append(V(f"v_rcp_f32 v{w.L+j}, v{w.L+j}"))
    out += [V(f"v_mbcnt_lo_u32_b32 v{w.tmp}, -1, 0"), V(f"v_mbcnt_hi_u32_b32 v{w.tmp}, -1, v{w.tmp}"), V(f"v_lshlrev_b32 v{w.tmp}, 4, v{w.tmp}")]
    return out
def prenorm(w):
    out = l_accum(w) + l_reduce(w)
    for kb in range(2):
        for j in range(w.nq):
            e = w.Q + (kb * w.nq + j) * 4
            out += [V(f"v_mul_f32 v{e+r}, v{e+r}, v{w.L+j}") for r in range(4)]
            out += [V(f"v_cvt_pk_bf16_f32 v{w.p(1,j)+2*kb}, v{e}, v{e+1}"), V(f"v_cvt_pk_bf16_f32 v{w.p(1,j)+2*kb+1}, v{e+2}, v{e+3}")]
    for T in range(8):
        for j in range(w.nq): out += [V(f"v_mul_f32 v{w.o(T,j)+r}, v{w.o(T,j)+r}, v{w.L+j}") for r in range(4)]
    return out
def epi_groups(w, s):
    G = []
    for j in range(w.nq):
        d = w.q(s, j)
        for half in range(2):
            a = w.o(2 * s + half, j)
            if not Cfg.prenorm:
                for r in range(4): G.append([V(f"v_mul_f32 v{a+r}, v{a+r}, v{w.L+j}")])
            G.append([V(f"v_cvt_pk_bf16_f32 v{d+2*half}, v{a}, v{a+1}")])
            G.append([V(f"v_cvt_pk_bf16_f32 v{d+2*half+1}, v{a+2}, v{a+3}")])
        G.append([S(f"s_add_u32 s{sT1}, s{sOst}, {s*10240}")] + dstore(4, d, w.tmp, sWS, f"s{sT1}", j * 1024, tag=('O', 0, True), pol=Cfg.ofast_pol))
    return G
def epi_fillers(w):
    n = w.nq
    rng = [(2 * n + 2, 4 * n + 2), (4 * n + 2, 6 * n + 2), (6 * n + 2, 8 * n), (8 * n, 8 * n)]
    return ([] if Cfg.prenorm else [([[i] for i in l_reduce(w)], 0, 2 * n + 1)]) + [(epi_groups(w, s), rng[s][0], rng[s][1]) for s in range(4)]

def flat(G): return [i for g in G for i in g]
def one(L): return [[i] for i in L]

CAPN = [0]
def dma_kv(w, kind, t, nxt_round, tag):
    srd_ = sK if kind == 'K' else sV
    voff = w.vK if kind == 'K' else w.vV
    n = kidx(t) if kind == 'K' else vidx(t)
    lds = item_slot(n)
    G = []
    for a in range(2):
        for seg in range(2):
            G.append([S(f"s_add_u32 m0, s{sLdsKV}, {lds + a*4096 + seg*2048 - seg*128}"),
                      S(f"s_add_u32 s{sT0}, s{sT4}, {a*4096}"),
                      dma(voff, srd_, f"s{sT0}", seg * 128, Cfg.kv_pol if (kind == 'K' or Cfg.v_pol is None) else Cfg.v_pol, tag=tag)])
    if Cfg.cap and n >= Cfg.capfrom:
        for g in G:
            if Cfg.cap0:
                CAPN[0] += 1
                g[0:0] = [S(f"s_cmp_lg_u32 s{sRound}, 0"), branch("s_cbranch_scc1", f"L_cap{CAPN[0]}"), wait(vm=Cfg.cap - 1), label(f"L_cap{CAPN[0]}")]
            else: g.insert(2, wait(vm=(Cfg.cap if n >= 10 else Cfg.capi) - 1))
    if Cfg.capr0 and n in Cfg.capr0_items:
        for g in G:
            CAPN[0] += 1
            g[0:0] = [S(f"s_cmp_lg_u32 s{sRound}, 0"), branch("s_cbranch_scc1", f"L_cap{CAPN[0]}"), wait(vm=Cfg.capr0 - 1), label(f"L_cap{CAPN[0]}")]
    G[0] = [S(f"s_add_u32 s{sT4}, s{sTau}, {t*8192}"), S(f"s_and_b32 s{sT4}, s{sT4}, 0x1ffff"), S(f"s_add_u32 s{sT4}, s{sT4}, s{sKVbase}")] + G[0]
    return G
POL = ['']
def rot_off(u, unit, base):
    if not Cfg.rot: return [S(f"s_add_u32 s{sT4}, s{base}, {u*unit}")]
    if Cfg.rotn == 88:
        if u < 2: return [S(f"s_add_u32 s{sT4}, s{base}, {u*unit}")]
        return [S(f"s_add_u32 s{sT4}, s{sRho}, {u-2}"), S(f"s_and_b32 s{sT4}, s{sT4}, 7"), S(f"s_add_u32 s{sT4}, s{sT4}, 2"),
                S(f"s_mul_i32 s{sT4}, s{sT4}, {unit}"), S(f"s_add_u32 s{sT4}, s{sT4}, s{base}")]
    if Cfg.rotn == 19:
        if u < 1: return [S(f"s_add_u32 s{sT4}, s{base}, {u*unit}")]
        return [S(f"s_cmp_ge_u32 s{sRho}, {10-u}"), S(f"s_cselect_b32 s{sT4}, {u-9}, {u}"), S(f"s_add_u32 s{sT4}, s{sT4}, s{sRho}"),
                S(f"s_mul_i32 s{sT4}, s{sT4}, {unit}"), S(f"s_add_u32 s{sT4}, s{sT4}, s{base}")]
    return [S(f"s_cmp_ge_u32 s{sRho}, {10-u}"), S(f"s_cselect_b32 s{sT4}, {u-10}, {u}"), S(f"s_add_u32 s{sT4}, s{sT4}, s{sRho}"),
            S(f"s_mul_i32 s{sT4}, s{sT4}, {unit}"), S(f"s_add_u32 s{sT4}, s{sT4}, s{base}")]
def dma_w(w, s, nxt_round, tag):
    lds = wslot(s)
    goff = (s & 1) * 32 * 8192 + (512 if nxt_round else 0)
    G = []
    for hh in range(2):
        for seg in range(2):
            G.append([S(f"s_add_u32 m0, s{sLdsKV}, {lds + hh*4096 + seg*2048 - seg*128}"),
                      S(f"s_add_u32 s{sT0}, s{sT4}, {goff + hh*32768}"),
                      dma(w.vW, sW, f"s{sT0}", seg * 128, POL[0], tag=tag)])
    G[0] = rot_off(s >> 1, 64 * 8192, sWbase) + G[0]
    return G
def dma_x(w, u, tag):
    G = []
    for i in range(5):
        G.append([S(f"s_add_u32 m0, s{sLdsX}, {xbuf(u) + i*2048}"),
                  S(f"s_add_u32 s{sT0}, s{sT4}, {i*20480}"),
                  dma(w.vX, sX, f"s{sT0}", 0, POL[0], tag=tag)])
    G[0] = rot_off(u, 128, sXbase) + G[0]
    return G
def touch_kv(w, kind):
    srd_, ptr = (sK, sTK) if kind == 'K' else (sV, sTV)
    return [[bload(1, w.dummy, w.vTch, srd_, f"s{ptr}", 0, Cfg.touch_pol, tag=('misc',)), S(f"s_add_u32 s{ptr}, s{ptr}, 4096")]]

NAMES = {}
for _t in range(16):
    NAMES[kidx(_t)] = ('K', _t); NAMES[vidx(_t)] = ('V', _t)
def first_use(kind, i):
    if kind == 'W': return i
    if kind == 'X': return 2 * i
    if kind == 'K': return 20 if i == 0 else 19 + i
    if kind == 'V': return 21 + i
    if kind == 'O': return 3
    if kind == 'P': return 35

def loader_schedule(w):
    sch = {i: [] for i in range(37)}
    r0 = lambda G, lab: [[S(f"s_cmp_lg_u32 s{sRound}, 0"), branch("s_cbranch_scc1", lab)] + flat(G) + [label(lab)]]
    sch[0] += r0(dma_w(w, 2, False, ('W', 2, 'cond')), "L_r0a") + dma_x(w, 1, ('X', 1, False)) + r0(dma_w(w, 3, False, ('W', 3, 'cond')), "L_r0b")
    sch[1] += dma_w(w, 4, False, ('W', 4, False)) + dma_x(w, 2, ('X', 2, False))
    sch[2] += dma_w(w, 5, False, ('W', 5, False))
    if not Cfg.holes:
        for s in range(NW, 20): sch[max(s - NW + 1, 3)] += dma_w(w, s, False, ('W', s, False))
        for u in range(NX, 10): sch[2 * (u - NX) + 2] += dma_x(w, u, ('X', u, False))
    else:
        todo = sorted([(s, 'W', s, max(s - NW + 1, 3)) for s in range(NW, 20)] + [(2 * u - 0.5, 'X', u, 2 * (u - NX) + 2) for u in range(NX, 10)])
        load = {i: 0 for i in range(21)}; load[2] = 4
        cur = 2
        for need, kind, i, t0 in todo:
            n = 4 if kind == 'W' else 5
            t = max(t0, cur)
            while t in Cfg.holes or load[t] + n > Cfg.qcap: t += 1
            assert t <= need - 1.5, (kind, i, t)
            cur = t; load[t] += n
            sch[t] += dma_w(w, i, False, ('W', i, False)) if kind == 'W' else dma_x(w, i, ('X', i, False))
        print("Q load", load, file=sys.stderr)
    if not Cfg.no_dma:
        first = Cfg.first
        for n in range(10): sch[first[n]] += dma_kv(w, *NAMES[n], False, NAMES[n] + (False,))
        for n in range(10, 33):
            if n not in NAMES: continue
            k, t = NAMES[n - 10]
            last = (20 + t) if k == 'K' else min((21 if Cfg.w3sync else 22) + t, 36)
            rem = [m for m in range(10, 33) if m in NAMES]
            paced = 21 + int(rem.index(n) * Cfg.pace)
            when = max(last + 1, min(paced, first_use(*NAMES[n]) - Cfg.lead))
            sch[when] += dma_kv(w, *NAMES[n], False, NAMES[n] + (False,))
    for idx, ss in Cfg.wnext:
        for s_ in ss: sch[idx] += r0(dma_w(w, s_, True, ('W', s_, 'next')), f"L_r0w{s_}")
    w4first = lambda lab: [S(f"s_lshl_b32 s{sT1}, s{sRound}, 3"), S(f"s_add_u32 s{sT1}, s{sT1}, s{sWave}"), S(f"s_cmp_lg_u32 s{sT1}, 4"), branch("s_cbranch_scc1", lab)]
    sch[7] = [w4first("L_p0") + [S(f"s_mov_b32 s{sT1}, s{sFlag}") if Cfg.map84 else S(f"s_lshl_b32 s{sT1}, s{sB}, 3"), V(f"v_mov_b32 v{w.tmp+2}, s{sT1}"), bload(1, w.oPoll, w.tmp + 2, sDBG, 0, 0, 'sc1', tag=('cond',)), label("L_p0")]] + sch[7]
    sch[14] += [w4first("L_m0") + [V(f"v_readfirstlane_b32 s{sT1}, v{w.oPoll}"), S(f"s_bfe_u32 s{sT2}, s{sT1}, 0x80010"), S(f"s_lshr_b32 s{sT1}, s{sT1}, 24"),
                 S(f"s_bcnt1_i32_b32 s{sT1}, s{sT1}"), S(f"s_lshl_b32 s{sT1}, s{sT1}, 8"), S(f"s_or_b32 s{sT1}, s{sT1}, s{sT2}"), S(f"s_cmp_eq_u32 s{sT1}, 0x1ff"),
                 S(f"s_cselect_b32 s{sT1}, {(1 if Cfg.map84 else 3) if Cfg.fast else 0}, 0"), V(f"v_mov_b32 v{w.tmp+1}, s{sT1}"), V(f"v_mov_b32 v{w.tmp+2}, {MODE_LDS}"),
                 raw(f"ds_write_b32 v{w.tmp+2}, v{w.tmp+1}"), label("L_m0")]]
    for name, (idx, rnd) in Cfg.place2.items():
        t = w.tmp + 1
        if name in ('wo', 'wob', 'woc', 'wod'):
            body = lane_id(t) + [V(f"v_min_u32 v{t}, 39, v{t}"), V(f"v_lshlrev_b32 v{t}, 7, v{t}"), S(f"s_lshl_b32 s{sT1}, s2, 2"), S(f"s_add_u32 s{sT1}, s{sT1}, s{sWave}"),
                    S(f"s_sub_u32 s{sT1}, s{sT1}, 4"), S(f"s_mul_i32 s{sT1}, s{sT1}, 5120"), bload(1, 255, t, sWO, f"s{sT1}", tag=('cond',))]
        elif name == 'tlb':
            sh = Cfg.tlbsh
            body = lane_id(t) + [V(f"v_and_b32 v{t}, {(131072 >> sh) - 1}, v{t}"), V(f"v_lshlrev_b32 v{t}, {sh}, v{t}"),
                    S(f"s_and_b32 s{sT1}, s{sWave}, 1"), S(f"s_lshl_b32 s{sT1}, s{sT1}, 18"), S(f"s_add_u32 s{sT1}, s{sT1}, s{sKVbase}"),
                    bload(1, w.dummy, t, sK, f"s{sT1}", 0, 'nt', tag=('cond',)), bload(1, w.dummy, t, sV, f"s{sT1}", 0, 'nt', tag=('cond',))]
        elif name == 'wq2':
            body = lane_id(t) + [V(f"v_lshrrev_b32 v{t+1}, 2, v{t}"), V(f"v_min_u32 v{t+1}, 4, v{t+1}"), V(f"v_and_b32 v{t}, 3, v{t}"), V(f"v_lshlrev_b32 v{t}, 7, v{t}"),
                    V(f"v_lshl_add_u32 v{t}, v{t+1}, 13, v{t}"), S(f"s_lshl_b32 s{sT1}, s{sB}, 2"), S(f"s_add_u32 s{sT1}, s{sT1}, s{sWave}"), S(f"s_sub_u32 s{sT1}, s{sT1}, 4"),
                    S(f"s_mul_i32 s{sT1}, s{sT1}, {5*8192}"), S(f"s_lshl_b32 s{sT2}, s{sG}, 10"), S(f"s_add_u32 s{sT1}, s{sT1}, s{sT2}"),
                    bload(1, w.dummy, t, sW, f"s{sT1}", 512, tag=('cond',))]
        else:
            body = lane_id(t) + [V(f"v_lshlrev_b32 v{t}, 7, v{t}"), V(f"v_min_u32 v{t}, {SLAB-128}, v{t}"),
                    S(f"s_lshl_b32 s{sT1}, s2, 3"), S(f"s_add_u32 s{sT1}, s{sT1}, s{sWave}"), S(f"s_mul_i32 s{sT1}, s{sT1}, {SLAB}"), S(f"s_add_u32 s{sT1}, s{sT1}, {XCH_OFF}"),
                    bload(1, w.dummy, t, sWS, f"s{sT1}", 0, 'sc1', tag=('cond',)), S(f"s_sub_u32 s{sT1}, s{sT1}, {4*SLAB}"), bload(1, w.dummy, t, sWS, f"s{sT1}", 0, 'sc1', tag=('cond',))]
        sch[idx] += [[S(f"s_cmp_lg_u32 s{sRound}, {rnd}"), branch("s_cbranch_scc1", f"L_p2{name}")] + body + [label(f"L_p2{name}")]]
    mr = mode_read(w.T)
    sch[17] = [mr[0]] + sch[17]; sch[18] = [mr[1]] + sch[18]
    w4last = lambda lab: [S(f"s_lshl_b32 s{sT1}, s{sRound}, 3"), S(f"s_add_u32 s{sT1}, s{sT1}, s{sWave}"), S(f"s_cmp_lg_u32 s{sT1}, 12"), branch("s_cbranch_scc1", lab)]
    sch[29] = [w4last("L_p1") + [V(f"v_mov_b32 v{w.tmp+2}, s{sFlag}"), bload(1, w.oPoll, w.tmp + 2, sDBG, 0, 0, 'sc1', tag=('cond',)), label("L_p1")]] + sch[29]
    sch[34] += [w4last("L_g1_back") + gate("L_g1", w.oPoll, w.tmp + 2, 0) + [label("L_g1_back")]]
    for u in range(2):
        alt = flat(dma_x(w, 0, ('X', 0, 'next'))) if u == 0 else []
        sch[35 + u] += [[S(f"s_cmp_lg_u32 s{sRound}, 0"), branch("s_cbranch_scc1", f"L_opre{u}")] + alt + [label(f"L_opre{u}_back"), I("; opre", 'comment', tag=('phantom', 0 if Cfg.o_skip else 10))]]
    if not Cfg.no_dma:
        for i, idx in enumerate(sorted(Cfg.touch_at)): sch[idx] += touch_kv(w, 'KV'[i & 1])
        for idx, goff in Cfg.tbatch:
            sch[idx] += [[S(f"s_add_u32 s{sT0}, s{sTau}, {goff}"), S(f"s_and_b32 s{sT0}, s{sT0}, 0x1ffff"), S(f"s_add_u32 s{sT0}, s{sT0}, s{sKVbase}"), bload(1, w.dummy, w.vTch, sK, f"s{sT0}", 0, Cfg.touch_pol, tag=('misc',)),
                          bload(1, w.dummy, w.vTch, sV, f"s{sT0}", 0, Cfg.touch_pol, tag=('misc',))]]
    return sch

def lane_id(r): return [V(f"v_mbcnt_lo_u32_b32 v{r}, -1, 0"), V(f"v_mbcnt_hi_u32_b32 v{r}, -1, v{r}")]
def lane_setup(w):
    t = w.F + 8
    lane, i16, g, a, b, c = t, t + 1, t + 2, t + 3, t + 4, t + 5
    o = lane_id(lane) + [V(f"v_and_b32 v{i16}, 15, v{lane}"), V(f"v_lshrrev_b32 v{g}, 4, v{lane}")]
    o += [V(f"v_lshrrev_b32 v{a}, 1, v{i16}"), V(f"v_xor_b32 v{a}, v{a}, v{g}"), V(f"v_lshlrev_b32 v{a}, 4, v{a}"),
          V(f"v_lshl_add_u32 v{w.aN}, v{i16}, 7, v{a}"), V(f"v_xor_b32 v{w.aN+1}, 64, v{w.aN}")]
    o += [V(f"v_lshrrev_b32 v{a}, 2, v{lane}"), V(f"v_and_b32 v{b}, 6, v{a}"),
          V(f"v_bfe_u32 v{c}, v{lane}, 1, 1"), V(f"v_xor_b32 v{b}, v{b}, v{c}"), V(f"v_lshlrev_b32 v{b}, 4, v{b}"),
          V(f"v_lshl_add_u32 v{b}, v{a}, 7, v{b}"),
          V(f"v_and_b32 v{c}, 1, v{lane}"), V(f"v_lshl_add_u32 v{w.aT}, v{c}, 3, v{b}")]
    for dq in range(1, 4): o.append(V(f"v_xor_b32 v{w.aT+dq}, {dq<<5}, v{w.aT}"))
    return o
def voff_setup(w):
    t = w.F + 16
    r8, p, a, b, row = t, t + 1, t + 2, t + 3, t + 4
    o = [V(f"v_bfe_u32 v{row}, v0, 3, 4"),
         V(f"v_and_b32 v{p}, 7, v0"),
         V(f"v_lshrrev_b32 v{a}, 1, v{row}"), V(f"v_xor_b32 v{a}, v{a}, v{p}"), V(f"v_lshlrev_b32 v{a}, 4, v{a}"),
         V(f"v_and_b32 v{b}, 6, v{row}"), V(f"v_xor_b32 v{b}, v{b}, v{p}"), V(f"v_lshlrev_b32 v{b}, 4, v{b}"),
         V(f"v_and_b32 v{p}, 12, v{row}"), V(f"v_add_u32 v{p}, v{p}, v{row}"), V(f"v_lshl_add_u32 v{w.vW}, v{p}, 13, v{b}"),
         V(f"v_mul_u32_u24 v{p}, 1280, v{row}"), V(f"v_add_u32 v{w.vX}, v{p}, v{a}")]
    o2 = [V(f"v_lshl_add_u32 v{w.vK}, v{row}, 8, v{a}"), V(f"v_lshl_add_u32 v{w.vV}, v{row}, 8, v{b}"),
          V(f"v_and_b32 v{p}, 63, v0"), V(f"v_lshlrev_b32 v{p}, 6, v{p}"), V(f"v_bfe_u32 v{r8}, v0, 6, 1"), V(f"v_lshl_add_u32 v{w.vTch}, v{r8}, 12, v{p}")]
    return o, o2

def add_addr(regs_, delta):
    if delta == 0: return []
    if isinstance(delta, str): return [V(f"v_add_u32 v{r}, {delta}, v{r}") for r in regs_]
    return [V(f"v_add_u32 v{r}, {delta & 0xffffffff:#x}, v{r}") for r in regs_]

def to_w(w, cur):
    t = w.T
    if not Cfg.wperm: return add_addr([w.aT + i for i in range(4)], wslot(0) - cur)
    return add_addr([w.aT + 2, w.aT + 3], item_slot(vidx(0)) - cur) + add_addr([w.aT], wslot(0) - cur) + [
        V(f"v_bfe_u32 v{t}, v{w.aT}, 3, 2"), V(f"v_and_b32 v{w.aT}, 0xffffffe7, v{w.aT}"), V(f"v_lshlrev_b32 v{t}, 4, v{t}"),
        V(f"v_xor_b32 v{w.aT}, v{w.aT}, v{t}"), V(f"v_xor_b32 v{w.aT+1}, 64, v{w.aT}")]
def to_v(w, cur):
    if not Cfg.wperm: return add_addr([w.aT + i for i in range(4)], item_slot(vidx(0)) - cur)
    return [V(f"v_xor_b32 v{w.aT}, 64, v{w.aT+2}"), V(f"v_xor_b32 v{w.aT+1}, 64, v{w.aT+3}")]

def finish(code, pending=None, pre=()):
    c, q = add_lgkm_waits(code, pending)
    return fix_hazards(c, pre), q

def loop_finish(B, q, before):
    B1, q1 = finish(B, q, pre=before[-12:])
    B2, q2 = finish(B, q1, pre=B1[-12:])
    B3, q3 = finish(B, q2, pre=B2[-12:])
    assert emit(B2) == emit(B3) and q2 == q3
    assert len(q) <= len(q2) and q == q2[len(q2) - len(q):], "entry LDS queue must be a suffix of the steady-state queue"
    B4 = fix_hazards(B2, before[-12:])
    assert emit(fix_hazards(B4, B4[-12:])) == emit(B4)
    return B4, q2

def srd(base, ptr, nbytes):
    return [S(f"s_mov_b32 s{base}, s{ptr}"), S(f"s_mov_b32 s{base+1}, s{ptr+1}"), S(f"s_mov_b32 s{base+2}, {nbytes}"), S(f"s_mov_b32 s{base+3}, 0x20000")]

def round_advance():
    return [S(f"s_add_u32 s{sKVbase}, s{sKVbase}, 262144"), S(f"s_add_u32 s{sWbase}, s{sWbase}, 512"),
            S(f"s_add_u32 s{sOst}, s{sOst}, {8*10240}"), S(f"s_add_u32 s{sRound}, s{sRound}, 1"), S(f"s_cmp_lt_u32 s{sRound}, 2")]

def flag_add(t, val, lab):
    return [V(f"v_mov_b32 v{t}, {val}"), V(f"v_mov_b32 v{t+1}, s{sFlag}"), S("s_mov_b64 exec, 1"),
            I(f"buffer_atomic_or v{t}, v{t+1}, s[{sDBG}:{sDBG+3}], 0 offen sc1", 'vstore', rd=regs(t, 2) | regs(sDBG, 4, 's'), tag=('cond',)),
            S("s_mov_b64 exec, -1"), label(lab)]

def common_scalars():
    C = srd(sK, 58, 134217728) + srd(sV, 60, 134217728) + srd(sWO, 64, 5242880) + srd(sOUT, 66, 6553600) + srd(sDBG, 68, 256) \
        + srd(sWS, 70, (160 << 20) if Cfg.stamps else WS_BYTES)
    C += [S(f"s_lshr_b32 s{sT2}, s{sWbase}, 8"),
          S(f"s_lshl_b32 s{sT3}, s{sB}, 5"), S(f"s_add_u32 s{sT3}, s{sT3}, s{sT2}"), S(f"s_lshl_b32 s{sKVbase}, s{sT3}, 17"),
          S(f"s_mul_i32 s{sOst}, s{sT3}, 40960"),] + ([S(f"s_and_b32 s{sKVbase}, s{sKVbase}, 0x20000")] if Cfg.kv_same else []) + [
          S(f"s_lshl_b32 s{sFlag}, s{sB}, 1"), S(f"s_lshr_b32 s{sT2}, s{sG}, 2"), S(f"s_add_u32 s{sFlag}, s{sFlag}, s{sT2}"), S(f"s_lshl_b32 s{sFlag}, s{sFlag}, 2"),
          S(f"s_mul_i32 s{sTau}, s{sT3}, {Cfg.taumul}"), S(f"s_lshr_b32 s{sT2}, s{sT3}, {Cfg.taush}"), S(f"s_add_u32 s{sTau}, s{sTau}, s{sT2}"),
          S(f"s_and_b32 s{sTau}, s{sTau}, {Cfg.taumask}"), S(f"s_lshl_b32 s{sTau}, s{sTau}, 13"),
          S(f"s_mov_b32 s{sRound}, 0"), S(f"s_mov_b32 s{sMode}, 0"), S(f"s_mov_b32 s{sQS}, {f2u(QSCALE)}"), S(f"s_mov_b32 s{sC16}, {WTAB:#x}"), S(f"s_mov_b32 s{sC32}, {2*SLOT}"),
          S(f"s_mov_b32 s{sCX}, 20480"), S(f"s_mov_b32 s{sTK}, s{sKVbase}"), S(f"s_mov_b32 s{sTV}, s{sKVbase}")]
    if Cfg.stamps:
        C += [S(f"s_lshl_b32 s{sStamp+2}, s2, 3"), S(f"s_add_u32 s{sStamp+2}, s{sStamp+2}, s{sWave}"), S(f"s_lshl_b32 s{sStamp+2}, s{sStamp+2}, 10"),
              S(f"s_add_u32 s{sStamp+2}, s{sStamp+2}, {DBG_OFF}")]
    return C
def wave_addr0(w, j0mul, j0add):
    aN = [w.aN, w.aN + 1]; aT = [w.aT + i for i in range(4)]
    C = [S(f"s_bfe_u32 s{sT0}, s{sWave}, 0x10001"), S(f"s_lshl_b32 s{sT0}, s{sT0}, 13"),
         S(f"s_and_b32 s{sT1}, s{sWave}, 1"), S(f"s_mul_i32 s{sT1}, s{sT1}, {j0mul*1024}"), S(f"s_add_u32 s{sT1}, s{sT1}, {j0add*1024}"),
         S(f"s_add_u32 s{sOst}, s{sOst}, s{sT1}"), S(f"s_lshl_b32 s{sT1}, s{sT1}, 1"),
         S(f"s_sub_u32 s{sKX}, s{sT0}, s{sT1}"),
         S(f"s_add_u32 s{sT1}, s{sT1}, {xbuf(0)}")]
    return C + add_addr(aT, f"s{sT0}") + add_addr(aN, f"s{sT1}") + to_w(w, 0)

def gen_w3():
    w = Wave(3); nm = 24
    st = lambda k, real=False: stamp(w.tmp + 1, k, real)
    aN = [w.aN, w.aN + 1]; aT = [w.aT + i for i in range(4)]
    C = [label("L_w3"), raw("s_waitcnt lgkmcnt(0)")]
    if Cfg.codetouch:
        t = w.tmp + 1
        C += [raw(f"s_getpc_b64 s[{sRet}:{sRet+1}]"), label("L_pc0"),
              S(f"s_sub_u32 s{sRet}, s{sRet}, L_pc0-KSTART"), S(f"s_subb_u32 s{sRet+1}, s{sRet+1}, 0"),
              S(f"s_lshr_b32 s{sT0}, s2, 3"), S(f"s_lshl_b32 s{sT0}, s{sT0}, 2"), S(f"s_add_u32 s{sT0}, s{sT0}, s{sWave}"), S(f"s_lshl_b32 s{sT0}, s{sT0}, 7"),
              V(f"v_and_b32 v{t}, 7, v0"), V(f"v_lshlrev_b32 v{t}, 14, v{t}"), V(f"v_add_u32 v{t}, s{sT0}, v{t}"),
              V(f"v_min_u32 v{t}, KEND-KSTART-4, v{t}"),
              I(f"global_load_dword v{w.dummy}, v{t}, s[{sRet}:{sRet+1}]", 'vload', wr=regs(w.dummy), rd=regs(t) | regs(sRet, 2, 's'))]
    if Cfg.warm0:
        t = w.tmp + 1
        C += srd(sW, 62, 5242880) + srd(sX, 56, 6553600)
        C += [V(f"v_and_b32 v{t}, 63, v0"), V(f"v_lshlrev_b32 v{t}, 7, v{t}"),
              S(f"s_mul_i32 s{sT0}, s{sB}, 204800"), S(f"s_mul_i32 s{sT1}, s{sG}, 25600"), S(f"s_add_u32 s{sT0}, s{sT0}, s{sT1}"),
              S(f"s_mul_i32 s{sT1}, s{sWave}, 5760"), S(f"s_add_u32 s{sT0}, s{sT0}, s{sT1}"),
              V(f"v_bfe_u32 v{t+1}, v0, 3, 3"), V(f"v_min_u32 v{t+1}, 4, v{t+1}"), V(f"v_lshlrev_b32 v{t+1}, 13, v{t+1}"),
              V(f"v_and_b32 v{w.T}, 7, v0"), V(f"v_lshl_add_u32 v{t+1}, v{w.T}, 7, v{t+1}"),
              S(f"s_lshl_b32 s{sT1}, s{sB}, 2"), S(f"s_add_u32 s{sT1}, s{sT1}, s{sWave}"), S(f"s_mul_i32 s{sT1}, s{sT1}, {5*8192}"),
              S(f"s_lshl_b32 s{sT2}, s{sG}, 10"), S(f"s_add_u32 s{sT1}, s{sT1}, s{sT2}"),
              barrier()] + ([bload(1, w.dummy, t + 1, sW, f"s{sT1}")] if Cfg.warm0 == 1 else []) + [bload(1, w.dummy, t, sX, f"s{sT0}")]
    C += common_scalars()
    t = w.tmp + 1
    C += [S(f"s_cmp_lg_u32 s{sWave}, 0"), branch("s_cbranch_scc1", "L_noxcc"), raw(f"s_getreg_b32 s{sT0}, hwreg(HW_REG_XCC_ID, 0, 3)"),
          S(f"s_lshl_b32 s{sT0}, 0x1000000, s{sT0}"), S(f"s_lshl_b32 s{sT1}, {0x110000 if Cfg.map84 else 0x10000}, s{sG}"), S(f"s_lshr_b32 s{sT2}, s{sT1}, {4 if Cfg.map84 else 0}"), S(f"s_or_b32 s{sT1}, s{sT1}, s{sT2}"), S(f"s_and_b32 s{sT1}, s{sT1}, 0xff0000"),
          S(f"s_or_b32 s{sT0}, s{sT0}, s{sT1}"), S(f"s_mov_b32 s{sT1}, s{sFlag}") if Cfg.map84 else S(f"s_lshl_b32 s{sT1}, s{sB}, 3"),
          V(f"v_mov_b32 v{t}, s{sT0}"), V(f"v_mov_b32 v{t+1}, s{sT1}"), S("s_mov_b64 exec, 1"),
          I(f"buffer_atomic_or v{t}, v{t+1}, s[{sDBG}:{sDBG+3}], 0 offen sc1", 'vstore', rd=regs(t, 2) | regs(sDBG, 4, 's')),
          S("s_mov_b64 exec, 0xff"), V(f"v_mul_u32_u24 v{t}, {SLAB}, v0"), V(f"v_mov_b32 v{t+1}, 0"), S(f"s_mul_i32 s{sT0}, s2, {XCH_WG}"), S(f"s_add_u32 s{sT0}, s{sT0}, {XCH_OFF + SLAB - 128}"),
          bstore(1, t + 1, t, sWS, f"s{sT0}", 0, 'sc1'),
          S("s_mov_b64 exec, -1"), label("L_noxcc")]
    C += lane_setup(w) + wave_addr0(w, 3, 0)
    def x_wo():
        t = w.tmp + 1
        return lane_id(t) + [V(f"v_min_u32 v{t}, 39, v{t}"), V(f"v_lshlrev_b32 v{t}, 7, v{t}"),
              S(f"s_lshl_b32 s{sT0}, s2, 2"), S(f"s_add_u32 s{sT0}, s{sT0}, s{sWave}"), S(f"s_mul_i32 s{sT0}, s{sT0}, 5120"), bload(1, w.dummy, t, sWO, f"s{sT0}")]
    def x_code():
        t = w.tmp + 1
        return [raw(f"s_getpc_b64 s[{sRet}:{sRet+1}]"), label("L_pc1"),
              S(f"s_add_u32 s{sRet}, s{sRet}, L_o-L_pc1"), S(f"s_addc_u32 s{sRet+1}, s{sRet+1}, 0")] + lane_id(t) + [
              S(f"s_lshl_b32 s{sT0}, s{sWave}, 13"), V(f"v_lshlrev_b32 v{t}, 7, v{t}"), V(f"v_add_u32 v{t}, s{sT0}, v{t}"), V(f"v_min_u32 v{t}, KEND-L_o-4, v{t}"),
              I(f"global_load_dword v{w.dummy}, v{t}, s[{sRet}:{sRet+1}]", 'vload', wr=regs(w.dummy), rd=regs(t) | regs(sRet, 2, 's'))]
    def x_slab():
        t = w.tmp + 1
        return lane_id(t) + [V(f"v_lshlrev_b32 v{t}, 7, v{t}"), V(f"v_min_u32 v{t}, {SLAB-128}, v{t}"),
              S(f"s_lshl_b32 s{sT0}, s2, 3"), S(f"s_add_u32 s{sT0}, s{sT0}, s{sWave}"), S(f"s_mul_i32 s{sT0}, s{sT0}, {SLAB}"), S(f"s_add_u32 s{sT0}, s{sT0}, {XCH_OFF}"),
              bload(1, w.dummy, t, sWS, f"s{sT0}", 0, 'sc1'), S(f"s_add_u32 s{sT0}, s{sT0}, {4*SLAB}"), bload(1, w.dummy, t, sWS, f"s{sT0}", 0, 'sc1')]
    def x_jit():
        return [S(f"s_mul_i32 s{sT0}, s2, 11"), S(f"s_and_b32 s{sT0}, s{sT0}, 31"), label("L_jit"), raw(f"s_sleep {Cfg.jit}"), S(f"s_sub_u32 s{sT0}, s{sT0}, 1"), branch("s_cbranch_scc0", "L_jit")]
    def x_wo2():
        r = [i if i.kind != 'vload' else bload(1, w.dummy, w.tmp + 1, sWO, f"s{sT0}", 0, Cfg.wo2pol) for i in x_wo()]
        r[2] = V(f"v_min_u32 v{w.tmp+1}, {Cfg.wo2n}, v{w.tmp+1}")
        return r
    def extras(where):
        out_ = []
        for name, fn in (('wo', x_wo), ('code', x_code), ('slab', x_slab), ('jit', x_jit), ('wo2', x_wo2)):
            pl = Cfg.place.get(name)
            if pl and pl[0] == where:
                out_ += [S(f"s_cmp_lg_u32 s{sRound}, {pl[1]}"), branch("s_cbranch_scc1", f"L_ex_{name}")] + fn() + [label(f"L_ex_{name}")]
        return out_
    C, _ = finish(C)
    out = C
    def wadv():
        return [S(f"s_bfe_i32 s{sD}, s{sC16}, s{sCnt}"), S(f"s_lshl_b32 s{sD}, s{sD}, 14"), S(f"s_add_u32 s{sCnt}, s{sCnt}, 4"),
                S(f"s_cmp_eq_u32 s{sCnt}, {0x40000 + 4*NW:#x}"), S(f"s_cselect_b32 s{sCnt}, 0x40000, s{sCnt}")] + add_addr(aT[:(2 if Cfg.wperm else 4)], f"s{sD}")
    def xadv():
        return [S(f"s_add_u32 s{sCnt2}, s{sCnt2}, 1"), S(f"s_cmp_eq_u32 s{sCnt2}, {NX}"), S(f"s_cselect_b32 s{sXd}, {(-(NX-1)*20480) & 0xffffffff:#x}, s{sCX}"),
                S(f"s_cselect_b32 s{sCnt2}, 0, s{sCnt2}")] + add_addr(aN, f"s{sXd}")
    def qstage(s, zero=False, extra=()):
        p = s & 1
        adv_ = wadv() + (xadv() if p == 1 else []) + list(extra)
        L = [barrier()] + spread(q_mfmas(w, 1 - p, zero), [(q_reads(w, p, p), 0, Cfg.qr3), (one(adv_), Cfg.qr3 + 1, 23)]) + [wait(lgkm=0)]
        k = [i for i, c in enumerate(L) if c.kind == 'mfma'][Cfg.qcut]
        return L[:k], L[k:]
    C = [label("L_w3_round")] + st(0) + [barrier()] + st(1)
    C += flat(q_reads(w, 0, 0))
    C += add_addr(aT[:(2 if Cfg.wperm else 4)], wslot(1) - wslot(0))
    C += [S(f"s_mov_b32 s{sCnt}, 0x40004"), S(f"s_mov_b32 s{sCnt2}, {(xbuf(0)-NW*SLOT)//20480}"), S(f"s_mov_b32 s{sLoop}, 8")]
    C += [wait(lgkm=0)]
    h1, t1 = qstage(1, zero=True); he, te = qstage(2); ho, to = qstage(3)
    C += h1 + t1 + [wait(vm=0)] + extras('Q2') + he
    C, q = finish(C); out += C
    B = [label("L_w3_q")] + te + ho + to + he
    B += [S(f"s_sub_u32 s{sLoop}, s{sLoop}, 1"), S(f"s_cmp_lg_u32 s{sLoop}, 0"), branch("s_cbranch_scc1", "L_w3_q")]
    Bc, q2 = loop_finish(B, q, out)
    out += Bc
    curT = wslot(20); curN = xbuf(10)
    h19, t19 = qstage(19, extra=add_addr(aN, f"s{sKX}") + add_addr(aN, item_slot(kidx(0)) - curN) + to_v(w, curT))
    mr = mode_read(w.T)
    C = mr[0] + te + mr[1] + extras('Q18') + h19 + t19
    C += st(40) + [barrier()] + st(41)
    k0 = frags_QK(w, 'zero')
    k1 = frags_QK(w, 'negm', pre=add_addr(aN, item_slot(kidx(1)) - item_slot(kidx(0))))
    w.fpos = 0
    C += stream(w, k0, 0, k1, lead=q_mfmas(w, 1, False), fillers=q_pack_fillers(w))
    C += first_max(w)
    C += st(42) + [barrier()] + st(43)
    C += flat(softmax_groups(w, 0)) + l_accum(w, first=True)
    v0 = frags_PV(w, 0, zero=True)
    C += extras('A0')
    C += [S(f"s_mov_b32 s{sKpos}, {item_slot(kidx(1))}"), S(f"s_mov_b32 s{sVpos}, {item_slot(vidx(0))}"), S(f"s_mov_b32 s{sLoop}, {6 if Cfg.prenorm else 7}")]
    def adv(pos, rr):
        return [S(f"s_cmp_ge_u32 s{pos}, {LDS_BYTES - 2*SLOT}"), S(f"s_cselect_b32 s{sD}, {(2*SLOT - LDS_BYTES) & 0xffffffff:#x}, s{sC32}"),
                S(f"s_add_u32 s{pos}, s{pos}, s{sD}")] + add_addr(rr, f"s{sD}")
    def pv(par): return frags_PV(w, par, pre=adv(sVpos, aT))
    def qk(): return frags_QK(w, 'negm', pre=adv(sKpos, aN))
    E_ = 8 - Cfg.late
    def sm_part(late, par, extra=()):
        G = softmax_groups(w, par) + [check_cmp(w)]
        nl = 3 * len(late)
        cut = int(len(G) * Cfg.smpure) if Cfg.late < 8 else 0
        return flat(G[:cut]) + stream(w, late, Cfg.LA, qk(), fillers=[(G[cut:], 0, max(nl - Cfg.smend, 1))] + list(extra)) + check_branch(w, par)
    C += stream(w, k1 + v0[:E_], Cfg.LA, v0[E_:] + qk())
    if not Cfg.w3sync: C += st(44) + [barrier()] + st(45)
    C += sm_part(v0[E_:], 1)
    C, q = finish(C, q2, pre=out[-12:]); out += C
    B = [label("L_w3_a")]
    for par in (1, 0):
        if Cfg.w3sync: B += [barrier()]
        B += stream(w, qk() + pv(par)[:E_], Cfg.LA, pv(par)[E_:] + qk(), fillers=[(one(l_accum(w)), 4, 10)])
        if not Cfg.w3sync: B += [barrier()]
        B += sm_part(pv(par)[E_:], 1 - par)
    B += [S(f"s_sub_u32 s{sLoop}, s{sLoop}, 1"), S(f"s_cmp_lg_u32 s{sLoop}, 0"), branch("s_cbranch_scc1", "L_w3_a")]
    Bc, q2 = loop_finish(B, q, out)
    out += Bc
    C = []
    if Cfg.prenorm:
        assert Cfg.w3sync
        for par in (1, 0):
            C += [barrier()] + stream(w, qk() + pv(par)[:E_], Cfg.LA, pv(par)[E_:] + qk(), fillers=[(one(l_accum(w)), 4, 10)])
            C += sm_part(pv(par)[E_:], 0 if par else 'f')
    C += st(74) + (prenorm(w) if Cfg.prenorm else l_accum(w)) + mode_vcc() + extras('A15') + ([barrier()] if Cfg.w3sync else [])
    C += stream(w, pv(1), 0, [], fillers=epi_fillers(w))
    C += st(75) + st(77, True)
    curT = item_slot(vidx(15)); curN = item_slot(kidx(16))
    C += to_w(w, curT) + add_addr(aN, xbuf(0) - curN) + [V(f"v_subrev_u32 v{r}, s{sKX}, v{r}") for r in aN]
    C += round_advance()
    C += [branch("s_cbranch_scc1", "L_w3_round"), branch("s_branch", "L_o")]
    C, q = finish(C, q2, pre=out[-12:]); out += C
    assert not q
    return out, rare_routine(w, 0) + rare_routine(w, 1) + (rare_routine(w, 'f') if Cfg.prenorm else [])

def gen_w2():
    w = Wave(2); nm = 16
    st = lambda k, real=False: stamp(w.tmp + 1, k, real)
    aN = [w.aN, w.aN + 1]; aT = [w.aT + i for i in range(4)]
    POL[0] = Cfg.wx_pol
    sch = loader_schedule(w)
    items = lambda idx: sch[idx]
    vo1, vo2 = voff_setup(w)
    en = lambda r: [raw(f"s_memtime s[{r}:{r+1}]")] if Cfg.ent else []
    pro = vo1 + [raw("s_waitcnt lgkmcnt(0)")] + en(94) + srd(sW, 62, 5242880) + srd(sX, 56, 6553600)
    POL[0] = Cfg.pro_pol
    pro += flat(dma_w(w, 0, False, ('W', 0, True))) + flat(dma_x(w, 0, ('X', 0, True))) + flat(dma_w(w, 1, False, ('W', 1, True))) + ([barrier()] if Cfg.warm0 else [])
    pro += en(96)
    pro += vo2 + [V(f"v_mov_b32 v{w.oVoff}, 0"), V(f"v_mov_b32 v{w.oPoll}, 0")] + common_scalars() + lane_setup(w) + wave_addr0(w, 2, 6)
    if Cfg.ent:
        pro += en(98) + [raw("s_waitcnt lgkmcnt(0)"), V(f"v_mov_b32 v{w.tmp+2}, 0")]
        for i, r in enumerate((92, 94, 96, 98, 100)): pro += [V(f"v_mov_b32 v{w.tmp+1}, s{r}"), bstore(1, w.tmp + 1, w.tmp + 2, sWS, f"s{sStamp+2}", 4 * (120 + i), tag=('misc',))]
    C = [label("L_w2_round")] + st(76, True)
    def bar(idx, lgkm=None):
        b = wait(vm=63, lgkm=lgkm); b.tag = (('need', idx), lgkm)
        return st(2 * idx) + [b, barrier()] + st(2 * idx + 1)
    prio = lambda p: [raw(f"s_setprio {p}")] if Cfg.prio == 2 else []
    curT = wslot(0); curN = xbuf(0)
    C += prio(Cfg.qprio)
    if Cfg.q0soft: C += [S(f"s_cmp_lg_u32 s{sRound}, 0"), branch("s_cbranch_scc1", "L_q0p"), raw("s_setprio 0"), label("L_q0p")]
    for s in range(20):
        if Cfg.q0soft and s == Cfg.q0soft: C += prio(Cfg.qprio)
        if Cfg.q0sleep and s < Cfg.q0n: C += [S(f"s_cmp_lg_u32 s{sRound}, 0"), branch("s_cbranch_scc1", f"L_q0s{s}"), raw(f"s_sleep {Cfg.q0sleep}"), label(f"L_q0s{s}")]
        if s < 19:
            newT = wslot(s + 1); newN = xbuf((s + 1) >> 1)
            adv_ = add_addr(aT[:(2 if Cfg.wperm else 4)], newT - curT) + add_addr(aN, newN - curN); curT, curN = newT, newN
        else:
            adv_ = add_addr(aN, f"s{sKX}") + add_addr(aN, item_slot(kidx(0)) - curN) + to_v(w, curT)
        C += bar(s, lgkm=0)
        ex = []
        if s == 3:
            ex = [([[S(f"s_lshl_b32 s{sT1}, s{sRound}, 3"), S(f"s_add_u32 s{sT1}, s{sT1}, s{sWave}"), S(f"s_cmp_lg_u32 s{sT1}, 12"),
                     branch("s_cbranch_scc1", "L_nofl1"), S(f"s_and_b32 s{sT1}, s{sG}, 3"), S(f"s_lshl_b32 s{sT1}, 1, s{sT1}")] + flag_add(w.tmp + 1, f"s{sT1}", "L_nofl1")], 11, 12)]
        if s == 0: C += flat(q_reads(w, 0, 0)) + flat(items(0)) + adv_
        else: C += spread(q_mfmas(w, (s - 1) & 1, s == 1), [(q_reads(w, s & 1, s & 1), 0, Cfg.qr2), (items(s), Cfg.qd0, nm - 2), (one(adv_), Cfg.qr2 + 1, 16)] + ex)
    C += bar(20, lgkm=0)
    def qk(t, fc='negm'): return frags_QK(w, fc, pre=add_addr(aN, item_slot(kidx(t)) - item_slot(kidx(t - 1))) if t else [])
    def pv(t): return frags_PV(w, t & 1, zero=(t == 0), pre=add_addr(aT, item_slot(vidx(t)) - item_slot(vidx(t - 1))) if t else [])
    w.fpos = 0
    C += stream(w, qk(0, 'zero'), 0, qk(1), lead=q_mfmas(w, 1, False), fillers=[(items(20), 0, 2 * nm)] + q_pack_fillers(w))
    C += first_max(w)
    C += flat(softmax_groups(w, 0))
    for t in range(15):
        nx = qk(t + 2) if t < 14 else []
        if Cfg.pp:
            C += prio(Cfg.pp_a)
            C += bar(21 + t)
            C += stream(w, qk(t + 1) + pv(t), Cfg.LA, nx, fillers=[(one(l_accum(w, first=(t == 0))), 3, 8)])
            C += prio(Cfg.pp_b)
            G = softmax_groups(w, (t + 1) & 1) + [check_cmp(w)]
            sm = [g for g in G]
            it_ = items(21 + t)
            base = [I("; g", 'comment') for _ in sm]
            merged = spread(base, [(it_, 0, len(sm))])
            k = 0
            for c in merged:
                if c.kind == 'comment' and c.text == "; g": C += sm[k]; k += 1
                else: C.append(c)
            C += check_branch(w, (t + 1) & 1)
        else:
            C += prio(Cfg.pa)
            if 21 + t in Cfg.drain: C += [wait(vm=Cfg.drain[21 + t])]
            C += bar(21 + t)
            sp = 'f' if (Cfg.prenorm and t == 14) else (t + 1) & 1
            it_ = items(21 + t); h = (len(it_) * Cfg.dsplit + 99) // 100
            C += stream(w, qk(t + 1), Cfg.LA, pv(t), fillers=[(it_[:h], 0, nm), (one(l_accum(w, first=(t == 0))), 3, 8)])
            C += prio(Cfg.pb)
            C += stream(w, pv(t), Cfg.LA, nx, fillers=[(it_[h:], 1, nm + 1)] + sm_fillers(w, sp, 2))
            C += check_branch(w, sp)
    if Cfg.prenorm: C += prenorm(w)
    C += prio(0)
    C += bar(36)
    C += flat(items(36))
    C += st(74) + ([] if Cfg.prenorm else l_accum(w)) + mode_vcc()
    C += stream(w, pv(15), 0, [], fillers=epi_fillers(w))
    C += st(75) + st(77, True)
    curT = item_slot(vidx(15)); curN = item_slot(kidx(15))
    C += to_w(w, curT) + add_addr(aN, xbuf(0) - curN) + [V(f"v_subrev_u32 v{r}, s{sKX}, v{r}") for r in aN]
    C += round_advance()
    C += [branch("s_cbranch_scc1", "L_w2_round"), branch("s_branch", "L_o")]
    VM = ('dma', 'vload', 'vstore')
    def resolve(prefix, first):
        res = {}
        q = [(c.tag[0], c.tag[1]) if len(c.tag) == 3 and c.tag[2] in (True, 'next') else None for c in prefix if c.kind in VM and c.tag != ('cond',)]
        for c in C:
            if c.kind in VM:
                if c.tag == ('cond',): continue
                if c.tag[-1] in ('cond', 'next') and not first: continue
                q.append((c.tag[0], c.tag[1]) if len(c.tag) == 3 and c.tag[2] in (False, 'cond') else None)
            elif c.kind == 'comment' and c.tag and c.tag[0] == 'phantom':
                if not first: q += [None] * c.tag[1]
            elif c.kind == 'wait' and isinstance(c.tag[0], tuple):
                idx = c.tag[0][1]
                last = -1
                for k, it in enumerate(q):
                    if it is not None and first_use(it[0], it[1]) <= idx: last = k
                res[idx] = min(63, len(q) - 1 - last)
        return res
    r1 = resolve(pro, True); r2 = resolve(C, False)
    C2 = []
    for c in C:
        if c.kind == 'wait' and isinstance(c.tag[0], tuple):
            idx = c.tag[0][1]; n = min(r1[idx], r2[idx]); lg = c.tag[1]
            if abs(r1[idx] - r2[idx]) > 1:
                C2 += [S(f"s_cmp_eq_u32 s{sRound}, {0 if r1[idx] > r2[idx] else 1}"), branch("s_cbranch_scc1", f"L_rw{idx}"), wait(vm=n), label(f"L_rw{idx}")]
                n = max(r1[idx], r2[idx])
            c.text = f"s_waitcnt vmcnt({n})" + (f" lgkmcnt({lg})" if lg is not None else ""); c.tag = (n, lg)
        C2.append(c)
    C = C2
    pro, _ = finish(pro)
    C, q = finish(C, [], pre=pro[-12:])
    assert not q
    return pro + C + gen_opre(w), rare_routine(w, 0) + rare_routine(w, 1) + (rare_routine(w, 'f') if Cfg.prenorm else [])

OSLOT = 40960
def oslot(u): return ((u + 2) & 3) * OSLOT
def o_voff(nh, VOFF, lane, a, b):
    if nh == 1 and Cfg.fake_wot:
        return [V(f"v_lshrrev_b32 v{a}, 2, v{lane}"), V(f"v_mul_u32_u24 v{a}, 320, v{a}"), V(f"v_and_b32 v{VOFF}, 3, v{lane}"), V(f"v_lshl_add_u32 v{VOFF}, v{VOFF}, 4, v{a}")]
    if nh == 0: return [V(f"v_lshlrev_b32 v{VOFF}, 4, v{lane}")]
    return [V(f"v_lshrrev_b32 v{a}, 2, v{lane}"), V(f"v_mul_u32_u24 v{a}, 1280, v{a}"), V(f"v_bfe_u32 v{b}, v{lane}, 4, 1"), V(f"v_lshlrev_b32 v{b}, 1, v{b}"),
            V(f"v_and_b32 v{VOFF}, 3, v{lane}"), V(f"v_xor_b32 v{VOFF}, v{VOFF}, v{b}"), V(f"v_lshl_add_u32 v{VOFF}, v{VOFF}, 4, v{a}")]
def o_base(nh, sBase, sLd):
    C = [S(f"s_and_b32 s{sLd}, s{sWave}, 1"), S(f"s_mul_i32 s{sLd}, s{sLd}, 5120")]
    if nh == 0: C += [S(f"s_mul_i32 s{sBase}, s{sB}, {128*10240}"), S(f"s_add_u32 s{sBase}, s{sBase}, s{sLd}")]
    else: C += [S(f"s_lshl_b32 s{sBase}, s{sLd}, 2"), S(f"s_and_b32 s{sT2}, s{sG}, 3"), S(f"s_mul_i32 s{sT2}, s{sT2}, {5120 if Cfg.fake_wot else 320}"), S(f"s_add_u32 s{sBase}, s{sBase}, s{sT2}"),
                S(f"s_add_u32 s{sLd}, s{sLd}, 10240")]
    step = 10240 if nh == 0 else 40960
    C += [S(f"s_add_u32 s{sT3}, s{sG}, s{sB}")] if Cfg.orot else [S(f"s_mov_b32 s{sT3}, 0")]
    for u in range(4):
        C += [S(f"s_add_u32 s{sT2}, s{sT3}, {u}"), S(f"s_and_b32 s{sT2}, s{sT2}, 3"), S(f"s_mul_i32 s{sOoff+u}, s{sT2}, {step}")]
    return C
def o_dma(nh, u, VOFF, sSo, sLd, goff=0, loff=0, srd_=None):
    step = 10240 if nh == 0 else 40960
    G = []
    if Cfg.o_skip & (1 << nh): return G
    for i in range(5):
        if nh == 0:
            imm = (i & 3) * 1024; ex = (i >> 2) * 4096
            g = [S(f"s_add_u32 m0, s{sLd}, {oslot(u) + ex + loff}"), S(f"s_add_u32 s{sT0}, s{sSo}, s{sOoff+u}")] + ([S(f"s_add_u32 s{sT0}, s{sT0}, {ex + goff}")] if ex + goff else []) if imm == 0 else []
            G.append(g + [dma(VOFF, srd_ or sWS, f"s{sT0}", imm, Cfg.old_pol)])
        else:
            g = [S(f"s_add_u32 m0, s{sLd}, {oslot(u) + i*1024 - i*64 + loff}")]
            if i == 0: g += [S(f"s_add_u32 s{sT0}, s{sSo}, s{sOoff+u}")] + ([S(f"s_add_u32 s{sT0}, s{sT0}, {goff}")] if goff else [])
            G.append(g + [dma(VOFF, srd_ or sWO, f"s{sT0}", i * 64)])
    return G
def gate(lab, POLL, vfl, shift):
    return [V(f"v_readfirstlane_b32 s{sT2}, v{POLL}"), S(f"s_bfe_u32 s{sT2}, s{sT2}, {0x40000 + shift:#x}"), S(f"s_cmp_lg_u32 s{sT2}, 15"),
            branch("s_cbranch_scc1", lab)]
def spin(lab, POLL, vfl, shift, back):
    return [label(lab), bload(1, POLL, vfl, sDBG, 0, 0, 'sc1'), S(f"s_sub_u32 s{sCnt}, s{sCnt}, 1"), S(f"s_cmp_lt_i32 s{sCnt}, 0"), branch("s_cbranch_scc1", back),
            wait(vm=0), V(f"v_readfirstlane_b32 s{sT2}, v{POLL}"), S(f"s_bfe_u32 s{sT2}, s{sT2}, {0x40000 + shift:#x}"), S(f"s_cmp_eq_u32 s{sT2}, 15"),
            branch("s_cbranch_scc1", back), raw(f"s_sleep {Cfg.xsleep}"), branch("s_branch", lab)]

def gen_opre(w):
    sSo, sLd = sTK, sTV
    C = []
    for u in range(2):
        C += [label(f"L_opre{u}"), S(f"s_bitcmp1_b32 s{sWave}, 1"), branch("s_cbranch_scc1", f"L_opre{u}_1")]
        for nh in range(2):
            step = 10240 if nh == 0 else 40960
            B = [label(f"L_opre{u}_{nh}")]
            if u == 0:
                t = w.tmp + 1
                B += lane_id(t) + o_voff(nh, w.oVoff, t, w.dummy, w.vTch) + o_base(nh, sSo, sLd)
                B += [S(f"s_and_b32 s{sT3}, s{sG}, 4"), S(f"s_mul_i32 s{sT3}, s{sT3}, {16*step}"), S(f"s_add_u32 s{sSo}, s{sSo}, s{sT3}")]
            for ks in range(2): B += flat(o_dma(nh, u, w.oVoff, sSo, sLd, goff=ks * 4 * step, loff=ks * 20480))
            B += [branch("s_branch", f"L_opre{u}_back")]
            C += fix_hazards(B)
    C += fix_hazards([label("L_g1"), S(f"s_mov_b32 s{sCnt}, 0x8000"), V(f"v_mov_b32 v{w.tmp+2}, s{sFlag}")] + spin("L_g1_spin", w.oPoll, w.tmp + 2, 0, "L_g1_back"))
    return C

def gen_o():
    ACC = 0; SET = [100, 140]
    aB, aA0, aA1 = 180, 182, 184
    VOFF, POLL, VFL, T, L16, POLL2 = 186, 187, 188, 190, 196, 198
    LW, LR, VO, VO2 = T + 2, T + 3, T + 4, 199
    RB = 200
    sSo, sHi, sLd, sBase, sKs, sNq = 36, 37, 39, 40, 43, 44
    sXo, sXp, sOb, sVar = 60, 61, 62, 63
    sOD = sK
    st = lambda k, real=False: stamp(T, k, real)
    def acc(t): return ACC + 4 * t
    def fB(s_, jj): return SET[s_] + 4 * jj
    def fA(s_, nn): return SET[s_] + 20 + 4 * nn
    TS = [list(range(0, 7)), list(range(7, 13)), list(range(13, 19)), list(range(19, 25))]
    C = [label("L_o")] + st(80)
    if Cfg.prio: C += [raw("s_setprio 0")]
    lane = T; a = T + 1; b = T + 5
    C += lane_id(lane) + [V(f"v_lshlrev_b32 v{L16}, 4, v{lane}")]
    C += [S(f"s_lshr_b32 s{sKs}, s{sWave}, 2"), S(f"s_mul_i32 s{sT0}, s{sKs}, 20480"), S(f"s_and_b32 s{sT1}, s{sWave}, 1"), S(f"s_mul_i32 s{sT1}, s{sT1}, 5120"),
          S(f"s_add_u32 s{sT1}, s{sT0}, s{sT1}"),
          V(f"v_add_u32 v{aB}, s{sT1}, v{L16}"), V(f"v_add_u32 v{aB+1}, {2*OSLOT}, v{aB}"),
          V(f"v_lshrrev_b32 v{a}, 2, v{lane}"), V(f"v_bfe_u32 v{b}, v{lane}, 4, 1"), V(f"v_lshlrev_b32 v{b}, 5, v{b}"), V(f"v_lshl_add_u32 v{b}, v{a}, 6, v{b}"),
          V(f"v_and_b32 v{a}, 3, v{lane}"), V(f"v_lshl_add_u32 v{b}, v{a}, 3, v{b}"),
          S(f"s_add_u32 s{sT1}, s{sT0}, 10240"), V(f"v_add_u32 v{aA0}, s{sT1}, v{b}"), V(f"v_xor_b32 v{aA1}, 32, v{aA0}"),
          V(f"v_add_u32 v{aA0+1}, {2*OSLOT}, v{aA0}"), V(f"v_add_u32 v{aA1+1}, {2*OSLOT}, v{aA1}"),
          S(f"s_mov_b32 s{sHi}, 0")]
    C += [S(f"s_bitcmp1_b32 s{sWave}, 1"), branch("s_cbranch_scc1", "L_o_1")]
    C = fix_hazards(C)
    def late_setup():
        return [V(f"v_mov_b32 v{VFL}, s{sFlag}"), V(f"v_xor_b32 v{VFL+1}, 4, v{VFL}"), V(f"v_mov_b32 v{POLL}, 0"), V(f"v_mov_b32 v{POLL2}, 0"),
         S(f"s_and_b32 s{sNq}, s{sG}, 3"), S(f"s_mov_b32 s{sCnt}, 0x8000"),
         S(f"s_mul_i32 s{sT0}, s{sWave}, 13312"), V(f"v_add_u32 v{LW}, s{sT0}, v{L16}"),
         S(f"s_xor_b32 s{sT1}, s{sWave}, 4"), S(f"s_mul_i32 s{sT0}, s{sT1}, 13312"), V(f"v_add_u32 v{LR}, s{sT0}, v{L16}"),
         S(f"s_lshl_b32 s{sT0}, s2, 3"), S(f"s_add_u32 s{sT0}, s{sT0}, s{sWave}"), S(f"s_mul_i32 s{sXo}, s{sT0}, {SLAB}"), S(f"s_add_u32 s{sXo}, s{sXo}, {XCH_OFF}"),
         S(f"s_xor_b32 s{sT0}, s{sT0}, {8 if Cfg.map84 else 256}"), S(f"s_mul_i32 s{sXp}, s{sT0}, {SLAB}"), S(f"s_add_u32 s{sXp}, s{sXp}, {XCH_OFF}"),
         V(f"v_bfe_u32 v{VO}, v{L16}, 4, 4"), V(f"v_mul_u32_u24 v{VO}, 1280, v{VO}"),
         V(f"v_bfe_u32 v{a}, v{L16}, 8, 1"), V(f"v_lshl_add_u32 v{VO2}, v{a}, 5, v{VO}"), V(f"v_lshrrev_b32 v{a}, 9, v{L16}"), V(f"v_lshl_add_u32 v{VO2}, v{a}, 4, v{VO2}"),
         V(f"v_lshrrev_b32 v{a}, 8, v{L16}"), V(f"v_lshl_add_u32 v{VO}, v{a}, 3, v{VO}"),
         S(f"s_mul_i32 s{sOb}, s{sB}, 204800"), S(f"s_and_b32 s{sT0}, s{sWave}, 1"), S(f"s_mul_i32 s{sT0}, s{sT0}, 102400"), S(f"s_add_u32 s{sOb}, s{sOb}, s{sT0}"),
         S(f"s_mul_i32 s{sT0}, s{sNq}, 320"), S(f"s_add_u32 s{sOb}, s{sOb}, s{sT0}"), S(f"s_bfe_u32 s{sT0}, s{sWave}, 0x10001"), S(f"s_mul_i32 s{sT0}, s{sT0}, 160"),
         S(f"s_add_u32 s{sOb}, s{sOb}, s{sT0}"),
         S(f"s_lshr_b32 s{sVar}, s{sG}, 2"), S(f"s_lshl_b32 s{sT1}, s{sKs}, 1"), S(f"s_add_u32 s{sVar}, s{sVar}, s{sT1}")] + mode_vcc()
    def poll_load(): return [bload(1, POLL, VFL, sDBG, 0, 0, 'sc1'), bload(1, POLL2, VFL + 1, sDBG, 0, 0, 'sc1')]
    for nh in range(2):
        step = 10240 if nh == 0 else 40960
        src = sWS if nh == 0 else sWO
        R_ = [label(f"L_o_{nh}")] + o_voff(nh, VOFF, lane, a, b) + o_base(nh, sBase, sLd) + [S(f"s_add_u32 s{sLd}, s{sLd}, s{sT0}")]
        R_ += [S(f"s_mov_b32 s{sOD+i}, s{src+i}") for i in range(3)]
        def head_setup():
            return [S(f"s_and_b32 s{sT2}, s{sHi}, 3"), S(f"s_and_b32 s{sT3}, s{sG}, 4"), S(f"s_add_u32 s{sT2}, s{sT2}, s{sT3}"),
                    S(f"s_lshl_b32 s{sT2}, s{sT2}, 2"), S(f"s_lshr_b32 s{sT3}, s{sHi}, 2"), S(f"s_lshl_b32 s{sT3}, s{sT3}, 1"), S(f"s_add_u32 s{sT2}, s{sT2}, s{sT3}"),
                    S(f"s_add_u32 s{sT2}, s{sT2}, s{sKs}"), S(f"s_mul_i32 s{sT2}, s{sT2}, {4*step}"), S(f"s_add_u32 s{sSo}, s{sBase}, s{sT2}"),
                    S(f"s_add_u32 s{sHi}, s{sHi}, 1")]
        odma = lambda u: o_dma(nh, u, VOFF, sSo, sLd, srd_=sOD)
        def oreads(u):
            s_ = u & 1; hi = oslot(u) // (2 * OSLOT); off = oslot(u) % (2 * OSLOT)
            G = []
            for k in range(5):
                nb = 5 * nh + k
                ar = (aA1 if nb & 1 else aA0) + hi
                G.append([ds_read(2, fA(s_, k) + 2 * hh, ar, off + (hh * 5 + (nb >> 1)) * 1024, tr=True) for hh in range(2)])
                G.append([ds_read(4, fB(s_, k), aB + hi, off + k * 1024)])
            return G
        def omf(s_): return [mfma(acc(t), fA(s_, t % 5), fB(s_, t // 5), acc(t)) for t in range(25)]
        R_ += head_setup()
        R_ += [wait(vm=18), barrier()] + st(81) + st(82)
        R_ += flat(oreads(0))
        for r in range(50): R_.append(V(f"v_pk_mov_b32 v[{ACC+2*r}:{ACC+2*r+1}], 0, 0"))
        R_ += late_setup() + flat(odma(2))
        R_ += [wait(vm=13), branch("s_branch", f"L_o_in{nh}")]
        R_, q = finish(R_)
        it = lambda hi, wv, lab: [S(f"s_lshl_b32 s{sT2}, s{sHi}, 3"), S(f"s_add_u32 s{sT2}, s{sT2}, s{sWave}"), S(f"s_cmp_lg_u32 s{sT2}, {hi*8+wv}"), branch("s_cbranch_scc1", lab)]
        def ostage(u):
            L = [wait(vm=5, lgkm=0), barrier()]
            if u == 1: L = [wait(vm=5), label(f"L_o_in{nh}"), wait(lgkm=0), barrier()]
            fill = [(oreads(u)[:Cfg.o_nr], 0, Cfg.orh)]
            d = odma((u + 2) & 3)
            if u == 1:
                d = d + [head_setup() + [S(f"s_cmp_gt_u32 s{sHi}, 8"), S(f"s_cselect_b32 s{sOD+2}, 0, s{sOD+2}")]]
                if nh == 0: d = d + [it(5, 0, "L_g3_back") + gate("L_g2", POLL, VFL, 8) + [label("L_g2_back")] + gate("L_g3", POLL2, VFL + 1, 0) + [label("L_g3_back")]]
            if u == 3 and nh == 0: d = [it(4, 0, "L_p2") + poll_load() + [label("L_p2")]] + d
            if u == 2 and nh == 1:
                d = [it(2, 2, "L_nofl2") + [S(f"s_lshl_b32 s{sT2}, 0x100, s{sNq}")] + flag_add(T, f"s{sT2}", "L_nofl2")] + d
            if u == Cfg.tlbu and Cfg.tlbwarm:
                d = d + [[S(f"s_cmp_lg_u32 s{sHi}, {Cfg.tlbwarm}"), branch("s_cbranch_scc1", f"L_tw{nh}"), V(f"v_lshlrev_b32 v{T}, 3, v{L16}"), V(f"v_min_u32 v{T}, {SLAB-128}, v{T}"),
                          bload(1, RB, T, sWS, f"s{sXo}", 0, 'sc1'), label(f"L_tw{nh}")]]
            if u == 3: d = d + [[S(f"s_cmp_gt_u32 s{sHi}, 8")]]
            fill.append((d, Cfg.od0, Cfg.od1))
            if Cfg.oprio:
                n_ = len(Cfg.oprio)
                L = L[:-1] + [raw(f"s_setprio {n_}"), L[-1]]
                for i, pos in enumerate(Cfg.oprio): fill.append(([[raw(f"s_setprio {n_-1-i}")]], pos - 1, pos))
            return L + spread(omf(1 - (u & 1)), fill)
        B = [label(f"L_o_loop{nh}")] + ostage(1) + ostage(2) + ostage(3) + [branch("s_cbranch_scc1", "L_o_fin")] + ostage(0) + [branch("s_branch", f"L_o_loop{nh}")]
        Bc, q2 = loop_finish(B, [], R_)
        E = []
        if nh == 0: E += spin("L_g2", POLL, VFL, 8, "L_g2_back") + spin("L_g3", POLL2, VFL + 1, 0, "L_g3_back")
        C += R_ + Bc + fix_hazards(E)
    E = [label("L_o_fin")] + st(83) + [wait(vm=0, lgkm=0), barrier()]
    for v in range(1, 4): E += [S(f"s_cmp_eq_u32 s{sVar}, {v}"), branch("s_cbranch_scc1", f"L_o_epi{v}")]
    C += E
    for v in range(4):
        ks, kh = v >> 1, v & 1
        mine = TS[v]; xsend = TS[v ^ 1]; keep = sorted(mine + xsend); lsend = sorted(TS[v ^ 2] + TS[v ^ 3])
        ls = lambda i: [raw(f"s_memtime s[{64+2*i}:{65+2*i}]" if i < 4 else f"s_memtime s[{92+2*(i-4)}:{93+2*(i-4)}]"), wait(lgkm=0)] if Cfg.stamps == 6 else []
        E = [label(f"L_o_epi{v}")] + ls(0)
        order = lsend + xsend + mine
        mf = [mfma(acc(t), fA(1, t % 5), fB(1, t // 5), acc(t)) for t in order]
        wr = [[ds_write(4, LW, acc(t), i * 1024)] for i, t in enumerate(lsend)]
        E += spread(mf, [(wr, 4, 19)])
        E += [wait(lgkm=0)] + ls(1) + [barrier()] + ls(2)
        rorder = xsend + mine
        for i, t in enumerate(rorder): E.append(ds_read(4, RB + 4 * i, LR, keep.index(t) * 1024))
        PK = SET[0]
        for i, t in enumerate(rorder):
            for r in range(0, 4, 2): E.append(V(f"v_pk_add_f32 v[{acc(t)+r}:{acc(t)+r+1}], v[{acc(t)+r}:{acc(t)+r+1}], v[{RB+4*i+r}:{RB+4*i+r+1}]"))
            if t in xsend:
                k = xsend.index(t)
                E += [V(f"v_cvt_pk_bf16_f32 v{PK+2*k}, v{acc(t)}, v{acc(t)+1}"), V(f"v_cvt_pk_bf16_f32 v{PK+2*k+1}, v{acc(t)+2}, v{acc(t)+3}")]
                if k & 1 or k == len(xsend) - 1: E += dstore(4, PK + 4 * (k >> 1), L16, sWS, f"s{sXo}", (k >> 1) * 1024)
        E += st(84) + ls(3)
        n = len(mine); nl = (n + 1) // 2
        E += [V(f"v_mov_b32 v{POLL2}, 1"), V(f"v_mov_b32 v{VFL}, {SLAB-128}"), wait(vm=0), S("s_mov_b64 exec, 1")] + dstore(1, POLL2, VFL, sWS, f"s{sXo}", 0)
        if Cfg.poll_nt:
            SLOW.append([label(f"L_xp{v}"), bload(1, POLL, VFL, sWS, f"s{sXp}", 0, 'sc1'), branch("s_branch", f"L_xp{v}_b")])
            pl = [branch("s_cbranch_vccz", f"L_xp{v}"), bload(1, POLL, VFL, sWS, f"s{sXp}", 0, 'nt'), label(f"L_xp{v}_b")]
        else: pl = [bload(1, POLL, VFL, sWS, f"s{sXp}", 0, 'sc1')]
        E += [label(f"L_x{v}")] + pl + [
              S(f"s_sub_u32 s{sCnt}, s{sCnt}, 1"), S(f"s_cmp_lt_i32 s{sCnt}, 0"), branch("s_cbranch_scc1", f"L_x{v}_ok"), wait(vm=0),
              V(f"v_readfirstlane_b32 s{sT2}, v{POLL}"), S(f"s_cmp_eq_u32 s{sT2}, 1"), branch("s_cbranch_scc1", f"L_x{v}_ok"),
              raw(f"s_sleep {Cfg.xsleep2}"), branch("s_branch", f"L_x{v}"), label(f"L_x{v}_ok"), S("s_mov_b64 exec, -1")]
        ld = lambda pol: [bload(4, RB + 4 * k, L16, sWS, f"s{sXp}", k * 1024, pol) for k in range(nl)]
        SLOW.append([label(f"L_xl{v}")] + ld('sc1') + [branch("s_branch", f"L_xl{v}_b")])
        E += [branch("s_cbranch_vccz", f"L_xl{v}")] + ld('') + [label(f"L_xl{v}_b")]
        E += st(85) + ls(4)
        E += [wait(vm=0)] + ls(6)
        U = RB + 16
        k = 0
        while k < n:
            pair = Cfg.widest and k + 1 < n and mine[k] // 5 == mine[k + 1] // 5
            d = acc(mine[k])
            for h in range(2 if pair else 1):
                a_ = acc(mine[k + h]); r0 = RB + 2 * (k + h)
                E += [V(f"v_lshlrev_b32 v{U}, 16, v{r0}"), V(f"v_and_b32 v{U+1}, 0xffff0000, v{r0}"), V(f"v_lshlrev_b32 v{U+2}, 16, v{r0+1}"), V(f"v_and_b32 v{U+3}, 0xffff0000, v{r0+1}")]
                for r in range(0, 4, 2): E.append(V(f"v_pk_add_f32 v[{a_+r}:{a_+r+1}], v[{a_+r}:{a_+r+1}], v[{U+r}:{U+r+1}]"))
                E += [V(f"v_cvt_pk_bf16_f32 v{d+2*h}, v{a_}, v{a_+1}"), V(f"v_cvt_pk_bf16_f32 v{d+2*h+1}, v{a_+2}, v{a_+3}")]
            t = mine[k]
            E += [S(f"s_add_u32 s{sT0}, s{sOb}, {(t//5)*20480}")]
            if pair: E += [V(f"v_permlane16_swap_b32 v{d}, v{d+2}"), V(f"v_permlane16_swap_b32 v{d+1}, v{d+3}"), bstore(4, d, VO2, sOUT, f"s{sT0}", (t % 5) * 32, Cfg.out_pol)]
            else: E += [bstore(2, d, VO, sOUT, f"s{sT0}", (t % 5) * 32, Cfg.out_pol)]
            k += 2 if pair else 1
        E += st(86) + st(77, True)
        if Cfg.stamps == 6:
            E += [wait(vm=0)] + ls(5) + [V(f"v_mov_b32 v{T+1}, 0"), V(f"v_mov_b32 v{T}, s{sCnt}"), bstore(1, T, T + 1, sWS, f"s{sStamp+2}", 4 * 106)]
            for i, r in enumerate([64, 66, 68, 70, 92, 94]): E += [V(f"v_mov_b32 v{T}, s{r}"), bstore(1, T, T + 1, sWS, f"s{sStamp+2}", 4 * (100 + i))]
            E += [V(f"v_mov_b32 v{T}, s96"), bstore(1, T, T + 1, sWS, f"s{sStamp+2}", 4 * 107)]
        if Cfg.dbgst and ks == 1:
            E += [S(f"s_cmp_lg_u32 s{sWave}, 4"), branch("s_cbranch_scc1", f"L_dbgend{v}"), S(f"s_cmp_lg_u32 s2, {Cfg.dbgst}"), branch("s_cbranch_scc1", f"L_dbgend{v}"),
                  S("s_mov_b64 exec, 1"), V("v_mov_b32 v1, 0")]
            for i, r in enumerate(DREG):
                E += [S(f"s_sub_u32 s{r}, s{r}, s{sStamp+2}"), S(f"s_lshr_b32 s{r}, s{r}, 8"), S(f"s_and_b32 s{r}, s{r}, 0x3ff"), S(f"s_lshl_b32 s{r}, s{r}, {12 + 10*(i&1)}"), V(f"v_mov_b32 v{2+i}, s{r}"),
                      raw(f"buffer_atomic_or v{2+i}, v1, s[{sDBG}:{sDBG+3}], 0 offen offset:{8*(i>>1)+4} sc1")]
            E += [label(f"L_dbgend{v}")]
        E += [raw("s_endpgm")]
        E, _ = finish(E)
        C += E
    return C

def gen_kernel(name):
    C = [raw(f".globl {name}\n.p2align 8\n.type {name},@function\n{name}:\nKSTART:", 'label')]
    C += [S("s_cmp_lt_u32 s2, 256"), branch("s_cbranch_scc1", "L_go"), raw("s_endpgm"), label("L_go")]
    C += [raw("s_load_dwordx16 s[56:71], s[0:1], 0")]
    if Cfg.ent: C += [raw("s_memtime s[92:93]"), raw("s_memrealtime s[100:101]")]
    if Cfg.dbgst: C += [raw(f"s_memtime s[{sStamp+2}:{sStamp+3}]")] + [S(f"s_mov_b32 s{r}, 0") for r in DREG]
    if Cfg.delay:
        C += [S(f"s_bitcmp0_b32 s2, {Cfg.delay_bit}"), branch("s_cbranch_scc1", "L_nodelay"), S(f"s_mov_b32 s{sT0}, {Cfg.delay // 1024}"), label("L_delay"), raw("s_sleep 16"),
              S(f"s_sub_u32 s{sT0}, s{sT0}, 1"), S(f"s_cmp_lg_u32 s{sT0}, 0"), branch("s_cbranch_scc1", "L_delay"), label("L_nodelay")]
    C += [V("v_lshrrev_b32 v1, 6, v0"),
          S(f"s_and_b32 s{sB}, s2, 7"), S(f"s_lshl_b32 s{sB}, s{sB}, 2"), V(f"v_readfirstlane_b32 s{sWave}, v1"),
          S(f"s_lshr_b32 s{sT0}, s2, 6"), S(f"s_add_u32 s{sB}, s{sB}, s{sT0}"), S(f"s_bfe_u32 s{sG}, s2, 0x30003")]
    if Cfg.map84:
        C += [S(f"s_and_b32 s{sB}, s2, 6"), S(f"s_lshl_b32 s{sB}, s{sB}, 2"), S(f"s_lshr_b32 s{sT0}, s2, 5"), S(f"s_add_u32 s{sB}, s{sB}, s{sT0}"),
              S(f"s_and_b32 s{sG}, s2, 1"), S(f"s_lshl_b32 s{sG}, s{sG}, 2"), S(f"s_bfe_u32 s{sT0}, s2, 0x20003"), S(f"s_add_u32 s{sG}, s{sG}, s{sT0}")]
    C += [S(f"s_bfe_u32 s{sT0}, s{sWave}, 0x10001"), S(f"s_lshl_b32 s{sT2}, s{sG}, 2"), S(f"s_add_u32 s{sT2}, s{sT2}, s{sT0}"), S(f"s_lshl_b32 s{sWbase}, s{sT2}, 8"),
          S(f"s_cmp_lt_u32 s{sWave}, 4"), branch("s_cbranch_scc1", "L_w3"),
          S(f"s_and_b32 s{sT1}, s{sWave}, 1"), S(f"s_lshl_b32 s{sT2}, s{sT1}, 10"),
          S(f"s_lshl_b32 s{sLdsKV}, s{sT0}, 13"), S(f"s_add_u32 s{sLdsKV}, s{sLdsKV}, s{sT2}"),
          S(f"s_mul_i32 s{sLdsX}, s{sT0}, 10240"), S(f"s_add_u32 s{sLdsX}, s{sLdsX}, s{sT2}"),
          S(f"s_mul_i32 s{sXbase}, s{sB}, 204800"), S(f"s_mul_i32 s{sT2}, s{sT0}, 102400"), S(f"s_add_u32 s{sXbase}, s{sXbase}, s{sT2}")]
    if Cfg.rot:
        C += [S(f"s_bfe_u32 s{sRho}, s2, 0x20003") if Cfg.map84 else S(f"s_lshr_b32 s{sRho}, s2, 6"), S(f"s_mul_i32 s{sRho}, s{sRho}, 5"), S(f"s_add_u32 s{sRho}, s{sRho}, 1"), S(f"s_lshr_b32 s{sRho}, s{sRho}, 1"),
              S(f"s_lshr_b32 s{sT2}, s2, 5") if Cfg.map84 else S(f"s_mov_b32 s{sT2}, s{sG}"), S(f"s_add_u32 s{sRho}, s{sRho}, s{sT2}"), S(f"s_and_b32 s{sT2}, s2, 7"), S(f"s_add_u32 s{sRho}, s{sRho}, s{sT2}")]
        for _ in range(2): C += [S(f"s_sub_u32 s{sT2}, s{sRho}, 10"), S(f"s_cmp_ge_u32 s{sRho}, 10"), S(f"s_cselect_b32 s{sRho}, s{sT2}, s{sRho}")]
        if Cfg.rotn == 88: C += [S(f"s_lshr_b32 s{sRho}, s2, 5"), S(f"s_and_b32 s{sRho}, s{sRho}, 6"), S(f"s_add_u32 s{sRho}, s{sRho}, s{sG}"), S(f"s_add_u32 s{sRho}, s{sRho}, s2")]
        if Cfg.rotn == 19: C += [S(f"s_cmp_eq_u32 s{sRho}, 9"), S(f"s_cselect_b32 s{sRho}, 4, s{sRho}")]
        if Cfg.rotn == 8: C += [S(f"s_and_b32 s{sRho}, s2, 7")]
        if Cfg.rotn == 16:
            C += [S(f"s_and_b32 s{sRho}, s{sRho}, 1"), S(f"s_mul_i32 s{sRho}, s{sRho}, 5"), S(f"s_and_b32 s{sT2}, s2, 7"), S(f"s_add_u32 s{sRho}, s{sRho}, s{sT2}"),
                  S(f"s_sub_u32 s{sT2}, s{sRho}, 10"), S(f"s_cmp_ge_u32 s{sRho}, 10"), S(f"s_cselect_b32 s{sRho}, s{sT2}, s{sRho}")]
        if Cfg.rotn == 2: C += [S(f"s_and_b32 s{sRho}, s{sRho}, 1"), S(f"s_mul_i32 s{sRho}, s{sRho}, 5")]
        if Cfg.rotn == 4: C += [S(f"s_and_b32 s{sRho}, s{sRho}, 3"), S(f"s_mul_i32 s{sRho}, s{sRho}, 5"), S(f"s_lshr_b32 s{sRho}, s{sRho}, 1")]
    C = fix_hazards(C)
    w2, r2 = gen_w2(); w3, r3 = gen_w3()
    C += w2 + w3 + gen_o() + [label("KEND")] + r2 + r3 + flat(SLOW)
    for k, tag, par in CTX.stubs:
        C += [label(f"L_stub{k}"), raw(f"s_call_b64 s[{sRet}:{sRet+1}], L_rare_{tag}_{par}", 'branch'), branch("s_branch", f"L_back{k}")]
    return C

def kd(name, vgpr, accum, sgpr=102):
    return f""".section .rodata,"a"
.p2align 6
.amdhsa_kernel {name}
  .amdhsa_next_free_vgpr {vgpr}
  .amdhsa_next_free_sgpr {sgpr}
  .amdhsa_accum_offset {accum}
  .amdhsa_group_segment_fixed_size 0
  .amdhsa_kernarg_size 64
  .amdhsa_user_sgpr_count 2
  .amdhsa_user_sgpr_kernarg_segment_ptr 1
  .amdhsa_system_sgpr_workgroup_id_x 1
.end_amdhsa_kernel
"""

HDR = open('standalone__mha_block_cached__near_ridge.s.ref').read().split('; Override launch')[0]
DOC = """; Fused MHA block, one persistent workgroup per CU (generated by the author's own script).
; Two rounds of 2 heads: Q^T = Wq^T x^T (20 k-steps) -> S^T = K Q^T -> online softmax (running max kept as MFMA C input, re-based to
; Then out^T tile (160 x 160) over half of K from the four sibling workgroups' O (flags in d_debug), pair-wise partial-sum exchange via d_ws.
"""
def main(path):
    k1 = "standalone__mha_block_cached__near_ridge_kernel"
    s = HDR
    s += f"; @launch grid=(256,1,1) block=(512,1,1) lds={LDS_BYTES}\n"
    s += '.amdgcn_target "amdgcn-amd-amdhsa--gfx950"\n.text\n'
    s += DOC
    s += emit(gen_kernel(k1))
    s += kd(k1, 256, 256)
    open(path, 'w').write(s)
if __name__ == '__main__':
    for a in sys.argv[2:]:
        k, v = a.split('=', 1); setattr(Cfg, k, eval(v))
    main(sys.argv[1] if len(sys.argv) > 1 else 'mha2.s')
```
